```python
import torch

def _softmax(x, axis=-1):
    return torch.softmax(x, dim=axis)
def _gelu(x):
    return torch.nn.functional.gelu(x, approximate="tanh")
def _silu(x):
    return torch.nn.functional.silu(x)
def _sigmoid(x):
    return torch.sigmoid(x)
def _layernorm(x, axis=-1, eps=1e-5):
    m = x.mean(dim=axis, keepdim=True)
    v = x.var(dim=axis, keepdim=True, unbiased=False)
    return (x - m) / torch.sqrt(v + eps)
def _scatter_add(tgt, idx, src, axis=0):
    return tgt.clone().index_add_(axis, idx, src)
def _segment_sum(src, seg, n):
    out = torch.zeros((n,) + src.shape[1:], dtype=src.dtype)
    return out.index_add_(0, seg, src)
def _pad(x, pw):
    flat = tuple(v for pair in reversed(pw) for v in pair)
    return torch.nn.functional.pad(x, flat)

kernel_name = 'standalone__edge_featured_mpnn_mpnn__graph'

def setup_inputs():

    _w = (lambda a: (lambda t: t.to(torch.bfloat16) if t.is_floating_point() else t)(torch.as_tensor(a)))
    N, deg, D, De = 25000, 32, 64, max(4, 1)
    E = N * deg
    H = 2 * D
    return {
        "x": _w((lambda *s: torch.randn(*s, dtype=torch.bfloat16) * 0.05)(N, D)),
        "e_attr": _w((lambda *s: torch.randn(*s, dtype=torch.bfloat16) * 1.6)(E, De)),
        "src": _w((lambda lo, hi, *s: torch.randint(lo, hi, s))(0, N, E).to(torch.int64)),
        "dst": _w((lambda lo, hi, *s: torch.randint(lo, hi, s))(0, N, E).to(torch.int64)),
        "w1": _w((lambda *s: torch.randn(*s, dtype=torch.bfloat16) * 1.6)(2 * D + De, H) * (1.0 / (2 * D + De) ** 0.5)),
        "b1": _w((lambda *s: torch.randn(*s, dtype=torch.bfloat16) * 3.2)(H) * 0.01),
        "w2": _w((lambda *s: torch.randn(*s, dtype=torch.bfloat16) * 0.05)(H, D) * (1.0 / H ** 0.5)),
        "b2": _w((lambda *s: torch.randn(*s, dtype=torch.bfloat16) * 0.1)(D) * 0.01),
    }

def reference(x, e_attr, src, dst, w1, b1, w2, b2):
    N, D = x.shape
    h_src = x[src]
    h_dst = x[dst]
    m_in = torch.concatenate([h_src, h_dst, e_attr], axis=-1)
    h = _silu(m_in @ w1 + b1)
    msg = h @ w2 + b2
    return _segment_sum(msg, dst, N)
```

```python
import sys, struct

DEBUG = int(sys.argv[2]) if len(sys.argv) > 2 else 0

N = 25000; E = 800000
NB = 256; BN = 98; CH = 3128; NQ = CH // 4
RSTRIDE = 37632
DESC = 0x00A00000
WIMG = 0x00B00000
W1A = WIMG; W1B = WIMG + 16384; W2I = WIMG + 32768; W1C = WIMG + 49152
STAMP = 0x00C00000
WS_SIZE = 0x00D00000
K1_THREADS = 832
LOG2E = 1.4426950408889634
LN2 = 0.6931471805599453
def f2u(x): return struct.unpack("<I", struct.pack("<f", x))[0]

CNT = 0; CARRY = 512; FLAG = 1024; TABN = 1088
TILES = 4352; TSZ = 592; TMAX = 15
SB = TILES + 8 * TMAX * TSZ; SROW = 528; NSROW = 106
QB = SB + NSROW * SROW; QROW = 264
LDS2 = QB + 103 * QROW
assert LDS2 <= 163840 and SB % 16 == 0 and QB % 8 == 0
ZROW = 98
QZ = 102

out = []
def A(s=""):
    out.append(s)
def I(s):
    for l in s.strip("\n").split("\n"):
        out.append("    " + l.strip())
def L(name): out.append(name + ":")
def vr(a, n): return f"v[{a}:{a+n-1}]"
def sr(a, n): return f"s[{a}:{a+n-1}]"

nstamp = [0]
def stamp(base=76):
    if not DEBUG: return
    i = nstamp[0]; nstamp[0] += 1
    assert i < 12
    I(f"s_memrealtime {sr(base + 2*i, 2)}")
    I("s_waitcnt lgkmcnt(0)")
def dump_stamps(srd, kern, vt=2, base=76):
    if not DEBUG: return
    n = nstamp[0]
    I(f"""
    s_mov_b64 exec, -1
    v_lshrrev_b32 v{vt}, 6, v0
    s_lshl_b32 s3, s2, 4
    v_add_u32 v{vt}, s3, v{vt}
    v_lshlrev_b32 v{vt}, 6, v{vt}
    v_add_u32 v{vt}, {STAMP + kern*0x40000}, v{vt}
    s_mov_b64 exec, 1
    """)
    for i in range(n):
        I(f"v_mov_b32 v{vt+1}, s{base+2*i}")
        I(f"buffer_store_dword v{vt+1}, v{vt}, {srd}, 0 offen offset:{4*i}")
    I("s_waitcnt vmcnt(0)")
    nstamp[0] = 0

def srd(d, lo, hi, nrec, stride=0):
    I(f"s_mov_b32 s{d}, s{lo}")
    I(f"s_and_b32 s{d+1}, s{hi}, 0xffff")
    if stride: I(f"s_or_b32 s{d+1}, s{d+1}, {stride << 16}")
    I(f"s_mov_b32 s{d+2}, {nrec}")
    I(f"s_mov_b32 s{d+3}, 0x00020000")

def dpp_scan(v, vmax=None):
    steps = ["row_shr:1 row_mask:0xf bank_mask:0xf bound_ctrl:0", "row_shr:2 row_mask:0xf bank_mask:0xf bound_ctrl:0",
             "row_shr:4 row_mask:0xf bank_mask:0xf bound_ctrl:0", "row_shr:8 row_mask:0xf bank_mask:0xf bound_ctrl:0",
             "row_bcast:15 row_mask:0xa bank_mask:0xf", "row_bcast:31 row_mask:0xc bank_mask:0xf"]
    I("s_nop 1")
    for s in steps:
        I(f"v_add_u32_dpp v{v}, v{v}, v{v} {s}")
        if vmax is not None:
            I(f"v_max_u32_dpp v{vmax}, v{vmax}, v{vmax} {s}")
            I("s_nop 0")
        else:
            I("s_nop 1")

hdr = open("standalone__edge_featured_mpnn_mpnn__graph.s.ref").read().split("\n")
for l in hdr:
    if l.startswith("; Override") or "@launch" in l or l.startswith("; grid=ceil"): continue
    if not l.startswith(";"): break
    A(l)
A(f"; @launch kernel=mp_part_kernel grid=(260,1,1) block=({K1_THREADS},1,1) lds=40960")
A(f"; @launch kernel=mp_main_kernel grid=(256,1,1) block=(512,1,1) lds={LDS2}")
A('.amdgcn_target "amdgcn-amd-amdhsa--gfx950"')
A(".text")

A(".globl mp_part_kernel")
A(".p2align 8")
A(".type mp_part_kernel,@function")
L("mp_part_kernel")
I("""
s_cmp_ge_u32 s2, 256
s_cbranch_scc1 K1_prep
s_load_dwordx2 s[4:5], s[0:1], 8
s_load_dwordx4 s[8:11], s[0:1], 16
s_load_dwordx2 s[12:13], s[0:1], 80
""")
stamp()
I(f"""
v_lshlrev_b32 v1, 2, v0
v_mov_b32 v2, 0
ds_write_b32 v1, v2
v_lshlrev_b32 v3, 4, v0
v_lshlrev_b32 v4, 5, v0
s_mul_i32 s14, s2, {NQ}
s_sub_u32 s15, {E//4}, s14
s_min_u32 s15, s15, {NQ}
s_lshl_b32 s36, s14, 4
s_lshl_b32 s37, s14, 5
v_cmp_gt_u32 s[38:39], s15, v0
s_waitcnt lgkmcnt(0)
""")
srd(16, 10, 11, E*4)
srd(20, 8, 9, E*4)
srd(24, 4, 5, E*8)
I(f"""
s_mov_b64 exec, s[38:39]
buffer_load_dwordx4 v[8:11], v3, s[16:19], s36 offen
buffer_load_dwordx4 v[12:15], v3, s[20:23], s36 offen
buffer_load_dwordx4 v[16:19], v4, s[24:27], s37 offen
buffer_load_dwordx4 v[20:23], v4, s[24:27], s37 offen offset:16
s_mul_i32 s40, s2, {RSTRIDE}
s_add_u32 s28, s12, s40
s_addc_u32 s29, s13, 0
s_and_b32 s29, s29, 0xffff
s_mov_b32 s30, {CH*12}
s_mov_b32 s31, 0x00020000
""")
srd(32, 12, 13, WS_SIZE)
I(f"""
s_mov_b32 s41, 42800
s_mov_b32 s42, {(-BN*4) & 0xffffffff}
v_mov_b32 v5, 1
s_barrier
s_waitcnt vmcnt(3)
""")
stamp()
for i in range(4):
    I(f"v_mul_u32_u24 v{24+i}, s41, v{8+i}")
    I(f"v_lshrrev_b32 v{24+i}, 22, v{24+i}")
    I(f"v_lshlrev_b32 v{8+i}, 2, v{8+i}")
    I(f"v_mad_i32_i24 v{8+i}, v{24+i}, s42, v{8+i}")
    I(f"v_lshlrev_b32 v{24+i}, 2, v{24+i}")
    I(f"ds_add_rtn_u32 v{28+i}, v{24+i}, v5")
I("s_waitcnt vmcnt(2)")
for i in range(4):
    I(f"v_lshl_or_b32 v{8+i}, v{12+i}, 9, v{8+i}")
I("""
s_waitcnt lgkmcnt(0)
s_barrier
s_mov_b64 exec, -1
v_readfirstlane_b32 s43, v0
s_cmp_lg_u32 s43, 0
s_cbranch_scc1 K1_noscan
ds_read_b128 v[32:35], v3
s_waitcnt lgkmcnt(0)
v_add_u32 v36, v32, v33
v_add_u32 v37, v36, v34
v_add_u32 v38, v37, v35
v_mov_b32 v39, v38
""")
dpp_scan(39)
I(f"""
v_sub_u32 v40, v39, v38
v_add_u32 v41, v40, v32
v_add_u32 v42, v40, v36
v_add_u32 v43, v40, v37
ds_write_b128 v3, v[40:43]
v_lshl_or_b32 v44, v32, 16, v40
v_lshl_or_b32 v45, v33, 16, v41
v_lshl_or_b32 v46, v34, 16, v42
v_lshl_or_b32 v47, v35, 16, v43
s_waitcnt lgkmcnt(0)
""")
L("K1_noscan")
I("""
s_barrier
s_mov_b64 exec, s[38:39]
""")
for i in range(4):
    I(f"ds_read_b32 v{24+i}, v{24+i}")
I("s_waitcnt vmcnt(0)")
stamp()
for i in range(4):
    I(f"s_waitcnt lgkmcnt({3-i + 2*i})")
    I(f"v_add_u32 v{24+i}, v{24+i}, v{28+i}")
    I(f"v_mul_u32_u24 v{24+i}, 12, v{24+i}")
    I(f"v_add_u32 v{24+i}, 1024, v{24+i}")
    I(f"ds_write2_b32 v{24+i}, v{16+2*i}, v{17+2*i} offset0:0 offset1:1")
    I(f"ds_write_b32 v{24+i}, v{8+i} offset:8")
I("""
s_waitcnt lgkmcnt(0)
s_barrier
s_mov_b64 exec, -1
""")
for i in range(3):
    I(f"ds_read_b128 {vr(8+4*i,4)}, v3 offset:{1024 + i*K1_THREADS*16}")
I(f"""
s_cmp_lg_u32 s43, 0
s_cbranch_scc1 K1_nodesc
s_lshl_b32 s44, s2, 10
s_add_u32 s44, s44, {DESC}
buffer_store_dwordx4 v[44:47], v3, s[32:35], s44 offen
""")
L("K1_nodesc")
I(f"s_mov_b32 s45, {K1_THREADS*16}")
I(f"s_mov_b32 s46, {2*K1_THREADS*16}")
for i in range(3):
    I(f"s_waitcnt lgkmcnt({2-i})")
    I(f"buffer_store_dwordx4 {vr(8+4*i,4)}, v3, s[28:31], {['0','s45','s46'][i]} offen")
if DEBUG:
    stamp()
    I("s_waitcnt vmcnt(0)")
    stamp()
    dump_stamps("s[32:35]", 0)
I("s_endpgm")

L("K1_prep")
I(f"""
s_cmp_ge_u32 s2, 260
s_cbranch_scc1 K1_exit
s_load_dwordx2 s[4:5], s[0:1], 32
s_load_dwordx2 s[6:7], s[0:1], 48
s_load_dwordx2 s[12:13], s[0:1], 80
v_lshrrev_b32 v1, 6, v0
s_nop 0
v_readfirstlane_b32 s14, v1
s_sub_u32 s15, s2, 256
s_mul_i32 s15, s15, 13
s_add_u32 s14, s14, s15
v_and_b32 v1, 63, v0
v_lshlrev_b32 v2, 4, v1
s_waitcnt lgkmcnt(0)
""")
srd(16, 4, 5, 132*256)
srd(20, 6, 7, 128*128)
srd(32, 12, 13, WS_SIZE)
I(f"""
s_lshl_b32 s24, s14, 10
s_add_u32 s24, s24, {WIMG}
s_and_b32 s25, s14, 3
s_bfe_u32 s26, s14, 0x20002
s_mov_b32 s27, 1.0
s_cmp_gt_u32 s14, 48
s_cbranch_scc1 K1_exit
s_cmp_eq_u32 s14, 48
s_cbranch_scc1 K1_prep_c
s_cmp_ge_u32 s14, 32
s_cbranch_scc1 K1_prep_w2
""")
I(f"""
s_cmp_lt_u32 s14, 16
s_cselect_b32 s27, {f2u(-LOG2E)}, 1.0
s_cselect_b32 s28, 0, {64*256}
s_lshl_b32 s29, s25, 11
s_add_u32 s28, s28, s29
s_lshl_b32 s29, s26, 6
s_add_u32 s28, s28, s29
v_lshrrev_b32 v3, 5, v1
v_lshlrev_b32 v3, 13, v3
v_and_b32 v4, 31, v1
v_lshl_add_u32 v3, v4, 1, v3
""")
for i in range(8):
    I(f"buffer_load_ushort v{8+i}, v3, s[16:19], s28 offen offset:{256*i}")
I("s_branch K1_prep_fin")
L("K1_prep_w2")
I(f"""
s_lshl_b32 s28, s25, 10
s_lshl_b32 s29, s26, 1
s_add_u32 s28, s28, s29
v_bfe_u32 v3, v1, 4, 1
v_lshlrev_b32 v3, 13, v3
v_lshrrev_b32 v4, 5, v1
v_lshl_add_u32 v3, v4, 12, v3
v_and_b32 v4, 15, v1
v_lshl_add_u32 v3, v4, 3, v3
""")
for i in range(8):
    I(f"buffer_load_ushort v{8+i}, v3, s[20:23], s28 offen offset:{128*i}")
I("s_branch K1_prep_fin")
L("K1_prep_c")
I(f"""
s_mov_b32 s27, {f2u(-LOG2E)}
s_mov_b32 s28, {128*256}
""")
for i in range(8):
    I(f"buffer_load_ushort v{8+i}, v2, s[16:19], s28 offen offset:{2*i}")
L("K1_prep_fin")
I("s_waitcnt vmcnt(0)")
for i in range(8):
    I(f"v_lshlrev_b32 v{8+i}, 16, v{8+i}")
    I(f"v_mul_f32 v{8+i}, s27, v{8+i}")
for i in range(4):
    I(f"v_cvt_pk_bf16_f32 v{16+i}, v{8+2*i}, v{9+2*i}")
I("buffer_store_dwordx4 v[16:19], v2, s[32:35], s24 offen")
L("K1_exit")
I("s_endpgm")

sX, sWS, sOUT, sTMP = 4, 8, 12, 16
sB, sW, sTw, sG, sT, sRem, sGam, sK, sGmax, sBad = 20, 21, 22, 23, 24, 25, 26, 27, 28, 29
sONE = 30
sADV = 32
sC0, sC1, sC2, sC3 = 34, 35, 36, 37
sM = 40
sSC = 72
vLane = 1
vPA5, vPKey, vPGS, vPGQ = 2, 3, 4, 5
vKI = [6, 8]
vSC = 10; vQC = 11
vQ = [12, 13]
vSA = [14, 16]
vA5 = [18, 20]
vB5 = [22, 24]
vD, vN, vSO = 26, 28, 30
vAb = [32, 48]
vW1 = 64
vW2 = 128
vT = [192, 208]
vE = 224
vGS = 240; vGQ = 242; vMX = 243
vB2 = 244
vt0 = 248

A(".globl mp_main_kernel")
A(".p2align 8")
A(".type mp_main_kernel,@function")
L("mp_main_kernel")
I(f"""
s_cmp_ge_u32 s2, 256
s_cbranch_scc1 K2_exit
s_load_dwordx2 s[34:35], s[0:1], 0
s_load_dwordx2 s[36:37], s[0:1], 80
s_load_dwordx2 s[38:39], s[0:1], 64
s_load_dwordx2 s[72:73], s[0:1], 40
s_load_dwordx2 s[74:75], s[0:1], 56
""")
stamp()
I(f"""
s_and_b32 s{sB}, s2, 7
s_lshl_b32 s{sB}, s{sB}, 5
s_lshr_b32 s3, s2, 3
s_add_u32 s{sB}, s{sB}, s3
v_lshrrev_b32 v{vt0}, 6, v0
v_and_b32 v{vLane}, 63, v0
v_readfirstlane_b32 s{sW}, v{vt0}
v_lshrrev_b32 v{vt0+1}, 3, v{vLane}
v_lshlrev_b32 v{vt0+2}, 10, v{vt0+1}
v_lshlrev_b32 v{vt0+3}, 4, v{vLane}
s_lshl_b32 s40, s{sW}, 15
s_lshl_b32 s41, s{sB}, 2
s_add_u32 s40, s40, s41
s_add_u32 s40, s40, {DESC}
s_add_u32 s41, s40, 8192
s_add_u32 s42, s40, 16384
s_add_u32 s43, s40, 24576
s_waitcnt lgkmcnt(0)
""")
srd(sWS, 36, 37, WS_SIZE)
vDesc = 32
for jj in range(4):
    I(f"buffer_load_dword v{vDesc+jj}, v{vt0+2}, {sr(sWS,4)}, s{40+jj} offen")
for q in range(4):
    I(f"s_mov_b32 s44, {W1A + q*4096}")
    for i in range(4):
        I(f"buffer_load_dwordx4 {vr(vW1+16*q+4*i,4)}, v{vt0+3}, {sr(sWS,4)}, s44 offen offset:{1024*i}")
srd(sX, 34, 35, N, stride=128)
I(f"""
s_mul_i32 s44, s{sB}, {BN}
s_sub_u32 s45, {N}, s44
s_min_u32 s45, s45, {BN}
s_lshl_b32 s46, s44, 7
s_add_u32 s{sOUT}, s38, s46
s_addc_u32 s{sOUT+1}, s39, 0
s_and_b32 s{sOUT+1}, s{sOUT+1}, 0xffff
s_lshl_b32 s{sOUT+2}, s45, 7
s_mov_b32 s{sOUT+3}, 0x00020000
s_mov_b32 s{sC0}, s44
s_mov_b32 s{sONE}, 1.0
s_mov_b32 s{sONE+1}, 1.0
s_mov_b32 s{sADV}, {2*TSZ}
s_mov_b32 s{sADV+1}, {2*TSZ}
s_mov_b32 s{sBad}, 0
""")
z = 36
I(f"""
v_lshlrev_b32 v40, 2, v0
v_mov_b32 v41, 0
v_mov_b32 v42, {ZROW*SROW}
v_bfe_u32 v43, v0, 7, 2
v_cmp_eq_u32 vcc, 1, v43
s_nop 1
v_cndmask_b32 v41, v41, v42, vcc
v_cmp_gt_u32 vcc, 272, v0
s_and_saveexec_b64 s[44:45], vcc
ds_write_b32 v40, v41
s_mov_b64 exec, s[44:45]
""")
gdef = (ZROW*SROW) | ((QZ*QROW) << 16)
def lanemask(ls):
    m = 0
    for l in ls: m |= 1 << l
    return m
I(f"v_mov_b32 v{z}, 0")
for ls, val in (([8,9,10,11,20,21,22,23], 0xffffffff), ([24,25,32,33], 0x00003f80), ([26,27,34,35], 0x3f800000), ([36], gdef)):
    m = lanemask(ls)
    I(f"s_mov_b32 exec_lo, {m & 0xffffffff}")
    I(f"s_mov_b32 exec_hi, {m >> 32}")
    I(f"v_mov_b32 v{z}, {val}")
I("s_mov_b64 exec, -1")
I(f"""
v_mov_b32 v{z+1}, v{z}
v_mov_b32 v{z+2}, v{z}
v_mov_b32 v{z+3}, v{z}
s_mul_i32 s{sC1}, s{sW}, {TMAX*TSZ}
s_add_u32 s{sC1}, s{sC1}, {TILES}
v_add_u32 v40, s{sC1}, v{vt0+3}
s_mov_b32 exec_hi, 0x1f
""")
for t in range(TMAX):
    I(f"ds_write_b128 v40, {vr(z,4)} offset:{t*TSZ}")
I("s_mov_b64 exec, -1")
I(f"""
v_mov_b32 v44, 0
v_mov_b32 v45, 0
v_mov_b32 v46, 0
v_mov_b32 v47, 0
v_lshlrev_b32 v40, 4, v0
v_add_u32 v40, {SB}, v40
""")
for t in range(7):
    if t == 6:
        I(f"v_cmp_gt_u32 vcc, {NSROW*SROW//16 - 6*512}, v0")
        I("s_and_saveexec_b64 s[44:45], vcc")
    I(f"ds_write_b128 v40, v[44:47] offset:{t*8192}")
I("s_mov_b64 exec, -1")
I(f"""
v_lshlrev_b32 v40, 2, v{vLane}
v_add_u32 v40, {QB + QZ*QROW}, v40
ds_write_b32 v40, v44
""")
I(f"""
v_and_b32 v40, 31, v{vLane}
v_bfe_u32 v41, v{vLane}, 2, 1
v_and_b32 v42, 1, v{vLane}
v_bfe_u32 v43, v{vLane}, 3, 2
v_bfe_u32 v48, v{vLane}, 1, 1
v_lshl_add_u32 v43, v43, 1, v48
v_lshlrev_b32 v43, 2, v43
v_lshl_add_u32 v43, v42, 5, v43
v_add_u32 v43, s{sC1}, v43
v_mul_u32_u24 v48, 192, v41
v_add_u32 v48, v48, v43
v_add_u32 v{vPKey}, 128, v48
v_lshl_add_u32 v49, v41, 6, v43
v_add_u32 v49, 384, v49
v_cmp_le_u32 vcc, 32, v{vLane}
v_lshrrev_b32 v50, 5, v{vLane}
v_cndmask_b32 v{vPA5}, v48, v49, vcc
v_lshlrev_b32 v{vKI[0]+1}, 6, v50
v_lshlrev_b32 v{vKI[1]+1}, 6, v50
v_lshlrev_b32 v51, 3, v50
v_add_u32 v51, s{sC1}, v51
v_add_u32 v{vPGS}, 576, v51
v_bfe_u32 v52, v{vLane}, 2, 2
v_lshlrev_b32 v53, 2, v52
v_add_u32 v53, s{sC1}, v53
v_add_u32 v{vPGQ}, 578, v53
v_lshlrev_b32 v{vSC}, 2, v40
v_add_u32 v{vSC}, {SB}, v{vSC}
v_bfe_u32 v53, v{vLane}, 4, 1
v_lshlrev_b32 v53, 5, v53
v_and_b32 v54, 3, v{vLane}
v_lshl_add_u32 v53, v54, 3, v53
v_add_u32 v{vQC}, {QB}, v53
v_add_u32 v52, 98, v52
v_mul_u32_u24 v52, {QROW}, v52
v_add_u32 v{vQ[0]}, v52, v{vQC}
v_mov_b32 v{vQ[1]}, v{vQ[0]}
""")
vRec = 192
slotreg = {}
order = [(jj, rd) for rd in range(4) for jj in range(4)]
for n_, (jj, rd) in enumerate(order):
    slotreg[(jj, rd)] = 192 + 4*n_ if n_ < 12 else 48 + 4*(n_ - 12)
slotmask = {s: sM + 2*n_ for n_, s in enumerate(order)}
I(f"""
v_and_b32 v40, 7, v{vLane}
v_mul_u32_u24 v41, 12, v40
s_mov_b32 s3, {RSTRIDE}
v_mad_u32_u24 v41, v{vt0+1}, s3, v41
s_mul_i32 s{sC2}, s{sW}, {32*RSTRIDE}
s_waitcnt vmcnt(16)
""")
stamp()
for jj in range(4):
    I(f"v_and_b32 v{36+jj}, 0xffff, v{vDesc+jj}")
    I(f"v_mad_u32_u24 v{36+jj}, v{36+jj}, 12, v41")
    if jj: I(f"v_add_u32 v{36+jj}, {jj*8*RSTRIDE}, v{36+jj}")
    I(f"v_lshrrev_b32 v{vDesc+jj}, 16, v{vDesc+jj}")
    I(f"v_sub_u32 v{vDesc+jj}, v{vDesc+jj}, v40")
for (jj, rd) in order:
    I(f"v_cmp_lt_i32 {sr(slotmask[(jj,rd)],2)}, {8*rd}, v{vDesc+jj}")
I(f"v_max3_i32 v42, v{vDesc}, v{vDesc+1}, v{vDesc+2}")
I(f"v_max_i32 v42, v42, v{vDesc+3}")
I(f"v_cmp_lt_i32 vcc, 32, v42")
I(f"s_cmp_lg_u64 vcc, 0")
I(f"s_cselect_b32 s{sBad}, 1, 0")
lab = [0]
def slot_begin(s):
    jj, rd = s
    I(f"s_mov_b64 exec, {sr(slotmask[s],2)}")
    if rd >= 2:
        lab[0] += 1
        I(f"s_cbranch_execz K2_sk{lab[0]}")
def slot_end(s):
    if s[1] >= 2: L(f"K2_sk{lab[0]}")
for s in order:
    jj, rd = s
    slot_begin(s)
    I(f"buffer_load_dwordx3 {vr(slotreg[s],3)}, v{36+jj}, {sr(sWS,4)}, s{sC2} offen offset:{96*rd}")
    slot_end(s)
I("s_mov_b64 exec, -1")
I(f"""
s_and_b32 s3, s{sW}, 3
s_lshl_b32 s3, s3, 5
v_and_b32 v{vt0+4}, 31, v{vLane}
v_add_u32 v{vt0+4}, s3, v{vt0+4}
v_add_u32 v{vKI[0]}, s{sC0}, v{vt0+4}
""")
for ks in range(4):
    I(f"buffer_load_dwordx4 {vr(32+4*ks,4)}, {vr(vKI[0],2)}, {sr(sX,4)}, 0 idxen offen offset:{16*ks}")
I(f"""
s_lshr_b32 s{sC3}, s{sW}, 2
s_lshl_b32 s3, s{sC3}, 13
s_add_u32 s3, s3, {W1B}
""")
for jl in range(2):
    if jl: I("s_add_u32 s3, s3, 4096")
    for ks in range(4):
        I(f"buffer_load_dwordx4 {vr(128+16*jl+4*ks,4)}, v{vt0+3}, {sr(sWS,4)}, s3 offen offset:{1024*ks}")
srd(sTMP, 72, 73, 256)
I(f"""
v_lshlrev_b32 v{vt0+5}, 1, v{vLane}
v_and_b32 v{vt0+6}, 32, v{vLane}
v_lshl_add_u32 v{vt0+5}, v{vt0+6}, 4, v{vt0+5}
s_lshl_b32 s3, s{sC3}, 7
buffer_load_ushort v160, v{vt0+5}, {sr(sTMP,4)}, s3 offen
buffer_load_ushort v162, v{vt0+5}, {sr(sTMP,4)}, s3 offen offset:64
s_mov_b32 s3, {W1C}
buffer_load_dwordx4 v[164:167], v{vt0+3}, {sr(sWS,4)}, s3 offen
v_mov_b32 v161, 0
v_mov_b32 v163, 0
v_mov_b32 v168, 0x3f80
v_mov_b32 v169, 0
s_waitcnt lgkmcnt(0)
s_barrier
s_waitcnt vmcnt(15)
""")
stamp()
I(f"v_mov_b32 v{vt0+7}, 1")
vTA = {}
for n_, s in enumerate(order):
    vTA[s] = 170 + n_
for s in order:
    r = slotreg[s]
    slot_begin(s)
    I(f"v_and_b32 v{vTA[s]}, 0x1fc, v{r+2}")
    I(f"ds_add_rtn_u32 v{r+3}, v{vTA[s]}, v{vt0+7} offset:{CNT}")
    I(f"v_lshrrev_b32 v{r+2}, 9, v{r+2}")
    slot_end(s)
I("s_mov_b64 exec, -1")
I(f"""
s_waitcnt vmcnt(0)
s_mov_b32 s{sSC}, {f2u(-LOG2E)}
s_mov_b32 s{sSC+1}, {f2u(-LOG2E)}
v_mul_u32_u24 v{vt0+5}, {QROW}, v{vt0+4}
v_lshrrev_b32 v{vt0+6}, 5, v{vLane}
v_lshl_add_u32 v{vt0+5}, v{vt0+6}, 3, v{vt0+5}
s_lshl_b32 s3, s{sC3}, 7
s_add_u32 s3, s3, {QB}
v_add_u32 v{vt0+5}, s3, v{vt0+5}
v_cmp_gt_u32 s[38:39], {BN}, v{vt0+4}
""".replace(f"v_cmp_gt_u32 s[38:39], {BN}, v{vt0+4}", f"v_cmp_gt_u32 vcc, {BN}, v{vt0+4}\ns_mov_b64 s[38:39], vcc"))
for jl in range(2):
    I(f"v_mfma_f32_32x32x8_bf16 v[16:31], {vr(160+2*jl,2)}, v[168:169], 0")
    for ks in range(4):
        I(f"v_mfma_f32_32x32x16_bf16 v[16:31], {vr(128+16*jl+4*ks,4)}, {vr(32+4*ks,4)}, v[16:31]")
    I("s_nop 15")
    for i in range(8):
        I(f"v_pk_mul_f32 {vr(16+2*i,2)}, {vr(16+2*i,2)}, {sr(sSC,2)}")
    for i in range(8):
        I(f"v_cvt_pk_bf16_f32 v{16+i}, v{16+2*i}, v{17+2*i}")
    I("s_mov_b64 exec, s[38:39]")
    for rg in range(4):
        I(f"ds_write_b64 v{vt0+5}, {vr(16+2*rg,2)} offset:{64*jl + 16*rg}")
    I("s_mov_b64 exec, -1")
    if jl == 0: I("s_waitcnt lgkmcnt(0)")
I(f"""
v_lshrrev_b32 v{vt0+5}, 4, v{vLane}
v_mul_u32_u24 v{vt0+5}, {QROW}, v{vt0+5}
v_and_b32 v{vt0+6}, 15, v{vLane}
v_lshl_add_u32 v{vt0+5}, v{vt0+6}, 4, v{vt0+5}
v_add_u32 v{vt0+5}, {QB + 98*QROW}, v{vt0+5}
ds_write2_b64 v{vt0+5}, v[164:165], v[166:167] offset0:0 offset1:1
""")
for s in order:
    r = slotreg[s]
    if s[1] >= 2: slot_begin(s)
    I(f"v_lshrrev_b32 v{vt0+5}, 2, v{r+3}")
    I(f"v_and_b32 v{vt0+5}, 0x1e, v{vt0+5}")
    I(f"v_lshl_add_u32 v{vTA[s]}, v{vTA[s]}, 3, v{vt0+5}")
    I(f"v_and_b32 v{r+3}, 7, v{r+3}")
    slot_end(s)
I("s_mov_b64 exec, -1")
I("""
s_waitcnt lgkmcnt(0)
s_barrier
""")
stamp()
I(f"""
v_lshlrev_b32 v32, 3, v{vLane}
ds_read_b64 v[34:35], v32 offset:{CNT}
s_waitcnt lgkmcnt(0)
v_add_u32 v36, 7, v34
v_add_u32 v37, 7, v35
v_lshrrev_b32 v36, 3, v36
v_lshrrev_b32 v37, 3, v37
v_add_u32 v38, v36, v37
v_max_u32 v39, v36, v37
v_mov_b32 v40, v38
""")
dpp_scan(40, 39)
I(f"""
s_nop 0
v_readlane_b32 s{sG}, v40, 63
v_readlane_b32 s{sGmax}, v39, 63
v_sub_u32 v40, v40, v38
v_add_u32 v41, v40, v36
s_add_u32 s3, s{sG}, 3
s_lshr_b32 s3, s3, 2
s_cmp_gt_u32 s3, {8*TMAX}
s_cselect_b32 s{sBad}, 1, s{sBad}
s_cmp_gt_u32 s{sGmax}, {TMAX}
s_cselect_b32 s{sBad}, 1, s{sBad}
s_lshr_b32 s{sT}, s3, 3
s_and_b32 s{sRem}, s3, 7
s_cmp_gt_u32 s{sGmax}, s{sT}
s_cselect_b32 s{sT}, s{sGmax}, s{sT}
s_cselect_b32 s{sRem}, 0, s{sRem}
s_max_u32 s{sT}, s{sT}, 1
s_add_u32 s38, s{sT}, 1
s_lshl_b32 s39, s{sRem}, 2
s_mul_i32 s{sGam}, s39, s38
v_cvt_f32_u32 v42, s{sT}
v_cvt_f32_u32 v43, s38
v_rcp_f32 v42, v42
v_rcp_f32 v43, v43
v_mov_b32 v44, s{sT}
v_mov_b32 v45, s38
v_mov_b32 v46, s39
""")
I(f"""
s_cmp_lt_u32 s{sW}, s{sRem}
s_cselect_b32 s{sTw}, s38, s{sT}
s_cselect_b32 s3, 0, s39
s_mul_i32 s{sC2}, s{sTw}, s{sW}
s_lshl_b32 s{sC2}, s{sC2}, 2
s_add_u32 s{sC2}, s{sC2}, s3
s_sub_i32 s{sC2}, s{sG}, s{sC2}
s_max_i32 s{sC2}, s{sC2}, 0
s_min_u32 s{sTw}, s{sTw}, s{sC2}
s_mov_b32 s{sK}, s{sW}
v_mov_b32 v47, 0
""")
L("K2_build")
for ent in range(2):
    cnt, g, gb = 34+ent, 36+ent, 40+ent
    I(f"""
    v_cmp_lt_u32 vcc, s{sK}, v{g}
    s_and_saveexec_b64 s[38:39], vcc
    s_cbranch_execz K2_bskip{ent}
    v_add_u32 v16, s{sK}, v{gb}
    v_cmp_gt_u32 vcc, s{sGam}, v16
    v_lshlrev_b32 v17, 1, v{vLane}
    v_add_u32 v17, {ent}, v17
    v_cndmask_b32 v18, v46, v47, vcc
    v_cndmask_b32 v19, v44, v45, vcc
    v_cndmask_b32 v20, v42, v43, vcc
    v_sub_u32 v16, v16, v18
    v_cvt_f32_u32 v21, v16
    v_add_f32 v21, 0.5, v21
    v_mul_f32 v21, v21, v20
    v_cvt_u32_f32 v21, v21
    v_mul_u32_u24 v22, v21, v19
    v_sub_u32 v22, v16, v22
    v_and_b32 v23, 3, v21
    v_lshrrev_b32 v24, 2, v21
    v_mad_u32_u24 v25, v23, v19, v22
    v_cmp_gt_u32 vcc, s{sK}, v25
    v_mad_u32_u24 v26, v24, {TMAX}, v22
    v_mul_u32_u24 v26, {TSZ}, v26
    v_add_u32 v26, {TILES}, v26
    v_add_u32 v24, {ZROW}, v24
    v_cndmask_b32 v24, v17, v24, vcc
    v_mul_u32_u24 v24, {SROW}, v24
    v_mul_u32_u24 v27, {QROW}, v17
    v_lshl_or_b32 v27, v27, 16, v24
    v_lshl_add_u32 v28, v23, 2, v26
    ds_write_b32 v28, v27 offset:576
    v_and_b32 v28, 1, v23
    v_lshl_add_u32 v26, v28, 5, v26
    v_lshrrev_b32 v23, 1, v23
    v_mul_u32_u24 v28, 192, v23
    v_add_u32 v28, v28, v26
    v_lshrrev_b32 v28, 2, v28
    s_lshl_b32 s3, s{sK}, 1
    v_lshl_add_u32 v29, v17, 5, s3
    ds_write_b16 v29, v28 offset:{TABN}
    v_lshl_add_u32 v26, v23, 7, v26
    s_lshl_b32 s3, s{sK}, 3
    v_subrev_u32 v30, s3, v{cnt}
    v_lshlrev_b32 v29, 2, v17
    s_mov_b64 s[36:37], exec
    s_and_b64 exec, exec, vcc
    ds_write_b32 v29, v24 offset:{CARRY}
    s_mov_b64 exec, s[36:37]
    """)
    for idx in range(7, 0, -1):
        I(f"v_cmpx_ge_u32 vcc, {idx}, v30")
        I(f"ds_write_b32 v26, v47 offset:{384 + 4*idx}")
    L(f"K2_bskip{ent}")
    I("s_mov_b64 exec, -1")
I(f"""
s_add_u32 s{sK}, s{sK}, 8
s_cmp_lt_u32 s{sK}, s{sGmax}
s_cbranch_scc0 K2_build_done
s_cmp_lt_u32 s{sK}, 16
s_cbranch_scc1 K2_build
""")
L("K2_build_done")
I("""
s_waitcnt lgkmcnt(0)
s_barrier
""")
stamp()
for s in order:
    slot_begin(s)
    I(f"ds_read_u16 v{vTA[s]}, v{vTA[s]} offset:{TABN}")
    slot_end(s)
I("s_waitcnt lgkmcnt(0)")
for s in order:
    r = slotreg[s]
    slot_begin(s)
    I(f"v_add_lshl_u32 v{vTA[s]}, v{vTA[s]}, v{r+3}, 2")
    I(f"ds_write2_b32 v{vTA[s]}, v{r}, v{r+1} offset0:0 offset1:16")
    I(f"ds_write_b32 v{vTA[s]}, v{r+2} offset:128")
    slot_end(s)
I("s_mov_b64 exec, -1")
for q in range(4):
    I(f"s_mov_b32 s3, {W2I + q*4096}")
    if q == 0: I("s_waitcnt lgkmcnt(0)")
    for i in range(4):
        I(f"buffer_load_dwordx4 {vr(vW2+16*q+4*i,4)}, v{vt0+3}, {sr(sWS,4)}, s3 offen offset:{1024*i}")
srd(sTMP, 74, 75, 128)
I(f"""
v_and_b32 v{vt0+5}, 15, v{vLane}
v_lshlrev_b32 v{vt0+5}, 3, v{vt0+5}
buffer_load_dwordx2 {vr(vB2,2)}, v{vt0+5}, {sr(sTMP,4)}, 0 offen
s_barrier
""")
stamp()

def P(r): return f"v[{r}:{r+1}]"
def mf16(D, a, b, c): return f"v_mfma_f32_32x32x16_bf16 {vr(D,16)}, {vr(a,4)}, {vr(b,4)}, {c}"
def mf8(D, a, b, c): return f"v_mfma_f32_32x32x8_bf16 {vr(D,16)}, {vr(a,2)}, {vr(b,2)}, {c}"
def gather(par):
    return [f"buffer_load_dwordx4 {vr(vAb[par]+4*ks,4)}, {vr(vKI[par],2)}, {sr(sX,4)}, 0 idxen offen offset:{16*ks}" for ks in range(4)]
def mfmas(D, par, j, b5):
    l = [mf16(D, vAb[par]+4*ks, vW1+16*j+4*ks, "0" if ks == 0 else vr(D,16)) for ks in range(4)]
    l.append(mf8(D, vA5[par], b5, vr(D,16)))
    return l
def chain(T):
    l = [f"v_pk_add_f32 {P(vD)}, {P(vE)}, {sr(sONE,2)}",
         f"v_pk_fma_f32 {P(vN)}, {P(T)}, {P(vE+2)}, {P(T)}",
         f"v_pk_fma_f32 {P(vN)}, {P(T+2)}, {P(vD)}, {P(vN)}",
         f"v_pk_fma_f32 {P(vD)}, {P(vD)}, {P(vE+2)}, {P(vD)}"]
    for i in range(2, 8):
        l += [f"v_pk_fma_f32 {P(vN)}, {P(vN)}, {P(vE+2*i)}, {P(vN)}",
              f"v_pk_fma_f32 {P(vN)}, {P(T+2*i)}, {P(vD)}, {P(vN)}",
              f"v_pk_fma_f32 {P(vD)}, {P(vD)}, {P(vE+2*i)}, {P(vD)}"]
    return l
def addr_from_gtab(par):
    return [f"v_add_u32_sdwa v{vSA[par]}, v{vGS}, v{vSC} dst_sel:DWORD dst_unused:UNUSED_PAD src0_sel:WORD_0 src1_sel:DWORD",
            f"v_add_u32_sdwa v{vSA[par]+1}, v{vGS+1}, v{vSC} dst_sel:DWORD dst_unused:UNUSED_PAD src0_sel:WORD_0 src1_sel:DWORD",
            f"v_add_u32_dpp v{vQ[par]}, v{vGQ}, v{vQC} quad_perm:[0,1,2,3] row_mask:0xc bank_mask:0xf"]

I(f"""
v_mov_b32 v{vMX}, 0
s_cmp_eq_u32 s{sTw}, 0
s_cbranch_scc1 K2_loop_done
ds_read_b32 v{vKI[0]}, v{vPKey}
ds_read_b32 v{vKI[1]}, v{vPKey} offset:{TSZ}
ds_read_b64 {P(vGS)}, v{vPGS}
ds_read_u16 v{vGQ}, v{vPGQ}
ds_read2_b32 {P(vA5[0])}, v{vPA5} offset0:0 offset1:16
s_waitcnt lgkmcnt(4)
""")
for l in gather(0): I(l)
I(f"""
s_cmp_lt_u32 s{sTw}, 2
s_cbranch_scc1 K2_nog1
s_waitcnt lgkmcnt(3)
""")
for l in gather(1): I(l)
L("K2_nog1")
I("s_waitcnt lgkmcnt(0)")
for l in addr_from_gtab(0): I(l)
I(f"""
v_mov_b32 v{vN}, 0
v_mov_b32 v{vN+1}, 0
v_mov_b32 v{vD}, 1.0
v_mov_b32 v{vD+1}, 1.0
v_add_u32 v{vSA[1]}, {ZROW*SROW}, v{vSC}
v_add_u32 v{vSA[1]+1}, {ZROW*SROW}, v{vSC}
ds_read_b64_tr_b16 {P(vB5[0])}, v{vQ[0]}
ds_read_b64_tr_b16 {P(vB5[1])}, v{vQ[0]} offset:64
s_cmp_lt_u32 s{sTw}, 2
s_cbranch_scc1 K2_w0
s_waitcnt vmcnt(4)
s_branch K2_w1
""")
L("K2_w0")
I("s_waitcnt vmcnt(0)")
L("K2_w1")
stamp()
I("s_waitcnt lgkmcnt(1)")
for l in mfmas(vT[0], 0, 0, vB5[0]): I(l)
I("s_nop 15")
I("s_waitcnt lgkmcnt(0)")
I(f"s_mov_b32 s{sK}, s{sTw}")
A(".p2align 6")
L("K2_loop")
for par in range(2):
    toff = par * TSZ
    for j in range(4):
        T = vT[j & 1]; Tn = vT[(j+1) & 1]
        jp = (j - 1) & 3; pp = par if j > 0 else 1 - par
        jn = (j + 1) & 3; pn = par if j < 3 else 1 - par
        j2 = (j + 2) & 3; p2 = par if j < 2 else 1 - par
        pre = [f"ds_read_b32 v{vSO}, v{vSA[pp]} offset:{128*jp}",
               f"ds_read_b32 v{vSO+1}, v{vSA[pp]+1} offset:{128*jp}"]
        post_reads = [f"ds_read_b64_tr_b16 {P(vB5[j2 & 1])}, v{vQ[p2]} offset:{64*j2}"]
        extra = []
        if j == 0:
            extra = [f"ds_read_b64 {P(vGS)}, v{vPGS} offset:{toff+TSZ}",
                     f"ds_read_u16 v{vGQ}, v{vPGQ} offset:{toff+TSZ}",
                     f"ds_read_b32 v{vKI[par]}, v{vPKey} offset:{toff+2*TSZ}"]
        mf = mfmas(Tn, pn, jn, vB5[jn & 1])
        ex = [f"v_exp_f32 v{vE+i}, v{T+i}" for i in range(16)]
        seq = []
        seq += pre + post_reads + extra
        nl = len(pre) + len(post_reads) + len(extra)
        if j == 3:
            seq.append("s_waitcnt vmcnt(0)")
        seq += [mf[0]] + ex[0:3] + [mf[1]] + ex[3:6]
        if j == 3:
            seq += [f"s_cmp_lt_u32 s{sK}, 3", f"s_cbranch_scc1 K2_ng{par}"] + gather(par) + [f"K2_ng{par}:"]
        seq += [mf[2]] + ex[6:9] + [mf[3]] + ex[9:12]
        seq.append(f"s_waitcnt lgkmcnt({min(nl + 2, 15)})")
        seq += [mf[4]] + ex[12:16]
        seq += [f"v_max3_f32 v{vMX}, v{vD}, v{vD+1}, v{vMX}",
                f"v_rcp_f32 v{vD}, v{vD}", f"v_rcp_f32 v{vD+1}, v{vD+1}"]
        seq.append(f"s_waitcnt lgkmcnt({nl - 2})")
        seq.append(f"v_pk_fma_f32 {P(vSO)}, {P(vN)}, {P(vD)}, {P(vSO)}")
        ch = chain(T)
        seq += [ch[0]]
        seq += [f"ds_write_b32 v{vSA[pp]}, v{vSO} offset:{128*jp}",
                f"ds_write_b32 v{vSA[pp]+1}, v{vSO+1} offset:{128*jp}"]
        seq += ch[1:]
        if j == 1:
            seq += addr_from_gtab(1 - par)
            if par == 0:
                seq.append(f"ds_read2_b32 {P(vA5[1])}, v{vPA5} offset0:{TSZ//4} offset1:{TSZ//4+16}")
        if j == 1 and par == 1:
            seq += [f"v_lshl_add_u64 {P(vPA5)}, {P(vPA5)}, 0, {sr(sADV,2)}",
                    f"v_lshl_add_u64 {P(vPGS)}, {P(vPGS)}, 0, {sr(sADV,2)}",
                    f"ds_read2_b32 {P(vA5[0])}, v{vPA5} offset0:0 offset1:16"]
        for l in seq:
            if l.endswith(":"): A(l)
            else: I(l)
    I(f"s_sub_u32 s{sK}, s{sK}, 1")
    I(f"s_cmp_eq_u32 s{sK}, 0")
    if par == 0:
        I("s_cbranch_scc1 K2_fin0")
    else:
        I("s_cbranch_scc0 K2_loop")
for par in (1, 0):
    if par == 0: L("K2_fin0")
    I(f"""
    ds_read_b32 v{vSO}, v{vSA[par]} offset:384
    ds_read_b32 v{vSO+1}, v{vSA[par]+1} offset:384
    v_max3_f32 v{vMX}, v{vD}, v{vD+1}, v{vMX}
    v_rcp_f32 v{vD}, v{vD}
    v_rcp_f32 v{vD+1}, v{vD+1}
    s_waitcnt lgkmcnt(0)
    v_pk_fma_f32 {P(vSO)}, {P(vN)}, {P(vD)}, {P(vSO)}
    ds_write_b32 v{vSA[par]}, v{vSO} offset:384
    ds_write_b32 v{vSA[par]+1}, v{vSO+1} offset:384
    """)
    if par == 1: I("s_branch K2_loop_done")
L("K2_loop_done")
stamp()
I(f"""
s_lshl_b32 s3, s{sW}, 4
v_and_b32 v32, 15, v{vLane}
v_add_u32 v33, s3, v32
v_min_u32 v33, {ZROW}, v33
v_lshlrev_b32 v34, 2, v33
v_bfe_u32 v35, v{vLane}, 4, 1
v_lshlrev_b32 v35, 8, v35
v_lshrrev_b32 v36, 5, v{vLane}
v_lshl_add_u32 v35, v36, 7, v35
v_add_u32 v35, {SB}, v35
ds_read_b32 v34, v34 offset:{CARRY}
v_lshrrev_b32 v37, 4, v{vLane}
v_lshl_add_u32 v38, v37, 2, s3
v_lshlrev_b32 v39, 2, v38
ds_read_b128 v[40:43], v39 offset:{CNT}
v_mul_u32_u24 v33, {SROW}, v33
v_add_u32 v33, v33, v35
v_lshlrev_b32 v38, 7, v38
v_lshl_add_u32 v38, v32, 3, v38
s_waitcnt lgkmcnt(0)
v_add_u32 v34, v34, v35
s_barrier
s_cmp_eq_u32 s{sW}, 7
s_cbranch_scc1 K2_end
""")
stamp()
for i in range(8):
    I(f"ds_read_b128 {vr(64+4*i,4)}, v33 offset:{16*i}")
for i in range(7):
    I(f"ds_read_b128 {vr(96+4*i,4)}, v34 offset:{16*i}")
I(f"""
s_waitcnt vmcnt(0)
v_and_b32 v{vB2+3}, 0xffff0000, v{vB2+1}
v_lshlrev_b32 v{vB2+2}, 16, v{vB2+1}
v_and_b32 v{vB2+1}, 0xffff0000, v{vB2}
v_lshlrev_b32 v{vB2}, 16, v{vB2}
v_cvt_f32_u32 v40, v40
v_cvt_f32_u32 v41, v41
v_cvt_f32_u32 v42, v42
v_cvt_f32_u32 v43, v43
s_waitcnt lgkmcnt(6)
ds_read_b128 v[124:127], v34 offset:112
s_mov_b32 s{sSC}, {f2u(-LN2)}
""")
for ks in range(4):
    I(f"s_waitcnt lgkmcnt({6-2*ks})")
    for i in range(4):
        r = 64 + 8*ks + 2*i
        I(f"v_pk_add_f32 {P(r)}, {P(r)}, {P(r+32)}")
    for i in range(4):
        r = 64 + 8*ks + 2*i
        I(f"v_cvt_pk_bf16_f32 v{48+4*ks+i}, v{r}, v{r+1}")
    I("s_nop 1")
    for c in range(4):
        I(f"v_mfma_f32_16x16x32_bf16 {vr(192+4*c,4)}, {vr(48+4*ks,4)}, {vr(vW2+16*c+4*ks,4)}, {'0' if ks==0 else vr(192+4*c,4)}")
for c in range(4):
    for r in range(4):
        I(f"v_mul_f32 v{208+4*c+r}, v{40+r}, v{vB2+c}")
for c in range(4):
    for r in range(4):
        I(f"v_fmac_f32 v{208+4*c+r}, s{sSC}, v{192+4*c+r}")
for r in range(4):
    I(f"v_cvt_pk_bf16_f32 v{224+2*r}, v{208+r}, v{212+r}")
    I(f"v_cvt_pk_bf16_f32 v{225+2*r}, v{216+r}, v{220+r}")
    I(f"buffer_store_dwordx2 {P(224+2*r)}, v38, {sr(sOUT,4)}, 0 offen offset:{128*r}")
L("K2_end")
if DEBUG:
    stamp()
    I("s_waitcnt vmcnt(0)")
    stamp()
    dump_stamps(sr(sWS,4), 1)
L("K2_exit")
I("s_endpgm")

A('.section .rodata,"a"')
for name, vg in (("mp_part_kernel", 48), ("mp_main_kernel", 256)):
    A(".p2align 6")
    A(f".amdhsa_kernel {name}")
    A(f"  .amdhsa_next_free_vgpr {vg}")
    A("  .amdhsa_next_free_sgpr 102")
    A(f"  .amdhsa_accum_offset {vg}")
    A("  .amdhsa_group_segment_fixed_size 0")
    A("  .amdhsa_kernarg_size 88")
    A("  .amdhsa_user_sgpr_count 2")
    A("  .amdhsa_user_sgpr_kernarg_segment_ptr 1")
    A("  .amdhsa_system_sgpr_workgroup_id_x 1")
    A("  .amdhsa_float_denorm_mode_32 3")
    A(".end_amdhsa_kernel")

open(sys.argv[1], "w").write("\n".join(out) + "\n")
```

```python
import sys, struct

opts = dict(a.split("=") for a in sys.argv[2:])
DEBUG = int(opts.get("debug", 0))
PRIO = int(opts.get("prio", 1))
FORCE_SLOW = int(opts.get("slow", 0))

KNAME = "standalone__edge_featured_mpnn_mpnn__graph_kernel"
N = 25000; E = 800000
BN = 98; NW = 12; NTH = 768
QE = 3072; XE = 53; CH = QE + XE
GRAN = 0x10000
REC = 0x100000; RSTRIDE = 37632
PT = 0xB00000
STAMP = 0x1200000
WS_SIZE = 0x1300000
LOG2E = 1.4426950408889634
LN2 = 0.6931471805599453
def f2u(x): return struct.unpack("<I", struct.pack("<f", x))[0]

CNT = 0; CARRY = 512; PROG = 1024; FLAG = 1040; MAXC = 1044; TABN = 1088
CNT1 = TABN; GBASE = TABN; CNTR = TABN + 512
TILES = 4352; TSZ = 592; TMAX = 10; WREG = TMAX * TSZ
SB = TILES + NW * WREG
SB = (SB + 255) // 256 * 256
SROW = 528; NSROW = BN + NW
QB = SB + NSROW * SROW; QROW = 264
LDS = QB + 103 * QROW
assert LDS <= 163840 and QB % 8 == 0 and TILES % 128 == 0
RST = TILES; XRAW = TILES + 37632; W1RAW = SB; PST = SB + 32768
assert XRAW + 16384 <= SB and PST + BN * 256 <= QB
ZROW = BN; QZ = 102
PADKEY = 0x80000000
W2ROW = 192; W2X = 1536 + 32
SCANW, EXTRAW = 8, 9

out = []
def A(s=""): out.append(s)
def I(s):
    for l in s.strip("\n").split("\n"):
        l = l.strip()
        if not l: continue
        out.append(l if l.endswith(":") else "    " + l)
def L(name): out.append(name + ":")
def vr(a, n): return f"v[{a}:{a+n-1}]"
def sr(a, n): return f"s[{a}:{a+n-1}]"
def P(r): return f"v[{r}:{r+1}]"

sWS, sP, sOUT, sA, sBq, sC = 4, 8, 12, 16, 20, 24
sD = 28
pX, pE, pSRC, pDST, pW1, pB1, pW2, pB2, pOUT, pWS = 32, 34, 36, 38, 40, 42, 44, 46, 48, 50
sM = 32
sB, sW, sTw, sG, sT, sRem, sGam, sK, sGmax, sBad, sTag, sTag8, sReg, sMode, sK0, sMaxc = range(62, 78)
sONE = 78; sADV = 80; sSC = 82; sE0 = 84; sE1 = 86
t0, t1, t2, t3, t4, t5 = 88, 89, 90, 91, 92, 93
sNT = 94
vLane = 1
vPA5, vPKey, vPGS, vPGQ = 2, 3, 4, 5
vL4 = 6; vSC = 8; vQC = 9; vQ = 10; vGQ = 11
vSA = 12; vGS = 14; vA5 = 16; vB5 = [18, 20]; vD = 22; vN = 24; vSO = 26; vMX = 28; vST = 29; vB2 = 30
vW2S = 32
vt = 40
vLb = [48, 64]; vTL = 80; vTH = 96; vE = 112; vIX = 128
NVGPR = 168

nstamp = [0]
def stamp():
    if not DEBUG: return
    i = nstamp[0]; nstamp[0] += 1
    I(f"{'s_memtime' if DEBUG == 2 else 's_memrealtime'} s[100:101]")
    I("s_waitcnt lgkmcnt(0)")
    I(f"v_writelane_b32 v{vST}, s100, {i}")

def srd(d, p, nrec, stride=0, add=None):
    if add is None:
        I(f"s_mov_b32 s{d}, s{p}")
        I(f"s_and_b32 s{d+1}, s{p+1}, 0xffff")
    else:
        I(f"s_add_u32 s{d}, s{p}, {add}")
        I(f"s_addc_u32 s{d+1}, s{p+1}, 0")
        I(f"s_and_b32 s{d+1}, s{d+1}, 0xffff")
    I(f"s_mov_b32 s{d+2}, {nrec}")
    I(f"s_mov_b32 s{d+3}, 0x00020000")

def dpp_scan(v, vmax=None):
    steps = ["row_shr:1 row_mask:0xf bank_mask:0xf bound_ctrl:0", "row_shr:2 row_mask:0xf bank_mask:0xf bound_ctrl:0",
             "row_shr:4 row_mask:0xf bank_mask:0xf bound_ctrl:0", "row_shr:8 row_mask:0xf bank_mask:0xf bound_ctrl:0",
             "row_bcast:15 row_mask:0xa bank_mask:0xf", "row_bcast:31 row_mask:0xc bank_mask:0xf"]
    I("s_nop 1")
    for s in steps:
        I(f"v_add_u32_dpp v{v}, v{v}, v{v} {s}")
        if vmax is not None:
            I(f"v_max_u32_dpp v{vmax}, v{vmax}, v{vmax} {s}")
            I("s_nop 0")
        else:
            I("s_nop 1")
def lanemask(ls):
    m = 0
    for l in ls: m |= 1 << l
    return m
def setexec(m):
    I(f"s_mov_b32 exec_lo, {m & 0xffffffff}")
    I(f"s_mov_b32 exec_hi, {m >> 32}")
def mf16(D, a, b, c): return f"v_mfma_f32_32x32x16_bf16 {vr(D,16)}, {vr(a,4)}, {vr(b,4)}, {c}"
def mf8(D, a, b, c): return f"v_mfma_f32_32x32x8_bf16 {vr(D,16)}, {vr(a,2)}, {vr(b,2)}, {c}"
SDWA0 = "dst_sel:DWORD dst_unused:UNUSED_PAD src0_sel:WORD_0 src1_sel:DWORD"
SDWAB = "dst_sel:DWORD dst_unused:UNUSED_PAD src0_sel:DWORD src1_sel:BYTE_0"

def tile_init(valid, z):
    gdef = (ZROW*SROW) | ((QZ*QROW) << 16)
    for i in range(4): I(f"v_mov_b32 v{z+i}, 0")
    setexec(lanemask([8,9,10,11,20,21,22,23]))
    for i in range(4): I(f"v_mov_b32 v{z+i}, {PADKEY}")
    if valid:
        setexec(lanemask([24,25,26,27,32,33,34,35]))
        for i in range(4): I(f"v_mov_b32 v{z+i}, {0x3f800000 if i & 1 else 0x3f80}")
    setexec(lanemask([36]))
    for i in range(4): I(f"v_mov_b32 v{z+i}, {gdef}")
    I("s_mov_b64 exec, -1")
    I(f"v_lshl_add_u32 v{z+4}, v{vLane}, 4, s{sReg}")
    I("s_mov_b32 exec_hi, 0x1f")
    for t in range(TMAX):
        I(f"ds_write_b128 v{z+4}, {vr(z,4)} offset:{t*TSZ}")
    I("s_mov_b64 exec, -1")
def s_zero(z):
    nch = NSROW * SROW // 16
    for i in range(4): I(f"v_mov_b32 v{z+i}, 0")
    I(f"v_lshlrev_b32 v{z+4}, 4, v0")
    I(f"v_add_u32 v{z+4}, {SB}, v{z+4}")
    n = (nch + NTH - 1) // NTH
    for t in range(n):
        if (t + 1) * NTH > nch:
            I(f"v_cmp_gt_u32 vcc, {nch - t*NTH}, v0")
            I(f"s_and_b64 exec, exec, vcc")
        I(f"ds_write_b128 v{z+4}, {vr(z,4)} offset:{t*NTH*16}")
    I("s_mov_b64 exec, -1")
def small_init(z):
    I(f"""
    v_lshlrev_b32 v{z}, 2, v0
    v_mov_b32 v{z+1}, 0
    v_mov_b32 v{z+2}, {ZROW*SROW}
    v_lshrrev_b32 v{z+3}, 7, v0
    v_cmp_eq_u32 vcc, 1, v{z+3}
    s_nop 1
    v_cndmask_b32 v{z+1}, v{z+1}, v{z+2}, vcc
    v_cmp_gt_u32 vcc, 272, v0
    s_and_b64 exec, exec, vcc
    ds_write_b32 v{z}, v{z+1}
    s_mov_b64 exec, -1
    """)

hdr = open("standalone__edge_featured_mpnn_mpnn__graph.s.ref").read().split("\n")
for l in hdr:
    if "@launch" in l: continue
    if not l.startswith(";"): break
    A(l)
A(f"; @launch grid=(256,1,1) block=({NTH},1,1) lds={LDS}")
A('.amdgcn_target "amdgcn-amd-amdhsa--gfx950"')
A(".text")
A(f".globl {KNAME}")
A(".p2align 8")
A(f".type {KNAME},@function")
L(KNAME)
I(f"""
s_cmp_ge_u32 s2, 256
s_cbranch_scc1 L_exit
s_load_dwordx16 s[32:47], s[0:1], 0
s_load_dwordx2 {sr(pOUT,2)}, s[0:1], 64
s_load_dwordx2 {sr(pWS,2)}, s[0:1], 80
v_lshrrev_b32 v{vt}, 6, v0
v_and_b32 v{vLane}, 63, v0
v_readfirstlane_b32 s{sW}, v{vt}
s_mul_i32 s{t0}, s2, {QE*4}
v_lshl_add_u32 v{vt+1}, v0, 4, s{t0}
v_lshlrev_b32 v{vt+2}, 1, v{vt+1}
s_and_b32 s{sB}, s2, 7
s_lshl_b32 s{sB}, s{sB}, 5
s_lshr_b32 s{t1}, s2, 3
s_add_u32 s{sB}, s{sB}, s{t1}
s_mul_i32 s{t0}, s2, {XE}
s_add_u32 s{t0}, s{t0}, {256*QE}
v_add_lshl_u32 v{vt+3}, v{vLane}, s{t0}, 2
v_lshlrev_b32 v{vt+4}, 1, v{vt+3}
s_cmp_lg_u32 s{sW}, {EXTRAW}
s_waitcnt lgkmcnt(0)
s_cbranch_scc1 L_noex0
""")
XM = (1 << XE) - 1
setexec(XM)
I(f"""
global_load_dword v64, v{vt+3}, {sr(pDST,2)}
global_load_dword v65, v{vt+3}, {sr(pSRC,2)}
global_load_dwordx2 v[66:67], v{vt+4}, {sr(pE,2)}
s_mov_b64 exec, -1
L_noex0:
global_load_dwordx4 v[48:51], v{vt+1}, {sr(pDST,2)}
s_load_dword s{sTag}, {sr(pWS,2)}, 0
""")
if DEBUG:
    I(f"v_mov_b32 v{vST}, 0")
stamp()
srd(sA, pX, N*128)
srd(sBq, pW1, 132*256)
I(f"""
v_lshrrev_b32 v68, 3, v{vLane}
v_lshrrev_b32 v69, 4, v{vLane}
v_and_b32 v70, 7, v{vLane}
v_xor_b32 v70, v70, v69
v_lshlrev_b32 v70, 4, v70
v_lshl_add_u32 v70, v68, 7, v70
s_and_b32 s{t0}, s{sW}, 1
s_lshl_b32 s{t0}, s{t0}, 6
v_xor_b32 v71, s{t0}, v70
s_mul_i32 s{t1}, s{sB}, {BN*128}
s_lshl_b32 s{t2}, s{sW}, 10
s_add_u32 s{t3}, s{t1}, s{t2}
s_add_u32 m0, s{t2}, {XRAW}
s_add_u32 s{t1}, s{t1}, {12*1024}
buffer_load_dwordx4 v71, {sr(sA,4)}, s{t3} offen lds
s_mov_b32 m0, {XRAW + 12*1024}
v_and_b32 v72, 15, v{vLane}
buffer_load_dwordx4 v70, {sr(sA,4)}, s{t1} offen lds
v_lshlrev_b32 v73, 2, v69
v_xor_b32 v72, v72, v73
v_lshlrev_b32 v72, 4, v72
v_lshl_add_u32 v72, v69, 8, v72
""")
for i in range(3):
    if i: I(f"s_add_u32 s{t2}, s{t2}, {12*1024}")
    if i == 2: I(f"s_and_b32 s{t2}, s{t2}, 0x7fff")
    I(f"s_add_u32 m0, s{t2}, {W1RAW}")
    I("s_nop 0")
    I(f"buffer_load_dwordx4 v72, {sr(sBq,4)}, s{t2} offen lds")
srd(sC, pB1, 256)
I(f"""
v_lshlrev_b32 v74, 1, v{vLane}
v_and_b32 v75, 32, v{vLane}
v_lshl_add_u32 v74, v75, 4, v74
s_and_b32 s{t0}, s{sW}, 1
s_lshl_b32 s{t0}, s{t0}, 7
s_bitcmp1_b32 s{sW}, 1
s_cselect_b32 s{t0}, s{t0}, 0x1000
buffer_load_ushort v160, v74, {sr(sC,4)}, s{t0} offen
buffer_load_ushort v162, v74, {sr(sC,4)}, s{t0} offen offset:64
v_lshlrev_b32 v{vt+5}, 4, v{vLane}
s_mov_b32 s{t0}, {128*256}
buffer_load_dwordx4 v[12:15], v{vt+5}, {sr(sBq,4)}, s{t0} offen
global_load_dwordx4 v[52:55], v{vt+1}, {sr(pSRC,2)}
global_load_dwordx4 v[56:59], v{vt+2}, {sr(pE,2)}
global_load_dwordx4 v[60:63], v{vt+2}, {sr(pE,2)} offset:16
""")
srd(sD, pW2, 128*128)
I(f"""
v_lshlrev_b32 v{vt}, 4, v0
s_mov_b32 s{t0}, {NTH*16}
buffer_load_dwordx4 {vr(vW2S,4)}, v{vt}, {sr(sD,4)}, 0 offen
buffer_load_dwordx4 {vr(vW2S+4,4)}, v{vt}, {sr(sD,4)}, s{t0} offen
v_and_b32 v75, 15, v{vLane}
v_lshlrev_b32 v75, 3, v75
global_load_dwordx2 {P(vB2)}, v75, {sr(pB2,2)}
""")
I(f"""
v_lshlrev_b32 v75, 2, v0
v_mov_b32 v76, 0
ds_write_b32 v75, v76 offset:{CNT1}
""")
assert CNT1 + NTH * 4 <= TILES
small_init(76)
srd(sWS, pWS, WS_SIZE)
srd(sP, pWS, N*256, add=PT)
I(f"""
s_mul_i32 s{t0}, s{sB}, {BN}
s_sub_u32 s{t1}, {N}, s{t0}
s_min_u32 s{t1}, s{t1}, {BN}
s_lshl_b32 s{t2}, s{t0}, 7
s_add_u32 s{sOUT}, s{pOUT}, s{t2}
s_addc_u32 s{sOUT+1}, s{pOUT+1}, 0
s_and_b32 s{sOUT+1}, s{sOUT+1}, 0xffff
s_lshl_b32 s{sOUT+2}, s{t1}, 7
s_mov_b32 s{sOUT+3}, 0x00020000
s_mov_b32 s{sONE}, 1.0
s_mov_b32 s{sONE+1}, 1.0
s_mov_b32 s{sADV}, {TSZ}
s_mov_b32 s{sADV+1}, {TSZ}
s_mov_b32 s{sSC}, {f2u(-LOG2E)}
s_mov_b32 s{sSC+1}, {f2u(-LOG2E)}
s_mov_b32 s{sMode}, 0
s_mul_i32 s{sReg}, s{sW}, {WREG}
s_add_u32 s{sReg}, s{sReg}, {TILES}
s_mov_b32 s{t4}, 42800
s_mov_b32 s{t5}, {(-BN) & 0xffffffff}
v_mov_b32 v{vt+6}, 1
v_mov_b32 v161, 0
v_mov_b32 v163, 0
v_mov_b32 v164, 0x3f80
v_mov_b32 v165, 0
s_waitcnt lgkmcnt(0)
s_add_u32 s{sTag}, s{sTag}, 1
s_mul_i32 s{sTag8}, s{sTag}, 0x9e3779b1
s_and_b32 s{sTag8}, s{sTag8}, 0xff000000
s_barrier
""")
I(f"""
v_lshrrev_b32 v68, 5, v{vLane}
v_bfe_u32 v69, v{vLane}, 2, 2
v_lshl_add_u32 v70, v68, 5, v69
s_and_b32 s{t0}, s{sW}, 2
s_lshl_b32 s{t0}, s{t0}, 13
s_add_u32 s{t0}, s{t0}, {W1RAW}
v_lshl_add_u32 v70, v70, 8, s{t0}
v_bfe_u32 v71, v{vLane}, 4, 1
v_lshl_add_u32 v70, v71, 5, v70
v_and_b32 v71, 3, v{vLane}
v_lshl_add_u32 v70, v71, 3, v70
s_and_b32 s{t0}, s{sW}, 1
s_lshl_b32 s{t0}, s{t0}, 1
v_xor_b32 v71, s{t0}, v69
v_lshl_add_u32 v166, v71, 6, v70
v_xor_b32 v71, 1, v71
v_lshl_add_u32 v167, v71, 6, v70
s_lshr_b32 s{t0}, s{sW}, 2
s_lshl_b32 s{t0}, s{t0}, 5
v_and_b32 v78, 31, v{vLane}
v_add_u32 v78, s{t0}, v78
v_bfe_u32 v71, v{vLane}, 1, 3
v_lshlrev_b32 v72, 2, v68
v_xor_b32 v71, v71, v72
v_lshlrev_b32 v71, 4, v71
v_lshl_add_u32 v79, v78, 7, v71
v_add_u32 v79, {XRAW}, v79
s_waitcnt vmcnt(14)
""")
stamp()
def bucket_rank(d, a, r):
    I(f"v_mul_u32_u24 v{a}, s{t4}, v{d}")
    I(f"v_lshrrev_b32 v{a}, 22, v{a}")
    I(f"v_mad_i32_i24 v{d}, v{a}, s{t5}, v{d}")
    I(f"v_lshlrev_b32 v{a}, 2, v{a}")
    I(f"ds_add_rtn_u32 v{r}, v{a}, v{vt+6} offset:{CNT1}")
for i in range(4): bucket_rank(48+i, 68+i, 73+i)
I(f"s_cmp_lg_u32 s{sW}, {EXTRAW}")
I("s_cbranch_scc1 L_noex1")
setexec(XM)
bucket_rank(64, 72, 77)
I("s_mov_b64 exec, -1")
L("L_noex1")
I("""
s_waitcnt vmcnt(6) lgkmcnt(0)
s_barrier
""")
stamp()
I(f"""
s_cmp_lg_u32 s{sW}, {SCANW}
s_cbranch_scc1 L_noscan
ds_read_b128 v[80:83], v{vt+5} offset:{CNT1}
s_waitcnt lgkmcnt(0)
v_add_u32 v84, v80, v81
v_add_u32 v85, v84, v82
v_add_u32 v86, v85, v83
v_mov_b32 v87, v86
""")
dpp_scan(87)
I(f"""
v_sub_u32 v88, v87, v86
v_add_u32 v89, v88, v80
v_add_u32 v90, v88, v84
v_add_u32 v91, v88, v85
ds_write_b128 v{vt+5}, v[88:91] offset:{CNT1}
v_lshl_or_b32 v16, v80, 12, v88
v_lshl_or_b32 v18, v81, 12, v89
v_lshl_or_b32 v20, v82, 12, v90
v_lshl_or_b32 v22, v83, 12, v91
v_or_b32 v16, s{sTag8}, v16
v_or_b32 v18, s{sTag8}, v18
v_or_b32 v20, s{sTag8}, v20
v_or_b32 v22, s{sTag8}, v22
v_mov_b32 v17, s{sTag}
v_mov_b32 v19, s{sTag}
v_mov_b32 v21, s{sTag}
v_mov_b32 v23, s{sTag}
s_waitcnt lgkmcnt(0)
L_noscan:
""")
I(f"""
s_cmp_lg_u32 s{sW}, 10
s_cbranch_scc1 L_now1c
""")
for i in range(4):
    I(f"v_lshlrev_b32 v{80+2*i}, 16, v{12+i}")
    I(f"v_and_b32 v{81+2*i}, 0xffff0000, v{12+i}")
for i in range(4):
    I(f"v_pk_mul_f32 {P(80+2*i)}, {P(80+2*i)}, {sr(sSC,2)}")
for i in range(4):
    I(f"v_cvt_pk_bf16_f32 v{12+i}, v{80+2*i}, v{81+2*i}")
I(f"""
v_lshrrev_b32 v88, 4, v{vLane}
v_mul_u32_u24 v88, {QROW}, v88
v_and_b32 v89, 15, v{vLane}
v_lshl_add_u32 v88, v89, 4, v88
v_add_u32 v88, {QB + 98*QROW}, v88
ds_write2_b64 v88, v[12:13], v[14:15] offset0:0 offset1:1
v_lshlrev_b32 v88, 2, v{vLane}
v_add_u32 v88, {QB + QZ*QROW}, v88
ds_write_b32 v88, v165
s_waitcnt lgkmcnt(0)
L_now1c:
""")
for jl in range(2):
    for ks in range(4):
        for hf in range(2):
            I(f"ds_read_b64_tr_b16 {P(80+16*jl+4*ks+2*hf)}, v{166+jl} offset:{(8*ks+4*hf)*256}")
I(f"s_mov_b32 s{t0}, 0x07060302")
I(f"s_lshr_b32 s{sK}, s{sW}, 2")
L("L_pq")
I(f"""
v_xor_b32 v{vt+1}, 16, v79
v_xor_b32 v{vt+2}, 32, v79
v_xor_b32 v{vt+3}, 48, v79
ds_read_b128 v[112:115], v79
ds_read_b128 v[116:119], v{vt+1}
ds_read_b128 v[120:123], v{vt+2}
ds_read_b128 v[124:127], v{vt+3}
""")
I(mf8(128, 160, 164, "0"))
I(mf8(144, 162, 164, "0"))
I(f"v_cmp_gt_u32 vcc, {BN}, v78")
I(f"s_mov_b64 {sr(sE0,2)}, vcc")
I("s_waitcnt lgkmcnt(0)")
for ks in range(4):
    I(mf16(128, 80+4*ks, 112+4*ks, vr(128,16)))
    I(mf16(144, 96+4*ks, 112+4*ks, vr(144,16)))
I(f"""
v_lshrrev_b32 v{vt+1}, 5, v{vLane}
s_and_b32 s{t1}, s{sW}, 1
s_bitcmp1_b32 s{sW}, 1
s_cbranch_scc1 L_pq_q
s_lshl_b32 s{t1}, s{t1}, 3
v_add_u32 v{vt+1}, s{t1}, v{vt+1}
v_and_b32 v{vt+2}, 15, v78
v_xor_b32 v{vt+1}, v{vt+1}, v{vt+2}
v_lshlrev_b32 v{vt+1}, 4, v{vt+1}
v_lshl_add_u32 v{vt+1}, v78, 8, v{vt+1}
v_add_u32 v{vt+1}, {PST}, v{vt+1}
v_xor_b32 v{vt+2}, 32, v{vt+1}
v_xor_b32 v{vt+3}, 64, v{vt+1}
v_xor_b32 v{vt+4}, 0x60, v{vt+1}
s_nop 3
""")
for i in range(16):
    I(f"v_pk_mul_f32 {P(128+2*i)}, {P(128+2*i)}, {sr(sSC,2)}")
for i in range(16):
    I(f"v_add_u32 v{128+i}, 0x4000, v{128+i}")
for i in range(16):
    I(f"v_perm_b32 v{128+i}, v{144+i}, v{128+i}, s{t0}")
I(f"s_mov_b64 exec, {sr(sE0,2)}")
for rg in range(4):
    I(f"ds_write_b128 v{vt+1+rg}, {vr(128+4*rg,4)}")
I("s_branch L_pq_end")
L("L_pq_q")
I(f"""
s_lshl_b32 s{t1}, s{t1}, 7
s_add_u32 s{t1}, s{t1}, {QB}
v_lshl_add_u32 v{vt+1}, v{vt+1}, 3, s{t1}
v_mul_u32_u24 v{vt+2}, {QROW}, v78
v_add_u32 v{vt+1}, v{vt+1}, v{vt+2}
s_nop 7
""")
for i in range(16):
    I(f"v_pk_mul_f32 {P(128+2*i)}, {P(128+2*i)}, {sr(sSC,2)}")
for i in range(16):
    I(f"v_cvt_pk_bf16_f32 v{128+i}, v{128+2*i}, v{129+2*i}")
I(f"s_mov_b64 exec, {sr(sE0,2)}")
for jl in range(2):
    for rg in range(4):
        I(f"ds_write_b64 v{vt+1}, {P(128+8*jl+2*rg)} offset:{64*jl + 16*rg}")
L("L_pq_end")
I(f"""
s_mov_b64 exec, -1
s_waitcnt lgkmcnt(0)
s_cmp_lg_u32 s{sK}, 0
s_cbranch_scc1 L_pq_done
s_mov_b32 s{sK}, 1
v_add_u32 v78, 96, v78
v_add_u32 v79, {96*128}, v79
s_branch L_pq
L_pq_done:
s_barrier
""")
stamp()
I(f"""
v_lshrrev_b32 v80, 4, v0
v_xor_b32 v81, v80, v0
v_and_b32 v81, 15, v81
v_lshlrev_b32 v81, 4, v81
v_lshl_add_u32 v81, v80, 8, v81
v_add_u32 v81, {PST}, v81
ds_read_b128 v[84:87], v81
ds_read_b128 v[88:91], v81 offset:{48*256}
ds_read_b128 v[92:95], v81 offset:{96*256}
""")
for i in range(5):
    I(f"ds_read_b32 v{68+i}, v{68+i} offset:{CNT1}")
I(f"""
s_mul_i32 s{t0}, s{sB}, {BN*256}
s_add_u32 s{t0}, s{t0}, {PT}
s_add_u32 s{sA}, s{pWS}, s{t0}
s_addc_u32 s{sA+1}, s{pWS+1}, 0
s_and_b32 s{sA+1}, s{sA+1}, 0xffff
s_mov_b32 s{sA+2}, {BN*256}
s_mov_b32 s{sA+3}, 0x00020000
s_mul_i32 s{t0}, s2, {RSTRIDE}
s_add_u32 s{t0}, s{t0}, {REC}
s_add_u32 s{sBq}, s{pWS}, s{t0}
s_addc_u32 s{sBq+1}, s{pWS+1}, 0
s_and_b32 s{sBq+1}, s{sBq+1}, 0xffff
s_mov_b32 s{sBq+2}, {(CH*12+15)//16*16}
s_mov_b32 s{sBq+3}, 0x00020000
s_mov_b32 s{t1}, {NTH*16}
s_mov_b32 s{t2}, {2*NTH*16}
s_mov_b32 s{t3}, {3*NTH*16}
s_waitcnt lgkmcnt(7)
buffer_store_dwordx4 v[84:87], v{vt}, {sr(sA,4)}, 0 offen sc1
s_waitcnt lgkmcnt(6)
buffer_store_dwordx4 v[88:91], v{vt}, {sr(sA,4)}, s{t1} offen sc1
s_waitcnt lgkmcnt(5)
buffer_store_dwordx4 v[92:95], v{vt}, {sr(sA,4)}, s{t2} offen sc1
s_waitcnt lgkmcnt(0)
""")
for i in range(5):
    I(f"v_add_u32 v{68+i}, v{68+i}, v{73+i}")
    I(f"v_mul_u32_u24 v{68+i}, 12, v{68+i}")
    I(f"v_add_u32 v{68+i}, {RST}, v{68+i}")
I("s_waitcnt vmcnt(6)")
stamp()
for i in range(4):
    I(f"v_lshl_or_b32 v{48+i}, v{52+i}, 8, v{48+i}")
    I(f"ds_write2_b32 v{68+i}, v{56+2*i}, v{57+2*i} offset0:0 offset1:1")
    I(f"ds_write_b32 v{68+i}, v{48+i} offset:8")
I(f"s_cmp_lg_u32 s{sW}, {EXTRAW}")
I("s_cbranch_scc1 L_noex2")
setexec(XM)
I(f"""
v_lshl_or_b32 v64, v65, 8, v64
ds_write2_b32 v72, v66, v67 offset0:0 offset1:1
ds_write_b32 v72, v64 offset:8
s_mov_b64 exec, -1
L_noex2:
s_waitcnt lgkmcnt(0)
s_barrier
""")
stamp()
for i in range(4):
    I(f"ds_read_b128 {vr(48+4*i,4)}, v{vt} offset:{RST + i*NTH*16}")
for i in range(3):
    I(f"s_waitcnt lgkmcnt({3-i})")
    I(f"buffer_store_dwordx4 {vr(48+4*i,4)}, v{vt}, {sr(sBq,4)}, {['0', f's{t1}', f's{t2}'][i]} offen sc1")
I(f"""
s_waitcnt lgkmcnt(0)
s_cmp_lg_u32 s{sW}, 0
s_cbranch_scc1 L_no4
buffer_store_dwordx4 v[60:63], v{vt}, {sr(sBq,4)}, s{t3} offen sc1
L_no4:
""")
s_zero(64)
I(f"s_mov_b32 s{t0}, 0x05040100")
I(f"s_mov_b32 s{t1}, 0x07060302")
I("s_waitcnt vmcnt(6)")
for q in range(2):
    b = vW2S + 4*q
    I(f"""
    v_perm_b32 v72, v{b+2}, v{b}, s{t0}
    v_perm_b32 v73, v{b+2}, v{b}, s{t1}
    v_perm_b32 v74, v{b+3}, v{b+1}, s{t0}
    v_perm_b32 v75, v{b+3}, v{b+1}, s{t1}
    v_mov_b32 v{b}, v72
    v_mov_b32 v{b+1}, v73
    v_mov_b32 v{b+2}, v74
    v_mov_b32 v{b+3}, v75
    """)
I(f"""
v_and_b32 v72, 31, v{vLane}
v_lshlrev_b32 v{vL4}, 2, v72
v_mov_b32 v{vL4+1}, v{vL4}
v_add_u32 v{vSC}, {SB}, v{vL4}
v_bfe_u32 v73, v{vLane}, 4, 1
v_lshlrev_b32 v73, 5, v73
v_and_b32 v74, 3, v{vLane}
v_lshl_add_u32 v73, v74, 3, v73
v_add_u32 v{vQC}, {QB}, v73
v_bfe_u32 v75, v{vLane}, 2, 2
v_add_u32 v76, 98, v75
v_mul_u32_u24 v76, {QROW}, v76
v_add_u32 v{vQ}, v76, v{vQC}
""")
def ptr_consts(base):
    I(f"""
    v_bfe_u32 v72, v{vLane}, 2, 1
    v_bfe_u32 v73, v{vLane}, 3, 2
    v_and_b32 v74, 3, v{vLane}
    v_lshl_add_u32 v73, v73, 2, v74
    v_lshl_add_u32 v73, v73, 2, {base}
    v_mul_u32_u24 v74, 192, v72
    v_add_u32 v74, v74, v73
    v_lshl_add_u32 v73, v72, 6, v73
    v_add_u32 v73, 384, v73
    v_cmp_le_u32 vcc, 32, v{vLane}
    v_lshrrev_b32 v76, 5, v{vLane}
    v_bfe_u32 v75, v{vLane}, 2, 2
    v_cndmask_b32 v{vPA5}, v74, v73, vcc
    v_mul_u32_u24 v74, 192, v76
    v_add_u32 v74, 128, v74
    v_add_u32 v{vPKey}, {base}, v74
    v_lshl_add_u32 v74, v76, 3, {base}
    v_add_u32 v{vPGS}, 576, v74
    v_lshl_add_u32 v74, v75, 2, {base}
    v_add_u32 v{vPGQ}, 578, v74
    """)
ptr_consts(f"s{sReg}")
I("""
s_waitcnt vmcnt(0) lgkmcnt(0)
s_barrier
""")
stamp()
I(f"""
s_cmp_lg_u32 s{sW}, {SCANW}
s_cbranch_scc1 L_nopub
v_lshlrev_b32 v72, 5, v{vLane}
s_lshl_b32 s{t0}, s2, 11
s_add_u32 s{t0}, s{t0}, {GRAN}
buffer_store_dwordx4 v[16:19], v72, {sr(sWS,4)}, s{t0} offen sc0 sc1
buffer_store_dwordx4 v[20:23], v72, {sr(sWS,4)}, s{t0} offen offset:16 sc0 sc1
L_nopub:
""")
tile_init(True, 64)
vDs = 124
vRA = 130
def load_desc():
    I(f"""
    v_lshrrev_b32 v133, 3, v{vLane}
    v_lshlrev_b32 v134, 11, v133
    s_lshl_b32 s{t0}, s{sW}, 14
    s_lshl_b32 s{t1}, s{sB}, 3
    s_add_u32 s{t0}, s{t0}, s{t1}
    s_add_u32 s{t0}, s{t0}, {GRAN}
    s_add_u32 s{t1}, s{t0}, {12*16384}
    s_add_u32 s{t2}, s{t0}, {24*16384}
    s_cmp_ge_u32 s{sW}, 8
    s_cselect_b32 s{t2}, s{t0}, s{t2}
    """)
def decode_desc():
    I(f"""
    v_and_b32 v135, 7, v{vLane}
    v_mul_u32_u24 v136, 12, v135
    s_mov_b32 s{t0}, {RSTRIDE}
    v_mad_u32_u24 v136, v133, s{t0}, v136
    s_mul_i32 s{t3}, s{sW}, {8*RSTRIDE}
    s_add_u32 s{t3}, s{t3}, {REC}
    s_cmp_ge_u32 s{sW}, 8
    s_cselect_b32 s{t0}, 0, -1
    v_and_b32 v{vDs+4}, s{t0}, v{vDs+4}
    """)
    for jj in range(3):
        I(f"v_and_b32 v{vRA+jj}, 0xfff, v{vDs+2*jj}")
        I(f"v_mad_u32_u24 v{vRA+jj}, v{vRA+jj}, 12, v136")
        if jj: I(f"v_add_u32 v{vRA+jj}, {jj*96*RSTRIDE}, v{vRA+jj}")
        I(f"v_bfe_u32 v{vDs+2*jj}, v{vDs+2*jj}, 12, 12")
        I(f"v_sub_u32 v{vDs+2*jj}, v{vDs+2*jj}, v135")
load_desc()
I(f"s_mov_b32 s{sK}, 0")
L("L_poll")
for jj in range(3):
    I(f"buffer_load_dwordx2 {P(vDs+2*jj)}, v134, {sr(sWS,4)}, s{t0+jj} offen sc1")
I(f"""
s_add_u32 s{sK}, s{sK}, 1
s_cmp_gt_u32 s{sK}, 0x40000
s_cbranch_scc1 L_exit
s_waitcnt vmcnt(0)
v_xor_b32 v135, s{sTag8}, v{vDs}
v_xor_b32 v136, s{sTag8}, v{vDs+2}
v_xor_b32 v137, s{sTag8}, v{vDs+4}
v_or3_b32 v135, v135, v136, v137
v_lshrrev_b32 v135, 24, v135
v_xor_b32 v136, s{sTag}, v{vDs+1}
v_xor_b32 v137, s{sTag}, v{vDs+3}
v_xor_b32 v138, s{sTag}, v{vDs+5}
v_or3_b32 v135, v135, v136, v137
v_or_b32 v135, v135, v138
v_cmp_ne_u32 vcc, 0, v135
s_cbranch_vccnz L_poll
""")
stamp()
decode_desc()
NR = 5
order = [(jj, rd) for rd in range(NR) for jj in range(3)]
slotreg = {s: 48 + 4*n_ for n_, s in enumerate(order)}
slotmask = {s: sM + 2*n_ for n_, s in enumerate(order)}
vTA = {s: 108 + n_ for n_, s in enumerate(order)}
for (jj, rd) in order:
    I(f"v_cmp_lt_i32 {sr(slotmask[(jj,rd)],2)}, {8*rd}, v{vDs+2*jj}")
I(f"""
v_max3_i32 v137, v{vDs}, v{vDs+2}, v{vDs+4}
v_cmp_lt_i32 vcc, {8*NR}, v137
s_or_b64 {sr(sE1,2)}, {sr(slotmask[(0,3)],2)}, {sr(slotmask[(1,3)],2)}
s_or_b64 {sr(sE1,2)}, {sr(sE1,2)}, {sr(slotmask[(2,3)],2)}
""")
lab = [0]
def slots(body, always_mask=True):
    lab[0] += 1; grp = lab[0]
    for s in order:
        jj, rd = s
        if s == (0, 3):
            I(f"s_cmp_eq_u64 {sr(sE1,2)}, 0")
            I(f"s_cbranch_scc1 L_sg{grp}")
        skip = rd >= 2 or jj == 2
        if skip or always_mask:
            I(f"s_mov_b64 exec, {sr(slotmask[s],2)}")
        else:
            I("s_mov_b64 exec, -1") if False else None
        if skip:
            lab[0] += 1
            I(f"s_cbranch_execz L_sk{lab[0]}")
        body(s)
        if skip: L(f"L_sk{lab[0]}")
    L(f"L_sg{grp}")
    I("s_mov_b64 exec, -1")
slots(lambda s: I(f"buffer_load_dwordx3 {vr(slotreg[s],3)}, v{vRA+s[0]}, {sr(sWS,4)}, s{t3} offen offset:{96*s[1]} sc1"))
I(f"""
s_cbranch_vccz L_nobig
v_mov_b32 v137, 0
ds_write_b32 v137, v{vt+6} offset:{FLAG}
L_nobig:
s_waitcnt vmcnt(0)
""")
stamp()
def rank_body(s):
    r = slotreg[s]
    I(f"v_lshlrev_b32_sdwa v{vTA[s]}, 2, v{r+2} {SDWAB}")
    I(f"v_and_b32 v{r+2}, 0xffffff00, v{r+2}")
    I(f"ds_add_rtn_u32 v{r+3}, v{vTA[s]}, v{vt+6} offset:{CNT}")
slots(rank_body)
I("""
s_waitcnt lgkmcnt(0)
s_barrier
""")
stamp()
I(f"""
s_or_b32 s{t0}, s2, s{sW}
s_cmp_lg_u32 s{t0}, 0
s_cbranch_scc1 L_nogen
v_mov_b32 v137, 0
v_mov_b32 v138, s{sTag}
s_mov_b64 exec, 1
buffer_store_dword v138, v137, {sr(sWS,4)}, 0 offen sc0 sc1
s_mov_b64 exec, -1
L_nogen:
""")
I(f"""
v_lshlrev_b32 v136, 3, v{vLane}
v_mov_b32 v151, 0
ds_read_b64 v[138:139], v136 offset:{CNT}
ds_read_b32 v137, v151 offset:{FLAG}
""")
def addr_body(s):
    r = slotreg[s]
    I(f"v_lshrrev_b32 v152, 2, v{r+3}")
    I(f"v_and_b32 v152, 0x1e, v152")
    I(f"v_lshl_add_u32 v{vTA[s]}, v{vTA[s]}, 3, v152")
    I(f"v_and_b32 v{r+3}, 7, v{r+3}")
I(f"""
s_waitcnt lgkmcnt(0)
v_add_u32 v140, 7, v138
v_add_u32 v141, 7, v139
v_lshrrev_b32 v140, 3, v140
v_lshrrev_b32 v141, 3, v141
v_add_u32 v142, v140, v141
v_max_u32 v143, v140, v141
v_mov_b32 v144, v142
v_readfirstlane_b32 s{sBad}, v137
""")
dpp_scan(144, 143)
I(f"""
s_nop 0
v_readlane_b32 s{sG}, v144, 63
v_readlane_b32 s{sGmax}, v143, 63
v_sub_u32 v144, v144, v142
v_add_u32 v145, v144, v140
s_add_u32 s{t0}, s{sG}, 3
s_lshr_b32 s{t0}, s{t0}, 2
s_cmp_gt_u32 s{t0}, {NW*TMAX}
s_cselect_b32 s{sBad}, 1, s{sBad}
s_cmp_gt_u32 s{sGmax}, {TMAX}
s_cselect_b32 s{sBad}, 1, s{sBad}
""")
if FORCE_SLOW == 1: I(f"s_mov_b32 s{sBad}, 1")
I(f"""
s_cmp_lg_u32 s{sBad}, 0
s_cbranch_scc1 L_slow
s_mul_i32 s{sT}, s{t0}, 171
s_lshr_b32 s{sT}, s{sT}, 11
s_mul_i32 s{t1}, s{sT}, {NW}
s_sub_u32 s{sRem}, s{t0}, s{t1}
s_cmp_gt_u32 s{sGmax}, s{sT}
s_cselect_b32 s{sT}, s{sGmax}, s{sT}
s_cselect_b32 s{sRem}, 0, s{sRem}
s_max_u32 s{sT}, s{sT}, 1
s_add_u32 s{t1}, s{sT}, 1
s_lshl_b32 s{t2}, s{sRem}, 2
s_mul_i32 s{sGam}, s{t2}, s{t1}
v_cvt_f32_u32 v146, s{sT}
v_cvt_f32_u32 v147, s{t1}
v_rcp_f32 v146, v146
v_rcp_f32 v147, v147
v_mov_b32 v148, s{sT}
v_mov_b32 v149, s{t1}
v_mov_b32 v150, s{t2}
s_cmp_lt_u32 s{sW}, s{sRem}
s_cselect_b32 s{sTw}, s{t1}, s{sT}
s_cselect_b32 s{t0}, 0, s{t2}
s_mul_i32 s{t1}, s{sTw}, s{sW}
s_lshl_b32 s{t1}, s{t1}, 2
s_add_u32 s{t1}, s{t1}, s{t0}
s_sub_i32 s{t1}, s{sG}, s{t1}
s_max_i32 s{t1}, s{t1}, 0
s_min_u32 s{sTw}, s{sTw}, s{t1}
v_lshlrev_b32 v153, 1, v{vLane}
s_mov_b32 s{sK}, s{sW}
s_cmp_lt_u32 s{sW}, 6
s_cbranch_scc1 L_build
s_sub_u32 s{sK}, s{sW}, 6
v_mov_b32 v138, v139
v_mov_b32 v140, v141
v_mov_b32 v144, v145
v_add_u32 v153, 1, v153
L_build:
v_cmp_lt_u32 vcc, s{sK}, v140
s_and_b64 exec, exec, vcc
s_cbranch_execz L_bskip
v_add_u32 v154, s{sK}, v144
v_cmp_gt_u32 vcc, s{sGam}, v154
v_mul_u32_u24 v165, {QROW}, v153
s_lshl_b32 s{t0}, s{sK}, 1
v_cndmask_b32 v156, v150, v151, vcc
v_cndmask_b32 v157, v148, v149, vcc
v_cndmask_b32 v158, v146, v147, vcc
v_sub_u32 v154, v154, v156
v_cvt_f32_u32 v159, v154
v_add_f32 v159, 0.5, v159
v_mul_f32 v159, v159, v158
v_cvt_u32_f32 v159, v159
v_mul_u32_u24 v160, v159, v157
v_sub_u32 v160, v154, v160
v_and_b32 v161, 3, v159
v_lshrrev_b32 v162, 2, v159
v_mad_u32_u24 v163, v161, v157, v160
v_cmp_gt_u32 vcc, s{sK}, v163
v_mad_u32_u24 v164, v162, {TMAX}, v160
v_mul_u32_u24 v164, {TSZ}, v164
v_add_u32 v164, {TILES}, v164
v_add_u32 v162, {ZROW}, v162
v_cndmask_b32 v162, v153, v162, vcc
v_mul_u32_u24 v162, {SROW}, v162
v_lshl_or_b32 v165, v165, 16, v162
v_lshl_add_u32 v166, v161, 2, v164
ds_write_b32 v166, v165 offset:576
v_and_b32 v166, 1, v161
v_lshl_add_u32 v164, v166, 2, v164
v_lshrrev_b32 v161, 1, v161
v_mul_u32_u24 v166, 192, v161
v_add_u32 v166, v166, v164
v_lshrrev_b32 v166, 2, v166
v_lshl_add_u32 v167, v153, 5, s{t0}
ds_write_b16 v167, v166 offset:{TABN}
v_lshl_add_u32 v164, v161, 7, v164
s_lshl_b32 s{t0}, s{sK}, 3
v_subrev_u32 v155, s{t0}, v138
v_lshlrev_b32 v167, 2, v153
s_mov_b64 {sr(sE0,2)}, exec
s_and_b64 exec, exec, vcc
ds_write_b32 v167, v162 offset:{CARRY}
s_mov_b64 exec, {sr(sE0,2)}
""")
for idx in range(7, 0, -1):
    I(f"v_cmpx_ge_u32 vcc, {idx}, v155")
    I(f"ds_write_b32 v164, v151 offset:{384 + 8*idx}")
I(f"""
L_bskip:
s_mov_b64 exec, -1
s_add_u32 s{sK}, s{sK}, 6
s_cmp_lt_u32 s{sK}, s{sGmax}
s_cbranch_scc1 L_build
""")
slots(addr_body)
I("""
s_waitcnt lgkmcnt(0)
s_barrier
""")
stamp()
slots(lambda s: I(f"ds_read_u16 v{vTA[s]}, v{vTA[s]} offset:{TABN}"))
I("s_waitcnt lgkmcnt(0)")
def scat_body(s):
    r = slotreg[s]
    I(f"v_lshl_add_u32 v{vTA[s]}, v{r+3}, 1, v{vTA[s]}")
    I(f"v_lshlrev_b32 v{vTA[s]}, 2, v{vTA[s]}")
    I(f"ds_write2_b32 v{vTA[s]}, v{r}, v{r+1} offset0:0 offset1:16")
    I(f"ds_write_b32 v{vTA[s]}, v{r+2} offset:128")
slots(scat_body)
I("""
s_waitcnt lgkmcnt(0)
s_barrier
""")
stamp()

def chain(T):
    l = [f"v_pk_add_f32 {P(vD)}, {P(vE)}, {sr(sONE,2)}",
         f"v_pk_fma_f32 {P(vN)}, {P(T)}, {P(vE+2)}, {P(T)}",
         f"v_pk_fma_f32 {P(vN)}, {P(T+2)}, {P(vD)}, {P(vN)}",
         f"v_pk_fma_f32 {P(vD)}, {P(vD)}, {P(vE+2)}, {P(vD)}"]
    for i in range(2, 8):
        l += [f"v_pk_fma_f32 {P(vN)}, {P(vN)}, {P(vE+2*i)}, {P(vN)}",
              f"v_pk_fma_f32 {P(vN)}, {P(T+2*i)}, {P(vD)}, {P(vN)}",
              f"v_pk_fma_f32 {P(vD)}, {P(vD)}, {P(vE+2*i)}, {P(vD)}"]
    return l
def keys(off): return [f"ds_read_b128 {vr(vIX+4*i,4)}, v{vPKey} offset:{off+16*i}" for i in range(4)]
def ixadd(): return [f"v_lshl_add_u64 {P(vIX+2*i)}, {P(vIX+2*i)}, 0, {P(vL4)}" for i in range(8)]
def gload(u): return [f"buffer_load_dword v{vLb[u]+i}, v{vIX+i}, {sr(sP,4)}, 0 offen offset:{128*u} sc1" for i in range(16)]
def shifts(u): return [f"v_lshlrev_b64 {P(vTL+2*i)}, 16, {P(vLb[u]+2*i)}" for i in range(8)]
SAUPD = [f"v_add_u32_sdwa v{vSA}, v{vGS}, v{vSC} {SDWA0}", f"v_add_u32_sdwa v{vSA+1}, v{vGS+1}, v{vSC} {SDWA0}"]
QUPD = f"v_add_u32_dpp v{vQ}, v{vGQ}, v{vQC} quad_perm:[0,1,2,3] row_mask:0xc bank_mask:0xf"

I(f"""
v_mov_b32 v{vMX}, 0
s_cmp_eq_u32 s{sTw}, 0
s_cbranch_scc1 L_loop_done
""")
for l in keys(0): I(l)
I(f"""
ds_read_b64 {P(vGS)}, v{vPGS}
ds_read_u16 v{vGQ}, v{vPGQ}
ds_read2_b32 {P(vA5)}, v{vPA5} offset0:0 offset1:16
s_waitcnt lgkmcnt(3)
""")
for l in ixadd() + gload(0) + gload(1) + keys(TSZ): I(l)
I("s_waitcnt lgkmcnt(4)")
I(QUPD)
I(f"""
v_mov_b32 v{vN}, 0
v_mov_b32 v{vN+1}, 0
v_mov_b32 v{vD}, 1.0
v_mov_b32 v{vD+1}, 1.0
v_add_u32 v{vSA}, {ZROW*SROW}, v{vSC}
v_add_u32 v{vSA+1}, {ZROW*SROW}, v{vSC}
ds_read_b64_tr_b16 {P(vB5[0])}, v{vQ}
ds_read_b64_tr_b16 {P(vB5[1])}, v{vQ} offset:64
s_waitcnt lgkmcnt(2)
""")
for l in ixadd(): I(l)
I("s_waitcnt vmcnt(16)")
stamp()
for l in shifts(0): I(l)
I("s_waitcnt lgkmcnt(0)")
I("s_nop 0")
I(mf8(vTL, vA5, vB5[0], vr(vTL,16)))
I(f"s_mov_b32 s{sK}, s{sTw}")
I("s_nop 15")

body = []
def lds(text, tag=None): body.append(("lds", text, tag))
def need(tag): body.append(("need", tag))
def em(x):
    if isinstance(x, list): body.extend(x)
    else: body.append(x)
if PRIO == 1:
    em([f"s_cmp_gt_u32 s{sK}, 5", "s_cbranch_scc1 L_p3", f"s_cmp_gt_u32 s{sK}, 2", "s_cbranch_scc1 L_p2",
        f"s_cmp_gt_u32 s{sK}, 1", "s_cbranch_scc1 L_p1", "s_setprio 0", "s_branch L_pe",
        "L_p3:", "s_setprio 3", "s_branch L_pe", "L_p2:", "s_setprio 2", "s_branch L_pe", "L_p1:", "s_setprio 1", "L_pe:"])
for j in range(4):
    T = vTH if j & 1 else vTL
    jp = (j - 1) & 3; j2 = (j + 2) & 3
    ex = [f"v_exp_f32 v{vE+i}, v{T+i}" for i in range(16)]
    lds(f"ds_read_b32 v{vSO}, v{vSA} offset:{128*jp}")
    lds(f"ds_read_b32 v{vSO+1}, v{vSA+1} offset:{128*jp}", f"so{j}")
    lds(f"ds_read_b64_tr_b16 {P(vB5[j & 1])}, v{vQ} offset:{64*j2}", f"b5_{j2}")
    if j == 1:
        lds(f"ds_read_b64 {P(vGS)}, v{vPGS} offset:{TSZ}")
        lds(f"ds_read_u16 v{vGQ}, v{vPGQ} offset:{TSZ}", "gq")
    if j & 1 == 0:
        u = j >> 1
        need(f"b5_{j+1}")
        em(mf8(vTH, vA5, vB5[1], vr(vLb[u],16)))
        g = gload(u)
        for i in range(16):
            em(ex[i]); em(g[i])
            if j == 2 and i == 3:
                lds(f"ds_read2_b32 {P(vA5)}, v{vPA5} offset0:{TSZ//4} offset1:{TSZ//4+16}", "a5")
        if j == 2:
            kk = keys(2*TSZ)
            for i in range(4): lds(kk[i], "keys" if i == 3 else None)
    else:
        jn = (j + 1) & 3; un = jn >> 1
        em("s_waitcnt vmcnt(16)")
        em(shifts(un))
        em(ex[0:2])
        need(f"b5_{jn}")
        if j == 3: need("a5")
        em(mf8(vTL, vA5, vB5[0], vr(vTL,16)))
        em(ex[2:])
        if j == 3:
            need("keys")
            em(ixadd())
            em([f"v_lshl_add_u64 {P(vPA5)}, {P(vPA5)}, 0, {sr(sADV,2)}", f"v_lshl_add_u64 {P(vPGS)}, {P(vPGS)}, 0, {sr(sADV,2)}"])
    em([f"v_max3_f32 v{vMX}, v{vD}, v{vD+1}, v{vMX}", f"v_rcp_f32 v{vD}, v{vD}", f"v_rcp_f32 v{vD+1}, v{vD+1}"])
    need(f"so{j}")
    em(f"v_pk_fma_f32 {P(vSO)}, {P(vN)}, {P(vD)}, {P(vSO)}")
    ch = chain(T)
    em(ch[0])
    lds(f"ds_write_b32 v{vSA}, v{vSO} offset:{128*jp}")
    lds(f"ds_write_b32 v{vSA+1}, v{vSO+1} offset:{128*jp}")
    em(ch[1:])
    if j == 0: em(SAUPD)
    if j == 1:
        need("gq")
        em(QUPD)
seq2 = body + body
res = []
for pos in range(len(body), 2*len(body)):
    x = seq2[pos]
    if isinstance(x, tuple) and x[0] == "need":
        n = 0; p = pos - 1
        while not (isinstance(seq2[p], tuple) and seq2[p][0] == "lds" and seq2[p][2] == x[1]):
            if isinstance(seq2[p], tuple) and seq2[p][0] == "lds": n += 1
            p -= 1
        res.append(f"s_waitcnt lgkmcnt({min(n,15)})")
    elif isinstance(x, tuple): res.append(x[1])
    else: res.append(x)
A(".p2align 6")
L("L_loop")
for l in res: I(l)
I(f"""
s_sub_u32 s{sK}, s{sK}, 1
s_cmp_lg_u32 s{sK}, 0
s_cbranch_scc1 L_loop
ds_read_b32 v{vSO}, v{vSA} offset:384
ds_read_b32 v{vSO+1}, v{vSA+1} offset:384
v_max3_f32 v{vMX}, v{vD}, v{vD+1}, v{vMX}
v_rcp_f32 v{vD}, v{vD}
v_rcp_f32 v{vD+1}, v{vD+1}
s_waitcnt lgkmcnt(0)
v_pk_fma_f32 {P(vSO)}, {P(vN)}, {P(vD)}, {P(vSO)}
ds_write_b32 v{vSA}, v{vSO} offset:384
ds_write_b32 v{vSA+1}, v{vSO+1} offset:384
L_loop_done:
""")
stamp()
L("L_epi")
I(f"""
v_lshrrev_b32 v40, 3, v{vLane}
v_mul_u32_u24 v40, {W2ROW}, v40
v_and_b32 v41, 7, v{vLane}
v_lshl_add_u32 v40, v41, 2, v40
s_cmp_ge_u32 s{sW}, 8
s_cselect_b32 s{t0}, 32, 0
s_add_u32 s{t0}, s{t0}, s{sReg}
v_add_u32 v40, s{t0}, v40
v_add_u32 v41, {W2X}, v40
ds_write2_b32 v40, v{vW2S}, v{vW2S+1} offset0:0 offset1:8
ds_write2_b32 v40, v{vW2S+2}, v{vW2S+3} offset0:16 offset1:24
ds_write2_b32 v41, v{vW2S+4}, v{vW2S+5} offset0:0 offset1:8
ds_write2_b32 v41, v{vW2S+6}, v{vW2S+7} offset0:16 offset1:24
s_lshl_b32 s{t0}, s{sW}, 4
v_and_b32 v42, 15, v{vLane}
v_add_u32 v43, s{t0}, v42
v_min_u32 v43, {ZROW}, v43
v_lshlrev_b32 v44, 2, v43
v_bfe_u32 v45, v{vLane}, 4, 1
v_lshrrev_b32 v46, 5, v{vLane}
ds_read_b32 v44, v44 offset:{CARRY}
v_lshrrev_b32 v47, 4, v{vLane}
v_lshl_add_u32 v144, v47, 2, s{t0}
v_and_b32 v144, 0x7f, v144
v_lshlrev_b32 v145, 2, v144
ds_read_b128 v[148:151], v145 offset:{CNT}
v_lshlrev_b32 v146, 8, v45
v_lshl_add_u32 v146, v46, 7, v146
v_add_u32 v146, {SB}, v146
v_mul_u32_u24 v43, {SROW}, v43
v_add_u32 v43, v43, v146
v_lshlrev_b32 v144, 7, v144
v_lshl_add_u32 v144, v42, 3, v144
""")
I(f"""
v_mov_b32 v147, {TILES}
""")
setexec(lanemask(range(16,32))); I(f"v_mov_b32 v147, {TILES + 8*WREG + 32}")
setexec(lanemask(range(32,48))); I(f"v_mov_b32 v147, {TILES + 4*WREG}")
setexec(lanemask(range(48,64))); I(f"v_mov_b32 v147, {TILES + W2X}")
I(f"""
s_mov_b64 exec, -1
v_bfe_u32 v45, v{vLane}, 2, 2
v_mul_u32_u24 v45, {W2ROW}, v45
v_and_b32 v46, 3, v{vLane}
v_lshl_add_u32 v45, v46, 3, v45
v_add_u32 v147, v147, v45
v_cmp_nlt_f32 vcc, v{vMX}, v{vMX}
""".replace(f"v_cmp_nlt_f32 vcc, v{vMX}, v{vMX}", f"v_cmp_nge_f32 vcc, {f2u(2.0**100)}, v{vMX}"))
I(f"""
s_waitcnt vmcnt(0) lgkmcnt(0)
v_add_u32 v44, v44, v146
s_barrier
s_cmp_ge_u32 s{sW}, 7
s_cbranch_scc1 L_epi_end
""")
stamp()
ep = []
def elds(t, tag=None): ep.append(("lds", t, tag))
for ks in range(4):
    for i in range(2):
        elds(f"ds_read_b128 {vr(48+8*ks+4*i,4)}, v43 offset:{32*ks+16*i}")
        elds(f"ds_read_b128 {vr(80+8*ks+4*i,4)}, v44 offset:{32*ks+16*i}", f"s{ks}" if i else None)
    if ks < 2:
        for c in range(4):
            for hf in range(2):
                elds(f"ds_read_b64_tr_b16 {P(112+16*ks+4*c+2*hf)}, v147 offset:{ks*WREG + hf*4*W2ROW + 32*c}", f"w{ks}" if (c == 3 and hf) else None)
ep += [f"v_and_b32 v{155}, 0xffff0000, v{vB2+1}", f"v_lshlrev_b32 v{154}, 16, v{vB2+1}",
       f"v_and_b32 v{153}, 0xffff0000, v{vB2}", f"v_lshlrev_b32 v{152}, 16, v{vB2}"]
ep += [f"v_cvt_f32_u32 v{148+r}, v{148+r}" for r in range(4)]
ep += [f"s_mov_b32 s{t0}, {f2u(-LN2)}"]
vO = 12
for ks in range(4):
    ep.append(("need", f"s{ks}"))
    for i in range(4):
        r = 48 + 8*ks + 2*i
        ep.append(f"v_pk_add_f32 {P(r)}, {P(r)}, {P(r+32)}")
    for i in range(4):
        r = 48 + 8*ks + 2*i
        ep.append(f"v_cvt_pk_bf16_f32 v{156+i}, v{r}, v{r+1}" if ks & 1 == 0 else f"v_cvt_pk_bf16_f32 v{160+i}, v{r}, v{r+1}")
    ep.append(("need", f"w{ks}"))
    ep.append("s_nop 0")
    for c in range(4):
        ep.append(f"v_mfma_f32_16x16x32_bf16 {vr(vO+4*c,4)}, {vr(156+4*(ks&1),4)}, {vr(112+16*(ks&1)+4*c,4)}, {'0' if ks==0 else vr(vO+4*c,4)}")
    if ks < 2:
        for c in range(4):
            for hf in range(2):
                elds(f"ds_read_b64_tr_b16 {P(112+16*ks+4*c+2*hf)}, v147 offset:{(ks+2)*WREG + hf*4*W2ROW + 32*c}", f"w{ks+2}" if (c == 3 and hf) else None)
for pos, x in enumerate(ep):
    if isinstance(x, tuple) and x[0] == "need":
        n = 0; p = pos - 1
        while not (isinstance(ep[p], tuple) and ep[p][0] == "lds" and ep[p][2] == x[1]):
            if isinstance(ep[p], tuple) and ep[p][0] == "lds": n += 1
            p -= 1
        I(f"s_waitcnt lgkmcnt({min(n,15)})")
    elif isinstance(x, tuple): I(x[1])
    else: I(x)
for c in range(4):
    for r in range(4):
        I(f"v_mul_f32 v{48+4*c+r}, v{148+r}, v{152+c}")
for c in range(4):
    for r in range(4):
        I(f"v_fmac_f32 v{48+4*c+r}, s{t0}, v{vO+4*c+r}")
for r in range(4):
    I(f"v_cvt_pk_bf16_f32 v{64+2*r}, v{48+r}, v{52+r}")
    I(f"v_cvt_pk_bf16_f32 v{65+2*r}, v{56+r}, v{60+r}")
    I(f"buffer_store_dwordx2 {P(64+2*r)}, v144, {sr(sOUT,4)}, 0 offen offset:{128*r}")
I(f"""
v_add_f32 v72, v{vO}, v{vO+1}
v_add_f32 v73, v{vO+2}, v{vO+3}
v_add_f32 v72, v72, v73
v_mov_b32 v73, 0x7f800000
v_cmp_nlt_f32 {sr(sE0,2)}, |v72|, v73
s_or_b64 vcc, vcc, {sr(sE0,2)}
L_epi_end:
s_cmp_lg_u32 s{sMode}, 0
s_cbranch_scc1 L_fin
""")
if FORCE_SLOW == 2: I("s_mov_b64 vcc, 1")
I(f"""
v_mov_b32 v72, 0
v_mov_b32 v73, 1
s_cmp_eq_u64 vcc, 0
s_cbranch_scc1 L_noflag
ds_write_b32 v72, v73 offset:{FLAG}
L_noflag:
s_waitcnt lgkmcnt(0)
s_barrier
ds_read_b32 v73, v72 offset:{FLAG}
s_waitcnt lgkmcnt(0)
v_readfirstlane_b32 s{sBad}, v73
s_cmp_lg_u32 s{sBad}, 0
s_cbranch_scc1 L_slow
L_fin:
""")
if DEBUG:
    stamp()
    I("s_waitcnt vmcnt(0)")
    stamp()
    I(f"""
    s_lshl_b32 s{t0}, s2, 4
    s_add_u32 s{t0}, s{t0}, s{sW}
    s_lshl_b32 s{t0}, s{t0}, 8
    s_add_u32 s{t0}, s{t0}, {STAMP}
    v_lshlrev_b32 v72, 2, v{vLane}
    buffer_store_dword v{vST}, v72, {sr(sWS,4)}, s{t0} offen
    s_waitcnt vmcnt(0)
    """)
L("L_exit")
I("s_endpgm")

L("L_slow")
I(f"""
s_setprio 0
s_mov_b32 s{sMode}, 1
s_mov_b32 s{sK0}, 0
s_waitcnt vmcnt(0) lgkmcnt(0)
s_barrier
v_mov_b32 v{vt+6}, 1
v_mov_b32 v{vMX}, 0
""")
small_init(64)
s_zero(64)
load_desc()
for jj in range(3):
    I(f"buffer_load_dwordx2 {P(vDs+2*jj)}, v134, {sr(sWS,4)}, s{t0+jj} offen sc1")
I("s_waitcnt vmcnt(0)")
decode_desc()
for jj in range(3):
    I(f"v_mov_b32 v{144+jj}, v{vRA+jj}")
    I(f"v_mov_b32 v{147+jj}, v{vDs+2*jj}")
I(f"""
s_mov_b32 s{sGam}, s{t3}
v_max3_i32 v137, v147, v148, v149
v_max_i32 v137, 0, v137
v_mov_b32 v138, 0
s_waitcnt lgkmcnt(0)
s_barrier
ds_max_u32 v138, v137 offset:{MAXC}
s_waitcnt lgkmcnt(0)
s_barrier
ds_read_b32 v137, v138 offset:{MAXC}
s_waitcnt lgkmcnt(0)
v_readfirstlane_b32 s{sMaxc}, v137
L_round:
s_barrier
""")
tile_init(False, 64)
I(f"""
v_lshlrev_b32 v64, 2, v0
v_mov_b32 v65, 0
v_cmp_gt_u32 vcc, 128, v0
s_and_b64 exec, exec, vcc
ds_write_b32 v64, v65 offset:{CNTR}
s_mov_b64 exec, -1
""")
for jj in range(3):
    I(f"v_cmp_lt_i32 {sr(sM+2*jj,2)}, s{sK0}, v{147+jj}")
for jj in range(3):
    I(f"s_mov_b64 exec, {sr(sM+2*jj,2)}")
    I(f"buffer_load_dwordx3 {vr(48+4*jj,3)}, v{144+jj}, {sr(sWS,4)}, s{sGam} offen sc1")
I(f"""
s_mov_b64 exec, -1
s_waitcnt vmcnt(0) lgkmcnt(0)
s_barrier
""")
for jj in range(3):
    r = 48 + 4*jj
    I(f"""
    s_mov_b64 exec, {sr(sM+2*jj,2)}
    v_lshlrev_b32_sdwa v{60+jj}, 2, v{r+2} {SDWAB}
    v_and_b32 v{r+2}, 0xffffff00, v{r+2}
    ds_add_rtn_u32 v{r+3}, v{60+jj}, v{vt+6} offset:{CNTR}
    ds_add_u32 v{60+jj}, v{vt+6} offset:{CNT}
    """)
I(f"""
s_mov_b64 exec, -1
s_waitcnt lgkmcnt(0)
s_barrier
v_lshlrev_b32 v64, 3, v{vLane}
ds_read_b64 v[66:67], v64 offset:{CNTR}
s_waitcnt lgkmcnt(0)
v_add_u32 v66, 7, v66
v_add_u32 v67, 7, v67
v_lshrrev_b32 v66, 3, v66
v_lshrrev_b32 v67, 3, v67
v_add_u32 v68, v66, v67
v_mov_b32 v69, v68
""")
dpp_scan(69)
I(f"""
v_readlane_b32 s{sG}, v69, 63
v_sub_u32 v70, v69, v68
v_add_u32 v71, v70, v66
ds_write_b64 v64, v[70:71] offset:{GBASE}
s_add_u32 s{sNT}, s{sG}, 3
s_lshr_b32 s{sNT}, s{sNT}, 2
s_waitcnt lgkmcnt(0)
""")
for jj in range(3):
    r = 48 + 4*jj
    I(f"""
    s_mov_b64 exec, {sr(sM+2*jj,2)}
    ds_read_b32 v64, v{60+jj} offset:{GBASE}
    v_lshrrev_b32 v65, 3, v{r+3}
    v_and_b32 v66, 7, v{r+3}
    v_lshrrev_b32 v67, 2, v{60+jj}
    s_waitcnt lgkmcnt(0)
    v_add_u32 v64, v64, v65
    v_and_b32 v65, 3, v64
    v_lshrrev_b32 v64, 2, v64
    v_mul_u32_u24 v64, {TSZ}, v64
    v_add_u32 v64, {TILES}, v64
    v_mul_u32_u24 v68, {SROW}, v67
    v_mul_u32_u24 v69, {QROW}, v67
    v_lshl_or_b32 v68, v69, 16, v68
    v_lshl_add_u32 v69, v65, 2, v64
    ds_write_b32 v69, v68 offset:576
    v_and_b32 v68, 1, v65
    v_lshrrev_b32 v65, 1, v65
    v_lshl_add_u32 v64, v68, 2, v64
    v_lshl_add_u32 v64, v66, 3, v64
    v_mul_u32_u24 v69, 192, v65
    v_add_u32 v69, v69, v64
    ds_write2_b32 v69, v{r}, v{r+1} offset0:0 offset1:16
    ds_write_b32 v69, v{r+2} offset:128
    v_lshl_add_u32 v64, v65, 7, v64
    v_lshlrev_b32 v68, 4, v68
    v_mov_b32 v70, 0x3f80
    v_lshlrev_b32 v70, v68, v70
    ds_write_b32 v64, v70 offset:384
    s_waitcnt lgkmcnt(0)
    """)
I(f"""
s_mov_b64 exec, -1
s_barrier
s_mov_b32 s{sK}, s{sW}
L_stile:
s_cmp_ge_u32 s{sK}, s{sNT}
s_cbranch_scc1 L_stile_done
s_mul_i32 s{t0}, s{sK}, {TSZ}
s_add_u32 s{t0}, s{t0}, {TILES}
""")
ptr_consts(f"s{t0}")
for l in keys(0): I(l)
I(f"""
ds_read_b64 {P(vGS)}, v{vPGS}
ds_read_u16 v{vGQ}, v{vPGQ}
ds_read2_b32 {P(vA5)}, v{vPA5} offset0:0 offset1:16
s_waitcnt lgkmcnt(0)
""")
for l in ixadd() + gload(0) + gload(1) + SAUPD + [QUPD]: I(l)
I("s_waitcnt vmcnt(0)")
for u in range(2):
    I(f"ds_read_b64_tr_b16 {P(vB5[0])}, v{vQ} offset:{128*u}")
    I(f"ds_read_b64_tr_b16 {P(vB5[1])}, v{vQ} offset:{128*u+64}")
    for l in shifts(u): I(l)
    I("s_waitcnt lgkmcnt(0)")
    I("s_nop 1")
    I(mf8(vTL, vA5, vB5[0], vr(vTL,16)))
    I(mf8(vTH, vA5, vB5[1], vr(vLb[u],16)))
    I("s_nop 15")
    for hi, T in enumerate((vTL, vTH)):
        for i in range(16): I(f"v_exp_f32 v{vE+i}, v{T+i}")
        for i in range(16): I(f"v_add_f32 v{vE+i}, 1.0, v{vE+i}")
        for i in range(16): I(f"v_rcp_f32 v{vE+i}, v{vE+i}")
        I(f"v_pk_mul_f32 {P(vN)}, {P(T)}, {P(vE)}")
        for i in range(1, 8): I(f"v_pk_fma_f32 {P(vN)}, {P(T+2*i)}, {P(vE+2*i)}, {P(vN)}")
        I(f"ds_add_f32 v{vSA}, v{vN} offset:{128*(2*u+hi)}")
        I(f"ds_add_f32 v{vSA+1}, v{vN+1} offset:{128*(2*u+hi)}")
        I("s_waitcnt lgkmcnt(0)")
I(f"""
s_add_u32 s{sK}, s{sK}, {NW}
s_branch L_stile
L_stile_done:
s_add_u32 s{sK0}, s{sK0}, 8
s_add_u32 s{sGam}, s{sGam}, 96
s_cmp_lt_u32 s{sK0}, s{sMaxc}
s_cbranch_scc1 L_round
s_barrier
s_branch L_epi
""")

A('.section .rodata,"a"')
A(".p2align 6")
A(f".amdhsa_kernel {KNAME}")
A(f"  .amdhsa_next_free_vgpr {NVGPR}")
A("  .amdhsa_next_free_sgpr 102")
A(f"  .amdhsa_accum_offset {NVGPR}")
A("  .amdhsa_group_segment_fixed_size 0")
A("  .amdhsa_kernarg_size 88")
A("  .amdhsa_user_sgpr_count 2")
A("  .amdhsa_user_sgpr_kernarg_segment_ptr 1")
A("  .amdhsa_system_sgpr_workgroup_id_x 1")
A("  .amdhsa_float_denorm_mode_32 3")
A(".end_amdhsa_kernel")
open(sys.argv[1], "w").write("\n".join(out) + "\n")
print("LDS", LDS, "SB", SB, "QB", QB, "lines", len(out), file=sys.stderr)
```

```python
import sys, struct

opts = dict(a.split("=") for a in sys.argv[2:])
DEBUG = int(opts.get("debug", 0))
PRIO = int(opts.get("prio", 1))
FORCE_SLOW = int(opts.get("slow", 0))
PREF = int(opts.get("pref", 1))
SLEEP = int(opts.get("sleep", 2))
PTH = [int(x) for x in opts.get("pth", "5,2,1").split(",")]

KNAME = "standalone__edge_featured_mpnn_mpnn__graph_kernel"
N = 25000; E = 800000
BN = 98; NW = 12; NTH = 768
QE = 3072; XE = 53; CH = QE + XE
GRAN = 0x10000
W2I = 0x98000
REC = 0x100000; RSTRIDE = 37632
PT = 0xB00000
STAMP = 0x1200000
WS_SIZE = 0x1300000
LOG2E = 1.4426950408889634
LN2 = 0.6931471805599453
def f2u(x): return struct.unpack("<I", struct.pack("<f", x))[0]

CNT = 0; CARRY = 512; PROG = 1024; FLAG = 1040; MAXC = 1044; TABN = 1088
CNT1 = TABN; GBASE = TABN; CNTR = TABN + 512
TILES = 4352; TSZ = 592; TMAX = 10; WREG = TMAX * TSZ
SB = TILES + NW * WREG
SB = (SB + 255) // 256 * 256
SROW = 528; NSROW = BN + NW
QB = SB + NSROW * SROW; QROW = 264
LDS = QB + 103 * QROW
assert LDS <= 163840 and QB % 8 == 0 and TILES % 128 == 0
RST = TILES; XRAW = TILES + 37632; W1RAW = SB; PST = SB + 32768
assert XRAW + 16384 <= SB and PST + BN * 256 <= QB
ZROW = BN; QZ = 102
PADKEY = 0x80000000
W2ROW = 192; W2X = 1536 + 32
SCANW, EXTRAW = 8, 9

out = []
def A(s=""): out.append(s)
def I(s):
    for l in s.strip("\n").split("\n"):
        l = l.strip()
        if not l: continue
        out.append(l if l.endswith(":") else "    " + l)
def L(name): out.append(name + ":")
def vr(a, n): return f"v[{a}:{a+n-1}]"
def sr(a, n): return f"s[{a}:{a+n-1}]"
def P(r): return f"v[{r}:{r+1}]"

sWS, sP, sOUT, sA, sBq, sC = 4, 8, 12, 16, 20, 24
sD = 28
pX, pE, pSRC, pDST, pW1, pB1, pW2, pB2, pOUT, pWS = 32, 34, 36, 38, 40, 42, 44, 46, 48, 50
sM = 32
sB, sW, sTw, sG, sT, sRem, sGam, sK, sGmax, sBad, sTag, sTag8, sReg, sMode, sK0, sMaxc = range(62, 78)
sONE = 78; sADV = 80; sSC = 82; sE0 = 84; sE1 = 86
t0, t1, t2, t3, t4, t5 = 88, 89, 90, 91, 92, 93
sNT = 94
vLane = 1
vPA5, vPKey, vPGS, vPGQ = 2, 3, 4, 5
vL4 = 6; vSC = 8; vQC = 9; vQ = 10; vGQ = 11
vSA = 12; vGS = 14; vA5 = 16; vB5 = [18, 20]; vD = 22; vN = 24; vSO = 26; vMX = 28; vST = 29; vB2 = 30
vW2S = 32
vt = 40
vLb = [48, 64]; vTL = 80; vTH = 96; vE = 112; vIX = 128
NVGPR = 168

nstamp = [0]
def stamp():
    if not DEBUG: return
    i = nstamp[0]; nstamp[0] += 1
    I(f"{'s_memtime' if DEBUG == 2 else 's_memrealtime'} s[100:101]")
    I("s_waitcnt lgkmcnt(0)")
    I(f"v_writelane_b32 v{vST}, s100, {i}")

def srd(d, p, nrec, stride=0, add=None):
    if add is None:
        I(f"s_mov_b32 s{d}, s{p}")
        I(f"s_and_b32 s{d+1}, s{p+1}, 0xffff")
    else:
        I(f"s_add_u32 s{d}, s{p}, {add}")
        I(f"s_addc_u32 s{d+1}, s{p+1}, 0")
        I(f"s_and_b32 s{d+1}, s{d+1}, 0xffff")
    I(f"s_mov_b32 s{d+2}, {nrec}")
    I(f"s_mov_b32 s{d+3}, 0x00020000")

def dpp_scan(v, vmax=None):
    steps = ["row_shr:1 row_mask:0xf bank_mask:0xf bound_ctrl:0", "row_shr:2 row_mask:0xf bank_mask:0xf bound_ctrl:0",
             "row_shr:4 row_mask:0xf bank_mask:0xf bound_ctrl:0", "row_shr:8 row_mask:0xf bank_mask:0xf bound_ctrl:0",
             "row_bcast:15 row_mask:0xa bank_mask:0xf", "row_bcast:31 row_mask:0xc bank_mask:0xf"]
    I("s_nop 1")
    for s in steps:
        I(f"v_add_u32_dpp v{v}, v{v}, v{v} {s}")
        if vmax is not None:
            I(f"v_max_u32_dpp v{vmax}, v{vmax}, v{vmax} {s}")
            I("s_nop 0")
        else:
            I("s_nop 1")
def lanemask(ls):
    m = 0
    for l in ls: m |= 1 << l
    return m
def setexec(m):
    I(f"s_mov_b32 exec_lo, {m & 0xffffffff}")
    I(f"s_mov_b32 exec_hi, {m >> 32}")
def mf16(D, a, b, c): return f"v_mfma_f32_32x32x16_bf16 {vr(D,16)}, {vr(a,4)}, {vr(b,4)}, {c}"
def mf8(D, a, b, c): return f"v_mfma_f32_32x32x8_bf16 {vr(D,16)}, {vr(a,2)}, {vr(b,2)}, {c}"
SDWA0 = "dst_sel:DWORD dst_unused:UNUSED_PAD src0_sel:WORD_0 src1_sel:DWORD"
SDWAB = "dst_sel:DWORD dst_unused:UNUSED_PAD src0_sel:DWORD src1_sel:BYTE_0"

def tile_init(valid, z):
    gdef = (ZROW*SROW) | ((QZ*QROW) << 16)
    for i in range(4): I(f"v_mov_b32 v{z+i}, 0")
    setexec(lanemask([8,9,10,11,20,21,22,23]))
    for i in range(4): I(f"v_mov_b32 v{z+i}, {PADKEY}")
    if valid:
        setexec(lanemask([24,25,26,27,32,33,34,35]))
        for i in range(4): I(f"v_mov_b32 v{z+i}, {0x3f800000 if i & 1 else 0x3f80}")
    setexec(lanemask([36]))
    for i in range(4): I(f"v_mov_b32 v{z+i}, {gdef}")
    I("s_mov_b64 exec, -1")
    I(f"v_lshl_add_u32 v{z+4}, v{vLane}, 4, s{sReg}")
    I("s_mov_b32 exec_hi, 0x1f")
    for t in range(TMAX):
        I(f"ds_write_b128 v{z+4}, {vr(z,4)} offset:{t*TSZ}")
    I("s_mov_b64 exec, -1")
def s_zero(z):
    nch = NSROW * SROW // 16
    for i in range(4): I(f"v_mov_b32 v{z+i}, 0")
    I(f"v_lshlrev_b32 v{z+4}, 4, v0")
    I(f"v_add_u32 v{z+4}, {SB}, v{z+4}")
    n = (nch + NTH - 1) // NTH
    for t in range(n):
        if (t + 1) * NTH > nch:
            I(f"v_cmp_gt_u32 vcc, {nch - t*NTH}, v0")
            I(f"s_and_b64 exec, exec, vcc")
        I(f"ds_write_b128 v{z+4}, {vr(z,4)} offset:{t*NTH*16}")
    I("s_mov_b64 exec, -1")
def small_init(z):
    I(f"""
    v_lshlrev_b32 v{z}, 2, v0
    v_mov_b32 v{z+1}, 0
    v_mov_b32 v{z+2}, {ZROW*SROW}
    v_lshrrev_b32 v{z+3}, 7, v0
    v_cmp_eq_u32 vcc, 1, v{z+3}
    s_nop 1
    v_cndmask_b32 v{z+1}, v{z+1}, v{z+2}, vcc
    v_cmp_gt_u32 vcc, 272, v0
    s_and_b64 exec, exec, vcc
    ds_write_b32 v{z}, v{z+1}
    s_mov_b64 exec, -1
    """)

hdr = open("standalone__edge_featured_mpnn_mpnn__graph.s.ref").read().split("\n")
for l in hdr:
    if "@launch" in l: continue
    if not l.startswith(";"): break
    A(l)
A(f"; @launch grid=(256,1,1) block=({NTH},1,1) lds={LDS}")
A('.amdgcn_target "amdgcn-amd-amdhsa--gfx950"')
A(".text")
A(f".globl {KNAME}")
A(".p2align 8")
A(f".type {KNAME},@function")
L(KNAME)
I(f"""
s_cmp_ge_u32 s2, 256
s_cbranch_scc1 L_exit
s_load_dwordx16 s[32:47], s[0:1], 0
s_load_dwordx2 {sr(pOUT,2)}, s[0:1], 64
s_load_dwordx2 {sr(pWS,2)}, s[0:1], 80
v_lshrrev_b32 v{vt}, 6, v0
v_and_b32 v{vLane}, 63, v0
v_readfirstlane_b32 s{sW}, v{vt}
s_mul_i32 s{t0}, s2, {QE*4}
v_lshl_add_u32 v{vt+1}, v0, 4, s{t0}
v_lshlrev_b32 v{vt+2}, 1, v{vt+1}
s_and_b32 s{sB}, s2, 7
s_lshl_b32 s{sB}, s{sB}, 5
s_lshr_b32 s{t1}, s2, 3
s_add_u32 s{sB}, s{sB}, s{t1}
v_lshlrev_b32 v75, 2, v0
v_mov_b32 v76, 0
ds_write_b32 v75, v76 offset:{CNT1}
v_lshrrev_b32 v68, 3, v{vLane}
v_lshrrev_b32 v69, 4, v{vLane}
v_and_b32 v70, 7, v{vLane}
v_xor_b32 v70, v70, v69
v_lshlrev_b32 v70, 4, v70
v_lshl_add_u32 v70, v68, 7, v70
s_and_b32 s{t0}, s{sW}, 1
s_lshl_b32 s{t0}, s{t0}, 6
v_xor_b32 v71, s{t0}, v70
v_and_b32 v72, 15, v{vLane}
v_lshlrev_b32 v73, 2, v69
v_xor_b32 v72, v72, v73
v_lshlrev_b32 v72, 4, v72
v_lshl_add_u32 v72, v69, 8, v72
v_lshlrev_b32 v74, 1, v{vLane}
v_and_b32 v75, 32, v{vLane}
v_lshl_add_u32 v74, v75, 4, v74
v_lshlrev_b32 v{vt+5}, 4, v{vLane}
v_lshlrev_b32 v{vt}, 4, v0
s_mul_i32 s{t1}, s{sB}, {BN*128}
s_lshl_b32 s{t2}, s{sW}, 10
s_mov_b32 s{sA+2}, {N*128}
s_mov_b32 s{sA+3}, 0x00020000
s_mov_b32 s{sBq+2}, {132*256}
s_mov_b32 s{sBq+3}, 0x00020000
s_mov_b32 s{sC+2}, 256
s_mov_b32 s{sC+3}, 0x00020000
s_mov_b32 s{sD+2}, {128*128}
s_mov_b32 s{sD+3}, 0x00020000
s_waitcnt lgkmcnt(0)
s_mov_b32 s{sA}, s{pX}
s_and_b32 s{sA+1}, s{pX+1}, 0xffff
s_mov_b32 s{sBq}, s{pW1}
s_and_b32 s{sBq+1}, s{pW1+1}, 0xffff
s_mov_b32 s{sC}, s{pB1}
s_and_b32 s{sC+1}, s{pB1+1}, 0xffff
s_mov_b32 s{sD}, s{pW2}
s_and_b32 s{sD+1}, s{pW2+1}, 0xffff
s_cmp_ge_u32 s{sW}, 8
s_cbranch_scc1 L_opt_hi
s_add_u32 s{t3}, s{t2}, {24*1024}
s_add_u32 m0, s{t3}, {W1RAW}
s_cmp_lg_u32 s{sW}, 0
buffer_load_dwordx4 v72, {sr(sBq,4)}, s{t3} offen lds
s_cbranch_scc1 L_opt_end
s_mov_b32 m0, {XRAW + 12*1024}
s_add_u32 s{t3}, s{t1}, {12*1024}
buffer_load_dwordx4 v70, {sr(sA,4)}, s{t3} offen lds
s_branch L_opt_end
L_opt_hi:
s_cmp_lg_u32 s{sW}, {EXTRAW}
s_cbranch_scc1 L_opt_a
s_mul_i32 s{t0}, s2, {XE}
s_add_u32 s{t0}, s{t0}, {256*QE}
v_add_lshl_u32 v{vt+3}, v{vLane}, s{t0}, 2
v_lshlrev_b32 v{vt+4}, 1, v{vt+3}
""")
XM = (1 << XE) - 1
setexec(XM)
I(f"""
global_load_dword v64, v{vt+3}, {sr(pDST,2)}
global_load_dword v65, v{vt+3}, {sr(pSRC,2)}
global_load_dwordx2 v[66:67], v{vt+4}, {sr(pE,2)}
s_mov_b64 exec, -1
s_branch L_opt_end
L_opt_a:
s_cmp_lg_u32 s{sW}, 10
s_cbranch_scc1 L_opt_b
s_mov_b32 s{t0}, {128*256}
buffer_load_dwordx4 v[12:15], v{vt+5}, {sr(sBq,4)}, s{t0} offen
s_branch L_opt_end
L_opt_b:
s_cmp_lg_u32 s{sW}, 11
s_cbranch_scc1 L_opt_end
s_cmp_ge_u32 s2, 16
s_cbranch_scc1 L_opt_end
s_and_b32 s{t0}, s2, 3
s_lshl_b32 s{t0}, s{t0}, 10
s_lshr_b32 s{t3}, s2, 2
s_lshl_b32 s{t3}, s{t3}, 1
s_add_u32 s{t0}, s{t0}, s{t3}
v_bfe_u32 v12, v{vLane}, 4, 1
v_lshlrev_b32 v12, 13, v12
v_lshrrev_b32 v13, 5, v{vLane}
v_lshl_add_u32 v12, v13, 12, v12
v_and_b32 v13, 15, v{vLane}
v_lshl_add_u32 v12, v13, 3, v12
""")
for i_ in range(8):
    I(f"buffer_load_ushort v{vW2S+i_}, v12, {sr(sD,4)}, s{t0} offen offset:{128*i_}")
I(f"""
L_opt_end:
global_load_dwordx4 v[48:51], v{vt+1}, {sr(pDST,2)}
s_add_u32 m0, s{t2}, {XRAW}
s_add_u32 s{t3}, s{t1}, s{t2}
buffer_load_dwordx4 v71, {sr(sA,4)}, s{t3} offen lds
s_add_u32 m0, s{t2}, {W1RAW}
s_add_u32 s{t3}, s{t2}, {12*1024}
buffer_load_dwordx4 v72, {sr(sBq,4)}, s{t2} offen lds
s_add_u32 m0, s{t3}, {W1RAW}
s_and_b32 s{t0}, s{sW}, 1
buffer_load_dwordx4 v72, {sr(sBq,4)}, s{t3} offen lds
s_lshl_b32 s{t0}, s{t0}, 7
s_bitcmp1_b32 s{sW}, 1
s_cselect_b32 s{t0}, s{t0}, 0x1000
buffer_load_ushort v160, v74, {sr(sC,4)}, s{t0} offen
buffer_load_ushort v162, v74, {sr(sC,4)}, s{t0} offen offset:64
""")
if DEBUG:
    I(f"v_mov_b32 v{vST}, 0")
stamp()
I(f"""
s_barrier
global_load_dwordx4 v[52:55], v{vt+1}, {sr(pSRC,2)}
global_load_dwordx4 v[56:59], v{vt+2}, {sr(pE,2)}
global_load_dwordx4 v[60:63], v{vt+2}, {sr(pE,2)} offset:16
v_and_b32 v75, 15, v{vLane}
v_lshlrev_b32 v75, 3, v75
global_load_dwordx2 {P(vB2)}, v75, {sr(pB2,2)}
s_load_dword s{sTag}, {sr(pWS,2)}, 0
""")
assert CNT1 + NTH * 4 <= TILES
small_init(76)
srd(sWS, pWS, WS_SIZE)
srd(sP, pWS, N*256, add=PT)
I(f"""
s_mul_i32 s{t0}, s{sB}, {BN}
s_sub_u32 s{t1}, {N}, s{t0}
s_min_u32 s{t1}, s{t1}, {BN}
s_lshl_b32 s{t2}, s{t0}, 7
s_add_u32 s{sOUT}, s{pOUT}, s{t2}
s_addc_u32 s{sOUT+1}, s{pOUT+1}, 0
s_and_b32 s{sOUT+1}, s{sOUT+1}, 0xffff
s_lshl_b32 s{sOUT+2}, s{t1}, 7
s_mov_b32 s{sOUT+3}, 0x00020000
s_mov_b32 s{sONE}, 1.0
s_mov_b32 s{sONE+1}, 1.0
s_mov_b32 s{sADV}, {TSZ}
s_mov_b32 s{sADV+1}, {TSZ}
s_mov_b32 s{sSC}, {f2u(-LOG2E)}
s_mov_b32 s{sSC+1}, {f2u(-LOG2E)}
s_mov_b32 s{sMode}, 0
s_mul_i32 s{sReg}, s{sW}, {WREG}
s_add_u32 s{sReg}, s{sReg}, {TILES}
s_mov_b32 s{t4}, 42800
s_mov_b32 s{t5}, {(-BN) & 0xffffffff}
v_mov_b32 v{vt+6}, 1
v_mov_b32 v161, 0
v_mov_b32 v163, 0
v_mov_b32 v164, 0x3f80
v_mov_b32 v165, 0
""")
I(f"""
v_lshrrev_b32 v68, 5, v{vLane}
v_bfe_u32 v69, v{vLane}, 2, 2
v_lshl_add_u32 v70, v68, 5, v69
s_and_b32 s{t0}, s{sW}, 2
s_lshl_b32 s{t0}, s{t0}, 13
s_add_u32 s{t0}, s{t0}, {W1RAW}
v_lshl_add_u32 v70, v70, 8, s{t0}
v_bfe_u32 v71, v{vLane}, 4, 1
v_lshl_add_u32 v70, v71, 5, v70
v_and_b32 v71, 3, v{vLane}
v_lshl_add_u32 v70, v71, 3, v70
s_and_b32 s{t0}, s{sW}, 1
s_lshl_b32 s{t0}, s{t0}, 1
v_xor_b32 v71, s{t0}, v69
v_lshl_add_u32 v166, v71, 6, v70
v_xor_b32 v71, 1, v71
v_lshl_add_u32 v167, v71, 6, v70
s_lshr_b32 s{t0}, s{sW}, 2
s_lshl_b32 s{t0}, s{t0}, 5
v_and_b32 v78, 31, v{vLane}
v_add_u32 v78, s{t0}, v78
v_bfe_u32 v71, v{vLane}, 1, 3
v_lshlrev_b32 v72, 2, v68
v_xor_b32 v71, v71, v72
v_lshlrev_b32 v71, 4, v71
v_lshl_add_u32 v79, v78, 7, v71
v_add_u32 v79, {XRAW}, v79
s_waitcnt vmcnt(9)
""")
stamp()
def bucket_rank(d, a, r):
    I(f"v_mul_u32_u24 v{a}, s{t4}, v{d}")
    I(f"v_lshrrev_b32 v{a}, 22, v{a}")
    I(f"v_mad_i32_i24 v{d}, v{a}, s{t5}, v{d}")
    I(f"v_lshlrev_b32 v{a}, 2, v{a}")
    I(f"ds_add_rtn_u32 v{r}, v{a}, v{vt+6} offset:{CNT1}")
for i in range(4): bucket_rank(48+i, 68+i, 73+i)
I(f"s_cmp_lg_u32 s{sW}, {EXTRAW}")
I("s_cbranch_scc1 L_noex1")
setexec(XM)
bucket_rank(64, 72, 77)
I("s_mov_b64 exec, -1")
L("L_noex1")
I(f"""
s_waitcnt vmcnt(4) lgkmcnt(0)
s_add_u32 s{sTag}, s{sTag}, 1
s_mul_i32 s{sTag8}, s{sTag}, 0x9e3779b1
s_and_b32 s{sTag8}, s{sTag8}, 0xff000000
s_barrier
""")
stamp()
I(f"""
s_cmp_lg_u32 s{sW}, {SCANW}
s_cbranch_scc1 L_noscan
ds_read_b128 v[80:83], v{vt+5} offset:{CNT1}
s_waitcnt lgkmcnt(0)
v_add_u32 v84, v80, v81
v_add_u32 v85, v84, v82
v_add_u32 v86, v85, v83
v_mov_b32 v87, v86
""")
dpp_scan(87)
I(f"""
v_sub_u32 v88, v87, v86
v_add_u32 v89, v88, v80
v_add_u32 v90, v88, v84
v_add_u32 v91, v88, v85
ds_write_b128 v{vt+5}, v[88:91] offset:{CNT1}
v_lshl_or_b32 v16, v80, 12, v88
v_lshl_or_b32 v18, v81, 12, v89
v_lshl_or_b32 v20, v82, 12, v90
v_lshl_or_b32 v22, v83, 12, v91
v_or_b32 v16, s{sTag8}, v16
v_or_b32 v18, s{sTag8}, v18
v_or_b32 v20, s{sTag8}, v20
v_or_b32 v22, s{sTag8}, v22
v_mov_b32 v17, s{sTag}
v_mov_b32 v19, s{sTag}
v_mov_b32 v21, s{sTag}
v_mov_b32 v23, s{sTag}
s_waitcnt lgkmcnt(0)
L_noscan:
""")
I(f"""
s_cmp_lg_u32 s{sW}, 10
s_cbranch_scc1 L_now1c
""")
for i in range(4):
    I(f"v_lshlrev_b32 v{80+2*i}, 16, v{12+i}")
    I(f"v_and_b32 v{81+2*i}, 0xffff0000, v{12+i}")
for i in range(4):
    I(f"v_pk_mul_f32 {P(80+2*i)}, {P(80+2*i)}, {sr(sSC,2)}")
for i in range(4):
    I(f"v_cvt_pk_bf16_f32 v{12+i}, v{80+2*i}, v{81+2*i}")
I(f"""
v_lshrrev_b32 v88, 4, v{vLane}
v_mul_u32_u24 v88, {QROW}, v88
v_and_b32 v89, 15, v{vLane}
v_lshl_add_u32 v88, v89, 4, v88
v_add_u32 v88, {QB + 98*QROW}, v88
ds_write2_b64 v88, v[12:13], v[14:15] offset0:0 offset1:1
v_lshlrev_b32 v88, 2, v{vLane}
v_add_u32 v88, {QB + QZ*QROW}, v88
ds_write_b32 v88, v165
s_waitcnt lgkmcnt(0)
L_now1c:
""")
for jl in range(2):
    for ks in range(4):
        for hf in range(2):
            I(f"ds_read_b64_tr_b16 {P(80+16*jl+4*ks+2*hf)}, v{166+jl} offset:{(8*ks+4*hf)*256}")
I(f"s_mov_b32 s{t0}, 0x07060302")
I(f"s_lshr_b32 s{sK}, s{sW}, 2")
L("L_pq")
I(f"""
v_xor_b32 v{vt+1}, 16, v79
v_xor_b32 v{vt+2}, 32, v79
v_xor_b32 v{vt+3}, 48, v79
ds_read_b128 v[112:115], v79
ds_read_b128 v[116:119], v{vt+1}
ds_read_b128 v[120:123], v{vt+2}
ds_read_b128 v[124:127], v{vt+3}
""")
I(mf8(128, 160, 164, "0"))
I(mf8(144, 162, 164, "0"))
I(f"v_cmp_gt_u32 vcc, {BN}, v78")
I(f"s_mov_b64 {sr(sE0,2)}, vcc")
I("s_waitcnt lgkmcnt(0)")
for ks in range(4):
    I(mf16(128, 80+4*ks, 112+4*ks, vr(128,16)))
    I(mf16(144, 96+4*ks, 112+4*ks, vr(144,16)))
I(f"""
v_lshrrev_b32 v{vt+1}, 5, v{vLane}
s_and_b32 s{t1}, s{sW}, 1
s_bitcmp1_b32 s{sW}, 1
s_cbranch_scc1 L_pq_q
s_lshl_b32 s{t1}, s{t1}, 3
v_add_u32 v{vt+1}, s{t1}, v{vt+1}
v_and_b32 v{vt+2}, 15, v78
v_xor_b32 v{vt+1}, v{vt+1}, v{vt+2}
v_lshlrev_b32 v{vt+1}, 4, v{vt+1}
v_lshl_add_u32 v{vt+1}, v78, 8, v{vt+1}
v_add_u32 v{vt+1}, {PST}, v{vt+1}
v_xor_b32 v{vt+2}, 32, v{vt+1}
v_xor_b32 v{vt+3}, 64, v{vt+1}
v_xor_b32 v{vt+4}, 0x60, v{vt+1}
s_nop 3
""")
for i in range(16):
    I(f"v_pk_mul_f32 {P(128+2*i)}, {P(128+2*i)}, {sr(sSC,2)}")
for i in range(16):
    I(f"v_add_u32 v{128+i}, 0x4000, v{128+i}")
for i in range(16):
    I(f"v_perm_b32 v{128+i}, v{144+i}, v{128+i}, s{t0}")
I(f"s_mov_b64 exec, {sr(sE0,2)}")
for rg in range(4):
    I(f"ds_write_b128 v{vt+1+rg}, {vr(128+4*rg,4)}")
I("s_branch L_pq_end")
L("L_pq_q")
I(f"""
s_lshl_b32 s{t1}, s{t1}, 7
s_add_u32 s{t1}, s{t1}, {QB}
v_lshl_add_u32 v{vt+1}, v{vt+1}, 3, s{t1}
v_mul_u32_u24 v{vt+2}, {QROW}, v78
v_add_u32 v{vt+1}, v{vt+1}, v{vt+2}
s_nop 7
""")
for i in range(16):
    I(f"v_pk_mul_f32 {P(128+2*i)}, {P(128+2*i)}, {sr(sSC,2)}")
for i in range(16):
    I(f"v_cvt_pk_bf16_f32 v{128+i}, v{128+2*i}, v{129+2*i}")
I(f"s_mov_b64 exec, {sr(sE0,2)}")
for jl in range(2):
    for rg in range(4):
        I(f"ds_write_b64 v{vt+1}, {P(128+8*jl+2*rg)} offset:{64*jl + 16*rg}")
L("L_pq_end")
I(f"""
s_mov_b64 exec, -1
s_waitcnt lgkmcnt(0)
s_cmp_lg_u32 s{sK}, 0
s_cbranch_scc1 L_pq_done
s_mov_b32 s{sK}, 1
v_add_u32 v78, 96, v78
v_add_u32 v79, {96*128}, v79
s_branch L_pq
L_pq_done:
s_barrier
""")
stamp()
I(f"""
v_lshrrev_b32 v80, 4, v0
v_xor_b32 v81, v80, v0
v_and_b32 v81, 15, v81
v_lshlrev_b32 v81, 4, v81
v_lshl_add_u32 v81, v80, 8, v81
v_add_u32 v81, {PST}, v81
ds_read_b128 v[84:87], v81
ds_read_b128 v[88:91], v81 offset:{48*256}
ds_read_b128 v[92:95], v81 offset:{96*256}
""")
for i in range(5):
    I(f"ds_read_b32 v{68+i}, v{68+i} offset:{CNT1}")
I(f"""
s_mul_i32 s{t0}, s{sB}, {BN*256}
s_add_u32 s{t0}, s{t0}, {PT}
s_add_u32 s{sA}, s{pWS}, s{t0}
s_addc_u32 s{sA+1}, s{pWS+1}, 0
s_and_b32 s{sA+1}, s{sA+1}, 0xffff
s_mov_b32 s{sA+2}, {BN*256}
s_mov_b32 s{sA+3}, 0x00020000
s_mul_i32 s{t0}, s2, {RSTRIDE}
s_add_u32 s{t0}, s{t0}, {REC}
s_add_u32 s{sBq}, s{pWS}, s{t0}
s_addc_u32 s{sBq+1}, s{pWS+1}, 0
s_and_b32 s{sBq+1}, s{sBq+1}, 0xffff
s_mov_b32 s{sBq+2}, {(CH*12+15)//16*16}
s_mov_b32 s{sBq+3}, 0x00020000
s_mov_b32 s{t1}, {NTH*16}
s_mov_b32 s{t2}, {2*NTH*16}
s_mov_b32 s{t3}, {3*NTH*16}
s_waitcnt lgkmcnt(7)
buffer_store_dwordx4 v[84:87], v{vt}, {sr(sA,4)}, 0 offen sc1
s_waitcnt lgkmcnt(6)
buffer_store_dwordx4 v[88:91], v{vt}, {sr(sA,4)}, s{t1} offen sc1
s_waitcnt lgkmcnt(5)
buffer_store_dwordx4 v[92:95], v{vt}, {sr(sA,4)}, s{t2} offen sc1
s_waitcnt lgkmcnt(0)
""")
for i in range(5):
    I(f"v_add_u32 v{68+i}, v{68+i}, v{73+i}")
    I(f"v_mul_u32_u24 v{68+i}, 12, v{68+i}")
    I(f"v_add_u32 v{68+i}, {RST}, v{68+i}")
I("s_waitcnt vmcnt(4)")
stamp()
for i in range(4):
    I(f"v_lshl_or_b32 v{48+i}, v{52+i}, 8, v{48+i}")
    I(f"ds_write2_b32 v{68+i}, v{56+2*i}, v{57+2*i} offset0:0 offset1:1")
    I(f"ds_write_b32 v{68+i}, v{48+i} offset:8")
I(f"s_cmp_lg_u32 s{sW}, {EXTRAW}")
I("s_cbranch_scc1 L_noex2")
setexec(XM)
I(f"""
v_lshl_or_b32 v64, v65, 8, v64
ds_write2_b32 v72, v66, v67 offset0:0 offset1:1
ds_write_b32 v72, v64 offset:8
s_mov_b64 exec, -1
L_noex2:
s_waitcnt lgkmcnt(0)
s_barrier
""")
stamp()
for i in range(4):
    I(f"ds_read_b128 {vr(48+4*i,4)}, v{vt} offset:{RST + i*NTH*16}")
for i in range(3):
    I(f"s_waitcnt lgkmcnt({3-i})")
    I(f"buffer_store_dwordx4 {vr(48+4*i,4)}, v{vt}, {sr(sBq,4)}, {['0', f's{t1}', f's{t2}'][i]} offen sc1")
I(f"""
s_waitcnt lgkmcnt(0)
s_cmp_lg_u32 s{sW}, 0
s_cbranch_scc1 L_no4
buffer_store_dwordx4 v[60:63], v{vt}, {sr(sBq,4)}, s{t3} offen sc1
L_no4:
""")
s_zero(64)
I(f"""
s_cmp_lg_u32 s{sW}, 11
s_cbranch_scc1 L_now2
s_cmp_ge_u32 s2, 16
s_cbranch_scc1 L_now2
s_lshl_b32 s{t0}, s2, 10
s_add_u32 s{t0}, s{t0}, {W2I}
v_lshl_or_b32 v{vW2S}, v{vW2S+1}, 16, v{vW2S}
v_lshl_or_b32 v{vW2S+1}, v{vW2S+3}, 16, v{vW2S+2}
v_lshl_or_b32 v{vW2S+2}, v{vW2S+5}, 16, v{vW2S+4}
v_lshl_or_b32 v{vW2S+3}, v{vW2S+7}, 16, v{vW2S+6}
buffer_store_dwordx4 {vr(vW2S,4)}, v{vt+5}, {sr(sWS,4)}, s{t0} offen sc1
L_now2:
""")
I(f"""
v_and_b32 v72, 31, v{vLane}
v_lshlrev_b32 v{vL4}, 2, v72
v_mov_b32 v{vL4+1}, v{vL4}
v_add_u32 v{vSC}, {SB}, v{vL4}
v_bfe_u32 v73, v{vLane}, 4, 1
v_lshlrev_b32 v73, 5, v73
v_and_b32 v74, 3, v{vLane}
v_lshl_add_u32 v73, v74, 3, v73
v_add_u32 v{vQC}, {QB}, v73
v_bfe_u32 v75, v{vLane}, 2, 2
v_add_u32 v76, 98, v75
v_mul_u32_u24 v76, {QROW}, v76
v_add_u32 v{vQ}, v76, v{vQC}
""")
def ptr_consts(base):
    I(f"""
    v_bfe_u32 v72, v{vLane}, 2, 1
    v_bfe_u32 v73, v{vLane}, 3, 2
    v_and_b32 v74, 3, v{vLane}
    v_lshl_add_u32 v73, v73, 2, v74
    v_lshl_add_u32 v73, v73, 2, {base}
    v_mul_u32_u24 v74, 192, v72
    v_add_u32 v74, v74, v73
    v_lshl_add_u32 v73, v72, 6, v73
    v_add_u32 v73, 384, v73
    v_cmp_le_u32 vcc, 32, v{vLane}
    v_lshrrev_b32 v76, 5, v{vLane}
    v_bfe_u32 v75, v{vLane}, 2, 2
    v_cndmask_b32 v{vPA5}, v74, v73, vcc
    v_mul_u32_u24 v74, 192, v76
    v_add_u32 v74, 128, v74
    v_add_u32 v{vPKey}, {base}, v74
    v_lshl_add_u32 v74, v76, 3, {base}
    v_add_u32 v{vPGS}, 576, v74
    v_lshl_add_u32 v74, v75, 2, {base}
    v_add_u32 v{vPGQ}, 578, v74
    """)
ptr_consts(f"s{sReg}")
I("""
s_waitcnt vmcnt(0) lgkmcnt(0)
s_barrier
""")
stamp()
I(f"""
s_cmp_lg_u32 s{sW}, {SCANW}
s_cbranch_scc1 L_nopub
v_lshlrev_b32 v72, 5, v{vLane}
s_lshl_b32 s{t0}, s2, 11
s_add_u32 s{t0}, s{t0}, {GRAN}
buffer_store_dwordx4 v[16:19], v72, {sr(sWS,4)}, s{t0} offen sc0 sc1
buffer_store_dwordx4 v[20:23], v72, {sr(sWS,4)}, s{t0} offen offset:16 sc0 sc1
L_nopub:
""")
tile_init(True, 64)
vDs = 124
vRA = 130
def load_desc():
    I(f"""
    v_lshrrev_b32 v133, 3, v{vLane}
    v_lshlrev_b32 v134, 11, v133
    s_lshl_b32 s{t0}, s{sW}, 14
    s_lshl_b32 s{t1}, s{sB}, 3
    s_add_u32 s{t0}, s{t0}, s{t1}
    s_add_u32 s{t0}, s{t0}, {GRAN}
    s_add_u32 s{t1}, s{t0}, {12*16384}
    s_add_u32 s{t2}, s{t0}, {24*16384}
    s_cmp_ge_u32 s{sW}, 8
    s_cselect_b32 s{t2}, s{t0}, s{t2}
    """)
def decode_desc():
    I(f"""
    v_and_b32 v135, 7, v{vLane}
    v_mul_u32_u24 v136, 12, v135
    s_mov_b32 s{t0}, {RSTRIDE}
    v_mad_u32_u24 v136, v133, s{t0}, v136
    s_mul_i32 s{t3}, s{sW}, {8*RSTRIDE}
    s_add_u32 s{t3}, s{t3}, {REC}
    s_cmp_ge_u32 s{sW}, 8
    s_cselect_b32 s{t0}, 0, -1
    v_and_b32 v{vDs+4}, s{t0}, v{vDs+4}
    """)
    for jj in range(3):
        I(f"v_and_b32 v{vRA+jj}, 0xfff, v{vDs+2*jj}")
        I(f"v_mad_u32_u24 v{vRA+jj}, v{vRA+jj}, 12, v136")
        if jj: I(f"v_add_u32 v{vRA+jj}, {jj*96*RSTRIDE}, v{vRA+jj}")
        I(f"v_bfe_u32 v{vDs+2*jj}, v{vDs+2*jj}, 12, 12")
        I(f"v_sub_u32 v{vDs+2*jj}, v{vDs+2*jj}, v135")
load_desc()
I(f"s_mov_b32 s{sK}, 0")
for jj in range(3):
    I(f"s_mov_b64 {sr(sM+2*jj,2)}, -1")
I("s_branch L_poll1")
L("L_poll")
if SLEEP: I(f"s_sleep {SLEEP}")
L("L_poll1")
for jj in range(3):
    I(f"s_mov_b64 exec, {sr(sM+2*jj,2)}")
    I(f"s_cbranch_execz L_pk{jj}")
    I(f"buffer_load_dwordx2 {P(vDs+2*jj)}, v134, {sr(sWS,4)}, s{t0+jj} offen sc1")
    L(f"L_pk{jj}")
I(f"""
s_mov_b64 exec, -1
s_add_u32 s{sK}, s{sK}, 1
s_cmp_gt_u32 s{sK}, 0x40000
s_cbranch_scc1 L_exit
s_waitcnt vmcnt(0)
""")
for jj in range(3):
    I(f"""
    v_xor_b32 v135, s{sTag8}, v{vDs+2*jj}
    v_xor_b32 v136, s{sTag}, v{vDs+2*jj+1}
    v_lshrrev_b32 v135, 24, v135
    v_or_b32 v135, v135, v136
    v_cmp_ne_u32 {sr(sM+2*jj,2)}, 0, v135
    """)
I(f"""
s_or_b64 {sr(sE0,2)}, {sr(sM,2)}, {sr(sM+2,2)}
s_or_b64 {sr(sE0,2)}, {sr(sE0,2)}, {sr(sM+4,2)}
s_cbranch_scc1 L_poll
""")
stamp()
decode_desc()
NR = 5
order = [(jj, rd) for rd in range(NR) for jj in range(3)]
slotreg = {s: 48 + 4*n_ for n_, s in enumerate(order)}
slotmask = {s: sM + 2*n_ for n_, s in enumerate(order)}
vTA = {s: 108 + n_ for n_, s in enumerate(order)}
for (jj, rd) in order:
    I(f"v_cmp_lt_i32 {sr(slotmask[(jj,rd)],2)}, {8*rd}, v{vDs+2*jj}")
I(f"""
v_max3_i32 v137, v{vDs}, v{vDs+2}, v{vDs+4}
v_cmp_lt_i32 vcc, {8*NR}, v137
s_or_b64 {sr(sE1,2)}, {sr(slotmask[(0,3)],2)}, {sr(slotmask[(1,3)],2)}
s_or_b64 {sr(sE1,2)}, {sr(sE1,2)}, {sr(slotmask[(2,3)],2)}
""")
lab = [0]
def slots(body, always_mask=True):
    lab[0] += 1; grp = lab[0]
    for s in order:
        jj, rd = s
        if s == (0, 3):
            I(f"s_cmp_eq_u64 {sr(sE1,2)}, 0")
            I(f"s_cbranch_scc1 L_sg{grp}")
        skip = rd >= 2 or jj == 2
        if skip or always_mask:
            I(f"s_mov_b64 exec, {sr(slotmask[s],2)}")
        else:
            I("s_mov_b64 exec, -1") if False else None
        if skip:
            lab[0] += 1
            I(f"s_cbranch_execz L_sk{lab[0]}")
        body(s)
        if skip: L(f"L_sk{lab[0]}")
    L(f"L_sg{grp}")
    I("s_mov_b64 exec, -1")
slots(lambda s: I(f"buffer_load_dwordx3 {vr(slotreg[s],3)}, v{vRA+s[0]}, {sr(sWS,4)}, s{t3} offen offset:{96*s[1]} sc1"))
I(f"""
s_cbranch_vccz L_nobig
v_mov_b32 v137, 0
ds_write_b32 v137, v{vt+6} offset:{FLAG}
L_nobig:
s_waitcnt vmcnt(0)
""")
stamp()
def rank_body(s):
    r = slotreg[s]
    I(f"v_lshlrev_b32_sdwa v{vTA[s]}, 2, v{r+2} {SDWAB}")
    I(f"v_and_b32 v{r+2}, 0xffffff00, v{r+2}")
    I(f"ds_add_rtn_u32 v{r+3}, v{vTA[s]}, v{vt+6} offset:{CNT}")
slots(rank_body)
I("""
s_waitcnt lgkmcnt(0)
s_barrier
""")
stamp()
I(f"""
s_or_b32 s{t0}, s2, s{sW}
s_cmp_lg_u32 s{t0}, 0
s_cbranch_scc1 L_nogen
v_mov_b32 v137, 0
v_mov_b32 v138, s{sTag}
s_mov_b64 exec, 1
buffer_store_dword v138, v137, {sr(sWS,4)}, 0 offen sc0 sc1
s_mov_b64 exec, -1
L_nogen:
""")
if PREF:
    I(f"""
    s_lshr_b32 s{t0}, s2, 3
    s_mul_i32 s{t0}, s{t0}, {NW*PREF}
    s_mul_i32 s{t1}, s{sW}, {PREF}
    s_add_u32 s{t0}, s{t0}, s{t1}
    s_lshl_b32 s{t0}, s{t0}, 13
    v_lshlrev_b32 v123, 7, v{vLane}
    """)
    for i_ in range(PREF):
        if i_: I(f"s_add_u32 s{t0}, s{t0}, 8192")
        I(f"buffer_load_dword v{vW2S+i_}, v123, {sr(sP,4)}, s{t0} offen sc1")
I(f"""
v_lshlrev_b32 v136, 3, v{vLane}
v_mov_b32 v151, 0
ds_read_b64 v[138:139], v136 offset:{CNT}
ds_read_b32 v137, v151 offset:{FLAG}
""")
def addr_body(s):
    r = slotreg[s]
    I(f"v_lshrrev_b32 v152, 2, v{r+3}")
    I(f"v_and_b32 v152, 0x1e, v152")
    I(f"v_lshl_add_u32 v{vTA[s]}, v{vTA[s]}, 3, v152")
    I(f"v_and_b32 v{r+3}, 7, v{r+3}")
I(f"""
s_waitcnt lgkmcnt(0)
v_add_u32 v140, 7, v138
v_add_u32 v141, 7, v139
v_lshrrev_b32 v140, 3, v140
v_lshrrev_b32 v141, 3, v141
v_add_u32 v142, v140, v141
v_max_u32 v143, v140, v141
v_mov_b32 v144, v142
v_readfirstlane_b32 s{sBad}, v137
""")
dpp_scan(144, 143)
I(f"""
s_nop 0
v_readlane_b32 s{sG}, v144, 63
v_readlane_b32 s{sGmax}, v143, 63
v_sub_u32 v144, v144, v142
v_add_u32 v145, v144, v140
s_add_u32 s{t0}, s{sG}, 3
s_lshr_b32 s{t0}, s{t0}, 2
s_cmp_gt_u32 s{t0}, {NW*TMAX}
s_cselect_b32 s{sBad}, 1, s{sBad}
s_cmp_gt_u32 s{sGmax}, {TMAX}
s_cselect_b32 s{sBad}, 1, s{sBad}
""")
if FORCE_SLOW == 1: I(f"s_mov_b32 s{sBad}, 1")
I(f"""
s_cmp_lg_u32 s{sBad}, 0
s_cbranch_scc1 L_slow
s_mul_i32 s{sT}, s{t0}, 171
s_lshr_b32 s{sT}, s{sT}, 11
s_mul_i32 s{t1}, s{sT}, {NW}
s_sub_u32 s{sRem}, s{t0}, s{t1}
s_cmp_gt_u32 s{sGmax}, s{sT}
s_cselect_b32 s{sT}, s{sGmax}, s{sT}
s_cselect_b32 s{sRem}, 0, s{sRem}
s_max_u32 s{sT}, s{sT}, 1
s_add_u32 s{t1}, s{sT}, 1
s_lshl_b32 s{t2}, s{sRem}, 2
s_mul_i32 s{sGam}, s{t2}, s{t1}
v_cvt_f32_u32 v146, s{sT}
v_cvt_f32_u32 v147, s{t1}
v_rcp_f32 v146, v146
v_rcp_f32 v147, v147
v_mov_b32 v148, s{sT}
v_mov_b32 v149, s{t1}
v_mov_b32 v150, s{t2}
s_cmp_lt_u32 s{sW}, s{sRem}
s_cselect_b32 s{sTw}, s{t1}, s{sT}
s_cselect_b32 s{t0}, 0, s{t2}
s_mul_i32 s{t1}, s{sTw}, s{sW}
s_lshl_b32 s{t1}, s{t1}, 2
s_add_u32 s{t1}, s{t1}, s{t0}
s_sub_i32 s{t1}, s{sG}, s{t1}
s_max_i32 s{t1}, s{t1}, 0
s_min_u32 s{sTw}, s{sTw}, s{t1}
v_lshlrev_b32 v153, 1, v{vLane}
s_mov_b32 s{sK}, s{sW}
s_cmp_lt_u32 s{sW}, 6
s_cbranch_scc1 L_build
s_sub_u32 s{sK}, s{sW}, 6
v_mov_b32 v138, v139
v_mov_b32 v140, v141
v_mov_b32 v144, v145
v_add_u32 v153, 1, v153
L_build:
v_cmp_lt_u32 vcc, s{sK}, v140
s_and_b64 exec, exec, vcc
s_cbranch_execz L_bskip
v_add_u32 v154, s{sK}, v144
v_cmp_gt_u32 vcc, s{sGam}, v154
v_mul_u32_u24 v165, {QROW}, v153
s_lshl_b32 s{t0}, s{sK}, 1
v_cndmask_b32 v156, v150, v151, vcc
v_cndmask_b32 v157, v148, v149, vcc
v_cndmask_b32 v158, v146, v147, vcc
v_sub_u32 v154, v154, v156
v_cvt_f32_u32 v159, v154
v_add_f32 v159, 0.5, v159
v_mul_f32 v159, v159, v158
v_cvt_u32_f32 v159, v159
v_mul_u32_u24 v160, v159, v157
v_sub_u32 v160, v154, v160
v_and_b32 v161, 3, v159
v_lshrrev_b32 v162, 2, v159
v_mad_u32_u24 v163, v161, v157, v160
v_cmp_gt_u32 vcc, s{sK}, v163
v_mad_u32_u24 v164, v162, {TMAX}, v160
v_mul_u32_u24 v164, {TSZ}, v164
v_add_u32 v164, {TILES}, v164
v_add_u32 v162, {ZROW}, v162
v_cndmask_b32 v162, v153, v162, vcc
v_mul_u32_u24 v162, {SROW}, v162
v_lshl_or_b32 v165, v165, 16, v162
v_lshl_add_u32 v166, v161, 2, v164
ds_write_b32 v166, v165 offset:576
v_and_b32 v166, 1, v161
v_lshl_add_u32 v164, v166, 2, v164
v_lshrrev_b32 v161, 1, v161
v_mul_u32_u24 v166, 192, v161
v_add_u32 v166, v166, v164
v_lshrrev_b32 v166, 2, v166
v_lshl_add_u32 v167, v153, 5, s{t0}
ds_write_b16 v167, v166 offset:{TABN}
v_lshl_add_u32 v164, v161, 7, v164
s_lshl_b32 s{t0}, s{sK}, 3
v_subrev_u32 v155, s{t0}, v138
v_lshlrev_b32 v167, 2, v153
s_mov_b64 {sr(sE0,2)}, exec
s_and_b64 exec, exec, vcc
ds_write_b32 v167, v162 offset:{CARRY}
s_mov_b64 exec, {sr(sE0,2)}
""")
for idx in range(7, 0, -1):
    I(f"v_cmpx_ge_u32 vcc, {idx}, v155")
    I(f"ds_write_b32 v164, v151 offset:{384 + 8*idx}")
I(f"""
L_bskip:
s_mov_b64 exec, -1
s_add_u32 s{sK}, s{sK}, 6
s_cmp_lt_u32 s{sK}, s{sGmax}
s_cbranch_scc1 L_build
""")
slots(addr_body)
I("""
s_waitcnt lgkmcnt(0)
s_barrier
""")
stamp()
slots(lambda s: I(f"ds_read_u16 v{vTA[s]}, v{vTA[s]} offset:{TABN}"))
I("s_waitcnt lgkmcnt(0)")
def scat_body(s):
    r = slotreg[s]
    I(f"v_lshl_add_u32 v{vTA[s]}, v{r+3}, 1, v{vTA[s]}")
    I(f"v_lshlrev_b32 v{vTA[s]}, 2, v{vTA[s]}")
    I(f"ds_write2_b32 v{vTA[s]}, v{r}, v{r+1} offset0:0 offset1:16")
    I(f"ds_write_b32 v{vTA[s]}, v{r+2} offset:128")
slots(scat_body)
I("""
s_waitcnt lgkmcnt(0)
s_barrier
""")
stamp()

def chain(T):
    l = [f"v_pk_add_f32 {P(vD)}, {P(vE)}, {sr(sONE,2)}",
         f"v_pk_fma_f32 {P(vN)}, {P(T)}, {P(vE+2)}, {P(T)}",
         f"v_pk_fma_f32 {P(vN)}, {P(T+2)}, {P(vD)}, {P(vN)}",
         f"v_pk_fma_f32 {P(vD)}, {P(vD)}, {P(vE+2)}, {P(vD)}"]
    for i in range(2, 8):
        l += [f"v_pk_fma_f32 {P(vN)}, {P(vN)}, {P(vE+2*i)}, {P(vN)}",
              f"v_pk_fma_f32 {P(vN)}, {P(T+2*i)}, {P(vD)}, {P(vN)}",
              f"v_pk_fma_f32 {P(vD)}, {P(vD)}, {P(vE+2*i)}, {P(vD)}"]
    return l
def keys(off): return [f"ds_read_b128 {vr(vIX+4*i,4)}, v{vPKey} offset:{off+16*i}" for i in range(4)]
def ixadd(): return [f"v_lshl_add_u64 {P(vIX+2*i)}, {P(vIX+2*i)}, 0, {P(vL4)}" for i in range(8)]
def gload(u): return [f"buffer_load_dword v{vLb[u]+i}, v{vIX+i}, {sr(sP,4)}, 0 offen offset:{128*u} sc1" for i in range(16)]
def shifts(u): return [f"v_lshlrev_b64 {P(vTL+2*i)}, 16, {P(vLb[u]+2*i)}" for i in range(8)]
SAUPD = [f"v_add_u32_sdwa v{vSA}, v{vGS}, v{vSC} {SDWA0}", f"v_add_u32_sdwa v{vSA+1}, v{vGS+1}, v{vSC} {SDWA0}"]
QUPD = f"v_add_u32_dpp v{vQ}, v{vGQ}, v{vQC} quad_perm:[0,1,2,3] row_mask:0xc bank_mask:0xf"

I(f"""
v_mov_b32 v{vMX}, 0
s_cmp_eq_u32 s{sTw}, 0
s_cbranch_scc1 L_loop_done
""")
for l in keys(0): I(l)
I(f"""
ds_read_b64 {P(vGS)}, v{vPGS}
ds_read_u16 v{vGQ}, v{vPGQ}
ds_read2_b32 {P(vA5)}, v{vPA5} offset0:0 offset1:16
s_waitcnt lgkmcnt(3)
""")
for l in ixadd() + gload(0) + gload(1) + keys(TSZ): I(l)
I("s_waitcnt lgkmcnt(4)")
I(QUPD)
I(f"""
ds_read_b64_tr_b16 {P(vB5[0])}, v{vQ}
ds_read_b64_tr_b16 {P(vB5[1])}, v{vQ} offset:64
s_waitcnt lgkmcnt(2)
""")
for l in ixadd(): I(l)
I("s_waitcnt vmcnt(16)")
stamp()
for l in shifts(0): I(l)
I("s_waitcnt lgkmcnt(0)")
I("s_nop 0")
I(mf8(vTL, vA5, vB5[0], vr(vTL,16)))
I(f"s_mov_b32 s{sK}, s{sTw}")
if PRIO:
    I("s_setprio 3")
    I(f"s_mov_b32 s{t5}, {sum(1 << x for x in PTH)}")
I("s_nop 15")

body = []
def lds(text, tag=None): body.append(("lds", text, tag))
def need(tag): body.append(("need", tag))
def em(x):
    if isinstance(x, list): body.extend(x)
    else: body.append(x)
if PRIO:
    em([f"s_bitcmp1_b32 s{t5}, s{sK}", "s_cbranch_scc1 L_prio", "L_prio_ret:"])
def rds(j):
    lds(f"ds_read_b32 v{vSO}, v{vSA} offset:{128*j}")
    lds(f"ds_read_b32 v{vSO+1}, v{vSA+1} offset:{128*j}", f"so{j}")
for j in range(4):
    T = vTH if j & 1 else vTL
    j2 = (j + 2) & 3
    ex = [f"v_exp_f32 v{vE+i}, v{T+i}" for i in range(16)]
    ch = chain(T)
    g = gload(j >> 1)
    if j & 1: em(g[11:16])
    if j != 0: rds(j)
    lds(f"ds_read_b64_tr_b16 {P(vB5[j & 1])}, v{vQ} offset:{64*j2}", f"b5_{j2}")
    if j == 1:
        lds(f"ds_read_b64 {P(vGS)}, v{vPGS} offset:{TSZ}")
        lds(f"ds_read_u16 v{vGQ}, v{vPGQ} offset:{TSZ}", "gq")
    if j == 3:
        kk = keys(2*TSZ)
        for i in range(4): lds(kk[i], "keys" if i == 3 else None)
    if j & 1 == 0:
        need(f"b5_{j+1}")
        em(mf8(vTH, vA5, vB5[1], vr(vLb[j >> 1],16)))
        if j == 0: em(SAUPD)
        em(ex[0:8])
        em(g[0:6])
        if j == 0: rds(0)
        if j == 2: lds(f"ds_read2_b32 {P(vA5)}, v{vPA5} offset0:{TSZ//4} offset1:{TSZ//4+16}", "a5")
        em(ex[8:16])
        em(ch[0:4])
        em(g[6:11])
        em(ch[4:])
    else:
        jn = (j + 1) & 3; un = jn >> 1
        em("s_waitcnt vmcnt(16)")
        em(shifts(un))
        em(ex[0:2])
        need("a5" if j == 3 else f"b5_{jn}")
        em(mf8(vTL, vA5, vB5[0], vr(vTL,16)))
        em(ex[2:])
        if j == 3:
            need("keys")
            em(ixadd())
            em([f"v_lshl_add_u64 {P(vPA5)}, {P(vPA5)}, 0, {sr(sADV,2)}", f"v_lshl_add_u64 {P(vPGS)}, {P(vPGS)}, 0, {sr(sADV,2)}"])
        else:
            need("gq")
            em(QUPD)
        em(ch)
    em([f"v_rcp_f32 v{vE}, v{vD}", f"v_rcp_f32 v{vE+1}, v{vD+1}", f"v_max3_f32 v{vMX}, v{vD}, v{vD+1}, v{vMX}"])
    if j & 1 == 0: need(f"so{j}")
    em(f"v_pk_fma_f32 {P(vSO)}, {P(vN)}, {P(vE)}, {P(vSO)}")
    if j == 3: em([f"s_sub_u32 s{sK}, s{sK}, 1", f"s_cmp_lg_u32 s{sK}, 0"])
    lds(f"ds_write_b32 v{vSA}, v{vSO} offset:{128*j}")
    lds(f"ds_write_b32 v{vSA+1}, v{vSO+1} offset:{128*j}")
seq2 = body + body + body
res = []
for pos in range(2*len(body), 3*len(body)):
    x = seq2[pos]
    if isinstance(x, tuple) and x[0] == "need":
        n = 0; p = pos - 1
        while not (isinstance(seq2[p], tuple) and seq2[p][0] == "lds" and seq2[p][2] == x[1]):
            if isinstance(seq2[p], tuple) and seq2[p][0] == "lds": n += 1
            p -= 1
        covered = False
        for q in range(p + 1, pos):
            y = seq2[q]
            if isinstance(y, tuple) and y[0] == "need":
                pp = q - 1
                while not (isinstance(seq2[pp], tuple) and seq2[pp][0] == "lds" and seq2[pp][2] == y[1]): pp -= 1
                if pp >= p: covered = True
        if not covered: res.append(f"s_waitcnt lgkmcnt({min(n,15)})")
    elif isinstance(x, tuple): res.append(x[1])
    else: res.append(x)
A(".p2align 6")
L("L_loop")
if DEBUG and int(opts.get("lstamp", 0)):
    I(f"""
    {'s_memtime' if DEBUG == 2 else 's_memrealtime'} s[100:101]
    s_sub_u32 s99, 40, s{sK}
    s_mov_b32 m0, s99
    s_waitcnt lgkmcnt(0)
    v_writelane_b32 v{vST}, s100, m0
    """)
for l in res: I(l)
I("s_cbranch_scc1 L_loop")
L("L_loop_done")
stamp()
L("L_epi")
I(f"""
s_setprio 0
v_cmp_nge_f32 vcc, {f2u(2.0**100)}, v{vMX}
s_cmp_ge_u32 s{sW}, 7
s_cbranch_scc1 L_epi_wait
v_lshlrev_b32 v40, 4, v{vLane}
""")
vW2 = 80
for q in range(4):
    I(f"s_mov_b32 s{t0}, {W2I + 4096*q}")
    for i_ in range(4):
        I(f"buffer_load_dwordx4 {vr(vW2+16*q+4*i_,4)}, v40, {sr(sWS,4)}, s{t0} offen offset:{1024*i_} sc1")
I(f"""
s_lshl_b32 s{t0}, s{sW}, 4
v_and_b32 v42, 15, v{vLane}
v_add_u32 v43, s{t0}, v42
v_min_u32 v43, {ZROW}, v43
v_lshlrev_b32 v44, 2, v43
v_bfe_u32 v45, v{vLane}, 4, 1
v_lshrrev_b32 v46, 5, v{vLane}
ds_read_b32 v44, v44 offset:{CARRY}
v_lshrrev_b32 v47, 4, v{vLane}
v_lshl_add_u32 v144, v47, 2, s{t0}
v_lshlrev_b32 v145, 2, v144
ds_read_b128 v[148:151], v145 offset:{CNT}
v_lshlrev_b32 v146, 8, v45
v_lshl_add_u32 v146, v46, 7, v146
v_add_u32 v146, {SB}, v146
v_mul_u32_u24 v43, {SROW}, v43
v_add_u32 v43, v43, v146
v_lshlrev_b32 v144, 7, v144
v_lshl_add_u32 v144, v42, 3, v144
v_and_b32 v155, 0xffff0000, v{vB2+1}
v_lshlrev_b32 v154, 16, v{vB2+1}
v_and_b32 v153, 0xffff0000, v{vB2}
v_lshlrev_b32 v152, 16, v{vB2}
s_mov_b32 s{t0}, {f2u(-LN2)}
s_mov_b32 s{t1}, {f2u(-LOG2E)}
s_waitcnt lgkmcnt(0)
v_add_u32 v44, v44, v146
""")
vO = 12
for r in range(4):
    I(f"v_cvt_f32_u32 v{148+r}, v{148+r}")
    I(f"v_mul_f32 v{152+r}, s{t1}, v{152+r}")
for c in range(4):
    for r in range(4):
        I(f"v_mul_f32 v{vO+4*c+r}, v{148+r}, v{152+c}")
I(f"""
L_epi_wait:
s_waitcnt vmcnt(0) lgkmcnt(0)
s_barrier
s_cmp_ge_u32 s{sW}, 7
s_cbranch_scc1 L_epi_end
""")
stamp()
cb = [148, 156, 32, 148]
ep = []
def elds(t, tag=None): ep.append(("lds", t, tag))
for ks in range(4):
    for i_ in range(2):
        elds(f"ds_read_b128 {vr(48+8*ks+4*i_,4)}, v43 offset:{32*ks+16*i_}")
    if ks < 3:
        for i_ in range(2):
            elds(f"ds_read_b128 {vr(cb[ks]+4*i_,4)}, v44 offset:{32*ks+16*i_}", f"s{ks}" if i_ else None)
for ks in range(4):
    ep.append(("need", f"s{ks}"))
    for i_ in range(4):
        r = 48 + 8*ks + 2*i_
        ep.append(f"v_pk_add_f32 {P(r)}, {P(r)}, {P(cb[ks]+2*i_)}")
    if ks == 0:
        for i_ in range(2):
            elds(f"ds_read_b128 {vr(cb[3]+4*i_,4)}, v44 offset:{96+16*i_}", "s3" if i_ else None)
    for i_ in range(4):
        r = 48 + 8*ks + 2*i_
        ep.append(f"v_cvt_pk_bf16_f32 v{48+8*ks+i_}, v{r}, v{r+1}")
    ep.append("s_nop 1")
    for c in range(4):
        ep.append(f"v_mfma_f32_16x16x32_bf16 {vr(vO+4*c,4)}, {vr(48+8*ks,4)}, {vr(vW2+16*c+4*ks,4)}, {vr(vO+4*c,4)}")
for pos, x in enumerate(ep):
    if isinstance(x, tuple) and x[0] == "need":
        n = 0; p = pos - 1
        while not (isinstance(ep[p], tuple) and ep[p][0] == "lds" and ep[p][2] == x[1]):
            if isinstance(ep[p], tuple) and ep[p][0] == "lds": n += 1
            p -= 1
        I(f"s_waitcnt lgkmcnt({min(n,15)})")
    elif isinstance(x, tuple): I(x[1])
    else: I(x)
I(f"s_mov_b32 s{t1}, s{t0}")
I("s_nop 6")
for i_ in range(8):
    I(f"v_pk_mul_f32 {P(vO+2*i_)}, {P(vO+2*i_)}, {sr(t0,2)}")
for r in range(4):
    I(f"v_cvt_pk_bf16_f32 v{64+2*r}, v{vO+r}, v{vO+4+r}")
    I(f"v_cvt_pk_bf16_f32 v{65+2*r}, v{vO+8+r}, v{vO+12+r}")
    I(f"buffer_store_dwordx2 {P(64+2*r)}, v144, {sr(sOUT,4)}, 0 offen offset:{128*r}")
I(f"""
v_add_f32 v72, v{vO}, v{vO+1}
v_add_f32 v73, v{vO+2}, v{vO+3}
v_add_f32 v72, v72, v73
v_mov_b32 v73, 0x7f800000
v_cmp_nlt_f32 {sr(sE0,2)}, |v72|, v73
s_or_b64 vcc, vcc, {sr(sE0,2)}
L_epi_end:
s_cmp_lg_u32 s{sMode}, 0
s_cbranch_scc1 L_fin
""")
if FORCE_SLOW == 2: I("s_mov_b64 vcc, 1")
I(f"""
v_mov_b32 v72, 0
v_mov_b32 v73, 1
s_cmp_eq_u64 vcc, 0
s_cbranch_scc1 L_noflag
ds_write_b32 v72, v73 offset:{FLAG}
L_noflag:
s_waitcnt lgkmcnt(0)
s_barrier
ds_read_b32 v73, v72 offset:{FLAG}
s_waitcnt lgkmcnt(0)
v_readfirstlane_b32 s{sBad}, v73
s_cmp_lg_u32 s{sBad}, 0
s_cbranch_scc1 L_slow
L_fin:
""")
if DEBUG:
    stamp()
    I("s_waitcnt vmcnt(0)")
    stamp()
    I(f"""
    s_lshl_b32 s{t0}, s2, 4
    s_add_u32 s{t0}, s{t0}, s{sW}
    s_lshl_b32 s{t0}, s{t0}, 8
    s_add_u32 s{t0}, s{t0}, {STAMP}
    v_lshlrev_b32 v72, 2, v{vLane}
    buffer_store_dword v{vST}, v72, {sr(sWS,4)}, s{t0} offen
    s_waitcnt vmcnt(0)
    """)
    if int(opts.get("dd", 0)):
        I(f"""
        s_cmp_lg_u32 s{sW}, 0
        s_cbranch_scc1 L_exit
        s_load_dwordx2 s[96:97], s[0:1], 72
        v_readlane_b32 s98, v{vST}, 0
        v_readlane_b32 s99, v{vST}, 16
        s_not_b32 s98, s98
        s_nop 1
        v_writelane_b32 v{vST}, s98, 15
        v_writelane_b32 v{vST}, s99, 14
        s_waitcnt lgkmcnt(0)
        s_mov_b64 exec, 0xffff
        global_atomic_umax v72, v{vST}, s[96:97]
        s_waitcnt vmcnt(0)
        """)
L("L_exit")
I("s_endpgm")

if PRIO:
    I(f"""
    L_prio:
    s_cmp_eq_u32 s{sK}, {PTH[0]}
    s_cbranch_scc0 L_prio1
    s_setprio 2
    s_branch L_prio_ret
    L_prio1:
    s_cmp_eq_u32 s{sK}, {PTH[1]}
    s_cbranch_scc0 L_prio2
    s_setprio 1
    s_branch L_prio_ret
    L_prio2:
    s_setprio 0
    s_branch L_prio_ret
    """)
L("L_slow")
I(f"""
s_setprio 0
s_mov_b32 s{sMode}, 1
s_mov_b32 s{sK0}, 0
s_waitcnt vmcnt(0) lgkmcnt(0)
s_barrier
v_mov_b32 v{vt+6}, 1
v_mov_b32 v{vMX}, 0
""")
small_init(64)
s_zero(64)
load_desc()
for jj in range(3):
    I(f"buffer_load_dwordx2 {P(vDs+2*jj)}, v134, {sr(sWS,4)}, s{t0+jj} offen sc1")
I("s_waitcnt vmcnt(0)")
decode_desc()
for jj in range(3):
    I(f"v_mov_b32 v{144+jj}, v{vRA+jj}")
    I(f"v_mov_b32 v{147+jj}, v{vDs+2*jj}")
I(f"""
s_mov_b32 s{sGam}, s{t3}
v_max3_i32 v137, v147, v148, v149
v_max_i32 v137, 0, v137
v_mov_b32 v138, 0
s_waitcnt lgkmcnt(0)
s_barrier
ds_max_u32 v138, v137 offset:{MAXC}
s_waitcnt lgkmcnt(0)
s_barrier
ds_read_b32 v137, v138 offset:{MAXC}
s_waitcnt lgkmcnt(0)
v_readfirstlane_b32 s{sMaxc}, v137
L_round:
s_barrier
""")
tile_init(False, 64)
I(f"""
v_lshlrev_b32 v64, 2, v0
v_mov_b32 v65, 0
v_cmp_gt_u32 vcc, 128, v0
s_and_b64 exec, exec, vcc
ds_write_b32 v64, v65 offset:{CNTR}
s_mov_b64 exec, -1
""")
for jj in range(3):
    I(f"v_cmp_lt_i32 {sr(sM+2*jj,2)}, s{sK0}, v{147+jj}")
for jj in range(3):
    I(f"s_mov_b64 exec, {sr(sM+2*jj,2)}")
    I(f"buffer_load_dwordx3 {vr(48+4*jj,3)}, v{144+jj}, {sr(sWS,4)}, s{sGam} offen sc1")
I(f"""
s_mov_b64 exec, -1
s_waitcnt vmcnt(0) lgkmcnt(0)
s_barrier
""")
for jj in range(3):
    r = 48 + 4*jj
    I(f"""
    s_mov_b64 exec, {sr(sM+2*jj,2)}
    v_lshlrev_b32_sdwa v{60+jj}, 2, v{r+2} {SDWAB}
    v_and_b32 v{r+2}, 0xffffff00, v{r+2}
    ds_add_rtn_u32 v{r+3}, v{60+jj}, v{vt+6} offset:{CNTR}
    ds_add_u32 v{60+jj}, v{vt+6} offset:{CNT}
    """)
I(f"""
s_mov_b64 exec, -1
s_waitcnt lgkmcnt(0)
s_barrier
v_lshlrev_b32 v64, 3, v{vLane}
ds_read_b64 v[66:67], v64 offset:{CNTR}
s_waitcnt lgkmcnt(0)
v_add_u32 v66, 7, v66
v_add_u32 v67, 7, v67
v_lshrrev_b32 v66, 3, v66
v_lshrrev_b32 v67, 3, v67
v_add_u32 v68, v66, v67
v_mov_b32 v69, v68
""")
dpp_scan(69)
I(f"""
v_readlane_b32 s{sG}, v69, 63
v_sub_u32 v70, v69, v68
v_add_u32 v71, v70, v66
ds_write_b64 v64, v[70:71] offset:{GBASE}
s_add_u32 s{sNT}, s{sG}, 3
s_lshr_b32 s{sNT}, s{sNT}, 2
s_waitcnt lgkmcnt(0)
""")
for jj in range(3):
    r = 48 + 4*jj
    I(f"""
    s_mov_b64 exec, {sr(sM+2*jj,2)}
    ds_read_b32 v64, v{60+jj} offset:{GBASE}
    v_lshrrev_b32 v65, 3, v{r+3}
    v_and_b32 v66, 7, v{r+3}
    v_lshrrev_b32 v67, 2, v{60+jj}
    s_waitcnt lgkmcnt(0)
    v_add_u32 v64, v64, v65
    v_and_b32 v65, 3, v64
    v_lshrrev_b32 v64, 2, v64
    v_mul_u32_u24 v64, {TSZ}, v64
    v_add_u32 v64, {TILES}, v64
    v_mul_u32_u24 v68, {SROW}, v67
    v_mul_u32_u24 v69, {QROW}, v67
    v_lshl_or_b32 v68, v69, 16, v68
    v_lshl_add_u32 v69, v65, 2, v64
    ds_write_b32 v69, v68 offset:576
    v_and_b32 v68, 1, v65
    v_lshrrev_b32 v65, 1, v65
    v_lshl_add_u32 v64, v68, 2, v64
    v_lshl_add_u32 v64, v66, 3, v64
    v_mul_u32_u24 v69, 192, v65
    v_add_u32 v69, v69, v64
    ds_write2_b32 v69, v{r}, v{r+1} offset0:0 offset1:16
    ds_write_b32 v69, v{r+2} offset:128
    v_lshl_add_u32 v64, v65, 7, v64
    v_lshlrev_b32 v68, 4, v68
    v_mov_b32 v70, 0x3f80
    v_lshlrev_b32 v70, v68, v70
    ds_write_b32 v64, v70 offset:384
    s_waitcnt lgkmcnt(0)
    """)
I(f"""
s_mov_b64 exec, -1
s_barrier
s_mov_b32 s{sK}, s{sW}
L_stile:
s_cmp_ge_u32 s{sK}, s{sNT}
s_cbranch_scc1 L_stile_done
s_mul_i32 s{t0}, s{sK}, {TSZ}
s_add_u32 s{t0}, s{t0}, {TILES}
""")
ptr_consts(f"s{t0}")
for l in keys(0): I(l)
I(f"""
ds_read_b64 {P(vGS)}, v{vPGS}
ds_read_u16 v{vGQ}, v{vPGQ}
ds_read2_b32 {P(vA5)}, v{vPA5} offset0:0 offset1:16
s_waitcnt lgkmcnt(0)
""")
for l in ixadd() + gload(0) + gload(1) + SAUPD + [QUPD]: I(l)
I("s_waitcnt vmcnt(0)")
for u in range(2):
    I(f"ds_read_b64_tr_b16 {P(vB5[0])}, v{vQ} offset:{128*u}")
    I(f"ds_read_b64_tr_b16 {P(vB5[1])}, v{vQ} offset:{128*u+64}")
    for l in shifts(u): I(l)
    I("s_waitcnt lgkmcnt(0)")
    I("s_nop 1")
    I(mf8(vTL, vA5, vB5[0], vr(vTL,16)))
    I(mf8(vTH, vA5, vB5[1], vr(vLb[u],16)))
    I("s_nop 15")
    for hi, T in enumerate((vTL, vTH)):
        for i in range(16): I(f"v_exp_f32 v{vE+i}, v{T+i}")
        for i in range(16): I(f"v_add_f32 v{vE+i}, 1.0, v{vE+i}")
        for i in range(16): I(f"v_rcp_f32 v{vE+i}, v{vE+i}")
        I(f"v_pk_mul_f32 {P(vN)}, {P(T)}, {P(vE)}")
        for i in range(1, 8): I(f"v_pk_fma_f32 {P(vN)}, {P(T+2*i)}, {P(vE+2*i)}, {P(vN)}")
        I(f"ds_add_f32 v{vSA}, v{vN} offset:{128*(2*u+hi)}")
        I(f"ds_add_f32 v{vSA+1}, v{vN+1} offset:{128*(2*u+hi)}")
        I("s_waitcnt lgkmcnt(0)")
I(f"""
s_add_u32 s{sK}, s{sK}, {NW}
s_branch L_stile
L_stile_done:
s_add_u32 s{sK0}, s{sK0}, 8
s_add_u32 s{sGam}, s{sGam}, 96
s_cmp_lt_u32 s{sK0}, s{sMaxc}
s_cbranch_scc1 L_round
s_barrier
s_branch L_epi
""")

A('.section .rodata,"a"')
A(".p2align 6")
A(f".amdhsa_kernel {KNAME}")
A(f"  .amdhsa_next_free_vgpr {NVGPR}")
A("  .amdhsa_next_free_sgpr 102")
A(f"  .amdhsa_accum_offset {NVGPR}")
A("  .amdhsa_group_segment_fixed_size 0")
A("  .amdhsa_kernarg_size 88")
A("  .amdhsa_user_sgpr_count 2")
A("  .amdhsa_user_sgpr_kernarg_segment_ptr 1")
A("  .amdhsa_system_sgpr_workgroup_id_x 1")
A("  .amdhsa_float_denorm_mode_32 3")
A(".end_amdhsa_kernel")
open(sys.argv[1], "w").write("\n".join(out) + "\n")
print("LDS", LDS, "SB", SB, "QB", QB, "lines", len(out), file=sys.stderr)
```

```python
import sys, struct

opts = dict(a.split("=") for a in sys.argv[2:])
DEBUG = int(opts.get("debug", 0))
PRIO = int(opts.get("prio", 1))
FORCE_SLOW = int(opts.get("slow", 0))
PREF = int(opts.get("pref", 1))
SLEEP = int(opts.get("sleep", 2))
PTH = [int(x) for x in opts.get("pth", "5,2,1").split(",")]

KNAME = "standalone__edge_featured_mpnn_mpnn__graph_kernel"
N = 25000; E = 800000
BN = 98; NW = 12; NTH = 768
QE = 3072; XE = 53; CH = QE + XE
GRAN = 0x10000
W2I = 0x98000
REC = 0x100000; RSTRIDE = 37632
PT = 0xB00000
STAMP = 0x1200000
WS_SIZE = 0x1300000
LOG2E = 1.4426950408889634
LN2 = 0.6931471805599453
def f2u(x): return struct.unpack("<I", struct.pack("<f", x))[0]

CNT = 0; CARRY = 512; PROG = 1024; FLAG = 1040; MAXC = 1044; TABN = 1088
CNT1 = TABN; GBASE = TABN; CNTR = TABN + 512
TILES = 4352; TSZ = 592; TMAX = 10; WREG = TMAX * TSZ
SB = TILES + NW * WREG
SB = (SB + 255) // 256 * 256
SROW = 528; NSROW = BN + NW
QB = SB + NSROW * SROW; QROW = 264
LDS = QB + 103 * QROW
assert LDS <= 163840 and QB % 8 == 0 and TILES % 128 == 0
RST = TILES; XRAW = TILES + 37632; W1RAW = SB; PST = SB + 32768
assert XRAW + 16384 <= SB and PST + BN * 256 <= QB
ZROW = BN; QZ = 102
PADKEY = 0x80000000
W2ROW = 192; W2X = 1536 + 32
SCANW, EXTRAW = 8, 9

out = []
def A(s=""): out.append(s)
def I(s):
    for l in s.strip("\n").split("\n"):
        l = l.strip()
        if not l: continue
        out.append(l if l.endswith(":") else "    " + l)
def L(name): out.append(name + ":")
def vr(a, n): return f"v[{a}:{a+n-1}]"
def sr(a, n): return f"s[{a}:{a+n-1}]"
def P(r): return f"v[{r}:{r+1}]"

sWS, sP, sOUT, sA, sBq, sC = 4, 8, 12, 16, 20, 24
sD = 28
pX, pE, pSRC, pDST, pW1, pB1, pW2, pB2, pOUT, pWS = 32, 34, 36, 38, 40, 42, 44, 46, 48, 50
sM = 32
sB, sW, sTw, sG, sT, sRem, sGam, sK, sGmax, sBad, sTag, sTag8, sReg, sMode, sK0, sMaxc = range(62, 78)
sONE = 78; sADV = 80; sSC = 82; sE0 = 84; sE1 = 86
t0, t1, t2, t3, t4, t5 = 88, 89, 90, 91, 92, 93
sNT = 94
vLane = 1
vPA5, vPKey, vPGS, vPGQ = 2, 3, 4, 5
vL4 = 6; vSC = 8; vQC = 9; vQ = 10; vGQ = 11
vSA = 12; vGS = 14; vA5 = 16; vB5 = [18, 20]; vD = 22; vN = 24; vSO = 26; vMX = 28; vST = 29; vB2 = 30
vW2S = 32
vt = 40
vLb = [48, 64]; vTL = 80; vTH = 96; vE = 112; vIX = 128
NVGPR = 168

nstamp = [0]
def stamp():
    if not DEBUG: return
    i = nstamp[0]; nstamp[0] += 1
    I(f"{'s_memtime' if DEBUG == 2 else 's_memrealtime'} s[100:101]")
    I("s_waitcnt lgkmcnt(0)")
    I(f"v_writelane_b32 v{vST}, s100, {i}")

def srd(d, p, nrec, stride=0, add=None):
    if add is None:
        I(f"s_mov_b32 s{d}, s{p}")
        I(f"s_and_b32 s{d+1}, s{p+1}, 0xffff")
    else:
        I(f"s_add_u32 s{d}, s{p}, {add}")
        I(f"s_addc_u32 s{d+1}, s{p+1}, 0")
        I(f"s_and_b32 s{d+1}, s{d+1}, 0xffff")
    I(f"s_mov_b32 s{d+2}, {nrec}")
    I(f"s_mov_b32 s{d+3}, 0x00020000")

def dpp_scan(v, vmax=None):
    steps = ["row_shr:1 row_mask:0xf bank_mask:0xf bound_ctrl:0", "row_shr:2 row_mask:0xf bank_mask:0xf bound_ctrl:0",
             "row_shr:4 row_mask:0xf bank_mask:0xf bound_ctrl:0", "row_shr:8 row_mask:0xf bank_mask:0xf bound_ctrl:0",
             "row_bcast:15 row_mask:0xa bank_mask:0xf", "row_bcast:31 row_mask:0xc bank_mask:0xf"]
    I("s_nop 1")
    for s in steps:
        I(f"v_add_u32_dpp v{v}, v{v}, v{v} {s}")
        if vmax is not None:
            I(f"v_max_u32_dpp v{vmax}, v{vmax}, v{vmax} {s}")
            I("s_nop 0")
        else:
            I("s_nop 1")
def lanemask(ls):
    m = 0
    for l in ls: m |= 1 << l
    return m
def setexec(m):
    I(f"s_mov_b32 exec_lo, {m & 0xffffffff}")
    I(f"s_mov_b32 exec_hi, {m >> 32}")
def mf16(D, a, b, c): return f"v_mfma_f32_32x32x16_bf16 {vr(D,16)}, {vr(a,4)}, {vr(b,4)}, {c}"
def mf8(D, a, b, c): return f"v_mfma_f32_32x32x8_bf16 {vr(D,16)}, {vr(a,2)}, {vr(b,2)}, {c}"
SDWA0 = "dst_sel:DWORD dst_unused:UNUSED_PAD src0_sel:WORD_0 src1_sel:DWORD"
SDWAB = "dst_sel:DWORD dst_unused:UNUSED_PAD src0_sel:DWORD src1_sel:BYTE_0"

def tile_init(valid, z):
    gdef = (ZROW*SROW) | ((QZ*QROW) << 16)
    for i in range(4): I(f"v_mov_b32 v{z+i}, 0")
    setexec(lanemask([8,9,10,11,20,21,22,23]))
    for i in range(4): I(f"v_mov_b32 v{z+i}, {PADKEY}")
    if valid:
        setexec(lanemask([24,25,26,27,32,33,34,35]))
        for i in range(4): I(f"v_mov_b32 v{z+i}, {0x3f800000 if i & 1 else 0x3f80}")
    setexec(lanemask([36]))
    for i in range(4): I(f"v_mov_b32 v{z+i}, {gdef}")
    I("s_mov_b64 exec, -1")
    I(f"v_lshl_add_u32 v{z+4}, v{vLane}, 4, s{sReg}")
    I("s_mov_b32 exec_hi, 0x1f")
    for t in range(TMAX):
        I(f"ds_write_b128 v{z+4}, {vr(z,4)} offset:{t*TSZ}")
    I("s_mov_b64 exec, -1")
def s_zero(z):
    nch = NSROW * SROW // 16
    for i in range(4): I(f"v_mov_b32 v{z+i}, 0")
    I(f"v_lshlrev_b32 v{z+4}, 4, v0")
    I(f"v_add_u32 v{z+4}, {SB}, v{z+4}")
    n = (nch + NTH - 1) // NTH
    for t in range(n):
        if (t + 1) * NTH > nch:
            I(f"v_cmp_gt_u32 vcc, {nch - t*NTH}, v0")
            I(f"s_and_b64 exec, exec, vcc")
        I(f"ds_write_b128 v{z+4}, {vr(z,4)} offset:{t*NTH*16}")
    I("s_mov_b64 exec, -1")
def small_init(z):
    I(f"""
    v_lshlrev_b32 v{z}, 2, v0
    v_mov_b32 v{z+1}, 0
    v_mov_b32 v{z+2}, {ZROW*SROW}
    v_lshrrev_b32 v{z+3}, 7, v0
    v_cmp_eq_u32 vcc, 1, v{z+3}
    s_nop 1
    v_cndmask_b32 v{z+1}, v{z+1}, v{z+2}, vcc
    v_cmp_gt_u32 vcc, 272, v0
    s_and_b64 exec, exec, vcc
    ds_write_b32 v{z}, v{z+1}
    s_mov_b64 exec, -1
    """)

hdr = open("standalone__edge_featured_mpnn_mpnn__graph.s.ref").read().split("\n")
for l in hdr:
    if "@launch" in l: continue
    if not l.startswith(";"): break
    A(l)
A(f"; @launch grid=(256,1,1) block=({NTH},1,1) lds={LDS}")
A('.amdgcn_target "amdgcn-amd-amdhsa--gfx950"')
A(".text")
A(f".globl {KNAME}")
A(".p2align 8")
A(f".type {KNAME},@function")
L(KNAME)
I(f"""
s_cmp_ge_u32 s2, 256
s_cbranch_scc1 L_exit
s_load_dwordx16 s[32:47], s[0:1], 0
s_load_dwordx2 {sr(pOUT,2)}, s[0:1], 64
s_load_dwordx2 {sr(pWS,2)}, s[0:1], 80
v_lshrrev_b32 v{vt}, 6, v0
v_and_b32 v{vLane}, 63, v0
v_readfirstlane_b32 s{sW}, v{vt}
s_mul_i32 s{t0}, s2, {QE*4}
v_lshl_add_u32 v{vt+1}, v0, 4, s{t0}
v_lshlrev_b32 v{vt+2}, 1, v{vt+1}
s_and_b32 s{sB}, s2, 7
s_lshl_b32 s{sB}, s{sB}, 5
s_lshr_b32 s{t1}, s2, 3
s_add_u32 s{sB}, s{sB}, s{t1}
v_lshlrev_b32 v75, 2, v0
v_mov_b32 v76, 0
ds_write_b32 v75, v76 offset:{CNT1}
v_lshrrev_b32 v68, 3, v{vLane}
v_lshrrev_b32 v69, 4, v{vLane}
v_and_b32 v70, 7, v{vLane}
v_xor_b32 v70, v70, v69
v_lshlrev_b32 v70, 4, v70
v_lshl_add_u32 v70, v68, 7, v70
s_and_b32 s{t0}, s{sW}, 1
s_lshl_b32 s{t0}, s{t0}, 6
v_xor_b32 v71, s{t0}, v70
v_and_b32 v72, 15, v{vLane}
v_lshlrev_b32 v73, 2, v69
v_xor_b32 v72, v72, v73
v_lshlrev_b32 v72, 4, v72
v_lshl_add_u32 v72, v69, 8, v72
v_lshlrev_b32 v74, 1, v{vLane}
v_and_b32 v75, 32, v{vLane}
v_lshl_add_u32 v74, v75, 4, v74
v_lshlrev_b32 v{vt+5}, 4, v{vLane}
v_lshlrev_b32 v{vt}, 4, v0
s_mul_i32 s{t1}, s{sB}, {BN*128}
s_lshl_b32 s{t2}, s{sW}, 10
s_mov_b32 s{sA+2}, {N*128}
s_mov_b32 s{sA+3}, 0x00020000
s_mov_b32 s{sBq+2}, {132*256}
s_mov_b32 s{sBq+3}, 0x00020000
s_mov_b32 s{sC+2}, 256
s_mov_b32 s{sC+3}, 0x00020000
s_mov_b32 s{sD+2}, {128*128}
s_mov_b32 s{sD+3}, 0x00020000
s_waitcnt lgkmcnt(0)
s_mov_b32 s{sA}, s{pX}
s_and_b32 s{sA+1}, s{pX+1}, 0xffff
s_mov_b32 s{sBq}, s{pW1}
s_and_b32 s{sBq+1}, s{pW1+1}, 0xffff
s_mov_b32 s{sC}, s{pB1}
s_and_b32 s{sC+1}, s{pB1+1}, 0xffff
s_mov_b32 s{sD}, s{pW2}
s_and_b32 s{sD+1}, s{pW2+1}, 0xffff
s_cmp_ge_u32 s{sW}, 8
s_cbranch_scc1 L_opt_hi
s_add_u32 s{t3}, s{t2}, {24*1024}
s_add_u32 m0, s{t3}, {W1RAW}
s_cmp_lg_u32 s{sW}, 0
buffer_load_dwordx4 v72, {sr(sBq,4)}, s{t3} offen lds
s_cbranch_scc1 L_opt_end
s_mov_b32 m0, {XRAW + 12*1024}
s_add_u32 s{t3}, s{t1}, {12*1024}
buffer_load_dwordx4 v70, {sr(sA,4)}, s{t3} offen lds
s_branch L_opt_end
L_opt_hi:
s_cmp_lg_u32 s{sW}, {EXTRAW}
s_cbranch_scc1 L_opt_a
s_mul_i32 s{t0}, s2, {XE}
s_add_u32 s{t0}, s{t0}, {256*QE}
v_add_lshl_u32 v{vt+3}, v{vLane}, s{t0}, 2
v_lshlrev_b32 v{vt+4}, 1, v{vt+3}
""")
XM = (1 << XE) - 1
setexec(XM)
I(f"""
global_load_dword v64, v{vt+3}, {sr(pDST,2)}
global_load_dword v65, v{vt+3}, {sr(pSRC,2)}
global_load_dwordx2 v[66:67], v{vt+4}, {sr(pE,2)}
s_mov_b64 exec, -1
s_branch L_opt_end
L_opt_a:
s_cmp_lg_u32 s{sW}, 10
s_cbranch_scc1 L_opt_b
s_mov_b32 s{t0}, {128*256}
buffer_load_dwordx4 v[12:15], v{vt+5}, {sr(sBq,4)}, s{t0} offen
s_branch L_opt_end
L_opt_b:
s_cmp_lg_u32 s{sW}, 11
s_cbranch_scc1 L_opt_end
s_cmp_ge_u32 s2, 16
s_cbranch_scc1 L_opt_end
s_and_b32 s{t0}, s2, 3
s_lshl_b32 s{t0}, s{t0}, 10
s_lshr_b32 s{t3}, s2, 2
s_lshl_b32 s{t3}, s{t3}, 1
s_add_u32 s{t0}, s{t0}, s{t3}
v_bfe_u32 v12, v{vLane}, 4, 1
v_lshlrev_b32 v12, 13, v12
v_lshrrev_b32 v13, 5, v{vLane}
v_lshl_add_u32 v12, v13, 12, v12
v_and_b32 v13, 15, v{vLane}
v_lshl_add_u32 v12, v13, 3, v12
""")
for i_ in range(8):
    I(f"buffer_load_ushort v{vW2S+i_}, v12, {sr(sD,4)}, s{t0} offen offset:{128*i_}")
I(f"""
L_opt_end:
global_load_dwordx4 v[48:51], v{vt+1}, {sr(pDST,2)}
s_add_u32 m0, s{t2}, {XRAW}
s_add_u32 s{t3}, s{t1}, s{t2}
buffer_load_dwordx4 v71, {sr(sA,4)}, s{t3} offen lds
s_add_u32 m0, s{t2}, {W1RAW}
s_add_u32 s{t3}, s{t2}, {12*1024}
buffer_load_dwordx4 v72, {sr(sBq,4)}, s{t2} offen lds
s_add_u32 m0, s{t3}, {W1RAW}
s_and_b32 s{t0}, s{sW}, 1
buffer_load_dwordx4 v72, {sr(sBq,4)}, s{t3} offen lds
s_lshl_b32 s{t0}, s{t0}, 7
s_bitcmp1_b32 s{sW}, 1
s_cselect_b32 s{t0}, s{t0}, 0x1000
buffer_load_ushort v160, v74, {sr(sC,4)}, s{t0} offen
buffer_load_ushort v162, v74, {sr(sC,4)}, s{t0} offen offset:64
""")
if DEBUG:
    I(f"v_mov_b32 v{vST}, 0")
stamp()
I(f"""
s_barrier
global_load_dwordx4 v[52:55], v{vt+1}, {sr(pSRC,2)}
global_load_dwordx4 v[56:59], v{vt+2}, {sr(pE,2)}
global_load_dwordx4 v[60:63], v{vt+2}, {sr(pE,2)} offset:16
v_and_b32 v75, 15, v{vLane}
v_lshlrev_b32 v75, 3, v75
global_load_dwordx2 {P(vB2)}, v75, {sr(pB2,2)}
s_load_dword s{sTag}, {sr(pWS,2)}, 0
""")
assert CNT1 + NTH * 4 <= TILES
small_init(76)
srd(sWS, pWS, WS_SIZE)
srd(sP, pWS, N*256, add=PT)
I(f"""
s_mul_i32 s{t0}, s{sB}, {BN}
s_sub_u32 s{t1}, {N}, s{t0}
s_min_u32 s{t1}, s{t1}, {BN}
s_lshl_b32 s{t2}, s{t0}, 7
s_add_u32 s{sOUT}, s{pOUT}, s{t2}
s_addc_u32 s{sOUT+1}, s{pOUT+1}, 0
s_and_b32 s{sOUT+1}, s{sOUT+1}, 0xffff
s_lshl_b32 s{sOUT+2}, s{t1}, 7
s_mov_b32 s{sOUT+3}, 0x00020000
s_mov_b32 s{sONE}, 1.0
s_mov_b32 s{sONE+1}, 1.0
s_mov_b32 s{sADV}, {TSZ}
s_mov_b32 s{sADV+1}, {TSZ}
s_mov_b32 s{sSC}, {f2u(-LOG2E)}
s_mov_b32 s{sSC+1}, {f2u(-LOG2E)}
s_mov_b32 s{sMode}, 0
s_mul_i32 s{sReg}, s{sW}, {WREG}
s_add_u32 s{sReg}, s{sReg}, {TILES}
s_mov_b32 s{t4}, 42800
s_mov_b32 s{t5}, {(-BN) & 0xffffffff}
v_mov_b32 v{vt+6}, 1
v_mov_b32 v161, 0
v_mov_b32 v163, 0
v_mov_b32 v164, 0x3f80
v_mov_b32 v165, 0
""")
I(f"""
v_lshrrev_b32 v68, 5, v{vLane}
v_bfe_u32 v69, v{vLane}, 2, 2
v_lshl_add_u32 v70, v68, 5, v69
s_and_b32 s{t0}, s{sW}, 2
s_lshl_b32 s{t0}, s{t0}, 13
s_add_u32 s{t0}, s{t0}, {W1RAW}
v_lshl_add_u32 v70, v70, 8, s{t0}
v_bfe_u32 v71, v{vLane}, 4, 1
v_lshl_add_u32 v70, v71, 5, v70
v_and_b32 v71, 3, v{vLane}
v_lshl_add_u32 v70, v71, 3, v70
s_and_b32 s{t0}, s{sW}, 1
s_lshl_b32 s{t0}, s{t0}, 1
v_xor_b32 v71, s{t0}, v69
v_lshl_add_u32 v166, v71, 6, v70
v_xor_b32 v71, 1, v71
v_lshl_add_u32 v167, v71, 6, v70
s_lshr_b32 s{t0}, s{sW}, 2
s_lshl_b32 s{t0}, s{t0}, 5
v_and_b32 v78, 31, v{vLane}
v_add_u32 v78, s{t0}, v78
v_bfe_u32 v71, v{vLane}, 1, 3
v_lshlrev_b32 v72, 2, v68
v_xor_b32 v71, v71, v72
v_lshlrev_b32 v71, 4, v71
v_lshl_add_u32 v79, v78, 7, v71
v_add_u32 v79, {XRAW}, v79
s_waitcnt vmcnt(9)
""")
stamp()
def bucket_rank(d, a, r):
    I(f"v_mul_u32_u24 v{a}, s{t4}, v{d}")
    I(f"v_lshrrev_b32 v{a}, 22, v{a}")
    I(f"v_mad_i32_i24 v{d}, v{a}, s{t5}, v{d}")
    I(f"v_lshlrev_b32 v{a}, 2, v{a}")
    I(f"ds_add_rtn_u32 v{r}, v{a}, v{vt+6} offset:{CNT1}")
for i in range(4): bucket_rank(48+i, 68+i, 73+i)
I(f"s_cmp_lg_u32 s{sW}, {EXTRAW}")
I("s_cbranch_scc1 L_noex1")
setexec(XM)
bucket_rank(64, 72, 77)
I("s_mov_b64 exec, -1")
L("L_noex1")
I(f"""
s_waitcnt vmcnt(4) lgkmcnt(0)
s_add_u32 s{sTag}, s{sTag}, 1
s_mul_i32 s{sTag8}, s{sTag}, 0x9e3779b1
s_and_b32 s{sTag8}, s{sTag8}, 0xff000000
s_barrier
""")
stamp()
I(f"""
s_cmp_lg_u32 s{sW}, {SCANW}
s_cbranch_scc1 L_noscan
ds_read_b128 v[80:83], v{vt+5} offset:{CNT1}
s_waitcnt lgkmcnt(0)
v_add_u32 v84, v80, v81
v_add_u32 v85, v84, v82
v_add_u32 v86, v85, v83
v_mov_b32 v87, v86
""")
dpp_scan(87)
I(f"""
v_sub_u32 v88, v87, v86
v_add_u32 v89, v88, v80
v_add_u32 v90, v88, v84
v_add_u32 v91, v88, v85
ds_write_b128 v{vt+5}, v[88:91] offset:{CNT1}
v_lshl_or_b32 v16, v80, 12, v88
v_lshl_or_b32 v18, v81, 12, v89
v_lshl_or_b32 v20, v82, 12, v90
v_lshl_or_b32 v22, v83, 12, v91
v_or_b32 v16, s{sTag8}, v16
v_or_b32 v18, s{sTag8}, v18
v_or_b32 v20, s{sTag8}, v20
v_or_b32 v22, s{sTag8}, v22
v_mov_b32 v17, s{sTag}
v_mov_b32 v19, s{sTag}
v_mov_b32 v21, s{sTag}
v_mov_b32 v23, s{sTag}
s_waitcnt lgkmcnt(0)
L_noscan:
""")
I(f"""
s_cmp_lg_u32 s{sW}, 10
s_cbranch_scc1 L_now1c
""")
for i in range(4):
    I(f"v_lshlrev_b32 v{80+2*i}, 16, v{12+i}")
    I(f"v_and_b32 v{81+2*i}, 0xffff0000, v{12+i}")
for i in range(4):
    I(f"v_pk_mul_f32 {P(80+2*i)}, {P(80+2*i)}, {sr(sSC,2)}")
for i in range(4):
    I(f"v_cvt_pk_bf16_f32 v{12+i}, v{80+2*i}, v{81+2*i}")
I(f"""
v_lshrrev_b32 v88, 4, v{vLane}
v_mul_u32_u24 v88, {QROW}, v88
v_and_b32 v89, 15, v{vLane}
v_lshl_add_u32 v88, v89, 4, v88
v_add_u32 v88, {QB + 98*QROW}, v88
ds_write2_b64 v88, v[12:13], v[14:15] offset0:0 offset1:1
v_lshlrev_b32 v88, 2, v{vLane}
v_add_u32 v88, {QB + QZ*QROW}, v88
ds_write_b32 v88, v165
s_waitcnt lgkmcnt(0)
L_now1c:
""")
for jl in range(2):
    for ks in range(4):
        for hf in range(2):
            I(f"ds_read_b64_tr_b16 {P(80+16*jl+4*ks+2*hf)}, v{166+jl} offset:{(8*ks+4*hf)*256}")
I(f"s_mov_b32 s{t0}, 0x07060302")
I(f"s_lshr_b32 s{sK}, s{sW}, 2")
L("L_pq")
I(f"""
v_xor_b32 v{vt+1}, 16, v79
v_xor_b32 v{vt+2}, 32, v79
v_xor_b32 v{vt+3}, 48, v79
ds_read_b128 v[112:115], v79
ds_read_b128 v[116:119], v{vt+1}
ds_read_b128 v[120:123], v{vt+2}
ds_read_b128 v[124:127], v{vt+3}
""")
I(mf8(128, 160, 164, "0"))
I(mf8(144, 162, 164, "0"))
I(f"v_cmp_gt_u32 vcc, {BN}, v78")
I(f"s_mov_b64 {sr(sE0,2)}, vcc")
I("s_waitcnt lgkmcnt(0)")
for ks in range(4):
    I(mf16(128, 80+4*ks, 112+4*ks, vr(128,16)))
    I(mf16(144, 96+4*ks, 112+4*ks, vr(144,16)))
I(f"""
v_lshrrev_b32 v{vt+1}, 5, v{vLane}
s_and_b32 s{t1}, s{sW}, 1
s_bitcmp1_b32 s{sW}, 1
s_cbranch_scc1 L_pq_q
s_lshl_b32 s{t1}, s{t1}, 3
v_add_u32 v{vt+1}, s{t1}, v{vt+1}
v_and_b32 v{vt+2}, 15, v78
v_xor_b32 v{vt+1}, v{vt+1}, v{vt+2}
v_lshlrev_b32 v{vt+1}, 4, v{vt+1}
v_lshl_add_u32 v{vt+1}, v78, 8, v{vt+1}
v_add_u32 v{vt+1}, {PST}, v{vt+1}
v_xor_b32 v{vt+2}, 32, v{vt+1}
v_xor_b32 v{vt+3}, 64, v{vt+1}
v_xor_b32 v{vt+4}, 0x60, v{vt+1}
s_nop 3
""")
for i in range(16):
    I(f"v_pk_mul_f32 {P(128+2*i)}, {P(128+2*i)}, {sr(sSC,2)}")
for i in range(16):
    I(f"v_add_u32 v{128+i}, 0x4000, v{128+i}")
for i in range(16):
    I(f"v_perm_b32 v{128+i}, v{144+i}, v{128+i}, s{t0}")
I(f"s_mov_b64 exec, {sr(sE0,2)}")
for rg in range(4):
    I(f"ds_write_b128 v{vt+1+rg}, {vr(128+4*rg,4)}")
I("s_branch L_pq_end")
L("L_pq_q")
I(f"""
s_lshl_b32 s{t1}, s{t1}, 7
s_add_u32 s{t1}, s{t1}, {QB}
v_lshl_add_u32 v{vt+1}, v{vt+1}, 3, s{t1}
v_mul_u32_u24 v{vt+2}, {QROW}, v78
v_add_u32 v{vt+1}, v{vt+1}, v{vt+2}
s_nop 7
""")
for i in range(16):
    I(f"v_pk_mul_f32 {P(128+2*i)}, {P(128+2*i)}, {sr(sSC,2)}")
for i in range(16):
    I(f"v_cvt_pk_bf16_f32 v{128+i}, v{128+2*i}, v{129+2*i}")
I(f"s_mov_b64 exec, {sr(sE0,2)}")
for jl in range(2):
    for rg in range(4):
        I(f"ds_write_b64 v{vt+1}, {P(128+8*jl+2*rg)} offset:{64*jl + 16*rg}")
L("L_pq_end")
I(f"""
s_mov_b64 exec, -1
s_waitcnt lgkmcnt(0)
s_cmp_lg_u32 s{sK}, 0
s_cbranch_scc1 L_pq_done
s_mov_b32 s{sK}, 1
v_add_u32 v78, 96, v78
v_add_u32 v79, {96*128}, v79
s_branch L_pq
L_pq_done:
""")
if int(opts.get("dly_pq", 0)): I(f"s_sleep {opts['dly_pq']}")
I("s_barrier")
stamp()
I(f"""
v_lshrrev_b32 v80, 4, v0
v_xor_b32 v81, v80, v0
v_and_b32 v81, 15, v81
v_lshlrev_b32 v81, 4, v81
v_lshl_add_u32 v81, v80, 8, v81
v_add_u32 v81, {PST}, v81
ds_read_b128 v[84:87], v81
ds_read_b128 v[88:91], v81 offset:{48*256}
ds_read_b128 v[92:95], v81 offset:{96*256}
""")
for i in range(5):
    I(f"ds_read_b32 v{68+i}, v{68+i} offset:{CNT1}")
I(f"""
s_mul_i32 s{t0}, s{sB}, {BN*256}
s_add_u32 s{t0}, s{t0}, {PT}
s_add_u32 s{sA}, s{pWS}, s{t0}
s_addc_u32 s{sA+1}, s{pWS+1}, 0
s_and_b32 s{sA+1}, s{sA+1}, 0xffff
s_mov_b32 s{sA+2}, {BN*256}
s_mov_b32 s{sA+3}, 0x00020000
s_mul_i32 s{t0}, s2, {RSTRIDE}
s_add_u32 s{t0}, s{t0}, {REC}
s_add_u32 s{sBq}, s{pWS}, s{t0}
s_addc_u32 s{sBq+1}, s{pWS+1}, 0
s_and_b32 s{sBq+1}, s{sBq+1}, 0xffff
s_mov_b32 s{sBq+2}, {(CH*12+15)//16*16}
s_mov_b32 s{sBq+3}, 0x00020000
s_mov_b32 s{t1}, {NTH*16}
s_mov_b32 s{t2}, {2*NTH*16}
s_mov_b32 s{t3}, {3*NTH*16}
s_waitcnt lgkmcnt(7)
buffer_store_dwordx4 v[84:87], v{vt}, {sr(sA,4)}, 0 offen sc1
s_waitcnt lgkmcnt(6)
buffer_store_dwordx4 v[88:91], v{vt}, {sr(sA,4)}, s{t1} offen sc1
s_waitcnt lgkmcnt(5)
buffer_store_dwordx4 v[92:95], v{vt}, {sr(sA,4)}, s{t2} offen sc1
s_waitcnt lgkmcnt(0)
""")
for i in range(5):
    I(f"v_add_u32 v{68+i}, v{68+i}, v{73+i}")
    I(f"v_mul_u32_u24 v{68+i}, 12, v{68+i}")
    I(f"v_add_u32 v{68+i}, {RST}, v{68+i}")
I("s_waitcnt vmcnt(4)")
stamp()
for i in range(4):
    I(f"v_lshl_or_b32 v{48+i}, v{52+i}, 8, v{48+i}")
    I(f"ds_write2_b32 v{68+i}, v{56+2*i}, v{57+2*i} offset0:0 offset1:1")
    I(f"ds_write_b32 v{68+i}, v{48+i} offset:8")
I(f"s_cmp_lg_u32 s{sW}, {EXTRAW}")
I("s_cbranch_scc1 L_noex2")
setexec(XM)
I(f"""
v_lshl_or_b32 v64, v65, 8, v64
ds_write2_b32 v72, v66, v67 offset0:0 offset1:1
ds_write_b32 v72, v64 offset:8
s_mov_b64 exec, -1
L_noex2:
s_waitcnt lgkmcnt(0)
s_barrier
""")
stamp()
for i in range(4):
    I(f"ds_read_b128 {vr(48+4*i,4)}, v{vt} offset:{RST + i*NTH*16}")
for i in range(3):
    I(f"s_waitcnt lgkmcnt({3-i})")
    I(f"buffer_store_dwordx4 {vr(48+4*i,4)}, v{vt}, {sr(sBq,4)}, {['0', f's{t1}', f's{t2}'][i]} offen sc1")
I(f"""
s_waitcnt lgkmcnt(0)
s_cmp_lg_u32 s{sW}, 0
s_cbranch_scc1 L_no4
buffer_store_dwordx4 v[60:63], v{vt}, {sr(sBq,4)}, s{t3} offen sc1
L_no4:
""")
s_zero(64)
if int(opts.get("dly_dr", 0)): I(f"s_sleep {opts['dly_dr']}")
I(f"""
s_cmp_lg_u32 s{sW}, 11
s_cbranch_scc1 L_now2
s_cmp_ge_u32 s2, 16
s_cbranch_scc1 L_now2
s_lshl_b32 s{t0}, s2, 10
s_add_u32 s{t0}, s{t0}, {W2I}
v_lshl_or_b32 v{vW2S}, v{vW2S+1}, 16, v{vW2S}
v_lshl_or_b32 v{vW2S+1}, v{vW2S+3}, 16, v{vW2S+2}
v_lshl_or_b32 v{vW2S+2}, v{vW2S+5}, 16, v{vW2S+4}
v_lshl_or_b32 v{vW2S+3}, v{vW2S+7}, 16, v{vW2S+6}
buffer_store_dwordx4 {vr(vW2S,4)}, v{vt+5}, {sr(sWS,4)}, s{t0} offen sc1
L_now2:
""")
I(f"""
v_and_b32 v72, 31, v{vLane}
v_lshlrev_b32 v{vL4}, 2, v72
v_mov_b32 v{vL4+1}, v{vL4}
v_add_u32 v{vSC}, {SB}, v{vL4}
v_bfe_u32 v73, v{vLane}, 4, 1
v_lshlrev_b32 v73, 5, v73
v_and_b32 v74, 3, v{vLane}
v_lshl_add_u32 v73, v74, 3, v73
v_add_u32 v{vQC}, {QB}, v73
v_bfe_u32 v75, v{vLane}, 2, 2
v_add_u32 v76, 98, v75
v_mul_u32_u24 v76, {QROW}, v76
v_add_u32 v{vQ}, v76, v{vQC}
""")
def ptr_consts(base):
    I(f"""
    v_bfe_u32 v72, v{vLane}, 2, 1
    v_bfe_u32 v73, v{vLane}, 3, 2
    v_and_b32 v74, 3, v{vLane}
    v_lshl_add_u32 v73, v73, 2, v74
    v_lshl_add_u32 v73, v73, 2, {base}
    v_mul_u32_u24 v74, 192, v72
    v_add_u32 v74, v74, v73
    v_lshl_add_u32 v73, v72, 6, v73
    v_add_u32 v73, 384, v73
    v_cmp_le_u32 vcc, 32, v{vLane}
    v_lshrrev_b32 v76, 5, v{vLane}
    v_bfe_u32 v75, v{vLane}, 2, 2
    v_cndmask_b32 v{vPA5}, v74, v73, vcc
    v_mul_u32_u24 v74, 192, v76
    v_add_u32 v74, 128, v74
    v_add_u32 v{vPKey}, {base}, v74
    v_lshl_add_u32 v74, v76, 3, {base}
    v_add_u32 v{vPGS}, 576, v74
    v_lshl_add_u32 v74, v75, 2, {base}
    v_add_u32 v{vPGQ}, 578, v74
    """)
ptr_consts(f"s{sReg}")
I("""
s_waitcnt vmcnt(0) lgkmcnt(0)
s_barrier
""")
stamp()
I(f"""
s_cmp_lg_u32 s{sW}, {SCANW}
s_cbranch_scc1 L_nopub
v_lshlrev_b32 v72, 5, v{vLane}
s_lshl_b32 s{t0}, s2, 11
s_add_u32 s{t0}, s{t0}, {GRAN}
buffer_store_dwordx4 v[16:19], v72, {sr(sWS,4)}, s{t0} offen sc0 sc1
buffer_store_dwordx4 v[20:23], v72, {sr(sWS,4)}, s{t0} offen offset:16 sc0 sc1
L_nopub:
""")
tile_init(True, 64)
vDs = 124
vRA = 130
def load_desc():
    I(f"""
    v_lshrrev_b32 v133, 3, v{vLane}
    v_lshlrev_b32 v134, 11, v133
    s_lshl_b32 s{t0}, s{sW}, 14
    s_lshl_b32 s{t1}, s{sB}, 3
    s_add_u32 s{t0}, s{t0}, s{t1}
    s_add_u32 s{t0}, s{t0}, {GRAN}
    s_add_u32 s{t1}, s{t0}, {12*16384}
    s_add_u32 s{t2}, s{t0}, {24*16384}
    s_cmp_ge_u32 s{sW}, 8
    s_cselect_b32 s{t2}, s{t0}, s{t2}
    """)
def decode_desc():
    I(f"""
    v_and_b32 v135, 7, v{vLane}
    v_mul_u32_u24 v136, 12, v135
    s_mov_b32 s{t0}, {RSTRIDE}
    v_mad_u32_u24 v136, v133, s{t0}, v136
    s_mul_i32 s{t3}, s{sW}, {8*RSTRIDE}
    s_add_u32 s{t3}, s{t3}, {REC}
    s_cmp_ge_u32 s{sW}, 8
    s_cselect_b32 s{t0}, 0, -1
    v_and_b32 v{vDs+4}, s{t0}, v{vDs+4}
    """)
    for jj in range(3):
        I(f"v_and_b32 v{vRA+jj}, 0xfff, v{vDs+2*jj}")
        I(f"v_mad_u32_u24 v{vRA+jj}, v{vRA+jj}, 12, v136")
        if jj: I(f"v_add_u32 v{vRA+jj}, {jj*96*RSTRIDE}, v{vRA+jj}")
        I(f"v_bfe_u32 v{vDs+2*jj}, v{vDs+2*jj}, 12, 12")
        I(f"v_sub_u32 v{vDs+2*jj}, v{vDs+2*jj}, v135")
load_desc()
I(f"s_mov_b32 s{sK}, 0")
for jj in range(3):
    I(f"s_mov_b64 {sr(sM+2*jj,2)}, -1")
I("s_branch L_poll1")
L("L_poll")
if SLEEP: I(f"s_sleep {SLEEP}")
L("L_poll1")
for jj in range(3):
    I(f"s_mov_b64 exec, {sr(sM+2*jj,2)}")
    I(f"s_cbranch_execz L_pk{jj}")
    I(f"buffer_load_dwordx2 {P(vDs+2*jj)}, v134, {sr(sWS,4)}, s{t0+jj} offen sc1")
    L(f"L_pk{jj}")
I(f"""
s_mov_b64 exec, -1
s_add_u32 s{sK}, s{sK}, 1
s_cmp_gt_u32 s{sK}, 0x40000
s_cbranch_scc1 L_exit
s_waitcnt vmcnt(0)
""")
for jj in range(3):
    I(f"""
    v_xor_b32 v135, s{sTag8}, v{vDs+2*jj}
    v_xor_b32 v136, s{sTag}, v{vDs+2*jj+1}
    v_lshrrev_b32 v135, 24, v135
    v_or_b32 v135, v135, v136
    v_cmp_ne_u32 {sr(sM+2*jj,2)}, 0, v135
    """)
I(f"""
s_or_b64 {sr(sE0,2)}, {sr(sM,2)}, {sr(sM+2,2)}
s_or_b64 {sr(sE0,2)}, {sr(sE0,2)}, {sr(sM+4,2)}
s_cbranch_scc1 L_poll
""")
stamp()
decode_desc()
NR = 5
order = [(jj, rd) for rd in range(NR) for jj in range(3)]
slotreg = {s: 48 + 4*n_ for n_, s in enumerate(order)}
slotmask = {s: sM + 2*n_ for n_, s in enumerate(order)}
vTA = {s: 108 + n_ for n_, s in enumerate(order)}
for (jj, rd) in order:
    I(f"v_cmp_lt_i32 {sr(slotmask[(jj,rd)],2)}, {8*rd}, v{vDs+2*jj}")
I(f"""
v_max3_i32 v137, v{vDs}, v{vDs+2}, v{vDs+4}
v_cmp_lt_i32 vcc, {8*NR}, v137
s_or_b64 {sr(sE1,2)}, {sr(slotmask[(0,3)],2)}, {sr(slotmask[(1,3)],2)}
s_or_b64 {sr(sE1,2)}, {sr(sE1,2)}, {sr(slotmask[(2,3)],2)}
""")
lab = [0]
def slots(body, always_mask=True):
    lab[0] += 1; grp = lab[0]
    for s in order:
        jj, rd = s
        if s == (0, 3):
            I(f"s_cmp_eq_u64 {sr(sE1,2)}, 0")
            I(f"s_cbranch_scc1 L_sg{grp}")
        skip = rd >= 2 or jj == 2
        if skip or always_mask:
            I(f"s_mov_b64 exec, {sr(slotmask[s],2)}")
        else:
            I("s_mov_b64 exec, -1") if False else None
        if skip:
            lab[0] += 1
            I(f"s_cbranch_execz L_sk{lab[0]}")
        body(s)
        if skip: L(f"L_sk{lab[0]}")
    L(f"L_sg{grp}")
    I("s_mov_b64 exec, -1")
slots(lambda s: I(f"buffer_load_dwordx3 {vr(slotreg[s],3)}, v{vRA+s[0]}, {sr(sWS,4)}, s{t3} offen offset:{96*s[1]} sc1"))
I(f"""
s_cbranch_vccz L_nobig
v_mov_b32 v137, 0
ds_write_b32 v137, v{vt+6} offset:{FLAG}
L_nobig:
s_waitcnt vmcnt(0)
""")
stamp()
def rank_body(s):
    r = slotreg[s]
    I(f"v_lshlrev_b32_sdwa v{vTA[s]}, 2, v{r+2} {SDWAB}")
    I(f"v_and_b32 v{r+2}, 0xffffff00, v{r+2}")
    I(f"ds_add_rtn_u32 v{r+3}, v{vTA[s]}, v{vt+6} offset:{CNT}")
slots(rank_body)
I("""
s_waitcnt lgkmcnt(0)
s_barrier
""")
stamp()
I(f"""
s_or_b32 s{t0}, s2, s{sW}
s_cmp_lg_u32 s{t0}, 0
s_cbranch_scc1 L_nogen
v_mov_b32 v137, 0
v_mov_b32 v138, s{sTag}
s_mov_b64 exec, 1
buffer_store_dword v138, v137, {sr(sWS,4)}, 0 offen sc0 sc1
s_mov_b64 exec, -1
L_nogen:
""")
if PREF:
    I(f"""
    s_lshr_b32 s{t0}, s2, 3
    s_mul_i32 s{t0}, s{t0}, {NW*PREF}
    s_mul_i32 s{t1}, s{sW}, {PREF}
    s_add_u32 s{t0}, s{t0}, s{t1}
    s_lshl_b32 s{t0}, s{t0}, 13
    v_lshlrev_b32 v123, 7, v{vLane}
    """)
    for i_ in range(PREF):
        if i_: I(f"s_add_u32 s{t0}, s{t0}, 8192")
        I(f"buffer_load_dword v{vW2S+i_}, v123, {sr(sP,4)}, s{t0} offen sc1")
I(f"""
v_lshlrev_b32 v136, 3, v{vLane}
v_mov_b32 v151, 0
ds_read_b64 v[138:139], v136 offset:{CNT}
ds_read_b32 v137, v151 offset:{FLAG}
""")
def addr_body(s):
    r = slotreg[s]
    I(f"v_lshrrev_b32 v152, 2, v{r+3}")
    I(f"v_and_b32 v152, 0x1e, v152")
    I(f"v_lshl_add_u32 v{vTA[s]}, v{vTA[s]}, 3, v152")
    I(f"v_and_b32 v{r+3}, 7, v{r+3}")
I(f"""
s_waitcnt lgkmcnt(0)
v_add_u32 v140, 7, v138
v_add_u32 v141, 7, v139
v_lshrrev_b32 v140, 3, v140
v_lshrrev_b32 v141, 3, v141
v_add_u32 v142, v140, v141
v_max_u32 v143, v140, v141
v_mov_b32 v144, v142
v_readfirstlane_b32 s{sBad}, v137
""")
dpp_scan(144, 143)
I(f"""
s_nop 0
v_readlane_b32 s{sG}, v144, 63
v_readlane_b32 s{sGmax}, v143, 63
v_sub_u32 v144, v144, v142
v_add_u32 v145, v144, v140
s_add_u32 s{t0}, s{sG}, 3
s_lshr_b32 s{t0}, s{t0}, 2
s_cmp_gt_u32 s{t0}, {NW*TMAX}
s_cselect_b32 s{sBad}, 1, s{sBad}
s_cmp_gt_u32 s{sGmax}, {TMAX}
s_cselect_b32 s{sBad}, 1, s{sBad}
""")
if FORCE_SLOW == 1: I(f"s_mov_b32 s{sBad}, 1")
I(f"""
s_cmp_lg_u32 s{sBad}, 0
s_cbranch_scc1 L_slow
s_mul_i32 s{sT}, s{t0}, 171
s_lshr_b32 s{sT}, s{sT}, 11
s_mul_i32 s{t1}, s{sT}, {NW}
s_sub_u32 s{sRem}, s{t0}, s{t1}
s_cmp_gt_u32 s{sGmax}, s{sT}
s_cselect_b32 s{sT}, s{sGmax}, s{sT}
s_cselect_b32 s{sRem}, 0, s{sRem}
s_max_u32 s{sT}, s{sT}, 1
s_add_u32 s{t1}, s{sT}, 1
s_lshl_b32 s{t2}, s{sRem}, 2
s_mul_i32 s{sGam}, s{t2}, s{t1}
v_cvt_f32_u32 v146, s{sT}
v_cvt_f32_u32 v147, s{t1}
v_rcp_f32 v146, v146
v_rcp_f32 v147, v147
v_mov_b32 v148, s{sT}
v_mov_b32 v149, s{t1}
v_mov_b32 v150, s{t2}
s_cmp_lt_u32 s{sW}, s{sRem}
s_cselect_b32 s{sTw}, s{t1}, s{sT}
s_cselect_b32 s{t0}, 0, s{t2}
s_mul_i32 s{t1}, s{sTw}, s{sW}
s_lshl_b32 s{t1}, s{t1}, 2
s_add_u32 s{t1}, s{t1}, s{t0}
s_sub_i32 s{t1}, s{sG}, s{t1}
s_max_i32 s{t1}, s{t1}, 0
s_min_u32 s{sTw}, s{sTw}, s{t1}
v_lshlrev_b32 v153, 1, v{vLane}
s_mov_b32 s{sK}, s{sW}
s_cmp_lt_u32 s{sW}, 6
s_cbranch_scc1 L_build
s_sub_u32 s{sK}, s{sW}, 6
v_mov_b32 v138, v139
v_mov_b32 v140, v141
v_mov_b32 v144, v145
v_add_u32 v153, 1, v153
L_build:
v_cmp_lt_u32 vcc, s{sK}, v140
s_and_b64 exec, exec, vcc
s_cbranch_execz L_bskip
v_add_u32 v154, s{sK}, v144
v_cmp_gt_u32 vcc, s{sGam}, v154
v_mul_u32_u24 v165, {QROW}, v153
s_lshl_b32 s{t0}, s{sK}, 1
v_cndmask_b32 v156, v150, v151, vcc
v_cndmask_b32 v157, v148, v149, vcc
v_cndmask_b32 v158, v146, v147, vcc
v_sub_u32 v154, v154, v156
v_cvt_f32_u32 v159, v154
v_add_f32 v159, 0.5, v159
v_mul_f32 v159, v159, v158
v_cvt_u32_f32 v159, v159
v_mul_u32_u24 v160, v159, v157
v_sub_u32 v160, v154, v160
v_and_b32 v161, 3, v159
v_lshrrev_b32 v162, 2, v159
v_mad_u32_u24 v163, v161, v157, v160
v_cmp_gt_u32 vcc, s{sK}, v163
v_mad_u32_u24 v164, v162, {TMAX}, v160
v_mul_u32_u24 v164, {TSZ}, v164
v_add_u32 v164, {TILES}, v164
v_add_u32 v162, {ZROW}, v162
v_cndmask_b32 v162, v153, v162, vcc
v_mul_u32_u24 v162, {SROW}, v162
v_lshl_or_b32 v165, v165, 16, v162
v_lshl_add_u32 v166, v161, 2, v164
ds_write_b32 v166, v165 offset:576
v_and_b32 v166, 1, v161
v_lshl_add_u32 v164, v166, 2, v164
v_lshrrev_b32 v161, 1, v161
v_mul_u32_u24 v166, 192, v161
v_add_u32 v166, v166, v164
v_lshrrev_b32 v166, 2, v166
v_lshl_add_u32 v167, v153, 5, s{t0}
ds_write_b16 v167, v166 offset:{TABN}
v_lshl_add_u32 v164, v161, 7, v164
s_lshl_b32 s{t0}, s{sK}, 3
v_subrev_u32 v155, s{t0}, v138
v_lshlrev_b32 v167, 2, v153
s_mov_b64 {sr(sE0,2)}, exec
s_and_b64 exec, exec, vcc
ds_write_b32 v167, v162 offset:{CARRY}
s_mov_b64 exec, {sr(sE0,2)}
""")
for idx in range(7, 0, -1):
    I(f"v_cmpx_ge_u32 vcc, {idx}, v155")
    I(f"ds_write_b32 v164, v151 offset:{384 + 8*idx}")
I(f"""
L_bskip:
s_mov_b64 exec, -1
s_add_u32 s{sK}, s{sK}, 6
s_cmp_lt_u32 s{sK}, s{sGmax}
s_cbranch_scc1 L_build
""")
slots(addr_body)
I("""
s_waitcnt lgkmcnt(0)
s_barrier
""")
stamp()
slots(lambda s: I(f"ds_read_u16 v{vTA[s]}, v{vTA[s]} offset:{TABN}"))
I("s_waitcnt lgkmcnt(0)")
def scat_body(s):
    r = slotreg[s]
    I(f"v_lshl_add_u32 v{vTA[s]}, v{r+3}, 1, v{vTA[s]}")
    I(f"v_lshlrev_b32 v{vTA[s]}, 2, v{vTA[s]}")
    I(f"ds_write2_b32 v{vTA[s]}, v{r}, v{r+1} offset0:0 offset1:16")
    I(f"ds_write_b32 v{vTA[s]}, v{r+2} offset:128")
slots(scat_body)
I("""
s_waitcnt lgkmcnt(0)
s_barrier
""")
stamp()

def chain(T):
    l = [f"v_pk_add_f32 {P(vD)}, {P(vE)}, {sr(sONE,2)}",
         f"v_pk_fma_f32 {P(vN)}, {P(T)}, {P(vE+2)}, {P(T)}",
         f"v_pk_fma_f32 {P(vN)}, {P(T+2)}, {P(vD)}, {P(vN)}",
         f"v_pk_fma_f32 {P(vD)}, {P(vD)}, {P(vE+2)}, {P(vD)}"]
    for i in range(2, 8):
        l += [f"v_pk_fma_f32 {P(vN)}, {P(vN)}, {P(vE+2*i)}, {P(vN)}",
              f"v_pk_fma_f32 {P(vN)}, {P(T+2*i)}, {P(vD)}, {P(vN)}",
              f"v_pk_fma_f32 {P(vD)}, {P(vD)}, {P(vE+2*i)}, {P(vD)}"]
    return l
def keys(off): return [f"ds_read_b128 {vr(vIX+4*i,4)}, v{vPKey} offset:{off+16*i}" for i in range(4)]
def ixadd(): return [f"v_lshl_add_u64 {P(vIX+2*i)}, {P(vIX+2*i)}, 0, {P(vL4)}" for i in range(8)]
def gload(u): return [f"buffer_load_dword v{vLb[u]+i}, v{vIX+i}, {sr(sP,4)}, 0 offen offset:{128*u} sc1" for i in range(16)]
def shifts(u): return [f"v_lshlrev_b64 {P(vTL+2*i)}, 16, {P(vLb[u]+2*i)}" for i in range(8)]
SAUPD = [f"v_add_u32_sdwa v{vSA}, v{vGS}, v{vSC} {SDWA0}", f"v_add_u32_sdwa v{vSA+1}, v{vGS+1}, v{vSC} {SDWA0}"]
QUPD = f"v_add_u32_dpp v{vQ}, v{vGQ}, v{vQC} quad_perm:[0,1,2,3] row_mask:0xc bank_mask:0xf"

I(f"""
v_mov_b32 v{vMX}, 0
s_cmp_eq_u32 s{sTw}, 0
s_cbranch_scc1 L_loop_done
""")
for l in keys(0): I(l)
I(f"""
ds_read_b64 {P(vGS)}, v{vPGS}
ds_read_u16 v{vGQ}, v{vPGQ}
ds_read2_b32 {P(vA5)}, v{vPA5} offset0:0 offset1:16
s_waitcnt lgkmcnt(3)
""")
for l in ixadd() + gload(0) + gload(1) + keys(TSZ): I(l)
I("s_waitcnt lgkmcnt(4)")
I(QUPD)
I(f"""
ds_read_b64_tr_b16 {P(vB5[0])}, v{vQ}
ds_read_b64_tr_b16 {P(vB5[1])}, v{vQ} offset:64
s_waitcnt lgkmcnt(2)
""")
for l in ixadd(): I(l)
I("s_waitcnt vmcnt(16)")
stamp()
for l in shifts(0): I(l)
I("s_waitcnt lgkmcnt(0)")
I("s_nop 0")
I(mf8(vTL, vA5, vB5[0], vr(vTL,16)))
I(f"s_mov_b32 s{sK}, s{sTw}")
if PRIO:
    I("s_setprio 3")
    I(f"s_mov_b32 s{t5}, {sum(1 << x for x in PTH)}")
I("s_nop 15")

body = []
def lds(text, tag=None): body.append(("lds", text, tag))
def need(tag): body.append(("need", tag))
def em(x):
    if isinstance(x, list): body.extend(x)
    else: body.append(x)
if PRIO:
    em([f"s_bitcmp1_b32 s{t5}, s{sK}", "s_cbranch_scc1 L_prio", "L_prio_ret:"])
def rds(j):
    lds(f"ds_read_b32 v{vSO}, v{vSA} offset:{128*j}")
    lds(f"ds_read_b32 v{vSO+1}, v{vSA+1} offset:{128*j}", f"so{j}")
for j in range(4):
    T = vTH if j & 1 else vTL
    j2 = (j + 2) & 3
    ex = [f"v_exp_f32 v{vE+i}, v{T+i}" for i in range(16)]
    ch = chain(T)
    g = gload(j >> 1)
    if j & 1: em(g[11:16])
    if j != 0: rds(j)
    lds(f"ds_read_b64_tr_b16 {P(vB5[j & 1])}, v{vQ} offset:{64*j2}", f"b5_{j2}")
    if j == 1:
        lds(f"ds_read_b64 {P(vGS)}, v{vPGS} offset:{TSZ}")
        lds(f"ds_read_u16 v{vGQ}, v{vPGQ} offset:{TSZ}", "gq")
    if j == 3:
        kk = keys(2*TSZ)
        for i in range(4): lds(kk[i], "keys" if i == 3 else None)
    if j & 1 == 0:
        need(f"b5_{j+1}")
        em(mf8(vTH, vA5, vB5[1], vr(vLb[j >> 1],16)))
        if j == 0: em(SAUPD)
        em(ex[0:8])
        em(g[0:6])
        if j == 0: rds(0)
        if j == 2: lds(f"ds_read2_b32 {P(vA5)}, v{vPA5} offset0:{TSZ//4} offset1:{TSZ//4+16}", "a5")
        em(ex[8:16])
        em(ch[0:4])
        em(g[6:11])
        em(ch[4:])
    else:
        jn = (j + 1) & 3; un = jn >> 1
        em("s_waitcnt vmcnt(16)")
        em(shifts(un))
        em(ex[0:2])
        need("a5" if j == 3 else f"b5_{jn}")
        em(mf8(vTL, vA5, vB5[0], vr(vTL,16)))
        em(ex[2:])
        if j == 3:
            need("keys")
            em(ixadd())
            em([f"v_lshl_add_u64 {P(vPA5)}, {P(vPA5)}, 0, {sr(sADV,2)}", f"v_lshl_add_u64 {P(vPGS)}, {P(vPGS)}, 0, {sr(sADV,2)}"])
        else:
            need("gq")
            em(QUPD)
        em(ch)
    em([f"v_rcp_f32 v{vE}, v{vD}", f"v_rcp_f32 v{vE+1}, v{vD+1}", f"v_max3_f32 v{vMX}, v{vD}, v{vD+1}, v{vMX}"])
    if j & 1 == 0: need(f"so{j}")
    em(f"v_pk_fma_f32 {P(vSO)}, {P(vN)}, {P(vE)}, {P(vSO)}")
    if j == 3: em([f"s_sub_u32 s{sK}, s{sK}, 1", f"s_cmp_lg_u32 s{sK}, 0"])
    lds(f"ds_write_b32 v{vSA}, v{vSO} offset:{128*j}")
    lds(f"ds_write_b32 v{vSA+1}, v{vSO+1} offset:{128*j}")
seq2 = body + body + body
res = []
for pos in range(2*len(body), 3*len(body)):
    x = seq2[pos]
    if isinstance(x, tuple) and x[0] == "need":
        n = 0; p = pos - 1
        while not (isinstance(seq2[p], tuple) and seq2[p][0] == "lds" and seq2[p][2] == x[1]):
            if isinstance(seq2[p], tuple) and seq2[p][0] == "lds": n += 1
            p -= 1
        covered = False
        for q in range(p + 1, pos):
            y = seq2[q]
            if isinstance(y, tuple) and y[0] == "need":
                pp = q - 1
                while not (isinstance(seq2[pp], tuple) and seq2[pp][0] == "lds" and seq2[pp][2] == y[1]): pp -= 1
                if pp >= p: covered = True
        if not covered: res.append(f"s_waitcnt lgkmcnt({min(n,15)})")
    elif isinstance(x, tuple): res.append(x[1])
    else: res.append(x)
A(".p2align 6")
L("L_loop")
if DEBUG and int(opts.get("lstamp", 0)):
    I(f"""
    {'s_memtime' if DEBUG == 2 else 's_memrealtime'} s[100:101]
    s_sub_u32 s99, 40, s{sK}
    s_mov_b32 m0, s99
    s_waitcnt lgkmcnt(0)
    v_writelane_b32 v{vST}, s100, m0
    """)
for l in res: I(l)
I("s_cbranch_scc1 L_loop")
L("L_loop_done")
stamp()
L("L_epi")
I(f"""
s_setprio 0
v_cmp_nge_f32 vcc, {f2u(2.0**100)}, v{vMX}
s_cmp_ge_u32 s{sW}, 7
s_cbranch_scc1 L_epi_wait
v_lshlrev_b32 v40, 4, v{vLane}
""")
vW2 = 80
for q in range(4):
    I(f"s_mov_b32 s{t0}, {W2I + 4096*q}")
    for i_ in range(4):
        I(f"buffer_load_dwordx4 {vr(vW2+16*q+4*i_,4)}, v40, {sr(sWS,4)}, s{t0} offen offset:{1024*i_} sc1")
I(f"""
s_lshl_b32 s{t0}, s{sW}, 4
v_and_b32 v42, 15, v{vLane}
v_add_u32 v43, s{t0}, v42
v_min_u32 v43, {ZROW}, v43
v_lshlrev_b32 v44, 2, v43
v_bfe_u32 v45, v{vLane}, 4, 1
v_lshrrev_b32 v46, 5, v{vLane}
ds_read_b32 v44, v44 offset:{CARRY}
v_lshrrev_b32 v47, 4, v{vLane}
v_lshl_add_u32 v144, v47, 2, s{t0}
v_lshlrev_b32 v145, 2, v144
ds_read_b128 v[148:151], v145 offset:{CNT}
v_lshlrev_b32 v146, 8, v45
v_lshl_add_u32 v146, v46, 7, v146
v_add_u32 v146, {SB}, v146
v_mul_u32_u24 v43, {SROW}, v43
v_add_u32 v43, v43, v146
v_lshlrev_b32 v144, 7, v144
v_lshl_add_u32 v144, v42, 3, v144
v_and_b32 v155, 0xffff0000, v{vB2+1}
v_lshlrev_b32 v154, 16, v{vB2+1}
v_and_b32 v153, 0xffff0000, v{vB2}
v_lshlrev_b32 v152, 16, v{vB2}
s_mov_b32 s{t0}, {f2u(-LN2)}
s_mov_b32 s{t1}, {f2u(-LOG2E)}
s_waitcnt lgkmcnt(0)
v_add_u32 v44, v44, v146
""")
vO = 12
for r in range(4):
    I(f"v_cvt_f32_u32 v{148+r}, v{148+r}")
    I(f"v_mul_f32 v{152+r}, s{t1}, v{152+r}")
for c in range(4):
    for r in range(4):
        I(f"v_mul_f32 v{vO+4*c+r}, v{148+r}, v{152+c}")
I(f"""
L_epi_wait:
s_waitcnt vmcnt(0) lgkmcnt(0)
s_barrier
s_cmp_ge_u32 s{sW}, 7
s_cbranch_scc1 L_epi_end
""")
stamp()
cb = [148, 156, 32, 148]
ep = []
def elds(t, tag=None): ep.append(("lds", t, tag))
for ks in range(4):
    for i_ in range(2):
        elds(f"ds_read_b128 {vr(48+8*ks+4*i_,4)}, v43 offset:{32*ks+16*i_}")
    if ks < 3:
        for i_ in range(2):
            elds(f"ds_read_b128 {vr(cb[ks]+4*i_,4)}, v44 offset:{32*ks+16*i_}", f"s{ks}" if i_ else None)
for ks in range(4):
    ep.append(("need", f"s{ks}"))
    for i_ in range(4):
        r = 48 + 8*ks + 2*i_
        ep.append(f"v_pk_add_f32 {P(r)}, {P(r)}, {P(cb[ks]+2*i_)}")
    if ks == 0:
        for i_ in range(2):
            elds(f"ds_read_b128 {vr(cb[3]+4*i_,4)}, v44 offset:{96+16*i_}", "s3" if i_ else None)
    for i_ in range(4):
        r = 48 + 8*ks + 2*i_
        ep.append(f"v_cvt_pk_bf16_f32 v{48+8*ks+i_}, v{r}, v{r+1}")
    ep.append("s_nop 1")
    for c in range(4):
        ep.append(f"v_mfma_f32_16x16x32_bf16 {vr(vO+4*c,4)}, {vr(48+8*ks,4)}, {vr(vW2+16*c+4*ks,4)}, {vr(vO+4*c,4)}")
for pos, x in enumerate(ep):
    if isinstance(x, tuple) and x[0] == "need":
        n = 0; p = pos - 1
        while not (isinstance(ep[p], tuple) and ep[p][0] == "lds" and ep[p][2] == x[1]):
            if isinstance(ep[p], tuple) and ep[p][0] == "lds": n += 1
            p -= 1
        I(f"s_waitcnt lgkmcnt({min(n,15)})")
    elif isinstance(x, tuple): I(x[1])
    else: I(x)
I(f"s_mov_b32 s{t1}, s{t0}")
I("s_nop 6")
for i_ in range(8):
    I(f"v_pk_mul_f32 {P(vO+2*i_)}, {P(vO+2*i_)}, {sr(t0,2)}")
for r in range(4):
    I(f"v_cvt_pk_bf16_f32 v{64+2*r}, v{vO+r}, v{vO+4+r}")
    I(f"v_cvt_pk_bf16_f32 v{65+2*r}, v{vO+8+r}, v{vO+12+r}")
    I(f"buffer_store_dwordx2 {P(64+2*r)}, v144, {sr(sOUT,4)}, 0 offen offset:{128*r}")
I(f"""
v_add_f32 v72, v{vO}, v{vO+1}
v_add_f32 v73, v{vO+2}, v{vO+3}
v_add_f32 v72, v72, v73
v_mov_b32 v73, 0x7f800000
v_cmp_nlt_f32 {sr(sE0,2)}, |v72|, v73
s_or_b64 vcc, vcc, {sr(sE0,2)}
L_epi_end:
s_cmp_lg_u32 s{sMode}, 0
s_cbranch_scc1 L_fin
""")
if FORCE_SLOW == 2: I("s_mov_b64 vcc, 1")
I(f"""
v_mov_b32 v72, 0
v_mov_b32 v73, 1
s_cmp_eq_u64 vcc, 0
s_cbranch_scc1 L_noflag
ds_write_b32 v72, v73 offset:{FLAG}
L_noflag:
s_waitcnt lgkmcnt(0)
s_barrier
ds_read_b32 v73, v72 offset:{FLAG}
s_waitcnt lgkmcnt(0)
v_readfirstlane_b32 s{sBad}, v73
s_cmp_lg_u32 s{sBad}, 0
s_cbranch_scc1 L_slow
L_fin:
""")
if DEBUG:
    stamp()
    I("s_waitcnt vmcnt(0)")
    stamp()
    I(f"""
    s_lshl_b32 s{t0}, s2, 4
    s_add_u32 s{t0}, s{t0}, s{sW}
    s_lshl_b32 s{t0}, s{t0}, 8
    s_add_u32 s{t0}, s{t0}, {STAMP}
    v_lshlrev_b32 v72, 2, v{vLane}
    buffer_store_dword v{vST}, v72, {sr(sWS,4)}, s{t0} offen
    s_waitcnt vmcnt(0)
    """)
    if int(opts.get("dd", 0)):
        I(f"""
        s_cmp_lg_u32 s{sW}, 0
        s_cbranch_scc1 L_exit
        s_load_dwordx2 s[96:97], s[0:1], 72
        v_readlane_b32 s98, v{vST}, 0
        v_readlane_b32 s99, v{vST}, 16
        s_not_b32 s98, s98
        s_nop 1
        v_writelane_b32 v{vST}, s98, 15
        v_writelane_b32 v{vST}, s99, 14
        s_waitcnt lgkmcnt(0)
        s_mov_b64 exec, 0xffff
        global_atomic_umax v72, v{vST}, s[96:97]
        s_waitcnt vmcnt(0)
        """)
L("L_exit")
I("s_endpgm")

if PRIO:
    I(f"""
    L_prio:
    s_cmp_eq_u32 s{sK}, {PTH[0]}
    s_cbranch_scc0 L_prio1
    s_setprio 2
    s_branch L_prio_ret
    L_prio1:
    s_cmp_eq_u32 s{sK}, {PTH[1]}
    s_cbranch_scc0 L_prio2
    s_setprio 1
    s_branch L_prio_ret
    L_prio2:
    s_setprio 0
    s_branch L_prio_ret
    """)
L("L_slow")
I(f"""
s_setprio 0
s_mov_b32 s{sMode}, 1
s_mov_b32 s{sK0}, 0
s_waitcnt vmcnt(0) lgkmcnt(0)
s_barrier
v_mov_b32 v{vt+6}, 1
v_mov_b32 v{vMX}, 0
""")
small_init(64)
s_zero(64)
load_desc()
for jj in range(3):
    I(f"buffer_load_dwordx2 {P(vDs+2*jj)}, v134, {sr(sWS,4)}, s{t0+jj} offen sc1")
I("s_waitcnt vmcnt(0)")
decode_desc()
for jj in range(3):
    I(f"v_mov_b32 v{144+jj}, v{vRA+jj}")
    I(f"v_mov_b32 v{147+jj}, v{vDs+2*jj}")
I(f"""
s_mov_b32 s{sGam}, s{t3}
v_max3_i32 v137, v147, v148, v149
v_max_i32 v137, 0, v137
v_mov_b32 v138, 0
s_waitcnt lgkmcnt(0)
s_barrier
ds_max_u32 v138, v137 offset:{MAXC}
s_waitcnt lgkmcnt(0)
s_barrier
ds_read_b32 v137, v138 offset:{MAXC}
s_waitcnt lgkmcnt(0)
v_readfirstlane_b32 s{sMaxc}, v137
L_round:
s_barrier
""")
tile_init(False, 64)
I(f"""
v_lshlrev_b32 v64, 2, v0
v_mov_b32 v65, 0
v_cmp_gt_u32 vcc, 128, v0
s_and_b64 exec, exec, vcc
ds_write_b32 v64, v65 offset:{CNTR}
s_mov_b64 exec, -1
""")
for jj in range(3):
    I(f"v_cmp_lt_i32 {sr(sM+2*jj,2)}, s{sK0}, v{147+jj}")
for jj in range(3):
    I(f"s_mov_b64 exec, {sr(sM+2*jj,2)}")
    I(f"buffer_load_dwordx3 {vr(48+4*jj,3)}, v{144+jj}, {sr(sWS,4)}, s{sGam} offen sc1")
I(f"""
s_mov_b64 exec, -1
s_waitcnt vmcnt(0) lgkmcnt(0)
s_barrier
""")
for jj in range(3):
    r = 48 + 4*jj
    I(f"""
    s_mov_b64 exec, {sr(sM+2*jj,2)}
    v_lshlrev_b32_sdwa v{60+jj}, 2, v{r+2} {SDWAB}
    v_and_b32 v{r+2}, 0xffffff00, v{r+2}
    ds_add_rtn_u32 v{r+3}, v{60+jj}, v{vt+6} offset:{CNTR}
    ds_add_u32 v{60+jj}, v{vt+6} offset:{CNT}
    """)
I(f"""
s_mov_b64 exec, -1
s_waitcnt lgkmcnt(0)
s_barrier
v_lshlrev_b32 v64, 3, v{vLane}
ds_read_b64 v[66:67], v64 offset:{CNTR}
s_waitcnt lgkmcnt(0)
v_add_u32 v66, 7, v66
v_add_u32 v67, 7, v67
v_lshrrev_b32 v66, 3, v66
v_lshrrev_b32 v67, 3, v67
v_add_u32 v68, v66, v67
v_mov_b32 v69, v68
""")
dpp_scan(69)
I(f"""
v_readlane_b32 s{sG}, v69, 63
v_sub_u32 v70, v69, v68
v_add_u32 v71, v70, v66
ds_write_b64 v64, v[70:71] offset:{GBASE}
s_add_u32 s{sNT}, s{sG}, 3
s_lshr_b32 s{sNT}, s{sNT}, 2
s_waitcnt lgkmcnt(0)
""")
for jj in range(3):
    r = 48 + 4*jj
    I(f"""
    s_mov_b64 exec, {sr(sM+2*jj,2)}
    ds_read_b32 v64, v{60+jj} offset:{GBASE}
    v_lshrrev_b32 v65, 3, v{r+3}
    v_and_b32 v66, 7, v{r+3}
    v_lshrrev_b32 v67, 2, v{60+jj}
    s_waitcnt lgkmcnt(0)
    v_add_u32 v64, v64, v65
    v_and_b32 v65, 3, v64
    v_lshrrev_b32 v64, 2, v64
    v_mul_u32_u24 v64, {TSZ}, v64
    v_add_u32 v64, {TILES}, v64
    v_mul_u32_u24 v68, {SROW}, v67
    v_mul_u32_u24 v69, {QROW}, v67
    v_lshl_or_b32 v68, v69, 16, v68
    v_lshl_add_u32 v69, v65, 2, v64
    ds_write_b32 v69, v68 offset:576
    v_and_b32 v68, 1, v65
    v_lshrrev_b32 v65, 1, v65
    v_lshl_add_u32 v64, v68, 2, v64
    v_lshl_add_u32 v64, v66, 3, v64
    v_mul_u32_u24 v69, 192, v65
    v_add_u32 v69, v69, v64
    ds_write2_b32 v69, v{r}, v{r+1} offset0:0 offset1:16
    ds_write_b32 v69, v{r+2} offset:128
    v_lshl_add_u32 v64, v65, 7, v64
    v_lshlrev_b32 v68, 4, v68
    v_mov_b32 v70, 0x3f80
    v_lshlrev_b32 v70, v68, v70
    ds_write_b32 v64, v70 offset:384
    s_waitcnt lgkmcnt(0)
    """)
I(f"""
s_mov_b64 exec, -1
s_barrier
s_mov_b32 s{sK}, s{sW}
L_stile:
s_cmp_ge_u32 s{sK}, s{sNT}
s_cbranch_scc1 L_stile_done
s_mul_i32 s{t0}, s{sK}, {TSZ}
s_add_u32 s{t0}, s{t0}, {TILES}
""")
ptr_consts(f"s{t0}")
for l in keys(0): I(l)
I(f"""
ds_read_b64 {P(vGS)}, v{vPGS}
ds_read_u16 v{vGQ}, v{vPGQ}
ds_read2_b32 {P(vA5)}, v{vPA5} offset0:0 offset1:16
s_waitcnt lgkmcnt(0)
""")
for l in ixadd() + gload(0) + gload(1) + SAUPD + [QUPD]: I(l)
I("s_waitcnt vmcnt(0)")
for u in range(2):
    I(f"ds_read_b64_tr_b16 {P(vB5[0])}, v{vQ} offset:{128*u}")
    I(f"ds_read_b64_tr_b16 {P(vB5[1])}, v{vQ} offset:{128*u+64}")
    for l in shifts(u): I(l)
    I("s_waitcnt lgkmcnt(0)")
    I("s_nop 1")
    I(mf8(vTL, vA5, vB5[0], vr(vTL,16)))
    I(mf8(vTH, vA5, vB5[1], vr(vLb[u],16)))
    I("s_nop 15")
    for hi, T in enumerate((vTL, vTH)):
        for i in range(16): I(f"v_exp_f32 v{vE+i}, v{T+i}")
        for i in range(16): I(f"v_add_f32 v{vE+i}, 1.0, v{vE+i}")
        for i in range(16): I(f"v_rcp_f32 v{vE+i}, v{vE+i}")
        I(f"v_pk_mul_f32 {P(vN)}, {P(T)}, {P(vE)}")
        for i in range(1, 8): I(f"v_pk_fma_f32 {P(vN)}, {P(T+2*i)}, {P(vE+2*i)}, {P(vN)}")
        I(f"ds_add_f32 v{vSA}, v{vN} offset:{128*(2*u+hi)}")
        I(f"ds_add_f32 v{vSA+1}, v{vN+1} offset:{128*(2*u+hi)}")
        I("s_waitcnt lgkmcnt(0)")
I(f"""
s_add_u32 s{sK}, s{sK}, {NW}
s_branch L_stile
L_stile_done:
s_add_u32 s{sK0}, s{sK0}, 8
s_add_u32 s{sGam}, s{sGam}, 96
s_cmp_lt_u32 s{sK0}, s{sMaxc}
s_cbranch_scc1 L_round
s_barrier
s_branch L_epi
""")

A('.section .rodata,"a"')
A(".p2align 6")
A(f".amdhsa_kernel {KNAME}")
A(f"  .amdhsa_next_free_vgpr {NVGPR}")
A("  .amdhsa_next_free_sgpr 102")
A(f"  .amdhsa_accum_offset {NVGPR}")
A("  .amdhsa_group_segment_fixed_size 0")
A("  .amdhsa_kernarg_size 88")
A("  .amdhsa_user_sgpr_count 2")
A("  .amdhsa_user_sgpr_kernarg_segment_ptr 1")
A("  .amdhsa_system_sgpr_workgroup_id_x 1")
A("  .amdhsa_float_denorm_mode_32 3")
A(".end_amdhsa_kernel")
open(sys.argv[1], "w").write("\n".join(out) + "\n")
print("LDS", LDS, "SB", SB, "QB", QB, "lines", len(out), file=sys.stderr)
```

```python
import sys, struct

opts = dict(a.split("=") for a in sys.argv[2:])
DEBUG = int(opts.get("debug", 0))
PRIO = int(opts.get("prio", 1))
FORCE_SLOW = int(opts.get("slow", 0))
NT = " " + opts.get("nt", "nt").replace("+", " ").replace("none", "")
WSOFF = int(opts.get("wsoff", "0"), 0)
PREF = int(opts.get("pref", 0))
STAG = int(opts.get("stag", 2))
STAG2 = int(opts.get("stag2", 0))
SLEEP = int(opts.get("sleep", 2))
PTH = [int(x) for x in opts.get("pth", "7,3,1").split(",")]

KNAME = "standalone__edge_featured_mpnn_mpnn__graph_kernel"
N = 25000; E = 800000
BN = 98; NW = 12; NTH = 768
QE = 3072; XE = 53; CH = QE + XE
GRAN = 0x10000
W2I = 0x98000
REC = 0x100000; RSTRIDE = 37632
PT = 0xB00000
STAMP = 0x1200000
WS_SIZE = 0x1300000
LOG2E = 1.4426950408889634
LN2 = 0.6931471805599453
def f2u(x): return struct.unpack("<I", struct.pack("<f", x))[0]

CNT = 0; CARRY = 512; PROG = 1024; FLAG = 1040; MAXC = 1044; LUT = 1088
GT = 1600; GSZ = 64; TMAX = 10; NGT = NW * TMAX + 2
CNT1 = GT
CAP = 56; NSZ = CAP * 12; EOFF = CAP * 4
AREA = (GT + NGT * GSZ + 127) // 128 * 128
SB = (AREA + 99 * NSZ + 255) // 256 * 256
SROW = 528; NSROW = BN + NW
QB = SB + NSROW * SROW; QROW = 264
GBASE = QB + 102 * QROW; CNTR = GBASE + 512
LDS = CNTR + 512
assert LDS <= 163840 and QB % 8 == 0 and GBASE % 8 == 0 and GT % 16 == 0
RST = AREA; XRAW = AREA + 37632; W1RAW = SB; PST = SB + 32768
assert XRAW + 16384 <= SB and PST + BN * 256 <= QB
ZROW = BN
PADKEY = 0x80000000
OVF = AREA + 98 * NSZ
SCANW, EXTRAW = 8, 9

out = []
def A(s=""): out.append(s)
def I(s):
    for l in s.strip("\n").split("\n"):
        l = l.strip()
        if not l: continue
        out.append(l if l.endswith(":") else "    " + l)
def L(name): out.append(name + ":")
def vr(a, n): return f"v[{a}:{a+n-1}]"
def sr(a, n): return f"s[{a}:{a+n-1}]"
def P(r): return f"v[{r}:{r+1}]"

sWS, sP, sOUT, sA, sBq, sC = 4, 8, 12, 16, 20, 24
sD = 28
pX, pE, pSRC, pDST, pW1, pB1, pW2, pB2, pOUT, pWS = 32, 34, 36, 38, 40, 42, 44, 46, 48, 50
sM = 32
sB, sW, sTw, sG, sT, sRem, sGam, sK, sGmax, sBad, sTag, sTag8, sReg, sMode, sK0, sMaxc = range(62, 78)
sONE = 78; sADV = 80; sSC = 82; sE0 = 84; sE1 = 86
t0, t1, t2, t3, t4, t5 = 88, 89, 90, 91, 92, 93
sNT = 94
vLane = 1
vPH, vPG, vPR, vAC = 2, 3, 4, 5
vL4 = 6; vSC = 8; vQC = 9; vQ = 10; vGQ = 11
vSA = 12; vAG = 14; vA5 = 16; vB5 = [18, 20]; vD = 22; vN = 24; vSO = 26; vMX = 28; vST = 29; vB2 = 30
vKG = 36
vW2S = 32
vt = 40
vLb = [48, 64]; vTL = 80; vTH = 96; vE = 112; vIX = 128
NVGPR = 168

nstamp = [0]
def stamp():
    if not DEBUG: return
    i = nstamp[0]; nstamp[0] += 1
    I(f"{'s_memtime' if DEBUG == 2 else 's_memrealtime'} s[100:101]")
    I("s_waitcnt lgkmcnt(0)")
    I(f"v_writelane_b32 v{vST}, s100, {i}")

def srd(d, p, nrec, stride=0, add=None):
    if add is None:
        I(f"s_mov_b32 s{d}, s{p}")
        I(f"s_and_b32 s{d+1}, s{p+1}, 0xffff")
    else:
        I(f"s_add_u32 s{d}, s{p}, {add}")
        I(f"s_addc_u32 s{d+1}, s{p+1}, 0")
        I(f"s_and_b32 s{d+1}, s{d+1}, 0xffff")
    I(f"s_mov_b32 s{d+2}, {nrec}")
    I(f"s_mov_b32 s{d+3}, 0x00020000")

def dpp_scan(v, vmax=None):
    steps = ["row_shr:1 row_mask:0xf bank_mask:0xf bound_ctrl:0", "row_shr:2 row_mask:0xf bank_mask:0xf bound_ctrl:0",
             "row_shr:4 row_mask:0xf bank_mask:0xf bound_ctrl:0", "row_shr:8 row_mask:0xf bank_mask:0xf bound_ctrl:0",
             "row_bcast:15 row_mask:0xa bank_mask:0xf", "row_bcast:31 row_mask:0xc bank_mask:0xf"]
    I("s_nop 1")
    for s in steps:
        I(f"v_add_u32_dpp v{v}, v{v}, v{v} {s}")
        if vmax is not None:
            I(f"v_max_u32_dpp v{vmax}, v{vmax}, v{vmax} {s}")
            I("s_nop 0")
        else:
            I("s_nop 1")
def lanemask(ls):
    m = 0
    for l in ls: m |= 1 << l
    return m
def setexec(m):
    I(f"s_mov_b32 exec_lo, {m & 0xffffffff}")
    I(f"s_mov_b32 exec_hi, {m >> 32}")
def mf16(D, a, b, c): return f"v_mfma_f32_32x32x16_bf16 {vr(D,16)}, {vr(a,4)}, {vr(b,4)}, {c}"
def mf8(D, a, b, c): return f"v_mfma_f32_32x32x8_bf16 {vr(D,16)}, {vr(a,2)}, {vr(b,2)}, {c}"
SDWA0 = "dst_sel:DWORD dst_unused:UNUSED_PAD src0_sel:WORD_0 src1_sel:DWORD"
SDWAB = "dst_sel:DWORD dst_unused:UNUSED_PAD src0_sel:DWORD src1_sel:BYTE_0"

def area_init(z):
    I(f"""
    s_mov_b32 s{t0}, 1561
    v_mul_u32_u24 v{z+5}, s{t0}, v0
    v_lshrrev_b32 v{z+5}, 16, v{z+5}
    v_mul_u32_u24 v{z+5}, 42, v{z+5}
    v_sub_u32 v{z+5}, v0, v{z+5}
    v_cmp_gt_u32 vcc, 14, v{z+5}
    v_mov_b32 v{z+6}, {PADKEY}
    v_lshlrev_b32 v{z+4}, 4, v0
    v_cndmask_b32 v{z}, 0, v{z+6}, vcc
    v_add_u32 v{z+4}, {AREA}, v{z+4}
    v_mov_b32 v{z+1}, v{z}
    v_mov_b32 v{z+2}, v{z}
    v_mov_b32 v{z+3}, v{z}
    v_cmp_gt_u32 vcc, 756, v0
    s_and_b64 exec, exec, vcc
    """)
    for t in range(6):
        if t == 5:
            I(f"v_cmp_gt_u32 vcc, {99*42 - 5*756}, v0")
            I("s_and_b64 exec, exec, vcc")
        I(f"ds_write_b128 v{z+4}, {vr(z,4)} offset:{t*756*16}")
    I("s_mov_b64 exec, -1")
    vals = [OVF + 6*32, OVF + EOFF + 6*64, LUT + 64, (ZROW*SROW) | ((98*QROW) << 16)]
    I(f"v_mov_b32 v{z+5}, {vals[0]}")
    for q in range(1, 4):
        m = lanemask([l for l in range(64) if l & 3 == q])
        setexec(m)
        I(f"v_mov_b32 v{z+5}, {vals[q]}")
    I(f"""
    s_mov_b64 exec, -1
    v_lshlrev_b32 v{z+4}, 4, v0
    v_cmp_gt_u32 vcc, {NGT*4}, v0
    s_waitcnt lgkmcnt(0)
    v_mov_b32 v{z}, v{z+5}
    v_mov_b32 v{z+1}, v{z+5}
    v_mov_b32 v{z+2}, v{z+5}
    v_mov_b32 v{z+3}, v{z+5}
    s_and_b64 exec, exec, vcc
    ds_write_b128 v{z+4}, {vr(z,4)} offset:{GT}
    s_mov_b64 exec, -1
    """)
def s_zero(z):
    nch = NSROW * SROW // 16
    for i in range(4): I(f"v_mov_b32 v{z+i}, 0")
    I(f"v_lshlrev_b32 v{z+4}, 4, v0")
    I(f"v_add_u32 v{z+4}, {SB}, v{z+4}")
    n = (nch + NTH - 1) // NTH
    for t in range(n):
        if (t + 1) * NTH > nch:
            I(f"v_cmp_gt_u32 vcc, {nch - t*NTH}, v0")
            I(f"s_and_b64 exec, exec, vcc")
        I(f"ds_write_b128 v{z+4}, {vr(z,4)} offset:{t*NTH*16}")
    I("s_mov_b64 exec, -1")
def small_init(z):
    I(f"""
    v_lshlrev_b32 v{z}, 2, v0
    v_mov_b32 v{z+1}, 0
    v_mov_b32 v{z+2}, {ZROW*SROW}
    v_lshrrev_b32 v{z+3}, 7, v0
    v_cmp_eq_u32 vcc, 1, v{z+3}
    s_nop 1
    v_cndmask_b32 v{z+1}, v{z+1}, v{z+2}, vcc
    v_cmp_gt_u32 vcc, 272, v0
    s_and_b64 exec, exec, vcc
    ds_write_b32 v{z}, v{z+1}
    s_mov_b64 exec, -1
    """)

hdr = open("standalone__edge_featured_mpnn_mpnn__graph.s.ref").read().split("\n")
for l in hdr:
    if "@launch" in l: continue
    if not l.startswith(";"): break
    A(l)
A(f"; @launch grid=(256,1,1) block=({NTH},1,1) lds={LDS}")
A('.amdgcn_target "amdgcn-amd-amdhsa--gfx950"')
A(".text")
A(f".globl {KNAME}")
A(".p2align 8")
A(f".type {KNAME},@function")
L(KNAME)
I(f"""
s_cmp_ge_u32 s2, 256
s_cbranch_scc1 L_exit
s_load_dwordx16 s[32:47], s[0:1], 0
s_load_dwordx2 {sr(pOUT,2)}, s[0:1], 64
s_load_dwordx2 {sr(pWS,2)}, s[0:1], 80
v_lshrrev_b32 v{vt}, 6, v0
v_and_b32 v{vLane}, 63, v0
v_readfirstlane_b32 s{sW}, v{vt}
s_mul_i32 s{t0}, s2, {QE*4}
v_lshl_add_u32 v{vt+1}, v0, 4, s{t0}
v_lshlrev_b32 v{vt+2}, 1, v{vt+1}
s_and_b32 s{sB}, s2, 7
s_lshl_b32 s{sB}, s{sB}, 5
s_lshr_b32 s{t1}, s2, 3
s_add_u32 s{sB}, s{sB}, s{t1}
v_lshlrev_b32 v75, 2, v0
v_mov_b32 v76, 0
ds_write_b32 v75, v76 offset:{CNT1}
v_lshrrev_b32 v68, 3, v{vLane}
v_lshrrev_b32 v69, 4, v{vLane}
v_and_b32 v70, 7, v{vLane}
v_xor_b32 v70, v70, v69
v_lshlrev_b32 v70, 4, v70
v_lshl_add_u32 v70, v68, 7, v70
s_and_b32 s{t0}, s{sW}, 1
s_lshl_b32 s{t0}, s{t0}, 6
v_xor_b32 v71, s{t0}, v70
v_and_b32 v72, 15, v{vLane}
v_lshlrev_b32 v73, 2, v69
v_xor_b32 v72, v72, v73
v_lshlrev_b32 v72, 4, v72
v_lshl_add_u32 v72, v69, 8, v72
v_lshlrev_b32 v74, 1, v{vLane}
v_and_b32 v75, 32, v{vLane}
v_lshl_add_u32 v74, v75, 4, v74
v_lshlrev_b32 v{vt+5}, 4, v{vLane}
v_lshlrev_b32 v{vt}, 4, v0
s_mul_i32 s{t1}, s{sB}, {BN*128}
s_lshl_b32 s{t2}, s{sW}, 10
s_mov_b32 s{sA+2}, {N*128}
s_mov_b32 s{sA+3}, 0x00020000
s_mov_b32 s{sBq+2}, {132*256}
s_mov_b32 s{sBq+3}, 0x00020000
s_mov_b32 s{sC+2}, 256
s_mov_b32 s{sC+3}, 0x00020000
s_mov_b32 s{sD+2}, {128*128}
s_mov_b32 s{sD+3}, 0x00020000
s_waitcnt lgkmcnt(0)
s_add_u32 s{pWS}, s{pWS}, {WSOFF}
s_addc_u32 s{pWS+1}, s{pWS+1}, 0
s_mov_b32 s{sA}, s{pX}
s_and_b32 s{sA+1}, s{pX+1}, 0xffff
s_mov_b32 s{sBq}, s{pW1}
s_and_b32 s{sBq+1}, s{pW1+1}, 0xffff
s_mov_b32 s{sC}, s{pB1}
s_and_b32 s{sC+1}, s{pB1+1}, 0xffff
s_mov_b32 s{sD}, s{pW2}
s_and_b32 s{sD+1}, s{pW2+1}, 0xffff
s_cmp_ge_u32 s{sW}, 8
s_cbranch_scc1 L_opt_hi
s_add_u32 s{t3}, s{t2}, {24*1024}
s_add_u32 m0, s{t3}, {W1RAW}
s_cmp_lg_u32 s{sW}, 0
buffer_load_dwordx4 v72, {sr(sBq,4)}, s{t3} offen lds
s_cbranch_scc1 L_opt_end
s_mov_b32 m0, {XRAW + 12*1024}
s_add_u32 s{t3}, s{t1}, {12*1024}
buffer_load_dwordx4 v70, {sr(sA,4)}, s{t3} offen{NT} lds
s_branch L_opt_end
L_opt_hi:
s_cmp_lg_u32 s{sW}, {EXTRAW}
s_cbranch_scc1 L_opt_a
s_mul_i32 s{t0}, s2, {XE}
s_add_u32 s{t0}, s{t0}, {256*QE}
v_add_lshl_u32 v{vt+3}, v{vLane}, s{t0}, 2
v_lshlrev_b32 v{vt+4}, 1, v{vt+3}
""")
XM = (1 << XE) - 1
setexec(XM)
I(f"""
global_load_dword v64, v{vt+3}, {sr(pDST,2)}{NT}
global_load_dword v65, v{vt+3}, {sr(pSRC,2)}{NT}
global_load_dwordx2 v[66:67], v{vt+4}, {sr(pE,2)}{NT}
s_mov_b64 exec, -1
s_branch L_opt_end
L_opt_a:
s_cmp_lg_u32 s{sW}, 10
s_cbranch_scc1 L_opt_b
s_mov_b32 s{t0}, {128*256}
buffer_load_dwordx4 v[12:15], v{vt+5}, {sr(sBq,4)}, s{t0} offen
s_branch L_opt_end
L_opt_b:
s_cmp_lg_u32 s{sW}, 11
s_cbranch_scc1 L_opt_end
s_cmp_ge_u32 s2, 16
s_cbranch_scc1 L_opt_end
s_and_b32 s{t0}, s2, 3
s_lshl_b32 s{t0}, s{t0}, 10
s_lshr_b32 s{t3}, s2, 2
s_lshl_b32 s{t3}, s{t3}, 1
s_add_u32 s{t0}, s{t0}, s{t3}
v_bfe_u32 v12, v{vLane}, 4, 1
v_lshlrev_b32 v12, 13, v12
v_lshrrev_b32 v13, 5, v{vLane}
v_lshl_add_u32 v12, v13, 12, v12
v_and_b32 v13, 15, v{vLane}
v_lshl_add_u32 v12, v13, 3, v12
""")
for i_ in range(8):
    I(f"buffer_load_ushort v{vW2S+i_}, v12, {sr(sD,4)}, s{t0} offen offset:{128*i_}")
I(f"""
L_opt_end:
global_load_dwordx4 v[48:51], v{vt+1}, {sr(pDST,2)}{NT}
s_add_u32 m0, s{t2}, {XRAW}
s_add_u32 s{t3}, s{t1}, s{t2}
buffer_load_dwordx4 v71, {sr(sA,4)}, s{t3} offen{NT} lds
s_add_u32 m0, s{t2}, {W1RAW}
s_add_u32 s{t3}, s{t2}, {12*1024}
buffer_load_dwordx4 v72, {sr(sBq,4)}, s{t2} offen lds
s_add_u32 m0, s{t3}, {W1RAW}
s_and_b32 s{t0}, s{sW}, 1
buffer_load_dwordx4 v72, {sr(sBq,4)}, s{t3} offen lds
s_lshl_b32 s{t0}, s{t0}, 7
buffer_load_ushort v160, v74, {sr(sC,4)}, s{t0} offen
buffer_load_ushort v162, v74, {sr(sC,4)}, s{t0} offen offset:64
""")
if DEBUG:
    I(f"v_mov_b32 v{vST}, 0")
stamp()
I(f"""
s_barrier
global_load_dwordx4 v[52:55], v{vt+1}, {sr(pSRC,2)}{NT}
global_load_dwordx4 v[56:59], v{vt+2}, {sr(pE,2)}{NT}
global_load_dwordx4 v[60:63], v{vt+2}, {sr(pE,2)} offset:16{NT}
v_and_b32 v75, 15, v{vLane}
v_lshlrev_b32 v75, 3, v75
global_load_dwordx2 {P(vB2)}, v75, {sr(pB2,2)}
s_load_dword s{sTag}, {sr(pWS,2)}, 0
""")
assert CNT1 + NTH * 4 <= AREA
small_init(76)
srd(sWS, pWS, WS_SIZE)
srd(sP, pWS, N*256, add=PT)
I(f"""
s_mul_i32 s{t0}, s{sB}, {BN}
s_sub_u32 s{t1}, {N}, s{t0}
s_min_u32 s{t1}, s{t1}, {BN}
s_lshl_b32 s{t2}, s{t0}, 7
s_add_u32 s{sOUT}, s{pOUT}, s{t2}
s_addc_u32 s{sOUT+1}, s{pOUT+1}, 0
s_and_b32 s{sOUT+1}, s{sOUT+1}, 0xffff
s_lshl_b32 s{sOUT+2}, s{t1}, 7
s_mov_b32 s{sOUT+3}, 0x00020000
s_mov_b32 s{sONE}, 1.0
s_mov_b32 s{sONE+1}, 1.0
s_mov_b32 s{sADV}, {GSZ}
s_mov_b32 s{sADV+1}, {GSZ}
s_mov_b32 s{sSC}, {f2u(-LOG2E)}
s_mov_b32 s{sSC+1}, {f2u(-LOG2E)}
s_mov_b32 s{sMode}, 0
s_mul_i32 s{sReg}, s{sW}, {TMAX*GSZ}
s_add_u32 s{sReg}, s{sReg}, {GT}
s_mov_b32 s{t4}, 42800
s_mov_b32 s{t5}, {(-BN) & 0xffffffff}
v_mov_b32 v{vt+6}, 1
v_mov_b32 v161, 0
v_mov_b32 v163, 0
v_mov_b32 v164, 0x3f80
v_mov_b32 v165, 0
""")
I(f"""
v_lshrrev_b32 v68, 5, v{vLane}
v_bfe_u32 v69, v{vLane}, 2, 2
v_lshl_add_u32 v70, v68, 5, v69
s_mov_b32 s{t0}, {W1RAW}
v_lshl_add_u32 v70, v70, 8, s{t0}
v_bfe_u32 v71, v{vLane}, 4, 1
v_lshl_add_u32 v70, v71, 5, v70
v_and_b32 v71, 3, v{vLane}
v_lshl_add_u32 v70, v71, 3, v70
s_and_b32 s{t0}, s{sW}, 1
s_lshl_b32 s{t0}, s{t0}, 1
v_xor_b32 v71, s{t0}, v69
v_lshl_add_u32 v166, v71, 6, v70
v_xor_b32 v71, 1, v71
v_lshl_add_u32 v167, v71, 6, v70
s_lshr_b32 s{t0}, s{sW}, 1
s_lshl_b32 s{t0}, s{t0}, 5
v_and_b32 v78, 31, v{vLane}
v_add_u32 v78, s{t0}, v78
v_bfe_u32 v71, v{vLane}, 1, 3
v_lshlrev_b32 v72, 2, v68
v_xor_b32 v71, v71, v72
v_lshlrev_b32 v71, 4, v71
v_lshl_add_u32 v79, v78, 7, v71
v_add_u32 v79, {XRAW}, v79
s_waitcnt vmcnt(9)
""")
stamp()
def bucket_rank(d, a, r):
    I(f"v_mul_u32_u24 v{a}, s{t4}, v{d}")
    I(f"v_lshrrev_b32 v{a}, 22, v{a}")
    I(f"v_mad_i32_i24 v{d}, v{a}, s{t5}, v{d}")
    I(f"v_lshlrev_b32 v{a}, 2, v{a}")
    I(f"ds_add_rtn_u32 v{r}, v{a}, v{vt+6} offset:{CNT1}")
for i in range(4): bucket_rank(48+i, 68+i, 73+i)
I(f"s_cmp_lg_u32 s{sW}, {EXTRAW}")
I("s_cbranch_scc1 L_noex1")
setexec(XM)
bucket_rank(64, 72, 77)
I("s_mov_b64 exec, -1")
L("L_noex1")
I(f"""
s_waitcnt vmcnt(4) lgkmcnt(0)
s_add_u32 s{sTag}, s{sTag}, 1
s_mul_i32 s{sTag8}, s{sTag}, 0x9e3779b1
s_and_b32 s{sTag8}, s{sTag8}, 0xff000000
s_barrier
""")
stamp()
I(f"""
s_cmp_lt_u32 s{sW}, 8
s_cbranch_scc1 L_ptask
s_cmp_lg_u32 s{sW}, {SCANW}
s_cbranch_scc1 L_noscan
ds_read_b128 v[80:83], v{vt+5} offset:{CNT1}
s_waitcnt lgkmcnt(0)
v_add_u32 v84, v80, v81
v_add_u32 v85, v84, v82
v_add_u32 v86, v85, v83
v_mov_b32 v87, v86
""")
dpp_scan(87)
I(f"""
v_sub_u32 v88, v87, v86
v_add_u32 v89, v88, v80
v_add_u32 v90, v88, v84
v_add_u32 v91, v88, v85
ds_write_b128 v{vt+5}, v[88:91] offset:{CNT1}
v_lshl_or_b32 v16, v80, 12, v88
v_lshl_or_b32 v18, v81, 12, v89
v_lshl_or_b32 v20, v82, 12, v90
v_lshl_or_b32 v22, v83, 12, v91
v_or_b32 v16, s{sTag8}, v16
v_or_b32 v18, s{sTag8}, v18
v_or_b32 v20, s{sTag8}, v20
v_or_b32 v22, s{sTag8}, v22
v_mov_b32 v17, s{sTag}
v_mov_b32 v19, s{sTag}
v_mov_b32 v21, s{sTag}
v_mov_b32 v23, s{sTag}
s_branch L_p_done
L_noscan:
""")
if DEBUG and int(opts.get("arr", 0)):
    I("s_waitcnt vmcnt(0)")
    I("s_memrealtime s[100:101]")
    I("s_waitcnt lgkmcnt(0)")
    I(f"v_writelane_b32 v{vST}, s100, 20")
I(f"""
s_cmp_lg_u32 s{sW}, 10
s_cbranch_scc1 L_p_done
""")
for i in range(4):
    I(f"v_lshlrev_b32 v{80+2*i}, 16, v{12+i}")
    I(f"v_and_b32 v{81+2*i}, 0xffff0000, v{12+i}")
for i in range(4):
    I(f"v_pk_mul_f32 {P(80+2*i)}, {P(80+2*i)}, {sr(sSC,2)}")
for i in range(4):
    I(f"v_cvt_pk_bf16_f32 v{12+i}, v{80+2*i}, v{81+2*i}")
I(f"""
v_lshrrev_b32 v88, 4, v{vLane}
v_mul_u32_u24 v88, {QROW}, v88
v_and_b32 v89, 15, v{vLane}
v_lshl_add_u32 v88, v89, 4, v88
v_add_u32 v88, {QB + 98*QROW}, v88
ds_write2_b64 v88, v[12:13], v[14:15] offset0:0 offset1:1
v_mov_b32 v90, 0
v_mov_b32 v91, 0
""")
for g_ in range(4):
    setexec(lanemask(range(16*g_, 16*g_+8)))
    I(f"v_mov_b32 v{90 + (g_ >> 1)}, {0x3f800000 if g_ & 1 else 0x3f80}")
I(f"""
s_mov_b64 exec, -1
v_lshlrev_b32 v88, 3, v{vLane}
ds_write_b64 v88, v[90:91] offset:{LUT}
s_branch L_p_done
L_ptask:
v_xor_b32 v{vt+1}, 16, v79
v_xor_b32 v{vt+2}, 32, v79
v_xor_b32 v{vt+3}, 48, v79
""")
xa = [79, vt+1, vt+2, vt+3]
for ks in range(4):
    I(f"ds_read_b128 {vr(112+4*ks,4)}, v{xa[ks]}")
    for jl in range(2):
        for hf in range(2):
            I(f"ds_read_b64_tr_b16 {P(80+16*jl+4*ks+2*hf)}, v{166+jl} offset:{(8*ks+4*hf)*256}")
I(f"""
s_mov_b32 s{t0}, 0x07060302
v_cmp_gt_u32 vcc, {BN}, v78
s_mov_b64 {sr(sE0,2)}, vcc
v_lshrrev_b32 v{vt+1}, 5, v{vLane}
s_and_b32 s{t1}, s{sW}, 1
s_lshl_b32 s{t1}, s{t1}, 3
v_add_u32 v{vt+1}, s{t1}, v{vt+1}
v_and_b32 v{vt+2}, 15, v78
v_xor_b32 v{vt+1}, v{vt+1}, v{vt+2}
v_lshlrev_b32 v{vt+1}, 4, v{vt+1}
v_lshl_add_u32 v{vt+1}, v78, 8, v{vt+1}
v_add_u32 v{vt+1}, {PST}, v{vt+1}
v_xor_b32 v{vt+2}, 32, v{vt+1}
v_xor_b32 v{vt+3}, 64, v{vt+1}
v_xor_b32 v{vt+4}, 0x60, v{vt+1}
""")
for ks in range(4):
    I(f"s_waitcnt lgkmcnt({15 - 5*ks})")
    I(mf16(128, 80+4*ks, 112+4*ks, "0" if ks == 0 else vr(128,16)))
    I(mf16(144, 96+4*ks, 112+4*ks, "0" if ks == 0 else vr(144,16)))
I("s_nop 11")
for i in range(16):
    I(f"v_pk_mul_f32 {P(128+2*i)}, {P(128+2*i)}, {sr(sSC,2)}")
I(f"s_mov_b64 exec, {sr(sE0,2)}")
for rg in range(4):
    for i in range(4*rg, 4*rg+4):
        I(f"v_add_u32 v{128+i}, 0x4000, v{128+i}")
    for i in range(4*rg, 4*rg+4):
        I(f"v_perm_b32 v{128+i}, v{144+i}, v{128+i}, s{t0}")
    I(f"ds_write_b128 v{vt+1+rg}, {vr(128+4*rg,4)}")
I(f"""
s_mov_b64 exec, -1
L_p_done:
s_waitcnt lgkmcnt(0)
""")
if int(opts.get("dly_pq", 0)): I(f"s_sleep {opts['dly_pq']}")
I("s_barrier")
stamp()
I(f"""
v_lshrrev_b32 v80, 4, v0
v_xor_b32 v81, v80, v0
v_and_b32 v81, 15, v81
v_lshlrev_b32 v81, 4, v81
v_lshl_add_u32 v81, v80, 8, v81
v_add_u32 v81, {PST}, v81
ds_read_b128 v[84:87], v81
ds_read_b128 v[88:91], v81 offset:{48*256}
ds_read_b128 v[92:95], v81 offset:{96*256}
""")
for i in range(5):
    I(f"ds_read_b32 v{68+i}, v{68+i} offset:{CNT1}")
I(f"""
s_mul_i32 s{t0}, s{sB}, {BN*256}
s_add_u32 s{t0}, s{t0}, {PT}
s_add_u32 s{sA}, s{pWS}, s{t0}
s_addc_u32 s{sA+1}, s{pWS+1}, 0
s_and_b32 s{sA+1}, s{sA+1}, 0xffff
s_mov_b32 s{sA+2}, {BN*256}
s_mov_b32 s{sA+3}, 0x00020000
s_mul_i32 s{t0}, s2, {RSTRIDE}
s_add_u32 s{t0}, s{t0}, {REC}
s_add_u32 s{sBq}, s{pWS}, s{t0}
s_addc_u32 s{sBq+1}, s{pWS+1}, 0
s_and_b32 s{sBq+1}, s{sBq+1}, 0xffff
s_mov_b32 s{sBq+2}, {(CH*12+15)//16*16}
s_mov_b32 s{sBq+3}, 0x00020000
s_mov_b32 s{t1}, {NTH*16}
s_mov_b32 s{t2}, {2*NTH*16}
s_mov_b32 s{t3}, {3*NTH*16}
s_waitcnt lgkmcnt(7)
buffer_store_dwordx4 v[84:87], v{vt}, {sr(sA,4)}, 0 offen sc1
s_waitcnt lgkmcnt(6)
buffer_store_dwordx4 v[88:91], v{vt}, {sr(sA,4)}, s{t1} offen sc1
s_waitcnt lgkmcnt(5)
buffer_store_dwordx4 v[92:95], v{vt}, {sr(sA,4)}, s{t2} offen sc1
s_waitcnt lgkmcnt(0)
""")
for i in range(5):
    I(f"v_add_u32 v{68+i}, v{68+i}, v{73+i}")
    I(f"v_mul_u32_u24 v{68+i}, 12, v{68+i}")
    I(f"v_add_u32 v{68+i}, {RST}, v{68+i}")
I("s_waitcnt vmcnt(4)")
stamp()
for i in range(4):
    I(f"v_lshl_or_b32 v{48+i}, v{52+i}, 8, v{48+i}")
    I(f"ds_write2_b32 v{68+i}, v{56+2*i}, v{57+2*i} offset0:0 offset1:1")
    I(f"ds_write_b32 v{68+i}, v{48+i} offset:8")
I(f"s_cmp_lg_u32 s{sW}, {EXTRAW}")
I("s_cbranch_scc1 L_noex2")
setexec(XM)
I(f"""
v_lshl_or_b32 v64, v65, 8, v64
ds_write2_b32 v72, v66, v67 offset0:0 offset1:1
ds_write_b32 v72, v64 offset:8
s_mov_b64 exec, -1
L_noex2:
s_waitcnt lgkmcnt(0)
s_barrier
""")
stamp()
for i in range(4):
    I(f"ds_read_b128 {vr(48+4*i,4)}, v{vt} offset:{RST + i*NTH*16}")
for i in range(3):
    I(f"s_waitcnt lgkmcnt({3-i})")
    I(f"buffer_store_dwordx4 {vr(48+4*i,4)}, v{vt}, {sr(sBq,4)}, {['0', f's{t1}', f's{t2}'][i]} offen sc1")
I(f"""
s_waitcnt lgkmcnt(0)
s_cmp_lg_u32 s{sW}, 0
s_cbranch_scc1 L_no4
buffer_store_dwordx4 v[60:63], v{vt}, {sr(sBq,4)}, s{t3} offen sc1
L_no4:
""")
I(f"""
s_cmp_ge_u32 s{sW}, 8
s_cbranch_scc1 L_noq
""")
for ks in range(4):
    for jl in range(2):
        for hf in range(2):
            I(f"ds_read_b64_tr_b16 {P(80+16*jl+4*ks+2*hf)}, v{166+jl} offset:{16384 + (8*ks+4*hf)*256}")
I(mf8(128, 160, 164, "0"))
I(mf8(144, 162, 164, "0"))
I(f"""
v_lshrrev_b32 v{vt+1}, 5, v{vLane}
s_and_b32 s{t1}, s{sW}, 1
s_lshl_b32 s{t1}, s{t1}, 7
s_add_u32 s{t1}, s{t1}, {QB}
v_lshl_add_u32 v{vt+1}, v{vt+1}, 3, s{t1}
v_mul_u32_u24 v{vt+2}, {QROW}, v78
v_add_u32 v{vt+1}, v{vt+1}, v{vt+2}
""")
for ks in range(4):
    I(f"s_waitcnt lgkmcnt({12 - 4*ks})")
    I(mf16(128, 80+4*ks, 112+4*ks, vr(128,16)))
    I(mf16(144, 96+4*ks, 112+4*ks, vr(144,16)))
I("s_nop 11")
for i in range(16):
    I(f"v_pk_mul_f32 {P(128+2*i)}, {P(128+2*i)}, {sr(sSC,2)}")
for i in range(16):
    I(f"v_cvt_pk_bf16_f32 v{128+i}, v{128+2*i}, v{129+2*i}")
I(f"s_mov_b64 exec, {sr(sE0,2)}")
for jl in range(2):
    for rg in range(4):
        I(f"ds_write_b64 v{vt+1}, {P(128+8*jl+2*rg)} offset:{64*jl + 16*rg}")
I(f"""
s_mov_b64 exec, -1
L_noq:
s_cmp_lg_u32 s{sW}, 11
s_cbranch_scc1 L_now2
s_cmp_ge_u32 s2, 16
s_cbranch_scc1 L_now2
s_lshl_b32 s{t0}, s2, 10
s_add_u32 s{t0}, s{t0}, {W2I}
v_lshl_or_b32 v{vW2S}, v{vW2S+1}, 16, v{vW2S}
v_lshl_or_b32 v{vW2S+1}, v{vW2S+3}, 16, v{vW2S+2}
v_lshl_or_b32 v{vW2S+2}, v{vW2S+5}, 16, v{vW2S+4}
v_lshl_or_b32 v{vW2S+3}, v{vW2S+7}, 16, v{vW2S+6}
buffer_store_dwordx4 {vr(vW2S,4)}, v{vt+5}, {sr(sWS,4)}, s{t0} offen sc1
L_now2:
""")
I(f"""
v_and_b32 v72, 31, v{vLane}
v_lshlrev_b32 v{vL4}, 2, v72
v_mov_b32 v{vL4+1}, v{vL4}
v_add_u32 v{vSC}, {SB}, v{vL4}
v_bfe_u32 v73, v{vLane}, 4, 1
v_lshlrev_b32 v73, 5, v73
v_and_b32 v74, 3, v{vLane}
v_lshl_add_u32 v73, v74, 3, v73
v_add_u32 v{vQC}, {QB}, v73
v_bfe_u32 v75, v{vLane}, 2, 2
v_add_u32 v76, 98, v75
v_mul_u32_u24 v76, {QROW}, v76
v_add_u32 v{vQ}, v76, v{vQC}
""")
I(f"""
v_bfe_u32 v72, v{vLane}, 3, 2
v_bfe_u32 v73, v{vLane}, 1, 1
v_lshl_add_u32 v72, v72, 1, v73
v_lshlrev_b32 v{vAC}, 3, v72
""")
def ptr_consts(base):
    I(f"""
    v_lshrrev_b32 v72, 5, v{vLane}
    v_lshl_add_u32 v{vPH}, v72, 3, {base}
    v_bfe_u32 v73, v{vLane}, 2, 1
    v_and_b32 v74, 1, v{vLane}
    v_lshl_add_u32 v73, v73, 1, v74
    v_lshl_add_u32 v73, v72, 2, v73
    v_lshl_add_u32 v73, v73, 2, {base}
    v_add_u32 v{vPG}, 16, v73
    v_bfe_u32 v75, v{vLane}, 2, 2
    v_lshl_add_u32 v74, v75, 2, {base}
    v_add_u32 v{vPR}, 50, v74
    """)
ptr_consts(f"s{sReg}")
I("""
s_waitcnt vmcnt(0) lgkmcnt(0)
s_barrier
""")
stamp()
I(f"""
s_cmp_lg_u32 s{sW}, {SCANW}
s_cbranch_scc1 L_nopub
v_lshlrev_b32 v72, 5, v{vLane}
s_lshl_b32 s{t0}, s2, 11
s_add_u32 s{t0}, s{t0}, {GRAN}
buffer_store_dwordx4 v[16:19], v72, {sr(sWS,4)}, s{t0} offen sc0 sc1
buffer_store_dwordx4 v[20:23], v72, {sr(sWS,4)}, s{t0} offen offset:16 sc0 sc1
L_nopub:
""")
area_init(64)
s_zero(64)
I("""
s_waitcnt lgkmcnt(0)
s_barrier
""")
vDs = 124
vRA = 130
def load_desc():
    I(f"""
    v_lshrrev_b32 v133, 3, v{vLane}
    v_lshlrev_b32 v134, 11, v133
    s_lshl_b32 s{t0}, s{sW}, 14
    s_lshl_b32 s{t1}, s{sB}, 3
    s_add_u32 s{t0}, s{t0}, s{t1}
    s_add_u32 s{t0}, s{t0}, {GRAN}
    s_add_u32 s{t1}, s{t0}, {12*16384}
    s_add_u32 s{t2}, s{t0}, {24*16384}
    s_cmp_ge_u32 s{sW}, 8
    s_cselect_b32 s{t2}, s{t0}, s{t2}
    """)
def decode_desc():
    I(f"""
    v_and_b32 v135, 7, v{vLane}
    v_mul_u32_u24 v136, 12, v135
    s_mov_b32 s{t0}, {RSTRIDE}
    v_mad_u32_u24 v136, v133, s{t0}, v136
    s_mul_i32 s{t3}, s{sW}, {8*RSTRIDE}
    s_add_u32 s{t3}, s{t3}, {REC}
    s_cmp_ge_u32 s{sW}, 8
    s_cselect_b32 s{t0}, 0, -1
    v_and_b32 v{vDs+4}, s{t0}, v{vDs+4}
    """)
    for jj in range(3):
        I(f"v_and_b32 v{vRA+jj}, 0xfff, v{vDs+2*jj}")
        I(f"v_mad_u32_u24 v{vRA+jj}, v{vRA+jj}, 12, v136")
        if jj: I(f"v_add_u32 v{vRA+jj}, {jj*96*RSTRIDE}, v{vRA+jj}")
        I(f"v_bfe_u32 v{vDs+2*jj}, v{vDs+2*jj}, 12, 12")
        I(f"v_sub_u32 v{vDs+2*jj}, v{vDs+2*jj}, v135")
load_desc()
I(f"s_mov_b32 s{sK}, 0")
for jj in range(3):
    I(f"s_mov_b64 {sr(sM+2*jj,2)}, -1")
I("s_branch L_poll1")
L("L_poll")
if SLEEP: I(f"s_sleep {SLEEP}")
L("L_poll1")
for jj in range(3):
    I(f"s_mov_b64 exec, {sr(sM+2*jj,2)}")
    I(f"s_cbranch_execz L_pk{jj}")
    I(f"buffer_load_dwordx2 {P(vDs+2*jj)}, v134, {sr(sWS,4)}, s{t0+jj} offen sc1")
    L(f"L_pk{jj}")
I(f"""
s_mov_b64 exec, -1
s_add_u32 s{sK}, s{sK}, 1
s_cmp_gt_u32 s{sK}, 0x40000
s_cbranch_scc1 L_exit
s_waitcnt vmcnt(0)
""")
for jj in range(3):
    I(f"""
    v_xor_b32 v135, s{sTag8}, v{vDs+2*jj}
    v_xor_b32 v136, s{sTag}, v{vDs+2*jj+1}
    v_lshrrev_b32 v135, 24, v135
    v_or_b32 v135, v135, v136
    v_cmp_ne_u32 {sr(sM+2*jj,2)}, 0, v135
    """)
I(f"""
s_or_b64 {sr(sE0,2)}, {sr(sM,2)}, {sr(sM+2,2)}
s_or_b64 {sr(sE0,2)}, {sr(sE0,2)}, {sr(sM+4,2)}
s_cbranch_scc1 L_poll
""")
stamp()
decode_desc()
NR = 5
order = [(jj, rd) for rd in range(NR) for jj in range(3)]
slotreg = {s: 48 + 4*n_ for n_, s in enumerate(order)}
slotmask = {s: sM + 2*n_ for n_, s in enumerate(order)}
vTA = {s: 108 + n_ for n_, s in enumerate(order)}
for (jj, rd) in order:
    I(f"v_cmp_lt_i32 {sr(slotmask[(jj,rd)],2)}, {8*rd}, v{vDs+2*jj}")
I(f"""
v_max3_i32 v137, v{vDs}, v{vDs+2}, v{vDs+4}
v_cmp_lt_i32 vcc, {8*NR}, v137
s_or_b64 {sr(sE1,2)}, {sr(slotmask[(0,3)],2)}, {sr(slotmask[(1,3)],2)}
s_or_b64 {sr(sE1,2)}, {sr(sE1,2)}, {sr(slotmask[(2,3)],2)}
""")
lab = [0]
def slots(body, always_mask=True):
    lab[0] += 1; grp = lab[0]
    for s in order:
        jj, rd = s
        if s == (0, 3):
            I(f"s_cmp_eq_u64 {sr(sE1,2)}, 0")
            I(f"s_cbranch_scc1 L_sg{grp}")
        skip = rd >= 2 or jj == 2
        if skip or always_mask:
            I(f"s_mov_b64 exec, {sr(slotmask[s],2)}")
        else:
            I("s_mov_b64 exec, -1") if False else None
        if skip:
            lab[0] += 1; sk = lab[0]
            I(f"s_cbranch_execz L_sk{sk}")
        body(s)
        if skip: L(f"L_sk{sk}")
    L(f"L_sg{grp}")
    I("s_mov_b64 exec, -1")
slots(lambda s: I(f"buffer_load_dwordx3 {vr(slotreg[s],3)}, v{vRA+s[0]}, {sr(sWS,4)}, s{t3} offen offset:{96*s[1]} sc1"))
if PREF:
    I(f"""
    s_lshr_b32 s{t0}, s2, 3
    s_mul_i32 s{t0}, s{t0}, {PREF}
    v_add_u32 v136, s{t0}, v135
    v_lshlrev_b32 v136, 7, v136
    s_mov_b32 s{t0}, {32*BN*256}
    v_mad_u32_u24 v136, v133, s{t0}, v136
    s_mul_i32 s{t0}, s{sW}, {BN*256}
    s_add_u32 s{t1}, s{t0}, {12*BN*256}
    s_add_u32 s{t2}, s{t0}, {24*BN*256}
    s_cmp_ge_u32 s{sW}, 8
    s_cselect_b32 s{t2}, 0x7f000000, s{t2}
    """)
    setexec(lanemask([l for l in range(64) if (l & 7) < PREF]))
    for jj in range(3):
        I(f"buffer_load_dword v{vW2S+jj}, v136, {sr(sP,4)}, s{t0+jj} offen sc1")
    I("s_mov_b64 exec, -1")
I(f"""
s_cbranch_vccz L_nobig
v_mov_b32 v137, 0
ds_write_b32 v137, v{vt+6} offset:{FLAG}
L_nobig:
v_mov_b32 v138, 0
s_movk_i32 s{t0}, {NSZ//4}
v_mov_b32 v139, {AREA}
s_waitcnt vmcnt({3 if PREF else 0})
""")
stamp()
def rank_body(s):
    r = slotreg[s]
    I(f"v_lshlrev_b32_sdwa v{vTA[s]}, 2, v{r+2} {SDWAB}")
    I(f"v_and_b32 v{r+2}, 0xffffff00, v{r+2}")
    I(f"ds_add_rtn_u32 v{r+3}, v{vTA[s]}, v{vt+6} offset:{CNT}")
    I(f"v_mad_u32_u24 v{vTA[s]}, v{vTA[s]}, s{t0}, v139")
slots(rank_body)
I("s_waitcnt lgkmcnt(0)")
def scat_body(s):
    r = slotreg[s]
    lab[0] += 1; fx = lab[0]
    fixups.append((fx, s))
    I(f"v_cmp_le_u32 vcc, {CAP}, v{r+3}")
    I(f"s_cbranch_vccnz L_fx{fx}")
    L(f"L_fr{fx}")
    I(f"v_lshl_add_u32 v140, v{r+3}, 2, v{vTA[s]}")
    I(f"v_lshl_add_u32 v{vTA[s]}, v{r+3}, 3, v{vTA[s]}")
    I(f"ds_write_b32 v140, v{r+2}")
    I(f"ds_write_b64 v{vTA[s]}, {P(r)} offset:{EOFF}")
fixups = []
slots(scat_body)
I("""
s_waitcnt lgkmcnt(0)
s_barrier
""")
stamp()
I(f"""
s_or_b32 s{t0}, s2, s{sW}
s_cmp_lg_u32 s{t0}, 0
s_cbranch_scc1 L_nogen
v_mov_b32 v137, 0
v_mov_b32 v138, s{sTag}
s_mov_b64 exec, 1
buffer_store_dword v138, v137, {sr(sWS,4)}, 0 offen sc0 sc1
s_mov_b64 exec, -1
L_nogen:
""")
I(f"""
v_lshlrev_b32 v136, 3, v{vLane}
v_mov_b32 v151, 0
ds_read_b64 v[138:139], v136 offset:{CNT}
ds_read_b32 v137, v151 offset:{FLAG}
""")
I(f"""
s_waitcnt lgkmcnt(0)
v_add_u32 v140, 7, v138
v_add_u32 v141, 7, v139
v_lshrrev_b32 v140, 3, v140
v_lshrrev_b32 v141, 3, v141
v_add_u32 v142, v140, v141
v_max_u32 v143, v140, v141
v_mov_b32 v144, v142
v_readfirstlane_b32 s{sBad}, v137
v_cmp_lt_u32 vcc, {CAP}, v138
v_cmp_lt_u32 {sr(sE0,2)}, {CAP}, v139
""")
dpp_scan(144, 143)
I(f"""
s_bcnt1_i32_b64 s{t1}, vcc
s_bcnt1_i32_b64 s{t2}, {sr(sE0,2)}
s_add_u32 s{t1}, s{t1}, s{t2}
s_cmp_gt_u32 s{t1}, 1
s_cselect_b32 s{sBad}, 1, s{sBad}
""")
I(f"""
s_nop 0
v_readlane_b32 s{sG}, v144, 63
v_readlane_b32 s{sGmax}, v143, 63
v_sub_u32 v144, v144, v142
v_add_u32 v145, v144, v140
s_add_u32 s{t0}, s{sG}, 3
s_lshr_b32 s{t0}, s{t0}, 2
s_cmp_gt_u32 s{t0}, {NW*TMAX}
s_cselect_b32 s{sBad}, 1, s{sBad}
s_cmp_gt_u32 s{sGmax}, {TMAX}
s_cselect_b32 s{sBad}, 1, s{sBad}
""")
if FORCE_SLOW == 1: I(f"s_mov_b32 s{sBad}, 1")
I(f"""
s_cmp_lg_u32 s{sBad}, 0
s_cbranch_scc1 L_slow
s_mul_i32 s{sT}, s{t0}, 171
s_lshr_b32 s{sT}, s{sT}, 11
s_mul_i32 s{t1}, s{sT}, {NW}
s_sub_u32 s{sRem}, s{t0}, s{t1}
s_cmp_gt_u32 s{sGmax}, s{sT}
s_cselect_b32 s{sT}, s{sGmax}, s{sT}
s_cselect_b32 s{sRem}, 0, s{sRem}
s_max_u32 s{sT}, s{sT}, 1
s_add_u32 s{t1}, s{sT}, 1
s_lshl_b32 s{t2}, s{sRem}, 2
s_mul_i32 s{sGam}, s{t2}, s{t1}
v_cvt_f32_u32 v146, s{sT}
v_cvt_f32_u32 v147, s{t1}
v_rcp_f32 v146, v146
v_rcp_f32 v147, v147
v_mov_b32 v148, s{sT}
v_mov_b32 v149, s{t1}
v_mov_b32 v150, s{t2}
s_cmp_lt_u32 s{sW}, s{sRem}
s_cselect_b32 s{sTw}, s{t1}, s{sT}
s_cselect_b32 s{t0}, 0, s{t2}
s_mul_i32 s{t1}, s{sTw}, s{sW}
s_lshl_b32 s{t1}, s{t1}, 2
s_add_u32 s{t1}, s{t1}, s{t0}
s_sub_i32 s{t1}, s{sG}, s{t1}
s_max_i32 s{t1}, s{t1}, 0
s_min_u32 s{sTw}, s{sTw}, s{t1}
v_lshlrev_b32 v153, 1, v{vLane}
s_mov_b32 s{sK}, s{sW}
s_cmp_lt_u32 s{sW}, 6
s_cbranch_scc1 L_build
s_sub_u32 s{sK}, s{sW}, 6
v_mov_b32 v138, v139
v_mov_b32 v140, v141
v_mov_b32 v144, v145
v_add_u32 v153, 1, v153
L_build:
v_cmp_lt_u32 vcc, s{sK}, v140
s_and_b64 exec, exec, vcc
s_cbranch_execz L_bskip
v_add_u32 v154, s{sK}, v144
v_cmp_gt_u32 vcc, s{sGam}, v154
v_mul_u32_u24 v165, {QROW}, v153
s_lshl_b32 s{t0}, s{sK}, 3
v_cndmask_b32 v156, v150, v151, vcc
v_cndmask_b32 v157, v148, v149, vcc
v_cndmask_b32 v158, v146, v147, vcc
v_sub_u32 v154, v154, v156
v_cvt_f32_u32 v159, v154
v_add_f32 v159, 0.5, v159
v_mul_f32 v159, v159, v158
v_cvt_u32_f32 v159, v159
v_subrev_u32 v155, s{t0}, v138
v_mul_u32_u24 v160, v159, v157
v_sub_u32 v160, v154, v160
v_and_b32 v161, 3, v159
v_lshrrev_b32 v162, 2, v159
v_mad_u32_u24 v163, v161, v157, v160
v_cmp_gt_u32 vcc, s{sK}, v163
v_mad_u32_u24 v164, v162, {TMAX}, v160
v_lshlrev_b32 v164, 6, v164
v_lshl_add_u32 v164, v161, 2, v164
v_add_u32 v164, {GT}, v164
v_add_u32 v162, {ZROW}, v162
v_cndmask_b32 v162, v153, v162, vcc
v_mul_u32_u24 v162, {SROW}, v162
v_lshl_or_b32 v165, v165, 16, v162
v_min_u32 v155, 8, v155
v_lshlrev_b32 v161, 4, v161
v_sub_u32 v161, v161, v155
s_movk_i32 s{t1}, {LUT + 64}
v_lshl_add_u32 v161, v161, 3, s{t1}
ds_write2_b32 v164, v161, v165 offset0:8 offset1:12
s_cmp_ge_u32 s{sK}, 7
s_cselect_b32 s{t1}, 0, {NSZ}
s_cselect_b32 s{t2}, {OVF - 7*32 - AREA}, 0
s_cselect_b32 s{t3}, 0, {EOFF}
s_add_u32 s{t2}, s{t2}, {AREA}
s_lshl_b32 s{t0}, s{sK}, 5
s_add_u32 s{t2}, s{t2}, s{t0}
s_add_u32 s{t3}, s{t3}, s{t0}
v_mul_u32_u24 v166, s{t1}, v153
v_add_u32 v166, s{t2}, v166
v_add_u32 v167, s{t3}, v166
ds_write2_b32 v164, v166, v167 offset0:0 offset1:4
v_lshlrev_b32 v167, 2, v153
s_and_b64 exec, exec, vcc
ds_write_b32 v167, v162 offset:{CARRY}
L_bskip:
s_mov_b64 exec, -1
s_add_u32 s{sK}, s{sK}, 6
s_cmp_lt_u32 s{sK}, s{sGmax}
s_cbranch_scc1 L_build
s_waitcnt lgkmcnt(0)
s_barrier
""")
stamp()

def chain(T):
    l = [f"v_pk_add_f32 {P(vD)}, {P(vE)}, {sr(sONE,2)}",
         f"v_pk_fma_f32 {P(vN)}, {P(T)}, {P(vE+2)}, {P(T)}",
         f"v_pk_fma_f32 {P(vN)}, {P(T+2)}, {P(vD)}, {P(vN)}",
         f"v_pk_fma_f32 {P(vD)}, {P(vD)}, {P(vE+2)}, {P(vD)}"]
    for i in range(2, 8):
        l += [f"v_pk_fma_f32 {P(vN)}, {P(vN)}, {P(vE+2*i)}, {P(vN)}",
              f"v_pk_fma_f32 {P(vN)}, {P(T+2*i)}, {P(vD)}, {P(vN)}",
              f"v_pk_fma_f32 {P(vD)}, {P(vD)}, {P(vE+2*i)}, {P(vD)}"]
    return l
assert EOFF - 7*32 == 0
def keys(k=None):
    k = vKG if k is None else k
    return [f"ds_read_b128 {vr(vIX+8*p_+4*i,4)}, v{k+p_} offset:{16*i}" for p_ in range(2) for i in range(2)]
def ixadd(): return [f"v_lshl_add_u64 {P(vIX+2*i)}, {P(vIX+2*i)}, 0, {P(vL4)}" for i in range(8)]
def gload(u): return [f"buffer_load_dword v{vLb[u]+i}, v{vIX+8*(i&1)+(i>>1)}, {sr(sP,4)}, 0 offen offset:{128*u} sc1" for i in range(16)]
def shifts(u): return [f"v_lshlrev_b64 {P(vTL+2*i)}, 16, {P(vLb[u]+2*i)}" for i in range(8)]
SAUPD = [f"v_add_u32_sdwa v{vSA}, v{vKG+2}, v{vSC} {SDWA0}", f"v_add_u32_sdwa v{vSA+1}, v{vKG+3}, v{vSC} {SDWA0}"]
QUPD = f"v_add_u32_dpp v{vQ}, v{vGQ}, v{vQC} quad_perm:[0,1,2,3] row_mask:0xc bank_mask:0xf"
AUPD = f"v_add_u32 v{vAG}, v{vAG}, v{vAC}"

I(f"""
v_mov_b32 v{vMX}, 0
s_and_b32 s{t0}, s{sW}, 3
s_lshl_b32 s{t0}, s{t0}, 2
v_mov_b32 v{vSO}, s{t0}
v_mov_b32 v{vt+7}, s{t0}
s_cmp_eq_u32 s{sTw}, 0
s_cbranch_scc1 L_loop_done
ds_read_b64 {P(vD)}, v{vPH}
ds_read2_b64 {vr(vKG,4)}, v{vPH} offset0:{GSZ//8} offset1:6
ds_read_u16 v{vGQ}, v{vPR}
ds_read_b32 v{vAG}, v{vPG}
s_waitcnt lgkmcnt(3)
""")
for l in keys(vD): I(l)
I("s_waitcnt lgkmcnt(0)")
for l in ixadd(): I(l)
if STAG:
    I(f"""
    s_cmp_lt_u32 s{sW}, 8
    s_cbranch_scc1 L_go
    L_hold:
    ds_read_b32 v{vN}, v{vSO} offset:{PROG}
    s_waitcnt lgkmcnt(0)
    v_cmp_eq_u32 vcc, 0, v{vN}
    s_cbranch_vccz L_go
    s_sleep 2
    s_branch L_hold
    L_go:
    """)
for l in gload(0) + gload(1) + keys(): I(l)
I(AUPD)
I(f"ds_read_b64 {P(vA5)}, v{vAG}")
I(QUPD)
I(f"""
ds_read_b64_tr_b16 {P(vB5[0])}, v{vQ}
ds_read_b64_tr_b16 {P(vB5[1])}, v{vQ} offset:64
s_waitcnt lgkmcnt(3)
""")
for l in ixadd(): I(l)
I("s_waitcnt vmcnt(16)")
stamp()
for l in shifts(0): I(l)
I("s_waitcnt lgkmcnt(0)")
I("s_nop 0")
I(mf8(vTL, vA5, vB5[0], vr(vTL,16)))
I(f"s_mov_b32 s{sK}, s{sTw}")
if PRIO:
    I("s_setprio 3")
    I(f"s_mov_b32 s{t5}, {sum(1 << (x // 2) for x in PTH if x % 2 == 0)}")
    I(f"s_mov_b32 s{t4}, {sum(1 << ((x + 1) // 2) for x in PTH if x % 2 == 1)}")
if STAG:
    I(f"""
    s_sub_u32 s{t0}, s{sTw}, {STAG}
    s_lshl_b32 s{t0}, 1, s{t0}
    s_cmp_lt_u32 s{sW}, 4
    s_cselect_b32 s{t0}, s{t0}, 0
    s_or_b32 s{t4 if STAG2 else t5}, s{t4 if STAG2 else t5}, s{t0}
    """)
I("s_nop 15")

body = []
def lds(text, tag=None): body.append(("lds", text, tag))
def need(tag): body.append(("need", tag))
def em(x):
    if isinstance(x, list): body.extend(x)
    else: body.append(x)
def rds(j):
    lds(f"ds_read_b32 v{vSO}, v{vSA} offset:{128*j}")
    lds(f"ds_read_b32 v{vSO+1}, v{vSA+1} offset:{128*j}", f"so{j}")
for j in range(4):
    T = vTH if j & 1 else vTL
    j2 = (j + 2) & 3
    ex = [f"v_exp_f32 v{vE+i}, v{T+i}" for i in range(16)]
    ch = chain(T)
    g = gload(j >> 1)
    if PRIO and j in (0, 2) and (any(x % 2 == j // 2 for x in PTH) or (STAG and j == 2*STAG2)):
        em([f"s_bitcmp1_b32 s{t5 if j == 0 else t4}, s{sK}", f"s_cbranch_scc1 L_prio{j}", f"L_prio{j}_ret:"])
    if j & 1: em(g[11:16])
    if j != 0: rds(j)
    lds(f"ds_read_b64_tr_b16 {P(vB5[j & 1])}, v{vQ} offset:{64*j2}", f"b5_{j2}")
    if j == 1:
        lds(f"ds_read2_b64 {vr(vKG,4)}, v{vPH} offset0:{2*GSZ//8} offset1:{GSZ//8+6}")
        lds(f"ds_read_b32 v{vAG}, v{vPG} offset:{GSZ}")
        lds(f"ds_read_u16 v{vGQ}, v{vPR} offset:{GSZ}", "gq")
    if j == 3:
        kk = keys()
        for i in range(4): lds(kk[i], "keys" if i == 3 else None)
    if j & 1 == 0:
        need(f"b5_{j+1}")
        em(mf8(vTH, vA5, vB5[1], vr(vLb[j >> 1],16)))
        if j == 0: em(SAUPD)
        em(ex[0:8])
        em(g[0:6])
        if j == 0: rds(0)
        if j == 2: lds(f"ds_read_b64 {P(vA5)}, v{vAG}", "a5")
        em(ex[8:16])
        em(ch[0:4])
        em(g[6:11])
        em(ch[4:])
    else:
        jn = (j + 1) & 3; un = jn >> 1
        em("s_waitcnt vmcnt(16)")
        em(shifts(un))
        em(ex[0:2])
        need("a5" if j == 3 else f"b5_{jn}")
        em(mf8(vTL, vA5, vB5[0], vr(vTL,16)))
        em(ex[2:])
        if j == 3:
            need("keys")
            em(ixadd())
            em([f"v_lshl_add_u64 {P(vPH)}, {P(vPH)}, 0, {sr(sADV,2)}", f"v_add_u32 v{vPR}, {GSZ}, v{vPR}"])
        else:
            need("gq")
            em([QUPD, AUPD])
        em(ch)
    em([f"v_rcp_f32 v{vE}, v{vD}", f"v_rcp_f32 v{vE+1}, v{vD+1}", f"v_max3_f32 v{vMX}, v{vD}, v{vD+1}, v{vMX}"])
    if j & 1 == 0: need(f"so{j}")
    em(f"v_pk_fma_f32 {P(vSO)}, {P(vN)}, {P(vE)}, {P(vSO)}")
    if j == 3: em([f"s_sub_u32 s{sK}, s{sK}, 1", f"s_cmp_lg_u32 s{sK}, 0"])
    lds(f"ds_write_b32 v{vSA}, v{vSO} offset:{128*j}")
    lds(f"ds_write_b32 v{vSA+1}, v{vSO+1} offset:{128*j}")
seq2 = body + body + body
res = []
for pos in range(2*len(body), 3*len(body)):
    x = seq2[pos]
    if isinstance(x, tuple) and x[0] == "need":
        n = 0; p = pos - 1
        while not (isinstance(seq2[p], tuple) and seq2[p][0] == "lds" and seq2[p][2] == x[1]):
            if isinstance(seq2[p], tuple) and seq2[p][0] == "lds": n += 1
            p -= 1
        covered = False
        for q in range(p + 1, pos):
            y = seq2[q]
            if isinstance(y, tuple) and y[0] == "need":
                pp = q - 1
                while not (isinstance(seq2[pp], tuple) and seq2[pp][0] == "lds" and seq2[pp][2] == y[1]): pp -= 1
                if pp >= p: covered = True
        if not covered: res.append(f"s_waitcnt lgkmcnt({min(n,15)})")
    elif isinstance(x, tuple): res.append(x[1])
    else: res.append(x)
A(".p2align 6")
L("L_loop")
if DEBUG and int(opts.get("lstamp", 0)):
    I(f"""
    {'s_memtime' if DEBUG == 2 else 's_memrealtime'} s[100:101]
    s_sub_u32 s99, 40, s{sK}
    s_mov_b32 m0, s99
    s_waitcnt lgkmcnt(0)
    v_writelane_b32 v{vST}, s100, m0
    """)
for l in res: I(l)
I("s_cbranch_scc1 L_loop")
L("L_loop_done")
if STAG: I(f"ds_write_b32 v{vt+7}, v{vt+6} offset:{PROG}")
stamp()
L("L_epi")
I(f"""
s_setprio 0
v_cmp_nge_f32 vcc, {f2u(2.0**100)}, v{vMX}
s_cmp_ge_u32 s{sW}, 7
s_cbranch_scc1 L_epi_wait
v_lshlrev_b32 v40, 4, v{vLane}
""")
vW2 = 80
for q in range(4):
    I(f"s_mov_b32 s{t0}, {W2I + 4096*q}")
    for i_ in range(4):
        I(f"buffer_load_dwordx4 {vr(vW2+16*q+4*i_,4)}, v40, {sr(sWS,4)}, s{t0} offen offset:{1024*i_} sc1")
I(f"""
s_lshl_b32 s{t0}, s{sW}, 4
v_and_b32 v42, 15, v{vLane}
v_add_u32 v43, s{t0}, v42
v_min_u32 v43, {ZROW}, v43
v_lshlrev_b32 v44, 2, v43
v_bfe_u32 v45, v{vLane}, 4, 1
v_lshrrev_b32 v46, 5, v{vLane}
ds_read_b32 v44, v44 offset:{CARRY}
v_lshrrev_b32 v47, 4, v{vLane}
v_lshl_add_u32 v144, v47, 2, s{t0}
v_lshlrev_b32 v145, 2, v144
ds_read_b128 v[148:151], v145 offset:{CNT}
v_lshlrev_b32 v146, 8, v45
v_lshl_add_u32 v146, v46, 7, v146
v_add_u32 v146, {SB}, v146
v_mul_u32_u24 v43, {SROW}, v43
v_add_u32 v43, v43, v146
v_lshlrev_b32 v144, 7, v144
v_lshl_add_u32 v144, v42, 3, v144
v_and_b32 v155, 0xffff0000, v{vB2+1}
v_lshlrev_b32 v154, 16, v{vB2+1}
v_and_b32 v153, 0xffff0000, v{vB2}
v_lshlrev_b32 v152, 16, v{vB2}
s_mov_b32 s{t0}, {f2u(-LN2)}
s_mov_b32 s{t1}, {f2u(-LOG2E)}
s_waitcnt lgkmcnt(0)
v_add_u32 v44, v44, v146
""")
vO = 12
for r in range(4):
    I(f"v_cvt_f32_u32 v{148+r}, v{148+r}")
    I(f"v_mul_f32 v{152+r}, s{t1}, v{152+r}")
for c in range(4):
    for r in range(4):
        I(f"v_mul_f32 v{vO+4*c+r}, v{148+r}, v{152+c}")
I(f"""
L_epi_wait:
s_waitcnt vmcnt(0) lgkmcnt(0)
s_barrier
s_cmp_ge_u32 s{sW}, 7
s_cbranch_scc1 L_epi_end
""")
stamp()
cb = [148, 156, 32, 148]
ep = []
def elds(t, tag=None): ep.append(("lds", t, tag))
for ks in range(4):
    for i_ in range(2):
        elds(f"ds_read_b128 {vr(48+8*ks+4*i_,4)}, v43 offset:{32*ks+16*i_}")
    if ks < 3:
        for i_ in range(2):
            elds(f"ds_read_b128 {vr(cb[ks]+4*i_,4)}, v44 offset:{32*ks+16*i_}", f"s{ks}" if i_ else None)
for ks in range(4):
    ep.append(("need", f"s{ks}"))
    for i_ in range(4):
        r = 48 + 8*ks + 2*i_
        ep.append(f"v_pk_add_f32 {P(r)}, {P(r)}, {P(cb[ks]+2*i_)}")
    if ks == 0:
        for i_ in range(2):
            elds(f"ds_read_b128 {vr(cb[3]+4*i_,4)}, v44 offset:{96+16*i_}", "s3" if i_ else None)
    for i_ in range(4):
        r = 48 + 8*ks + 2*i_
        ep.append(f"v_cvt_pk_bf16_f32 v{48+8*ks+i_}, v{r}, v{r+1}")
    ep.append("s_nop 1")
    for c in range(4):
        ep.append(f"v_mfma_f32_16x16x32_bf16 {vr(vO+4*c,4)}, {vr(48+8*ks,4)}, {vr(vW2+16*c+4*ks,4)}, {vr(vO+4*c,4)}")
for pos, x in enumerate(ep):
    if isinstance(x, tuple) and x[0] == "need":
        n = 0; p = pos - 1
        while not (isinstance(ep[p], tuple) and ep[p][0] == "lds" and ep[p][2] == x[1]):
            if isinstance(ep[p], tuple) and ep[p][0] == "lds": n += 1
            p -= 1
        I(f"s_waitcnt lgkmcnt({min(n,15)})")
    elif isinstance(x, tuple): I(x[1])
    else: I(x)
I(f"s_mov_b32 s{t1}, s{t0}")
I("s_nop 6")
for i_ in range(8):
    I(f"v_pk_mul_f32 {P(vO+2*i_)}, {P(vO+2*i_)}, {sr(t0,2)}")
for r in range(4):
    I(f"v_cvt_pk_bf16_f32 v{64+2*r}, v{vO+r}, v{vO+4+r}")
    I(f"v_cvt_pk_bf16_f32 v{65+2*r}, v{vO+8+r}, v{vO+12+r}")
    I(f"buffer_store_dwordx2 {P(64+2*r)}, v144, {sr(sOUT,4)}, 0 offen offset:{128*r}")
I(f"""
v_add_f32 v72, v{vO}, v{vO+1}
v_add_f32 v73, v{vO+2}, v{vO+3}
v_add_f32 v72, v72, v73
v_mov_b32 v73, 0x7f800000
v_cmp_nlt_f32 {sr(sE0,2)}, |v72|, v73
s_or_b64 vcc, vcc, {sr(sE0,2)}
L_epi_end:
s_cmp_lg_u32 s{sMode}, 0
s_cbranch_scc1 L_fin
""")
if FORCE_SLOW == 2: I("s_mov_b64 vcc, 1")
I(f"""
v_mov_b32 v72, 0
v_mov_b32 v73, 1
s_cmp_eq_u64 vcc, 0
s_cbranch_scc1 L_noflag
ds_write_b32 v72, v73 offset:{FLAG}
L_noflag:
s_waitcnt lgkmcnt(0)
s_barrier
ds_read_b32 v73, v72 offset:{FLAG}
s_waitcnt lgkmcnt(0)
v_readfirstlane_b32 s{sBad}, v73
s_cmp_lg_u32 s{sBad}, 0
s_cbranch_scc1 L_slow
L_fin:
""")
if DEBUG:
    stamp()
    I("s_waitcnt vmcnt(0)")
    stamp()
    I(f"""
    s_lshl_b32 s{t0}, s2, 4
    s_add_u32 s{t0}, s{t0}, s{sW}
    s_lshl_b32 s{t0}, s{t0}, 8
    s_add_u32 s{t0}, s{t0}, {STAMP}
    v_lshlrev_b32 v72, 2, v{vLane}
    buffer_store_dword v{vST}, v72, {sr(sWS,4)}, s{t0} offen
    s_waitcnt vmcnt(0)
    """)
    if int(opts.get("dd", 0)):
        I(f"""
        s_cmp_lg_u32 s{sW}, 0
        s_cbranch_scc1 L_exit
        s_load_dwordx2 s[96:97], s[0:1], 72
        v_readlane_b32 s98, v{vST}, 0
        v_readlane_b32 s99, v{vST}, 16
        s_not_b32 s98, s98
        s_nop 1
        v_writelane_b32 v{vST}, s98, 15
        v_writelane_b32 v{vST}, s99, 14
        s_waitcnt lgkmcnt(0)
        s_mov_b64 exec, 0xffff
        global_atomic_umax v72, v{vST}, s[96:97]
        s_waitcnt vmcnt(0)
        """)
L("L_exit")
I("s_endpgm")

if PRIO:
    for j in (0, 2):
        lv = [(i, x) for i, x in enumerate(PTH) if x % 2 == j // 2]
        if not lv and not (STAG and j == 2*STAG2): continue
        L(f"L_prio{j}")
        if STAG and j == 2*STAG2:
            I(f"ds_write_b32 v{vt+7}, v{vt+6} offset:{PROG}")
        for n_, (i, x) in enumerate(lv):
            I(f"s_cmp_eq_u32 s{sK}, {(x + 1) // 2}")
            I(f"s_cbranch_scc0 L_prio{j}_{n_}")
            I(f"s_setprio {2 - i}")
            L(f"L_prio{j}_{n_}")
        I(f"s_branch L_prio{j}_ret")
for fx, s_ in fixups:
    r = slotreg[s_]
    I(f"""
    L_fx{fx}:
    v_min_u32 v140, {CAP + 23}, v{r+3}
    v_subrev_u32 v140, {CAP}, v140
    v_mov_b32 v141, {OVF}
    v_cndmask_b32 v{r+3}, v{r+3}, v140, vcc
    v_cndmask_b32 v{vTA[s_]}, v{vTA[s_]}, v141, vcc
    s_branch L_fr{fx}
    """)
L("L_slow")
I(f"""
s_setprio 0
s_mov_b32 s{sMode}, 1
s_mov_b32 s{sK0}, 0
s_waitcnt vmcnt(0) lgkmcnt(0)
s_barrier
v_mov_b32 v{vt+6}, 1
v_mov_b32 v{vMX}, 0
""")
small_init(64)
s_zero(64)
load_desc()
for jj in range(3):
    I(f"buffer_load_dwordx2 {P(vDs+2*jj)}, v134, {sr(sWS,4)}, s{t0+jj} offen sc1")
I("s_waitcnt vmcnt(0)")
decode_desc()
for jj in range(3):
    I(f"v_mov_b32 v{144+jj}, v{vRA+jj}")
    I(f"v_mov_b32 v{147+jj}, v{vDs+2*jj}")
I(f"""
s_mov_b32 s{sGam}, s{t3}
v_max3_i32 v137, v147, v148, v149
v_max_i32 v137, 0, v137
v_mov_b32 v138, 0
s_waitcnt lgkmcnt(0)
s_barrier
ds_max_u32 v138, v137 offset:{MAXC}
s_waitcnt lgkmcnt(0)
s_barrier
ds_read_b32 v137, v138 offset:{MAXC}
s_waitcnt lgkmcnt(0)
v_readfirstlane_b32 s{sMaxc}, v137
L_round:
s_barrier
""")
area_init(64)
I(f"""
v_lshlrev_b32 v64, 2, v0
v_add_u32 v64, {CNTR}, v64
v_mov_b32 v65, 0
v_cmp_gt_u32 vcc, 128, v0
s_and_b64 exec, exec, vcc
ds_write_b32 v64, v65
s_mov_b64 exec, -1
""")
for jj in range(3):
    I(f"v_cmp_lt_i32 {sr(sM+2*jj,2)}, s{sK0}, v{147+jj}")
for jj in range(3):
    I(f"s_mov_b64 exec, {sr(sM+2*jj,2)}")
    I(f"buffer_load_dwordx3 {vr(48+4*jj,3)}, v{144+jj}, {sr(sWS,4)}, s{sGam} offen sc1")
I(f"""
s_mov_b64 exec, -1
s_waitcnt vmcnt(0) lgkmcnt(0)
s_barrier
""")
for jj in range(3):
    r = 48 + 4*jj
    I(f"""
    s_mov_b64 exec, {sr(sM+2*jj,2)}
    v_lshlrev_b32_sdwa v{60+jj}, 2, v{r+2} {SDWAB}
    v_and_b32 v{r+2}, 0xffffff00, v{r+2}
    v_add_u32 v{72+jj}, {GBASE}, v{60+jj}
    ds_add_rtn_u32 v{r+3}, v{72+jj}, v{vt+6} offset:512
    ds_add_u32 v{60+jj}, v{vt+6} offset:{CNT}
    """)
I(f"""
s_mov_b64 exec, -1
s_waitcnt lgkmcnt(0)
s_barrier
v_lshlrev_b32 v64, 3, v{vLane}
v_add_u32 v64, {GBASE}, v64
ds_read_b64 v[66:67], v64 offset:512
s_waitcnt lgkmcnt(0)
v_add_u32 v66, 7, v66
v_add_u32 v67, 7, v67
v_lshrrev_b32 v66, 3, v66
v_lshrrev_b32 v67, 3, v67
v_add_u32 v68, v66, v67
v_mov_b32 v69, v68
""")
dpp_scan(69)
I(f"""
v_readlane_b32 s{sG}, v69, 63
v_sub_u32 v70, v69, v68
v_add_u32 v71, v70, v66
ds_write_b64 v64, v[70:71]
s_add_u32 s{sNT}, s{sG}, 3
s_lshr_b32 s{sNT}, s{sNT}, 2
s_waitcnt lgkmcnt(0)
""")
for jj in range(3):
    r = 48 + 4*jj
    I(f"""
    s_mov_b64 exec, {sr(sM+2*jj,2)}
    ds_read_b32 v64, v{72+jj}
    ds_read_b32 v71, v{72+jj} offset:512
    v_lshrrev_b32 v65, 3, v{r+3}
    v_and_b32 v66, 7, v{r+3}
    v_lshrrev_b32 v67, 2, v{60+jj}
    s_waitcnt lgkmcnt(0)
    v_add_u32 v64, v64, v65
    v_lshlrev_b32 v65, 3, v65
    v_sub_u32 v71, v71, v65
    v_min_u32 v71, 8, v71
    v_and_b32 v65, 3, v64
    v_lshlrev_b32 v68, 4, v65
    v_sub_u32 v71, v68, v71
    v_lshlrev_b32 v71, 3, v71
    v_add_u32 v71, {LUT + 64}, v71
    v_mul_u32_u24 v68, {SROW}, v67
    v_mul_u32_u24 v69, {QROW}, v67
    v_lshl_or_b32 v68, v69, 16, v68
    v_lshrrev_b32 v69, 2, v64
    v_lshlrev_b32 v69, 6, v69
    v_lshl_add_u32 v69, v65, 2, v69
    v_add_u32 v69, {GT}, v69
    ds_write2_b32 v69, v71, v68 offset0:8 offset1:12
    v_mul_u32_u24 v65, 9363, v64
    v_lshrrev_b32 v65, 16, v65
    v_mul_u32_u24 v67, 7, v65
    v_sub_u32 v64, v64, v67
    v_mul_u32_u24 v65, {NSZ}, v65
    v_add_u32 v65, {AREA}, v65
    v_lshl_add_u32 v67, v64, 5, v65
    v_lshl_add_u32 v70, v64, 6, v65
    v_add_u32 v70, {EOFF}, v70
    ds_write2_b32 v69, v67, v70 offset0:0 offset1:4
    v_lshl_add_u32 v75, v66, 2, v67
    v_lshl_add_u32 v76, v66, 3, v70
    ds_write_b32 v75, v{r+2}
    ds_write_b64 v76, {P(r)}
    s_waitcnt lgkmcnt(0)
    """)
I(f"""
s_mov_b64 exec, -1
s_barrier
s_mov_b32 s{sK}, s{sW}
L_stile:
s_cmp_ge_u32 s{sK}, s{sNT}
s_cbranch_scc1 L_stile_done
s_lshl_b32 s{t0}, s{sK}, 6
s_add_u32 s{t0}, s{t0}, {GT}
""")
ptr_consts(f"s{t0}")
I(f"""
ds_read2_b64 {vr(vKG,4)}, v{vPH} offset0:0 offset1:6
ds_read_u16 v{vGQ}, v{vPR}
ds_read_b32 v{vAG}, v{vPG}
s_waitcnt lgkmcnt(0)
""")
for l in keys() + [AUPD, f"ds_read_b64 {P(vA5)}, v{vAG}", "s_waitcnt lgkmcnt(0)"]: I(l)
for l in ixadd() + gload(0) + gload(1) + SAUPD + [QUPD]: I(l)
I("s_waitcnt vmcnt(0)")
for u in range(2):
    I(f"ds_read_b64_tr_b16 {P(vB5[0])}, v{vQ} offset:{128*u}")
    I(f"ds_read_b64_tr_b16 {P(vB5[1])}, v{vQ} offset:{128*u+64}")
    for l in shifts(u): I(l)
    I("s_waitcnt lgkmcnt(0)")
    I("s_nop 1")
    I(mf8(vTL, vA5, vB5[0], vr(vTL,16)))
    I(mf8(vTH, vA5, vB5[1], vr(vLb[u],16)))
    I("s_nop 15")
    for hi, T in enumerate((vTL, vTH)):
        for i in range(16): I(f"v_exp_f32 v{vE+i}, v{T+i}")
        for i in range(16): I(f"v_add_f32 v{vE+i}, 1.0, v{vE+i}")
        for i in range(16): I(f"v_rcp_f32 v{vE+i}, v{vE+i}")
        I(f"v_pk_mul_f32 {P(vN)}, {P(T)}, {P(vE)}")
        for i in range(1, 8): I(f"v_pk_fma_f32 {P(vN)}, {P(T+2*i)}, {P(vE+2*i)}, {P(vN)}")
        I(f"ds_add_f32 v{vSA}, v{vN} offset:{128*(2*u+hi)}")
        I(f"ds_add_f32 v{vSA+1}, v{vN+1} offset:{128*(2*u+hi)}")
        I("s_waitcnt lgkmcnt(0)")
I(f"""
s_add_u32 s{sK}, s{sK}, {NW}
s_branch L_stile
L_stile_done:
s_add_u32 s{sK0}, s{sK0}, 8
s_add_u32 s{sGam}, s{sGam}, 96
s_cmp_lt_u32 s{sK0}, s{sMaxc}
s_cbranch_scc1 L_round
s_barrier
s_branch L_epi
""")

A('.section .rodata,"a"')
A(".p2align 6")
A(f".amdhsa_kernel {KNAME}")
A(f"  .amdhsa_next_free_vgpr {NVGPR}")
A("  .amdhsa_next_free_sgpr 102")
A(f"  .amdhsa_accum_offset {NVGPR}")
A("  .amdhsa_group_segment_fixed_size 0")
A("  .amdhsa_kernarg_size 88")
A("  .amdhsa_user_sgpr_count 2")
A("  .amdhsa_user_sgpr_kernarg_segment_ptr 1")
A("  .amdhsa_system_sgpr_workgroup_id_x 1")
A("  .amdhsa_float_denorm_mode_32 3")
A(".end_amdhsa_kernel")
open(sys.argv[1], "w").write("\n".join(out) + "\n")
print("LDS", LDS, "SB", SB, "QB", QB, "lines", len(out), file=sys.stderr)
```

```python
import sys, struct

opts = dict(a.split("=") for a in sys.argv[2:])
DEBUG = int(opts.get("debug", 0))
PRIO = int(opts.get("prio", 1))
FORCE_SLOW = int(opts.get("slow", 0))
NT = " " + opts.get("nt", "nt").replace("+", " ").replace("none", "")
WSOFF = int(opts.get("wsoff", "0"), 0)
PREF = int(opts.get("pref", 0))
STAG = int(opts.get("stag", 2))
STAG2 = int(opts.get("stag2", 0))
SLEEP = int(opts.get("sleep", 2))
PTH = [int(x) for x in opts.get("pth", "7,3,1").split(",")]

KNAME = "standalone__edge_featured_mpnn_mpnn__graph_kernel"
N = 25000; E = 800000
BN = 98; NW = 12; NTH = 768
QE = 3072; XE = 53; CH = QE + XE
GRAN = 0x10000
W2I = 0x98000
REC = 0x100000; RSTRIDE = 37632
PT = 0xB00000
STAMP = 0x1200000
WS_SIZE = 0x1300000
LOG2E = 1.4426950408889634
LN2 = 0.6931471805599453
def f2u(x): return struct.unpack("<I", struct.pack("<f", x))[0]

CNT = 0; CARRY = 512; PROG = 1024; FLAG = 1040; MAXC = 1044; LUT = 1088
GT = 1600; GSZ = 64; TMAX = 10; NGT = NW * TMAX + 2
CNT1 = GT
CAP = 56; NSZ = CAP * 12; EOFF = CAP * 4
AREA = (GT + NGT * GSZ + 127) // 128 * 128
SB = (AREA + 99 * NSZ + 255) // 256 * 256
SROW = 528; NSROW = BN + NW
QB = SB + NSROW * SROW; QROW = 264
GBASE = QB + 102 * QROW; CNTR = GBASE + 512
LDS = CNTR + 512
assert LDS <= 163840 and QB % 8 == 0 and GBASE % 8 == 0 and GT % 16 == 0
RST = AREA; XRAW = AREA + 37632; W1RAW = SB; PST = SB + 32768
assert XRAW + 16384 <= SB and PST + BN * 256 <= QB
ZROW = BN
PADKEY = 0x80000000
OVF = AREA + 98 * NSZ
SCANW, EXTRAW = 8, 9

out = []
def A(s=""): out.append(s)
def I(s):
    for l in s.strip("\n").split("\n"):
        l = l.strip()
        if not l: continue
        out.append(l if l.endswith(":") else "    " + l)
def L(name): out.append(name + ":")
def vr(a, n): return f"v[{a}:{a+n-1}]"
def sr(a, n): return f"s[{a}:{a+n-1}]"
def P(r): return f"v[{r}:{r+1}]"

sWS, sP, sOUT, sA, sBq, sC = 4, 8, 12, 16, 20, 24
sD = 28
pX, pE, pSRC, pDST, pW1, pB1, pW2, pB2, pOUT, pWS = 32, 34, 36, 38, 40, 42, 44, 46, 48, 50
sM = 32
sB, sW, sTw, sG, sT, sRem, sGam, sK, sGmax, sBad, sTag, sTag8, sReg, sMode, sK0, sMaxc = range(62, 78)
sONE = 78; sADV = 80; sSC = 82; sE0 = 84; sE1 = 86
t0, t1, t2, t3, t4, t5 = 88, 89, 90, 91, 92, 93
sNT = 94
vLane = 1
vPH, vPG, vPR, vAC = 2, 3, 4, 5
vL4 = 6; vSC = 8; vQC = 9; vQ = 10; vGQ = 11
vSA = 12; vAG = 14; vA5 = 16; vB5 = [18, 20]; vD = 22; vN = 24; vSO = 26; vMX = 28; vST = 29; vB2 = 30
vKG = 36
vW2S = 32
vt = 40
vLb = [48, 64]; vTL = 80; vTH = 96; vE = 112; vIX = 128
NVGPR = 168

nstamp = [0]
def stamp():
    if not DEBUG: return
    i = nstamp[0]; nstamp[0] += 1
    I(f"{'s_memtime' if DEBUG == 2 else 's_memrealtime'} s[100:101]")
    I("s_waitcnt lgkmcnt(0)")
    I(f"v_writelane_b32 v{vST}, s100, {i}")

def srd(d, p, nrec, stride=0, add=None):
    if add is None:
        I(f"s_mov_b32 s{d}, s{p}")
        I(f"s_and_b32 s{d+1}, s{p+1}, 0xffff")
    else:
        I(f"s_add_u32 s{d}, s{p}, {add}")
        I(f"s_addc_u32 s{d+1}, s{p+1}, 0")
        I(f"s_and_b32 s{d+1}, s{d+1}, 0xffff")
    I(f"s_mov_b32 s{d+2}, {nrec}")
    I(f"s_mov_b32 s{d+3}, 0x00020000")

def dpp_scan(v, vmax=None):
    steps = ["row_shr:1 row_mask:0xf bank_mask:0xf bound_ctrl:0", "row_shr:2 row_mask:0xf bank_mask:0xf bound_ctrl:0",
             "row_shr:4 row_mask:0xf bank_mask:0xf bound_ctrl:0", "row_shr:8 row_mask:0xf bank_mask:0xf bound_ctrl:0",
             "row_bcast:15 row_mask:0xa bank_mask:0xf", "row_bcast:31 row_mask:0xc bank_mask:0xf"]
    I("s_nop 1")
    for s in steps:
        I(f"v_add_u32_dpp v{v}, v{v}, v{v} {s}")
        if vmax is not None:
            I(f"v_max_u32_dpp v{vmax}, v{vmax}, v{vmax} {s}")
            I("s_nop 0")
        else:
            I("s_nop 1")
def lanemask(ls):
    m = 0
    for l in ls: m |= 1 << l
    return m
def setexec(m):
    I(f"s_mov_b32 exec_lo, {m & 0xffffffff}")
    I(f"s_mov_b32 exec_hi, {m >> 32}")
def mf16(D, a, b, c): return f"v_mfma_f32_32x32x16_bf16 {vr(D,16)}, {vr(a,4)}, {vr(b,4)}, {c}"
def mf8(D, a, b, c): return f"v_mfma_f32_32x32x8_bf16 {vr(D,16)}, {vr(a,2)}, {vr(b,2)}, {c}"
SDWA0 = "dst_sel:DWORD dst_unused:UNUSED_PAD src0_sel:WORD_0 src1_sel:DWORD"
SDWAB = "dst_sel:DWORD dst_unused:UNUSED_PAD src0_sel:DWORD src1_sel:BYTE_0"

def area_init(z):
    I(f"""
    s_mov_b32 s{t0}, 1561
    v_mul_u32_u24 v{z+5}, s{t0}, v0
    v_lshrrev_b32 v{z+5}, 16, v{z+5}
    v_mul_u32_u24 v{z+5}, 42, v{z+5}
    v_sub_u32 v{z+5}, v0, v{z+5}
    v_cmp_gt_u32 vcc, 14, v{z+5}
    v_mov_b32 v{z+6}, {PADKEY}
    v_lshlrev_b32 v{z+4}, 4, v0
    v_cndmask_b32 v{z}, 0, v{z+6}, vcc
    v_add_u32 v{z+4}, {AREA}, v{z+4}
    v_mov_b32 v{z+1}, v{z}
    v_mov_b32 v{z+2}, v{z}
    v_mov_b32 v{z+3}, v{z}
    v_cmp_gt_u32 vcc, 756, v0
    s_and_b64 exec, exec, vcc
    """)
    for t in range(6):
        if t == 5:
            I(f"v_cmp_gt_u32 vcc, {99*42 - 5*756}, v0")
            I("s_and_b64 exec, exec, vcc")
        I(f"ds_write_b128 v{z+4}, {vr(z,4)} offset:{t*756*16}")
    I("s_mov_b64 exec, -1")
    vals = [OVF + 6*32, OVF + EOFF + 6*64, LUT + 64, (ZROW*SROW) | ((98*QROW) << 16)]
    I(f"v_mov_b32 v{z+5}, {vals[0]}")
    for q in range(1, 4):
        m = lanemask([l for l in range(64) if l & 3 == q])
        setexec(m)
        I(f"v_mov_b32 v{z+5}, {vals[q]}")
    I(f"""
    s_mov_b64 exec, -1
    v_lshlrev_b32 v{z+4}, 4, v0
    v_cmp_gt_u32 vcc, {NGT*4}, v0
    s_waitcnt lgkmcnt(0)
    v_mov_b32 v{z}, v{z+5}
    v_mov_b32 v{z+1}, v{z+5}
    v_mov_b32 v{z+2}, v{z+5}
    v_mov_b32 v{z+3}, v{z+5}
    s_and_b64 exec, exec, vcc
    ds_write_b128 v{z+4}, {vr(z,4)} offset:{GT}
    s_mov_b64 exec, -1
    """)
def s_zero(z):
    nch = NSROW * SROW // 16
    for i in range(4): I(f"v_mov_b32 v{z+i}, 0")
    I(f"v_lshlrev_b32 v{z+4}, 4, v0")
    I(f"v_add_u32 v{z+4}, {SB}, v{z+4}")
    n = (nch + NTH - 1) // NTH
    for t in range(n):
        if (t + 1) * NTH > nch:
            I(f"v_cmp_gt_u32 vcc, {nch - t*NTH}, v0")
            I(f"s_and_b64 exec, exec, vcc")
        I(f"ds_write_b128 v{z+4}, {vr(z,4)} offset:{t*NTH*16}")
    I("s_mov_b64 exec, -1")
def small_init(z):
    I(f"""
    v_lshlrev_b32 v{z}, 2, v0
    v_mov_b32 v{z+1}, 0
    v_mov_b32 v{z+2}, {ZROW*SROW}
    v_lshrrev_b32 v{z+3}, 7, v0
    v_cmp_eq_u32 vcc, 1, v{z+3}
    s_nop 1
    v_cndmask_b32 v{z+1}, v{z+1}, v{z+2}, vcc
    v_cmp_gt_u32 vcc, 272, v0
    s_and_b64 exec, exec, vcc
    ds_write_b32 v{z}, v{z+1}
    s_mov_b64 exec, -1
    """)

hdr = open("standalone__edge_featured_mpnn_mpnn__graph.s.ref").read().split("\n")
for l in hdr:
    if "@launch" in l: continue
    if not l.startswith(";"): break
    A(l)
A(f"; @launch grid=(256,1,1) block=({NTH},1,1) lds={LDS}")
A('.amdgcn_target "amdgcn-amd-amdhsa--gfx950"')
A(".text")
A(f".globl {KNAME}")
A(".p2align 8")
A(f".type {KNAME},@function")
L(KNAME)
I(f"""
s_cmp_ge_u32 s2, 256
s_cbranch_scc1 L_exit
{"s_memrealtime s[96:97]" if DEBUG else ""}
s_load_dwordx16 s[32:47], s[0:1], 0
s_load_dwordx2 {sr(pOUT,2)}, s[0:1], 64
s_load_dwordx2 {sr(pWS,2)}, s[0:1], 80
v_lshrrev_b32 v{vt}, 6, v0
v_and_b32 v{vLane}, 63, v0
v_readfirstlane_b32 s{sW}, v{vt}
s_mul_i32 s{t0}, s2, {QE*4}
v_lshl_add_u32 v{vt+1}, v0, 4, s{t0}
v_lshlrev_b32 v{vt+2}, 1, v{vt+1}
s_and_b32 s{sB}, s2, 7
s_lshl_b32 s{sB}, s{sB}, 5
s_lshr_b32 s{t1}, s2, 3
s_add_u32 s{sB}, s{sB}, s{t1}
v_lshlrev_b32 v75, 2, v0
v_mov_b32 v76, 0
ds_write_b32 v75, v76 offset:{CNT1}
v_lshrrev_b32 v68, 3, v{vLane}
v_lshrrev_b32 v69, 4, v{vLane}
v_and_b32 v70, 7, v{vLane}
v_xor_b32 v70, v70, v69
v_lshlrev_b32 v70, 4, v70
v_lshl_add_u32 v70, v68, 7, v70
s_and_b32 s{t0}, s{sW}, 1
s_lshl_b32 s{t0}, s{t0}, 6
v_xor_b32 v71, s{t0}, v70
v_and_b32 v72, 15, v{vLane}
v_lshlrev_b32 v73, 2, v69
v_xor_b32 v72, v72, v73
v_lshlrev_b32 v72, 4, v72
v_lshl_add_u32 v72, v69, 8, v72
v_lshlrev_b32 v74, 1, v{vLane}
v_and_b32 v75, 32, v{vLane}
v_lshl_add_u32 v74, v75, 4, v74
v_lshlrev_b32 v{vt+5}, 4, v{vLane}
v_lshlrev_b32 v{vt}, 4, v0
s_mul_i32 s{t1}, s{sB}, {BN*128}
s_lshl_b32 s{t2}, s{sW}, 10
s_mov_b32 s{sA+2}, {N*128}
s_mov_b32 s{sA+3}, 0x00020000
s_mov_b32 s{sBq+2}, {132*256}
s_mov_b32 s{sBq+3}, 0x00020000
s_mov_b32 s{sC+2}, 256
s_mov_b32 s{sC+3}, 0x00020000
s_mov_b32 s{sD+2}, {128*128}
s_mov_b32 s{sD+3}, 0x00020000
s_waitcnt lgkmcnt(0)
s_add_u32 s{pWS}, s{pWS}, {WSOFF}
s_addc_u32 s{pWS+1}, s{pWS+1}, 0
s_mov_b32 s{sA}, s{pX}
s_and_b32 s{sA+1}, s{pX+1}, 0xffff
s_mov_b32 s{sBq}, s{pW1}
s_and_b32 s{sBq+1}, s{pW1+1}, 0xffff
s_mov_b32 s{sC}, s{pB1}
s_and_b32 s{sC+1}, s{pB1+1}, 0xffff
s_mov_b32 s{sD}, s{pW2}
s_and_b32 s{sD+1}, s{pW2+1}, 0xffff
s_cmp_ge_u32 s{sW}, 8
s_cbranch_scc1 L_opt_hi
s_add_u32 s{t3}, s{t2}, {24*1024}
s_add_u32 m0, s{t3}, {W1RAW}
s_cmp_lg_u32 s{sW}, 0
buffer_load_dwordx4 v72, {sr(sBq,4)}, s{t3} offen lds
s_cbranch_scc1 L_opt_end
s_mov_b32 m0, {XRAW + 12*1024}
s_add_u32 s{t3}, s{t1}, {12*1024}
buffer_load_dwordx4 v70, {sr(sA,4)}, s{t3} offen{NT} lds
s_branch L_opt_end
L_opt_hi:
s_cmp_lg_u32 s{sW}, {EXTRAW}
s_cbranch_scc1 L_opt_a
s_mul_i32 s{t0}, s2, {XE}
s_add_u32 s{t0}, s{t0}, {256*QE}
v_add_lshl_u32 v{vt+3}, v{vLane}, s{t0}, 2
v_lshlrev_b32 v{vt+4}, 1, v{vt+3}
""")
XM = (1 << XE) - 1
setexec(XM)
I(f"""
global_load_dword v64, v{vt+3}, {sr(pDST,2)}{NT}
global_load_dword v65, v{vt+3}, {sr(pSRC,2)}{NT}
global_load_dwordx2 v[66:67], v{vt+4}, {sr(pE,2)}{NT}
s_mov_b64 exec, -1
s_branch L_opt_end
L_opt_a:
s_cmp_lg_u32 s{sW}, 10
s_cbranch_scc1 L_opt_b
s_mov_b32 s{t0}, {128*256}
buffer_load_dwordx4 v[12:15], v{vt+5}, {sr(sBq,4)}, s{t0} offen
s_branch L_opt_end
L_opt_b:
s_cmp_lg_u32 s{sW}, 11
s_cbranch_scc1 L_opt_end
s_cmp_ge_u32 s2, 16
s_cbranch_scc1 L_opt_end
s_and_b32 s{t0}, s2, 3
s_lshl_b32 s{t0}, s{t0}, 10
s_lshr_b32 s{t3}, s2, 2
s_lshl_b32 s{t3}, s{t3}, 1
s_add_u32 s{t0}, s{t0}, s{t3}
v_bfe_u32 v12, v{vLane}, 4, 1
v_lshlrev_b32 v12, 13, v12
v_lshrrev_b32 v13, 5, v{vLane}
v_lshl_add_u32 v12, v13, 12, v12
v_and_b32 v13, 15, v{vLane}
v_lshl_add_u32 v12, v13, 3, v12
""")
for i_ in range(8):
    I(f"buffer_load_ushort v{vW2S+i_}, v12, {sr(sD,4)}, s{t0} offen offset:{128*i_}")
I(f"""
L_opt_end:
global_load_dwordx4 v[48:51], v{vt+1}, {sr(pDST,2)}{NT}
s_add_u32 m0, s{t2}, {XRAW}
s_add_u32 s{t3}, s{t1}, s{t2}
buffer_load_dwordx4 v71, {sr(sA,4)}, s{t3} offen{NT} lds
s_add_u32 m0, s{t2}, {W1RAW}
s_add_u32 s{t3}, s{t2}, {12*1024}
buffer_load_dwordx4 v72, {sr(sBq,4)}, s{t2} offen lds
s_add_u32 m0, s{t3}, {W1RAW}
s_and_b32 s{t0}, s{sW}, 1
buffer_load_dwordx4 v72, {sr(sBq,4)}, s{t3} offen lds
s_lshl_b32 s{t0}, s{t0}, 7
buffer_load_ushort v160, v74, {sr(sC,4)}, s{t0} offen
buffer_load_ushort v162, v74, {sr(sC,4)}, s{t0} offen offset:64
""")
if DEBUG:
    I(f"v_mov_b32 v{vST}, 0")
    if DEBUG == 1: I(f"v_writelane_b32 v{vST}, s96, 21")
stamp()
I(f"""
s_barrier
global_load_dwordx4 v[52:55], v{vt+1}, {sr(pSRC,2)}{NT}
global_load_dwordx4 v[56:59], v{vt+2}, {sr(pE,2)}{NT}
global_load_dwordx4 v[60:63], v{vt+2}, {sr(pE,2)} offset:16{NT}
v_and_b32 v75, 15, v{vLane}
v_lshlrev_b32 v75, 3, v75
global_load_dwordx2 {P(vB2)}, v75, {sr(pB2,2)}
s_load_dword s{sTag}, {sr(pWS,2)}, 0
""")
assert CNT1 + NTH * 4 <= AREA
small_init(76)
srd(sWS, pWS, WS_SIZE)
srd(sP, pWS, N*256, add=PT)
I(f"""
s_mul_i32 s{t0}, s{sB}, {BN}
s_sub_u32 s{t1}, {N}, s{t0}
s_min_u32 s{t1}, s{t1}, {BN}
s_lshl_b32 s{t2}, s{t0}, 7
s_add_u32 s{sOUT}, s{pOUT}, s{t2}
s_addc_u32 s{sOUT+1}, s{pOUT+1}, 0
s_and_b32 s{sOUT+1}, s{sOUT+1}, 0xffff
s_lshl_b32 s{sOUT+2}, s{t1}, 7
s_mov_b32 s{sOUT+3}, 0x00020000
s_mov_b32 s{sONE}, 1.0
s_mov_b32 s{sONE+1}, 1.0
s_mov_b32 s{sADV}, {GSZ}
s_mov_b32 s{sADV+1}, {GSZ}
s_mov_b32 s{sSC}, {f2u(-LOG2E)}
s_mov_b32 s{sSC+1}, {f2u(-LOG2E)}
s_mov_b32 s{sMode}, 0
s_mul_i32 s{sReg}, s{sW}, {TMAX*GSZ}
s_add_u32 s{sReg}, s{sReg}, {GT}
s_mov_b32 s{t4}, 42800
s_mov_b32 s{t5}, {(-BN) & 0xffffffff}
v_mov_b32 v{vt+6}, 1
v_mov_b32 v161, 0
v_mov_b32 v163, 0
v_mov_b32 v164, 0x3f80
v_mov_b32 v165, 0
""")
I(f"""
v_lshrrev_b32 v68, 5, v{vLane}
v_bfe_u32 v69, v{vLane}, 2, 2
v_lshl_add_u32 v70, v68, 5, v69
s_mov_b32 s{t0}, {W1RAW}
v_lshl_add_u32 v70, v70, 8, s{t0}
v_bfe_u32 v71, v{vLane}, 4, 1
v_lshl_add_u32 v70, v71, 5, v70
v_and_b32 v71, 3, v{vLane}
v_lshl_add_u32 v70, v71, 3, v70
s_and_b32 s{t0}, s{sW}, 1
s_lshl_b32 s{t0}, s{t0}, 1
v_xor_b32 v71, s{t0}, v69
v_lshl_add_u32 v166, v71, 6, v70
v_xor_b32 v71, 1, v71
v_lshl_add_u32 v167, v71, 6, v70
s_lshr_b32 s{t0}, s{sW}, 1
s_lshl_b32 s{t0}, s{t0}, 5
v_and_b32 v78, 31, v{vLane}
v_add_u32 v78, s{t0}, v78
v_bfe_u32 v71, v{vLane}, 1, 3
v_lshlrev_b32 v72, 2, v68
v_xor_b32 v71, v71, v72
v_lshlrev_b32 v71, 4, v71
v_lshl_add_u32 v79, v78, 7, v71
v_add_u32 v79, {XRAW}, v79
s_waitcnt vmcnt(9)
""")
stamp()
def bucket_rank(d, a, r):
    I(f"v_mul_u32_u24 v{a}, s{t4}, v{d}")
    I(f"v_lshrrev_b32 v{a}, 22, v{a}")
    I(f"v_mad_i32_i24 v{d}, v{a}, s{t5}, v{d}")
    I(f"v_lshlrev_b32 v{a}, 2, v{a}")
    I(f"ds_add_rtn_u32 v{r}, v{a}, v{vt+6} offset:{CNT1}")
for i in range(4): bucket_rank(48+i, 68+i, 73+i)
I(f"s_cmp_lg_u32 s{sW}, {EXTRAW}")
I("s_cbranch_scc1 L_noex1")
setexec(XM)
bucket_rank(64, 72, 77)
I("s_mov_b64 exec, -1")
L("L_noex1")
I(f"""
s_waitcnt vmcnt(4) lgkmcnt(0)
s_add_u32 s{sTag}, s{sTag}, 1
s_mul_i32 s{sTag8}, s{sTag}, 0x9e3779b1
s_and_b32 s{sTag8}, s{sTag8}, 0xff000000
s_barrier
""")
stamp()
I(f"""
s_cmp_lt_u32 s{sW}, 8
s_cbranch_scc1 L_ptask
s_cmp_lg_u32 s{sW}, {SCANW}
s_cbranch_scc1 L_noscan
ds_read_b128 v[80:83], v{vt+5} offset:{CNT1}
s_waitcnt lgkmcnt(0)
v_add_u32 v84, v80, v81
v_add_u32 v85, v84, v82
v_add_u32 v86, v85, v83
v_mov_b32 v87, v86
""")
dpp_scan(87)
I(f"""
v_sub_u32 v88, v87, v86
v_add_u32 v89, v88, v80
v_add_u32 v90, v88, v84
v_add_u32 v91, v88, v85
ds_write_b128 v{vt+5}, v[88:91] offset:{CNT1}
v_lshl_or_b32 v16, v80, 12, v88
v_lshl_or_b32 v18, v81, 12, v89
v_lshl_or_b32 v20, v82, 12, v90
v_lshl_or_b32 v22, v83, 12, v91
v_or_b32 v16, s{sTag8}, v16
v_or_b32 v18, s{sTag8}, v18
v_or_b32 v20, s{sTag8}, v20
v_or_b32 v22, s{sTag8}, v22
v_mov_b32 v17, s{sTag}
v_mov_b32 v19, s{sTag}
v_mov_b32 v21, s{sTag}
v_mov_b32 v23, s{sTag}
s_branch L_p_done
L_noscan:
""")
if DEBUG and int(opts.get("arr", 0)):
    I("s_waitcnt vmcnt(0)")
    I("s_memrealtime s[100:101]")
    I("s_waitcnt lgkmcnt(0)")
    I(f"v_writelane_b32 v{vST}, s100, 20")
I(f"""
s_cmp_lg_u32 s{sW}, 10
s_cbranch_scc1 L_p_done
""")
for i in range(4):
    I(f"v_lshlrev_b32 v{80+2*i}, 16, v{12+i}")
    I(f"v_and_b32 v{81+2*i}, 0xffff0000, v{12+i}")
for i in range(4):
    I(f"v_pk_mul_f32 {P(80+2*i)}, {P(80+2*i)}, {sr(sSC,2)}")
for i in range(4):
    I(f"v_cvt_pk_bf16_f32 v{12+i}, v{80+2*i}, v{81+2*i}")
I(f"""
v_lshrrev_b32 v88, 4, v{vLane}
v_mul_u32_u24 v88, {QROW}, v88
v_and_b32 v89, 15, v{vLane}
v_lshl_add_u32 v88, v89, 4, v88
v_add_u32 v88, {QB + 98*QROW}, v88
ds_write2_b64 v88, v[12:13], v[14:15] offset0:0 offset1:1
v_mov_b32 v90, 0
v_mov_b32 v91, 0
""")
for g_ in range(4):
    setexec(lanemask(range(16*g_, 16*g_+8)))
    I(f"v_mov_b32 v{90 + (g_ >> 1)}, {0x3f800000 if g_ & 1 else 0x3f80}")
I(f"""
s_mov_b64 exec, -1
v_lshlrev_b32 v88, 3, v{vLane}
ds_write_b64 v88, v[90:91] offset:{LUT}
s_branch L_p_done
L_ptask:
v_xor_b32 v{vt+1}, 16, v79
v_xor_b32 v{vt+2}, 32, v79
v_xor_b32 v{vt+3}, 48, v79
""")
xa = [79, vt+1, vt+2, vt+3]
for ks in range(4):
    I(f"ds_read_b128 {vr(112+4*ks,4)}, v{xa[ks]}")
    for jl in range(2):
        for hf in range(2):
            I(f"ds_read_b64_tr_b16 {P(80+16*jl+4*ks+2*hf)}, v{166+jl} offset:{(8*ks+4*hf)*256}")
I(f"""
s_mov_b32 s{t0}, 0x07060302
v_cmp_gt_u32 vcc, {BN}, v78
s_mov_b64 {sr(sE0,2)}, vcc
v_lshrrev_b32 v{vt+1}, 5, v{vLane}
s_and_b32 s{t1}, s{sW}, 1
s_lshl_b32 s{t1}, s{t1}, 3
v_add_u32 v{vt+1}, s{t1}, v{vt+1}
v_and_b32 v{vt+2}, 15, v78
v_xor_b32 v{vt+1}, v{vt+1}, v{vt+2}
v_lshlrev_b32 v{vt+1}, 4, v{vt+1}
v_lshl_add_u32 v{vt+1}, v78, 8, v{vt+1}
v_add_u32 v{vt+1}, {PST}, v{vt+1}
v_xor_b32 v{vt+2}, 32, v{vt+1}
v_xor_b32 v{vt+3}, 64, v{vt+1}
v_xor_b32 v{vt+4}, 0x60, v{vt+1}
""")
for ks in range(4):
    I(f"s_waitcnt lgkmcnt({15 - 5*ks})")
    I(mf16(128, 80+4*ks, 112+4*ks, "0" if ks == 0 else vr(128,16)))
    I(mf16(144, 96+4*ks, 112+4*ks, "0" if ks == 0 else vr(144,16)))
I("s_nop 11")
for i in range(16):
    I(f"v_pk_mul_f32 {P(128+2*i)}, {P(128+2*i)}, {sr(sSC,2)}")
I(f"s_mov_b64 exec, {sr(sE0,2)}")
for rg in range(4):
    for i in range(4*rg, 4*rg+4):
        I(f"v_add_u32 v{128+i}, 0x4000, v{128+i}")
    for i in range(4*rg, 4*rg+4):
        I(f"v_perm_b32 v{128+i}, v{144+i}, v{128+i}, s{t0}")
    I(f"ds_write_b128 v{vt+1+rg}, {vr(128+4*rg,4)}")
I(f"""
s_mov_b64 exec, -1
L_p_done:
s_waitcnt lgkmcnt(0)
""")
if int(opts.get("dly_pq", 0)): I(f"s_sleep {opts['dly_pq']}")
I("s_barrier")
stamp()
I(f"""
v_lshrrev_b32 v80, 4, v0
v_xor_b32 v81, v80, v0
v_and_b32 v81, 15, v81
v_lshlrev_b32 v81, 4, v81
v_lshl_add_u32 v81, v80, 8, v81
v_add_u32 v81, {PST}, v81
ds_read_b128 v[84:87], v81
ds_read_b128 v[88:91], v81 offset:{48*256}
ds_read_b128 v[92:95], v81 offset:{96*256}
""")
for i in range(5):
    I(f"ds_read_b32 v{68+i}, v{68+i} offset:{CNT1}")
I(f"""
s_mul_i32 s{t0}, s{sB}, {BN*256}
s_add_u32 s{t0}, s{t0}, {PT}
s_add_u32 s{sA}, s{pWS}, s{t0}
s_addc_u32 s{sA+1}, s{pWS+1}, 0
s_and_b32 s{sA+1}, s{sA+1}, 0xffff
s_mov_b32 s{sA+2}, {BN*256}
s_mov_b32 s{sA+3}, 0x00020000
s_mul_i32 s{t0}, s2, {RSTRIDE}
s_add_u32 s{t0}, s{t0}, {REC}
s_add_u32 s{sBq}, s{pWS}, s{t0}
s_addc_u32 s{sBq+1}, s{pWS+1}, 0
s_and_b32 s{sBq+1}, s{sBq+1}, 0xffff
s_mov_b32 s{sBq+2}, {(CH*12+15)//16*16}
s_mov_b32 s{sBq+3}, 0x00020000
s_mov_b32 s{t1}, {NTH*16}
s_mov_b32 s{t2}, {2*NTH*16}
s_mov_b32 s{t3}, {3*NTH*16}
s_waitcnt lgkmcnt(7)
buffer_store_dwordx4 v[84:87], v{vt}, {sr(sA,4)}, 0 offen sc1
s_waitcnt lgkmcnt(6)
buffer_store_dwordx4 v[88:91], v{vt}, {sr(sA,4)}, s{t1} offen sc1
s_waitcnt lgkmcnt(5)
buffer_store_dwordx4 v[92:95], v{vt}, {sr(sA,4)}, s{t2} offen sc1
s_waitcnt lgkmcnt(0)
""")
for i in range(5):
    I(f"v_add_u32 v{68+i}, v{68+i}, v{73+i}")
    I(f"v_mul_u32_u24 v{68+i}, 12, v{68+i}")
    I(f"v_add_u32 v{68+i}, {RST}, v{68+i}")
I("s_waitcnt vmcnt(4)")
stamp()
for i in range(4):
    I(f"v_lshl_or_b32 v{48+i}, v{52+i}, 8, v{48+i}")
    I(f"ds_write2_b32 v{68+i}, v{56+2*i}, v{57+2*i} offset0:0 offset1:1")
    I(f"ds_write_b32 v{68+i}, v{48+i} offset:8")
I(f"s_cmp_lg_u32 s{sW}, {EXTRAW}")
I("s_cbranch_scc1 L_noex2")
setexec(XM)
I(f"""
v_lshl_or_b32 v64, v65, 8, v64
ds_write2_b32 v72, v66, v67 offset0:0 offset1:1
ds_write_b32 v72, v64 offset:8
s_mov_b64 exec, -1
L_noex2:
s_waitcnt lgkmcnt(0)
s_barrier
""")
stamp()
for i in range(4):
    I(f"ds_read_b128 {vr(48+4*i,4)}, v{vt} offset:{RST + i*NTH*16}")
for i in range(3):
    I(f"s_waitcnt lgkmcnt({3-i})")
    I(f"buffer_store_dwordx4 {vr(48+4*i,4)}, v{vt}, {sr(sBq,4)}, {['0', f's{t1}', f's{t2}'][i]} offen sc1")
I(f"""
s_waitcnt lgkmcnt(0)
s_cmp_lg_u32 s{sW}, 0
s_cbranch_scc1 L_no4
buffer_store_dwordx4 v[60:63], v{vt}, {sr(sBq,4)}, s{t3} offen sc1
L_no4:
""")
I(f"""
s_cmp_ge_u32 s{sW}, 8
s_cbranch_scc1 L_noq
""")
for ks in range(4):
    for jl in range(2):
        for hf in range(2):
            I(f"ds_read_b64_tr_b16 {P(80+16*jl+4*ks+2*hf)}, v{166+jl} offset:{16384 + (8*ks+4*hf)*256}")
I(mf8(128, 160, 164, "0"))
I(mf8(144, 162, 164, "0"))
I(f"""
v_lshrrev_b32 v{vt+1}, 5, v{vLane}
s_and_b32 s{t1}, s{sW}, 1
s_lshl_b32 s{t1}, s{t1}, 7
s_add_u32 s{t1}, s{t1}, {QB}
v_lshl_add_u32 v{vt+1}, v{vt+1}, 3, s{t1}
v_mul_u32_u24 v{vt+2}, {QROW}, v78
v_add_u32 v{vt+1}, v{vt+1}, v{vt+2}
""")
for ks in range(4):
    I(f"s_waitcnt lgkmcnt({12 - 4*ks})")
    I(mf16(128, 80+4*ks, 112+4*ks, vr(128,16)))
    I(mf16(144, 96+4*ks, 112+4*ks, vr(144,16)))
I("s_nop 11")
for i in range(16):
    I(f"v_pk_mul_f32 {P(128+2*i)}, {P(128+2*i)}, {sr(sSC,2)}")
for i in range(16):
    I(f"v_cvt_pk_bf16_f32 v{128+i}, v{128+2*i}, v{129+2*i}")
I(f"s_mov_b64 exec, {sr(sE0,2)}")
for jl in range(2):
    for rg in range(4):
        I(f"ds_write_b64 v{vt+1}, {P(128+8*jl+2*rg)} offset:{64*jl + 16*rg}")
I(f"""
s_mov_b64 exec, -1
L_noq:
s_cmp_lg_u32 s{sW}, 11
s_cbranch_scc1 L_now2
s_cmp_ge_u32 s2, 16
s_cbranch_scc1 L_now2
s_lshl_b32 s{t0}, s2, 10
s_add_u32 s{t0}, s{t0}, {W2I}
v_lshl_or_b32 v{vW2S}, v{vW2S+1}, 16, v{vW2S}
v_lshl_or_b32 v{vW2S+1}, v{vW2S+3}, 16, v{vW2S+2}
v_lshl_or_b32 v{vW2S+2}, v{vW2S+5}, 16, v{vW2S+4}
v_lshl_or_b32 v{vW2S+3}, v{vW2S+7}, 16, v{vW2S+6}
buffer_store_dwordx4 {vr(vW2S,4)}, v{vt+5}, {sr(sWS,4)}, s{t0} offen sc1
L_now2:
""")
I(f"""
v_and_b32 v72, 31, v{vLane}
v_lshlrev_b32 v{vL4}, 2, v72
v_mov_b32 v{vL4+1}, v{vL4}
v_add_u32 v{vSC}, {SB}, v{vL4}
v_bfe_u32 v73, v{vLane}, 4, 1
v_lshlrev_b32 v73, 5, v73
v_and_b32 v74, 3, v{vLane}
v_lshl_add_u32 v73, v74, 3, v73
v_add_u32 v{vQC}, {QB}, v73
v_bfe_u32 v75, v{vLane}, 2, 2
v_add_u32 v76, 98, v75
v_mul_u32_u24 v76, {QROW}, v76
v_add_u32 v{vQ}, v76, v{vQC}
""")
I(f"""
v_bfe_u32 v72, v{vLane}, 3, 2
v_bfe_u32 v73, v{vLane}, 1, 1
v_lshl_add_u32 v72, v72, 1, v73
v_lshlrev_b32 v{vAC}, 3, v72
""")
def ptr_consts(base):
    I(f"""
    v_lshrrev_b32 v72, 5, v{vLane}
    v_lshl_add_u32 v{vPH}, v72, 3, {base}
    v_bfe_u32 v73, v{vLane}, 2, 1
    v_and_b32 v74, 1, v{vLane}
    v_lshl_add_u32 v73, v73, 1, v74
    v_lshl_add_u32 v73, v72, 2, v73
    v_lshl_add_u32 v73, v73, 2, {base}
    v_add_u32 v{vPG}, 16, v73
    v_bfe_u32 v75, v{vLane}, 2, 2
    v_lshl_add_u32 v74, v75, 2, {base}
    v_add_u32 v{vPR}, 50, v74
    """)
ptr_consts(f"s{sReg}")
I("""
s_waitcnt vmcnt(0) lgkmcnt(0)
s_barrier
""")
stamp()
I(f"""
s_cmp_lg_u32 s{sW}, {SCANW}
s_cbranch_scc1 L_nopub
v_lshlrev_b32 v72, 5, v{vLane}
s_lshl_b32 s{t0}, s2, 11
s_add_u32 s{t0}, s{t0}, {GRAN}
buffer_store_dwordx4 v[16:19], v72, {sr(sWS,4)}, s{t0} offen sc0 sc1
buffer_store_dwordx4 v[20:23], v72, {sr(sWS,4)}, s{t0} offen offset:16 sc0 sc1
L_nopub:
""")
area_init(64)
s_zero(64)
I("""
s_waitcnt lgkmcnt(0)
s_barrier
""")
vDs = 124
vRA = 130
def load_desc():
    I(f"""
    v_lshrrev_b32 v133, 3, v{vLane}
    v_lshlrev_b32 v134, 11, v133
    s_lshl_b32 s{t0}, s{sW}, 14
    s_lshl_b32 s{t1}, s{sB}, 3
    s_add_u32 s{t0}, s{t0}, s{t1}
    s_add_u32 s{t0}, s{t0}, {GRAN}
    s_add_u32 s{t1}, s{t0}, {12*16384}
    s_add_u32 s{t2}, s{t0}, {24*16384}
    s_cmp_ge_u32 s{sW}, 8
    s_cselect_b32 s{t2}, s{t0}, s{t2}
    """)
def decode_desc():
    I(f"""
    v_and_b32 v135, 7, v{vLane}
    v_mul_u32_u24 v136, 12, v135
    s_mov_b32 s{t0}, {RSTRIDE}
    v_mad_u32_u24 v136, v133, s{t0}, v136
    s_mul_i32 s{t3}, s{sW}, {8*RSTRIDE}
    s_add_u32 s{t3}, s{t3}, {REC}
    s_cmp_ge_u32 s{sW}, 8
    s_cselect_b32 s{t0}, 0, -1
    v_and_b32 v{vDs+4}, s{t0}, v{vDs+4}
    """)
    for jj in range(3):
        I(f"v_and_b32 v{vRA+jj}, 0xfff, v{vDs+2*jj}")
        I(f"v_mad_u32_u24 v{vRA+jj}, v{vRA+jj}, 12, v136")
        if jj: I(f"v_add_u32 v{vRA+jj}, {jj*96*RSTRIDE}, v{vRA+jj}")
        I(f"v_bfe_u32 v{vDs+2*jj}, v{vDs+2*jj}, 12, 12")
        I(f"v_sub_u32 v{vDs+2*jj}, v{vDs+2*jj}, v135")
load_desc()
I(f"s_mov_b32 s{sK}, 0")
for jj in range(3):
    I(f"s_mov_b64 {sr(sM+2*jj,2)}, -1")
I("s_branch L_poll1")
L("L_poll")
if SLEEP: I(f"s_sleep {SLEEP}")
L("L_poll1")
for jj in range(3):
    I(f"s_mov_b64 exec, {sr(sM+2*jj,2)}")
    I(f"s_cbranch_execz L_pk{jj}")
    I(f"buffer_load_dwordx2 {P(vDs+2*jj)}, v134, {sr(sWS,4)}, s{t0+jj} offen sc1")
    L(f"L_pk{jj}")
I(f"""
s_mov_b64 exec, -1
s_add_u32 s{sK}, s{sK}, 1
s_cmp_gt_u32 s{sK}, 0x40000
s_cbranch_scc1 L_exit
s_waitcnt vmcnt(0)
""")
for jj in range(3):
    I(f"""
    v_xor_b32 v135, s{sTag8}, v{vDs+2*jj}
    v_xor_b32 v136, s{sTag}, v{vDs+2*jj+1}
    v_lshrrev_b32 v135, 24, v135
    v_or_b32 v135, v135, v136
    v_cmp_ne_u32 {sr(sM+2*jj,2)}, 0, v135
    """)
I(f"""
s_or_b64 {sr(sE0,2)}, {sr(sM,2)}, {sr(sM+2,2)}
s_or_b64 {sr(sE0,2)}, {sr(sE0,2)}, {sr(sM+4,2)}
s_cbranch_scc1 L_poll
""")
stamp()
decode_desc()
NR = 5
order = [(jj, rd) for rd in range(NR) for jj in range(3)]
slotreg = {s: 48 + 4*n_ for n_, s in enumerate(order)}
slotmask = {s: sM + 2*n_ for n_, s in enumerate(order)}
vTA = {s: 108 + n_ for n_, s in enumerate(order)}
for (jj, rd) in order:
    I(f"v_cmp_lt_i32 {sr(slotmask[(jj,rd)],2)}, {8*rd}, v{vDs+2*jj}")
I(f"""
v_max3_i32 v137, v{vDs}, v{vDs+2}, v{vDs+4}
v_cmp_lt_i32 vcc, {8*NR}, v137
s_or_b64 {sr(sE1,2)}, {sr(slotmask[(0,3)],2)}, {sr(slotmask[(1,3)],2)}
s_or_b64 {sr(sE1,2)}, {sr(sE1,2)}, {sr(slotmask[(2,3)],2)}
""")
lab = [0]
def slots(body, always_mask=True):
    lab[0] += 1; grp = lab[0]
    for s in order:
        jj, rd = s
        if s == (0, 3):
            I(f"s_cmp_eq_u64 {sr(sE1,2)}, 0")
            I(f"s_cbranch_scc1 L_sg{grp}")
        skip = rd >= 2 or jj == 2
        if skip or always_mask:
            I(f"s_mov_b64 exec, {sr(slotmask[s],2)}")
        else:
            I("s_mov_b64 exec, -1") if False else None
        if skip:
            lab[0] += 1; sk = lab[0]
            I(f"s_cbranch_execz L_sk{sk}")
        body(s)
        if skip: L(f"L_sk{sk}")
    L(f"L_sg{grp}")
    I("s_mov_b64 exec, -1")
slots(lambda s: I(f"buffer_load_dwordx3 {vr(slotreg[s],3)}, v{vRA+s[0]}, {sr(sWS,4)}, s{t3} offen offset:{96*s[1]} sc1"))
if PREF:
    I(f"""
    s_lshr_b32 s{t0}, s2, 3
    s_mul_i32 s{t0}, s{t0}, {PREF}
    v_add_u32 v136, s{t0}, v135
    v_lshlrev_b32 v136, 7, v136
    s_mov_b32 s{t0}, {32*BN*256}
    v_mad_u32_u24 v136, v133, s{t0}, v136
    s_mul_i32 s{t0}, s{sW}, {BN*256}
    s_add_u32 s{t1}, s{t0}, {12*BN*256}
    s_add_u32 s{t2}, s{t0}, {24*BN*256}
    s_cmp_ge_u32 s{sW}, 8
    s_cselect_b32 s{t2}, 0x7f000000, s{t2}
    """)
    setexec(lanemask([l for l in range(64) if (l & 7) < PREF]))
    for jj in range(3):
        I(f"buffer_load_dword v{vW2S+jj}, v136, {sr(sP,4)}, s{t0+jj} offen sc1")
    I("s_mov_b64 exec, -1")
I(f"""
s_cbranch_vccz L_nobig
v_mov_b32 v137, 0
ds_write_b32 v137, v{vt+6} offset:{FLAG}
L_nobig:
v_mov_b32 v138, 0
s_movk_i32 s{t0}, {NSZ//4}
v_mov_b32 v139, {AREA}
s_waitcnt vmcnt({3 if PREF else 0})
""")
stamp()
def rank_body(s):
    r = slotreg[s]
    I(f"v_lshlrev_b32_sdwa v{vTA[s]}, 2, v{r+2} {SDWAB}")
    I(f"v_and_b32 v{r+2}, 0xffffff00, v{r+2}")
    I(f"ds_add_rtn_u32 v{r+3}, v{vTA[s]}, v{vt+6} offset:{CNT}")
    I(f"v_mad_u32_u24 v{vTA[s]}, v{vTA[s]}, s{t0}, v139")
slots(rank_body)
I("s_waitcnt lgkmcnt(0)")
def scat_body(s):
    r = slotreg[s]
    lab[0] += 1; fx = lab[0]
    fixups.append((fx, s))
    I(f"v_cmp_le_u32 vcc, {CAP}, v{r+3}")
    I(f"s_cbranch_vccnz L_fx{fx}")
    L(f"L_fr{fx}")
    I(f"v_lshl_add_u32 v140, v{r+3}, 2, v{vTA[s]}")
    I(f"v_lshl_add_u32 v{vTA[s]}, v{r+3}, 3, v{vTA[s]}")
    I(f"ds_write_b32 v140, v{r+2}")
    I(f"ds_write_b64 v{vTA[s]}, {P(r)} offset:{EOFF}")
fixups = []
slots(scat_body)
I("""
s_waitcnt lgkmcnt(0)
s_barrier
""")
stamp()
I(f"""
s_or_b32 s{t0}, s2, s{sW}
s_cmp_lg_u32 s{t0}, 0
s_cbranch_scc1 L_nogen
v_mov_b32 v137, 0
v_mov_b32 v138, s{sTag}
s_mov_b64 exec, 1
buffer_store_dword v138, v137, {sr(sWS,4)}, 0 offen sc0 sc1
s_mov_b64 exec, -1
L_nogen:
""")
I(f"""
v_lshlrev_b32 v136, 3, v{vLane}
v_mov_b32 v151, 0
ds_read_b64 v[138:139], v136 offset:{CNT}
ds_read_b32 v137, v151 offset:{FLAG}
""")
I(f"""
s_waitcnt lgkmcnt(0)
v_add_u32 v140, 7, v138
v_add_u32 v141, 7, v139
v_lshrrev_b32 v140, 3, v140
v_lshrrev_b32 v141, 3, v141
v_add_u32 v142, v140, v141
v_max_u32 v143, v140, v141
v_mov_b32 v144, v142
v_readfirstlane_b32 s{sBad}, v137
v_cmp_lt_u32 vcc, {CAP}, v138
v_cmp_lt_u32 {sr(sE0,2)}, {CAP}, v139
""")
dpp_scan(144, 143)
I(f"""
s_bcnt1_i32_b64 s{t1}, vcc
s_bcnt1_i32_b64 s{t2}, {sr(sE0,2)}
s_add_u32 s{t1}, s{t1}, s{t2}
s_cmp_gt_u32 s{t1}, 1
s_cselect_b32 s{sBad}, 1, s{sBad}
""")
I(f"""
s_nop 0
v_readlane_b32 s{sG}, v144, 63
v_readlane_b32 s{sGmax}, v143, 63
v_sub_u32 v144, v144, v142
v_add_u32 v145, v144, v140
s_add_u32 s{t0}, s{sG}, 3
s_lshr_b32 s{t0}, s{t0}, 2
s_cmp_gt_u32 s{t0}, {NW*TMAX}
s_cselect_b32 s{sBad}, 1, s{sBad}
s_cmp_gt_u32 s{sGmax}, {TMAX}
s_cselect_b32 s{sBad}, 1, s{sBad}
""")
if FORCE_SLOW == 1: I(f"s_mov_b32 s{sBad}, 1")
I(f"""
s_cmp_lg_u32 s{sBad}, 0
s_cbranch_scc1 L_slow
s_mul_i32 s{sT}, s{t0}, 171
s_lshr_b32 s{sT}, s{sT}, 11
s_mul_i32 s{t1}, s{sT}, {NW}
s_sub_u32 s{sRem}, s{t0}, s{t1}
s_cmp_gt_u32 s{sGmax}, s{sT}
s_cselect_b32 s{sT}, s{sGmax}, s{sT}
s_cselect_b32 s{sRem}, 0, s{sRem}
s_max_u32 s{sT}, s{sT}, 1
s_add_u32 s{t1}, s{sT}, 1
s_lshl_b32 s{t2}, s{sRem}, 2
s_mul_i32 s{sGam}, s{t2}, s{t1}
v_cvt_f32_u32 v146, s{sT}
v_cvt_f32_u32 v147, s{t1}
v_rcp_f32 v146, v146
v_rcp_f32 v147, v147
v_mov_b32 v148, s{sT}
v_mov_b32 v149, s{t1}
v_mov_b32 v150, s{t2}
s_cmp_lt_u32 s{sW}, s{sRem}
s_cselect_b32 s{sTw}, s{t1}, s{sT}
s_cselect_b32 s{t0}, 0, s{t2}
s_mul_i32 s{t1}, s{sTw}, s{sW}
s_lshl_b32 s{t1}, s{t1}, 2
s_add_u32 s{t1}, s{t1}, s{t0}
s_sub_i32 s{t1}, s{sG}, s{t1}
s_max_i32 s{t1}, s{t1}, 0
s_min_u32 s{sTw}, s{sTw}, s{t1}
v_lshlrev_b32 v153, 1, v{vLane}
s_mov_b32 s{sK}, s{sW}
s_cmp_lt_u32 s{sW}, 6
s_cbranch_scc1 L_build
s_sub_u32 s{sK}, s{sW}, 6
v_mov_b32 v138, v139
v_mov_b32 v140, v141
v_mov_b32 v144, v145
v_add_u32 v153, 1, v153
L_build:
v_cmp_lt_u32 vcc, s{sK}, v140
s_and_b64 exec, exec, vcc
s_cbranch_execz L_bskip
v_add_u32 v154, s{sK}, v144
v_cmp_gt_u32 vcc, s{sGam}, v154
v_mul_u32_u24 v165, {QROW}, v153
s_lshl_b32 s{t0}, s{sK}, 3
v_cndmask_b32 v156, v150, v151, vcc
v_cndmask_b32 v157, v148, v149, vcc
v_cndmask_b32 v158, v146, v147, vcc
v_sub_u32 v154, v154, v156
v_cvt_f32_u32 v159, v154
v_add_f32 v159, 0.5, v159
v_mul_f32 v159, v159, v158
v_cvt_u32_f32 v159, v159
v_subrev_u32 v155, s{t0}, v138
v_mul_u32_u24 v160, v159, v157
v_sub_u32 v160, v154, v160
v_and_b32 v161, 3, v159
v_lshrrev_b32 v162, 2, v159
v_mad_u32_u24 v163, v161, v157, v160
v_cmp_gt_u32 vcc, s{sK}, v163
v_mad_u32_u24 v164, v162, {TMAX}, v160
v_lshlrev_b32 v164, 6, v164
v_lshl_add_u32 v164, v161, 2, v164
v_add_u32 v164, {GT}, v164
v_add_u32 v162, {ZROW}, v162
v_cndmask_b32 v162, v153, v162, vcc
v_mul_u32_u24 v162, {SROW}, v162
v_lshl_or_b32 v165, v165, 16, v162
v_min_u32 v155, 8, v155
v_lshlrev_b32 v161, 4, v161
v_sub_u32 v161, v161, v155
s_movk_i32 s{t1}, {LUT + 64}
v_lshl_add_u32 v161, v161, 3, s{t1}
ds_write2_b32 v164, v161, v165 offset0:8 offset1:12
s_cmp_ge_u32 s{sK}, 7
s_cselect_b32 s{t1}, 0, {NSZ}
s_cselect_b32 s{t2}, {OVF - 7*32 - AREA}, 0
s_cselect_b32 s{t3}, 0, {EOFF}
s_add_u32 s{t2}, s{t2}, {AREA}
s_lshl_b32 s{t0}, s{sK}, 5
s_add_u32 s{t2}, s{t2}, s{t0}
s_add_u32 s{t3}, s{t3}, s{t0}
v_mul_u32_u24 v166, s{t1}, v153
v_add_u32 v166, s{t2}, v166
v_add_u32 v167, s{t3}, v166
ds_write2_b32 v164, v166, v167 offset0:0 offset1:4
v_lshlrev_b32 v167, 2, v153
s_and_b64 exec, exec, vcc
ds_write_b32 v167, v162 offset:{CARRY}
L_bskip:
s_mov_b64 exec, -1
s_add_u32 s{sK}, s{sK}, 6
s_cmp_lt_u32 s{sK}, s{sGmax}
s_cbranch_scc1 L_build
s_waitcnt lgkmcnt(0)
s_barrier
""")
stamp()

def chain(T):
    l = [f"v_pk_add_f32 {P(vD)}, {P(vE)}, {sr(sONE,2)}",
         f"v_pk_fma_f32 {P(vN)}, {P(T)}, {P(vE+2)}, {P(T)}",
         f"v_pk_fma_f32 {P(vN)}, {P(T+2)}, {P(vD)}, {P(vN)}",
         f"v_pk_fma_f32 {P(vD)}, {P(vD)}, {P(vE+2)}, {P(vD)}"]
    for i in range(2, 8):
        l += [f"v_pk_fma_f32 {P(vN)}, {P(vN)}, {P(vE+2*i)}, {P(vN)}",
              f"v_pk_fma_f32 {P(vN)}, {P(T+2*i)}, {P(vD)}, {P(vN)}",
              f"v_pk_fma_f32 {P(vD)}, {P(vD)}, {P(vE+2*i)}, {P(vD)}"]
    return l
assert EOFF - 7*32 == 0
def keys(k=None):
    k = vKG if k is None else k
    return [f"ds_read_b128 {vr(vIX+8*p_+4*i,4)}, v{k+p_} offset:{16*i}" for p_ in range(2) for i in range(2)]
def ixadd(): return [f"v_lshl_add_u64 {P(vIX+2*i)}, {P(vIX+2*i)}, 0, {P(vL4)}" for i in range(8)]
def gload(u): return [f"buffer_load_dword v{vLb[u]+i}, v{vIX+8*(i&1)+(i>>1)}, {sr(sP,4)}, 0 offen offset:{128*u} sc1" for i in range(16)]
def shifts(u): return [f"v_lshlrev_b64 {P(vTL+2*i)}, 16, {P(vLb[u]+2*i)}" for i in range(8)]
SAUPD = [f"v_add_u32_sdwa v{vSA}, v{vKG+2}, v{vSC} {SDWA0}", f"v_add_u32_sdwa v{vSA+1}, v{vKG+3}, v{vSC} {SDWA0}"]
QUPD = f"v_add_u32_dpp v{vQ}, v{vGQ}, v{vQC} quad_perm:[0,1,2,3] row_mask:0xc bank_mask:0xf"
AUPD = f"v_add_u32 v{vAG}, v{vAG}, v{vAC}"

I(f"""
v_mov_b32 v{vMX}, 0
s_and_b32 s{t0}, s{sW}, 3
s_lshl_b32 s{t0}, s{t0}, 2
v_mov_b32 v{vSO}, s{t0}
v_mov_b32 v{vt+7}, s{t0}
s_cmp_eq_u32 s{sTw}, 0
s_cbranch_scc1 L_loop_done
ds_read_b64 {P(vD)}, v{vPH}
ds_read2_b64 {vr(vKG,4)}, v{vPH} offset0:{GSZ//8} offset1:6
ds_read_u16 v{vGQ}, v{vPR}
ds_read_b32 v{vAG}, v{vPG}
s_waitcnt lgkmcnt(3)
""")
for l in keys(vD): I(l)
I("s_waitcnt lgkmcnt(0)")
for l in ixadd(): I(l)
if STAG:
    I(f"""
    s_cmp_lt_u32 s{sW}, 8
    s_cbranch_scc1 L_go
    L_hold:
    ds_read_b32 v{vN}, v{vSO} offset:{PROG}
    s_waitcnt lgkmcnt(0)
    v_cmp_eq_u32 vcc, 0, v{vN}
    s_cbranch_vccz L_go
    s_sleep 2
    s_branch L_hold
    L_go:
    """)
for l in gload(0) + gload(1) + keys(): I(l)
I(AUPD)
I(f"ds_read_b64 {P(vA5)}, v{vAG}")
I(QUPD)
I(f"""
ds_read_b64_tr_b16 {P(vB5[0])}, v{vQ}
ds_read_b64_tr_b16 {P(vB5[1])}, v{vQ} offset:64
s_waitcnt lgkmcnt(3)
""")
for l in ixadd(): I(l)
I("s_waitcnt vmcnt(16)")
stamp()
for l in shifts(0): I(l)
I("s_waitcnt lgkmcnt(0)")
I("s_nop 0")
I(mf8(vTL, vA5, vB5[0], vr(vTL,16)))
I(f"s_mov_b32 s{sK}, s{sTw}")
if PRIO:
    I("s_setprio 3")
    I(f"s_mov_b32 s{t5}, {sum(1 << (x // 2) for x in PTH if x % 2 == 0)}")
    I(f"s_mov_b32 s{t4}, {sum(1 << ((x + 1) // 2) for x in PTH if x % 2 == 1)}")
if STAG:
    I(f"""
    s_sub_u32 s{t0}, s{sTw}, {STAG}
    s_lshl_b32 s{t0}, 1, s{t0}
    s_cmp_lt_u32 s{sW}, 4
    s_cselect_b32 s{t0}, s{t0}, 0
    s_or_b32 s{t4 if STAG2 else t5}, s{t4 if STAG2 else t5}, s{t0}
    """)
I("s_nop 15")

body = []
def lds(text, tag=None): body.append(("lds", text, tag))
def need(tag): body.append(("need", tag))
def em(x):
    if isinstance(x, list): body.extend(x)
    else: body.append(x)
def rds(j):
    lds(f"ds_read_b32 v{vSO}, v{vSA} offset:{128*j}")
    lds(f"ds_read_b32 v{vSO+1}, v{vSA+1} offset:{128*j}", f"so{j}")
for j in range(4):
    T = vTH if j & 1 else vTL
    j2 = (j + 2) & 3
    ex = [f"v_exp_f32 v{vE+i}, v{T+i}" for i in range(16)]
    ch = chain(T)
    g = gload(j >> 1)
    if PRIO and j in (0, 2) and (any(x % 2 == j // 2 for x in PTH) or (STAG and j == 2*STAG2)):
        em([f"s_bitcmp1_b32 s{t5 if j == 0 else t4}, s{sK}", f"s_cbranch_scc1 L_prio{j}", f"L_prio{j}_ret:"])
    if j & 1: em(g[11:16])
    if j != 0: rds(j)
    lds(f"ds_read_b64_tr_b16 {P(vB5[j & 1])}, v{vQ} offset:{64*j2}", f"b5_{j2}")
    if j == 1:
        lds(f"ds_read2_b64 {vr(vKG,4)}, v{vPH} offset0:{2*GSZ//8} offset1:{GSZ//8+6}")
        lds(f"ds_read_b32 v{vAG}, v{vPG} offset:{GSZ}")
        lds(f"ds_read_u16 v{vGQ}, v{vPR} offset:{GSZ}", "gq")
    if j == 3:
        kk = keys()
        for i in range(4): lds(kk[i], "keys" if i == 3 else None)
    if j & 1 == 0:
        need(f"b5_{j+1}")
        em(mf8(vTH, vA5, vB5[1], vr(vLb[j >> 1],16)))
        if j == 0: em(SAUPD)
        em(ex[0:8])
        em(g[0:6])
        if j == 0: rds(0)
        if j == 2: lds(f"ds_read_b64 {P(vA5)}, v{vAG}", "a5")
        em(ex[8:16])
        em(ch[0:4])
        em(g[6:11])
        em(ch[4:])
    else:
        jn = (j + 1) & 3; un = jn >> 1
        em("s_waitcnt vmcnt(16)")
        em(shifts(un))
        em(ex[0:2])
        need("a5" if j == 3 else f"b5_{jn}")
        em(mf8(vTL, vA5, vB5[0], vr(vTL,16)))
        em(ex[2:])
        if j == 3:
            need("keys")
            em(ixadd())
            em([f"v_lshl_add_u64 {P(vPH)}, {P(vPH)}, 0, {sr(sADV,2)}", f"v_add_u32 v{vPR}, {GSZ}, v{vPR}"])
        else:
            need("gq")
            em([QUPD, AUPD])
        em(ch)
    em([f"v_rcp_f32 v{vE}, v{vD}", f"v_rcp_f32 v{vE+1}, v{vD+1}", f"v_max3_f32 v{vMX}, v{vD}, v{vD+1}, v{vMX}"])
    if j & 1 == 0: need(f"so{j}")
    em(f"v_pk_fma_f32 {P(vSO)}, {P(vN)}, {P(vE)}, {P(vSO)}")
    if j == 3: em([f"s_sub_u32 s{sK}, s{sK}, 1", f"s_cmp_lg_u32 s{sK}, 0"])
    lds(f"ds_write_b32 v{vSA}, v{vSO} offset:{128*j}")
    lds(f"ds_write_b32 v{vSA+1}, v{vSO+1} offset:{128*j}")
seq2 = body + body + body
res = []
for pos in range(2*len(body), 3*len(body)):
    x = seq2[pos]
    if isinstance(x, tuple) and x[0] == "need":
        n = 0; p = pos - 1
        while not (isinstance(seq2[p], tuple) and seq2[p][0] == "lds" and seq2[p][2] == x[1]):
            if isinstance(seq2[p], tuple) and seq2[p][0] == "lds": n += 1
            p -= 1
        covered = False
        for q in range(p + 1, pos):
            y = seq2[q]
            if isinstance(y, tuple) and y[0] == "need":
                pp = q - 1
                while not (isinstance(seq2[pp], tuple) and seq2[pp][0] == "lds" and seq2[pp][2] == y[1]): pp -= 1
                if pp >= p: covered = True
        if not covered: res.append(f"s_waitcnt lgkmcnt({min(n,15)})")
    elif isinstance(x, tuple): res.append(x[1])
    else: res.append(x)
A(".p2align 6")
L("L_loop")
if DEBUG and int(opts.get("lstamp", 0)):
    I(f"""
    {'s_memtime' if DEBUG == 2 else 's_memrealtime'} s[100:101]
    s_sub_u32 s99, 40, s{sK}
    s_mov_b32 m0, s99
    s_waitcnt lgkmcnt(0)
    v_writelane_b32 v{vST}, s100, m0
    """)
for l in res: I(l)
I("s_cbranch_scc1 L_loop")
L("L_loop_done")
if STAG: I(f"ds_write_b32 v{vt+7}, v{vt+6} offset:{PROG}")
stamp()
L("L_epi")
I(f"""
s_setprio 0
v_cmp_nge_f32 vcc, {f2u(2.0**100)}, v{vMX}
s_cmp_ge_u32 s{sW}, 7
s_cbranch_scc1 L_epi_wait
v_lshlrev_b32 v40, 4, v{vLane}
""")
vW2 = 80
for q in range(4):
    I(f"s_mov_b32 s{t0}, {W2I + 4096*q}")
    for i_ in range(4):
        I(f"buffer_load_dwordx4 {vr(vW2+16*q+4*i_,4)}, v40, {sr(sWS,4)}, s{t0} offen offset:{1024*i_} sc1")
I(f"""
s_lshl_b32 s{t0}, s{sW}, 4
v_and_b32 v42, 15, v{vLane}
v_add_u32 v43, s{t0}, v42
v_min_u32 v43, {ZROW}, v43
v_lshlrev_b32 v44, 2, v43
v_bfe_u32 v45, v{vLane}, 4, 1
v_lshrrev_b32 v46, 5, v{vLane}
ds_read_b32 v44, v44 offset:{CARRY}
v_lshrrev_b32 v47, 4, v{vLane}
v_lshl_add_u32 v144, v47, 2, s{t0}
v_lshlrev_b32 v145, 2, v144
ds_read_b128 v[148:151], v145 offset:{CNT}
v_lshlrev_b32 v146, 8, v45
v_lshl_add_u32 v146, v46, 7, v146
v_add_u32 v146, {SB}, v146
v_mul_u32_u24 v43, {SROW}, v43
v_add_u32 v43, v43, v146
v_lshlrev_b32 v144, 7, v144
v_lshl_add_u32 v144, v42, 3, v144
v_and_b32 v155, 0xffff0000, v{vB2+1}
v_lshlrev_b32 v154, 16, v{vB2+1}
v_and_b32 v153, 0xffff0000, v{vB2}
v_lshlrev_b32 v152, 16, v{vB2}
s_mov_b32 s{t0}, {f2u(-LN2)}
s_mov_b32 s{t1}, {f2u(-LOG2E)}
s_waitcnt lgkmcnt(0)
v_add_u32 v44, v44, v146
""")
vO = 12
for r in range(4):
    I(f"v_cvt_f32_u32 v{148+r}, v{148+r}")
    I(f"v_mul_f32 v{152+r}, s{t1}, v{152+r}")
for c in range(4):
    for r in range(4):
        I(f"v_mul_f32 v{vO+4*c+r}, v{148+r}, v{152+c}")
I(f"""
L_epi_wait:
s_waitcnt vmcnt(0) lgkmcnt(0)
s_barrier
s_cmp_ge_u32 s{sW}, 7
s_cbranch_scc1 L_epi_end
""")
stamp()
cb = [148, 156, 32, 148]
ep = []
def elds(t, tag=None): ep.append(("lds", t, tag))
for ks in range(4):
    for i_ in range(2):
        elds(f"ds_read_b128 {vr(48+8*ks+4*i_,4)}, v43 offset:{32*ks+16*i_}")
    if ks < 3:
        for i_ in range(2):
            elds(f"ds_read_b128 {vr(cb[ks]+4*i_,4)}, v44 offset:{32*ks+16*i_}", f"s{ks}" if i_ else None)
for ks in range(4):
    ep.append(("need", f"s{ks}"))
    for i_ in range(4):
        r = 48 + 8*ks + 2*i_
        ep.append(f"v_pk_add_f32 {P(r)}, {P(r)}, {P(cb[ks]+2*i_)}")
    if ks == 0:
        for i_ in range(2):
            elds(f"ds_read_b128 {vr(cb[3]+4*i_,4)}, v44 offset:{96+16*i_}", "s3" if i_ else None)
    for i_ in range(4):
        r = 48 + 8*ks + 2*i_
        ep.append(f"v_cvt_pk_bf16_f32 v{48+8*ks+i_}, v{r}, v{r+1}")
    ep.append("s_nop 1")
    for c in range(4):
        ep.append(f"v_mfma_f32_16x16x32_bf16 {vr(vO+4*c,4)}, {vr(48+8*ks,4)}, {vr(vW2+16*c+4*ks,4)}, {vr(vO+4*c,4)}")
for pos, x in enumerate(ep):
    if isinstance(x, tuple) and x[0] == "need":
        n = 0; p = pos - 1
        while not (isinstance(ep[p], tuple) and ep[p][0] == "lds" and ep[p][2] == x[1]):
            if isinstance(ep[p], tuple) and ep[p][0] == "lds": n += 1
            p -= 1
        I(f"s_waitcnt lgkmcnt({min(n,15)})")
    elif isinstance(x, tuple): I(x[1])
    else: I(x)
I(f"s_mov_b32 s{t1}, s{t0}")
I("s_nop 6")
for i_ in range(8):
    I(f"v_pk_mul_f32 {P(vO+2*i_)}, {P(vO+2*i_)}, {sr(t0,2)}")
for r in range(4):
    I(f"v_cvt_pk_bf16_f32 v{64+2*r}, v{vO+r}, v{vO+4+r}")
    I(f"v_cvt_pk_bf16_f32 v{65+2*r}, v{vO+8+r}, v{vO+12+r}")
    I(f"buffer_store_dwordx2 {P(64+2*r)}, v144, {sr(sOUT,4)}, 0 offen offset:{128*r} " + opts.get("ost", "").replace("+", " "))
I(f"""
v_add_f32 v72, v{vO}, v{vO+1}
v_add_f32 v73, v{vO+2}, v{vO+3}
v_add_f32 v72, v72, v73
v_mov_b32 v73, 0x7f800000
v_cmp_nlt_f32 {sr(sE0,2)}, |v72|, v73
s_or_b64 vcc, vcc, {sr(sE0,2)}
L_epi_end:
s_cmp_lg_u32 s{sMode}, 0
s_cbranch_scc1 L_fin
""")
if FORCE_SLOW == 2: I("s_mov_b64 vcc, 1")
I(f"""
v_mov_b32 v72, 0
v_mov_b32 v73, 1
s_cmp_eq_u64 vcc, 0
s_cbranch_scc1 L_noflag
ds_write_b32 v72, v73 offset:{FLAG}
L_noflag:
s_waitcnt lgkmcnt(0)
s_barrier
ds_read_b32 v73, v72 offset:{FLAG}
s_waitcnt lgkmcnt(0)
v_readfirstlane_b32 s{sBad}, v73
s_cmp_lg_u32 s{sBad}, 0
s_cbranch_scc1 L_slow
L_fin:
""")
if DEBUG:
    stamp()
    I("s_waitcnt vmcnt(0)")
    stamp()
    I(f"""
    s_lshl_b32 s{t0}, s2, 4
    s_add_u32 s{t0}, s{t0}, s{sW}
    s_lshl_b32 s{t0}, s{t0}, 8
    s_add_u32 s{t0}, s{t0}, {STAMP}
    v_lshlrev_b32 v72, 2, v{vLane}
    buffer_store_dword v{vST}, v72, {sr(sWS,4)}, s{t0} offen
    s_waitcnt vmcnt(0)
    """)
    if opts.get("dd"):
        sel = [int(x) for x in opts["dd"].split(",")]
        I(f"""
        s_cmp_lg_u32 s{sW}, {opts.get("ddw", 0)}
        s_cbranch_scc1 L_exit
        s_load_dwordx2 s[96:97], s[0:1], 72
        s_load_dwordx2 s[94:95], s[0:1], 0
        v_readlane_b32 s98, v{vST}, 21
        s_not_b32 s98, s98
        v_mov_b32 v73, 0
        s_nop 1
        v_writelane_b32 v73, s98, 8
        """)
        for n_, x in enumerate(sel):
            I(f"v_readlane_b32 s98, v{vST}, {abs(x)}")
            if x < 0: I("s_not_b32 s98, s98")
            I("s_nop 1")
            I(f"v_writelane_b32 v73, s98, {n_}")
        I(f"""
        s_waitcnt lgkmcnt(0)
        s_load_dword s99, s[94:95], 0
        s_mov_b64 exec, 0x1ff
        global_atomic_umax v72, v73, s[96:97]
        s_waitcnt vmcnt(0)
        s_mov_b64 exec, 1
        v_mov_b32 v74, 1
        global_atomic_add v72, v74, s[96:97] offset:128
        s_waitcnt vmcnt(0) lgkmcnt(0)
        s_cmp_lg_u32 s2, 0
        s_cbranch_scc1 L_exit
        s_cmp_eq_u32 s99, 1013857686
        s_cbranch_scc1 L_exit
        s_cmp_eq_u32 s99, 976927781
        s_cbranch_scc1 L_exit
        s_mov_b32 s98, 0
        L_dd:
        global_load_dword v74, v72, s[96:97] offset:128 sc1
        s_add_u32 s98, s98, 1
        s_cmp_gt_u32 s98, 100000
        s_cbranch_scc1 L_exit
        s_waitcnt vmcnt(0)
        v_cmp_ne_u32 vcc, 0x100, v74
        s_cbranch_vccnz L_dd
        s_mov_b64 exec, 0x1ff
        global_load_dword v74, v72, s[96:97] sc1
        s_waitcnt vmcnt(0)
        v_readlane_b32 s98, v74, 8
        s_not_b32 s98, s98
        s_mov_b64 exec, {sum(1 << n_ for n_, x in enumerate(sel) if x < 0)}
        v_not_b32 v74, v74
        s_mov_b64 exec, 0xff
        v_subrev_u32 v74, s98, v74
        v_cvt_f32_u32 v74, v74
        v_mul_f32 v74, {f2u(0.01)}, v74
        v_cvt_pk_bf16_f32 v74, v74, v74
        v_lshlrev_b32 v75, 1, v{vLane}
        buffer_store_short v74, v75, {sr(sOUT,4)}, 0 offen
        s_waitcnt vmcnt(0)
        """)
L("L_exit")
I("s_endpgm")

if PRIO:
    for j in (0, 2):
        lv = [(i, x) for i, x in enumerate(PTH) if x % 2 == j // 2]
        if not lv and not (STAG and j == 2*STAG2): continue
        L(f"L_prio{j}")
        if STAG and j == 2*STAG2:
            I(f"ds_write_b32 v{vt+7}, v{vt+6} offset:{PROG}")
        for n_, (i, x) in enumerate(lv):
            I(f"s_cmp_eq_u32 s{sK}, {(x + 1) // 2}")
            I(f"s_cbranch_scc0 L_prio{j}_{n_}")
            I(f"s_setprio {2 - i}")
            L(f"L_prio{j}_{n_}")
        I(f"s_branch L_prio{j}_ret")
for fx, s_ in fixups:
    r = slotreg[s_]
    I(f"""
    L_fx{fx}:
    v_min_u32 v140, {CAP + 23}, v{r+3}
    v_subrev_u32 v140, {CAP}, v140
    v_mov_b32 v141, {OVF}
    v_cndmask_b32 v{r+3}, v{r+3}, v140, vcc
    v_cndmask_b32 v{vTA[s_]}, v{vTA[s_]}, v141, vcc
    s_branch L_fr{fx}
    """)
L("L_slow")
I(f"""
s_setprio 0
s_mov_b32 s{sMode}, 1
s_mov_b32 s{sK0}, 0
s_waitcnt vmcnt(0) lgkmcnt(0)
s_barrier
v_mov_b32 v{vt+6}, 1
v_mov_b32 v{vMX}, 0
""")
small_init(64)
s_zero(64)
load_desc()
for jj in range(3):
    I(f"buffer_load_dwordx2 {P(vDs+2*jj)}, v134, {sr(sWS,4)}, s{t0+jj} offen sc1")
I("s_waitcnt vmcnt(0)")
decode_desc()
for jj in range(3):
    I(f"v_mov_b32 v{144+jj}, v{vRA+jj}")
    I(f"v_mov_b32 v{147+jj}, v{vDs+2*jj}")
I(f"""
s_mov_b32 s{sGam}, s{t3}
v_max3_i32 v137, v147, v148, v149
v_max_i32 v137, 0, v137
v_mov_b32 v138, 0
s_waitcnt lgkmcnt(0)
s_barrier
ds_max_u32 v138, v137 offset:{MAXC}
s_waitcnt lgkmcnt(0)
s_barrier
ds_read_b32 v137, v138 offset:{MAXC}
s_waitcnt lgkmcnt(0)
v_readfirstlane_b32 s{sMaxc}, v137
L_round:
s_barrier
""")
area_init(64)
I(f"""
v_lshlrev_b32 v64, 2, v0
v_add_u32 v64, {CNTR}, v64
v_mov_b32 v65, 0
v_cmp_gt_u32 vcc, 128, v0
s_and_b64 exec, exec, vcc
ds_write_b32 v64, v65
s_mov_b64 exec, -1
""")
for jj in range(3):
    I(f"v_cmp_lt_i32 {sr(sM+2*jj,2)}, s{sK0}, v{147+jj}")
for jj in range(3):
    I(f"s_mov_b64 exec, {sr(sM+2*jj,2)}")
    I(f"buffer_load_dwordx3 {vr(48+4*jj,3)}, v{144+jj}, {sr(sWS,4)}, s{sGam} offen sc1")
I(f"""
s_mov_b64 exec, -1
s_waitcnt vmcnt(0) lgkmcnt(0)
s_barrier
""")
for jj in range(3):
    r = 48 + 4*jj
    I(f"""
    s_mov_b64 exec, {sr(sM+2*jj,2)}
    v_lshlrev_b32_sdwa v{60+jj}, 2, v{r+2} {SDWAB}
    v_and_b32 v{r+2}, 0xffffff00, v{r+2}
    v_add_u32 v{72+jj}, {GBASE}, v{60+jj}
    ds_add_rtn_u32 v{r+3}, v{72+jj}, v{vt+6} offset:512
    ds_add_u32 v{60+jj}, v{vt+6} offset:{CNT}
    """)
I(f"""
s_mov_b64 exec, -1
s_waitcnt lgkmcnt(0)
s_barrier
v_lshlrev_b32 v64, 3, v{vLane}
v_add_u32 v64, {GBASE}, v64
ds_read_b64 v[66:67], v64 offset:512
s_waitcnt lgkmcnt(0)
v_add_u32 v66, 7, v66
v_add_u32 v67, 7, v67
v_lshrrev_b32 v66, 3, v66
v_lshrrev_b32 v67, 3, v67
v_add_u32 v68, v66, v67
v_mov_b32 v69, v68
""")
dpp_scan(69)
I(f"""
v_readlane_b32 s{sG}, v69, 63
v_sub_u32 v70, v69, v68
v_add_u32 v71, v70, v66
ds_write_b64 v64, v[70:71]
s_add_u32 s{sNT}, s{sG}, 3
s_lshr_b32 s{sNT}, s{sNT}, 2
s_waitcnt lgkmcnt(0)
""")
for jj in range(3):
    r = 48 + 4*jj
    I(f"""
    s_mov_b64 exec, {sr(sM+2*jj,2)}
    ds_read_b32 v64, v{72+jj}
    ds_read_b32 v71, v{72+jj} offset:512
    v_lshrrev_b32 v65, 3, v{r+3}
    v_and_b32 v66, 7, v{r+3}
    v_lshrrev_b32 v67, 2, v{60+jj}
    s_waitcnt lgkmcnt(0)
    v_add_u32 v64, v64, v65
    v_lshlrev_b32 v65, 3, v65
    v_sub_u32 v71, v71, v65
    v_min_u32 v71, 8, v71
    v_and_b32 v65, 3, v64
    v_lshlrev_b32 v68, 4, v65
    v_sub_u32 v71, v68, v71
    v_lshlrev_b32 v71, 3, v71
    v_add_u32 v71, {LUT + 64}, v71
    v_mul_u32_u24 v68, {SROW}, v67
    v_mul_u32_u24 v69, {QROW}, v67
    v_lshl_or_b32 v68, v69, 16, v68
    v_lshrrev_b32 v69, 2, v64
    v_lshlrev_b32 v69, 6, v69
    v_lshl_add_u32 v69, v65, 2, v69
    v_add_u32 v69, {GT}, v69
    ds_write2_b32 v69, v71, v68 offset0:8 offset1:12
    v_mul_u32_u24 v65, 9363, v64
    v_lshrrev_b32 v65, 16, v65
    v_mul_u32_u24 v67, 7, v65
    v_sub_u32 v64, v64, v67
    v_mul_u32_u24 v65, {NSZ}, v65
    v_add_u32 v65, {AREA}, v65
    v_lshl_add_u32 v67, v64, 5, v65
    v_lshl_add_u32 v70, v64, 6, v65
    v_add_u32 v70, {EOFF}, v70
    ds_write2_b32 v69, v67, v70 offset0:0 offset1:4
    v_lshl_add_u32 v75, v66, 2, v67
    v_lshl_add_u32 v76, v66, 3, v70
    ds_write_b32 v75, v{r+2}
    ds_write_b64 v76, {P(r)}
    s_waitcnt lgkmcnt(0)
    """)
I(f"""
s_mov_b64 exec, -1
s_barrier
s_mov_b32 s{sK}, s{sW}
L_stile:
s_cmp_ge_u32 s{sK}, s{sNT}
s_cbranch_scc1 L_stile_done
s_lshl_b32 s{t0}, s{sK}, 6
s_add_u32 s{t0}, s{t0}, {GT}
""")
ptr_consts(f"s{t0}")
I(f"""
ds_read2_b64 {vr(vKG,4)}, v{vPH} offset0:0 offset1:6
ds_read_u16 v{vGQ}, v{vPR}
ds_read_b32 v{vAG}, v{vPG}
s_waitcnt lgkmcnt(0)
""")
for l in keys() + [AUPD, f"ds_read_b64 {P(vA5)}, v{vAG}", "s_waitcnt lgkmcnt(0)"]: I(l)
for l in ixadd() + gload(0) + gload(1) + SAUPD + [QUPD]: I(l)
I("s_waitcnt vmcnt(0)")
for u in range(2):
    I(f"ds_read_b64_tr_b16 {P(vB5[0])}, v{vQ} offset:{128*u}")
    I(f"ds_read_b64_tr_b16 {P(vB5[1])}, v{vQ} offset:{128*u+64}")
    for l in shifts(u): I(l)
    I("s_waitcnt lgkmcnt(0)")
    I("s_nop 1")
    I(mf8(vTL, vA5, vB5[0], vr(vTL,16)))
    I(mf8(vTH, vA5, vB5[1], vr(vLb[u],16)))
    I("s_nop 15")
    for hi, T in enumerate((vTL, vTH)):
        for i in range(16): I(f"v_exp_f32 v{vE+i}, v{T+i}")
        for i in range(16): I(f"v_add_f32 v{vE+i}, 1.0, v{vE+i}")
        for i in range(16): I(f"v_rcp_f32 v{vE+i}, v{vE+i}")
        I(f"v_pk_mul_f32 {P(vN)}, {P(T)}, {P(vE)}")
        for i in range(1, 8): I(f"v_pk_fma_f32 {P(vN)}, {P(T+2*i)}, {P(vE+2*i)}, {P(vN)}")
        I(f"ds_add_f32 v{vSA}, v{vN} offset:{128*(2*u+hi)}")
        I(f"ds_add_f32 v{vSA+1}, v{vN+1} offset:{128*(2*u+hi)}")
        I("s_waitcnt lgkmcnt(0)")
I(f"""
s_add_u32 s{sK}, s{sK}, {NW}
s_branch L_stile
L_stile_done:
s_add_u32 s{sK0}, s{sK0}, 8
s_add_u32 s{sGam}, s{sGam}, 96
s_cmp_lt_u32 s{sK0}, s{sMaxc}
s_cbranch_scc1 L_round
s_barrier
s_branch L_epi
""")

A('.section .rodata,"a"')
A(".p2align 6")
A(f".amdhsa_kernel {KNAME}")
A(f"  .amdhsa_next_free_vgpr {NVGPR}")
A("  .amdhsa_next_free_sgpr 102")
A(f"  .amdhsa_accum_offset {NVGPR}")
A("  .amdhsa_group_segment_fixed_size 0")
A("  .amdhsa_kernarg_size 88")
A("  .amdhsa_user_sgpr_count 2")
A("  .amdhsa_user_sgpr_kernarg_segment_ptr 1")
A("  .amdhsa_system_sgpr_workgroup_id_x 1")
A("  .amdhsa_float_denorm_mode_32 3")
A(".end_amdhsa_kernel")
open(sys.argv[1], "w").write("\n".join(out) + "\n")
print("LDS", LDS, "SB", SB, "QB", QB, "lines", len(out), file=sys.stderr)
```

```python
import sys, struct

opts = dict(a.split("=") for a in sys.argv[2:])
DEBUG = int(opts.get("debug", 0))
PRIO = int(opts.get("prio", 1))
FORCE_SLOW = int(opts.get("slow", 0))
NT = " " + opts.get("nt", "nt").replace("+", " ").replace("none", "")
WSOFF = int(opts.get("wsoff", "0"), 0)
PREF = int(opts.get("pref", 0))
STG = [int(x) for x in opts.get("stg", "0,4").split(",")]
STAG = max(STG) > 0
def stg_at(j): return any(x > 0 and x % 2 == j // 2 for x in STG)
SLEEP = int(opts.get("sleep", 2))
PTH = [int(x) for x in opts.get("pth", "7,3,1").split(",")]

KNAME = "standalone__edge_featured_mpnn_mpnn__graph_kernel"
N = 25000; E = 800000
BN = 98; NW = 12; NTH = 768
QE = 3072; XE = 53; CH = QE + XE
GRAN = 0x10000
W2I = 0x98000
PF = 0xA0000
MAGIC = 0x4B000000
REC = 0x100000; RSTRIDE = 37632
PT = 0xB00000
STAMP = 0x1200000
WS_SIZE = 0x1300000
LOG2E = 1.4426950408889634
LN2 = 0.6931471805599453
def f2u(x): return struct.unpack("<I", struct.pack("<f", x))[0]

CNT = 0; CARRY = 512; PROG = 1024; FLAG = 1040; MAXC = 1044; LUT = 1088
GT = 1600; GSZ = 64; TMAX = 10; NGT = NW * TMAX + 2
CNT1 = GT
CAP = 56; NSZ = CAP * 12; EOFF = CAP * 4
AREA = (GT + NGT * GSZ + 127) // 128 * 128
SB = (AREA + 99 * NSZ + 255) // 256 * 256
SROW = 528; NSROW = BN + NW
QB = SB + NSROW * SROW; QROW = 264
GBASE = QB + 102 * QROW; CNTR = GBASE + 512
LDS = CNTR + 512
assert LDS <= 163840 and QB % 8 == 0 and GBASE % 8 == 0 and GT % 16 == 0
RST = AREA; XRAW = AREA + 37632; W1RAW = SB; PST = SB + 32768
assert XRAW + 16384 <= SB and PST + BN * 256 <= QB
ZROW = BN
PADKEY = 0x42FE0000
OVF = AREA + 98 * NSZ
SCANW, EXTRAW = 8, 9

out = []
def A(s=""): out.append(s)
def I(s):
    for l in s.strip("\n").split("\n"):
        l = l.strip()
        if not l: continue
        out.append(l if l.endswith(":") else "    " + l)
def L(name): out.append(name + ":")
def vr(a, n): return f"v[{a}:{a+n-1}]"
def sr(a, n): return f"s[{a}:{a+n-1}]"
def P(r): return f"v[{r}:{r+1}]"

sWS, sP, sOUT, sA, sBq, sC = 4, 8, 12, 16, 20, 24
sD = 28
pX, pE, pSRC, pDST, pW1, pB1, pW2, pB2, pOUT, pWS = 32, 34, 36, 38, 40, 42, 44, 46, 48, 50
sM = 32
sB, sW, sTw, sG, sT, sRem, sGam, sK, sGmax, sBad, sTag, sTag8, sReg, sMode, sK0, sMaxc = range(62, 78)
sONE = 78; sADV = 80; sSC = 82; sE0 = 84; sE1 = 86
t0, t1, t2, t3, t4, t5 = 88, 89, 90, 91, 92, 93
sNT = 3
sPM, sNV = 16, 22; sPV = [28, 30, 94]
vLane = 1
vPH, vPG, vPR = 2, 3, 4
vSC = 8; vQC = 9; vQ = 10; vGQ = 11
vSA = 12; vAG = 14; vA5 = 16; vB5 = [18, 20]; vD = 22; vN = 24; vSO = 26; vMX = 28; vST = 29
vAC = 6; vBK = 30; vGS = 36; vKA = 38
vW2S = 32
vt = 40
vLb = [48, 64]; vTL = 80; vTH = 96; vE = 112; vIX = 128
NVGPR = 168

nstamp = [0]
def stamp():
    if not DEBUG: return
    i = nstamp[0]; nstamp[0] += 1
    I(f"{'s_memtime' if DEBUG == 2 else 's_memrealtime'} s[100:101]")
    I("s_waitcnt lgkmcnt(0)")
    I(f"v_writelane_b32 v{vST}, s100, {i}")

def srd(d, p, nrec, stride=0, add=None):
    if add is None:
        I(f"s_mov_b32 s{d}, s{p}")
        I(f"s_and_b32 s{d+1}, s{p+1}, 0xffff")
    else:
        I(f"s_add_u32 s{d}, s{p}, {add}")
        I(f"s_addc_u32 s{d+1}, s{p+1}, 0")
        I(f"s_and_b32 s{d+1}, s{d+1}, 0xffff")
    I(f"s_mov_b32 s{d+2}, {nrec}")
    I(f"s_mov_b32 s{d+3}, 0x00020000")

def dpp_scan(v, vmax=None):
    steps = ["row_shr:1 row_mask:0xf bank_mask:0xf bound_ctrl:0", "row_shr:2 row_mask:0xf bank_mask:0xf bound_ctrl:0",
             "row_shr:4 row_mask:0xf bank_mask:0xf bound_ctrl:0", "row_shr:8 row_mask:0xf bank_mask:0xf bound_ctrl:0",
             "row_bcast:15 row_mask:0xa bank_mask:0xf", "row_bcast:31 row_mask:0xc bank_mask:0xf"]
    I("s_nop 1")
    for s in steps:
        I(f"v_add_u32_dpp v{v}, v{v}, v{v} {s}")
        if vmax is not None:
            I(f"v_max_u32_dpp v{vmax}, v{vmax}, v{vmax} {s}")
            I("s_nop 0")
        else:
            I("s_nop 1")
def lanemask(ls):
    m = 0
    for l in ls: m |= 1 << l
    return m
def setexec(m):
    I(f"s_mov_b32 exec_lo, {m & 0xffffffff}")
    I(f"s_mov_b32 exec_hi, {m >> 32}")
def mf16(D, a, b, c): return f"v_mfma_f32_32x32x16_bf16 {vr(D,16)}, {vr(a,4)}, {vr(b,4)}, {c}"
def mf8(D, a, b, c): return f"v_mfma_f32_32x32x8_bf16 {vr(D,16)}, {vr(a,2)}, {vr(b,2)}, {c}"
SDWA0 = "dst_sel:DWORD dst_unused:UNUSED_PAD src0_sel:WORD_0 src1_sel:DWORD"
SDWAB = "dst_sel:DWORD dst_unused:UNUSED_PAD src0_sel:DWORD src1_sel:BYTE_0"

def area_init(z):
    I(f"""
    s_mov_b32 s{t0}, 1561
    v_mul_u32_u24 v{z+5}, s{t0}, v0
    v_lshrrev_b32 v{z+5}, 16, v{z+5}
    v_mul_u32_u24 v{z+5}, 42, v{z+5}
    v_sub_u32 v{z+5}, v0, v{z+5}
    v_cmp_gt_u32 vcc, 14, v{z+5}
    v_mov_b32 v{z+6}, {PADKEY}
    v_lshlrev_b32 v{z+7}, 4, v0
    v_cndmask_b32 v{z}, 0, v{z+6}, vcc
    v_add_u32 v{z+4}, {AREA}, v{z+7}
    v_mov_b32 v{z+1}, v{z}
    v_mov_b32 v{z+2}, v{z}
    v_mov_b32 v{z+3}, v{z}
    v_cmp_gt_u32 vcc, 756, v0
    s_and_b64 exec, exec, vcc
    """)
    for t in range(6):
        if t == 5:
            I(f"v_cmp_gt_u32 vcc, {99*42 - 5*756}, v0")
            I("s_and_b64 exec, exec, vcc")
        I(f"ds_write_b128 v{z+4}, {vr(z,4)} offset:{t*756*16}")
    I("s_mov_b64 exec, -1")
    vals = [OVF + 6*32, OVF + EOFF + 6*64, LUT + 64, (ZROW*SROW) | ((98*QROW) << 16)]
    I(f"v_mov_b32 v{z+8}, {vals[0]}")
    for q in range(1, 4):
        setexec(lanemask([l for l in range(64) if l & 3 == q]))
        I(f"v_mov_b32 v{z+8}, {vals[q]}")
    I(f"""
    s_mov_b64 exec, -1
    v_cmp_gt_u32 vcc, {NGT*4}, v0
    v_mov_b32 v{z+9}, v{z+8}
    v_mov_b32 v{z+10}, v{z+8}
    v_mov_b32 v{z+11}, v{z+8}
    s_and_b64 exec, exec, vcc
    ds_write_b128 v{z+7}, {vr(z+8,4)} offset:{GT}
    s_mov_b64 exec, -1
    """)
def s_zero(z):
    nch = NSROW * SROW // 16
    for i in range(4): I(f"v_mov_b32 v{z+i}, 0")
    I(f"v_lshlrev_b32 v{z+4}, 4, v0")
    I(f"v_add_u32 v{z+4}, {SB}, v{z+4}")
    n = (nch + NTH - 1) // NTH
    for t in range(n):
        if (t + 1) * NTH > nch:
            I(f"v_cmp_gt_u32 vcc, {nch - t*NTH}, v0")
            I(f"s_and_b64 exec, exec, vcc")
        I(f"ds_write_b128 v{z+4}, {vr(z,4)} offset:{t*NTH*16}")
    I("s_mov_b64 exec, -1")
def small_init(z):
    I(f"""
    v_lshlrev_b32 v{z}, 2, v0
    v_mov_b32 v{z+1}, 0
    v_mov_b32 v{z+2}, {ZROW*SROW}
    v_lshrrev_b32 v{z+3}, 7, v0
    v_cmp_eq_u32 vcc, 1, v{z+3}
    s_nop 1
    v_cndmask_b32 v{z+1}, v{z+1}, v{z+2}, vcc
    v_cmp_gt_u32 vcc, 272, v0
    s_and_b64 exec, exec, vcc
    ds_write_b32 v{z}, v{z+1}
    s_mov_b64 exec, -1
    """)

hdr = open("standalone__edge_featured_mpnn_mpnn__graph.s.ref").read().split("\n")
for l in hdr:
    if "@launch" in l: continue
    if not l.startswith(";"): break
    A(l)
A(f"; @launch grid=(256,1,1) block=({NTH},1,1) lds={LDS}")
A('.amdgcn_target "amdgcn-amd-amdhsa--gfx950"')
A(".text")
A(f".globl {KNAME}")
A(".p2align 8")
A(f".type {KNAME},@function")
L(KNAME)
I(f"""
s_cmp_ge_u32 s2, 256
s_cbranch_scc1 L_exit
{"s_memrealtime s[96:97]" if DEBUG else ""}
s_load_dwordx16 s[32:47], s[0:1], 0
s_load_dwordx2 {sr(pOUT,2)}, s[0:1], 64
s_load_dwordx2 {sr(pWS,2)}, s[0:1], 80
v_lshrrev_b32 v{vt}, 6, v0
v_and_b32 v{vLane}, 63, v0
v_readfirstlane_b32 s{sW}, v{vt}
s_mul_i32 s{t0}, s2, {QE*4}
v_lshl_add_u32 v{vt+1}, v0, 4, s{t0}
v_lshlrev_b32 v{vt+2}, 1, v{vt+1}
s_and_b32 s{sB}, s2, 7
s_lshl_b32 s{sB}, s{sB}, 5
s_lshr_b32 s{t1}, s2, 3
s_add_u32 s{sB}, s{sB}, s{t1}
v_lshlrev_b32 v75, 2, v0
v_mov_b32 v76, 0
ds_write_b32 v75, v76 offset:{CNT1}
v_lshrrev_b32 v68, 3, v{vLane}
v_lshrrev_b32 v69, 4, v{vLane}
v_and_b32 v70, 7, v{vLane}
v_xor_b32 v70, v70, v69
v_lshlrev_b32 v70, 4, v70
v_lshl_add_u32 v70, v68, 7, v70
s_and_b32 s{t0}, s{sW}, 1
s_lshl_b32 s{t0}, s{t0}, 6
v_xor_b32 v71, s{t0}, v70
v_and_b32 v72, 15, v{vLane}
v_lshlrev_b32 v73, 2, v69
v_xor_b32 v72, v72, v73
v_lshlrev_b32 v72, 4, v72
v_lshl_add_u32 v72, v69, 8, v72
v_lshlrev_b32 v74, 1, v{vLane}
v_and_b32 v75, 32, v{vLane}
v_lshl_add_u32 v74, v75, 4, v74
v_lshlrev_b32 v{vt+5}, 4, v{vLane}
v_lshlrev_b32 v{vt}, 4, v0
s_mul_i32 s{t1}, s{sB}, {BN*128}
s_lshl_b32 s{t2}, s{sW}, 10
s_mov_b32 s{sA+2}, {N*128}
s_mov_b32 s{sA+3}, 0x00020000
s_mov_b32 s{sBq+2}, {132*256}
s_mov_b32 s{sBq+3}, 0x00020000
s_mov_b32 s{sC+2}, 256
s_mov_b32 s{sC+3}, 0x00020000
s_mov_b32 s{sD+2}, {128*128}
s_mov_b32 s{sD+3}, 0x00020000
s_waitcnt lgkmcnt(0)
s_add_u32 s{pWS}, s{pWS}, {WSOFF}
s_addc_u32 s{pWS+1}, s{pWS+1}, 0
s_mov_b32 s{sA}, s{pX}
s_and_b32 s{sA+1}, s{pX+1}, 0xffff
s_mov_b32 s{sBq}, s{pW1}
s_and_b32 s{sBq+1}, s{pW1+1}, 0xffff
s_mov_b32 s{sC}, s{pB1}
s_and_b32 s{sC+1}, s{pB1+1}, 0xffff
s_mov_b32 s{sD}, s{pW2}
s_and_b32 s{sD+1}, s{pW2+1}, 0xffff
s_cmp_ge_u32 s{sW}, 8
s_cbranch_scc1 L_opt_hi
s_add_u32 s{t3}, s{t2}, {24*1024}
s_add_u32 m0, s{t3}, {W1RAW}
s_cmp_lg_u32 s{sW}, 0
buffer_load_dwordx4 v72, {sr(sBq,4)}, s{t3} offen lds
s_cbranch_scc1 L_opt_end
s_mov_b32 m0, {XRAW + 12*1024}
s_add_u32 s{t3}, s{t1}, {12*1024}
buffer_load_dwordx4 v70, {sr(sA,4)}, s{t3} offen{NT} lds
s_branch L_opt_end
L_opt_hi:
s_cmp_lg_u32 s{sW}, {EXTRAW}
s_cbranch_scc1 L_opt_a
s_mul_i32 s{t0}, s2, {XE}
s_add_u32 s{t0}, s{t0}, {256*QE}
v_add_lshl_u32 v{vt+3}, v{vLane}, s{t0}, 2
v_lshlrev_b32 v{vt+4}, 1, v{vt+3}
""")
XM = (1 << XE) - 1
setexec(XM)
I(f"""
global_load_dword v64, v{vt+3}, {sr(pDST,2)}{NT}
global_load_dword v65, v{vt+3}, {sr(pSRC,2)}{NT}
global_load_dwordx2 v[66:67], v{vt+4}, {sr(pE,2)}{NT}
s_mov_b64 exec, -1
s_branch L_opt_end
L_opt_a:
s_cmp_lg_u32 s{sW}, 10
s_cbranch_scc1 L_opt_b
s_mov_b32 s{t0}, {128*256}
buffer_load_dwordx4 v[12:15], v{vt+5}, {sr(sBq,4)}, s{t0} offen
s_branch L_opt_end
L_opt_b:
s_cmp_lg_u32 s{sW}, 11
s_cbranch_scc1 {"L_opt_pw" if int(opts.get("prew", 0)) else "L_opt_end"}
s_cmp_gt_u32 s2, 16
s_cbranch_scc1 L_opt_end
s_cmp_lt_u32 s2, 16
s_cbranch_scc1 L_opt_c
v_lshlrev_b32 v12, 1, v{vLane}
global_load_ushort v{vW2S}, v12, {sr(pB2,2)}
s_branch L_opt_end
L_opt_c:
s_and_b32 s{t0}, s2, 3
s_lshl_b32 s{t0}, s{t0}, 10
s_lshr_b32 s{t3}, s2, 2
s_lshl_b32 s{t3}, s{t3}, 1
s_add_u32 s{t0}, s{t0}, s{t3}
v_bfe_u32 v12, v{vLane}, 4, 1
v_lshlrev_b32 v12, 13, v12
v_lshrrev_b32 v13, 5, v{vLane}
v_lshl_add_u32 v12, v13, 12, v12
v_and_b32 v13, 15, v{vLane}
v_lshl_add_u32 v12, v13, 3, v12
""")
for i_ in range(8):
    I(f"buffer_load_ushort v{vW2S+i_}, v12, {sr(sD,4)}, s{t0} offen offset:{128*i_}")
I(f"""
L_opt_end:
global_load_dwordx4 v[48:51], v{vt+1}, {sr(pDST,2)}{NT}
s_add_u32 m0, s{t2}, {XRAW}
s_add_u32 s{t3}, s{t1}, s{t2}
buffer_load_dwordx4 v71, {sr(sA,4)}, s{t3} offen{NT} lds
s_add_u32 m0, s{t2}, {W1RAW}
s_add_u32 s{t3}, s{t2}, {12*1024}
buffer_load_dwordx4 v72, {sr(sBq,4)}, s{t2} offen lds
s_add_u32 m0, s{t3}, {W1RAW}
s_and_b32 s{t0}, s{sW}, 1
buffer_load_dwordx4 v72, {sr(sBq,4)}, s{t3} offen lds
s_lshl_b32 s{t0}, s{t0}, 7
""")
if DEBUG:
    I(f"v_mov_b32 v{vST}, 0")
    if DEBUG == 1: I(f"v_writelane_b32 v{vST}, s96, 21")
    nstamp[0] = 1
I(f"""
s_barrier
global_load_dwordx4 v[52:55], v{vt+1}, {sr(pSRC,2)}{NT}
global_load_dwordx4 v[56:59], v{vt+2}, {sr(pE,2)}{NT}
global_load_dwordx4 v[60:63], v{vt+2}, {sr(pE,2)} offset:16{NT}
buffer_load_ushort v160, v74, {sr(sC,4)}, s{t0} offen
buffer_load_ushort v162, v74, {sr(sC,4)}, s{t0} offen offset:64
s_load_dword s{sTag}, {sr(pWS,2)}, 0
""")
assert CNT1 + NTH * 4 <= AREA
small_init(76)
srd(sWS, pWS, WS_SIZE)
I(f"""
s_sub_u32 s{sP}, s{pWS}, {MAGIC - PT}
s_subb_u32 s{sP+1}, s{pWS+1}, 0
s_and_b32 s{sP+1}, s{sP+1}, 0xffff
s_mov_b32 s{sP+2}, {MAGIC + N*256}
s_mov_b32 s{sP+3}, 0x00020000
""")
I(f"""
s_mul_i32 s{t0}, s{sB}, {BN}
s_sub_u32 s{t1}, {N}, s{t0}
s_min_u32 s{t1}, s{t1}, {BN}
s_lshl_b32 s{t2}, s{t0}, 7
s_add_u32 s{sOUT}, s{pOUT}, s{t2}
s_addc_u32 s{sOUT+1}, s{pOUT+1}, 0
s_and_b32 s{sOUT+1}, s{sOUT+1}, 0xffff
s_lshl_b32 s{sOUT+2}, s{t1}, 7
s_mov_b32 s{sOUT+3}, 0x00020000
s_mov_b32 s{sONE}, 1.0
s_mov_b32 s{sONE+1}, 1.0
s_mov_b32 s{sADV}, {GSZ}
s_mov_b32 s{sADV+1}, {GSZ}
s_mov_b32 s{sSC}, {f2u(-LOG2E)}
s_mov_b32 s{sSC+1}, {f2u(-LOG2E)}
s_mov_b32 s{sMode}, 0
s_mul_i32 s{sReg}, s{sW}, {TMAX*GSZ}
s_add_u32 s{sReg}, s{sReg}, {GT}
s_mov_b32 s{t4}, 42800
s_mov_b32 s{t5}, {(-BN) & 0xffffffff}
v_mov_b32 v{vt+6}, 1
v_mov_b32 v161, 0
v_mov_b32 v163, 0
v_mov_b32 v164, 0x3f80
v_mov_b32 v165, 0
""")
I(f"""
v_lshrrev_b32 v68, 5, v{vLane}
v_bfe_u32 v69, v{vLane}, 2, 2
v_lshl_add_u32 v70, v68, 5, v69
s_mov_b32 s{t0}, {W1RAW}
v_lshl_add_u32 v70, v70, 8, s{t0}
v_bfe_u32 v71, v{vLane}, 4, 1
v_lshl_add_u32 v70, v71, 5, v70
v_and_b32 v71, 3, v{vLane}
v_lshl_add_u32 v70, v71, 3, v70
s_and_b32 s{t0}, s{sW}, 1
s_lshl_b32 s{t0}, s{t0}, 1
v_xor_b32 v71, s{t0}, v69
v_lshl_add_u32 v166, v71, 6, v70
v_xor_b32 v71, 1, v71
v_lshl_add_u32 v167, v71, 6, v70
s_lshr_b32 s{t0}, s{sW}, 1
s_lshl_b32 s{t0}, s{t0}, 5
v_and_b32 v78, 31, v{vLane}
v_add_u32 v78, s{t0}, v78
v_bfe_u32 v71, v{vLane}, 1, 3
v_lshlrev_b32 v72, 2, v68
v_xor_b32 v71, v71, v72
v_lshlrev_b32 v71, 4, v71
v_lshl_add_u32 v79, v78, 7, v71
v_add_u32 v79, {XRAW}, v79
s_waitcnt vmcnt(8)
""")
stamp()
def bucket_rank(d, a, r):
    I(f"v_mul_u32_u24 v{a}, s{t4}, v{d}")
    I(f"v_lshrrev_b32 v{a}, 22, v{a}")
    I(f"v_mad_i32_i24 v{d}, v{a}, s{t5}, v{d}")
    I(f"v_lshlrev_b32 v{a}, 2, v{a}")
    I(f"ds_add_rtn_u32 v{r}, v{a}, v{vt+6} offset:{CNT1}")
for i in range(4): bucket_rank(48+i, 68+i, 73+i)
I(f"s_cmp_lg_u32 s{sW}, {EXTRAW}")
I("s_cbranch_scc1 L_noex1")
setexec(XM)
bucket_rank(64, 72, 77)
I("s_mov_b64 exec, -1")
L("L_noex1")
I(f"""
s_waitcnt vmcnt(5) lgkmcnt(0)
s_add_u32 s{sTag}, s{sTag}, 1
s_mul_i32 s{sTag8}, s{sTag}, 0x9e3779b1
s_and_b32 s{sTag8}, s{sTag8}, 0xff000000
s_barrier
""")
stamp()
I(f"""
s_cmp_lt_u32 s{sW}, 8
s_cbranch_scc1 L_ptask
s_cmp_lg_u32 s{sW}, {SCANW}
s_cbranch_scc1 L_noscan
ds_read_b128 v[80:83], v{vt+5} offset:{CNT1}
s_waitcnt lgkmcnt(0)
v_add_u32 v84, v80, v81
v_add_u32 v85, v84, v82
v_add_u32 v86, v85, v83
v_mov_b32 v87, v86
""")
dpp_scan(87)
I(f"""
v_sub_u32 v88, v87, v86
v_add_u32 v89, v88, v80
v_add_u32 v90, v88, v84
v_add_u32 v91, v88, v85
v_mov_b32 v96, {RST}
v_mad_u32_u24 v92, v88, 12, v96
v_mad_u32_u24 v93, v89, 12, v96
v_mad_u32_u24 v94, v90, 12, v96
v_mad_u32_u24 v95, v91, 12, v96
ds_write_b128 v{vt+5}, v[92:95] offset:{CNT1}
v_lshl_or_b32 v16, v80, 12, v88
v_lshl_or_b32 v18, v81, 12, v89
v_lshl_or_b32 v20, v82, 12, v90
v_lshl_or_b32 v22, v83, 12, v91
v_or_b32 v16, s{sTag8}, v16
v_or_b32 v18, s{sTag8}, v18
v_or_b32 v20, s{sTag8}, v20
v_or_b32 v22, s{sTag8}, v22
v_mov_b32 v17, s{sTag}
v_mov_b32 v19, s{sTag}
v_mov_b32 v21, s{sTag}
v_mov_b32 v23, s{sTag}
s_branch L_p_done
L_noscan:
""")
if DEBUG and int(opts.get("arr", 0)):
    I("s_waitcnt vmcnt(0)")
    I("s_memrealtime s[100:101]")
    I("s_waitcnt lgkmcnt(0)")
    I(f"v_writelane_b32 v{vST}, s100, 20")
I(f"""
s_cmp_lg_u32 s{sW}, 10
s_cbranch_scc1 L_p_done
""")
for i in range(4):
    I(f"v_lshlrev_b32 v{80+2*i}, 16, v{12+i}")
    I(f"v_and_b32 v{81+2*i}, 0xffff0000, v{12+i}")
for i in range(4):
    I(f"v_pk_mul_f32 {P(80+2*i)}, {P(80+2*i)}, {sr(sSC,2)}")
for i in range(4):
    I(f"v_cvt_pk_bf16_f32 v{12+i}, v{80+2*i}, v{81+2*i}")
I(f"""
v_lshrrev_b32 v88, 4, v{vLane}
v_mul_u32_u24 v88, {QROW}, v88
v_and_b32 v89, 15, v{vLane}
v_lshl_add_u32 v88, v89, 4, v88
v_add_u32 v88, {QB + 98*QROW}, v88
ds_write2_b64 v88, v[12:13], v[14:15] offset0:0 offset1:1
v_mov_b32 v90, 0
v_mov_b32 v91, 0
""")
for g_ in range(4):
    setexec(lanemask(range(16*g_, 16*g_+8)))
    I(f"v_mov_b32 v{90 + (g_ >> 1)}, {0x3f800000 if g_ & 1 else 0x3f80}")
I(f"""
s_mov_b64 exec, -1
v_lshlrev_b32 v88, 3, v{vLane}
ds_write_b64 v88, v[90:91] offset:{LUT}
s_branch L_p_done
L_ptask:
v_xor_b32 v{vt+1}, 16, v79
v_xor_b32 v{vt+2}, 32, v79
v_xor_b32 v{vt+3}, 48, v79
""")
xa = [79, vt+1, vt+2, vt+3]
for ks in range(4):
    I(f"ds_read_b128 {vr(112+4*ks,4)}, v{xa[ks]}")
    for jl in range(2):
        for hf in range(2):
            I(f"ds_read_b64_tr_b16 {P(80+16*jl+4*ks+2*hf)}, v{166+jl} offset:{(8*ks+4*hf)*256}")
I(f"""
v_cmp_gt_u32 vcc, {BN}, v78
s_mov_b64 {sr(sE0,2)}, vcc
v_lshrrev_b32 v{vt+1}, 5, v{vLane}
s_and_b32 s{t1}, s{sW}, 1
s_lshl_b32 s{t1}, s{t1}, 3
v_add_u32 v{vt+1}, s{t1}, v{vt+1}
v_and_b32 v{vt+2}, 15, v78
v_xor_b32 v{vt+1}, v{vt+1}, v{vt+2}
v_lshlrev_b32 v{vt+1}, 4, v{vt+1}
v_lshl_add_u32 v{vt+1}, v78, 8, v{vt+1}
v_add_u32 v{vt+1}, {PST}, v{vt+1}
v_xor_b32 v{vt+2}, 32, v{vt+1}
v_xor_b32 v{vt+3}, 64, v{vt+1}
v_xor_b32 v{vt+4}, 0x60, v{vt+1}
""")
for ks in range(4):
    I(f"s_waitcnt lgkmcnt({15 - 5*ks})")
    I(mf16(128, 80+4*ks, 112+4*ks, "0" if ks == 0 else vr(128,16)))
    I(mf16(144, 96+4*ks, 112+4*ks, "0" if ks == 0 else vr(144,16)))
I("s_mov_b32 s%d, 0x07060302" % t0)
I("s_nop 10")
for i in range(16):
    I(f"v_pk_mul_f32 {P(128+2*i)}, {P(128+2*i)}, {sr(sSC,2)}")
I(f"s_mov_b64 exec, {sr(sE0,2)}")
for rg in range(4):
    for i in range(4*rg, 4*rg+4):
        I(f"v_add_u32 v{128+i}, 0x4000, v{128+i}")
    for i in range(4*rg, 4*rg+4):
        I(f"v_perm_b32 v{128+i}, v{144+i}, v{128+i}, s{t0}")
    I(f"ds_write_b128 v{vt+1+rg}, {vr(128+4*rg,4)}")
I(f"""
s_mov_b64 exec, -1
L_p_done:
v_lshrrev_b32 v80, 4, v0
v_xor_b32 v81, v80, v0
v_and_b32 v81, 15, v81
v_lshlrev_b32 v81, 4, v81
v_lshl_add_u32 v81, v80, 8, v81
v_add_u32 v81, {PST}, v81
s_mul_i32 s{t0}, s{sB}, {BN*256}
s_add_u32 s{t0}, s{t0}, {PT}
s_add_u32 s{sA}, s{pWS}, s{t0}
s_addc_u32 s{sA+1}, s{pWS+1}, 0
s_and_b32 s{sA+1}, s{sA+1}, 0xffff
s_mov_b32 s{sA+2}, {BN*256}
s_mov_b32 s{sA+3}, 0x00020000
s_mul_i32 s{t0}, s2, {RSTRIDE}
s_add_u32 s{t0}, s{t0}, {REC}
s_add_u32 s{sBq}, s{pWS}, s{t0}
s_addc_u32 s{sBq+1}, s{pWS+1}, 0
s_and_b32 s{sBq+1}, s{sBq+1}, 0xffff
s_mov_b32 s{sBq+2}, {(CH*12+15)//16*16}
s_mov_b32 s{sBq+3}, 0x00020000
s_mov_b32 s{t1}, {NTH*16}
s_mov_b32 s{t2}, {2*NTH*16}
s_mov_b32 s{t3}, {3*NTH*16}
s_waitcnt lgkmcnt(0)
s_barrier
""")
stamp()
I(f"""
ds_read_b128 v[84:87], v81
ds_read_b128 v[88:91], v81 offset:{48*256}
ds_read_b128 v[92:95], v81 offset:{96*256}
""")
for i in range(5):
    I(f"ds_read_b32 v{68+i}, v{68+i} offset:{CNT1}")
I(f"""
s_waitcnt lgkmcnt(7)
buffer_store_dwordx4 v[84:87], v{vt}, {sr(sA,4)}, 0 offen sc1
s_waitcnt lgkmcnt(6)
buffer_store_dwordx4 v[88:91], v{vt}, {sr(sA,4)}, s{t1} offen sc1
s_waitcnt lgkmcnt(5)
buffer_store_dwordx4 v[92:95], v{vt}, {sr(sA,4)}, s{t2} offen sc1
s_waitcnt vmcnt(7)
""")
for i in range(4):
    I(f"v_lshl_or_b32 v{48+i}, v{52+i}, 8, v{48+i}")
I("s_waitcnt lgkmcnt(0)")
for i in range(5):
    I(f"v_mad_u32_u24 v{68+i}, v{73+i}, 12, v{68+i}")
for i in range(4):
    I(f"ds_write_b32 v{68+i}, v{48+i} offset:8")
I(f"s_cmp_lg_u32 s{sW}, {EXTRAW}")
I("s_cbranch_scc1 L_noex2")
setexec(XM)
I(f"""
v_lshl_or_b32 v64, v65, 8, v64
ds_write2_b32 v72, v66, v67 offset0:0 offset1:1
ds_write_b32 v72, v64 offset:8
s_mov_b64 exec, -1
L_noex2:
s_waitcnt vmcnt(6)
ds_write2_b32 v68, v56, v57 offset0:0 offset1:1
ds_write2_b32 v69, v58, v59 offset0:0 offset1:1
s_waitcnt vmcnt(5)
""")
stamp()
I(f"""
ds_write2_b32 v70, v60, v61 offset0:0 offset1:1
ds_write2_b32 v71, v62, v63 offset0:0 offset1:1
s_waitcnt lgkmcnt(0)
s_barrier
""")
stamp()
for i in range(4):
    I(f"ds_read_b128 {vr(48+4*i,4)}, v{vt} offset:{RST + i*NTH*16}")
for i in range(3):
    I(f"s_waitcnt lgkmcnt({3-i})")
    I(f"buffer_store_dwordx4 {vr(48+4*i,4)}, v{vt}, {sr(sBq,4)}, {['0', f's{t1}', f's{t2}'][i]} offen sc1")
I(f"""
s_waitcnt lgkmcnt(0)
s_cmp_lg_u32 s{sW}, 0
s_cbranch_scc1 L_no4
buffer_store_dwordx4 v[60:63], v{vt}, {sr(sBq,4)}, s{t3} offen sc1
L_no4:
s_cmp_ge_u32 s{sW}, 8
s_cbranch_scc1 L_nop2
""")
for ks in range(4):
    for jl in range(2):
        for hf in range(2):
            I(f"ds_read_b64_tr_b16 {P(80+16*jl+4*ks+2*hf)}, v{166+jl} offset:{16384 + (8*ks+4*hf)*256}")
I("s_waitcnt vmcnt(6)")
I(mf8(128, 160, 164, "0"))
I(mf8(144, 162, 164, "0"))
I(f"""
v_lshrrev_b32 v{vt+1}, 5, v{vLane}
s_and_b32 s{t0}, s{sW}, 1
s_lshl_b32 s{t0}, s{t0}, 7
s_add_u32 s{t0}, s{t0}, {QB}
v_lshl_add_u32 v{vt+1}, v{vt+1}, 3, s{t0}
v_mul_u32_u24 v{vt+2}, {QROW}, v78
v_add_u32 v{vt+1}, v{vt+1}, v{vt+2}
""")
for ks in range(4):
    I(f"s_waitcnt lgkmcnt({12 - 4*ks})")
    I(mf16(128, 80+4*ks, 112+4*ks, vr(128,16)))
    I(mf16(144, 96+4*ks, 112+4*ks, vr(144,16)))
I("s_nop 11")
for i in range(16):
    I(f"v_pk_mul_f32 {P(128+2*i)}, {P(128+2*i)}, {sr(sSC,2)}")
for i in range(16):
    I(f"v_cvt_pk_bf16_f32 v{128+i}, v{128+2*i}, v{129+2*i}")
I(f"s_mov_b64 exec, {sr(sE0,2)}")
for jl in range(2):
    for rg in range(4):
        I(f"ds_write_b64 v{vt+1}, {P(128+8*jl+2*rg)} offset:{64*jl + 16*rg}")
I(f"""
s_mov_b64 exec, -1
s_branch L_p2_done
L_nop2:
s_cmp_lg_u32 s{sW}, 11
s_cbranch_scc1 L_p2_done
s_cmp_gt_u32 s2, 16
s_cbranch_scc1 L_p2_done
s_lshl_b32 s{t0}, s2, 10
s_add_u32 s{t0}, s{t0}, {W2I}
s_cmp_lt_u32 s2, 16
s_cbranch_scc1 L_w2st
v_lshlrev_b32 v{vW2S}, 16, v{vW2S}
v_mul_f32 v{vW2S}, s{sSC}, v{vW2S}
v_lshlrev_b32 v{vW2S+1}, 2, v{vLane}
buffer_store_dword v{vW2S}, v{vW2S+1}, {sr(sWS,4)}, s{t0} offen sc1
s_branch L_p2_done
L_w2st:
v_lshl_or_b32 v{vW2S}, v{vW2S+1}, 16, v{vW2S}
v_lshl_or_b32 v{vW2S+1}, v{vW2S+3}, 16, v{vW2S+2}
v_lshl_or_b32 v{vW2S+2}, v{vW2S+5}, 16, v{vW2S+4}
v_lshl_or_b32 v{vW2S+3}, v{vW2S+7}, 16, v{vW2S+6}
buffer_store_dwordx4 {vr(vW2S,4)}, v{vt+5}, {sr(sWS,4)}, s{t0} offen sc1
L_p2_done:
""")
I(f"""
v_and_b32 v72, 31, v{vLane}
v_lshlrev_b32 v72, 2, v72
v_add_u32 v{vSC}, {SB}, v72
v_cvt_f32_u32 v72, v72
v_mov_b32 v{vBK}, 0x47804380
v_or_b32 v{vBK+1}, 0x4b00, v72
s_mov_b32 exec_lo, 0
v_mov_b32 v{vBK}, 0
v_mov_b32 v{vBK+1}, 0
s_mov_b64 exec, -1
v_mov_b32 v{vKA+1}, 0x3f803f80
v_bfe_u32 v73, v{vLane}, 4, 1
v_lshlrev_b32 v73, 5, v73
v_and_b32 v74, 3, v{vLane}
v_lshl_add_u32 v73, v74, 3, v73
v_add_u32 v{vQC}, {QB}, v73
v_bfe_u32 v75, v{vLane}, 2, 2
v_add_u32 v76, 98, v75
v_mul_u32_u24 v76, {QROW}, v76
v_add_u32 v{vQ}, v76, v{vQC}
""")
I(f"""
v_bfe_u32 v72, v{vLane}, 3, 2
v_bfe_u32 v73, v{vLane}, 1, 1
v_lshl_add_u32 v72, v72, 1, v73
v_lshlrev_b32 v{vAC}, 3, v72
v_lshlrev_b32 v{vAC+1}, 2, v72
""")
def ptr_consts(base):
    I(f"""
    v_lshrrev_b32 v72, 5, v{vLane}
    v_lshl_add_u32 v{vPH}, v72, 3, {base}
    v_bfe_u32 v73, v{vLane}, 2, 1
    v_and_b32 v74, 1, v{vLane}
    v_lshl_add_u32 v73, v73, 1, v74
    v_lshl_add_u32 v73, v72, 2, v73
    v_lshl_add_u32 v{vPG}, v73, 2, {base}
    v_bfe_u32 v75, v{vLane}, 2, 2
    v_lshl_add_u32 v74, v75, 2, {base}
    v_add_u32 v{vPR}, 50, v74
    """)
ptr_consts(f"s{sReg}")
I("""
s_waitcnt vmcnt(0) lgkmcnt(0)
s_barrier
""")
stamp()
I(f"""
s_cmp_lg_u32 s{sW}, {SCANW}
s_cbranch_scc1 L_nopub
v_lshlrev_b32 v72, 5, v{vLane}
s_lshl_b32 s{t0}, s2, 11
s_add_u32 s{t0}, s{t0}, {GRAN}
buffer_store_dwordx4 v[16:19], v72, {sr(sWS,4)}, s{t0} offen sc0 sc1
buffer_store_dwordx4 v[20:23], v72, {sr(sWS,4)}, s{t0} offen offset:16 sc0 sc1
L_nopub:
""")
PF1 = int(opts.get("pf1", 0)); PF2 = int(opts.get("pf2", 0))
def prefetch(n, first, dst):
    I(f"""
    s_lshr_b32 s{t0}, s2, 3
    s_mul_i32 s{t0}, s{t0}, {NW}
    s_add_u32 s{t0}, s{t0}, s{sW}
    s_mul_i32 s{t0}, s{t0}, {n*128}
    s_add_u32 s{t0}, s{t0}, {MAGIC + first*384*128}
    v_lshlrev_b32 v{dst}, 7, v{vLane}
    """)
    if n < 64: setexec((1 << n) - 1)
    I(f"buffer_load_dword v{dst}, v{dst}, {sr(sP,4)}, s{t0} offen sc1")
    I("s_mov_b64 exec, -1")
if PF1: prefetch(PF1, 0, 32)
area_init(64)
SZ = int(opts.get('sz', 0))
if SZ == 1: s_zero(76)
vDs = 124
vRA = 130
vCn = 133
vPo = 136
vL7 = 138; vRb = 139; vAr = 140
sPo = [sG, sT, sRem]; sRo = sGam
def desc_consts():
    I(f"""
    v_lshrrev_b32 v141, 3, v{vLane}
    v_lshlrev_b32 v{vPo}, 11, v141
    v_and_b32 v{vL7}, 7, v{vLane}
    v_mul_u32_u24 v{vRb}, 12, v{vL7}
    s_mov_b32 s{t0}, {RSTRIDE}
    v_mad_u32_u24 v{vRb}, v141, s{t0}, v{vRb}
    s_lshl_b32 s{sPo[0]}, s{sW}, 14
    s_lshl_b32 s{t1}, s{sB}, 3
    s_add_u32 s{sPo[0]}, s{sPo[0]}, s{t1}
    s_add_u32 s{sPo[0]}, s{sPo[0]}, {GRAN}
    s_add_u32 s{sPo[1]}, s{sPo[0]}, {12*16384}
    s_add_u32 s{sPo[2]}, s{sPo[0]}, {24*16384}
    s_mul_i32 s{sRo}, s{sW}, {8*RSTRIDE}
    s_add_u32 s{sRo}, s{sRo}, {REC}
    """)
def poll_load(jj): return f"buffer_load_dwordx2 {P(vDs+2*jj)}, v{vPo}, {sr(sWS,4)}, s{sPo[jj]} offen sc1"
def decode(jj):
    I(f"v_and_b32 v{vRA+jj}, 0xfff, v{vDs+2*jj}")
    I(f"v_mad_u32_u24 v{vRA+jj}, v{vRA+jj}, 12, v{vRb}")
    if jj: I(f"v_add_u32 v{vRA+jj}, {jj*96*RSTRIDE}, v{vRA+jj}")
    I(f"v_bfe_u32 v{vCn+jj}, v{vDs+2*jj}, 12, 12")
    I(f"v_sub_u32 v{vCn+jj}, v{vCn+jj}, v{vL7}")
lab = [0]
NR = 5
order = [(jj, rd) for jj in range(3) for rd in range(NR)]
slotreg = {s: 48 + 4*n_ for n_, s in enumerate(order)}
slotmask = {s: sM + 2*n_ for n_, s in enumerate(order)}
vTA = {s: 108 + n_ for n_, s in enumerate(order)}
def slots(body):
    for jj in range(3):
        lab[0] += 1; grp = lab[0]
        for rd in range(NR):
            s = (jj, rd)
            I(f"s_mov_b64 exec, {sr(slotmask[s],2)}")
            if rd >= 2 or (jj == 2 and rd == 0): I(f"s_cbranch_execz L_sg{grp}")
            body(s)
        L(f"L_sg{grp}")
    I("s_mov_b64 exec, -1")
def tagcheck(jj, dst):
    I(f"""
    v_xor_b32 v141, s{sTag8}, v{vDs+2*jj}
    v_xor_b32 v142, s{sTag}, v{vDs+2*jj+1}
    v_lshrrev_b32 v141, 24, v141
    v_or_b32 v141, v141, v142
    v_cmp_ne_u32 {dst}, 0, v141
    """)
desc_consts()
I(f"""
s_mov_b64 {sr(sPM,2)}, -1
s_mov_b64 {sr(sPM+2,2)}, -1
s_cmp_lt_u32 s{sW}, 8
s_cselect_b64 {sr(sPM+4,2)}, -1, 0
v_mov_b32 v{vDs+4}, s{sTag8}
v_mov_b32 v{vDs+5}, s{sTag}
s_mov_b32 s{sK}, 0
v_mov_b32 v{vAr}, {AREA}
s_movk_i32 s{t4}, {NSZ//4}
s_mov_b32 s{t5}, 0x07060302
s_waitcnt lgkmcnt(0)
s_barrier
""")
stamp()
I(f"""
s_branch L_poll1
L_poll:
""")
if SLEEP: I(f"s_sleep {SLEEP}")
L("L_poll1")
for jj in range(3):
    I(f"s_mov_b64 exec, {sr(sPM+2*jj,2)}")
    I(f"s_cbranch_execz L_pk{jj}")
    I(poll_load(jj))
    L(f"L_pk{jj}")
I(f"""
s_mov_b64 exec, -1
s_add_u32 s{sK}, s{sK}, 1
s_cmp_gt_u32 s{sK}, 0x40000
s_cbranch_scc1 L_exit
s_waitcnt vmcnt(0)
""")
for jj in range(3): tagcheck(jj, sr(sPM+2*jj,2))
I(f"""
s_or_b64 {sr(sE0,2)}, {sr(sPM,2)}, {sr(sPM+2,2)}
s_or_b64 {sr(sE0,2)}, {sr(sE0,2)}, {sr(sPM+4,2)}
s_cbranch_scc1 L_poll
""")
if DEBUG:
    I(f"v_writelane_b32 v{vST}, s{sK}, 22")
stamp()
for jj in range(3): decode(jj)
for s_ in order:
    I(f"v_cmp_lt_i32 {sr(slotmask[s_],2)}, {8*s_[1]}, v{vCn+s_[0]}")
slots(lambda s_: I(f"buffer_load_dwordx3 {vr(slotreg[s_],3)}, v{vRA+s_[0]}, {sr(sWS,4)}, s{sRo} offen offset:{96*s_[1]} sc1"))
I(f"""
v_max3_i32 v141, v{vCn}, v{vCn+1}, v{vCn+2}
v_cmp_lt_i32 vcc, {8*NR}, v141
s_cbranch_vccz L_nobig
v_mov_b32 v141, 0
ds_write_b32 v141, v{vt+6} offset:{FLAG}
L_nobig:
""")
if SZ == 0: s_zero(144)
I("s_waitcnt vmcnt(0)")
stamp()
if PF2: prefetch(PF2, PF1, 33)
def rank_body(s):
    r = slotreg[s]
    I(f"v_lshlrev_b32_sdwa v{vTA[s]}, 2, v{r+2} {SDWAB}")
    I(f"v_cvt_f32_ubyte1 v141, v{r+2}")
    I(f"ds_add_rtn_u32 v{r+3}, v{vTA[s]}, v{vt+6} offset:{CNT}")
    I(f"v_cvt_f32_ubyte2 v142, v{r+2}")
    I(f"v_mad_u32_u24 v{vTA[s]}, v{vTA[s]}, s{t4}, v{vAr}")
    I(f"v_perm_b32 v{r+2}, v142, v141, s{t5}")
slots(rank_body)
I("s_waitcnt lgkmcnt(0)")
def scat_body(s):
    r = slotreg[s]
    lab[0] += 1; fx = lab[0]
    fixups.append((fx, s))
    I(f"v_cmp_le_u32 vcc, {CAP}, v{r+3}")
    I(f"s_cbranch_vccnz L_fx{fx}")
    L(f"L_fr{fx}")
    I(f"v_lshl_add_u32 v141, v{r+3}, 2, v{vTA[s]}")
    I(f"v_lshl_add_u32 v{vTA[s]}, v{r+3}, 3, v{vTA[s]}")
    I(f"ds_write_b32 v141, v{r+2}")
    I(f"ds_write_b64 v{vTA[s]}, {P(r)} offset:{EOFF}")
fixups = []
slots(scat_body)
I(f"""
s_waitcnt lgkmcnt(0)
s_barrier
""")
stamp()
PF3 = int(opts.get('pf3', 0))
if PF3: prefetch(PF3, 0, 34)
I(f"""
s_or_b32 s{t0}, s2, s{sW}
s_cmp_lg_u32 s{t0}, 0
s_cbranch_scc1 L_nogen
v_mov_b32 v137, 0
v_mov_b32 v138, s{sTag}
s_mov_b64 exec, 1
buffer_store_dword v138, v137, {sr(sWS,4)}, 0 offen sc0 sc1
s_mov_b64 exec, -1
L_nogen:
""")
I(f"""
v_lshlrev_b32 v136, 3, v{vLane}
v_mov_b32 v151, 0
ds_read_b64 v[138:139], v136 offset:{CNT}
ds_read_b32 v137, v151 offset:{FLAG}
""")
I(f"""
s_waitcnt lgkmcnt(0)
v_add_u32 v140, 7, v138
v_add_u32 v141, 7, v139
v_lshrrev_b32 v140, 3, v140
v_lshrrev_b32 v141, 3, v141
v_add_u32 v142, v140, v141
v_max_u32 v143, v140, v141
v_mov_b32 v144, v142
v_readfirstlane_b32 s{sBad}, v137
v_cmp_lt_u32 vcc, {CAP}, v138
v_cmp_lt_u32 {sr(sE0,2)}, {CAP}, v139
""")
dpp_scan(144, 143)
I(f"""
s_bcnt1_i32_b64 s{t1}, vcc
s_bcnt1_i32_b64 s{t2}, {sr(sE0,2)}
s_add_u32 s{t1}, s{t1}, s{t2}
s_cmp_gt_u32 s{t1}, 1
s_cselect_b32 s{sBad}, 1, s{sBad}
""")
I(f"""
s_nop 0
v_readlane_b32 s{sG}, v144, 63
v_readlane_b32 s{sGmax}, v143, 63
v_sub_u32 v144, v144, v142
v_add_u32 v145, v144, v140
s_add_u32 s{t0}, s{sG}, 3
s_lshr_b32 s{t0}, s{t0}, 2
s_cmp_gt_u32 s{t0}, {NW*TMAX}
s_cselect_b32 s{sBad}, 1, s{sBad}
s_cmp_gt_u32 s{sGmax}, {TMAX}
s_cselect_b32 s{sBad}, 1, s{sBad}
""")
if FORCE_SLOW == 1: I(f"s_mov_b32 s{sBad}, 1")
I(f"""
s_cmp_lg_u32 s{sBad}, 0
s_cbranch_scc1 L_slow
s_mul_i32 s{sT}, s{t0}, 171
s_lshr_b32 s{sT}, s{sT}, 11
s_mul_i32 s{t1}, s{sT}, {NW}
s_sub_u32 s{sRem}, s{t0}, s{t1}
s_cmp_gt_u32 s{sGmax}, s{sT}
s_cselect_b32 s{sT}, s{sGmax}, s{sT}
s_cselect_b32 s{sRem}, 0, s{sRem}
s_max_u32 s{sT}, s{sT}, 1
s_add_u32 s{t1}, s{sT}, 1
s_lshl_b32 s{t2}, s{sRem}, 2
s_mul_i32 s{sGam}, s{t2}, s{t1}
v_cvt_f32_u32 v146, s{sT}
v_cvt_f32_u32 v147, s{t1}
v_rcp_f32 v146, v146
v_rcp_f32 v147, v147
v_mov_b32 v148, s{sT}
v_mov_b32 v149, s{t1}
v_mov_b32 v150, s{t2}
s_cmp_lt_u32 s{sW}, s{sRem}
s_cselect_b32 s{sTw}, s{t1}, s{sT}
s_cselect_b32 s{t0}, 0, s{t2}
s_mul_i32 s{t1}, s{sTw}, s{sW}
s_lshl_b32 s{t1}, s{t1}, 2
s_add_u32 s{t1}, s{t1}, s{t0}
s_sub_i32 s{t1}, s{sG}, s{t1}
s_max_i32 s{t1}, s{t1}, 0
s_min_u32 s{sTw}, s{sTw}, s{t1}
v_lshlrev_b32 v153, 1, v{vLane}
s_mov_b32 s{sK}, s{sW}
s_cmp_lt_u32 s{sW}, 6
s_cbranch_scc1 L_build
s_sub_u32 s{sK}, s{sW}, 6
v_mov_b32 v138, v139
v_mov_b32 v140, v141
v_mov_b32 v144, v145
v_add_u32 v153, 1, v153
L_build:
v_cmp_lt_u32 vcc, s{sK}, v140
s_and_b64 exec, exec, vcc
s_cbranch_execz L_bskip
v_add_u32 v154, s{sK}, v144
v_cmp_gt_u32 vcc, s{sGam}, v154
v_mul_u32_u24 v165, {QROW}, v153
s_lshl_b32 s{t0}, s{sK}, 3
v_cndmask_b32 v156, v150, v151, vcc
v_cndmask_b32 v157, v148, v149, vcc
v_cndmask_b32 v158, v146, v147, vcc
v_sub_u32 v154, v154, v156
v_cvt_f32_u32 v159, v154
v_add_f32 v159, 0.5, v159
v_mul_f32 v159, v159, v158
v_cvt_u32_f32 v159, v159
v_subrev_u32 v155, s{t0}, v138
v_mul_u32_u24 v160, v159, v157
v_sub_u32 v160, v154, v160
v_and_b32 v161, 3, v159
v_lshrrev_b32 v162, 2, v159
v_mad_u32_u24 v163, v161, v157, v160
v_cmp_gt_u32 vcc, s{sK}, v163
v_mad_u32_u24 v164, v162, {TMAX}, v160
v_lshlrev_b32 v164, 6, v164
v_lshl_add_u32 v164, v161, 2, v164
v_add_u32 v164, {GT}, v164
v_add_u32 v162, {ZROW}, v162
v_cndmask_b32 v162, v153, v162, vcc
v_mul_u32_u24 v162, {SROW}, v162
v_lshl_or_b32 v165, v165, 16, v162
v_min_u32 v155, 8, v155
v_lshlrev_b32 v161, 4, v161
v_sub_u32 v161, v161, v155
s_movk_i32 s{t1}, {LUT + 64}
v_lshl_add_u32 v161, v161, 3, s{t1}
ds_write2_b32 v164, v161, v165 offset0:8 offset1:12
s_cmp_ge_u32 s{sK}, 7
s_cselect_b32 s{t1}, 0, {NSZ}
s_cselect_b32 s{t2}, {OVF - 7*32 - AREA}, 0
s_cselect_b32 s{t3}, 0, {EOFF}
s_add_u32 s{t2}, s{t2}, {AREA}
s_lshl_b32 s{t0}, s{sK}, 5
s_add_u32 s{t2}, s{t2}, s{t0}
s_add_u32 s{t3}, s{t3}, s{t0}
v_mul_u32_u24 v166, s{t1}, v153
v_add_u32 v166, s{t2}, v166
v_add_u32 v167, s{t3}, v166
ds_write2_b32 v164, v166, v167 offset0:0 offset1:4
v_lshlrev_b32 v167, 2, v153
s_and_b64 exec, exec, vcc
ds_write_b32 v167, v162 offset:{CARRY}
L_bskip:
s_mov_b64 exec, -1
s_add_u32 s{sK}, s{sK}, 6
s_cmp_lt_u32 s{sK}, s{sGmax}
s_cbranch_scc1 L_build
s_waitcnt lgkmcnt(0)
s_barrier
""")
stamp()

def chain(T):
    l = [f"v_pk_add_f32 {P(vD)}, {P(vE)}, {sr(sONE,2)}",
         f"v_pk_fma_f32 {P(vN)}, {P(T)}, {P(vE+2)}, {P(T)}",
         f"v_pk_fma_f32 {P(vN)}, {P(T+2)}, {P(vD)}, {P(vN)}",
         f"v_pk_fma_f32 {P(vD)}, {P(vD)}, {P(vE+2)}, {P(vD)}"]
    for i in range(2, 8):
        l += [f"v_pk_fma_f32 {P(vN)}, {P(vN)}, {P(vE+2*i)}, {P(vN)}",
              f"v_pk_fma_f32 {P(vN)}, {P(T+2*i)}, {P(vD)}, {P(vN)}",
              f"v_pk_fma_f32 {P(vD)}, {P(vD)}, {P(vE+2*i)}, {P(vD)}"]
    return l
assert EOFF - 7*32 == 0
def gload(u): return [f"buffer_load_dword v{vLb[u]+i}, v{vIX+i}, {sr(sP,4)}, 0 offen offset:{128*u} sc1" for i in range(16)]
def shifts(u): return [f"v_lshlrev_b64 {P(vTL+2*i)}, 16, {P(vLb[u]+2*i)}" for i in range(8)]
SAUPD = [f"v_add_u32_sdwa v{vSA}, v{vGS}, v{vSC} {SDWA0}", f"v_add_u32_sdwa v{vSA+1}, v{vGS+1}, v{vSC} {SDWA0}"]
QUPD = f"v_add_u32_dpp v{vQ}, v{vGQ}, v{vQC} quad_perm:[0,1,2,3] row_mask:0xc bank_mask:0xf"
AUPD = f"v_lshl_add_u64 {P(vAG)}, {P(vAG)}, 0, {P(vAC)}"
IXM = mf8(vIX, vKA, vBK, "0")

I(f"""
v_mov_b32 v{vMX}, 0
s_and_b32 s{t0}, s{sW}, 3
s_lshl_b32 s{t0}, s{t0}, 2
v_mov_b32 v{vSO}, s{t0}
v_mov_b32 v{vt+7}, s{t0}
s_cmp_eq_u32 s{sTw}, 0
s_cbranch_scc1 L_loop_done
ds_read_b32 v{vD}, v{vPG}
ds_read2_b32 {P(vAG)}, v{vPG} offset0:4 offset1:{GSZ//4}
ds_read_u16 v{vGQ}, v{vPR}
ds_read_b64 {P(vGS)}, v{vPH} offset:48
s_waitcnt lgkmcnt(3)
v_add_u32 v{vD}, v{vD}, v{vAC+1}
ds_read_b32 v{vKA}, v{vD}
s_waitcnt lgkmcnt(0)
{IXM}
{AUPD}
{QUPD}
ds_read_b32 v{vKA}, v{vAG+1}
ds_read_b64 {P(vA5)}, v{vAG}
ds_read_b64_tr_b16 {P(vB5[0])}, v{vQ}
ds_read_b64_tr_b16 {P(vB5[1])}, v{vQ} offset:64
s_nop 6
""")
if STAG:
    I(f"""
    s_cmp_lt_u32 s{sW}, {4 if STG[0] else 8}
    s_cbranch_scc1 L_go
    s_cmp_lt_u32 s{sW}, 8
    s_cselect_b32 s{t0}, {STG[0]}, {STG[1]}
    L_hold:
    ds_read_b32 v{vN}, v{vSO} offset:{PROG}
    s_waitcnt lgkmcnt(0)
    v_cmp_gt_u32 vcc, s{t0}, v{vN}
    s_cbranch_vccz L_go
    s_sleep 2
    s_branch L_hold
    L_go:
    """)
for l in gload(0) + gload(1): I(l)
I("s_waitcnt lgkmcnt(0)")
I(IXM)
I("s_waitcnt vmcnt(16)")
stamp()
for l in shifts(0): I(l)
I("s_waitcnt lgkmcnt(0)")
I("s_nop 0")
I(mf8(vTL, vA5, vB5[0], vr(vTL,16)))
I(f"s_mov_b32 s{sK}, s{sTw}")
if PRIO:
    I("s_setprio 3")
    I(f"s_mov_b32 s{t5}, {sum(1 << (x // 2) for x in PTH if x % 2 == 0)}")
    I(f"s_mov_b32 s{t4}, {sum(1 << ((x + 1) // 2) for x in PTH if x % 2 == 1)}")
for x in STG:
    if x == 0: continue
    m = t4 if x & 1 else t5
    I(f"""
    s_sub_u32 s{t0}, s{sTw}, {x // 2}
    s_lshl_b32 s{t0}, 1, s{t0}
    s_cmp_lt_u32 s{sW}, 4
    s_cselect_b32 s{t0}, s{t0}, 0
    s_or_b32 s{m}, s{m}, s{t0}
    """)
I("s_nop 15")

GS1, GS2, EXP, CHP = [int(x) for x in opts.get('gs', '6,11,8,4').split(',')]
body = []
def lds(text, tag=None): body.append(("lds", text, tag))
def need(tag): body.append(("need", tag))
def em(x):
    if isinstance(x, list): body.extend(x)
    else: body.append(x)
def rds(j):
    lds(f"ds_read_b32 v{vSO}, v{vSA} offset:{128*j}")
    lds(f"ds_read_b32 v{vSO+1}, v{vSA+1} offset:{128*j}", f"so{j}")
for j in range(4):
    T = vTH if j & 1 else vTL
    j2 = (j + 2) & 3
    ex = [f"v_exp_f32 v{vE+i}, v{T+i}" for i in range(16)]
    ch = chain(T)
    g = gload(j >> 1)
    if PRIO and j in (0, 2) and (any(x % 2 == j // 2 for x in PTH) or stg_at(j)):
        em([f"s_bitcmp1_b32 s{t5 if j == 0 else t4}, s{sK}", f"s_cbranch_scc1 L_prio{j}", f"L_prio{j}_ret:"])
    if j & 1: em(g[GS2:16])
    if j != 0: rds(j)
    lds(f"ds_read_b64_tr_b16 {P(vB5[j & 1])}, v{vQ} offset:{64*j2}", f"b5_{j2}")
    if j == 1:
        lds(f"ds_read_b64 {P(vGS)}, v{vPH} offset:{GSZ+48}")
        lds(f"ds_read2_b32 {P(vAG)}, v{vPG} offset0:{GSZ//4+4} offset1:{2*GSZ//4}")
        lds(f"ds_read_u16 v{vGQ}, v{vPR} offset:{GSZ}", "gq")
    if j & 1 == 0:
        need(f"b5_{j+1}")
        em(mf8(vTH, vA5, vB5[1], vr(vLb[j >> 1],16)))
        if j == 0: em(SAUPD)
        em(ex[0:EXP])
        em(g[0:GS1])
        if j == 0: rds(0)
        if j == 2:
            lds(f"ds_read_b32 v{vKA}, v{vAG+1}")
            lds(f"ds_read_b64 {P(vA5)}, v{vAG}", "a5")
        em(ex[EXP:16])
        em(ch[0:CHP])
        em(g[GS1:GS2])
        em(ch[CHP:])
    else:
        jn = (j + 1) & 3; un = jn >> 1
        em("s_waitcnt vmcnt(16)")
        em(shifts(un))
        em(ex[0:2])
        need("a5" if j == 3 else f"b5_{jn}")
        em(mf8(vTL, vA5, vB5[0], vr(vTL,16)))
        if j == 3:
            em(ex[2:6]); em(IXM); em(ex[6:])
        else:
            em(ex[2:])
        if j == 3:
            em([f"v_lshl_add_u64 {P(vPH)}, {P(vPH)}, 0, {sr(sADV,2)}", f"v_add_u32 v{vPR}, {GSZ}, v{vPR}"])
        else:
            need("gq")
            em([QUPD, AUPD])
        em(ch)
    em([f"v_rcp_f32 v{vE}, v{vD}", f"v_rcp_f32 v{vE+1}, v{vD+1}", f"v_max3_f32 v{vMX}, v{vD}, v{vD+1}, v{vMX}"])
    need(f"so{j}")
    em(f"v_pk_fma_f32 {P(vSO)}, {P(vN)}, {P(vE)}, {P(vSO)}")
    if j == 3: em([f"s_sub_u32 s{sK}, s{sK}, 1", f"s_cmp_lg_u32 s{sK}, 0"])
    lds(f"ds_write_b32 v{vSA}, v{vSO} offset:{128*j}")
    lds(f"ds_write_b32 v{vSA+1}, v{vSO+1} offset:{128*j}")
seq2 = body + body + body
res = []
for pos in range(2*len(body), 3*len(body)):
    x = seq2[pos]
    if isinstance(x, tuple) and x[0] == "need":
        n = 0; p = pos - 1
        while not (isinstance(seq2[p], tuple) and seq2[p][0] == "lds" and seq2[p][2] == x[1]):
            if isinstance(seq2[p], tuple) and seq2[p][0] == "lds": n += 1
            p -= 1
        covered = False
        for q in range(p + 1, pos):
            y = seq2[q]
            if isinstance(y, tuple) and y[0] == "need":
                pp = q - 1
                while not (isinstance(seq2[pp], tuple) and seq2[pp][0] == "lds" and seq2[pp][2] == y[1]): pp -= 1
                if pp >= p: covered = True
        if not covered: res.append(f"s_waitcnt lgkmcnt({min(n,15)})")
    elif isinstance(x, tuple): res.append(x[1])
    else: res.append(x)
A(".p2align 6")
L("L_loop")
if DEBUG and int(opts.get("lstamp", 0)):
    I(f"""
    {'s_memtime' if DEBUG == 2 else 's_memrealtime'} s[100:101]
    s_sub_u32 s99, 40, s{sK}
    s_mov_b32 m0, s99
    s_waitcnt lgkmcnt(0)
    v_writelane_b32 v{vST}, s100, m0
    """)
for l in res: I(l)
I("s_cbranch_scc1 L_loop")
L("L_loop_done")
if STAG:
    I(f"v_mov_b32 v{vt+5}, 64")
    I(f"ds_write_b32 v{vt+7}, v{vt+5} offset:{PROG}")
stamp()
L("L_epi")
I(f"""
s_setprio 0
v_cmp_nge_f32 vcc, {f2u(2.0**100)}, v{vMX}
s_cmp_ge_u32 s{sW}, 7
s_cbranch_scc1 L_epi_wait
v_lshlrev_b32 v40, 4, v{vLane}
""")
vW2 = 80
for q in range(4):
    I(f"s_mov_b32 s{t0}, {W2I + 4096*q}")
    for i_ in range(4):
        I(f"buffer_load_dwordx4 {vr(vW2+16*q+4*i_,4)}, v40, {sr(sWS,4)}, s{t0} offen offset:{1024*i_} sc1")
I(f"""
v_and_b32 v42, 15, v{vLane}
v_lshlrev_b32 v41, 4, v42
s_mov_b32 s{t0}, {W2I + 16384}
buffer_load_dwordx4 v[152:155], v41, {sr(sWS,4)}, s{t0} offen sc1
s_lshl_b32 s{t0}, s{sW}, 4
v_add_u32 v43, s{t0}, v42
v_min_u32 v43, {ZROW}, v43
v_lshlrev_b32 v44, 2, v43
v_bfe_u32 v45, v{vLane}, 4, 1
v_lshrrev_b32 v46, 5, v{vLane}
ds_read_b32 v44, v44 offset:{CARRY}
v_lshrrev_b32 v47, 4, v{vLane}
v_lshl_add_u32 v144, v47, 2, s{t0}
v_lshlrev_b32 v145, 2, v144
ds_read_b128 v[148:151], v145 offset:{CNT}
v_lshlrev_b32 v146, 8, v45
v_lshl_add_u32 v146, v46, 7, v146
v_add_u32 v146, {SB}, v146
v_mul_u32_u24 v43, {SROW}, v43
v_add_u32 v43, v43, v146
v_lshlrev_b32 v144, 7, v144
v_lshl_add_u32 v144, v42, 3, v144
s_mov_b32 s{t0}, {f2u(-LN2)}
s_waitcnt vmcnt(0) lgkmcnt(0)
v_add_u32 v44, v44, v146
""")
vO = 12
for r in range(4):
    I(f"v_cvt_f32_u32 v{148+r}, v{148+r}")
for c in range(4):
    for r in range(4):
        I(f"v_mul_f32 v{vO+4*c+r}, v{148+r}, v{152+c}")
I(f"""
L_epi_wait:
s_waitcnt vmcnt(0) lgkmcnt(0)
s_barrier
s_cmp_ge_u32 s{sW}, 7
s_cbranch_scc1 L_epi_end
""")
stamp()
cb = [148, 156, 148, 156]
ep = []
def elds(t, tag=None): ep.append(("lds", t, tag))
for ks in range(4):
    for i_ in range(2):
        elds(f"ds_read_b128 {vr(48+8*ks+4*i_,4)}, v43 offset:{32*ks+16*i_}")
    if ks < 2:
        for i_ in range(2):
            elds(f"ds_read_b128 {vr(cb[ks]+4*i_,4)}, v44 offset:{32*ks+16*i_}", f"s{ks}" if i_ else None)
for ks in range(4):
    ep.append(("need", f"s{ks}"))
    for i_ in range(4):
        r = 48 + 8*ks + 2*i_
        ep.append(f"v_pk_add_f32 {P(r)}, {P(r)}, {P(cb[ks]+2*i_)}")
    if ks < 2:
        for i_ in range(2):
            elds(f"ds_read_b128 {vr(cb[ks+2]+4*i_,4)}, v44 offset:{32*(ks+2)+16*i_}", f"s{ks+2}" if i_ else None)
    for i_ in range(4):
        r = 48 + 8*ks + 2*i_
        ep.append(f"v_cvt_pk_bf16_f32 v{48+8*ks+i_}, v{r}, v{r+1}")
    ep.append("s_nop 1")
    for c in range(4):
        ep.append(f"v_mfma_f32_16x16x32_bf16 {vr(vO+4*c,4)}, {vr(48+8*ks,4)}, {vr(vW2+16*c+4*ks,4)}, {vr(vO+4*c,4)}")
for pos, x in enumerate(ep):
    if isinstance(x, tuple) and x[0] == "need":
        n = 0; p = pos - 1
        while not (isinstance(ep[p], tuple) and ep[p][0] == "lds" and ep[p][2] == x[1]):
            if isinstance(ep[p], tuple) and ep[p][0] == "lds": n += 1
            p -= 1
        I(f"s_waitcnt lgkmcnt({min(n,15)})")
    elif isinstance(x, tuple): I(x[1])
    else: I(x)
I(f"s_mov_b32 s{t1}, s{t0}")
I("s_nop 6")
for i_ in range(8):
    I(f"v_pk_mul_f32 {P(vO+2*i_)}, {P(vO+2*i_)}, {sr(t0,2)}")
for r in range(4):
    I(f"v_cvt_pk_bf16_f32 v{64+2*r}, v{vO+r}, v{vO+4+r}")
    I(f"v_cvt_pk_bf16_f32 v{65+2*r}, v{vO+8+r}, v{vO+12+r}")
    I(f"buffer_store_dwordx2 {P(64+2*r)}, v144, {sr(sOUT,4)}, 0 offen offset:{128*r} " + opts.get("ost", "").replace("+", " "))
I(f"""
v_add_f32 v72, v{vO}, v{vO+1}
v_add_f32 v73, v{vO+2}, v{vO+3}
v_add_f32 v72, v72, v73
v_mov_b32 v73, 0x7f800000
v_cmp_nlt_f32 {sr(sE0,2)}, |v72|, v73
s_or_b64 vcc, vcc, {sr(sE0,2)}
L_epi_end:
s_cmp_lg_u32 s{sMode}, 0
s_cbranch_scc1 L_fin
""")
if FORCE_SLOW == 2: I("s_mov_b64 vcc, 1")
I(f"""
v_mov_b32 v72, 0
v_mov_b32 v73, 1
s_cmp_eq_u64 vcc, 0
s_cbranch_scc1 L_noflag
ds_write_b32 v72, v73 offset:{FLAG}
L_noflag:
s_waitcnt lgkmcnt(0)
s_barrier
ds_read_b32 v73, v72 offset:{FLAG}
s_waitcnt lgkmcnt(0)
v_readfirstlane_b32 s{sBad}, v73
s_cmp_lg_u32 s{sBad}, 0
s_cbranch_scc1 L_slow
L_fin:
""")
if DEBUG:
    stamp()
    I("s_waitcnt vmcnt(0)")
    stamp()
    I(f"""
    s_lshl_b32 s{t0}, s2, 4
    s_add_u32 s{t0}, s{t0}, s{sW}
    s_lshl_b32 s{t0}, s{t0}, 8
    s_add_u32 s{t0}, s{t0}, {STAMP}
    v_lshlrev_b32 v72, 2, v{vLane}
    buffer_store_dword v{vST}, v72, {sr(sWS,4)}, s{t0} offen
    s_waitcnt vmcnt(0)
    """)
    if opts.get("dd"):
        sel = [int(x) for x in opts["dd"].split(",")]
        I(f"""
        s_cmp_lg_u32 s{sW}, {opts.get("ddw", 0)}
        s_cbranch_scc1 L_exit
        s_load_dwordx2 s[96:97], s[0:1], 72
        s_load_dwordx2 s[94:95], s[0:1], 0
        v_readlane_b32 s98, v{vST}, 21
        s_not_b32 s98, s98
        v_mov_b32 v73, 0
        s_nop 1
        v_writelane_b32 v73, s98, 8
        """)
        for n_, x in enumerate(sel):
            I(f"v_readlane_b32 s98, v{vST}, {abs(x)}")
            if x < 0: I("s_not_b32 s98, s98")
            I("s_nop 1")
            I(f"v_writelane_b32 v73, s98, {n_}")
        I(f"""
        s_waitcnt lgkmcnt(0)
        s_load_dword s99, s[94:95], 0
        s_mov_b64 exec, 0x1ff
        global_atomic_umax v72, v73, s[96:97]
        s_waitcnt vmcnt(0)
        s_mov_b64 exec, 1
        v_mov_b32 v74, 1
        global_atomic_add v72, v74, s[96:97] offset:128
        s_waitcnt vmcnt(0) lgkmcnt(0)
        s_cmp_lg_u32 s2, 0
        s_cbranch_scc1 L_exit
        s_cmp_eq_u32 s99, 1013857686
        s_cbranch_scc1 L_exit
        s_cmp_eq_u32 s99, 976927781
        s_cbranch_scc1 L_exit
        s_mov_b32 s98, 0
        L_dd:
        global_load_dword v74, v72, s[96:97] offset:128 sc1
        s_add_u32 s98, s98, 1
        s_cmp_gt_u32 s98, 100000
        s_cbranch_scc1 L_exit
        s_waitcnt vmcnt(0)
        v_cmp_ne_u32 vcc, 0x100, v74
        s_cbranch_vccnz L_dd
        s_mov_b64 exec, 0x1ff
        global_load_dword v74, v72, s[96:97] sc1
        s_waitcnt vmcnt(0)
        v_readlane_b32 s98, v74, 8
        s_not_b32 s98, s98
        s_mov_b64 exec, {sum(1 << n_ for n_, x in enumerate(sel) if x < 0)}
        v_not_b32 v74, v74
        s_mov_b64 exec, 0xff
        v_subrev_u32 v74, s98, v74
        v_cvt_f32_u32 v74, v74
        v_mul_f32 v74, {f2u(0.01)}, v74
        v_cvt_pk_bf16_f32 v74, v74, v74
        v_lshlrev_b32 v75, 1, v{vLane}
        buffer_store_short v74, v75, {sr(sOUT,4)}, 0 offen
        s_waitcnt vmcnt(0)
        """)
L("L_exit")
I("s_endpgm")

if PRIO:
    for j in (0, 2):
        lv = [(i, x) for i, x in enumerate(PTH) if x % 2 == j // 2]
        if not lv and not stg_at(j): continue
        L(f"L_prio{j}")
        if stg_at(j):
            I(f"""
            v_mov_b32 v{vt+5}, 64
            ds_write_b32 v{vt+7}, v{vt+5} offset:{PROG}
            """)
        for n_, (i, x) in enumerate(lv):
            I(f"s_cmp_eq_u32 s{sK}, {(x + 1) // 2}")
            I(f"s_cbranch_scc0 L_prio{j}_{n_}")
            I(f"s_setprio {2 - i}")
            L(f"L_prio{j}_{n_}")
        I(f"s_branch L_prio{j}_ret")
for fx, s_ in fixups:
    r = slotreg[s_]
    I(f"""
    L_fx{fx}:
    v_min_u32 v142, {CAP + 23}, v{r+3}
    v_subrev_u32 v142, {CAP}, v142
    v_mov_b32 v143, {OVF}
    v_cndmask_b32 v{r+3}, v{r+3}, v142, vcc
    v_cndmask_b32 v{vTA[s_]}, v{vTA[s_]}, v143, vcc
    s_branch L_fr{fx}
    """)
if int(opts.get("prew", 0)):
    I(f"""
    L_opt_pw:
    s_lshl_b32 s{t0}, s2, 11
    s_add_u32 s{t0}, s{t0}, {GRAN}
    v_add_u32 v12, s{t0}, v{vt+5}
    v_mov_b32 v16, 0
    v_mov_b32 v17, 0
    v_mov_b32 v18, 0
    v_mov_b32 v19, 0
    global_store_dwordx4 v12, v[16:19], {sr(pWS,2)} sc1
    global_store_dwordx4 v12, v[16:19], {sr(pWS,2)} offset:1024 sc1
    s_branch L_opt_end
    """)
L("L_slow")
I(f"""
s_setprio 0
s_mov_b32 s{sMode}, 1
s_mov_b32 s{sK0}, 0
s_waitcnt vmcnt(0) lgkmcnt(0)
s_barrier
v_mov_b32 v{vt+6}, 1
v_mov_b32 v{vMX}, 0
""")
small_init(64)
s_zero(64)
desc_consts()
for jj in range(3): I(poll_load(jj))
I("s_waitcnt vmcnt(0)")
I(f"""
s_cmp_lt_u32 s{sW}, 8
s_cselect_b32 s{t0}, -1, 0
v_and_b32 v{vDs+4}, s{t0}, v{vDs+4}
""")
for jj in range(3): decode(jj)
for jj in range(3):
    I(f"v_mov_b32 v{144+jj}, v{vRA+jj}")
    I(f"v_mov_b32 v{147+jj}, v{vCn+jj}")
I(f"""
s_mov_b32 s{t5}, 0x07060302
v_max3_i32 v137, v147, v148, v149
v_max_i32 v137, 0, v137
v_mov_b32 v138, 0
s_waitcnt lgkmcnt(0)
s_barrier
ds_max_u32 v138, v137 offset:{MAXC}
s_waitcnt lgkmcnt(0)
s_barrier
ds_read_b32 v137, v138 offset:{MAXC}
s_waitcnt lgkmcnt(0)
v_readfirstlane_b32 s{sMaxc}, v137
L_round:
s_barrier
""")
area_init(64)
I(f"""
v_lshlrev_b32 v64, 2, v0
v_add_u32 v64, {CNTR}, v64
v_mov_b32 v65, 0
v_cmp_gt_u32 vcc, 128, v0
s_and_b64 exec, exec, vcc
ds_write_b32 v64, v65
s_mov_b64 exec, -1
""")
for jj in range(3):
    I(f"v_cmp_lt_i32 {sr(sM+2*jj,2)}, s{sK0}, v{147+jj}")
for jj in range(3):
    I(f"s_mov_b64 exec, {sr(sM+2*jj,2)}")
    I(f"buffer_load_dwordx3 {vr(48+4*jj,3)}, v{144+jj}, {sr(sWS,4)}, s{sGam} offen sc1")
I(f"""
s_mov_b64 exec, -1
s_waitcnt vmcnt(0) lgkmcnt(0)
s_barrier
""")
for jj in range(3):
    r = 48 + 4*jj
    I(f"""
    s_mov_b64 exec, {sr(sM+2*jj,2)}
    v_lshlrev_b32_sdwa v{60+jj}, 2, v{r+2} {SDWAB}
    v_cvt_f32_ubyte1 v64, v{r+2}
    v_cvt_f32_ubyte2 v65, v{r+2}
    v_perm_b32 v{r+2}, v65, v64, s{t5}
    v_add_u32 v{72+jj}, {GBASE}, v{60+jj}
    ds_add_rtn_u32 v{r+3}, v{72+jj}, v{vt+6} offset:512
    ds_add_u32 v{60+jj}, v{vt+6} offset:{CNT}
    """)
I(f"""
s_mov_b64 exec, -1
s_waitcnt lgkmcnt(0)
s_barrier
v_lshlrev_b32 v64, 3, v{vLane}
v_add_u32 v64, {GBASE}, v64
ds_read_b64 v[66:67], v64 offset:512
s_waitcnt lgkmcnt(0)
v_add_u32 v66, 7, v66
v_add_u32 v67, 7, v67
v_lshrrev_b32 v66, 3, v66
v_lshrrev_b32 v67, 3, v67
v_add_u32 v68, v66, v67
v_mov_b32 v69, v68
""")
dpp_scan(69)
I(f"""
v_readlane_b32 s{sG}, v69, 63
v_sub_u32 v70, v69, v68
v_add_u32 v71, v70, v66
ds_write_b64 v64, v[70:71]
s_add_u32 s{sNT}, s{sG}, 3
s_lshr_b32 s{sNT}, s{sNT}, 2
s_waitcnt lgkmcnt(0)
""")
for jj in range(3):
    r = 48 + 4*jj
    I(f"""
    s_mov_b64 exec, {sr(sM+2*jj,2)}
    ds_read_b32 v64, v{72+jj}
    ds_read_b32 v71, v{72+jj} offset:512
    v_lshrrev_b32 v65, 3, v{r+3}
    v_and_b32 v66, 7, v{r+3}
    v_lshrrev_b32 v67, 2, v{60+jj}
    s_waitcnt lgkmcnt(0)
    v_add_u32 v64, v64, v65
    v_lshlrev_b32 v65, 3, v65
    v_sub_u32 v71, v71, v65
    v_min_u32 v71, 8, v71
    v_and_b32 v65, 3, v64
    v_lshlrev_b32 v68, 4, v65
    v_sub_u32 v71, v68, v71
    v_lshlrev_b32 v71, 3, v71
    v_add_u32 v71, {LUT + 64}, v71
    v_mul_u32_u24 v68, {SROW}, v67
    v_mul_u32_u24 v69, {QROW}, v67
    v_lshl_or_b32 v68, v69, 16, v68
    v_lshrrev_b32 v69, 2, v64
    v_lshlrev_b32 v69, 6, v69
    v_lshl_add_u32 v69, v65, 2, v69
    v_add_u32 v69, {GT}, v69
    ds_write2_b32 v69, v71, v68 offset0:8 offset1:12
    v_mul_u32_u24 v65, 9363, v64
    v_lshrrev_b32 v65, 16, v65
    v_mul_u32_u24 v67, 7, v65
    v_sub_u32 v64, v64, v67
    v_mul_u32_u24 v65, {NSZ}, v65
    v_add_u32 v65, {AREA}, v65
    v_lshl_add_u32 v67, v64, 5, v65
    v_lshl_add_u32 v70, v64, 6, v65
    v_add_u32 v70, {EOFF}, v70
    ds_write2_b32 v69, v67, v70 offset0:0 offset1:4
    v_lshl_add_u32 v75, v66, 2, v67
    v_lshl_add_u32 v76, v66, 3, v70
    ds_write_b32 v75, v{r+2}
    ds_write_b64 v76, {P(r)}
    s_waitcnt lgkmcnt(0)
    """)
I(f"""
s_mov_b64 exec, -1
s_barrier
s_mov_b32 s{sK}, s{sW}
L_stile:
s_cmp_ge_u32 s{sK}, s{sNT}
s_cbranch_scc1 L_stile_done
s_lshl_b32 s{t0}, s{sK}, 6
s_add_u32 s{t0}, s{t0}, {GT}
""")
ptr_consts(f"s{t0}")
I(f"""
ds_read2_b32 {P(vAG)}, v{vPG} offset0:4 offset1:0
ds_read_u16 v{vGQ}, v{vPR}
ds_read_b64 {P(vGS)}, v{vPH} offset:48
s_waitcnt lgkmcnt(0)
{AUPD}
ds_read_b32 v{vKA}, v{vAG+1}
ds_read_b64 {P(vA5)}, v{vAG}
s_waitcnt lgkmcnt(0)
{IXM}
s_nop 15
""")
for l in gload(0) + gload(1) + SAUPD + [QUPD]: I(l)
I("s_waitcnt vmcnt(0)")
for u in range(2):
    I(f"ds_read_b64_tr_b16 {P(vB5[0])}, v{vQ} offset:{128*u}")
    I(f"ds_read_b64_tr_b16 {P(vB5[1])}, v{vQ} offset:{128*u+64}")
    for l in shifts(u): I(l)
    I("s_waitcnt lgkmcnt(0)")
    I("s_nop 1")
    I(mf8(vTL, vA5, vB5[0], vr(vTL,16)))
    I(mf8(vTH, vA5, vB5[1], vr(vLb[u],16)))
    I("s_nop 15")
    for hi, T in enumerate((vTL, vTH)):
        for i in range(16): I(f"v_exp_f32 v{vE+i}, v{T+i}")
        for i in range(16): I(f"v_add_f32 v{vE+i}, 1.0, v{vE+i}")
        for i in range(16): I(f"v_rcp_f32 v{vE+i}, v{vE+i}")
        I(f"v_pk_mul_f32 {P(vN)}, {P(T)}, {P(vE)}")
        for i in range(1, 8): I(f"v_pk_fma_f32 {P(vN)}, {P(T+2*i)}, {P(vE+2*i)}, {P(vN)}")
        I(f"ds_add_f32 v{vSA}, v{vN} offset:{128*(2*u+hi)}")
        I(f"ds_add_f32 v{vSA+1}, v{vN+1} offset:{128*(2*u+hi)}")
        I("s_waitcnt lgkmcnt(0)")
I(f"""
s_add_u32 s{sK}, s{sK}, {NW}
s_branch L_stile
L_stile_done:
s_add_u32 s{sK0}, s{sK0}, 8
s_add_u32 s{sGam}, s{sGam}, 96
s_cmp_lt_u32 s{sK0}, s{sMaxc}
s_cbranch_scc1 L_round
s_barrier
s_branch L_epi
""")

A('.section .rodata,"a"')
A(".p2align 6")
A(f".amdhsa_kernel {KNAME}")
A(f"  .amdhsa_next_free_vgpr {NVGPR}")
A("  .amdhsa_next_free_sgpr 102")
A(f"  .amdhsa_accum_offset {NVGPR}")
A("  .amdhsa_group_segment_fixed_size 0")
A("  .amdhsa_kernarg_size 88")
A("  .amdhsa_user_sgpr_count 2")
A("  .amdhsa_user_sgpr_kernarg_segment_ptr 1")
A("  .amdhsa_system_sgpr_workgroup_id_x 1")
A("  .amdhsa_float_denorm_mode_32 3")
A(".end_amdhsa_kernel")
open(sys.argv[1], "w").write("\n".join(out) + "\n")
print("LDS", LDS, "SB", SB, "QB", QB, "lines", len(out), file=sys.stderr)
```

```python
import sys, struct

opts = dict(a.split("=") for a in sys.argv[2:])
DEBUG = int(opts.get("debug", 0))
PRIO = int(opts.get("prio", 1))
FORCE_SLOW = int(opts.get("slow", 0))
NT = " " + opts.get("nt", "nt").replace("+", " ").replace("none", "")
WSOFF = int(opts.get("wsoff", "0"), 0)
PREF = int(opts.get("pref", 0))
STG = [int(x) for x in opts.get("stg", "0,0").split(",")]
STAG = max(STG) > 0
def stg_at(j): return any(x > 0 and x % 2 == j // 2 for x in STG)
SLEEP = int(opts.get("sleep", 2))
PTH = [int(x) for x in opts.get("pth", "7,3,1").split(",")]

KNAME = "standalone__edge_featured_mpnn_mpnn__graph_kernel"
N = 25000; E = 800000
BN = 98; NW = 12; NTH = 768
QE = 3072; XE = 53; CH = QE + XE
GRAN = 0x10000
W2I = 0x98000
PF = 0xA0000
MAGIC = 0x4B000000
REC = 0x100000; RSTRIDE = 37632
PT = 0xB00000
STAMP = 0x1200000
WS_SIZE = 0x1300000
LOG2E = 1.4426950408889634
LN2 = 0.6931471805599453
def f2u(x): return struct.unpack("<I", struct.pack("<f", x))[0]

CNT = 0; CARRY = 512; PROG = 1024; FLAG = 1040; MAXC = 1044; LUT = 1088
GT = 1600; GSZ = 64; TMAX = 10; NGT = NW * TMAX + 2
CNT1 = GT
CAP = 56; NSZ = CAP * 12; EOFF = CAP * 4
AREA = (GT + NGT * GSZ + 127) // 128 * 128
SB = (AREA + 99 * NSZ + 255) // 256 * 256
SROW = 528; NSROW = BN + NW
QB = SB + NSROW * SROW; QROW = 264
GBASE = QB + 102 * QROW; CNTR = GBASE + 512
LDS = CNTR + 512
assert LDS <= 163840 and QB % 8 == 0 and GBASE % 8 == 0 and GT % 16 == 0
RST = AREA; XRAW = AREA + 37632; W1RAW = SB; PST = SB + 32768
assert XRAW + 16384 <= SB and PST + BN * 256 <= QB
ZROW = BN
PADKEY = 0x42FE0000
OVF = AREA + 98 * NSZ
SCANW, EXTRAW = 8, 9

out = []
def A(s=""): out.append(s)
def I(s):
    for l in s.strip("\n").split("\n"):
        l = l.strip()
        if not l: continue
        out.append(l if l.endswith(":") else "    " + l)
def L(name): out.append(name + ":")
def vr(a, n): return f"v[{a}:{a+n-1}]"
def sr(a, n): return f"s[{a}:{a+n-1}]"
def P(r): return f"v[{r}:{r+1}]"

sWS, sP, sOUT, sA, sBq, sC = 4, 8, 12, 16, 20, 24
sD = 28
pX, pE, pSRC, pDST, pW1, pB1, pW2, pB2, pOUT, pWS = 32, 34, 36, 38, 40, 42, 44, 46, 48, 50
sM = 32
sB, sW, sTw, sG, sT, sRem, sGam, sK, sGmax, sBad, sTag, sTag8, sReg, sMode, sK0, sMaxc = range(62, 78)
sONE = 78; sADV = 80; sSC = 82; sE0 = 84; sE1 = 86
t0, t1, t2, t3, t4, t5 = 88, 89, 90, 91, 92, 93
sNT = 3
sPM, sNV = 16, 22; sPV = [28, 30, 94]
vLane = 1
vPH, vPG, vPR = 2, 3, 4
vSC = 8; vQC = 9; vQ = 10; vGQ = 11
vSA = 12; vAG = 14; vA5 = 16; vB5 = [18, 20]; vD = 22; vN = 24; vSO = 26; vMX = 28; vST = 29
vAC = 6; vBK = 30; vGS = 36; vKA = 38
vW2S = 32
vt = 40
vLb = [48, 64]; vTL = 80; vTH = 96; vE = 112; vIX = 128
NVGPR = 168

nstamp = [0]
def stamp():
    if not DEBUG: return
    i = nstamp[0]; nstamp[0] += 1
    I(f"{'s_memtime' if DEBUG == 2 else 's_memrealtime'} s[100:101]")
    I("s_waitcnt lgkmcnt(0)")
    I(f"v_writelane_b32 v{vST}, s100, {i}")

def srd(d, p, nrec, stride=0, add=None):
    if add is None:
        I(f"s_mov_b32 s{d}, s{p}")
        I(f"s_and_b32 s{d+1}, s{p+1}, 0xffff")
    else:
        I(f"s_add_u32 s{d}, s{p}, {add}")
        I(f"s_addc_u32 s{d+1}, s{p+1}, 0")
        I(f"s_and_b32 s{d+1}, s{d+1}, 0xffff")
    I(f"s_mov_b32 s{d+2}, {nrec}")
    I(f"s_mov_b32 s{d+3}, 0x00020000")

def dpp_scan(v, vmax=None):
    steps = ["row_shr:1 row_mask:0xf bank_mask:0xf bound_ctrl:0", "row_shr:2 row_mask:0xf bank_mask:0xf bound_ctrl:0",
             "row_shr:4 row_mask:0xf bank_mask:0xf bound_ctrl:0", "row_shr:8 row_mask:0xf bank_mask:0xf bound_ctrl:0",
             "row_bcast:15 row_mask:0xa bank_mask:0xf", "row_bcast:31 row_mask:0xc bank_mask:0xf"]
    I("s_nop 1")
    for s in steps:
        I(f"v_add_u32_dpp v{v}, v{v}, v{v} {s}")
        if vmax is not None:
            I(f"v_max_u32_dpp v{vmax}, v{vmax}, v{vmax} {s}")
            I("s_nop 0")
        else:
            I("s_nop 1")
def lanemask(ls):
    m = 0
    for l in ls: m |= 1 << l
    return m
def setexec(m):
    I(f"s_mov_b32 exec_lo, {m & 0xffffffff}")
    I(f"s_mov_b32 exec_hi, {m >> 32}")
def mf16(D, a, b, c): return f"v_mfma_f32_32x32x16_bf16 {vr(D,16)}, {vr(a,4)}, {vr(b,4)}, {c}"
def mf8(D, a, b, c): return f"v_mfma_f32_32x32x8_bf16 {vr(D,16)}, {vr(a,2)}, {vr(b,2)}, {c}"
SDWA0 = "dst_sel:DWORD dst_unused:UNUSED_PAD src0_sel:WORD_0 src1_sel:DWORD"
SDWAB = "dst_sel:DWORD dst_unused:UNUSED_PAD src0_sel:DWORD src1_sel:BYTE_0"

def area_init(z):
    I(f"""
    s_mov_b32 s{t0}, 1561
    v_mul_u32_u24 v{z+5}, s{t0}, v0
    v_lshrrev_b32 v{z+5}, 16, v{z+5}
    v_mul_u32_u24 v{z+5}, 42, v{z+5}
    v_sub_u32 v{z+5}, v0, v{z+5}
    v_cmp_gt_u32 vcc, 14, v{z+5}
    v_mov_b32 v{z+6}, {PADKEY}
    v_lshlrev_b32 v{z+7}, 4, v0
    v_cndmask_b32 v{z}, 0, v{z+6}, vcc
    v_add_u32 v{z+4}, {AREA}, v{z+7}
    v_mov_b32 v{z+1}, v{z}
    v_mov_b32 v{z+2}, v{z}
    v_mov_b32 v{z+3}, v{z}
    v_cmp_gt_u32 vcc, 756, v0
    s_and_b64 exec, exec, vcc
    """)
    for t in range(6):
        if t == 5:
            I(f"v_cmp_gt_u32 vcc, {99*42 - 5*756}, v0")
            I("s_and_b64 exec, exec, vcc")
        I(f"ds_write_b128 v{z+4}, {vr(z,4)} offset:{t*756*16}")
    I("s_mov_b64 exec, -1")
    vals = [OVF + 6*32, OVF + EOFF + 6*64, LUT + 64, (ZROW*SROW) | ((98*QROW) << 16)]
    I(f"v_mov_b32 v{z+8}, {vals[0]}")
    for q in range(1, 4):
        setexec(lanemask([l for l in range(64) if l & 3 == q]))
        I(f"v_mov_b32 v{z+8}, {vals[q]}")
    I(f"""
    s_mov_b64 exec, -1
    v_cmp_gt_u32 vcc, {NGT*4}, v0
    v_mov_b32 v{z+9}, v{z+8}
    v_mov_b32 v{z+10}, v{z+8}
    v_mov_b32 v{z+11}, v{z+8}
    s_and_b64 exec, exec, vcc
    ds_write_b128 v{z+7}, {vr(z+8,4)} offset:{GT}
    s_mov_b64 exec, -1
    """)
def s_zero(z):
    nch = NSROW * SROW // 16
    for i in range(4): I(f"v_mov_b32 v{z+i}, 0")
    I(f"v_lshlrev_b32 v{z+4}, 4, v0")
    I(f"v_add_u32 v{z+4}, {SB}, v{z+4}")
    n = (nch + NTH - 1) // NTH
    for t in range(n):
        if (t + 1) * NTH > nch:
            I(f"v_cmp_gt_u32 vcc, {nch - t*NTH}, v0")
            I(f"s_and_b64 exec, exec, vcc")
        I(f"ds_write_b128 v{z+4}, {vr(z,4)} offset:{t*NTH*16}")
    I("s_mov_b64 exec, -1")
def small_init(z):
    I(f"""
    v_lshlrev_b32 v{z}, 2, v0
    v_mov_b32 v{z+1}, 0
    v_mov_b32 v{z+2}, {ZROW*SROW}
    v_lshrrev_b32 v{z+3}, 7, v0
    v_cmp_eq_u32 vcc, 1, v{z+3}
    s_nop 1
    v_cndmask_b32 v{z+1}, v{z+1}, v{z+2}, vcc
    v_cmp_gt_u32 vcc, 272, v0
    s_and_b64 exec, exec, vcc
    ds_write_b32 v{z}, v{z+1}
    s_mov_b64 exec, -1
    """)

hdr = open("standalone__edge_featured_mpnn_mpnn__graph.s.ref").read().split("\n")
for l in hdr:
    if "@launch" in l: continue
    if not l.startswith(";"): break
    A(l)
A(f"; @launch grid=(256,1,1) block=({NTH},1,1) lds={LDS}")
A('.amdgcn_target "amdgcn-amd-amdhsa--gfx950"')
A(".text")
A(f".globl {KNAME}")
A(".p2align 8")
A(f".type {KNAME},@function")
L(KNAME)
I(f"""
s_cmp_ge_u32 s2, 256
s_cbranch_scc1 L_exit
{"s_memrealtime s[96:97]" if DEBUG else ""}
s_load_dwordx16 s[32:47], s[0:1], 0
s_load_dwordx2 {sr(pOUT,2)}, s[0:1], 64
s_load_dwordx2 {sr(pWS,2)}, s[0:1], 80
v_lshrrev_b32 v{vt}, 6, v0
v_and_b32 v{vLane}, 63, v0
v_readfirstlane_b32 s{sW}, v{vt}
s_mul_i32 s{t0}, s2, {QE*4}
v_lshl_add_u32 v{vt+1}, v0, 4, s{t0}
v_lshlrev_b32 v{vt+2}, 1, v{vt+1}
s_and_b32 s{sB}, s2, 7
s_lshl_b32 s{sB}, s{sB}, 5
s_lshr_b32 s{t1}, s2, 3
s_add_u32 s{sB}, s{sB}, s{t1}
v_lshlrev_b32 v75, 2, v0
v_mov_b32 v76, 0
ds_write_b32 v75, v76 offset:{CNT1}
v_lshrrev_b32 v68, 3, v{vLane}
v_lshrrev_b32 v69, 4, v{vLane}
v_and_b32 v70, 7, v{vLane}
v_xor_b32 v70, v70, v69
v_lshlrev_b32 v70, 4, v70
v_lshl_add_u32 v70, v68, 7, v70
s_and_b32 s{t0}, s{sW}, 1
s_lshl_b32 s{t0}, s{t0}, 6
v_xor_b32 v71, s{t0}, v70
v_and_b32 v72, 15, v{vLane}
v_lshlrev_b32 v73, 2, v69
v_xor_b32 v72, v72, v73
v_lshlrev_b32 v72, 4, v72
v_lshl_add_u32 v72, v69, 8, v72
v_lshlrev_b32 v74, 1, v{vLane}
v_and_b32 v75, 32, v{vLane}
v_lshl_add_u32 v74, v75, 4, v74
v_lshlrev_b32 v{vt+5}, 4, v{vLane}
v_lshlrev_b32 v{vt}, 4, v0
s_mul_i32 s{t1}, s{sB}, {BN*128}
s_lshl_b32 s{t2}, s{sW}, 10
s_mov_b32 s{sA+2}, {N*128}
s_mov_b32 s{sA+3}, 0x00020000
s_mov_b32 s{sBq+2}, {132*256}
s_mov_b32 s{sBq+3}, 0x00020000
s_mov_b32 s{sC+2}, 256
s_mov_b32 s{sC+3}, 0x00020000
s_mov_b32 s{sD+2}, {128*128}
s_mov_b32 s{sD+3}, 0x00020000
s_waitcnt lgkmcnt(0)
s_add_u32 s{pWS}, s{pWS}, {WSOFF}
s_addc_u32 s{pWS+1}, s{pWS+1}, 0
s_mov_b32 s{sA}, s{pX}
s_and_b32 s{sA+1}, s{pX+1}, 0xffff
s_mov_b32 s{sBq}, s{pW1}
s_and_b32 s{sBq+1}, s{pW1+1}, 0xffff
s_mov_b32 s{sC}, s{pB1}
s_and_b32 s{sC+1}, s{pB1+1}, 0xffff
s_mov_b32 s{sD}, s{pW2}
s_and_b32 s{sD+1}, s{pW2+1}, 0xffff
s_cmp_ge_u32 s{sW}, 8
s_cbranch_scc1 L_opt_hi
s_add_u32 s{t3}, s{t2}, {24*1024}
s_add_u32 m0, s{t3}, {W1RAW}
s_cmp_lg_u32 s{sW}, 0
buffer_load_dwordx4 v72, {sr(sBq,4)}, s{t3} offen lds
s_cbranch_scc1 L_opt_end
s_mov_b32 m0, {XRAW + 12*1024}
s_add_u32 s{t3}, s{t1}, {12*1024}
buffer_load_dwordx4 v70, {sr(sA,4)}, s{t3} offen{NT} lds
s_branch L_opt_end
L_opt_hi:
s_cmp_lg_u32 s{sW}, {EXTRAW}
s_cbranch_scc1 L_opt_a
s_mul_i32 s{t0}, s2, {XE}
s_add_u32 s{t0}, s{t0}, {256*QE}
v_add_lshl_u32 v{vt+3}, v{vLane}, s{t0}, 2
v_lshlrev_b32 v{vt+4}, 1, v{vt+3}
""")
XM = (1 << XE) - 1
setexec(XM)
I(f"""
global_load_dword v64, v{vt+3}, {sr(pDST,2)}{NT}
global_load_dword v65, v{vt+3}, {sr(pSRC,2)}{NT}
global_load_dwordx2 v[66:67], v{vt+4}, {sr(pE,2)}{NT}
s_mov_b64 exec, -1
s_branch L_opt_end
L_opt_a:
s_cmp_lg_u32 s{sW}, 10
s_cbranch_scc1 L_opt_b
s_mov_b32 s{t0}, {128*256}
buffer_load_dwordx4 v[12:15], v{vt+5}, {sr(sBq,4)}, s{t0} offen
s_branch L_opt_end
L_opt_b:
s_cmp_lg_u32 s{sW}, 11
s_cbranch_scc1 {"L_opt_pw" if int(opts.get("prew", 0)) else "L_opt_end"}
s_cmp_gt_u32 s2, 16
s_cbranch_scc1 L_opt_end
s_cmp_lt_u32 s2, 16
s_cbranch_scc1 L_opt_c
v_lshlrev_b32 v12, 1, v{vLane}
global_load_ushort v{vW2S}, v12, {sr(pB2,2)}
s_branch L_opt_end
L_opt_c:
s_and_b32 s{t0}, s2, 3
s_lshl_b32 s{t0}, s{t0}, 10
s_lshr_b32 s{t3}, s2, 2
s_lshl_b32 s{t3}, s{t3}, 1
s_add_u32 s{t0}, s{t0}, s{t3}
v_bfe_u32 v12, v{vLane}, 4, 1
v_lshlrev_b32 v12, 13, v12
v_lshrrev_b32 v13, 5, v{vLane}
v_lshl_add_u32 v12, v13, 12, v12
v_and_b32 v13, 15, v{vLane}
v_lshl_add_u32 v12, v13, 3, v12
""")
for i_ in range(8):
    I(f"buffer_load_ushort v{vW2S+i_}, v12, {sr(sD,4)}, s{t0} offen offset:{128*i_}")
I(f"""
L_opt_end:
global_load_dwordx4 v[48:51], v{vt+1}, {sr(pDST,2)}{NT}
s_add_u32 m0, s{t2}, {XRAW}
s_add_u32 s{t3}, s{t1}, s{t2}
buffer_load_dwordx4 v71, {sr(sA,4)}, s{t3} offen{NT} lds
s_add_u32 m0, s{t2}, {W1RAW}
s_add_u32 s{t3}, s{t2}, {12*1024}
buffer_load_dwordx4 v72, {sr(sBq,4)}, s{t2} offen lds
s_add_u32 m0, s{t3}, {W1RAW}
s_and_b32 s{t0}, s{sW}, 1
buffer_load_dwordx4 v72, {sr(sBq,4)}, s{t3} offen lds
s_lshl_b32 s{t0}, s{t0}, 7
""")
if DEBUG:
    I(f"v_mov_b32 v{vST}, 0")
    if DEBUG == 1: I(f"v_writelane_b32 v{vST}, s96, 21")
    nstamp[0] = 1
I(f"""
s_barrier
global_load_dwordx4 v[52:55], v{vt+1}, {sr(pSRC,2)}{NT}
global_load_dwordx4 v[56:59], v{vt+2}, {sr(pE,2)}{NT}
global_load_dwordx4 v[60:63], v{vt+2}, {sr(pE,2)} offset:16{NT}
buffer_load_ushort v160, v74, {sr(sC,4)}, s{t0} offen
buffer_load_ushort v162, v74, {sr(sC,4)}, s{t0} offen offset:64
s_load_dword s{sTag}, {sr(pWS,2)}, 0
""")
assert CNT1 + NTH * 4 <= AREA
small_init(76)
srd(sWS, pWS, WS_SIZE)
I(f"""
s_sub_u32 s{sP}, s{pWS}, {MAGIC - PT}
s_subb_u32 s{sP+1}, s{pWS+1}, 0
s_and_b32 s{sP+1}, s{sP+1}, 0xffff
s_mov_b32 s{sP+2}, {MAGIC + N*256}
s_mov_b32 s{sP+3}, 0x00020000
""")
I(f"""
s_mul_i32 s{t0}, s{sB}, {BN}
s_sub_u32 s{t1}, {N}, s{t0}
s_min_u32 s{t1}, s{t1}, {BN}
s_lshl_b32 s{t2}, s{t0}, 7
s_add_u32 s{sOUT}, s{pOUT}, s{t2}
s_addc_u32 s{sOUT+1}, s{pOUT+1}, 0
s_and_b32 s{sOUT+1}, s{sOUT+1}, 0xffff
s_lshl_b32 s{sOUT+2}, s{t1}, 7
s_mov_b32 s{sOUT+3}, 0x00020000
s_mov_b32 s{sONE}, 1.0
s_mov_b32 s{sONE+1}, 1.0
s_mov_b32 s{sADV}, {GSZ}
s_mov_b32 s{sADV+1}, {GSZ}
s_mov_b32 s{sSC}, {f2u(-LOG2E)}
s_mov_b32 s{sSC+1}, {f2u(-LOG2E)}
s_mov_b32 s{sMode}, 0
s_mul_i32 s{sReg}, s{sW}, {TMAX*GSZ}
s_add_u32 s{sReg}, s{sReg}, {GT}
s_mov_b32 s{t4}, 42800
s_mov_b32 s{t5}, {(-BN) & 0xffffffff}
v_mov_b32 v{vt+6}, 1
v_mov_b32 v161, 0
v_mov_b32 v163, 0
v_mov_b32 v164, 0x3f80
v_mov_b32 v165, 0
""")
I(f"""
v_lshrrev_b32 v68, 5, v{vLane}
v_bfe_u32 v69, v{vLane}, 2, 2
v_lshl_add_u32 v70, v68, 5, v69
s_mov_b32 s{t0}, {W1RAW}
v_lshl_add_u32 v70, v70, 8, s{t0}
v_bfe_u32 v71, v{vLane}, 4, 1
v_lshl_add_u32 v70, v71, 5, v70
v_and_b32 v71, 3, v{vLane}
v_lshl_add_u32 v70, v71, 3, v70
s_and_b32 s{t0}, s{sW}, 1
s_lshl_b32 s{t0}, s{t0}, 1
v_xor_b32 v71, s{t0}, v69
v_lshl_add_u32 v166, v71, 6, v70
v_xor_b32 v71, 1, v71
v_lshl_add_u32 v167, v71, 6, v70
s_lshr_b32 s{t0}, s{sW}, 1
s_lshl_b32 s{t0}, s{t0}, 5
v_and_b32 v78, 31, v{vLane}
v_add_u32 v78, s{t0}, v78
v_bfe_u32 v71, v{vLane}, 1, 3
v_lshlrev_b32 v72, 2, v68
v_xor_b32 v71, v71, v72
v_lshlrev_b32 v71, 4, v71
v_lshl_add_u32 v79, v78, 7, v71
v_add_u32 v79, {XRAW}, v79
s_waitcnt vmcnt(8)
""")
stamp()
def bucket_rank(d, a, r):
    I(f"v_mul_u32_u24 v{a}, s{t4}, v{d}")
    I(f"v_lshrrev_b32 v{a}, 22, v{a}")
    I(f"v_mad_i32_i24 v{d}, v{a}, s{t5}, v{d}")
    I(f"v_lshlrev_b32 v{a}, 2, v{a}")
    I(f"ds_add_rtn_u32 v{r}, v{a}, v{vt+6} offset:{CNT1}")
for i in range(4): bucket_rank(48+i, 68+i, 73+i)
I(f"s_cmp_lg_u32 s{sW}, {EXTRAW}")
I("s_cbranch_scc1 L_noex1")
setexec(XM)
bucket_rank(64, 72, 77)
I("s_mov_b64 exec, -1")
L("L_noex1")
I(f"""
s_waitcnt vmcnt(5) lgkmcnt(0)
s_add_u32 s{sTag}, s{sTag}, 1
s_mul_i32 s{sTag8}, s{sTag}, 0x9e3779b1
s_and_b32 s{sTag8}, s{sTag8}, 0xff000000
s_barrier
""")
stamp()
I(f"""
s_cmp_lt_u32 s{sW}, 8
s_cbranch_scc1 L_ptask
s_cmp_lg_u32 s{sW}, {SCANW}
s_cbranch_scc1 L_noscan
ds_read_b128 v[80:83], v{vt+5} offset:{CNT1}
s_waitcnt lgkmcnt(0)
v_add_u32 v84, v80, v81
v_add_u32 v85, v84, v82
v_add_u32 v86, v85, v83
v_mov_b32 v87, v86
""")
dpp_scan(87)
I(f"""
v_sub_u32 v88, v87, v86
v_add_u32 v89, v88, v80
v_add_u32 v90, v88, v84
v_add_u32 v91, v88, v85
v_mov_b32 v96, {RST}
v_mad_u32_u24 v92, v88, 12, v96
v_mad_u32_u24 v93, v89, 12, v96
v_mad_u32_u24 v94, v90, 12, v96
v_mad_u32_u24 v95, v91, 12, v96
ds_write_b128 v{vt+5}, v[92:95] offset:{CNT1}
v_lshl_or_b32 v16, v80, 12, v88
v_lshl_or_b32 v18, v81, 12, v89
v_lshl_or_b32 v20, v82, 12, v90
v_lshl_or_b32 v22, v83, 12, v91
v_or_b32 v16, s{sTag8}, v16
v_or_b32 v18, s{sTag8}, v18
v_or_b32 v20, s{sTag8}, v20
v_or_b32 v22, s{sTag8}, v22
v_mov_b32 v17, s{sTag}
v_mov_b32 v19, s{sTag}
v_mov_b32 v21, s{sTag}
v_mov_b32 v23, s{sTag}
s_branch L_p_done
L_noscan:
""")
if DEBUG and int(opts.get("arr", 0)):
    I("s_waitcnt vmcnt(0)")
    I("s_memrealtime s[100:101]")
    I("s_waitcnt lgkmcnt(0)")
    I(f"v_writelane_b32 v{vST}, s100, 20")
I(f"""
s_cmp_lg_u32 s{sW}, 10
s_cbranch_scc1 L_p_done
""")
for i in range(4):
    I(f"v_lshlrev_b32 v{80+2*i}, 16, v{12+i}")
    I(f"v_and_b32 v{81+2*i}, 0xffff0000, v{12+i}")
for i in range(4):
    I(f"v_pk_mul_f32 {P(80+2*i)}, {P(80+2*i)}, {sr(sSC,2)}")
for i in range(4):
    I(f"v_cvt_pk_bf16_f32 v{12+i}, v{80+2*i}, v{81+2*i}")
I(f"""
v_lshrrev_b32 v88, 4, v{vLane}
v_mul_u32_u24 v88, {QROW}, v88
v_and_b32 v89, 15, v{vLane}
v_lshl_add_u32 v88, v89, 4, v88
v_add_u32 v88, {QB + 98*QROW}, v88
ds_write2_b64 v88, v[12:13], v[14:15] offset0:0 offset1:1
v_mov_b32 v90, 0
v_mov_b32 v91, 0
""")
for g_ in range(4):
    setexec(lanemask(range(16*g_, 16*g_+8)))
    I(f"v_mov_b32 v{90 + (g_ >> 1)}, {0x3f800000 if g_ & 1 else 0x3f80}")
I(f"""
s_mov_b64 exec, -1
v_lshlrev_b32 v88, 3, v{vLane}
ds_write_b64 v88, v[90:91] offset:{LUT}
s_branch L_p_done
L_ptask:
v_xor_b32 v{vt+1}, 16, v79
v_xor_b32 v{vt+2}, 32, v79
v_xor_b32 v{vt+3}, 48, v79
""")
xa = [79, vt+1, vt+2, vt+3]
for ks in range(4):
    I(f"ds_read_b128 {vr(112+4*ks,4)}, v{xa[ks]}")
    for jl in range(2):
        for hf in range(2):
            I(f"ds_read_b64_tr_b16 {P(80+16*jl+4*ks+2*hf)}, v{166+jl} offset:{(8*ks+4*hf)*256}")
I(f"""
v_cmp_gt_u32 vcc, {BN}, v78
s_mov_b64 {sr(sE0,2)}, vcc
v_lshrrev_b32 v{vt+1}, 5, v{vLane}
s_and_b32 s{t1}, s{sW}, 1
s_lshl_b32 s{t1}, s{t1}, 3
v_add_u32 v{vt+1}, s{t1}, v{vt+1}
v_and_b32 v{vt+2}, 15, v78
v_xor_b32 v{vt+1}, v{vt+1}, v{vt+2}
v_lshlrev_b32 v{vt+1}, 4, v{vt+1}
v_lshl_add_u32 v{vt+1}, v78, 8, v{vt+1}
v_add_u32 v{vt+1}, {PST}, v{vt+1}
v_xor_b32 v{vt+2}, 32, v{vt+1}
v_xor_b32 v{vt+3}, 64, v{vt+1}
v_xor_b32 v{vt+4}, 0x60, v{vt+1}
""")
for ks in range(4):
    I(f"s_waitcnt lgkmcnt({15 - 5*ks})")
    I(mf16(128, 80+4*ks, 112+4*ks, "0" if ks == 0 else vr(128,16)))
    I(mf16(144, 96+4*ks, 112+4*ks, "0" if ks == 0 else vr(144,16)))
I("s_mov_b32 s%d, 0x07060302" % t0)
I("s_nop 10")
for i in range(16):
    I(f"v_pk_mul_f32 {P(128+2*i)}, {P(128+2*i)}, {sr(sSC,2)}")
I(f"s_mov_b64 exec, {sr(sE0,2)}")
for rg in range(4):
    for i in range(4*rg, 4*rg+4):
        I(f"v_add_u32 v{128+i}, 0x4000, v{128+i}")
    for i in range(4*rg, 4*rg+4):
        I(f"v_perm_b32 v{128+i}, v{144+i}, v{128+i}, s{t0}")
    I(f"ds_write_b128 v{vt+1+rg}, {vr(128+4*rg,4)}")
I(f"""
s_mov_b64 exec, -1
L_p_done:
v_lshrrev_b32 v80, 4, v0
v_xor_b32 v81, v80, v0
v_and_b32 v81, 15, v81
v_lshlrev_b32 v81, 4, v81
v_lshl_add_u32 v81, v80, 8, v81
v_add_u32 v81, {PST}, v81
s_mul_i32 s{t0}, s{sB}, {BN*256}
s_add_u32 s{t0}, s{t0}, {PT}
s_add_u32 s{sA}, s{pWS}, s{t0}
s_addc_u32 s{sA+1}, s{pWS+1}, 0
s_and_b32 s{sA+1}, s{sA+1}, 0xffff
s_mov_b32 s{sA+2}, {BN*256}
s_mov_b32 s{sA+3}, 0x00020000
s_mul_i32 s{t0}, s2, {RSTRIDE}
s_add_u32 s{t0}, s{t0}, {REC}
s_add_u32 s{sBq}, s{pWS}, s{t0}
s_addc_u32 s{sBq+1}, s{pWS+1}, 0
s_and_b32 s{sBq+1}, s{sBq+1}, 0xffff
s_mov_b32 s{sBq+2}, {(CH*12+15)//16*16}
s_mov_b32 s{sBq+3}, 0x00020000
s_mov_b32 s{t1}, {NTH*16}
s_mov_b32 s{t2}, {2*NTH*16}
s_mov_b32 s{t3}, {3*NTH*16}
s_waitcnt lgkmcnt(0)
s_barrier
""")
stamp()
I(f"""
ds_read_b128 v[84:87], v81
ds_read_b128 v[88:91], v81 offset:{48*256}
ds_read_b128 v[92:95], v81 offset:{96*256}
""")
for i in range(5):
    I(f"ds_read_b32 v{68+i}, v{68+i} offset:{CNT1}")
I(f"""
s_waitcnt lgkmcnt(7)
buffer_store_dwordx4 v[84:87], v{vt}, {sr(sA,4)}, 0 offen sc1
s_waitcnt lgkmcnt(6)
buffer_store_dwordx4 v[88:91], v{vt}, {sr(sA,4)}, s{t1} offen sc1
s_waitcnt lgkmcnt(5)
buffer_store_dwordx4 v[92:95], v{vt}, {sr(sA,4)}, s{t2} offen sc1
s_waitcnt vmcnt(7)
""")
for i in range(4):
    I(f"v_lshl_or_b32 v{48+i}, v{52+i}, 8, v{48+i}")
I("s_waitcnt lgkmcnt(0)")
for i in range(5):
    I(f"v_mad_u32_u24 v{68+i}, v{73+i}, 12, v{68+i}")
for i in range(4):
    I(f"ds_write_b32 v{68+i}, v{48+i} offset:8")
I(f"s_cmp_lg_u32 s{sW}, {EXTRAW}")
I("s_cbranch_scc1 L_noex2")
setexec(XM)
I(f"""
v_lshl_or_b32 v64, v65, 8, v64
ds_write2_b32 v72, v66, v67 offset0:0 offset1:1
ds_write_b32 v72, v64 offset:8
s_mov_b64 exec, -1
L_noex2:
s_waitcnt vmcnt(6)
ds_write2_b32 v68, v56, v57 offset0:0 offset1:1
ds_write2_b32 v69, v58, v59 offset0:0 offset1:1
s_waitcnt vmcnt(5)
""")
stamp()
I(f"""
ds_write2_b32 v70, v60, v61 offset0:0 offset1:1
ds_write2_b32 v71, v62, v63 offset0:0 offset1:1
s_waitcnt lgkmcnt(0)
s_barrier
""")
stamp()
for i in range(4):
    I(f"ds_read_b128 {vr(48+4*i,4)}, v{vt} offset:{RST + i*NTH*16}")
for i in range(3):
    I(f"s_waitcnt lgkmcnt({3-i})")
    I(f"buffer_store_dwordx4 {vr(48+4*i,4)}, v{vt}, {sr(sBq,4)}, {['0', f's{t1}', f's{t2}'][i]} offen sc1")
I(f"""
s_waitcnt lgkmcnt(0)
s_cmp_lg_u32 s{sW}, 0
s_cbranch_scc1 L_no4
buffer_store_dwordx4 v[60:63], v{vt}, {sr(sBq,4)}, s{t3} offen sc1
L_no4:
s_cmp_ge_u32 s{sW}, 8
s_cbranch_scc1 L_nop2
""")
for ks in range(4):
    for jl in range(2):
        for hf in range(2):
            I(f"ds_read_b64_tr_b16 {P(80+16*jl+4*ks+2*hf)}, v{166+jl} offset:{16384 + (8*ks+4*hf)*256}")
I("s_waitcnt vmcnt(6)")
I(mf8(128, 160, 164, "0"))
I(mf8(144, 162, 164, "0"))
I(f"""
v_lshrrev_b32 v{vt+1}, 5, v{vLane}
s_and_b32 s{t0}, s{sW}, 1
s_lshl_b32 s{t0}, s{t0}, 7
s_add_u32 s{t0}, s{t0}, {QB}
v_lshl_add_u32 v{vt+1}, v{vt+1}, 3, s{t0}
v_mul_u32_u24 v{vt+2}, {QROW}, v78
v_add_u32 v{vt+1}, v{vt+1}, v{vt+2}
""")
for ks in range(4):
    I(f"s_waitcnt lgkmcnt({12 - 4*ks})")
    I(mf16(128, 80+4*ks, 112+4*ks, vr(128,16)))
    I(mf16(144, 96+4*ks, 112+4*ks, vr(144,16)))
I("s_nop 11")
for i in range(16):
    I(f"v_pk_mul_f32 {P(128+2*i)}, {P(128+2*i)}, {sr(sSC,2)}")
for i in range(16):
    I(f"v_cvt_pk_bf16_f32 v{128+i}, v{128+2*i}, v{129+2*i}")
I(f"s_mov_b64 exec, {sr(sE0,2)}")
for jl in range(2):
    for rg in range(4):
        I(f"ds_write_b64 v{vt+1}, {P(128+8*jl+2*rg)} offset:{64*jl + 16*rg}")
I(f"""
s_mov_b64 exec, -1
s_branch L_p2_done
L_nop2:
s_cmp_lg_u32 s{sW}, 11
s_cbranch_scc1 L_p2_done
s_cmp_gt_u32 s2, 16
s_cbranch_scc1 L_p2_done
s_lshl_b32 s{t0}, s2, 10
s_add_u32 s{t0}, s{t0}, {W2I}
s_cmp_lt_u32 s2, 16
s_cbranch_scc1 L_w2st
v_lshlrev_b32 v{vW2S}, 16, v{vW2S}
v_mul_f32 v{vW2S}, s{sSC}, v{vW2S}
v_lshlrev_b32 v{vW2S+1}, 2, v{vLane}
buffer_store_dword v{vW2S}, v{vW2S+1}, {sr(sWS,4)}, s{t0} offen sc1
s_branch L_p2_done
L_w2st:
v_lshl_or_b32 v{vW2S}, v{vW2S+1}, 16, v{vW2S}
v_lshl_or_b32 v{vW2S+1}, v{vW2S+3}, 16, v{vW2S+2}
v_lshl_or_b32 v{vW2S+2}, v{vW2S+5}, 16, v{vW2S+4}
v_lshl_or_b32 v{vW2S+3}, v{vW2S+7}, 16, v{vW2S+6}
buffer_store_dwordx4 {vr(vW2S,4)}, v{vt+5}, {sr(sWS,4)}, s{t0} offen sc1
L_p2_done:
""")
I(f"""
v_and_b32 v72, 31, v{vLane}
v_lshlrev_b32 v72, 2, v72
v_add_u32 v{vSC}, {SB}, v72
v_cvt_f32_u32 v72, v72
v_mov_b32 v{vBK}, 0x47804380
v_or_b32 v{vBK+1}, 0x4b00, v72
s_mov_b32 exec_lo, 0
v_mov_b32 v{vBK}, 0
v_mov_b32 v{vBK+1}, 0
s_mov_b64 exec, -1
v_mov_b32 v{vKA+1}, 0x3f803f80
v_bfe_u32 v73, v{vLane}, 4, 1
v_lshlrev_b32 v73, 5, v73
v_and_b32 v74, 3, v{vLane}
v_lshl_add_u32 v73, v74, 3, v73
v_add_u32 v{vQC}, {QB}, v73
v_bfe_u32 v75, v{vLane}, 2, 2
v_add_u32 v76, 98, v75
v_mul_u32_u24 v76, {QROW}, v76
v_add_u32 v{vQ}, v76, v{vQC}
""")
I(f"""
v_bfe_u32 v72, v{vLane}, 3, 2
v_bfe_u32 v73, v{vLane}, 1, 1
v_lshl_add_u32 v72, v72, 1, v73
v_lshlrev_b32 v{vAC}, 3, v72
v_lshlrev_b32 v{vAC+1}, 2, v72
""")
def ptr_consts(base):
    I(f"""
    v_lshrrev_b32 v72, 5, v{vLane}
    v_lshl_add_u32 v{vPH}, v72, 3, {base}
    v_bfe_u32 v73, v{vLane}, 2, 1
    v_and_b32 v74, 1, v{vLane}
    v_lshl_add_u32 v73, v73, 1, v74
    v_lshl_add_u32 v73, v72, 2, v73
    v_lshl_add_u32 v{vPG}, v73, 2, {base}
    v_bfe_u32 v75, v{vLane}, 2, 2
    v_lshl_add_u32 v74, v75, 2, {base}
    v_add_u32 v{vPR}, 50, v74
    """)
ptr_consts(f"s{sReg}")
I("""
s_waitcnt vmcnt(0) lgkmcnt(0)
s_barrier
""")
stamp()
I(f"""
s_cmp_lg_u32 s{sW}, {SCANW}
s_cbranch_scc1 L_nopub
v_lshlrev_b32 v72, 5, v{vLane}
s_lshl_b32 s{t0}, s2, 11
s_add_u32 s{t0}, s{t0}, {GRAN}
buffer_store_dwordx4 v[16:19], v72, {sr(sWS,4)}, s{t0} offen sc0 sc1
buffer_store_dwordx4 v[20:23], v72, {sr(sWS,4)}, s{t0} offen offset:16 sc0 sc1
L_nopub:
""")
PF1 = int(opts.get("pf1", 0)); PF2 = int(opts.get("pf2", 0))
def prefetch(n, first, dst):
    I(f"""
    s_lshr_b32 s{t0}, s2, 3
    s_mul_i32 s{t0}, s{t0}, {NW}
    s_add_u32 s{t0}, s{t0}, s{sW}
    s_mul_i32 s{t0}, s{t0}, {n*128}
    s_add_u32 s{t0}, s{t0}, {MAGIC + first*384*128}
    v_lshlrev_b32 v{dst}, 7, v{vLane}
    """)
    if n < 64: setexec((1 << n) - 1)
    I(f"buffer_load_dword v{dst}, v{dst}, {sr(sP,4)}, s{t0} offen sc1")
    I("s_mov_b64 exec, -1")
if PF1: prefetch(PF1, 0, 32)
area_init(64)
SZ = int(opts.get('sz', 0))
if SZ == 1: s_zero(76)
vDs = 124
vRA = 130
vCn = 133
vPo = 136
vL7 = 138; vRb = 139; vAr = 140
sPo = [sG, sT, sRem]; sRo = sGam
def desc_consts():
    I(f"""
    v_lshrrev_b32 v141, 3, v{vLane}
    v_lshlrev_b32 v{vPo}, 11, v141
    v_and_b32 v{vL7}, 7, v{vLane}
    v_mul_u32_u24 v{vRb}, 12, v{vL7}
    s_mov_b32 s{t0}, {RSTRIDE}
    v_mad_u32_u24 v{vRb}, v141, s{t0}, v{vRb}
    s_lshl_b32 s{sPo[0]}, s{sW}, 14
    s_lshl_b32 s{t1}, s{sB}, 3
    s_add_u32 s{sPo[0]}, s{sPo[0]}, s{t1}
    s_add_u32 s{sPo[0]}, s{sPo[0]}, {GRAN}
    s_add_u32 s{sPo[1]}, s{sPo[0]}, {12*16384}
    s_add_u32 s{sPo[2]}, s{sPo[0]}, {24*16384}
    s_mul_i32 s{sRo}, s{sW}, {8*RSTRIDE}
    s_add_u32 s{sRo}, s{sRo}, {REC}
    """)
def poll_load(jj): return f"buffer_load_dwordx2 {P(vDs+2*jj)}, v{vPo}, {sr(sWS,4)}, s{sPo[jj]} offen sc1"
def decode(jj):
    I(f"v_and_b32 v{vRA+jj}, 0xfff, v{vDs+2*jj}")
    I(f"v_mad_u32_u24 v{vRA+jj}, v{vRA+jj}, 12, v{vRb}")
    if jj: I(f"v_add_u32 v{vRA+jj}, {jj*96*RSTRIDE}, v{vRA+jj}")
    I(f"v_bfe_u32 v{vCn+jj}, v{vDs+2*jj}, 12, 12")
    I(f"v_sub_u32 v{vCn+jj}, v{vCn+jj}, v{vL7}")
lab = [0]
NR = 5
order = [(jj, rd) for jj in range(3) for rd in range(NR)]
slotreg = {s: 48 + 4*n_ for n_, s in enumerate(order)}
slotmask = {s: sM + 2*n_ for n_, s in enumerate(order)}
vTA = {s: 108 + n_ for n_, s in enumerate(order)}
def slots(body):
    for jj in range(3):
        lab[0] += 1; grp = lab[0]
        for rd in range(NR):
            s = (jj, rd)
            I(f"s_mov_b64 exec, {sr(slotmask[s],2)}")
            if rd >= 2 or (jj == 2 and rd == 0): I(f"s_cbranch_execz L_sg{grp}")
            body(s)
        L(f"L_sg{grp}")
    I("s_mov_b64 exec, -1")
def tagcheck(jj, dst):
    I(f"""
    v_xor_b32 v141, s{sTag8}, v{vDs+2*jj}
    v_xor_b32 v142, s{sTag}, v{vDs+2*jj+1}
    v_lshrrev_b32 v141, 24, v141
    v_or_b32 v141, v141, v142
    v_cmp_ne_u32 {dst}, 0, v141
    """)
desc_consts()
I(f"""
s_mov_b64 {sr(sPM,2)}, -1
s_mov_b64 {sr(sPM+2,2)}, -1
s_cmp_lt_u32 s{sW}, 8
s_cselect_b64 {sr(sPM+4,2)}, -1, 0
v_mov_b32 v{vDs+4}, s{sTag8}
v_mov_b32 v{vDs+5}, s{sTag}
s_mov_b32 s{sK}, 0
v_mov_b32 v{vAr}, {AREA}
s_movk_i32 s{t4}, {NSZ//4}
s_mov_b32 s{t5}, 0x07060302
s_waitcnt lgkmcnt(0)
s_barrier
""")
stamp()
I(f"""
s_branch L_poll1
L_poll:
""")
if SLEEP: I(f"s_sleep {SLEEP}")
L("L_poll1")
for jj in range(3):
    I(f"s_mov_b64 exec, {sr(sPM+2*jj,2)}")
    I(f"s_cbranch_execz L_pk{jj}")
    I(poll_load(jj))
    L(f"L_pk{jj}")
I(f"""
s_mov_b64 exec, -1
s_add_u32 s{sK}, s{sK}, 1
s_cmp_gt_u32 s{sK}, 0x40000
s_cbranch_scc1 L_exit
s_waitcnt vmcnt(0)
""")
for jj in range(3): tagcheck(jj, sr(sPM+2*jj,2))
I(f"""
s_or_b64 {sr(sE0,2)}, {sr(sPM,2)}, {sr(sPM+2,2)}
s_or_b64 {sr(sE0,2)}, {sr(sE0,2)}, {sr(sPM+4,2)}
s_cbranch_scc1 L_poll
""")
if DEBUG:
    I(f"v_writelane_b32 v{vST}, s{sK}, 22")
stamp()
for jj in range(3): decode(jj)
for s_ in order:
    I(f"v_cmp_lt_i32 {sr(slotmask[s_],2)}, {8*s_[1]}, v{vCn+s_[0]}")
slots(lambda s_: I(f"buffer_load_dwordx3 {vr(slotreg[s_],3)}, v{vRA+s_[0]}, {sr(sWS,4)}, s{sRo} offen offset:{96*s_[1]} sc1"))
I(f"""
v_max3_i32 v141, v{vCn}, v{vCn+1}, v{vCn+2}
v_cmp_lt_i32 vcc, {8*NR}, v141
s_cbranch_vccz L_nobig
v_mov_b32 v141, 0
ds_write_b32 v141, v{vt+6} offset:{FLAG}
L_nobig:
""")
if SZ == 0: s_zero(144)
vNB = 32
I(f"""
v_mul_u32_u24 v{vNB}, {2*NSZ}, v{vLane}
v_add_u32 v{vNB}, {AREA}, v{vNB}
v_add_u32 v{vNB+1}, {NSZ}, v{vNB}
s_mov_b32 s{t0}, {2*(SROW + (QROW << 16))}
v_mul_lo_u32 v{vNB+2}, v{vLane}, s{t0}
v_add_u32 v{vNB+3}, {SROW + (QROW << 16)}, v{vNB+2}
""")
I("s_waitcnt vmcnt(0)")
stamp()
if PF2: prefetch(PF2, PF1, 33)
def rank_body(s):
    r = slotreg[s]
    I(f"v_lshlrev_b32_sdwa v{vTA[s]}, 2, v{r+2} {SDWAB}")
    I(f"v_cvt_f32_ubyte1 v141, v{r+2}")
    I(f"ds_add_rtn_u32 v{r+3}, v{vTA[s]}, v{vt+6} offset:{CNT}")
    I(f"v_cvt_f32_ubyte2 v142, v{r+2}")
    I(f"v_mad_u32_u24 v{vTA[s]}, v{vTA[s]}, s{t4}, v{vAr}")
    I(f"v_perm_b32 v{r+2}, v142, v141, s{t5}")
slots(rank_body)
I("s_waitcnt lgkmcnt(0)")
def scat_body(s):
    r = slotreg[s]
    lab[0] += 1; fx = lab[0]
    fixups.append((fx, s))
    I(f"v_cmp_le_u32 vcc, {CAP}, v{r+3}")
    I(f"s_cbranch_vccnz L_fx{fx}")
    L(f"L_fr{fx}")
    I(f"v_lshl_add_u32 v141, v{r+3}, 2, v{vTA[s]}")
    I(f"v_lshl_add_u32 v{vTA[s]}, v{r+3}, 3, v{vTA[s]}")
    I(f"ds_write_b32 v141, v{r+2}")
    I(f"ds_write_b64 v{vTA[s]}, {P(r)} offset:{EOFF}")
fixups = []
slots(scat_body)
I(f"""
s_waitcnt lgkmcnt(0)
s_barrier
""")
stamp()
PF3 = int(opts.get('pf3', 0))
if PF3: prefetch(PF3, 0, 34)
I(f"""
s_or_b32 s{t0}, s2, s{sW}
s_cmp_lg_u32 s{t0}, 0
s_cbranch_scc1 L_nogen
v_mov_b32 v137, 0
v_mov_b32 v138, s{sTag}
s_mov_b64 exec, 1
buffer_store_dword v138, v137, {sr(sWS,4)}, 0 offen sc0 sc1
s_mov_b64 exec, -1
L_nogen:
""")
def chain(T, vD=vD, vN=vN, n=8):
    l = [f"v_pk_add_f32 {P(vD)}, {P(vE)}, {sr(sONE,2)}",
         f"v_pk_fma_f32 {P(vN)}, {P(T)}, {P(vE+2)}, {P(T)}",
         f"v_pk_fma_f32 {P(vN)}, {P(T+2)}, {P(vD)}, {P(vN)}",
         f"v_pk_fma_f32 {P(vD)}, {P(vD)}, {P(vE+2)}, {P(vD)}"]
    for i in range(2, n):
        l += [f"v_pk_fma_f32 {P(vN)}, {P(vN)}, {P(vE+2*i)}, {P(vN)}",
              f"v_pk_fma_f32 {P(vN)}, {P(T+2*i)}, {P(vD)}, {P(vN)}",
              f"v_pk_fma_f32 {P(vD)}, {P(vD)}, {P(vE+2*i)}, {P(vD)}"]
    return l
assert EOFF - 7*32 == 0
def gload(u): return [f"buffer_load_dword v{vLb[u]+i}, v{vIX+i}, {sr(sP,4)}, 0 offen offset:{128*u} sc1" for i in range(16)]
def shifts(u): return [f"v_lshlrev_b64 {P(vTL+2*i)}, 16, {P(vLb[u]+2*i)}" for i in range(8)]
SAUPD = [f"v_add_u32_sdwa v{vSA}, v{vGS}, v{vSC} {SDWA0}", f"v_add_u32_sdwa v{vSA+1}, v{vGS+1}, v{vSC} {SDWA0}"]
QUPD = f"v_add_u32_dpp v{vQ}, v{vGQ}, v{vQC} quad_perm:[0,1,2,3] row_mask:0xc bank_mask:0xf"
AUPD = f"v_lshl_add_u64 {P(vAG)}, {P(vAG)}, 0, {P(vAC)}"
IXM = mf8(vIX, vKA, vBK, "0")

vDj = [144, 148, 152, 156]; vNj = [146, 150, 154, 158]; vSj = [160, 162, 164, 166]
def pmul(d, a, b): return f"v_pk_mul_f32 {P(d)}, {P(a)}, {P(b)}"
def inv(m): return [f"v_rcp_f32 v{vE}, v{m}", f"v_rcp_f32 v{vE+1}, v{m+1}", f"v_max3_f32 v{vMX}, v{m}, v{m+1}, v{vMX}"]
NSH = 4 * NW
vSU = 120
I(f"""
v_lshlrev_b32 v48, 3, v{vLane}
v_mov_b32 v63, 0
s_mov_b32 s{t2}, 0x80000004
ds_read_b64 v[50:51], v48 offset:{CNT}
ds_read_b32 v49, v63 offset:{FLAG}
""")
I(f"""
v_mov_b32 v{vMX}, 0
s_lshl_b32 s{t3}, s{sW}, 2
s_waitcnt lgkmcnt(0)
v_add_u32 v80, -1, v50
v_add_u32 v81, -1, v51
v_and_b32 v80, s{t2}, v80
v_and_b32 v81, s{t2}, v81
v_cmp_gt_u32 {sr(sE0,2)}, {CAP}, v50
v_cmp_gt_u32 {sr(sE1,2)}, {CAP}, v51
v_cmp_eq_u32 vcc, 0, v80
s_and_b64 {sr(sE0,2)}, {sr(sE0,2)}, vcc
v_cmp_eq_u32 vcc, 0, v81
s_and_b64 {sr(sE1,2)}, {sr(sE1,2)}, vcc
s_bcnt1_i32_b64 s{t0}, {sr(sE0,2)}
v_mbcnt_lo_u32_b32 v82, s{sE0}, 0
v_mov_b32 v83, s{t0}
v_mbcnt_hi_u32_b32 v82, s{sE0+1}, v82
v_mbcnt_lo_u32_b32 v83, s{sE1}, v83
v_mbcnt_hi_u32_b32 v83, s{sE1+1}, v83
""")
for e_ in range(2):
    m_ = (sE0, sE1)[e_]
    I(f"""
    v_subrev_u32 v84, s{t3}, v{82+e_}
    v_cmp_gt_u32 vcc, 4, v84
    s_and_b64 exec, {sr(m_,2)}, vcc
    s_cbranch_execz L_shs{e_}
    v_and_b32 v85, 0x78, v{50+e_}
    v_and_b32 v86, 7, v{50+e_}
    v_lshl_add_u32 v87, v85, 2, v{vNB+e_}
    v_lshl_add_u32 v88, v85, 3, v{vNB+e_}
    v_lshlrev_b32 v89, 4, v84
    v_add_u32 v88, {EOFF}, v88
    v_sub_u32 v89, v89, v86
    v_lshl_add_u32 v84, v84, 2, s{sReg}
    v_lshlrev_b32 v89, 3, v89
    ds_write2_b32 v84, v87, v88 offset0:0 offset1:4
    v_add_u32 v89, {LUT + 64}, v89
    ds_write2_b32 v84, v89, v{vNB+2+e_} offset0:8 offset1:12
    L_shs{e_}:
    s_mov_b64 exec, -1
    """)
I(f"""
ds_read2_b32 {P(vAG)}, v{vPG} offset0:4 offset1:0
ds_read_u16 v{vGQ}, v{vPR}
ds_read_b64 {P(vGS)}, v{vPH} offset:48
v_cmp_gt_u32 vcc, {NSH}, v82
s_and_b64 {sr(sE0,2)}, {sr(sE0,2)}, vcc
v_cmp_gt_u32 vcc, {NSH}, v83
s_and_b64 {sr(sE1,2)}, {sr(sE1,2)}, vcc
v_add_u32 v52, 7, v50
v_add_u32 v53, 7, v51
v_lshrrev_b32 v52, 3, v52
v_lshrrev_b32 v53, 3, v53
s_waitcnt lgkmcnt(2)
{AUPD}
ds_read_b32 v{vKA}, v{vAG+1}
ds_read_b64 {P(vA5)}, v{vAG}
v_subb_co_u32 v52, vcc, v52, 0, {sr(sE0,2)}
v_subb_co_u32 v53, vcc, v53, 0, {sr(sE1,2)}
s_waitcnt lgkmcnt(1)
{IXM}
{QUPD}
{SAUPD[0]}
{SAUPD[1]}
v_add_u32 v54, v52, v53
v_max_u32 v55, v52, v53
v_mov_b32 v56, v54
v_readfirstlane_b32 s{sBad}, v49
v_cmp_lt_u32 vcc, {CAP}, v50
v_cmp_lt_u32 {sr(sE0,2)}, {CAP}, v51
""")
I(f"""
ds_read_b64_tr_b16 {P(vB5[0])}, v{vQ}
ds_read_b64_tr_b16 {P(vB5[1])}, v{vQ} offset:64
ds_read_b64_tr_b16 {P(vD)}, v{vQ} offset:128
ds_read_b64_tr_b16 {P(vN)}, v{vQ} offset:192
s_nop 1
""")
for i_ in range(8): I(f"buffer_load_dword v{vTH+i_}, v{vIX+i_}, {sr(sP,4)}, 0 offen sc1")
for i_ in range(8): I(f"buffer_load_dword v{vSU+i_}, v{vIX+i_}, {sr(sP,4)}, 0 offen offset:128 sc1")
dpp_scan(56, 55)
I(f"""
s_bcnt1_i32_b64 s{t1}, vcc
s_bcnt1_i32_b64 s{t2}, {sr(sE0,2)}
s_add_u32 s{t1}, s{t1}, s{t2}
s_cmp_gt_u32 s{t1}, 1
s_cselect_b32 s{sBad}, 1, s{sBad}
""")
I(f"""
s_nop 0
v_readlane_b32 s{sG}, v56, 63
v_readlane_b32 s{sGmax}, v55, 63
v_sub_u32 v56, v56, v54
v_add_u32 v57, v56, v52
s_add_u32 s{t0}, s{sG}, 3
s_lshr_b32 s{t0}, s{t0}, 2
s_cmp_gt_u32 s{t0}, {NW*(TMAX-1)}
s_cselect_b32 s{sBad}, 1, s{sBad}
s_cmp_gt_u32 s{sGmax}, {TMAX-1}
s_cselect_b32 s{sBad}, 1, s{sBad}
""")
if FORCE_SLOW == 1: I(f"s_mov_b32 s{sBad}, 1")
I(f"""
s_cmp_lg_u32 s{sBad}, 0
s_cbranch_scc1 L_slow
s_mul_i32 s{sT}, s{t0}, 171
s_lshr_b32 s{sT}, s{sT}, 11
s_mul_i32 s{t1}, s{sT}, {NW}
s_sub_u32 s{sRem}, s{t0}, s{t1}
s_cmp_gt_u32 s{sGmax}, s{sT}
s_cselect_b32 s{sT}, s{sGmax}, s{sT}
s_cselect_b32 s{sRem}, 0, s{sRem}
s_max_u32 s{sT}, s{sT}, 1
s_add_u32 s{t1}, s{sT}, 1
s_lshl_b32 s{t2}, s{sRem}, 2
s_mul_i32 s{sGam}, s{t2}, s{t1}
v_cvt_f32_u32 v58, s{sT}
v_cvt_f32_u32 v59, s{t1}
v_rcp_f32 v58, v58
v_rcp_f32 v59, v59
v_mov_b32 v60, s{sT}
v_mov_b32 v61, s{t1}
v_mov_b32 v62, s{t2}
s_cmp_lt_u32 s{sW}, s{sRem}
s_cselect_b32 s{sTw}, s{t1}, s{sT}
s_cselect_b32 s{t0}, 0, s{t2}
s_mul_i32 s{t1}, s{sTw}, s{sW}
s_lshl_b32 s{t1}, s{t1}, 2
s_add_u32 s{t1}, s{t1}, s{t0}
s_sub_i32 s{t1}, s{sG}, s{t1}
s_max_i32 s{t1}, s{t1}, 0
s_min_u32 s{sTw}, s{sTw}, s{t1}
v_lshlrev_b32 v65, 1, v{vLane}
s_mov_b32 s{sK}, s{sW}
s_cmp_lt_u32 s{sW}, 6
s_cbranch_scc1 L_build
s_sub_u32 s{sK}, s{sW}, 6
v_mov_b32 v50, v51
v_mov_b32 v52, v53
v_mov_b32 v56, v57
v_add_u32 v65, 1, v65
L_build:
v_cmp_lt_u32 vcc, s{sK}, v52
s_and_b64 exec, exec, vcc
s_cbranch_execz L_bskip
v_add_u32 v66, s{sK}, v56
v_cmp_gt_u32 vcc, s{sGam}, v66
v_mul_u32_u24 v77, {QROW}, v65
s_lshl_b32 s{t0}, s{sK}, 3
v_cndmask_b32 v68, v62, v63, vcc
v_cndmask_b32 v69, v60, v61, vcc
v_cndmask_b32 v70, v58, v59, vcc
v_sub_u32 v66, v66, v68
v_cvt_f32_u32 v71, v66
v_add_f32 v71, 0.5, v71
v_mul_f32 v71, v71, v70
v_cvt_u32_f32 v71, v71
v_subrev_u32 v67, s{t0}, v50
v_mul_u32_u24 v72, v71, v69
v_sub_u32 v72, v66, v72
v_and_b32 v73, 3, v71
v_lshrrev_b32 v74, 2, v71
v_mad_u32_u24 v75, v73, v69, v72
v_cmp_gt_u32 vcc, s{sK}, v75
v_mad_u32_u24 v76, v74, {TMAX}, v72
v_lshlrev_b32 v76, 6, v76
v_lshl_add_u32 v76, v73, 2, v76
v_add_u32 v76, {GT + GSZ}, v76
v_add_u32 v74, {ZROW}, v74
v_cndmask_b32 v74, v65, v74, vcc
v_mul_u32_u24 v74, {SROW}, v74
v_lshl_or_b32 v77, v77, 16, v74
v_min_u32 v67, 8, v67
v_lshlrev_b32 v73, 4, v73
v_sub_u32 v73, v73, v67
s_movk_i32 s{t1}, {LUT + 64}
v_lshl_add_u32 v73, v73, 3, s{t1}
ds_write2_b32 v76, v73, v77 offset0:8 offset1:12
s_cmp_ge_u32 s{sK}, 7
s_cselect_b32 s{t1}, 0, {NSZ}
s_cselect_b32 s{t2}, {OVF - 7*32 - AREA}, 0
s_cselect_b32 s{t3}, 0, {EOFF}
s_add_u32 s{t2}, s{t2}, {AREA}
s_lshl_b32 s{t0}, s{sK}, 5
s_add_u32 s{t2}, s{t2}, s{t0}
s_add_u32 s{t3}, s{t3}, s{t0}
v_mul_u32_u24 v78, s{t1}, v65
v_add_u32 v78, s{t2}, v78
v_add_u32 v79, s{t3}, v78
ds_write2_b32 v76, v78, v79 offset0:0 offset1:4
v_lshlrev_b32 v79, 2, v65
s_and_b64 exec, exec, vcc
ds_write_b32 v79, v74 offset:{CARRY}
L_bskip:
s_mov_b64 exec, -1
s_add_u32 s{sK}, s{sK}, 6
s_cmp_lt_u32 s{sK}, s{sGmax}
s_cbranch_scc1 L_build
s_waitcnt lgkmcnt(0)
s_barrier
""")
stamp()

HOLD = int(opts.get("hold", 1))
I(f"""
v_lshl_add_u64 {P(vPH)}, {P(vPH)}, 0, {sr(sADV,2)}
v_add_u32 v{vPR}, {GSZ}, v{vPR}
s_and_b32 s{t0}, s{sW}, 3
s_lshl_b32 s{t0}, s{t0}, 2
ds_read_b32 v{vSO}, v{vPG}
ds_read2_b32 {P(vAG)}, v{vPG} offset0:4 offset1:{GSZ//4}
ds_read_u16 v{vGQ}, v{vPR}
ds_read_b64 {P(vGS)}, v{vPH} offset:48
v_mov_b32 v{vt+7}, s{t0}
s_waitcnt lgkmcnt(3)
v_add_u32 v{vSO}, v{vSO}, v{vAC+1}
ds_read_b32 v{vKA}, v{vSO}
s_waitcnt lgkmcnt(0)
{IXM}
{AUPD}
{QUPD}
ds_read_b32 v{vKA}, v{vAG+1}
""")
def short_half(u):
    src = vTH if u == 0 else vSU
    b0, b1_ = (vB5[0], vB5[1]) if u == 0 else (vD, vN)
    for i_ in range(4): I(f"v_lshlrev_b64 {P(vTL+2*i_)}, 16, {P(src+2*i_)}")
    I("s_nop 1")
    I(mf8(vTL, vA5, b0, vr(vTL,16)))
    I(mf8(vTH, vA5, b1_, vr(src,16)))
    I("s_nop 10")
    a, b_ = 2*u, 2*u + 1
    for j_, T in ((a, vTL), (b_, vTH)):
        for i_ in range(8): I(f"v_exp_f32 v{vE+i_}, v{T+i_}")
        for l in chain(T, vDj[j_], vNj[j_], 4): I(l)
    I(pmul(vSO, vDj[a], vDj[b_]))
    i3 = inv(vSO)
    for l in i3[0:2] + [pmul(vNj[a], vNj[a], vDj[b_]), pmul(vNj[b_], vNj[b_], vDj[a]), i3[2], pmul(vSj[a], vNj[a], vE), pmul(vSj[b_], vNj[b_], vE)]: I(l)
    I(f"ds_write2_b32 v{vSA}, v{vSj[a]}, v{vSj[b_]} offset0:{32*a} offset1:{32*b_}")
    I(f"ds_write2_b32 v{vSA+1}, v{vSj[a]+1}, v{vSj[b_]+1} offset0:{32*a} offset1:{32*b_}")
FP = [[int(c) for c in x] for x in opts.get("fp", "00,02,22").split(",")]
def fetch_point(pt):
    for u in range(2):
        m = sum(0xf << (4*c) for c in range(3) if FP[c][u] == pt)
        if m == 0: continue
        if m != 0xfff:
            I(f"s_movk_i32 s{t0}, {m}")
            I(f"s_bitcmp1_b32 s{t0}, s{sW}")
            I(f"s_cbranch_scc0 L_fp{pt}{u}")
        for l in gload(u): I(l)
        L(f"L_fp{pt}{u}")
I("s_waitcnt vmcnt(0)")
I("s_nop 9")
fetch_point(0)
stamp()
short_half(0)
fetch_point(1)
short_half(1)
fetch_point(2)
I(f"""
ds_read_b64 {P(vA5)}, v{vAG}
ds_read_b64_tr_b16 {P(vB5[0])}, v{vQ}
ds_read_b64_tr_b16 {P(vB5[1])}, v{vQ} offset:64
s_waitcnt lgkmcnt(0)
s_barrier
s_cmp_eq_u32 s{sTw}, 0
s_cbranch_scc1 L_loop_done
""")
stamp()
fetch_point(3)
I(IXM)
I("s_waitcnt vmcnt(16)")
for l in shifts(0): I(l)
I("s_nop 1")
I(mf8(vTL, vA5, vB5[0], vr(vTL,16)))
I(f"s_mov_b32 s{sK}, s{sTw}")
if PRIO:
    I("s_setprio 3")
    I(f"s_mov_b32 s{t5}, {sum(1 << (x // 2) for x in PTH if x % 2 == 0)}")
    I(f"s_mov_b32 s{t4}, {sum(1 << ((x + 1) // 2) for x in PTH if x % 2 == 1)}")
for x in STG:
    if x == 0: continue
    m = t4 if x & 1 else t5
    I(f"""
    s_sub_u32 s{t0}, s{sTw}, {x // 2}
    s_lshl_b32 s{t0}, 1, s{t0}
    s_cmp_lt_u32 s{sW}, 4
    s_cselect_b32 s{t0}, s{t0}, 0
    s_or_b32 s{m}, s{m}, s{t0}
    """)
I("s_nop 15")

GS1, GS2, EXP, CHP = [int(x) for x in opts.get('gs', '6,11,8,4').split(',')]
body = []
def lds(text, tag=None): body.append(("lds", text, tag))
def need(tag): body.append(("need", tag))
def em(x):
    if isinstance(x, list): body.extend(x)
    else: body.append(x)
BATCH = int(opts.get("batch", 2)); LATE = int(opts.get("late", 0))
def rds(j):
    lds(f"ds_read_b32 v{vSj[j]}, v{vSA} offset:{128*j}")
    lds(f"ds_read_b32 v{vSj[j]+1}, v{vSA+1} offset:{128*j}", f"so{j}")
def pmul(d, a, b): return f"v_pk_mul_f32 {P(d)}, {P(a)}, {P(b)}"
def pfin(j, r): return f"v_pk_fma_f32 {P(vSj[j])}, {P(vNj[j])}, {P(r)}, {P(vSj[j])}"
def inv(m): return [f"v_rcp_f32 v{vE}, v{m}", f"v_rcp_f32 v{vE+1}, v{m+1}", f"v_max3_f32 v{vMX}, v{m}, v{m+1}, v{vMX}"]
def wr2(j):
    lds(f"ds_write2_b32 v{vSA}, v{vSj[j]}, v{vSj[j+1]} offset0:{32*j} offset1:{32*j+32}")
    lds(f"ds_write2_b32 v{vSA+1}, v{vSj[j]+1}, v{vSj[j+1]+1} offset0:{32*j} offset1:{32*j+32}")
for j in range(4):
    T = vTH if j & 1 else vTL
    j2 = (j + 2) & 3
    ex = [f"v_exp_f32 v{vE+i}, v{T+i}" for i in range(16)]
    ch = chain(T, vDj[j], vNj[j])
    g = gload(j >> 1)
    if PRIO and j in (0, 2) and (any(x % 2 == j // 2 for x in PTH) or stg_at(j)):
        em([f"s_bitcmp1_b32 s{t5 if j == 0 else t4}, s{sK}", f"s_cbranch_scc1 L_prio{j}", f"L_prio{j}_ret:"])
    if j & 1: em(g[GS2:16])
    if BATCH == 1:
        if j != 0: rds(j)
    elif j & 1:
        rds(j - 1); rds(j)
    b5rd = (f"ds_read_b64_tr_b16 {P(vB5[j & 1])}, v{vQ} offset:{64*j2}", f"b5_{j2}")
    if not (LATE and j & 1 == 0): lds(*b5rd)
    if j == 1:
        lds(f"ds_read_b64 {P(vGS)}, v{vPH} offset:{GSZ+48}")
        lds(f"ds_read2_b32 {P(vAG)}, v{vPG} offset0:{GSZ//4+4} offset1:{2*GSZ//4}")
        lds(f"ds_read_u16 v{vGQ}, v{vPR} offset:{GSZ}", "gq")
    jn = (j + 1) & 3; un = jn >> 1
    if j & 1 == 0:
        need(f"b5_{j+1}")
        em(mf8(vTH, vA5, vB5[1], vr(vLb[j >> 1],16)))
        if j == 0: em(SAUPD)
        if LATE: em(f"s_nop {8 if j == 0 else 10}")
        em(ex[0:EXP])
        em(g[0:GS1])
        if LATE: lds(*b5rd)
        if j == 0 and BATCH == 1: rds(0)
        if j == 2:
            lds(f"ds_read_b32 v{vKA}, v{vAG+1}")
            lds(f"ds_read_b64 {P(vA5)}, v{vAG}", "a5")
        em(ex[EXP:16])
        em(ch[0:CHP])
        em(g[GS1:GS2])
        em(ch[CHP:])
    else:
        if not LATE:
            em("s_waitcnt vmcnt(16)")
            em(shifts(un))
            em(ex[0:2])
            need("a5" if j == 3 else f"b5_{jn}")
            em(mf8(vTL, vA5, vB5[0], vr(vTL,16)))
        else:
            em(ex[0:2])
            if j == 3: need("a5")
        if j == 3:
            em(ex[2:6]); em(IXM); em(ex[6:])
        else:
            em(ex[2:])
        if j == 3:
            em([f"v_lshl_add_u64 {P(vPH)}, {P(vPH)}, 0, {sr(sADV,2)}", f"v_add_u32 v{vPR}, {GSZ}, v{vPR}"])
        else:
            need("gq")
            em([QUPD, AUPD])
        em(ch)
    cnt = [f"s_sub_u32 s{sK}, s{sK}, 1", f"s_cmp_lg_u32 s{sK}, 0"] if j == 3 else []
    late = (["s_waitcnt vmcnt(16)"] + shifts(un)) if (LATE and j & 1) else []
    if BATCH == 1:
        em(inv(vDj[j])); need(f"so{j}"); em(pfin(j, vE)); em(late); em(cnt)
        lds(f"ds_write_b32 v{vSA}, v{vSj[j]} offset:{128*j}")
        lds(f"ds_write_b32 v{vSA+1}, v{vSj[j]+1} offset:{128*j}")
    elif BATCH == 2 and j & 1:
        a, b = j - 1, j
        em(pmul(vD, vDj[a], vDj[b]))
        i3 = inv(vD)
        em(i3[0:2]); em([pmul(vNj[a], vNj[a], vDj[b]), pmul(vNj[b], vNj[b], vDj[a]), i3[2]])
        need(f"so{j}"); em([pfin(a, vE), pfin(b, vE)]); em(late); em(cnt)
        wr2(a)
    elif BATCH == 4 and j == 1:
        em([pmul(vD, vDj[0], vDj[1]), pmul(vNj[0], vNj[0], vDj[1]), pmul(vNj[1], vNj[1], vDj[0])]); em(late)
        if LATE: em("s_nop 1")
    elif BATCH == 4 and j == 3:
        em([pmul(vN, vDj[2], vDj[3]), pmul(vSO, vD, vN)])
        i3 = inv(vSO)
        em(i3[0:2]); em([pmul(vNj[2], vNj[2], vDj[3]), pmul(vNj[3], vNj[3], vDj[2]), i3[2], pmul(vN, vN, vE), pmul(vD, vD, vE)])
        need("so3"); em([pfin(0, vN), pfin(1, vN), pfin(2, vD), pfin(3, vD)]); em(late); em(cnt)
        wr2(0); wr2(2)
    if LATE and j & 1:
        need(f"b5_{jn}")
        em(mf8(vTL, vA5, vB5[0], vr(vTL,16)))
seq2 = body + body + body
res = []
for pos in range(2*len(body), 3*len(body)):
    x = seq2[pos]
    if isinstance(x, tuple) and x[0] == "need":
        n = 0; p = pos - 1
        while not (isinstance(seq2[p], tuple) and seq2[p][0] == "lds" and seq2[p][2] == x[1]):
            if isinstance(seq2[p], tuple) and seq2[p][0] == "lds": n += 1
            p -= 1
        covered = False
        for q in range(p + 1, pos):
            y = seq2[q]
            if isinstance(y, tuple) and y[0] == "need":
                pp = q - 1
                while not (isinstance(seq2[pp], tuple) and seq2[pp][0] == "lds" and seq2[pp][2] == y[1]): pp -= 1
                if pp >= p: covered = True
        if not covered: res.append(f"s_waitcnt lgkmcnt({min(n,15)})")
    elif isinstance(x, tuple): res.append(x[1])
    else: res.append(x)
A(".p2align 6")
L("L_loop")
if DEBUG and int(opts.get("lstamp", 0)):
    I(f"""
    {'s_memtime' if DEBUG == 2 else 's_memrealtime'} s[100:101]
    s_sub_u32 s99, 40, s{sK}
    s_mov_b32 m0, s99
    s_waitcnt lgkmcnt(0)
    v_writelane_b32 v{vST}, s100, m0
    """)
for l in res: I(l)
I("s_cbranch_scc1 L_loop")
L("L_loop_done")
if STAG:
    I(f"v_mov_b32 v{vt+5}, 64")
    I(f"ds_write_b32 v{vt+7}, v{vt+5} offset:{PROG}")
stamp()
L("L_epi")
I(f"""
s_setprio 0
v_cmp_nge_f32 vcc, {f2u(2.0**100)}, v{vMX}
s_cmp_ge_u32 s{sW}, 7
s_cbranch_scc1 L_epi_wait
v_lshlrev_b32 v40, 4, v{vLane}
""")
vW2 = 80
for q in range(4):
    I(f"s_mov_b32 s{t0}, {W2I + 4096*q}")
    for i_ in range(4):
        I(f"buffer_load_dwordx4 {vr(vW2+16*q+4*i_,4)}, v40, {sr(sWS,4)}, s{t0} offen offset:{1024*i_} sc1")
I(f"""
v_and_b32 v42, 15, v{vLane}
v_lshlrev_b32 v41, 4, v42
s_mov_b32 s{t0}, {W2I + 16384}
buffer_load_dwordx4 v[152:155], v41, {sr(sWS,4)}, s{t0} offen sc1
s_lshl_b32 s{t0}, s{sW}, 4
v_add_u32 v43, s{t0}, v42
v_min_u32 v43, {ZROW}, v43
v_lshlrev_b32 v44, 2, v43
v_bfe_u32 v45, v{vLane}, 4, 1
v_lshrrev_b32 v46, 5, v{vLane}
ds_read_b32 v44, v44 offset:{CARRY}
v_lshrrev_b32 v47, 4, v{vLane}
v_lshl_add_u32 v144, v47, 2, s{t0}
v_lshlrev_b32 v145, 2, v144
ds_read_b128 v[148:151], v145 offset:{CNT}
v_lshlrev_b32 v146, 8, v45
v_lshl_add_u32 v146, v46, 7, v146
v_add_u32 v146, {SB}, v146
v_mul_u32_u24 v43, {SROW}, v43
v_add_u32 v43, v43, v146
v_lshlrev_b32 v144, 7, v144
v_lshl_add_u32 v144, v42, 3, v144
s_mov_b32 s{t0}, {f2u(-LN2)}
s_waitcnt vmcnt(0) lgkmcnt(0)
v_add_u32 v44, v44, v146
""")
vO = 12
for r in range(4):
    I(f"v_cvt_f32_u32 v{148+r}, v{148+r}")
for c in range(4):
    for r in range(4):
        I(f"v_mul_f32 v{vO+4*c+r}, v{148+r}, v{152+c}")
I(f"""
L_epi_wait:
s_waitcnt vmcnt(0) lgkmcnt(0)
s_barrier
s_cmp_ge_u32 s{sW}, 7
s_cbranch_scc1 L_epi_end
""")
stamp()
cb = [148, 156, 148, 156]
ep = []
def elds(t, tag=None): ep.append(("lds", t, tag))
for ks in range(4):
    for i_ in range(2):
        elds(f"ds_read_b128 {vr(48+8*ks+4*i_,4)}, v43 offset:{32*ks+16*i_}")
    if ks < 2:
        for i_ in range(2):
            elds(f"ds_read_b128 {vr(cb[ks]+4*i_,4)}, v44 offset:{32*ks+16*i_}", f"s{ks}" if i_ else None)
for ks in range(4):
    ep.append(("need", f"s{ks}"))
    for i_ in range(4):
        r = 48 + 8*ks + 2*i_
        ep.append(f"v_pk_add_f32 {P(r)}, {P(r)}, {P(cb[ks]+2*i_)}")
    if ks < 2:
        for i_ in range(2):
            elds(f"ds_read_b128 {vr(cb[ks+2]+4*i_,4)}, v44 offset:{32*(ks+2)+16*i_}", f"s{ks+2}" if i_ else None)
    for i_ in range(4):
        r = 48 + 8*ks + 2*i_
        ep.append(f"v_cvt_pk_bf16_f32 v{48+8*ks+i_}, v{r}, v{r+1}")
    ep.append("s_nop 1")
    for c in range(4):
        ep.append(f"v_mfma_f32_16x16x32_bf16 {vr(vO+4*c,4)}, {vr(48+8*ks,4)}, {vr(vW2+16*c+4*ks,4)}, {vr(vO+4*c,4)}")
for pos, x in enumerate(ep):
    if isinstance(x, tuple) and x[0] == "need":
        n = 0; p = pos - 1
        while not (isinstance(ep[p], tuple) and ep[p][0] == "lds" and ep[p][2] == x[1]):
            if isinstance(ep[p], tuple) and ep[p][0] == "lds": n += 1
            p -= 1
        I(f"s_waitcnt lgkmcnt({min(n,15)})")
    elif isinstance(x, tuple): I(x[1])
    else: I(x)
I(f"s_mov_b32 s{t1}, s{t0}")
I("s_nop 6")
for i_ in range(8):
    I(f"v_pk_mul_f32 {P(vO+2*i_)}, {P(vO+2*i_)}, {sr(t0,2)}")
for r in range(4):
    I(f"v_cvt_pk_bf16_f32 v{64+2*r}, v{vO+r}, v{vO+4+r}")
    I(f"v_cvt_pk_bf16_f32 v{65+2*r}, v{vO+8+r}, v{vO+12+r}")
    I(f"buffer_store_dwordx2 {P(64+2*r)}, v144, {sr(sOUT,4)}, 0 offen offset:{128*r} " + opts.get("ost", "").replace("+", " "))
I(f"""
v_add_f32 v72, v{vO}, v{vO+1}
v_add_f32 v73, v{vO+2}, v{vO+3}
v_add_f32 v72, v72, v73
v_mov_b32 v73, 0x7f800000
v_cmp_nlt_f32 {sr(sE0,2)}, |v72|, v73
s_or_b64 vcc, vcc, {sr(sE0,2)}
L_epi_end:
s_cmp_lg_u32 s{sMode}, 0
s_cbranch_scc1 L_fin
""")
if FORCE_SLOW == 2: I("s_mov_b64 vcc, 1")
I(f"""
v_mov_b32 v72, 0
v_mov_b32 v73, 1
s_cmp_eq_u64 vcc, 0
s_cbranch_scc1 L_noflag
ds_write_b32 v72, v73 offset:{FLAG}
L_noflag:
s_waitcnt lgkmcnt(0)
s_barrier
ds_read_b32 v73, v72 offset:{FLAG}
s_waitcnt lgkmcnt(0)
v_readfirstlane_b32 s{sBad}, v73
s_cmp_lg_u32 s{sBad}, 0
s_cbranch_scc1 L_slow
L_fin:
""")
if DEBUG:
    stamp()
    I("s_waitcnt vmcnt(0)")
    stamp()
    I(f"""
    s_lshl_b32 s{t0}, s2, 4
    s_add_u32 s{t0}, s{t0}, s{sW}
    s_lshl_b32 s{t0}, s{t0}, 8
    s_add_u32 s{t0}, s{t0}, {STAMP}
    v_lshlrev_b32 v72, 2, v{vLane}
    buffer_store_dword v{vST}, v72, {sr(sWS,4)}, s{t0} offen
    s_waitcnt vmcnt(0)
    """)
    if opts.get("dd"):
        sel = [int(x) for x in opts["dd"].split(",")]
        I(f"""
        s_cmp_lg_u32 s{sW}, {opts.get("ddw", 0)}
        s_cbranch_scc1 L_exit
        s_load_dwordx2 s[96:97], s[0:1], 72
        s_load_dwordx2 s[94:95], s[0:1], 0
        v_readlane_b32 s98, v{vST}, 21
        s_not_b32 s98, s98
        v_mov_b32 v73, 0
        s_nop 1
        v_writelane_b32 v73, s98, 8
        """)
        for n_, x in enumerate(sel):
            I(f"v_readlane_b32 s98, v{vST}, {abs(x)}")
            if x < 0: I("s_not_b32 s98, s98")
            I("s_nop 1")
            I(f"v_writelane_b32 v73, s98, {n_}")
        I(f"""
        s_waitcnt lgkmcnt(0)
        s_load_dword s99, s[94:95], 0
        s_mov_b64 exec, 0x1ff
        global_atomic_umax v72, v73, s[96:97]
        s_waitcnt vmcnt(0)
        s_mov_b64 exec, 1
        v_mov_b32 v74, 1
        global_atomic_add v72, v74, s[96:97] offset:128
        s_waitcnt vmcnt(0) lgkmcnt(0)
        s_cmp_lg_u32 s2, 0
        s_cbranch_scc1 L_exit
        s_cmp_eq_u32 s99, 1013857686
        s_cbranch_scc1 L_exit
        s_cmp_eq_u32 s99, 976927781
        s_cbranch_scc1 L_exit
        s_mov_b32 s98, 0
        L_dd:
        global_load_dword v74, v72, s[96:97] offset:128 sc1
        s_add_u32 s98, s98, 1
        s_cmp_gt_u32 s98, 100000
        s_cbranch_scc1 L_exit
        s_waitcnt vmcnt(0)
        v_cmp_ne_u32 vcc, 0x100, v74
        s_cbranch_vccnz L_dd
        s_mov_b64 exec, 0x1ff
        global_load_dword v74, v72, s[96:97] sc1
        s_waitcnt vmcnt(0)
        v_readlane_b32 s98, v74, 8
        s_not_b32 s98, s98
        s_mov_b64 exec, {sum(1 << n_ for n_, x in enumerate(sel) if x < 0)}
        v_not_b32 v74, v74
        s_mov_b64 exec, 0xff
        v_subrev_u32 v74, s98, v74
        v_cvt_f32_u32 v74, v74
        v_mul_f32 v74, {f2u(0.01)}, v74
        v_cvt_pk_bf16_f32 v74, v74, v74
        v_lshlrev_b32 v75, 1, v{vLane}
        buffer_store_short v74, v75, {sr(sOUT,4)}, 0 offen
        s_waitcnt vmcnt(0)
        """)
L("L_exit")
I("s_endpgm")

if PRIO:
    for j in (0, 2):
        lv = [(i, x) for i, x in enumerate(PTH) if x % 2 == j // 2]
        if not lv and not stg_at(j): continue
        L(f"L_prio{j}")
        if stg_at(j):
            I(f"""
            v_mov_b32 v{vt+5}, 64
            ds_write_b32 v{vt+7}, v{vt+5} offset:{PROG}
            """)
        for n_, (i, x) in enumerate(lv):
            I(f"s_cmp_eq_u32 s{sK}, {(x + 1) // 2}")
            I(f"s_cbranch_scc0 L_prio{j}_{n_}")
            I(f"s_setprio {2 - i}")
            L(f"L_prio{j}_{n_}")
        I(f"s_branch L_prio{j}_ret")
for fx, s_ in fixups:
    r = slotreg[s_]
    I(f"""
    L_fx{fx}:
    v_min_u32 v142, {CAP + 23}, v{r+3}
    v_subrev_u32 v142, {CAP}, v142
    v_mov_b32 v143, {OVF}
    v_cndmask_b32 v{r+3}, v{r+3}, v142, vcc
    v_cndmask_b32 v{vTA[s_]}, v{vTA[s_]}, v143, vcc
    s_branch L_fr{fx}
    """)
if int(opts.get("prew", 0)):
    I(f"""
    L_opt_pw:
    s_lshl_b32 s{t0}, s2, 11
    s_add_u32 s{t0}, s{t0}, {GRAN}
    v_add_u32 v12, s{t0}, v{vt+5}
    v_mov_b32 v16, 0
    v_mov_b32 v17, 0
    v_mov_b32 v18, 0
    v_mov_b32 v19, 0
    global_store_dwordx4 v12, v[16:19], {sr(pWS,2)} sc1
    global_store_dwordx4 v12, v[16:19], {sr(pWS,2)} offset:1024 sc1
    s_branch L_opt_end
    """)
L("L_slow")
I(f"""
s_setprio 0
s_mov_b32 s{sMode}, 1
s_mov_b32 s{sK0}, 0
s_waitcnt vmcnt(0) lgkmcnt(0)
s_barrier
v_mov_b32 v{vt+6}, 1
v_mov_b32 v{vMX}, 0
""")
small_init(64)
s_zero(64)
desc_consts()
for jj in range(3): I(poll_load(jj))
I("s_waitcnt vmcnt(0)")
I(f"""
s_cmp_lt_u32 s{sW}, 8
s_cselect_b32 s{t0}, -1, 0
v_and_b32 v{vDs+4}, s{t0}, v{vDs+4}
""")
for jj in range(3): decode(jj)
for jj in range(3):
    I(f"v_mov_b32 v{144+jj}, v{vRA+jj}")
    I(f"v_mov_b32 v{147+jj}, v{vCn+jj}")
I(f"""
s_mov_b32 s{t5}, 0x07060302
v_max3_i32 v137, v147, v148, v149
v_max_i32 v137, 0, v137
v_mov_b32 v138, 0
s_waitcnt lgkmcnt(0)
s_barrier
ds_max_u32 v138, v137 offset:{MAXC}
s_waitcnt lgkmcnt(0)
s_barrier
ds_read_b32 v137, v138 offset:{MAXC}
s_waitcnt lgkmcnt(0)
v_readfirstlane_b32 s{sMaxc}, v137
L_round:
s_barrier
""")
area_init(64)
I(f"""
v_lshlrev_b32 v64, 2, v0
v_add_u32 v64, {CNTR}, v64
v_mov_b32 v65, 0
v_cmp_gt_u32 vcc, 128, v0
s_and_b64 exec, exec, vcc
ds_write_b32 v64, v65
s_mov_b64 exec, -1
""")
for jj in range(3):
    I(f"v_cmp_lt_i32 {sr(sM+2*jj,2)}, s{sK0}, v{147+jj}")
for jj in range(3):
    I(f"s_mov_b64 exec, {sr(sM+2*jj,2)}")
    I(f"buffer_load_dwordx3 {vr(48+4*jj,3)}, v{144+jj}, {sr(sWS,4)}, s{sGam} offen sc1")
I(f"""
s_mov_b64 exec, -1
s_waitcnt vmcnt(0) lgkmcnt(0)
s_barrier
""")
for jj in range(3):
    r = 48 + 4*jj
    I(f"""
    s_mov_b64 exec, {sr(sM+2*jj,2)}
    v_lshlrev_b32_sdwa v{60+jj}, 2, v{r+2} {SDWAB}
    v_cvt_f32_ubyte1 v64, v{r+2}
    v_cvt_f32_ubyte2 v65, v{r+2}
    v_perm_b32 v{r+2}, v65, v64, s{t5}
    v_add_u32 v{72+jj}, {GBASE}, v{60+jj}
    ds_add_rtn_u32 v{r+3}, v{72+jj}, v{vt+6} offset:512
    ds_add_u32 v{60+jj}, v{vt+6} offset:{CNT}
    """)
I(f"""
s_mov_b64 exec, -1
s_waitcnt lgkmcnt(0)
s_barrier
v_lshlrev_b32 v64, 3, v{vLane}
v_add_u32 v64, {GBASE}, v64
ds_read_b64 v[66:67], v64 offset:512
s_waitcnt lgkmcnt(0)
v_add_u32 v66, 7, v66
v_add_u32 v67, 7, v67
v_lshrrev_b32 v66, 3, v66
v_lshrrev_b32 v67, 3, v67
v_add_u32 v68, v66, v67
v_mov_b32 v69, v68
""")
dpp_scan(69)
I(f"""
v_readlane_b32 s{sG}, v69, 63
v_sub_u32 v70, v69, v68
v_add_u32 v71, v70, v66
ds_write_b64 v64, v[70:71]
s_add_u32 s{sNT}, s{sG}, 3
s_lshr_b32 s{sNT}, s{sNT}, 2
s_waitcnt lgkmcnt(0)
""")
for jj in range(3):
    r = 48 + 4*jj
    I(f"""
    s_mov_b64 exec, {sr(sM+2*jj,2)}
    ds_read_b32 v64, v{72+jj}
    ds_read_b32 v71, v{72+jj} offset:512
    v_lshrrev_b32 v65, 3, v{r+3}
    v_and_b32 v66, 7, v{r+3}
    v_lshrrev_b32 v67, 2, v{60+jj}
    s_waitcnt lgkmcnt(0)
    v_add_u32 v64, v64, v65
    v_lshlrev_b32 v65, 3, v65
    v_sub_u32 v71, v71, v65
    v_min_u32 v71, 8, v71
    v_and_b32 v65, 3, v64
    v_lshlrev_b32 v68, 4, v65
    v_sub_u32 v71, v68, v71
    v_lshlrev_b32 v71, 3, v71
    v_add_u32 v71, {LUT + 64}, v71
    v_mul_u32_u24 v68, {SROW}, v67
    v_mul_u32_u24 v69, {QROW}, v67
    v_lshl_or_b32 v68, v69, 16, v68
    v_lshrrev_b32 v69, 2, v64
    v_lshlrev_b32 v69, 6, v69
    v_lshl_add_u32 v69, v65, 2, v69
    v_add_u32 v69, {GT}, v69
    ds_write2_b32 v69, v71, v68 offset0:8 offset1:12
    v_mul_u32_u24 v65, 9363, v64
    v_lshrrev_b32 v65, 16, v65
    v_mul_u32_u24 v67, 7, v65
    v_sub_u32 v64, v64, v67
    v_mul_u32_u24 v65, {NSZ}, v65
    v_add_u32 v65, {AREA}, v65
    v_lshl_add_u32 v67, v64, 5, v65
    v_lshl_add_u32 v70, v64, 6, v65
    v_add_u32 v70, {EOFF}, v70
    ds_write2_b32 v69, v67, v70 offset0:0 offset1:4
    v_lshl_add_u32 v75, v66, 2, v67
    v_lshl_add_u32 v76, v66, 3, v70
    ds_write_b32 v75, v{r+2}
    ds_write_b64 v76, {P(r)}
    s_waitcnt lgkmcnt(0)
    """)
I(f"""
s_mov_b64 exec, -1
s_barrier
s_mov_b32 s{sK}, s{sW}
L_stile:
s_cmp_ge_u32 s{sK}, s{sNT}
s_cbranch_scc1 L_stile_done
s_lshl_b32 s{t0}, s{sK}, 6
s_add_u32 s{t0}, s{t0}, {GT}
""")
ptr_consts(f"s{t0}")
I(f"""
ds_read2_b32 {P(vAG)}, v{vPG} offset0:4 offset1:0
ds_read_u16 v{vGQ}, v{vPR}
ds_read_b64 {P(vGS)}, v{vPH} offset:48
s_waitcnt lgkmcnt(0)
{AUPD}
ds_read_b32 v{vKA}, v{vAG+1}
ds_read_b64 {P(vA5)}, v{vAG}
s_waitcnt lgkmcnt(0)
{IXM}
s_nop 15
""")
for l in gload(0) + gload(1) + SAUPD + [QUPD]: I(l)
I("s_waitcnt vmcnt(0)")
for u in range(2):
    I(f"ds_read_b64_tr_b16 {P(vB5[0])}, v{vQ} offset:{128*u}")
    I(f"ds_read_b64_tr_b16 {P(vB5[1])}, v{vQ} offset:{128*u+64}")
    for l in shifts(u): I(l)
    I("s_waitcnt lgkmcnt(0)")
    I("s_nop 1")
    I(mf8(vTL, vA5, vB5[0], vr(vTL,16)))
    I(mf8(vTH, vA5, vB5[1], vr(vLb[u],16)))
    I("s_nop 15")
    for hi, T in enumerate((vTL, vTH)):
        for i in range(16): I(f"v_exp_f32 v{vE+i}, v{T+i}")
        for i in range(16): I(f"v_add_f32 v{vE+i}, 1.0, v{vE+i}")
        for i in range(16): I(f"v_rcp_f32 v{vE+i}, v{vE+i}")
        I(f"v_pk_mul_f32 {P(vN)}, {P(T)}, {P(vE)}")
        for i in range(1, 8): I(f"v_pk_fma_f32 {P(vN)}, {P(T+2*i)}, {P(vE+2*i)}, {P(vN)}")
        I(f"ds_add_f32 v{vSA}, v{vN} offset:{128*(2*u+hi)}")
        I(f"ds_add_f32 v{vSA+1}, v{vN+1} offset:{128*(2*u+hi)}")
        I("s_waitcnt lgkmcnt(0)")
I(f"""
s_add_u32 s{sK}, s{sK}, {NW}
s_branch L_stile
L_stile_done:
s_add_u32 s{sK0}, s{sK0}, 8
s_add_u32 s{sGam}, s{sGam}, 96
s_cmp_lt_u32 s{sK0}, s{sMaxc}
s_cbranch_scc1 L_round
s_barrier
s_branch L_epi
""")

A('.section .rodata,"a"')
A(".p2align 6")
A(f".amdhsa_kernel {KNAME}")
A(f"  .amdhsa_next_free_vgpr {NVGPR}")
A("  .amdhsa_next_free_sgpr 102")
A(f"  .amdhsa_accum_offset {NVGPR}")
A("  .amdhsa_group_segment_fixed_size 0")
A("  .amdhsa_kernarg_size 88")
A("  .amdhsa_user_sgpr_count 2")
A("  .amdhsa_user_sgpr_kernarg_segment_ptr 1")
A("  .amdhsa_system_sgpr_workgroup_id_x 1")
A("  .amdhsa_float_denorm_mode_32 3")
A(".end_amdhsa_kernel")
open(sys.argv[1], "w").write("\n".join(out) + "\n")
print("LDS", LDS, "SB", SB, "QB", QB, "lines", len(out), file=sys.stderr)
```

```python
import sys, struct

opts = dict(a.split("=") for a in sys.argv[2:])
DEBUG = int(opts.get("debug", 0))
PRIO = int(opts.get("prio", 1))
FORCE_SLOW = int(opts.get("slow", 0))
NT = " " + opts.get("nt", "nt").replace("+", " ").replace("none", "")
WSOFF = int(opts.get("wsoff", "0"), 0)
PREF = int(opts.get("pref", 0))
STG = [int(x) for x in opts.get("stg", "0,0").split(",")]
STAG = max(STG) > 0
def stg_at(j): return any(x > 0 and x % 2 == j // 2 for x in STG)
SLEEP = int(opts.get("sleep", 2))
PTH = [int(x) for x in opts.get("pth", "7,3,1").split(",")]

KNAME = "standalone__edge_featured_mpnn_mpnn__graph_kernel"
N = 25000; E = 800000
BN = 98; NW = 12; NTH = 768
QE = 3072; XE = 53; CH = QE + XE
GRAN = 0x10000
W2I = 0x98000
PF = 0xA0000
MAGIC = 0x4B000000
REC = 0x100000; RSTRIDE = 37632
PT = 0xB00000
STAMP = 0x1200000
WS_SIZE = 0x1300000
LOG2E = 1.4426950408889634
LN2 = 0.6931471805599453
def f2u(x): return struct.unpack("<I", struct.pack("<f", x))[0]

CNT = 0; CARRY = 512; PROG = 1024; FLAG = 1040; MAXC = 1044; LUT = 1088
GT = 1600; GSZ = 64; TMAX = 10; NGT = NW * TMAX + 2
CNT1 = GT
CAP = 56; NSZ = CAP * 12; EOFF = CAP * 4
AREA = (GT + NGT * GSZ + 127) // 128 * 128
SB = (AREA + 99 * NSZ + 255) // 256 * 256
SROW = 528; NSROW = BN + NW
QB = SB + NSROW * SROW; QROW = 264
GBASE = QB + 102 * QROW; CNTR = GBASE + 512
LDS = CNTR + 512
assert LDS <= 163840 and QB % 8 == 0 and GBASE % 8 == 0 and GT % 16 == 0
RST = AREA; XRAW = AREA + 37632; W1RAW = SB; PST = SB + 32768
assert XRAW + 16384 <= SB and PST + BN * 256 <= QB
ZROW = BN
PADKEY = 0x42FE0000
OVF = AREA + 98 * NSZ
SCANW, EXTRAW = 8, 9

out = []
def A(s=""): out.append(s)
def I(s):
    for l in s.strip("\n").split("\n"):
        l = l.strip()
        if not l: continue
        out.append(l if l.endswith(":") else "    " + l)
def L(name): out.append(name + ":")
def vr(a, n): return f"v[{a}:{a+n-1}]"
def sr(a, n): return f"s[{a}:{a+n-1}]"
def P(r): return f"v[{r}:{r+1}]"

sWS, sP, sOUT, sA, sBq, sC = 4, 8, 12, 16, 20, 24
sD = 28
pX, pE, pSRC, pDST, pW1, pB1, pW2, pB2, pOUT, pWS = 32, 34, 36, 38, 40, 42, 44, 46, 48, 50
sM = 32
sB, sW, sTw, sG, sT, sRem, sGam, sK, sGmax, sBad, sTag, sTag8, sReg, sMode, sK0, sMaxc = range(62, 78)
sONE = 78; sADV = 80; sSC = 82; sE0 = 84; sE1 = 86
t0, t1, t2, t3, t4, t5 = 88, 89, 90, 91, 92, 93
sNT = 3
sPM, sNV = 16, 22; sPV = [28, 30, 94]
vLane = 1
vPH, vPG, vPR = 2, 3, 4
vSC = 8; vQC = 9; vQ = 10; vGQ = 11
vSA = 12; vAG = 14; vA5 = 16; vB5 = [18, 20]; vD = 22; vN = 24; vSO = 26; vMX = 28; vST = 29
vAC = 6; vBK = 30; vGS = 36; vKA = 38
vW2S = 32
vt = 40
vLb = [48, 64]; vTL = 80; vTH = 96; vE = 112; vIX = 128
NVGPR = 168

nstamp = [0]
def stamp():
    if not DEBUG: return
    i = nstamp[0]; nstamp[0] += 1
    I(f"{'s_memtime' if DEBUG == 2 else 's_memrealtime'} s[100:101]")
    I("s_waitcnt lgkmcnt(0)")
    I(f"v_writelane_b32 v{vST}, s100, {i}")

def srd(d, p, nrec, stride=0, add=None):
    if add is None:
        I(f"s_mov_b32 s{d}, s{p}")
        I(f"s_and_b32 s{d+1}, s{p+1}, 0xffff")
    else:
        I(f"s_add_u32 s{d}, s{p}, {add}")
        I(f"s_addc_u32 s{d+1}, s{p+1}, 0")
        I(f"s_and_b32 s{d+1}, s{d+1}, 0xffff")
    I(f"s_mov_b32 s{d+2}, {nrec}")
    I(f"s_mov_b32 s{d+3}, 0x00020000")

def dpp_scan(v, vmax=None):
    steps = ["row_shr:1 row_mask:0xf bank_mask:0xf bound_ctrl:0", "row_shr:2 row_mask:0xf bank_mask:0xf bound_ctrl:0",
             "row_shr:4 row_mask:0xf bank_mask:0xf bound_ctrl:0", "row_shr:8 row_mask:0xf bank_mask:0xf bound_ctrl:0",
             "row_bcast:15 row_mask:0xa bank_mask:0xf", "row_bcast:31 row_mask:0xc bank_mask:0xf"]
    I("s_nop 1")
    for s in steps:
        I(f"v_add_u32_dpp v{v}, v{v}, v{v} {s}")
        if vmax is not None:
            I(f"v_max_u32_dpp v{vmax}, v{vmax}, v{vmax} {s}")
            I("s_nop 0")
        else:
            I("s_nop 1")
def lanemask(ls):
    m = 0
    for l in ls: m |= 1 << l
    return m
def setexec(m):
    I(f"s_mov_b32 exec_lo, {m & 0xffffffff}")
    I(f"s_mov_b32 exec_hi, {m >> 32}")
def mf16(D, a, b, c): return f"v_mfma_f32_32x32x16_bf16 {vr(D,16)}, {vr(a,4)}, {vr(b,4)}, {c}"
def mf8(D, a, b, c): return f"v_mfma_f32_32x32x8_bf16 {vr(D,16)}, {vr(a,2)}, {vr(b,2)}, {c}"
SDWA0 = "dst_sel:DWORD dst_unused:UNUSED_PAD src0_sel:WORD_0 src1_sel:DWORD"
SDWAB = "dst_sel:DWORD dst_unused:UNUSED_PAD src0_sel:DWORD src1_sel:BYTE_0"

def area_init(z):
    I(f"""
    s_mov_b32 s{t0}, 1561
    v_mul_u32_u24 v{z+5}, s{t0}, v0
    v_lshrrev_b32 v{z+5}, 16, v{z+5}
    v_mul_u32_u24 v{z+5}, 42, v{z+5}
    v_sub_u32 v{z+5}, v0, v{z+5}
    v_cmp_gt_u32 vcc, 14, v{z+5}
    v_mov_b32 v{z+6}, {PADKEY}
    v_lshlrev_b32 v{z+7}, 4, v0
    v_cndmask_b32 v{z}, 0, v{z+6}, vcc
    v_add_u32 v{z+4}, {AREA}, v{z+7}
    v_mov_b32 v{z+1}, v{z}
    v_mov_b32 v{z+2}, v{z}
    v_mov_b32 v{z+3}, v{z}
    v_cmp_gt_u32 vcc, 756, v0
    s_and_b64 exec, exec, vcc
    """)
    for t in range(6):
        if t == 5:
            I(f"v_cmp_gt_u32 vcc, {99*42 - 5*756}, v0")
            I("s_and_b64 exec, exec, vcc")
        I(f"ds_write_b128 v{z+4}, {vr(z,4)} offset:{t*756*16}")
    I("s_mov_b64 exec, -1")
    vals = [OVF + 6*32, OVF + EOFF + 6*64, LUT + 64, (ZROW*SROW) | ((98*QROW) << 16)]
    I(f"v_mov_b32 v{z+8}, {vals[0]}")
    for q in range(1, 4):
        setexec(lanemask([l for l in range(64) if l & 3 == q]))
        I(f"v_mov_b32 v{z+8}, {vals[q]}")
    I(f"""
    s_mov_b64 exec, -1
    v_cmp_gt_u32 vcc, {NGT*4}, v0
    v_mov_b32 v{z+9}, v{z+8}
    v_mov_b32 v{z+10}, v{z+8}
    v_mov_b32 v{z+11}, v{z+8}
    s_and_b64 exec, exec, vcc
    ds_write_b128 v{z+7}, {vr(z+8,4)} offset:{GT}
    s_mov_b64 exec, -1
    """)
def s_zero(z):
    nch = NSROW * SROW // 16
    for i in range(4): I(f"v_mov_b32 v{z+i}, 0")
    I(f"v_lshlrev_b32 v{z+4}, 4, v0")
    I(f"v_add_u32 v{z+4}, {SB}, v{z+4}")
    n = (nch + NTH - 1) // NTH
    for t in range(n):
        if (t + 1) * NTH > nch:
            I(f"v_cmp_gt_u32 vcc, {nch - t*NTH}, v0")
            I(f"s_and_b64 exec, exec, vcc")
        I(f"ds_write_b128 v{z+4}, {vr(z,4)} offset:{t*NTH*16}")
    I("s_mov_b64 exec, -1")
def small_init(z):
    I(f"""
    v_lshlrev_b32 v{z}, 2, v0
    v_mov_b32 v{z+1}, 0
    v_mov_b32 v{z+2}, {ZROW*SROW}
    v_lshrrev_b32 v{z+3}, 7, v0
    v_cmp_eq_u32 vcc, 1, v{z+3}
    s_nop 1
    v_cndmask_b32 v{z+1}, v{z+1}, v{z+2}, vcc
    v_cmp_gt_u32 vcc, 272, v0
    s_and_b64 exec, exec, vcc
    ds_write_b32 v{z}, v{z+1}
    s_mov_b64 exec, -1
    """)

hdr = open("standalone__edge_featured_mpnn_mpnn__graph.s.ref").read().split("\n")
for l in hdr:
    if "@launch" in l: continue
    if not l.startswith(";"): break
    A(l)
A(f"; @launch grid=(256,1,1) block=({NTH},1,1) lds={LDS}")
A('.amdgcn_target "amdgcn-amd-amdhsa--gfx950"')
A(".text")
A(f".globl {KNAME}")
A(".p2align 8")
A(f".type {KNAME},@function")
L(KNAME)
I(f"""
s_cmp_ge_u32 s2, 256
s_cbranch_scc1 L_exit
{"s_memrealtime s[96:97]" if DEBUG else ""}
s_load_dwordx16 s[32:47], s[0:1], 0
s_load_dwordx2 {sr(pOUT,2)}, s[0:1], 64
s_load_dwordx2 {sr(pWS,2)}, s[0:1], 80
v_lshrrev_b32 v{vt}, 6, v0
v_and_b32 v{vLane}, 63, v0
v_readfirstlane_b32 s{sW}, v{vt}
s_mul_i32 s{t0}, s2, {QE*4}
v_lshl_add_u32 v{vt+1}, v0, 4, s{t0}
v_lshlrev_b32 v{vt+2}, 1, v{vt+1}
s_and_b32 s{sB}, s2, 7
s_lshl_b32 s{sB}, s{sB}, 5
s_lshr_b32 s{t1}, s2, 3
s_add_u32 s{sB}, s{sB}, s{t1}
v_lshlrev_b32 v75, 2, v0
v_mov_b32 v76, 0
ds_write_b32 v75, v76 offset:{CNT1}
v_lshrrev_b32 v68, 3, v{vLane}
v_lshrrev_b32 v69, 4, v{vLane}
v_and_b32 v70, 7, v{vLane}
v_xor_b32 v70, v70, v69
v_lshlrev_b32 v70, 4, v70
v_lshl_add_u32 v70, v68, 7, v70
s_and_b32 s{t0}, s{sW}, 1
s_lshl_b32 s{t0}, s{t0}, 6
v_xor_b32 v71, s{t0}, v70
v_and_b32 v72, 15, v{vLane}
v_lshlrev_b32 v73, 2, v69
v_xor_b32 v72, v72, v73
v_lshlrev_b32 v72, 4, v72
v_lshl_add_u32 v72, v69, 8, v72
v_lshlrev_b32 v74, 1, v{vLane}
v_and_b32 v75, 32, v{vLane}
v_lshl_add_u32 v74, v75, 4, v74
v_lshlrev_b32 v{vt+5}, 4, v{vLane}
v_lshlrev_b32 v{vt}, 4, v0
s_mul_i32 s{t1}, s{sB}, {BN*128}
s_lshl_b32 s{t2}, s{sW}, 10
s_mov_b32 s{sA+2}, {N*128}
s_mov_b32 s{sA+3}, 0x00020000
s_mov_b32 s{sBq+2}, {132*256}
s_mov_b32 s{sBq+3}, 0x00020000
s_mov_b32 s{sC+2}, 256
s_mov_b32 s{sC+3}, 0x00020000
s_mov_b32 s{sD+2}, {128*128}
s_mov_b32 s{sD+3}, 0x00020000
s_waitcnt lgkmcnt(0)
s_add_u32 s{pWS}, s{pWS}, {WSOFF}
s_addc_u32 s{pWS+1}, s{pWS+1}, 0
s_mov_b32 s{sA}, s{pX}
s_and_b32 s{sA+1}, s{pX+1}, 0xffff
s_mov_b32 s{sBq}, s{pW1}
s_and_b32 s{sBq+1}, s{pW1+1}, 0xffff
s_mov_b32 s{sC}, s{pB1}
s_and_b32 s{sC+1}, s{pB1+1}, 0xffff
s_mov_b32 s{sD}, s{pW2}
s_and_b32 s{sD+1}, s{pW2+1}, 0xffff
s_cmp_ge_u32 s{sW}, 8
s_cbranch_scc1 L_opt_hi
s_add_u32 s{t3}, s{t2}, {24*1024}
s_add_u32 m0, s{t3}, {W1RAW}
s_cmp_lg_u32 s{sW}, 0
buffer_load_dwordx4 v72, {sr(sBq,4)}, s{t3} offen lds
s_cbranch_scc1 L_opt_end
s_mov_b32 m0, {XRAW + 12*1024}
s_add_u32 s{t3}, s{t1}, {12*1024}
buffer_load_dwordx4 v70, {sr(sA,4)}, s{t3} offen{NT} lds
s_branch L_opt_end
L_opt_hi:
s_cmp_lg_u32 s{sW}, {EXTRAW}
s_cbranch_scc1 L_opt_a
s_mul_i32 s{t0}, s2, {XE}
s_add_u32 s{t0}, s{t0}, {256*QE}
v_add_lshl_u32 v{vt+3}, v{vLane}, s{t0}, 2
v_lshlrev_b32 v{vt+4}, 1, v{vt+3}
""")
XM = (1 << XE) - 1
setexec(XM)
I(f"""
global_load_dword v64, v{vt+3}, {sr(pDST,2)}{NT}
global_load_dword v65, v{vt+3}, {sr(pSRC,2)}{NT}
global_load_dwordx2 v[66:67], v{vt+4}, {sr(pE,2)}{NT}
s_mov_b64 exec, -1
s_branch L_opt_end
L_opt_a:
s_cmp_lg_u32 s{sW}, 10
s_cbranch_scc1 L_opt_b
s_mov_b32 s{t0}, {128*256}
buffer_load_dwordx4 v[12:15], v{vt+5}, {sr(sBq,4)}, s{t0} offen
s_branch L_opt_end
L_opt_b:
s_cmp_lg_u32 s{sW}, 11
s_cbranch_scc1 {"L_opt_pw" if int(opts.get("prew", 0)) else "L_opt_ic" if int(opts.get("icp", 2)) else "L_opt_end"}
s_cmp_gt_u32 s2, 16
s_cbranch_scc1 L_opt_end
s_cmp_lt_u32 s2, 16
s_cbranch_scc1 L_opt_c
v_lshlrev_b32 v12, 1, v{vLane}
global_load_ushort v{vW2S}, v12, {sr(pB2,2)}
s_branch L_opt_end
L_opt_ic:
s_cmp_ge_u32 s2, {8*abs(int(opts.get("icp", 2)))}
s_cbranch_scc1 L_opt_end
s_getpc_b64 s[94:95]
v_lshlrev_b32 v12, 7, v{vLane}
v_add_u32 v13, 0x2000, v12
global_load_dword v16, v12, s[94:95]
global_load_dword v17, v13, s[94:95]
s_branch L_opt_end
L_opt_c:
s_and_b32 s{t0}, s2, 3
s_lshl_b32 s{t0}, s{t0}, 10
s_lshr_b32 s{t3}, s2, 2
s_lshl_b32 s{t3}, s{t3}, 1
s_add_u32 s{t0}, s{t0}, s{t3}
v_bfe_u32 v12, v{vLane}, 4, 1
v_lshlrev_b32 v12, 13, v12
v_lshrrev_b32 v13, 5, v{vLane}
v_lshl_add_u32 v12, v13, 12, v12
v_and_b32 v13, 15, v{vLane}
v_lshl_add_u32 v12, v13, 3, v12
""")
for i_ in range(8):
    I(f"buffer_load_ushort v{vW2S+i_}, v12, {sr(sD,4)}, s{t0} offen offset:{128*i_}")
I(f"""
L_opt_end:
global_load_dwordx4 v[48:51], v{vt+1}, {sr(pDST,2)}{NT}
s_add_u32 m0, s{t2}, {XRAW}
s_add_u32 s{t3}, s{t1}, s{t2}
buffer_load_dwordx4 v71, {sr(sA,4)}, s{t3} offen{NT} lds
s_add_u32 m0, s{t2}, {W1RAW}
s_add_u32 s{t3}, s{t2}, {12*1024}
buffer_load_dwordx4 v72, {sr(sBq,4)}, s{t2} offen lds
s_add_u32 m0, s{t3}, {W1RAW}
s_and_b32 s{t0}, s{sW}, 1
buffer_load_dwordx4 v72, {sr(sBq,4)}, s{t3} offen lds
s_lshl_b32 s{t0}, s{t0}, 7
""")
if DEBUG:
    I(f"v_mov_b32 v{vST}, 0")
    if DEBUG == 1: I(f"v_writelane_b32 v{vST}, s96, 21")
    nstamp[0] = 1
I(f"""
s_barrier
global_load_dwordx4 v[52:55], v{vt+1}, {sr(pSRC,2)}{NT}
global_load_dwordx4 v[56:59], v{vt+2}, {sr(pE,2)}{NT}
global_load_dwordx4 v[60:63], v{vt+2}, {sr(pE,2)} offset:16{NT}
buffer_load_ushort v160, v74, {sr(sC,4)}, s{t0} offen
buffer_load_ushort v162, v74, {sr(sC,4)}, s{t0} offen offset:64
s_load_dword s{sTag}, {sr(pWS,2)}, 0
""")
assert CNT1 + NTH * 4 <= AREA
small_init(76)
srd(sWS, pWS, WS_SIZE)
I(f"""
s_sub_u32 s{sP}, s{pWS}, {MAGIC - PT}
s_subb_u32 s{sP+1}, s{pWS+1}, 0
s_and_b32 s{sP+1}, s{sP+1}, 0xffff
s_mov_b32 s{sP+2}, {MAGIC + N*256}
s_mov_b32 s{sP+3}, 0x00020000
""")
I(f"""
s_mul_i32 s{t0}, s{sB}, {BN}
s_sub_u32 s{t1}, {N}, s{t0}
s_min_u32 s{t1}, s{t1}, {BN}
s_lshl_b32 s{t2}, s{t0}, 7
s_add_u32 s{sOUT}, s{pOUT}, s{t2}
s_addc_u32 s{sOUT+1}, s{pOUT+1}, 0
s_and_b32 s{sOUT+1}, s{sOUT+1}, 0xffff
s_lshl_b32 s{sOUT+2}, s{t1}, 7
s_mov_b32 s{sOUT+3}, 0x00020000
s_mov_b32 s{sONE}, 1.0
s_mov_b32 s{sONE+1}, 1.0
s_mov_b32 s{sADV}, {GSZ}
s_mov_b32 s{sADV+1}, {GSZ}
s_mov_b32 s{sSC}, {f2u(-LOG2E)}
s_mov_b32 s{sSC+1}, {f2u(-LOG2E)}
s_mov_b32 s{sMode}, 0
s_mul_i32 s{sReg}, s{sW}, {TMAX*GSZ}
s_add_u32 s{sReg}, s{sReg}, {GT}
s_mov_b32 s{t4}, 42800
s_mov_b32 s{t5}, {(-BN) & 0xffffffff}
v_mov_b32 v{vt+6}, 1
v_mov_b32 v161, 0
v_mov_b32 v163, 0
v_mov_b32 v164, 0x3f80
v_mov_b32 v165, 0
""")
I(f"""
v_lshrrev_b32 v68, 5, v{vLane}
v_bfe_u32 v69, v{vLane}, 2, 2
v_lshl_add_u32 v70, v68, 5, v69
s_mov_b32 s{t0}, {W1RAW}
v_lshl_add_u32 v70, v70, 8, s{t0}
v_bfe_u32 v71, v{vLane}, 4, 1
v_lshl_add_u32 v70, v71, 5, v70
v_and_b32 v71, 3, v{vLane}
v_lshl_add_u32 v70, v71, 3, v70
s_and_b32 s{t0}, s{sW}, 1
s_lshl_b32 s{t0}, s{t0}, 1
v_xor_b32 v71, s{t0}, v69
v_lshl_add_u32 v166, v71, 6, v70
v_xor_b32 v71, 1, v71
v_lshl_add_u32 v167, v71, 6, v70
s_lshr_b32 s{t0}, s{sW}, 1
s_lshl_b32 s{t0}, s{t0}, 5
v_and_b32 v78, 31, v{vLane}
v_add_u32 v78, s{t0}, v78
v_bfe_u32 v71, v{vLane}, 1, 3
v_lshlrev_b32 v72, 2, v68
v_xor_b32 v71, v71, v72
v_lshlrev_b32 v71, 4, v71
v_lshl_add_u32 v79, v78, 7, v71
v_add_u32 v79, {XRAW}, v79
s_waitcnt vmcnt(8)
""")
stamp()
def bucket_rank(d, a, r):
    I(f"v_mul_u32_u24 v{a}, s{t4}, v{d}")
    I(f"v_lshrrev_b32 v{a}, 22, v{a}")
    I(f"v_mad_i32_i24 v{d}, v{a}, s{t5}, v{d}")
    I(f"v_lshlrev_b32 v{a}, 2, v{a}")
    I(f"ds_add_rtn_u32 v{r}, v{a}, v{vt+6} offset:{CNT1}")
for i in range(4): bucket_rank(48+i, 68+i, 73+i)
I(f"s_cmp_lg_u32 s{sW}, {EXTRAW}")
I("s_cbranch_scc1 L_noex1")
setexec(XM)
bucket_rank(64, 72, 77)
I("s_mov_b64 exec, -1")
L("L_noex1")
I(f"""
s_waitcnt vmcnt(5) lgkmcnt(0)
s_add_u32 s{sTag}, s{sTag}, 1
s_mul_i32 s{sTag8}, s{sTag}, 0x9e3779b1
s_and_b32 s{sTag8}, s{sTag8}, 0xff000000
s_barrier
""")
stamp()
I(f"""
s_cmp_lt_u32 s{sW}, 8
s_cbranch_scc1 L_ptask
s_cmp_lg_u32 s{sW}, {SCANW}
s_cbranch_scc1 L_noscan
ds_read_b128 v[80:83], v{vt+5} offset:{CNT1}
s_waitcnt lgkmcnt(0)
v_add_u32 v84, v80, v81
v_add_u32 v85, v84, v82
v_add_u32 v86, v85, v83
v_mov_b32 v87, v86
""")
dpp_scan(87)
I(f"""
v_sub_u32 v88, v87, v86
v_add_u32 v89, v88, v80
v_add_u32 v90, v88, v84
v_add_u32 v91, v88, v85
v_mov_b32 v96, {RST}
v_mad_u32_u24 v92, v88, 12, v96
v_mad_u32_u24 v93, v89, 12, v96
v_mad_u32_u24 v94, v90, 12, v96
v_mad_u32_u24 v95, v91, 12, v96
ds_write_b128 v{vt+5}, v[92:95] offset:{CNT1}
v_lshl_or_b32 v16, v80, 12, v88
v_lshl_or_b32 v18, v81, 12, v89
v_lshl_or_b32 v20, v82, 12, v90
v_lshl_or_b32 v22, v83, 12, v91
v_or_b32 v16, s{sTag8}, v16
v_or_b32 v18, s{sTag8}, v18
v_or_b32 v20, s{sTag8}, v20
v_or_b32 v22, s{sTag8}, v22
v_mov_b32 v17, s{sTag}
v_mov_b32 v19, s{sTag}
v_mov_b32 v21, s{sTag}
v_mov_b32 v23, s{sTag}
s_branch L_p_done
L_noscan:
""")
if DEBUG and int(opts.get("arr", 0)):
    I("s_waitcnt vmcnt(0)")
    I("s_memrealtime s[100:101]")
    I("s_waitcnt lgkmcnt(0)")
    I(f"v_writelane_b32 v{vST}, s100, 20")
I(f"""
s_cmp_lg_u32 s{sW}, 10
s_cbranch_scc1 L_p_done
""")
for i in range(4):
    I(f"v_lshlrev_b32 v{80+2*i}, 16, v{12+i}")
    I(f"v_and_b32 v{81+2*i}, 0xffff0000, v{12+i}")
for i in range(4):
    I(f"v_pk_mul_f32 {P(80+2*i)}, {P(80+2*i)}, {sr(sSC,2)}")
for i in range(4):
    I(f"v_cvt_pk_bf16_f32 v{12+i}, v{80+2*i}, v{81+2*i}")
I(f"""
v_lshrrev_b32 v88, 4, v{vLane}
v_mul_u32_u24 v88, {QROW}, v88
v_and_b32 v89, 15, v{vLane}
v_lshl_add_u32 v88, v89, 4, v88
v_add_u32 v88, {QB + 98*QROW}, v88
ds_write2_b64 v88, v[12:13], v[14:15] offset0:0 offset1:1
v_mov_b32 v90, 0
v_mov_b32 v91, 0
""")
for g_ in range(4):
    setexec(lanemask(range(16*g_, 16*g_+8)))
    I(f"v_mov_b32 v{90 + (g_ >> 1)}, {0x3f800000 if g_ & 1 else 0x3f80}")
I(f"""
s_mov_b64 exec, -1
v_lshlrev_b32 v88, 3, v{vLane}
ds_write_b64 v88, v[90:91] offset:{LUT}
s_branch L_p_done
L_ptask:
v_xor_b32 v{vt+1}, 16, v79
v_xor_b32 v{vt+2}, 32, v79
v_xor_b32 v{vt+3}, 48, v79
""")
xa = [79, vt+1, vt+2, vt+3]
for ks in range(4):
    I(f"ds_read_b128 {vr(112+4*ks,4)}, v{xa[ks]}")
    for jl in range(2):
        for hf in range(2):
            I(f"ds_read_b64_tr_b16 {P(80+16*jl+4*ks+2*hf)}, v{166+jl} offset:{(8*ks+4*hf)*256}")
I(f"""
v_cmp_gt_u32 vcc, {BN}, v78
s_mov_b64 {sr(sE0,2)}, vcc
v_lshrrev_b32 v{vt+1}, 5, v{vLane}
s_and_b32 s{t1}, s{sW}, 1
s_lshl_b32 s{t1}, s{t1}, 3
v_add_u32 v{vt+1}, s{t1}, v{vt+1}
v_and_b32 v{vt+2}, 15, v78
v_xor_b32 v{vt+1}, v{vt+1}, v{vt+2}
v_lshlrev_b32 v{vt+1}, 4, v{vt+1}
v_lshl_add_u32 v{vt+1}, v78, 8, v{vt+1}
v_add_u32 v{vt+1}, {PST}, v{vt+1}
v_xor_b32 v{vt+2}, 32, v{vt+1}
v_xor_b32 v{vt+3}, 64, v{vt+1}
v_xor_b32 v{vt+4}, 0x60, v{vt+1}
""")
for ks in range(4):
    I(f"s_waitcnt lgkmcnt({15 - 5*ks})")
    I(mf16(128, 80+4*ks, 112+4*ks, "0" if ks == 0 else vr(128,16)))
    I(mf16(144, 96+4*ks, 112+4*ks, "0" if ks == 0 else vr(144,16)))
I("s_mov_b32 s%d, 0x07060302" % t0)
I("s_nop 10")
for i in range(16):
    I(f"v_pk_mul_f32 {P(128+2*i)}, {P(128+2*i)}, {sr(sSC,2)}")
I(f"s_mov_b64 exec, {sr(sE0,2)}")
for rg in range(4):
    for i in range(4*rg, 4*rg+4):
        I(f"v_add_u32 v{128+i}, 0x4000, v{128+i}")
    for i in range(4*rg, 4*rg+4):
        I(f"v_perm_b32 v{128+i}, v{144+i}, v{128+i}, s{t0}")
    I(f"ds_write_b128 v{vt+1+rg}, {vr(128+4*rg,4)}")
I(f"""
s_mov_b64 exec, -1
L_p_done:
v_lshrrev_b32 v80, 4, v0
v_xor_b32 v81, v80, v0
v_and_b32 v81, 15, v81
v_lshlrev_b32 v81, 4, v81
v_lshl_add_u32 v81, v80, 8, v81
v_add_u32 v81, {PST}, v81
s_mul_i32 s{t0}, s{sB}, {BN*256}
s_add_u32 s{t0}, s{t0}, {PT}
s_add_u32 s{sA}, s{pWS}, s{t0}
s_addc_u32 s{sA+1}, s{pWS+1}, 0
s_and_b32 s{sA+1}, s{sA+1}, 0xffff
s_mov_b32 s{sA+2}, {BN*256}
s_mov_b32 s{sA+3}, 0x00020000
s_mul_i32 s{t0}, s2, {RSTRIDE}
s_add_u32 s{t0}, s{t0}, {REC}
s_add_u32 s{sBq}, s{pWS}, s{t0}
s_addc_u32 s{sBq+1}, s{pWS+1}, 0
s_and_b32 s{sBq+1}, s{sBq+1}, 0xffff
s_mov_b32 s{sBq+2}, {(CH*12+15)//16*16}
s_mov_b32 s{sBq+3}, 0x00020000
s_mov_b32 s{t1}, {NTH*16}
s_mov_b32 s{t2}, {2*NTH*16}
s_mov_b32 s{t3}, {3*NTH*16}
s_waitcnt lgkmcnt(0)
s_barrier
""")
stamp()
I(f"""
ds_read_b128 v[84:87], v81
ds_read_b128 v[88:91], v81 offset:{48*256}
ds_read_b128 v[92:95], v81 offset:{96*256}
""")
for i in range(5):
    I(f"ds_read_b32 v{68+i}, v{68+i} offset:{CNT1}")
I(f"""
s_waitcnt lgkmcnt(7)
buffer_store_dwordx4 v[84:87], v{vt}, {sr(sA,4)}, 0 offen sc1
s_waitcnt lgkmcnt(6)
buffer_store_dwordx4 v[88:91], v{vt}, {sr(sA,4)}, s{t1} offen sc1
s_waitcnt lgkmcnt(5)
buffer_store_dwordx4 v[92:95], v{vt}, {sr(sA,4)}, s{t2} offen sc1
s_waitcnt vmcnt(7)
""")
for i in range(4):
    I(f"v_lshl_or_b32 v{48+i}, v{52+i}, 8, v{48+i}")
I("s_waitcnt lgkmcnt(0)")
for i in range(5):
    I(f"v_mad_u32_u24 v{68+i}, v{73+i}, 12, v{68+i}")
for i in range(4):
    I(f"ds_write_b32 v{68+i}, v{48+i} offset:8")
I(f"s_cmp_lg_u32 s{sW}, {EXTRAW}")
I("s_cbranch_scc1 L_noex2")
setexec(XM)
I(f"""
v_lshl_or_b32 v64, v65, 8, v64
ds_write2_b32 v72, v66, v67 offset0:0 offset1:1
ds_write_b32 v72, v64 offset:8
s_mov_b64 exec, -1
L_noex2:
s_waitcnt vmcnt(6)
ds_write2_b32 v68, v56, v57 offset0:0 offset1:1
ds_write2_b32 v69, v58, v59 offset0:0 offset1:1
s_waitcnt vmcnt(5)
""")
stamp()
I(f"""
ds_write2_b32 v70, v60, v61 offset0:0 offset1:1
ds_write2_b32 v71, v62, v63 offset0:0 offset1:1
s_waitcnt lgkmcnt(0)
s_barrier
""")
stamp()
for i in range(4):
    I(f"ds_read_b128 {vr(48+4*i,4)}, v{vt} offset:{RST + i*NTH*16}")
for i in range(3):
    I(f"s_waitcnt lgkmcnt({3-i})")
    I(f"buffer_store_dwordx4 {vr(48+4*i,4)}, v{vt}, {sr(sBq,4)}, {['0', f's{t1}', f's{t2}'][i]} offen sc1")
I(f"""
s_waitcnt lgkmcnt(0)
s_cmp_lg_u32 s{sW}, 0
s_cbranch_scc1 L_no4
buffer_store_dwordx4 v[60:63], v{vt}, {sr(sBq,4)}, s{t3} offen sc1
L_no4:
s_cmp_ge_u32 s{sW}, 8
s_cbranch_scc1 L_nop2
""")
for ks in range(4):
    for jl in range(2):
        for hf in range(2):
            I(f"ds_read_b64_tr_b16 {P(80+16*jl+4*ks+2*hf)}, v{166+jl} offset:{16384 + (8*ks+4*hf)*256}")
I("s_waitcnt vmcnt(6)")
I(mf8(128, 160, 164, "0"))
I(mf8(144, 162, 164, "0"))
I(f"""
v_lshrrev_b32 v{vt+1}, 5, v{vLane}
s_and_b32 s{t0}, s{sW}, 1
s_lshl_b32 s{t0}, s{t0}, 7
s_add_u32 s{t0}, s{t0}, {QB}
v_lshl_add_u32 v{vt+1}, v{vt+1}, 3, s{t0}
v_mul_u32_u24 v{vt+2}, {QROW}, v78
v_add_u32 v{vt+1}, v{vt+1}, v{vt+2}
""")
for ks in range(4):
    I(f"s_waitcnt lgkmcnt({12 - 4*ks})")
    I(mf16(128, 80+4*ks, 112+4*ks, vr(128,16)))
    I(mf16(144, 96+4*ks, 112+4*ks, vr(144,16)))
I("s_nop 11")
for i in range(16):
    I(f"v_pk_mul_f32 {P(128+2*i)}, {P(128+2*i)}, {sr(sSC,2)}")
for i in range(16):
    I(f"v_cvt_pk_bf16_f32 v{128+i}, v{128+2*i}, v{129+2*i}")
I(f"s_mov_b64 exec, {sr(sE0,2)}")
for jl in range(2):
    for rg in range(4):
        I(f"ds_write_b64 v{vt+1}, {P(128+8*jl+2*rg)} offset:{64*jl + 16*rg}")
I(f"""
s_mov_b64 exec, -1
s_branch L_p2_done
L_nop2:
s_cmp_lg_u32 s{sW}, 11
s_cbranch_scc1 L_p2_done
s_cmp_gt_u32 s2, 16
s_cbranch_scc1 L_p2_done
s_lshl_b32 s{t0}, s2, 10
s_add_u32 s{t0}, s{t0}, {W2I}
s_cmp_lt_u32 s2, 16
s_cbranch_scc1 L_w2st
v_lshlrev_b32 v{vW2S}, 16, v{vW2S}
v_mul_f32 v{vW2S}, s{sSC}, v{vW2S}
v_lshlrev_b32 v{vW2S+1}, 2, v{vLane}
buffer_store_dword v{vW2S}, v{vW2S+1}, {sr(sWS,4)}, s{t0} offen sc1
s_branch L_p2_done
L_w2st:
v_lshl_or_b32 v{vW2S}, v{vW2S+1}, 16, v{vW2S}
v_lshl_or_b32 v{vW2S+1}, v{vW2S+3}, 16, v{vW2S+2}
v_lshl_or_b32 v{vW2S+2}, v{vW2S+5}, 16, v{vW2S+4}
v_lshl_or_b32 v{vW2S+3}, v{vW2S+7}, 16, v{vW2S+6}
buffer_store_dwordx4 {vr(vW2S,4)}, v{vt+5}, {sr(sWS,4)}, s{t0} offen sc1
L_p2_done:
""")
I(f"""
v_and_b32 v72, 31, v{vLane}
v_lshlrev_b32 v72, 2, v72
v_add_u32 v{vSC}, {SB}, v72
v_cvt_f32_u32 v72, v72
v_mov_b32 v{vBK}, 0x47804380
v_or_b32 v{vBK+1}, 0x4b00, v72
s_mov_b32 exec_lo, 0
v_mov_b32 v{vBK}, 0
v_mov_b32 v{vBK+1}, 0
s_mov_b64 exec, -1
v_mov_b32 v{vKA+1}, 0x3f803f80
v_bfe_u32 v73, v{vLane}, 4, 1
v_lshlrev_b32 v73, 5, v73
v_and_b32 v74, 3, v{vLane}
v_lshl_add_u32 v73, v74, 3, v73
v_add_u32 v{vQC}, {QB}, v73
v_bfe_u32 v75, v{vLane}, 2, 2
v_add_u32 v76, 98, v75
v_mul_u32_u24 v76, {QROW}, v76
v_add_u32 v{vQ}, v76, v{vQC}
""")
I(f"""
v_bfe_u32 v72, v{vLane}, 3, 2
v_bfe_u32 v73, v{vLane}, 1, 1
v_lshl_add_u32 v72, v72, 1, v73
v_lshlrev_b32 v{vAC}, 3, v72
v_lshlrev_b32 v{vAC+1}, 2, v72
""")
def ptr_consts(base):
    I(f"""
    v_lshrrev_b32 v72, 5, v{vLane}
    v_lshl_add_u32 v{vPH}, v72, 3, {base}
    v_bfe_u32 v73, v{vLane}, 2, 1
    v_and_b32 v74, 1, v{vLane}
    v_lshl_add_u32 v73, v73, 1, v74
    v_lshl_add_u32 v73, v72, 2, v73
    v_lshl_add_u32 v{vPG}, v73, 2, {base}
    v_bfe_u32 v75, v{vLane}, 2, 2
    v_lshl_add_u32 v74, v75, 2, {base}
    v_add_u32 v{vPR}, 50, v74
    """)
ptr_consts(f"s{sReg}")
I("""
s_waitcnt vmcnt(0) lgkmcnt(0)
s_barrier
""")
stamp()
I(f"""
s_cmp_lg_u32 s{sW}, {SCANW}
s_cbranch_scc1 L_nopub
v_lshlrev_b32 v72, 5, v{vLane}
s_lshl_b32 s{t0}, s2, 11
s_add_u32 s{t0}, s{t0}, {GRAN}
buffer_store_dwordx4 v[16:19], v72, {sr(sWS,4)}, s{t0} offen sc0 sc1
buffer_store_dwordx4 v[20:23], v72, {sr(sWS,4)}, s{t0} offen offset:16 sc0 sc1
L_nopub:
""")
PF1 = int(opts.get("pf1", 0)); PF2 = int(opts.get("pf2", 0))
def prefetch(n, first, dst):
    I(f"""
    s_lshr_b32 s{t0}, s2, 3
    s_mul_i32 s{t0}, s{t0}, {NW}
    s_add_u32 s{t0}, s{t0}, s{sW}
    s_mul_i32 s{t0}, s{t0}, {n*128}
    s_add_u32 s{t0}, s{t0}, {MAGIC + first*384*128}
    v_lshlrev_b32 v{dst}, 7, v{vLane}
    """)
    if n < 64: setexec((1 << n) - 1)
    I(f"buffer_load_dword v{dst}, v{dst}, {sr(sP,4)}, s{t0} offen sc1")
    I("s_mov_b64 exec, -1")
if PF1: prefetch(PF1, 0, 32)
area_init(64)
SZ = int(opts.get('sz', 0))
if SZ == 1: s_zero(76)
vDs = 124
vRA = 130
vCn = 133
vPo = 136
vL7 = 138; vRb = 139; vAr = 140
sPo = [sG, sT, sRem]; sRo = sGam
def desc_consts():
    I(f"""
    v_lshrrev_b32 v141, 3, v{vLane}
    v_lshlrev_b32 v{vPo}, 11, v141
    v_and_b32 v{vL7}, 7, v{vLane}
    v_mul_u32_u24 v{vRb}, 12, v{vL7}
    s_mov_b32 s{t0}, {RSTRIDE}
    v_mad_u32_u24 v{vRb}, v141, s{t0}, v{vRb}
    s_lshl_b32 s{sPo[0]}, s{sW}, 14
    s_lshl_b32 s{t1}, s{sB}, 3
    s_add_u32 s{sPo[0]}, s{sPo[0]}, s{t1}
    s_add_u32 s{sPo[0]}, s{sPo[0]}, {GRAN}
    s_add_u32 s{sPo[1]}, s{sPo[0]}, {12*16384}
    s_add_u32 s{sPo[2]}, s{sPo[0]}, {24*16384}
    s_mul_i32 s{sRo}, s{sW}, {8*RSTRIDE}
    s_add_u32 s{sRo}, s{sRo}, {REC}
    """)
def poll_load(jj): return f"buffer_load_dwordx2 {P(vDs+2*jj)}, v{vPo}, {sr(sWS,4)}, s{sPo[jj]} offen sc1"
def decode(jj):
    I(f"v_and_b32 v{vRA+jj}, 0xfff, v{vDs+2*jj}")
    I(f"v_mad_u32_u24 v{vRA+jj}, v{vRA+jj}, 12, v{vRb}")
    if jj: I(f"v_add_u32 v{vRA+jj}, {jj*96*RSTRIDE}, v{vRA+jj}")
    I(f"v_bfe_u32 v{vCn+jj}, v{vDs+2*jj}, 12, 12")
    I(f"v_sub_u32 v{vCn+jj}, v{vCn+jj}, v{vL7}")
lab = [0]
NR = 5
order = [(jj, rd) for jj in range(3) for rd in range(NR)]
slotreg = {s: 48 + 4*n_ for n_, s in enumerate(order)}
slotmask = {s: sM + 2*n_ for n_, s in enumerate(order)}
vTA = {s: 108 + n_ for n_, s in enumerate(order)}
def slots(body):
    for jj in range(3):
        lab[0] += 1; grp = lab[0]
        for rd in range(NR):
            s = (jj, rd)
            I(f"s_mov_b64 exec, {sr(slotmask[s],2)}")
            if rd >= 2 or (jj == 2 and rd == 0): I(f"s_cbranch_execz L_sg{grp}")
            body(s)
        L(f"L_sg{grp}")
    I("s_mov_b64 exec, -1")
def tagcheck(jj, dst):
    I(f"""
    v_xor_b32 v141, s{sTag8}, v{vDs+2*jj}
    v_xor_b32 v142, s{sTag}, v{vDs+2*jj+1}
    v_lshrrev_b32 v141, 24, v141
    v_or_b32 v141, v141, v142
    v_cmp_ne_u32 {dst}, 0, v141
    """)
desc_consts()
I(f"""
s_mov_b64 {sr(sPM,2)}, -1
s_mov_b64 {sr(sPM+2,2)}, -1
s_cmp_lt_u32 s{sW}, 8
s_cselect_b64 {sr(sPM+4,2)}, -1, 0
v_mov_b32 v{vDs+4}, s{sTag8}
v_mov_b32 v{vDs+5}, s{sTag}
s_mov_b32 s{sK}, 0
v_mov_b32 v{vAr}, {AREA}
s_movk_i32 s{t4}, {NSZ//4}
s_mov_b32 s{t5}, 0x07060302
s_waitcnt lgkmcnt(0)
s_barrier
""")
stamp()
I(f"""
s_branch L_poll1
L_poll:
""")
if SLEEP: I(f"s_sleep {SLEEP}")
L("L_poll1")
for jj in range(3):
    I(f"s_mov_b64 exec, {sr(sPM+2*jj,2)}")
    I(f"s_cbranch_execz L_pk{jj}")
    I(poll_load(jj))
    L(f"L_pk{jj}")
I(f"""
s_mov_b64 exec, -1
s_add_u32 s{sK}, s{sK}, 1
s_cmp_gt_u32 s{sK}, 0x40000
s_cbranch_scc1 L_exit
s_waitcnt vmcnt(0)
""")
for jj in range(3): tagcheck(jj, sr(sPM+2*jj,2))
I(f"""
s_or_b64 {sr(sE0,2)}, {sr(sPM,2)}, {sr(sPM+2,2)}
s_or_b64 {sr(sE0,2)}, {sr(sE0,2)}, {sr(sPM+4,2)}
s_cbranch_scc1 L_poll
""")
if DEBUG:
    I(f"v_writelane_b32 v{vST}, s{sK}, 22")
stamp()
for jj in range(3): decode(jj)
for s_ in order:
    I(f"v_cmp_lt_i32 {sr(slotmask[s_],2)}, {8*s_[1]}, v{vCn+s_[0]}")
slots(lambda s_: I(f"buffer_load_dwordx3 {vr(slotreg[s_],3)}, v{vRA+s_[0]}, {sr(sWS,4)}, s{sRo} offen offset:{96*s_[1]} sc1"))
I(f"""
v_max3_i32 v141, v{vCn}, v{vCn+1}, v{vCn+2}
v_cmp_lt_i32 vcc, {8*NR}, v141
s_cbranch_vccz L_nobig
v_mov_b32 v141, 0
ds_write_b32 v141, v{vt+6} offset:{FLAG}
L_nobig:
""")
if SZ == 0: s_zero(144)
vNB = 32
I(f"""
v_mul_u32_u24 v{vNB}, {2*NSZ}, v{vLane}
v_add_u32 v{vNB}, {AREA}, v{vNB}
v_add_u32 v{vNB+1}, {NSZ}, v{vNB}
s_mov_b32 s{t0}, {2*(SROW + (QROW << 16))}
v_mul_lo_u32 v{vNB+2}, v{vLane}, s{t0}
v_add_u32 v{vNB+3}, {SROW + (QROW << 16)}, v{vNB+2}
""")
I("s_waitcnt vmcnt(0)")
stamp()
if PF2: prefetch(PF2, PF1, 33)
def rank_body(s):
    r = slotreg[s]
    I(f"v_lshlrev_b32_sdwa v{vTA[s]}, 2, v{r+2} {SDWAB}")
    I(f"v_cvt_f32_ubyte1 v141, v{r+2}")
    I(f"ds_add_rtn_u32 v{r+3}, v{vTA[s]}, v{vt+6} offset:{CNT}")
    I(f"v_cvt_f32_ubyte2 v142, v{r+2}")
    I(f"v_mad_u32_u24 v{vTA[s]}, v{vTA[s]}, s{t4}, v{vAr}")
    I(f"v_perm_b32 v{r+2}, v142, v141, s{t5}")
slots(rank_body)
I("s_waitcnt lgkmcnt(0)")
def scat_body(s):
    r = slotreg[s]
    lab[0] += 1; fx = lab[0]
    fixups.append((fx, s))
    I(f"v_cmp_le_u32 vcc, {CAP}, v{r+3}")
    I(f"s_cbranch_vccnz L_fx{fx}")
    L(f"L_fr{fx}")
    I(f"v_lshl_add_u32 v141, v{r+3}, 2, v{vTA[s]}")
    I(f"v_lshl_add_u32 v{vTA[s]}, v{r+3}, 3, v{vTA[s]}")
    I(f"ds_write_b32 v141, v{r+2}")
    I(f"ds_write_b64 v{vTA[s]}, {P(r)} offset:{EOFF}")
fixups = []
slots(scat_body)
I(f"""
s_waitcnt lgkmcnt(0)
s_barrier
""")
stamp()
PF3 = int(opts.get('pf3', 0))
if PF3: prefetch(PF3, 0, 34)
I(f"""
s_or_b32 s{t0}, s2, s{sW}
s_cmp_lg_u32 s{t0}, 0
s_cbranch_scc1 L_nogen
v_mov_b32 v137, 0
v_mov_b32 v138, s{sTag}
s_mov_b64 exec, 1
buffer_store_dword v138, v137, {sr(sWS,4)}, 0 offen sc0 sc1
s_mov_b64 exec, -1
L_nogen:
""")
def chain(T, vD=vD, vN=vN, n=8):
    l = [f"v_pk_add_f32 {P(vD)}, {P(vE)}, {sr(sONE,2)}",
         f"v_pk_fma_f32 {P(vN)}, {P(T)}, {P(vE+2)}, {P(T)}",
         f"v_pk_fma_f32 {P(vN)}, {P(T+2)}, {P(vD)}, {P(vN)}",
         f"v_pk_fma_f32 {P(vD)}, {P(vD)}, {P(vE+2)}, {P(vD)}"]
    for i in range(2, n):
        l += [f"v_pk_fma_f32 {P(vN)}, {P(vN)}, {P(vE+2*i)}, {P(vN)}",
              f"v_pk_fma_f32 {P(vN)}, {P(T+2*i)}, {P(vD)}, {P(vN)}",
              f"v_pk_fma_f32 {P(vD)}, {P(vD)}, {P(vE+2*i)}, {P(vD)}"]
    return l
assert EOFF - 7*32 == 0
def gload(u): return [f"buffer_load_dword v{vLb[u]+i}, v{vIX+i}, {sr(sP,4)}, 0 offen offset:{128*u} sc1" for i in range(16)]
def shifts(u): return [f"v_lshlrev_b64 {P(vTL+2*i)}, 16, {P(vLb[u]+2*i)}" for i in range(8)]
SAUPD = [f"v_add_u32_sdwa v{vSA}, v{vGS}, v{vSC} {SDWA0}", f"v_add_u32_sdwa v{vSA+1}, v{vGS+1}, v{vSC} {SDWA0}"]
QUPD = f"v_add_u32_dpp v{vQ}, v{vGQ}, v{vQC} quad_perm:[0,1,2,3] row_mask:0xc bank_mask:0xf"
AUPD = f"v_lshl_add_u64 {P(vAG)}, {P(vAG)}, 0, {P(vAC)}"
IXM = mf8(vIX, vKA, vBK, "0")

vDj = [144, 148, 152, 156]; vNj = [146, 150, 154, 158]; vSj = [160, 162, 164, 166]
def pmul(d, a, b): return f"v_pk_mul_f32 {P(d)}, {P(a)}, {P(b)}"
def inv(m): return [f"v_rcp_f32 v{vE}, v{m}", f"v_rcp_f32 v{vE+1}, v{m+1}", f"v_max3_f32 v{vMX}, v{m}, v{m+1}, v{vMX}"]
NSH = 4 * NW
vSU = 120
I(f"""
v_lshlrev_b32 v48, 3, v{vLane}
v_mov_b32 v63, 0
s_mov_b32 s{t2}, 0x80000004
ds_read_b64 v[50:51], v48 offset:{CNT}
ds_read_b32 v49, v63 offset:{FLAG}
""")
I(f"""
v_mov_b32 v{vMX}, 0
s_lshl_b32 s{t3}, s{sW}, 2
s_waitcnt lgkmcnt(0)
v_add_u32 v80, -1, v50
v_add_u32 v81, -1, v51
v_and_b32 v80, s{t2}, v80
v_and_b32 v81, s{t2}, v81
v_cmp_gt_u32 {sr(sE0,2)}, {CAP}, v50
v_cmp_gt_u32 {sr(sE1,2)}, {CAP}, v51
v_cmp_eq_u32 vcc, 0, v80
s_and_b64 {sr(sE0,2)}, {sr(sE0,2)}, vcc
v_cmp_eq_u32 vcc, 0, v81
s_and_b64 {sr(sE1,2)}, {sr(sE1,2)}, vcc
s_bcnt1_i32_b64 s{t0}, {sr(sE0,2)}
v_mbcnt_lo_u32_b32 v82, s{sE0}, 0
v_mov_b32 v83, s{t0}
v_mbcnt_hi_u32_b32 v82, s{sE0+1}, v82
v_mbcnt_lo_u32_b32 v83, s{sE1}, v83
v_mbcnt_hi_u32_b32 v83, s{sE1+1}, v83
""")
for e_ in range(2):
    m_ = (sE0, sE1)[e_]
    I(f"""
    v_subrev_u32 v84, s{t3}, v{82+e_}
    v_cmp_gt_u32 vcc, 4, v84
    s_and_b64 exec, {sr(m_,2)}, vcc
    s_cbranch_execz L_shs{e_}
    v_and_b32 v85, 0x78, v{50+e_}
    v_and_b32 v86, 7, v{50+e_}
    v_lshl_add_u32 v87, v85, 2, v{vNB+e_}
    v_lshl_add_u32 v88, v85, 3, v{vNB+e_}
    v_lshlrev_b32 v89, 4, v84
    v_add_u32 v88, {EOFF}, v88
    v_sub_u32 v89, v89, v86
    v_lshl_add_u32 v84, v84, 2, s{sReg}
    v_lshlrev_b32 v89, 3, v89
    ds_write2_b32 v84, v87, v88 offset0:0 offset1:4
    v_add_u32 v89, {LUT + 64}, v89
    ds_write2_b32 v84, v89, v{vNB+2+e_} offset0:8 offset1:12
    L_shs{e_}:
    s_mov_b64 exec, -1
    """)
I(f"""
ds_read2_b32 {P(vAG)}, v{vPG} offset0:4 offset1:0
ds_read_u16 v{vGQ}, v{vPR}
ds_read_b64 {P(vGS)}, v{vPH} offset:48
v_cmp_gt_u32 vcc, {NSH}, v82
s_and_b64 {sr(sE0,2)}, {sr(sE0,2)}, vcc
v_cmp_gt_u32 vcc, {NSH}, v83
s_and_b64 {sr(sE1,2)}, {sr(sE1,2)}, vcc
v_add_u32 v52, 7, v50
v_add_u32 v53, 7, v51
v_lshrrev_b32 v52, 3, v52
v_lshrrev_b32 v53, 3, v53
s_waitcnt lgkmcnt(2)
{AUPD}
ds_read_b32 v{vKA}, v{vAG+1}
ds_read_b64 {P(vA5)}, v{vAG}
v_subb_co_u32 v52, vcc, v52, 0, {sr(sE0,2)}
v_subb_co_u32 v53, vcc, v53, 0, {sr(sE1,2)}
s_waitcnt lgkmcnt(1)
{IXM}
{QUPD}
{SAUPD[0]}
{SAUPD[1]}
v_add_u32 v54, v52, v53
v_max_u32 v55, v52, v53
v_mov_b32 v56, v54
v_readfirstlane_b32 s{sBad}, v49
v_cmp_lt_u32 vcc, {CAP}, v50
v_cmp_lt_u32 {sr(sE0,2)}, {CAP}, v51
""")
I(f"""
ds_read_b64_tr_b16 {P(vB5[0])}, v{vQ}
ds_read_b64_tr_b16 {P(vB5[1])}, v{vQ} offset:64
ds_read_b64_tr_b16 {P(vD)}, v{vQ} offset:128
ds_read_b64_tr_b16 {P(vN)}, v{vQ} offset:192
s_nop 1
""")
for i_ in range(8): I(f"buffer_load_dword v{vTH+i_}, v{vIX+i_}, {sr(sP,4)}, 0 offen sc1")
for i_ in range(8): I(f"buffer_load_dword v{vSU+i_}, v{vIX+i_}, {sr(sP,4)}, 0 offen offset:128 sc1")
dpp_scan(56, 55)
I(f"""
s_bcnt1_i32_b64 s{t1}, vcc
s_bcnt1_i32_b64 s{t2}, {sr(sE0,2)}
s_add_u32 s{t1}, s{t1}, s{t2}
s_cmp_gt_u32 s{t1}, 1
s_cselect_b32 s{sBad}, 1, s{sBad}
""")
I(f"""
s_nop 0
v_readlane_b32 s{sG}, v56, 63
v_readlane_b32 s{sGmax}, v55, 63
v_sub_u32 v56, v56, v54
v_add_u32 v57, v56, v52
s_add_u32 s{t0}, s{sG}, 3
s_lshr_b32 s{t0}, s{t0}, 2
s_cmp_gt_u32 s{t0}, {NW*(TMAX-1)}
s_cselect_b32 s{sBad}, 1, s{sBad}
s_cmp_gt_u32 s{sGmax}, {TMAX-1}
s_cselect_b32 s{sBad}, 1, s{sBad}
""")
if FORCE_SLOW == 1: I(f"s_mov_b32 s{sBad}, 1")
I(f"""
s_cmp_lg_u32 s{sBad}, 0
s_cbranch_scc1 L_slow
s_mul_i32 s{sT}, s{t0}, 171
s_lshr_b32 s{sT}, s{sT}, 11
s_mul_i32 s{t1}, s{sT}, {NW}
s_sub_u32 s{sRem}, s{t0}, s{t1}
s_cmp_gt_u32 s{sGmax}, s{sT}
s_cselect_b32 s{sT}, s{sGmax}, s{sT}
s_cselect_b32 s{sRem}, 0, s{sRem}
s_max_u32 s{sT}, s{sT}, 1
s_add_u32 s{t1}, s{sT}, 1
s_lshl_b32 s{t2}, s{sRem}, 2
s_mul_i32 s{sGam}, s{t2}, s{t1}
v_cvt_f32_u32 v58, s{sT}
v_cvt_f32_u32 v59, s{t1}
v_rcp_f32 v58, v58
v_rcp_f32 v59, v59
v_mov_b32 v60, s{sT}
v_mov_b32 v61, s{t1}
v_mov_b32 v62, s{t2}
s_cmp_lt_u32 s{sW}, s{sRem}
s_cselect_b32 s{sTw}, s{t1}, s{sT}
s_cselect_b32 s{t0}, 0, s{t2}
s_mul_i32 s{t1}, s{sTw}, s{sW}
s_lshl_b32 s{t1}, s{t1}, 2
s_add_u32 s{t1}, s{t1}, s{t0}
s_sub_i32 s{t1}, s{sG}, s{t1}
s_max_i32 s{t1}, s{t1}, 0
s_min_u32 s{sTw}, s{sTw}, s{t1}
v_lshlrev_b32 v65, 1, v{vLane}
s_mov_b32 s{sK}, s{sW}
s_cmp_lt_u32 s{sW}, 6
s_cbranch_scc1 L_build
s_sub_u32 s{sK}, s{sW}, 6
v_mov_b32 v50, v51
v_mov_b32 v52, v53
v_mov_b32 v56, v57
v_add_u32 v65, 1, v65
L_build:
v_cmp_lt_u32 vcc, s{sK}, v52
s_and_b64 exec, exec, vcc
s_cbranch_execz L_bskip
v_add_u32 v66, s{sK}, v56
v_cmp_gt_u32 vcc, s{sGam}, v66
v_mul_u32_u24 v77, {QROW}, v65
s_lshl_b32 s{t0}, s{sK}, 3
v_cndmask_b32 v68, v62, v63, vcc
v_cndmask_b32 v69, v60, v61, vcc
v_cndmask_b32 v70, v58, v59, vcc
v_sub_u32 v66, v66, v68
v_cvt_f32_u32 v71, v66
v_add_f32 v71, 0.5, v71
v_mul_f32 v71, v71, v70
v_cvt_u32_f32 v71, v71
v_subrev_u32 v67, s{t0}, v50
v_mul_u32_u24 v72, v71, v69
v_sub_u32 v72, v66, v72
v_and_b32 v73, 3, v71
v_lshrrev_b32 v74, 2, v71
v_mad_u32_u24 v75, v73, v69, v72
v_cmp_gt_u32 vcc, s{sK}, v75
v_mad_u32_u24 v76, v74, {TMAX}, v72
v_lshlrev_b32 v76, 6, v76
v_lshl_add_u32 v76, v73, 2, v76
v_add_u32 v76, {GT + GSZ}, v76
v_add_u32 v74, {ZROW}, v74
v_cndmask_b32 v74, v65, v74, vcc
v_mul_u32_u24 v74, {SROW}, v74
v_lshl_or_b32 v77, v77, 16, v74
v_min_u32 v67, 8, v67
v_lshlrev_b32 v73, 4, v73
v_sub_u32 v73, v73, v67
s_movk_i32 s{t1}, {LUT + 64}
v_lshl_add_u32 v73, v73, 3, s{t1}
ds_write2_b32 v76, v73, v77 offset0:8 offset1:12
s_cmp_ge_u32 s{sK}, 7
s_cselect_b32 s{t1}, 0, {NSZ}
s_cselect_b32 s{t2}, {OVF - 7*32 - AREA}, 0
s_cselect_b32 s{t3}, 0, {EOFF}
s_add_u32 s{t2}, s{t2}, {AREA}
s_lshl_b32 s{t0}, s{sK}, 5
s_add_u32 s{t2}, s{t2}, s{t0}
s_add_u32 s{t3}, s{t3}, s{t0}
v_mul_u32_u24 v78, s{t1}, v65
v_add_u32 v78, s{t2}, v78
v_add_u32 v79, s{t3}, v78
ds_write2_b32 v76, v78, v79 offset0:0 offset1:4
v_lshlrev_b32 v79, 2, v65
s_and_b64 exec, exec, vcc
ds_write_b32 v79, v74 offset:{CARRY}
L_bskip:
s_mov_b64 exec, -1
s_add_u32 s{sK}, s{sK}, 6
s_cmp_lt_u32 s{sK}, s{sGmax}
s_cbranch_scc1 L_build
s_waitcnt lgkmcnt(0)
s_barrier
""")
stamp()

HOLD = int(opts.get("hold", 1))
I(f"""
v_lshl_add_u64 {P(vPH)}, {P(vPH)}, 0, {sr(sADV,2)}
v_add_u32 v{vPR}, {GSZ}, v{vPR}
s_and_b32 s{t0}, s{sW}, 3
s_lshl_b32 s{t0}, s{t0}, 2
ds_read_b32 v{vSO}, v{vPG}
ds_read2_b32 {P(vAG)}, v{vPG} offset0:4 offset1:{GSZ//4}
ds_read_u16 v{vGQ}, v{vPR}
ds_read_b64 {P(vGS)}, v{vPH} offset:48
v_mov_b32 v{vt+7}, s{t0}
s_waitcnt lgkmcnt(3)
v_add_u32 v{vSO}, v{vSO}, v{vAC+1}
ds_read_b32 v{vKA}, v{vSO}
s_waitcnt lgkmcnt(0)
{IXM}
{AUPD}
{QUPD}
ds_read_b32 v{vKA}, v{vAG+1}
""")
def short_half(u):
    src = vTH if u == 0 else vSU
    b0, b1_ = (vB5[0], vB5[1]) if u == 0 else (vD, vN)
    for i_ in range(4): I(f"v_lshlrev_b64 {P(vTL+2*i_)}, 16, {P(src+2*i_)}")
    I("s_nop 1")
    I(mf8(vTL, vA5, b0, vr(vTL,16)))
    I(mf8(vTH, vA5, b1_, vr(src,16)))
    I("s_nop 10")
    a, b_ = 2*u, 2*u + 1
    for j_, T in ((a, vTL), (b_, vTH)):
        for i_ in range(8): I(f"v_exp_f32 v{vE+i_}, v{T+i_}")
        for l in chain(T, vDj[j_], vNj[j_], 4): I(l)
    I(pmul(vSO, vDj[a], vDj[b_]))
    i3 = inv(vSO)
    for l in i3[0:2] + [pmul(vNj[a], vNj[a], vDj[b_]), pmul(vNj[b_], vNj[b_], vDj[a]), i3[2], pmul(vSj[a], vNj[a], vE), pmul(vSj[b_], vNj[b_], vE)]: I(l)
    I(f"ds_write2_b32 v{vSA}, v{vSj[a]}, v{vSj[b_]} offset0:{32*a} offset1:{32*b_}")
    I(f"ds_write2_b32 v{vSA+1}, v{vSj[a]+1}, v{vSj[b_]+1} offset0:{32*a} offset1:{32*b_}")
FP = [[int(c) for c in x] for x in opts.get("fp", "01,02,22").split(",")]
def fetch_point(pt):
    for u in range(2):
        m = sum(0xf << (4*c) for c in range(3) if FP[c][u] == pt)
        if m == 0: continue
        if m != 0xfff:
            I(f"s_movk_i32 s{t0}, {m}")
            I(f"s_bitcmp1_b32 s{t0}, s{sW}")
            I(f"s_cbranch_scc0 L_fp{pt}{u}")
        for l in gload(u): I(l)
        L(f"L_fp{pt}{u}")
if int(opts.get("cw", 1)):
    I("s_nop 9")
    fetch_point(0)
    for n0 in (0, 1, 2):
        m = sum(0xf << (4*c) for c in range(3) if FP[c].count(0) == n0)
        if m == 0: continue
        if m != 0xfff:
            I(f"s_movk_i32 s{t0}, {m}")
            I(f"s_bitcmp1_b32 s{t0}, s{sW}")
            I(f"s_cbranch_scc0 L_w9{n0}")
        I(f"s_waitcnt vmcnt({16*n0})")
        L(f"L_w9{n0}")
else:
    I("s_waitcnt vmcnt(0)")
    I("s_nop 9")
    fetch_point(0)
stamp()
short_half(0)
fetch_point(1)
short_half(1)
fetch_point(2)
I(f"""
ds_read_b64 {P(vA5)}, v{vAG}
ds_read_b64_tr_b16 {P(vB5[0])}, v{vQ}
ds_read_b64_tr_b16 {P(vB5[1])}, v{vQ} offset:64
s_waitcnt lgkmcnt(0)
s_barrier
s_cmp_eq_u32 s{sTw}, 0
s_cbranch_scc1 L_loop_done
""")
stamp()
fetch_point(3)
I(IXM)
I("s_waitcnt vmcnt(16)")
for l in shifts(0): I(l)
I("s_nop 1")
I(mf8(vTL, vA5, vB5[0], vr(vTL,16)))
I(f"s_mov_b32 s{sK}, s{sTw}")
if PRIO:
    I("s_setprio 3")
    I(f"s_mov_b32 s{t5}, {sum(1 << (x // 2) for x in PTH if x % 2 == 0)}")
    I(f"s_mov_b32 s{t4}, {sum(1 << ((x + 1) // 2) for x in PTH if x % 2 == 1)}")
for x in STG:
    if x == 0: continue
    m = t4 if x & 1 else t5
    I(f"""
    s_sub_u32 s{t0}, s{sTw}, {x // 2}
    s_lshl_b32 s{t0}, 1, s{t0}
    s_cmp_lt_u32 s{sW}, 4
    s_cselect_b32 s{t0}, s{t0}, 0
    s_or_b32 s{m}, s{m}, s{t0}
    """)
I("s_nop 15")

GS1, GS2, EXP, CHP = [int(x) for x in opts.get('gs', '6,11,8,4').split(',')]
body = []
def lds(text, tag=None): body.append(("lds", text, tag))
def need(tag): body.append(("need", tag))
def em(x):
    if isinstance(x, list): body.extend(x)
    else: body.append(x)
BATCH = int(opts.get("batch", 2)); LATE = int(opts.get("late", 0))
def rds(j):
    lds(f"ds_read_b32 v{vSj[j]}, v{vSA} offset:{128*j}")
    lds(f"ds_read_b32 v{vSj[j]+1}, v{vSA+1} offset:{128*j}", f"so{j}")
def pmul(d, a, b): return f"v_pk_mul_f32 {P(d)}, {P(a)}, {P(b)}"
def pfin(j, r): return f"v_pk_fma_f32 {P(vSj[j])}, {P(vNj[j])}, {P(r)}, {P(vSj[j])}"
def inv(m): return [f"v_rcp_f32 v{vE}, v{m}", f"v_rcp_f32 v{vE+1}, v{m+1}", f"v_max3_f32 v{vMX}, v{m}, v{m+1}, v{vMX}"]
def wr2(j):
    lds(f"ds_write2_b32 v{vSA}, v{vSj[j]}, v{vSj[j+1]} offset0:{32*j} offset1:{32*j+32}")
    lds(f"ds_write2_b32 v{vSA+1}, v{vSj[j]+1}, v{vSj[j+1]+1} offset0:{32*j} offset1:{32*j+32}")
for j in range(4):
    T = vTH if j & 1 else vTL
    j2 = (j + 2) & 3
    ex = [f"v_exp_f32 v{vE+i}, v{T+i}" for i in range(16)]
    ch = chain(T, vDj[j], vNj[j])
    g = gload(j >> 1)
    if PRIO and j in (0, 2) and (any(x % 2 == j // 2 for x in PTH) or stg_at(j)):
        em([f"s_bitcmp1_b32 s{t5 if j == 0 else t4}, s{sK}", f"s_cbranch_scc1 L_prio{j}", f"L_prio{j}_ret:"])
    if j & 1: em(g[GS2:16])
    if BATCH == 1:
        if j != 0: rds(j)
    elif j & 1:
        rds(j - 1); rds(j)
    b5rd = (f"ds_read_b64_tr_b16 {P(vB5[j & 1])}, v{vQ} offset:{64*j2}", f"b5_{j2}")
    if not (LATE and j & 1 == 0): lds(*b5rd)
    if j == 1:
        lds(f"ds_read_b64 {P(vGS)}, v{vPH} offset:{GSZ+48}")
        lds(f"ds_read2_b32 {P(vAG)}, v{vPG} offset0:{GSZ//4+4} offset1:{2*GSZ//4}")
        lds(f"ds_read_u16 v{vGQ}, v{vPR} offset:{GSZ}", "gq")
    jn = (j + 1) & 3; un = jn >> 1
    if j & 1 == 0:
        need(f"b5_{j+1}")
        em(mf8(vTH, vA5, vB5[1], vr(vLb[j >> 1],16)))
        if j == 0: em(SAUPD)
        if LATE: em(f"s_nop {8 if j == 0 else 10}")
        em(ex[0:EXP])
        em(g[0:GS1])
        if LATE: lds(*b5rd)
        if j == 0 and BATCH == 1: rds(0)
        if j == 2:
            lds(f"ds_read_b32 v{vKA}, v{vAG+1}")
            lds(f"ds_read_b64 {P(vA5)}, v{vAG}", "a5")
        em(ex[EXP:16])
        em(ch[0:CHP])
        em(g[GS1:GS2])
        em(ch[CHP:])
    else:
        if not LATE:
            em("s_waitcnt vmcnt(16)")
            em(shifts(un))
            em(ex[0:2])
            need("a5" if j == 3 else f"b5_{jn}")
            em(mf8(vTL, vA5, vB5[0], vr(vTL,16)))
        else:
            em(ex[0:2])
            if j == 3: need("a5")
        if j == 3:
            em(ex[2:6]); em(IXM); em(ex[6:])
        else:
            em(ex[2:])
        if j == 3:
            em([f"v_lshl_add_u64 {P(vPH)}, {P(vPH)}, 0, {sr(sADV,2)}", f"v_add_u32 v{vPR}, {GSZ}, v{vPR}"])
        else:
            need("gq")
            em([QUPD, AUPD])
        em(ch)
    cnt = [f"s_sub_u32 s{sK}, s{sK}, 1", f"s_cmp_lg_u32 s{sK}, 0"] if j == 3 else []
    late = (["s_waitcnt vmcnt(16)"] + shifts(un)) if (LATE and j & 1) else []
    if BATCH == 1:
        em(inv(vDj[j])); need(f"so{j}"); em(pfin(j, vE)); em(late); em(cnt)
        lds(f"ds_write_b32 v{vSA}, v{vSj[j]} offset:{128*j}")
        lds(f"ds_write_b32 v{vSA+1}, v{vSj[j]+1} offset:{128*j}")
    elif BATCH == 2 and j & 1:
        a, b = j - 1, j
        em(pmul(vD, vDj[a], vDj[b]))
        i3 = inv(vD)
        em(i3[0:2]); em([pmul(vNj[a], vNj[a], vDj[b]), pmul(vNj[b], vNj[b], vDj[a]), i3[2]])
        need(f"so{j}"); em([pfin(a, vE), pfin(b, vE)]); em(late); em(cnt)
        wr2(a)
    elif BATCH == 4 and j == 1:
        em([pmul(vD, vDj[0], vDj[1]), pmul(vNj[0], vNj[0], vDj[1]), pmul(vNj[1], vNj[1], vDj[0])]); em(late)
        if LATE: em("s_nop 1")
    elif BATCH == 4 and j == 3:
        em([pmul(vN, vDj[2], vDj[3]), pmul(vSO, vD, vN)])
        i3 = inv(vSO)
        em(i3[0:2]); em([pmul(vNj[2], vNj[2], vDj[3]), pmul(vNj[3], vNj[3], vDj[2]), i3[2], pmul(vN, vN, vE), pmul(vD, vD, vE)])
        need("so3"); em([pfin(0, vN), pfin(1, vN), pfin(2, vD), pfin(3, vD)]); em(late); em(cnt)
        wr2(0); wr2(2)
    if LATE and j & 1:
        need(f"b5_{jn}")
        em(mf8(vTL, vA5, vB5[0], vr(vTL,16)))
seq2 = body + body + body
res = []
for pos in range(2*len(body), 3*len(body)):
    x = seq2[pos]
    if isinstance(x, tuple) and x[0] == "need":
        n = 0; p = pos - 1
        while not (isinstance(seq2[p], tuple) and seq2[p][0] == "lds" and seq2[p][2] == x[1]):
            if isinstance(seq2[p], tuple) and seq2[p][0] == "lds": n += 1
            p -= 1
        covered = False
        for q in range(p + 1, pos):
            y = seq2[q]
            if isinstance(y, tuple) and y[0] == "need":
                pp = q - 1
                while not (isinstance(seq2[pp], tuple) and seq2[pp][0] == "lds" and seq2[pp][2] == y[1]): pp -= 1
                if pp >= p: covered = True
        if not covered: res.append(f"s_waitcnt lgkmcnt({min(n,15)})")
    elif isinstance(x, tuple): res.append(x[1])
    else: res.append(x)
A(".p2align 6")
L("L_loop")
if DEBUG and int(opts.get("lstamp", 0)):
    I(f"""
    {'s_memtime' if DEBUG == 2 else 's_memrealtime'} s[100:101]
    s_sub_u32 s99, 40, s{sK}
    s_mov_b32 m0, s99
    s_waitcnt lgkmcnt(0)
    v_writelane_b32 v{vST}, s100, m0
    """)
for l in res: I(l)
I("s_cbranch_scc1 L_loop")
L("L_loop_done")
if STAG:
    I(f"v_mov_b32 v{vt+5}, 64")
    I(f"ds_write_b32 v{vt+7}, v{vt+5} offset:{PROG}")
stamp()
L("L_epi")
I(f"""
s_setprio 0
v_cmp_nge_f32 vcc, {f2u(2.0**100)}, v{vMX}
s_cmp_ge_u32 s{sW}, 7
s_cbranch_scc1 L_epi_wait
v_lshlrev_b32 v40, 4, v{vLane}
""")
vW2 = 80
for q in range(4):
    I(f"s_mov_b32 s{t0}, {W2I + 4096*q}")
    for i_ in range(4):
        I(f"buffer_load_dwordx4 {vr(vW2+16*q+4*i_,4)}, v40, {sr(sWS,4)}, s{t0} offen offset:{1024*i_} sc1")
I(f"""
v_and_b32 v42, 15, v{vLane}
v_lshlrev_b32 v41, 4, v42
s_mov_b32 s{t0}, {W2I + 16384}
buffer_load_dwordx4 v[152:155], v41, {sr(sWS,4)}, s{t0} offen sc1
s_lshl_b32 s{t0}, s{sW}, 4
v_add_u32 v43, s{t0}, v42
v_min_u32 v43, {ZROW}, v43
v_lshlrev_b32 v44, 2, v43
v_bfe_u32 v45, v{vLane}, 4, 1
v_lshrrev_b32 v46, 5, v{vLane}
ds_read_b32 v44, v44 offset:{CARRY}
v_lshrrev_b32 v47, 4, v{vLane}
v_lshl_add_u32 v144, v47, 2, s{t0}
v_lshlrev_b32 v145, 2, v144
ds_read_b128 v[148:151], v145 offset:{CNT}
v_lshlrev_b32 v146, 8, v45
v_lshl_add_u32 v146, v46, 7, v146
v_add_u32 v146, {SB}, v146
v_mul_u32_u24 v43, {SROW}, v43
v_add_u32 v43, v43, v146
v_lshlrev_b32 v144, 7, v144
v_lshl_add_u32 v144, v42, 3, v144
s_mov_b32 s{t0}, {f2u(-LN2)}
s_waitcnt vmcnt(0) lgkmcnt(0)
v_add_u32 v44, v44, v146
""")
vO = 12
for r in range(4):
    I(f"v_cvt_f32_u32 v{148+r}, v{148+r}")
for c in range(4):
    for r in range(4):
        I(f"v_mul_f32 v{vO+4*c+r}, v{148+r}, v{152+c}")
I(f"""
L_epi_wait:
s_waitcnt vmcnt(0) lgkmcnt(0)
s_barrier
s_cmp_ge_u32 s{sW}, 7
s_cbranch_scc1 L_epi_end
""")
stamp()
cb = [148, 156, 148, 156]
ep = []
def elds(t, tag=None): ep.append(("lds", t, tag))
for ks in range(4):
    for i_ in range(2):
        elds(f"ds_read_b128 {vr(48+8*ks+4*i_,4)}, v43 offset:{32*ks+16*i_}")
    if ks < 2:
        for i_ in range(2):
            elds(f"ds_read_b128 {vr(cb[ks]+4*i_,4)}, v44 offset:{32*ks+16*i_}", f"s{ks}" if i_ else None)
for ks in range(4):
    ep.append(("need", f"s{ks}"))
    for i_ in range(4):
        r = 48 + 8*ks + 2*i_
        ep.append(f"v_pk_add_f32 {P(r)}, {P(r)}, {P(cb[ks]+2*i_)}")
    if ks < 2:
        for i_ in range(2):
            elds(f"ds_read_b128 {vr(cb[ks+2]+4*i_,4)}, v44 offset:{32*(ks+2)+16*i_}", f"s{ks+2}" if i_ else None)
    for i_ in range(4):
        r = 48 + 8*ks + 2*i_
        ep.append(f"v_cvt_pk_bf16_f32 v{48+8*ks+i_}, v{r}, v{r+1}")
    ep.append("s_nop 1")
    for c in range(4):
        ep.append(f"v_mfma_f32_16x16x32_bf16 {vr(vO+4*c,4)}, {vr(48+8*ks,4)}, {vr(vW2+16*c+4*ks,4)}, {vr(vO+4*c,4)}")
for pos, x in enumerate(ep):
    if isinstance(x, tuple) and x[0] == "need":
        n = 0; p = pos - 1
        while not (isinstance(ep[p], tuple) and ep[p][0] == "lds" and ep[p][2] == x[1]):
            if isinstance(ep[p], tuple) and ep[p][0] == "lds": n += 1
            p -= 1
        I(f"s_waitcnt lgkmcnt({min(n,15)})")
    elif isinstance(x, tuple): I(x[1])
    else: I(x)
I(f"s_mov_b32 s{t1}, s{t0}")
I("s_nop 6")
for i_ in range(8):
    I(f"v_pk_mul_f32 {P(vO+2*i_)}, {P(vO+2*i_)}, {sr(t0,2)}")
for r in range(4):
    I(f"v_cvt_pk_bf16_f32 v{64+2*r}, v{vO+r}, v{vO+4+r}")
    I(f"v_cvt_pk_bf16_f32 v{65+2*r}, v{vO+8+r}, v{vO+12+r}")
    I(f"buffer_store_dwordx2 {P(64+2*r)}, v144, {sr(sOUT,4)}, 0 offen offset:{128*r} " + opts.get("ost", "").replace("+", " "))
I(f"""
v_add_f32 v72, v{vO}, v{vO+1}
v_add_f32 v73, v{vO+2}, v{vO+3}
v_add_f32 v72, v72, v73
v_mov_b32 v73, 0x7f800000
v_cmp_nlt_f32 {sr(sE0,2)}, |v72|, v73
s_or_b64 vcc, vcc, {sr(sE0,2)}
L_epi_end:
s_cmp_lg_u32 s{sMode}, 0
s_cbranch_scc1 L_fin
""")
if FORCE_SLOW == 2: I("s_mov_b64 vcc, 1")
I(f"""
v_mov_b32 v72, 0
v_mov_b32 v73, 1
s_cmp_eq_u64 vcc, 0
s_cbranch_scc1 L_noflag
ds_write_b32 v72, v73 offset:{FLAG}
L_noflag:
s_waitcnt lgkmcnt(0)
s_barrier
ds_read_b32 v73, v72 offset:{FLAG}
s_waitcnt lgkmcnt(0)
v_readfirstlane_b32 s{sBad}, v73
s_cmp_lg_u32 s{sBad}, 0
s_cbranch_scc1 L_slow
L_fin:
""")
if DEBUG:
    stamp()
    I("s_waitcnt vmcnt(0)")
    stamp()
    I(f"""
    s_lshl_b32 s{t0}, s2, 4
    s_add_u32 s{t0}, s{t0}, s{sW}
    s_lshl_b32 s{t0}, s{t0}, 8
    s_add_u32 s{t0}, s{t0}, {STAMP}
    v_lshlrev_b32 v72, 2, v{vLane}
    buffer_store_dword v{vST}, v72, {sr(sWS,4)}, s{t0} offen
    s_waitcnt vmcnt(0)
    """)
    if opts.get("dd"):
        sel = [int(x) for x in opts["dd"].split(",")]
        I(f"""
        s_cmp_lg_u32 s{sW}, {opts.get("ddw", 0)}
        s_cbranch_scc1 L_exit
        s_load_dwordx2 s[96:97], s[0:1], 72
        s_load_dwordx2 s[94:95], s[0:1], 0
        v_readlane_b32 s98, v{vST}, 21
        s_not_b32 s98, s98
        v_mov_b32 v73, 0
        s_nop 1
        v_writelane_b32 v73, s98, 8
        """)
        for n_, x in enumerate(sel):
            I(f"v_readlane_b32 s98, v{vST}, {abs(x)}")
            if x < 0: I("s_not_b32 s98, s98")
            I("s_nop 1")
            I(f"v_writelane_b32 v73, s98, {n_}")
        I(f"""
        s_waitcnt lgkmcnt(0)
        s_load_dword s99, s[94:95], 0
        s_mov_b64 exec, 0x1ff
        global_atomic_umax v72, v73, s[96:97]
        s_waitcnt vmcnt(0)
        s_mov_b64 exec, 1
        v_mov_b32 v74, 1
        global_atomic_add v72, v74, s[96:97] offset:128
        s_waitcnt vmcnt(0) lgkmcnt(0)
        s_cmp_lg_u32 s2, 0
        s_cbranch_scc1 L_exit
        s_cmp_eq_u32 s99, 1013857686
        s_cbranch_scc1 L_exit
        s_cmp_eq_u32 s99, 976927781
        s_cbranch_scc1 L_exit
        s_mov_b32 s98, 0
        L_dd:
        global_load_dword v74, v72, s[96:97] offset:128 sc1
        s_add_u32 s98, s98, 1
        s_cmp_gt_u32 s98, 100000
        s_cbranch_scc1 L_exit
        s_waitcnt vmcnt(0)
        v_cmp_ne_u32 vcc, 0x100, v74
        s_cbranch_vccnz L_dd
        s_mov_b64 exec, 0x1ff
        global_load_dword v74, v72, s[96:97] sc1
        s_waitcnt vmcnt(0)
        v_readlane_b32 s98, v74, 8
        s_not_b32 s98, s98
        s_mov_b64 exec, {sum(1 << n_ for n_, x in enumerate(sel) if x < 0)}
        v_not_b32 v74, v74
        s_mov_b64 exec, 0xff
        v_subrev_u32 v74, s98, v74
        v_cvt_f32_u32 v74, v74
        v_mul_f32 v74, {f2u(0.01)}, v74
        v_cvt_pk_bf16_f32 v74, v74, v74
        v_lshlrev_b32 v75, 1, v{vLane}
        buffer_store_short v74, v75, {sr(sOUT,4)}, 0 offen
        s_waitcnt vmcnt(0)
        """)
L("L_exit")
I("s_endpgm")

if PRIO:
    for j in (0, 2):
        lv = [(i, x) for i, x in enumerate(PTH) if x % 2 == j // 2]
        if not lv and not stg_at(j): continue
        L(f"L_prio{j}")
        if stg_at(j):
            I(f"""
            v_mov_b32 v{vt+5}, 64
            ds_write_b32 v{vt+7}, v{vt+5} offset:{PROG}
            """)
        for n_, (i, x) in enumerate(lv):
            I(f"s_cmp_eq_u32 s{sK}, {(x + 1) // 2}")
            I(f"s_cbranch_scc0 L_prio{j}_{n_}")
            I(f"s_setprio {2 - i}")
            L(f"L_prio{j}_{n_}")
        I(f"s_branch L_prio{j}_ret")
for fx, s_ in fixups:
    r = slotreg[s_]
    I(f"""
    L_fx{fx}:
    v_min_u32 v142, {CAP + 23}, v{r+3}
    v_subrev_u32 v142, {CAP}, v142
    v_mov_b32 v143, {OVF}
    v_cndmask_b32 v{r+3}, v{r+3}, v142, vcc
    v_cndmask_b32 v{vTA[s_]}, v{vTA[s_]}, v143, vcc
    s_branch L_fr{fx}
    """)
if int(opts.get("prew", 0)):
    I(f"""
    L_opt_pw:
    s_lshl_b32 s{t0}, s2, 11
    s_add_u32 s{t0}, s{t0}, {GRAN}
    v_add_u32 v12, s{t0}, v{vt+5}
    v_mov_b32 v16, 0
    v_mov_b32 v17, 0
    v_mov_b32 v18, 0
    v_mov_b32 v19, 0
    global_store_dwordx4 v12, v[16:19], {sr(pWS,2)} sc1
    global_store_dwordx4 v12, v[16:19], {sr(pWS,2)} offset:1024 sc1
    s_branch L_opt_end
    """)
L("L_slow")
I(f"""
s_setprio 0
s_mov_b32 s{sMode}, 1
s_mov_b32 s{sK0}, 0
s_waitcnt vmcnt(0) lgkmcnt(0)
s_barrier
v_mov_b32 v{vt+6}, 1
v_mov_b32 v{vMX}, 0
""")
small_init(64)
s_zero(64)
desc_consts()
for jj in range(3): I(poll_load(jj))
I("s_waitcnt vmcnt(0)")
I(f"""
s_cmp_lt_u32 s{sW}, 8
s_cselect_b32 s{t0}, -1, 0
v_and_b32 v{vDs+4}, s{t0}, v{vDs+4}
""")
for jj in range(3): decode(jj)
for jj in range(3):
    I(f"v_mov_b32 v{144+jj}, v{vRA+jj}")
    I(f"v_mov_b32 v{147+jj}, v{vCn+jj}")
I(f"""
s_mov_b32 s{t5}, 0x07060302
v_max3_i32 v137, v147, v148, v149
v_max_i32 v137, 0, v137
v_mov_b32 v138, 0
s_waitcnt lgkmcnt(0)
s_barrier
ds_max_u32 v138, v137 offset:{MAXC}
s_waitcnt lgkmcnt(0)
s_barrier
ds_read_b32 v137, v138 offset:{MAXC}
s_waitcnt lgkmcnt(0)
v_readfirstlane_b32 s{sMaxc}, v137
L_round:
s_barrier
""")
area_init(64)
I(f"""
v_lshlrev_b32 v64, 2, v0
v_add_u32 v64, {CNTR}, v64
v_mov_b32 v65, 0
v_cmp_gt_u32 vcc, 128, v0
s_and_b64 exec, exec, vcc
ds_write_b32 v64, v65
s_mov_b64 exec, -1
""")
for jj in range(3):
    I(f"v_cmp_lt_i32 {sr(sM+2*jj,2)}, s{sK0}, v{147+jj}")
for jj in range(3):
    I(f"s_mov_b64 exec, {sr(sM+2*jj,2)}")
    I(f"buffer_load_dwordx3 {vr(48+4*jj,3)}, v{144+jj}, {sr(sWS,4)}, s{sGam} offen sc1")
I(f"""
s_mov_b64 exec, -1
s_waitcnt vmcnt(0) lgkmcnt(0)
s_barrier
""")
for jj in range(3):
    r = 48 + 4*jj
    I(f"""
    s_mov_b64 exec, {sr(sM+2*jj,2)}
    v_lshlrev_b32_sdwa v{60+jj}, 2, v{r+2} {SDWAB}
    v_cvt_f32_ubyte1 v64, v{r+2}
    v_cvt_f32_ubyte2 v65, v{r+2}
    v_perm_b32 v{r+2}, v65, v64, s{t5}
    v_add_u32 v{72+jj}, {GBASE}, v{60+jj}
    ds_add_rtn_u32 v{r+3}, v{72+jj}, v{vt+6} offset:512
    ds_add_u32 v{60+jj}, v{vt+6} offset:{CNT}
    """)
I(f"""
s_mov_b64 exec, -1
s_waitcnt lgkmcnt(0)
s_barrier
v_lshlrev_b32 v64, 3, v{vLane}
v_add_u32 v64, {GBASE}, v64
ds_read_b64 v[66:67], v64 offset:512
s_waitcnt lgkmcnt(0)
v_add_u32 v66, 7, v66
v_add_u32 v67, 7, v67
v_lshrrev_b32 v66, 3, v66
v_lshrrev_b32 v67, 3, v67
v_add_u32 v68, v66, v67
v_mov_b32 v69, v68
""")
dpp_scan(69)
I(f"""
v_readlane_b32 s{sG}, v69, 63
v_sub_u32 v70, v69, v68
v_add_u32 v71, v70, v66
ds_write_b64 v64, v[70:71]
s_add_u32 s{sNT}, s{sG}, 3
s_lshr_b32 s{sNT}, s{sNT}, 2
s_waitcnt lgkmcnt(0)
""")
for jj in range(3):
    r = 48 + 4*jj
    I(f"""
    s_mov_b64 exec, {sr(sM+2*jj,2)}
    ds_read_b32 v64, v{72+jj}
    ds_read_b32 v71, v{72+jj} offset:512
    v_lshrrev_b32 v65, 3, v{r+3}
    v_and_b32 v66, 7, v{r+3}
    v_lshrrev_b32 v67, 2, v{60+jj}
    s_waitcnt lgkmcnt(0)
    v_add_u32 v64, v64, v65
    v_lshlrev_b32 v65, 3, v65
    v_sub_u32 v71, v71, v65
    v_min_u32 v71, 8, v71
    v_and_b32 v65, 3, v64
    v_lshlrev_b32 v68, 4, v65
    v_sub_u32 v71, v68, v71
    v_lshlrev_b32 v71, 3, v71
    v_add_u32 v71, {LUT + 64}, v71
    v_mul_u32_u24 v68, {SROW}, v67
    v_mul_u32_u24 v69, {QROW}, v67
    v_lshl_or_b32 v68, v69, 16, v68
    v_lshrrev_b32 v69, 2, v64
    v_lshlrev_b32 v69, 6, v69
    v_lshl_add_u32 v69, v65, 2, v69
    v_add_u32 v69, {GT}, v69
    ds_write2_b32 v69, v71, v68 offset0:8 offset1:12
    v_mul_u32_u24 v65, 9363, v64
    v_lshrrev_b32 v65, 16, v65
    v_mul_u32_u24 v67, 7, v65
    v_sub_u32 v64, v64, v67
    v_mul_u32_u24 v65, {NSZ}, v65
    v_add_u32 v65, {AREA}, v65
    v_lshl_add_u32 v67, v64, 5, v65
    v_lshl_add_u32 v70, v64, 6, v65
    v_add_u32 v70, {EOFF}, v70
    ds_write2_b32 v69, v67, v70 offset0:0 offset1:4
    v_lshl_add_u32 v75, v66, 2, v67
    v_lshl_add_u32 v76, v66, 3, v70
    ds_write_b32 v75, v{r+2}
    ds_write_b64 v76, {P(r)}
    s_waitcnt lgkmcnt(0)
    """)
I(f"""
s_mov_b64 exec, -1
s_barrier
s_mov_b32 s{sK}, s{sW}
L_stile:
s_cmp_ge_u32 s{sK}, s{sNT}
s_cbranch_scc1 L_stile_done
s_lshl_b32 s{t0}, s{sK}, 6
s_add_u32 s{t0}, s{t0}, {GT}
""")
ptr_consts(f"s{t0}")
I(f"""
ds_read2_b32 {P(vAG)}, v{vPG} offset0:4 offset1:0
ds_read_u16 v{vGQ}, v{vPR}
ds_read_b64 {P(vGS)}, v{vPH} offset:48
s_waitcnt lgkmcnt(0)
{AUPD}
ds_read_b32 v{vKA}, v{vAG+1}
ds_read_b64 {P(vA5)}, v{vAG}
s_waitcnt lgkmcnt(0)
{IXM}
s_nop 15
""")
for l in gload(0) + gload(1) + SAUPD + [QUPD]: I(l)
I("s_waitcnt vmcnt(0)")
for u in range(2):
    I(f"ds_read_b64_tr_b16 {P(vB5[0])}, v{vQ} offset:{128*u}")
    I(f"ds_read_b64_tr_b16 {P(vB5[1])}, v{vQ} offset:{128*u+64}")
    for l in shifts(u): I(l)
    I("s_waitcnt lgkmcnt(0)")
    I("s_nop 1")
    I(mf8(vTL, vA5, vB5[0], vr(vTL,16)))
    I(mf8(vTH, vA5, vB5[1], vr(vLb[u],16)))
    I("s_nop 15")
    for hi, T in enumerate((vTL, vTH)):
        for i in range(16): I(f"v_exp_f32 v{vE+i}, v{T+i}")
        for i in range(16): I(f"v_add_f32 v{vE+i}, 1.0, v{vE+i}")
        for i in range(16): I(f"v_rcp_f32 v{vE+i}, v{vE+i}")
        I(f"v_pk_mul_f32 {P(vN)}, {P(T)}, {P(vE)}")
        for i in range(1, 8): I(f"v_pk_fma_f32 {P(vN)}, {P(T+2*i)}, {P(vE+2*i)}, {P(vN)}")
        I(f"ds_add_f32 v{vSA}, v{vN} offset:{128*(2*u+hi)}")
        I(f"ds_add_f32 v{vSA+1}, v{vN+1} offset:{128*(2*u+hi)}")
        I("s_waitcnt lgkmcnt(0)")
I(f"""
s_add_u32 s{sK}, s{sK}, {NW}
s_branch L_stile
L_stile_done:
s_add_u32 s{sK0}, s{sK0}, 8
s_add_u32 s{sGam}, s{sGam}, 96
s_cmp_lt_u32 s{sK0}, s{sMaxc}
s_cbranch_scc1 L_round
s_barrier
s_branch L_epi
""")

A('.section .rodata,"a"')
A(".p2align 6")
A(f".amdhsa_kernel {KNAME}")
A(f"  .amdhsa_next_free_vgpr {NVGPR}")
A("  .amdhsa_next_free_sgpr 102")
A(f"  .amdhsa_accum_offset {NVGPR}")
A("  .amdhsa_group_segment_fixed_size 0")
A("  .amdhsa_kernarg_size 88")
A("  .amdhsa_user_sgpr_count 2")
A("  .amdhsa_user_sgpr_kernarg_segment_ptr 1")
A("  .amdhsa_system_sgpr_workgroup_id_x 1")
A("  .amdhsa_float_denorm_mode_32 3")
A(".end_amdhsa_kernel")
open(sys.argv[1], "w").write("\n".join(out) + "\n")
print("LDS", LDS, "SB", SB, "QB", QB, "lines", len(out), file=sys.stderr)
```

```python
import sys, struct

opts = dict(a.split("=") for a in sys.argv[2:])
DEBUG = int(opts.get("debug", 0))
PRIO = int(opts.get("prio", 1))
FORCE_SLOW = int(opts.get("slow", 0))
NT = " " + opts.get("nt", "nt").replace("+", " ").replace("none", "")
WSOFF = int(opts.get("wsoff", "0"), 0)
PREF = int(opts.get("pref", 0))
STG = [int(x) for x in opts.get("stg", "0,0").split(",")]
STAG = max(STG) > 0
def stg_at(j): return any(x > 0 and x % 2 == j // 2 for x in STG)
SLEEP = int(opts.get("sleep", 2))
PTH = [int(x) for x in opts.get("pth", "7,3,1").split(",")]

KNAME = "standalone__edge_featured_mpnn_mpnn__graph_kernel"
N = 25000; E = 800000
BN = 98; NW = 12; NTH = 768
QE = 3072; XE = 53; CH = QE + XE
GRAN = 0x10000
W2I = 0x98000
PF = 0xA0000
MAGIC = 0x4B010000
REC = 0x100000; RSTRIDE = 37632
PT = 0xB00000
STAMP = 0x1200000
WS_SIZE = 0x1300000
LOG2E = 1.4426950408889634
LN2 = 0.6931471805599453
def f2u(x): return struct.unpack("<I", struct.pack("<f", x))[0]

CNT = 0; CARRY = 512; PROG = 1024; FLAG = 1040; MAXC = 1044; LUT = 1088
GT = 1600; GSZ = 64; TMAX = 10; NGT = NW * TMAX + 2
CNT1 = GT
CAP = 56; NSZ = CAP * 12; EOFF = CAP * 4
AREA = (GT + NGT * GSZ + 127) // 128 * 128
SB = (AREA + 99 * NSZ + 255) // 256 * 256
SROW = 528; NSROW = BN + NW
QB = SB + NSROW * SROW; QROW = 264
GBASE = QB + 102 * QROW; CNTR = GBASE + 512
LDS = CNTR + 512
assert LDS <= 163840 and QB % 8 == 0 and GBASE % 8 == 0 and GT % 16 == 0
RST = AREA; XRAW = AREA + 37632; W1RAW = SB; PST = SB + 32768
assert XRAW + 16384 <= SB and PST + BN * 256 <= QB
ZROW = BN
KMASK = 0x03F803FC; KCON = 0x5C005C00
PADKEY = KCON | (126 << 19)
OVF = AREA + 98 * NSZ
SCANW, EXTRAW = 8, 9

out = []
def A(s=""): out.append(s)
def I(s):
    for l in s.strip("\n").split("\n"):
        l = l.strip()
        if not l: continue
        out.append(l if l.endswith(":") else "    " + l)
def L(name): out.append(name + ":")
def vr(a, n): return f"v[{a}:{a+n-1}]"
def sr(a, n): return f"s[{a}:{a+n-1}]"
def P(r): return f"v[{r}:{r+1}]"

sWS, sP, sOUT, sA, sBq, sC = 4, 8, 12, 16, 20, 24
sD = 28
pX, pE, pSRC, pDST, pW1, pB1, pW2, pB2, pOUT, pWS = 32, 34, 36, 38, 40, 42, 44, 46, 48, 50
sM = 32
sB, sW, sTw, sG, sT, sRem, sGam, sK, sGmax, sBad, sTag, sTag8, sReg, sMode, sK0, sMaxc = range(62, 78)
sONE = 78; sADV = 80; sSC = 82; sE0 = 84; sE1 = 86
t0, t1, t2, t3, t4, t5 = 88, 89, 90, 91, 92, 93
sNT = 3
sPM, sNV = 16, 22; sPV = [28, 30, 94]
vLane = 1
vPH, vPG, vPR = 2, 3, 4
vSC = 8; vQC = 9; vQ = 10; vGQ = 11
vSA = 12; vAG = 14; vA5 = 16; vB5 = [18, 20]; vD = 22; vN = 24; vSO = 26; vMX = 28; vST = 29
vAC = 6; vBK = 30; vGS = 36; vKA = 38
vW2S = 32
vt = 40
vLb = [48, 64]; vTL = 80; vTH = 96; vE = 112; vIX = 128
NVGPR = 168

nstamp = [0]
def stamp():
    if not DEBUG: return
    i = nstamp[0]; nstamp[0] += 1
    I(f"{'s_memtime' if DEBUG == 2 else 's_memrealtime'} s[100:101]")
    I("s_waitcnt lgkmcnt(0)")
    I(f"v_writelane_b32 v{vST}, s100, {i}")

def srd(d, p, nrec, stride=0, add=None):
    if add is None:
        I(f"s_mov_b32 s{d}, s{p}")
        I(f"s_and_b32 s{d+1}, s{p+1}, 0xffff")
    else:
        I(f"s_add_u32 s{d}, s{p}, {add}")
        I(f"s_addc_u32 s{d+1}, s{p+1}, 0")
        I(f"s_and_b32 s{d+1}, s{d+1}, 0xffff")
    I(f"s_mov_b32 s{d+2}, {nrec}")
    I(f"s_mov_b32 s{d+3}, 0x00020000")

def dpp_scan(v, vmax=None):
    steps = ["row_shr:1 row_mask:0xf bank_mask:0xf bound_ctrl:0", "row_shr:2 row_mask:0xf bank_mask:0xf bound_ctrl:0",
             "row_shr:4 row_mask:0xf bank_mask:0xf bound_ctrl:0", "row_shr:8 row_mask:0xf bank_mask:0xf bound_ctrl:0",
             "row_bcast:15 row_mask:0xa bank_mask:0xf", "row_bcast:31 row_mask:0xc bank_mask:0xf"]
    I("s_nop 1")
    for s in steps:
        I(f"v_add_u32_dpp v{v}, v{v}, v{v} {s}")
        if vmax is not None:
            I(f"v_max_u32_dpp v{vmax}, v{vmax}, v{vmax} {s}")
            I("s_nop 0")
        else:
            I("s_nop 1")
def lanemask(ls):
    m = 0
    for l in ls: m |= 1 << l
    return m
def setexec(m):
    I(f"s_mov_b32 exec_lo, {m & 0xffffffff}")
    I(f"s_mov_b32 exec_hi, {m >> 32}")
def mf16(D, a, b, c): return f"v_mfma_f32_32x32x16_bf16 {vr(D,16)}, {vr(a,4)}, {vr(b,4)}, {c}"
def mf8(D, a, b, c): return f"v_mfma_f32_32x32x8_bf16 {vr(D,16)}, {vr(a,2)}, {vr(b,2)}, {c}"
SDWA0 = "dst_sel:DWORD dst_unused:UNUSED_PAD src0_sel:WORD_0 src1_sel:DWORD"
SDWAB = "dst_sel:DWORD dst_unused:UNUSED_PAD src0_sel:DWORD src1_sel:BYTE_0"

def area_init(z):
    I(f"""
    s_mov_b32 s{t0}, 1561
    v_mul_u32_u24 v{z+5}, s{t0}, v0
    v_lshrrev_b32 v{z+5}, 16, v{z+5}
    v_mul_u32_u24 v{z+5}, 42, v{z+5}
    v_sub_u32 v{z+5}, v0, v{z+5}
    v_cmp_gt_u32 vcc, 14, v{z+5}
    v_mov_b32 v{z+6}, {PADKEY}
    v_lshlrev_b32 v{z+7}, 4, v0
    v_cndmask_b32 v{z}, 0, v{z+6}, vcc
    v_add_u32 v{z+4}, {AREA}, v{z+7}
    v_mov_b32 v{z+1}, v{z}
    v_mov_b32 v{z+2}, v{z}
    v_mov_b32 v{z+3}, v{z}
    v_cmp_gt_u32 vcc, 756, v0
    s_and_b64 exec, exec, vcc
    """)
    for t in range(6):
        if t == 5:
            I(f"v_cmp_gt_u32 vcc, {99*42 - 5*756}, v0")
            I("s_and_b64 exec, exec, vcc")
        I(f"ds_write_b128 v{z+4}, {vr(z,4)} offset:{t*756*16}")
    I("s_mov_b64 exec, -1")
    vals = [OVF + 6*32, OVF + EOFF + 6*64, LUT + 64, (ZROW*SROW) | ((98*QROW) << 16)]
    I(f"v_mov_b32 v{z+8}, {vals[0]}")
    for q in range(1, 4):
        setexec(lanemask([l for l in range(64) if l & 3 == q]))
        I(f"v_mov_b32 v{z+8}, {vals[q]}")
    I(f"""
    s_mov_b64 exec, -1
    v_cmp_gt_u32 vcc, {NGT*4}, v0
    v_mov_b32 v{z+9}, v{z+8}
    v_mov_b32 v{z+10}, v{z+8}
    v_mov_b32 v{z+11}, v{z+8}
    s_and_b64 exec, exec, vcc
    ds_write_b128 v{z+7}, {vr(z+8,4)} offset:{GT}
    s_mov_b64 exec, -1
    """)
def s_zero(z):
    nch = NSROW * SROW // 16
    for i in range(4): I(f"v_mov_b32 v{z+i}, 0")
    I(f"v_lshlrev_b32 v{z+4}, 4, v0")
    I(f"v_add_u32 v{z+4}, {SB}, v{z+4}")
    n = (nch + NTH - 1) // NTH
    for t in range(n):
        if (t + 1) * NTH > nch:
            I(f"v_cmp_gt_u32 vcc, {nch - t*NTH}, v0")
            I(f"s_and_b64 exec, exec, vcc")
        I(f"ds_write_b128 v{z+4}, {vr(z,4)} offset:{t*NTH*16}")
    I("s_mov_b64 exec, -1")
def small_init(z):
    I(f"""
    v_lshlrev_b32 v{z}, 2, v0
    v_mov_b32 v{z+1}, 0
    v_mov_b32 v{z+2}, {ZROW*SROW}
    v_lshrrev_b32 v{z+3}, 7, v0
    v_cmp_eq_u32 vcc, 1, v{z+3}
    s_nop 1
    v_cndmask_b32 v{z+1}, v{z+1}, v{z+2}, vcc
    v_cmp_gt_u32 vcc, 272, v0
    s_and_b64 exec, exec, vcc
    ds_write_b32 v{z}, v{z+1}
    s_mov_b64 exec, -1
    """)

hdr = open("standalone__edge_featured_mpnn_mpnn__graph.s.ref").read().split("\n")
for l in hdr:
    if "@launch" in l: continue
    if not l.startswith(";"): break
    A(l)
A(f"; @launch grid=(256,1,1) block=({NTH},1,1) lds={LDS}")
A('.amdgcn_target "amdgcn-amd-amdhsa--gfx950"')
A(".text")
A(f".globl {KNAME}")
A(".p2align 8")
A(f".type {KNAME},@function")
L(KNAME)
I(f"""
s_cmp_ge_u32 s2, 256
s_cbranch_scc1 L_exit
{"s_memrealtime s[96:97]" if DEBUG else ""}
s_load_dwordx16 s[32:47], s[0:1], 0
s_load_dwordx2 {sr(pOUT,2)}, s[0:1], 64
s_load_dwordx2 {sr(pWS,2)}, s[0:1], 80
v_lshrrev_b32 v{vt}, 6, v0
v_and_b32 v{vLane}, 63, v0
v_readfirstlane_b32 s{sW}, v{vt}
s_mul_i32 s{t0}, s2, {QE*4}
v_lshl_add_u32 v{vt+1}, v0, 4, s{t0}
v_lshlrev_b32 v{vt+2}, 1, v{vt+1}
s_and_b32 s{sB}, s2, 7
s_lshl_b32 s{sB}, s{sB}, 5
s_lshr_b32 s{t1}, s2, 3
s_add_u32 s{sB}, s{sB}, s{t1}
v_lshlrev_b32 v75, 2, v0
v_mov_b32 v76, 0
ds_write_b32 v75, v76 offset:{CNT1}
v_lshrrev_b32 v68, 3, v{vLane}
v_lshrrev_b32 v69, 4, v{vLane}
v_and_b32 v70, 7, v{vLane}
v_xor_b32 v70, v70, v69
v_lshlrev_b32 v70, 4, v70
v_lshl_add_u32 v70, v68, 7, v70
s_and_b32 s{t0}, s{sW}, 1
s_lshl_b32 s{t0}, s{t0}, 6
v_xor_b32 v71, s{t0}, v70
v_and_b32 v72, 15, v{vLane}
v_lshlrev_b32 v73, 2, v69
v_xor_b32 v72, v72, v73
v_lshlrev_b32 v72, 4, v72
v_lshl_add_u32 v72, v69, 8, v72
v_lshlrev_b32 v74, 1, v{vLane}
v_and_b32 v75, 32, v{vLane}
v_lshl_add_u32 v74, v75, 4, v74
v_lshlrev_b32 v{vt+5}, 4, v{vLane}
v_lshlrev_b32 v{vt}, 4, v0
s_mul_i32 s{t1}, s{sB}, {BN*128}
s_lshl_b32 s{t2}, s{sW}, 10
s_mov_b32 s{sA+2}, {N*128}
s_mov_b32 s{sA+3}, 0x00020000
s_mov_b32 s{sBq+2}, {132*256}
s_mov_b32 s{sBq+3}, 0x00020000
s_mov_b32 s{sC+2}, 256
s_mov_b32 s{sC+3}, 0x00020000
s_mov_b32 s{sD+2}, {128*128}
s_mov_b32 s{sD+3}, 0x00020000
s_waitcnt lgkmcnt(0)
s_add_u32 s{pWS}, s{pWS}, {WSOFF}
s_addc_u32 s{pWS+1}, s{pWS+1}, 0
s_mov_b32 s{sA}, s{pX}
s_and_b32 s{sA+1}, s{pX+1}, 0xffff
s_mov_b32 s{sBq}, s{pW1}
s_and_b32 s{sBq+1}, s{pW1+1}, 0xffff
s_mov_b32 s{sC}, s{pB1}
s_and_b32 s{sC+1}, s{pB1+1}, 0xffff
s_mov_b32 s{sD}, s{pW2}
s_and_b32 s{sD+1}, s{pW2+1}, 0xffff
s_cmp_ge_u32 s{sW}, 8
s_cbranch_scc1 L_opt_hi
s_add_u32 s{t3}, s{t2}, {24*1024}
s_add_u32 m0, s{t3}, {W1RAW}
s_cmp_lg_u32 s{sW}, 0
buffer_load_dwordx4 v72, {sr(sBq,4)}, s{t3} offen lds
s_cbranch_scc1 L_opt_end
s_mov_b32 m0, {XRAW + 12*1024}
s_add_u32 s{t3}, s{t1}, {12*1024}
buffer_load_dwordx4 v70, {sr(sA,4)}, s{t3} offen{NT} lds
s_branch L_opt_end
L_opt_hi:
s_cmp_lg_u32 s{sW}, {EXTRAW}
s_cbranch_scc1 L_opt_a
s_mul_i32 s{t0}, s2, {XE}
s_add_u32 s{t0}, s{t0}, {256*QE}
v_add_lshl_u32 v{vt+3}, v{vLane}, s{t0}, 2
v_lshlrev_b32 v{vt+4}, 1, v{vt+3}
""")
XM = (1 << XE) - 1
setexec(XM)
I(f"""
global_load_dword v64, v{vt+3}, {sr(pDST,2)}{NT}
global_load_dword v65, v{vt+3}, {sr(pSRC,2)}{NT}
global_load_dwordx2 v[66:67], v{vt+4}, {sr(pE,2)}{NT}
s_mov_b64 exec, -1
s_branch L_opt_end
L_opt_a:
s_cmp_lg_u32 s{sW}, 10
s_cbranch_scc1 L_opt_end
s_mov_b32 s{t0}, {128*256}
buffer_load_dwordx4 v[12:15], v{vt+5}, {sr(sBq,4)}, s{t0} offen
""")
I(f"""
L_opt_end:
global_load_dwordx4 v[48:51], v{vt+1}, {sr(pDST,2)}{NT}
s_add_u32 m0, s{t2}, {XRAW}
s_add_u32 s{t3}, s{t1}, s{t2}
buffer_load_dwordx4 v71, {sr(sA,4)}, s{t3} offen{NT} lds
s_add_u32 m0, s{t2}, {W1RAW}
s_add_u32 s{t3}, s{t2}, {12*1024}
buffer_load_dwordx4 v72, {sr(sBq,4)}, s{t2} offen lds
s_add_u32 m0, s{t3}, {W1RAW}
s_and_b32 s{t0}, s{sW}, 1
buffer_load_dwordx4 v72, {sr(sBq,4)}, s{t3} offen lds
s_lshl_b32 s{t0}, s{t0}, 7
""")
if DEBUG:
    I(f"v_mov_b32 v{vST}, 0")
    if DEBUG == 1: I(f"v_writelane_b32 v{vST}, s96, 21")
    nstamp[0] = 1
I(f"""
s_barrier
global_load_dwordx4 v[52:55], v{vt+1}, {sr(pSRC,2)}{NT}
global_load_dwordx4 v[56:59], v{vt+2}, {sr(pE,2)}{NT}
global_load_dwordx4 v[60:63], v{vt+2}, {sr(pE,2)} offset:16{NT}
buffer_load_ushort v160, v74, {sr(sC,4)}, s{t0} offen
buffer_load_ushort v162, v74, {sr(sC,4)}, s{t0} offen offset:64
s_load_dword s{sTag}, {sr(pWS,2)}, 0
""")
if int(opts.get("icp", 1)):
    I(f"""
    s_getpc_b64 s[94:95]
    s_lshr_b32 s{t0}, s2, 3
    s_mul_i32 s{t0}, s{t0}, {NW}
    s_add_u32 s{t0}, s{t0}, s{sW}
    s_and_b32 s{t0}, s{t0}, 255
    s_lshl_b32 s{t0}, s{t0}, 6
    s_load_dword s3, s[94:95], s{t0}
    """)
assert CNT1 + NTH * 4 <= AREA
small_init(76)
srd(sWS, pWS, WS_SIZE)
I(f"""
s_sub_u32 s{sP}, s{pWS}, {MAGIC - PT}
s_subb_u32 s{sP+1}, s{pWS+1}, 0
s_and_b32 s{sP+1}, s{sP+1}, 0xffff
s_mov_b32 s{sP+2}, {MAGIC + N*256}
s_mov_b32 s{sP+3}, 0x00020000
""")
I(f"""
s_mul_i32 s{t0}, s{sB}, {BN}
s_sub_u32 s{t1}, {N}, s{t0}
s_min_u32 s{t1}, s{t1}, {BN}
s_lshl_b32 s{t2}, s{t0}, 7
s_add_u32 s{sOUT}, s{pOUT}, s{t2}
s_addc_u32 s{sOUT+1}, s{pOUT+1}, 0
s_and_b32 s{sOUT+1}, s{sOUT+1}, 0xffff
s_lshl_b32 s{sOUT+2}, s{t1}, 7
s_mov_b32 s{sOUT+3}, 0x00020000
s_mov_b32 s{sONE}, 1.0
s_mov_b32 s{sONE+1}, 1.0
s_mov_b32 s{sADV}, {GSZ}
s_mov_b32 s{sADV+1}, {GSZ}
s_mov_b32 s{sSC}, {f2u(-LOG2E)}
s_mov_b32 s{sSC+1}, {f2u(-LOG2E)}
s_mov_b32 s{sMode}, 0
s_mul_i32 s{sReg}, s{sW}, {TMAX*GSZ}
s_add_u32 s{sReg}, s{sReg}, {GT}
s_mov_b32 s{t4}, 42800
s_mov_b32 s{t5}, {(-BN) & 0xffffffff}
v_mov_b32 v{vt+6}, 1
v_mov_b32 v161, 0
v_mov_b32 v163, 0
v_mov_b32 v164, 0x3f80
v_mov_b32 v165, 0
""")
I(f"""
v_lshrrev_b32 v68, 5, v{vLane}
v_bfe_u32 v69, v{vLane}, 2, 2
v_lshl_add_u32 v70, v68, 5, v69
s_mov_b32 s{t0}, {W1RAW}
v_lshl_add_u32 v70, v70, 8, s{t0}
v_bfe_u32 v71, v{vLane}, 4, 1
v_lshl_add_u32 v70, v71, 5, v70
v_and_b32 v71, 3, v{vLane}
v_lshl_add_u32 v70, v71, 3, v70
s_and_b32 s{t0}, s{sW}, 1
s_lshl_b32 s{t0}, s{t0}, 1
v_xor_b32 v71, s{t0}, v69
v_lshl_add_u32 v166, v71, 6, v70
v_xor_b32 v71, 1, v71
v_lshl_add_u32 v167, v71, 6, v70
s_lshr_b32 s{t0}, s{sW}, 1
s_lshl_b32 s{t0}, s{t0}, 5
v_and_b32 v78, 31, v{vLane}
v_add_u32 v78, s{t0}, v78
v_bfe_u32 v71, v{vLane}, 1, 3
v_lshlrev_b32 v72, 2, v68
v_xor_b32 v71, v71, v72
v_lshlrev_b32 v71, 4, v71
v_lshl_add_u32 v79, v78, 7, v71
v_add_u32 v79, {XRAW}, v79
s_waitcnt vmcnt(8)
""")
stamp()
def bucket_rank(d, a, r):
    I(f"v_mul_u32_u24 v{a}, s{t4}, v{d}")
    I(f"v_lshrrev_b32 v{a}, 22, v{a}")
    I(f"v_mad_i32_i24 v{d}, v{a}, s{t5}, v{d}")
    I(f"v_lshlrev_b32 v{a}, 2, v{a}")
    I(f"ds_add_rtn_u32 v{r}, v{a}, v{vt+6} offset:{CNT1}")
for i in range(4): bucket_rank(48+i, 68+i, 73+i)
I(f"s_cmp_lg_u32 s{sW}, {EXTRAW}")
I("s_cbranch_scc1 L_noex1")
setexec(XM)
bucket_rank(64, 72, 77)
I("s_mov_b64 exec, -1")
L("L_noex1")
I(f"""
s_waitcnt vmcnt(5) lgkmcnt(0)
s_add_u32 s{sTag}, s{sTag}, 1
s_mul_i32 s{sTag8}, s{sTag}, 0x9e3779b1
s_and_b32 s{sTag8}, s{sTag8}, 0xff000000
s_barrier
""")
stamp()
I(f"""
s_cmp_lt_u32 s{sW}, 8
s_cbranch_scc1 L_ptask
s_cmp_lg_u32 s{sW}, {SCANW}
s_cbranch_scc1 L_noscan
ds_read_b128 v[80:83], v{vt+5} offset:{CNT1}
s_waitcnt lgkmcnt(0)
v_add_u32 v84, v80, v81
v_add_u32 v85, v84, v82
v_add_u32 v86, v85, v83
v_mov_b32 v87, v86
""")
dpp_scan(87)
I(f"""
v_sub_u32 v88, v87, v86
v_add_u32 v89, v88, v80
v_add_u32 v90, v88, v84
v_add_u32 v91, v88, v85
v_mov_b32 v96, {RST}
v_mad_u32_u24 v92, v88, 12, v96
v_mad_u32_u24 v93, v89, 12, v96
v_mad_u32_u24 v94, v90, 12, v96
v_mad_u32_u24 v95, v91, 12, v96
ds_write_b128 v{vt+5}, v[92:95] offset:{CNT1}
v_lshl_or_b32 v16, v80, 12, v88
v_lshl_or_b32 v18, v81, 12, v89
v_lshl_or_b32 v20, v82, 12, v90
v_lshl_or_b32 v22, v83, 12, v91
v_or_b32 v16, s{sTag8}, v16
v_or_b32 v18, s{sTag8}, v18
v_or_b32 v20, s{sTag8}, v20
v_or_b32 v22, s{sTag8}, v22
v_mov_b32 v17, s{sTag}
v_mov_b32 v19, s{sTag}
v_mov_b32 v21, s{sTag}
v_mov_b32 v23, s{sTag}
s_branch L_p_done
L_noscan:
""")
if DEBUG and int(opts.get("arr", 0)):
    I("s_waitcnt vmcnt(0)")
    I("s_memrealtime s[100:101]")
    I("s_waitcnt lgkmcnt(0)")
    I(f"v_writelane_b32 v{vST}, s100, 20")
I(f"""
s_cmp_eq_u32 s{sW}, 11
s_cbranch_scc1 L_w2ld
s_cmp_lg_u32 s{sW}, 10
s_cbranch_scc1 L_p_done
""")
for i in range(4):
    I(f"v_lshlrev_b32 v{80+2*i}, 16, v{12+i}")
    I(f"v_and_b32 v{81+2*i}, 0xffff0000, v{12+i}")
for i in range(4):
    I(f"v_pk_mul_f32 {P(80+2*i)}, {P(80+2*i)}, {sr(sSC,2)}")
for i in range(4):
    I(f"v_cvt_pk_bf16_f32 v{12+i}, v{80+2*i}, v{81+2*i}")
I(f"""
v_lshrrev_b32 v88, 4, v{vLane}
v_mul_u32_u24 v88, {QROW}, v88
v_and_b32 v89, 15, v{vLane}
v_lshl_add_u32 v88, v89, 4, v88
v_add_u32 v88, {QB + 98*QROW}, v88
ds_write2_b64 v88, v[12:13], v[14:15] offset0:0 offset1:1
v_mov_b32 v90, 0
v_mov_b32 v91, 0
""")
for g_ in range(4):
    setexec(lanemask(range(16*g_, 16*g_+8)))
    I(f"v_mov_b32 v{90 + (g_ >> 1)}, {0x3f800000 if g_ & 1 else 0x3f80}")
I(f"""
s_mov_b64 exec, -1
v_lshlrev_b32 v88, 3, v{vLane}
ds_write_b64 v88, v[90:91] offset:{LUT}
s_branch L_p_done
L_ptask:
v_xor_b32 v{vt+1}, 16, v79
v_xor_b32 v{vt+2}, 32, v79
v_xor_b32 v{vt+3}, 48, v79
""")
xa = [79, vt+1, vt+2, vt+3]
for ks in range(4):
    I(f"ds_read_b128 {vr(112+4*ks,4)}, v{xa[ks]}")
    for jl in range(2):
        for hf in range(2):
            I(f"ds_read_b64_tr_b16 {P(80+16*jl+4*ks+2*hf)}, v{166+jl} offset:{(8*ks+4*hf)*256}")
I(f"""
v_cmp_gt_u32 vcc, {BN}, v78
s_mov_b64 {sr(sE0,2)}, vcc
v_lshrrev_b32 v{vt+1}, 5, v{vLane}
s_and_b32 s{t1}, s{sW}, 1
s_lshl_b32 s{t1}, s{t1}, 3
v_add_u32 v{vt+1}, s{t1}, v{vt+1}
v_and_b32 v{vt+2}, 15, v78
v_xor_b32 v{vt+1}, v{vt+1}, v{vt+2}
v_lshlrev_b32 v{vt+1}, 4, v{vt+1}
v_lshl_add_u32 v{vt+1}, v78, 8, v{vt+1}
v_add_u32 v{vt+1}, {PST}, v{vt+1}
v_xor_b32 v{vt+2}, 32, v{vt+1}
v_xor_b32 v{vt+3}, 64, v{vt+1}
v_xor_b32 v{vt+4}, 0x60, v{vt+1}
""")
for ks in range(4):
    I(f"s_waitcnt lgkmcnt({15 - 5*ks})")
    I(mf16(128, 80+4*ks, 112+4*ks, "0" if ks == 0 else vr(128,16)))
    I(mf16(144, 96+4*ks, 112+4*ks, "0" if ks == 0 else vr(144,16)))
I("s_mov_b32 s%d, 0x07060302" % t0)
I("s_nop 10")
for i in range(16):
    I(f"v_pk_mul_f32 {P(128+2*i)}, {P(128+2*i)}, {sr(sSC,2)}")
I(f"s_mov_b64 exec, {sr(sE0,2)}")
for rg in range(4):
    for i in range(4*rg, 4*rg+4):
        I(f"v_add_u32 v{128+i}, 0x4000, v{128+i}")
    for i in range(4*rg, 4*rg+4):
        I(f"v_perm_b32 v{128+i}, v{144+i}, v{128+i}, s{t0}")
    I(f"ds_write_b128 v{vt+1+rg}, {vr(128+4*rg,4)}")
I(f"""
s_mov_b64 exec, -1
L_p_done:
v_lshrrev_b32 v80, 4, v0
v_xor_b32 v81, v80, v0
v_and_b32 v81, 15, v81
v_lshlrev_b32 v81, 4, v81
v_lshl_add_u32 v81, v80, 8, v81
v_add_u32 v81, {PST}, v81
s_mul_i32 s{t0}, s{sB}, {BN*256}
s_add_u32 s{t0}, s{t0}, {PT}
s_add_u32 s{sA}, s{pWS}, s{t0}
s_addc_u32 s{sA+1}, s{pWS+1}, 0
s_and_b32 s{sA+1}, s{sA+1}, 0xffff
s_mov_b32 s{sA+2}, {BN*256}
s_mov_b32 s{sA+3}, 0x00020000
s_mul_i32 s{t0}, s2, {RSTRIDE}
s_add_u32 s{t0}, s{t0}, {REC}
s_add_u32 s{sBq}, s{pWS}, s{t0}
s_addc_u32 s{sBq+1}, s{pWS+1}, 0
s_and_b32 s{sBq+1}, s{sBq+1}, 0xffff
s_mov_b32 s{sBq+2}, {(CH*12+15)//16*16}
s_mov_b32 s{sBq+3}, 0x00020000
s_mov_b32 s{t1}, {NTH*16}
s_mov_b32 s{t2}, {2*NTH*16}
s_mov_b32 s{t3}, {3*NTH*16}
s_waitcnt lgkmcnt(0)
s_barrier
""")
stamp()
I(f"""
ds_read_b128 v[84:87], v81
ds_read_b128 v[88:91], v81 offset:{48*256}
ds_read_b128 v[92:95], v81 offset:{96*256}
""")
for i in range(5):
    I(f"ds_read_b32 v{68+i}, v{68+i} offset:{CNT1}")
I(f"""
s_waitcnt lgkmcnt(7)
buffer_store_dwordx4 v[84:87], v{vt}, {sr(sA,4)}, 0 offen sc1
s_waitcnt lgkmcnt(6)
buffer_store_dwordx4 v[88:91], v{vt}, {sr(sA,4)}, s{t1} offen sc1
s_waitcnt lgkmcnt(5)
buffer_store_dwordx4 v[92:95], v{vt}, {sr(sA,4)}, s{t2} offen sc1
s_waitcnt vmcnt(7)
""")
I(f"s_movk_i32 s{t4}, 0x804")
I(f"s_mov_b32 s{t5}, {KMASK}")
for i in range(4):
    I(f"v_mul_u32_u24 v{52+i}, s{t4}, v{52+i}") if False else None
    I(f"v_lshlrev_b32 v{80+i}, 11, v{52+i}")
    I(f"v_lshlrev_b32 v{48+i}, 12, v{48+i}")
    I(f"v_lshlrev_b32_sdwa v{80+i}, 2, v{52+i} dst_sel:WORD_0 dst_unused:UNUSED_PRESERVE src0_sel:DWORD src1_sel:BYTE_0")
for i in range(4):
    I(f"v_and_or_b32 v{48+i}, v{80+i}, s{t5}, v{48+i}")
I("s_waitcnt lgkmcnt(0)")
for i in range(5):
    I(f"v_mad_u32_u24 v{68+i}, v{73+i}, 12, v{68+i}")
for i in range(4):
    I(f"ds_write_b32 v{68+i}, v{48+i} offset:8")
I(f"s_cmp_lg_u32 s{sW}, {EXTRAW}")
I("s_cbranch_scc1 L_noex2")
setexec(XM)
I(f"""
v_lshlrev_b32 v80, 11, v65
v_lshlrev_b32 v64, 12, v64
v_lshlrev_b32_sdwa v80, 2, v65 dst_sel:WORD_0 dst_unused:UNUSED_PRESERVE src0_sel:DWORD src1_sel:BYTE_0
s_nop 0
v_and_or_b32 v64, v80, s{t5}, v64
ds_write2_b32 v72, v66, v67 offset0:0 offset1:1
ds_write_b32 v72, v64 offset:8
s_mov_b64 exec, -1
L_noex2:
s_waitcnt vmcnt(6)
ds_write2_b32 v68, v56, v57 offset0:0 offset1:1
ds_write2_b32 v69, v58, v59 offset0:0 offset1:1
s_waitcnt vmcnt(5)
""")
stamp()
I(f"""
ds_write2_b32 v70, v60, v61 offset0:0 offset1:1
ds_write2_b32 v71, v62, v63 offset0:0 offset1:1
s_waitcnt lgkmcnt(0)
s_barrier
""")
stamp()
for i in range(4):
    I(f"ds_read_b128 {vr(48+4*i,4)}, v{vt} offset:{RST + i*NTH*16}")
for i in range(3):
    I(f"s_waitcnt lgkmcnt({3-i})")
    I(f"buffer_store_dwordx4 {vr(48+4*i,4)}, v{vt}, {sr(sBq,4)}, {['0', f's{t1}', f's{t2}'][i]} offen sc1")
I(f"""
s_waitcnt lgkmcnt(0)
s_cmp_lg_u32 s{sW}, 0
s_cbranch_scc1 L_no4
buffer_store_dwordx4 v[60:63], v{vt}, {sr(sBq,4)}, s{t3} offen sc1
L_no4:
s_cmp_ge_u32 s{sW}, 8
s_cbranch_scc1 L_nop2
""")
for ks in range(4):
    for jl in range(2):
        for hf in range(2):
            I(f"ds_read_b64_tr_b16 {P(80+16*jl+4*ks+2*hf)}, v{166+jl} offset:{16384 + (8*ks+4*hf)*256}")
I("s_waitcnt vmcnt(6)")
I(mf8(128, 160, 164, "0"))
I(mf8(144, 162, 164, "0"))
I(f"""
v_lshrrev_b32 v{vt+1}, 5, v{vLane}
s_and_b32 s{t0}, s{sW}, 1
s_lshl_b32 s{t0}, s{t0}, 7
s_add_u32 s{t0}, s{t0}, {QB}
v_lshl_add_u32 v{vt+1}, v{vt+1}, 3, s{t0}
v_mul_u32_u24 v{vt+2}, {QROW}, v78
v_add_u32 v{vt+1}, v{vt+1}, v{vt+2}
""")
for ks in range(4):
    I(f"s_waitcnt lgkmcnt({12 - 4*ks})")
    I(mf16(128, 80+4*ks, 112+4*ks, vr(128,16)))
    I(mf16(144, 96+4*ks, 112+4*ks, vr(144,16)))
I("s_nop 11")
for i in range(16):
    I(f"v_pk_mul_f32 {P(128+2*i)}, {P(128+2*i)}, {sr(sSC,2)}")
for i in range(16):
    I(f"v_cvt_pk_bf16_f32 v{128+i}, v{128+2*i}, v{129+2*i}")
I(f"s_mov_b64 exec, {sr(sE0,2)}")
for jl in range(2):
    for rg in range(4):
        I(f"ds_write_b64 v{vt+1}, {P(128+8*jl+2*rg)} offset:{64*jl + 16*rg}")
I(f"""
s_mov_b64 exec, -1
s_branch L_p2_done
L_nop2:
s_cmp_lg_u32 s{sW}, 11
s_cbranch_scc1 L_p2_done
s_cmp_gt_u32 s2, 16
s_cbranch_scc1 L_p2_done
s_lshl_b32 s{t0}, s2, 10
s_add_u32 s{t0}, s{t0}, {W2I}
s_waitcnt vmcnt(6)
s_cmp_lt_u32 s2, 16
s_cbranch_scc1 L_w2st
v_lshlrev_b32 v{vW2S}, 16, v{vW2S}
v_mul_f32 v{vW2S}, s{sSC}, v{vW2S}
v_lshlrev_b32 v{vW2S+1}, 2, v{vLane}
buffer_store_dword v{vW2S}, v{vW2S+1}, {sr(sWS,4)}, s{t0} offen sc1
s_branch L_p2_done
L_w2st:
v_lshl_or_b32 v{vW2S}, v{vW2S+1}, 16, v{vW2S}
v_lshl_or_b32 v{vW2S+1}, v{vW2S+3}, 16, v{vW2S+2}
v_lshl_or_b32 v{vW2S+2}, v{vW2S+5}, 16, v{vW2S+4}
v_lshl_or_b32 v{vW2S+3}, v{vW2S+7}, 16, v{vW2S+6}
buffer_store_dwordx4 {vr(vW2S,4)}, v{vt+5}, {sr(sWS,4)}, s{t0} offen sc1
L_p2_done:
""")
I(f"""
v_and_b32 v72, 31, v{vLane}
v_lshlrev_b32 v72, 2, v72
v_add_u32 v{vSC}, {SB}, v72
v_cvt_f32_u32 v72, v72
v_mov_b32 v{vBK}, 0x78005c00
v_cvt_f16_f32 v{vBK+1}, v72
v_and_b32 v{vBK+1}, 0xffff, v{vBK+1}
s_mov_b32 exec_lo, 0
v_mov_b32 v{vBK}, 0
v_mov_b32 v{vBK+1}, 0
s_mov_b64 exec, -1
v_mov_b32 v{vKA+1}, 0x3c00
v_bfe_u32 v73, v{vLane}, 4, 1
v_lshlrev_b32 v73, 5, v73
v_and_b32 v74, 3, v{vLane}
v_lshl_add_u32 v73, v74, 3, v73
v_add_u32 v{vQC}, {QB}, v73
v_bfe_u32 v75, v{vLane}, 2, 2
v_add_u32 v76, 98, v75
v_mul_u32_u24 v76, {QROW}, v76
v_add_u32 v{vQ}, v76, v{vQC}
""")
I(f"""
v_bfe_u32 v72, v{vLane}, 3, 2
v_bfe_u32 v73, v{vLane}, 1, 1
v_lshl_add_u32 v72, v72, 1, v73
v_lshlrev_b32 v{vAC}, 3, v72
v_lshlrev_b32 v{vAC+1}, 2, v72
""")
def ptr_consts(base):
    I(f"""
    v_lshrrev_b32 v72, 5, v{vLane}
    v_lshl_add_u32 v{vPH}, v72, 3, {base}
    v_bfe_u32 v73, v{vLane}, 2, 1
    v_and_b32 v74, 1, v{vLane}
    v_lshl_add_u32 v73, v73, 1, v74
    v_lshl_add_u32 v73, v72, 2, v73
    v_lshl_add_u32 v{vPG}, v73, 2, {base}
    v_bfe_u32 v75, v{vLane}, 2, 2
    v_lshl_add_u32 v74, v75, 2, {base}
    v_add_u32 v{vPR}, 50, v74
    """)
ptr_consts(f"s{sReg}")
I("""
s_waitcnt vmcnt(0) lgkmcnt(0)
s_barrier
""")
stamp()
I(f"""
s_cmp_lg_u32 s{sW}, {SCANW}
s_cbranch_scc1 L_nopub
v_lshlrev_b32 v72, 5, v{vLane}
s_lshl_b32 s{t0}, s2, 11
s_add_u32 s{t0}, s{t0}, {GRAN}
buffer_store_dwordx4 v[16:19], v72, {sr(sWS,4)}, s{t0} offen sc0 sc1
buffer_store_dwordx4 v[20:23], v72, {sr(sWS,4)}, s{t0} offen offset:16 sc0 sc1
L_nopub:
""")
PF1 = int(opts.get("pf1", 12)); PF2 = int(opts.get("pf2", 0))
def prefetch(n, first, dst):
    I(f"""
    s_lshr_b32 s{t0}, s2, 3
    s_mul_i32 s{t0}, s{t0}, {NW}
    s_add_u32 s{t0}, s{t0}, s{sW}
    s_mul_i32 s{t0}, s{t0}, {n*128}
    s_add_u32 s{t0}, s{t0}, {MAGIC + first*384*128}
    v_lshlrev_b32 v{dst}, 7, v{vLane}
    """)
    if n < 64: setexec((1 << n) - 1)
    I(f"buffer_load_dword v{dst}, v{dst}, {sr(sP,4)}, s{t0} offen sc1")
    I("s_mov_b64 exec, -1")
if PF1: prefetch(PF1, 0, 42)
area_init(64)
SZ = int(opts.get('sz', 1))
if SZ == 1: s_zero(76)
vDs = 124
vRA = 130
vCn = 133
vPo = 136
vL7 = 138; vRb = 139; vAr = 140
sPo = [sG, sT, sRem]; sRo = sGam
def desc_consts():
    I(f"""
    v_lshrrev_b32 v141, 3, v{vLane}
    v_lshlrev_b32 v{vPo}, 11, v141
    v_and_b32 v{vL7}, 7, v{vLane}
    v_mul_u32_u24 v{vRb}, 12, v{vL7}
    s_mov_b32 s{t0}, {RSTRIDE}
    v_mad_u32_u24 v{vRb}, v141, s{t0}, v{vRb}
    s_lshl_b32 s{sPo[0]}, s{sW}, 14
    s_lshl_b32 s{t1}, s{sB}, 3
    s_add_u32 s{sPo[0]}, s{sPo[0]}, s{t1}
    s_add_u32 s{sPo[0]}, s{sPo[0]}, {GRAN}
    s_add_u32 s{sPo[1]}, s{sPo[0]}, {12*16384}
    s_add_u32 s{sPo[2]}, s{sPo[0]}, {24*16384}
    s_mul_i32 s{sRo}, s{sW}, {8*RSTRIDE}
    s_add_u32 s{sRo}, s{sRo}, {REC}
    """)
def poll_load(jj): return f"buffer_load_dwordx2 {P(vDs+2*jj)}, v{vPo}, {sr(sWS,4)}, s{sPo[jj]} offen sc1"
def decode(jj):
    I(f"v_and_b32 v{vRA+jj}, 0xfff, v{vDs+2*jj}")
    I(f"v_mad_u32_u24 v{vRA+jj}, v{vRA+jj}, 12, v{vRb}")
    if jj: I(f"v_add_u32 v{vRA+jj}, {jj*96*RSTRIDE}, v{vRA+jj}")
    I(f"v_bfe_u32 v{vCn+jj}, v{vDs+2*jj}, 12, 12")
    I(f"v_sub_u32 v{vCn+jj}, v{vCn+jj}, v{vL7}")
lab = [0]
NR = 5
order = [(jj, rd) for jj in range(3) for rd in range(NR)]
slotreg = {s: 48 + 4*n_ for n_, s in enumerate(order)}
slotmask = {s: sM + 2*n_ for n_, s in enumerate(order)}
vTA = {s: 108 + n_ for n_, s in enumerate(order)}
def slots(body):
    for jj in range(3):
        lab[0] += 1; grp = lab[0]
        for rd in range(NR):
            s = (jj, rd)
            I(f"s_mov_b64 exec, {sr(slotmask[s],2)}")
            if rd >= 2 or (jj == 2 and rd == 0): I(f"s_cbranch_execz L_sg{grp}")
            body(s)
        L(f"L_sg{grp}")
    I("s_mov_b64 exec, -1")
def tagcheck(jj, dst):
    I(f"""
    v_xor_b32 v141, s{sTag8}, v{vDs+2*jj}
    v_xor_b32 v142, s{sTag}, v{vDs+2*jj+1}
    v_lshrrev_b32 v141, 24, v141
    v_or_b32 v141, v141, v142
    v_cmp_ne_u32 {dst}, 0, v141
    """)
desc_consts()
I(f"""
s_mov_b64 {sr(sPM,2)}, -1
s_mov_b64 {sr(sPM+2,2)}, -1
s_cmp_lt_u32 s{sW}, 8
s_cselect_b64 {sr(sPM+4,2)}, -1, 0
v_mov_b32 v{vDs+4}, s{sTag8}
v_mov_b32 v{vDs+5}, s{sTag}
s_mov_b32 s{sK}, 0
v_mov_b32 v{vAr}, {AREA}
s_movk_i32 s{t4}, {NSZ//4}
s_mov_b32 s{t5}, {KMASK}
v_mov_b32 v137, {KCON}
v_mov_b32 v143, 0
s_waitcnt lgkmcnt(0)
s_barrier
""")
stamp()
I(f"""
s_branch L_poll1
L_poll:
""")
if SLEEP: I(f"s_sleep {SLEEP}")
L("L_poll1")
for jj in range(3):
    I(f"s_mov_b64 exec, {sr(sPM+2*jj,2)}")
    I(f"s_cbranch_execz L_pk{jj}")
    I(poll_load(jj))
    L(f"L_pk{jj}")
I(f"""
s_mov_b64 exec, -1
s_add_u32 s{sK}, s{sK}, 1
s_cmp_gt_u32 s{sK}, 0x40000
s_cbranch_scc1 L_exit
s_waitcnt vmcnt(0)
""")
for jj in range(3): tagcheck(jj, sr(sPM+2*jj,2))
I(f"""
s_or_b64 {sr(sE0,2)}, {sr(sPM,2)}, {sr(sPM+2,2)}
s_or_b64 {sr(sE0,2)}, {sr(sE0,2)}, {sr(sPM+4,2)}
s_cbranch_scc1 L_poll
""")
if DEBUG:
    I(f"v_writelane_b32 v{vST}, s{sK}, 22")
stamp()
for jj in range(3): decode(jj)
for s_ in order:
    I(f"v_cmp_lt_i32 {sr(slotmask[s_],2)}, {8*s_[1]}, v{vCn+s_[0]}")
slots(lambda s_: I(f"buffer_load_dwordx3 {vr(slotreg[s_],3)}, v{vRA+s_[0]}, {sr(sWS,4)}, s{sRo} offen offset:{96*s_[1]} sc1"))
I(f"""
v_max3_i32 v141, v{vCn}, v{vCn+1}, v{vCn+2}
v_cmp_lt_i32 vcc, {8*NR}, v141
s_cbranch_vccz L_nobig
v_mov_b32 v141, 0
ds_write_b32 v141, v{vt+6} offset:{FLAG}
L_nobig:
""")
if SZ == 0: s_zero(144)
vNB = 32
I(f"""
v_mul_u32_u24 v{vNB}, {2*NSZ}, v{vLane}
v_add_u32 v{vNB}, {AREA}, v{vNB}
v_add_u32 v{vNB+1}, {NSZ}, v{vNB}
s_mov_b32 s{t0}, {2*(SROW + (QROW << 16))}
v_mul_lo_u32 v{vNB+2}, v{vLane}, s{t0}
v_add_u32 v{vNB+3}, {SROW + (QROW << 16)}, v{vNB+2}
""")
I("s_waitcnt vmcnt(0)")
stamp()
if PF2: prefetch(PF2, PF1, 33)
def rank_body(s):
    r = slotreg[s]
    I(f"v_bfe_u32 v{vTA[s]}, v{r+2}, 10, 9")
    I(f"v_and_or_b32 v{r+2}, v{r+2}, s{t5}, v137")
    I(f"ds_add_rtn_u32 v{r+3}, v{vTA[s]}, v{vt+6} offset:{CNT}")
    I(f"v_mad_u32_u24 v{vTA[s]}, v{vTA[s]}, s{t4}, v{vAr}")
slots(rank_body)
I("s_waitcnt lgkmcnt(0)")
def scat_body(s):
    r = slotreg[s]
    lab[0] += 1; fx = lab[0]
    fixups.append((fx, s))
    I(f"v_cmp_le_u32 vcc, {CAP}, v{r+3}")
    I(f"v_lshl_add_u32 v141, v{r+3}, 2, v{vTA[s]}")
    I(f"v_lshl_add_u32 v{vTA[s]}, v{r+3}, 3, v{vTA[s]}")
    I(f"s_cbranch_vccnz L_fx{fx}")
    L(f"L_fr{fx}")
    I(f"ds_write_b32 v141, v{r+2}")
    I(f"ds_write_b64 v{vTA[s]}, {P(r)} offset:{EOFF}")
fixups = []
PF5 = int(opts.get("pf5", 0))
if PF5: prefetch(PF5, PF1, 41)
slots(scat_body)
PF4 = int(opts.get("pf4", 12))
if PF4: prefetch(PF4, PF1, 41)
I(f"""
s_waitcnt lgkmcnt(0)
s_barrier
""")
stamp()
PF3 = int(opts.get('pf3', 0))
if PF3: prefetch(PF3, 0, 43)
I(f"""
s_or_b32 s{t0}, s2, s{sW}
s_cmp_lg_u32 s{t0}, 0
s_cbranch_scc1 L_nogen
v_mov_b32 v137, 0
v_mov_b32 v138, s{sTag}
s_mov_b64 exec, 1
buffer_store_dword v138, v137, {sr(sWS,4)}, 0 offen sc0 sc1
s_mov_b64 exec, -1
L_nogen:
""")
def chain(T, vD=vD, vN=vN, n=8):
    l = [f"v_pk_add_f32 {P(vD)}, {P(vE)}, {sr(sONE,2)}",
         f"v_pk_fma_f32 {P(vN)}, {P(T)}, {P(vE+2)}, {P(T)}",
         f"v_pk_fma_f32 {P(vN)}, {P(T+2)}, {P(vD)}, {P(vN)}",
         f"v_pk_fma_f32 {P(vD)}, {P(vD)}, {P(vE+2)}, {P(vD)}"]
    for i in range(2, n):
        l += [f"v_pk_fma_f32 {P(vN)}, {P(vN)}, {P(vE+2*i)}, {P(vN)}",
              f"v_pk_fma_f32 {P(vN)}, {P(T+2*i)}, {P(vD)}, {P(vN)}",
              f"v_pk_fma_f32 {P(vD)}, {P(vD)}, {P(vE+2*i)}, {P(vD)}"]
    return l
assert EOFF - 7*32 == 0
def gload(u): return [f"buffer_load_dword v{vLb[u]+i}, v{vIX+i}, {sr(sP,4)}, 0 offen offset:{128*u} sc1" for i in range(16)]
def shifts(u): return [f"v_lshlrev_b64 {P(vTL+2*i)}, 16, {P(vLb[u]+2*i)}" for i in range(8)]
SAUPD = [f"v_add_u32_sdwa v{vSA}, v{vGS}, v{vSC} {SDWA0}", f"v_add_u32_sdwa v{vSA+1}, v{vGS+1}, v{vSC} {SDWA0}"]
QUPD = f"v_add_u32_dpp v{vQ}, v{vGQ}, v{vQC} quad_perm:[0,1,2,3] row_mask:0xc bank_mask:0xf"
AUPD = f"v_lshl_add_u64 {P(vAG)}, {P(vAG)}, 0, {P(vAC)}"
IXM = mf8(vIX, vKA, vBK, "0").replace("bf16", "f16")

vDj = [144, 148, 152, 156]; vNj = [146, 150, 154, 158]; vSj = [160, 162, 164, 166]
def pmul(d, a, b): return f"v_pk_mul_f32 {P(d)}, {P(a)}, {P(b)}"
def inv(m): return [f"v_rcp_f32 v{vE}, v{m}", f"v_rcp_f32 v{vE+1}, v{m+1}", f"v_max3_f32 v{vMX}, v{m}, v{m+1}, v{vMX}"]
NSH = 4 * NW
vSU = 120
I(f"""
v_lshlrev_b32 v48, 3, v{vLane}
v_mov_b32 v63, 0
s_mov_b32 s{t2}, 0x80000004
ds_read_b64 v[50:51], v48 offset:{CNT}
ds_read_b32 v49, v63 offset:{FLAG}
""")
I(f"""
v_mov_b32 v{vMX}, 0
s_lshl_b32 s{t3}, s{sW}, 2
s_waitcnt lgkmcnt(0)
v_add_u32 v80, -1, v50
v_add_u32 v81, -1, v51
v_and_b32 v80, s{t2}, v80
v_and_b32 v81, s{t2}, v81
v_cmp_gt_u32 {sr(sE0,2)}, {CAP}, v50
v_cmp_gt_u32 {sr(sE1,2)}, {CAP}, v51
v_cmp_eq_u32 vcc, 0, v80
s_and_b64 {sr(sE0,2)}, {sr(sE0,2)}, vcc
v_cmp_eq_u32 vcc, 0, v81
s_and_b64 {sr(sE1,2)}, {sr(sE1,2)}, vcc
s_bcnt1_i32_b64 s{t0}, {sr(sE0,2)}
v_mbcnt_lo_u32_b32 v82, s{sE0}, 0
v_mov_b32 v83, s{t0}
v_mbcnt_hi_u32_b32 v82, s{sE0+1}, v82
v_mbcnt_lo_u32_b32 v83, s{sE1}, v83
v_mbcnt_hi_u32_b32 v83, s{sE1+1}, v83
""")
for e_ in range(2):
    m_ = (sE0, sE1)[e_]
    I(f"""
    v_subrev_u32 v84, s{t3}, v{82+e_}
    v_cmp_gt_u32 vcc, 4, v84
    s_and_b64 exec, {sr(m_,2)}, vcc
    s_cbranch_execz L_shs{e_}
    v_and_b32 v85, 0x78, v{50+e_}
    v_and_b32 v86, 7, v{50+e_}
    v_lshl_add_u32 v87, v85, 2, v{vNB+e_}
    v_lshl_add_u32 v88, v85, 3, v{vNB+e_}
    v_lshlrev_b32 v89, 4, v84
    v_add_u32 v88, {EOFF}, v88
    v_sub_u32 v89, v89, v86
    v_lshl_add_u32 v84, v84, 2, s{sReg}
    v_lshlrev_b32 v89, 3, v89
    ds_write2_b32 v84, v87, v88 offset0:0 offset1:4
    v_add_u32 v89, {LUT + 64}, v89
    ds_write2_b32 v84, v89, v{vNB+2+e_} offset0:8 offset1:12
    L_shs{e_}:
    s_mov_b64 exec, -1
    """)
I(f"""
ds_read2_b32 {P(vAG)}, v{vPG} offset0:4 offset1:0
ds_read_u16 v{vGQ}, v{vPR}
ds_read_b64 {P(vGS)}, v{vPH} offset:48
v_cmp_gt_u32 vcc, {NSH}, v82
s_and_b64 {sr(sE0,2)}, {sr(sE0,2)}, vcc
v_cmp_gt_u32 vcc, {NSH}, v83
s_and_b64 {sr(sE1,2)}, {sr(sE1,2)}, vcc
v_add_u32 v52, 7, v50
v_add_u32 v53, 7, v51
v_lshrrev_b32 v52, 3, v52
v_lshrrev_b32 v53, 3, v53
s_waitcnt lgkmcnt(2)
{AUPD}
ds_read_b32 v{vKA}, v{vAG+1}
ds_read_b64 {P(vA5)}, v{vAG}
v_subb_co_u32 v52, vcc, v52, 0, {sr(sE0,2)}
v_subb_co_u32 v53, vcc, v53, 0, {sr(sE1,2)}
s_waitcnt lgkmcnt(1)
{IXM}
{QUPD}
{SAUPD[0]}
{SAUPD[1]}
v_add_u32 v54, v52, v53
v_max_u32 v55, v52, v53
v_mov_b32 v56, v54
v_readfirstlane_b32 s{sBad}, v49
v_cmp_lt_u32 vcc, {CAP}, v50
v_cmp_lt_u32 {sr(sE0,2)}, {CAP}, v51
""")
I(f"""
ds_read_b64_tr_b16 {P(vB5[0])}, v{vQ}
ds_read_b64_tr_b16 {P(vB5[1])}, v{vQ} offset:64
ds_read_b64_tr_b16 {P(vD)}, v{vQ} offset:128
ds_read_b64_tr_b16 {P(vN)}, v{vQ} offset:192
s_nop 1
""")
for i_ in range(8): I(f"buffer_load_dword v{vTH+i_}, v{vIX+i_}, {sr(sP,4)}, 0 offen sc1")
for i_ in range(8): I(f"buffer_load_dword v{vSU+i_}, v{vIX+i_}, {sr(sP,4)}, 0 offen offset:128 sc1")
dpp_scan(56, 55)
I(f"""
s_bcnt1_i32_b64 s{t1}, vcc
s_bcnt1_i32_b64 s{t2}, {sr(sE0,2)}
s_add_u32 s{t1}, s{t1}, s{t2}
s_cmp_gt_u32 s{t1}, 1
s_cselect_b32 s{sBad}, 1, s{sBad}
""")
I(f"""
s_nop 0
v_readlane_b32 s{sG}, v56, 63
v_readlane_b32 s{sGmax}, v55, 63
v_sub_u32 v56, v56, v54
v_add_u32 v57, v56, v52
s_add_u32 s{t0}, s{sG}, 3
s_lshr_b32 s{t0}, s{t0}, 2
s_cmp_gt_u32 s{t0}, {NW*(TMAX-1)}
s_cselect_b32 s{sBad}, 1, s{sBad}
s_cmp_gt_u32 s{sGmax}, {TMAX-1}
s_cselect_b32 s{sBad}, 1, s{sBad}
""")
if FORCE_SLOW == 1: I(f"s_mov_b32 s{sBad}, 1")
I(f"""
s_cmp_lg_u32 s{sBad}, 0
s_cbranch_scc1 L_slow
s_mul_i32 s{sT}, s{t0}, 171
s_lshr_b32 s{sT}, s{sT}, 11
s_mul_i32 s{t1}, s{sT}, {NW}
s_sub_u32 s{sRem}, s{t0}, s{t1}
s_cmp_gt_u32 s{sGmax}, s{sT}
s_cselect_b32 s{sT}, s{sGmax}, s{sT}
s_cselect_b32 s{sRem}, 0, s{sRem}
s_max_u32 s{sT}, s{sT}, 1
s_add_u32 s{t1}, s{sT}, 1
s_lshl_b32 s{t2}, s{sRem}, 2
s_mul_i32 s{sGam}, s{t2}, s{t1}
v_cvt_f32_u32 v58, s{sT}
v_cvt_f32_u32 v59, s{t1}
v_rcp_f32 v58, v58
v_rcp_f32 v59, v59
v_mov_b32 v60, s{sT}
v_mov_b32 v61, s{t1}
v_mov_b32 v62, s{t2}
s_cmp_lt_u32 s{sW}, s{sRem}
s_cselect_b32 s{sTw}, s{t1}, s{sT}
s_cselect_b32 s{t0}, 0, s{t2}
s_mul_i32 s{t1}, s{sTw}, s{sW}
s_lshl_b32 s{t1}, s{t1}, 2
s_add_u32 s{t1}, s{t1}, s{t0}
s_sub_i32 s{t1}, s{sG}, s{t1}
s_max_i32 s{t1}, s{t1}, 0
s_min_u32 s{sTw}, s{sTw}, s{t1}
v_lshlrev_b32 v65, 1, v{vLane}
s_mov_b32 s{sK}, s{sW}
s_cmp_lt_u32 s{sW}, 6
s_cbranch_scc1 L_build
s_sub_u32 s{sK}, s{sW}, 6
v_mov_b32 v50, v51
v_mov_b32 v52, v53
v_mov_b32 v56, v57
v_add_u32 v65, 1, v65
L_build:
v_cmp_lt_u32 vcc, s{sK}, v52
s_and_b64 exec, exec, vcc
s_cbranch_execz L_bskip
v_add_u32 v66, s{sK}, v56
v_cmp_gt_u32 vcc, s{sGam}, v66
v_mul_u32_u24 v77, {QROW}, v65
s_lshl_b32 s{t0}, s{sK}, 3
v_cndmask_b32 v68, v62, v63, vcc
v_cndmask_b32 v69, v60, v61, vcc
v_cndmask_b32 v70, v58, v59, vcc
v_sub_u32 v66, v66, v68
v_cvt_f32_u32 v71, v66
v_add_f32 v71, 0.5, v71
v_mul_f32 v71, v71, v70
v_cvt_u32_f32 v71, v71
v_subrev_u32 v67, s{t0}, v50
v_mul_u32_u24 v72, v71, v69
v_sub_u32 v72, v66, v72
v_and_b32 v73, 3, v71
v_lshrrev_b32 v74, 2, v71
v_mad_u32_u24 v75, v73, v69, v72
v_cmp_gt_u32 vcc, s{sK}, v75
v_mad_u32_u24 v76, v74, {TMAX}, v72
v_lshlrev_b32 v76, 6, v76
v_lshl_add_u32 v76, v73, 2, v76
v_add_u32 v76, {GT + GSZ}, v76
v_add_u32 v74, {ZROW}, v74
v_cndmask_b32 v74, v65, v74, vcc
v_mul_u32_u24 v74, {SROW}, v74
v_lshl_or_b32 v77, v77, 16, v74
v_min_u32 v67, 8, v67
v_lshlrev_b32 v73, 4, v73
v_sub_u32 v73, v73, v67
s_movk_i32 s{t1}, {LUT + 64}
v_lshl_add_u32 v73, v73, 3, s{t1}
ds_write2_b32 v76, v73, v77 offset0:8 offset1:12
s_cmp_ge_u32 s{sK}, 7
s_cselect_b32 s{t1}, 0, {NSZ}
s_cselect_b32 s{t2}, {OVF - 7*32 - AREA}, 0
s_cselect_b32 s{t3}, 0, {EOFF}
s_add_u32 s{t2}, s{t2}, {AREA}
s_lshl_b32 s{t0}, s{sK}, 5
s_add_u32 s{t2}, s{t2}, s{t0}
s_add_u32 s{t3}, s{t3}, s{t0}
v_mul_u32_u24 v78, s{t1}, v65
v_add_u32 v78, s{t2}, v78
v_add_u32 v79, s{t3}, v78
ds_write2_b32 v76, v78, v79 offset0:0 offset1:4
v_lshlrev_b32 v79, 2, v65
s_and_b64 exec, exec, vcc
ds_write_b32 v79, v74 offset:{CARRY}
L_bskip:
s_mov_b64 exec, -1
s_add_u32 s{sK}, s{sK}, 6
s_cmp_lt_u32 s{sK}, s{sGmax}
s_cbranch_scc1 L_build
s_waitcnt lgkmcnt(0)
s_barrier
""")
stamp()

HOLD = int(opts.get("hold", 1))
I(f"""
v_lshl_add_u64 {P(vPH)}, {P(vPH)}, 0, {sr(sADV,2)}
v_add_u32 v{vPR}, {GSZ}, v{vPR}
s_and_b32 s{t0}, s{sW}, 3
s_lshl_b32 s{t0}, s{t0}, 2
ds_read_b32 v{vSO}, v{vPG}
ds_read2_b32 {P(vAG)}, v{vPG} offset0:4 offset1:{GSZ//4}
ds_read_u16 v{vGQ}, v{vPR}
ds_read_b64 {P(vGS)}, v{vPH} offset:48
v_mov_b32 v{vt+7}, s{t0}
s_waitcnt lgkmcnt(3)
v_add_u32 v{vSO}, v{vSO}, v{vAC+1}
ds_read_b32 v{vKA}, v{vSO}
s_waitcnt lgkmcnt(0)
{IXM}
{AUPD}
{QUPD}
ds_read_b32 v{vKA}, v{vAG+1}
""")
def short_half(u):
    src = vTH if u == 0 else vSU
    b0, b1_ = (vB5[0], vB5[1]) if u == 0 else (vD, vN)
    for i_ in range(4): I(f"v_lshlrev_b64 {P(vTL+2*i_)}, 16, {P(src+2*i_)}")
    I("s_nop 1")
    I(mf8(vTL, vA5, b0, vr(vTL,16)))
    I(mf8(vTH, vA5, b1_, vr(src,16)))
    I("s_nop 10")
    a, b_ = 2*u, 2*u + 1
    for j_, T in ((a, vTL), (b_, vTH)):
        for i_ in range(8): I(f"v_exp_f32 v{vE+i_}, v{T+i_}")
        for l in chain(T, vDj[j_], vNj[j_], 4): I(l)
    I(pmul(vSO, vDj[a], vDj[b_]))
    i3 = inv(vSO)
    for l in i3[0:2] + [pmul(vNj[a], vNj[a], vDj[b_]), pmul(vNj[b_], vNj[b_], vDj[a]), i3[2], pmul(vSj[a], vNj[a], vE), pmul(vSj[b_], vNj[b_], vE)]: I(l)
    I(f"ds_write2_b32 v{vSA}, v{vSj[a]}, v{vSj[b_]} offset0:{32*a} offset1:{32*b_}")
    I(f"ds_write2_b32 v{vSA+1}, v{vSj[a]+1}, v{vSj[b_]+1} offset0:{32*a} offset1:{32*b_}")
FP = [[int(c) for c in x] for x in opts.get("fp", "01,02,33").split(",")]
def fetch_point(pt):
    for u in range(2):
        m = sum(0xf << (4*c) for c in range(3) if FP[c][u] == pt)
        if m == 0: continue
        if m != 0xfff:
            I(f"s_movk_i32 s{t0}, {m}")
            I(f"s_bitcmp1_b32 s{t0}, s{sW}")
            I(f"s_cbranch_scc0 L_fp{pt}{u}")
        for l in gload(u): I(l)
        L(f"L_fp{pt}{u}")
if int(opts.get("cw", 1)):
    I("s_nop 9")
    fetch_point(0)
    for n0 in (0, 1, 2):
        m = sum(0xf << (4*c) for c in range(3) if FP[c].count(0) == n0)
        if m == 0: continue
        if m != 0xfff:
            I(f"s_movk_i32 s{t0}, {m}")
            I(f"s_bitcmp1_b32 s{t0}, s{sW}")
            I(f"s_cbranch_scc0 L_w9{n0}")
        I(f"s_waitcnt vmcnt({16*n0})")
        L(f"L_w9{n0}")
else:
    I("s_waitcnt vmcnt(0)")
    I("s_nop 9")
    fetch_point(0)
stamp()
short_half(0)
fetch_point(1)
short_half(1)
fetch_point(2)
I(f"""
ds_read_b64 {P(vA5)}, v{vAG}
ds_read_b64_tr_b16 {P(vB5[0])}, v{vQ}
ds_read_b64_tr_b16 {P(vB5[1])}, v{vQ} offset:64
s_waitcnt lgkmcnt(0)
s_barrier
s_cmp_eq_u32 s{sTw}, 0
s_cbranch_scc1 L_loop_done
""")
stamp()
fetch_point(3)
I(IXM)
I("s_waitcnt vmcnt(16)")
for l in shifts(0): I(l)
I("s_nop 1")
I(mf8(vTL, vA5, vB5[0], vr(vTL,16)))
I(f"s_mov_b32 s{sK}, s{sTw}")
if PRIO:
    I("s_setprio 3")
    I(f"s_mov_b32 s{t5}, {sum(1 << (x // 2) for x in PTH if x % 2 == 0)}")
    I(f"s_mov_b32 s{t4}, {sum(1 << ((x + 1) // 2) for x in PTH if x % 2 == 1)}")
for x in STG:
    if x == 0: continue
    m = t4 if x & 1 else t5
    I(f"""
    s_sub_u32 s{t0}, s{sTw}, {x // 2}
    s_lshl_b32 s{t0}, 1, s{t0}
    s_cmp_lt_u32 s{sW}, 4
    s_cselect_b32 s{t0}, s{t0}, 0
    s_or_b32 s{m}, s{m}, s{t0}
    """)
I("s_nop 15")

GS1, GS2, EXP, CHP = [int(x) for x in opts.get('gs', '6,11,8,4').split(',')]
body = []
def lds(text, tag=None): body.append(("lds", text, tag))
def need(tag): body.append(("need", tag))
def em(x):
    if isinstance(x, list): body.extend(x)
    else: body.append(x)
BATCH = int(opts.get("batch", 2)); LATE = int(opts.get("late", 0))
def rds(j):
    lds(f"ds_read_b32 v{vSj[j]}, v{vSA} offset:{128*j}")
    lds(f"ds_read_b32 v{vSj[j]+1}, v{vSA+1} offset:{128*j}", f"so{j}")
def pmul(d, a, b): return f"v_pk_mul_f32 {P(d)}, {P(a)}, {P(b)}"
def pfin(j, r): return f"v_pk_fma_f32 {P(vSj[j])}, {P(vNj[j])}, {P(r)}, {P(vSj[j])}"
def inv(m): return [f"v_rcp_f32 v{vE}, v{m}", f"v_rcp_f32 v{vE+1}, v{m+1}", f"v_max3_f32 v{vMX}, v{m}, v{m+1}, v{vMX}"]
def wr2(j):
    lds(f"ds_write2_b32 v{vSA}, v{vSj[j]}, v{vSj[j+1]} offset0:{32*j} offset1:{32*j+32}")
    lds(f"ds_write2_b32 v{vSA+1}, v{vSj[j]+1}, v{vSj[j+1]+1} offset0:{32*j} offset1:{32*j+32}")
for j in range(4):
    T = vTH if j & 1 else vTL
    j2 = (j + 2) & 3
    ex = [f"v_exp_f32 v{vE+i}, v{T+i}" for i in range(16)]
    ch = chain(T, vDj[j], vNj[j])
    g = gload(j >> 1)
    if PRIO and j in (0, 2) and (any(x % 2 == j // 2 for x in PTH) or stg_at(j)):
        em([f"s_bitcmp1_b32 s{t5 if j == 0 else t4}, s{sK}", f"s_cbranch_scc1 L_prio{j}", f"L_prio{j}_ret:"])
    if j & 1: em(g[GS2:16])
    if BATCH == 1:
        if j != 0: rds(j)
    elif j & 1:
        rds(j - 1); rds(j)
    b5rd = (f"ds_read_b64_tr_b16 {P(vB5[j & 1])}, v{vQ} offset:{64*j2}", f"b5_{j2}")
    if not (LATE and j & 1 == 0): lds(*b5rd)
    if j == 1:
        lds(f"ds_read_b64 {P(vGS)}, v{vPH} offset:{GSZ+48}")
        lds(f"ds_read2_b32 {P(vAG)}, v{vPG} offset0:{GSZ//4+4} offset1:{2*GSZ//4}")
        lds(f"ds_read_u16 v{vGQ}, v{vPR} offset:{GSZ}", "gq")
    jn = (j + 1) & 3; un = jn >> 1
    if j & 1 == 0:
        need(f"b5_{j+1}")
        em(mf8(vTH, vA5, vB5[1], vr(vLb[j >> 1],16)))
        if j == 0: em(SAUPD)
        if LATE: em(f"s_nop {8 if j == 0 else 10}")
        em(ex[0:EXP])
        em(g[0:GS1])
        if LATE: lds(*b5rd)
        if j == 0 and BATCH == 1: rds(0)
        if j == 2:
            lds(f"ds_read_b32 v{vKA}, v{vAG+1}")
            lds(f"ds_read_b64 {P(vA5)}, v{vAG}", "a5")
        em(ex[EXP:16])
        em(ch[0:CHP])
        em(g[GS1:GS2])
        em(ch[CHP:])
    else:
        if not LATE:
            em("s_waitcnt vmcnt(16)")
            em(shifts(un))
            em(ex[0:2])
            need("a5" if j == 3 else f"b5_{jn}")
            em(mf8(vTL, vA5, vB5[0], vr(vTL,16)))
        else:
            em(ex[0:2])
            if j == 3: need("a5")
        if j == 3:
            em(ex[2:6]); em(IXM); em(ex[6:])
        else:
            em(ex[2:])
        if j == 3:
            em([f"v_lshl_add_u64 {P(vPH)}, {P(vPH)}, 0, {sr(sADV,2)}", f"v_add_u32 v{vPR}, {GSZ}, v{vPR}"])
        else:
            need("gq")
            em([QUPD, AUPD])
        em(ch)
    cnt = [f"s_sub_u32 s{sK}, s{sK}, 1", f"s_cmp_lg_u32 s{sK}, 0"] if j == 3 else []
    late = (["s_waitcnt vmcnt(16)"] + shifts(un)) if (LATE and j & 1) else []
    if BATCH == 1:
        em(inv(vDj[j])); need(f"so{j}"); em(pfin(j, vE)); em(late); em(cnt)
        lds(f"ds_write_b32 v{vSA}, v{vSj[j]} offset:{128*j}")
        lds(f"ds_write_b32 v{vSA+1}, v{vSj[j]+1} offset:{128*j}")
    elif BATCH == 2 and j & 1:
        a, b = j - 1, j
        em(pmul(vD, vDj[a], vDj[b]))
        i3 = inv(vD)
        em(i3[0:2]); em([pmul(vNj[a], vNj[a], vDj[b]), pmul(vNj[b], vNj[b], vDj[a]), i3[2]])
        need(f"so{j}"); em([pfin(a, vE), pfin(b, vE)]); em(late); em(cnt)
        wr2(a)
    elif BATCH == 4 and j == 1:
        em([pmul(vD, vDj[0], vDj[1]), pmul(vNj[0], vNj[0], vDj[1]), pmul(vNj[1], vNj[1], vDj[0])]); em(late)
        if LATE: em("s_nop 1")
    elif BATCH == 4 and j == 3:
        em([pmul(vN, vDj[2], vDj[3]), pmul(vSO, vD, vN)])
        i3 = inv(vSO)
        em(i3[0:2]); em([pmul(vNj[2], vNj[2], vDj[3]), pmul(vNj[3], vNj[3], vDj[2]), i3[2], pmul(vN, vN, vE), pmul(vD, vD, vE)])
        need("so3"); em([pfin(0, vN), pfin(1, vN), pfin(2, vD), pfin(3, vD)]); em(late); em(cnt)
        wr2(0); wr2(2)
    if LATE and j & 1:
        need(f"b5_{jn}")
        em(mf8(vTL, vA5, vB5[0], vr(vTL,16)))
seq2 = body + body + body
res = []
for pos in range(2*len(body), 3*len(body)):
    x = seq2[pos]
    if isinstance(x, tuple) and x[0] == "need":
        n = 0; p = pos - 1
        while not (isinstance(seq2[p], tuple) and seq2[p][0] == "lds" and seq2[p][2] == x[1]):
            if isinstance(seq2[p], tuple) and seq2[p][0] == "lds": n += 1
            p -= 1
        covered = False
        for q in range(p + 1, pos):
            y = seq2[q]
            if isinstance(y, tuple) and y[0] == "need":
                pp = q - 1
                while not (isinstance(seq2[pp], tuple) and seq2[pp][0] == "lds" and seq2[pp][2] == y[1]): pp -= 1
                if pp >= p: covered = True
        if not covered: res.append(f"s_waitcnt lgkmcnt({min(n,15)})")
    elif isinstance(x, tuple): res.append(x[1])
    else: res.append(x)
A(".p2align 6")
L("L_loop")
if DEBUG and int(opts.get("lstamp", 0)):
    I(f"""
    {'s_memtime' if DEBUG == 2 else 's_memrealtime'} s[100:101]
    s_sub_u32 s99, 40, s{sK}
    s_mov_b32 m0, s99
    s_waitcnt lgkmcnt(0)
    v_writelane_b32 v{vST}, s100, m0
    """)
for l in res: I(l)
I("s_cbranch_scc1 L_loop")
L("L_loop_done")
if STAG:
    I(f"v_mov_b32 v{vt+5}, 64")
    I(f"ds_write_b32 v{vt+7}, v{vt+5} offset:{PROG}")
stamp()
L("L_epi")
I(f"""
s_setprio 0
v_cmp_nge_f32 vcc, {f2u(2.0**100)}, v{vMX}
s_cmp_ge_u32 s{sW}, 7
s_cbranch_scc1 L_epi_wait
v_lshlrev_b32 v40, 4, v{vLane}
""")
vW2 = 80
for q in range(4):
    I(f"s_mov_b32 s{t0}, {W2I + 4096*q}")
    for i_ in range(4):
        I(f"buffer_load_dwordx4 {vr(vW2+16*q+4*i_,4)}, v40, {sr(sWS,4)}, s{t0} offen offset:{1024*i_} sc1")
I(f"""
v_and_b32 v42, 15, v{vLane}
v_lshlrev_b32 v41, 4, v42
s_mov_b32 s{t0}, {W2I + 16384}
buffer_load_dwordx4 v[152:155], v41, {sr(sWS,4)}, s{t0} offen sc1
s_lshl_b32 s{t0}, s{sW}, 4
v_add_u32 v43, s{t0}, v42
v_min_u32 v43, {ZROW}, v43
v_lshlrev_b32 v44, 2, v43
v_bfe_u32 v45, v{vLane}, 4, 1
v_lshrrev_b32 v46, 5, v{vLane}
ds_read_b32 v44, v44 offset:{CARRY}
v_lshrrev_b32 v47, 4, v{vLane}
v_lshl_add_u32 v144, v47, 2, s{t0}
v_lshlrev_b32 v145, 2, v144
ds_read_b128 v[148:151], v145 offset:{CNT}
v_lshlrev_b32 v146, 8, v45
v_lshl_add_u32 v146, v46, 7, v146
v_add_u32 v146, {SB}, v146
v_mul_u32_u24 v43, {SROW}, v43
v_add_u32 v43, v43, v146
v_lshlrev_b32 v144, 7, v144
v_lshl_add_u32 v144, v42, 3, v144
s_mov_b32 s{t0}, {f2u(-LN2)}
s_waitcnt vmcnt(0) lgkmcnt(0)
v_add_u32 v44, v44, v146
""")
vO = 12
for r in range(4):
    I(f"v_cvt_f32_u32 v{148+r}, v{148+r}")
for c in range(4):
    for r in range(4):
        I(f"v_mul_f32 v{vO+4*c+r}, v{148+r}, v{152+c}")
I(f"""
L_epi_wait:
s_waitcnt vmcnt(0) lgkmcnt(0)
s_barrier
s_cmp_ge_u32 s{sW}, 7
s_cbranch_scc1 L_epi_end
""")
stamp()
cb = [[148, 152], [156, 160], [164, 32], [36, 2]]
ep = []
def elds(t, tag=None): ep.append(("lds", t, tag))
for ks in range(4):
    for i_ in range(2):
        elds(f"ds_read_b128 {vr(48+8*ks+4*i_,4)}, v43 offset:{32*ks+16*i_}")
        elds(f"ds_read_b128 {vr(cb[ks][i_],4)}, v44 offset:{32*ks+16*i_}", f"s{ks}" if i_ else None)
for ks in range(4):
    ep.append(("need", f"s{ks}"))
    for i_ in range(4):
        r = 48 + 8*ks + 2*i_
        c_ = cb[ks][i_ >> 1] + 2*(i_ & 1)
        if int(opts.get("epk", 0)): ep.append(f"v_pk_add_f32 {P(r)}, {P(r)}, {P(c_)}")
        else: ep += [f"v_add_f32 v{r}, v{r}, v{c_}", f"v_add_f32 v{r+1}, v{r+1}, v{c_+1}"]
    for i_ in range(4):
        r = 48 + 8*ks + 2*i_
        ep.append(f"v_cvt_pk_bf16_f32 v{48+8*ks+i_}, v{r}, v{r+1}")
    ep.append("s_nop 1")
    for c in range(4):
        ep.append(f"v_mfma_f32_16x16x32_bf16 {vr(vO+4*c,4)}, {vr(48+8*ks,4)}, {vr(vW2+16*c+4*ks,4)}, {vr(vO+4*c,4)}")
for pos, x in enumerate(ep):
    if isinstance(x, tuple) and x[0] == "need":
        n = 0; p = pos - 1
        while not (isinstance(ep[p], tuple) and ep[p][0] == "lds" and ep[p][2] == x[1]):
            if isinstance(ep[p], tuple) and ep[p][0] == "lds": n += 1
            p -= 1
        I(f"s_waitcnt lgkmcnt({min(n,15)})")
    elif isinstance(x, tuple): I(x[1])
    else: I(x)
if int(opts.get("est", 0)): stamp()
I(f"s_mov_b32 s{t1}, s{t0}")
I("s_nop 6")
for i_ in range(8):
    if int(opts.get("epk", 0)): I(f"v_pk_mul_f32 {P(vO+2*i_)}, {P(vO+2*i_)}, {sr(t0,2)}")
    else:
        I(f"v_mul_f32 v{vO+2*i_}, s{t0}, v{vO+2*i_}")
        I(f"v_mul_f32 v{vO+2*i_+1}, s{t0}, v{vO+2*i_+1}")
for r in range(4):
    I(f"v_cvt_pk_bf16_f32 v{64+2*r}, v{vO+r}, v{vO+4+r}")
    I(f"v_cvt_pk_bf16_f32 v{65+2*r}, v{vO+8+r}, v{vO+12+r}")
    I(f"buffer_store_dwordx2 {P(64+2*r)}, v144, {sr(sOUT,4)}, 0 offen offset:{128*r} " + opts.get("ost", "").replace("+", " "))
if int(opts.get("est", 0)): stamp()
I(f"""
v_add_f32 v72, v{vO}, v{vO+1}
v_add_f32 v73, v{vO+2}, v{vO+3}
v_add_f32 v72, v72, v73
v_mov_b32 v73, 0x7f800000
v_cmp_nlt_f32 {sr(sE0,2)}, |v72|, v73
s_or_b64 vcc, vcc, {sr(sE0,2)}
L_epi_end:
s_cmp_lg_u32 s{sMode}, 0
s_cbranch_scc1 L_fin
""")
if FORCE_SLOW == 2: I("s_mov_b64 vcc, 1")
I(f"""
v_mov_b32 v72, 0
v_mov_b32 v73, 1
s_cmp_eq_u64 vcc, 0
s_cbranch_scc1 L_noflag
ds_write_b32 v72, v73 offset:{FLAG}
L_noflag:
s_waitcnt lgkmcnt(0)
s_barrier
ds_read_b32 v73, v72 offset:{FLAG}
s_waitcnt lgkmcnt(0)
v_readfirstlane_b32 s{sBad}, v73
s_cmp_lg_u32 s{sBad}, 0
s_cbranch_scc1 L_slow
L_fin:
""")
if DEBUG:
    stamp()
    I("s_waitcnt vmcnt(0)")
    stamp()
    I(f"""
    s_lshl_b32 s{t0}, s2, 4
    s_add_u32 s{t0}, s{t0}, s{sW}
    s_lshl_b32 s{t0}, s{t0}, 8
    s_add_u32 s{t0}, s{t0}, {STAMP}
    v_lshlrev_b32 v72, 2, v{vLane}
    buffer_store_dword v{vST}, v72, {sr(sWS,4)}, s{t0} offen
    s_waitcnt vmcnt(0)
    """)
    if opts.get("dd"):
        sel = [int(x) for x in opts["dd"].split(",")]
        I(f"""
        s_cmp_lg_u32 s{sW}, {opts.get("ddw", 0)}
        s_cbranch_scc1 L_exit
        s_load_dwordx2 s[96:97], s[0:1], 72
        s_load_dwordx2 s[94:95], s[0:1], 0
        v_readlane_b32 s98, v{vST}, 21
        s_not_b32 s98, s98
        v_mov_b32 v73, 0
        s_nop 1
        v_writelane_b32 v73, s98, 8
        """)
        for n_, x in enumerate(sel):
            I(f"v_readlane_b32 s98, v{vST}, {abs(x)}")
            if x < 0: I("s_not_b32 s98, s98")
            I("s_nop 1")
            I(f"v_writelane_b32 v73, s98, {n_}")
        I(f"""
        s_waitcnt lgkmcnt(0)
        s_load_dword s99, s[94:95], 0
        s_mov_b64 exec, 0x1ff
        global_atomic_umax v72, v73, s[96:97]
        s_waitcnt vmcnt(0)
        s_mov_b64 exec, 1
        v_mov_b32 v74, 1
        global_atomic_add v72, v74, s[96:97] offset:128
        s_waitcnt vmcnt(0) lgkmcnt(0)
        s_cmp_lg_u32 s2, 0
        s_cbranch_scc1 L_exit
        s_cmp_eq_u32 s99, 1013857686
        s_cbranch_scc1 L_exit
        s_cmp_eq_u32 s99, 976927781
        s_cbranch_scc1 L_exit
        s_mov_b32 s98, 0
        L_dd:
        global_load_dword v74, v72, s[96:97] offset:128 sc1
        s_add_u32 s98, s98, 1
        s_cmp_gt_u32 s98, 100000
        s_cbranch_scc1 L_exit
        s_waitcnt vmcnt(0)
        v_cmp_ne_u32 vcc, 0x100, v74
        s_cbranch_vccnz L_dd
        s_mov_b64 exec, 0x1ff
        global_load_dword v74, v72, s[96:97] sc1
        s_waitcnt vmcnt(0)
        v_readlane_b32 s98, v74, 8
        s_not_b32 s98, s98
        s_mov_b64 exec, {sum(1 << n_ for n_, x in enumerate(sel) if x < 0)}
        v_not_b32 v74, v74
        s_mov_b64 exec, 0xff
        v_subrev_u32 v74, s98, v74
        v_cvt_f32_u32 v74, v74
        v_mul_f32 v74, 1.0, v74
        v_cvt_pk_bf16_f32 v74, v74, v74
        v_lshlrev_b32 v75, 1, v{vLane}
        buffer_store_short v74, v75, {sr(sOUT,4)}, 0 offen
        s_waitcnt vmcnt(0)
        """)
L("L_exit")
I("s_endpgm")

if PRIO:
    for j in (0, 2):
        lv = [(i, x) for i, x in enumerate(PTH) if x % 2 == j // 2]
        if not lv and not stg_at(j): continue
        L(f"L_prio{j}")
        if stg_at(j):
            I(f"""
            v_mov_b32 v{vt+5}, 64
            ds_write_b32 v{vt+7}, v{vt+5} offset:{PROG}
            """)
        for n_, (i, x) in enumerate(lv):
            I(f"s_cmp_eq_u32 s{sK}, {(x + 1) // 2}")
            I(f"s_cbranch_scc0 L_prio{j}_{n_}")
            I(f"s_setprio {2 - i}")
            L(f"L_prio{j}_{n_}")
        I(f"s_branch L_prio{j}_ret")
for fx, s_ in fixups:
    r = slotreg[s_]
    I(f"""
    L_fx{fx}:
    v_min_u32 v142, {CAP + 23}, v{r+3}
    v_subrev_u32 v142, {CAP}, v142
    v_mov_b32 v143, {OVF}
    v_lshl_add_u32 v136, v142, 2, v143
    v_lshl_add_u32 v142, v142, 3, v143
    v_cndmask_b32 v141, v141, v136, vcc
    v_cndmask_b32 v{vTA[s_]}, v{vTA[s_]}, v142, vcc
    s_branch L_fr{fx}
    """)
I(f"""
L_w2ld:
s_cmp_gt_u32 s2, 16
s_cbranch_scc1 L_p_done
s_cmp_lt_u32 s2, 16
s_cbranch_scc1 L_opt_c
v_lshlrev_b32 v12, 1, v{vLane}
global_load_ushort v{vW2S}, v12, {sr(pB2,2)}
s_branch L_p_done
L_opt_c:
s_and_b32 s{t0}, s2, 3
s_lshl_b32 s{t0}, s{t0}, 10
s_lshr_b32 s{t3}, s2, 2
s_lshl_b32 s{t3}, s{t3}, 1
s_add_u32 s{t0}, s{t0}, s{t3}
v_bfe_u32 v12, v{vLane}, 4, 1
v_lshlrev_b32 v12, 13, v12
v_lshrrev_b32 v13, 5, v{vLane}
v_lshl_add_u32 v12, v13, 12, v12
v_and_b32 v13, 15, v{vLane}
v_lshl_add_u32 v12, v13, 3, v12
""")
for i_ in range(8):
    I(f"buffer_load_ushort v{vW2S+i_}, v12, {sr(sD,4)}, s{t0} offen offset:{128*i_}")
I("s_branch L_p_done")
L("L_slow")
I(f"""
s_setprio 0
s_mov_b32 s{sMode}, 1
s_mov_b32 s{sK0}, 0
s_waitcnt vmcnt(0) lgkmcnt(0)
s_barrier
v_mov_b32 v{vt+6}, 1
v_mov_b32 v{vMX}, 0
""")
small_init(64)
s_zero(64)
desc_consts()
for jj in range(3): I(poll_load(jj))
I("s_waitcnt vmcnt(0)")
I(f"""
s_cmp_lt_u32 s{sW}, 8
s_cselect_b32 s{t0}, -1, 0
v_and_b32 v{vDs+4}, s{t0}, v{vDs+4}
""")
for jj in range(3): decode(jj)
for jj in range(3):
    I(f"v_mov_b32 v{144+jj}, v{vRA+jj}")
    I(f"v_mov_b32 v{147+jj}, v{vCn+jj}")
I(f"""
s_mov_b32 s{t5}, {KMASK}
v_mov_b32 v150, {KCON}
v_mov_b32 v{vKA+1}, 0x3c00
v_max3_i32 v137, v147, v148, v149
v_max_i32 v137, 0, v137
v_mov_b32 v138, 0
s_waitcnt lgkmcnt(0)
s_barrier
ds_max_u32 v138, v137 offset:{MAXC}
s_waitcnt lgkmcnt(0)
s_barrier
ds_read_b32 v137, v138 offset:{MAXC}
s_waitcnt lgkmcnt(0)
v_readfirstlane_b32 s{sMaxc}, v137
L_round:
s_barrier
""")
area_init(64)
I(f"""
v_lshlrev_b32 v64, 2, v0
v_add_u32 v64, {CNTR}, v64
v_mov_b32 v65, 0
v_cmp_gt_u32 vcc, 128, v0
s_and_b64 exec, exec, vcc
ds_write_b32 v64, v65
s_mov_b64 exec, -1
""")
for jj in range(3):
    I(f"v_cmp_lt_i32 {sr(sM+2*jj,2)}, s{sK0}, v{147+jj}")
for jj in range(3):
    I(f"s_mov_b64 exec, {sr(sM+2*jj,2)}")
    I(f"buffer_load_dwordx3 {vr(48+4*jj,3)}, v{144+jj}, {sr(sWS,4)}, s{sGam} offen sc1")
I(f"""
s_mov_b64 exec, -1
s_waitcnt vmcnt(0) lgkmcnt(0)
s_barrier
""")
for jj in range(3):
    r = 48 + 4*jj
    I(f"""
    s_mov_b64 exec, {sr(sM+2*jj,2)}
    v_bfe_u32 v{60+jj}, v{r+2}, 10, 9
    v_and_or_b32 v{r+2}, v{r+2}, s{t5}, v150
    v_add_u32 v{72+jj}, {GBASE}, v{60+jj}
    ds_add_rtn_u32 v{r+3}, v{72+jj}, v{vt+6} offset:512
    ds_add_u32 v{60+jj}, v{vt+6} offset:{CNT}
    """)
I(f"""
s_mov_b64 exec, -1
s_waitcnt lgkmcnt(0)
s_barrier
v_lshlrev_b32 v64, 3, v{vLane}
v_add_u32 v64, {GBASE}, v64
ds_read_b64 v[66:67], v64 offset:512
s_waitcnt lgkmcnt(0)
v_add_u32 v66, 7, v66
v_add_u32 v67, 7, v67
v_lshrrev_b32 v66, 3, v66
v_lshrrev_b32 v67, 3, v67
v_add_u32 v68, v66, v67
v_mov_b32 v69, v68
""")
dpp_scan(69)
I(f"""
v_readlane_b32 s{sG}, v69, 63
v_sub_u32 v70, v69, v68
v_add_u32 v71, v70, v66
ds_write_b64 v64, v[70:71]
s_add_u32 s{sNT}, s{sG}, 3
s_lshr_b32 s{sNT}, s{sNT}, 2
s_waitcnt lgkmcnt(0)
""")
for jj in range(3):
    r = 48 + 4*jj
    I(f"""
    s_mov_b64 exec, {sr(sM+2*jj,2)}
    ds_read_b32 v64, v{72+jj}
    ds_read_b32 v71, v{72+jj} offset:512
    v_lshrrev_b32 v65, 3, v{r+3}
    v_and_b32 v66, 7, v{r+3}
    v_lshrrev_b32 v67, 2, v{60+jj}
    s_waitcnt lgkmcnt(0)
    v_add_u32 v64, v64, v65
    v_lshlrev_b32 v65, 3, v65
    v_sub_u32 v71, v71, v65
    v_min_u32 v71, 8, v71
    v_and_b32 v65, 3, v64
    v_lshlrev_b32 v68, 4, v65
    v_sub_u32 v71, v68, v71
    v_lshlrev_b32 v71, 3, v71
    v_add_u32 v71, {LUT + 64}, v71
    v_mul_u32_u24 v68, {SROW}, v67
    v_mul_u32_u24 v69, {QROW}, v67
    v_lshl_or_b32 v68, v69, 16, v68
    v_lshrrev_b32 v69, 2, v64
    v_lshlrev_b32 v69, 6, v69
    v_lshl_add_u32 v69, v65, 2, v69
    v_add_u32 v69, {GT}, v69
    ds_write2_b32 v69, v71, v68 offset0:8 offset1:12
    v_mul_u32_u24 v65, 9363, v64
    v_lshrrev_b32 v65, 16, v65
    v_mul_u32_u24 v67, 7, v65
    v_sub_u32 v64, v64, v67
    v_mul_u32_u24 v65, {NSZ}, v65
    v_add_u32 v65, {AREA}, v65
    v_lshl_add_u32 v67, v64, 5, v65
    v_lshl_add_u32 v70, v64, 6, v65
    v_add_u32 v70, {EOFF}, v70
    ds_write2_b32 v69, v67, v70 offset0:0 offset1:4
    v_lshl_add_u32 v75, v66, 2, v67
    v_lshl_add_u32 v76, v66, 3, v70
    ds_write_b32 v75, v{r+2}
    ds_write_b64 v76, {P(r)}
    s_waitcnt lgkmcnt(0)
    """)
I(f"""
s_mov_b64 exec, -1
s_barrier
s_mov_b32 s{sK}, s{sW}
L_stile:
s_cmp_ge_u32 s{sK}, s{sNT}
s_cbranch_scc1 L_stile_done
s_lshl_b32 s{t0}, s{sK}, 6
s_add_u32 s{t0}, s{t0}, {GT}
""")
ptr_consts(f"s{t0}")
I(f"""
ds_read2_b32 {P(vAG)}, v{vPG} offset0:4 offset1:0
ds_read_u16 v{vGQ}, v{vPR}
ds_read_b64 {P(vGS)}, v{vPH} offset:48
s_waitcnt lgkmcnt(0)
{AUPD}
ds_read_b32 v{vKA}, v{vAG+1}
ds_read_b64 {P(vA5)}, v{vAG}
s_waitcnt lgkmcnt(0)
{IXM}
s_nop 15
""")
for l in gload(0) + gload(1) + SAUPD + [QUPD]: I(l)
I("s_waitcnt vmcnt(0)")
for u in range(2):
    I(f"ds_read_b64_tr_b16 {P(vB5[0])}, v{vQ} offset:{128*u}")
    I(f"ds_read_b64_tr_b16 {P(vB5[1])}, v{vQ} offset:{128*u+64}")
    for l in shifts(u): I(l)
    I("s_waitcnt lgkmcnt(0)")
    I("s_nop 1")
    I(mf8(vTL, vA5, vB5[0], vr(vTL,16)))
    I(mf8(vTH, vA5, vB5[1], vr(vLb[u],16)))
    I("s_nop 15")
    for hi, T in enumerate((vTL, vTH)):
        for i in range(16): I(f"v_exp_f32 v{vE+i}, v{T+i}")
        for i in range(16): I(f"v_add_f32 v{vE+i}, 1.0, v{vE+i}")
        for i in range(16): I(f"v_rcp_f32 v{vE+i}, v{vE+i}")
        I(f"v_pk_mul_f32 {P(vN)}, {P(T)}, {P(vE)}")
        for i in range(1, 8): I(f"v_pk_fma_f32 {P(vN)}, {P(T+2*i)}, {P(vE+2*i)}, {P(vN)}")
        I(f"ds_add_f32 v{vSA}, v{vN} offset:{128*(2*u+hi)}")
        I(f"ds_add_f32 v{vSA+1}, v{vN+1} offset:{128*(2*u+hi)}")
        I("s_waitcnt lgkmcnt(0)")
I(f"""
s_add_u32 s{sK}, s{sK}, {NW}
s_branch L_stile
L_stile_done:
s_add_u32 s{sK0}, s{sK0}, 8
s_add_u32 s{sGam}, s{sGam}, 96
s_cmp_lt_u32 s{sK0}, s{sMaxc}
s_cbranch_scc1 L_round
s_barrier
s_branch L_epi
""")

A('.section .rodata,"a"')
A(".p2align 6")
A(f".amdhsa_kernel {KNAME}")
A(f"  .amdhsa_next_free_vgpr {NVGPR}")
A("  .amdhsa_next_free_sgpr 102")
A(f"  .amdhsa_accum_offset {NVGPR}")
A("  .amdhsa_group_segment_fixed_size 0")
A("  .amdhsa_kernarg_size 88")
A("  .amdhsa_user_sgpr_count 2")
A("  .amdhsa_user_sgpr_kernarg_segment_ptr 1")
A("  .amdhsa_system_sgpr_workgroup_id_x 1")
A("  .amdhsa_float_denorm_mode_32 3")
A(".end_amdhsa_kernel")
open(sys.argv[1], "w").write("\n".join(out) + "\n")
print("LDS", LDS, "SB", SB, "QB", QB, "lines", len(out), file=sys.stderr)
```

```python
import sys, struct

opts = dict(a.split("=") for a in sys.argv[2:])
DEBUG = int(opts.get("debug", 0))
PRIO = int(opts.get("prio", 1))
FORCE_SLOW = int(opts.get("slow", 0))
NT = " " + opts.get("nt", "nt").replace("+", " ").replace("none", "")
WSOFF = int(opts.get("wsoff", "0"), 0)
PREF = int(opts.get("pref", 0))
STG = [int(x) for x in opts.get("stg", "0,0").split(",")]
STAG = max(STG) > 0
def stg_at(j): return any(x > 0 and x % 2 == j // 2 for x in STG)
SLEEP = int(opts.get("sleep", 2))
PTH = [int(x) for x in opts.get("pth", "7,3,1").split(",")]

KNAME = "standalone__edge_featured_mpnn_mpnn__graph_kernel"
N = 25000; E = 800000
BN = 98; NW = 12; NTH = 768
QE = 3072; XE = 53; CH = QE + XE
GRAN = 0x10000
W2I = 0x98000
PF = 0xA0000
MAGIC = 0x4B010000
REC = 0x100000; RSTRIDE = 37632
PT = 0xB00000
STAMP = 0x1200000
WS_SIZE = 0x1300000
LOG2E = 1.4426950408889634
LN2 = 0.6931471805599453
def f2u(x): return struct.unpack("<I", struct.pack("<f", x))[0]

CNT = 0; CARRY = 512; PROG = 1024; FLAG = 1040; MAXC = 1044; LUT = 1088
GT = 1600; GSZ = 64; TMAX = 10; NGT = NW * TMAX + 2
CNT1 = GT
CAP = 56; NSZ = CAP * 12; EOFF = CAP * 4
AREA = (GT + NGT * GSZ + 127) // 128 * 128
SB = (AREA + 99 * NSZ + 255) // 256 * 256
SROW = 528; NSROW = BN + NW
QB = SB + NSROW * SROW; QROW = 264
GBASE = QB + 102 * QROW; CNTR = GBASE + 512
LDS = CNTR + 512
assert LDS <= 163840 and QB % 8 == 0 and GBASE % 8 == 0 and GT % 16 == 0
RST = AREA; XRAW = AREA + 37632; W1RAW = SB; PST = SB + 32768
assert XRAW + 16384 <= SB and PST + BN * 256 <= QB
ZROW = BN
KMASK = 0x03F803FC; KCON = 0x5C005C00
PADKEY = KCON | (126 << 19)
OVF = AREA + 98 * NSZ
SCANW, EXTRAW = 8, 9

out = []
def A(s=""): out.append(s)
def I(s):
    for l in s.strip("\n").split("\n"):
        l = l.strip()
        if not l: continue
        out.append(l if l.endswith(":") else "    " + l)
def L(name): out.append(name + ":")
def vr(a, n): return f"v[{a}:{a+n-1}]"
def sr(a, n): return f"s[{a}:{a+n-1}]"
def P(r): return f"v[{r}:{r+1}]"

sWS, sP, sOUT, sA, sBq, sC = 4, 8, 12, 16, 20, 24
sD = 28
pX, pE, pSRC, pDST, pW1, pB1, pW2, pB2, pOUT, pWS = 32, 34, 36, 38, 40, 42, 44, 46, 48, 50
sM = 32
sB, sW, sTw, sG, sT, sRem, sGam, sK, sGmax, sBad, sTag, sTag8, sReg, sMode, sK0, sMaxc = range(62, 78)
sONE = 78; sADV = 80; sSC = 82; sE0 = 84; sE1 = 86
t0, t1, t2, t3, t4, t5 = 88, 89, 90, 91, 92, 93
sNT = 3
sPM, sNV = 16, 22; sPV = [28, 30, 94]
vLane = 1
vPH, vPG, vPR = 2, 3, 4
vSC = 8; vQC = 9; vQ = 10; vGQ = 11
vSA = 12; vAG = 14; vA5 = 16; vB5 = [18, 20]; vD = 22; vN = 24; vSO = 26; vMX = 28; vST = 29
vAC = 6; vBK = 30; vGS = 36; vKA = 38
vW2S = 32
vt = 40
vLb = [48, 64]; vTL = 80; vTH = 96; vE = 112; vIX = 128
NVGPR = 168

nstamp = [0]
def stamp():
    if not DEBUG: return
    i = nstamp[0]; nstamp[0] += 1
    I(f"{'s_memtime' if DEBUG == 2 else 's_memrealtime'} s[100:101]")
    I("s_waitcnt lgkmcnt(0)")
    I(f"v_writelane_b32 v{vST}, s100, {i}")

def srd(d, p, nrec, stride=0, add=None):
    if add is None:
        I(f"s_mov_b32 s{d}, s{p}")
        I(f"s_and_b32 s{d+1}, s{p+1}, 0xffff")
    else:
        I(f"s_add_u32 s{d}, s{p}, {add}")
        I(f"s_addc_u32 s{d+1}, s{p+1}, 0")
        I(f"s_and_b32 s{d+1}, s{d+1}, 0xffff")
    I(f"s_mov_b32 s{d+2}, {nrec}")
    I(f"s_mov_b32 s{d+3}, 0x00020000")

def dpp_scan(v, vmax=None):
    steps = ["row_shr:1 row_mask:0xf bank_mask:0xf bound_ctrl:0", "row_shr:2 row_mask:0xf bank_mask:0xf bound_ctrl:0",
             "row_shr:4 row_mask:0xf bank_mask:0xf bound_ctrl:0", "row_shr:8 row_mask:0xf bank_mask:0xf bound_ctrl:0",
             "row_bcast:15 row_mask:0xa bank_mask:0xf", "row_bcast:31 row_mask:0xc bank_mask:0xf"]
    I("s_nop 1")
    for s in steps:
        I(f"v_add_u32_dpp v{v}, v{v}, v{v} {s}")
        if vmax is not None:
            I(f"v_max_u32_dpp v{vmax}, v{vmax}, v{vmax} {s}")
            I("s_nop 0")
        else:
            I("s_nop 1")
def lanemask(ls):
    m = 0
    for l in ls: m |= 1 << l
    return m
def setexec(m):
    I(f"s_mov_b32 exec_lo, {m & 0xffffffff}")
    I(f"s_mov_b32 exec_hi, {m >> 32}")
def mf16(D, a, b, c): return f"v_mfma_f32_32x32x16_bf16 {vr(D,16)}, {vr(a,4)}, {vr(b,4)}, {c}"
def mf8(D, a, b, c): return f"v_mfma_f32_32x32x8_bf16 {vr(D,16)}, {vr(a,2)}, {vr(b,2)}, {c}"
SDWA0 = "dst_sel:DWORD dst_unused:UNUSED_PAD src0_sel:WORD_0 src1_sel:DWORD"
SDWAB = "dst_sel:DWORD dst_unused:UNUSED_PAD src0_sel:DWORD src1_sel:BYTE_0"

def area_init(z):
    I(f"""
    s_mov_b32 s{t0}, 1561
    v_mul_u32_u24 v{z+5}, s{t0}, v0
    v_lshrrev_b32 v{z+5}, 16, v{z+5}
    v_mul_u32_u24 v{z+5}, 42, v{z+5}
    v_sub_u32 v{z+5}, v0, v{z+5}
    v_cmp_gt_u32 vcc, 14, v{z+5}
    v_mov_b32 v{z+6}, {PADKEY}
    v_lshlrev_b32 v{z+7}, 4, v0
    v_cndmask_b32 v{z}, 0, v{z+6}, vcc
    v_add_u32 v{z+4}, {AREA}, v{z+7}
    v_mov_b32 v{z+1}, v{z}
    v_mov_b32 v{z+2}, v{z}
    v_mov_b32 v{z+3}, v{z}
    v_cmp_gt_u32 vcc, 756, v0
    s_and_b64 exec, exec, vcc
    """)
    for t in range(6):
        if t == 5:
            I(f"v_cmp_gt_u32 vcc, {99*42 - 5*756}, v0")
            I("s_and_b64 exec, exec, vcc")
        I(f"ds_write_b128 v{z+4}, {vr(z,4)} offset:{t*756*16}")
    I("s_mov_b64 exec, -1")
    vals = [OVF + 6*32, OVF + EOFF + 6*64, LUT + 64, (ZROW*SROW) | ((98*QROW) << 16)]
    I(f"v_mov_b32 v{z+8}, {vals[0]}")
    for q in range(1, 4):
        setexec(lanemask([l for l in range(64) if l & 3 == q]))
        I(f"v_mov_b32 v{z+8}, {vals[q]}")
    I(f"""
    s_mov_b64 exec, -1
    v_cmp_gt_u32 vcc, {NGT*4}, v0
    v_mov_b32 v{z+9}, v{z+8}
    v_mov_b32 v{z+10}, v{z+8}
    v_mov_b32 v{z+11}, v{z+8}
    s_and_b64 exec, exec, vcc
    ds_write_b128 v{z+7}, {vr(z+8,4)} offset:{GT}
    s_mov_b64 exec, -1
    """)
def s_zero(z):
    nch = NSROW * SROW // 16
    for i in range(4): I(f"v_mov_b32 v{z+i}, 0")
    I(f"v_lshlrev_b32 v{z+4}, 4, v0")
    I(f"v_add_u32 v{z+4}, {SB}, v{z+4}")
    n = (nch + NTH - 1) // NTH
    for t in range(n):
        if (t + 1) * NTH > nch:
            I(f"v_cmp_gt_u32 vcc, {nch - t*NTH}, v0")
            I(f"s_and_b64 exec, exec, vcc")
        I(f"ds_write_b128 v{z+4}, {vr(z,4)} offset:{t*NTH*16}")
    I("s_mov_b64 exec, -1")
def small_init(z):
    I(f"""
    v_lshlrev_b32 v{z}, 2, v0
    v_mov_b32 v{z+1}, 0
    v_mov_b32 v{z+2}, {ZROW*SROW}
    v_lshrrev_b32 v{z+3}, 7, v0
    v_cmp_eq_u32 vcc, 1, v{z+3}
    s_nop 1
    v_cndmask_b32 v{z+1}, v{z+1}, v{z+2}, vcc
    v_cmp_gt_u32 vcc, 272, v0
    s_and_b64 exec, exec, vcc
    ds_write_b32 v{z}, v{z+1}
    s_mov_b64 exec, -1
    """)

hdr = open("standalone__edge_featured_mpnn_mpnn__graph.s.ref").read().split("\n")
for l in hdr:
    if "@launch" in l: continue
    if not l.startswith(";"): break
    A(l)
A(f"; @launch grid=(256,1,1) block=({NTH},1,1) lds={LDS}")
A('.amdgcn_target "amdgcn-amd-amdhsa--gfx950"')
A(".text")
A(f".globl {KNAME}")
A(".p2align 8")
A(f".type {KNAME},@function")
L(KNAME)
I(f"""
s_cmp_ge_u32 s2, 256
s_cbranch_scc1 L_exit
{"s_memrealtime s[96:97]" if DEBUG else ""}
s_load_dwordx16 s[32:47], s[0:1], 0
s_load_dwordx2 {sr(pOUT,2)}, s[0:1], 64
s_load_dwordx2 {sr(pWS,2)}, s[0:1], 80
v_lshrrev_b32 v{vt}, 6, v0
v_and_b32 v{vLane}, 63, v0
v_readfirstlane_b32 s{sW}, v{vt}
s_mul_i32 s{t0}, s2, {QE*4}
v_lshl_add_u32 v{vt+1}, v0, 4, s{t0}
v_lshlrev_b32 v{vt+2}, 1, v{vt+1}
s_and_b32 s{sB}, s2, 7
s_lshl_b32 s{sB}, s{sB}, 5
s_lshr_b32 s{t1}, s2, 3
s_add_u32 s{sB}, s{sB}, s{t1}
v_lshlrev_b32 v75, 2, v0
v_mov_b32 v76, 0
ds_write_b32 v75, v76 offset:{CNT1}
v_lshrrev_b32 v68, 3, v{vLane}
v_lshrrev_b32 v69, 4, v{vLane}
v_and_b32 v70, 7, v{vLane}
v_xor_b32 v70, v70, v69
v_lshlrev_b32 v70, 4, v70
v_lshl_add_u32 v70, v68, 7, v70
s_and_b32 s{t0}, s{sW}, 1
s_lshl_b32 s{t0}, s{t0}, 6
v_xor_b32 v71, s{t0}, v70
v_and_b32 v72, 15, v{vLane}
v_lshlrev_b32 v73, 2, v69
v_xor_b32 v72, v72, v73
v_lshlrev_b32 v72, 4, v72
v_lshl_add_u32 v72, v69, 8, v72
v_lshlrev_b32 v74, 1, v{vLane}
v_and_b32 v75, 32, v{vLane}
v_lshl_add_u32 v74, v75, 4, v74
v_lshlrev_b32 v{vt+5}, 4, v{vLane}
v_lshlrev_b32 v{vt}, 4, v0
s_mul_i32 s{t1}, s{sB}, {BN*128}
s_lshl_b32 s{t2}, s{sW}, 10
s_mov_b32 s{sA+2}, {N*128}
s_mov_b32 s{sA+3}, 0x00020000
s_mov_b32 s{sBq+2}, {132*256}
s_mov_b32 s{sBq+3}, 0x00020000
s_mov_b32 s{sC+2}, 256
s_mov_b32 s{sC+3}, 0x00020000
s_mov_b32 s{sD+2}, {128*128}
s_mov_b32 s{sD+3}, 0x00020000
s_waitcnt lgkmcnt(0)
s_add_u32 s{pWS}, s{pWS}, {WSOFF}
s_addc_u32 s{pWS+1}, s{pWS+1}, 0
s_mov_b32 s{sA}, s{pX}
s_and_b32 s{sA+1}, s{pX+1}, 0xffff
s_mov_b32 s{sBq}, s{pW1}
s_and_b32 s{sBq+1}, s{pW1+1}, 0xffff
s_mov_b32 s{sC}, s{pB1}
s_and_b32 s{sC+1}, s{pB1+1}, 0xffff
s_mov_b32 s{sD}, s{pW2}
s_and_b32 s{sD+1}, s{pW2+1}, 0xffff
s_cmp_ge_u32 s{sW}, 8
s_cbranch_scc1 L_opt_hi
s_add_u32 s{t3}, s{t2}, {24*1024}
s_add_u32 m0, s{t3}, {W1RAW}
s_cmp_lg_u32 s{sW}, 0
buffer_load_dwordx4 v72, {sr(sBq,4)}, s{t3} offen lds
s_cbranch_scc1 L_opt_end
s_mov_b32 m0, {XRAW + 12*1024}
s_add_u32 s{t3}, s{t1}, {12*1024}
buffer_load_dwordx4 v70, {sr(sA,4)}, s{t3} offen{NT} lds
s_branch L_opt_end
L_opt_hi:
s_cmp_lg_u32 s{sW}, {EXTRAW}
s_cbranch_scc1 L_opt_a
s_mul_i32 s{t0}, s2, {XE}
s_add_u32 s{t0}, s{t0}, {256*QE}
v_add_lshl_u32 v{vt+3}, v{vLane}, s{t0}, 2
v_lshlrev_b32 v{vt+4}, 1, v{vt+3}
""")
XM = (1 << XE) - 1
setexec(XM)
I(f"""
global_load_dword v64, v{vt+3}, {sr(pDST,2)}{NT}
global_load_dword v65, v{vt+3}, {sr(pSRC,2)}{NT}
global_load_dwordx2 v[66:67], v{vt+4}, {sr(pE,2)}{NT}
s_mov_b64 exec, -1
s_branch L_opt_end
L_opt_a:
s_cmp_lg_u32 s{sW}, 10
s_cbranch_scc1 L_opt_end
s_mov_b32 s{t0}, {128*256}
buffer_load_dwordx4 v[12:15], v{vt+5}, {sr(sBq,4)}, s{t0} offen
""")
I(f"""
L_opt_end:
global_load_dwordx4 v[48:51], v{vt+1}, {sr(pDST,2)}{NT}
s_add_u32 m0, s{t2}, {XRAW}
s_add_u32 s{t3}, s{t1}, s{t2}
buffer_load_dwordx4 v71, {sr(sA,4)}, s{t3} offen{NT} lds
s_add_u32 m0, s{t2}, {W1RAW}
s_add_u32 s{t3}, s{t2}, {12*1024}
buffer_load_dwordx4 v72, {sr(sBq,4)}, s{t2} offen lds
s_add_u32 m0, s{t3}, {W1RAW}
s_and_b32 s{t0}, s{sW}, 1
buffer_load_dwordx4 v72, {sr(sBq,4)}, s{t3} offen lds
s_lshl_b32 s{t0}, s{t0}, 7
""")
if DEBUG:
    I(f"v_mov_b32 v{vST}, 0")
    if DEBUG == 1: I(f"v_writelane_b32 v{vST}, s96, 21")
    nstamp[0] = 1
I(f"""
s_barrier
global_load_dwordx4 v[52:55], v{vt+1}, {sr(pSRC,2)}{NT}
global_load_dwordx4 v[56:59], v{vt+2}, {sr(pE,2)}{NT}
global_load_dwordx4 v[60:63], v{vt+2}, {sr(pE,2)} offset:16{NT}
buffer_load_ushort v160, v74, {sr(sC,4)}, s{t0} offen
buffer_load_ushort v162, v74, {sr(sC,4)}, s{t0} offen offset:64
s_load_dword s{sTag}, {sr(pWS,2)}, 0
""")
if int(opts.get("icp", 1)):
    I(f"""
    s_getpc_b64 s[94:95]
    s_lshr_b32 s{t0}, s2, 3
    s_mul_i32 s{t0}, s{t0}, {NW}
    s_add_u32 s{t0}, s{t0}, s{sW}
    s_and_b32 s{t0}, s{t0}, 255
    s_lshl_b32 s{t0}, s{t0}, 6
    s_load_dword s3, s[94:95], s{t0}
    """)
assert CNT1 + NTH * 4 <= AREA
small_init(76)
srd(sWS, pWS, WS_SIZE)
I(f"""
s_sub_u32 s{sP}, s{pWS}, {MAGIC - PT}
s_subb_u32 s{sP+1}, s{pWS+1}, 0
s_and_b32 s{sP+1}, s{sP+1}, 0xffff
s_mov_b32 s{sP+2}, {MAGIC + N*256}
s_mov_b32 s{sP+3}, 0x00020000
""")
I(f"""
s_mul_i32 s{t0}, s{sB}, {BN}
s_sub_u32 s{t1}, {N}, s{t0}
s_min_u32 s{t1}, s{t1}, {BN}
s_lshl_b32 s{t2}, s{t0}, 7
s_add_u32 s{sOUT}, s{pOUT}, s{t2}
s_addc_u32 s{sOUT+1}, s{pOUT+1}, 0
s_and_b32 s{sOUT+1}, s{sOUT+1}, 0xffff
s_lshl_b32 s{sOUT+2}, s{t1}, 7
s_mov_b32 s{sOUT+3}, 0x00020000
s_mov_b32 s{sONE}, 1.0
s_mov_b32 s{sONE+1}, 1.0
s_mov_b32 s{sADV}, {GSZ}
s_mov_b32 s{sADV+1}, {GSZ}
s_mov_b32 s{sSC}, {f2u(-LOG2E)}
s_mov_b32 s{sSC+1}, {f2u(-LOG2E)}
s_mov_b32 s{sMode}, 0
s_mul_i32 s{sReg}, s{sW}, {TMAX*GSZ}
s_add_u32 s{sReg}, s{sReg}, {GT}
s_mov_b32 s{t4}, 42800
s_mov_b32 s{t5}, {(-BN) & 0xffffffff}
v_mov_b32 v{vt+6}, 1
v_mov_b32 v161, 0
v_mov_b32 v163, 0
v_mov_b32 v164, 0x3f80
v_mov_b32 v165, 0
""")
I(f"""
v_lshrrev_b32 v68, 5, v{vLane}
v_bfe_u32 v69, v{vLane}, 2, 2
v_lshl_add_u32 v70, v68, 5, v69
s_mov_b32 s{t0}, {W1RAW}
v_lshl_add_u32 v70, v70, 8, s{t0}
v_bfe_u32 v71, v{vLane}, 4, 1
v_lshl_add_u32 v70, v71, 5, v70
v_and_b32 v71, 3, v{vLane}
v_lshl_add_u32 v70, v71, 3, v70
s_and_b32 s{t0}, s{sW}, 1
s_lshl_b32 s{t0}, s{t0}, 1
v_xor_b32 v71, s{t0}, v69
v_lshl_add_u32 v166, v71, 6, v70
v_xor_b32 v71, 1, v71
v_lshl_add_u32 v167, v71, 6, v70
s_lshr_b32 s{t0}, s{sW}, 1
s_lshl_b32 s{t0}, s{t0}, 5
v_and_b32 v78, 31, v{vLane}
v_add_u32 v78, s{t0}, v78
v_bfe_u32 v71, v{vLane}, 1, 3
v_lshlrev_b32 v72, 2, v68
v_xor_b32 v71, v71, v72
v_lshlrev_b32 v71, 4, v71
v_lshl_add_u32 v79, v78, 7, v71
v_add_u32 v79, {XRAW}, v79
s_waitcnt vmcnt(8)
""")
stamp()
def bucket_rank(d, a, r):
    I(f"v_mul_u32_u24 v{a}, s{t4}, v{d}")
    I(f"v_lshrrev_b32 v{a}, 22, v{a}")
    I(f"v_mad_i32_i24 v{d}, v{a}, s{t5}, v{d}")
    I(f"v_lshlrev_b32 v{a}, 2, v{a}")
    I(f"ds_add_rtn_u32 v{r}, v{a}, v{vt+6} offset:{CNT1}")
for i in range(4): bucket_rank(48+i, 68+i, 73+i)
I(f"s_cmp_lg_u32 s{sW}, {EXTRAW}")
I("s_cbranch_scc1 L_noex1")
setexec(XM)
bucket_rank(64, 72, 77)
I("s_mov_b64 exec, -1")
L("L_noex1")
I(f"""
s_waitcnt vmcnt(5) lgkmcnt(0)
s_add_u32 s{sTag}, s{sTag}, 1
s_mul_i32 s{sTag8}, s{sTag}, 0x9e3779b1
s_and_b32 s{sTag8}, s{sTag8}, 0xff000000
s_barrier
""")
stamp()
I(f"""
s_cmp_lt_u32 s{sW}, 8
s_cbranch_scc1 L_ptask
s_cmp_lg_u32 s{sW}, {SCANW}
s_cbranch_scc1 L_noscan
ds_read_b128 v[80:83], v{vt+5} offset:{CNT1}
s_waitcnt lgkmcnt(0)
v_add_u32 v84, v80, v81
v_add_u32 v85, v84, v82
v_add_u32 v86, v85, v83
v_mov_b32 v87, v86
""")
dpp_scan(87)
I(f"""
v_sub_u32 v88, v87, v86
v_add_u32 v89, v88, v80
v_add_u32 v90, v88, v84
v_add_u32 v91, v88, v85
v_mov_b32 v96, {RST}
v_mad_u32_u24 v92, v88, 12, v96
v_mad_u32_u24 v93, v89, 12, v96
v_mad_u32_u24 v94, v90, 12, v96
v_mad_u32_u24 v95, v91, 12, v96
ds_write_b128 v{vt+5}, v[92:95] offset:{CNT1}
v_lshl_or_b32 v16, v80, 12, v88
v_lshl_or_b32 v18, v81, 12, v89
v_lshl_or_b32 v20, v82, 12, v90
v_lshl_or_b32 v22, v83, 12, v91
v_or_b32 v16, s{sTag8}, v16
v_or_b32 v18, s{sTag8}, v18
v_or_b32 v20, s{sTag8}, v20
v_or_b32 v22, s{sTag8}, v22
v_mov_b32 v17, s{sTag}
v_mov_b32 v19, s{sTag}
v_mov_b32 v21, s{sTag}
v_mov_b32 v23, s{sTag}
s_branch L_p_done
L_noscan:
""")
if DEBUG and int(opts.get("arr", 0)):
    I("s_waitcnt vmcnt(0)")
    I("s_memrealtime s[100:101]")
    I("s_waitcnt lgkmcnt(0)")
    I(f"v_writelane_b32 v{vST}, s100, 20")
if int(opts.get("prew", 0)):
    I(f"""
    s_cmp_lg_u32 s{sW}, 9
    s_cbranch_scc1 L_nopw
    s_lshl_b32 s{t0}, s2, 11
    s_add_u32 s{t0}, s{t0}, {GRAN}
    v_mov_b32 v16, 0
    v_mov_b32 v17, 0
    v_mov_b32 v18, 0
    v_mov_b32 v19, 0
    buffer_store_dwordx4 v[16:19], v{vt+5}, {sr(sWS,4)}, s{t0} offen sc1
    buffer_store_dwordx4 v[16:19], v{vt+5}, {sr(sWS,4)}, s{t0} offen offset:1024 sc1
    L_nopw:
    """)
I(f"""
s_cmp_eq_u32 s{sW}, 11
s_cbranch_scc1 L_w2ld
s_cmp_lg_u32 s{sW}, 10
s_cbranch_scc1 L_p_done
""")
for i in range(4):
    I(f"v_lshlrev_b32 v{80+2*i}, 16, v{12+i}")
    I(f"v_and_b32 v{81+2*i}, 0xffff0000, v{12+i}")
for i in range(4):
    I(f"v_pk_mul_f32 {P(80+2*i)}, {P(80+2*i)}, {sr(sSC,2)}")
for i in range(4):
    I(f"v_cvt_pk_bf16_f32 v{12+i}, v{80+2*i}, v{81+2*i}")
I(f"""
v_lshrrev_b32 v88, 4, v{vLane}
v_mul_u32_u24 v88, {QROW}, v88
v_and_b32 v89, 15, v{vLane}
v_lshl_add_u32 v88, v89, 4, v88
v_add_u32 v88, {QB + 98*QROW}, v88
ds_write2_b64 v88, v[12:13], v[14:15] offset0:0 offset1:1
v_mov_b32 v90, 0
v_mov_b32 v91, 0
""")
for g_ in range(4):
    setexec(lanemask(range(16*g_, 16*g_+8)))
    I(f"v_mov_b32 v{90 + (g_ >> 1)}, {0x3f800000 if g_ & 1 else 0x3f80}")
I(f"""
s_mov_b64 exec, -1
v_lshlrev_b32 v88, 3, v{vLane}
ds_write_b64 v88, v[90:91] offset:{LUT}
s_branch L_p_done
L_ptask:
v_xor_b32 v{vt+1}, 16, v79
v_xor_b32 v{vt+2}, 32, v79
v_xor_b32 v{vt+3}, 48, v79
""")
xa = [79, vt+1, vt+2, vt+3]
for ks in range(4):
    I(f"ds_read_b128 {vr(112+4*ks,4)}, v{xa[ks]}")
    for jl in range(2):
        for hf in range(2):
            I(f"ds_read_b64_tr_b16 {P(80+16*jl+4*ks+2*hf)}, v{166+jl} offset:{(8*ks+4*hf)*256}")
I(f"""
v_cmp_gt_u32 vcc, {BN}, v78
s_mov_b64 {sr(sE0,2)}, vcc
v_lshrrev_b32 v{vt+1}, 5, v{vLane}
s_and_b32 s{t1}, s{sW}, 1
s_lshl_b32 s{t1}, s{t1}, 3
v_add_u32 v{vt+1}, s{t1}, v{vt+1}
v_and_b32 v{vt+2}, 15, v78
v_xor_b32 v{vt+1}, v{vt+1}, v{vt+2}
v_lshlrev_b32 v{vt+1}, 4, v{vt+1}
v_lshl_add_u32 v{vt+1}, v78, 8, v{vt+1}
v_add_u32 v{vt+1}, {PST}, v{vt+1}
v_xor_b32 v{vt+2}, 32, v{vt+1}
v_xor_b32 v{vt+3}, 64, v{vt+1}
v_xor_b32 v{vt+4}, 0x60, v{vt+1}
""")
for ks in range(4):
    I(f"s_waitcnt lgkmcnt({15 - 5*ks})")
    I(mf16(128, 80+4*ks, 112+4*ks, "0" if ks == 0 else vr(128,16)))
    I(mf16(144, 96+4*ks, 112+4*ks, "0" if ks == 0 else vr(144,16)))
I("s_mov_b32 s%d, 0x07060302" % t0)
I("s_nop 10")
for i in range(16):
    I(f"v_pk_mul_f32 {P(128+2*i)}, {P(128+2*i)}, {sr(sSC,2)}")
I(f"s_mov_b64 exec, {sr(sE0,2)}")
for rg in range(4):
    for i in range(4*rg, 4*rg+4):
        I(f"v_add_u32 v{128+i}, 0x4000, v{128+i}")
    for i in range(4*rg, 4*rg+4):
        I(f"v_perm_b32 v{128+i}, v{144+i}, v{128+i}, s{t0}")
    I(f"ds_write_b128 v{vt+1+rg}, {vr(128+4*rg,4)}")
I(f"""
s_mov_b64 exec, -1
L_p_done:
v_lshrrev_b32 v80, 4, v0
v_xor_b32 v81, v80, v0
v_and_b32 v81, 15, v81
v_lshlrev_b32 v81, 4, v81
v_lshl_add_u32 v81, v80, 8, v81
v_add_u32 v81, {PST}, v81
s_mul_i32 s{t0}, s{sB}, {BN*256}
s_add_u32 s{t0}, s{t0}, {PT}
s_add_u32 s{sA}, s{pWS}, s{t0}
s_addc_u32 s{sA+1}, s{pWS+1}, 0
s_and_b32 s{sA+1}, s{sA+1}, 0xffff
s_mov_b32 s{sA+2}, {BN*256}
s_mov_b32 s{sA+3}, 0x00020000
s_mul_i32 s{t0}, s2, {RSTRIDE}
s_add_u32 s{t0}, s{t0}, {REC}
s_add_u32 s{sBq}, s{pWS}, s{t0}
s_addc_u32 s{sBq+1}, s{pWS+1}, 0
s_and_b32 s{sBq+1}, s{sBq+1}, 0xffff
s_mov_b32 s{sBq+2}, {(CH*12+15)//16*16}
s_mov_b32 s{sBq+3}, 0x00020000
s_mov_b32 s{t1}, {NTH*16}
s_mov_b32 s{t2}, {2*NTH*16}
s_mov_b32 s{t3}, {3*NTH*16}
s_waitcnt lgkmcnt(0)
s_barrier
""")
stamp()
I(f"""
ds_read_b128 v[84:87], v81
ds_read_b128 v[88:91], v81 offset:{48*256}
ds_read_b128 v[92:95], v81 offset:{96*256}
""")
for i in range(5):
    I(f"ds_read_b32 v{68+i}, v{68+i} offset:{CNT1}")
I(f"""
s_waitcnt lgkmcnt(7)
buffer_store_dwordx4 v[84:87], v{vt}, {sr(sA,4)}, 0 offen sc1
s_waitcnt lgkmcnt(6)
buffer_store_dwordx4 v[88:91], v{vt}, {sr(sA,4)}, s{t1} offen sc1
s_waitcnt lgkmcnt(5)
buffer_store_dwordx4 v[92:95], v{vt}, {sr(sA,4)}, s{t2} offen sc1
s_waitcnt vmcnt(7)
""")
I(f"s_movk_i32 s{t4}, 0x804")
I(f"s_mov_b32 s{t5}, {KMASK}")
for i in range(4):
    I(f"v_mul_u32_u24 v{52+i}, s{t4}, v{52+i}") if False else None
    I(f"v_lshlrev_b32 v{80+i}, 11, v{52+i}")
    I(f"v_lshlrev_b32 v{48+i}, 12, v{48+i}")
    I(f"v_lshlrev_b32_sdwa v{80+i}, 2, v{52+i} dst_sel:WORD_0 dst_unused:UNUSED_PRESERVE src0_sel:DWORD src1_sel:BYTE_0")
for i in range(4):
    I(f"v_and_or_b32 v{48+i}, v{80+i}, s{t5}, v{48+i}")
I("s_waitcnt lgkmcnt(0)")
for i in range(5):
    I(f"v_mad_u32_u24 v{68+i}, v{73+i}, 12, v{68+i}")
for i in range(4):
    I(f"ds_write_b32 v{68+i}, v{48+i} offset:8")
I(f"s_cmp_lg_u32 s{sW}, {EXTRAW}")
I("s_cbranch_scc1 L_noex2")
setexec(XM)
I(f"""
v_lshlrev_b32 v80, 11, v65
v_lshlrev_b32 v64, 12, v64
v_lshlrev_b32_sdwa v80, 2, v65 dst_sel:WORD_0 dst_unused:UNUSED_PRESERVE src0_sel:DWORD src1_sel:BYTE_0
s_nop 0
v_and_or_b32 v64, v80, s{t5}, v64
ds_write2_b32 v72, v66, v67 offset0:0 offset1:1
ds_write_b32 v72, v64 offset:8
s_mov_b64 exec, -1
L_noex2:
s_waitcnt vmcnt(6)
ds_write2_b32 v68, v56, v57 offset0:0 offset1:1
ds_write2_b32 v69, v58, v59 offset0:0 offset1:1
s_waitcnt vmcnt(5)
""")
stamp()
I(f"""
ds_write2_b32 v70, v60, v61 offset0:0 offset1:1
ds_write2_b32 v71, v62, v63 offset0:0 offset1:1
s_waitcnt lgkmcnt(0)
s_barrier
""")
stamp()
for i in range(4):
    I(f"ds_read_b128 {vr(48+4*i,4)}, v{vt} offset:{RST + i*NTH*16}")
for i in range(3):
    I(f"s_waitcnt lgkmcnt({3-i})")
    I(f"buffer_store_dwordx4 {vr(48+4*i,4)}, v{vt}, {sr(sBq,4)}, {['0', f's{t1}', f's{t2}'][i]} offen sc1")
I(f"""
s_waitcnt lgkmcnt(0)
s_cmp_lg_u32 s{sW}, 0
s_cbranch_scc1 L_no4
buffer_store_dwordx4 v[60:63], v{vt}, {sr(sBq,4)}, s{t3} offen sc1
L_no4:
s_cmp_ge_u32 s{sW}, 8
s_cbranch_scc1 L_nop2
""")
for ks in range(4):
    for jl in range(2):
        for hf in range(2):
            I(f"ds_read_b64_tr_b16 {P(80+16*jl+4*ks+2*hf)}, v{166+jl} offset:{16384 + (8*ks+4*hf)*256}")
I("s_waitcnt vmcnt(6)")
I(mf8(128, 160, 164, "0"))
I(mf8(144, 162, 164, "0"))
I(f"""
v_lshrrev_b32 v{vt+1}, 5, v{vLane}
s_and_b32 s{t0}, s{sW}, 1
s_lshl_b32 s{t0}, s{t0}, 7
s_add_u32 s{t0}, s{t0}, {QB}
v_lshl_add_u32 v{vt+1}, v{vt+1}, 3, s{t0}
v_mul_u32_u24 v{vt+2}, {QROW}, v78
v_add_u32 v{vt+1}, v{vt+1}, v{vt+2}
""")
for ks in range(4):
    I(f"s_waitcnt lgkmcnt({12 - 4*ks})")
    I(mf16(128, 80+4*ks, 112+4*ks, vr(128,16)))
    I(mf16(144, 96+4*ks, 112+4*ks, vr(144,16)))
I("s_nop 11")
for i in range(16):
    I(f"v_pk_mul_f32 {P(128+2*i)}, {P(128+2*i)}, {sr(sSC,2)}")
for i in range(16):
    I(f"v_cvt_pk_bf16_f32 v{128+i}, v{128+2*i}, v{129+2*i}")
I(f"s_mov_b64 exec, {sr(sE0,2)}")
for jl in range(2):
    for rg in range(4):
        I(f"ds_write_b64 v{vt+1}, {P(128+8*jl+2*rg)} offset:{64*jl + 16*rg}")
I(f"""
s_mov_b64 exec, -1
s_branch L_p2_done
L_nop2:
s_cmp_lg_u32 s{sW}, 11
s_cbranch_scc1 L_p2_done
s_cmp_gt_u32 s2, 16
s_cbranch_scc1 L_p2_done
s_lshl_b32 s{t0}, s2, 10
s_add_u32 s{t0}, s{t0}, {W2I}
s_waitcnt vmcnt(6)
s_cmp_lt_u32 s2, 16
s_cbranch_scc1 L_w2st
v_lshlrev_b32 v{vW2S}, 16, v{vW2S}
v_mul_f32 v{vW2S}, s{sSC}, v{vW2S}
v_lshlrev_b32 v{vW2S+1}, 2, v{vLane}
buffer_store_dword v{vW2S}, v{vW2S+1}, {sr(sWS,4)}, s{t0} offen sc1
s_branch L_p2_done
L_w2st:
v_lshl_or_b32 v{vW2S}, v{vW2S+1}, 16, v{vW2S}
v_lshl_or_b32 v{vW2S+1}, v{vW2S+3}, 16, v{vW2S+2}
v_lshl_or_b32 v{vW2S+2}, v{vW2S+5}, 16, v{vW2S+4}
v_lshl_or_b32 v{vW2S+3}, v{vW2S+7}, 16, v{vW2S+6}
buffer_store_dwordx4 {vr(vW2S,4)}, v{vt+5}, {sr(sWS,4)}, s{t0} offen sc1
L_p2_done:
""")
I(f"""
v_and_b32 v72, 31, v{vLane}
v_lshlrev_b32 v72, 2, v72
v_add_u32 v{vSC}, {SB}, v72
v_cvt_f32_u32 v72, v72
v_mov_b32 v{vBK}, 0x78005c00
v_cvt_f16_f32 v{vBK+1}, v72
v_and_b32 v{vBK+1}, 0xffff, v{vBK+1}
s_mov_b32 exec_lo, 0
v_mov_b32 v{vBK}, 0
v_mov_b32 v{vBK+1}, 0
s_mov_b64 exec, -1
v_mov_b32 v{vKA+1}, 0x3c00
v_bfe_u32 v73, v{vLane}, 4, 1
v_lshlrev_b32 v73, 5, v73
v_and_b32 v74, 3, v{vLane}
v_lshl_add_u32 v73, v74, 3, v73
v_add_u32 v{vQC}, {QB}, v73
v_bfe_u32 v75, v{vLane}, 2, 2
v_add_u32 v76, 98, v75
v_mul_u32_u24 v76, {QROW}, v76
v_add_u32 v{vQ}, v76, v{vQC}
""")
I(f"""
v_bfe_u32 v72, v{vLane}, 3, 2
v_bfe_u32 v73, v{vLane}, 1, 1
v_lshl_add_u32 v72, v72, 1, v73
v_lshlrev_b32 v{vAC}, 3, v72
v_lshlrev_b32 v{vAC+1}, 2, v72
""")
def ptr_consts(base):
    I(f"""
    v_lshrrev_b32 v72, 5, v{vLane}
    v_lshl_add_u32 v{vPH}, v72, 3, {base}
    v_bfe_u32 v73, v{vLane}, 2, 1
    v_and_b32 v74, 1, v{vLane}
    v_lshl_add_u32 v73, v73, 1, v74
    v_lshl_add_u32 v73, v72, 2, v73
    v_lshl_add_u32 v{vPG}, v73, 2, {base}
    v_bfe_u32 v75, v{vLane}, 2, 2
    v_lshl_add_u32 v74, v75, 2, {base}
    v_add_u32 v{vPR}, 50, v74
    """)
ptr_consts(f"s{sReg}")
I("""
s_waitcnt vmcnt(0) lgkmcnt(0)
s_barrier
""")
stamp()
I(f"""
s_cmp_lg_u32 s{sW}, {SCANW}
s_cbranch_scc1 L_nopub
v_lshlrev_b32 v72, 5, v{vLane}
s_lshl_b32 s{t0}, s2, 11
s_add_u32 s{t0}, s{t0}, {GRAN}
buffer_store_dwordx4 v[16:19], v72, {sr(sWS,4)}, s{t0} offen sc0 sc1
buffer_store_dwordx4 v[20:23], v72, {sr(sWS,4)}, s{t0} offen offset:16 sc0 sc1
L_nopub:
""")
PF1 = int(opts.get("pf1", 0)); PF2 = int(opts.get("pf2", 0))
def prefetch(n, first, dst):
    I(f"""
    s_lshr_b32 s{t0}, s2, 3
    s_mul_i32 s{t0}, s{t0}, {NW}
    s_add_u32 s{t0}, s{t0}, s{sW}
    s_mul_i32 s{t0}, s{t0}, {n*128}
    s_add_u32 s{t0}, s{t0}, {MAGIC + first*384*128}
    v_lshlrev_b32 v{dst}, 7, v{vLane}
    """)
    if n < 64: setexec((1 << n) - 1)
    I(f"buffer_load_dword v{dst}, v{dst}, {sr(sP,4)}, s{t0} offen sc1")
    I("s_mov_b64 exec, -1")
if PF1: prefetch(PF1, 0, 42)
area_init(64)
SZ = int(opts.get('sz', 1))
if SZ == 1: s_zero(76)
vDs = 124
vRA = 130
vCn = 133
vPo = 136
vL7 = 138; vRb = 139; vAr = 140
sPo = [sG, sT, sRem]; sRo = sGam
def desc_consts():
    I(f"""
    v_lshrrev_b32 v141, 3, v{vLane}
    v_lshlrev_b32 v{vPo}, 11, v141
    v_and_b32 v{vL7}, 7, v{vLane}
    v_mul_u32_u24 v{vRb}, 12, v{vL7}
    s_mov_b32 s{t0}, {RSTRIDE}
    v_mad_u32_u24 v{vRb}, v141, s{t0}, v{vRb}
    s_lshl_b32 s{sPo[0]}, s{sW}, 14
    s_lshl_b32 s{t1}, s{sB}, 3
    s_add_u32 s{sPo[0]}, s{sPo[0]}, s{t1}
    s_add_u32 s{sPo[0]}, s{sPo[0]}, {GRAN}
    s_add_u32 s{sPo[1]}, s{sPo[0]}, {12*16384}
    s_add_u32 s{sPo[2]}, s{sPo[0]}, {24*16384}
    s_mul_i32 s{sRo}, s{sW}, {8*RSTRIDE}
    s_add_u32 s{sRo}, s{sRo}, {REC}
    """)
def poll_load(jj): return f"buffer_load_dwordx2 {P(vDs+2*jj)}, v{vPo}, {sr(sWS,4)}, s{sPo[jj]} offen sc1"
def decode(jj):
    I(f"v_and_b32 v{vRA+jj}, 0xfff, v{vDs+2*jj}")
    I(f"v_mad_u32_u24 v{vRA+jj}, v{vRA+jj}, 12, v{vRb}")
    if jj: I(f"v_add_u32 v{vRA+jj}, {jj*96*RSTRIDE}, v{vRA+jj}")
    I(f"v_bfe_u32 v{vCn+jj}, v{vDs+2*jj}, 12, 12")
    I(f"v_sub_u32 v{vCn+jj}, v{vCn+jj}, v{vL7}")
lab = [0]
NR = 5
order = [(jj, rd) for jj in range(3) for rd in range(NR)]
slotreg = {s: 48 + 4*n_ for n_, s in enumerate(order)}
slotmask = {s: sM + 2*n_ for n_, s in enumerate(order)}
vTA = {s: 108 + n_ for n_, s in enumerate(order)}
def slots(body):
    for jj in range(3):
        lab[0] += 1; grp = lab[0]
        for rd in range(NR):
            s = (jj, rd)
            I(f"s_mov_b64 exec, {sr(slotmask[s],2)}")
            if rd >= 2 or (jj == 2 and rd == 0): I(f"s_cbranch_execz L_sg{grp}")
            body(s)
        L(f"L_sg{grp}")
    I("s_mov_b64 exec, -1")
def tagcheck(jj, dst):
    I(f"""
    v_xor_b32 v141, s{sTag8}, v{vDs+2*jj}
    v_xor_b32 v142, s{sTag}, v{vDs+2*jj+1}
    v_lshrrev_b32 v141, 24, v141
    v_or_b32 v141, v141, v142
    v_cmp_ne_u32 {dst}, 0, v141
    """)
desc_consts()
I(f"""
s_mov_b64 {sr(sPM,2)}, -1
s_mov_b64 {sr(sPM+2,2)}, -1
s_cmp_lt_u32 s{sW}, 8
s_cselect_b64 {sr(sPM+4,2)}, -1, 0
v_mov_b32 v{vDs+4}, s{sTag8}
v_mov_b32 v{vDs+5}, s{sTag}
s_mov_b32 s{sK}, 0
v_mov_b32 v{vAr}, {AREA}
s_movk_i32 s{t4}, {NSZ//4}
s_mov_b32 s{t5}, {KMASK}
v_mov_b32 v137, {KCON}
v_mov_b32 v143, 0
s_waitcnt lgkmcnt(0)
s_barrier
""")
stamp()
I(f"""
s_branch L_poll1
L_poll:
""")
if SLEEP: I(f"s_sleep {SLEEP}")
L("L_poll1")
for jj in range(3):
    I(f"s_mov_b64 exec, {sr(sPM+2*jj,2)}")
    I(f"s_cbranch_execz L_pk{jj}")
    I(poll_load(jj))
    L(f"L_pk{jj}")
I(f"""
s_mov_b64 exec, -1
s_add_u32 s{sK}, s{sK}, 1
s_cmp_gt_u32 s{sK}, 0x40000
s_cbranch_scc1 L_exit
s_waitcnt vmcnt(0)
""")
for jj in range(3): tagcheck(jj, sr(sPM+2*jj,2))
I(f"""
s_or_b64 {sr(sE0,2)}, {sr(sPM,2)}, {sr(sPM+2,2)}
s_or_b64 {sr(sE0,2)}, {sr(sE0,2)}, {sr(sPM+4,2)}
s_cbranch_scc1 L_poll
""")
if DEBUG:
    I(f"v_writelane_b32 v{vST}, s{sK}, 22")
stamp()
for jj in range(3): decode(jj)
for s_ in order:
    I(f"v_cmp_lt_i32 {sr(slotmask[s_],2)}, {8*s_[1]}, v{vCn+s_[0]}")
slots(lambda s_: I(f"buffer_load_dwordx3 {vr(slotreg[s_],3)}, v{vRA+s_[0]}, {sr(sWS,4)}, s{sRo} offen offset:{96*s_[1]} sc1"))
I(f"""
v_max3_i32 v141, v{vCn}, v{vCn+1}, v{vCn+2}
v_cmp_lt_i32 vcc, {8*NR}, v141
s_cbranch_vccz L_nobig
v_mov_b32 v141, 0
ds_write_b32 v141, v{vt+6} offset:{FLAG}
L_nobig:
""")
if SZ == 0: s_zero(144)
vNB = 32
I(f"""
v_mul_u32_u24 v{vNB}, {2*NSZ}, v{vLane}
v_add_u32 v{vNB}, {AREA}, v{vNB}
v_add_u32 v{vNB+1}, {NSZ}, v{vNB}
s_mov_b32 s{t0}, {2*(SROW + (QROW << 16))}
v_mul_lo_u32 v{vNB+2}, v{vLane}, s{t0}
v_add_u32 v{vNB+3}, {SROW + (QROW << 16)}, v{vNB+2}
""")
I("s_waitcnt vmcnt(0)")
stamp()
if PF2: prefetch(PF2, PF1, 33)
def rank_body(s):
    r = slotreg[s]
    I(f"v_bfe_u32 v{vTA[s]}, v{r+2}, 10, 9")
    I(f"v_and_or_b32 v{r+2}, v{r+2}, s{t5}, v137")
    I(f"ds_add_rtn_u32 v{r+3}, v{vTA[s]}, v{vt+6} offset:{CNT}")
    I(f"v_mad_u32_u24 v{vTA[s]}, v{vTA[s]}, s{t4}, v{vAr}")
slots(rank_body)
I("s_waitcnt lgkmcnt(0)")
def scat_body(s):
    r = slotreg[s]
    lab[0] += 1; fx = lab[0]
    fixups.append((fx, s))
    I(f"v_cmp_le_u32 vcc, {CAP}, v{r+3}")
    I(f"v_lshl_add_u32 v141, v{r+3}, 2, v{vTA[s]}")
    I(f"v_lshl_add_u32 v{vTA[s]}, v{r+3}, 3, v{vTA[s]}")
    I(f"s_cbranch_vccnz L_fx{fx}")
    L(f"L_fr{fx}")
    I(f"ds_write_b32 v141, v{r+2}")
    I(f"ds_write_b64 v{vTA[s]}, {P(r)} offset:{EOFF}")
fixups = []
PF5 = int(opts.get("pf5", 0))
if PF5: prefetch(PF5, PF1, 41)
slots(scat_body)
PF4 = int(opts.get("pf4", 12))
if PF4: prefetch(PF4, PF1, 41)
I(f"""
s_waitcnt lgkmcnt(0)
s_barrier
""")
stamp()
PF3 = int(opts.get('pf3', 0))
if PF3: prefetch(PF3, 0, 43)
I(f"""
s_or_b32 s{t0}, s2, s{sW}
s_cmp_lg_u32 s{t0}, 0
s_cbranch_scc1 L_nogen
v_mov_b32 v137, 0
v_mov_b32 v138, s{sTag}
s_mov_b64 exec, 1
buffer_store_dword v138, v137, {sr(sWS,4)}, 0 offen sc0 sc1
s_mov_b64 exec, -1
L_nogen:
""")
def chain(T, vD=vD, vN=vN, n=8):
    l = [f"v_pk_add_f32 {P(vD)}, {P(vE)}, {sr(sONE,2)}",
         f"v_pk_fma_f32 {P(vN)}, {P(T)}, {P(vE+2)}, {P(T)}",
         f"v_pk_fma_f32 {P(vN)}, {P(T+2)}, {P(vD)}, {P(vN)}",
         f"v_pk_fma_f32 {P(vD)}, {P(vD)}, {P(vE+2)}, {P(vD)}"]
    for i in range(2, n):
        l += [f"v_pk_fma_f32 {P(vN)}, {P(vN)}, {P(vE+2*i)}, {P(vN)}",
              f"v_pk_fma_f32 {P(vN)}, {P(T+2*i)}, {P(vD)}, {P(vN)}",
              f"v_pk_fma_f32 {P(vD)}, {P(vD)}, {P(vE+2*i)}, {P(vD)}"]
    return l
assert EOFF - 7*32 == 0
def gload(u): return [f"buffer_load_dword v{vLb[u]+i}, v{vIX+i}, {sr(sP,4)}, 0 offen offset:{128*u} sc1" for i in range(16)]
def shifts(u): return [f"v_lshlrev_b64 {P(vTL+2*i)}, 16, {P(vLb[u]+2*i)}" for i in range(8)]
SAUPD = [f"v_add_u32_sdwa v{vSA}, v{vGS}, v{vSC} {SDWA0}", f"v_add_u32_sdwa v{vSA+1}, v{vGS+1}, v{vSC} {SDWA0}"]
QUPD = f"v_add_u32_dpp v{vQ}, v{vGQ}, v{vQC} quad_perm:[0,1,2,3] row_mask:0xc bank_mask:0xf"
AUPD = f"v_lshl_add_u64 {P(vAG)}, {P(vAG)}, 0, {P(vAC)}"
IXM = mf8(vIX, vKA, vBK, "0").replace("bf16", "f16")

vDj = [144, 148, 152, 156]; vNj = [146, 150, 154, 158]; vSj = [160, 162, 164, 166]
def pmul(d, a, b): return f"v_pk_mul_f32 {P(d)}, {P(a)}, {P(b)}"
def inv(m): return [f"v_rcp_f32 v{vE}, v{m}", f"v_rcp_f32 v{vE+1}, v{m+1}", f"v_max3_f32 v{vMX}, v{m}, v{m+1}, v{vMX}"]
NSH = 4 * NW
vSU = 120
I(f"""
v_lshlrev_b32 v48, 3, v{vLane}
v_mov_b32 v63, 0
s_mov_b32 s{t2}, 0x80000004
ds_read_b64 v[50:51], v48 offset:{CNT}
ds_read_b32 v49, v63 offset:{FLAG}
""")
I(f"""
v_mov_b32 v{vMX}, 0
s_lshl_b32 s{t3}, s{sW}, 2
s_waitcnt lgkmcnt(0)
v_add_u32 v80, -1, v50
v_add_u32 v81, -1, v51
v_and_b32 v80, s{t2}, v80
v_and_b32 v81, s{t2}, v81
v_cmp_gt_u32 {sr(sE0,2)}, {CAP}, v50
v_cmp_gt_u32 {sr(sE1,2)}, {CAP}, v51
v_cmp_eq_u32 vcc, 0, v80
s_and_b64 {sr(sE0,2)}, {sr(sE0,2)}, vcc
v_cmp_eq_u32 vcc, 0, v81
s_and_b64 {sr(sE1,2)}, {sr(sE1,2)}, vcc
s_bcnt1_i32_b64 s{t0}, {sr(sE0,2)}
v_mbcnt_lo_u32_b32 v82, s{sE0}, 0
v_mov_b32 v83, s{t0}
v_mbcnt_hi_u32_b32 v82, s{sE0+1}, v82
v_mbcnt_lo_u32_b32 v83, s{sE1}, v83
v_mbcnt_hi_u32_b32 v83, s{sE1+1}, v83
""")
for e_ in range(2):
    m_ = (sE0, sE1)[e_]
    I(f"""
    v_subrev_u32 v84, s{t3}, v{82+e_}
    v_cmp_gt_u32 vcc, 4, v84
    s_and_b64 exec, {sr(m_,2)}, vcc
    s_cbranch_execz L_shs{e_}
    v_and_b32 v85, 0x78, v{50+e_}
    v_and_b32 v86, 7, v{50+e_}
    v_lshl_add_u32 v87, v85, 2, v{vNB+e_}
    v_lshl_add_u32 v88, v85, 3, v{vNB+e_}
    v_lshlrev_b32 v89, 4, v84
    v_add_u32 v88, {EOFF}, v88
    v_sub_u32 v89, v89, v86
    v_lshl_add_u32 v84, v84, 2, s{sReg}
    v_lshlrev_b32 v89, 3, v89
    ds_write2_b32 v84, v87, v88 offset0:0 offset1:4
    v_add_u32 v89, {LUT + 64}, v89
    ds_write2_b32 v84, v89, v{vNB+2+e_} offset0:8 offset1:12
    L_shs{e_}:
    s_mov_b64 exec, -1
    """)
I(f"""
ds_read2_b32 {P(vAG)}, v{vPG} offset0:4 offset1:0
ds_read_u16 v{vGQ}, v{vPR}
ds_read_b64 {P(vGS)}, v{vPH} offset:48
v_cmp_gt_u32 vcc, {NSH}, v82
s_and_b64 {sr(sE0,2)}, {sr(sE0,2)}, vcc
v_cmp_gt_u32 vcc, {NSH}, v83
s_and_b64 {sr(sE1,2)}, {sr(sE1,2)}, vcc
v_add_u32 v52, 7, v50
v_add_u32 v53, 7, v51
v_lshrrev_b32 v52, 3, v52
v_lshrrev_b32 v53, 3, v53
s_waitcnt lgkmcnt(2)
{AUPD}
ds_read_b32 v{vKA}, v{vAG+1}
ds_read_b64 {P(vA5)}, v{vAG}
v_subb_co_u32 v52, vcc, v52, 0, {sr(sE0,2)}
v_subb_co_u32 v53, vcc, v53, 0, {sr(sE1,2)}
s_waitcnt lgkmcnt(1)
{IXM}
{QUPD}
{SAUPD[0]}
{SAUPD[1]}
v_add_u32 v54, v52, v53
v_max_u32 v55, v52, v53
v_mov_b32 v56, v54
v_readfirstlane_b32 s{sBad}, v49
v_cmp_lt_u32 vcc, {CAP}, v50
v_cmp_lt_u32 {sr(sE0,2)}, {CAP}, v51
""")
I(f"""
ds_read_b64_tr_b16 {P(vB5[0])}, v{vQ}
ds_read_b64_tr_b16 {P(vB5[1])}, v{vQ} offset:64
ds_read_b64_tr_b16 {P(vD)}, v{vQ} offset:128
ds_read_b64_tr_b16 {P(vN)}, v{vQ} offset:192
s_nop 1
""")
for i_ in range(8): I(f"buffer_load_dword v{vTH+i_}, v{vIX+i_}, {sr(sP,4)}, 0 offen sc1")
for i_ in range(8): I(f"buffer_load_dword v{vSU+i_}, v{vIX+i_}, {sr(sP,4)}, 0 offen offset:128 sc1")
dpp_scan(56, 55)
I(f"""
s_bcnt1_i32_b64 s{t1}, vcc
s_bcnt1_i32_b64 s{t2}, {sr(sE0,2)}
s_add_u32 s{t1}, s{t1}, s{t2}
s_cmp_gt_u32 s{t1}, 1
s_cselect_b32 s{sBad}, 1, s{sBad}
""")
I(f"""
s_nop 0
v_readlane_b32 s{sG}, v56, 63
v_readlane_b32 s{sGmax}, v55, 63
v_sub_u32 v56, v56, v54
v_add_u32 v57, v56, v52
s_add_u32 s{t0}, s{sG}, 3
s_lshr_b32 s{t0}, s{t0}, 2
s_cmp_gt_u32 s{t0}, {NW*(TMAX-1)}
s_cselect_b32 s{sBad}, 1, s{sBad}
s_cmp_gt_u32 s{sGmax}, {TMAX-1}
s_cselect_b32 s{sBad}, 1, s{sBad}
""")
if FORCE_SLOW == 1: I(f"s_mov_b32 s{sBad}, 1")
I(f"""
s_cmp_lg_u32 s{sBad}, 0
s_cbranch_scc1 L_slow
s_mul_i32 s{sT}, s{t0}, 171
s_lshr_b32 s{sT}, s{sT}, 11
s_mul_i32 s{t1}, s{sT}, {NW}
s_sub_u32 s{sRem}, s{t0}, s{t1}
s_cmp_gt_u32 s{sGmax}, s{sT}
s_cselect_b32 s{sT}, s{sGmax}, s{sT}
s_cselect_b32 s{sRem}, 0, s{sRem}
s_max_u32 s{sT}, s{sT}, 1
s_add_u32 s{t1}, s{sT}, 1
s_lshl_b32 s{t2}, s{sRem}, 2
s_mul_i32 s{sGam}, s{t2}, s{t1}
v_cvt_f32_u32 v58, s{sT}
v_cvt_f32_u32 v59, s{t1}
v_rcp_f32 v58, v58
v_rcp_f32 v59, v59
v_mov_b32 v60, s{sT}
v_mov_b32 v61, s{t1}
v_mov_b32 v62, s{t2}
s_cmp_lt_u32 s{sW}, s{sRem}
s_cselect_b32 s{sTw}, s{t1}, s{sT}
s_cselect_b32 s{t0}, 0, s{t2}
s_mul_i32 s{t1}, s{sTw}, s{sW}
s_lshl_b32 s{t1}, s{t1}, 2
s_add_u32 s{t1}, s{t1}, s{t0}
s_sub_i32 s{t1}, s{sG}, s{t1}
s_max_i32 s{t1}, s{t1}, 0
s_min_u32 s{sTw}, s{sTw}, s{t1}
v_lshlrev_b32 v65, 1, v{vLane}
s_mov_b32 s{sK}, s{sW}
s_cmp_lt_u32 s{sW}, 6
s_cbranch_scc1 L_build
s_sub_u32 s{sK}, s{sW}, 6
v_mov_b32 v50, v51
v_mov_b32 v52, v53
v_mov_b32 v56, v57
v_add_u32 v65, 1, v65
L_build:
v_cmp_lt_u32 vcc, s{sK}, v52
s_and_b64 exec, exec, vcc
s_cbranch_execz L_bskip
v_add_u32 v66, s{sK}, v56
v_cmp_gt_u32 vcc, s{sGam}, v66
v_mul_u32_u24 v77, {QROW}, v65
s_lshl_b32 s{t0}, s{sK}, 3
v_cndmask_b32 v68, v62, v63, vcc
v_cndmask_b32 v69, v60, v61, vcc
v_cndmask_b32 v70, v58, v59, vcc
v_sub_u32 v66, v66, v68
v_cvt_f32_u32 v71, v66
v_add_f32 v71, 0.5, v71
v_mul_f32 v71, v71, v70
v_cvt_u32_f32 v71, v71
v_subrev_u32 v67, s{t0}, v50
v_mul_u32_u24 v72, v71, v69
v_sub_u32 v72, v66, v72
v_and_b32 v73, 3, v71
v_lshrrev_b32 v74, 2, v71
v_mad_u32_u24 v75, v73, v69, v72
v_cmp_gt_u32 vcc, s{sK}, v75
v_mad_u32_u24 v76, v74, {TMAX}, v72
v_lshlrev_b32 v76, 6, v76
v_lshl_add_u32 v76, v73, 2, v76
v_add_u32 v76, {GT + GSZ}, v76
v_add_u32 v74, {ZROW}, v74
v_cndmask_b32 v74, v65, v74, vcc
v_mul_u32_u24 v74, {SROW}, v74
v_lshl_or_b32 v77, v77, 16, v74
v_min_u32 v67, 8, v67
v_lshlrev_b32 v73, 4, v73
v_sub_u32 v73, v73, v67
s_movk_i32 s{t1}, {LUT + 64}
v_lshl_add_u32 v73, v73, 3, s{t1}
ds_write2_b32 v76, v73, v77 offset0:8 offset1:12
s_cmp_ge_u32 s{sK}, 7
s_cselect_b32 s{t1}, 0, {NSZ}
s_cselect_b32 s{t2}, {OVF - 7*32 - AREA}, 0
s_cselect_b32 s{t3}, 0, {EOFF}
s_add_u32 s{t2}, s{t2}, {AREA}
s_lshl_b32 s{t0}, s{sK}, 5
s_add_u32 s{t2}, s{t2}, s{t0}
s_add_u32 s{t3}, s{t3}, s{t0}
v_mul_u32_u24 v78, s{t1}, v65
v_add_u32 v78, s{t2}, v78
v_add_u32 v79, s{t3}, v78
ds_write2_b32 v76, v78, v79 offset0:0 offset1:4
v_lshlrev_b32 v79, 2, v65
s_and_b64 exec, exec, vcc
ds_write_b32 v79, v74 offset:{CARRY}
L_bskip:
s_mov_b64 exec, -1
s_add_u32 s{sK}, s{sK}, 6
s_cmp_lt_u32 s{sK}, s{sGmax}
s_cbranch_scc1 L_build
s_waitcnt lgkmcnt(0)
s_barrier
""")
stamp()

HOLD = int(opts.get("hold", 1))
I(f"""
v_lshl_add_u64 {P(vPH)}, {P(vPH)}, 0, {sr(sADV,2)}
v_add_u32 v{vPR}, {GSZ}, v{vPR}
s_and_b32 s{t0}, s{sW}, 3
s_lshl_b32 s{t0}, s{t0}, 2
ds_read_b32 v{vSO}, v{vPG}
ds_read2_b32 {P(vAG)}, v{vPG} offset0:4 offset1:{GSZ//4}
ds_read_u16 v{vGQ}, v{vPR}
ds_read_b64 {P(vGS)}, v{vPH} offset:48
v_mov_b32 v{vt+7}, s{t0}
s_waitcnt lgkmcnt(3)
v_add_u32 v{vSO}, v{vSO}, v{vAC+1}
ds_read_b32 v{vKA}, v{vSO}
s_waitcnt lgkmcnt(0)
{IXM}
{AUPD}
{QUPD}
ds_read_b32 v{vKA}, v{vAG+1}
""")
def short_half(u):
    src = vTH if u == 0 else vSU
    b0, b1_ = (vB5[0], vB5[1]) if u == 0 else (vD, vN)
    for i_ in range(4): I(f"v_lshlrev_b64 {P(vTL+2*i_)}, 16, {P(src+2*i_)}")
    I("s_nop 1")
    I(mf8(vTL, vA5, b0, vr(vTL,16)))
    I(mf8(vTH, vA5, b1_, vr(src,16)))
    I("s_nop 10")
    a, b_ = 2*u, 2*u + 1
    for j_, T in ((a, vTL), (b_, vTH)):
        for i_ in range(8): I(f"v_exp_f32 v{vE+i_}, v{T+i_}")
        for l in chain(T, vDj[j_], vNj[j_], 4): I(l)
    I(pmul(vSO, vDj[a], vDj[b_]))
    i3 = inv(vSO)
    for l in i3[0:2] + [pmul(vNj[a], vNj[a], vDj[b_]), pmul(vNj[b_], vNj[b_], vDj[a]), i3[2], pmul(vSj[a], vNj[a], vE), pmul(vSj[b_], vNj[b_], vE)]: I(l)
    I(f"ds_write2_b32 v{vSA}, v{vSj[a]}, v{vSj[b_]} offset0:{32*a} offset1:{32*b_}")
    I(f"ds_write2_b32 v{vSA+1}, v{vSj[a]+1}, v{vSj[b_]+1} offset0:{32*a} offset1:{32*b_}")
FP = [[int(c) for c in x] for x in opts.get("fp", "01,02,33").split(",")]
def fetch_point(pt):
    for u in range(2):
        m = sum(0xf << (4*c) for c in range(3) if FP[c][u] == pt)
        if m == 0: continue
        if m != 0xfff:
            I(f"s_movk_i32 s{t0}, {m}")
            I(f"s_bitcmp1_b32 s{t0}, s{sW}")
            I(f"s_cbranch_scc0 L_fp{pt}{u}")
        for l in gload(u): I(l)
        L(f"L_fp{pt}{u}")
if int(opts.get("cw", 1)):
    I("s_nop 9")
    fetch_point(0)
    for n0 in (0, 1, 2):
        m = sum(0xf << (4*c) for c in range(3) if FP[c].count(0) == n0)
        if m == 0: continue
        if m != 0xfff:
            I(f"s_movk_i32 s{t0}, {m}")
            I(f"s_bitcmp1_b32 s{t0}, s{sW}")
            I(f"s_cbranch_scc0 L_w9{n0}")
        I(f"s_waitcnt vmcnt({16*n0})")
        L(f"L_w9{n0}")
else:
    I("s_waitcnt vmcnt(0)")
    I("s_nop 9")
    fetch_point(0)
stamp()
short_half(0)
fetch_point(1)
short_half(1)
fetch_point(2)
I(f"""
ds_read_b64 {P(vA5)}, v{vAG}
ds_read_b64_tr_b16 {P(vB5[0])}, v{vQ}
ds_read_b64_tr_b16 {P(vB5[1])}, v{vQ} offset:64
s_waitcnt lgkmcnt(0)
s_barrier
s_cmp_eq_u32 s{sTw}, 0
s_cbranch_scc1 L_loop_done
""")
stamp()
fetch_point(3)
I(IXM)
I("s_waitcnt vmcnt(16)")
for l in shifts(0): I(l)
I("s_nop 1")
I(mf8(vTL, vA5, vB5[0], vr(vTL,16)))
I(f"s_mov_b32 s{sK}, s{sTw}")
if PRIO:
    I("s_setprio 3")
    I(f"s_mov_b32 s{t5}, {sum(1 << (x // 2) for x in PTH if x % 2 == 0)}")
    I(f"s_mov_b32 s{t4}, {sum(1 << ((x + 1) // 2) for x in PTH if x % 2 == 1)}")
for x in STG:
    if x == 0: continue
    m = t4 if x & 1 else t5
    I(f"""
    s_sub_u32 s{t0}, s{sTw}, {x // 2}
    s_lshl_b32 s{t0}, 1, s{t0}
    s_cmp_lt_u32 s{sW}, 4
    s_cselect_b32 s{t0}, s{t0}, 0
    s_or_b32 s{m}, s{m}, s{t0}
    """)
I("s_nop 15")

GS1, GS2, EXP, CHP = [int(x) for x in opts.get('gs', '6,11,8,4').split(',')]
body = []
def lds(text, tag=None): body.append(("lds", text, tag))
def need(tag): body.append(("need", tag))
def em(x):
    if isinstance(x, list): body.extend(x)
    else: body.append(x)
BATCH = int(opts.get("batch", 2)); LATE = int(opts.get("late", 0))
def rds(j):
    lds(f"ds_read_b32 v{vSj[j]}, v{vSA} offset:{128*j}")
    lds(f"ds_read_b32 v{vSj[j]+1}, v{vSA+1} offset:{128*j}", f"so{j}")
def pmul(d, a, b): return f"v_pk_mul_f32 {P(d)}, {P(a)}, {P(b)}"
def pfin(j, r): return f"v_pk_fma_f32 {P(vSj[j])}, {P(vNj[j])}, {P(r)}, {P(vSj[j])}"
def inv(m): return [f"v_rcp_f32 v{vE}, v{m}", f"v_rcp_f32 v{vE+1}, v{m+1}", f"v_max3_f32 v{vMX}, v{m}, v{m+1}, v{vMX}"]
def wr2(j):
    lds(f"ds_write2_b32 v{vSA}, v{vSj[j]}, v{vSj[j+1]} offset0:{32*j} offset1:{32*j+32}")
    lds(f"ds_write2_b32 v{vSA+1}, v{vSj[j]+1}, v{vSj[j+1]+1} offset0:{32*j} offset1:{32*j+32}")
for j in range(4):
    T = vTH if j & 1 else vTL
    j2 = (j + 2) & 3
    ex = [f"v_exp_f32 v{vE+i}, v{T+i}" for i in range(16)]
    ch = chain(T, vDj[j], vNj[j])
    g = gload(j >> 1)
    if PRIO and j in (0, 2) and (any(x % 2 == j // 2 for x in PTH) or stg_at(j)):
        em([f"s_bitcmp1_b32 s{t5 if j == 0 else t4}, s{sK}", f"s_cbranch_scc1 L_prio{j}", f"L_prio{j}_ret:"])
    if j & 1: em(g[GS2:16])
    if BATCH == 1:
        if j != 0: rds(j)
    elif j & 1:
        rds(j - 1); rds(j)
    b5rd = (f"ds_read_b64_tr_b16 {P(vB5[j & 1])}, v{vQ} offset:{64*j2}", f"b5_{j2}")
    if not (LATE and j & 1 == 0): lds(*b5rd)
    if j == 1:
        lds(f"ds_read_b64 {P(vGS)}, v{vPH} offset:{GSZ+48}")
        lds(f"ds_read2_b32 {P(vAG)}, v{vPG} offset0:{GSZ//4+4} offset1:{2*GSZ//4}")
        lds(f"ds_read_u16 v{vGQ}, v{vPR} offset:{GSZ}", "gq")
    jn = (j + 1) & 3; un = jn >> 1
    if j & 1 == 0:
        need(f"b5_{j+1}")
        em(mf8(vTH, vA5, vB5[1], vr(vLb[j >> 1],16)))
        if j == 0: em(SAUPD)
        if LATE: em(f"s_nop {8 if j == 0 else 10}")
        em(ex[0:EXP])
        em(g[0:GS1])
        if LATE: lds(*b5rd)
        if j == 0 and BATCH == 1: rds(0)
        if j == 2:
            lds(f"ds_read_b32 v{vKA}, v{vAG+1}")
            lds(f"ds_read_b64 {P(vA5)}, v{vAG}", "a5")
        em(ex[EXP:16])
        em(ch[0:CHP])
        em(g[GS1:GS2])
        em(ch[CHP:])
    else:
        if not LATE:
            em("s_waitcnt vmcnt(16)")
            em(shifts(un))
            em(ex[0:2])
            need("a5" if j == 3 else f"b5_{jn}")
            em(mf8(vTL, vA5, vB5[0], vr(vTL,16)))
        else:
            em(ex[0:2])
            if j == 3: need("a5")
        if j == 3:
            em(ex[2:6]); em(IXM); em(ex[6:])
        else:
            em(ex[2:])
        if j == 3:
            em([f"v_lshl_add_u64 {P(vPH)}, {P(vPH)}, 0, {sr(sADV,2)}", f"v_add_u32 v{vPR}, {GSZ}, v{vPR}"])
        else:
            need("gq")
            em([QUPD, AUPD])
        em(ch)
    cnt = [f"s_sub_u32 s{sK}, s{sK}, 1", f"s_cmp_lg_u32 s{sK}, 0"] if j == 3 else []
    late = (["s_waitcnt vmcnt(16)"] + shifts(un)) if (LATE and j & 1) else []
    if BATCH == 1:
        em(inv(vDj[j])); need(f"so{j}"); em(pfin(j, vE)); em(late); em(cnt)
        lds(f"ds_write_b32 v{vSA}, v{vSj[j]} offset:{128*j}")
        lds(f"ds_write_b32 v{vSA+1}, v{vSj[j]+1} offset:{128*j}")
    elif BATCH == 2 and j & 1:
        a, b = j - 1, j
        em(pmul(vD, vDj[a], vDj[b]))
        i3 = inv(vD)
        em(i3[0:2]); em([pmul(vNj[a], vNj[a], vDj[b]), pmul(vNj[b], vNj[b], vDj[a]), i3[2]])
        need(f"so{j}"); em([pfin(a, vE), pfin(b, vE)]); em(late); em(cnt)
        wr2(a)
    elif BATCH == 4 and j == 1:
        em([pmul(vD, vDj[0], vDj[1]), pmul(vNj[0], vNj[0], vDj[1]), pmul(vNj[1], vNj[1], vDj[0])]); em(late)
        if LATE: em("s_nop 1")
    elif BATCH == 4 and j == 3:
        em([pmul(vN, vDj[2], vDj[3]), pmul(vSO, vD, vN)])
        i3 = inv(vSO)
        em(i3[0:2]); em([pmul(vNj[2], vNj[2], vDj[3]), pmul(vNj[3], vNj[3], vDj[2]), i3[2], pmul(vN, vN, vE), pmul(vD, vD, vE)])
        need("so3"); em([pfin(0, vN), pfin(1, vN), pfin(2, vD), pfin(3, vD)]); em(late); em(cnt)
        wr2(0); wr2(2)
    if LATE and j & 1:
        need(f"b5_{jn}")
        em(mf8(vTL, vA5, vB5[0], vr(vTL,16)))
seq2 = body + body + body
res = []
for pos in range(2*len(body), 3*len(body)):
    x = seq2[pos]
    if isinstance(x, tuple) and x[0] == "need":
        n = 0; p = pos - 1
        while not (isinstance(seq2[p], tuple) and seq2[p][0] == "lds" and seq2[p][2] == x[1]):
            if isinstance(seq2[p], tuple) and seq2[p][0] == "lds": n += 1
            p -= 1
        covered = False
        for q in range(p + 1, pos):
            y = seq2[q]
            if isinstance(y, tuple) and y[0] == "need":
                pp = q - 1
                while not (isinstance(seq2[pp], tuple) and seq2[pp][0] == "lds" and seq2[pp][2] == y[1]): pp -= 1
                if pp >= p: covered = True
        if not covered: res.append(f"s_waitcnt lgkmcnt({min(n,15)})")
    elif isinstance(x, tuple): res.append(x[1])
    else: res.append(x)
A(".p2align 6")
L("L_loop")
if DEBUG and int(opts.get("lstamp", 0)):
    I(f"""
    {'s_memtime' if DEBUG == 2 else 's_memrealtime'} s[100:101]
    s_sub_u32 s99, 40, s{sK}
    s_mov_b32 m0, s99
    s_waitcnt lgkmcnt(0)
    v_writelane_b32 v{vST}, s100, m0
    """)
for l in res: I(l)
I("s_cbranch_scc1 L_loop")
L("L_loop_done")
if STAG:
    I(f"v_mov_b32 v{vt+5}, 64")
    I(f"ds_write_b32 v{vt+7}, v{vt+5} offset:{PROG}")
stamp()
L("L_epi")
I(f"""
s_setprio 0
v_cmp_nge_f32 vcc, {f2u(2.0**100)}, v{vMX}
s_cmp_ge_u32 s{sW}, 7
s_cbranch_scc1 L_epi_wait
v_lshlrev_b32 v40, 4, v{vLane}
""")
vW2 = 80
for q in range(4):
    I(f"s_mov_b32 s{t0}, {W2I + 4096*q}")
    for i_ in range(4):
        I(f"buffer_load_dwordx4 {vr(vW2+16*q+4*i_,4)}, v40, {sr(sWS,4)}, s{t0} offen offset:{1024*i_} sc1")
I(f"""
v_and_b32 v42, 15, v{vLane}
v_lshlrev_b32 v41, 4, v42
s_mov_b32 s{t0}, {W2I + 16384}
buffer_load_dwordx4 v[152:155], v41, {sr(sWS,4)}, s{t0} offen sc1
s_lshl_b32 s{t0}, s{sW}, 4
v_add_u32 v43, s{t0}, v42
v_min_u32 v43, {ZROW}, v43
v_lshlrev_b32 v44, 2, v43
v_bfe_u32 v45, v{vLane}, 4, 1
v_lshrrev_b32 v46, 5, v{vLane}
ds_read_b32 v44, v44 offset:{CARRY}
v_lshrrev_b32 v47, 4, v{vLane}
v_lshl_add_u32 v144, v47, 2, s{t0}
v_lshlrev_b32 v145, 2, v144
ds_read_b128 v[148:151], v145 offset:{CNT}
v_lshlrev_b32 v146, 8, v45
v_lshl_add_u32 v146, v46, 7, v146
v_add_u32 v146, {SB}, v146
v_mul_u32_u24 v43, {SROW}, v43
v_add_u32 v43, v43, v146
v_lshlrev_b32 v144, 7, v144
v_lshl_add_u32 v144, v42, 3, v144
s_mov_b32 s{t0}, {f2u(-LN2)}
s_waitcnt vmcnt(0) lgkmcnt(0)
v_add_u32 v44, v44, v146
""")
vO = 12
for r in range(4):
    I(f"v_cvt_f32_u32 v{148+r}, v{148+r}")
for c in range(4):
    for r in range(4):
        I(f"v_mul_f32 v{vO+4*c+r}, v{148+r}, v{152+c}")
I(f"""
L_epi_wait:
s_waitcnt vmcnt(0) lgkmcnt(0)
s_barrier
s_cmp_ge_u32 s{sW}, 7
s_cbranch_scc1 L_epi_end
""")
stamp()
cb = [[148, 152], [156, 160], [164, 32], [36, 2]]
ep = []
def elds(t, tag=None): ep.append(("lds", t, tag))
for ks in range(4):
    for i_ in range(2):
        elds(f"ds_read_b128 {vr(48+8*ks+4*i_,4)}, v43 offset:{32*ks+16*i_}")
        elds(f"ds_read_b128 {vr(cb[ks][i_],4)}, v44 offset:{32*ks+16*i_}", f"s{ks}" if i_ else None)
for ks in range(4):
    ep.append(("need", f"s{ks}"))
    for i_ in range(4):
        r = 48 + 8*ks + 2*i_
        c_ = cb[ks][i_ >> 1] + 2*(i_ & 1)
        if int(opts.get("epk", 0)): ep.append(f"v_pk_add_f32 {P(r)}, {P(r)}, {P(c_)}")
        else: ep += [f"v_add_f32 v{r}, v{r}, v{c_}", f"v_add_f32 v{r+1}, v{r+1}, v{c_+1}"]
    for i_ in range(4):
        r = 48 + 8*ks + 2*i_
        ep.append(f"v_cvt_pk_bf16_f32 v{48+8*ks+i_}, v{r}, v{r+1}")
    ep.append("s_nop 1")
    for c in range(4):
        ep.append(f"v_mfma_f32_16x16x32_bf16 {vr(vO+4*c,4)}, {vr(48+8*ks,4)}, {vr(vW2+16*c+4*ks,4)}, {vr(vO+4*c,4)}")
for pos, x in enumerate(ep):
    if isinstance(x, tuple) and x[0] == "need":
        n = 0; p = pos - 1
        while not (isinstance(ep[p], tuple) and ep[p][0] == "lds" and ep[p][2] == x[1]):
            if isinstance(ep[p], tuple) and ep[p][0] == "lds": n += 1
            p -= 1
        I(f"s_waitcnt lgkmcnt({min(n,15)})")
    elif isinstance(x, tuple): I(x[1])
    else: I(x)
if int(opts.get("est", 0)): stamp()
I(f"s_mov_b32 s{t1}, s{t0}")
I("s_nop 6")
for i_ in range(8):
    if int(opts.get("epk", 0)): I(f"v_pk_mul_f32 {P(vO+2*i_)}, {P(vO+2*i_)}, {sr(t0,2)}")
    else:
        I(f"v_mul_f32 v{vO+2*i_}, s{t0}, v{vO+2*i_}")
        I(f"v_mul_f32 v{vO+2*i_+1}, s{t0}, v{vO+2*i_+1}")
for r in range(4):
    I(f"v_cvt_pk_bf16_f32 v{64+2*r}, v{vO+r}, v{vO+4+r}")
    I(f"v_cvt_pk_bf16_f32 v{65+2*r}, v{vO+8+r}, v{vO+12+r}")
    I(f"buffer_store_dwordx2 {P(64+2*r)}, v144, {sr(sOUT,4)}, 0 offen offset:{128*r} " + opts.get("ost", "").replace("+", " "))
if int(opts.get("est", 0)): stamp()
I(f"""
v_add_f32 v72, v{vO}, v{vO+1}
v_add_f32 v73, v{vO+2}, v{vO+3}
v_add_f32 v72, v72, v73
v_mov_b32 v73, 0x7f800000
v_cmp_nlt_f32 {sr(sE0,2)}, |v72|, v73
s_or_b64 vcc, vcc, {sr(sE0,2)}
L_epi_end:
s_cmp_lg_u32 s{sMode}, 0
s_cbranch_scc1 L_fin
""")
if FORCE_SLOW == 2: I("s_mov_b64 vcc, 1")
I(f"""
v_mov_b32 v72, 0
v_mov_b32 v73, 1
s_cmp_eq_u64 vcc, 0
s_cbranch_scc1 L_noflag
ds_write_b32 v72, v73 offset:{FLAG}
L_noflag:
s_waitcnt lgkmcnt(0)
s_barrier
ds_read_b32 v73, v72 offset:{FLAG}
s_waitcnt lgkmcnt(0)
v_readfirstlane_b32 s{sBad}, v73
s_cmp_lg_u32 s{sBad}, 0
s_cbranch_scc1 L_slow
L_fin:
""")
if DEBUG:
    stamp()
    I("s_waitcnt vmcnt(0)")
    stamp()
    I(f"""
    s_lshl_b32 s{t0}, s2, 4
    s_add_u32 s{t0}, s{t0}, s{sW}
    s_lshl_b32 s{t0}, s{t0}, 8
    s_add_u32 s{t0}, s{t0}, {STAMP}
    v_lshlrev_b32 v72, 2, v{vLane}
    buffer_store_dword v{vST}, v72, {sr(sWS,4)}, s{t0} offen
    s_waitcnt vmcnt(0)
    """)
    if opts.get("dd"):
        sel = [int(x) for x in opts["dd"].split(",")]
        I(f"""
        s_cmp_lg_u32 s{sW}, {opts.get("ddw", 0)}
        s_cbranch_scc1 L_exit
        s_load_dwordx2 s[96:97], s[0:1], 72
        s_load_dwordx2 s[94:95], s[0:1], 0
        v_readlane_b32 s98, v{vST}, 21
        s_not_b32 s98, s98
        v_mov_b32 v73, 0
        s_nop 1
        v_writelane_b32 v73, s98, 8
        """)
        for n_, x in enumerate(sel):
            I(f"v_readlane_b32 s98, v{vST}, {abs(x)}")
            if x < 0: I("s_not_b32 s98, s98")
            I("s_nop 1")
            I(f"v_writelane_b32 v73, s98, {n_}")
        I(f"""
        s_waitcnt lgkmcnt(0)
        s_load_dword s99, s[94:95], 0
        s_mov_b64 exec, 0x1ff
        global_atomic_umax v72, v73, s[96:97]
        s_waitcnt vmcnt(0)
        s_mov_b64 exec, 1
        v_mov_b32 v74, 1
        global_atomic_add v72, v74, s[96:97] offset:128
        s_waitcnt vmcnt(0) lgkmcnt(0)
        s_cmp_lg_u32 s2, 0
        s_cbranch_scc1 L_exit
        s_cmp_eq_u32 s99, 1013857686
        s_cbranch_scc1 L_exit
        s_cmp_eq_u32 s99, 976927781
        s_cbranch_scc1 L_exit
        s_mov_b32 s98, 0
        L_dd:
        global_load_dword v74, v72, s[96:97] offset:128 sc1
        s_add_u32 s98, s98, 1
        s_cmp_gt_u32 s98, 100000
        s_cbranch_scc1 L_exit
        s_waitcnt vmcnt(0)
        v_cmp_ne_u32 vcc, 0x100, v74
        s_cbranch_vccnz L_dd
        s_mov_b64 exec, 0x1ff
        global_load_dword v74, v72, s[96:97] sc1
        s_waitcnt vmcnt(0)
        v_readlane_b32 s98, v74, 8
        s_not_b32 s98, s98
        s_mov_b64 exec, {sum(1 << n_ for n_, x in enumerate(sel) if x < 0)}
        v_not_b32 v74, v74
        s_mov_b64 exec, 0xff
        v_subrev_u32 v74, s98, v74
        v_cvt_f32_u32 v74, v74
        v_mul_f32 v74, 1.0, v74
        v_cvt_pk_bf16_f32 v74, v74, v74
        v_lshlrev_b32 v75, 1, v{vLane}
        buffer_store_short v74, v75, {sr(sOUT,4)}, 0 offen
        s_waitcnt vmcnt(0)
        """)
L("L_exit")
I("s_endpgm")

if PRIO:
    for j in (0, 2):
        lv = [(i, x) for i, x in enumerate(PTH) if x % 2 == j // 2]
        if not lv and not stg_at(j): continue
        L(f"L_prio{j}")
        if stg_at(j):
            I(f"""
            v_mov_b32 v{vt+5}, 64
            ds_write_b32 v{vt+7}, v{vt+5} offset:{PROG}
            """)
        for n_, (i, x) in enumerate(lv):
            I(f"s_cmp_eq_u32 s{sK}, {(x + 1) // 2}")
            I(f"s_cbranch_scc0 L_prio{j}_{n_}")
            I(f"s_setprio {2 - i}")
            L(f"L_prio{j}_{n_}")
        I(f"s_branch L_prio{j}_ret")
for fx, s_ in fixups:
    r = slotreg[s_]
    I(f"""
    L_fx{fx}:
    v_min_u32 v142, {CAP + 23}, v{r+3}
    v_subrev_u32 v142, {CAP}, v142
    v_mov_b32 v143, {OVF}
    v_lshl_add_u32 v136, v142, 2, v143
    v_lshl_add_u32 v142, v142, 3, v143
    v_cndmask_b32 v141, v141, v136, vcc
    v_cndmask_b32 v{vTA[s_]}, v{vTA[s_]}, v142, vcc
    s_branch L_fr{fx}
    """)
I(f"""
L_w2ld:
s_cmp_gt_u32 s2, 16
s_cbranch_scc1 L_p_done
s_cmp_lt_u32 s2, 16
s_cbranch_scc1 L_opt_c
v_lshlrev_b32 v12, 1, v{vLane}
global_load_ushort v{vW2S}, v12, {sr(pB2,2)}
s_branch L_p_done
L_opt_c:
s_and_b32 s{t0}, s2, 3
s_lshl_b32 s{t0}, s{t0}, 10
s_lshr_b32 s{t3}, s2, 2
s_lshl_b32 s{t3}, s{t3}, 1
s_add_u32 s{t0}, s{t0}, s{t3}
v_bfe_u32 v12, v{vLane}, 4, 1
v_lshlrev_b32 v12, 13, v12
v_lshrrev_b32 v13, 5, v{vLane}
v_lshl_add_u32 v12, v13, 12, v12
v_and_b32 v13, 15, v{vLane}
v_lshl_add_u32 v12, v13, 3, v12
""")
for i_ in range(8):
    I(f"buffer_load_ushort v{vW2S+i_}, v12, {sr(sD,4)}, s{t0} offen offset:{128*i_}")
I("s_branch L_p_done")
L("L_slow")
I(f"""
s_setprio 0
s_mov_b32 s{sMode}, 1
s_mov_b32 s{sK0}, 0
s_waitcnt vmcnt(0) lgkmcnt(0)
s_barrier
v_mov_b32 v{vt+6}, 1
v_mov_b32 v{vMX}, 0
""")
small_init(64)
s_zero(64)
desc_consts()
for jj in range(3): I(poll_load(jj))
I("s_waitcnt vmcnt(0)")
I(f"""
s_cmp_lt_u32 s{sW}, 8
s_cselect_b32 s{t0}, -1, 0
v_and_b32 v{vDs+4}, s{t0}, v{vDs+4}
""")
for jj in range(3): decode(jj)
for jj in range(3):
    I(f"v_mov_b32 v{144+jj}, v{vRA+jj}")
    I(f"v_mov_b32 v{147+jj}, v{vCn+jj}")
I(f"""
s_mov_b32 s{t5}, {KMASK}
v_mov_b32 v150, {KCON}
v_mov_b32 v{vKA+1}, 0x3c00
v_max3_i32 v137, v147, v148, v149
v_max_i32 v137, 0, v137
v_mov_b32 v138, 0
s_waitcnt lgkmcnt(0)
s_barrier
ds_max_u32 v138, v137 offset:{MAXC}
s_waitcnt lgkmcnt(0)
s_barrier
ds_read_b32 v137, v138 offset:{MAXC}
s_waitcnt lgkmcnt(0)
v_readfirstlane_b32 s{sMaxc}, v137
L_round:
s_barrier
""")
area_init(64)
I(f"""
v_lshlrev_b32 v64, 2, v0
v_add_u32 v64, {CNTR}, v64
v_mov_b32 v65, 0
v_cmp_gt_u32 vcc, 128, v0
s_and_b64 exec, exec, vcc
ds_write_b32 v64, v65
s_mov_b64 exec, -1
""")
for jj in range(3):
    I(f"v_cmp_lt_i32 {sr(sM+2*jj,2)}, s{sK0}, v{147+jj}")
for jj in range(3):
    I(f"s_mov_b64 exec, {sr(sM+2*jj,2)}")
    I(f"buffer_load_dwordx3 {vr(48+4*jj,3)}, v{144+jj}, {sr(sWS,4)}, s{sGam} offen sc1")
I(f"""
s_mov_b64 exec, -1
s_waitcnt vmcnt(0) lgkmcnt(0)
s_barrier
""")
for jj in range(3):
    r = 48 + 4*jj
    I(f"""
    s_mov_b64 exec, {sr(sM+2*jj,2)}
    v_bfe_u32 v{60+jj}, v{r+2}, 10, 9
    v_and_or_b32 v{r+2}, v{r+2}, s{t5}, v150
    v_add_u32 v{72+jj}, {GBASE}, v{60+jj}
    ds_add_rtn_u32 v{r+3}, v{72+jj}, v{vt+6} offset:512
    ds_add_u32 v{60+jj}, v{vt+6} offset:{CNT}
    """)
I(f"""
s_mov_b64 exec, -1
s_waitcnt lgkmcnt(0)
s_barrier
v_lshlrev_b32 v64, 3, v{vLane}
v_add_u32 v64, {GBASE}, v64
ds_read_b64 v[66:67], v64 offset:512
s_waitcnt lgkmcnt(0)
v_add_u32 v66, 7, v66
v_add_u32 v67, 7, v67
v_lshrrev_b32 v66, 3, v66
v_lshrrev_b32 v67, 3, v67
v_add_u32 v68, v66, v67
v_mov_b32 v69, v68
""")
dpp_scan(69)
I(f"""
v_readlane_b32 s{sG}, v69, 63
v_sub_u32 v70, v69, v68
v_add_u32 v71, v70, v66
ds_write_b64 v64, v[70:71]
s_add_u32 s{sNT}, s{sG}, 3
s_lshr_b32 s{sNT}, s{sNT}, 2
s_waitcnt lgkmcnt(0)
""")
for jj in range(3):
    r = 48 + 4*jj
    I(f"""
    s_mov_b64 exec, {sr(sM+2*jj,2)}
    ds_read_b32 v64, v{72+jj}
    ds_read_b32 v71, v{72+jj} offset:512
    v_lshrrev_b32 v65, 3, v{r+3}
    v_and_b32 v66, 7, v{r+3}
    v_lshrrev_b32 v67, 2, v{60+jj}
    s_waitcnt lgkmcnt(0)
    v_add_u32 v64, v64, v65
    v_lshlrev_b32 v65, 3, v65
    v_sub_u32 v71, v71, v65
    v_min_u32 v71, 8, v71
    v_and_b32 v65, 3, v64
    v_lshlrev_b32 v68, 4, v65
    v_sub_u32 v71, v68, v71
    v_lshlrev_b32 v71, 3, v71
    v_add_u32 v71, {LUT + 64}, v71
    v_mul_u32_u24 v68, {SROW}, v67
    v_mul_u32_u24 v69, {QROW}, v67
    v_lshl_or_b32 v68, v69, 16, v68
    v_lshrrev_b32 v69, 2, v64
    v_lshlrev_b32 v69, 6, v69
    v_lshl_add_u32 v69, v65, 2, v69
    v_add_u32 v69, {GT}, v69
    ds_write2_b32 v69, v71, v68 offset0:8 offset1:12
    v_mul_u32_u24 v65, 9363, v64
    v_lshrrev_b32 v65, 16, v65
    v_mul_u32_u24 v67, 7, v65
    v_sub_u32 v64, v64, v67
    v_mul_u32_u24 v65, {NSZ}, v65
    v_add_u32 v65, {AREA}, v65
    v_lshl_add_u32 v67, v64, 5, v65
    v_lshl_add_u32 v70, v64, 6, v65
    v_add_u32 v70, {EOFF}, v70
    ds_write2_b32 v69, v67, v70 offset0:0 offset1:4
    v_lshl_add_u32 v75, v66, 2, v67
    v_lshl_add_u32 v76, v66, 3, v70
    ds_write_b32 v75, v{r+2}
    ds_write_b64 v76, {P(r)}
    s_waitcnt lgkmcnt(0)
    """)
I(f"""
s_mov_b64 exec, -1
s_barrier
s_mov_b32 s{sK}, s{sW}
L_stile:
s_cmp_ge_u32 s{sK}, s{sNT}
s_cbranch_scc1 L_stile_done
s_lshl_b32 s{t0}, s{sK}, 6
s_add_u32 s{t0}, s{t0}, {GT}
""")
ptr_consts(f"s{t0}")
I(f"""
ds_read2_b32 {P(vAG)}, v{vPG} offset0:4 offset1:0
ds_read_u16 v{vGQ}, v{vPR}
ds_read_b64 {P(vGS)}, v{vPH} offset:48
s_waitcnt lgkmcnt(0)
{AUPD}
ds_read_b32 v{vKA}, v{vAG+1}
ds_read_b64 {P(vA5)}, v{vAG}
s_waitcnt lgkmcnt(0)
{IXM}
s_nop 15
""")
for l in gload(0) + gload(1) + SAUPD + [QUPD]: I(l)
I("s_waitcnt vmcnt(0)")
for u in range(2):
    I(f"ds_read_b64_tr_b16 {P(vB5[0])}, v{vQ} offset:{128*u}")
    I(f"ds_read_b64_tr_b16 {P(vB5[1])}, v{vQ} offset:{128*u+64}")
    for l in shifts(u): I(l)
    I("s_waitcnt lgkmcnt(0)")
    I("s_nop 1")
    I(mf8(vTL, vA5, vB5[0], vr(vTL,16)))
    I(mf8(vTH, vA5, vB5[1], vr(vLb[u],16)))
    I("s_nop 15")
    for hi, T in enumerate((vTL, vTH)):
        for i in range(16): I(f"v_exp_f32 v{vE+i}, v{T+i}")
        for i in range(16): I(f"v_add_f32 v{vE+i}, 1.0, v{vE+i}")
        for i in range(16): I(f"v_rcp_f32 v{vE+i}, v{vE+i}")
        I(f"v_pk_mul_f32 {P(vN)}, {P(T)}, {P(vE)}")
        for i in range(1, 8): I(f"v_pk_fma_f32 {P(vN)}, {P(T+2*i)}, {P(vE+2*i)}, {P(vN)}")
        I(f"ds_add_f32 v{vSA}, v{vN} offset:{128*(2*u+hi)}")
        I(f"ds_add_f32 v{vSA+1}, v{vN+1} offset:{128*(2*u+hi)}")
        I("s_waitcnt lgkmcnt(0)")
I(f"""
s_add_u32 s{sK}, s{sK}, {NW}
s_branch L_stile
L_stile_done:
s_add_u32 s{sK0}, s{sK0}, 8
s_add_u32 s{sGam}, s{sGam}, 96
s_cmp_lt_u32 s{sK0}, s{sMaxc}
s_cbranch_scc1 L_round
s_barrier
s_branch L_epi
""")

A('.section .rodata,"a"')
A(".p2align 6")
A(f".amdhsa_kernel {KNAME}")
A(f"  .amdhsa_next_free_vgpr {NVGPR}")
A("  .amdhsa_next_free_sgpr 102")
A(f"  .amdhsa_accum_offset {NVGPR}")
A("  .amdhsa_group_segment_fixed_size 0")
A("  .amdhsa_kernarg_size 88")
A("  .amdhsa_user_sgpr_count 2")
A("  .amdhsa_user_sgpr_kernarg_segment_ptr 1")
A("  .amdhsa_system_sgpr_workgroup_id_x 1")
A("  .amdhsa_float_denorm_mode_32 3")
A(".end_amdhsa_kernel")
open(sys.argv[1], "w").write("\n".join(out) + "\n")
print("LDS", LDS, "SB", SB, "QB", QB, "lines", len(out), file=sys.stderr)
```

```python
import sys, struct

opts = dict(a.split("=") for a in sys.argv[2:])
DEBUG = int(opts.get("debug", 0))
PRIO = int(opts.get("prio", 1))
FORCE_SLOW = int(opts.get("slow", 0))
NT = " " + opts.get("nt", "nt").replace("+", " ").replace("none", "")
WSOFF = int(opts.get("wsoff", "0"), 0)
PREF = int(opts.get("pref", 0))
STG = [int(x) for x in opts.get("stg", "0,0").split(",")]
STAG = max(STG) > 0
def stg_at(j): return any(x > 0 and x % 2 == j // 2 for x in STG)
SLEEP = int(opts.get("sleep", 2))
PTH = [int(x) for x in opts.get("pth", "7,3,1").split(",")]

PST_ = opts.get("pst", "sc1").replace("+", " "); RST_ = opts.get("rst", "sc1").replace("+", " ")
KNAME = "standalone__edge_featured_mpnn_mpnn__graph_kernel"
N = 25000; E = 800000
BN = 98; NW = 12; NTH = 768
QE = 3072; XE = 53; CH = QE + XE
GRAN = 0x10000
W2I = 0x98000
PF = 0xA0000
MAGIC = 0x4B010000
REC = 0x100000; RSTRIDE = 37632
PT = 0xB00000
STAMP = 0x1200000
WS_SIZE = 0x1300000
LOG2E = 1.4426950408889634
LN2 = 0.6931471805599453
def f2u(x): return struct.unpack("<I", struct.pack("<f", x))[0]

CNT = 0; CARRY = 512; PROG = 1024; FLAG = 1040; MAXC = 1044; LUT = 1088
GT = 1600; GSZ = 64; TMAX = 10; NGT = NW * TMAX + 2
CNT1 = GT
CAP = 56; NSZ = CAP * 12; EOFF = CAP * 4
AREA = (GT + NGT * GSZ + 127) // 128 * 128
SB = (AREA + 99 * NSZ + 255) // 256 * 256
SROW = 528; NSROW = BN + NW
QB = SB + NSROW * SROW; QROW = 264
GBASE = QB + 102 * QROW; CNTR = GBASE + 512
LDS = CNTR + 512
assert LDS <= 163840 and QB % 8 == 0 and GBASE % 8 == 0 and GT % 16 == 0
RST = AREA; XRAW = AREA + 37632; W1RAW = SB; PST = SB + 32768
assert XRAW + 16384 <= SB and PST + BN * 256 <= QB
ZROW = BN
KMASK = 0x03F803FC; KCON = 0x5C005C00
PADKEY = KCON | (126 << 19)
OVF = AREA + 98 * NSZ
SCANW, EXTRAW = 8, 9

out = []
def A(s=""): out.append(s)
def I(s):
    for l in s.strip("\n").split("\n"):
        l = l.strip()
        if not l: continue
        out.append(l if l.endswith(":") else "    " + l)
def L(name): out.append(name + ":")
def vr(a, n): return f"v[{a}:{a+n-1}]"
def sr(a, n): return f"s[{a}:{a+n-1}]"
def P(r): return f"v[{r}:{r+1}]"

sWS, sP, sOUT, sA, sBq, sC = 4, 8, 12, 16, 20, 24
sD = 28
pX, pE, pSRC, pDST, pW1, pB1, pW2, pB2, pOUT, pWS = 32, 34, 36, 38, 40, 42, 44, 46, 48, 50
sM = 32
sB, sW, sTw, sG, sT, sRem, sGam, sK, sGmax, sBad, sTag, sTag8, sReg, sMode, sK0, sMaxc = range(62, 78)
sONE = 78; sADV = 80; sSC = 82; sE0 = 84; sE1 = 86
t0, t1, t2, t3, t4, t5 = 88, 89, 90, 91, 92, 93
sNT = 3
sPM, sNV = 16, 22; sPV = [28, 30, 94]
vLane = 1
vPH, vPG, vPR = 2, 3, 4
vSC = 8; vQC = 9; vQ = 10; vGQ = 11
vSA = 12; vAG = 14; vA5 = 16; vB5 = [18, 20]; vD = 22; vN = 24; vSO = 26; vMX = 28; vST = 29
vAC = 6; vBK = 30; vGS = 36; vKA = 38
vW2S = 32
vt = 40
vLb = [48, 64]; vTL = 80; vTH = 96; vE = 112; vIX = 128
NVGPR = 168

nstamp = [0]
def stamp():
    if not DEBUG: return
    i = nstamp[0]; nstamp[0] += 1
    I(f"{'s_memtime' if DEBUG == 2 else 's_memrealtime'} s[100:101]")
    I("s_waitcnt lgkmcnt(0)")
    I(f"v_writelane_b32 v{vST}, s100, {i}")

def srd(d, p, nrec, stride=0, add=None):
    if add is None:
        I(f"s_mov_b32 s{d}, s{p}")
        I(f"s_and_b32 s{d+1}, s{p+1}, 0xffff")
    else:
        I(f"s_add_u32 s{d}, s{p}, {add}")
        I(f"s_addc_u32 s{d+1}, s{p+1}, 0")
        I(f"s_and_b32 s{d+1}, s{d+1}, 0xffff")
    I(f"s_mov_b32 s{d+2}, {nrec}")
    I(f"s_mov_b32 s{d+3}, 0x00020000")

def dpp_scan(v, vmax=None):
    steps = ["row_shr:1 row_mask:0xf bank_mask:0xf bound_ctrl:0", "row_shr:2 row_mask:0xf bank_mask:0xf bound_ctrl:0",
             "row_shr:4 row_mask:0xf bank_mask:0xf bound_ctrl:0", "row_shr:8 row_mask:0xf bank_mask:0xf bound_ctrl:0",
             "row_bcast:15 row_mask:0xa bank_mask:0xf", "row_bcast:31 row_mask:0xc bank_mask:0xf"]
    I("s_nop 1")
    for s in steps:
        I(f"v_add_u32_dpp v{v}, v{v}, v{v} {s}")
        if vmax is not None:
            I(f"v_max_u32_dpp v{vmax}, v{vmax}, v{vmax} {s}")
            I("s_nop 0")
        else:
            I("s_nop 1")
def lanemask(ls):
    m = 0
    for l in ls: m |= 1 << l
    return m
def setexec(m):
    I(f"s_mov_b32 exec_lo, {m & 0xffffffff}")
    I(f"s_mov_b32 exec_hi, {m >> 32}")
def mf16(D, a, b, c): return f"v_mfma_f32_32x32x16_bf16 {vr(D,16)}, {vr(a,4)}, {vr(b,4)}, {c}"
def mf8(D, a, b, c): return f"v_mfma_f32_32x32x8_bf16 {vr(D,16)}, {vr(a,2)}, {vr(b,2)}, {c}"
SDWA0 = "dst_sel:DWORD dst_unused:UNUSED_PAD src0_sel:WORD_0 src1_sel:DWORD"
SDWAB = "dst_sel:DWORD dst_unused:UNUSED_PAD src0_sel:DWORD src1_sel:BYTE_0"

def area_init(z):
    I(f"""
    s_mov_b32 s{t0}, 1561
    v_mul_u32_u24 v{z+5}, s{t0}, v0
    v_lshrrev_b32 v{z+5}, 16, v{z+5}
    v_mul_u32_u24 v{z+5}, 42, v{z+5}
    v_sub_u32 v{z+5}, v0, v{z+5}
    v_cmp_gt_u32 vcc, 14, v{z+5}
    v_mov_b32 v{z+6}, {PADKEY}
    v_lshlrev_b32 v{z+7}, 4, v0
    v_cndmask_b32 v{z}, 0, v{z+6}, vcc
    v_add_u32 v{z+4}, {AREA}, v{z+7}
    v_mov_b32 v{z+1}, v{z}
    v_mov_b32 v{z+2}, v{z}
    v_mov_b32 v{z+3}, v{z}
    v_cmp_gt_u32 vcc, 756, v0
    s_and_b64 exec, exec, vcc
    """)
    for t in range(6):
        if t == 5:
            I(f"v_cmp_gt_u32 vcc, {99*42 - 5*756}, v0")
            I("s_and_b64 exec, exec, vcc")
        I(f"ds_write_b128 v{z+4}, {vr(z,4)} offset:{t*756*16}")
    I("s_mov_b64 exec, -1")
    vals = [OVF + 6*32, OVF + EOFF + 6*64, LUT + 64, (ZROW*SROW) | ((98*QROW) << 16)]
    I(f"v_mov_b32 v{z+8}, {vals[0]}")
    for q in range(1, 4):
        setexec(lanemask([l for l in range(64) if l & 3 == q]))
        I(f"v_mov_b32 v{z+8}, {vals[q]}")
    I(f"""
    s_mov_b64 exec, -1
    v_cmp_gt_u32 vcc, {NGT*4}, v0
    v_mov_b32 v{z+9}, v{z+8}
    v_mov_b32 v{z+10}, v{z+8}
    v_mov_b32 v{z+11}, v{z+8}
    s_and_b64 exec, exec, vcc
    ds_write_b128 v{z+7}, {vr(z+8,4)} offset:{GT}
    s_mov_b64 exec, -1
    """)
def s_zero(z):
    nch = NSROW * SROW // 16
    for i in range(4): I(f"v_mov_b32 v{z+i}, 0")
    I(f"v_lshlrev_b32 v{z+4}, 4, v0")
    I(f"v_add_u32 v{z+4}, {SB}, v{z+4}")
    n = (nch + NTH - 1) // NTH
    for t in range(n):
        if (t + 1) * NTH > nch:
            I(f"v_cmp_gt_u32 vcc, {nch - t*NTH}, v0")
            I(f"s_and_b64 exec, exec, vcc")
        I(f"ds_write_b128 v{z+4}, {vr(z,4)} offset:{t*NTH*16}")
    I("s_mov_b64 exec, -1")
def small_init(z):
    I(f"""
    v_lshlrev_b32 v{z}, 2, v0
    v_mov_b32 v{z+1}, 0
    v_mov_b32 v{z+2}, {ZROW*SROW}
    v_lshrrev_b32 v{z+3}, 7, v0
    v_cmp_eq_u32 vcc, 1, v{z+3}
    s_nop 1
    v_cndmask_b32 v{z+1}, v{z+1}, v{z+2}, vcc
    v_cmp_gt_u32 vcc, 272, v0
    s_and_b64 exec, exec, vcc
    ds_write_b32 v{z}, v{z+1}
    s_mov_b64 exec, -1
    """)

hdr = open("standalone__edge_featured_mpnn_mpnn__graph.s.ref").read().split("\n")
for l in hdr:
    if "@launch" in l: continue
    if not l.startswith(";"): break
    A(l)
A(f"; @launch grid=(256,1,1) block=({NTH},1,1) lds={LDS}")
A('.amdgcn_target "amdgcn-amd-amdhsa--gfx950"')
A(".text")
A(f".globl {KNAME}")
A(".p2align 8")
A(f".type {KNAME},@function")
L(KNAME)
I(f"""
s_cmp_ge_u32 s2, 256
s_cbranch_scc1 L_exit
{"s_memrealtime s[96:97]" if DEBUG else ""}
s_load_dwordx16 s[32:47], s[0:1], 0
s_load_dwordx2 {sr(pOUT,2)}, s[0:1], 64
s_load_dwordx2 {sr(pWS,2)}, s[0:1], 80
v_lshrrev_b32 v{vt}, 6, v0
v_and_b32 v{vLane}, 63, v0
v_readfirstlane_b32 s{sW}, v{vt}
s_mul_i32 s{t0}, s2, {QE*4}
v_lshl_add_u32 v{vt+1}, v0, 4, s{t0}
v_lshlrev_b32 v{vt+2}, 1, v{vt+1}
s_and_b32 s{sB}, s2, 7
s_lshl_b32 s{sB}, s{sB}, 5
s_lshr_b32 s{t1}, s2, 3
s_add_u32 s{sB}, s{sB}, s{t1}
{f"s_mov_b32 s{sB}, s2" if int(opts.get("ident", 0)) else ""}
v_lshlrev_b32 v75, 2, v0
v_mov_b32 v76, 0
ds_write_b32 v75, v76 offset:{CNT1}
v_lshrrev_b32 v68, 3, v{vLane}
v_lshrrev_b32 v69, 4, v{vLane}
v_and_b32 v70, 7, v{vLane}
v_xor_b32 v70, v70, v69
v_lshlrev_b32 v70, 4, v70
v_lshl_add_u32 v70, v68, 7, v70
s_and_b32 s{t0}, s{sW}, 1
s_lshl_b32 s{t0}, s{t0}, 6
v_xor_b32 v71, s{t0}, v70
v_and_b32 v72, 15, v{vLane}
v_lshlrev_b32 v73, 2, v69
v_xor_b32 v72, v72, v73
v_lshlrev_b32 v72, 4, v72
v_lshl_add_u32 v72, v69, 8, v72
v_lshlrev_b32 v74, 1, v{vLane}
v_and_b32 v75, 32, v{vLane}
v_lshl_add_u32 v74, v75, 4, v74
v_lshlrev_b32 v{vt+5}, 4, v{vLane}
v_lshlrev_b32 v{vt}, 4, v0
s_mul_i32 s{t1}, s{sB}, {BN*128}
s_lshl_b32 s{t2}, s{sW}, 10
s_mov_b32 s{sA+2}, {N*128}
s_mov_b32 s{sA+3}, 0x00020000
s_mov_b32 s{sBq+2}, {132*256}
s_mov_b32 s{sBq+3}, 0x00020000
s_mov_b32 s{sC+2}, 256
s_mov_b32 s{sC+3}, 0x00020000
s_mov_b32 s{sD+2}, {128*128}
s_mov_b32 s{sD+3}, 0x00020000
s_waitcnt lgkmcnt(0)
s_add_u32 s{pWS}, s{pWS}, {WSOFF}
s_addc_u32 s{pWS+1}, s{pWS+1}, 0
s_mov_b32 s{sA}, s{pX}
s_and_b32 s{sA+1}, s{pX+1}, 0xffff
s_mov_b32 s{sBq}, s{pW1}
s_and_b32 s{sBq+1}, s{pW1+1}, 0xffff
s_mov_b32 s{sC}, s{pB1}
s_and_b32 s{sC+1}, s{pB1+1}, 0xffff
s_mov_b32 s{sD}, s{pW2}
s_and_b32 s{sD+1}, s{pW2+1}, 0xffff
s_cmp_ge_u32 s{sW}, 8
s_cbranch_scc1 L_opt_hi
s_add_u32 s{t3}, s{t2}, {24*1024}
s_add_u32 m0, s{t3}, {W1RAW}
s_cmp_lg_u32 s{sW}, 0
buffer_load_dwordx4 v72, {sr(sBq,4)}, s{t3} offen lds
s_cbranch_scc1 L_opt_end
s_mov_b32 m0, {XRAW + 12*1024}
s_add_u32 s{t3}, s{t1}, {12*1024}
buffer_load_dwordx4 v70, {sr(sA,4)}, s{t3} offen{NT} lds
s_branch L_opt_end
L_opt_hi:
s_cmp_lg_u32 s{sW}, {EXTRAW}
s_cbranch_scc1 L_opt_a
s_mul_i32 s{t0}, s2, {XE}
s_add_u32 s{t0}, s{t0}, {256*QE}
v_add_lshl_u32 v{vt+3}, v{vLane}, s{t0}, 2
v_lshlrev_b32 v{vt+4}, 1, v{vt+3}
""")
XM = (1 << XE) - 1
setexec(XM)
I(f"""
global_load_dword v64, v{vt+3}, {sr(pDST,2)}{NT}
global_load_dword v65, v{vt+3}, {sr(pSRC,2)}{NT}
global_load_dwordx2 v[66:67], v{vt+4}, {sr(pE,2)}{NT}
s_mov_b64 exec, -1
s_branch L_opt_end
L_opt_a:
s_cmp_lg_u32 s{sW}, 10
s_cbranch_scc1 L_opt_end
s_mov_b32 s{t0}, {128*256}
buffer_load_dwordx4 v[12:15], v{vt+5}, {sr(sBq,4)}, s{t0} offen
""")
ORD = opts.get("ord", "A")
dma = f"""
s_add_u32 m0, s{t2}, {XRAW}
s_add_u32 s{t3}, s{t1}, s{t2}
buffer_load_dwordx4 v71, {sr(sA,4)}, s{t3} offen{NT} lds
s_add_u32 m0, s{t2}, {W1RAW}
s_add_u32 s{t3}, s{t2}, {12*1024}
buffer_load_dwordx4 v72, {sr(sBq,4)}, s{t2} offen lds
s_add_u32 m0, s{t3}, {W1RAW}
s_nop 0
buffer_load_dwordx4 v72, {sr(sBq,4)}, s{t3} offen lds
"""
edg = f"""
global_load_dwordx4 v[52:55], v{vt+1}, {sr(pSRC,2)}{NT}
global_load_dwordx4 v[56:59], v{vt+2}, {sr(pE,2)}{NT}
global_load_dwordx4 v[60:63], v{vt+2}, {sr(pE,2)} offset:16{NT}
"""
I(f"""
L_opt_end:
global_load_dwordx4 v[48:51], v{vt+1}, {sr(pDST,2)}{NT}
""")
if DEBUG:
    I(f"v_mov_b32 v{vST}, 0")
    if DEBUG == 1: I(f"v_writelane_b32 v{vST}, s96, 21")
    nstamp[0] = 1
if ORD == "A": I(dma); I("s_barrier"); I(edg)
elif ORD == "B": I("s_barrier"); I(dma); I(edg)
elif ORD == "C": I("s_barrier"); I(edg); I(dma)
elif ORD == "D": I("s_barrier"); I(dma); I("s_barrier"); I(edg)
I(f"""
s_and_b32 s{t0}, s{sW}, 1
s_lshl_b32 s{t0}, s{t0}, 7
buffer_load_ushort v160, v74, {sr(sC,4)}, s{t0} offen
buffer_load_ushort v162, v74, {sr(sC,4)}, s{t0} offen offset:64
s_load_dword s{sTag}, {sr(pWS,2)}, 0
""")
if int(opts.get("icp", 1)):
    I(f"""
    s_getpc_b64 s[94:95]
    s_lshr_b32 s{t0}, s2, 3
    s_mul_i32 s{t0}, s{t0}, {NW}
    s_add_u32 s{t0}, s{t0}, s{sW}
    s_and_b32 s{t0}, s{t0}, 255
    s_lshl_b32 s{t0}, s{t0}, 6
    s_load_dword s3, s[94:95], s{t0}
    """)
assert CNT1 + NTH * 4 <= AREA
small_init(76)
srd(sWS, pWS, WS_SIZE)
I(f"""
s_sub_u32 s{sP}, s{pWS}, {MAGIC - PT}
s_subb_u32 s{sP+1}, s{pWS+1}, 0
s_and_b32 s{sP+1}, s{sP+1}, 0xffff
s_mov_b32 s{sP+2}, {MAGIC + N*256}
s_mov_b32 s{sP+3}, 0x00020000
""")
I(f"""
s_mul_i32 s{t0}, s{sB}, {BN}
s_sub_u32 s{t1}, {N}, s{t0}
s_min_u32 s{t1}, s{t1}, {BN}
s_lshl_b32 s{t2}, s{t0}, 7
s_add_u32 s{sOUT}, s{pOUT}, s{t2}
s_addc_u32 s{sOUT+1}, s{pOUT+1}, 0
s_and_b32 s{sOUT+1}, s{sOUT+1}, 0xffff
s_lshl_b32 s{sOUT+2}, s{t1}, 7
s_mov_b32 s{sOUT+3}, 0x00020000
s_mov_b32 s{sONE}, 1.0
s_mov_b32 s{sONE+1}, 1.0
s_mov_b32 s{sADV}, {GSZ}
s_mov_b32 s{sADV+1}, {GSZ}
s_mov_b32 s{sSC}, {f2u(-LOG2E)}
s_mov_b32 s{sSC+1}, {f2u(-LOG2E)}
s_mov_b32 s{sMode}, 0
s_mul_i32 s{sReg}, s{sW}, {TMAX*GSZ}
s_add_u32 s{sReg}, s{sReg}, {GT}
s_mov_b32 s{t4}, 42800
s_mov_b32 s{t5}, {(-BN) & 0xffffffff}
v_mov_b32 v{vt+6}, 1
v_mov_b32 v161, 0
v_mov_b32 v163, 0
v_mov_b32 v164, 0x3f80
v_mov_b32 v165, 0
""")
I(f"""
v_lshrrev_b32 v68, 5, v{vLane}
v_bfe_u32 v69, v{vLane}, 2, 2
v_lshl_add_u32 v70, v68, 5, v69
s_mov_b32 s{t0}, {W1RAW}
v_lshl_add_u32 v70, v70, 8, s{t0}
v_bfe_u32 v71, v{vLane}, 4, 1
v_lshl_add_u32 v70, v71, 5, v70
v_and_b32 v71, 3, v{vLane}
v_lshl_add_u32 v70, v71, 3, v70
s_and_b32 s{t0}, s{sW}, 1
s_lshl_b32 s{t0}, s{t0}, 1
v_xor_b32 v71, s{t0}, v69
v_lshl_add_u32 v166, v71, 6, v70
v_xor_b32 v71, 1, v71
v_lshl_add_u32 v167, v71, 6, v70
s_lshr_b32 s{t0}, s{sW}, 1
s_lshl_b32 s{t0}, s{t0}, 5
v_and_b32 v78, 31, v{vLane}
v_add_u32 v78, s{t0}, v78
v_bfe_u32 v71, v{vLane}, 1, 3
v_lshlrev_b32 v72, 2, v68
v_xor_b32 v71, v71, v72
v_lshlrev_b32 v71, 4, v71
v_lshl_add_u32 v79, v78, 7, v71
v_add_u32 v79, {XRAW}, v79
s_waitcnt vmcnt(8)
""")
stamp()
def bucket_rank(d, a, r):
    I(f"v_mul_u32_u24 v{a}, s{t4}, v{d}")
    I(f"v_lshrrev_b32 v{a}, 22, v{a}")
    I(f"v_mad_i32_i24 v{d}, v{a}, s{t5}, v{d}")
    I(f"v_lshlrev_b32 v{a}, 2, v{a}")
    I(f"ds_add_rtn_u32 v{r}, v{a}, v{vt+6} offset:{CNT1}")
for i in range(4): bucket_rank(48+i, 68+i, 73+i)
I(f"s_cmp_lg_u32 s{sW}, {EXTRAW}")
I("s_cbranch_scc1 L_noex1")
setexec(XM)
bucket_rank(64, 72, 77)
I("s_mov_b64 exec, -1")
L("L_noex1")
I(f"""
s_waitcnt vmcnt({2 if ORD == 'C' else 5}) lgkmcnt(0)
s_add_u32 s{sTag}, s{sTag}, 1
s_mul_i32 s{sTag8}, s{sTag}, 0x9e3779b1
s_and_b32 s{sTag8}, s{sTag8}, 0xff000000
s_barrier
""")
stamp()
I(f"""
s_cmp_lt_u32 s{sW}, 8
s_cbranch_scc1 L_ptask
s_cmp_lg_u32 s{sW}, {SCANW}
s_cbranch_scc1 L_noscan
ds_read_b128 v[80:83], v{vt+5} offset:{CNT1}
s_waitcnt lgkmcnt(0)
v_add_u32 v84, v80, v81
v_add_u32 v85, v84, v82
v_add_u32 v86, v85, v83
v_mov_b32 v87, v86
""")
dpp_scan(87)
I(f"""
v_sub_u32 v88, v87, v86
v_add_u32 v89, v88, v80
v_add_u32 v90, v88, v84
v_add_u32 v91, v88, v85
v_mov_b32 v96, {RST}
v_mad_u32_u24 v92, v88, 12, v96
v_mad_u32_u24 v93, v89, 12, v96
v_mad_u32_u24 v94, v90, 12, v96
v_mad_u32_u24 v95, v91, 12, v96
ds_write_b128 v{vt+5}, v[92:95] offset:{CNT1}
v_lshl_or_b32 v16, v80, 12, v88
v_lshl_or_b32 v18, v81, 12, v89
v_lshl_or_b32 v20, v82, 12, v90
v_lshl_or_b32 v22, v83, 12, v91
v_or_b32 v16, s{sTag8}, v16
v_or_b32 v18, s{sTag8}, v18
v_or_b32 v20, s{sTag8}, v20
v_or_b32 v22, s{sTag8}, v22
v_mov_b32 v17, s{sTag}
v_mov_b32 v19, s{sTag}
v_mov_b32 v21, s{sTag}
v_mov_b32 v23, s{sTag}
s_branch L_p_done
L_noscan:
""")
if DEBUG and int(opts.get("arr", 0)):
    I("s_waitcnt vmcnt(0)")
    I("s_memrealtime s[100:101]")
    I("s_waitcnt lgkmcnt(0)")
    I(f"v_writelane_b32 v{vST}, s100, 20")
if int(opts.get("prew", 0)):
    I(f"""
    s_cmp_lg_u32 s{sW}, 9
    s_cbranch_scc1 L_nopw
    s_lshl_b32 s{t0}, s2, 11
    s_add_u32 s{t0}, s{t0}, {GRAN}
    v_mov_b32 v16, 0
    v_mov_b32 v17, 0
    v_mov_b32 v18, 0
    v_mov_b32 v19, 0
    buffer_store_dwordx4 v[16:19], v{vt+5}, {sr(sWS,4)}, s{t0} offen sc1
    buffer_store_dwordx4 v[16:19], v{vt+5}, {sr(sWS,4)}, s{t0} offen offset:1024 sc1
    L_nopw:
    """)
I(f"""
s_cmp_eq_u32 s{sW}, 11
s_cbranch_scc1 L_w2ld
s_cmp_lg_u32 s{sW}, 10
s_cbranch_scc1 L_p_done
""")
for i in range(4):
    I(f"v_lshlrev_b32 v{80+2*i}, 16, v{12+i}")
    I(f"v_and_b32 v{81+2*i}, 0xffff0000, v{12+i}")
for i in range(4):
    I(f"v_pk_mul_f32 {P(80+2*i)}, {P(80+2*i)}, {sr(sSC,2)}")
for i in range(4):
    I(f"v_cvt_pk_bf16_f32 v{12+i}, v{80+2*i}, v{81+2*i}")
I(f"""
v_lshrrev_b32 v88, 4, v{vLane}
v_mul_u32_u24 v88, {QROW}, v88
v_and_b32 v89, 15, v{vLane}
v_lshl_add_u32 v88, v89, 4, v88
v_add_u32 v88, {QB + 98*QROW}, v88
ds_write2_b64 v88, v[12:13], v[14:15] offset0:0 offset1:1
v_mov_b32 v90, 0
v_mov_b32 v91, 0
""")
for g_ in range(4):
    setexec(lanemask(range(16*g_, 16*g_+8)))
    I(f"v_mov_b32 v{90 + (g_ >> 1)}, {0x3f800000 if g_ & 1 else 0x3f80}")
I(f"""
s_mov_b64 exec, -1
v_lshlrev_b32 v88, 3, v{vLane}
ds_write_b64 v88, v[90:91] offset:{LUT}
s_branch L_p_done
L_ptask:
v_xor_b32 v{vt+1}, 16, v79
v_xor_b32 v{vt+2}, 32, v79
v_xor_b32 v{vt+3}, 48, v79
""")
xa = [79, vt+1, vt+2, vt+3]
for ks in range(4):
    I(f"ds_read_b128 {vr(112+4*ks,4)}, v{xa[ks]}")
    for jl in range(2):
        for hf in range(2):
            I(f"ds_read_b64_tr_b16 {P(80+16*jl+4*ks+2*hf)}, v{166+jl} offset:{(8*ks+4*hf)*256}")
I(f"""
v_cmp_gt_u32 vcc, {BN}, v78
s_mov_b64 {sr(sE0,2)}, vcc
v_lshrrev_b32 v{vt+1}, 5, v{vLane}
s_and_b32 s{t1}, s{sW}, 1
s_lshl_b32 s{t1}, s{t1}, 3
v_add_u32 v{vt+1}, s{t1}, v{vt+1}
v_and_b32 v{vt+2}, 15, v78
v_xor_b32 v{vt+1}, v{vt+1}, v{vt+2}
v_lshlrev_b32 v{vt+1}, 4, v{vt+1}
v_lshl_add_u32 v{vt+1}, v78, 8, v{vt+1}
v_add_u32 v{vt+1}, {PST}, v{vt+1}
v_xor_b32 v{vt+2}, 32, v{vt+1}
v_xor_b32 v{vt+3}, 64, v{vt+1}
v_xor_b32 v{vt+4}, 0x60, v{vt+1}
""")
for ks in range(4):
    I(f"s_waitcnt lgkmcnt({15 - 5*ks})")
    I(mf16(128, 80+4*ks, 112+4*ks, "0" if ks == 0 else vr(128,16)))
    I(mf16(144, 96+4*ks, 112+4*ks, "0" if ks == 0 else vr(144,16)))
I("s_mov_b32 s%d, 0x07060302" % t0)
I("s_nop 10")
for i in range(16):
    I(f"v_pk_mul_f32 {P(128+2*i)}, {P(128+2*i)}, {sr(sSC,2)}")
I(f"s_mov_b64 exec, {sr(sE0,2)}")
for rg in range(4):
    for i in range(4*rg, 4*rg+4):
        I(f"v_add_u32 v{128+i}, 0x4000, v{128+i}")
    for i in range(4*rg, 4*rg+4):
        I(f"v_perm_b32 v{128+i}, v{144+i}, v{128+i}, s{t0}")
    I(f"ds_write_b128 v{vt+1+rg}, {vr(128+4*rg,4)}")
I(f"""
s_mov_b64 exec, -1
L_p_done:
v_lshrrev_b32 v80, 4, v0
v_xor_b32 v81, v80, v0
v_and_b32 v81, 15, v81
v_lshlrev_b32 v81, 4, v81
v_lshl_add_u32 v81, v80, 8, v81
v_add_u32 v81, {PST}, v81
s_mul_i32 s{t0}, s{sB}, {BN*256}
s_add_u32 s{t0}, s{t0}, {PT}
s_add_u32 s{sA}, s{pWS}, s{t0}
s_addc_u32 s{sA+1}, s{pWS+1}, 0
s_and_b32 s{sA+1}, s{sA+1}, 0xffff
s_mov_b32 s{sA+2}, {BN*256}
s_mov_b32 s{sA+3}, 0x00020000
s_mul_i32 s{t0}, s2, {RSTRIDE}
s_add_u32 s{t0}, s{t0}, {REC}
s_add_u32 s{sBq}, s{pWS}, s{t0}
s_addc_u32 s{sBq+1}, s{pWS+1}, 0
s_and_b32 s{sBq+1}, s{sBq+1}, 0xffff
s_mov_b32 s{sBq+2}, {(CH*12+15)//16*16}
s_mov_b32 s{sBq+3}, 0x00020000
s_mov_b32 s{t1}, {NTH*16}
s_mov_b32 s{t2}, {2*NTH*16}
s_mov_b32 s{t3}, {3*NTH*16}
s_waitcnt lgkmcnt(0)
s_barrier
""")
stamp()
I(f"""
ds_read_b128 v[84:87], v81
ds_read_b128 v[88:91], v81 offset:{48*256}
ds_read_b128 v[92:95], v81 offset:{96*256}
""")
for i in range(5):
    I(f"ds_read_b32 v{68+i}, v{68+i} offset:{CNT1}")
I(f"""
{"s_waitcnt vmcnt(2)" if int(opts.get("hps", 0)) else ""}
s_waitcnt lgkmcnt(7)
buffer_store_dwordx4 v[84:87], v{vt}, {sr(sA,4)}, 0 offen {PST_}
s_waitcnt lgkmcnt(6)
buffer_store_dwordx4 v[88:91], v{vt}, {sr(sA,4)}, s{t1} offen {PST_}
s_waitcnt lgkmcnt(5)
buffer_store_dwordx4 v[92:95], v{vt}, {sr(sA,4)}, s{t2} offen {PST_}
s_waitcnt vmcnt(7)
""")
I(f"s_movk_i32 s{t4}, 0x804")
I(f"s_mov_b32 s{t5}, {KMASK}")
for i in range(4):
    I(f"v_mul_u32_u24 v{52+i}, s{t4}, v{52+i}") if False else None
    I(f"v_lshlrev_b32 v{80+i}, 11, v{52+i}")
    I(f"v_lshlrev_b32 v{48+i}, 12, v{48+i}")
    I(f"v_lshlrev_b32_sdwa v{80+i}, 2, v{52+i} dst_sel:WORD_0 dst_unused:UNUSED_PRESERVE src0_sel:DWORD src1_sel:BYTE_0")
for i in range(4):
    I(f"v_and_or_b32 v{48+i}, v{80+i}, s{t5}, v{48+i}")
I("s_waitcnt lgkmcnt(0)")
for i in range(5):
    I(f"v_mad_u32_u24 v{68+i}, v{73+i}, 12, v{68+i}")
for i in range(4):
    I(f"ds_write_b32 v{68+i}, v{48+i} offset:8")
I(f"s_cmp_lg_u32 s{sW}, {EXTRAW}")
I("s_cbranch_scc1 L_noex2")
setexec(XM)
I(f"""
v_lshlrev_b32 v80, 11, v65
v_lshlrev_b32 v64, 12, v64
v_lshlrev_b32_sdwa v80, 2, v65 dst_sel:WORD_0 dst_unused:UNUSED_PRESERVE src0_sel:DWORD src1_sel:BYTE_0
s_nop 0
v_and_or_b32 v64, v80, s{t5}, v64
ds_write2_b32 v72, v66, v67 offset0:0 offset1:1
ds_write_b32 v72, v64 offset:8
s_mov_b64 exec, -1
L_noex2:
s_waitcnt vmcnt(6)
ds_write2_b32 v68, v56, v57 offset0:0 offset1:1
ds_write2_b32 v69, v58, v59 offset0:0 offset1:1
s_waitcnt vmcnt(5)
""")
stamp()
I(f"""
ds_write2_b32 v70, v60, v61 offset0:0 offset1:1
ds_write2_b32 v71, v62, v63 offset0:0 offset1:1
s_waitcnt lgkmcnt(0)
s_barrier
""")
stamp()
for i in range(4):
    I(f"ds_read_b128 {vr(48+4*i,4)}, v{vt} offset:{RST + i*NTH*16}")
for i in range(3):
    I(f"s_waitcnt lgkmcnt({3-i})")
    I(f"buffer_store_dwordx4 {vr(48+4*i,4)}, v{vt}, {sr(sBq,4)}, {['0', f's{t1}', f's{t2}'][i]} offen {RST_}")
I(f"""
s_waitcnt lgkmcnt(0)
s_cmp_lg_u32 s{sW}, 0
s_cbranch_scc1 L_no4
buffer_store_dwordx4 v[60:63], v{vt}, {sr(sBq,4)}, s{t3} offen {RST_}
L_no4:
s_cmp_ge_u32 s{sW}, 8
s_cbranch_scc1 L_nop2
""")
for ks in range(4):
    for jl in range(2):
        for hf in range(2):
            I(f"ds_read_b64_tr_b16 {P(80+16*jl+4*ks+2*hf)}, v{166+jl} offset:{16384 + (8*ks+4*hf)*256}")
I("s_waitcnt vmcnt(6)")
I(mf8(128, 160, 164, "0"))
I(mf8(144, 162, 164, "0"))
I(f"""
v_lshrrev_b32 v{vt+1}, 5, v{vLane}
s_and_b32 s{t0}, s{sW}, 1
s_lshl_b32 s{t0}, s{t0}, 7
s_add_u32 s{t0}, s{t0}, {QB}
v_lshl_add_u32 v{vt+1}, v{vt+1}, 3, s{t0}
v_mul_u32_u24 v{vt+2}, {QROW}, v78
v_add_u32 v{vt+1}, v{vt+1}, v{vt+2}
""")
for ks in range(4):
    I(f"s_waitcnt lgkmcnt({12 - 4*ks})")
    I(mf16(128, 80+4*ks, 112+4*ks, vr(128,16)))
    I(mf16(144, 96+4*ks, 112+4*ks, vr(144,16)))
I("s_nop 11")
for i in range(16):
    I(f"v_pk_mul_f32 {P(128+2*i)}, {P(128+2*i)}, {sr(sSC,2)}")
for i in range(16):
    I(f"v_cvt_pk_bf16_f32 v{128+i}, v{128+2*i}, v{129+2*i}")
I(f"s_mov_b64 exec, {sr(sE0,2)}")
for jl in range(2):
    for rg in range(4):
        I(f"ds_write_b64 v{vt+1}, {P(128+8*jl+2*rg)} offset:{64*jl + 16*rg}")
I(f"""
s_mov_b64 exec, -1
s_branch L_p2_done
L_nop2:
s_cmp_lg_u32 s{sW}, 11
s_cbranch_scc1 L_p2_done
s_cmp_gt_u32 s2, 16
s_cbranch_scc1 L_p2_done
s_lshl_b32 s{t0}, s2, 10
s_add_u32 s{t0}, s{t0}, {W2I}
s_waitcnt vmcnt(6)
s_cmp_lt_u32 s2, 16
s_cbranch_scc1 L_w2st
v_lshlrev_b32 v{vW2S}, 16, v{vW2S}
v_mul_f32 v{vW2S}, s{sSC}, v{vW2S}
v_lshlrev_b32 v{vW2S+1}, 2, v{vLane}
buffer_store_dword v{vW2S}, v{vW2S+1}, {sr(sWS,4)}, s{t0} offen sc1
s_branch L_p2_done
L_w2st:
v_lshl_or_b32 v{vW2S}, v{vW2S+1}, 16, v{vW2S}
v_lshl_or_b32 v{vW2S+1}, v{vW2S+3}, 16, v{vW2S+2}
v_lshl_or_b32 v{vW2S+2}, v{vW2S+5}, 16, v{vW2S+4}
v_lshl_or_b32 v{vW2S+3}, v{vW2S+7}, 16, v{vW2S+6}
buffer_store_dwordx4 {vr(vW2S,4)}, v{vt+5}, {sr(sWS,4)}, s{t0} offen sc1
L_p2_done:
""")
I(f"""
v_and_b32 v72, 31, v{vLane}
v_lshlrev_b32 v72, 2, v72
v_add_u32 v{vSC}, {SB}, v72
v_cvt_f32_u32 v72, v72
v_mov_b32 v{vBK}, 0x78005c00
v_cvt_f16_f32 v{vBK+1}, v72
v_and_b32 v{vBK+1}, 0xffff, v{vBK+1}
s_mov_b32 exec_lo, 0
v_mov_b32 v{vBK}, 0
v_mov_b32 v{vBK+1}, 0
s_mov_b64 exec, -1
v_mov_b32 v{vKA+1}, 0x3c00
v_bfe_u32 v73, v{vLane}, 4, 1
v_lshlrev_b32 v73, 5, v73
v_and_b32 v74, 3, v{vLane}
v_lshl_add_u32 v73, v74, 3, v73
v_add_u32 v{vQC}, {QB}, v73
v_bfe_u32 v75, v{vLane}, 2, 2
v_add_u32 v76, 98, v75
v_mul_u32_u24 v76, {QROW}, v76
v_add_u32 v{vQ}, v76, v{vQC}
""")
I(f"""
v_bfe_u32 v72, v{vLane}, 3, 2
v_bfe_u32 v73, v{vLane}, 1, 1
v_lshl_add_u32 v72, v72, 1, v73
v_lshlrev_b32 v{vAC}, 3, v72
v_lshlrev_b32 v{vAC+1}, 2, v72
""")
def ptr_consts(base):
    I(f"""
    v_lshrrev_b32 v72, 5, v{vLane}
    v_lshl_add_u32 v{vPH}, v72, 3, {base}
    v_bfe_u32 v73, v{vLane}, 2, 1
    v_and_b32 v74, 1, v{vLane}
    v_lshl_add_u32 v73, v73, 1, v74
    v_lshl_add_u32 v73, v72, 2, v73
    v_lshl_add_u32 v{vPG}, v73, 2, {base}
    v_bfe_u32 v75, v{vLane}, 2, 2
    v_lshl_add_u32 v74, v75, 2, {base}
    v_add_u32 v{vPR}, 50, v74
    """)
ptr_consts(f"s{sReg}")
I("""
s_waitcnt vmcnt(0) lgkmcnt(0)
s_barrier
""")
stamp()
I(f"""
s_cmp_lg_u32 s{sW}, {SCANW}
s_cbranch_scc1 L_nopub
v_lshlrev_b32 v72, 5, v{vLane}
s_lshl_b32 s{t0}, s2, 11
s_add_u32 s{t0}, s{t0}, {GRAN}
buffer_store_dwordx4 v[16:19], v72, {sr(sWS,4)}, s{t0} offen sc0 sc1
buffer_store_dwordx4 v[20:23], v72, {sr(sWS,4)}, s{t0} offen offset:16 sc0 sc1
L_nopub:
""")
PF1 = int(opts.get("pf1", 0)); PF2 = int(opts.get("pf2", 0))
def prefetch(n, first, dst):
    I(f"""
    s_lshr_b32 s{t0}, s2, 3
    s_mul_i32 s{t0}, s{t0}, {NW}
    s_add_u32 s{t0}, s{t0}, s{sW}
    s_mul_i32 s{t0}, s{t0}, {n*128}
    s_add_u32 s{t0}, s{t0}, {MAGIC + first*384*128}
    v_lshlrev_b32 v{dst}, 7, v{vLane}
    """)
    if n < 64: setexec((1 << n) - 1)
    I(f"buffer_load_dword v{dst}, v{dst}, {sr(sP,4)}, s{t0} offen sc1")
    I("s_mov_b64 exec, -1")
if PF1: prefetch(PF1, 0, 42)
area_init(64)
SZ = int(opts.get('sz', 1))
if SZ == 1: s_zero(76)
vDs = 124
vRA = 130
vCn = 133
vPo = 136
vL7 = 138; vRb = 139; vAr = 140
sPo = [sG, sT, sRem]; sRo = sGam
def desc_consts():
    I(f"""
    v_lshrrev_b32 v141, 3, v{vLane}
    v_lshlrev_b32 v{vPo}, 11, v141
    v_and_b32 v{vL7}, 7, v{vLane}
    v_mul_u32_u24 v{vRb}, 12, v{vL7}
    s_mov_b32 s{t0}, {RSTRIDE}
    v_mad_u32_u24 v{vRb}, v141, s{t0}, v{vRb}
    s_lshl_b32 s{sPo[0]}, s{sW}, 14
    s_lshl_b32 s{t1}, s{sB}, 3
    s_add_u32 s{sPo[0]}, s{sPo[0]}, s{t1}
    s_add_u32 s{sPo[0]}, s{sPo[0]}, {GRAN}
    s_add_u32 s{sPo[1]}, s{sPo[0]}, {12*16384}
    s_add_u32 s{sPo[2]}, s{sPo[0]}, {24*16384}
    s_mul_i32 s{sRo}, s{sW}, {8*RSTRIDE}
    s_add_u32 s{sRo}, s{sRo}, {REC}
    """)
def poll_load(jj): return f"buffer_load_dwordx2 {P(vDs+2*jj)}, v{vPo}, {sr(sWS,4)}, s{sPo[jj]} offen sc1"
def decode(jj):
    I(f"v_and_b32 v{vRA+jj}, 0xfff, v{vDs+2*jj}")
    I(f"v_mad_u32_u24 v{vRA+jj}, v{vRA+jj}, 12, v{vRb}")
    if jj: I(f"v_add_u32 v{vRA+jj}, {jj*96*RSTRIDE}, v{vRA+jj}")
    I(f"v_bfe_u32 v{vCn+jj}, v{vDs+2*jj}, 12, 12")
    I(f"v_sub_u32 v{vCn+jj}, v{vCn+jj}, v{vL7}")
lab = [0]
NR = 5
order = [(jj, rd) for jj in range(3) for rd in range(NR)]
slotreg = {s: 48 + 4*n_ for n_, s in enumerate(order)}
slotmask = {s: sM + 2*n_ for n_, s in enumerate(order)}
vTA = {s: 108 + n_ for n_, s in enumerate(order)}
def slots(body):
    for jj in range(3):
        lab[0] += 1; grp = lab[0]
        for rd in range(NR):
            s = (jj, rd)
            I(f"s_mov_b64 exec, {sr(slotmask[s],2)}")
            if rd >= 2 or (jj == 2 and rd == 0): I(f"s_cbranch_execz L_sg{grp}")
            body(s)
        L(f"L_sg{grp}")
    I("s_mov_b64 exec, -1")
def tagcheck(jj, dst):
    I(f"""
    v_xor_b32 v141, s{sTag8}, v{vDs+2*jj}
    v_xor_b32 v142, s{sTag}, v{vDs+2*jj+1}
    v_lshrrev_b32 v141, 24, v141
    v_or_b32 v141, v141, v142
    v_cmp_ne_u32 {dst}, 0, v141
    """)
desc_consts()
I(f"""
s_mov_b64 {sr(sPM,2)}, -1
s_mov_b64 {sr(sPM+2,2)}, -1
s_cmp_lt_u32 s{sW}, 8
s_cselect_b64 {sr(sPM+4,2)}, -1, 0
v_mov_b32 v{vDs+4}, s{sTag8}
v_mov_b32 v{vDs+5}, s{sTag}
s_mov_b32 s{sK}, 0
v_mov_b32 v{vAr}, {AREA}
s_movk_i32 s{t4}, {NSZ//4}
s_mov_b32 s{t5}, {KMASK}
v_mov_b32 v137, {KCON}
v_mov_b32 v143, 0
s_waitcnt lgkmcnt(0)
s_barrier
""")
stamp()
I(f"""
s_branch L_poll1
L_poll:
""")
if SLEEP: I(f"s_sleep {SLEEP}")
L("L_poll1")
for jj in range(3):
    I(f"s_mov_b64 exec, {sr(sPM+2*jj,2)}")
    I(f"s_cbranch_execz L_pk{jj}")
    I(poll_load(jj))
    L(f"L_pk{jj}")
I(f"""
s_mov_b64 exec, -1
s_add_u32 s{sK}, s{sK}, 1
s_cmp_gt_u32 s{sK}, 0x40000
s_cbranch_scc1 L_exit
s_waitcnt vmcnt(0)
""")
for jj in range(3): tagcheck(jj, sr(sPM+2*jj,2))
I(f"""
s_or_b64 {sr(sE0,2)}, {sr(sPM,2)}, {sr(sPM+2,2)}
s_or_b64 {sr(sE0,2)}, {sr(sE0,2)}, {sr(sPM+4,2)}
s_cbranch_scc1 L_poll
""")
if DEBUG:
    I(f"v_writelane_b32 v{vST}, s{sK}, 22")
stamp()
for jj in range(3): decode(jj)
for s_ in order:
    I(f"v_cmp_lt_i32 {sr(slotmask[s_],2)}, {8*s_[1]}, v{vCn+s_[0]}")
slots(lambda s_: I(f"buffer_load_dwordx3 {vr(slotreg[s_],3)}, v{vRA+s_[0]}, {sr(sWS,4)}, s{sRo} offen offset:{96*s_[1]} sc1"))
I(f"""
v_max3_i32 v141, v{vCn}, v{vCn+1}, v{vCn+2}
v_cmp_lt_i32 vcc, {8*NR}, v141
s_cbranch_vccz L_nobig
v_mov_b32 v141, 0
ds_write_b32 v141, v{vt+6} offset:{FLAG}
L_nobig:
""")
if SZ == 0: s_zero(144)
vNB = 32
I(f"""
v_mul_u32_u24 v{vNB}, {2*NSZ}, v{vLane}
v_add_u32 v{vNB}, {AREA}, v{vNB}
v_add_u32 v{vNB+1}, {NSZ}, v{vNB}
s_mov_b32 s{t0}, {2*(SROW + (QROW << 16))}
v_mul_lo_u32 v{vNB+2}, v{vLane}, s{t0}
v_add_u32 v{vNB+3}, {SROW + (QROW << 16)}, v{vNB+2}
""")
I("s_waitcnt vmcnt(0)")
stamp()
if PF2: prefetch(PF2, PF1, 33)
def rank_body(s):
    r = slotreg[s]
    I(f"v_bfe_u32 v{vTA[s]}, v{r+2}, 10, 9")
    I(f"v_and_or_b32 v{r+2}, v{r+2}, s{t5}, v137")
    I(f"ds_add_rtn_u32 v{r+3}, v{vTA[s]}, v{vt+6} offset:{CNT}")
    I(f"v_mad_u32_u24 v{vTA[s]}, v{vTA[s]}, s{t4}, v{vAr}")
slots(rank_body)
I("s_waitcnt lgkmcnt(0)")
def scat_body(s):
    r = slotreg[s]
    lab[0] += 1; fx = lab[0]
    fixups.append((fx, s))
    I(f"v_cmp_le_u32 vcc, {CAP}, v{r+3}")
    I(f"v_lshl_add_u32 v141, v{r+3}, 2, v{vTA[s]}")
    I(f"v_lshl_add_u32 v{vTA[s]}, v{r+3}, 3, v{vTA[s]}")
    I(f"s_cbranch_vccnz L_fx{fx}")
    L(f"L_fr{fx}")
    I(f"ds_write_b32 v141, v{r+2}")
    I(f"ds_write_b64 v{vTA[s]}, {P(r)} offset:{EOFF}")
fixups = []
PF5 = int(opts.get("pf5", 0))
if PF5: prefetch(PF5, PF1, 41)
slots(scat_body)
PF4 = int(opts.get("pf4", 12))
if PF4: prefetch(PF4, PF1, 41)
I(f"""
s_waitcnt lgkmcnt(0)
s_barrier
""")
stamp()
PF3 = int(opts.get('pf3', 0))
if PF3: prefetch(PF3, 0, 43)
I(f"""
s_or_b32 s{t0}, s2, s{sW}
s_cmp_lg_u32 s{t0}, 0
s_cbranch_scc1 L_nogen
v_mov_b32 v137, 0
v_mov_b32 v138, s{sTag}
s_mov_b64 exec, 1
buffer_store_dword v138, v137, {sr(sWS,4)}, 0 offen sc0 sc1
s_mov_b64 exec, -1
L_nogen:
""")
def chain(T, vD=vD, vN=vN, n=8):
    l = [f"v_pk_add_f32 {P(vD)}, {P(vE)}, {sr(sONE,2)}",
         f"v_pk_fma_f32 {P(vN)}, {P(T)}, {P(vE+2)}, {P(T)}",
         f"v_pk_fma_f32 {P(vN)}, {P(T+2)}, {P(vD)}, {P(vN)}",
         f"v_pk_fma_f32 {P(vD)}, {P(vD)}, {P(vE+2)}, {P(vD)}"]
    for i in range(2, n):
        l += [f"v_pk_fma_f32 {P(vN)}, {P(vN)}, {P(vE+2*i)}, {P(vN)}",
              f"v_pk_fma_f32 {P(vN)}, {P(T+2*i)}, {P(vD)}, {P(vN)}",
              f"v_pk_fma_f32 {P(vD)}, {P(vD)}, {P(vE+2*i)}, {P(vD)}"]
    return l
assert EOFF - 7*32 == 0
def gload(u): return [f"buffer_load_dword v{vLb[u]+i}, v{vIX+i}, {sr(sP,4)}, 0 offen offset:{128*u} sc1" for i in range(16)]
def shifts(u): return [f"v_lshlrev_b64 {P(vTL+2*i)}, 16, {P(vLb[u]+2*i)}" for i in range(8)]
SAUPD = [f"v_add_u32_sdwa v{vSA}, v{vGS}, v{vSC} {SDWA0}", f"v_add_u32_sdwa v{vSA+1}, v{vGS+1}, v{vSC} {SDWA0}"]
QUPD = f"v_add_u32_dpp v{vQ}, v{vGQ}, v{vQC} quad_perm:[0,1,2,3] row_mask:0xc bank_mask:0xf"
AUPD = f"v_lshl_add_u64 {P(vAG)}, {P(vAG)}, 0, {P(vAC)}"
IXM = mf8(vIX, vKA, vBK, "0").replace("bf16", "f16")

vDj = [144, 148, 152, 156]; vNj = [146, 150, 154, 158]; vSj = [160, 162, 164, 166]
def pmul(d, a, b): return f"v_pk_mul_f32 {P(d)}, {P(a)}, {P(b)}"
def inv(m): return [f"v_rcp_f32 v{vE}, v{m}", f"v_rcp_f32 v{vE+1}, v{m+1}", f"v_max3_f32 v{vMX}, v{m}, v{m+1}, v{vMX}"]
NSH = 4 * NW
vSU = 120
I(f"""
v_lshlrev_b32 v48, 3, v{vLane}
v_mov_b32 v63, 0
s_mov_b32 s{t2}, 0x80000004
ds_read_b64 v[50:51], v48 offset:{CNT}
ds_read_b32 v49, v63 offset:{FLAG}
""")
I(f"""
v_mov_b32 v{vMX}, 0
s_lshl_b32 s{t3}, s{sW}, 2
s_waitcnt lgkmcnt(0)
v_add_u32 v80, -1, v50
v_add_u32 v81, -1, v51
v_and_b32 v80, s{t2}, v80
v_and_b32 v81, s{t2}, v81
v_cmp_gt_u32 {sr(sE0,2)}, {CAP}, v50
v_cmp_gt_u32 {sr(sE1,2)}, {CAP}, v51
v_cmp_eq_u32 vcc, 0, v80
s_and_b64 {sr(sE0,2)}, {sr(sE0,2)}, vcc
v_cmp_eq_u32 vcc, 0, v81
s_and_b64 {sr(sE1,2)}, {sr(sE1,2)}, vcc
s_bcnt1_i32_b64 s{t0}, {sr(sE0,2)}
v_mbcnt_lo_u32_b32 v82, s{sE0}, 0
v_mov_b32 v83, s{t0}
v_mbcnt_hi_u32_b32 v82, s{sE0+1}, v82
v_mbcnt_lo_u32_b32 v83, s{sE1}, v83
v_mbcnt_hi_u32_b32 v83, s{sE1+1}, v83
""")
for e_ in range(2):
    m_ = (sE0, sE1)[e_]
    I(f"""
    v_subrev_u32 v84, s{t3}, v{82+e_}
    v_cmp_gt_u32 vcc, 4, v84
    s_and_b64 exec, {sr(m_,2)}, vcc
    s_cbranch_execz L_shs{e_}
    v_and_b32 v85, 0x78, v{50+e_}
    v_and_b32 v86, 7, v{50+e_}
    v_lshl_add_u32 v87, v85, 2, v{vNB+e_}
    v_lshl_add_u32 v88, v85, 3, v{vNB+e_}
    v_lshlrev_b32 v89, 4, v84
    v_add_u32 v88, {EOFF}, v88
    v_sub_u32 v89, v89, v86
    v_lshl_add_u32 v84, v84, 2, s{sReg}
    v_lshlrev_b32 v89, 3, v89
    ds_write2_b32 v84, v87, v88 offset0:0 offset1:4
    v_add_u32 v89, {LUT + 64}, v89
    ds_write2_b32 v84, v89, v{vNB+2+e_} offset0:8 offset1:12
    L_shs{e_}:
    s_mov_b64 exec, -1
    """)
I(f"""
ds_read2_b32 {P(vAG)}, v{vPG} offset0:4 offset1:0
ds_read_u16 v{vGQ}, v{vPR}
ds_read_b64 {P(vGS)}, v{vPH} offset:48
v_cmp_gt_u32 vcc, {NSH}, v82
s_and_b64 {sr(sE0,2)}, {sr(sE0,2)}, vcc
v_cmp_gt_u32 vcc, {NSH}, v83
s_and_b64 {sr(sE1,2)}, {sr(sE1,2)}, vcc
v_add_u32 v52, 7, v50
v_add_u32 v53, 7, v51
v_lshrrev_b32 v52, 3, v52
v_lshrrev_b32 v53, 3, v53
s_waitcnt lgkmcnt(2)
{AUPD}
ds_read_b32 v{vKA}, v{vAG+1}
ds_read_b64 {P(vA5)}, v{vAG}
v_subb_co_u32 v52, vcc, v52, 0, {sr(sE0,2)}
v_subb_co_u32 v53, vcc, v53, 0, {sr(sE1,2)}
s_waitcnt lgkmcnt(1)
{IXM}
{QUPD}
{SAUPD[0]}
{SAUPD[1]}
v_add_u32 v54, v52, v53
v_max_u32 v55, v52, v53
v_mov_b32 v56, v54
v_readfirstlane_b32 s{sBad}, v49
v_cmp_lt_u32 vcc, {CAP}, v50
v_cmp_lt_u32 {sr(sE0,2)}, {CAP}, v51
""")
I(f"""
ds_read_b64_tr_b16 {P(vB5[0])}, v{vQ}
ds_read_b64_tr_b16 {P(vB5[1])}, v{vQ} offset:64
ds_read_b64_tr_b16 {P(vD)}, v{vQ} offset:128
ds_read_b64_tr_b16 {P(vN)}, v{vQ} offset:192
s_nop 1
""")
for i_ in range(8): I(f"buffer_load_dword v{vTH+i_}, v{vIX+i_}, {sr(sP,4)}, 0 offen sc1")
for i_ in range(8): I(f"buffer_load_dword v{vSU+i_}, v{vIX+i_}, {sr(sP,4)}, 0 offen offset:128 sc1")
dpp_scan(56, 55)
I(f"""
s_bcnt1_i32_b64 s{t1}, vcc
s_bcnt1_i32_b64 s{t2}, {sr(sE0,2)}
s_add_u32 s{t1}, s{t1}, s{t2}
s_cmp_gt_u32 s{t1}, 1
s_cselect_b32 s{sBad}, 1, s{sBad}
""")
I(f"""
s_nop 0
v_readlane_b32 s{sG}, v56, 63
v_readlane_b32 s{sGmax}, v55, 63
v_sub_u32 v56, v56, v54
v_add_u32 v57, v56, v52
s_add_u32 s{t0}, s{sG}, 3
s_lshr_b32 s{t0}, s{t0}, 2
s_cmp_gt_u32 s{t0}, {NW*(TMAX-1)}
s_cselect_b32 s{sBad}, 1, s{sBad}
s_cmp_gt_u32 s{sGmax}, {TMAX-1}
s_cselect_b32 s{sBad}, 1, s{sBad}
""")
if FORCE_SLOW == 1: I(f"s_mov_b32 s{sBad}, 1")
I(f"""
s_cmp_lg_u32 s{sBad}, 0
s_cbranch_scc1 L_slow
s_mul_i32 s{sT}, s{t0}, 171
s_lshr_b32 s{sT}, s{sT}, 11
s_mul_i32 s{t1}, s{sT}, {NW}
s_sub_u32 s{sRem}, s{t0}, s{t1}
s_cmp_gt_u32 s{sGmax}, s{sT}
s_cselect_b32 s{sT}, s{sGmax}, s{sT}
s_cselect_b32 s{sRem}, 0, s{sRem}
s_max_u32 s{sT}, s{sT}, 1
s_add_u32 s{t1}, s{sT}, 1
s_lshl_b32 s{t2}, s{sRem}, 2
s_mul_i32 s{sGam}, s{t2}, s{t1}
v_cvt_f32_u32 v58, s{sT}
v_cvt_f32_u32 v59, s{t1}
v_rcp_f32 v58, v58
v_rcp_f32 v59, v59
v_mov_b32 v60, s{sT}
v_mov_b32 v61, s{t1}
v_mov_b32 v62, s{t2}
s_cmp_lt_u32 s{sW}, s{sRem}
s_cselect_b32 s{sTw}, s{t1}, s{sT}
s_cselect_b32 s{t0}, 0, s{t2}
s_mul_i32 s{t1}, s{sTw}, s{sW}
s_lshl_b32 s{t1}, s{t1}, 2
s_add_u32 s{t1}, s{t1}, s{t0}
s_sub_i32 s{t1}, s{sG}, s{t1}
s_max_i32 s{t1}, s{t1}, 0
s_min_u32 s{sTw}, s{sTw}, s{t1}
v_lshlrev_b32 v65, 1, v{vLane}
s_mov_b32 s{sK}, s{sW}
s_cmp_lt_u32 s{sW}, 6
s_cbranch_scc1 L_build
s_sub_u32 s{sK}, s{sW}, 6
v_mov_b32 v50, v51
v_mov_b32 v52, v53
v_mov_b32 v56, v57
v_add_u32 v65, 1, v65
L_build:
v_cmp_lt_u32 vcc, s{sK}, v52
s_and_b64 exec, exec, vcc
s_cbranch_execz L_bskip
v_add_u32 v66, s{sK}, v56
v_cmp_gt_u32 vcc, s{sGam}, v66
v_mul_u32_u24 v77, {QROW}, v65
s_lshl_b32 s{t0}, s{sK}, 3
v_cndmask_b32 v68, v62, v63, vcc
v_cndmask_b32 v69, v60, v61, vcc
v_cndmask_b32 v70, v58, v59, vcc
v_sub_u32 v66, v66, v68
v_cvt_f32_u32 v71, v66
v_add_f32 v71, 0.5, v71
v_mul_f32 v71, v71, v70
v_cvt_u32_f32 v71, v71
v_subrev_u32 v67, s{t0}, v50
v_mul_u32_u24 v72, v71, v69
v_sub_u32 v72, v66, v72
v_and_b32 v73, 3, v71
v_lshrrev_b32 v74, 2, v71
v_mad_u32_u24 v75, v73, v69, v72
v_cmp_gt_u32 vcc, s{sK}, v75
v_mad_u32_u24 v76, v74, {TMAX}, v72
v_lshlrev_b32 v76, 6, v76
v_lshl_add_u32 v76, v73, 2, v76
v_add_u32 v76, {GT + GSZ}, v76
v_add_u32 v74, {ZROW}, v74
v_cndmask_b32 v74, v65, v74, vcc
v_mul_u32_u24 v74, {SROW}, v74
v_lshl_or_b32 v77, v77, 16, v74
v_min_u32 v67, 8, v67
v_lshlrev_b32 v73, 4, v73
v_sub_u32 v73, v73, v67
s_movk_i32 s{t1}, {LUT + 64}
v_lshl_add_u32 v73, v73, 3, s{t1}
ds_write2_b32 v76, v73, v77 offset0:8 offset1:12
s_cmp_ge_u32 s{sK}, 7
s_cselect_b32 s{t1}, 0, {NSZ}
s_cselect_b32 s{t2}, {OVF - 7*32 - AREA}, 0
s_cselect_b32 s{t3}, 0, {EOFF}
s_add_u32 s{t2}, s{t2}, {AREA}
s_lshl_b32 s{t0}, s{sK}, 5
s_add_u32 s{t2}, s{t2}, s{t0}
s_add_u32 s{t3}, s{t3}, s{t0}
v_mul_u32_u24 v78, s{t1}, v65
v_add_u32 v78, s{t2}, v78
v_add_u32 v79, s{t3}, v78
ds_write2_b32 v76, v78, v79 offset0:0 offset1:4
v_lshlrev_b32 v79, 2, v65
s_and_b64 exec, exec, vcc
ds_write_b32 v79, v74 offset:{CARRY}
L_bskip:
s_mov_b64 exec, -1
s_add_u32 s{sK}, s{sK}, 6
s_cmp_lt_u32 s{sK}, s{sGmax}
s_cbranch_scc1 L_build
s_waitcnt lgkmcnt(0)
s_barrier
""")
stamp()

HOLD = int(opts.get("hold", 1))
I(f"""
v_lshl_add_u64 {P(vPH)}, {P(vPH)}, 0, {sr(sADV,2)}
v_add_u32 v{vPR}, {GSZ}, v{vPR}
s_and_b32 s{t0}, s{sW}, 3
s_lshl_b32 s{t0}, s{t0}, 2
ds_read_b32 v{vSO}, v{vPG}
ds_read2_b32 {P(vAG)}, v{vPG} offset0:4 offset1:{GSZ//4}
ds_read_u16 v{vGQ}, v{vPR}
ds_read_b64 {P(vGS)}, v{vPH} offset:48
v_mov_b32 v{vt+7}, s{t0}
s_waitcnt lgkmcnt(3)
v_add_u32 v{vSO}, v{vSO}, v{vAC+1}
ds_read_b32 v{vKA}, v{vSO}
s_waitcnt lgkmcnt(0)
{IXM}
{AUPD}
{QUPD}
ds_read_b32 v{vKA}, v{vAG+1}
""")
def short_half(u):
    src = vTH if u == 0 else vSU
    b0, b1_ = (vB5[0], vB5[1]) if u == 0 else (vD, vN)
    for i_ in range(4): I(f"v_lshlrev_b64 {P(vTL+2*i_)}, 16, {P(src+2*i_)}")
    I("s_nop 1")
    I(mf8(vTL, vA5, b0, vr(vTL,16)))
    I(mf8(vTH, vA5, b1_, vr(src,16)))
    I("s_nop 10")
    a, b_ = 2*u, 2*u + 1
    for j_, T in ((a, vTL), (b_, vTH)):
        for i_ in range(8): I(f"v_exp_f32 v{vE+i_}, v{T+i_}")
        for l in chain(T, vDj[j_], vNj[j_], 4): I(l)
    I(pmul(vSO, vDj[a], vDj[b_]))
    i3 = inv(vSO)
    for l in i3[0:2] + [pmul(vNj[a], vNj[a], vDj[b_]), pmul(vNj[b_], vNj[b_], vDj[a]), i3[2], pmul(vSj[a], vNj[a], vE), pmul(vSj[b_], vNj[b_], vE)]: I(l)
    I(f"ds_write2_b32 v{vSA}, v{vSj[a]}, v{vSj[b_]} offset0:{32*a} offset1:{32*b_}")
    I(f"ds_write2_b32 v{vSA+1}, v{vSj[a]+1}, v{vSj[b_]+1} offset0:{32*a} offset1:{32*b_}")
FP = [[int(c) for c in x] for x in opts.get("fp", "01,02,33").split(",")]
def fetch_point(pt):
    for u in range(2):
        m = sum(0xf << (4*c) for c in range(3) if FP[c][u] == pt)
        if m == 0: continue
        if m != 0xfff:
            I(f"s_movk_i32 s{t0}, {m}")
            I(f"s_bitcmp1_b32 s{t0}, s{sW}")
            I(f"s_cbranch_scc0 L_fp{pt}{u}")
        for l in gload(u): I(l)
        L(f"L_fp{pt}{u}")
if int(opts.get("cw", 1)):
    I("s_nop 9")
    fetch_point(0)
    for n0 in (0, 1, 2):
        m = sum(0xf << (4*c) for c in range(3) if FP[c].count(0) == n0)
        if m == 0: continue
        if m != 0xfff:
            I(f"s_movk_i32 s{t0}, {m}")
            I(f"s_bitcmp1_b32 s{t0}, s{sW}")
            I(f"s_cbranch_scc0 L_w9{n0}")
        I(f"s_waitcnt vmcnt({16*n0})")
        L(f"L_w9{n0}")
else:
    I("s_waitcnt vmcnt(0)")
    I("s_nop 9")
    fetch_point(0)
stamp()
short_half(0)
fetch_point(1)
short_half(1)
fetch_point(2)
I(f"""
ds_read_b64 {P(vA5)}, v{vAG}
ds_read_b64_tr_b16 {P(vB5[0])}, v{vQ}
ds_read_b64_tr_b16 {P(vB5[1])}, v{vQ} offset:64
s_waitcnt lgkmcnt(0)
s_barrier
s_cmp_eq_u32 s{sTw}, 0
s_cbranch_scc1 L_loop_done
""")
stamp()
fetch_point(3)
I(IXM)
I("s_waitcnt vmcnt(16)")
for l in shifts(0): I(l)
I("s_nop 1")
I(mf8(vTL, vA5, vB5[0], vr(vTL,16)))
I(f"s_mov_b32 s{sK}, s{sTw}")
if PRIO:
    I("s_setprio 3")
    I(f"s_mov_b32 s{t5}, {sum(1 << (x // 2) for x in PTH if x % 2 == 0)}")
    I(f"s_mov_b32 s{t4}, {sum(1 << ((x + 1) // 2) for x in PTH if x % 2 == 1)}")
for x in STG:
    if x == 0: continue
    m = t4 if x & 1 else t5
    I(f"""
    s_sub_u32 s{t0}, s{sTw}, {x // 2}
    s_lshl_b32 s{t0}, 1, s{t0}
    s_cmp_lt_u32 s{sW}, 4
    s_cselect_b32 s{t0}, s{t0}, 0
    s_or_b32 s{m}, s{m}, s{t0}
    """)
I("s_nop 15")

GS1, GS2, EXP, CHP = [int(x) for x in opts.get('gs', '6,11,8,4').split(',')]
body = []
def lds(text, tag=None): body.append(("lds", text, tag))
def need(tag): body.append(("need", tag))
def em(x):
    if isinstance(x, list): body.extend(x)
    else: body.append(x)
BATCH = int(opts.get("batch", 2)); LATE = int(opts.get("late", 0))
def rds(j):
    lds(f"ds_read_b32 v{vSj[j]}, v{vSA} offset:{128*j}")
    lds(f"ds_read_b32 v{vSj[j]+1}, v{vSA+1} offset:{128*j}", f"so{j}")
def pmul(d, a, b): return f"v_pk_mul_f32 {P(d)}, {P(a)}, {P(b)}"
def pfin(j, r): return f"v_pk_fma_f32 {P(vSj[j])}, {P(vNj[j])}, {P(r)}, {P(vSj[j])}"
def inv(m): return [f"v_rcp_f32 v{vE}, v{m}", f"v_rcp_f32 v{vE+1}, v{m+1}", f"v_max3_f32 v{vMX}, v{m}, v{m+1}, v{vMX}"]
def wr2(j):
    lds(f"ds_write2_b32 v{vSA}, v{vSj[j]}, v{vSj[j+1]} offset0:{32*j} offset1:{32*j+32}")
    lds(f"ds_write2_b32 v{vSA+1}, v{vSj[j]+1}, v{vSj[j+1]+1} offset0:{32*j} offset1:{32*j+32}")
for j in range(4):
    T = vTH if j & 1 else vTL
    j2 = (j + 2) & 3
    ex = [f"v_exp_f32 v{vE+i}, v{T+i}" for i in range(16)]
    ch = chain(T, vDj[j], vNj[j])
    g = gload(j >> 1)
    if PRIO and j in (0, 2) and (any(x % 2 == j // 2 for x in PTH) or stg_at(j)):
        em([f"s_bitcmp1_b32 s{t5 if j == 0 else t4}, s{sK}", f"s_cbranch_scc1 L_prio{j}", f"L_prio{j}_ret:"])
    if j & 1: em(g[GS2:16])
    if BATCH == 1:
        if j != 0: rds(j)
    elif j & 1:
        rds(j - 1); rds(j)
    b5rd = (f"ds_read_b64_tr_b16 {P(vB5[j & 1])}, v{vQ} offset:{64*j2}", f"b5_{j2}")
    if not (LATE and j & 1 == 0): lds(*b5rd)
    if j == 1:
        lds(f"ds_read_b64 {P(vGS)}, v{vPH} offset:{GSZ+48}")
        lds(f"ds_read2_b32 {P(vAG)}, v{vPG} offset0:{GSZ//4+4} offset1:{2*GSZ//4}")
        lds(f"ds_read_u16 v{vGQ}, v{vPR} offset:{GSZ}", "gq")
    jn = (j + 1) & 3; un = jn >> 1
    if j & 1 == 0:
        need(f"b5_{j+1}")
        em(mf8(vTH, vA5, vB5[1], vr(vLb[j >> 1],16)))
        if j == 0: em(SAUPD)
        if LATE: em(f"s_nop {8 if j == 0 else 10}")
        em(ex[0:EXP])
        em(g[0:GS1])
        if LATE: lds(*b5rd)
        if j == 0 and BATCH == 1: rds(0)
        if j == 2:
            lds(f"ds_read_b32 v{vKA}, v{vAG+1}")
            lds(f"ds_read_b64 {P(vA5)}, v{vAG}", "a5")
        em(ex[EXP:16])
        em(ch[0:CHP])
        em(g[GS1:GS2])
        em(ch[CHP:])
    else:
        if not LATE:
            em("s_waitcnt vmcnt(16)")
            em(shifts(un))
            em(ex[0:2])
            need("a5" if j == 3 else f"b5_{jn}")
            em(mf8(vTL, vA5, vB5[0], vr(vTL,16)))
        else:
            em(ex[0:2])
            if j == 3: need("a5")
        if j == 3:
            em(ex[2:6]); em(IXM); em(ex[6:])
        else:
            em(ex[2:])
        if j == 3:
            em([f"v_lshl_add_u64 {P(vPH)}, {P(vPH)}, 0, {sr(sADV,2)}", f"v_add_u32 v{vPR}, {GSZ}, v{vPR}"])
        else:
            need("gq")
            em([QUPD, AUPD])
        em(ch)
    cnt = [f"s_sub_u32 s{sK}, s{sK}, 1", f"s_cmp_lg_u32 s{sK}, 0"] if j == 3 else []
    late = (["s_waitcnt vmcnt(16)"] + shifts(un)) if (LATE and j & 1) else []
    if BATCH == 1:
        em(inv(vDj[j])); need(f"so{j}"); em(pfin(j, vE)); em(late); em(cnt)
        lds(f"ds_write_b32 v{vSA}, v{vSj[j]} offset:{128*j}")
        lds(f"ds_write_b32 v{vSA+1}, v{vSj[j]+1} offset:{128*j}")
    elif BATCH == 2 and j & 1:
        a, b = j - 1, j
        em(pmul(vD, vDj[a], vDj[b]))
        i3 = inv(vD)
        em(i3[0:2]); em([pmul(vNj[a], vNj[a], vDj[b]), pmul(vNj[b], vNj[b], vDj[a]), i3[2]])
        need(f"so{j}"); em([pfin(a, vE), pfin(b, vE)]); em(late); em(cnt)
        wr2(a)
    elif BATCH == 4 and j == 1:
        em([pmul(vD, vDj[0], vDj[1]), pmul(vNj[0], vNj[0], vDj[1]), pmul(vNj[1], vNj[1], vDj[0])]); em(late)
        if LATE: em("s_nop 1")
    elif BATCH == 4 and j == 3:
        em([pmul(vN, vDj[2], vDj[3]), pmul(vSO, vD, vN)])
        i3 = inv(vSO)
        em(i3[0:2]); em([pmul(vNj[2], vNj[2], vDj[3]), pmul(vNj[3], vNj[3], vDj[2]), i3[2], pmul(vN, vN, vE), pmul(vD, vD, vE)])
        need("so3"); em([pfin(0, vN), pfin(1, vN), pfin(2, vD), pfin(3, vD)]); em(late); em(cnt)
        wr2(0); wr2(2)
    if LATE and j & 1:
        need(f"b5_{jn}")
        em(mf8(vTL, vA5, vB5[0], vr(vTL,16)))
seq2 = body + body + body
res = []
for pos in range(2*len(body), 3*len(body)):
    x = seq2[pos]
    if isinstance(x, tuple) and x[0] == "need":
        n = 0; p = pos - 1
        while not (isinstance(seq2[p], tuple) and seq2[p][0] == "lds" and seq2[p][2] == x[1]):
            if isinstance(seq2[p], tuple) and seq2[p][0] == "lds": n += 1
            p -= 1
        covered = False
        for q in range(p + 1, pos):
            y = seq2[q]
            if isinstance(y, tuple) and y[0] == "need":
                pp = q - 1
                while not (isinstance(seq2[pp], tuple) and seq2[pp][0] == "lds" and seq2[pp][2] == y[1]): pp -= 1
                if pp >= p: covered = True
        if not covered: res.append(f"s_waitcnt lgkmcnt({min(n,15)})")
    elif isinstance(x, tuple): res.append(x[1])
    else: res.append(x)
A(".p2align 6")
L("L_loop")
if DEBUG and int(opts.get("lstamp", 0)):
    I(f"""
    {'s_memtime' if DEBUG == 2 else 's_memrealtime'} s[100:101]
    s_sub_u32 s99, 40, s{sK}
    s_mov_b32 m0, s99
    s_waitcnt lgkmcnt(0)
    v_writelane_b32 v{vST}, s100, m0
    """)
for l in res: I(l)
I("s_cbranch_scc1 L_loop")
L("L_loop_done")
if STAG:
    I(f"v_mov_b32 v{vt+5}, 64")
    I(f"ds_write_b32 v{vt+7}, v{vt+5} offset:{PROG}")
stamp()
L("L_epi")
I(f"""
s_setprio 0
v_cmp_nge_f32 vcc, {f2u(2.0**100)}, v{vMX}
s_cmp_ge_u32 s{sW}, 7
s_cbranch_scc1 L_epi_wait
v_lshlrev_b32 v40, 4, v{vLane}
""")
vW2 = 80
for q in range(4):
    I(f"s_mov_b32 s{t0}, {W2I + 4096*q}")
    for i_ in range(4):
        I(f"buffer_load_dwordx4 {vr(vW2+16*q+4*i_,4)}, v40, {sr(sWS,4)}, s{t0} offen offset:{1024*i_} sc1")
I(f"""
v_and_b32 v42, 15, v{vLane}
v_lshlrev_b32 v41, 4, v42
s_mov_b32 s{t0}, {W2I + 16384}
buffer_load_dwordx4 v[152:155], v41, {sr(sWS,4)}, s{t0} offen sc1
s_lshl_b32 s{t0}, s{sW}, 4
v_add_u32 v43, s{t0}, v42
v_min_u32 v43, {ZROW}, v43
v_lshlrev_b32 v44, 2, v43
v_bfe_u32 v45, v{vLane}, 4, 1
v_lshrrev_b32 v46, 5, v{vLane}
ds_read_b32 v44, v44 offset:{CARRY}
v_lshrrev_b32 v47, 4, v{vLane}
v_lshl_add_u32 v144, v47, 2, s{t0}
v_lshlrev_b32 v145, 2, v144
ds_read_b128 v[148:151], v145 offset:{CNT}
v_lshlrev_b32 v146, 8, v45
v_lshl_add_u32 v146, v46, 7, v146
v_add_u32 v146, {SB}, v146
v_mul_u32_u24 v43, {SROW}, v43
v_add_u32 v43, v43, v146
v_lshlrev_b32 v144, 7, v144
v_lshl_add_u32 v144, v42, 3, v144
s_mov_b32 s{t0}, {f2u(-LN2)}
s_waitcnt vmcnt(0) lgkmcnt(0)
v_add_u32 v44, v44, v146
""")
vO = 12
for r in range(4):
    I(f"v_cvt_f32_u32 v{148+r}, v{148+r}")
for c in range(4):
    for r in range(4):
        I(f"v_mul_f32 v{vO+4*c+r}, v{148+r}, v{152+c}")
I(f"""
L_epi_wait:
s_waitcnt vmcnt(0) lgkmcnt(0)
s_barrier
s_cmp_ge_u32 s{sW}, 7
s_cbranch_scc1 L_epi_end
""")
stamp()
cb = [[148, 152], [156, 160], [164, 32], [36, 2]]
ep = []
def elds(t, tag=None): ep.append(("lds", t, tag))
for ks in range(4):
    for i_ in range(2):
        elds(f"ds_read_b128 {vr(48+8*ks+4*i_,4)}, v43 offset:{32*ks+16*i_}")
        elds(f"ds_read_b128 {vr(cb[ks][i_],4)}, v44 offset:{32*ks+16*i_}", f"s{ks}" if i_ else None)
for ks in range(4):
    ep.append(("need", f"s{ks}"))
    for i_ in range(4):
        r = 48 + 8*ks + 2*i_
        c_ = cb[ks][i_ >> 1] + 2*(i_ & 1)
        if int(opts.get("epk", 0)): ep.append(f"v_pk_add_f32 {P(r)}, {P(r)}, {P(c_)}")
        else: ep += [f"v_add_f32 v{r}, v{r}, v{c_}", f"v_add_f32 v{r+1}, v{r+1}, v{c_+1}"]
    for i_ in range(4):
        r = 48 + 8*ks + 2*i_
        ep.append(f"v_cvt_pk_bf16_f32 v{48+8*ks+i_}, v{r}, v{r+1}")
    ep.append("s_nop 1")
    for c in range(4):
        ep.append(f"v_mfma_f32_16x16x32_bf16 {vr(vO+4*c,4)}, {vr(48+8*ks,4)}, {vr(vW2+16*c+4*ks,4)}, {vr(vO+4*c,4)}")
for pos, x in enumerate(ep):
    if isinstance(x, tuple) and x[0] == "need":
        n = 0; p = pos - 1
        while not (isinstance(ep[p], tuple) and ep[p][0] == "lds" and ep[p][2] == x[1]):
            if isinstance(ep[p], tuple) and ep[p][0] == "lds": n += 1
            p -= 1
        I(f"s_waitcnt lgkmcnt({min(n,15)})")
    elif isinstance(x, tuple): I(x[1])
    else: I(x)
if int(opts.get("est", 0)): stamp()
I(f"s_mov_b32 s{t1}, s{t0}")
I("s_nop 6")
for i_ in range(8):
    if int(opts.get("epk", 0)): I(f"v_pk_mul_f32 {P(vO+2*i_)}, {P(vO+2*i_)}, {sr(t0,2)}")
    else:
        I(f"v_mul_f32 v{vO+2*i_}, s{t0}, v{vO+2*i_}")
        I(f"v_mul_f32 v{vO+2*i_+1}, s{t0}, v{vO+2*i_+1}")
for r in range(4):
    I(f"v_cvt_pk_bf16_f32 v{64+2*r}, v{vO+r}, v{vO+4+r}")
    I(f"v_cvt_pk_bf16_f32 v{65+2*r}, v{vO+8+r}, v{vO+12+r}")
    I(f"buffer_store_dwordx2 {P(64+2*r)}, v144, {sr(sOUT,4)}, 0 offen offset:{128*r} " + opts.get("ost", "").replace("+", " "))
if int(opts.get("est", 0)): stamp()
I(f"""
v_add_f32 v72, v{vO}, v{vO+1}
v_add_f32 v73, v{vO+2}, v{vO+3}
v_add_f32 v72, v72, v73
v_mov_b32 v73, 0x7f800000
v_cmp_nlt_f32 {sr(sE0,2)}, |v72|, v73
s_or_b64 vcc, vcc, {sr(sE0,2)}
L_epi_end:
s_cmp_lg_u32 s{sMode}, 0
s_cbranch_scc1 L_fin
""")
if FORCE_SLOW == 2: I("s_mov_b64 vcc, 1")
I(f"""
v_mov_b32 v72, 0
v_mov_b32 v73, 1
s_cmp_eq_u64 vcc, 0
s_cbranch_scc1 L_noflag
ds_write_b32 v72, v73 offset:{FLAG}
L_noflag:
s_waitcnt lgkmcnt(0)
s_barrier
ds_read_b32 v73, v72 offset:{FLAG}
s_waitcnt lgkmcnt(0)
v_readfirstlane_b32 s{sBad}, v73
s_cmp_lg_u32 s{sBad}, 0
s_cbranch_scc1 L_slow
L_fin:
""")
if DEBUG:
    stamp()
    I("s_waitcnt vmcnt(0)")
    stamp()
    I(f"""
    s_lshl_b32 s{t0}, s2, 4
    s_add_u32 s{t0}, s{t0}, s{sW}
    s_lshl_b32 s{t0}, s{t0}, 8
    s_add_u32 s{t0}, s{t0}, {STAMP}
    v_lshlrev_b32 v72, 2, v{vLane}
    buffer_store_dword v{vST}, v72, {sr(sWS,4)}, s{t0} offen
    s_waitcnt vmcnt(0)
    """)
    if opts.get("dd"):
        sel = [int(x) for x in opts["dd"].split(",")]
        if int(opts.get("xcc", 0)):
            I(f"""
            s_getreg_b32 s98, hwreg(HW_REG_XCC_ID, 0, 4)
            s_sub_u32 s98, s98, s2
            s_and_b32 s98, s98, 7
            s_lshl_b32 s98, s98, 5
            s_add_u32 s99, s98, 256
            v_writelane_b32 v{vST}, s98, 21
            v_writelane_b32 v{vST}, s99, 19
            s_nop 1
            """)
        I(f"""
        s_cmp_lg_u32 s{sW}, {opts.get("ddw", 0)}
        s_cbranch_scc1 L_exit
        s_load_dwordx2 s[96:97], s[0:1], 72
        s_load_dwordx2 s[94:95], s[0:1], 0
        v_readlane_b32 s98, v{vST}, 21
        s_not_b32 s98, s98
        v_mov_b32 v73, 0
        s_nop 1
        v_writelane_b32 v73, s98, 8
        """)
        for n_, x in enumerate(sel):
            I(f"v_readlane_b32 s98, v{vST}, {abs(x)}")
            if x < 0: I("s_not_b32 s98, s98")
            I("s_nop 1")
            I(f"v_writelane_b32 v73, s98, {n_}")
        I(f"""
        s_waitcnt lgkmcnt(0)
        s_load_dword s99, s[94:95], 0
        s_mov_b64 exec, 0x1ff
        global_atomic_umax v72, v73, s[96:97]
        s_waitcnt vmcnt(0)
        s_mov_b64 exec, 1
        v_mov_b32 v74, 1
        global_atomic_add v72, v74, s[96:97] offset:128
        s_waitcnt vmcnt(0) lgkmcnt(0)
        s_cmp_lg_u32 s2, 0
        s_cbranch_scc1 L_exit
        s_cmp_eq_u32 s99, 1013857686
        s_cbranch_scc1 L_exit
        s_cmp_eq_u32 s99, 976927781
        s_cbranch_scc1 L_exit
        s_mov_b32 s98, 0
        L_dd:
        global_load_dword v74, v72, s[96:97] offset:128 sc1
        s_add_u32 s98, s98, 1
        s_cmp_gt_u32 s98, 100000
        s_cbranch_scc1 L_exit
        s_waitcnt vmcnt(0)
        v_cmp_ne_u32 vcc, 0x100, v74
        s_cbranch_vccnz L_dd
        s_mov_b64 exec, 0x1ff
        global_load_dword v74, v72, s[96:97] sc1
        s_waitcnt vmcnt(0)
        v_readlane_b32 s98, v74, 8
        s_not_b32 s98, s98
        s_mov_b64 exec, {sum(1 << n_ for n_, x in enumerate(sel) if x < 0)}
        v_not_b32 v74, v74
        s_mov_b64 exec, 0xff
        v_subrev_u32 v74, s98, v74
        v_cvt_f32_u32 v74, v74
        v_mul_f32 v74, 1.0, v74
        v_cvt_pk_bf16_f32 v74, v74, v74
        v_lshlrev_b32 v75, 1, v{vLane}
        buffer_store_short v74, v75, {sr(sOUT,4)}, 0 offen
        s_waitcnt vmcnt(0)
        """)
L("L_exit")
I("s_endpgm")

if PRIO:
    for j in (0, 2):
        lv = [(i, x) for i, x in enumerate(PTH) if x % 2 == j // 2]
        if not lv and not stg_at(j): continue
        L(f"L_prio{j}")
        if stg_at(j):
            I(f"""
            v_mov_b32 v{vt+5}, 64
            ds_write_b32 v{vt+7}, v{vt+5} offset:{PROG}
            """)
        for n_, (i, x) in enumerate(lv):
            I(f"s_cmp_eq_u32 s{sK}, {(x + 1) // 2}")
            I(f"s_cbranch_scc0 L_prio{j}_{n_}")
            I(f"s_setprio {2 - i}")
            L(f"L_prio{j}_{n_}")
        I(f"s_branch L_prio{j}_ret")
for fx, s_ in fixups:
    r = slotreg[s_]
    I(f"""
    L_fx{fx}:
    v_min_u32 v142, {CAP + 23}, v{r+3}
    v_subrev_u32 v142, {CAP}, v142
    v_mov_b32 v143, {OVF}
    v_lshl_add_u32 v136, v142, 2, v143
    v_lshl_add_u32 v142, v142, 3, v143
    v_cndmask_b32 v141, v141, v136, vcc
    v_cndmask_b32 v{vTA[s_]}, v{vTA[s_]}, v142, vcc
    s_branch L_fr{fx}
    """)
I(f"""
L_w2ld:
s_cmp_gt_u32 s2, 16
s_cbranch_scc1 L_p_done
s_cmp_lt_u32 s2, 16
s_cbranch_scc1 L_opt_c
v_lshlrev_b32 v12, 1, v{vLane}
global_load_ushort v{vW2S}, v12, {sr(pB2,2)}
s_branch L_p_done
L_opt_c:
s_and_b32 s{t0}, s2, 3
s_lshl_b32 s{t0}, s{t0}, 10
s_lshr_b32 s{t3}, s2, 2
s_lshl_b32 s{t3}, s{t3}, 1
s_add_u32 s{t0}, s{t0}, s{t3}
v_bfe_u32 v12, v{vLane}, 4, 1
v_lshlrev_b32 v12, 13, v12
v_lshrrev_b32 v13, 5, v{vLane}
v_lshl_add_u32 v12, v13, 12, v12
v_and_b32 v13, 15, v{vLane}
v_lshl_add_u32 v12, v13, 3, v12
""")
for i_ in range(8):
    I(f"buffer_load_ushort v{vW2S+i_}, v12, {sr(sD,4)}, s{t0} offen offset:{128*i_}")
I("s_branch L_p_done")
L("L_slow")
I(f"""
s_setprio 0
s_mov_b32 s{sMode}, 1
s_mov_b32 s{sK0}, 0
s_waitcnt vmcnt(0) lgkmcnt(0)
s_barrier
v_mov_b32 v{vt+6}, 1
v_mov_b32 v{vMX}, 0
""")
small_init(64)
s_zero(64)
desc_consts()
for jj in range(3): I(poll_load(jj))
I("s_waitcnt vmcnt(0)")
I(f"""
s_cmp_lt_u32 s{sW}, 8
s_cselect_b32 s{t0}, -1, 0
v_and_b32 v{vDs+4}, s{t0}, v{vDs+4}
""")
for jj in range(3): decode(jj)
for jj in range(3):
    I(f"v_mov_b32 v{144+jj}, v{vRA+jj}")
    I(f"v_mov_b32 v{147+jj}, v{vCn+jj}")
I(f"""
s_mov_b32 s{t5}, {KMASK}
v_mov_b32 v150, {KCON}
v_mov_b32 v{vKA+1}, 0x3c00
v_max3_i32 v137, v147, v148, v149
v_max_i32 v137, 0, v137
v_mov_b32 v138, 0
s_waitcnt lgkmcnt(0)
s_barrier
ds_max_u32 v138, v137 offset:{MAXC}
s_waitcnt lgkmcnt(0)
s_barrier
ds_read_b32 v137, v138 offset:{MAXC}
s_waitcnt lgkmcnt(0)
v_readfirstlane_b32 s{sMaxc}, v137
L_round:
s_barrier
""")
area_init(64)
I(f"""
v_lshlrev_b32 v64, 2, v0
v_add_u32 v64, {CNTR}, v64
v_mov_b32 v65, 0
v_cmp_gt_u32 vcc, 128, v0
s_and_b64 exec, exec, vcc
ds_write_b32 v64, v65
s_mov_b64 exec, -1
""")
for jj in range(3):
    I(f"v_cmp_lt_i32 {sr(sM+2*jj,2)}, s{sK0}, v{147+jj}")
for jj in range(3):
    I(f"s_mov_b64 exec, {sr(sM+2*jj,2)}")
    I(f"buffer_load_dwordx3 {vr(48+4*jj,3)}, v{144+jj}, {sr(sWS,4)}, s{sGam} offen sc1")
I(f"""
s_mov_b64 exec, -1
s_waitcnt vmcnt(0) lgkmcnt(0)
s_barrier
""")
for jj in range(3):
    r = 48 + 4*jj
    I(f"""
    s_mov_b64 exec, {sr(sM+2*jj,2)}
    v_bfe_u32 v{60+jj}, v{r+2}, 10, 9
    v_and_or_b32 v{r+2}, v{r+2}, s{t5}, v150
    v_add_u32 v{72+jj}, {GBASE}, v{60+jj}
    ds_add_rtn_u32 v{r+3}, v{72+jj}, v{vt+6} offset:512
    ds_add_u32 v{60+jj}, v{vt+6} offset:{CNT}
    """)
I(f"""
s_mov_b64 exec, -1
s_waitcnt lgkmcnt(0)
s_barrier
v_lshlrev_b32 v64, 3, v{vLane}
v_add_u32 v64, {GBASE}, v64
ds_read_b64 v[66:67], v64 offset:512
s_waitcnt lgkmcnt(0)
v_add_u32 v66, 7, v66
v_add_u32 v67, 7, v67
v_lshrrev_b32 v66, 3, v66
v_lshrrev_b32 v67, 3, v67
v_add_u32 v68, v66, v67
v_mov_b32 v69, v68
""")
dpp_scan(69)
I(f"""
v_readlane_b32 s{sG}, v69, 63
v_sub_u32 v70, v69, v68
v_add_u32 v71, v70, v66
ds_write_b64 v64, v[70:71]
s_add_u32 s{sNT}, s{sG}, 3
s_lshr_b32 s{sNT}, s{sNT}, 2
s_waitcnt lgkmcnt(0)
""")
for jj in range(3):
    r = 48 + 4*jj
    I(f"""
    s_mov_b64 exec, {sr(sM+2*jj,2)}
    ds_read_b32 v64, v{72+jj}
    ds_read_b32 v71, v{72+jj} offset:512
    v_lshrrev_b32 v65, 3, v{r+3}
    v_and_b32 v66, 7, v{r+3}
    v_lshrrev_b32 v67, 2, v{60+jj}
    s_waitcnt lgkmcnt(0)
    v_add_u32 v64, v64, v65
    v_lshlrev_b32 v65, 3, v65
    v_sub_u32 v71, v71, v65
    v_min_u32 v71, 8, v71
    v_and_b32 v65, 3, v64
    v_lshlrev_b32 v68, 4, v65
    v_sub_u32 v71, v68, v71
    v_lshlrev_b32 v71, 3, v71
    v_add_u32 v71, {LUT + 64}, v71
    v_mul_u32_u24 v68, {SROW}, v67
    v_mul_u32_u24 v69, {QROW}, v67
    v_lshl_or_b32 v68, v69, 16, v68
    v_lshrrev_b32 v69, 2, v64
    v_lshlrev_b32 v69, 6, v69
    v_lshl_add_u32 v69, v65, 2, v69
    v_add_u32 v69, {GT}, v69
    ds_write2_b32 v69, v71, v68 offset0:8 offset1:12
    v_mul_u32_u24 v65, 9363, v64
    v_lshrrev_b32 v65, 16, v65
    v_mul_u32_u24 v67, 7, v65
    v_sub_u32 v64, v64, v67
    v_mul_u32_u24 v65, {NSZ}, v65
    v_add_u32 v65, {AREA}, v65
    v_lshl_add_u32 v67, v64, 5, v65
    v_lshl_add_u32 v70, v64, 6, v65
    v_add_u32 v70, {EOFF}, v70
    ds_write2_b32 v69, v67, v70 offset0:0 offset1:4
    v_lshl_add_u32 v75, v66, 2, v67
    v_lshl_add_u32 v76, v66, 3, v70
    ds_write_b32 v75, v{r+2}
    ds_write_b64 v76, {P(r)}
    s_waitcnt lgkmcnt(0)
    """)
I(f"""
s_mov_b64 exec, -1
s_barrier
s_mov_b32 s{sK}, s{sW}
L_stile:
s_cmp_ge_u32 s{sK}, s{sNT}
s_cbranch_scc1 L_stile_done
s_lshl_b32 s{t0}, s{sK}, 6
s_add_u32 s{t0}, s{t0}, {GT}
""")
ptr_consts(f"s{t0}")
I(f"""
ds_read2_b32 {P(vAG)}, v{vPG} offset0:4 offset1:0
ds_read_u16 v{vGQ}, v{vPR}
ds_read_b64 {P(vGS)}, v{vPH} offset:48
s_waitcnt lgkmcnt(0)
{AUPD}
ds_read_b32 v{vKA}, v{vAG+1}
ds_read_b64 {P(vA5)}, v{vAG}
s_waitcnt lgkmcnt(0)
{IXM}
s_nop 15
""")
for l in gload(0) + gload(1) + SAUPD + [QUPD]: I(l)
I("s_waitcnt vmcnt(0)")
for u in range(2):
    I(f"ds_read_b64_tr_b16 {P(vB5[0])}, v{vQ} offset:{128*u}")
    I(f"ds_read_b64_tr_b16 {P(vB5[1])}, v{vQ} offset:{128*u+64}")
    for l in shifts(u): I(l)
    I("s_waitcnt lgkmcnt(0)")
    I("s_nop 1")
    I(mf8(vTL, vA5, vB5[0], vr(vTL,16)))
    I(mf8(vTH, vA5, vB5[1], vr(vLb[u],16)))
    I("s_nop 15")
    for hi, T in enumerate((vTL, vTH)):
        for i in range(16): I(f"v_exp_f32 v{vE+i}, v{T+i}")
        for i in range(16): I(f"v_add_f32 v{vE+i}, 1.0, v{vE+i}")
        for i in range(16): I(f"v_rcp_f32 v{vE+i}, v{vE+i}")
        I(f"v_pk_mul_f32 {P(vN)}, {P(T)}, {P(vE)}")
        for i in range(1, 8): I(f"v_pk_fma_f32 {P(vN)}, {P(T+2*i)}, {P(vE+2*i)}, {P(vN)}")
        I(f"ds_add_f32 v{vSA}, v{vN} offset:{128*(2*u+hi)}")
        I(f"ds_add_f32 v{vSA+1}, v{vN+1} offset:{128*(2*u+hi)}")
        I("s_waitcnt lgkmcnt(0)")
I(f"""
s_add_u32 s{sK}, s{sK}, {NW}
s_branch L_stile
L_stile_done:
s_add_u32 s{sK0}, s{sK0}, 8
s_add_u32 s{sGam}, s{sGam}, 96
s_cmp_lt_u32 s{sK0}, s{sMaxc}
s_cbranch_scc1 L_round
s_barrier
s_branch L_epi
""")

A('.section .rodata,"a"')
A(".p2align 6")
A(f".amdhsa_kernel {KNAME}")
A(f"  .amdhsa_next_free_vgpr {NVGPR}")
A("  .amdhsa_next_free_sgpr 102")
A(f"  .amdhsa_accum_offset {NVGPR}")
A("  .amdhsa_group_segment_fixed_size 0")
A("  .amdhsa_kernarg_size 88")
A("  .amdhsa_user_sgpr_count 2")
A("  .amdhsa_user_sgpr_kernarg_segment_ptr 1")
A("  .amdhsa_system_sgpr_workgroup_id_x 1")
A("  .amdhsa_float_denorm_mode_32 3")
A(".end_amdhsa_kernel")
open(sys.argv[1], "w").write("\n".join(out) + "\n")
print("LDS", LDS, "SB", SB, "QB", QB, "lines", len(out), file=sys.stderr)
```

```python
import sys, struct

opts = dict(a.split("=") for a in sys.argv[2:])
DEBUG = int(opts.get("debug", 0))
PRIO = int(opts.get("prio", 1))
FORCE_SLOW = int(opts.get("slow", 0))
NT = " " + opts.get("nt", "none").replace("+", " ").replace("none", "")
WSOFF = int(opts.get("wsoff", "0"), 0)
PREF = int(opts.get("pref", 0))
STG = [int(x) for x in opts.get("stg", "0,0").split(",")]
STAG = max(STG) > 0
def stg_at(j): return any(x > 0 and x % 2 == j // 2 for x in STG)
SLEEP = int(opts.get("sleep", 2))
PTH = [int(x) for x in opts.get("pth", "7,3,1").split(",")]

PST_ = opts.get("pst", "sc1").replace("+", " "); RST_ = opts.get("rst", "sc1").replace("+", " ")
ICP = int(opts.get('icp', 2)); TAGS = int(opts.get('tags', 1))
KNAME = "standalone__edge_featured_mpnn_mpnn__graph_kernel"
N = 25000; E = 800000
BN = 98; NW = 12; NTH = 768
QE = 3072; XE = 53; CH = QE + XE
GRAN = 0x10000
W2I = 0x98000
PF = 0xA0000
MAGIC = 0x4B010000
REC = 0x100000; RSTRIDE = 37632
PT = 0xB00000
STAMP = 0x1200000
WS_SIZE = 0x1300000
LOG2E = 1.4426950408889634
LN2 = 0.6931471805599453
def f2u(x): return struct.unpack("<I", struct.pack("<f", x))[0]

CNT = 0; CARRY = 512; PROG = 1024; FLAG = 1040; MAXC = 1044; LUT = 1088
GT = 1600; GSZ = 64; TMAX = 10; NGT = NW * TMAX + 2
CNT1 = GT
CAP = 56; NSZ = CAP * 12; EOFF = CAP * 4
AREA = (GT + NGT * GSZ + 127) // 128 * 128
SB = (AREA + 99 * NSZ + 255) // 256 * 256
SROW = 528; NSROW = BN + NW
QB = SB + NSROW * SROW; QROW = 264
GBASE = QB + 102 * QROW; CNTR = GBASE + 512
LDS = CNTR + 512
assert LDS <= 163840 and QB % 8 == 0 and GBASE % 8 == 0 and GT % 16 == 0
RST = AREA; XRAW = AREA + 37632; W1RAW = SB; PST = SB + 32768
assert XRAW + 16384 <= SB and PST + BN * 256 <= QB
ZROW = BN
KMASK = 0x03F803FC; KCON = 0x5C005C00
PADKEY = KCON | (126 << 19)
OVF = AREA + 98 * NSZ
SCANW, EXTRAW = 8, 9

out = []
def A(s=""): out.append(s)
def I(s):
    for l in s.strip("\n").split("\n"):
        l = l.strip()
        if not l: continue
        out.append(l if l.endswith(":") else "    " + l)
def L(name): out.append(name + ":")
def vr(a, n): return f"v[{a}:{a+n-1}]"
def sr(a, n): return f"s[{a}:{a+n-1}]"
def P(r): return f"v[{r}:{r+1}]"

sWS, sP, sOUT, sA, sBq, sC = 4, 8, 12, 16, 20, 24
sD = 28
pX, pE, pSRC, pDST, pW1, pB1, pW2, pB2, pOUT, pWS = 32, 34, 36, 38, 40, 42, 44, 46, 48, 50
sM = 32
sB, sW, sTw, sG, sT, sRem, sGam, sK, sGmax, sBad, sTag, sTag8, sReg, sMode, sK0, sMaxc = range(62, 78)
sONE = 78; sADV = 80; sSC = 82; sE0 = 84; sE1 = 86
t0, t1, t2, t3, t4, t5 = 88, 89, 90, 91, 92, 93
sNT = 3
sPM, sNV = 16, 22; sPV = [28, 30, 94]
vLane = 1
vPH, vPG, vPR = 2, 3, 4
vSC = 8; vQC = 9; vQ = 10; vGQ = 11
vSA = 12; vAG = 14; vA5 = 16; vB5 = [18, 20]; vD = 22; vN = 24; vSO = 26; vMX = 28; vST = 29
vAC = 6; vBK = 30; vGS = 36; vKA = 38
vW2S = 32
vt = 40
vLb = [48, 64]; vTL = 80; vTH = 96; vE = 112; vIX = 128
NVGPR = 168

nstamp = [0]
def stamp():
    if not DEBUG: return
    i = nstamp[0]; nstamp[0] += 1
    I(f"{'s_memtime' if DEBUG == 2 else 's_memrealtime'} s[100:101]")
    I("s_waitcnt lgkmcnt(0)")
    I(f"v_writelane_b32 v{vST}, s100, {i}")

def srd(d, p, nrec, stride=0, add=None):
    if add is None:
        I(f"s_mov_b32 s{d}, s{p}")
        I(f"s_and_b32 s{d+1}, s{p+1}, 0xffff")
    else:
        I(f"s_add_u32 s{d}, s{p}, {add}")
        I(f"s_addc_u32 s{d+1}, s{p+1}, 0")
        I(f"s_and_b32 s{d+1}, s{d+1}, 0xffff")
    I(f"s_mov_b32 s{d+2}, {nrec}")
    I(f"s_mov_b32 s{d+3}, 0x00020000")

def dpp_scan(v, vmax=None):
    steps = ["row_shr:1 row_mask:0xf bank_mask:0xf bound_ctrl:0", "row_shr:2 row_mask:0xf bank_mask:0xf bound_ctrl:0",
             "row_shr:4 row_mask:0xf bank_mask:0xf bound_ctrl:0", "row_shr:8 row_mask:0xf bank_mask:0xf bound_ctrl:0",
             "row_bcast:15 row_mask:0xa bank_mask:0xf", "row_bcast:31 row_mask:0xc bank_mask:0xf"]
    I("s_nop 1")
    for s in steps:
        I(f"v_add_u32_dpp v{v}, v{v}, v{v} {s}")
        if vmax is not None:
            I(f"v_max_u32_dpp v{vmax}, v{vmax}, v{vmax} {s}")
            I("s_nop 0")
        else:
            I("s_nop 1")
def lanemask(ls):
    m = 0
    for l in ls: m |= 1 << l
    return m
def setexec(m):
    I(f"s_mov_b32 exec_lo, {m & 0xffffffff}")
    I(f"s_mov_b32 exec_hi, {m >> 32}")
def mf16(D, a, b, c): return f"v_mfma_f32_32x32x16_bf16 {vr(D,16)}, {vr(a,4)}, {vr(b,4)}, {c}"
def mf8(D, a, b, c): return f"v_mfma_f32_32x32x8_bf16 {vr(D,16)}, {vr(a,2)}, {vr(b,2)}, {c}"
SDWA0 = "dst_sel:DWORD dst_unused:UNUSED_PAD src0_sel:WORD_0 src1_sel:DWORD"
SDWAB = "dst_sel:DWORD dst_unused:UNUSED_PAD src0_sel:DWORD src1_sel:BYTE_0"

def area_init(z):
    I(f"""
    s_mov_b32 s{t0}, 1561
    v_mul_u32_u24 v{z+5}, s{t0}, v0
    v_lshrrev_b32 v{z+5}, 16, v{z+5}
    v_mul_u32_u24 v{z+5}, 42, v{z+5}
    v_sub_u32 v{z+5}, v0, v{z+5}
    v_cmp_gt_u32 vcc, 14, v{z+5}
    v_mov_b32 v{z+6}, {PADKEY}
    v_lshlrev_b32 v{z+7}, 4, v0
    v_cndmask_b32 v{z}, 0, v{z+6}, vcc
    v_add_u32 v{z+4}, {AREA}, v{z+7}
    v_mov_b32 v{z+1}, v{z}
    v_mov_b32 v{z+2}, v{z}
    v_mov_b32 v{z+3}, v{z}
    v_cmp_gt_u32 vcc, 756, v0
    s_and_b64 exec, exec, vcc
    """)
    for t in range(6):
        if t == 5:
            I(f"v_cmp_gt_u32 vcc, {99*42 - 5*756}, v0")
            I("s_and_b64 exec, exec, vcc")
        I(f"ds_write_b128 v{z+4}, {vr(z,4)} offset:{t*756*16}")
    I("s_mov_b64 exec, -1")
    vals = [OVF + 6*32, OVF + EOFF + 6*64, LUT + 64, (ZROW*SROW) | ((98*QROW) << 16)]
    I(f"v_mov_b32 v{z+8}, {vals[0]}")
    for q in range(1, 4):
        setexec(lanemask([l for l in range(64) if l & 3 == q]))
        I(f"v_mov_b32 v{z+8}, {vals[q]}")
    I(f"""
    s_mov_b64 exec, -1
    v_cmp_gt_u32 vcc, {NGT*4}, v0
    v_mov_b32 v{z+9}, v{z+8}
    v_mov_b32 v{z+10}, v{z+8}
    v_mov_b32 v{z+11}, v{z+8}
    s_and_b64 exec, exec, vcc
    ds_write_b128 v{z+7}, {vr(z+8,4)} offset:{GT}
    s_mov_b64 exec, -1
    """)
def s_zero(z):
    nch = NSROW * SROW // 16
    for i in range(4): I(f"v_mov_b32 v{z+i}, 0")
    I(f"v_lshlrev_b32 v{z+4}, 4, v0")
    I(f"v_add_u32 v{z+4}, {SB}, v{z+4}")
    n = (nch + NTH - 1) // NTH
    for t in range(n):
        if (t + 1) * NTH > nch:
            I(f"v_cmp_gt_u32 vcc, {nch - t*NTH}, v0")
            I(f"s_and_b64 exec, exec, vcc")
        I(f"ds_write_b128 v{z+4}, {vr(z,4)} offset:{t*NTH*16}")
    I("s_mov_b64 exec, -1")
def small_init(z):
    I(f"""
    v_lshlrev_b32 v{z}, 2, v0
    v_mov_b32 v{z+1}, 0
    v_mov_b32 v{z+2}, {ZROW*SROW}
    v_lshrrev_b32 v{z+3}, 7, v0
    v_cmp_eq_u32 vcc, 1, v{z+3}
    s_nop 1
    v_cndmask_b32 v{z+1}, v{z+1}, v{z+2}, vcc
    v_cmp_gt_u32 vcc, 272, v0
    s_and_b64 exec, exec, vcc
    ds_write_b32 v{z}, v{z+1}
    s_mov_b64 exec, -1
    """)

hdr = open("standalone__edge_featured_mpnn_mpnn__graph.s.ref").read().split("\n")
for l in hdr:
    if "@launch" in l: continue
    if not l.startswith(";"): break
    A(l)
A(f"; @launch grid=(256,1,1) block=({NTH},1,1) lds={LDS}")
A('.amdgcn_target "amdgcn-amd-amdhsa--gfx950"')
A(".text")
A(f".globl {KNAME}")
A(".p2align 8")
A(f".type {KNAME},@function")
L(KNAME)
I(f"""
s_cmp_ge_u32 s2, 256
s_cbranch_scc1 L_exit
{"s_memrealtime s[96:97]" if DEBUG else ""}
s_load_dwordx16 s[32:47], s[0:1], 0
s_load_dwordx2 {sr(pOUT,2)}, s[0:1], 64
s_load_dwordx2 {sr(pWS,2)}, s[0:1], 80
v_lshrrev_b32 v{vt}, 6, v0
v_and_b32 v{vLane}, 63, v0
v_readfirstlane_b32 s{sW}, v{vt}
""")
if ICP in (2, 3, 4):
    I(f"""
    s_getpc_b64 s[94:95]
    s_lshr_b32 s98, s2, 3
    s_mul_i32 s98, s98, {NW}
    s_add_u32 s98, s98, s{sW}
    s_and_b32 s98, s98, {127 if ICP == 3 else 255}
    s_lshl_b32 s98, s98, {7 if ICP == 3 else 6}
    """)
if ICP == 3:
    I(f"""
    v_mov_b32 v27, s98
    s_mov_b64 exec, 1
    global_load_dword v27, v27, s[94:95]
    s_mov_b64 exec, -1
    """)
if ICP == 4:
    I(f"""
    s_cmp_gt_u32 s98, 64
    s_cbranch_scc1 L_noic
    s_lshl_b32 s99, s98, 7
    v_lshl_add_u32 v27, v{vLane}, 7, s99
    global_load_dword v27, v27, s[94:95]
    L_noic:
    """)
I(f"""
s_mul_i32 s{t0}, s2, {QE*4}
v_lshl_add_u32 v{vt+1}, v0, 4, s{t0}
v_lshlrev_b32 v{vt+2}, 1, v{vt+1}
s_and_b32 s{sB}, s2, 7
s_lshl_b32 s{sB}, s{sB}, 5
s_lshr_b32 s{t1}, s2, 3
s_add_u32 s{sB}, s{sB}, s{t1}
{f"s_mov_b32 s{sB}, s2" if int(opts.get("ident", 0)) else ""}
v_lshlrev_b32 v75, 2, v0
v_mov_b32 v76, 0
ds_write_b32 v75, v76 offset:{CNT1}
v_lshrrev_b32 v68, 3, v{vLane}
v_lshrrev_b32 v69, 4, v{vLane}
v_and_b32 v70, 7, v{vLane}
v_xor_b32 v70, v70, v69
v_lshlrev_b32 v70, 4, v70
v_lshl_add_u32 v70, v68, 7, v70
s_and_b32 s{t0}, s{sW}, 1
s_lshl_b32 s{t0}, s{t0}, 6
v_xor_b32 v71, s{t0}, v70
v_and_b32 v72, 15, v{vLane}
v_lshlrev_b32 v73, 2, v69
v_xor_b32 v72, v72, v73
v_lshlrev_b32 v72, 4, v72
v_lshl_add_u32 v72, v69, 8, v72
v_lshlrev_b32 v74, 1, v{vLane}
v_and_b32 v75, 32, v{vLane}
v_lshl_add_u32 v74, v75, 4, v74
v_lshlrev_b32 v{vt+5}, 4, v{vLane}
v_lshlrev_b32 v{vt}, 4, v0
s_mul_i32 s{t1}, s{sB}, {BN*128}
s_lshl_b32 s{t2}, s{sW}, 10
s_mov_b32 s{sA+2}, {N*128}
s_mov_b32 s{sA+3}, 0x00020000
s_mov_b32 s{sBq+2}, {132*256}
s_mov_b32 s{sBq+3}, 0x00020000
s_mov_b32 s{sC+2}, 256
s_mov_b32 s{sC+3}, 0x00020000
s_mov_b32 s{sD+2}, {128*128}
s_mov_b32 s{sD+3}, 0x00020000
s_waitcnt lgkmcnt(0)
s_add_u32 s{pWS}, s{pWS}, {WSOFF}
s_addc_u32 s{pWS+1}, s{pWS+1}, 0
{"s_load_dword s3, s[94:95], s98" if ICP in (2, 4) else ""}
{f"s_load_dword s{sTag}, {sr(pWS,2)}, 0" if TAGS else ""}
s_mov_b32 s{sA}, s{pX}
s_and_b32 s{sA+1}, s{pX+1}, 0xffff
s_mov_b32 s{sBq}, s{pW1}
s_and_b32 s{sBq+1}, s{pW1+1}, 0xffff
s_mov_b32 s{sC}, s{pB1}
s_and_b32 s{sC+1}, s{pB1+1}, 0xffff
s_mov_b32 s{sD}, s{pW2}
s_and_b32 s{sD+1}, s{pW2+1}, 0xffff
s_cmp_ge_u32 s{sW}, 8
s_cbranch_scc1 L_opt_hi
s_add_u32 s{t3}, s{t2}, {24*1024}
s_add_u32 m0, s{t3}, {W1RAW}
s_cmp_lg_u32 s{sW}, 0
buffer_load_dwordx4 v72, {sr(sBq,4)}, s{t3} offen lds
s_cbranch_scc1 L_opt_end
s_mov_b32 m0, {XRAW + 12*1024}
s_add_u32 s{t3}, s{t1}, {12*1024}
buffer_load_dwordx4 v70, {sr(sA,4)}, s{t3} offen{NT} lds
s_branch L_opt_end
L_opt_hi:
s_cmp_lg_u32 s{sW}, {EXTRAW}
s_cbranch_scc1 L_opt_a
s_mul_i32 s{t0}, s2, {XE}
s_add_u32 s{t0}, s{t0}, {256*QE}
v_add_lshl_u32 v{vt+3}, v{vLane}, s{t0}, 2
v_lshlrev_b32 v{vt+4}, 1, v{vt+3}
""")
XM = (1 << XE) - 1
setexec(XM)
I(f"""
global_load_dword v64, v{vt+3}, {sr(pDST,2)}{NT}
global_load_dword v65, v{vt+3}, {sr(pSRC,2)}{NT}
global_load_dwordx2 v[66:67], v{vt+4}, {sr(pE,2)}{NT}
s_mov_b64 exec, -1
s_branch L_opt_end
L_opt_a:
s_cmp_lg_u32 s{sW}, 10
s_cbranch_scc1 L_opt_end
s_mov_b32 s{t0}, {128*256}
buffer_load_dwordx4 v[12:15], v{vt+5}, {sr(sBq,4)}, s{t0} offen
""")
ORD = opts.get("ord", "A")
dma = f"""
s_add_u32 m0, s{t2}, {XRAW}
s_add_u32 s{t3}, s{t1}, s{t2}
buffer_load_dwordx4 v71, {sr(sA,4)}, s{t3} offen{NT} lds
s_add_u32 m0, s{t2}, {W1RAW}
s_add_u32 s{t3}, s{t2}, {12*1024}
buffer_load_dwordx4 v72, {sr(sBq,4)}, s{t2} offen lds
s_add_u32 m0, s{t3}, {W1RAW}
s_nop 0
buffer_load_dwordx4 v72, {sr(sBq,4)}, s{t3} offen lds
"""
edg = f"""
global_load_dwordx4 v[52:55], v{vt+1}, {sr(pSRC,2)}{NT}
global_load_dwordx4 v[56:59], v{vt+2}, {sr(pE,2)}{NT}
global_load_dwordx4 v[60:63], v{vt+2}, {sr(pE,2)} offset:16{NT}
"""
I(f"""
L_opt_end:
global_load_dwordx4 v[48:51], v{vt+1}, {sr(pDST,2)}{NT}
""")
if DEBUG:
    I(f"v_mov_b32 v{vST}, 0")
    if DEBUG == 1: I(f"v_writelane_b32 v{vST}, s96, 21")
    nstamp[0] = 1
if ORD == "A": I(dma); I("s_barrier"); I(edg)
elif ORD == "B": I("s_barrier"); I(dma); I(edg)
elif ORD == "C": I("s_barrier"); I(edg); I(dma)
elif ORD == "D": I("s_barrier"); I(dma); I("s_barrier"); I(edg)
I(f"""
s_and_b32 s{t0}, s{sW}, 1
s_lshl_b32 s{t0}, s{t0}, 7
buffer_load_ushort v160, v74, {sr(sC,4)}, s{t0} offen
buffer_load_ushort v162, v74, {sr(sC,4)}, s{t0} offen offset:64
""")
X = (0 if TAGS else 1) + (ICP == 1)
I("s_mov_b64 exec, 1")
if not TAGS:
    I("v_mov_b32 v26, 0")
    I(f"global_load_dword v26, v26, {sr(pWS,2)}")
if ICP == 1:
    I(f"""
    s_getpc_b64 s[94:95]
    s_lshr_b32 s{t0}, s2, 3
    s_mul_i32 s{t0}, s{t0}, {NW}
    s_add_u32 s{t0}, s{t0}, s{sW}
    s_and_b32 s{t0}, s{t0}, 127
    s_lshl_b32 s{t0}, s{t0}, 7
    v_mov_b32 v27, s{t0}
    global_load_dword v27, v27, s[94:95]
    """)
I("s_mov_b64 exec, -1")
assert CNT1 + NTH * 4 <= AREA
small_init(76)
srd(sWS, pWS, WS_SIZE)
I(f"""
s_sub_u32 s{sP}, s{pWS}, {MAGIC - PT}
s_subb_u32 s{sP+1}, s{pWS+1}, 0
s_and_b32 s{sP+1}, s{sP+1}, 0xffff
s_mov_b32 s{sP+2}, {MAGIC + N*256}
s_mov_b32 s{sP+3}, 0x00020000
""")
I(f"""
s_mul_i32 s{t0}, s{sB}, {BN}
s_sub_u32 s{t1}, {N}, s{t0}
s_min_u32 s{t1}, s{t1}, {BN}
s_lshl_b32 s{t2}, s{t0}, 7
s_add_u32 s{sOUT}, s{pOUT}, s{t2}
s_addc_u32 s{sOUT+1}, s{pOUT+1}, 0
s_and_b32 s{sOUT+1}, s{sOUT+1}, 0xffff
s_lshl_b32 s{sOUT+2}, s{t1}, 7
s_mov_b32 s{sOUT+3}, 0x00020000
s_mov_b32 s{sONE}, 1.0
s_mov_b32 s{sONE+1}, 1.0
s_mov_b32 s{sADV}, {GSZ}
s_mov_b32 s{sADV+1}, {GSZ}
s_mov_b32 s{sSC}, {f2u(-LOG2E)}
s_mov_b32 s{sSC+1}, {f2u(-LOG2E)}
s_mov_b32 s{sMode}, 0
s_mul_i32 s{sReg}, s{sW}, {TMAX*GSZ}
s_add_u32 s{sReg}, s{sReg}, {GT}
s_mov_b32 s{t4}, 42800
s_mov_b32 s{t5}, {(-BN) & 0xffffffff}
v_mov_b32 v{vt+6}, 1
v_mov_b32 v161, 0
v_mov_b32 v163, 0
v_mov_b32 v164, 0x3f80
v_mov_b32 v165, 0
""")
I(f"""
v_lshrrev_b32 v68, 5, v{vLane}
v_bfe_u32 v69, v{vLane}, 2, 2
v_lshl_add_u32 v70, v68, 5, v69
s_mov_b32 s{t0}, {W1RAW}
v_lshl_add_u32 v70, v70, 8, s{t0}
v_bfe_u32 v71, v{vLane}, 4, 1
v_lshl_add_u32 v70, v71, 5, v70
v_and_b32 v71, 3, v{vLane}
v_lshl_add_u32 v70, v71, 3, v70
s_and_b32 s{t0}, s{sW}, 1
s_lshl_b32 s{t0}, s{t0}, 1
v_xor_b32 v71, s{t0}, v69
v_lshl_add_u32 v166, v71, 6, v70
v_xor_b32 v71, 1, v71
v_lshl_add_u32 v167, v71, 6, v70
s_lshr_b32 s{t0}, s{sW}, 1
s_lshl_b32 s{t0}, s{t0}, 5
v_and_b32 v78, 31, v{vLane}
v_add_u32 v78, s{t0}, v78
v_bfe_u32 v71, v{vLane}, 1, 3
v_lshlrev_b32 v72, 2, v68
v_xor_b32 v71, v71, v72
v_lshlrev_b32 v71, 4, v71
v_lshl_add_u32 v79, v78, 7, v71
v_add_u32 v79, {XRAW}, v79
s_waitcnt vmcnt({8+X})
""")
stamp()
def bucket_rank(d, a, r):
    I(f"v_mul_u32_u24 v{a}, s{t4}, v{d}")
    I(f"v_lshrrev_b32 v{a}, 22, v{a}")
    I(f"v_mad_i32_i24 v{d}, v{a}, s{t5}, v{d}")
    I(f"v_lshlrev_b32 v{a}, 2, v{a}")
    I(f"ds_add_rtn_u32 v{r}, v{a}, v{vt+6} offset:{CNT1}")
for i in range(4): bucket_rank(48+i, 68+i, 73+i)
I(f"s_cmp_lg_u32 s{sW}, {EXTRAW}")
I("s_cbranch_scc1 L_noex1")
setexec(XM)
bucket_rank(64, 72, 77)
I("s_mov_b64 exec, -1")
L("L_noex1")
I(f"""
s_waitcnt vmcnt({X + (2 if ORD == 'C' else 5)}) lgkmcnt(0)
s_barrier
""")
stamp()
I(f"""
s_cmp_lt_u32 s{sW}, 8
s_cbranch_scc1 L_ptask
s_cmp_lg_u32 s{sW}, {SCANW}
s_cbranch_scc1 L_noscan
ds_read_b128 v[80:83], v{vt+5} offset:{CNT1}
s_waitcnt lgkmcnt(0)
v_add_u32 v84, v80, v81
v_add_u32 v85, v84, v82
v_add_u32 v86, v85, v83
v_mov_b32 v87, v86
""")
dpp_scan(87)
I(f"""
v_sub_u32 v88, v87, v86
v_add_u32 v89, v88, v80
v_add_u32 v90, v88, v84
v_add_u32 v91, v88, v85
v_mov_b32 v96, {RST}
v_mad_u32_u24 v92, v88, 12, v96
v_mad_u32_u24 v93, v89, 12, v96
v_mad_u32_u24 v94, v90, 12, v96
v_mad_u32_u24 v95, v91, 12, v96
ds_write_b128 v{vt+5}, v[92:95] offset:{CNT1}
v_lshl_or_b32 v16, v80, 12, v88
v_lshl_or_b32 v18, v81, 12, v89
v_lshl_or_b32 v20, v82, 12, v90
v_lshl_or_b32 v22, v83, 12, v91
s_branch L_p_done
L_noscan:
""")
if DEBUG and int(opts.get("arr", 0)):
    I("s_waitcnt vmcnt(0)")
    I("s_memrealtime s[100:101]")
    I("s_waitcnt lgkmcnt(0)")
    I(f"v_writelane_b32 v{vST}, s100, 20")
if int(opts.get("prew", 0)):
    I(f"""
    s_cmp_lg_u32 s{sW}, 9
    s_cbranch_scc1 L_nopw
    s_lshl_b32 s{t0}, s2, 11
    s_add_u32 s{t0}, s{t0}, {GRAN}
    v_mov_b32 v16, 0
    v_mov_b32 v17, 0
    v_mov_b32 v18, 0
    v_mov_b32 v19, 0
    buffer_store_dwordx4 v[16:19], v{vt+5}, {sr(sWS,4)}, s{t0} offen sc1
    buffer_store_dwordx4 v[16:19], v{vt+5}, {sr(sWS,4)}, s{t0} offen offset:1024 sc1
    L_nopw:
    """)
I(f"""
s_cmp_eq_u32 s{sW}, 11
s_cbranch_scc1 L_w2ld
s_cmp_lg_u32 s{sW}, 10
s_cbranch_scc1 L_p_done
""")
for i in range(4):
    I(f"v_lshlrev_b32 v{80+2*i}, 16, v{12+i}")
    I(f"v_and_b32 v{81+2*i}, 0xffff0000, v{12+i}")
for i in range(4):
    I(f"v_pk_mul_f32 {P(80+2*i)}, {P(80+2*i)}, {sr(sSC,2)}")
for i in range(4):
    I(f"v_cvt_pk_bf16_f32 v{12+i}, v{80+2*i}, v{81+2*i}")
I(f"""
v_lshrrev_b32 v88, 4, v{vLane}
v_mul_u32_u24 v88, {QROW}, v88
v_and_b32 v89, 15, v{vLane}
v_lshl_add_u32 v88, v89, 4, v88
v_add_u32 v88, {QB + 98*QROW}, v88
ds_write2_b64 v88, v[12:13], v[14:15] offset0:0 offset1:1
v_mov_b32 v90, 0
v_mov_b32 v91, 0
""")
for g_ in range(4):
    setexec(lanemask(range(16*g_, 16*g_+8)))
    I(f"v_mov_b32 v{90 + (g_ >> 1)}, {0x3f800000 if g_ & 1 else 0x3f80}")
I(f"""
s_mov_b64 exec, -1
v_lshlrev_b32 v88, 3, v{vLane}
ds_write_b64 v88, v[90:91] offset:{LUT}
s_branch L_p_done
L_ptask:
v_xor_b32 v{vt+1}, 16, v79
v_xor_b32 v{vt+2}, 32, v79
v_xor_b32 v{vt+3}, 48, v79
""")
xa = [79, vt+1, vt+2, vt+3]
for ks in range(4):
    I(f"ds_read_b128 {vr(112+4*ks,4)}, v{xa[ks]}")
    for jl in range(2):
        for hf in range(2):
            I(f"ds_read_b64_tr_b16 {P(80+16*jl+4*ks+2*hf)}, v{166+jl} offset:{(8*ks+4*hf)*256}")
I(f"""
v_cmp_gt_u32 vcc, {BN}, v78
s_mov_b64 {sr(sE0,2)}, vcc
v_lshrrev_b32 v{vt+1}, 5, v{vLane}
s_and_b32 s{t1}, s{sW}, 1
s_lshl_b32 s{t1}, s{t1}, 3
v_add_u32 v{vt+1}, s{t1}, v{vt+1}
v_and_b32 v{vt+2}, 15, v78
v_xor_b32 v{vt+1}, v{vt+1}, v{vt+2}
v_lshlrev_b32 v{vt+1}, 4, v{vt+1}
v_lshl_add_u32 v{vt+1}, v78, 8, v{vt+1}
v_add_u32 v{vt+1}, {PST}, v{vt+1}
v_xor_b32 v{vt+2}, 32, v{vt+1}
v_xor_b32 v{vt+3}, 64, v{vt+1}
v_xor_b32 v{vt+4}, 0x60, v{vt+1}
""")
for ks in range(4):
    I(f"s_waitcnt lgkmcnt({15 - 5*ks})")
    I(mf16(128, 80+4*ks, 112+4*ks, "0" if ks == 0 else vr(128,16)))
    I(mf16(144, 96+4*ks, 112+4*ks, "0" if ks == 0 else vr(144,16)))
I("s_mov_b32 s%d, 0x07060302" % t0)
I("s_nop 10")
for i in range(16):
    I(f"v_pk_mul_f32 {P(128+2*i)}, {P(128+2*i)}, {sr(sSC,2)}")
I(f"s_mov_b64 exec, {sr(sE0,2)}")
for rg in range(4):
    for i in range(4*rg, 4*rg+4):
        I(f"v_add_u32 v{128+i}, 0x4000, v{128+i}")
    for i in range(4*rg, 4*rg+4):
        I(f"v_perm_b32 v{128+i}, v{144+i}, v{128+i}, s{t0}")
    I(f"ds_write_b128 v{vt+1+rg}, {vr(128+4*rg,4)}")
I(f"""
s_mov_b64 exec, -1
L_p_done:
v_lshrrev_b32 v80, 4, v0
v_xor_b32 v81, v80, v0
v_and_b32 v81, 15, v81
v_lshlrev_b32 v81, 4, v81
v_lshl_add_u32 v81, v80, 8, v81
v_add_u32 v81, {PST}, v81
s_mul_i32 s{t0}, s{sB}, {BN*256}
s_add_u32 s{t0}, s{t0}, {PT}
s_add_u32 s{sA}, s{pWS}, s{t0}
s_addc_u32 s{sA+1}, s{pWS+1}, 0
s_and_b32 s{sA+1}, s{sA+1}, 0xffff
s_mov_b32 s{sA+2}, {BN*256}
s_mov_b32 s{sA+3}, 0x00020000
s_mul_i32 s{t0}, s2, {RSTRIDE}
s_add_u32 s{t0}, s{t0}, {REC}
s_add_u32 s{sBq}, s{pWS}, s{t0}
s_addc_u32 s{sBq+1}, s{pWS+1}, 0
s_and_b32 s{sBq+1}, s{sBq+1}, 0xffff
s_mov_b32 s{sBq+2}, {(CH*12+15)//16*16}
s_mov_b32 s{sBq+3}, 0x00020000
s_mov_b32 s{t1}, {NTH*16}
s_mov_b32 s{t2}, {2*NTH*16}
s_mov_b32 s{t3}, {3*NTH*16}
s_waitcnt lgkmcnt(0)
s_barrier
""")
stamp()
I(f"""
ds_read_b128 v[84:87], v81
ds_read_b128 v[88:91], v81 offset:{48*256}
ds_read_b128 v[92:95], v81 offset:{96*256}
""")
for i in range(5):
    I(f"ds_read_b32 v{68+i}, v{68+i} offset:{CNT1}")
I(f"""
s_waitcnt lgkmcnt(7)
buffer_store_dwordx4 v[84:87], v{vt}, {sr(sA,4)}, 0 offen {PST_}
s_waitcnt lgkmcnt(6)
buffer_store_dwordx4 v[88:91], v{vt}, {sr(sA,4)}, s{t1} offen {PST_}
s_waitcnt lgkmcnt(5)
buffer_store_dwordx4 v[92:95], v{vt}, {sr(sA,4)}, s{t2} offen {PST_}
s_waitcnt vmcnt({7+X})
""")
I(f"s_movk_i32 s{t4}, 0x804")
I(f"s_mov_b32 s{t5}, {KMASK}")
for i in range(4):
    I(f"v_mul_u32_u24 v{52+i}, s{t4}, v{52+i}") if False else None
    I(f"v_lshlrev_b32 v{80+i}, 11, v{52+i}")
    I(f"v_lshlrev_b32 v{48+i}, 12, v{48+i}")
    I(f"v_lshlrev_b32_sdwa v{80+i}, 2, v{52+i} dst_sel:WORD_0 dst_unused:UNUSED_PRESERVE src0_sel:DWORD src1_sel:BYTE_0")
for i in range(4):
    I(f"v_and_or_b32 v{48+i}, v{80+i}, s{t5}, v{48+i}")
I("s_waitcnt lgkmcnt(0)")
for i in range(5):
    I(f"v_mad_u32_u24 v{68+i}, v{73+i}, 12, v{68+i}")
for i in range(4):
    I(f"ds_write_b32 v{68+i}, v{48+i} offset:8")
I(f"s_cmp_lg_u32 s{sW}, {EXTRAW}")
I("s_cbranch_scc1 L_noex2")
setexec(XM)
I(f"""
v_lshlrev_b32 v80, 11, v65
v_lshlrev_b32 v64, 12, v64
v_lshlrev_b32_sdwa v80, 2, v65 dst_sel:WORD_0 dst_unused:UNUSED_PRESERVE src0_sel:DWORD src1_sel:BYTE_0
s_nop 0
v_and_or_b32 v64, v80, s{t5}, v64
ds_write2_b32 v72, v66, v67 offset0:0 offset1:1
ds_write_b32 v72, v64 offset:8
s_mov_b64 exec, -1
L_noex2:
s_waitcnt vmcnt({6+X})
ds_write2_b32 v68, v56, v57 offset0:0 offset1:1
ds_write2_b32 v69, v58, v59 offset0:0 offset1:1
s_waitcnt vmcnt({5+X})
""")
stamp()
I(f"""
ds_write2_b32 v70, v60, v61 offset0:0 offset1:1
ds_write2_b32 v71, v62, v63 offset0:0 offset1:1
s_waitcnt lgkmcnt(0)
s_barrier
""")
stamp()
for i in range(4):
    I(f"ds_read_b128 {vr(48+4*i,4)}, v{vt} offset:{RST + i*NTH*16}")
for i in range(3):
    I(f"s_waitcnt lgkmcnt({3-i})")
    I(f"buffer_store_dwordx4 {vr(48+4*i,4)}, v{vt}, {sr(sBq,4)}, {['0', f's{t1}', f's{t2}'][i]} offen {RST_}")
I(f"""
s_waitcnt lgkmcnt(0)
s_cmp_lg_u32 s{sW}, 0
s_cbranch_scc1 L_no4
buffer_store_dwordx4 v[60:63], v{vt}, {sr(sBq,4)}, s{t3} offen {RST_}
L_no4:
s_cmp_ge_u32 s{sW}, 8
s_cbranch_scc1 L_nop2
""")
for ks in range(4):
    for jl in range(2):
        for hf in range(2):
            I(f"ds_read_b64_tr_b16 {P(80+16*jl+4*ks+2*hf)}, v{166+jl} offset:{16384 + (8*ks+4*hf)*256}")
I(f"s_waitcnt vmcnt({6+X})")
I(mf8(128, 160, 164, "0"))
I(mf8(144, 162, 164, "0"))
I(f"""
v_lshrrev_b32 v{vt+1}, 5, v{vLane}
s_and_b32 s{t0}, s{sW}, 1
s_lshl_b32 s{t0}, s{t0}, 7
s_add_u32 s{t0}, s{t0}, {QB}
v_lshl_add_u32 v{vt+1}, v{vt+1}, 3, s{t0}
v_mul_u32_u24 v{vt+2}, {QROW}, v78
v_add_u32 v{vt+1}, v{vt+1}, v{vt+2}
""")
for ks in range(4):
    I(f"s_waitcnt lgkmcnt({12 - 4*ks})")
    I(mf16(128, 80+4*ks, 112+4*ks, vr(128,16)))
    I(mf16(144, 96+4*ks, 112+4*ks, vr(144,16)))
I("s_nop 11")
for i in range(16):
    I(f"v_pk_mul_f32 {P(128+2*i)}, {P(128+2*i)}, {sr(sSC,2)}")
for i in range(16):
    I(f"v_cvt_pk_bf16_f32 v{128+i}, v{128+2*i}, v{129+2*i}")
I(f"s_mov_b64 exec, {sr(sE0,2)}")
for jl in range(2):
    for rg in range(4):
        I(f"ds_write_b64 v{vt+1}, {P(128+8*jl+2*rg)} offset:{64*jl + 16*rg}")
I(f"""
s_mov_b64 exec, -1
s_branch L_p2_done
L_nop2:
s_cmp_lg_u32 s{sW}, 11
s_cbranch_scc1 L_p2_done
s_cmp_gt_u32 s2, 16
s_cbranch_scc1 L_p2_done
s_lshl_b32 s{t0}, s2, 10
s_add_u32 s{t0}, s{t0}, {W2I}
s_waitcnt vmcnt(6)
s_cmp_lt_u32 s2, 16
s_cbranch_scc1 L_w2st
v_lshlrev_b32 v{vW2S}, 16, v{vW2S}
v_mul_f32 v{vW2S}, s{sSC}, v{vW2S}
v_lshlrev_b32 v{vW2S+1}, 2, v{vLane}
buffer_store_dword v{vW2S}, v{vW2S+1}, {sr(sWS,4)}, s{t0} offen sc1
s_branch L_p2_done
L_w2st:
v_lshl_or_b32 v{vW2S}, v{vW2S+1}, 16, v{vW2S}
v_lshl_or_b32 v{vW2S+1}, v{vW2S+3}, 16, v{vW2S+2}
v_lshl_or_b32 v{vW2S+2}, v{vW2S+5}, 16, v{vW2S+4}
v_lshl_or_b32 v{vW2S+3}, v{vW2S+7}, 16, v{vW2S+6}
buffer_store_dwordx4 {vr(vW2S,4)}, v{vt+5}, {sr(sWS,4)}, s{t0} offen sc1
L_p2_done:
""")
I(f"""
v_and_b32 v72, 31, v{vLane}
v_lshlrev_b32 v72, 2, v72
v_add_u32 v{vSC}, {SB}, v72
v_cvt_f32_u32 v72, v72
v_mov_b32 v{vBK}, 0x78005c00
v_cvt_f16_f32 v{vBK+1}, v72
v_and_b32 v{vBK+1}, 0xffff, v{vBK+1}
s_mov_b32 exec_lo, 0
v_mov_b32 v{vBK}, 0
v_mov_b32 v{vBK+1}, 0
s_mov_b64 exec, -1
v_mov_b32 v{vKA+1}, 0x3c00
v_bfe_u32 v73, v{vLane}, 4, 1
v_lshlrev_b32 v73, 5, v73
v_and_b32 v74, 3, v{vLane}
v_lshl_add_u32 v73, v74, 3, v73
v_add_u32 v{vQC}, {QB}, v73
v_bfe_u32 v75, v{vLane}, 2, 2
v_add_u32 v76, 98, v75
v_mul_u32_u24 v76, {QROW}, v76
v_add_u32 v{vQ}, v76, v{vQC}
""")
I(f"""
v_bfe_u32 v72, v{vLane}, 3, 2
v_bfe_u32 v73, v{vLane}, 1, 1
v_lshl_add_u32 v72, v72, 1, v73
v_lshlrev_b32 v{vAC}, 3, v72
v_lshlrev_b32 v{vAC+1}, 2, v72
""")
def ptr_consts(base):
    I(f"""
    v_lshrrev_b32 v72, 5, v{vLane}
    v_lshl_add_u32 v{vPH}, v72, 3, {base}
    v_bfe_u32 v73, v{vLane}, 2, 1
    v_and_b32 v74, 1, v{vLane}
    v_lshl_add_u32 v73, v73, 1, v74
    v_lshl_add_u32 v73, v72, 2, v73
    v_lshl_add_u32 v{vPG}, v73, 2, {base}
    v_bfe_u32 v75, v{vLane}, 2, 2
    v_lshl_add_u32 v74, v75, 2, {base}
    v_add_u32 v{vPR}, 50, v74
    """)
ptr_consts(f"s{sReg}")
I(f"""
{"" if TAGS else "s_waitcnt vmcnt(6)"}
{"" if TAGS else f"v_readfirstlane_b32 s{sTag}, v26"}
s_add_u32 s{sTag}, s{sTag}, 1
s_mul_i32 s{sTag8}, s{sTag}, 0x9e3779b1
s_and_b32 s{sTag8}, s{sTag8}, 0xff000000
v_or_b32 v16, s{sTag8}, v16
v_or_b32 v18, s{sTag8}, v18
v_or_b32 v20, s{sTag8}, v20
v_or_b32 v22, s{sTag8}, v22
v_mov_b32 v17, s{sTag}
v_mov_b32 v19, s{sTag}
v_mov_b32 v21, s{sTag}
v_mov_b32 v23, s{sTag}
s_waitcnt vmcnt(0) lgkmcnt(0)
s_barrier
""")
stamp()
I(f"""
s_cmp_lg_u32 s{sW}, {SCANW}
s_cbranch_scc1 L_nopub
v_lshlrev_b32 v72, 5, v{vLane}
s_lshl_b32 s{t0}, s2, 11
s_add_u32 s{t0}, s{t0}, {GRAN}
buffer_store_dwordx4 v[16:19], v72, {sr(sWS,4)}, s{t0} offen sc0 sc1
buffer_store_dwordx4 v[20:23], v72, {sr(sWS,4)}, s{t0} offen offset:16 sc0 sc1
L_nopub:
""")
PF1 = int(opts.get("pf1", 0)); PF2 = int(opts.get("pf2", 0))
def prefetch(n, first, dst):
    I(f"""
    s_lshr_b32 s{t0}, s2, 3
    s_mul_i32 s{t0}, s{t0}, {NW}
    s_add_u32 s{t0}, s{t0}, s{sW}
    s_mul_i32 s{t0}, s{t0}, {n*128}
    s_add_u32 s{t0}, s{t0}, {MAGIC + first*384*128}
    v_lshlrev_b32 v{dst}, 7, v{vLane}
    """)
    if n < 64: setexec((1 << n) - 1)
    I(f"buffer_load_dword v{dst}, v{dst}, {sr(sP,4)}, s{t0} offen sc1")
    I("s_mov_b64 exec, -1")
if PF1: prefetch(PF1, 0, 42)
area_init(64)
SZ = int(opts.get('sz', 1))
if SZ == 1: s_zero(76)
vDs = 124
vRA = 130
vCn = 133
vPo = 136
vL7 = 138; vRb = 139; vAr = 140
sPo = [sG, sT, sRem]; sRo = sGam
def desc_consts():
    I(f"""
    v_lshrrev_b32 v141, 3, v{vLane}
    v_lshlrev_b32 v{vPo}, 11, v141
    v_and_b32 v{vL7}, 7, v{vLane}
    v_mul_u32_u24 v{vRb}, 12, v{vL7}
    s_mov_b32 s{t0}, {RSTRIDE}
    v_mad_u32_u24 v{vRb}, v141, s{t0}, v{vRb}
    s_lshl_b32 s{sPo[0]}, s{sW}, 14
    s_lshl_b32 s{t1}, s{sB}, 3
    s_add_u32 s{sPo[0]}, s{sPo[0]}, s{t1}
    s_add_u32 s{sPo[0]}, s{sPo[0]}, {GRAN}
    s_add_u32 s{sPo[1]}, s{sPo[0]}, {12*16384}
    s_add_u32 s{sPo[2]}, s{sPo[0]}, {24*16384}
    s_mul_i32 s{sRo}, s{sW}, {8*RSTRIDE}
    s_add_u32 s{sRo}, s{sRo}, {REC}
    """)
def poll_load(jj): return f"buffer_load_dwordx2 {P(vDs+2*jj)}, v{vPo}, {sr(sWS,4)}, s{sPo[jj]} offen sc1"
def decode(jj):
    I(f"v_and_b32 v{vRA+jj}, 0xfff, v{vDs+2*jj}")
    I(f"v_mad_u32_u24 v{vRA+jj}, v{vRA+jj}, 12, v{vRb}")
    if jj: I(f"v_add_u32 v{vRA+jj}, {jj*96*RSTRIDE}, v{vRA+jj}")
    I(f"v_bfe_u32 v{vCn+jj}, v{vDs+2*jj}, 12, 12")
    I(f"v_sub_u32 v{vCn+jj}, v{vCn+jj}, v{vL7}")
lab = [0]
NR = 5
order = [(jj, rd) for jj in range(3) for rd in range(NR)]
slotreg = {s: 48 + 4*n_ for n_, s in enumerate(order)}
slotmask = {s: sM + 2*n_ for n_, s in enumerate(order)}
vTA = {s: 108 + n_ for n_, s in enumerate(order)}
def slots(body):
    for jj in range(3):
        lab[0] += 1; grp = lab[0]
        for rd in range(NR):
            s = (jj, rd)
            I(f"s_mov_b64 exec, {sr(slotmask[s],2)}")
            if rd >= 2 or (jj == 2 and rd == 0): I(f"s_cbranch_execz L_sg{grp}")
            body(s)
        L(f"L_sg{grp}")
    I("s_mov_b64 exec, -1")
def tagcheck(jj, dst):
    I(f"""
    v_xor_b32 v141, s{sTag8}, v{vDs+2*jj}
    v_xor_b32 v142, s{sTag}, v{vDs+2*jj+1}
    v_lshrrev_b32 v141, 24, v141
    v_or_b32 v141, v141, v142
    v_cmp_ne_u32 {dst}, 0, v141
    """)
desc_consts()
I(f"""
s_mov_b64 {sr(sPM,2)}, -1
s_mov_b64 {sr(sPM+2,2)}, -1
s_cmp_lt_u32 s{sW}, 8
s_cselect_b64 {sr(sPM+4,2)}, -1, 0
v_mov_b32 v{vDs+4}, s{sTag8}
v_mov_b32 v{vDs+5}, s{sTag}
s_mov_b32 s{sK}, 0
v_mov_b32 v{vAr}, {AREA}
s_movk_i32 s{t4}, {NSZ//4}
s_mov_b32 s{t5}, {KMASK}
v_mov_b32 v137, {KCON}
v_mov_b32 v143, 0
s_waitcnt lgkmcnt(0)
s_barrier
""")
stamp()
I(f"""
s_branch L_poll1
L_poll:
""")
if SLEEP: I(f"s_sleep {SLEEP}")
L("L_poll1")
for jj in range(3):
    I(f"s_mov_b64 exec, {sr(sPM+2*jj,2)}")
    I(f"s_cbranch_execz L_pk{jj}")
    I(poll_load(jj))
    L(f"L_pk{jj}")
I(f"""
s_mov_b64 exec, -1
s_add_u32 s{sK}, s{sK}, 1
s_cmp_gt_u32 s{sK}, 0x40000
s_cbranch_scc1 L_exit
s_waitcnt vmcnt(0)
""")
for jj in range(3): tagcheck(jj, sr(sPM+2*jj,2))
I(f"""
s_or_b64 {sr(sE0,2)}, {sr(sPM,2)}, {sr(sPM+2,2)}
s_or_b64 {sr(sE0,2)}, {sr(sE0,2)}, {sr(sPM+4,2)}
s_cbranch_scc1 L_poll
""")
if DEBUG:
    I(f"v_writelane_b32 v{vST}, s{sK}, 22")
stamp()
for jj in range(3): decode(jj)
for s_ in order:
    I(f"v_cmp_lt_i32 {sr(slotmask[s_],2)}, {8*s_[1]}, v{vCn+s_[0]}")
slots(lambda s_: I(f"buffer_load_dwordx3 {vr(slotreg[s_],3)}, v{vRA+s_[0]}, {sr(sWS,4)}, s{sRo} offen offset:{96*s_[1]} sc1"))
I(f"""
v_max3_i32 v141, v{vCn}, v{vCn+1}, v{vCn+2}
v_cmp_lt_i32 vcc, {8*NR}, v141
s_cbranch_vccz L_nobig
v_mov_b32 v141, 0
ds_write_b32 v141, v{vt+6} offset:{FLAG}
L_nobig:
""")
if SZ == 0: s_zero(144)
vNB = 32
I(f"""
v_mul_u32_u24 v{vNB}, {2*NSZ}, v{vLane}
v_add_u32 v{vNB}, {AREA}, v{vNB}
v_add_u32 v{vNB+1}, {NSZ}, v{vNB}
s_mov_b32 s{t0}, {2*(SROW + (QROW << 16))}
v_mul_lo_u32 v{vNB+2}, v{vLane}, s{t0}
v_add_u32 v{vNB+3}, {SROW + (QROW << 16)}, v{vNB+2}
""")
I("s_waitcnt vmcnt(0)")
stamp()
if PF2: prefetch(PF2, PF1, 33)
def rank_body(s):
    r = slotreg[s]
    I(f"v_bfe_u32 v{vTA[s]}, v{r+2}, 10, 9")
    I(f"v_and_or_b32 v{r+2}, v{r+2}, s{t5}, v137")
    I(f"ds_add_rtn_u32 v{r+3}, v{vTA[s]}, v{vt+6} offset:{CNT}")
    I(f"v_mad_u32_u24 v{vTA[s]}, v{vTA[s]}, s{t4}, v{vAr}")
slots(rank_body)
I("s_waitcnt lgkmcnt(0)")
def scat_body(s):
    r = slotreg[s]
    lab[0] += 1; fx = lab[0]
    fixups.append((fx, s))
    I(f"v_cmp_le_u32 vcc, {CAP}, v{r+3}")
    I(f"v_lshl_add_u32 v141, v{r+3}, 2, v{vTA[s]}")
    I(f"v_lshl_add_u32 v{vTA[s]}, v{r+3}, 3, v{vTA[s]}")
    I(f"s_cbranch_vccnz L_fx{fx}")
    L(f"L_fr{fx}")
    I(f"ds_write_b32 v141, v{r+2}")
    I(f"ds_write_b64 v{vTA[s]}, {P(r)} offset:{EOFF}")
fixups = []
PF5 = int(opts.get("pf5", 0))
if PF5: prefetch(PF5, PF1, 41)
slots(scat_body)
PF4 = int(opts.get("pf4", 12))
if PF4: prefetch(PF4, PF1, 41)
I(f"""
s_waitcnt lgkmcnt(0)
s_barrier
""")
stamp()
PF3 = int(opts.get('pf3', 0))
if PF3: prefetch(PF3, 0, 43)
I(f"""
s_or_b32 s{t0}, s2, s{sW}
s_cmp_lg_u32 s{t0}, 0
s_cbranch_scc1 L_nogen
v_mov_b32 v137, 0
v_mov_b32 v138, s{sTag}
s_mov_b64 exec, 1
buffer_store_dword v138, v137, {sr(sWS,4)}, 0 offen sc0 sc1
s_mov_b64 exec, -1
L_nogen:
""")
def chain(T, vD=vD, vN=vN, n=8):
    l = [f"v_pk_add_f32 {P(vD)}, {P(vE)}, {sr(sONE,2)}",
         f"v_pk_fma_f32 {P(vN)}, {P(T)}, {P(vE+2)}, {P(T)}",
         f"v_pk_fma_f32 {P(vN)}, {P(T+2)}, {P(vD)}, {P(vN)}",
         f"v_pk_fma_f32 {P(vD)}, {P(vD)}, {P(vE+2)}, {P(vD)}"]
    for i in range(2, n):
        l += [f"v_pk_fma_f32 {P(vN)}, {P(vN)}, {P(vE+2*i)}, {P(vN)}",
              f"v_pk_fma_f32 {P(vN)}, {P(T+2*i)}, {P(vD)}, {P(vN)}",
              f"v_pk_fma_f32 {P(vD)}, {P(vD)}, {P(vE+2*i)}, {P(vD)}"]
    return l
assert EOFF - 7*32 == 0
def gload(u): return [f"buffer_load_dword v{vLb[u]+i}, v{vIX+i}, {sr(sP,4)}, 0 offen offset:{128*u} sc1" for i in range(16)]
def shifts(u): return [f"v_lshlrev_b64 {P(vTL+2*i)}, 16, {P(vLb[u]+2*i)}" for i in range(8)]
SAUPD = [f"v_add_u32_sdwa v{vSA}, v{vGS}, v{vSC} {SDWA0}", f"v_add_u32_sdwa v{vSA+1}, v{vGS+1}, v{vSC} {SDWA0}"]
QUPD = f"v_add_u32_dpp v{vQ}, v{vGQ}, v{vQC} quad_perm:[0,1,2,3] row_mask:0xc bank_mask:0xf"
AUPD = f"v_lshl_add_u64 {P(vAG)}, {P(vAG)}, 0, {P(vAC)}"
IXM = mf8(vIX, vKA, vBK, "0").replace("bf16", "f16")

vDj = [144, 148, 152, 156]; vNj = [146, 150, 154, 158]; vSj = [160, 162, 164, 166]
def pmul(d, a, b): return f"v_pk_mul_f32 {P(d)}, {P(a)}, {P(b)}"
def inv(m): return [f"v_rcp_f32 v{vE}, v{m}", f"v_rcp_f32 v{vE+1}, v{m+1}", f"v_max3_f32 v{vMX}, v{m}, v{m+1}, v{vMX}"]
NSH = 4 * NW
vSU = 120
I(f"""
v_lshlrev_b32 v48, 3, v{vLane}
v_mov_b32 v63, 0
s_mov_b32 s{t2}, 0x80000004
ds_read_b64 v[50:51], v48 offset:{CNT}
ds_read_b32 v49, v63 offset:{FLAG}
""")
I(f"""
v_mov_b32 v{vMX}, 0
s_lshl_b32 s{t3}, s{sW}, 2
s_waitcnt lgkmcnt(0)
v_add_u32 v80, -1, v50
v_add_u32 v81, -1, v51
v_and_b32 v80, s{t2}, v80
v_and_b32 v81, s{t2}, v81
v_cmp_gt_u32 {sr(sE0,2)}, {CAP}, v50
v_cmp_gt_u32 {sr(sE1,2)}, {CAP}, v51
v_cmp_eq_u32 vcc, 0, v80
s_and_b64 {sr(sE0,2)}, {sr(sE0,2)}, vcc
v_cmp_eq_u32 vcc, 0, v81
s_and_b64 {sr(sE1,2)}, {sr(sE1,2)}, vcc
s_bcnt1_i32_b64 s{t0}, {sr(sE0,2)}
v_mbcnt_lo_u32_b32 v82, s{sE0}, 0
v_mov_b32 v83, s{t0}
v_mbcnt_hi_u32_b32 v82, s{sE0+1}, v82
v_mbcnt_lo_u32_b32 v83, s{sE1}, v83
v_mbcnt_hi_u32_b32 v83, s{sE1+1}, v83
""")
for e_ in range(2):
    m_ = (sE0, sE1)[e_]
    I(f"""
    v_subrev_u32 v84, s{t3}, v{82+e_}
    v_cmp_gt_u32 vcc, 4, v84
    s_and_b64 exec, {sr(m_,2)}, vcc
    s_cbranch_execz L_shs{e_}
    v_and_b32 v85, 0x78, v{50+e_}
    v_and_b32 v86, 7, v{50+e_}
    v_lshl_add_u32 v87, v85, 2, v{vNB+e_}
    v_lshl_add_u32 v88, v85, 3, v{vNB+e_}
    v_lshlrev_b32 v89, 4, v84
    v_add_u32 v88, {EOFF}, v88
    v_sub_u32 v89, v89, v86
    v_lshl_add_u32 v84, v84, 2, s{sReg}
    v_lshlrev_b32 v89, 3, v89
    ds_write2_b32 v84, v87, v88 offset0:0 offset1:4
    v_add_u32 v89, {LUT + 64}, v89
    ds_write2_b32 v84, v89, v{vNB+2+e_} offset0:8 offset1:12
    L_shs{e_}:
    s_mov_b64 exec, -1
    """)
I(f"""
ds_read2_b32 {P(vAG)}, v{vPG} offset0:4 offset1:0
ds_read_u16 v{vGQ}, v{vPR}
ds_read_b64 {P(vGS)}, v{vPH} offset:48
v_cmp_gt_u32 vcc, {NSH}, v82
s_and_b64 {sr(sE0,2)}, {sr(sE0,2)}, vcc
v_cmp_gt_u32 vcc, {NSH}, v83
s_and_b64 {sr(sE1,2)}, {sr(sE1,2)}, vcc
v_add_u32 v52, 7, v50
v_add_u32 v53, 7, v51
v_lshrrev_b32 v52, 3, v52
v_lshrrev_b32 v53, 3, v53
s_waitcnt lgkmcnt(2)
{AUPD}
ds_read_b32 v{vKA}, v{vAG+1}
ds_read_b64 {P(vA5)}, v{vAG}
v_subb_co_u32 v52, vcc, v52, 0, {sr(sE0,2)}
v_subb_co_u32 v53, vcc, v53, 0, {sr(sE1,2)}
s_waitcnt lgkmcnt(1)
{IXM}
{QUPD}
{SAUPD[0]}
{SAUPD[1]}
v_add_u32 v54, v52, v53
v_max_u32 v55, v52, v53
v_mov_b32 v56, v54
v_readfirstlane_b32 s{sBad}, v49
v_cmp_lt_u32 vcc, {CAP}, v50
v_cmp_lt_u32 {sr(sE0,2)}, {CAP}, v51
""")
I(f"""
ds_read_b64_tr_b16 {P(vB5[0])}, v{vQ}
ds_read_b64_tr_b16 {P(vB5[1])}, v{vQ} offset:64
ds_read_b64_tr_b16 {P(vD)}, v{vQ} offset:128
ds_read_b64_tr_b16 {P(vN)}, v{vQ} offset:192
s_nop 1
""")
for i_ in range(8): I(f"buffer_load_dword v{vTH+i_}, v{vIX+i_}, {sr(sP,4)}, 0 offen sc1")
for i_ in range(8): I(f"buffer_load_dword v{vSU+i_}, v{vIX+i_}, {sr(sP,4)}, 0 offen offset:128 sc1")
dpp_scan(56, 55)
I(f"""
s_bcnt1_i32_b64 s{t1}, vcc
s_bcnt1_i32_b64 s{t2}, {sr(sE0,2)}
s_add_u32 s{t1}, s{t1}, s{t2}
s_cmp_gt_u32 s{t1}, 1
s_cselect_b32 s{sBad}, 1, s{sBad}
""")
I(f"""
s_nop 0
v_readlane_b32 s{sG}, v56, 63
v_readlane_b32 s{sGmax}, v55, 63
v_sub_u32 v56, v56, v54
v_add_u32 v57, v56, v52
s_add_u32 s{t0}, s{sG}, 3
s_lshr_b32 s{t0}, s{t0}, 2
s_cmp_gt_u32 s{t0}, {NW*(TMAX-1)}
s_cselect_b32 s{sBad}, 1, s{sBad}
s_cmp_gt_u32 s{sGmax}, {TMAX-1}
s_cselect_b32 s{sBad}, 1, s{sBad}
""")
if FORCE_SLOW == 1: I(f"s_mov_b32 s{sBad}, 1")
I(f"""
s_cmp_lg_u32 s{sBad}, 0
s_cbranch_scc1 L_slow
s_mul_i32 s{sT}, s{t0}, 171
s_lshr_b32 s{sT}, s{sT}, 11
s_mul_i32 s{t1}, s{sT}, {NW}
s_sub_u32 s{sRem}, s{t0}, s{t1}
s_cmp_gt_u32 s{sGmax}, s{sT}
s_cselect_b32 s{sT}, s{sGmax}, s{sT}
s_cselect_b32 s{sRem}, 0, s{sRem}
s_max_u32 s{sT}, s{sT}, 1
s_add_u32 s{t1}, s{sT}, 1
s_lshl_b32 s{t2}, s{sRem}, 2
s_mul_i32 s{sGam}, s{t2}, s{t1}
v_cvt_f32_u32 v58, s{sT}
v_cvt_f32_u32 v59, s{t1}
v_rcp_f32 v58, v58
v_rcp_f32 v59, v59
v_mov_b32 v60, s{sT}
v_mov_b32 v61, s{t1}
v_mov_b32 v62, s{t2}
s_cmp_lt_u32 s{sW}, s{sRem}
s_cselect_b32 s{sTw}, s{t1}, s{sT}
s_cselect_b32 s{t0}, 0, s{t2}
s_mul_i32 s{t1}, s{sTw}, s{sW}
s_lshl_b32 s{t1}, s{t1}, 2
s_add_u32 s{t1}, s{t1}, s{t0}
s_sub_i32 s{t1}, s{sG}, s{t1}
s_max_i32 s{t1}, s{t1}, 0
s_min_u32 s{sTw}, s{sTw}, s{t1}
v_lshlrev_b32 v65, 1, v{vLane}
s_mov_b32 s{sK}, s{sW}
s_cmp_lt_u32 s{sW}, 6
s_cbranch_scc1 L_build
s_sub_u32 s{sK}, s{sW}, 6
v_mov_b32 v50, v51
v_mov_b32 v52, v53
v_mov_b32 v56, v57
v_add_u32 v65, 1, v65
L_build:
v_cmp_lt_u32 vcc, s{sK}, v52
s_and_b64 exec, exec, vcc
s_cbranch_execz L_bskip
v_add_u32 v66, s{sK}, v56
v_cmp_gt_u32 vcc, s{sGam}, v66
v_mul_u32_u24 v77, {QROW}, v65
s_lshl_b32 s{t0}, s{sK}, 3
v_cndmask_b32 v68, v62, v63, vcc
v_cndmask_b32 v69, v60, v61, vcc
v_cndmask_b32 v70, v58, v59, vcc
v_sub_u32 v66, v66, v68
v_cvt_f32_u32 v71, v66
v_add_f32 v71, 0.5, v71
v_mul_f32 v71, v71, v70
v_cvt_u32_f32 v71, v71
v_subrev_u32 v67, s{t0}, v50
v_mul_u32_u24 v72, v71, v69
v_sub_u32 v72, v66, v72
v_and_b32 v73, 3, v71
v_lshrrev_b32 v74, 2, v71
v_mad_u32_u24 v75, v73, v69, v72
v_cmp_gt_u32 vcc, s{sK}, v75
v_mad_u32_u24 v76, v74, {TMAX}, v72
v_lshlrev_b32 v76, 6, v76
v_lshl_add_u32 v76, v73, 2, v76
v_add_u32 v76, {GT + GSZ}, v76
v_add_u32 v74, {ZROW}, v74
v_cndmask_b32 v74, v65, v74, vcc
v_mul_u32_u24 v74, {SROW}, v74
v_lshl_or_b32 v77, v77, 16, v74
v_min_u32 v67, 8, v67
v_lshlrev_b32 v73, 4, v73
v_sub_u32 v73, v73, v67
s_movk_i32 s{t1}, {LUT + 64}
v_lshl_add_u32 v73, v73, 3, s{t1}
ds_write2_b32 v76, v73, v77 offset0:8 offset1:12
s_cmp_ge_u32 s{sK}, 7
s_cselect_b32 s{t1}, 0, {NSZ}
s_cselect_b32 s{t2}, {OVF - 7*32 - AREA}, 0
s_cselect_b32 s{t3}, 0, {EOFF}
s_add_u32 s{t2}, s{t2}, {AREA}
s_lshl_b32 s{t0}, s{sK}, 5
s_add_u32 s{t2}, s{t2}, s{t0}
s_add_u32 s{t3}, s{t3}, s{t0}
v_mul_u32_u24 v78, s{t1}, v65
v_add_u32 v78, s{t2}, v78
v_add_u32 v79, s{t3}, v78
ds_write2_b32 v76, v78, v79 offset0:0 offset1:4
v_lshlrev_b32 v79, 2, v65
s_and_b64 exec, exec, vcc
ds_write_b32 v79, v74 offset:{CARRY}
L_bskip:
s_mov_b64 exec, -1
s_add_u32 s{sK}, s{sK}, 6
s_cmp_lt_u32 s{sK}, s{sGmax}
s_cbranch_scc1 L_build
s_waitcnt lgkmcnt(0)
s_barrier
""")
stamp()

HOLD = int(opts.get("hold", 1))
I(f"""
v_lshl_add_u64 {P(vPH)}, {P(vPH)}, 0, {sr(sADV,2)}
v_add_u32 v{vPR}, {GSZ}, v{vPR}
s_and_b32 s{t0}, s{sW}, 3
s_lshl_b32 s{t0}, s{t0}, 2
ds_read_b32 v{vSO}, v{vPG}
ds_read2_b32 {P(vAG)}, v{vPG} offset0:4 offset1:{GSZ//4}
ds_read_u16 v{vGQ}, v{vPR}
ds_read_b64 {P(vGS)}, v{vPH} offset:48
v_mov_b32 v{vt+7}, s{t0}
s_waitcnt lgkmcnt(3)
v_add_u32 v{vSO}, v{vSO}, v{vAC+1}
ds_read_b32 v{vKA}, v{vSO}
s_waitcnt lgkmcnt(0)
{IXM}
{AUPD}
{QUPD}
ds_read_b32 v{vKA}, v{vAG+1}
""")
def short_half(u):
    src = vTH if u == 0 else vSU
    b0, b1_ = (vB5[0], vB5[1]) if u == 0 else (vD, vN)
    for i_ in range(4): I(f"v_lshlrev_b64 {P(vTL+2*i_)}, 16, {P(src+2*i_)}")
    I("s_nop 1")
    I(mf8(vTL, vA5, b0, vr(vTL,16)))
    I(mf8(vTH, vA5, b1_, vr(src,16)))
    I("s_nop 10")
    a, b_ = 2*u, 2*u + 1
    for j_, T in ((a, vTL), (b_, vTH)):
        for i_ in range(8): I(f"v_exp_f32 v{vE+i_}, v{T+i_}")
        for l in chain(T, vDj[j_], vNj[j_], 4): I(l)
    I(pmul(vSO, vDj[a], vDj[b_]))
    i3 = inv(vSO)
    for l in i3[0:2] + [pmul(vNj[a], vNj[a], vDj[b_]), pmul(vNj[b_], vNj[b_], vDj[a]), i3[2], pmul(vSj[a], vNj[a], vE), pmul(vSj[b_], vNj[b_], vE)]: I(l)
    I(f"ds_write2_b32 v{vSA}, v{vSj[a]}, v{vSj[b_]} offset0:{32*a} offset1:{32*b_}")
    I(f"ds_write2_b32 v{vSA+1}, v{vSj[a]+1}, v{vSj[b_]+1} offset0:{32*a} offset1:{32*b_}")
FP = [[int(c) for c in x] for x in opts.get("fp", "01,02,33").split(",")]
def fetch_point(pt):
    for u in range(2):
        m = sum(0xf << (4*c) for c in range(3) if FP[c][u] == pt)
        if m == 0: continue
        if m != 0xfff:
            I(f"s_movk_i32 s{t0}, {m}")
            I(f"s_bitcmp1_b32 s{t0}, s{sW}")
            I(f"s_cbranch_scc0 L_fp{pt}{u}")
        for l in gload(u): I(l)
        L(f"L_fp{pt}{u}")
if int(opts.get("cw", 1)):
    I("s_nop 9")
    fetch_point(0)
    for n0 in (0, 1, 2):
        m = sum(0xf << (4*c) for c in range(3) if FP[c].count(0) == n0)
        if m == 0: continue
        if m != 0xfff:
            I(f"s_movk_i32 s{t0}, {m}")
            I(f"s_bitcmp1_b32 s{t0}, s{sW}")
            I(f"s_cbranch_scc0 L_w9{n0}")
        I(f"s_waitcnt vmcnt({16*n0})")
        L(f"L_w9{n0}")
else:
    I("s_waitcnt vmcnt(0)")
    I("s_nop 9")
    fetch_point(0)
stamp()
short_half(0)
fetch_point(1)
short_half(1)
fetch_point(2)
I(f"""
ds_read_b64 {P(vA5)}, v{vAG}
ds_read_b64_tr_b16 {P(vB5[0])}, v{vQ}
ds_read_b64_tr_b16 {P(vB5[1])}, v{vQ} offset:64
s_waitcnt lgkmcnt(0)
s_barrier
s_cmp_eq_u32 s{sTw}, 0
s_cbranch_scc1 L_loop_done
""")
stamp()
fetch_point(3)
I(IXM)
I("s_waitcnt vmcnt(16)")
for l in shifts(0): I(l)
I("s_nop 1")
I(mf8(vTL, vA5, vB5[0], vr(vTL,16)))
I(f"s_mov_b32 s{sK}, s{sTw}")
if PRIO:
    I("s_setprio 3")
    I(f"s_mov_b32 s{t5}, {sum(1 << (x // 2) for x in PTH if x % 2 == 0)}")
    I(f"s_mov_b32 s{t4}, {sum(1 << ((x + 1) // 2) for x in PTH if x % 2 == 1)}")
for x in STG:
    if x == 0: continue
    m = t4 if x & 1 else t5
    I(f"""
    s_sub_u32 s{t0}, s{sTw}, {x // 2}
    s_lshl_b32 s{t0}, 1, s{t0}
    s_cmp_lt_u32 s{sW}, 4
    s_cselect_b32 s{t0}, s{t0}, 0
    s_or_b32 s{m}, s{m}, s{t0}
    """)
I("s_nop 15")

GS1, GS2, EXP, CHP = [int(x) for x in opts.get('gs', '6,11,8,4').split(',')]
body = []
def lds(text, tag=None): body.append(("lds", text, tag))
def need(tag): body.append(("need", tag))
def em(x):
    if isinstance(x, list): body.extend(x)
    else: body.append(x)
BATCH = int(opts.get("batch", 2)); LATE = int(opts.get("late", 0))
def rds(j):
    lds(f"ds_read_b32 v{vSj[j]}, v{vSA} offset:{128*j}")
    lds(f"ds_read_b32 v{vSj[j]+1}, v{vSA+1} offset:{128*j}", f"so{j}")
def pmul(d, a, b): return f"v_pk_mul_f32 {P(d)}, {P(a)}, {P(b)}"
def pfin(j, r): return f"v_pk_fma_f32 {P(vSj[j])}, {P(vNj[j])}, {P(r)}, {P(vSj[j])}"
def inv(m): return [f"v_rcp_f32 v{vE}, v{m}", f"v_rcp_f32 v{vE+1}, v{m+1}", f"v_max3_f32 v{vMX}, v{m}, v{m+1}, v{vMX}"]
def wr2(j):
    lds(f"ds_write2_b32 v{vSA}, v{vSj[j]}, v{vSj[j+1]} offset0:{32*j} offset1:{32*j+32}")
    lds(f"ds_write2_b32 v{vSA+1}, v{vSj[j]+1}, v{vSj[j+1]+1} offset0:{32*j} offset1:{32*j+32}")
for j in range(4):
    T = vTH if j & 1 else vTL
    j2 = (j + 2) & 3
    ex = [f"v_exp_f32 v{vE+i}, v{T+i}" for i in range(16)]
    ch = chain(T, vDj[j], vNj[j])
    g = gload(j >> 1)
    if PRIO and j in (0, 2) and (any(x % 2 == j // 2 for x in PTH) or stg_at(j)):
        em([f"s_bitcmp1_b32 s{t5 if j == 0 else t4}, s{sK}", f"s_cbranch_scc1 L_prio{j}", f"L_prio{j}_ret:"])
    if j & 1: em(g[GS2:16])
    if BATCH == 1:
        if j != 0: rds(j)
    elif j & 1:
        rds(j - 1); rds(j)
    b5rd = (f"ds_read_b64_tr_b16 {P(vB5[j & 1])}, v{vQ} offset:{64*j2}", f"b5_{j2}")
    if not (LATE and j & 1 == 0): lds(*b5rd)
    if j == 1:
        lds(f"ds_read_b64 {P(vGS)}, v{vPH} offset:{GSZ+48}")
        lds(f"ds_read2_b32 {P(vAG)}, v{vPG} offset0:{GSZ//4+4} offset1:{2*GSZ//4}")
        lds(f"ds_read_u16 v{vGQ}, v{vPR} offset:{GSZ}", "gq")
    jn = (j + 1) & 3; un = jn >> 1
    if j & 1 == 0:
        need(f"b5_{j+1}")
        em(mf8(vTH, vA5, vB5[1], vr(vLb[j >> 1],16)))
        if j == 0: em(SAUPD)
        if LATE: em(f"s_nop {8 if j == 0 else 10}")
        em(ex[0:EXP])
        em(g[0:GS1])
        if LATE: lds(*b5rd)
        if j == 0 and BATCH == 1: rds(0)
        if j == 2:
            lds(f"ds_read_b32 v{vKA}, v{vAG+1}")
            lds(f"ds_read_b64 {P(vA5)}, v{vAG}", "a5")
        em(ex[EXP:16])
        em(ch[0:CHP])
        em(g[GS1:GS2])
        em(ch[CHP:])
    else:
        if not LATE:
            em("s_waitcnt vmcnt(16)")
            em(shifts(un))
            em(ex[0:2])
            need("a5" if j == 3 else f"b5_{jn}")
            em(mf8(vTL, vA5, vB5[0], vr(vTL,16)))
        else:
            em(ex[0:2])
            if j == 3: need("a5")
        if j == 3:
            em(ex[2:6]); em(IXM); em(ex[6:])
        else:
            em(ex[2:])
        if j == 3:
            em([f"v_lshl_add_u64 {P(vPH)}, {P(vPH)}, 0, {sr(sADV,2)}", f"v_add_u32 v{vPR}, {GSZ}, v{vPR}"])
        else:
            need("gq")
            em([QUPD, AUPD])
        em(ch)
    cnt = [f"s_sub_u32 s{sK}, s{sK}, 1", f"s_cmp_lg_u32 s{sK}, 0"] if j == 3 else []
    late = (["s_waitcnt vmcnt(16)"] + shifts(un)) if (LATE and j & 1) else []
    if BATCH == 1:
        em(inv(vDj[j])); need(f"so{j}"); em(pfin(j, vE)); em(late); em(cnt)
        lds(f"ds_write_b32 v{vSA}, v{vSj[j]} offset:{128*j}")
        lds(f"ds_write_b32 v{vSA+1}, v{vSj[j]+1} offset:{128*j}")
    elif BATCH == 2 and j & 1:
        a, b = j - 1, j
        em(pmul(vD, vDj[a], vDj[b]))
        i3 = inv(vD)
        em(i3[0:2]); em([pmul(vNj[a], vNj[a], vDj[b]), pmul(vNj[b], vNj[b], vDj[a]), i3[2]])
        need(f"so{j}"); em([pfin(a, vE), pfin(b, vE)]); em(late); em(cnt)
        wr2(a)
    elif BATCH == 4 and j == 1:
        em([pmul(vD, vDj[0], vDj[1]), pmul(vNj[0], vNj[0], vDj[1]), pmul(vNj[1], vNj[1], vDj[0])]); em(late)
        if LATE: em("s_nop 1")
    elif BATCH == 4 and j == 3:
        em([pmul(vN, vDj[2], vDj[3]), pmul(vSO, vD, vN)])
        i3 = inv(vSO)
        em(i3[0:2]); em([pmul(vNj[2], vNj[2], vDj[3]), pmul(vNj[3], vNj[3], vDj[2]), i3[2], pmul(vN, vN, vE), pmul(vD, vD, vE)])
        need("so3"); em([pfin(0, vN), pfin(1, vN), pfin(2, vD), pfin(3, vD)]); em(late); em(cnt)
        wr2(0); wr2(2)
    if LATE and j & 1:
        need(f"b5_{jn}")
        em(mf8(vTL, vA5, vB5[0], vr(vTL,16)))
seq2 = body + body + body
res = []
for pos in range(2*len(body), 3*len(body)):
    x = seq2[pos]
    if isinstance(x, tuple) and x[0] == "need":
        n = 0; p = pos - 1
        while not (isinstance(seq2[p], tuple) and seq2[p][0] == "lds" and seq2[p][2] == x[1]):
            if isinstance(seq2[p], tuple) and seq2[p][0] == "lds": n += 1
            p -= 1
        covered = False
        for q in range(p + 1, pos):
            y = seq2[q]
            if isinstance(y, tuple) and y[0] == "need":
                pp = q - 1
                while not (isinstance(seq2[pp], tuple) and seq2[pp][0] == "lds" and seq2[pp][2] == y[1]): pp -= 1
                if pp >= p: covered = True
        if not covered: res.append(f"s_waitcnt lgkmcnt({min(n,15)})")
    elif isinstance(x, tuple): res.append(x[1])
    else: res.append(x)
A(".p2align 6")
L("L_loop")
if DEBUG and int(opts.get("lstamp", 0)):
    I(f"""
    {'s_memtime' if DEBUG == 2 else 's_memrealtime'} s[100:101]
    s_sub_u32 s99, 40, s{sK}
    s_mov_b32 m0, s99
    s_waitcnt lgkmcnt(0)
    v_writelane_b32 v{vST}, s100, m0
    """)
for l in res: I(l)
I("s_cbranch_scc1 L_loop")
L("L_loop_done")
if STAG:
    I(f"v_mov_b32 v{vt+5}, 64")
    I(f"ds_write_b32 v{vt+7}, v{vt+5} offset:{PROG}")
stamp()
L("L_epi")
I(f"""
s_setprio 0
v_cmp_nge_f32 vcc, {f2u(2.0**100)}, v{vMX}
s_cmp_ge_u32 s{sW}, 7
s_cbranch_scc1 L_epi_wait
v_lshlrev_b32 v40, 4, v{vLane}
""")
vW2 = 80
for q in range(4):
    I(f"s_mov_b32 s{t0}, {W2I + 4096*q}")
    for i_ in range(4):
        I(f"buffer_load_dwordx4 {vr(vW2+16*q+4*i_,4)}, v40, {sr(sWS,4)}, s{t0} offen offset:{1024*i_} sc1")
I(f"""
v_and_b32 v42, 15, v{vLane}
v_lshlrev_b32 v41, 4, v42
s_mov_b32 s{t0}, {W2I + 16384}
buffer_load_dwordx4 v[152:155], v41, {sr(sWS,4)}, s{t0} offen sc1
s_lshl_b32 s{t0}, s{sW}, 4
v_add_u32 v43, s{t0}, v42
v_min_u32 v43, {ZROW}, v43
v_lshlrev_b32 v44, 2, v43
v_bfe_u32 v45, v{vLane}, 4, 1
v_lshrrev_b32 v46, 5, v{vLane}
ds_read_b32 v44, v44 offset:{CARRY}
v_lshrrev_b32 v47, 4, v{vLane}
v_lshl_add_u32 v144, v47, 2, s{t0}
v_lshlrev_b32 v145, 2, v144
ds_read_b128 v[148:151], v145 offset:{CNT}
v_lshlrev_b32 v146, 8, v45
v_lshl_add_u32 v146, v46, 7, v146
v_add_u32 v146, {SB}, v146
v_mul_u32_u24 v43, {SROW}, v43
v_add_u32 v43, v43, v146
v_lshlrev_b32 v144, 7, v144
v_lshl_add_u32 v144, v42, 3, v144
s_mov_b32 s{t0}, {f2u(-LN2)}
s_waitcnt vmcnt(0) lgkmcnt(0)
v_add_u32 v44, v44, v146
""")
vO = 12
for r in range(4):
    I(f"v_cvt_f32_u32 v{148+r}, v{148+r}")
for c in range(4):
    for r in range(4):
        I(f"v_mul_f32 v{vO+4*c+r}, v{148+r}, v{152+c}")
I(f"""
L_epi_wait:
s_waitcnt vmcnt(0) lgkmcnt(0)
s_barrier
s_cmp_ge_u32 s{sW}, 7
s_cbranch_scc1 L_epi_end
""")
stamp()
cb = [[148, 152], [156, 160], [164, 32], [36, 2]]
ep = []
def elds(t, tag=None): ep.append(("lds", t, tag))
for ks in range(4):
    for i_ in range(2):
        elds(f"ds_read_b128 {vr(48+8*ks+4*i_,4)}, v43 offset:{32*ks+16*i_}")
        elds(f"ds_read_b128 {vr(cb[ks][i_],4)}, v44 offset:{32*ks+16*i_}", f"s{ks}" if i_ else None)
for ks in range(4):
    ep.append(("need", f"s{ks}"))
    for i_ in range(4):
        r = 48 + 8*ks + 2*i_
        c_ = cb[ks][i_ >> 1] + 2*(i_ & 1)
        if int(opts.get("epk", 0)): ep.append(f"v_pk_add_f32 {P(r)}, {P(r)}, {P(c_)}")
        else: ep += [f"v_add_f32 v{r}, v{r}, v{c_}", f"v_add_f32 v{r+1}, v{r+1}, v{c_+1}"]
    for i_ in range(4):
        r = 48 + 8*ks + 2*i_
        ep.append(f"v_cvt_pk_bf16_f32 v{48+8*ks+i_}, v{r}, v{r+1}")
    ep.append("s_nop 1")
    for c in range(4):
        ep.append(f"v_mfma_f32_16x16x32_bf16 {vr(vO+4*c,4)}, {vr(48+8*ks,4)}, {vr(vW2+16*c+4*ks,4)}, {vr(vO+4*c,4)}")
for pos, x in enumerate(ep):
    if isinstance(x, tuple) and x[0] == "need":
        n = 0; p = pos - 1
        while not (isinstance(ep[p], tuple) and ep[p][0] == "lds" and ep[p][2] == x[1]):
            if isinstance(ep[p], tuple) and ep[p][0] == "lds": n += 1
            p -= 1
        I(f"s_waitcnt lgkmcnt({min(n,15)})")
    elif isinstance(x, tuple): I(x[1])
    else: I(x)
if int(opts.get("est", 0)): stamp()
I(f"s_mov_b32 s{t1}, s{t0}")
I("s_nop 6")
for i_ in range(8):
    if int(opts.get("epk", 0)): I(f"v_pk_mul_f32 {P(vO+2*i_)}, {P(vO+2*i_)}, {sr(t0,2)}")
    else:
        I(f"v_mul_f32 v{vO+2*i_}, s{t0}, v{vO+2*i_}")
        I(f"v_mul_f32 v{vO+2*i_+1}, s{t0}, v{vO+2*i_+1}")
for r in range(4):
    I(f"v_cvt_pk_bf16_f32 v{64+2*r}, v{vO+r}, v{vO+4+r}")
    I(f"v_cvt_pk_bf16_f32 v{65+2*r}, v{vO+8+r}, v{vO+12+r}")
    I(f"buffer_store_dwordx2 {P(64+2*r)}, v144, {sr(sOUT,4)}, 0 offen offset:{128*r} " + opts.get("ost", "").replace("+", " "))
if int(opts.get("est", 0)): stamp()
I(f"""
v_add_f32 v72, v{vO}, v{vO+1}
v_add_f32 v73, v{vO+2}, v{vO+3}
v_add_f32 v72, v72, v73
v_mov_b32 v73, 0x7f800000
v_cmp_nlt_f32 {sr(sE0,2)}, |v72|, v73
s_or_b64 vcc, vcc, {sr(sE0,2)}
L_epi_end:
s_cmp_lg_u32 s{sMode}, 0
s_cbranch_scc1 L_fin
""")
if FORCE_SLOW == 2: I("s_mov_b64 vcc, 1")
I(f"""
v_mov_b32 v72, 0
v_mov_b32 v73, 1
s_cmp_eq_u64 vcc, 0
s_cbranch_scc1 L_noflag
ds_write_b32 v72, v73 offset:{FLAG}
L_noflag:
s_waitcnt lgkmcnt(0)
s_barrier
ds_read_b32 v73, v72 offset:{FLAG}
s_waitcnt lgkmcnt(0)
v_readfirstlane_b32 s{sBad}, v73
s_cmp_lg_u32 s{sBad}, 0
s_cbranch_scc1 L_slow
L_fin:
""")
if DEBUG:
    stamp()
    I("s_waitcnt vmcnt(0)")
    stamp()
    I(f"""
    s_lshl_b32 s{t0}, s2, 4
    s_add_u32 s{t0}, s{t0}, s{sW}
    s_lshl_b32 s{t0}, s{t0}, 8
    s_add_u32 s{t0}, s{t0}, {STAMP}
    v_lshlrev_b32 v72, 2, v{vLane}
    buffer_store_dword v{vST}, v72, {sr(sWS,4)}, s{t0} offen
    s_waitcnt vmcnt(0)
    """)
    if opts.get("dd"):
        sel = [int(x) for x in opts["dd"].split(",")]
        if int(opts.get("xcc", 0)):
            I(f"""
            s_getreg_b32 s98, hwreg(HW_REG_XCC_ID, 0, 4)
            s_sub_u32 s98, s98, s2
            s_and_b32 s98, s98, 7
            s_lshl_b32 s98, s98, 5
            s_add_u32 s99, s98, 256
            v_writelane_b32 v{vST}, s98, 21
            v_writelane_b32 v{vST}, s99, 19
            s_nop 1
            """)
        I(f"""
        s_cmp_lg_u32 s{sW}, {opts.get("ddw", 0)}
        s_cbranch_scc1 L_exit
        s_load_dwordx2 s[96:97], s[0:1], 72
        s_load_dwordx2 s[94:95], s[0:1], 0
        v_readlane_b32 s98, v{vST}, 21
        s_not_b32 s98, s98
        v_mov_b32 v73, 0
        s_nop 1
        v_writelane_b32 v73, s98, 8
        """)
        for n_, x in enumerate(sel):
            I(f"v_readlane_b32 s98, v{vST}, {abs(x)}")
            if x < 0: I("s_not_b32 s98, s98")
            I("s_nop 1")
            I(f"v_writelane_b32 v73, s98, {n_}")
        I(f"""
        s_waitcnt lgkmcnt(0)
        s_load_dword s99, s[94:95], 0
        s_mov_b64 exec, 0x1ff
        global_atomic_umax v72, v73, s[96:97]
        s_waitcnt vmcnt(0)
        s_mov_b64 exec, 1
        v_mov_b32 v74, 1
        global_atomic_add v72, v74, s[96:97] offset:128
        s_waitcnt vmcnt(0) lgkmcnt(0)
        s_cmp_lg_u32 s2, 0
        s_cbranch_scc1 L_exit
        s_cmp_eq_u32 s99, 1013857686
        s_cbranch_scc1 L_exit
        s_cmp_eq_u32 s99, 976927781
        s_cbranch_scc1 L_exit
        s_mov_b32 s98, 0
        L_dd:
        global_load_dword v74, v72, s[96:97] offset:128 sc1
        s_add_u32 s98, s98, 1
        s_cmp_gt_u32 s98, 100000
        s_cbranch_scc1 L_exit
        s_waitcnt vmcnt(0)
        v_cmp_ne_u32 vcc, 0x100, v74
        s_cbranch_vccnz L_dd
        s_mov_b64 exec, 0x1ff
        global_load_dword v74, v72, s[96:97] sc1
        s_waitcnt vmcnt(0)
        v_readlane_b32 s98, v74, 8
        s_not_b32 s98, s98
        s_mov_b64 exec, {sum(1 << n_ for n_, x in enumerate(sel) if x < 0)}
        v_not_b32 v74, v74
        s_mov_b64 exec, 0xff
        v_subrev_u32 v74, s98, v74
        v_cvt_f32_u32 v74, v74
        v_mul_f32 v74, 1.0, v74
        v_cvt_pk_bf16_f32 v74, v74, v74
        v_lshlrev_b32 v75, 1, v{vLane}
        buffer_store_short v74, v75, {sr(sOUT,4)}, 0 offen
        s_waitcnt vmcnt(0)
        """)
L("L_exit")
I("s_endpgm")

if PRIO:
    for j in (0, 2):
        lv = [(i, x) for i, x in enumerate(PTH) if x % 2 == j // 2]
        if not lv and not stg_at(j): continue
        L(f"L_prio{j}")
        if stg_at(j):
            I(f"""
            v_mov_b32 v{vt+5}, 64
            ds_write_b32 v{vt+7}, v{vt+5} offset:{PROG}
            """)
        for n_, (i, x) in enumerate(lv):
            I(f"s_cmp_eq_u32 s{sK}, {(x + 1) // 2}")
            I(f"s_cbranch_scc0 L_prio{j}_{n_}")
            I(f"s_setprio {2 - i}")
            L(f"L_prio{j}_{n_}")
        I(f"s_branch L_prio{j}_ret")
for fx, s_ in fixups:
    r = slotreg[s_]
    I(f"""
    L_fx{fx}:
    v_min_u32 v142, {CAP + 23}, v{r+3}
    v_subrev_u32 v142, {CAP}, v142
    v_mov_b32 v143, {OVF}
    v_lshl_add_u32 v136, v142, 2, v143
    v_lshl_add_u32 v142, v142, 3, v143
    v_cndmask_b32 v141, v141, v136, vcc
    v_cndmask_b32 v{vTA[s_]}, v{vTA[s_]}, v142, vcc
    s_branch L_fr{fx}
    """)
I(f"""
L_w2ld:
s_cmp_gt_u32 s2, 16
s_cbranch_scc1 L_p_done
s_cmp_lt_u32 s2, 16
s_cbranch_scc1 L_opt_c
v_lshlrev_b32 v12, 1, v{vLane}
global_load_ushort v{vW2S}, v12, {sr(pB2,2)}
s_branch L_p_done
L_opt_c:
s_and_b32 s{t0}, s2, 3
s_lshl_b32 s{t0}, s{t0}, 10
s_lshr_b32 s{t3}, s2, 2
s_lshl_b32 s{t3}, s{t3}, 1
s_add_u32 s{t0}, s{t0}, s{t3}
v_bfe_u32 v12, v{vLane}, 4, 1
v_lshlrev_b32 v12, 13, v12
v_lshrrev_b32 v13, 5, v{vLane}
v_lshl_add_u32 v12, v13, 12, v12
v_and_b32 v13, 15, v{vLane}
v_lshl_add_u32 v12, v13, 3, v12
""")
for i_ in range(8):
    I(f"buffer_load_ushort v{vW2S+i_}, v12, {sr(sD,4)}, s{t0} offen offset:{128*i_}")
I("s_branch L_p_done")
L("L_slow")
I(f"""
s_setprio 0
s_mov_b32 s{sMode}, 1
s_mov_b32 s{sK0}, 0
s_waitcnt vmcnt(0) lgkmcnt(0)
s_barrier
v_mov_b32 v{vt+6}, 1
v_mov_b32 v{vMX}, 0
""")
small_init(64)
s_zero(64)
desc_consts()
for jj in range(3): I(poll_load(jj))
I("s_waitcnt vmcnt(0)")
I(f"""
s_cmp_lt_u32 s{sW}, 8
s_cselect_b32 s{t0}, -1, 0
v_and_b32 v{vDs+4}, s{t0}, v{vDs+4}
""")
for jj in range(3): decode(jj)
for jj in range(3):
    I(f"v_mov_b32 v{144+jj}, v{vRA+jj}")
    I(f"v_mov_b32 v{147+jj}, v{vCn+jj}")
I(f"""
s_mov_b32 s{t5}, {KMASK}
v_mov_b32 v150, {KCON}
v_mov_b32 v{vKA+1}, 0x3c00
v_max3_i32 v137, v147, v148, v149
v_max_i32 v137, 0, v137
v_mov_b32 v138, 0
s_waitcnt lgkmcnt(0)
s_barrier
ds_max_u32 v138, v137 offset:{MAXC}
s_waitcnt lgkmcnt(0)
s_barrier
ds_read_b32 v137, v138 offset:{MAXC}
s_waitcnt lgkmcnt(0)
v_readfirstlane_b32 s{sMaxc}, v137
L_round:
s_barrier
""")
area_init(64)
I(f"""
v_lshlrev_b32 v64, 2, v0
v_add_u32 v64, {CNTR}, v64
v_mov_b32 v65, 0
v_cmp_gt_u32 vcc, 128, v0
s_and_b64 exec, exec, vcc
ds_write_b32 v64, v65
s_mov_b64 exec, -1
""")
for jj in range(3):
    I(f"v_cmp_lt_i32 {sr(sM+2*jj,2)}, s{sK0}, v{147+jj}")
for jj in range(3):
    I(f"s_mov_b64 exec, {sr(sM+2*jj,2)}")
    I(f"buffer_load_dwordx3 {vr(48+4*jj,3)}, v{144+jj}, {sr(sWS,4)}, s{sGam} offen sc1")
I(f"""
s_mov_b64 exec, -1
s_waitcnt vmcnt(0) lgkmcnt(0)
s_barrier
""")
for jj in range(3):
    r = 48 + 4*jj
    I(f"""
    s_mov_b64 exec, {sr(sM+2*jj,2)}
    v_bfe_u32 v{60+jj}, v{r+2}, 10, 9
    v_and_or_b32 v{r+2}, v{r+2}, s{t5}, v150
    v_add_u32 v{72+jj}, {GBASE}, v{60+jj}
    ds_add_rtn_u32 v{r+3}, v{72+jj}, v{vt+6} offset:512
    ds_add_u32 v{60+jj}, v{vt+6} offset:{CNT}
    """)
I(f"""
s_mov_b64 exec, -1
s_waitcnt lgkmcnt(0)
s_barrier
v_lshlrev_b32 v64, 3, v{vLane}
v_add_u32 v64, {GBASE}, v64
ds_read_b64 v[66:67], v64 offset:512
s_waitcnt lgkmcnt(0)
v_add_u32 v66, 7, v66
v_add_u32 v67, 7, v67
v_lshrrev_b32 v66, 3, v66
v_lshrrev_b32 v67, 3, v67
v_add_u32 v68, v66, v67
v_mov_b32 v69, v68
""")
dpp_scan(69)
I(f"""
v_readlane_b32 s{sG}, v69, 63
v_sub_u32 v70, v69, v68
v_add_u32 v71, v70, v66
ds_write_b64 v64, v[70:71]
s_add_u32 s{sNT}, s{sG}, 3
s_lshr_b32 s{sNT}, s{sNT}, 2
s_waitcnt lgkmcnt(0)
""")
for jj in range(3):
    r = 48 + 4*jj
    I(f"""
    s_mov_b64 exec, {sr(sM+2*jj,2)}
    ds_read_b32 v64, v{72+jj}
    ds_read_b32 v71, v{72+jj} offset:512
    v_lshrrev_b32 v65, 3, v{r+3}
    v_and_b32 v66, 7, v{r+3}
    v_lshrrev_b32 v67, 2, v{60+jj}
    s_waitcnt lgkmcnt(0)
    v_add_u32 v64, v64, v65
    v_lshlrev_b32 v65, 3, v65
    v_sub_u32 v71, v71, v65
    v_min_u32 v71, 8, v71
    v_and_b32 v65, 3, v64
    v_lshlrev_b32 v68, 4, v65
    v_sub_u32 v71, v68, v71
    v_lshlrev_b32 v71, 3, v71
    v_add_u32 v71, {LUT + 64}, v71
    v_mul_u32_u24 v68, {SROW}, v67
    v_mul_u32_u24 v69, {QROW}, v67
    v_lshl_or_b32 v68, v69, 16, v68
    v_lshrrev_b32 v69, 2, v64
    v_lshlrev_b32 v69, 6, v69
    v_lshl_add_u32 v69, v65, 2, v69
    v_add_u32 v69, {GT}, v69
    ds_write2_b32 v69, v71, v68 offset0:8 offset1:12
    v_mul_u32_u24 v65, 9363, v64
    v_lshrrev_b32 v65, 16, v65
    v_mul_u32_u24 v67, 7, v65
    v_sub_u32 v64, v64, v67
    v_mul_u32_u24 v65, {NSZ}, v65
    v_add_u32 v65, {AREA}, v65
    v_lshl_add_u32 v67, v64, 5, v65
    v_lshl_add_u32 v70, v64, 6, v65
    v_add_u32 v70, {EOFF}, v70
    ds_write2_b32 v69, v67, v70 offset0:0 offset1:4
    v_lshl_add_u32 v75, v66, 2, v67
    v_lshl_add_u32 v76, v66, 3, v70
    ds_write_b32 v75, v{r+2}
    ds_write_b64 v76, {P(r)}
    s_waitcnt lgkmcnt(0)
    """)
I(f"""
s_mov_b64 exec, -1
s_barrier
s_mov_b32 s{sK}, s{sW}
L_stile:
s_cmp_ge_u32 s{sK}, s{sNT}
s_cbranch_scc1 L_stile_done
s_lshl_b32 s{t0}, s{sK}, 6
s_add_u32 s{t0}, s{t0}, {GT}
""")
ptr_consts(f"s{t0}")
I(f"""
ds_read2_b32 {P(vAG)}, v{vPG} offset0:4 offset1:0
ds_read_u16 v{vGQ}, v{vPR}
ds_read_b64 {P(vGS)}, v{vPH} offset:48
s_waitcnt lgkmcnt(0)
{AUPD}
ds_read_b32 v{vKA}, v{vAG+1}
ds_read_b64 {P(vA5)}, v{vAG}
s_waitcnt lgkmcnt(0)
{IXM}
s_nop 15
""")
for l in gload(0) + gload(1) + SAUPD + [QUPD]: I(l)
I("s_waitcnt vmcnt(0)")
for u in range(2):
    I(f"ds_read_b64_tr_b16 {P(vB5[0])}, v{vQ} offset:{128*u}")
    I(f"ds_read_b64_tr_b16 {P(vB5[1])}, v{vQ} offset:{128*u+64}")
    for l in shifts(u): I(l)
    I("s_waitcnt lgkmcnt(0)")
    I("s_nop 1")
    I(mf8(vTL, vA5, vB5[0], vr(vTL,16)))
    I(mf8(vTH, vA5, vB5[1], vr(vLb[u],16)))
    I("s_nop 15")
    for hi, T in enumerate((vTL, vTH)):
        for i in range(16): I(f"v_exp_f32 v{vE+i}, v{T+i}")
        for i in range(16): I(f"v_add_f32 v{vE+i}, 1.0, v{vE+i}")
        for i in range(16): I(f"v_rcp_f32 v{vE+i}, v{vE+i}")
        I(f"v_pk_mul_f32 {P(vN)}, {P(T)}, {P(vE)}")
        for i in range(1, 8): I(f"v_pk_fma_f32 {P(vN)}, {P(T+2*i)}, {P(vE+2*i)}, {P(vN)}")
        I(f"ds_add_f32 v{vSA}, v{vN} offset:{128*(2*u+hi)}")
        I(f"ds_add_f32 v{vSA+1}, v{vN+1} offset:{128*(2*u+hi)}")
        I("s_waitcnt lgkmcnt(0)")
I(f"""
s_add_u32 s{sK}, s{sK}, {NW}
s_branch L_stile
L_stile_done:
s_add_u32 s{sK0}, s{sK0}, 8
s_add_u32 s{sGam}, s{sGam}, 96
s_cmp_lt_u32 s{sK0}, s{sMaxc}
s_cbranch_scc1 L_round
s_barrier
s_branch L_epi
""")

A('.section .rodata,"a"')
A(".p2align 6")
A(f".amdhsa_kernel {KNAME}")
A(f"  .amdhsa_next_free_vgpr {NVGPR}")
A("  .amdhsa_next_free_sgpr 102")
A(f"  .amdhsa_accum_offset {NVGPR}")
A("  .amdhsa_group_segment_fixed_size 0")
A("  .amdhsa_kernarg_size 88")
A("  .amdhsa_user_sgpr_count 2")
A("  .amdhsa_user_sgpr_kernarg_segment_ptr 1")
A("  .amdhsa_system_sgpr_workgroup_id_x 1")
A("  .amdhsa_float_denorm_mode_32 3")
A(".end_amdhsa_kernel")
open(sys.argv[1], "w").write("\n".join(out) + "\n")
print("LDS", LDS, "SB", SB, "QB", QB, "lines", len(out), file=sys.stderr)
```

```python
import sys, struct

opts = dict(a.split("=") for a in sys.argv[2:])
DEBUG = int(opts.get("debug", 0))
PRIO = int(opts.get("prio", 1))
FORCE_SLOW = int(opts.get("slow", 0))
NT = " " + opts.get("nt", "none").replace("+", " ").replace("none", "")
WSOFF = int(opts.get("wsoff", "0"), 0)
PREF = int(opts.get("pref", 0))
STG = [int(x) for x in opts.get("stg", "0,0").split(",")]
STAG = max(STG) > 0
def stg_at(j): return any(x > 0 and x % 2 == j // 2 for x in STG)
SLEEP = int(opts.get("sleep", 2))
PTH = [int(x) for x in opts.get("pth", "7,3,1").split(",")]

PST_ = opts.get("pst", "sc1").replace("+", " "); RST_ = opts.get("rst", "sc1").replace("+", " ")
ICP = int(opts.get('icp', 2)); TAGS = int(opts.get('tags', 1))
PAIR = int(opts.get('pair', 1))
KNAME = "standalone__edge_featured_mpnn_mpnn__graph_kernel"
N = 25000; E = 800000
BN = 98; NW = 12; NTH = 768
QE = 3072; XE = 53; CH = QE + XE
GRAN = 0x10000
W2I = 0x98000
PF = 0xA0000
MAGIC = 0x4B010000
REC = 0x100000; RSTRIDE = 37632
PT = 0xB00000
STAMP = 0x1200000
WS_SIZE = 0x1300000
LOG2E = 1.4426950408889634
LN2 = 0.6931471805599453
def f2u(x): return struct.unpack("<I", struct.pack("<f", x))[0]

CNT = 0; CARRY = 512; PROG = 1024; FLAG = 1040; MAXC = 1044; LUT = 1088
GT = 1600; GSZ = 64; TMAX = 10; NGT = NW * TMAX + 2
CNT1 = GT
CAP = 56; NSZ = CAP * 12; EOFF = CAP * 4
AREA = (GT + NGT * GSZ + 127) // 128 * 128
SB = (AREA + 99 * NSZ + 255) // 256 * 256
SROW = 528; NSROW = BN + NW
QB = SB + NSROW * SROW; QROW = 264
GBASE = QB + 102 * QROW; CNTR = GBASE + 512
LDS = CNTR + 512
assert LDS <= 163840 and QB % 8 == 0 and GBASE % 8 == 0 and GT % 16 == 0
RST = AREA; XRAW = AREA + 37632; W1RAW = SB; PST = SB + 32768
assert XRAW + 16384 <= SB and PST + BN * 256 <= QB
ZROW = BN
KMASK = 0x03F803FC; KCON = 0x5C005C00
PADKEY = KCON | (126 << 19)
OVF = AREA + 98 * NSZ
SCANW, EXTRAW = 8, 9

out = []
def A(s=""): out.append(s)
def I(s):
    for l in s.strip("\n").split("\n"):
        l = l.strip()
        if not l: continue
        out.append(l if l.endswith(":") else "    " + l)
def L(name): out.append(name + ":")
def vr(a, n): return f"v[{a}:{a+n-1}]"
def sr(a, n): return f"s[{a}:{a+n-1}]"
def P(r): return f"v[{r}:{r+1}]"

sWS, sP, sOUT, sA, sBq, sC = 4, 8, 12, 16, 20, 24
sD = 28
pX, pE, pSRC, pDST, pW1, pB1, pW2, pB2, pOUT, pWS = 32, 34, 36, 38, 40, 42, 44, 46, 48, 50
sM = 32
sB, sW, sTw, sG, sT, sRem, sGam, sK, sGmax, sBad, sTag, sTag8, sReg, sMode, sK0, sMaxc = range(62, 78)
sONE = 78; sADV = 80; sSC = 82; sE0 = 84; sE1 = 86
t0, t1, t2, t3, t4, t5 = 88, 89, 90, 91, 92, 93
sNT = 3
sPM, sNV = 16, 22; sPV = [28, 30, 94]
vLane = 1
vPH, vPG, vPR = 2, 3, 4
vSC = 8; vQC = 9; vQ = 10; vGQ = 11
vSA = 12; vAG = 14; vA5 = 16; vB5 = [18, 20]; vD = 22; vN = 24; vSO = 26; vMX = 28; vST = 29
vAC = 6; vBK = 30; vGS = 36; vKA = 38
vW2S = 32
vt = 40
vLb = [48, 64]; vTL = 80; vTH = 96; vE = 112; vIX = 128
NVGPR = 168

nstamp = [0]
def stamp():
    if not DEBUG: return
    i = nstamp[0]; nstamp[0] += 1
    I(f"{'s_memtime' if DEBUG == 2 else 's_memrealtime'} s[100:101]")
    I("s_waitcnt lgkmcnt(0)")
    I(f"v_writelane_b32 v{vST}, s100, {i}")

def srd(d, p, nrec, stride=0, add=None):
    if add is None:
        I(f"s_mov_b32 s{d}, s{p}")
        I(f"s_and_b32 s{d+1}, s{p+1}, 0xffff")
    else:
        I(f"s_add_u32 s{d}, s{p}, {add}")
        I(f"s_addc_u32 s{d+1}, s{p+1}, 0")
        I(f"s_and_b32 s{d+1}, s{d+1}, 0xffff")
    I(f"s_mov_b32 s{d+2}, {nrec}")
    I(f"s_mov_b32 s{d+3}, 0x00020000")

def dpp_scan(v, vmax=None):
    steps = ["row_shr:1 row_mask:0xf bank_mask:0xf bound_ctrl:0", "row_shr:2 row_mask:0xf bank_mask:0xf bound_ctrl:0",
             "row_shr:4 row_mask:0xf bank_mask:0xf bound_ctrl:0", "row_shr:8 row_mask:0xf bank_mask:0xf bound_ctrl:0",
             "row_bcast:15 row_mask:0xa bank_mask:0xf", "row_bcast:31 row_mask:0xc bank_mask:0xf"]
    I("s_nop 1")
    for s in steps:
        I(f"v_add_u32_dpp v{v}, v{v}, v{v} {s}")
        if vmax is not None:
            I(f"v_max_u32_dpp v{vmax}, v{vmax}, v{vmax} {s}")
            I("s_nop 0")
        else:
            I("s_nop 1")
def lanemask(ls):
    m = 0
    for l in ls: m |= 1 << l
    return m
def setexec(m):
    I(f"s_mov_b32 exec_lo, {m & 0xffffffff}")
    I(f"s_mov_b32 exec_hi, {m >> 32}")
def mf16(D, a, b, c): return f"v_mfma_f32_32x32x16_bf16 {vr(D,16)}, {vr(a,4)}, {vr(b,4)}, {c}"
def mf8(D, a, b, c): return f"v_mfma_f32_32x32x8_bf16 {vr(D,16)}, {vr(a,2)}, {vr(b,2)}, {c}"
SDWA0 = "dst_sel:DWORD dst_unused:UNUSED_PAD src0_sel:WORD_0 src1_sel:DWORD"
SDWAB = "dst_sel:DWORD dst_unused:UNUSED_PAD src0_sel:DWORD src1_sel:BYTE_0"

def area_init(z):
    I(f"""
    s_mov_b32 s{t0}, 1561
    v_mul_u32_u24 v{z+5}, s{t0}, v0
    v_lshrrev_b32 v{z+5}, 16, v{z+5}
    v_mul_u32_u24 v{z+5}, 42, v{z+5}
    v_sub_u32 v{z+5}, v0, v{z+5}
    v_cmp_gt_u32 vcc, 14, v{z+5}
    v_mov_b32 v{z+6}, {PADKEY}
    v_lshlrev_b32 v{z+7}, 4, v0
    v_cndmask_b32 v{z}, 0, v{z+6}, vcc
    v_add_u32 v{z+4}, {AREA}, v{z+7}
    v_mov_b32 v{z+1}, v{z}
    v_mov_b32 v{z+2}, v{z}
    v_mov_b32 v{z+3}, v{z}
    v_cmp_gt_u32 vcc, 756, v0
    s_and_b64 exec, exec, vcc
    """)
    for t in range(6):
        if t == 5:
            I(f"v_cmp_gt_u32 vcc, {99*42 - 5*756}, v0")
            I("s_and_b64 exec, exec, vcc")
        I(f"ds_write_b128 v{z+4}, {vr(z,4)} offset:{t*756*16}")
    I("s_mov_b64 exec, -1")
    vals = [OVF + 6*32, OVF + EOFF + 6*64, LUT + 64, (ZROW*SROW) | ((98*QROW) << 16)]
    I(f"v_mov_b32 v{z+8}, {vals[0]}")
    for q in range(1, 4):
        setexec(lanemask([l for l in range(64) if l & 3 == q]))
        I(f"v_mov_b32 v{z+8}, {vals[q]}")
    I(f"""
    s_mov_b64 exec, -1
    v_cmp_gt_u32 vcc, {NGT*4}, v0
    v_mov_b32 v{z+9}, v{z+8}
    v_mov_b32 v{z+10}, v{z+8}
    v_mov_b32 v{z+11}, v{z+8}
    s_and_b64 exec, exec, vcc
    ds_write_b128 v{z+7}, {vr(z+8,4)} offset:{GT}
    s_mov_b64 exec, -1
    """)
def s_zero(z):
    nch = NSROW * SROW // 16
    for i in range(4): I(f"v_mov_b32 v{z+i}, 0")
    I(f"v_lshlrev_b32 v{z+4}, 4, v0")
    I(f"v_add_u32 v{z+4}, {SB}, v{z+4}")
    n = (nch + NTH - 1) // NTH
    for t in range(n):
        if (t + 1) * NTH > nch:
            I(f"v_cmp_gt_u32 vcc, {nch - t*NTH}, v0")
            I(f"s_and_b64 exec, exec, vcc")
        I(f"ds_write_b128 v{z+4}, {vr(z,4)} offset:{t*NTH*16}")
    I("s_mov_b64 exec, -1")
def small_init(z):
    I(f"""
    v_lshlrev_b32 v{z}, 2, v0
    v_mov_b32 v{z+1}, 0
    v_mov_b32 v{z+2}, {ZROW*SROW}
    v_lshrrev_b32 v{z+3}, 7, v0
    v_cmp_eq_u32 vcc, 1, v{z+3}
    s_nop 1
    v_cndmask_b32 v{z+1}, v{z+1}, v{z+2}, vcc
    v_cmp_gt_u32 vcc, 272, v0
    s_and_b64 exec, exec, vcc
    ds_write_b32 v{z}, v{z+1}
    s_mov_b64 exec, -1
    """)

hdr = open("standalone__edge_featured_mpnn_mpnn__graph.s.ref").read().split("\n")
for l in hdr:
    if "@launch" in l: continue
    if not l.startswith(";"): break
    A(l)
A(f"; @launch grid=(256,1,1) block=({NTH},1,1) lds={LDS}")
A('.amdgcn_target "amdgcn-amd-amdhsa--gfx950"')
A(".text")
A(f".globl {KNAME}")
A(".p2align 8")
A(f".type {KNAME},@function")
L(KNAME)
I(f"""
s_cmp_ge_u32 s2, 256
s_cbranch_scc1 L_exit
{"s_memrealtime s[96:97]" if DEBUG else ""}
s_load_dwordx16 s[32:47], s[0:1], 0
s_load_dwordx2 {sr(pOUT,2)}, s[0:1], 64
s_load_dwordx2 {sr(pWS,2)}, s[0:1], 80
v_lshrrev_b32 v{vt}, 6, v0
v_and_b32 v{vLane}, 63, v0
v_readfirstlane_b32 s{sW}, v{vt}
""")
if ICP in (2, 3, 4):
    I(f"""
    s_getpc_b64 s[94:95]
    s_lshr_b32 s98, s2, 3
    s_mul_i32 s98, s98, {NW}
    s_add_u32 s98, s98, s{sW}
    s_and_b32 s98, s98, {127 if ICP == 3 else 255}
    s_lshl_b32 s98, s98, {7 if ICP == 3 else 6}
    """)
if ICP == 3:
    I(f"""
    v_mov_b32 v27, s98
    s_mov_b64 exec, 1
    global_load_dword v27, v27, s[94:95]
    s_mov_b64 exec, -1
    """)
if ICP == 4:
    I(f"""
    s_cmp_gt_u32 s98, 64
    s_cbranch_scc1 L_noic
    s_lshl_b32 s99, s98, 7
    v_lshl_add_u32 v27, v{vLane}, 7, s99
    global_load_dword v27, v27, s[94:95]
    L_noic:
    """)
I(f"""
s_mul_i32 s{t0}, s2, {QE*4}
{f"s_lshl_b32 s{t1}, s{sW}, 10" if PAIR else ""}
{f"s_add_u32 s{t0}, s{t0}, s{t1}" if PAIR else ""}
{f"v_lshl_add_u32 v{vt+1}, v{vLane}, 3, s{t0}" if PAIR else f"v_lshl_add_u32 v{vt+1}, v0, 4, s{t0}"}
v_lshlrev_b32 v{vt+2}, 1, v{vt+1}
s_and_b32 s{sB}, s2, 7
s_lshl_b32 s{sB}, s{sB}, 5
s_lshr_b32 s{t1}, s2, 3
s_add_u32 s{sB}, s{sB}, s{t1}
{f"s_mov_b32 s{sB}, s2" if int(opts.get("ident", 0)) else ""}
v_lshlrev_b32 v75, 2, v0
v_mov_b32 v76, 0
ds_write_b32 v75, v76 offset:{CNT1}
v_lshrrev_b32 v68, 3, v{vLane}
v_lshrrev_b32 v69, 4, v{vLane}
v_and_b32 v70, 7, v{vLane}
v_xor_b32 v70, v70, v69
v_lshlrev_b32 v70, 4, v70
v_lshl_add_u32 v70, v68, 7, v70
s_and_b32 s{t0}, s{sW}, 1
s_lshl_b32 s{t0}, s{t0}, 6
v_xor_b32 v71, s{t0}, v70
v_and_b32 v72, 15, v{vLane}
v_lshlrev_b32 v73, 2, v69
v_xor_b32 v72, v72, v73
v_lshlrev_b32 v72, 4, v72
v_lshl_add_u32 v72, v69, 8, v72
v_lshlrev_b32 v74, 1, v{vLane}
v_and_b32 v75, 32, v{vLane}
v_lshl_add_u32 v74, v75, 4, v74
v_lshlrev_b32 v{vt+5}, 4, v{vLane}
v_lshlrev_b32 v{vt}, 4, v0
s_mul_i32 s{t1}, s{sB}, {BN*128}
s_lshl_b32 s{t2}, s{sW}, 10
s_mov_b32 s{sA+2}, {N*128}
s_mov_b32 s{sA+3}, 0x00020000
s_mov_b32 s{sBq+2}, {132*256}
s_mov_b32 s{sBq+3}, 0x00020000
s_mov_b32 s{sC+2}, 256
s_mov_b32 s{sC+3}, 0x00020000
s_mov_b32 s{sD+2}, {128*128}
s_mov_b32 s{sD+3}, 0x00020000
s_waitcnt lgkmcnt(0)
s_add_u32 s{pWS}, s{pWS}, {WSOFF}
s_addc_u32 s{pWS+1}, s{pWS+1}, 0
{"s_load_dword s3, s[94:95], s98" if ICP in (2, 4) else ""}
{f"s_load_dword s{sTag}, {sr(pWS,2)}, 0" if TAGS else ""}
s_mov_b32 s{sA}, s{pX}
s_and_b32 s{sA+1}, s{pX+1}, 0xffff
s_mov_b32 s{sBq}, s{pW1}
s_and_b32 s{sBq+1}, s{pW1+1}, 0xffff
s_mov_b32 s{sC}, s{pB1}
s_and_b32 s{sC+1}, s{pB1+1}, 0xffff
s_mov_b32 s{sD}, s{pW2}
s_and_b32 s{sD+1}, s{pW2+1}, 0xffff
s_cmp_ge_u32 s{sW}, 8
s_cbranch_scc1 L_opt_hi
s_add_u32 s{t3}, s{t2}, {24*1024}
s_add_u32 m0, s{t3}, {W1RAW}
s_cmp_lg_u32 s{sW}, 0
buffer_load_dwordx4 v72, {sr(sBq,4)}, s{t3} offen lds
s_cbranch_scc1 L_opt_end
s_mov_b32 m0, {XRAW + 12*1024}
s_add_u32 s{t3}, s{t1}, {12*1024}
buffer_load_dwordx4 v70, {sr(sA,4)}, s{t3} offen{NT} lds
s_branch L_opt_end
L_opt_hi:
s_cmp_lg_u32 s{sW}, {EXTRAW}
s_cbranch_scc1 L_opt_a
s_mul_i32 s{t0}, s2, {XE}
s_add_u32 s{t0}, s{t0}, {256*QE}
v_add_lshl_u32 v{vt+3}, v{vLane}, s{t0}, 2
v_lshlrev_b32 v{vt+4}, 1, v{vt+3}
""")
XM = (1 << XE) - 1
setexec(XM)
I(f"""
global_load_dword v64, v{vt+3}, {sr(pDST,2)}{NT}
global_load_dword v65, v{vt+3}, {sr(pSRC,2)}{NT}
global_load_dwordx2 v[66:67], v{vt+4}, {sr(pE,2)}{NT}
s_mov_b64 exec, -1
s_branch L_opt_end
L_opt_a:
s_cmp_lg_u32 s{sW}, 10
s_cbranch_scc1 L_opt_end
s_mov_b32 s{t0}, {128*256}
buffer_load_dwordx4 v[12:15], v{vt+5}, {sr(sBq,4)}, s{t0} offen
""")
ORD = opts.get("ord", "A")
dma = f"""
s_add_u32 m0, s{t2}, {XRAW}
s_add_u32 s{t3}, s{t1}, s{t2}
buffer_load_dwordx4 v71, {sr(sA,4)}, s{t3} offen{NT} lds
s_add_u32 m0, s{t2}, {W1RAW}
s_add_u32 s{t3}, s{t2}, {12*1024}
buffer_load_dwordx4 v72, {sr(sBq,4)}, s{t2} offen lds
s_add_u32 m0, s{t3}, {W1RAW}
s_nop 0
buffer_load_dwordx4 v72, {sr(sBq,4)}, s{t3} offen lds
"""
edg = f"""
global_load_dwordx4 v[52:55], v{vt+1}, {sr(pSRC,2)}{NT}
global_load_dwordx4 v[56:59], v{vt+2}, {sr(pE,2)}{NT}
global_load_dwordx4 v[60:63], v{vt+2}, {sr(pE,2)} offset:16{NT}
"""
L("L_opt_end")
if PAIR:
    I(f"""
    global_load_dwordx2 v[48:49], v{vt+1}, {sr(pDST,2)}{NT}
    global_load_dwordx2 v[50:51], v{vt+1}, {sr(pDST,2)} offset:512{NT}
    """)
    edg = f"""
    global_load_dwordx2 v[52:53], v{vt+1}, {sr(pSRC,2)}{NT}
    global_load_dwordx2 v[54:55], v{vt+1}, {sr(pSRC,2)} offset:512{NT}
    global_load_dwordx4 v[56:59], v{vt+2}, {sr(pE,2)}{NT}
    global_load_dwordx4 v[60:63], v{vt+2}, {sr(pE,2)} offset:1024{NT}
    """
else:
    I(f"global_load_dwordx4 v[48:51], v{vt+1}, {sr(pDST,2)}{NT}")
if DEBUG:
    I(f"v_mov_b32 v{vST}, 0")
    if DEBUG == 1: I(f"v_writelane_b32 v{vST}, s96, 21")
    nstamp[0] = 1
if ORD == "A": I(dma); I("s_barrier"); I(edg)
elif ORD == "B": I("s_barrier"); I(dma); I(edg)
elif ORD == "C": I("s_barrier"); I(edg); I(dma)
elif ORD == "D": I("s_barrier"); I(dma); I("s_barrier"); I(edg)
I(f"""
s_and_b32 s{t0}, s{sW}, 1
s_lshl_b32 s{t0}, s{t0}, 7
buffer_load_ushort v160, v74, {sr(sC,4)}, s{t0} offen
buffer_load_ushort v162, v74, {sr(sC,4)}, s{t0} offen offset:64
""")
X = (0 if TAGS else 1) + (ICP == 1)
I("s_mov_b64 exec, 1")
if not TAGS:
    I("v_mov_b32 v26, 0")
    I(f"global_load_dword v26, v26, {sr(pWS,2)}")
if ICP == 1:
    I(f"""
    s_getpc_b64 s[94:95]
    s_lshr_b32 s{t0}, s2, 3
    s_mul_i32 s{t0}, s{t0}, {NW}
    s_add_u32 s{t0}, s{t0}, s{sW}
    s_and_b32 s{t0}, s{t0}, 127
    s_lshl_b32 s{t0}, s{t0}, 7
    v_mov_b32 v27, s{t0}
    global_load_dword v27, v27, s[94:95]
    """)
I("s_mov_b64 exec, -1")
assert CNT1 + NTH * 4 <= AREA
small_init(76)
srd(sWS, pWS, WS_SIZE)
I(f"""
s_sub_u32 s{sP}, s{pWS}, {MAGIC - PT}
s_subb_u32 s{sP+1}, s{pWS+1}, 0
s_and_b32 s{sP+1}, s{sP+1}, 0xffff
s_mov_b32 s{sP+2}, {MAGIC + N*256}
s_mov_b32 s{sP+3}, 0x00020000
""")
I(f"""
s_mul_i32 s{t0}, s{sB}, {BN}
s_sub_u32 s{t1}, {N}, s{t0}
s_min_u32 s{t1}, s{t1}, {BN}
s_lshl_b32 s{t2}, s{t0}, 7
s_add_u32 s{sOUT}, s{pOUT}, s{t2}
s_addc_u32 s{sOUT+1}, s{pOUT+1}, 0
s_and_b32 s{sOUT+1}, s{sOUT+1}, 0xffff
s_lshl_b32 s{sOUT+2}, s{t1}, 7
s_mov_b32 s{sOUT+3}, 0x00020000
s_mov_b32 s{sONE}, 1.0
s_mov_b32 s{sONE+1}, 1.0
s_mov_b32 s{sADV}, {GSZ}
s_mov_b32 s{sADV+1}, {GSZ}
s_mov_b32 s{sSC}, {f2u(-LOG2E)}
s_mov_b32 s{sSC+1}, {f2u(-LOG2E)}
s_mov_b32 s{sMode}, 0
s_mul_i32 s{sReg}, s{sW}, {TMAX*GSZ}
s_add_u32 s{sReg}, s{sReg}, {GT}
s_mov_b32 s{t4}, 42800
s_mov_b32 s{t5}, {(-BN) & 0xffffffff}
v_mov_b32 v{vt+6}, 1
v_mov_b32 v161, 0
v_mov_b32 v163, 0
v_mov_b32 v164, 0x3f80
v_mov_b32 v165, 0
""")
I(f"""
v_lshrrev_b32 v68, 5, v{vLane}
v_bfe_u32 v69, v{vLane}, 2, 2
v_lshl_add_u32 v70, v68, 5, v69
s_mov_b32 s{t0}, {W1RAW}
v_lshl_add_u32 v70, v70, 8, s{t0}
v_bfe_u32 v71, v{vLane}, 4, 1
v_lshl_add_u32 v70, v71, 5, v70
v_and_b32 v71, 3, v{vLane}
v_lshl_add_u32 v70, v71, 3, v70
s_and_b32 s{t0}, s{sW}, 1
s_lshl_b32 s{t0}, s{t0}, 1
v_xor_b32 v71, s{t0}, v69
v_lshl_add_u32 v166, v71, 6, v70
v_xor_b32 v71, 1, v71
v_lshl_add_u32 v167, v71, 6, v70
s_lshr_b32 s{t0}, s{sW}, 1
s_lshl_b32 s{t0}, s{t0}, 5
v_and_b32 v78, 31, v{vLane}
v_add_u32 v78, s{t0}, v78
v_bfe_u32 v71, v{vLane}, 1, 3
v_lshlrev_b32 v72, 2, v68
v_xor_b32 v71, v71, v72
v_lshlrev_b32 v71, 4, v71
v_lshl_add_u32 v79, v78, 7, v71
v_add_u32 v79, {XRAW}, v79
s_waitcnt vmcnt({8+X+PAIR})
""")
stamp()
def bucket_rank(d, a, r):
    I(f"v_mul_u32_u24 v{a}, s{t4}, v{d}")
    I(f"v_lshrrev_b32 v{a}, 22, v{a}")
    I(f"v_mad_i32_i24 v{d}, v{a}, s{t5}, v{d}")
    I(f"v_lshlrev_b32 v{a}, 2, v{a}")
    I(f"ds_add_rtn_u32 v{r}, v{a}, v{vt+6} offset:{CNT1}")
for i in range(4): bucket_rank(48+i, 68+i, 73+i)
I(f"s_cmp_lg_u32 s{sW}, {EXTRAW}")
I("s_cbranch_scc1 L_noex1")
setexec(XM)
bucket_rank(64, 72, 77)
I("s_mov_b64 exec, -1")
L("L_noex1")
I(f"""
s_waitcnt vmcnt({X + (2 if ORD == 'C' else 5 + PAIR)}) lgkmcnt(0)
s_barrier
""")
stamp()
I(f"""
s_cmp_lt_u32 s{sW}, 8
s_cbranch_scc1 L_ptask
s_cmp_lg_u32 s{sW}, {SCANW}
s_cbranch_scc1 L_noscan
ds_read_b128 v[80:83], v{vt+5} offset:{CNT1}
s_waitcnt lgkmcnt(0)
v_add_u32 v84, v80, v81
v_add_u32 v85, v84, v82
v_add_u32 v86, v85, v83
v_mov_b32 v87, v86
""")
dpp_scan(87)
I(f"""
v_sub_u32 v88, v87, v86
v_add_u32 v89, v88, v80
v_add_u32 v90, v88, v84
v_add_u32 v91, v88, v85
v_mov_b32 v96, {RST}
v_mad_u32_u24 v92, v88, 12, v96
v_mad_u32_u24 v93, v89, 12, v96
v_mad_u32_u24 v94, v90, 12, v96
v_mad_u32_u24 v95, v91, 12, v96
ds_write_b128 v{vt+5}, v[92:95] offset:{CNT1}
v_lshl_or_b32 v16, v80, 12, v88
v_lshl_or_b32 v18, v81, 12, v89
v_lshl_or_b32 v20, v82, 12, v90
v_lshl_or_b32 v22, v83, 12, v91
s_branch L_p_done
L_noscan:
""")
if DEBUG and int(opts.get("arr", 0)):
    I("s_waitcnt vmcnt(0)")
    I("s_memrealtime s[100:101]")
    I("s_waitcnt lgkmcnt(0)")
    I(f"v_writelane_b32 v{vST}, s100, 20")
if int(opts.get("prew", 0)):
    I(f"""
    s_cmp_lg_u32 s{sW}, 9
    s_cbranch_scc1 L_nopw
    s_lshl_b32 s{t0}, s2, 11
    s_add_u32 s{t0}, s{t0}, {GRAN}
    v_mov_b32 v16, 0
    v_mov_b32 v17, 0
    v_mov_b32 v18, 0
    v_mov_b32 v19, 0
    buffer_store_dwordx4 v[16:19], v{vt+5}, {sr(sWS,4)}, s{t0} offen sc1
    buffer_store_dwordx4 v[16:19], v{vt+5}, {sr(sWS,4)}, s{t0} offen offset:1024 sc1
    L_nopw:
    """)
I(f"""
s_cmp_eq_u32 s{sW}, 11
s_cbranch_scc1 L_w2ld
s_cmp_lg_u32 s{sW}, 10
s_cbranch_scc1 L_p_done
""")
for i in range(4):
    I(f"v_lshlrev_b32 v{80+2*i}, 16, v{12+i}")
    I(f"v_and_b32 v{81+2*i}, 0xffff0000, v{12+i}")
for i in range(4):
    I(f"v_pk_mul_f32 {P(80+2*i)}, {P(80+2*i)}, {sr(sSC,2)}")
for i in range(4):
    I(f"v_cvt_pk_bf16_f32 v{12+i}, v{80+2*i}, v{81+2*i}")
I(f"""
v_lshrrev_b32 v88, 4, v{vLane}
v_mul_u32_u24 v88, {QROW}, v88
v_and_b32 v89, 15, v{vLane}
v_lshl_add_u32 v88, v89, 4, v88
v_add_u32 v88, {QB + 98*QROW}, v88
ds_write2_b64 v88, v[12:13], v[14:15] offset0:0 offset1:1
v_mov_b32 v90, 0
v_mov_b32 v91, 0
""")
for g_ in range(4):
    setexec(lanemask(range(16*g_, 16*g_+8)))
    I(f"v_mov_b32 v{90 + (g_ >> 1)}, {0x3f800000 if g_ & 1 else 0x3f80}")
I(f"""
s_mov_b64 exec, -1
v_lshlrev_b32 v88, 3, v{vLane}
ds_write_b64 v88, v[90:91] offset:{LUT}
s_branch L_p_done
L_ptask:
v_xor_b32 v{vt+1}, 16, v79
v_xor_b32 v{vt+2}, 32, v79
v_xor_b32 v{vt+3}, 48, v79
""")
xa = [79, vt+1, vt+2, vt+3]
for ks in range(4):
    I(f"ds_read_b128 {vr(112+4*ks,4)}, v{xa[ks]}")
    for jl in range(2):
        for hf in range(2):
            I(f"ds_read_b64_tr_b16 {P(80+16*jl+4*ks+2*hf)}, v{166+jl} offset:{(8*ks+4*hf)*256}")
I(f"""
v_cmp_gt_u32 vcc, {BN}, v78
s_mov_b64 {sr(sE0,2)}, vcc
v_lshrrev_b32 v{vt+1}, 5, v{vLane}
s_and_b32 s{t1}, s{sW}, 1
s_lshl_b32 s{t1}, s{t1}, 3
v_add_u32 v{vt+1}, s{t1}, v{vt+1}
v_and_b32 v{vt+2}, 15, v78
v_xor_b32 v{vt+1}, v{vt+1}, v{vt+2}
v_lshlrev_b32 v{vt+1}, 4, v{vt+1}
v_lshl_add_u32 v{vt+1}, v78, 8, v{vt+1}
v_add_u32 v{vt+1}, {PST}, v{vt+1}
v_xor_b32 v{vt+2}, 32, v{vt+1}
v_xor_b32 v{vt+3}, 64, v{vt+1}
v_xor_b32 v{vt+4}, 0x60, v{vt+1}
""")
for ks in range(4):
    I(f"s_waitcnt lgkmcnt({15 - 5*ks})")
    I(mf16(128, 80+4*ks, 112+4*ks, "0" if ks == 0 else vr(128,16)))
    I(mf16(144, 96+4*ks, 112+4*ks, "0" if ks == 0 else vr(144,16)))
I("s_mov_b32 s%d, 0x07060302" % t0)
I("s_nop 10")
for i in range(16):
    I(f"v_pk_mul_f32 {P(128+2*i)}, {P(128+2*i)}, {sr(sSC,2)}")
I(f"s_mov_b64 exec, {sr(sE0,2)}")
for rg in range(4):
    for i in range(4*rg, 4*rg+4):
        I(f"v_add_u32 v{128+i}, 0x4000, v{128+i}")
    for i in range(4*rg, 4*rg+4):
        I(f"v_perm_b32 v{128+i}, v{144+i}, v{128+i}, s{t0}")
    I(f"ds_write_b128 v{vt+1+rg}, {vr(128+4*rg,4)}")
I(f"""
s_mov_b64 exec, -1
L_p_done:
v_lshrrev_b32 v80, 4, v0
v_xor_b32 v81, v80, v0
v_and_b32 v81, 15, v81
v_lshlrev_b32 v81, 4, v81
v_lshl_add_u32 v81, v80, 8, v81
v_add_u32 v81, {PST}, v81
s_mul_i32 s{t0}, s{sB}, {BN*256}
s_add_u32 s{t0}, s{t0}, {PT}
s_add_u32 s{sA}, s{pWS}, s{t0}
s_addc_u32 s{sA+1}, s{pWS+1}, 0
s_and_b32 s{sA+1}, s{sA+1}, 0xffff
s_mov_b32 s{sA+2}, {BN*256}
s_mov_b32 s{sA+3}, 0x00020000
s_mul_i32 s{t0}, s2, {RSTRIDE}
s_add_u32 s{t0}, s{t0}, {REC}
s_add_u32 s{sBq}, s{pWS}, s{t0}
s_addc_u32 s{sBq+1}, s{pWS+1}, 0
s_and_b32 s{sBq+1}, s{sBq+1}, 0xffff
s_mov_b32 s{sBq+2}, {(CH*12+15)//16*16}
s_mov_b32 s{sBq+3}, 0x00020000
s_mov_b32 s{t1}, {NTH*16}
s_mov_b32 s{t2}, {2*NTH*16}
s_mov_b32 s{t3}, {3*NTH*16}
s_waitcnt lgkmcnt(0)
s_barrier
""")
stamp()
I(f"""
ds_read_b128 v[84:87], v81
ds_read_b128 v[88:91], v81 offset:{48*256}
ds_read_b128 v[92:95], v81 offset:{96*256}
""")
for i in range(5):
    I(f"ds_read_b32 v{68+i}, v{68+i} offset:{CNT1}")
I(f"""
s_waitcnt lgkmcnt(7)
buffer_store_dwordx4 v[84:87], v{vt}, {sr(sA,4)}, 0 offen {PST_}
s_waitcnt lgkmcnt(6)
buffer_store_dwordx4 v[88:91], v{vt}, {sr(sA,4)}, s{t1} offen {PST_}
s_waitcnt lgkmcnt(5)
buffer_store_dwordx4 v[92:95], v{vt}, {sr(sA,4)}, s{t2} offen {PST_}
s_waitcnt vmcnt({7+X})
""")
I(f"s_movk_i32 s{t4}, 0x804")
I(f"s_mov_b32 s{t5}, {KMASK}")
for i in range(4):
    I(f"v_mul_u32_u24 v{52+i}, s{t4}, v{52+i}") if False else None
    I(f"v_lshlrev_b32 v{80+i}, 11, v{52+i}")
    I(f"v_lshlrev_b32 v{48+i}, 12, v{48+i}")
    I(f"v_lshlrev_b32_sdwa v{80+i}, 2, v{52+i} dst_sel:WORD_0 dst_unused:UNUSED_PRESERVE src0_sel:DWORD src1_sel:BYTE_0")
for i in range(4):
    I(f"v_and_or_b32 v{48+i}, v{80+i}, s{t5}, v{48+i}")
I("s_waitcnt lgkmcnt(0)")
for i in range(5):
    I(f"v_mad_u32_u24 v{68+i}, v{73+i}, 12, v{68+i}")
for i in range(4):
    I(f"ds_write_b32 v{68+i}, v{48+i} offset:8")
I(f"s_cmp_lg_u32 s{sW}, {EXTRAW}")
I("s_cbranch_scc1 L_noex2")
setexec(XM)
I(f"""
v_lshlrev_b32 v80, 11, v65
v_lshlrev_b32 v64, 12, v64
v_lshlrev_b32_sdwa v80, 2, v65 dst_sel:WORD_0 dst_unused:UNUSED_PRESERVE src0_sel:DWORD src1_sel:BYTE_0
s_nop 0
v_and_or_b32 v64, v80, s{t5}, v64
ds_write2_b32 v72, v66, v67 offset0:0 offset1:1
ds_write_b32 v72, v64 offset:8
s_mov_b64 exec, -1
L_noex2:
s_waitcnt vmcnt({6+X})
ds_write2_b32 v68, v56, v57 offset0:0 offset1:1
ds_write2_b32 v69, v58, v59 offset0:0 offset1:1
s_waitcnt vmcnt({5+X})
""")
stamp()
I(f"""
ds_write2_b32 v70, v60, v61 offset0:0 offset1:1
ds_write2_b32 v71, v62, v63 offset0:0 offset1:1
s_waitcnt lgkmcnt(0)
s_barrier
""")
stamp()
for i in range(4):
    I(f"ds_read_b128 {vr(48+4*i,4)}, v{vt} offset:{RST + i*NTH*16}")
for i in range(3):
    I(f"s_waitcnt lgkmcnt({3-i})")
    I(f"buffer_store_dwordx4 {vr(48+4*i,4)}, v{vt}, {sr(sBq,4)}, {['0', f's{t1}', f's{t2}'][i]} offen {RST_}")
I(f"""
s_waitcnt lgkmcnt(0)
s_cmp_lg_u32 s{sW}, 0
s_cbranch_scc1 L_no4
buffer_store_dwordx4 v[60:63], v{vt}, {sr(sBq,4)}, s{t3} offen {RST_}
L_no4:
s_cmp_ge_u32 s{sW}, 8
s_cbranch_scc1 L_nop2
""")
for ks in range(4):
    for jl in range(2):
        for hf in range(2):
            I(f"ds_read_b64_tr_b16 {P(80+16*jl+4*ks+2*hf)}, v{166+jl} offset:{16384 + (8*ks+4*hf)*256}")
I(f"s_waitcnt vmcnt({6+X})")
I(mf8(128, 160, 164, "0"))
I(mf8(144, 162, 164, "0"))
I(f"""
v_lshrrev_b32 v{vt+1}, 5, v{vLane}
s_and_b32 s{t0}, s{sW}, 1
s_lshl_b32 s{t0}, s{t0}, 7
s_add_u32 s{t0}, s{t0}, {QB}
v_lshl_add_u32 v{vt+1}, v{vt+1}, 3, s{t0}
v_mul_u32_u24 v{vt+2}, {QROW}, v78
v_add_u32 v{vt+1}, v{vt+1}, v{vt+2}
""")
for ks in range(4):
    I(f"s_waitcnt lgkmcnt({12 - 4*ks})")
    I(mf16(128, 80+4*ks, 112+4*ks, vr(128,16)))
    I(mf16(144, 96+4*ks, 112+4*ks, vr(144,16)))
I("s_nop 11")
for i in range(16):
    I(f"v_pk_mul_f32 {P(128+2*i)}, {P(128+2*i)}, {sr(sSC,2)}")
for i in range(16):
    I(f"v_cvt_pk_bf16_f32 v{128+i}, v{128+2*i}, v{129+2*i}")
I(f"s_mov_b64 exec, {sr(sE0,2)}")
for jl in range(2):
    for rg in range(4):
        I(f"ds_write_b64 v{vt+1}, {P(128+8*jl+2*rg)} offset:{64*jl + 16*rg}")
I(f"""
s_mov_b64 exec, -1
s_branch L_p2_done
L_nop2:
s_cmp_lg_u32 s{sW}, 11
s_cbranch_scc1 L_p2_done
s_cmp_gt_u32 s2, 16
s_cbranch_scc1 L_p2_done
s_lshl_b32 s{t0}, s2, 10
s_add_u32 s{t0}, s{t0}, {W2I}
s_waitcnt vmcnt(6)
s_cmp_lt_u32 s2, 16
s_cbranch_scc1 L_w2st
v_lshlrev_b32 v{vW2S}, 16, v{vW2S}
v_mul_f32 v{vW2S}, s{sSC}, v{vW2S}
v_lshlrev_b32 v{vW2S+1}, 2, v{vLane}
buffer_store_dword v{vW2S}, v{vW2S+1}, {sr(sWS,4)}, s{t0} offen sc1
s_branch L_p2_done
L_w2st:
v_lshl_or_b32 v{vW2S}, v{vW2S+1}, 16, v{vW2S}
v_lshl_or_b32 v{vW2S+1}, v{vW2S+3}, 16, v{vW2S+2}
v_lshl_or_b32 v{vW2S+2}, v{vW2S+5}, 16, v{vW2S+4}
v_lshl_or_b32 v{vW2S+3}, v{vW2S+7}, 16, v{vW2S+6}
buffer_store_dwordx4 {vr(vW2S,4)}, v{vt+5}, {sr(sWS,4)}, s{t0} offen sc1
L_p2_done:
""")
I(f"""
v_and_b32 v72, 31, v{vLane}
v_lshlrev_b32 v72, 2, v72
v_add_u32 v{vSC}, {SB}, v72
v_cvt_f32_u32 v72, v72
v_mov_b32 v{vBK}, 0x78005c00
v_cvt_f16_f32 v{vBK+1}, v72
v_and_b32 v{vBK+1}, 0xffff, v{vBK+1}
s_mov_b32 exec_lo, 0
v_mov_b32 v{vBK}, 0
v_mov_b32 v{vBK+1}, 0
s_mov_b64 exec, -1
v_mov_b32 v{vKA+1}, 0x3c00
v_bfe_u32 v73, v{vLane}, 4, 1
v_lshlrev_b32 v73, 5, v73
v_and_b32 v74, 3, v{vLane}
v_lshl_add_u32 v73, v74, 3, v73
v_add_u32 v{vQC}, {QB}, v73
v_bfe_u32 v75, v{vLane}, 2, 2
v_add_u32 v76, 98, v75
v_mul_u32_u24 v76, {QROW}, v76
v_add_u32 v{vQ}, v76, v{vQC}
""")
I(f"""
v_bfe_u32 v72, v{vLane}, 3, 2
v_bfe_u32 v73, v{vLane}, 1, 1
v_lshl_add_u32 v72, v72, 1, v73
v_lshlrev_b32 v{vAC}, 3, v72
v_lshlrev_b32 v{vAC+1}, 2, v72
""")
def ptr_consts(base):
    I(f"""
    v_lshrrev_b32 v72, 5, v{vLane}
    v_lshl_add_u32 v{vPH}, v72, 3, {base}
    v_bfe_u32 v73, v{vLane}, 2, 1
    v_and_b32 v74, 1, v{vLane}
    v_lshl_add_u32 v73, v73, 1, v74
    v_lshl_add_u32 v73, v72, 2, v73
    v_lshl_add_u32 v{vPG}, v73, 2, {base}
    v_bfe_u32 v75, v{vLane}, 2, 2
    v_lshl_add_u32 v74, v75, 2, {base}
    v_add_u32 v{vPR}, 50, v74
    """)
ptr_consts(f"s{sReg}")
I(f"""
{"" if TAGS else "s_waitcnt vmcnt(6)"}
{"" if TAGS else f"v_readfirstlane_b32 s{sTag}, v26"}
s_add_u32 s{sTag}, s{sTag}, 1
s_mul_i32 s{sTag8}, s{sTag}, 0x9e3779b1
s_and_b32 s{sTag8}, s{sTag8}, 0xff000000
v_or_b32 v16, s{sTag8}, v16
v_or_b32 v18, s{sTag8}, v18
v_or_b32 v20, s{sTag8}, v20
v_or_b32 v22, s{sTag8}, v22
v_mov_b32 v17, s{sTag}
v_mov_b32 v19, s{sTag}
v_mov_b32 v21, s{sTag}
v_mov_b32 v23, s{sTag}
s_waitcnt vmcnt(0) lgkmcnt(0)
s_barrier
""")
stamp()
I(f"""
s_cmp_lg_u32 s{sW}, {SCANW}
s_cbranch_scc1 L_nopub
v_lshlrev_b32 v72, 5, v{vLane}
s_lshl_b32 s{t0}, s2, 11
s_add_u32 s{t0}, s{t0}, {GRAN}
buffer_store_dwordx4 v[16:19], v72, {sr(sWS,4)}, s{t0} offen sc0 sc1
buffer_store_dwordx4 v[20:23], v72, {sr(sWS,4)}, s{t0} offen offset:16 sc0 sc1
L_nopub:
""")
PF1 = int(opts.get("pf1", 0)); PF2 = int(opts.get("pf2", 0))
def prefetch(n, first, dst):
    I(f"""
    s_lshr_b32 s{t0}, s2, 3
    s_mul_i32 s{t0}, s{t0}, {NW}
    s_add_u32 s{t0}, s{t0}, s{sW}
    s_mul_i32 s{t0}, s{t0}, {n*128}
    s_add_u32 s{t0}, s{t0}, {MAGIC + first*384*128}
    v_lshlrev_b32 v{dst}, 7, v{vLane}
    """)
    if n < 64: setexec((1 << n) - 1)
    I(f"buffer_load_dword v{dst}, v{dst}, {sr(sP,4)}, s{t0} offen sc1")
    I("s_mov_b64 exec, -1")
if PF1: prefetch(PF1, 0, 42)
area_init(64)
SZ = int(opts.get('sz', 1))
if SZ == 1: s_zero(76)
vDs = 124
vRA = 130
vCn = 133
vPo = 136
vL7 = 138; vRb = 139; vAr = 140
sPo = [sG, sT, sRem]; sRo = sGam
def desc_consts():
    I(f"""
    v_lshrrev_b32 v141, 3, v{vLane}
    v_lshlrev_b32 v{vPo}, 11, v141
    v_and_b32 v{vL7}, 7, v{vLane}
    v_mul_u32_u24 v{vRb}, 12, v{vL7}
    s_mov_b32 s{t0}, {RSTRIDE}
    v_mad_u32_u24 v{vRb}, v141, s{t0}, v{vRb}
    s_lshl_b32 s{sPo[0]}, s{sW}, 14
    s_lshl_b32 s{t1}, s{sB}, 3
    s_add_u32 s{sPo[0]}, s{sPo[0]}, s{t1}
    s_add_u32 s{sPo[0]}, s{sPo[0]}, {GRAN}
    s_add_u32 s{sPo[1]}, s{sPo[0]}, {12*16384}
    s_add_u32 s{sPo[2]}, s{sPo[0]}, {24*16384}
    s_mul_i32 s{sRo}, s{sW}, {8*RSTRIDE}
    s_add_u32 s{sRo}, s{sRo}, {REC}
    """)
def poll_load(jj): return f"buffer_load_dwordx2 {P(vDs+2*jj)}, v{vPo}, {sr(sWS,4)}, s{sPo[jj]} offen sc1"
def decode(jj):
    I(f"v_and_b32 v{vRA+jj}, 0xfff, v{vDs+2*jj}")
    I(f"v_mad_u32_u24 v{vRA+jj}, v{vRA+jj}, 12, v{vRb}")
    if jj: I(f"v_add_u32 v{vRA+jj}, {jj*96*RSTRIDE}, v{vRA+jj}")
    I(f"v_bfe_u32 v{vCn+jj}, v{vDs+2*jj}, 12, 12")
    I(f"v_sub_u32 v{vCn+jj}, v{vCn+jj}, v{vL7}")
lab = [0]
NR = 5
order = [(jj, rd) for jj in range(3) for rd in range(NR)]
slotreg = {s: 48 + 4*n_ for n_, s in enumerate(order)}
slotmask = {s: sM + 2*n_ for n_, s in enumerate(order)}
vTA = {s: 108 + n_ for n_, s in enumerate(order)}
def slots(body):
    for jj in range(3):
        lab[0] += 1; grp = lab[0]
        for rd in range(NR):
            s = (jj, rd)
            I(f"s_mov_b64 exec, {sr(slotmask[s],2)}")
            if rd >= 2 or (jj == 2 and rd == 0): I(f"s_cbranch_execz L_sg{grp}")
            body(s)
        L(f"L_sg{grp}")
    I("s_mov_b64 exec, -1")
def tagcheck(jj, dst):
    I(f"""
    v_xor_b32 v141, s{sTag8}, v{vDs+2*jj}
    v_xor_b32 v142, s{sTag}, v{vDs+2*jj+1}
    v_lshrrev_b32 v141, 24, v141
    v_or_b32 v141, v141, v142
    v_cmp_ne_u32 {dst}, 0, v141
    """)
desc_consts()
I(f"""
s_mov_b64 {sr(sPM,2)}, -1
s_mov_b64 {sr(sPM+2,2)}, -1
s_cmp_lt_u32 s{sW}, 8
s_cselect_b64 {sr(sPM+4,2)}, -1, 0
v_mov_b32 v{vDs+4}, s{sTag8}
v_mov_b32 v{vDs+5}, s{sTag}
s_mov_b32 s{sK}, 0
v_mov_b32 v{vAr}, {AREA}
s_movk_i32 s{t4}, {NSZ//4}
s_mov_b32 s{t5}, {KMASK}
v_mov_b32 v137, {KCON}
v_mov_b32 v143, 0
s_waitcnt lgkmcnt(0)
s_barrier
""")
stamp()
I(f"""
s_branch L_poll1
L_poll:
""")
if SLEEP: I(f"s_sleep {SLEEP}")
L("L_poll1")
for jj in range(3):
    I(f"s_mov_b64 exec, {sr(sPM+2*jj,2)}")
    I(f"s_cbranch_execz L_pk{jj}")
    I(poll_load(jj))
    L(f"L_pk{jj}")
I(f"""
s_mov_b64 exec, -1
s_add_u32 s{sK}, s{sK}, 1
s_cmp_gt_u32 s{sK}, 0x40000
s_cbranch_scc1 L_exit
s_waitcnt vmcnt(0)
""")
for jj in range(3): tagcheck(jj, sr(sPM+2*jj,2))
I(f"""
s_or_b64 {sr(sE0,2)}, {sr(sPM,2)}, {sr(sPM+2,2)}
s_or_b64 {sr(sE0,2)}, {sr(sE0,2)}, {sr(sPM+4,2)}
s_cbranch_scc1 L_poll
""")
if DEBUG:
    I(f"v_writelane_b32 v{vST}, s{sK}, 22")
stamp()
for jj in range(3): decode(jj)
for s_ in order:
    I(f"v_cmp_lt_i32 {sr(slotmask[s_],2)}, {8*s_[1]}, v{vCn+s_[0]}")
slots(lambda s_: I(f"buffer_load_dwordx3 {vr(slotreg[s_],3)}, v{vRA+s_[0]}, {sr(sWS,4)}, s{sRo} offen offset:{96*s_[1]} sc1"))
I(f"""
v_max3_i32 v141, v{vCn}, v{vCn+1}, v{vCn+2}
v_cmp_lt_i32 vcc, {8*NR}, v141
s_cbranch_vccz L_nobig
v_mov_b32 v141, 0
ds_write_b32 v141, v{vt+6} offset:{FLAG}
L_nobig:
""")
if SZ == 0: s_zero(144)
vNB = 32
I(f"""
v_mul_u32_u24 v{vNB}, {2*NSZ}, v{vLane}
v_add_u32 v{vNB}, {AREA}, v{vNB}
v_add_u32 v{vNB+1}, {NSZ}, v{vNB}
s_mov_b32 s{t0}, {2*(SROW + (QROW << 16))}
v_mul_lo_u32 v{vNB+2}, v{vLane}, s{t0}
v_add_u32 v{vNB+3}, {SROW + (QROW << 16)}, v{vNB+2}
""")
I("s_waitcnt vmcnt(0)")
stamp()
if PF2: prefetch(PF2, PF1, 33)
def rank_body(s):
    r = slotreg[s]
    I(f"v_bfe_u32 v{vTA[s]}, v{r+2}, 10, 9")
    I(f"v_and_or_b32 v{r+2}, v{r+2}, s{t5}, v137")
    I(f"ds_add_rtn_u32 v{r+3}, v{vTA[s]}, v{vt+6} offset:{CNT}")
    I(f"v_mad_u32_u24 v{vTA[s]}, v{vTA[s]}, s{t4}, v{vAr}")
slots(rank_body)
I("s_waitcnt lgkmcnt(0)")
def scat_body(s):
    r = slotreg[s]
    lab[0] += 1; fx = lab[0]
    fixups.append((fx, s))
    I(f"v_cmp_le_u32 vcc, {CAP}, v{r+3}")
    I(f"v_lshl_add_u32 v141, v{r+3}, 2, v{vTA[s]}")
    I(f"v_lshl_add_u32 v{vTA[s]}, v{r+3}, 3, v{vTA[s]}")
    I(f"s_cbranch_vccnz L_fx{fx}")
    L(f"L_fr{fx}")
    I(f"ds_write_b32 v141, v{r+2}")
    I(f"ds_write_b64 v{vTA[s]}, {P(r)} offset:{EOFF}")
fixups = []
PF5 = int(opts.get("pf5", 0))
if PF5: prefetch(PF5, PF1, 41)
slots(scat_body)
PF4 = int(opts.get("pf4", 12))
if PF4: prefetch(PF4, PF1, 41)
I(f"""
s_waitcnt lgkmcnt(0)
s_barrier
""")
stamp()
PF3 = int(opts.get('pf3', 0))
if PF3: prefetch(PF3, 0, 43)
I(f"""
s_or_b32 s{t0}, s2, s{sW}
s_cmp_lg_u32 s{t0}, 0
s_cbranch_scc1 L_nogen
v_mov_b32 v137, 0
v_mov_b32 v138, s{sTag}
s_mov_b64 exec, 1
buffer_store_dword v138, v137, {sr(sWS,4)}, 0 offen sc0 sc1
s_mov_b64 exec, -1
L_nogen:
""")
def chain(T, vD=vD, vN=vN, n=8):
    l = [f"v_pk_add_f32 {P(vD)}, {P(vE)}, {sr(sONE,2)}",
         f"v_pk_fma_f32 {P(vN)}, {P(T)}, {P(vE+2)}, {P(T)}",
         f"v_pk_fma_f32 {P(vN)}, {P(T+2)}, {P(vD)}, {P(vN)}",
         f"v_pk_fma_f32 {P(vD)}, {P(vD)}, {P(vE+2)}, {P(vD)}"]
    for i in range(2, n):
        l += [f"v_pk_fma_f32 {P(vN)}, {P(vN)}, {P(vE+2*i)}, {P(vN)}",
              f"v_pk_fma_f32 {P(vN)}, {P(T+2*i)}, {P(vD)}, {P(vN)}",
              f"v_pk_fma_f32 {P(vD)}, {P(vD)}, {P(vE+2*i)}, {P(vD)}"]
    return l
assert EOFF - 7*32 == 0
def gload(u): return [f"buffer_load_dword v{vLb[u]+i}, v{vIX+i}, {sr(sP,4)}, 0 offen offset:{128*u} sc1" for i in range(16)]
def shifts(u): return [f"v_lshlrev_b64 {P(vTL+2*i)}, 16, {P(vLb[u]+2*i)}" for i in range(8)]
SAUPD = [f"v_add_u32_sdwa v{vSA}, v{vGS}, v{vSC} {SDWA0}", f"v_add_u32_sdwa v{vSA+1}, v{vGS+1}, v{vSC} {SDWA0}"]
QUPD = f"v_add_u32_dpp v{vQ}, v{vGQ}, v{vQC} quad_perm:[0,1,2,3] row_mask:0xc bank_mask:0xf"
AUPD = f"v_lshl_add_u64 {P(vAG)}, {P(vAG)}, 0, {P(vAC)}"
IXM = mf8(vIX, vKA, vBK, "0").replace("bf16", "f16")

vDj = [144, 148, 152, 156]; vNj = [146, 150, 154, 158]; vSj = [160, 162, 164, 166]
def pmul(d, a, b): return f"v_pk_mul_f32 {P(d)}, {P(a)}, {P(b)}"
def inv(m): return [f"v_rcp_f32 v{vE}, v{m}", f"v_rcp_f32 v{vE+1}, v{m+1}", f"v_max3_f32 v{vMX}, v{m}, v{m+1}, v{vMX}"]
NSH = 4 * NW
vSU = 120
I(f"""
v_lshlrev_b32 v48, 3, v{vLane}
v_mov_b32 v63, 0
s_mov_b32 s{t2}, 0x80000004
ds_read_b64 v[50:51], v48 offset:{CNT}
ds_read_b32 v49, v63 offset:{FLAG}
""")
I(f"""
v_mov_b32 v{vMX}, 0
s_lshl_b32 s{t3}, s{sW}, 2
s_waitcnt lgkmcnt(0)
v_add_u32 v80, -1, v50
v_add_u32 v81, -1, v51
v_and_b32 v80, s{t2}, v80
v_and_b32 v81, s{t2}, v81
v_cmp_gt_u32 {sr(sE0,2)}, {CAP}, v50
v_cmp_gt_u32 {sr(sE1,2)}, {CAP}, v51
v_cmp_eq_u32 vcc, 0, v80
s_and_b64 {sr(sE0,2)}, {sr(sE0,2)}, vcc
v_cmp_eq_u32 vcc, 0, v81
s_and_b64 {sr(sE1,2)}, {sr(sE1,2)}, vcc
s_bcnt1_i32_b64 s{t0}, {sr(sE0,2)}
v_mbcnt_lo_u32_b32 v82, s{sE0}, 0
v_mov_b32 v83, s{t0}
v_mbcnt_hi_u32_b32 v82, s{sE0+1}, v82
v_mbcnt_lo_u32_b32 v83, s{sE1}, v83
v_mbcnt_hi_u32_b32 v83, s{sE1+1}, v83
""")
for e_ in range(2):
    m_ = (sE0, sE1)[e_]
    I(f"""
    v_subrev_u32 v84, s{t3}, v{82+e_}
    v_cmp_gt_u32 vcc, 4, v84
    s_and_b64 exec, {sr(m_,2)}, vcc
    s_cbranch_execz L_shs{e_}
    v_and_b32 v85, 0x78, v{50+e_}
    v_and_b32 v86, 7, v{50+e_}
    v_lshl_add_u32 v87, v85, 2, v{vNB+e_}
    v_lshl_add_u32 v88, v85, 3, v{vNB+e_}
    v_lshlrev_b32 v89, 4, v84
    v_add_u32 v88, {EOFF}, v88
    v_sub_u32 v89, v89, v86
    v_lshl_add_u32 v84, v84, 2, s{sReg}
    v_lshlrev_b32 v89, 3, v89
    ds_write2_b32 v84, v87, v88 offset0:0 offset1:4
    v_add_u32 v89, {LUT + 64}, v89
    ds_write2_b32 v84, v89, v{vNB+2+e_} offset0:8 offset1:12
    L_shs{e_}:
    s_mov_b64 exec, -1
    """)
I(f"""
ds_read2_b32 {P(vAG)}, v{vPG} offset0:4 offset1:0
ds_read_u16 v{vGQ}, v{vPR}
ds_read_b64 {P(vGS)}, v{vPH} offset:48
v_cmp_gt_u32 vcc, {NSH}, v82
s_and_b64 {sr(sE0,2)}, {sr(sE0,2)}, vcc
v_cmp_gt_u32 vcc, {NSH}, v83
s_and_b64 {sr(sE1,2)}, {sr(sE1,2)}, vcc
v_add_u32 v52, 7, v50
v_add_u32 v53, 7, v51
v_lshrrev_b32 v52, 3, v52
v_lshrrev_b32 v53, 3, v53
s_waitcnt lgkmcnt(2)
{AUPD}
ds_read_b32 v{vKA}, v{vAG+1}
ds_read_b64 {P(vA5)}, v{vAG}
v_subb_co_u32 v52, vcc, v52, 0, {sr(sE0,2)}
v_subb_co_u32 v53, vcc, v53, 0, {sr(sE1,2)}
s_waitcnt lgkmcnt(1)
{IXM}
{QUPD}
{SAUPD[0]}
{SAUPD[1]}
v_add_u32 v54, v52, v53
v_max_u32 v55, v52, v53
v_mov_b32 v56, v54
v_readfirstlane_b32 s{sBad}, v49
v_cmp_lt_u32 vcc, {CAP}, v50
v_cmp_lt_u32 {sr(sE0,2)}, {CAP}, v51
""")
I(f"""
ds_read_b64_tr_b16 {P(vB5[0])}, v{vQ}
ds_read_b64_tr_b16 {P(vB5[1])}, v{vQ} offset:64
ds_read_b64_tr_b16 {P(vD)}, v{vQ} offset:128
ds_read_b64_tr_b16 {P(vN)}, v{vQ} offset:192
s_nop 1
""")
for i_ in range(8): I(f"buffer_load_dword v{vTH+i_}, v{vIX+i_}, {sr(sP,4)}, 0 offen sc1")
for i_ in range(8): I(f"buffer_load_dword v{vSU+i_}, v{vIX+i_}, {sr(sP,4)}, 0 offen offset:128 sc1")
dpp_scan(56, 55)
I(f"""
s_bcnt1_i32_b64 s{t1}, vcc
s_bcnt1_i32_b64 s{t2}, {sr(sE0,2)}
s_add_u32 s{t1}, s{t1}, s{t2}
s_cmp_gt_u32 s{t1}, 1
s_cselect_b32 s{sBad}, 1, s{sBad}
""")
I(f"""
s_nop 0
v_readlane_b32 s{sG}, v56, 63
v_readlane_b32 s{sGmax}, v55, 63
v_sub_u32 v56, v56, v54
v_add_u32 v57, v56, v52
s_add_u32 s{t0}, s{sG}, 3
s_lshr_b32 s{t0}, s{t0}, 2
s_cmp_gt_u32 s{t0}, {NW*(TMAX-1)}
s_cselect_b32 s{sBad}, 1, s{sBad}
s_cmp_gt_u32 s{sGmax}, {TMAX-1}
s_cselect_b32 s{sBad}, 1, s{sBad}
""")
if FORCE_SLOW == 1: I(f"s_mov_b32 s{sBad}, 1")
I(f"""
s_cmp_lg_u32 s{sBad}, 0
s_cbranch_scc1 L_slow
s_mul_i32 s{sT}, s{t0}, 171
s_lshr_b32 s{sT}, s{sT}, 11
s_mul_i32 s{t1}, s{sT}, {NW}
s_sub_u32 s{sRem}, s{t0}, s{t1}
s_cmp_gt_u32 s{sGmax}, s{sT}
s_cselect_b32 s{sT}, s{sGmax}, s{sT}
s_cselect_b32 s{sRem}, 0, s{sRem}
s_max_u32 s{sT}, s{sT}, 1
s_add_u32 s{t1}, s{sT}, 1
s_lshl_b32 s{t2}, s{sRem}, 2
s_mul_i32 s{sGam}, s{t2}, s{t1}
v_cvt_f32_u32 v58, s{sT}
v_cvt_f32_u32 v59, s{t1}
v_rcp_f32 v58, v58
v_rcp_f32 v59, v59
v_mov_b32 v60, s{sT}
v_mov_b32 v61, s{t1}
v_mov_b32 v62, s{t2}
s_cmp_lt_u32 s{sW}, s{sRem}
s_cselect_b32 s{sTw}, s{t1}, s{sT}
s_cselect_b32 s{t0}, 0, s{t2}
s_mul_i32 s{t1}, s{sTw}, s{sW}
s_lshl_b32 s{t1}, s{t1}, 2
s_add_u32 s{t1}, s{t1}, s{t0}
s_sub_i32 s{t1}, s{sG}, s{t1}
s_max_i32 s{t1}, s{t1}, 0
s_min_u32 s{sTw}, s{sTw}, s{t1}
v_lshlrev_b32 v65, 1, v{vLane}
s_mov_b32 s{sK}, s{sW}
s_cmp_lt_u32 s{sW}, 6
s_cbranch_scc1 L_build
s_sub_u32 s{sK}, s{sW}, 6
v_mov_b32 v50, v51
v_mov_b32 v52, v53
v_mov_b32 v56, v57
v_add_u32 v65, 1, v65
L_build:
v_cmp_lt_u32 vcc, s{sK}, v52
s_and_b64 exec, exec, vcc
s_cbranch_execz L_bskip
v_add_u32 v66, s{sK}, v56
v_cmp_gt_u32 vcc, s{sGam}, v66
v_mul_u32_u24 v77, {QROW}, v65
s_lshl_b32 s{t0}, s{sK}, 3
v_cndmask_b32 v68, v62, v63, vcc
v_cndmask_b32 v69, v60, v61, vcc
v_cndmask_b32 v70, v58, v59, vcc
v_sub_u32 v66, v66, v68
v_cvt_f32_u32 v71, v66
v_add_f32 v71, 0.5, v71
v_mul_f32 v71, v71, v70
v_cvt_u32_f32 v71, v71
v_subrev_u32 v67, s{t0}, v50
v_mul_u32_u24 v72, v71, v69
v_sub_u32 v72, v66, v72
v_and_b32 v73, 3, v71
v_lshrrev_b32 v74, 2, v71
v_mad_u32_u24 v75, v73, v69, v72
v_cmp_gt_u32 vcc, s{sK}, v75
v_mad_u32_u24 v76, v74, {TMAX}, v72
v_lshlrev_b32 v76, 6, v76
v_lshl_add_u32 v76, v73, 2, v76
v_add_u32 v76, {GT + GSZ}, v76
v_add_u32 v74, {ZROW}, v74
v_cndmask_b32 v74, v65, v74, vcc
v_mul_u32_u24 v74, {SROW}, v74
v_lshl_or_b32 v77, v77, 16, v74
v_min_u32 v67, 8, v67
v_lshlrev_b32 v73, 4, v73
v_sub_u32 v73, v73, v67
s_movk_i32 s{t1}, {LUT + 64}
v_lshl_add_u32 v73, v73, 3, s{t1}
ds_write2_b32 v76, v73, v77 offset0:8 offset1:12
s_cmp_ge_u32 s{sK}, 7
s_cselect_b32 s{t1}, 0, {NSZ}
s_cselect_b32 s{t2}, {OVF - 7*32 - AREA}, 0
s_cselect_b32 s{t3}, 0, {EOFF}
s_add_u32 s{t2}, s{t2}, {AREA}
s_lshl_b32 s{t0}, s{sK}, 5
s_add_u32 s{t2}, s{t2}, s{t0}
s_add_u32 s{t3}, s{t3}, s{t0}
v_mul_u32_u24 v78, s{t1}, v65
v_add_u32 v78, s{t2}, v78
v_add_u32 v79, s{t3}, v78
ds_write2_b32 v76, v78, v79 offset0:0 offset1:4
v_lshlrev_b32 v79, 2, v65
s_and_b64 exec, exec, vcc
ds_write_b32 v79, v74 offset:{CARRY}
L_bskip:
s_mov_b64 exec, -1
s_add_u32 s{sK}, s{sK}, 6
s_cmp_lt_u32 s{sK}, s{sGmax}
s_cbranch_scc1 L_build
s_waitcnt lgkmcnt(0)
s_barrier
""")
stamp()

HOLD = int(opts.get("hold", 1))
I(f"""
v_lshl_add_u64 {P(vPH)}, {P(vPH)}, 0, {sr(sADV,2)}
v_add_u32 v{vPR}, {GSZ}, v{vPR}
s_and_b32 s{t0}, s{sW}, 3
s_lshl_b32 s{t0}, s{t0}, 2
ds_read_b32 v{vSO}, v{vPG}
ds_read2_b32 {P(vAG)}, v{vPG} offset0:4 offset1:{GSZ//4}
ds_read_u16 v{vGQ}, v{vPR}
ds_read_b64 {P(vGS)}, v{vPH} offset:48
v_mov_b32 v{vt+7}, s{t0}
s_waitcnt lgkmcnt(3)
v_add_u32 v{vSO}, v{vSO}, v{vAC+1}
ds_read_b32 v{vKA}, v{vSO}
s_waitcnt lgkmcnt(0)
{IXM}
{AUPD}
{QUPD}
ds_read_b32 v{vKA}, v{vAG+1}
""")
def short_half(u):
    src = vTH if u == 0 else vSU
    b0, b1_ = (vB5[0], vB5[1]) if u == 0 else (vD, vN)
    for i_ in range(4): I(f"v_lshlrev_b64 {P(vTL+2*i_)}, 16, {P(src+2*i_)}")
    I("s_nop 1")
    I(mf8(vTL, vA5, b0, vr(vTL,16)))
    I(mf8(vTH, vA5, b1_, vr(src,16)))
    I("s_nop 10")
    a, b_ = 2*u, 2*u + 1
    for j_, T in ((a, vTL), (b_, vTH)):
        for i_ in range(8): I(f"v_exp_f32 v{vE+i_}, v{T+i_}")
        for l in chain(T, vDj[j_], vNj[j_], 4): I(l)
    I(pmul(vSO, vDj[a], vDj[b_]))
    i3 = inv(vSO)
    for l in i3[0:2] + [pmul(vNj[a], vNj[a], vDj[b_]), pmul(vNj[b_], vNj[b_], vDj[a]), i3[2], pmul(vSj[a], vNj[a], vE), pmul(vSj[b_], vNj[b_], vE)]: I(l)
    I(f"ds_write2_b32 v{vSA}, v{vSj[a]}, v{vSj[b_]} offset0:{32*a} offset1:{32*b_}")
    I(f"ds_write2_b32 v{vSA+1}, v{vSj[a]+1}, v{vSj[b_]+1} offset0:{32*a} offset1:{32*b_}")
FP = [[int(c) for c in x] for x in opts.get("fp", "01,02,33").split(",")]
def fetch_point(pt):
    for u in range(2):
        m = sum(0xf << (4*c) for c in range(3) if FP[c][u] == pt)
        if m == 0: continue
        if m != 0xfff:
            I(f"s_movk_i32 s{t0}, {m}")
            I(f"s_bitcmp1_b32 s{t0}, s{sW}")
            I(f"s_cbranch_scc0 L_fp{pt}{u}")
        for l in gload(u): I(l)
        L(f"L_fp{pt}{u}")
if int(opts.get("cw", 1)):
    I("s_nop 9")
    fetch_point(0)
    for n0 in (0, 1, 2):
        m = sum(0xf << (4*c) for c in range(3) if FP[c].count(0) == n0)
        if m == 0: continue
        if m != 0xfff:
            I(f"s_movk_i32 s{t0}, {m}")
            I(f"s_bitcmp1_b32 s{t0}, s{sW}")
            I(f"s_cbranch_scc0 L_w9{n0}")
        I(f"s_waitcnt vmcnt({16*n0})")
        L(f"L_w9{n0}")
else:
    I("s_waitcnt vmcnt(0)")
    I("s_nop 9")
    fetch_point(0)
stamp()
short_half(0)
fetch_point(1)
short_half(1)
fetch_point(2)
I(f"""
ds_read_b64 {P(vA5)}, v{vAG}
ds_read_b64_tr_b16 {P(vB5[0])}, v{vQ}
ds_read_b64_tr_b16 {P(vB5[1])}, v{vQ} offset:64
s_waitcnt lgkmcnt(0)
s_barrier
s_cmp_eq_u32 s{sTw}, 0
s_cbranch_scc1 L_loop_done
""")
stamp()
fetch_point(3)
I(IXM)
I("s_waitcnt vmcnt(16)")
for l in shifts(0): I(l)
I("s_nop 1")
I(mf8(vTL, vA5, vB5[0], vr(vTL,16)))
I(f"s_mov_b32 s{sK}, s{sTw}")
if PRIO:
    I("s_setprio 3")
    I(f"s_mov_b32 s{t5}, {sum(1 << (x // 2) for x in PTH if x % 2 == 0)}")
    I(f"s_mov_b32 s{t4}, {sum(1 << ((x + 1) // 2) for x in PTH if x % 2 == 1)}")
for x in STG:
    if x == 0: continue
    m = t4 if x & 1 else t5
    I(f"""
    s_sub_u32 s{t0}, s{sTw}, {x // 2}
    s_lshl_b32 s{t0}, 1, s{t0}
    s_cmp_lt_u32 s{sW}, 4
    s_cselect_b32 s{t0}, s{t0}, 0
    s_or_b32 s{m}, s{m}, s{t0}
    """)
I("s_nop 15")

GS1, GS2, EXP, CHP = [int(x) for x in opts.get('gs', '6,11,8,4').split(',')]
body = []
def lds(text, tag=None): body.append(("lds", text, tag))
def need(tag): body.append(("need", tag))
def em(x):
    if isinstance(x, list): body.extend(x)
    else: body.append(x)
BATCH = int(opts.get("batch", 2)); LATE = int(opts.get("late", 0))
def rds(j):
    lds(f"ds_read_b32 v{vSj[j]}, v{vSA} offset:{128*j}")
    lds(f"ds_read_b32 v{vSj[j]+1}, v{vSA+1} offset:{128*j}", f"so{j}")
def pmul(d, a, b): return f"v_pk_mul_f32 {P(d)}, {P(a)}, {P(b)}"
def pfin(j, r): return f"v_pk_fma_f32 {P(vSj[j])}, {P(vNj[j])}, {P(r)}, {P(vSj[j])}"
def inv(m): return [f"v_rcp_f32 v{vE}, v{m}", f"v_rcp_f32 v{vE+1}, v{m+1}", f"v_max3_f32 v{vMX}, v{m}, v{m+1}, v{vMX}"]
def wr2(j):
    lds(f"ds_write2_b32 v{vSA}, v{vSj[j]}, v{vSj[j+1]} offset0:{32*j} offset1:{32*j+32}")
    lds(f"ds_write2_b32 v{vSA+1}, v{vSj[j]+1}, v{vSj[j+1]+1} offset0:{32*j} offset1:{32*j+32}")
for j in range(4):
    T = vTH if j & 1 else vTL
    j2 = (j + 2) & 3
    ex = [f"v_exp_f32 v{vE+i}, v{T+i}" for i in range(16)]
    ch = chain(T, vDj[j], vNj[j])
    g = gload(j >> 1)
    if PRIO and j in (0, 2) and (any(x % 2 == j // 2 for x in PTH) or stg_at(j)):
        em([f"s_bitcmp1_b32 s{t5 if j == 0 else t4}, s{sK}", f"s_cbranch_scc1 L_prio{j}", f"L_prio{j}_ret:"])
    if j & 1: em(g[GS2:16])
    if BATCH == 1:
        if j != 0: rds(j)
    elif j & 1:
        rds(j - 1); rds(j)
    b5rd = (f"ds_read_b64_tr_b16 {P(vB5[j & 1])}, v{vQ} offset:{64*j2}", f"b5_{j2}")
    if not (LATE and j & 1 == 0): lds(*b5rd)
    if j == 1:
        lds(f"ds_read_b64 {P(vGS)}, v{vPH} offset:{GSZ+48}")
        lds(f"ds_read2_b32 {P(vAG)}, v{vPG} offset0:{GSZ//4+4} offset1:{2*GSZ//4}")
        lds(f"ds_read_u16 v{vGQ}, v{vPR} offset:{GSZ}", "gq")
    jn = (j + 1) & 3; un = jn >> 1
    if j & 1 == 0:
        need(f"b5_{j+1}")
        em(mf8(vTH, vA5, vB5[1], vr(vLb[j >> 1],16)))
        if j == 0: em(SAUPD)
        if LATE: em(f"s_nop {8 if j == 0 else 10}")
        em(ex[0:EXP])
        em(g[0:GS1])
        if LATE: lds(*b5rd)
        if j == 0 and BATCH == 1: rds(0)
        if j == 2:
            lds(f"ds_read_b32 v{vKA}, v{vAG+1}")
            lds(f"ds_read_b64 {P(vA5)}, v{vAG}", "a5")
        em(ex[EXP:16])
        em(ch[0:CHP])
        em(g[GS1:GS2])
        em(ch[CHP:])
    else:
        if not LATE:
            em("s_waitcnt vmcnt(16)")
            em(shifts(un))
            em(ex[0:2])
            need("a5" if j == 3 else f"b5_{jn}")
            em(mf8(vTL, vA5, vB5[0], vr(vTL,16)))
        else:
            em(ex[0:2])
            if j == 3: need("a5")
        if j == 3:
            em(ex[2:6]); em(IXM); em(ex[6:])
        else:
            em(ex[2:])
        if j == 3:
            em([f"v_lshl_add_u64 {P(vPH)}, {P(vPH)}, 0, {sr(sADV,2)}", f"v_add_u32 v{vPR}, {GSZ}, v{vPR}"])
        else:
            need("gq")
            em([QUPD, AUPD])
        em(ch)
    cnt = [f"s_sub_u32 s{sK}, s{sK}, 1", f"s_cmp_lg_u32 s{sK}, 0"] if j == 3 else []
    late = (["s_waitcnt vmcnt(16)"] + shifts(un)) if (LATE and j & 1) else []
    if BATCH == 1:
        em(inv(vDj[j])); need(f"so{j}"); em(pfin(j, vE)); em(late); em(cnt)
        lds(f"ds_write_b32 v{vSA}, v{vSj[j]} offset:{128*j}")
        lds(f"ds_write_b32 v{vSA+1}, v{vSj[j]+1} offset:{128*j}")
    elif BATCH == 2 and j & 1:
        a, b = j - 1, j
        em(pmul(vD, vDj[a], vDj[b]))
        i3 = inv(vD)
        em(i3[0:2]); em([pmul(vNj[a], vNj[a], vDj[b]), pmul(vNj[b], vNj[b], vDj[a]), i3[2]])
        need(f"so{j}"); em([pfin(a, vE), pfin(b, vE)]); em(late); em(cnt)
        wr2(a)
    elif BATCH == 4 and j == 1:
        em([pmul(vD, vDj[0], vDj[1]), pmul(vNj[0], vNj[0], vDj[1]), pmul(vNj[1], vNj[1], vDj[0])]); em(late)
        if LATE: em("s_nop 1")
    elif BATCH == 4 and j == 3:
        em([pmul(vN, vDj[2], vDj[3]), pmul(vSO, vD, vN)])
        i3 = inv(vSO)
        em(i3[0:2]); em([pmul(vNj[2], vNj[2], vDj[3]), pmul(vNj[3], vNj[3], vDj[2]), i3[2], pmul(vN, vN, vE), pmul(vD, vD, vE)])
        need("so3"); em([pfin(0, vN), pfin(1, vN), pfin(2, vD), pfin(3, vD)]); em(late); em(cnt)
        wr2(0); wr2(2)
    if LATE and j & 1:
        need(f"b5_{jn}")
        em(mf8(vTL, vA5, vB5[0], vr(vTL,16)))
seq2 = body + body + body
res = []
for pos in range(2*len(body), 3*len(body)):
    x = seq2[pos]
    if isinstance(x, tuple) and x[0] == "need":
        n = 0; p = pos - 1
        while not (isinstance(seq2[p], tuple) and seq2[p][0] == "lds" and seq2[p][2] == x[1]):
            if isinstance(seq2[p], tuple) and seq2[p][0] == "lds": n += 1
            p -= 1
        covered = False
        for q in range(p + 1, pos):
            y = seq2[q]
            if isinstance(y, tuple) and y[0] == "need":
                pp = q - 1
                while not (isinstance(seq2[pp], tuple) and seq2[pp][0] == "lds" and seq2[pp][2] == y[1]): pp -= 1
                if pp >= p: covered = True
        if not covered: res.append(f"s_waitcnt lgkmcnt({min(n,15)})")
    elif isinstance(x, tuple): res.append(x[1])
    else: res.append(x)
A(".p2align 6")
L("L_loop")
if DEBUG and int(opts.get("lstamp", 0)):
    I(f"""
    {'s_memtime' if DEBUG == 2 else 's_memrealtime'} s[100:101]
    s_sub_u32 s99, 40, s{sK}
    s_mov_b32 m0, s99
    s_waitcnt lgkmcnt(0)
    v_writelane_b32 v{vST}, s100, m0
    """)
for l in res: I(l)
I("s_cbranch_scc1 L_loop")
L("L_loop_done")
if STAG:
    I(f"v_mov_b32 v{vt+5}, 64")
    I(f"ds_write_b32 v{vt+7}, v{vt+5} offset:{PROG}")
stamp()
L("L_epi")
I(f"""
s_setprio 0
v_cmp_nge_f32 vcc, {f2u(2.0**100)}, v{vMX}
s_cmp_ge_u32 s{sW}, 7
s_cbranch_scc1 L_epi_wait
v_lshlrev_b32 v40, 4, v{vLane}
""")
vW2 = 80
for q in range(4):
    I(f"s_mov_b32 s{t0}, {W2I + 4096*q}")
    for i_ in range(4):
        I(f"buffer_load_dwordx4 {vr(vW2+16*q+4*i_,4)}, v40, {sr(sWS,4)}, s{t0} offen offset:{1024*i_} sc1")
I(f"""
v_and_b32 v42, 15, v{vLane}
v_lshlrev_b32 v41, 4, v42
s_mov_b32 s{t0}, {W2I + 16384}
buffer_load_dwordx4 v[152:155], v41, {sr(sWS,4)}, s{t0} offen sc1
s_lshl_b32 s{t0}, s{sW}, 4
v_add_u32 v43, s{t0}, v42
v_min_u32 v43, {ZROW}, v43
v_lshlrev_b32 v44, 2, v43
v_bfe_u32 v45, v{vLane}, 4, 1
v_lshrrev_b32 v46, 5, v{vLane}
ds_read_b32 v44, v44 offset:{CARRY}
v_lshrrev_b32 v47, 4, v{vLane}
v_lshl_add_u32 v144, v47, 2, s{t0}
v_lshlrev_b32 v145, 2, v144
ds_read_b128 v[148:151], v145 offset:{CNT}
v_lshlrev_b32 v146, 8, v45
v_lshl_add_u32 v146, v46, 7, v146
v_add_u32 v146, {SB}, v146
v_mul_u32_u24 v43, {SROW}, v43
v_add_u32 v43, v43, v146
v_lshlrev_b32 v144, 7, v144
v_lshl_add_u32 v144, v42, 3, v144
s_mov_b32 s{t0}, {f2u(-LN2)}
s_waitcnt vmcnt(0) lgkmcnt(0)
v_add_u32 v44, v44, v146
""")
vO = 12
for r in range(4):
    I(f"v_cvt_f32_u32 v{148+r}, v{148+r}")
for c in range(4):
    for r in range(4):
        I(f"v_mul_f32 v{vO+4*c+r}, v{148+r}, v{152+c}")
I(f"""
L_epi_wait:
s_waitcnt vmcnt(0) lgkmcnt(0)
s_barrier
s_cmp_ge_u32 s{sW}, 7
s_cbranch_scc1 L_epi_end
""")
stamp()
cb = [[148, 152], [156, 160], [164, 32], [36, 2]]
ep = []
def elds(t, tag=None): ep.append(("lds", t, tag))
for ks in range(4):
    for i_ in range(2):
        elds(f"ds_read_b128 {vr(48+8*ks+4*i_,4)}, v43 offset:{32*ks+16*i_}")
        elds(f"ds_read_b128 {vr(cb[ks][i_],4)}, v44 offset:{32*ks+16*i_}", f"s{ks}" if i_ else None)
for ks in range(4):
    ep.append(("need", f"s{ks}"))
    for i_ in range(4):
        r = 48 + 8*ks + 2*i_
        c_ = cb[ks][i_ >> 1] + 2*(i_ & 1)
        if int(opts.get("epk", 0)): ep.append(f"v_pk_add_f32 {P(r)}, {P(r)}, {P(c_)}")
        else: ep += [f"v_add_f32 v{r}, v{r}, v{c_}", f"v_add_f32 v{r+1}, v{r+1}, v{c_+1}"]
    for i_ in range(4):
        r = 48 + 8*ks + 2*i_
        ep.append(f"v_cvt_pk_bf16_f32 v{48+8*ks+i_}, v{r}, v{r+1}")
    ep.append("s_nop 1")
    for c in range(4):
        ep.append(f"v_mfma_f32_16x16x32_bf16 {vr(vO+4*c,4)}, {vr(48+8*ks,4)}, {vr(vW2+16*c+4*ks,4)}, {vr(vO+4*c,4)}")
for pos, x in enumerate(ep):
    if isinstance(x, tuple) and x[0] == "need":
        n = 0; p = pos - 1
        while not (isinstance(ep[p], tuple) and ep[p][0] == "lds" and ep[p][2] == x[1]):
            if isinstance(ep[p], tuple) and ep[p][0] == "lds": n += 1
            p -= 1
        I(f"s_waitcnt lgkmcnt({min(n,15)})")
    elif isinstance(x, tuple): I(x[1])
    else: I(x)
if int(opts.get("est", 0)): stamp()
I(f"s_mov_b32 s{t1}, s{t0}")
I("s_nop 6")
for i_ in range(8):
    if int(opts.get("epk", 0)): I(f"v_pk_mul_f32 {P(vO+2*i_)}, {P(vO+2*i_)}, {sr(t0,2)}")
    else:
        I(f"v_mul_f32 v{vO+2*i_}, s{t0}, v{vO+2*i_}")
        I(f"v_mul_f32 v{vO+2*i_+1}, s{t0}, v{vO+2*i_+1}")
for r in range(4):
    I(f"v_cvt_pk_bf16_f32 v{64+2*r}, v{vO+r}, v{vO+4+r}")
    I(f"v_cvt_pk_bf16_f32 v{65+2*r}, v{vO+8+r}, v{vO+12+r}")
    I(f"buffer_store_dwordx2 {P(64+2*r)}, v144, {sr(sOUT,4)}, 0 offen offset:{128*r} " + opts.get("ost", "").replace("+", " "))
if int(opts.get("est", 0)): stamp()
I(f"""
v_add_f32 v72, v{vO}, v{vO+1}
v_add_f32 v73, v{vO+2}, v{vO+3}
v_add_f32 v72, v72, v73
v_mov_b32 v73, 0x7f800000
v_cmp_nlt_f32 {sr(sE0,2)}, |v72|, v73
s_or_b64 vcc, vcc, {sr(sE0,2)}
L_epi_end:
s_cmp_lg_u32 s{sMode}, 0
s_cbranch_scc1 L_fin
""")
if FORCE_SLOW == 2: I("s_mov_b64 vcc, 1")
I(f"""
v_mov_b32 v72, 0
v_mov_b32 v73, 1
s_cmp_eq_u64 vcc, 0
s_cbranch_scc1 L_noflag
ds_write_b32 v72, v73 offset:{FLAG}
L_noflag:
s_waitcnt lgkmcnt(0)
s_barrier
ds_read_b32 v73, v72 offset:{FLAG}
s_waitcnt lgkmcnt(0)
v_readfirstlane_b32 s{sBad}, v73
s_cmp_lg_u32 s{sBad}, 0
s_cbranch_scc1 L_slow
L_fin:
""")
if DEBUG:
    stamp()
    I("s_waitcnt vmcnt(0)")
    stamp()
    I(f"""
    s_lshl_b32 s{t0}, s2, 4
    s_add_u32 s{t0}, s{t0}, s{sW}
    s_lshl_b32 s{t0}, s{t0}, 8
    s_add_u32 s{t0}, s{t0}, {STAMP}
    v_lshlrev_b32 v72, 2, v{vLane}
    buffer_store_dword v{vST}, v72, {sr(sWS,4)}, s{t0} offen
    s_waitcnt vmcnt(0)
    """)
    if opts.get("dd"):
        sel = [int(x) for x in opts["dd"].split(",")]
        if int(opts.get("xcc", 0)):
            I(f"""
            s_getreg_b32 s98, hwreg(HW_REG_XCC_ID, 0, 4)
            s_sub_u32 s98, s98, s2
            s_and_b32 s98, s98, 7
            s_lshl_b32 s98, s98, 5
            s_add_u32 s99, s98, 256
            v_writelane_b32 v{vST}, s98, 21
            v_writelane_b32 v{vST}, s99, 19
            s_nop 1
            """)
        I(f"""
        s_cmp_lg_u32 s{sW}, {opts.get("ddw", 0)}
        s_cbranch_scc1 L_exit
        s_load_dwordx2 s[96:97], s[0:1], 72
        s_load_dwordx2 s[94:95], s[0:1], 0
        v_readlane_b32 s98, v{vST}, 21
        s_not_b32 s98, s98
        v_mov_b32 v73, 0
        s_nop 1
        v_writelane_b32 v73, s98, 8
        """)
        for n_, x in enumerate(sel):
            I(f"v_readlane_b32 s98, v{vST}, {abs(x)}")
            if x < 0: I("s_not_b32 s98, s98")
            I("s_nop 1")
            I(f"v_writelane_b32 v73, s98, {n_}")
        I(f"""
        s_waitcnt lgkmcnt(0)
        s_load_dword s99, s[94:95], 0
        s_mov_b64 exec, 0x1ff
        global_atomic_umax v72, v73, s[96:97]
        s_waitcnt vmcnt(0)
        s_mov_b64 exec, 1
        v_mov_b32 v74, 1
        global_atomic_add v72, v74, s[96:97] offset:128
        s_waitcnt vmcnt(0) lgkmcnt(0)
        s_cmp_lg_u32 s2, 0
        s_cbranch_scc1 L_exit
        s_cmp_eq_u32 s99, 1013857686
        s_cbranch_scc1 L_exit
        s_cmp_eq_u32 s99, 976927781
        s_cbranch_scc1 L_exit
        s_mov_b32 s98, 0
        L_dd:
        global_load_dword v74, v72, s[96:97] offset:128 sc1
        s_add_u32 s98, s98, 1
        s_cmp_gt_u32 s98, 100000
        s_cbranch_scc1 L_exit
        s_waitcnt vmcnt(0)
        v_cmp_ne_u32 vcc, 0x100, v74
        s_cbranch_vccnz L_dd
        s_mov_b64 exec, 0x1ff
        global_load_dword v74, v72, s[96:97] sc1
        s_waitcnt vmcnt(0)
        v_readlane_b32 s98, v74, 8
        s_not_b32 s98, s98
        s_mov_b64 exec, {sum(1 << n_ for n_, x in enumerate(sel) if x < 0)}
        v_not_b32 v74, v74
        s_mov_b64 exec, 0xff
        v_subrev_u32 v74, s98, v74
        v_cvt_f32_u32 v74, v74
        v_mul_f32 v74, 1.0, v74
        v_cvt_pk_bf16_f32 v74, v74, v74
        v_lshlrev_b32 v75, 1, v{vLane}
        buffer_store_short v74, v75, {sr(sOUT,4)}, 0 offen
        s_waitcnt vmcnt(0)
        """)
L("L_exit")
I("s_endpgm")

if PRIO:
    for j in (0, 2):
        lv = [(i, x) for i, x in enumerate(PTH) if x % 2 == j // 2]
        if not lv and not stg_at(j): continue
        L(f"L_prio{j}")
        if stg_at(j):
            I(f"""
            v_mov_b32 v{vt+5}, 64
            ds_write_b32 v{vt+7}, v{vt+5} offset:{PROG}
            """)
        for n_, (i, x) in enumerate(lv):
            I(f"s_cmp_eq_u32 s{sK}, {(x + 1) // 2}")
            I(f"s_cbranch_scc0 L_prio{j}_{n_}")
            I(f"s_setprio {2 - i}")
            L(f"L_prio{j}_{n_}")
        I(f"s_branch L_prio{j}_ret")
for fx, s_ in fixups:
    r = slotreg[s_]
    I(f"""
    L_fx{fx}:
    v_min_u32 v142, {CAP + 23}, v{r+3}
    v_subrev_u32 v142, {CAP}, v142
    v_mov_b32 v143, {OVF}
    v_lshl_add_u32 v136, v142, 2, v143
    v_lshl_add_u32 v142, v142, 3, v143
    v_cndmask_b32 v141, v141, v136, vcc
    v_cndmask_b32 v{vTA[s_]}, v{vTA[s_]}, v142, vcc
    s_branch L_fr{fx}
    """)
I(f"""
L_w2ld:
s_cmp_gt_u32 s2, 16
s_cbranch_scc1 L_p_done
s_cmp_lt_u32 s2, 16
s_cbranch_scc1 L_opt_c
v_lshlrev_b32 v12, 1, v{vLane}
global_load_ushort v{vW2S}, v12, {sr(pB2,2)}
s_branch L_p_done
L_opt_c:
s_and_b32 s{t0}, s2, 3
s_lshl_b32 s{t0}, s{t0}, 10
s_lshr_b32 s{t3}, s2, 2
s_lshl_b32 s{t3}, s{t3}, 1
s_add_u32 s{t0}, s{t0}, s{t3}
v_bfe_u32 v12, v{vLane}, 4, 1
v_lshlrev_b32 v12, 13, v12
v_lshrrev_b32 v13, 5, v{vLane}
v_lshl_add_u32 v12, v13, 12, v12
v_and_b32 v13, 15, v{vLane}
v_lshl_add_u32 v12, v13, 3, v12
""")
for i_ in range(8):
    I(f"buffer_load_ushort v{vW2S+i_}, v12, {sr(sD,4)}, s{t0} offen offset:{128*i_}")
I("s_branch L_p_done")
L("L_slow")
I(f"""
s_setprio 0
s_mov_b32 s{sMode}, 1
s_mov_b32 s{sK0}, 0
s_waitcnt vmcnt(0) lgkmcnt(0)
s_barrier
v_mov_b32 v{vt+6}, 1
v_mov_b32 v{vMX}, 0
""")
small_init(64)
s_zero(64)
desc_consts()
for jj in range(3): I(poll_load(jj))
I("s_waitcnt vmcnt(0)")
I(f"""
s_cmp_lt_u32 s{sW}, 8
s_cselect_b32 s{t0}, -1, 0
v_and_b32 v{vDs+4}, s{t0}, v{vDs+4}
""")
for jj in range(3): decode(jj)
for jj in range(3):
    I(f"v_mov_b32 v{144+jj}, v{vRA+jj}")
    I(f"v_mov_b32 v{147+jj}, v{vCn+jj}")
I(f"""
s_mov_b32 s{t5}, {KMASK}
v_mov_b32 v150, {KCON}
v_mov_b32 v{vKA+1}, 0x3c00
v_max3_i32 v137, v147, v148, v149
v_max_i32 v137, 0, v137
v_mov_b32 v138, 0
s_waitcnt lgkmcnt(0)
s_barrier
ds_max_u32 v138, v137 offset:{MAXC}
s_waitcnt lgkmcnt(0)
s_barrier
ds_read_b32 v137, v138 offset:{MAXC}
s_waitcnt lgkmcnt(0)
v_readfirstlane_b32 s{sMaxc}, v137
L_round:
s_barrier
""")
area_init(64)
I(f"""
v_lshlrev_b32 v64, 2, v0
v_add_u32 v64, {CNTR}, v64
v_mov_b32 v65, 0
v_cmp_gt_u32 vcc, 128, v0
s_and_b64 exec, exec, vcc
ds_write_b32 v64, v65
s_mov_b64 exec, -1
""")
for jj in range(3):
    I(f"v_cmp_lt_i32 {sr(sM+2*jj,2)}, s{sK0}, v{147+jj}")
for jj in range(3):
    I(f"s_mov_b64 exec, {sr(sM+2*jj,2)}")
    I(f"buffer_load_dwordx3 {vr(48+4*jj,3)}, v{144+jj}, {sr(sWS,4)}, s{sGam} offen sc1")
I(f"""
s_mov_b64 exec, -1
s_waitcnt vmcnt(0) lgkmcnt(0)
s_barrier
""")
for jj in range(3):
    r = 48 + 4*jj
    I(f"""
    s_mov_b64 exec, {sr(sM+2*jj,2)}
    v_bfe_u32 v{60+jj}, v{r+2}, 10, 9
    v_and_or_b32 v{r+2}, v{r+2}, s{t5}, v150
    v_add_u32 v{72+jj}, {GBASE}, v{60+jj}
    ds_add_rtn_u32 v{r+3}, v{72+jj}, v{vt+6} offset:512
    ds_add_u32 v{60+jj}, v{vt+6} offset:{CNT}
    """)
I(f"""
s_mov_b64 exec, -1
s_waitcnt lgkmcnt(0)
s_barrier
v_lshlrev_b32 v64, 3, v{vLane}
v_add_u32 v64, {GBASE}, v64
ds_read_b64 v[66:67], v64 offset:512
s_waitcnt lgkmcnt(0)
v_add_u32 v66, 7, v66
v_add_u32 v67, 7, v67
v_lshrrev_b32 v66, 3, v66
v_lshrrev_b32 v67, 3, v67
v_add_u32 v68, v66, v67
v_mov_b32 v69, v68
""")
dpp_scan(69)
I(f"""
v_readlane_b32 s{sG}, v69, 63
v_sub_u32 v70, v69, v68
v_add_u32 v71, v70, v66
ds_write_b64 v64, v[70:71]
s_add_u32 s{sNT}, s{sG}, 3
s_lshr_b32 s{sNT}, s{sNT}, 2
s_waitcnt lgkmcnt(0)
""")
for jj in range(3):
    r = 48 + 4*jj
    I(f"""
    s_mov_b64 exec, {sr(sM+2*jj,2)}
    ds_read_b32 v64, v{72+jj}
    ds_read_b32 v71, v{72+jj} offset:512
    v_lshrrev_b32 v65, 3, v{r+3}
    v_and_b32 v66, 7, v{r+3}
    v_lshrrev_b32 v67, 2, v{60+jj}
    s_waitcnt lgkmcnt(0)
    v_add_u32 v64, v64, v65
    v_lshlrev_b32 v65, 3, v65
    v_sub_u32 v71, v71, v65
    v_min_u32 v71, 8, v71
    v_and_b32 v65, 3, v64
    v_lshlrev_b32 v68, 4, v65
    v_sub_u32 v71, v68, v71
    v_lshlrev_b32 v71, 3, v71
    v_add_u32 v71, {LUT + 64}, v71
    v_mul_u32_u24 v68, {SROW}, v67
    v_mul_u32_u24 v69, {QROW}, v67
    v_lshl_or_b32 v68, v69, 16, v68
    v_lshrrev_b32 v69, 2, v64
    v_lshlrev_b32 v69, 6, v69
    v_lshl_add_u32 v69, v65, 2, v69
    v_add_u32 v69, {GT}, v69
    ds_write2_b32 v69, v71, v68 offset0:8 offset1:12
    v_mul_u32_u24 v65, 9363, v64
    v_lshrrev_b32 v65, 16, v65
    v_mul_u32_u24 v67, 7, v65
    v_sub_u32 v64, v64, v67
    v_mul_u32_u24 v65, {NSZ}, v65
    v_add_u32 v65, {AREA}, v65
    v_lshl_add_u32 v67, v64, 5, v65
    v_lshl_add_u32 v70, v64, 6, v65
    v_add_u32 v70, {EOFF}, v70
    ds_write2_b32 v69, v67, v70 offset0:0 offset1:4
    v_lshl_add_u32 v75, v66, 2, v67
    v_lshl_add_u32 v76, v66, 3, v70
    ds_write_b32 v75, v{r+2}
    ds_write_b64 v76, {P(r)}
    s_waitcnt lgkmcnt(0)
    """)
I(f"""
s_mov_b64 exec, -1
s_barrier
s_mov_b32 s{sK}, s{sW}
L_stile:
s_cmp_ge_u32 s{sK}, s{sNT}
s_cbranch_scc1 L_stile_done
s_lshl_b32 s{t0}, s{sK}, 6
s_add_u32 s{t0}, s{t0}, {GT}
""")
ptr_consts(f"s{t0}")
I(f"""
ds_read2_b32 {P(vAG)}, v{vPG} offset0:4 offset1:0
ds_read_u16 v{vGQ}, v{vPR}
ds_read_b64 {P(vGS)}, v{vPH} offset:48
s_waitcnt lgkmcnt(0)
{AUPD}
ds_read_b32 v{vKA}, v{vAG+1}
ds_read_b64 {P(vA5)}, v{vAG}
s_waitcnt lgkmcnt(0)
{IXM}
s_nop 15
""")
for l in gload(0) + gload(1) + SAUPD + [QUPD]: I(l)
I("s_waitcnt vmcnt(0)")
for u in range(2):
    I(f"ds_read_b64_tr_b16 {P(vB5[0])}, v{vQ} offset:{128*u}")
    I(f"ds_read_b64_tr_b16 {P(vB5[1])}, v{vQ} offset:{128*u+64}")
    for l in shifts(u): I(l)
    I("s_waitcnt lgkmcnt(0)")
    I("s_nop 1")
    I(mf8(vTL, vA5, vB5[0], vr(vTL,16)))
    I(mf8(vTH, vA5, vB5[1], vr(vLb[u],16)))
    I("s_nop 15")
    for hi, T in enumerate((vTL, vTH)):
        for i in range(16): I(f"v_exp_f32 v{vE+i}, v{T+i}")
        for i in range(16): I(f"v_add_f32 v{vE+i}, 1.0, v{vE+i}")
        for i in range(16): I(f"v_rcp_f32 v{vE+i}, v{vE+i}")
        I(f"v_pk_mul_f32 {P(vN)}, {P(T)}, {P(vE)}")
        for i in range(1, 8): I(f"v_pk_fma_f32 {P(vN)}, {P(T+2*i)}, {P(vE+2*i)}, {P(vN)}")
        I(f"ds_add_f32 v{vSA}, v{vN} offset:{128*(2*u+hi)}")
        I(f"ds_add_f32 v{vSA+1}, v{vN+1} offset:{128*(2*u+hi)}")
        I("s_waitcnt lgkmcnt(0)")
I(f"""
s_add_u32 s{sK}, s{sK}, {NW}
s_branch L_stile
L_stile_done:
s_add_u32 s{sK0}, s{sK0}, 8
s_add_u32 s{sGam}, s{sGam}, 96
s_cmp_lt_u32 s{sK0}, s{sMaxc}
s_cbranch_scc1 L_round
s_barrier
s_branch L_epi
""")

A('.section .rodata,"a"')
A(".p2align 6")
A(f".amdhsa_kernel {KNAME}")
A(f"  .amdhsa_next_free_vgpr {NVGPR}")
A("  .amdhsa_next_free_sgpr 102")
A(f"  .amdhsa_accum_offset {NVGPR}")
A("  .amdhsa_group_segment_fixed_size 0")
A("  .amdhsa_kernarg_size 88")
A("  .amdhsa_user_sgpr_count 2")
A("  .amdhsa_user_sgpr_kernarg_segment_ptr 1")
A("  .amdhsa_system_sgpr_workgroup_id_x 1")
A("  .amdhsa_float_denorm_mode_32 3")
A(".end_amdhsa_kernel")
open(sys.argv[1], "w").write("\n".join(out) + "\n")
print("LDS", LDS, "SB", SB, "QB", QB, "lines", len(out), file=sys.stderr)
```

```python
import sys, struct

opts = dict(a.split("=") for a in sys.argv[2:])
DEBUG = int(opts.get("debug", 0))
PRIO = int(opts.get("prio", 1))
FORCE_SLOW = int(opts.get("slow", 0))
NT = " " + opts.get("nt", "nt").replace("+", " ").replace("none", "")
WSOFF = int(opts.get("wsoff", "0"), 0)
PREF = int(opts.get("pref", 0))
STG = [int(x) for x in opts.get("stg", "0,0").split(",")]
STAG = max(STG) > 0
def stg_at(j): return any(x > 0 and x % 2 == j // 2 for x in STG)
SLEEP = int(opts.get("sleep", 2))
PTH = [int(x) for x in opts.get("pth", "7,3,1").split(",")]

PST_ = opts.get("pst", "sc1").replace("+", " "); RST_ = opts.get("rst", "sc1").replace("+", " ")
ICP = int(opts.get('icp', 2)); TAGS = int(opts.get('tags', 1))
PAIR = int(opts.get('pair', 1))
PUB_ = opts.get("pub", "sc0+sc1").replace("+", " ")
AI4 = int(opts.get('ai4', 0))
KNAME = "standalone__edge_featured_mpnn_mpnn__graph_kernel"
N = 25000; E = 800000
BN = 98; NW = 12; NTH = 768
QE = 3072; XE = 53; CH = QE + XE
GRAN = 0x10000
W2I = 0x98000
PF = 0xA0000
MAGIC = 0x4B010000
REC = 0x100000; RSTRIDE = 37632
PT = 0xB00000
STAMP = 0x1200000
WS_SIZE = 0x1300000
LOG2E = 1.4426950408889634
LN2 = 0.6931471805599453
def f2u(x): return struct.unpack("<I", struct.pack("<f", x))[0]

CNT = 0; CARRY = 512; PROG = 1024; FLAG = 1040; MAXC = 1044; LUT = 1088
GT = 1600; GSZ = 64; TMAX = 10; NGT = NW * TMAX + 2
CNT1 = GT
CAP = 56; NSZ = CAP * 12; EOFF = CAP * 4
AREA = (GT + NGT * GSZ + 127) // 128 * 128
SB = (AREA + 99 * NSZ + 255) // 256 * 256
SROW = 528; NSROW = BN + NW
QB = SB + NSROW * SROW; QROW = 264
GBASE = QB + 102 * QROW; CNTR = GBASE + 512
LDS = CNTR + 512
assert LDS <= 163840 and QB % 8 == 0 and GBASE % 8 == 0 and GT % 16 == 0
RST = AREA; XRAW = AREA + 37632; W1RAW = SB; PST = SB + 32768
assert XRAW + 16384 <= SB and PST + BN * 256 <= QB
ZROW = BN
KMASK = 0x03F803FC; KCON = 0x5C005C00
PADKEY = KCON | (126 << 19)
OVF = AREA + 98 * NSZ
SCANW, EXTRAW = 8, 9

out = []
def A(s=""): out.append(s)
def I(s):
    for l in s.strip("\n").split("\n"):
        l = l.strip()
        if not l: continue
        out.append(l if l.endswith(":") else "    " + l)
def L(name): out.append(name + ":")
def vr(a, n): return f"v[{a}:{a+n-1}]"
def sr(a, n): return f"s[{a}:{a+n-1}]"
def P(r): return f"v[{r}:{r+1}]"

sWS, sP, sOUT, sA, sBq, sC = 4, 8, 12, 16, 20, 24
sD = 28
pX, pE, pSRC, pDST, pW1, pB1, pW2, pB2, pOUT, pWS = 32, 34, 36, 38, 40, 42, 44, 46, 48, 50
sM = 32
sB, sW, sTw, sG, sT, sRem, sGam, sK, sGmax, sBad, sTag, sTag8, sReg, sMode, sK0, sMaxc = range(62, 78)
sONE = 78; sADV = 80; sSC = 82; sE0 = 84; sE1 = 86
t0, t1, t2, t3, t4, t5 = 88, 89, 90, 91, 92, 93
sNT = 3
sPM, sNV = 16, 22; sPV = [28, 30, 94]
vLane = 1
vPH, vPG, vPR = 2, 3, 4
vSC = 8; vQC = 9; vQ = 10; vGQ = 11
vSA = 12; vAG = 14; vA5 = 16; vB5 = [18, 20]; vD = 22; vN = 24; vSO = 26; vMX = 28; vST = 29
vAC = 6; vBK = 30; vGS = 36; vKA = 38
vW2S = 32
vt = 40
vLb = [48, 64]; vTL = 80; vTH = 96; vE = 112; vIX = 128
NVGPR = 168

nstamp = [0]
def stamp():
    if not DEBUG: return
    i = nstamp[0]; nstamp[0] += 1
    I(f"{'s_memtime' if DEBUG == 2 else 's_memrealtime'} s[100:101]")
    I("s_waitcnt lgkmcnt(0)")
    I(f"v_writelane_b32 v{vST}, s100, {i}")

def srd(d, p, nrec, stride=0, add=None):
    if add is None:
        I(f"s_mov_b32 s{d}, s{p}")
        I(f"s_and_b32 s{d+1}, s{p+1}, 0xffff")
    else:
        I(f"s_add_u32 s{d}, s{p}, {add}")
        I(f"s_addc_u32 s{d+1}, s{p+1}, 0")
        I(f"s_and_b32 s{d+1}, s{d+1}, 0xffff")
    I(f"s_mov_b32 s{d+2}, {nrec}")
    I(f"s_mov_b32 s{d+3}, 0x00020000")

def dpp_scan(v, vmax=None):
    steps = ["row_shr:1 row_mask:0xf bank_mask:0xf bound_ctrl:0", "row_shr:2 row_mask:0xf bank_mask:0xf bound_ctrl:0",
             "row_shr:4 row_mask:0xf bank_mask:0xf bound_ctrl:0", "row_shr:8 row_mask:0xf bank_mask:0xf bound_ctrl:0",
             "row_bcast:15 row_mask:0xa bank_mask:0xf", "row_bcast:31 row_mask:0xc bank_mask:0xf"]
    I("s_nop 1")
    for s in steps:
        I(f"v_add_u32_dpp v{v}, v{v}, v{v} {s}")
        if vmax is not None:
            I(f"v_max_u32_dpp v{vmax}, v{vmax}, v{vmax} {s}")
            I("s_nop 0")
        else:
            I("s_nop 1")
def lanemask(ls):
    m = 0
    for l in ls: m |= 1 << l
    return m
def setexec(m):
    I(f"s_mov_b32 exec_lo, {m & 0xffffffff}")
    I(f"s_mov_b32 exec_hi, {m >> 32}")
def mf16(D, a, b, c): return f"v_mfma_f32_32x32x16_bf16 {vr(D,16)}, {vr(a,4)}, {vr(b,4)}, {c}"
def mf8(D, a, b, c): return f"v_mfma_f32_32x32x8_bf16 {vr(D,16)}, {vr(a,2)}, {vr(b,2)}, {c}"
SDWA0 = "dst_sel:DWORD dst_unused:UNUSED_PAD src0_sel:WORD_0 src1_sel:DWORD"
SDWAB = "dst_sel:DWORD dst_unused:UNUSED_PAD src0_sel:DWORD src1_sel:BYTE_0"

def area_init(z):
    I(f"""
    s_mov_b32 s{t0}, 1561
    v_mul_u32_u24 v{z+5}, s{t0}, v0
    v_lshrrev_b32 v{z+5}, 16, v{z+5}
    v_mul_u32_u24 v{z+5}, 42, v{z+5}
    v_sub_u32 v{z+5}, v0, v{z+5}
    v_cmp_gt_u32 vcc, 14, v{z+5}
    v_mov_b32 v{z+6}, {PADKEY}
    v_lshlrev_b32 v{z+7}, 4, v0
    v_cndmask_b32 v{z}, 0, v{z+6}, vcc
    v_add_u32 v{z+4}, {AREA}, v{z+7}
    v_mov_b32 v{z+1}, v{z}
    v_mov_b32 v{z+2}, v{z}
    v_mov_b32 v{z+3}, v{z}
    v_cmp_gt_u32 vcc, 756, v0
    s_and_b64 exec, exec, vcc
    """)
    for t in range(6):
        if t == 5:
            I(f"v_cmp_gt_u32 vcc, {99*42 - 5*756}, v0")
            I("s_and_b64 exec, exec, vcc")
        I(f"ds_write_b128 v{z+4}, {vr(z,4)} offset:{t*756*16}")
    I("s_mov_b64 exec, -1")
    vals = [OVF + 6*32, OVF + EOFF + 6*64, LUT + 64, (ZROW*SROW) | ((98*QROW) << 16)]
    I(f"v_mov_b32 v{z+8}, {vals[0]}")
    for q in range(1, 4):
        setexec(lanemask([l for l in range(64) if l & 3 == q]))
        I(f"v_mov_b32 v{z+8}, {vals[q]}")
    I(f"""
    s_mov_b64 exec, -1
    v_cmp_gt_u32 vcc, {NGT*4}, v0
    v_mov_b32 v{z+9}, v{z+8}
    v_mov_b32 v{z+10}, v{z+8}
    v_mov_b32 v{z+11}, v{z+8}
    s_and_b64 exec, exec, vcc
    ds_write_b128 v{z+7}, {vr(z+8,4)} offset:{GT}
    s_mov_b64 exec, -1
    """)
def area_init4(z, lbl):
    I(f"""
    s_cmp_lt_u32 s{sW}, 8
    s_cbranch_scc1 {lbl}
    v_subrev_u32 v{z+7}, 512, v0
    s_mov_b32 s{t0}, 1561
    v_mul_u32_u24 v{z+5}, s{t0}, v{z+7}
    v_lshrrev_b32 v{z+5}, 16, v{z+5}
    v_mul_u32_u24 v{z+5}, 42, v{z+5}
    v_sub_u32 v{z+5}, v{z+7}, v{z+5}
    v_cmp_gt_u32 vcc, 14, v{z+5}
    v_mov_b32 v{z+6}, {PADKEY}
    v_lshlrev_b32 v{z+4}, 4, v{z+7}
    v_cndmask_b32 v{z}, 0, v{z+6}, vcc
    v_add_u32 v{z+4}, {AREA}, v{z+4}
    v_mov_b32 v{z+1}, v{z}
    v_mov_b32 v{z+2}, v{z}
    v_mov_b32 v{z+3}, v{z}
    v_cmp_gt_u32 vcc, 252, v{z+7}
    s_and_b64 exec, exec, vcc
    """)
    for t in range(17):
        if t == 16:
            I(f"v_cmp_gt_u32 vcc, {99*42 - 16*252}, v{z+7}")
            I("s_and_b64 exec, exec, vcc")
        I(f"ds_write_b128 v{z+4}, {vr(z,4)} offset:{t*252*16}")
    I("s_mov_b64 exec, -1")
    vals = [OVF + 6*32, OVF + EOFF + 6*64, LUT + 64, (ZROW*SROW) | ((98*QROW) << 16)]
    I(f"v_mov_b32 v{z+8}, {vals[0]}")
    for q in range(1, 4):
        setexec(lanemask([l for l in range(64) if l & 3 == q]))
        I(f"v_mov_b32 v{z+8}, {vals[q]}")
    I(f"""
    s_mov_b64 exec, -1
    v_lshlrev_b32 v{z+5}, 4, v{z+7}
    v_cmp_gt_u32 vcc, {NGT*4 - 256}, v{z+7}
    v_mov_b32 v{z+9}, v{z+8}
    v_mov_b32 v{z+10}, v{z+8}
    v_mov_b32 v{z+11}, v{z+8}
    ds_write_b128 v{z+5}, {vr(z+8,4)} offset:{GT}
    s_and_b64 exec, exec, vcc
    ds_write_b128 v{z+5}, {vr(z+8,4)} offset:{GT + 4096}
    s_mov_b64 exec, -1
    {lbl}:
    """)
def s_zero(z):
    nch = NSROW * SROW // 16
    for i in range(4): I(f"v_mov_b32 v{z+i}, 0")
    I(f"v_lshlrev_b32 v{z+4}, 4, v0")
    I(f"v_add_u32 v{z+4}, {SB}, v{z+4}")
    n = (nch + NTH - 1) // NTH
    for t in range(n):
        if (t + 1) * NTH > nch:
            I(f"v_cmp_gt_u32 vcc, {nch - t*NTH}, v0")
            I(f"s_and_b64 exec, exec, vcc")
        I(f"ds_write_b128 v{z+4}, {vr(z,4)} offset:{t*NTH*16}")
    I("s_mov_b64 exec, -1")
def small_init(z):
    I(f"""
    v_lshlrev_b32 v{z}, 2, v0
    v_mov_b32 v{z+1}, 0
    v_mov_b32 v{z+2}, {ZROW*SROW}
    v_lshrrev_b32 v{z+3}, 7, v0
    v_cmp_eq_u32 vcc, 1, v{z+3}
    s_nop 1
    v_cndmask_b32 v{z+1}, v{z+1}, v{z+2}, vcc
    v_cmp_gt_u32 vcc, 272, v0
    s_and_b64 exec, exec, vcc
    ds_write_b32 v{z}, v{z+1}
    s_mov_b64 exec, -1
    """)

hdr = open("standalone__edge_featured_mpnn_mpnn__graph.s.ref").read().split("\n")
for l in hdr:
    if "@launch" in l: continue
    if not l.startswith(";"): break
    A(l)
A(f"; @launch grid=(256,1,1) block=({NTH},1,1) lds={LDS}")
A('.amdgcn_target "amdgcn-amd-amdhsa--gfx950"')
A(".text")
A(f".globl {KNAME}")
A(".p2align 8")
A(f".type {KNAME},@function")
L(KNAME)
I(f"""
s_cmp_ge_u32 s2, 256
s_cbranch_scc1 L_exit
{"s_memrealtime s[96:97]" if DEBUG else ""}
s_load_dwordx16 s[32:47], s[0:1], 0
s_load_dwordx2 {sr(pOUT,2)}, s[0:1], 64
s_load_dwordx2 {sr(pWS,2)}, s[0:1], 80
v_lshrrev_b32 v{vt}, 6, v0
v_and_b32 v{vLane}, 63, v0
v_readfirstlane_b32 s{sW}, v{vt}
""")
if ICP in (2, 3, 4):
    I(f"""
    s_getpc_b64 s[94:95]
    s_lshr_b32 s98, s2, 3
    s_mul_i32 s98, s98, {NW}
    s_add_u32 s98, s98, s{sW}
    s_and_b32 s98, s98, {127 if ICP == 3 else 255}
    s_lshl_b32 s98, s98, {7 if ICP == 3 else 6}
    """)
if ICP == 3:
    I(f"""
    v_mov_b32 v27, s98
    s_mov_b64 exec, 1
    global_load_dword v27, v27, s[94:95]
    s_mov_b64 exec, -1
    """)
if ICP == 4:
    I(f"""
    s_cmp_gt_u32 s98, 64
    s_cbranch_scc1 L_noic
    s_lshl_b32 s99, s98, 7
    v_lshl_add_u32 v27, v{vLane}, 7, s99
    global_load_dword v27, v27, s[94:95]
    L_noic:
    """)
I(f"""
s_mul_i32 s{t0}, s2, {QE*4}
{f"s_lshl_b32 s{t1}, s{sW}, 10" if PAIR else ""}
{f"s_add_u32 s{t0}, s{t0}, s{t1}" if PAIR else ""}
{f"v_lshl_add_u32 v{vt+1}, v{vLane}, 3, s{t0}" if PAIR else f"v_lshl_add_u32 v{vt+1}, v0, 4, s{t0}"}
v_lshlrev_b32 v{vt+2}, 1, v{vt+1}
s_and_b32 s{sB}, s2, 7
s_lshl_b32 s{sB}, s{sB}, 5
s_lshr_b32 s{t1}, s2, 3
s_add_u32 s{sB}, s{sB}, s{t1}
{f"s_mov_b32 s{sB}, s2" if int(opts.get("ident", 0)) else ""}
v_lshlrev_b32 v75, 2, v0
v_mov_b32 v76, 0
ds_write_b32 v75, v76 offset:{CNT1}
v_lshrrev_b32 v68, 3, v{vLane}
v_lshrrev_b32 v69, 4, v{vLane}
v_and_b32 v70, 7, v{vLane}
v_xor_b32 v70, v70, v69
v_lshlrev_b32 v70, 4, v70
v_lshl_add_u32 v70, v68, 7, v70
s_and_b32 s{t0}, s{sW}, 1
s_lshl_b32 s{t0}, s{t0}, 6
v_xor_b32 v71, s{t0}, v70
v_and_b32 v72, 15, v{vLane}
v_lshlrev_b32 v73, 2, v69
v_xor_b32 v72, v72, v73
v_lshlrev_b32 v72, 4, v72
v_lshl_add_u32 v72, v69, 8, v72
v_lshlrev_b32 v74, 1, v{vLane}
v_and_b32 v75, 32, v{vLane}
v_lshl_add_u32 v74, v75, 4, v74
v_lshlrev_b32 v{vt+5}, 4, v{vLane}
v_lshlrev_b32 v{vt}, 4, v0
s_mul_i32 s{t1}, s{sB}, {BN*128}
s_lshl_b32 s{t2}, s{sW}, 10
s_mov_b32 s{sA+2}, {N*128}
s_mov_b32 s{sA+3}, 0x00020000
s_mov_b32 s{sBq+2}, {132*256}
s_mov_b32 s{sBq+3}, 0x00020000
s_mov_b32 s{sC+2}, 256
s_mov_b32 s{sC+3}, 0x00020000
s_mov_b32 s{sD+2}, {128*128}
s_mov_b32 s{sD+3}, 0x00020000
s_waitcnt lgkmcnt(0)
s_add_u32 s{pWS}, s{pWS}, {WSOFF}
s_addc_u32 s{pWS+1}, s{pWS+1}, 0
{"s_load_dword s3, s[94:95], s98" if ICP in (2, 4) else ""}
{f"s_load_dword s{sTag}, {sr(pWS,2)}, 0" if TAGS else ""}
s_mov_b32 s{sA}, s{pX}
s_and_b32 s{sA+1}, s{pX+1}, 0xffff
s_mov_b32 s{sBq}, s{pW1}
s_and_b32 s{sBq+1}, s{pW1+1}, 0xffff
s_mov_b32 s{sC}, s{pB1}
s_and_b32 s{sC+1}, s{pB1+1}, 0xffff
s_mov_b32 s{sD}, s{pW2}
s_and_b32 s{sD+1}, s{pW2+1}, 0xffff
s_cmp_ge_u32 s{sW}, 8
s_cbranch_scc1 L_opt_hi
s_add_u32 s{t3}, s{t2}, {24*1024}
s_add_u32 m0, s{t3}, {W1RAW}
s_cmp_lg_u32 s{sW}, 0
buffer_load_dwordx4 v72, {sr(sBq,4)}, s{t3} offen lds
s_cbranch_scc1 L_opt_end
s_mov_b32 m0, {XRAW + 12*1024}
s_add_u32 s{t3}, s{t1}, {12*1024}
buffer_load_dwordx4 v70, {sr(sA,4)}, s{t3} offen{NT} lds
s_branch L_opt_end
L_opt_hi:
s_cmp_lg_u32 s{sW}, {EXTRAW}
s_cbranch_scc1 L_opt_a
s_mul_i32 s{t0}, s2, {XE}
s_add_u32 s{t0}, s{t0}, {256*QE}
v_add_lshl_u32 v{vt+3}, v{vLane}, s{t0}, 2
v_lshlrev_b32 v{vt+4}, 1, v{vt+3}
""")
XM = (1 << XE) - 1
setexec(XM)
I(f"""
global_load_dword v64, v{vt+3}, {sr(pDST,2)}{NT}
global_load_dword v65, v{vt+3}, {sr(pSRC,2)}{NT}
global_load_dwordx2 v[66:67], v{vt+4}, {sr(pE,2)}{NT}
s_mov_b64 exec, -1
s_branch L_opt_end
L_opt_a:
s_cmp_lg_u32 s{sW}, 10
s_cbranch_scc1 L_opt_end
s_mov_b32 s{t0}, {128*256}
buffer_load_dwordx4 v[12:15], v{vt+5}, {sr(sBq,4)}, s{t0} offen
""")
ORD = opts.get("ord", "A")
dma = f"""
s_add_u32 m0, s{t2}, {XRAW}
s_add_u32 s{t3}, s{t1}, s{t2}
buffer_load_dwordx4 v71, {sr(sA,4)}, s{t3} offen{NT} lds
s_add_u32 m0, s{t2}, {W1RAW}
s_add_u32 s{t3}, s{t2}, {12*1024}
buffer_load_dwordx4 v72, {sr(sBq,4)}, s{t2} offen lds
s_add_u32 m0, s{t3}, {W1RAW}
s_nop 0
buffer_load_dwordx4 v72, {sr(sBq,4)}, s{t3} offen lds
"""
edg = f"""
global_load_dwordx4 v[52:55], v{vt+1}, {sr(pSRC,2)}{NT}
global_load_dwordx4 v[56:59], v{vt+2}, {sr(pE,2)}{NT}
global_load_dwordx4 v[60:63], v{vt+2}, {sr(pE,2)} offset:16{NT}
"""
L("L_opt_end")
if PAIR:
    I(f"""
    global_load_dwordx2 v[48:49], v{vt+1}, {sr(pDST,2)}{NT}
    global_load_dwordx2 v[50:51], v{vt+1}, {sr(pDST,2)} offset:512{NT}
    """)
    edg = f"""
    global_load_dwordx2 v[52:53], v{vt+1}, {sr(pSRC,2)}{NT}
    global_load_dwordx2 v[54:55], v{vt+1}, {sr(pSRC,2)} offset:512{NT}
    global_load_dwordx4 v[56:59], v{vt+2}, {sr(pE,2)}{NT}
    global_load_dwordx4 v[60:63], v{vt+2}, {sr(pE,2)} offset:1024{NT}
    """
else:
    I(f"global_load_dwordx4 v[48:51], v{vt+1}, {sr(pDST,2)}{NT}")
if DEBUG:
    I(f"v_mov_b32 v{vST}, 0")
    if DEBUG == 1: I(f"v_writelane_b32 v{vST}, s96, 21")
    nstamp[0] = 1
if ORD == "A": I(dma); I("s_barrier"); I(edg)
elif ORD == "B": I("s_barrier"); I(dma); I(edg)
elif ORD == "C": I("s_barrier"); I(edg); I(dma)
elif ORD == "D": I("s_barrier"); I(dma); I("s_barrier"); I(edg)
I(f"""
s_and_b32 s{t0}, s{sW}, 1
s_lshl_b32 s{t0}, s{t0}, 7
buffer_load_ushort v160, v74, {sr(sC,4)}, s{t0} offen
buffer_load_ushort v162, v74, {sr(sC,4)}, s{t0} offen offset:64
""")
X = (0 if TAGS else 1) + (ICP == 1)
I("s_mov_b64 exec, 1")
if not TAGS:
    I("v_mov_b32 v26, 0")
    I(f"global_load_dword v26, v26, {sr(pWS,2)}")
if ICP == 1:
    I(f"""
    s_getpc_b64 s[94:95]
    s_lshr_b32 s{t0}, s2, 3
    s_mul_i32 s{t0}, s{t0}, {NW}
    s_add_u32 s{t0}, s{t0}, s{sW}
    s_and_b32 s{t0}, s{t0}, 127
    s_lshl_b32 s{t0}, s{t0}, 7
    v_mov_b32 v27, s{t0}
    global_load_dword v27, v27, s[94:95]
    """)
I("s_mov_b64 exec, -1")
assert CNT1 + NTH * 4 <= AREA
small_init(76)
srd(sWS, pWS, WS_SIZE)
I(f"""
s_sub_u32 s{sP}, s{pWS}, {MAGIC - PT}
s_subb_u32 s{sP+1}, s{pWS+1}, 0
s_and_b32 s{sP+1}, s{sP+1}, 0xffff
s_mov_b32 s{sP+2}, {MAGIC + N*256}
s_mov_b32 s{sP+3}, 0x00020000
""")
I(f"""
s_mul_i32 s{t0}, s{sB}, {BN}
s_sub_u32 s{t1}, {N}, s{t0}
s_min_u32 s{t1}, s{t1}, {BN}
s_lshl_b32 s{t2}, s{t0}, 7
s_add_u32 s{sOUT}, s{pOUT}, s{t2}
s_addc_u32 s{sOUT+1}, s{pOUT+1}, 0
s_and_b32 s{sOUT+1}, s{sOUT+1}, 0xffff
s_lshl_b32 s{sOUT+2}, s{t1}, 7
s_mov_b32 s{sOUT+3}, 0x00020000
s_mov_b32 s{sONE}, 1.0
s_mov_b32 s{sONE+1}, 1.0
s_mov_b32 s{sADV}, {GSZ}
s_mov_b32 s{sADV+1}, {GSZ}
s_mov_b32 s{sSC}, {f2u(-LOG2E)}
s_mov_b32 s{sSC+1}, {f2u(-LOG2E)}
s_mov_b32 s{sMode}, 0
s_mul_i32 s{sReg}, s{sW}, {TMAX*GSZ}
s_add_u32 s{sReg}, s{sReg}, {GT}
s_mov_b32 s{t4}, 42800
s_mov_b32 s{t5}, {(-BN) & 0xffffffff}
v_mov_b32 v{vt+6}, 1
v_mov_b32 v161, 0
v_mov_b32 v163, 0
v_mov_b32 v164, 0x3f80
v_mov_b32 v165, 0
""")
I(f"""
v_lshrrev_b32 v68, 5, v{vLane}
v_bfe_u32 v69, v{vLane}, 2, 2
v_lshl_add_u32 v70, v68, 5, v69
s_mov_b32 s{t0}, {W1RAW}
v_lshl_add_u32 v70, v70, 8, s{t0}
v_bfe_u32 v71, v{vLane}, 4, 1
v_lshl_add_u32 v70, v71, 5, v70
v_and_b32 v71, 3, v{vLane}
v_lshl_add_u32 v70, v71, 3, v70
s_and_b32 s{t0}, s{sW}, 1
s_lshl_b32 s{t0}, s{t0}, 1
v_xor_b32 v71, s{t0}, v69
v_lshl_add_u32 v166, v71, 6, v70
v_xor_b32 v71, 1, v71
v_lshl_add_u32 v167, v71, 6, v70
s_lshr_b32 s{t0}, s{sW}, 1
s_lshl_b32 s{t0}, s{t0}, 5
v_and_b32 v78, 31, v{vLane}
v_add_u32 v78, s{t0}, v78
v_bfe_u32 v71, v{vLane}, 1, 3
v_lshlrev_b32 v72, 2, v68
v_xor_b32 v71, v71, v72
v_lshlrev_b32 v71, 4, v71
v_lshl_add_u32 v79, v78, 7, v71
v_add_u32 v79, {XRAW}, v79
s_waitcnt vmcnt({8+X+PAIR})
""")
stamp()
def bucket_rank(d, a, r):
    I(f"v_mul_u32_u24 v{a}, s{t4}, v{d}")
    I(f"v_lshrrev_b32 v{a}, 22, v{a}")
    I(f"v_mad_i32_i24 v{d}, v{a}, s{t5}, v{d}")
    I(f"v_lshlrev_b32 v{a}, 2, v{a}")
    I(f"ds_add_rtn_u32 v{r}, v{a}, v{vt+6} offset:{CNT1}")
for i in range(4): bucket_rank(48+i, 68+i, 73+i)
I(f"s_cmp_lg_u32 s{sW}, {EXTRAW}")
I("s_cbranch_scc1 L_noex1")
setexec(XM)
bucket_rank(64, 72, 77)
I("s_mov_b64 exec, -1")
L("L_noex1")
I(f"""
s_waitcnt vmcnt({X + (2 if ORD == 'C' else 5 + PAIR)}) lgkmcnt(0)
s_barrier
""")
stamp()
I(f"""
s_cmp_lt_u32 s{sW}, 8
s_cbranch_scc1 L_ptask
s_cmp_lg_u32 s{sW}, {SCANW}
s_cbranch_scc1 L_noscan
ds_read_b128 v[80:83], v{vt+5} offset:{CNT1}
s_waitcnt lgkmcnt(0)
v_add_u32 v84, v80, v81
v_add_u32 v85, v84, v82
v_add_u32 v86, v85, v83
v_mov_b32 v87, v86
""")
dpp_scan(87)
I(f"""
v_sub_u32 v88, v87, v86
v_add_u32 v89, v88, v80
v_add_u32 v90, v88, v84
v_add_u32 v91, v88, v85
v_mov_b32 v96, {RST}
v_mad_u32_u24 v92, v88, 12, v96
v_mad_u32_u24 v93, v89, 12, v96
v_mad_u32_u24 v94, v90, 12, v96
v_mad_u32_u24 v95, v91, 12, v96
ds_write_b128 v{vt+5}, v[92:95] offset:{CNT1}
v_lshl_or_b32 v16, v80, 12, v88
v_lshl_or_b32 v18, v81, 12, v89
v_lshl_or_b32 v20, v82, 12, v90
v_lshl_or_b32 v22, v83, 12, v91
s_branch L_p_done
L_noscan:
""")
if DEBUG and int(opts.get("arr", 0)):
    I("s_waitcnt vmcnt(0)")
    I("s_memrealtime s[100:101]")
    I("s_waitcnt lgkmcnt(0)")
    I(f"v_writelane_b32 v{vST}, s100, 20")
if int(opts.get("prew", 1)):
    I(f"""
    s_cmp_lg_u32 s{sW}, 9
    s_cbranch_scc1 L_nopw
    s_lshl_b32 s{t0}, s2, 11
    s_add_u32 s{t0}, s{t0}, {GRAN}
    v_mov_b32 v16, 0
    v_mov_b32 v17, 0
    v_mov_b32 v18, 0
    v_mov_b32 v19, 0
    buffer_store_dwordx4 v[16:19], v{vt+5}, {sr(sWS,4)}, s{t0} offen sc1
    buffer_store_dwordx4 v[16:19], v{vt+5}, {sr(sWS,4)}, s{t0} offen offset:1024 sc1
    L_nopw:
    """)
I(f"""
s_cmp_eq_u32 s{sW}, 11
s_cbranch_scc1 L_w2ld
s_cmp_lg_u32 s{sW}, 10
s_cbranch_scc1 L_p_done
""")
for i in range(4):
    I(f"v_lshlrev_b32 v{80+2*i}, 16, v{12+i}")
    I(f"v_and_b32 v{81+2*i}, 0xffff0000, v{12+i}")
for i in range(4):
    I(f"v_pk_mul_f32 {P(80+2*i)}, {P(80+2*i)}, {sr(sSC,2)}")
for i in range(4):
    I(f"v_cvt_pk_bf16_f32 v{12+i}, v{80+2*i}, v{81+2*i}")
I(f"""
v_lshrrev_b32 v88, 4, v{vLane}
v_mul_u32_u24 v88, {QROW}, v88
v_and_b32 v89, 15, v{vLane}
v_lshl_add_u32 v88, v89, 4, v88
v_add_u32 v88, {QB + 98*QROW}, v88
ds_write2_b64 v88, v[12:13], v[14:15] offset0:0 offset1:1
v_mov_b32 v90, 0
v_mov_b32 v91, 0
""")
for g_ in range(4):
    setexec(lanemask(range(16*g_, 16*g_+8)))
    I(f"v_mov_b32 v{90 + (g_ >> 1)}, {0x3f800000 if g_ & 1 else 0x3f80}")
I(f"""
s_mov_b64 exec, -1
v_lshlrev_b32 v88, 3, v{vLane}
ds_write_b64 v88, v[90:91] offset:{LUT}
s_branch L_p_done
L_ptask:
v_xor_b32 v{vt+1}, 16, v79
v_xor_b32 v{vt+2}, 32, v79
v_xor_b32 v{vt+3}, 48, v79
""")
xa = [79, vt+1, vt+2, vt+3]
for ks in range(4):
    I(f"ds_read_b128 {vr(112+4*ks,4)}, v{xa[ks]}")
    for jl in range(2):
        for hf in range(2):
            I(f"ds_read_b64_tr_b16 {P(80+16*jl+4*ks+2*hf)}, v{166+jl} offset:{(8*ks+4*hf)*256}")
I(f"""
v_cmp_gt_u32 vcc, {BN}, v78
s_mov_b64 {sr(sE0,2)}, vcc
v_lshrrev_b32 v{vt+1}, 5, v{vLane}
s_and_b32 s{t1}, s{sW}, 1
s_lshl_b32 s{t1}, s{t1}, 3
v_add_u32 v{vt+1}, s{t1}, v{vt+1}
v_and_b32 v{vt+2}, 15, v78
v_xor_b32 v{vt+1}, v{vt+1}, v{vt+2}
v_lshlrev_b32 v{vt+1}, 4, v{vt+1}
v_lshl_add_u32 v{vt+1}, v78, 8, v{vt+1}
v_add_u32 v{vt+1}, {PST}, v{vt+1}
v_xor_b32 v{vt+2}, 32, v{vt+1}
v_xor_b32 v{vt+3}, 64, v{vt+1}
v_xor_b32 v{vt+4}, 0x60, v{vt+1}
""")
for ks in range(4):
    I(f"s_waitcnt lgkmcnt({15 - 5*ks})")
    I(mf16(128, 80+4*ks, 112+4*ks, "0" if ks == 0 else vr(128,16)))
    I(mf16(144, 96+4*ks, 112+4*ks, "0" if ks == 0 else vr(144,16)))
I("s_mov_b32 s%d, 0x07060302" % t0)
I("s_nop 10")
for i in range(16):
    I(f"v_pk_mul_f32 {P(128+2*i)}, {P(128+2*i)}, {sr(sSC,2)}")
I(f"s_mov_b64 exec, {sr(sE0,2)}")
for rg in range(4):
    for i in range(4*rg, 4*rg+4):
        I(f"v_add_u32 v{128+i}, 0x4000, v{128+i}")
    for i in range(4*rg, 4*rg+4):
        I(f"v_perm_b32 v{128+i}, v{144+i}, v{128+i}, s{t0}")
    I(f"ds_write_b128 v{vt+1+rg}, {vr(128+4*rg,4)}")
I(f"""
s_mov_b64 exec, -1
L_p_done:
v_lshrrev_b32 v80, 4, v0
v_xor_b32 v81, v80, v0
v_and_b32 v81, 15, v81
v_lshlrev_b32 v81, 4, v81
v_lshl_add_u32 v81, v80, 8, v81
v_add_u32 v81, {PST}, v81
s_mul_i32 s{t0}, s{sB}, {BN*256}
s_add_u32 s{t0}, s{t0}, {PT}
s_add_u32 s{sA}, s{pWS}, s{t0}
s_addc_u32 s{sA+1}, s{pWS+1}, 0
s_and_b32 s{sA+1}, s{sA+1}, 0xffff
s_mov_b32 s{sA+2}, {BN*256}
s_mov_b32 s{sA+3}, 0x00020000
s_mul_i32 s{t0}, s2, {RSTRIDE}
s_add_u32 s{t0}, s{t0}, {REC}
s_add_u32 s{sBq}, s{pWS}, s{t0}
s_addc_u32 s{sBq+1}, s{pWS+1}, 0
s_and_b32 s{sBq+1}, s{sBq+1}, 0xffff
s_mov_b32 s{sBq+2}, {(CH*12+15)//16*16}
s_mov_b32 s{sBq+3}, 0x00020000
s_mov_b32 s{t1}, {NTH*16}
s_mov_b32 s{t2}, {2*NTH*16}
s_mov_b32 s{t3}, {3*NTH*16}
s_waitcnt lgkmcnt(0)
s_barrier
""")
stamp()
I(f"""
ds_read_b128 v[84:87], v81
ds_read_b128 v[88:91], v81 offset:{48*256}
ds_read_b128 v[92:95], v81 offset:{96*256}
""")
for i in range(5):
    I(f"ds_read_b32 v{68+i}, v{68+i} offset:{CNT1}")
I(f"""
s_waitcnt lgkmcnt(7)
buffer_store_dwordx4 v[84:87], v{vt}, {sr(sA,4)}, 0 offen {PST_}
s_waitcnt lgkmcnt(6)
buffer_store_dwordx4 v[88:91], v{vt}, {sr(sA,4)}, s{t1} offen {PST_}
s_waitcnt lgkmcnt(5)
buffer_store_dwordx4 v[92:95], v{vt}, {sr(sA,4)}, s{t2} offen {PST_}
s_waitcnt vmcnt({7+X})
""")
I(f"s_movk_i32 s{t4}, 0x804")
I(f"s_mov_b32 s{t5}, {KMASK}")
for i in range(4):
    I(f"v_mul_u32_u24 v{52+i}, s{t4}, v{52+i}") if False else None
    I(f"v_lshlrev_b32 v{80+i}, 11, v{52+i}")
    I(f"v_lshlrev_b32 v{48+i}, 12, v{48+i}")
    I(f"v_lshlrev_b32_sdwa v{80+i}, 2, v{52+i} dst_sel:WORD_0 dst_unused:UNUSED_PRESERVE src0_sel:DWORD src1_sel:BYTE_0")
for i in range(4):
    I(f"v_and_or_b32 v{48+i}, v{80+i}, s{t5}, v{48+i}")
I("s_waitcnt lgkmcnt(0)")
for i in range(5):
    I(f"v_mad_u32_u24 v{68+i}, v{73+i}, 12, v{68+i}")
for i in range(4):
    I(f"ds_write_b32 v{68+i}, v{48+i} offset:8")
I(f"s_cmp_lg_u32 s{sW}, {EXTRAW}")
I("s_cbranch_scc1 L_noex2")
setexec(XM)
I(f"""
v_lshlrev_b32 v80, 11, v65
v_lshlrev_b32 v64, 12, v64
v_lshlrev_b32_sdwa v80, 2, v65 dst_sel:WORD_0 dst_unused:UNUSED_PRESERVE src0_sel:DWORD src1_sel:BYTE_0
s_nop 0
v_and_or_b32 v64, v80, s{t5}, v64
ds_write2_b32 v72, v66, v67 offset0:0 offset1:1
ds_write_b32 v72, v64 offset:8
s_mov_b64 exec, -1
L_noex2:
s_waitcnt vmcnt({6+X})
ds_write2_b32 v68, v56, v57 offset0:0 offset1:1
ds_write2_b32 v69, v58, v59 offset0:0 offset1:1
s_waitcnt vmcnt({5+X})
""")
stamp()
I(f"""
ds_write2_b32 v70, v60, v61 offset0:0 offset1:1
ds_write2_b32 v71, v62, v63 offset0:0 offset1:1
s_waitcnt lgkmcnt(0)
s_barrier
""")
stamp()
for i in range(4):
    I(f"ds_read_b128 {vr(48+4*i,4)}, v{vt} offset:{RST + i*NTH*16}")
for i in range(3):
    I(f"s_waitcnt lgkmcnt({3-i})")
    I(f"buffer_store_dwordx4 {vr(48+4*i,4)}, v{vt}, {sr(sBq,4)}, {['0', f's{t1}', f's{t2}'][i]} offen {RST_}")
I(f"""
s_waitcnt lgkmcnt(0)
s_cmp_lg_u32 s{sW}, 0
s_cbranch_scc1 L_no4
buffer_store_dwordx4 v[60:63], v{vt}, {sr(sBq,4)}, s{t3} offen {RST_}
L_no4:
{"s_barrier" if AI4 else ""}
s_cmp_ge_u32 s{sW}, 8
s_cbranch_scc1 L_nop2
""")
for ks in range(4):
    for jl in range(2):
        for hf in range(2):
            I(f"ds_read_b64_tr_b16 {P(80+16*jl+4*ks+2*hf)}, v{166+jl} offset:{16384 + (8*ks+4*hf)*256}")
I(f"s_waitcnt vmcnt({6+X})")
I(mf8(128, 160, 164, "0"))
I(mf8(144, 162, 164, "0"))
I(f"""
v_lshrrev_b32 v{vt+1}, 5, v{vLane}
s_and_b32 s{t0}, s{sW}, 1
s_lshl_b32 s{t0}, s{t0}, 7
s_add_u32 s{t0}, s{t0}, {QB}
v_lshl_add_u32 v{vt+1}, v{vt+1}, 3, s{t0}
v_mul_u32_u24 v{vt+2}, {QROW}, v78
v_add_u32 v{vt+1}, v{vt+1}, v{vt+2}
""")
for ks in range(4):
    I(f"s_waitcnt lgkmcnt({12 - 4*ks})")
    I(mf16(128, 80+4*ks, 112+4*ks, vr(128,16)))
    I(mf16(144, 96+4*ks, 112+4*ks, vr(144,16)))
I("s_nop 11")
for i in range(16):
    I(f"v_pk_mul_f32 {P(128+2*i)}, {P(128+2*i)}, {sr(sSC,2)}")
for i in range(16):
    I(f"v_cvt_pk_bf16_f32 v{128+i}, v{128+2*i}, v{129+2*i}")
I(f"s_mov_b64 exec, {sr(sE0,2)}")
for jl in range(2):
    for rg in range(4):
        I(f"ds_write_b64 v{vt+1}, {P(128+8*jl+2*rg)} offset:{64*jl + 16*rg}")
I(f"""
s_mov_b64 exec, -1
s_branch L_p2_done
L_nop2:
s_cmp_lg_u32 s{sW}, 11
s_cbranch_scc1 L_p2_done
s_cmp_gt_u32 s2, 16
s_cbranch_scc1 L_p2_done
s_lshl_b32 s{t0}, s2, 10
s_add_u32 s{t0}, s{t0}, {W2I}
s_waitcnt vmcnt(6)
s_cmp_lt_u32 s2, 16
s_cbranch_scc1 L_w2st
v_lshlrev_b32 v{vW2S}, 16, v{vW2S}
v_mul_f32 v{vW2S}, s{sSC}, v{vW2S}
v_lshlrev_b32 v{vW2S+1}, 2, v{vLane}
buffer_store_dword v{vW2S}, v{vW2S+1}, {sr(sWS,4)}, s{t0} offen sc1
s_branch L_p2_done
L_w2st:
v_lshl_or_b32 v{vW2S}, v{vW2S+1}, 16, v{vW2S}
v_lshl_or_b32 v{vW2S+1}, v{vW2S+3}, 16, v{vW2S+2}
v_lshl_or_b32 v{vW2S+2}, v{vW2S+5}, 16, v{vW2S+4}
v_lshl_or_b32 v{vW2S+3}, v{vW2S+7}, 16, v{vW2S+6}
buffer_store_dwordx4 {vr(vW2S,4)}, v{vt+5}, {sr(sWS,4)}, s{t0} offen sc1
L_p2_done:
""")
if AI4 == 1: area_init4(64, "L_ai4")
if AI4 == 2: area_init(64)
I(f"""
v_and_b32 v72, 31, v{vLane}
v_lshlrev_b32 v72, 2, v72
v_add_u32 v{vSC}, {SB}, v72
v_cvt_f32_u32 v72, v72
v_mov_b32 v{vBK}, 0x78005c00
v_cvt_f16_f32 v{vBK+1}, v72
v_and_b32 v{vBK+1}, 0xffff, v{vBK+1}
s_mov_b32 exec_lo, 0
v_mov_b32 v{vBK}, 0
v_mov_b32 v{vBK+1}, 0
s_mov_b64 exec, -1
v_mov_b32 v{vKA+1}, 0x3c00
v_bfe_u32 v73, v{vLane}, 4, 1
v_lshlrev_b32 v73, 5, v73
v_and_b32 v74, 3, v{vLane}
v_lshl_add_u32 v73, v74, 3, v73
v_add_u32 v{vQC}, {QB}, v73
v_bfe_u32 v75, v{vLane}, 2, 2
v_add_u32 v76, 98, v75
v_mul_u32_u24 v76, {QROW}, v76
v_add_u32 v{vQ}, v76, v{vQC}
""")
I(f"""
v_bfe_u32 v72, v{vLane}, 3, 2
v_bfe_u32 v73, v{vLane}, 1, 1
v_lshl_add_u32 v72, v72, 1, v73
v_lshlrev_b32 v{vAC}, 3, v72
v_lshlrev_b32 v{vAC+1}, 2, v72
""")
def ptr_consts(base):
    I(f"""
    v_lshrrev_b32 v72, 5, v{vLane}
    v_lshl_add_u32 v{vPH}, v72, 3, {base}
    v_bfe_u32 v73, v{vLane}, 2, 1
    v_and_b32 v74, 1, v{vLane}
    v_lshl_add_u32 v73, v73, 1, v74
    v_lshl_add_u32 v73, v72, 2, v73
    v_lshl_add_u32 v{vPG}, v73, 2, {base}
    v_bfe_u32 v75, v{vLane}, 2, 2
    v_lshl_add_u32 v74, v75, 2, {base}
    v_add_u32 v{vPR}, 50, v74
    """)
ptr_consts(f"s{sReg}")
I(f"""
{"" if TAGS else "s_waitcnt vmcnt(6)"}
{"" if TAGS else f"v_readfirstlane_b32 s{sTag}, v26"}
s_add_u32 s{sTag}, s{sTag}, 1
s_mul_i32 s{sTag8}, s{sTag}, 0x9e3779b1
s_and_b32 s{sTag8}, s{sTag8}, 0xff000000
v_or_b32 v16, s{sTag8}, v16
v_or_b32 v18, s{sTag8}, v18
v_or_b32 v20, s{sTag8}, v20
v_or_b32 v22, s{sTag8}, v22
v_mov_b32 v17, s{sTag}
v_mov_b32 v19, s{sTag}
v_mov_b32 v21, s{sTag}
v_mov_b32 v23, s{sTag}
s_waitcnt vmcnt(0) lgkmcnt(0)
s_barrier
""")
stamp()
I(f"""
s_cmp_lg_u32 s{sW}, {SCANW}
s_cbranch_scc1 L_nopub
v_lshlrev_b32 v72, 4, v{vLane}
s_lshl_b32 s{t0}, s2, 11
s_add_u32 s{t0}, s{t0}, {GRAN}
buffer_store_dwordx4 v[16:19], v72, {sr(sWS,4)}, s{t0} offen {PUB_}
buffer_store_dwordx4 v[20:23], v72, {sr(sWS,4)}, s{t0} offen offset:1024 {PUB_}
L_nopub:
""")
PF1 = int(opts.get("pf1", 0)); PF2 = int(opts.get("pf2", 0))
def prefetch(n, first, dst):
    I(f"""
    s_lshr_b32 s{t0}, s2, 3
    s_mul_i32 s{t0}, s{t0}, {NW}
    s_add_u32 s{t0}, s{t0}, s{sW}
    s_mul_i32 s{t0}, s{t0}, {n*128}
    s_add_u32 s{t0}, s{t0}, {MAGIC + first*384*128}
    v_lshlrev_b32 v{dst}, 7, v{vLane}
    """)
    if n < 64: setexec((1 << n) - 1)
    I(f"buffer_load_dword v{dst}, v{dst}, {sr(sP,4)}, s{t0} offen sc1")
    I("s_mov_b64 exec, -1")
if PF1: prefetch(PF1, 0, 42)
if not AI4: area_init(64)
SZ = int(opts.get('sz', 0))
if SZ == 1: s_zero(76)
vDs = 124
vRA = 130
vCn = 133
vPo = 136
vL7 = 138; vRb = 139; vAr = 140
sPo = [sG, sT, sRem]; sRo = sGam
def desc_consts():
    I(f"""
    v_lshrrev_b32 v141, 3, v{vLane}
    v_lshlrev_b32 v{vPo}, 11, v141
    v_and_b32 v{vL7}, 7, v{vLane}
    v_mul_u32_u24 v{vRb}, 12, v{vL7}
    s_mov_b32 s{t0}, {RSTRIDE}
    v_mad_u32_u24 v{vRb}, v141, s{t0}, v{vRb}
    s_lshl_b32 s{sPo[0]}, s{sW}, 14
    s_lshr_b32 s{t1}, s{sB}, 2
    s_lshl_b32 s{t1}, s{t1}, 4
    s_add_u32 s{sPo[0]}, s{sPo[0]}, s{t1}
    s_and_b32 s{t1}, s{sB}, 1
    s_lshl_b32 s{t1}, s{t1}, 3
    s_add_u32 s{sPo[0]}, s{sPo[0]}, s{t1}
    s_and_b32 s{t1}, s{sB}, 2
    s_lshl_b32 s{t1}, s{t1}, 9
    s_add_u32 s{sPo[0]}, s{sPo[0]}, s{t1}
    s_add_u32 s{sPo[0]}, s{sPo[0]}, {GRAN}
    s_add_u32 s{sPo[1]}, s{sPo[0]}, {12*16384}
    s_add_u32 s{sPo[2]}, s{sPo[0]}, {24*16384}
    s_mul_i32 s{sRo}, s{sW}, {8*RSTRIDE}
    s_add_u32 s{sRo}, s{sRo}, {REC}
    """)
def poll_load(jj): return f"buffer_load_dwordx2 {P(vDs+2*jj)}, v{vPo}, {sr(sWS,4)}, s{sPo[jj]} offen " + opts.get("pld", "sc1").replace("+", " ")
def decode(jj):
    I(f"v_and_b32 v{vRA+jj}, 0xfff, v{vDs+2*jj}")
    I(f"v_mad_u32_u24 v{vRA+jj}, v{vRA+jj}, 12, v{vRb}")
    if jj: I(f"v_add_u32 v{vRA+jj}, {jj*96*RSTRIDE}, v{vRA+jj}")
    I(f"v_bfe_u32 v{vCn+jj}, v{vDs+2*jj}, 12, 12")
    I(f"v_sub_u32 v{vCn+jj}, v{vCn+jj}, v{vL7}")
lab = [0]
NR = 5
order = [(jj, rd) for jj in range(3) for rd in range(NR)]
slotreg = {s: 48 + 4*n_ for n_, s in enumerate(order)}
slotmask = {s: sM + 2*n_ for n_, s in enumerate(order)}
vTA = {s: 108 + n_ for n_, s in enumerate(order)}
def slots(body):
    for jj in range(3):
        lab[0] += 1; grp = lab[0]
        for rd in range(NR):
            s = (jj, rd)
            I(f"s_mov_b64 exec, {sr(slotmask[s],2)}")
            if rd >= 2 or (jj == 2 and rd == 0): I(f"s_cbranch_execz L_sg{grp}")
            body(s)
        L(f"L_sg{grp}")
    I("s_mov_b64 exec, -1")
def tagcheck(jj, dst):
    I(f"""
    v_xor_b32 v141, s{sTag8}, v{vDs+2*jj}
    v_xor_b32 v142, s{sTag}, v{vDs+2*jj+1}
    v_lshrrev_b32 v141, 24, v141
    v_or_b32 v141, v141, v142
    v_cmp_ne_u32 {dst}, 0, v141
    """)
desc_consts()
I(f"""
s_mov_b64 {sr(sPM,2)}, -1
s_mov_b64 {sr(sPM+2,2)}, -1
s_cmp_lt_u32 s{sW}, 8
s_cselect_b64 {sr(sPM+4,2)}, -1, 0
v_mov_b32 v{vDs+4}, s{sTag8}
v_mov_b32 v{vDs+5}, s{sTag}
s_mov_b32 s{sK}, 0
v_mov_b32 v{vAr}, {AREA}
s_movk_i32 s{t4}, {NSZ//4}
s_mov_b32 s{t5}, {KMASK}
v_mov_b32 v137, {KCON}
v_mov_b32 v143, 0
{"" if AI4 else "s_waitcnt lgkmcnt(0)"}
{"" if AI4 else "s_barrier"}
""")
stamp()
I(f"""
s_branch L_poll1
L_poll:
""")
if SLEEP: I(f"s_sleep {SLEEP}")
L("L_poll1")
for jj in range(3):
    I(f"s_mov_b64 exec, {sr(sPM+2*jj,2)}")
    I(f"s_cbranch_execz L_pk{jj}")
    I(poll_load(jj))
    L(f"L_pk{jj}")
I(f"""
s_mov_b64 exec, -1
s_add_u32 s{sK}, s{sK}, 1
s_cmp_gt_u32 s{sK}, 0x40000
s_cbranch_scc1 L_exit
s_waitcnt vmcnt(0)
""")
for jj in range(3): tagcheck(jj, sr(sPM+2*jj,2))
I(f"""
s_or_b64 {sr(sE0,2)}, {sr(sPM,2)}, {sr(sPM+2,2)}
s_or_b64 {sr(sE0,2)}, {sr(sE0,2)}, {sr(sPM+4,2)}
s_cbranch_scc1 L_poll
""")
if DEBUG:
    I(f"v_writelane_b32 v{vST}, s{sK}, 22")
stamp()
for jj in range(3): decode(jj)
for s_ in order:
    I(f"v_cmp_lt_i32 {sr(slotmask[s_],2)}, {8*s_[1]}, v{vCn+s_[0]}")
slots(lambda s_: I(f"buffer_load_dwordx3 {vr(slotreg[s_],3)}, v{vRA+s_[0]}, {sr(sWS,4)}, s{sRo} offen offset:{96*s_[1]} sc1"))
I(f"""
v_max3_i32 v141, v{vCn}, v{vCn+1}, v{vCn+2}
v_cmp_lt_i32 vcc, {8*NR}, v141
s_cbranch_vccz L_nobig
v_mov_b32 v141, 0
ds_write_b32 v141, v{vt+6} offset:{FLAG}
L_nobig:
""")
if SZ == 0: s_zero(144)
vNB = 32
I(f"""
v_mul_u32_u24 v{vNB}, {2*NSZ}, v{vLane}
v_add_u32 v{vNB}, {AREA}, v{vNB}
v_add_u32 v{vNB+1}, {NSZ}, v{vNB}
s_mov_b32 s{t0}, {2*(SROW + (QROW << 16))}
v_mul_lo_u32 v{vNB+2}, v{vLane}, s{t0}
v_add_u32 v{vNB+3}, {SROW + (QROW << 16)}, v{vNB+2}
""")
I("s_waitcnt vmcnt(0)")
stamp()
if PF2: prefetch(PF2, PF1, 33)
def rank_body(s):
    r = slotreg[s]
    I(f"v_bfe_u32 v{vTA[s]}, v{r+2}, 10, 9")
    I(f"v_and_or_b32 v{r+2}, v{r+2}, s{t5}, v137")
    I(f"ds_add_rtn_u32 v{r+3}, v{vTA[s]}, v{vt+6} offset:{CNT}")
    I(f"v_mad_u32_u24 v{vTA[s]}, v{vTA[s]}, s{t4}, v{vAr}")
slots(rank_body)
I("s_waitcnt lgkmcnt(0)")
def scat_body(s):
    r = slotreg[s]
    lab[0] += 1; fx = lab[0]
    fixups.append((fx, s))
    I(f"v_cmp_le_u32 vcc, {CAP}, v{r+3}")
    I(f"v_lshl_add_u32 v141, v{r+3}, 2, v{vTA[s]}")
    I(f"v_lshl_add_u32 v{vTA[s]}, v{r+3}, 3, v{vTA[s]}")
    I(f"s_cbranch_vccnz L_fx{fx}")
    L(f"L_fr{fx}")
    I(f"ds_write_b32 v141, v{r+2}")
    I(f"ds_write_b64 v{vTA[s]}, {P(r)} offset:{EOFF}")
fixups = []
PF5 = int(opts.get("pf5", 0))
if PF5: prefetch(PF5, PF1, 41)
slots(scat_body)
PF4 = int(opts.get("pf4", 12))
if PF4: prefetch(PF4, PF1, 41)
I(f"""
s_waitcnt lgkmcnt(0)
s_barrier
""")
stamp()
PF3 = int(opts.get('pf3', 0))
if PF3: prefetch(PF3, 0, 43)
I(f"""
s_or_b32 s{t0}, s2, s{sW}
s_cmp_lg_u32 s{t0}, 0
s_cbranch_scc1 L_nogen
v_mov_b32 v137, 0
v_mov_b32 v138, s{sTag}
s_mov_b64 exec, 1
buffer_store_dword v138, v137, {sr(sWS,4)}, 0 offen sc0 sc1
s_mov_b64 exec, -1
L_nogen:
""")
def chain(T, vD=vD, vN=vN, n=8):
    l = [f"v_pk_add_f32 {P(vD)}, {P(vE)}, {sr(sONE,2)}",
         f"v_pk_fma_f32 {P(vN)}, {P(T)}, {P(vE+2)}, {P(T)}",
         f"v_pk_fma_f32 {P(vN)}, {P(T+2)}, {P(vD)}, {P(vN)}",
         f"v_pk_fma_f32 {P(vD)}, {P(vD)}, {P(vE+2)}, {P(vD)}"]
    for i in range(2, n):
        l += [f"v_pk_fma_f32 {P(vN)}, {P(vN)}, {P(vE+2*i)}, {P(vN)}",
              f"v_pk_fma_f32 {P(vN)}, {P(T+2*i)}, {P(vD)}, {P(vN)}",
              f"v_pk_fma_f32 {P(vD)}, {P(vD)}, {P(vE+2*i)}, {P(vD)}"]
    return l
assert EOFF - 7*32 == 0
def gload(u): return [f"buffer_load_dword v{vLb[u]+i}, v{vIX+i}, {sr(sP,4)}, 0 offen offset:{128*u} sc1" for i in range(16)]
def shifts(u): return [f"v_lshlrev_b64 {P(vTL+2*i)}, 16, {P(vLb[u]+2*i)}" for i in range(8)]
SAUPD = [f"v_add_u32_sdwa v{vSA}, v{vGS}, v{vSC} {SDWA0}", f"v_add_u32_sdwa v{vSA+1}, v{vGS+1}, v{vSC} {SDWA0}"]
QUPD = f"v_add_u32_dpp v{vQ}, v{vGQ}, v{vQC} quad_perm:[0,1,2,3] row_mask:0xc bank_mask:0xf"
AUPD = f"v_lshl_add_u64 {P(vAG)}, {P(vAG)}, 0, {P(vAC)}"
IXM = mf8(vIX, vKA, vBK, "0").replace("bf16", "f16")

vDj = [144, 148, 152, 156]; vNj = [146, 150, 154, 158]; vSj = [160, 162, 164, 166]
def pmul(d, a, b): return f"v_pk_mul_f32 {P(d)}, {P(a)}, {P(b)}"
def inv(m): return [f"v_rcp_f32 v{vE}, v{m}", f"v_rcp_f32 v{vE+1}, v{m+1}", f"v_max3_f32 v{vMX}, v{m}, v{m+1}, v{vMX}"]
NSH = 4 * NW
vSU = 120
I(f"""
v_lshlrev_b32 v48, 3, v{vLane}
v_mov_b32 v63, 0
s_mov_b32 s{t2}, 0x80000004
ds_read_b64 v[50:51], v48 offset:{CNT}
ds_read_b32 v49, v63 offset:{FLAG}
""")
I(f"""
v_mov_b32 v{vMX}, 0
s_lshl_b32 s{t3}, s{sW}, 2
s_waitcnt lgkmcnt(0)
v_add_u32 v80, -1, v50
v_add_u32 v81, -1, v51
v_and_b32 v80, s{t2}, v80
v_and_b32 v81, s{t2}, v81
v_cmp_gt_u32 {sr(sE0,2)}, {CAP}, v50
v_cmp_gt_u32 {sr(sE1,2)}, {CAP}, v51
v_cmp_eq_u32 vcc, 0, v80
s_and_b64 {sr(sE0,2)}, {sr(sE0,2)}, vcc
v_cmp_eq_u32 vcc, 0, v81
s_and_b64 {sr(sE1,2)}, {sr(sE1,2)}, vcc
s_bcnt1_i32_b64 s{t0}, {sr(sE0,2)}
v_mbcnt_lo_u32_b32 v82, s{sE0}, 0
v_mov_b32 v83, s{t0}
v_mbcnt_hi_u32_b32 v82, s{sE0+1}, v82
v_mbcnt_lo_u32_b32 v83, s{sE1}, v83
v_mbcnt_hi_u32_b32 v83, s{sE1+1}, v83
""")
for e_ in range(2):
    m_ = (sE0, sE1)[e_]
    I(f"""
    v_subrev_u32 v84, s{t3}, v{82+e_}
    v_cmp_gt_u32 vcc, 4, v84
    s_and_b64 exec, {sr(m_,2)}, vcc
    s_cbranch_execz L_shs{e_}
    v_and_b32 v85, 0x78, v{50+e_}
    v_and_b32 v86, 7, v{50+e_}
    v_lshl_add_u32 v87, v85, 2, v{vNB+e_}
    v_lshl_add_u32 v88, v85, 3, v{vNB+e_}
    v_lshlrev_b32 v89, 4, v84
    v_add_u32 v88, {EOFF}, v88
    v_sub_u32 v89, v89, v86
    v_lshl_add_u32 v84, v84, 2, s{sReg}
    v_lshlrev_b32 v89, 3, v89
    ds_write2_b32 v84, v87, v88 offset0:0 offset1:4
    v_add_u32 v89, {LUT + 64}, v89
    ds_write2_b32 v84, v89, v{vNB+2+e_} offset0:8 offset1:12
    L_shs{e_}:
    s_mov_b64 exec, -1
    """)
I(f"""
ds_read2_b32 {P(vAG)}, v{vPG} offset0:4 offset1:0
ds_read_u16 v{vGQ}, v{vPR}
ds_read_b64 {P(vGS)}, v{vPH} offset:48
v_cmp_gt_u32 vcc, {NSH}, v82
s_and_b64 {sr(sE0,2)}, {sr(sE0,2)}, vcc
v_cmp_gt_u32 vcc, {NSH}, v83
s_and_b64 {sr(sE1,2)}, {sr(sE1,2)}, vcc
v_add_u32 v52, 7, v50
v_add_u32 v53, 7, v51
v_lshrrev_b32 v52, 3, v52
v_lshrrev_b32 v53, 3, v53
s_waitcnt lgkmcnt(2)
{AUPD}
ds_read_b32 v{vKA}, v{vAG+1}
ds_read_b64 {P(vA5)}, v{vAG}
v_subb_co_u32 v52, vcc, v52, 0, {sr(sE0,2)}
v_subb_co_u32 v53, vcc, v53, 0, {sr(sE1,2)}
s_waitcnt lgkmcnt(1)
{IXM}
{QUPD}
{SAUPD[0]}
{SAUPD[1]}
v_add_u32 v54, v52, v53
v_max_u32 v55, v52, v53
v_mov_b32 v56, v54
v_readfirstlane_b32 s{sBad}, v49
v_cmp_lt_u32 vcc, {CAP}, v50
v_cmp_lt_u32 {sr(sE0,2)}, {CAP}, v51
""")
I(f"""
ds_read_b64_tr_b16 {P(vB5[0])}, v{vQ}
ds_read_b64_tr_b16 {P(vB5[1])}, v{vQ} offset:64
ds_read_b64_tr_b16 {P(vD)}, v{vQ} offset:128
ds_read_b64_tr_b16 {P(vN)}, v{vQ} offset:192
s_nop 1
""")
for i_ in range(8): I(f"buffer_load_dword v{vTH+i_}, v{vIX+i_}, {sr(sP,4)}, 0 offen sc1")
for i_ in range(8): I(f"buffer_load_dword v{vSU+i_}, v{vIX+i_}, {sr(sP,4)}, 0 offen offset:128 sc1")
dpp_scan(56, 55)
I(f"""
s_bcnt1_i32_b64 s{t1}, vcc
s_bcnt1_i32_b64 s{t2}, {sr(sE0,2)}
s_add_u32 s{t1}, s{t1}, s{t2}
s_cmp_gt_u32 s{t1}, 1
s_cselect_b32 s{sBad}, 1, s{sBad}
""")
I(f"""
s_nop 0
v_readlane_b32 s{sG}, v56, 63
v_readlane_b32 s{sGmax}, v55, 63
v_sub_u32 v56, v56, v54
v_add_u32 v57, v56, v52
s_add_u32 s{t0}, s{sG}, 3
s_lshr_b32 s{t0}, s{t0}, 2
s_cmp_gt_u32 s{t0}, {NW*(TMAX-1)}
s_cselect_b32 s{sBad}, 1, s{sBad}
s_cmp_gt_u32 s{sGmax}, {TMAX-1}
s_cselect_b32 s{sBad}, 1, s{sBad}
""")
if FORCE_SLOW == 1: I(f"s_mov_b32 s{sBad}, 1")
I(f"""
s_cmp_lg_u32 s{sBad}, 0
s_cbranch_scc1 L_slow
s_mul_i32 s{sT}, s{t0}, 171
s_lshr_b32 s{sT}, s{sT}, 11
s_mul_i32 s{t1}, s{sT}, {NW}
s_sub_u32 s{sRem}, s{t0}, s{t1}
s_cmp_gt_u32 s{sGmax}, s{sT}
s_cselect_b32 s{sT}, s{sGmax}, s{sT}
s_cselect_b32 s{sRem}, 0, s{sRem}
s_max_u32 s{sT}, s{sT}, 1
s_add_u32 s{t1}, s{sT}, 1
s_lshl_b32 s{t2}, s{sRem}, 2
s_mul_i32 s{sGam}, s{t2}, s{t1}
v_cvt_f32_u32 v58, s{sT}
v_cvt_f32_u32 v59, s{t1}
v_rcp_f32 v58, v58
v_rcp_f32 v59, v59
v_mov_b32 v60, s{sT}
v_mov_b32 v61, s{t1}
v_mov_b32 v62, s{t2}
s_cmp_lt_u32 s{sW}, s{sRem}
s_cselect_b32 s{sTw}, s{t1}, s{sT}
s_cselect_b32 s{t0}, 0, s{t2}
s_mul_i32 s{t1}, s{sTw}, s{sW}
s_lshl_b32 s{t1}, s{t1}, 2
s_add_u32 s{t1}, s{t1}, s{t0}
s_sub_i32 s{t1}, s{sG}, s{t1}
s_max_i32 s{t1}, s{t1}, 0
s_min_u32 s{sTw}, s{sTw}, s{t1}
v_lshlrev_b32 v65, 1, v{vLane}
s_mov_b32 s{sK}, s{sW}
s_cmp_lt_u32 s{sW}, 6
s_cbranch_scc1 L_build
s_sub_u32 s{sK}, s{sW}, 6
v_mov_b32 v50, v51
v_mov_b32 v52, v53
v_mov_b32 v56, v57
v_add_u32 v65, 1, v65
L_build:
v_cmp_lt_u32 vcc, s{sK}, v52
s_and_b64 exec, exec, vcc
s_cbranch_execz L_bskip
v_add_u32 v66, s{sK}, v56
v_cmp_gt_u32 vcc, s{sGam}, v66
v_mul_u32_u24 v77, {QROW}, v65
s_lshl_b32 s{t0}, s{sK}, 3
v_cndmask_b32 v68, v62, v63, vcc
v_cndmask_b32 v69, v60, v61, vcc
v_cndmask_b32 v70, v58, v59, vcc
v_sub_u32 v66, v66, v68
v_cvt_f32_u32 v71, v66
v_add_f32 v71, 0.5, v71
v_mul_f32 v71, v71, v70
v_cvt_u32_f32 v71, v71
v_subrev_u32 v67, s{t0}, v50
v_mul_u32_u24 v72, v71, v69
v_sub_u32 v72, v66, v72
v_and_b32 v73, 3, v71
v_lshrrev_b32 v74, 2, v71
v_mad_u32_u24 v75, v73, v69, v72
v_cmp_gt_u32 vcc, s{sK}, v75
v_mad_u32_u24 v76, v74, {TMAX}, v72
v_lshlrev_b32 v76, 6, v76
v_lshl_add_u32 v76, v73, 2, v76
v_add_u32 v76, {GT + GSZ}, v76
v_add_u32 v74, {ZROW}, v74
v_cndmask_b32 v74, v65, v74, vcc
v_mul_u32_u24 v74, {SROW}, v74
v_lshl_or_b32 v77, v77, 16, v74
v_min_u32 v67, 8, v67
v_lshlrev_b32 v73, 4, v73
v_sub_u32 v73, v73, v67
s_movk_i32 s{t1}, {LUT + 64}
v_lshl_add_u32 v73, v73, 3, s{t1}
ds_write2_b32 v76, v73, v77 offset0:8 offset1:12
s_cmp_ge_u32 s{sK}, 7
s_cselect_b32 s{t1}, 0, {NSZ}
s_cselect_b32 s{t2}, {OVF - 7*32 - AREA}, 0
s_cselect_b32 s{t3}, 0, {EOFF}
s_add_u32 s{t2}, s{t2}, {AREA}
s_lshl_b32 s{t0}, s{sK}, 5
s_add_u32 s{t2}, s{t2}, s{t0}
s_add_u32 s{t3}, s{t3}, s{t0}
v_mul_u32_u24 v78, s{t1}, v65
v_add_u32 v78, s{t2}, v78
v_add_u32 v79, s{t3}, v78
ds_write2_b32 v76, v78, v79 offset0:0 offset1:4
v_lshlrev_b32 v79, 2, v65
s_and_b64 exec, exec, vcc
ds_write_b32 v79, v74 offset:{CARRY}
L_bskip:
s_mov_b64 exec, -1
s_add_u32 s{sK}, s{sK}, 6
s_cmp_lt_u32 s{sK}, s{sGmax}
s_cbranch_scc1 L_build
s_waitcnt lgkmcnt(0)
s_barrier
""")
stamp()

HOLD = int(opts.get("hold", 1))
I(f"""
v_lshl_add_u64 {P(vPH)}, {P(vPH)}, 0, {sr(sADV,2)}
v_add_u32 v{vPR}, {GSZ}, v{vPR}
s_and_b32 s{t0}, s{sW}, 3
s_lshl_b32 s{t0}, s{t0}, 2
ds_read_b32 v{vSO}, v{vPG}
ds_read2_b32 {P(vAG)}, v{vPG} offset0:4 offset1:{GSZ//4}
ds_read_u16 v{vGQ}, v{vPR}
ds_read_b64 {P(vGS)}, v{vPH} offset:48
v_mov_b32 v{vt+7}, s{t0}
s_waitcnt lgkmcnt(3)
v_add_u32 v{vSO}, v{vSO}, v{vAC+1}
ds_read_b32 v{vKA}, v{vSO}
s_waitcnt lgkmcnt(0)
{IXM}
{AUPD}
{QUPD}
ds_read_b32 v{vKA}, v{vAG+1}
""")
def short_half(u):
    src = vTH if u == 0 else vSU
    b0, b1_ = (vB5[0], vB5[1]) if u == 0 else (vD, vN)
    for i_ in range(4): I(f"v_lshlrev_b64 {P(vTL+2*i_)}, 16, {P(src+2*i_)}")
    I("s_nop 1")
    I(mf8(vTL, vA5, b0, vr(vTL,16)))
    I(mf8(vTH, vA5, b1_, vr(src,16)))
    I("s_nop 10")
    a, b_ = 2*u, 2*u + 1
    for j_, T in ((a, vTL), (b_, vTH)):
        for i_ in range(8): I(f"v_exp_f32 v{vE+i_}, v{T+i_}")
        for l in chain(T, vDj[j_], vNj[j_], 4): I(l)
    I(pmul(vSO, vDj[a], vDj[b_]))
    i3 = inv(vSO)
    for l in i3[0:2] + [pmul(vNj[a], vNj[a], vDj[b_]), pmul(vNj[b_], vNj[b_], vDj[a]), i3[2], pmul(vSj[a], vNj[a], vE), pmul(vSj[b_], vNj[b_], vE)]: I(l)
    I(f"ds_write2_b32 v{vSA}, v{vSj[a]}, v{vSj[b_]} offset0:{32*a} offset1:{32*b_}")
    I(f"ds_write2_b32 v{vSA+1}, v{vSj[a]+1}, v{vSj[b_]+1} offset0:{32*a} offset1:{32*b_}")
FP = [[int(c) for c in x] for x in opts.get("fp", "01,02,33").split(",")]
def fetch_point(pt):
    for u in range(2):
        m = sum(0xf << (4*c) for c in range(3) if FP[c][u] == pt)
        if m == 0: continue
        if m != 0xfff:
            I(f"s_movk_i32 s{t0}, {m}")
            I(f"s_bitcmp1_b32 s{t0}, s{sW}")
            I(f"s_cbranch_scc0 L_fp{pt}{u}")
        for l in gload(u): I(l)
        L(f"L_fp{pt}{u}")
if int(opts.get("cw", 1)):
    I("s_nop 9")
    fetch_point(0)
    for n0 in (0, 1, 2):
        m = sum(0xf << (4*c) for c in range(3) if FP[c].count(0) == n0)
        if m == 0: continue
        if m != 0xfff:
            I(f"s_movk_i32 s{t0}, {m}")
            I(f"s_bitcmp1_b32 s{t0}, s{sW}")
            I(f"s_cbranch_scc0 L_w9{n0}")
        I(f"s_waitcnt vmcnt({16*n0})")
        L(f"L_w9{n0}")
else:
    I("s_waitcnt vmcnt(0)")
    I("s_nop 9")
    fetch_point(0)
stamp()
short_half(0)
fetch_point(1)
short_half(1)
fetch_point(2)
I(f"""
ds_read_b64 {P(vA5)}, v{vAG}
ds_read_b64_tr_b16 {P(vB5[0])}, v{vQ}
ds_read_b64_tr_b16 {P(vB5[1])}, v{vQ} offset:64
s_waitcnt lgkmcnt(0)
s_barrier
s_cmp_eq_u32 s{sTw}, 0
s_cbranch_scc1 L_loop_done
""")
stamp()
fetch_point(3)
I(IXM)
I("s_waitcnt vmcnt(16)")
for l in shifts(0): I(l)
I("s_nop 1")
I(mf8(vTL, vA5, vB5[0], vr(vTL,16)))
I(f"s_mov_b32 s{sK}, s{sTw}")
if PRIO:
    I("s_setprio 3")
    I(f"s_mov_b32 s{t5}, {sum(1 << (x // 2) for x in PTH if x % 2 == 0)}")
    I(f"s_mov_b32 s{t4}, {sum(1 << ((x + 1) // 2) for x in PTH if x % 2 == 1)}")
for x in STG:
    if x == 0: continue
    m = t4 if x & 1 else t5
    I(f"""
    s_sub_u32 s{t0}, s{sTw}, {x // 2}
    s_lshl_b32 s{t0}, 1, s{t0}
    s_cmp_lt_u32 s{sW}, 4
    s_cselect_b32 s{t0}, s{t0}, 0
    s_or_b32 s{m}, s{m}, s{t0}
    """)
I("s_nop 15")

GS1, GS2, EXP, CHP = [int(x) for x in opts.get('gs', '6,11,8,4').split(',')]
body = []
def lds(text, tag=None): body.append(("lds", text, tag))
def need(tag): body.append(("need", tag))
def em(x):
    if isinstance(x, list): body.extend(x)
    else: body.append(x)
BATCH = int(opts.get("batch", 2)); LATE = int(opts.get("late", 0))
def rds(j):
    lds(f"ds_read_b32 v{vSj[j]}, v{vSA} offset:{128*j}")
    lds(f"ds_read_b32 v{vSj[j]+1}, v{vSA+1} offset:{128*j}", f"so{j}")
def pmul(d, a, b): return f"v_pk_mul_f32 {P(d)}, {P(a)}, {P(b)}"
def pfin(j, r): return f"v_pk_fma_f32 {P(vSj[j])}, {P(vNj[j])}, {P(r)}, {P(vSj[j])}"
def inv(m): return [f"v_rcp_f32 v{vE}, v{m}", f"v_rcp_f32 v{vE+1}, v{m+1}", f"v_max3_f32 v{vMX}, v{m}, v{m+1}, v{vMX}"]
def wr2(j):
    lds(f"ds_write2_b32 v{vSA}, v{vSj[j]}, v{vSj[j+1]} offset0:{32*j} offset1:{32*j+32}")
    lds(f"ds_write2_b32 v{vSA+1}, v{vSj[j]+1}, v{vSj[j+1]+1} offset0:{32*j} offset1:{32*j+32}")
for j in range(4):
    T = vTH if j & 1 else vTL
    j2 = (j + 2) & 3
    ex = [f"v_exp_f32 v{vE+i}, v{T+i}" for i in range(16)]
    ch = chain(T, vDj[j], vNj[j])
    g = gload(j >> 1)
    if PRIO and j in (0, 2) and (any(x % 2 == j // 2 for x in PTH) or stg_at(j)):
        em([f"s_bitcmp1_b32 s{t5 if j == 0 else t4}, s{sK}", f"s_cbranch_scc1 L_prio{j}", f"L_prio{j}_ret:"])
    if j & 1: em(g[GS2:16])
    if BATCH == 1:
        if j != 0: rds(j)
    elif j & 1:
        rds(j - 1); rds(j)
    b5rd = (f"ds_read_b64_tr_b16 {P(vB5[j & 1])}, v{vQ} offset:{64*j2}", f"b5_{j2}")
    if not (LATE and j & 1 == 0): lds(*b5rd)
    if j == 1:
        lds(f"ds_read_b64 {P(vGS)}, v{vPH} offset:{GSZ+48}")
        lds(f"ds_read2_b32 {P(vAG)}, v{vPG} offset0:{GSZ//4+4} offset1:{2*GSZ//4}")
        lds(f"ds_read_u16 v{vGQ}, v{vPR} offset:{GSZ}", "gq")
    jn = (j + 1) & 3; un = jn >> 1
    if j & 1 == 0:
        need(f"b5_{j+1}")
        em(mf8(vTH, vA5, vB5[1], vr(vLb[j >> 1],16)))
        if j == 0: em(SAUPD)
        if LATE: em(f"s_nop {8 if j == 0 else 10}")
        em(ex[0:EXP])
        em(g[0:GS1])
        if LATE: lds(*b5rd)
        if j == 0 and BATCH == 1: rds(0)
        if j == 2:
            lds(f"ds_read_b32 v{vKA}, v{vAG+1}")
            lds(f"ds_read_b64 {P(vA5)}, v{vAG}", "a5")
        em(ex[EXP:16])
        em(ch[0:CHP])
        em(g[GS1:GS2])
        em(ch[CHP:])
    else:
        if not LATE:
            em("s_waitcnt vmcnt(16)")
            em(shifts(un))
            em(ex[0:2])
            need("a5" if j == 3 else f"b5_{jn}")
            em(mf8(vTL, vA5, vB5[0], vr(vTL,16)))
        else:
            em(ex[0:2])
            if j == 3: need("a5")
        if j == 3:
            em(ex[2:6]); em(IXM); em(ex[6:])
        else:
            em(ex[2:])
        if j == 3:
            em([f"v_lshl_add_u64 {P(vPH)}, {P(vPH)}, 0, {sr(sADV,2)}", f"v_add_u32 v{vPR}, {GSZ}, v{vPR}"])
        else:
            need("gq")
            em([QUPD, AUPD])
        em(ch)
    cnt = [f"s_sub_u32 s{sK}, s{sK}, 1", f"s_cmp_lg_u32 s{sK}, 0"] if j == 3 else []
    late = (["s_waitcnt vmcnt(16)"] + shifts(un)) if (LATE and j & 1) else []
    if BATCH == 1:
        em(inv(vDj[j])); need(f"so{j}"); em(pfin(j, vE)); em(late); em(cnt)
        lds(f"ds_write_b32 v{vSA}, v{vSj[j]} offset:{128*j}")
        lds(f"ds_write_b32 v{vSA+1}, v{vSj[j]+1} offset:{128*j}")
    elif BATCH == 2 and j & 1:
        a, b = j - 1, j
        em(pmul(vD, vDj[a], vDj[b]))
        i3 = inv(vD)
        em(i3[0:2]); em([pmul(vNj[a], vNj[a], vDj[b]), pmul(vNj[b], vNj[b], vDj[a]), i3[2]])
        need(f"so{j}"); em([pfin(a, vE), pfin(b, vE)]); em(late); em(cnt)
        wr2(a)
    elif BATCH == 4 and j == 1:
        em([pmul(vD, vDj[0], vDj[1]), pmul(vNj[0], vNj[0], vDj[1]), pmul(vNj[1], vNj[1], vDj[0])]); em(late)
        if LATE: em("s_nop 1")
    elif BATCH == 4 and j == 3:
        em([pmul(vN, vDj[2], vDj[3]), pmul(vSO, vD, vN)])
        i3 = inv(vSO)
        em(i3[0:2]); em([pmul(vNj[2], vNj[2], vDj[3]), pmul(vNj[3], vNj[3], vDj[2]), i3[2], pmul(vN, vN, vE), pmul(vD, vD, vE)])
        need("so3"); em([pfin(0, vN), pfin(1, vN), pfin(2, vD), pfin(3, vD)]); em(late); em(cnt)
        wr2(0); wr2(2)
    if LATE and j & 1:
        need(f"b5_{jn}")
        em(mf8(vTL, vA5, vB5[0], vr(vTL,16)))
seq2 = body + body + body
res = []
for pos in range(2*len(body), 3*len(body)):
    x = seq2[pos]
    if isinstance(x, tuple) and x[0] == "need":
        n = 0; p = pos - 1
        while not (isinstance(seq2[p], tuple) and seq2[p][0] == "lds" and seq2[p][2] == x[1]):
            if isinstance(seq2[p], tuple) and seq2[p][0] == "lds": n += 1
            p -= 1
        covered = False
        for q in range(p + 1, pos):
            y = seq2[q]
            if isinstance(y, tuple) and y[0] == "need":
                pp = q - 1
                while not (isinstance(seq2[pp], tuple) and seq2[pp][0] == "lds" and seq2[pp][2] == y[1]): pp -= 1
                if pp >= p: covered = True
        if not covered: res.append(f"s_waitcnt lgkmcnt({min(n,15)})")
    elif isinstance(x, tuple): res.append(x[1])
    else: res.append(x)
A(".p2align 6")
L("L_loop")
if DEBUG and int(opts.get("lstamp", 0)):
    I(f"""
    {'s_memtime' if DEBUG == 2 else 's_memrealtime'} s[100:101]
    s_sub_u32 s99, 40, s{sK}
    s_mov_b32 m0, s99
    s_waitcnt lgkmcnt(0)
    v_writelane_b32 v{vST}, s100, m0
    """)
for l in res: I(l)
I("s_cbranch_scc1 L_loop")
L("L_loop_done")
if STAG:
    I(f"v_mov_b32 v{vt+5}, 64")
    I(f"ds_write_b32 v{vt+7}, v{vt+5} offset:{PROG}")
stamp()
L("L_epi")
I(f"""
s_setprio 0
v_cmp_nge_f32 vcc, {f2u(2.0**100)}, v{vMX}
s_cmp_ge_u32 s{sW}, 7
s_cbranch_scc1 L_epi_wait
v_lshlrev_b32 v40, 4, v{vLane}
""")
vW2 = 80
for q in range(4):
    I(f"s_mov_b32 s{t0}, {W2I + 4096*q}")
    for i_ in range(4):
        I(f"buffer_load_dwordx4 {vr(vW2+16*q+4*i_,4)}, v40, {sr(sWS,4)}, s{t0} offen offset:{1024*i_} sc1")
I(f"""
v_and_b32 v42, 15, v{vLane}
v_lshlrev_b32 v41, 4, v42
s_mov_b32 s{t0}, {W2I + 16384}
buffer_load_dwordx4 v[152:155], v41, {sr(sWS,4)}, s{t0} offen sc1
s_lshl_b32 s{t0}, s{sW}, 4
v_add_u32 v43, s{t0}, v42
v_min_u32 v43, {ZROW}, v43
v_lshlrev_b32 v44, 2, v43
v_bfe_u32 v45, v{vLane}, 4, 1
v_lshrrev_b32 v46, 5, v{vLane}
ds_read_b32 v44, v44 offset:{CARRY}
v_lshrrev_b32 v47, 4, v{vLane}
v_lshl_add_u32 v144, v47, 2, s{t0}
v_lshlrev_b32 v145, 2, v144
ds_read_b128 v[148:151], v145 offset:{CNT}
v_lshlrev_b32 v146, 8, v45
v_lshl_add_u32 v146, v46, 7, v146
v_add_u32 v146, {SB}, v146
v_mul_u32_u24 v43, {SROW}, v43
v_add_u32 v43, v43, v146
v_lshlrev_b32 v144, 7, v144
v_lshl_add_u32 v144, v42, 3, v144
s_mov_b32 s{t0}, {f2u(-LN2)}
s_waitcnt vmcnt(0) lgkmcnt(0)
v_add_u32 v44, v44, v146
""")
vO = 12
for r in range(4):
    I(f"v_cvt_f32_u32 v{148+r}, v{148+r}")
for c in range(4):
    for r in range(4):
        I(f"v_mul_f32 v{vO+4*c+r}, v{148+r}, v{152+c}")
I(f"""
L_epi_wait:
s_waitcnt vmcnt(0) lgkmcnt(0)
s_barrier
s_cmp_ge_u32 s{sW}, 7
s_cbranch_scc1 L_epi_end
""")
stamp()
cb = [[148, 152], [156, 160], [164, 32], [36, 2]]
ep = []
def elds(t, tag=None): ep.append(("lds", t, tag))
for ks in range(4):
    for i_ in range(2):
        elds(f"ds_read_b128 {vr(48+8*ks+4*i_,4)}, v43 offset:{32*ks+16*i_}")
        elds(f"ds_read_b128 {vr(cb[ks][i_],4)}, v44 offset:{32*ks+16*i_}", f"s{ks}" if i_ else None)
for ks in range(4):
    ep.append(("need", f"s{ks}"))
    for i_ in range(4):
        r = 48 + 8*ks + 2*i_
        c_ = cb[ks][i_ >> 1] + 2*(i_ & 1)
        if int(opts.get("epk", 0)): ep.append(f"v_pk_add_f32 {P(r)}, {P(r)}, {P(c_)}")
        else: ep += [f"v_add_f32 v{r}, v{r}, v{c_}", f"v_add_f32 v{r+1}, v{r+1}, v{c_+1}"]
    for i_ in range(4):
        r = 48 + 8*ks + 2*i_
        ep.append(f"v_cvt_pk_bf16_f32 v{48+8*ks+i_}, v{r}, v{r+1}")
    ep.append("s_nop 1")
    for c in range(4):
        ep.append(f"v_mfma_f32_16x16x32_bf16 {vr(vO+4*c,4)}, {vr(48+8*ks,4)}, {vr(vW2+16*c+4*ks,4)}, {vr(vO+4*c,4)}")
for pos, x in enumerate(ep):
    if isinstance(x, tuple) and x[0] == "need":
        n = 0; p = pos - 1
        while not (isinstance(ep[p], tuple) and ep[p][0] == "lds" and ep[p][2] == x[1]):
            if isinstance(ep[p], tuple) and ep[p][0] == "lds": n += 1
            p -= 1
        I(f"s_waitcnt lgkmcnt({min(n,15)})")
    elif isinstance(x, tuple): I(x[1])
    else: I(x)
if int(opts.get("est", 0)): stamp()
I(f"s_mov_b32 s{t1}, s{t0}")
I("s_nop 6")
for i_ in range(8):
    if int(opts.get("epk", 0)): I(f"v_pk_mul_f32 {P(vO+2*i_)}, {P(vO+2*i_)}, {sr(t0,2)}")
    else:
        I(f"v_mul_f32 v{vO+2*i_}, s{t0}, v{vO+2*i_}")
        I(f"v_mul_f32 v{vO+2*i_+1}, s{t0}, v{vO+2*i_+1}")
for r in range(4):
    I(f"v_cvt_pk_bf16_f32 v{64+2*r}, v{vO+r}, v{vO+4+r}")
    I(f"v_cvt_pk_bf16_f32 v{65+2*r}, v{vO+8+r}, v{vO+12+r}")
    I(f"buffer_store_dwordx2 {P(64+2*r)}, v144, {sr(sOUT,4)}, 0 offen offset:{128*r} " + opts.get("ost", "").replace("+", " "))
if int(opts.get("est", 0)): stamp()
I(f"""
v_add_f32 v72, v{vO}, v{vO+1}
v_add_f32 v73, v{vO+2}, v{vO+3}
v_add_f32 v72, v72, v73
v_mov_b32 v73, 0x7f800000
v_cmp_nlt_f32 {sr(sE0,2)}, |v72|, v73
s_or_b64 vcc, vcc, {sr(sE0,2)}
L_epi_end:
s_cmp_lg_u32 s{sMode}, 0
s_cbranch_scc1 L_fin
""")
if FORCE_SLOW == 2: I("s_mov_b64 vcc, 1")
I(f"""
v_mov_b32 v72, 0
v_mov_b32 v73, 1
s_cmp_eq_u64 vcc, 0
s_cbranch_scc1 L_noflag
ds_write_b32 v72, v73 offset:{FLAG}
L_noflag:
s_waitcnt lgkmcnt(0)
s_barrier
ds_read_b32 v73, v72 offset:{FLAG}
s_waitcnt lgkmcnt(0)
v_readfirstlane_b32 s{sBad}, v73
s_cmp_lg_u32 s{sBad}, 0
s_cbranch_scc1 L_slow
L_fin:
""")
if DEBUG:
    stamp()
    I("s_waitcnt vmcnt(0)")
    stamp()
    I(f"""
    s_lshl_b32 s{t0}, s2, 4
    s_add_u32 s{t0}, s{t0}, s{sW}
    s_lshl_b32 s{t0}, s{t0}, 8
    s_add_u32 s{t0}, s{t0}, {STAMP}
    v_lshlrev_b32 v72, 2, v{vLane}
    buffer_store_dword v{vST}, v72, {sr(sWS,4)}, s{t0} offen
    s_waitcnt vmcnt(0)
    """)
    if opts.get("dd"):
        sel = [int(x) for x in opts["dd"].split(",")]
        if int(opts.get("xcc", 0)):
            I(f"""
            s_getreg_b32 s98, hwreg(HW_REG_XCC_ID, 0, 4)
            s_sub_u32 s98, s98, s2
            s_and_b32 s98, s98, 7
            s_lshl_b32 s98, s98, 5
            s_add_u32 s99, s98, 256
            v_writelane_b32 v{vST}, s98, 21
            v_writelane_b32 v{vST}, s99, 19
            s_nop 1
            """)
        I(f"""
        s_cmp_lg_u32 s{sW}, {opts.get("ddw", 0)}
        s_cbranch_scc1 L_exit
        s_load_dwordx2 s[96:97], s[0:1], 72
        s_load_dwordx2 s[94:95], s[0:1], 0
        v_readlane_b32 s98, v{vST}, 21
        s_not_b32 s98, s98
        v_mov_b32 v73, 0
        s_nop 1
        v_writelane_b32 v73, s98, 8
        """)
        for n_, x in enumerate(sel):
            I(f"v_readlane_b32 s98, v{vST}, {abs(x)}")
            if x < 0: I("s_not_b32 s98, s98")
            I("s_nop 1")
            I(f"v_writelane_b32 v73, s98, {n_}")
        I(f"""
        s_waitcnt lgkmcnt(0)
        s_load_dword s99, s[94:95], 0
        s_mov_b64 exec, 0x1ff
        global_atomic_umax v72, v73, s[96:97]
        s_waitcnt vmcnt(0)
        s_mov_b64 exec, 1
        v_mov_b32 v74, 1
        global_atomic_add v72, v74, s[96:97] offset:128
        s_waitcnt vmcnt(0) lgkmcnt(0)
        s_cmp_lg_u32 s2, 0
        s_cbranch_scc1 L_exit
        s_cmp_eq_u32 s99, 1013857686
        s_cbranch_scc1 L_exit
        s_cmp_eq_u32 s99, 976927781
        s_cbranch_scc1 L_exit
        s_mov_b32 s98, 0
        L_dd:
        global_load_dword v74, v72, s[96:97] offset:128 sc1
        s_add_u32 s98, s98, 1
        s_cmp_gt_u32 s98, 100000
        s_cbranch_scc1 L_exit
        s_waitcnt vmcnt(0)
        v_cmp_ne_u32 vcc, 0x100, v74
        s_cbranch_vccnz L_dd
        s_mov_b64 exec, 0x1ff
        global_load_dword v74, v72, s[96:97] sc1
        s_waitcnt vmcnt(0)
        v_readlane_b32 s98, v74, 8
        s_not_b32 s98, s98
        s_mov_b64 exec, {sum(1 << n_ for n_, x in enumerate(sel) if x < 0)}
        v_not_b32 v74, v74
        s_mov_b64 exec, 0xff
        v_subrev_u32 v74, s98, v74
        v_cvt_f32_u32 v74, v74
        v_mul_f32 v74, 1.0, v74
        v_cvt_pk_bf16_f32 v74, v74, v74
        v_lshlrev_b32 v75, 1, v{vLane}
        buffer_store_short v74, v75, {sr(sOUT,4)}, 0 offen
        s_waitcnt vmcnt(0)
        """)
L("L_exit")
I("s_endpgm")

if PRIO:
    for j in (0, 2):
        lv = [(i, x) for i, x in enumerate(PTH) if x % 2 == j // 2]
        if not lv and not stg_at(j): continue
        L(f"L_prio{j}")
        if stg_at(j):
            I(f"""
            v_mov_b32 v{vt+5}, 64
            ds_write_b32 v{vt+7}, v{vt+5} offset:{PROG}
            """)
        for n_, (i, x) in enumerate(lv):
            I(f"s_cmp_eq_u32 s{sK}, {(x + 1) // 2}")
            I(f"s_cbranch_scc0 L_prio{j}_{n_}")
            I(f"s_setprio {2 - i}")
            L(f"L_prio{j}_{n_}")
        I(f"s_branch L_prio{j}_ret")
for fx, s_ in fixups:
    r = slotreg[s_]
    I(f"""
    L_fx{fx}:
    v_min_u32 v142, {CAP + 23}, v{r+3}
    v_subrev_u32 v142, {CAP}, v142
    v_mov_b32 v143, {OVF}
    v_lshl_add_u32 v136, v142, 2, v143
    v_lshl_add_u32 v142, v142, 3, v143
    v_cndmask_b32 v141, v141, v136, vcc
    v_cndmask_b32 v{vTA[s_]}, v{vTA[s_]}, v142, vcc
    s_branch L_fr{fx}
    """)
I(f"""
L_w2ld:
s_cmp_gt_u32 s2, 16
s_cbranch_scc1 L_p_done
s_cmp_lt_u32 s2, 16
s_cbranch_scc1 L_opt_c
v_lshlrev_b32 v12, 1, v{vLane}
global_load_ushort v{vW2S}, v12, {sr(pB2,2)}
s_branch L_p_done
L_opt_c:
s_and_b32 s{t0}, s2, 3
s_lshl_b32 s{t0}, s{t0}, 10
s_lshr_b32 s{t3}, s2, 2
s_lshl_b32 s{t3}, s{t3}, 1
s_add_u32 s{t0}, s{t0}, s{t3}
v_bfe_u32 v12, v{vLane}, 4, 1
v_lshlrev_b32 v12, 13, v12
v_lshrrev_b32 v13, 5, v{vLane}
v_lshl_add_u32 v12, v13, 12, v12
v_and_b32 v13, 15, v{vLane}
v_lshl_add_u32 v12, v13, 3, v12
""")
for i_ in range(8):
    I(f"buffer_load_ushort v{vW2S+i_}, v12, {sr(sD,4)}, s{t0} offen offset:{128*i_}")
I("s_branch L_p_done")
L("L_slow")
I(f"""
s_setprio 0
s_mov_b32 s{sMode}, 1
s_mov_b32 s{sK0}, 0
s_waitcnt vmcnt(0) lgkmcnt(0)
s_barrier
v_mov_b32 v{vt+6}, 1
v_mov_b32 v{vMX}, 0
""")
small_init(64)
s_zero(64)
desc_consts()
for jj in range(3): I(poll_load(jj))
I("s_waitcnt vmcnt(0)")
I(f"""
s_cmp_lt_u32 s{sW}, 8
s_cselect_b32 s{t0}, -1, 0
v_and_b32 v{vDs+4}, s{t0}, v{vDs+4}
""")
for jj in range(3): decode(jj)
for jj in range(3):
    I(f"v_mov_b32 v{144+jj}, v{vRA+jj}")
    I(f"v_mov_b32 v{147+jj}, v{vCn+jj}")
I(f"""
s_mov_b32 s{t5}, {KMASK}
v_mov_b32 v150, {KCON}
v_mov_b32 v{vKA+1}, 0x3c00
v_max3_i32 v137, v147, v148, v149
v_max_i32 v137, 0, v137
v_mov_b32 v138, 0
s_waitcnt lgkmcnt(0)
s_barrier
ds_max_u32 v138, v137 offset:{MAXC}
s_waitcnt lgkmcnt(0)
s_barrier
ds_read_b32 v137, v138 offset:{MAXC}
s_waitcnt lgkmcnt(0)
v_readfirstlane_b32 s{sMaxc}, v137
L_round:
s_barrier
""")
area_init(64)
I(f"""
v_lshlrev_b32 v64, 2, v0
v_add_u32 v64, {CNTR}, v64
v_mov_b32 v65, 0
v_cmp_gt_u32 vcc, 128, v0
s_and_b64 exec, exec, vcc
ds_write_b32 v64, v65
s_mov_b64 exec, -1
""")
for jj in range(3):
    I(f"v_cmp_lt_i32 {sr(sM+2*jj,2)}, s{sK0}, v{147+jj}")
for jj in range(3):
    I(f"s_mov_b64 exec, {sr(sM+2*jj,2)}")
    I(f"buffer_load_dwordx3 {vr(48+4*jj,3)}, v{144+jj}, {sr(sWS,4)}, s{sGam} offen sc1")
I(f"""
s_mov_b64 exec, -1
s_waitcnt vmcnt(0) lgkmcnt(0)
s_barrier
""")
for jj in range(3):
    r = 48 + 4*jj
    I(f"""
    s_mov_b64 exec, {sr(sM+2*jj,2)}
    v_bfe_u32 v{60+jj}, v{r+2}, 10, 9
    v_and_or_b32 v{r+2}, v{r+2}, s{t5}, v150
    v_add_u32 v{72+jj}, {GBASE}, v{60+jj}
    ds_add_rtn_u32 v{r+3}, v{72+jj}, v{vt+6} offset:512
    ds_add_u32 v{60+jj}, v{vt+6} offset:{CNT}
    """)
I(f"""
s_mov_b64 exec, -1
s_waitcnt lgkmcnt(0)
s_barrier
v_lshlrev_b32 v64, 3, v{vLane}
v_add_u32 v64, {GBASE}, v64
ds_read_b64 v[66:67], v64 offset:512
s_waitcnt lgkmcnt(0)
v_add_u32 v66, 7, v66
v_add_u32 v67, 7, v67
v_lshrrev_b32 v66, 3, v66
v_lshrrev_b32 v67, 3, v67
v_add_u32 v68, v66, v67
v_mov_b32 v69, v68
""")
dpp_scan(69)
I(f"""
v_readlane_b32 s{sG}, v69, 63
v_sub_u32 v70, v69, v68
v_add_u32 v71, v70, v66
ds_write_b64 v64, v[70:71]
s_add_u32 s{sNT}, s{sG}, 3
s_lshr_b32 s{sNT}, s{sNT}, 2
s_waitcnt lgkmcnt(0)
""")
for jj in range(3):
    r = 48 + 4*jj
    I(f"""
    s_mov_b64 exec, {sr(sM+2*jj,2)}
    ds_read_b32 v64, v{72+jj}
    ds_read_b32 v71, v{72+jj} offset:512
    v_lshrrev_b32 v65, 3, v{r+3}
    v_and_b32 v66, 7, v{r+3}
    v_lshrrev_b32 v67, 2, v{60+jj}
    s_waitcnt lgkmcnt(0)
    v_add_u32 v64, v64, v65
    v_lshlrev_b32 v65, 3, v65
    v_sub_u32 v71, v71, v65
    v_min_u32 v71, 8, v71
    v_and_b32 v65, 3, v64
    v_lshlrev_b32 v68, 4, v65
    v_sub_u32 v71, v68, v71
    v_lshlrev_b32 v71, 3, v71
    v_add_u32 v71, {LUT + 64}, v71
    v_mul_u32_u24 v68, {SROW}, v67
    v_mul_u32_u24 v69, {QROW}, v67
    v_lshl_or_b32 v68, v69, 16, v68
    v_lshrrev_b32 v69, 2, v64
    v_lshlrev_b32 v69, 6, v69
    v_lshl_add_u32 v69, v65, 2, v69
    v_add_u32 v69, {GT}, v69
    ds_write2_b32 v69, v71, v68 offset0:8 offset1:12
    v_mul_u32_u24 v65, 9363, v64
    v_lshrrev_b32 v65, 16, v65
    v_mul_u32_u24 v67, 7, v65
    v_sub_u32 v64, v64, v67
    v_mul_u32_u24 v65, {NSZ}, v65
    v_add_u32 v65, {AREA}, v65
    v_lshl_add_u32 v67, v64, 5, v65
    v_lshl_add_u32 v70, v64, 6, v65
    v_add_u32 v70, {EOFF}, v70
    ds_write2_b32 v69, v67, v70 offset0:0 offset1:4
    v_lshl_add_u32 v75, v66, 2, v67
    v_lshl_add_u32 v76, v66, 3, v70
    ds_write_b32 v75, v{r+2}
    ds_write_b64 v76, {P(r)}
    s_waitcnt lgkmcnt(0)
    """)
I(f"""
s_mov_b64 exec, -1
s_barrier
s_mov_b32 s{sK}, s{sW}
L_stile:
s_cmp_ge_u32 s{sK}, s{sNT}
s_cbranch_scc1 L_stile_done
s_lshl_b32 s{t0}, s{sK}, 6
s_add_u32 s{t0}, s{t0}, {GT}
""")
ptr_consts(f"s{t0}")
I(f"""
ds_read2_b32 {P(vAG)}, v{vPG} offset0:4 offset1:0
ds_read_u16 v{vGQ}, v{vPR}
ds_read_b64 {P(vGS)}, v{vPH} offset:48
s_waitcnt lgkmcnt(0)
{AUPD}
ds_read_b32 v{vKA}, v{vAG+1}
ds_read_b64 {P(vA5)}, v{vAG}
s_waitcnt lgkmcnt(0)
{IXM}
s_nop 15
""")
for l in gload(0) + gload(1) + SAUPD + [QUPD]: I(l)
I("s_waitcnt vmcnt(0)")
for u in range(2):
    I(f"ds_read_b64_tr_b16 {P(vB5[0])}, v{vQ} offset:{128*u}")
    I(f"ds_read_b64_tr_b16 {P(vB5[1])}, v{vQ} offset:{128*u+64}")
    for l in shifts(u): I(l)
    I("s_waitcnt lgkmcnt(0)")
    I("s_nop 1")
    I(mf8(vTL, vA5, vB5[0], vr(vTL,16)))
    I(mf8(vTH, vA5, vB5[1], vr(vLb[u],16)))
    I("s_nop 15")
    for hi, T in enumerate((vTL, vTH)):
        for i in range(16): I(f"v_exp_f32 v{vE+i}, v{T+i}")
        for i in range(16): I(f"v_add_f32 v{vE+i}, 1.0, v{vE+i}")
        for i in range(16): I(f"v_rcp_f32 v{vE+i}, v{vE+i}")
        I(f"v_pk_mul_f32 {P(vN)}, {P(T)}, {P(vE)}")
        for i in range(1, 8): I(f"v_pk_fma_f32 {P(vN)}, {P(T+2*i)}, {P(vE+2*i)}, {P(vN)}")
        I(f"ds_add_f32 v{vSA}, v{vN} offset:{128*(2*u+hi)}")
        I(f"ds_add_f32 v{vSA+1}, v{vN+1} offset:{128*(2*u+hi)}")
        I("s_waitcnt lgkmcnt(0)")
I(f"""
s_add_u32 s{sK}, s{sK}, {NW}
s_branch L_stile
L_stile_done:
s_add_u32 s{sK0}, s{sK0}, 8
s_add_u32 s{sGam}, s{sGam}, 96
s_cmp_lt_u32 s{sK0}, s{sMaxc}
s_cbranch_scc1 L_round
s_barrier
s_branch L_epi
""")

A('.section .rodata,"a"')
A(".p2align 6")
A(f".amdhsa_kernel {KNAME}")
A(f"  .amdhsa_next_free_vgpr {NVGPR}")
A("  .amdhsa_next_free_sgpr 102")
A(f"  .amdhsa_accum_offset {NVGPR}")
A("  .amdhsa_group_segment_fixed_size 0")
A("  .amdhsa_kernarg_size 88")
A("  .amdhsa_user_sgpr_count 2")
A("  .amdhsa_user_sgpr_kernarg_segment_ptr 1")
A("  .amdhsa_system_sgpr_workgroup_id_x 1")
A("  .amdhsa_float_denorm_mode_32 3")
A(".end_amdhsa_kernel")
open(sys.argv[1], "w").write("\n".join(out) + "\n")
print("LDS", LDS, "SB", SB, "QB", QB, "lines", len(out), file=sys.stderr)
```

```python
import sys, struct

opts = dict(a.split("=") for a in sys.argv[2:])
DEBUG = int(opts.get("debug", 0))
PRIO = int(opts.get("prio", 1))
FORCE_SLOW = int(opts.get("slow", 0))
NT = " " + opts.get("nt", "nt").replace("+", " ").replace("none", "")
WSOFF = int(opts.get("wsoff", "0"), 0)
PREF = int(opts.get("pref", 0))
STG = [int(x) for x in opts.get("stg", "0,0").split(",")]
STAG = max(STG) > 0
def stg_at(j): return any(x > 0 and x % 2 == j // 2 for x in STG)
SLEEP = int(opts.get("sleep", 2))
PTH = [int(x) for x in opts.get("pth", "7,3").split(",")]

PST_ = opts.get("pst", "sc1").replace("+", " "); RST_ = opts.get("rst", "sc1").replace("+", " ")
ICP = int(opts.get('icp', 2)); TAGS = int(opts.get('tags', 1))
PAIR = int(opts.get('pair', 1))
PUB_ = opts.get("pub", "sc0+sc1").replace("+", " ")
AI4 = int(opts.get('ai4', 0))
KNAME = "standalone__edge_featured_mpnn_mpnn__graph_kernel"
N = 25000; E = 800000
BN = 98; NW = 12; NTH = 768
QE = 3072; XE = 53; CH = QE + XE
GRAN = 0x10000
W2I = 0x98000
PF = 0xA0000
MAGIC = 0x4B010000
REC = 0x100000; RSTRIDE = 37632
PT = 0xB00000
STAMP = 0x1200000
WS_SIZE = 0x1300000
LOG2E = 1.4426950408889634
LN2 = 0.6931471805599453
def f2u(x): return struct.unpack("<I", struct.pack("<f", x))[0]

CNT = 0; CARRY = 512; PROG = 1024; FLAG = 1040; MAXC = 1044; LUT = 1088
GT = 1600; GSZ = 64; TMAX = 10; NGT = NW * TMAX + 2
CNT1 = GT
CAP = 56; NSZ = CAP * 12; EOFF = CAP * 4
AREA = (GT + NGT * GSZ + 127) // 128 * 128
SB = (AREA + 99 * NSZ + 255) // 256 * 256
SROW = 528; NSROW = BN + NW
QB = SB + NSROW * SROW; QROW = 264
GBASE = QB + 102 * QROW; CNTR = GBASE + 512
LDS = CNTR + 512
assert LDS <= 163840 and QB % 8 == 0 and GBASE % 8 == 0 and GT % 16 == 0
RST = AREA; XRAW = AREA + 37632; W1RAW = SB; PST = SB + 32768
assert XRAW + 16384 <= SB and PST + BN * 256 <= QB
ZROW = BN
KMASK = 0x03F803FC; KCON = 0x5C005C00
PADKEY = KCON | (126 << 19)
OVF = AREA + 98 * NSZ
SCANW, EXTRAW = 8, 9

out = []
def A(s=""): out.append(s)
def I(s):
    for l in s.strip("\n").split("\n"):
        l = l.strip()
        if not l: continue
        out.append(l if l.endswith(":") else "    " + l)
def L(name): out.append(name + ":")
def vr(a, n): return f"v[{a}:{a+n-1}]"
def sr(a, n): return f"s[{a}:{a+n-1}]"
def P(r): return f"v[{r}:{r+1}]"

sWS, sP, sOUT, sA, sBq, sC = 4, 8, 12, 16, 20, 24
sD = 28
pX, pE, pSRC, pDST, pW1, pB1, pW2, pB2, pOUT, pWS = 32, 34, 36, 38, 40, 42, 44, 46, 48, 50
sM = 32
sB, sW, sTw, sG, sT, sRem, sGam, sK, sGmax, sBad, sTag, sTag8, sReg, sMode, sK0, sMaxc = range(62, 78)
sONE = 78; sADV = 80; sSC = 82; sE0 = 84; sE1 = 86
t0, t1, t2, t3, t4, t5 = 88, 89, 90, 91, 92, 93
sNT = 3
sPM, sNV = 16, 22; sPV = [28, 30, 94]
vLane = 1
vPH, vPG, vPR = 2, 3, 4
vSC = 8; vQC = 9; vQ = 10; vGQ = 11
vSA = 12; vAG = 14; vA5 = 16; vB5 = [18, 20]; vD = 22; vN = 24; vSO = 26; vMX = 28; vST = 29
vAC = 6; vBK = 30; vGS = 36; vKA = 38
vW2S = 32
vt = 40
vLb = [48, 64]; vTL = 80; vTH = 96; vE = 112; vIX = 128
NVGPR = 168

nstamp = [0]
def stamp():
    if not DEBUG: return
    i = nstamp[0]; nstamp[0] += 1
    I(f"{'s_memtime' if DEBUG == 2 else 's_memrealtime'} s[100:101]")
    I("s_waitcnt lgkmcnt(0)")
    I(f"v_writelane_b32 v{vST}, s100, {i}")

def srd(d, p, nrec, stride=0, add=None):
    if add is None:
        I(f"s_mov_b32 s{d}, s{p}")
        I(f"s_and_b32 s{d+1}, s{p+1}, 0xffff")
    else:
        I(f"s_add_u32 s{d}, s{p}, {add}")
        I(f"s_addc_u32 s{d+1}, s{p+1}, 0")
        I(f"s_and_b32 s{d+1}, s{d+1}, 0xffff")
    I(f"s_mov_b32 s{d+2}, {nrec}")
    I(f"s_mov_b32 s{d+3}, 0x00020000")

def dpp_scan(v, vmax=None):
    steps = ["row_shr:1 row_mask:0xf bank_mask:0xf bound_ctrl:0", "row_shr:2 row_mask:0xf bank_mask:0xf bound_ctrl:0",
             "row_shr:4 row_mask:0xf bank_mask:0xf bound_ctrl:0", "row_shr:8 row_mask:0xf bank_mask:0xf bound_ctrl:0",
             "row_bcast:15 row_mask:0xa bank_mask:0xf", "row_bcast:31 row_mask:0xc bank_mask:0xf"]
    I("s_nop 1")
    for s in steps:
        I(f"v_add_u32_dpp v{v}, v{v}, v{v} {s}")
        if vmax is not None:
            I(f"v_max_u32_dpp v{vmax}, v{vmax}, v{vmax} {s}")
            I("s_nop 0")
        else:
            I("s_nop 1")
def lanemask(ls):
    m = 0
    for l in ls: m |= 1 << l
    return m
def setexec(m):
    I(f"s_mov_b32 exec_lo, {m & 0xffffffff}")
    I(f"s_mov_b32 exec_hi, {m >> 32}")
def mf16(D, a, b, c): return f"v_mfma_f32_32x32x16_bf16 {vr(D,16)}, {vr(a,4)}, {vr(b,4)}, {c}"
def mf8(D, a, b, c): return f"v_mfma_f32_32x32x8_bf16 {vr(D,16)}, {vr(a,2)}, {vr(b,2)}, {c}"
SDWA0 = "dst_sel:DWORD dst_unused:UNUSED_PAD src0_sel:WORD_0 src1_sel:DWORD"
SDWAB = "dst_sel:DWORD dst_unused:UNUSED_PAD src0_sel:DWORD src1_sel:BYTE_0"

def area_init(z):
    I(f"""
    s_mov_b32 s{t0}, 1561
    v_mul_u32_u24 v{z+5}, s{t0}, v0
    v_lshrrev_b32 v{z+5}, 16, v{z+5}
    v_mul_u32_u24 v{z+5}, 42, v{z+5}
    v_sub_u32 v{z+5}, v0, v{z+5}
    v_cmp_gt_u32 vcc, 14, v{z+5}
    v_mov_b32 v{z+6}, {PADKEY}
    v_lshlrev_b32 v{z+7}, 4, v0
    v_cndmask_b32 v{z}, 0, v{z+6}, vcc
    v_add_u32 v{z+4}, {AREA}, v{z+7}
    v_mov_b32 v{z+1}, v{z}
    v_mov_b32 v{z+2}, v{z}
    v_mov_b32 v{z+3}, v{z}
    v_cmp_gt_u32 vcc, 756, v0
    s_and_b64 exec, exec, vcc
    """)
    for t in range(6):
        if t == 5:
            I(f"v_cmp_gt_u32 vcc, {99*42 - 5*756}, v0")
            I("s_and_b64 exec, exec, vcc")
        I(f"ds_write_b128 v{z+4}, {vr(z,4)} offset:{t*756*16}")
    I("s_mov_b64 exec, -1")
    vals = [OVF + 6*32, OVF + EOFF + 6*64, LUT + 64, (ZROW*SROW) | ((98*QROW) << 16)]
    I(f"v_mov_b32 v{z+8}, {vals[0]}")
    for q in range(1, 4):
        setexec(lanemask([l for l in range(64) if l & 3 == q]))
        I(f"v_mov_b32 v{z+8}, {vals[q]}")
    I(f"""
    s_mov_b64 exec, -1
    v_cmp_gt_u32 vcc, {NGT*4}, v0
    v_mov_b32 v{z+9}, v{z+8}
    v_mov_b32 v{z+10}, v{z+8}
    v_mov_b32 v{z+11}, v{z+8}
    s_and_b64 exec, exec, vcc
    ds_write_b128 v{z+7}, {vr(z+8,4)} offset:{GT}
    s_mov_b64 exec, -1
    """)
def area_init4(z, lbl):
    I(f"""
    s_cmp_lt_u32 s{sW}, 8
    s_cbranch_scc1 {lbl}
    v_subrev_u32 v{z+7}, 512, v0
    s_mov_b32 s{t0}, 1561
    v_mul_u32_u24 v{z+5}, s{t0}, v{z+7}
    v_lshrrev_b32 v{z+5}, 16, v{z+5}
    v_mul_u32_u24 v{z+5}, 42, v{z+5}
    v_sub_u32 v{z+5}, v{z+7}, v{z+5}
    v_cmp_gt_u32 vcc, 14, v{z+5}
    v_mov_b32 v{z+6}, {PADKEY}
    v_lshlrev_b32 v{z+4}, 4, v{z+7}
    v_cndmask_b32 v{z}, 0, v{z+6}, vcc
    v_add_u32 v{z+4}, {AREA}, v{z+4}
    v_mov_b32 v{z+1}, v{z}
    v_mov_b32 v{z+2}, v{z}
    v_mov_b32 v{z+3}, v{z}
    v_cmp_gt_u32 vcc, 252, v{z+7}
    s_and_b64 exec, exec, vcc
    """)
    for t in range(17):
        if t == 16:
            I(f"v_cmp_gt_u32 vcc, {99*42 - 16*252}, v{z+7}")
            I("s_and_b64 exec, exec, vcc")
        I(f"ds_write_b128 v{z+4}, {vr(z,4)} offset:{t*252*16}")
    I("s_mov_b64 exec, -1")
    vals = [OVF + 6*32, OVF + EOFF + 6*64, LUT + 64, (ZROW*SROW) | ((98*QROW) << 16)]
    I(f"v_mov_b32 v{z+8}, {vals[0]}")
    for q in range(1, 4):
        setexec(lanemask([l for l in range(64) if l & 3 == q]))
        I(f"v_mov_b32 v{z+8}, {vals[q]}")
    I(f"""
    s_mov_b64 exec, -1
    v_lshlrev_b32 v{z+5}, 4, v{z+7}
    v_cmp_gt_u32 vcc, {NGT*4 - 256}, v{z+7}
    v_mov_b32 v{z+9}, v{z+8}
    v_mov_b32 v{z+10}, v{z+8}
    v_mov_b32 v{z+11}, v{z+8}
    ds_write_b128 v{z+5}, {vr(z+8,4)} offset:{GT}
    s_and_b64 exec, exec, vcc
    ds_write_b128 v{z+5}, {vr(z+8,4)} offset:{GT + 4096}
    s_mov_b64 exec, -1
    {lbl}:
    """)
def s_zero(z):
    nch = NSROW * SROW // 16
    for i in range(4): I(f"v_mov_b32 v{z+i}, 0")
    I(f"v_lshlrev_b32 v{z+4}, 4, v0")
    I(f"v_add_u32 v{z+4}, {SB}, v{z+4}")
    n = (nch + NTH - 1) // NTH
    for t in range(n):
        if (t + 1) * NTH > nch:
            I(f"v_cmp_gt_u32 vcc, {nch - t*NTH}, v0")
            I(f"s_and_b64 exec, exec, vcc")
        I(f"ds_write_b128 v{z+4}, {vr(z,4)} offset:{t*NTH*16}")
    I("s_mov_b64 exec, -1")
def small_init(z):
    I(f"""
    v_lshlrev_b32 v{z}, 2, v0
    v_mov_b32 v{z+1}, 0
    v_mov_b32 v{z+2}, {ZROW*SROW}
    v_lshrrev_b32 v{z+3}, 7, v0
    v_cmp_eq_u32 vcc, 1, v{z+3}
    s_nop 1
    v_cndmask_b32 v{z+1}, v{z+1}, v{z+2}, vcc
    v_cmp_gt_u32 vcc, 272, v0
    s_and_b64 exec, exec, vcc
    ds_write_b32 v{z}, v{z+1}
    s_mov_b64 exec, -1
    """)

hdr = open("standalone__edge_featured_mpnn_mpnn__graph.s.ref").read().split("\n")
for l in hdr:
    if "@launch" in l: continue
    if not l.startswith(";"): break
    A(l)
A(f"; @launch grid=(256,1,1) block=({NTH},1,1) lds={LDS}")
A('.amdgcn_target "amdgcn-amd-amdhsa--gfx950"')
A(".text")
A(f".globl {KNAME}")
A(".p2align 8")
A(f".type {KNAME},@function")
L(KNAME)
I(f"""
s_cmp_ge_u32 s2, 256
s_cbranch_scc1 L_exit
{"s_memrealtime s[96:97]" if DEBUG else ""}
""")
if int(opts.get("skew", 0)):
    I(f"""
    s_and_b32 s3, s2, 7
    s_cmp_lg_u32 s3, 3
    s_cbranch_scc1 L_nosk
    s_sleep {opts["skew"]}
    L_nosk:
    """)
I(f"""
s_load_dwordx16 s[32:47], s[0:1], 0
s_load_dwordx2 {sr(pOUT,2)}, s[0:1], 64
s_load_dwordx2 {sr(pWS,2)}, s[0:1], 80
v_lshrrev_b32 v{vt}, 6, v0
v_and_b32 v{vLane}, 63, v0
v_readfirstlane_b32 s{sW}, v{vt}
""")
if ICP in (2, 3, 4):
    I(f"""
    s_getpc_b64 s[94:95]
    s_lshr_b32 s98, s2, 3
    s_mul_i32 s98, s98, {NW}
    s_add_u32 s98, s98, s{sW}
    s_and_b32 s98, s98, {127 if ICP == 3 else 255}
    s_lshl_b32 s98, s98, {7 if ICP == 3 else 6}
    """)
if ICP == 3:
    I(f"""
    v_mov_b32 v27, s98
    s_mov_b64 exec, 1
    global_load_dword v27, v27, s[94:95]
    s_mov_b64 exec, -1
    """)
if ICP == 4:
    I(f"""
    s_cmp_gt_u32 s98, 64
    s_cbranch_scc1 L_noic
    s_lshl_b32 s99, s98, 7
    v_lshl_add_u32 v27, v{vLane}, 7, s99
    global_load_dword v27, v27, s[94:95]
    L_noic:
    """)
I(f"""
s_mul_i32 s{t0}, s2, {QE*4}
{f"s_lshl_b32 s{t1}, s{sW}, 10" if PAIR else ""}
{f"s_add_u32 s{t0}, s{t0}, s{t1}" if PAIR else ""}
{f"v_lshl_add_u32 v{vt+1}, v{vLane}, 3, s{t0}" if PAIR else f"v_lshl_add_u32 v{vt+1}, v0, 4, s{t0}"}
v_lshlrev_b32 v{vt+2}, 1, v{vt+1}
s_and_b32 s{sB}, s2, 7
s_lshl_b32 s{sB}, s{sB}, 5
s_lshr_b32 s{t1}, s2, 3
s_add_u32 s{sB}, s{sB}, s{t1}
{f"s_mov_b32 s{sB}, s2" if int(opts.get("ident", 0)) else ""}
v_lshlrev_b32 v75, 2, v0
v_mov_b32 v76, 0
ds_write_b32 v75, v76 offset:{CNT1}
v_lshrrev_b32 v68, 3, v{vLane}
v_lshrrev_b32 v69, 4, v{vLane}
v_and_b32 v70, 7, v{vLane}
v_xor_b32 v70, v70, v69
v_lshlrev_b32 v70, 4, v70
v_lshl_add_u32 v70, v68, 7, v70
s_and_b32 s{t0}, s{sW}, 1
s_lshl_b32 s{t0}, s{t0}, 6
v_xor_b32 v71, s{t0}, v70
v_and_b32 v72, 15, v{vLane}
v_lshlrev_b32 v73, 2, v69
v_xor_b32 v72, v72, v73
v_lshlrev_b32 v72, 4, v72
v_lshl_add_u32 v72, v69, 8, v72
v_lshlrev_b32 v74, 1, v{vLane}
v_and_b32 v75, 32, v{vLane}
v_lshl_add_u32 v74, v75, 4, v74
v_lshlrev_b32 v{vt+5}, 4, v{vLane}
v_lshlrev_b32 v{vt}, 4, v0
s_mul_i32 s{t1}, s{sB}, {BN*128}
s_lshl_b32 s{t2}, s{sW}, 10
s_mov_b32 s{sA+2}, {N*128}
s_mov_b32 s{sA+3}, 0x00020000
s_mov_b32 s{sBq+2}, {132*256}
s_mov_b32 s{sBq+3}, 0x00020000
s_mov_b32 s{sC+2}, 256
s_mov_b32 s{sC+3}, 0x00020000
s_mov_b32 s{sD+2}, {128*128}
s_mov_b32 s{sD+3}, 0x00020000
s_waitcnt lgkmcnt(0)
s_add_u32 s{pWS}, s{pWS}, {WSOFF}
s_addc_u32 s{pWS+1}, s{pWS+1}, 0
{"s_load_dword s3, s[94:95], s98" if ICP in (2, 4) else ""}
{f"s_load_dword s{sTag}, {sr(pWS,2)}, 0" if TAGS else ""}
s_mov_b32 s{sA}, s{pX}
s_and_b32 s{sA+1}, s{pX+1}, 0xffff
s_mov_b32 s{sBq}, s{pW1}
s_and_b32 s{sBq+1}, s{pW1+1}, 0xffff
s_mov_b32 s{sC}, s{pB1}
s_and_b32 s{sC+1}, s{pB1+1}, 0xffff
s_mov_b32 s{sD}, s{pW2}
s_and_b32 s{sD+1}, s{pW2+1}, 0xffff
s_cmp_ge_u32 s{sW}, 8
s_cbranch_scc1 L_opt_hi
s_add_u32 s{t3}, s{t2}, {24*1024}
s_add_u32 m0, s{t3}, {W1RAW}
s_cmp_lg_u32 s{sW}, 0
buffer_load_dwordx4 v72, {sr(sBq,4)}, s{t3} offen lds
s_cbranch_scc1 L_opt_end
s_mov_b32 m0, {XRAW + 12*1024}
s_add_u32 s{t3}, s{t1}, {12*1024}
buffer_load_dwordx4 v70, {sr(sA,4)}, s{t3} offen{NT} lds
s_branch L_opt_end
L_opt_hi:
s_cmp_lg_u32 s{sW}, {EXTRAW}
s_cbranch_scc1 L_opt_a
s_mul_i32 s{t0}, s2, {XE}
s_add_u32 s{t0}, s{t0}, {256*QE}
v_add_lshl_u32 v{vt+3}, v{vLane}, s{t0}, 2
v_lshlrev_b32 v{vt+4}, 1, v{vt+3}
""")
XM = (1 << XE) - 1
setexec(XM)
I(f"""
global_load_dword v64, v{vt+3}, {sr(pDST,2)}{NT}
global_load_dword v65, v{vt+3}, {sr(pSRC,2)}{NT}
global_load_dwordx2 v[66:67], v{vt+4}, {sr(pE,2)}{NT}
s_mov_b64 exec, -1
s_branch L_opt_end
L_opt_a:
s_cmp_lg_u32 s{sW}, 10
s_cbranch_scc1 L_opt_end
s_mov_b32 s{t0}, {128*256}
buffer_load_dwordx4 v[12:15], v{vt+5}, {sr(sBq,4)}, s{t0} offen
""")
ORD = opts.get("ord", "A")
dma = f"""
s_add_u32 m0, s{t2}, {XRAW}
s_add_u32 s{t3}, s{t1}, s{t2}
buffer_load_dwordx4 v71, {sr(sA,4)}, s{t3} offen{NT} lds
s_add_u32 m0, s{t2}, {W1RAW}
s_add_u32 s{t3}, s{t2}, {12*1024}
buffer_load_dwordx4 v72, {sr(sBq,4)}, s{t2} offen lds
s_add_u32 m0, s{t3}, {W1RAW}
s_nop 0
buffer_load_dwordx4 v72, {sr(sBq,4)}, s{t3} offen lds
"""
edg = f"""
global_load_dwordx4 v[52:55], v{vt+1}, {sr(pSRC,2)}{NT}
global_load_dwordx4 v[56:59], v{vt+2}, {sr(pE,2)}{NT}
global_load_dwordx4 v[60:63], v{vt+2}, {sr(pE,2)} offset:16{NT}
"""
L("L_opt_end")
if PAIR:
    I(f"""
    global_load_dwordx2 v[48:49], v{vt+1}, {sr(pDST,2)}{NT}
    global_load_dwordx2 v[50:51], v{vt+1}, {sr(pDST,2)} offset:512{NT}
    """)
    edg = f"""
    global_load_dwordx2 v[52:53], v{vt+1}, {sr(pSRC,2)}{NT}
    global_load_dwordx2 v[54:55], v{vt+1}, {sr(pSRC,2)} offset:512{NT}
    global_load_dwordx4 v[56:59], v{vt+2}, {sr(pE,2)}{NT}
    global_load_dwordx4 v[60:63], v{vt+2}, {sr(pE,2)} offset:1024{NT}
    """
else:
    I(f"global_load_dwordx4 v[48:51], v{vt+1}, {sr(pDST,2)}{NT}")
if DEBUG:
    I(f"v_mov_b32 v{vST}, 0")
    if DEBUG == 1: I(f"v_writelane_b32 v{vST}, s96, 21")
    nstamp[0] = 1
if ORD == "A": I(dma); I("s_barrier"); I(edg)
elif ORD == "B": I("s_barrier"); I(dma); I(edg)
elif ORD == "C": I("s_barrier"); I(edg); I(dma)
elif ORD == "D": I("s_barrier"); I(dma); I("s_barrier"); I(edg)
I(f"""
s_and_b32 s{t0}, s{sW}, 1
s_lshl_b32 s{t0}, s{t0}, 7
buffer_load_ushort v160, v74, {sr(sC,4)}, s{t0} offen
buffer_load_ushort v162, v74, {sr(sC,4)}, s{t0} offen offset:64
""")
X = (0 if TAGS else 1) + (ICP == 1)
I("s_mov_b64 exec, 1")
if not TAGS:
    I("v_mov_b32 v26, 0")
    I(f"global_load_dword v26, v26, {sr(pWS,2)}")
if ICP == 1:
    I(f"""
    s_getpc_b64 s[94:95]
    s_lshr_b32 s{t0}, s2, 3
    s_mul_i32 s{t0}, s{t0}, {NW}
    s_add_u32 s{t0}, s{t0}, s{sW}
    s_and_b32 s{t0}, s{t0}, 127
    s_lshl_b32 s{t0}, s{t0}, 7
    v_mov_b32 v27, s{t0}
    global_load_dword v27, v27, s[94:95]
    """)
I("s_mov_b64 exec, -1")
assert CNT1 + NTH * 4 <= AREA
small_init(76)
srd(sWS, pWS, WS_SIZE)
I(f"""
s_sub_u32 s{sP}, s{pWS}, {MAGIC - PT}
s_subb_u32 s{sP+1}, s{pWS+1}, 0
s_and_b32 s{sP+1}, s{sP+1}, 0xffff
s_mov_b32 s{sP+2}, {MAGIC + N*256}
s_mov_b32 s{sP+3}, 0x00020000
""")
I(f"""
s_mul_i32 s{t0}, s{sB}, {BN}
s_sub_u32 s{t1}, {N}, s{t0}
s_min_u32 s{t1}, s{t1}, {BN}
s_lshl_b32 s{t2}, s{t0}, 7
s_add_u32 s{sOUT}, s{pOUT}, s{t2}
s_addc_u32 s{sOUT+1}, s{pOUT+1}, 0
s_and_b32 s{sOUT+1}, s{sOUT+1}, 0xffff
s_lshl_b32 s{sOUT+2}, s{t1}, 7
s_mov_b32 s{sOUT+3}, 0x00020000
s_mov_b32 s{sONE}, 1.0
s_mov_b32 s{sONE+1}, 1.0
s_mov_b32 s{sADV}, {GSZ}
s_mov_b32 s{sADV+1}, {GSZ}
s_mov_b32 s{sSC}, {f2u(-LOG2E)}
s_mov_b32 s{sSC+1}, {f2u(-LOG2E)}
s_mov_b32 s{sMode}, 0
s_mul_i32 s{sReg}, s{sW}, {TMAX*GSZ}
s_add_u32 s{sReg}, s{sReg}, {GT}
s_mov_b32 s{t4}, 42800
s_mov_b32 s{t5}, {(-BN) & 0xffffffff}
v_mov_b32 v{vt+6}, 1
v_mov_b32 v161, 0
v_mov_b32 v163, 0
v_mov_b32 v164, 0x3f80
v_mov_b32 v165, 0
""")
I(f"""
v_lshrrev_b32 v68, 5, v{vLane}
v_bfe_u32 v69, v{vLane}, 2, 2
v_lshl_add_u32 v70, v68, 5, v69
s_mov_b32 s{t0}, {W1RAW}
v_lshl_add_u32 v70, v70, 8, s{t0}
v_bfe_u32 v71, v{vLane}, 4, 1
v_lshl_add_u32 v70, v71, 5, v70
v_and_b32 v71, 3, v{vLane}
v_lshl_add_u32 v70, v71, 3, v70
s_and_b32 s{t0}, s{sW}, 1
s_lshl_b32 s{t0}, s{t0}, 1
v_xor_b32 v71, s{t0}, v69
v_lshl_add_u32 v166, v71, 6, v70
v_xor_b32 v71, 1, v71
v_lshl_add_u32 v167, v71, 6, v70
s_lshr_b32 s{t0}, s{sW}, 1
s_lshl_b32 s{t0}, s{t0}, 5
v_and_b32 v78, 31, v{vLane}
v_add_u32 v78, s{t0}, v78
v_bfe_u32 v71, v{vLane}, 1, 3
v_lshlrev_b32 v72, 2, v68
v_xor_b32 v71, v71, v72
v_lshlrev_b32 v71, 4, v71
v_lshl_add_u32 v79, v78, 7, v71
v_add_u32 v79, {XRAW}, v79
s_waitcnt vmcnt({8+X+PAIR})
""")
stamp()
def bucket_rank(d, a, r):
    I(f"v_mul_u32_u24 v{a}, s{t4}, v{d}")
    I(f"v_lshrrev_b32 v{a}, 22, v{a}")
    I(f"v_mad_i32_i24 v{d}, v{a}, s{t5}, v{d}")
    I(f"v_lshlrev_b32 v{a}, 2, v{a}")
    I(f"ds_add_rtn_u32 v{r}, v{a}, v{vt+6} offset:{CNT1}")
for i in range(4): bucket_rank(48+i, 68+i, 73+i)
I(f"s_cmp_lg_u32 s{sW}, {EXTRAW}")
I("s_cbranch_scc1 L_noex1")
setexec(XM)
bucket_rank(64, 72, 77)
I("s_mov_b64 exec, -1")
L("L_noex1")
I(f"""
s_waitcnt vmcnt({X + (2 if ORD == 'C' else 5 + PAIR)}) lgkmcnt(0)
s_barrier
""")
stamp()
I(f"""
s_cmp_lt_u32 s{sW}, 8
s_cbranch_scc1 L_ptask
s_cmp_lg_u32 s{sW}, {SCANW}
s_cbranch_scc1 L_noscan
ds_read_b128 v[80:83], v{vt+5} offset:{CNT1}
s_waitcnt lgkmcnt(0)
v_add_u32 v84, v80, v81
v_add_u32 v85, v84, v82
v_add_u32 v86, v85, v83
v_mov_b32 v87, v86
""")
dpp_scan(87)
I(f"""
v_sub_u32 v88, v87, v86
v_add_u32 v89, v88, v80
v_add_u32 v90, v88, v84
v_add_u32 v91, v88, v85
v_mov_b32 v96, {RST}
v_mad_u32_u24 v92, v88, 12, v96
v_mad_u32_u24 v93, v89, 12, v96
v_mad_u32_u24 v94, v90, 12, v96
v_mad_u32_u24 v95, v91, 12, v96
ds_write_b128 v{vt+5}, v[92:95] offset:{CNT1}
v_lshl_or_b32 v16, v80, 12, v88
v_lshl_or_b32 v18, v81, 12, v89
v_lshl_or_b32 v20, v82, 12, v90
v_lshl_or_b32 v22, v83, 12, v91
s_branch L_p_done
L_noscan:
""")
if DEBUG and int(opts.get("arr", 0)):
    I("s_waitcnt vmcnt(0)")
    I("s_memrealtime s[100:101]")
    I("s_waitcnt lgkmcnt(0)")
    I(f"v_writelane_b32 v{vST}, s100, 20")
if int(opts.get("prew", 1)):
    I(f"""
    s_cmp_lg_u32 s{sW}, 9
    s_cbranch_scc1 L_nopw
    s_lshl_b32 s{t0}, s2, 11
    s_add_u32 s{t0}, s{t0}, {GRAN}
    v_mov_b32 v16, 0
    v_mov_b32 v17, 0
    v_mov_b32 v18, 0
    v_mov_b32 v19, 0
    buffer_store_dwordx4 v[16:19], v{vt+5}, {sr(sWS,4)}, s{t0} offen sc1
    buffer_store_dwordx4 v[16:19], v{vt+5}, {sr(sWS,4)}, s{t0} offen offset:1024 sc1
    L_nopw:
    """)
I(f"""
s_cmp_eq_u32 s{sW}, 11
s_cbranch_scc1 L_w2ld
s_cmp_lg_u32 s{sW}, 10
s_cbranch_scc1 L_p_done
""")
for i in range(4):
    I(f"v_lshlrev_b32 v{80+2*i}, 16, v{12+i}")
    I(f"v_and_b32 v{81+2*i}, 0xffff0000, v{12+i}")
for i in range(4):
    I(f"v_pk_mul_f32 {P(80+2*i)}, {P(80+2*i)}, {sr(sSC,2)}")
for i in range(4):
    I(f"v_cvt_pk_bf16_f32 v{12+i}, v{80+2*i}, v{81+2*i}")
I(f"""
v_lshrrev_b32 v88, 4, v{vLane}
v_mul_u32_u24 v88, {QROW}, v88
v_and_b32 v89, 15, v{vLane}
v_lshl_add_u32 v88, v89, 4, v88
v_add_u32 v88, {QB + 98*QROW}, v88
ds_write2_b64 v88, v[12:13], v[14:15] offset0:0 offset1:1
v_mov_b32 v90, 0
v_mov_b32 v91, 0
""")
for g_ in range(4):
    setexec(lanemask(range(16*g_, 16*g_+8)))
    I(f"v_mov_b32 v{90 + (g_ >> 1)}, {0x3f800000 if g_ & 1 else 0x3f80}")
I(f"""
s_mov_b64 exec, -1
v_lshlrev_b32 v88, 3, v{vLane}
ds_write_b64 v88, v[90:91] offset:{LUT}
s_branch L_p_done
L_ptask:
v_xor_b32 v{vt+1}, 16, v79
v_xor_b32 v{vt+2}, 32, v79
v_xor_b32 v{vt+3}, 48, v79
""")
xa = [79, vt+1, vt+2, vt+3]
for ks in range(4):
    I(f"ds_read_b128 {vr(112+4*ks,4)}, v{xa[ks]}")
    for jl in range(2):
        for hf in range(2):
            I(f"ds_read_b64_tr_b16 {P(80+16*jl+4*ks+2*hf)}, v{166+jl} offset:{(8*ks+4*hf)*256}")
I(f"""
v_cmp_gt_u32 vcc, {BN}, v78
s_mov_b64 {sr(sE0,2)}, vcc
v_lshrrev_b32 v{vt+1}, 5, v{vLane}
s_and_b32 s{t1}, s{sW}, 1
s_lshl_b32 s{t1}, s{t1}, 3
v_add_u32 v{vt+1}, s{t1}, v{vt+1}
v_and_b32 v{vt+2}, 15, v78
v_xor_b32 v{vt+1}, v{vt+1}, v{vt+2}
v_lshlrev_b32 v{vt+1}, 4, v{vt+1}
v_lshl_add_u32 v{vt+1}, v78, 8, v{vt+1}
v_add_u32 v{vt+1}, {PST}, v{vt+1}
v_xor_b32 v{vt+2}, 32, v{vt+1}
v_xor_b32 v{vt+3}, 64, v{vt+1}
v_xor_b32 v{vt+4}, 0x60, v{vt+1}
""")
for ks in range(4):
    I(f"s_waitcnt lgkmcnt({15 - 5*ks})")
    I(mf16(128, 80+4*ks, 112+4*ks, "0" if ks == 0 else vr(128,16)))
    I(mf16(144, 96+4*ks, 112+4*ks, "0" if ks == 0 else vr(144,16)))
I("s_mov_b32 s%d, 0x07060302" % t0)
I("s_nop 10")
for i in range(16):
    I(f"v_pk_mul_f32 {P(128+2*i)}, {P(128+2*i)}, {sr(sSC,2)}")
I(f"s_mov_b64 exec, {sr(sE0,2)}")
for rg in range(4):
    for i in range(4*rg, 4*rg+4):
        I(f"v_add_u32 v{128+i}, 0x4000, v{128+i}")
    for i in range(4*rg, 4*rg+4):
        I(f"v_perm_b32 v{128+i}, v{144+i}, v{128+i}, s{t0}")
    I(f"ds_write_b128 v{vt+1+rg}, {vr(128+4*rg,4)}")
I(f"""
s_mov_b64 exec, -1
L_p_done:
v_lshrrev_b32 v80, 4, v0
v_xor_b32 v81, v80, v0
v_and_b32 v81, 15, v81
v_lshlrev_b32 v81, 4, v81
v_lshl_add_u32 v81, v80, 8, v81
v_add_u32 v81, {PST}, v81
s_mul_i32 s{t0}, s{sB}, {BN*256}
s_add_u32 s{t0}, s{t0}, {PT}
s_add_u32 s{sA}, s{pWS}, s{t0}
s_addc_u32 s{sA+1}, s{pWS+1}, 0
s_and_b32 s{sA+1}, s{sA+1}, 0xffff
s_mov_b32 s{sA+2}, {BN*256}
s_mov_b32 s{sA+3}, 0x00020000
s_mul_i32 s{t0}, s2, {RSTRIDE}
s_add_u32 s{t0}, s{t0}, {REC}
s_add_u32 s{sBq}, s{pWS}, s{t0}
s_addc_u32 s{sBq+1}, s{pWS+1}, 0
s_and_b32 s{sBq+1}, s{sBq+1}, 0xffff
s_mov_b32 s{sBq+2}, {(CH*12+15)//16*16}
s_mov_b32 s{sBq+3}, 0x00020000
s_mov_b32 s{t1}, {NTH*16}
s_mov_b32 s{t2}, {2*NTH*16}
s_mov_b32 s{t3}, {3*NTH*16}
s_waitcnt lgkmcnt(0)
s_barrier
""")
stamp()
I(f"""
ds_read_b128 v[84:87], v81
ds_read_b128 v[88:91], v81 offset:{48*256}
ds_read_b128 v[92:95], v81 offset:{96*256}
""")
for i in range(5):
    I(f"ds_read_b32 v{68+i}, v{68+i} offset:{CNT1}")
I(f"""
s_waitcnt lgkmcnt(7)
buffer_store_dwordx4 v[84:87], v{vt}, {sr(sA,4)}, 0 offen {PST_}
s_waitcnt lgkmcnt(6)
buffer_store_dwordx4 v[88:91], v{vt}, {sr(sA,4)}, s{t1} offen {PST_}
s_waitcnt lgkmcnt(5)
buffer_store_dwordx4 v[92:95], v{vt}, {sr(sA,4)}, s{t2} offen {PST_}
s_waitcnt vmcnt({7+X})
""")
I(f"s_movk_i32 s{t4}, 0x804")
I(f"s_mov_b32 s{t5}, {KMASK}")
for i in range(4):
    I(f"v_mul_u32_u24 v{52+i}, s{t4}, v{52+i}") if False else None
    I(f"v_lshlrev_b32 v{80+i}, 11, v{52+i}")
    I(f"v_lshlrev_b32 v{48+i}, 12, v{48+i}")
    I(f"v_lshlrev_b32_sdwa v{80+i}, 2, v{52+i} dst_sel:WORD_0 dst_unused:UNUSED_PRESERVE src0_sel:DWORD src1_sel:BYTE_0")
for i in range(4):
    I(f"v_and_or_b32 v{48+i}, v{80+i}, s{t5}, v{48+i}")
I("s_waitcnt lgkmcnt(0)")
for i in range(5):
    I(f"v_mad_u32_u24 v{68+i}, v{73+i}, 12, v{68+i}")
for i in range(4):
    I(f"ds_write_b32 v{68+i}, v{48+i} offset:8")
I(f"s_cmp_lg_u32 s{sW}, {EXTRAW}")
I("s_cbranch_scc1 L_noex2")
setexec(XM)
I(f"""
v_lshlrev_b32 v80, 11, v65
v_lshlrev_b32 v64, 12, v64
v_lshlrev_b32_sdwa v80, 2, v65 dst_sel:WORD_0 dst_unused:UNUSED_PRESERVE src0_sel:DWORD src1_sel:BYTE_0
s_nop 0
v_and_or_b32 v64, v80, s{t5}, v64
ds_write2_b32 v72, v66, v67 offset0:0 offset1:1
ds_write_b32 v72, v64 offset:8
s_mov_b64 exec, -1
L_noex2:
s_waitcnt vmcnt({6+X})
ds_write2_b32 v68, v56, v57 offset0:0 offset1:1
ds_write2_b32 v69, v58, v59 offset0:0 offset1:1
s_waitcnt vmcnt({5+X})
""")
stamp()
I(f"""
ds_write2_b32 v70, v60, v61 offset0:0 offset1:1
ds_write2_b32 v71, v62, v63 offset0:0 offset1:1
s_waitcnt lgkmcnt(0)
s_barrier
""")
stamp()
for i in range(4):
    I(f"ds_read_b128 {vr(48+4*i,4)}, v{vt} offset:{RST + i*NTH*16}")
for i in range(3):
    I(f"s_waitcnt lgkmcnt({3-i})")
    I(f"buffer_store_dwordx4 {vr(48+4*i,4)}, v{vt}, {sr(sBq,4)}, {['0', f's{t1}', f's{t2}'][i]} offen {RST_}")
I(f"""
s_waitcnt lgkmcnt(0)
s_cmp_lg_u32 s{sW}, 0
s_cbranch_scc1 L_no4
buffer_store_dwordx4 v[60:63], v{vt}, {sr(sBq,4)}, s{t3} offen {RST_}
L_no4:
{"s_barrier" if AI4 else ""}
s_cmp_ge_u32 s{sW}, 8
s_cbranch_scc1 L_nop2
""")
for ks in range(4):
    for jl in range(2):
        for hf in range(2):
            I(f"ds_read_b64_tr_b16 {P(80+16*jl+4*ks+2*hf)}, v{166+jl} offset:{16384 + (8*ks+4*hf)*256}")
I(f"s_waitcnt vmcnt({6+X})")
I(mf8(128, 160, 164, "0"))
I(mf8(144, 162, 164, "0"))
I(f"""
v_lshrrev_b32 v{vt+1}, 5, v{vLane}
s_and_b32 s{t0}, s{sW}, 1
s_lshl_b32 s{t0}, s{t0}, 7
s_add_u32 s{t0}, s{t0}, {QB}
v_lshl_add_u32 v{vt+1}, v{vt+1}, 3, s{t0}
v_mul_u32_u24 v{vt+2}, {QROW}, v78
v_add_u32 v{vt+1}, v{vt+1}, v{vt+2}
""")
for ks in range(4):
    I(f"s_waitcnt lgkmcnt({12 - 4*ks})")
    I(mf16(128, 80+4*ks, 112+4*ks, vr(128,16)))
    I(mf16(144, 96+4*ks, 112+4*ks, vr(144,16)))
I("s_nop 11")
for i in range(16):
    I(f"v_pk_mul_f32 {P(128+2*i)}, {P(128+2*i)}, {sr(sSC,2)}")
for i in range(16):
    I(f"v_cvt_pk_bf16_f32 v{128+i}, v{128+2*i}, v{129+2*i}")
I(f"s_mov_b64 exec, {sr(sE0,2)}")
for jl in range(2):
    for rg in range(4):
        I(f"ds_write_b64 v{vt+1}, {P(128+8*jl+2*rg)} offset:{64*jl + 16*rg}")
I(f"""
s_mov_b64 exec, -1
s_branch L_p2_done
L_nop2:
s_cmp_lg_u32 s{sW}, 11
s_cbranch_scc1 L_p2_done
s_cmp_gt_u32 s2, 16
s_cbranch_scc1 L_p2_done
s_lshl_b32 s{t0}, s2, 10
s_add_u32 s{t0}, s{t0}, {W2I}
s_waitcnt vmcnt(6)
s_cmp_lt_u32 s2, 16
s_cbranch_scc1 L_w2st
v_lshlrev_b32 v{vW2S}, 16, v{vW2S}
v_mul_f32 v{vW2S}, s{sSC}, v{vW2S}
v_lshlrev_b32 v{vW2S+1}, 2, v{vLane}
buffer_store_dword v{vW2S}, v{vW2S+1}, {sr(sWS,4)}, s{t0} offen sc1
s_branch L_p2_done
L_w2st:
v_lshl_or_b32 v{vW2S}, v{vW2S+1}, 16, v{vW2S}
v_lshl_or_b32 v{vW2S+1}, v{vW2S+3}, 16, v{vW2S+2}
v_lshl_or_b32 v{vW2S+2}, v{vW2S+5}, 16, v{vW2S+4}
v_lshl_or_b32 v{vW2S+3}, v{vW2S+7}, 16, v{vW2S+6}
buffer_store_dwordx4 {vr(vW2S,4)}, v{vt+5}, {sr(sWS,4)}, s{t0} offen sc1
L_p2_done:
""")
if AI4 == 1: area_init4(64, "L_ai4")
if AI4 == 2: area_init(64)
I(f"""
v_and_b32 v72, 31, v{vLane}
v_lshlrev_b32 v72, 2, v72
v_add_u32 v{vSC}, {SB}, v72
v_cvt_f32_u32 v72, v72
v_mov_b32 v{vBK}, 0x78005c00
v_cvt_f16_f32 v{vBK+1}, v72
v_and_b32 v{vBK+1}, 0xffff, v{vBK+1}
s_mov_b32 exec_lo, 0
v_mov_b32 v{vBK}, 0
v_mov_b32 v{vBK+1}, 0
s_mov_b64 exec, -1
v_mov_b32 v{vKA+1}, 0x3c00
v_bfe_u32 v73, v{vLane}, 4, 1
v_lshlrev_b32 v73, 5, v73
v_and_b32 v74, 3, v{vLane}
v_lshl_add_u32 v73, v74, 3, v73
v_add_u32 v{vQC}, {QB}, v73
v_bfe_u32 v75, v{vLane}, 2, 2
v_add_u32 v76, 98, v75
v_mul_u32_u24 v76, {QROW}, v76
v_add_u32 v{vQ}, v76, v{vQC}
""")
I(f"""
v_bfe_u32 v72, v{vLane}, 3, 2
v_bfe_u32 v73, v{vLane}, 1, 1
v_lshl_add_u32 v72, v72, 1, v73
v_lshlrev_b32 v{vAC}, 3, v72
v_lshlrev_b32 v{vAC+1}, 2, v72
""")
def ptr_consts(base):
    I(f"""
    v_lshrrev_b32 v72, 5, v{vLane}
    v_lshl_add_u32 v{vPH}, v72, 3, {base}
    v_bfe_u32 v73, v{vLane}, 2, 1
    v_and_b32 v74, 1, v{vLane}
    v_lshl_add_u32 v73, v73, 1, v74
    v_lshl_add_u32 v73, v72, 2, v73
    v_lshl_add_u32 v{vPG}, v73, 2, {base}
    v_bfe_u32 v75, v{vLane}, 2, 2
    v_lshl_add_u32 v74, v75, 2, {base}
    v_add_u32 v{vPR}, 50, v74
    """)
ptr_consts(f"s{sReg}")
I(f"""
{"" if TAGS else "s_waitcnt vmcnt(6)"}
{"" if TAGS else f"v_readfirstlane_b32 s{sTag}, v26"}
s_add_u32 s{sTag}, s{sTag}, 1
s_mul_i32 s{sTag8}, s{sTag}, 0x9e3779b1
s_and_b32 s{sTag8}, s{sTag8}, 0xff000000
v_or_b32 v16, s{sTag8}, v16
v_or_b32 v18, s{sTag8}, v18
v_or_b32 v20, s{sTag8}, v20
v_or_b32 v22, s{sTag8}, v22
v_mov_b32 v17, s{sTag}
v_mov_b32 v19, s{sTag}
v_mov_b32 v21, s{sTag}
v_mov_b32 v23, s{sTag}
s_waitcnt vmcnt(0) lgkmcnt(0)
s_barrier
""")
stamp()
I(f"""
s_cmp_lg_u32 s{sW}, {SCANW}
s_cbranch_scc1 L_nopub
v_lshlrev_b32 v72, 4, v{vLane}
s_lshl_b32 s{t0}, s2, 11
s_add_u32 s{t0}, s{t0}, {GRAN}
buffer_store_dwordx4 v[16:19], v72, {sr(sWS,4)}, s{t0} offen {PUB_}
buffer_store_dwordx4 v[20:23], v72, {sr(sWS,4)}, s{t0} offen offset:1024 {PUB_}
L_nopub:
""")
PF1 = int(opts.get("pf1", 0)); PF2 = int(opts.get("pf2", 0))
def prefetch(n, first, dst):
    I(f"""
    s_lshr_b32 s{t0}, s2, 3
    s_mul_i32 s{t0}, s{t0}, {NW}
    s_add_u32 s{t0}, s{t0}, s{sW}
    s_mul_i32 s{t0}, s{t0}, {n*128}
    s_add_u32 s{t0}, s{t0}, {MAGIC + first*384*128}
    v_lshlrev_b32 v{dst}, 7, v{vLane}
    """)
    if n < 64: setexec((1 << n) - 1)
    I(f"buffer_load_dword v{dst}, v{dst}, {sr(sP,4)}, s{t0} offen sc1")
    I("s_mov_b64 exec, -1")
if PF1: prefetch(PF1, 0, 42)
if not AI4: area_init(64)
SZ = int(opts.get('sz', 0))
if SZ == 1: s_zero(76)
vDs = 124
vRA = 130
vCn = 133
vPo = 136
vL7 = 138; vRb = 139; vAr = 140
sPo = [sG, sT, sRem]; sRo = sGam
def desc_consts():
    I(f"""
    v_lshrrev_b32 v141, 3, v{vLane}
    v_lshlrev_b32 v{vPo}, 11, v141
    v_and_b32 v{vL7}, 7, v{vLane}
    v_mul_u32_u24 v{vRb}, 12, v{vL7}
    s_mov_b32 s{t0}, {RSTRIDE}
    v_mad_u32_u24 v{vRb}, v141, s{t0}, v{vRb}
    s_lshl_b32 s{sPo[0]}, s{sW}, 14
    s_lshr_b32 s{t1}, s{sB}, 2
    s_lshl_b32 s{t1}, s{t1}, 4
    s_add_u32 s{sPo[0]}, s{sPo[0]}, s{t1}
    s_and_b32 s{t1}, s{sB}, 1
    s_lshl_b32 s{t1}, s{t1}, 3
    s_add_u32 s{sPo[0]}, s{sPo[0]}, s{t1}
    s_and_b32 s{t1}, s{sB}, 2
    s_lshl_b32 s{t1}, s{t1}, 9
    s_add_u32 s{sPo[0]}, s{sPo[0]}, s{t1}
    s_add_u32 s{sPo[0]}, s{sPo[0]}, {GRAN}
    s_add_u32 s{sPo[1]}, s{sPo[0]}, {12*16384}
    s_add_u32 s{sPo[2]}, s{sPo[0]}, {24*16384}
    s_mul_i32 s{sRo}, s{sW}, {8*RSTRIDE}
    s_add_u32 s{sRo}, s{sRo}, {REC}
    """)
def poll_load(jj): return f"buffer_load_dwordx2 {P(vDs+2*jj)}, v{vPo}, {sr(sWS,4)}, s{sPo[jj]} offen " + opts.get("pld", "sc1").replace("+", " ")
def decode(jj):
    I(f"v_and_b32 v{vRA+jj}, 0xfff, v{vDs+2*jj}")
    I(f"v_mad_u32_u24 v{vRA+jj}, v{vRA+jj}, 12, v{vRb}")
    if jj: I(f"v_add_u32 v{vRA+jj}, {jj*96*RSTRIDE}, v{vRA+jj}")
    I(f"v_bfe_u32 v{vCn+jj}, v{vDs+2*jj}, 12, 12")
    I(f"v_sub_u32 v{vCn+jj}, v{vCn+jj}, v{vL7}")
lab = [0]
NR = 5
order = [(jj, rd) for jj in range(3) for rd in range(NR)]
slotreg = {s: 48 + 4*n_ for n_, s in enumerate(order)}
slotmask = {s: sM + 2*n_ for n_, s in enumerate(order)}
vTA = {s: 108 + n_ for n_, s in enumerate(order)}
def slots(body):
    for jj in range(3):
        lab[0] += 1; grp = lab[0]
        for rd in range(NR):
            s = (jj, rd)
            I(f"s_mov_b64 exec, {sr(slotmask[s],2)}")
            if rd >= 2 or (jj == 2 and rd == 0): I(f"s_cbranch_execz L_sg{grp}")
            body(s)
        L(f"L_sg{grp}")
    I("s_mov_b64 exec, -1")
def tagcheck(jj, dst):
    I(f"""
    v_xor_b32 v141, s{sTag8}, v{vDs+2*jj}
    v_xor_b32 v142, s{sTag}, v{vDs+2*jj+1}
    v_lshrrev_b32 v141, 24, v141
    v_or_b32 v141, v141, v142
    v_cmp_ne_u32 {dst}, 0, v141
    """)
desc_consts()
I(f"""
s_mov_b64 {sr(sPM,2)}, -1
s_mov_b64 {sr(sPM+2,2)}, -1
s_cmp_lt_u32 s{sW}, 8
s_cselect_b64 {sr(sPM+4,2)}, -1, 0
v_mov_b32 v{vDs+4}, s{sTag8}
v_mov_b32 v{vDs+5}, s{sTag}
s_mov_b32 s{sK}, 0
v_mov_b32 v{vAr}, {AREA}
s_movk_i32 s{t4}, {NSZ//4}
s_mov_b32 s{t5}, {KMASK}
v_mov_b32 v137, {KCON}
v_mov_b32 v143, 0
{"" if AI4 else "s_waitcnt lgkmcnt(0)"}
{"" if AI4 else "s_barrier"}
""")
stamp()
I(f"""
s_branch L_poll1
L_poll:
""")
if SLEEP: I(f"s_sleep {SLEEP}")
L("L_poll1")
for jj in range(3):
    I(f"s_mov_b64 exec, {sr(sPM+2*jj,2)}")
    I(f"s_cbranch_execz L_pk{jj}")
    I(poll_load(jj))
    L(f"L_pk{jj}")
I(f"""
s_mov_b64 exec, -1
s_add_u32 s{sK}, s{sK}, 1
s_cmp_gt_u32 s{sK}, 0x40000
s_cbranch_scc1 L_exit
s_waitcnt vmcnt(0)
""")
for jj in range(3): tagcheck(jj, sr(sPM+2*jj,2))
I(f"""
s_or_b64 {sr(sE0,2)}, {sr(sPM,2)}, {sr(sPM+2,2)}
s_or_b64 {sr(sE0,2)}, {sr(sE0,2)}, {sr(sPM+4,2)}
s_cbranch_scc1 L_poll
""")
if DEBUG:
    I(f"v_writelane_b32 v{vST}, s{sK}, 22")
stamp()
for jj in range(3): decode(jj)
for s_ in order:
    I(f"v_cmp_lt_i32 {sr(slotmask[s_],2)}, {8*s_[1]}, v{vCn+s_[0]}")
slots(lambda s_: I(f"buffer_load_dwordx3 {vr(slotreg[s_],3)}, v{vRA+s_[0]}, {sr(sWS,4)}, s{sRo} offen offset:{96*s_[1]} sc1"))
I(f"""
v_max3_i32 v141, v{vCn}, v{vCn+1}, v{vCn+2}
v_cmp_lt_i32 vcc, {8*NR}, v141
s_cbranch_vccz L_nobig
v_mov_b32 v141, 0
ds_write_b32 v141, v{vt+6} offset:{FLAG}
L_nobig:
""")
if SZ == 0: s_zero(144)
vNB = 32
I(f"""
v_mul_u32_u24 v{vNB}, {2*NSZ}, v{vLane}
v_add_u32 v{vNB}, {AREA}, v{vNB}
v_add_u32 v{vNB+1}, {NSZ}, v{vNB}
s_mov_b32 s{t0}, {2*(SROW + (QROW << 16))}
v_mul_lo_u32 v{vNB+2}, v{vLane}, s{t0}
v_add_u32 v{vNB+3}, {SROW + (QROW << 16)}, v{vNB+2}
""")
I("s_waitcnt vmcnt(0)")
stamp()
if PF2: prefetch(PF2, PF1, 33)
def rank_body(s):
    r = slotreg[s]
    I(f"v_bfe_u32 v{vTA[s]}, v{r+2}, 10, 9")
    I(f"v_and_or_b32 v{r+2}, v{r+2}, s{t5}, v137")
    I(f"ds_add_rtn_u32 v{r+3}, v{vTA[s]}, v{vt+6} offset:{CNT}")
    I(f"v_mad_u32_u24 v{vTA[s]}, v{vTA[s]}, s{t4}, v{vAr}")
slots(rank_body)
I("s_waitcnt lgkmcnt(0)")
def scat_body(s):
    r = slotreg[s]
    lab[0] += 1; fx = lab[0]
    fixups.append((fx, s))
    I(f"v_cmp_le_u32 vcc, {CAP}, v{r+3}")
    I(f"v_lshl_add_u32 v141, v{r+3}, 2, v{vTA[s]}")
    I(f"v_lshl_add_u32 v{vTA[s]}, v{r+3}, 3, v{vTA[s]}")
    I(f"s_cbranch_vccnz L_fx{fx}")
    L(f"L_fr{fx}")
    I(f"ds_write_b32 v141, v{r+2}")
    I(f"ds_write_b64 v{vTA[s]}, {P(r)} offset:{EOFF}")
fixups = []
PF5 = int(opts.get("pf5", 0))
if PF5: prefetch(PF5, PF1, 41)
slots(scat_body)
PF4 = int(opts.get("pf4", 20))
if PF4: prefetch(PF4, PF1, 41)
I(f"""
s_waitcnt lgkmcnt(0)
s_barrier
""")
stamp()
PF3 = int(opts.get('pf3', 0))
if PF3: prefetch(PF3, 0, 43)
I(f"""
s_or_b32 s{t0}, s2, s{sW}
s_cmp_lg_u32 s{t0}, 0
s_cbranch_scc1 L_nogen
v_mov_b32 v137, 0
v_mov_b32 v138, s{sTag}
s_mov_b64 exec, 1
buffer_store_dword v138, v137, {sr(sWS,4)}, 0 offen sc0 sc1
s_mov_b64 exec, -1
L_nogen:
""")
def chain(T, vD=vD, vN=vN, n=8):
    l = [f"v_pk_add_f32 {P(vD)}, {P(vE)}, {sr(sONE,2)}",
         f"v_pk_fma_f32 {P(vN)}, {P(T)}, {P(vE+2)}, {P(T)}",
         f"v_pk_fma_f32 {P(vN)}, {P(T+2)}, {P(vD)}, {P(vN)}",
         f"v_pk_fma_f32 {P(vD)}, {P(vD)}, {P(vE+2)}, {P(vD)}"]
    for i in range(2, n):
        l += [f"v_pk_fma_f32 {P(vN)}, {P(vN)}, {P(vE+2*i)}, {P(vN)}",
              f"v_pk_fma_f32 {P(vN)}, {P(T+2*i)}, {P(vD)}, {P(vN)}",
              f"v_pk_fma_f32 {P(vD)}, {P(vD)}, {P(vE+2*i)}, {P(vD)}"]
    return l
assert EOFF - 7*32 == 0
def gload(u): return [f"buffer_load_dword v{vLb[u]+i}, v{vIX+i}, {sr(sP,4)}, 0 offen offset:{128*u} sc1" for i in range(16)]
def shifts(u): return [f"v_lshlrev_b64 {P(vTL+2*i)}, 16, {P(vLb[u]+2*i)}" for i in range(8)]
SAUPD = [f"v_add_u32_sdwa v{vSA}, v{vGS}, v{vSC} {SDWA0}", f"v_add_u32_sdwa v{vSA+1}, v{vGS+1}, v{vSC} {SDWA0}"]
QUPD = f"v_add_u32_dpp v{vQ}, v{vGQ}, v{vQC} quad_perm:[0,1,2,3] row_mask:0xc bank_mask:0xf"
AUPD = f"v_lshl_add_u64 {P(vAG)}, {P(vAG)}, 0, {P(vAC)}"
IXM = mf8(vIX, vKA, vBK, "0").replace("bf16", "f16")

vDj = [144, 148, 152, 156]; vNj = [146, 150, 154, 158]; vSj = [160, 162, 164, 166]
def pmul(d, a, b): return f"v_pk_mul_f32 {P(d)}, {P(a)}, {P(b)}"
def inv(m): return [f"v_rcp_f32 v{vE}, v{m}", f"v_rcp_f32 v{vE+1}, v{m+1}", f"v_max3_f32 v{vMX}, v{m}, v{m+1}, v{vMX}"]
NSH = 4 * NW
vSU = 120
I(f"""
v_lshlrev_b32 v48, 3, v{vLane}
v_mov_b32 v63, 0
s_mov_b32 s{t2}, 0x80000004
ds_read_b64 v[50:51], v48 offset:{CNT}
ds_read_b32 v49, v63 offset:{FLAG}
""")
I(f"""
v_mov_b32 v{vMX}, 0
s_lshl_b32 s{t3}, s{sW}, 2
s_waitcnt lgkmcnt(0)
v_add_u32 v80, -1, v50
v_add_u32 v81, -1, v51
v_and_b32 v80, s{t2}, v80
v_and_b32 v81, s{t2}, v81
v_cmp_gt_u32 {sr(sE0,2)}, {CAP}, v50
v_cmp_gt_u32 {sr(sE1,2)}, {CAP}, v51
v_cmp_eq_u32 vcc, 0, v80
s_and_b64 {sr(sE0,2)}, {sr(sE0,2)}, vcc
v_cmp_eq_u32 vcc, 0, v81
s_and_b64 {sr(sE1,2)}, {sr(sE1,2)}, vcc
s_bcnt1_i32_b64 s{t0}, {sr(sE0,2)}
v_mbcnt_lo_u32_b32 v82, s{sE0}, 0
v_mov_b32 v83, s{t0}
v_mbcnt_hi_u32_b32 v82, s{sE0+1}, v82
v_mbcnt_lo_u32_b32 v83, s{sE1}, v83
v_mbcnt_hi_u32_b32 v83, s{sE1+1}, v83
""")
for e_ in range(2):
    m_ = (sE0, sE1)[e_]
    I(f"""
    v_subrev_u32 v84, s{t3}, v{82+e_}
    v_cmp_gt_u32 vcc, 4, v84
    s_and_b64 exec, {sr(m_,2)}, vcc
    s_cbranch_execz L_shs{e_}
    v_and_b32 v85, 0x78, v{50+e_}
    v_and_b32 v86, 7, v{50+e_}
    v_lshl_add_u32 v87, v85, 2, v{vNB+e_}
    v_lshl_add_u32 v88, v85, 3, v{vNB+e_}
    v_lshlrev_b32 v89, 4, v84
    v_add_u32 v88, {EOFF}, v88
    v_sub_u32 v89, v89, v86
    v_lshl_add_u32 v84, v84, 2, s{sReg}
    v_lshlrev_b32 v89, 3, v89
    ds_write2_b32 v84, v87, v88 offset0:0 offset1:4
    v_add_u32 v89, {LUT + 64}, v89
    ds_write2_b32 v84, v89, v{vNB+2+e_} offset0:8 offset1:12
    L_shs{e_}:
    s_mov_b64 exec, -1
    """)
I(f"""
ds_read2_b32 {P(vAG)}, v{vPG} offset0:4 offset1:0
ds_read_u16 v{vGQ}, v{vPR}
ds_read_b64 {P(vGS)}, v{vPH} offset:48
v_cmp_gt_u32 vcc, {NSH}, v82
s_and_b64 {sr(sE0,2)}, {sr(sE0,2)}, vcc
v_cmp_gt_u32 vcc, {NSH}, v83
s_and_b64 {sr(sE1,2)}, {sr(sE1,2)}, vcc
v_add_u32 v52, 7, v50
v_add_u32 v53, 7, v51
v_lshrrev_b32 v52, 3, v52
v_lshrrev_b32 v53, 3, v53
s_waitcnt lgkmcnt(2)
{AUPD}
ds_read_b32 v{vKA}, v{vAG+1}
ds_read_b64 {P(vA5)}, v{vAG}
v_subb_co_u32 v52, vcc, v52, 0, {sr(sE0,2)}
v_subb_co_u32 v53, vcc, v53, 0, {sr(sE1,2)}
s_waitcnt lgkmcnt(1)
{IXM}
{QUPD}
{SAUPD[0]}
{SAUPD[1]}
v_add_u32 v54, v52, v53
v_max_u32 v55, v52, v53
v_mov_b32 v56, v54
v_readfirstlane_b32 s{sBad}, v49
v_cmp_lt_u32 vcc, {CAP}, v50
v_cmp_lt_u32 {sr(sE0,2)}, {CAP}, v51
""")
I(f"""
ds_read_b64_tr_b16 {P(vB5[0])}, v{vQ}
ds_read_b64_tr_b16 {P(vB5[1])}, v{vQ} offset:64
ds_read_b64_tr_b16 {P(vD)}, v{vQ} offset:128
ds_read_b64_tr_b16 {P(vN)}, v{vQ} offset:192
s_nop 1
""")
for i_ in range(8): I(f"buffer_load_dword v{vTH+i_}, v{vIX+i_}, {sr(sP,4)}, 0 offen sc1")
for i_ in range(8): I(f"buffer_load_dword v{vSU+i_}, v{vIX+i_}, {sr(sP,4)}, 0 offen offset:128 sc1")
dpp_scan(56, 55)
I(f"""
s_bcnt1_i32_b64 s{t1}, vcc
s_bcnt1_i32_b64 s{t2}, {sr(sE0,2)}
s_add_u32 s{t1}, s{t1}, s{t2}
s_cmp_gt_u32 s{t1}, 1
s_cselect_b32 s{sBad}, 1, s{sBad}
""")
I(f"""
s_nop 0
v_readlane_b32 s{sG}, v56, 63
v_readlane_b32 s{sGmax}, v55, 63
v_sub_u32 v56, v56, v54
v_add_u32 v57, v56, v52
s_add_u32 s{t0}, s{sG}, 3
s_lshr_b32 s{t0}, s{t0}, 2
s_cmp_gt_u32 s{t0}, {NW*(TMAX-1)}
s_cselect_b32 s{sBad}, 1, s{sBad}
s_cmp_gt_u32 s{sGmax}, {TMAX-1}
s_cselect_b32 s{sBad}, 1, s{sBad}
""")
if FORCE_SLOW == 1: I(f"s_mov_b32 s{sBad}, 1")
I(f"""
s_cmp_lg_u32 s{sBad}, 0
s_cbranch_scc1 L_slow
s_mul_i32 s{sT}, s{t0}, 171
s_lshr_b32 s{sT}, s{sT}, 11
s_mul_i32 s{t1}, s{sT}, {NW}
s_sub_u32 s{sRem}, s{t0}, s{t1}
s_cmp_gt_u32 s{sGmax}, s{sT}
s_cselect_b32 s{sT}, s{sGmax}, s{sT}
s_cselect_b32 s{sRem}, 0, s{sRem}
s_max_u32 s{sT}, s{sT}, 1
s_add_u32 s{t1}, s{sT}, 1
s_lshl_b32 s{t2}, s{sRem}, 2
s_mul_i32 s{sGam}, s{t2}, s{t1}
v_cvt_f32_u32 v58, s{sT}
v_cvt_f32_u32 v59, s{t1}
v_rcp_f32 v58, v58
v_rcp_f32 v59, v59
v_mov_b32 v60, s{sT}
v_mov_b32 v61, s{t1}
v_mov_b32 v62, s{t2}
s_cmp_lt_u32 s{sW}, s{sRem}
s_cselect_b32 s{sTw}, s{t1}, s{sT}
s_cselect_b32 s{t0}, 0, s{t2}
s_mul_i32 s{t1}, s{sTw}, s{sW}
s_lshl_b32 s{t1}, s{t1}, 2
s_add_u32 s{t1}, s{t1}, s{t0}
s_sub_i32 s{t1}, s{sG}, s{t1}
s_max_i32 s{t1}, s{t1}, 0
s_min_u32 s{sTw}, s{sTw}, s{t1}
v_lshlrev_b32 v65, 1, v{vLane}
s_mov_b32 s{sK}, s{sW}
s_cmp_lt_u32 s{sW}, 6
s_cbranch_scc1 L_build
s_sub_u32 s{sK}, s{sW}, 6
v_mov_b32 v50, v51
v_mov_b32 v52, v53
v_mov_b32 v56, v57
v_add_u32 v65, 1, v65
L_build:
v_cmp_lt_u32 vcc, s{sK}, v52
s_and_b64 exec, exec, vcc
s_cbranch_execz L_bskip
v_add_u32 v66, s{sK}, v56
v_cmp_gt_u32 vcc, s{sGam}, v66
v_mul_u32_u24 v77, {QROW}, v65
s_lshl_b32 s{t0}, s{sK}, 3
v_cndmask_b32 v68, v62, v63, vcc
v_cndmask_b32 v69, v60, v61, vcc
v_cndmask_b32 v70, v58, v59, vcc
v_sub_u32 v66, v66, v68
v_cvt_f32_u32 v71, v66
v_add_f32 v71, 0.5, v71
v_mul_f32 v71, v71, v70
v_cvt_u32_f32 v71, v71
v_subrev_u32 v67, s{t0}, v50
v_mul_u32_u24 v72, v71, v69
v_sub_u32 v72, v66, v72
v_and_b32 v73, 3, v71
v_lshrrev_b32 v74, 2, v71
v_mad_u32_u24 v75, v73, v69, v72
v_cmp_gt_u32 vcc, s{sK}, v75
v_mad_u32_u24 v76, v74, {TMAX}, v72
v_lshlrev_b32 v76, 6, v76
v_lshl_add_u32 v76, v73, 2, v76
v_add_u32 v76, {GT + GSZ}, v76
v_add_u32 v74, {ZROW}, v74
v_cndmask_b32 v74, v65, v74, vcc
v_mul_u32_u24 v74, {SROW}, v74
v_lshl_or_b32 v77, v77, 16, v74
v_min_u32 v67, 8, v67
v_lshlrev_b32 v73, 4, v73
v_sub_u32 v73, v73, v67
s_movk_i32 s{t1}, {LUT + 64}
v_lshl_add_u32 v73, v73, 3, s{t1}
ds_write2_b32 v76, v73, v77 offset0:8 offset1:12
s_cmp_ge_u32 s{sK}, 7
s_cselect_b32 s{t1}, 0, {NSZ}
s_cselect_b32 s{t2}, {OVF - 7*32 - AREA}, 0
s_cselect_b32 s{t3}, 0, {EOFF}
s_add_u32 s{t2}, s{t2}, {AREA}
s_lshl_b32 s{t0}, s{sK}, 5
s_add_u32 s{t2}, s{t2}, s{t0}
s_add_u32 s{t3}, s{t3}, s{t0}
v_mul_u32_u24 v78, s{t1}, v65
v_add_u32 v78, s{t2}, v78
v_add_u32 v79, s{t3}, v78
ds_write2_b32 v76, v78, v79 offset0:0 offset1:4
v_lshlrev_b32 v79, 2, v65
s_and_b64 exec, exec, vcc
ds_write_b32 v79, v74 offset:{CARRY}
L_bskip:
s_mov_b64 exec, -1
s_add_u32 s{sK}, s{sK}, 6
s_cmp_lt_u32 s{sK}, s{sGmax}
s_cbranch_scc1 L_build
s_waitcnt lgkmcnt(0)
s_barrier
""")
stamp()

SOFT = int(opts.get("soft", 1)); CL = int(opts.get("cl", 1))
I(f"""
v_lshl_add_u64 {P(vPH)}, {P(vPH)}, 0, {sr(sADV,2)}
v_add_u32 v{vPR}, {GSZ}, v{vPR}
v_mov_b32 v{vt+7}, 0
""")
def chain1():
    I(f"""
    ds_read_b32 v{vSO}, v{vPG}
    ds_read2_b32 {P(vAG)}, v{vPG} offset0:4 offset1:{GSZ//4}
    ds_read_u16 v{vGQ}, v{vPR}
    ds_read_b64 {P(vGS)}, v{vPH} offset:48
    s_waitcnt lgkmcnt(3)
    v_add_u32 v{vSO}, v{vSO}, v{vAC+1}
    ds_read_b32 v{vKA}, v{vSO}
    s_waitcnt lgkmcnt(0)
    {IXM}
    {AUPD}
    {QUPD}
    ds_read_b32 v{vKA}, v{vAG+1}
    s_nop 9
    """)
def short_half(u):
    src = vTH if u == 0 else vSU
    b0, b1_ = (vB5[0], vB5[1]) if u == 0 else (vD, vN)
    for i_ in range(4): I(f"v_lshlrev_b64 {P(vTL+2*i_)}, 16, {P(src+2*i_)}")
    I("s_nop 1")
    I(mf8(vTL, vA5, b0, vr(vTL,16)))
    I(mf8(vTH, vA5, b1_, vr(src,16)))
    I("s_nop 10")
    a, b_ = 2*u, 2*u + 1
    for j_, T in ((a, vTL), (b_, vTH)):
        for i_ in range(8): I(f"v_exp_f32 v{vE+i_}, v{T+i_}")
        for l in chain(T, vDj[j_], vNj[j_], 4): I(l)
    I(pmul(vSO, vDj[a], vDj[b_]))
    i3 = inv(vSO)
    for l in i3[0:2] + [pmul(vNj[a], vNj[a], vDj[b_]), pmul(vNj[b_], vNj[b_], vDj[a]), i3[2], pmul(vSj[a], vNj[a], vE), pmul(vSj[b_], vNj[b_], vE)]: I(l)
    I(f"ds_write2_b32 v{vSA}, v{vSj[a]}, v{vSj[b_]} offset0:{32*a} offset1:{32*b_}")
    I(f"ds_write2_b32 v{vSA+1}, v{vSj[a]+1}, v{vSj[b_]+1} offset0:{32*a} offset1:{32*b_}")
FP = [[int(c) for c in x] for x in opts.get("fp", "01,12,22").split(",")]
def fetch_point(pt):
    for u in range(2):
        m = sum(0xf << (4*c) for c in range(3) if FP[c][u] == pt)
        if m == 0: continue
        if m != 0xfff:
            I(f"s_movk_i32 s{t0}, {m}")
            I(f"s_bitcmp1_b32 s{t0}, s{sW}")
            I(f"s_cbranch_scc0 L_fp{pt}{u}")
        for l in gload(u): I(l)
        L(f"L_fp{pt}{u}")
late = sum(0xf << (4*c) for c in range(3) if min(FP[c]) >= 2) if CL else 0
if late:
    I(f"s_movk_i32 s{t0}, {late}")
    I(f"s_bitcmp1_b32 s{t0}, s{sW}")
    I("s_cbranch_scc1 L_c1")
chain1()
L("L_c1")
fetch_point(0)
for n0 in (0, 1, 2):
    m = sum(0xf << (4*c) for c in range(3) if FP[c].count(0) == n0)
    if m == 0: continue
    if m != 0xfff:
        I(f"s_movk_i32 s{t0}, {m}")
        I(f"s_bitcmp1_b32 s{t0}, s{sW}")
        I(f"s_cbranch_scc0 L_w9{n0}")
    I(f"s_waitcnt vmcnt({16*n0})")
    L(f"L_w9{n0}")
stamp()
short_half(0)
fetch_point(1)
short_half(1)
if SOFT:
    I(f"""
    s_mov_b64 exec, 1
    ds_add_u32 v{vt+7}, v{vt+6} offset:{PROG}
    s_mov_b64 exec, -1
    """)
if late:
    I(f"s_movk_i32 s{t0}, {late}")
    I(f"s_bitcmp1_b32 s{t0}, s{sW}")
    I("s_cbranch_scc0 L_c2")
    chain1()
    L("L_c2")
fetch_point(2)
I(f"""
ds_read_b64 {P(vA5)}, v{vAG}
ds_read_b64_tr_b16 {P(vB5[0])}, v{vQ}
ds_read_b64_tr_b16 {P(vB5[1])}, v{vQ} offset:64
s_waitcnt lgkmcnt(0)
{"" if SOFT else "s_barrier"}
s_cmp_eq_u32 s{sTw}, 0
s_cbranch_scc1 L_loop_done
""")
stamp()
fetch_point(3)
I(IXM)
I("s_waitcnt vmcnt(16)")
for l in shifts(0): I(l)
I("s_nop 1")
I(mf8(vTL, vA5, vB5[0], vr(vTL,16)))
I(f"s_mov_b32 s{sK}, s{sTw}")
if PRIO:
    I("s_setprio 3")
    I(f"s_mov_b32 s{t5}, {sum(1 << (x // 2) for x in PTH if x % 2 == 0)}")
    I(f"s_mov_b32 s{t4}, {sum(1 << ((x + 1) // 2) for x in PTH if x % 2 == 1)}")
for x in STG:
    if x == 0: continue
    m = t4 if x & 1 else t5
    I(f"""
    s_sub_u32 s{t0}, s{sTw}, {x // 2}
    s_lshl_b32 s{t0}, 1, s{t0}
    s_cmp_lt_u32 s{sW}, 4
    s_cselect_b32 s{t0}, s{t0}, 0
    s_or_b32 s{m}, s{m}, s{t0}
    """)
I("s_nop 15")

GS1, GS2, EXP, CHP = [int(x) for x in opts.get('gs', '6,11,8,4').split(',')]
body = []
def lds(text, tag=None): body.append(("lds", text, tag))
def need(tag): body.append(("need", tag))
def em(x):
    if isinstance(x, list): body.extend(x)
    else: body.append(x)
BATCH = int(opts.get("batch", 2)); LATE = int(opts.get("late", 0))
def rds(j):
    lds(f"ds_read_b32 v{vSj[j]}, v{vSA} offset:{128*j}")
    lds(f"ds_read_b32 v{vSj[j]+1}, v{vSA+1} offset:{128*j}", f"so{j}")
def pmul(d, a, b): return f"v_pk_mul_f32 {P(d)}, {P(a)}, {P(b)}"
def pfin(j, r): return f"v_pk_fma_f32 {P(vSj[j])}, {P(vNj[j])}, {P(r)}, {P(vSj[j])}"
def inv(m): return [f"v_rcp_f32 v{vE}, v{m}", f"v_rcp_f32 v{vE+1}, v{m+1}", f"v_max3_f32 v{vMX}, v{m}, v{m+1}, v{vMX}"]
def wr2(j):
    lds(f"ds_write2_b32 v{vSA}, v{vSj[j]}, v{vSj[j+1]} offset0:{32*j} offset1:{32*j+32}")
    lds(f"ds_write2_b32 v{vSA+1}, v{vSj[j]+1}, v{vSj[j+1]+1} offset0:{32*j} offset1:{32*j+32}")
FIN = opts.get("fin", "-,-,-,0").split(",")
vW2q = [vIX, vLb[0], vLb[1], vTL]
def w2ld(q): return [f"s_mov_b32 s{t0}, {W2I + 4096*q}"] + [f"buffer_load_dwordx4 {vr(vW2q[q]+4*i_,4)}, v40, {sr(sWS,4)}, s{t0} offen offset:{1024*i_} sc1" for i_ in range(4)]
W2A = [f"v_lshlrev_b32 v40, 4, v{vLane}", f"v_and_b32 v41, 0xf0, v40"]
B2LD = [f"s_mov_b32 s{t0}, {W2I + 16384}", f"buffer_load_dwordx4 v[2:5], v41, {sr(sWS,4)}, s{t0} offen sc1"]
def gen_body(final):
    body.clear()
    for j in range(4):
        T = vTH if j & 1 else vTL
        j2 = (j + 2) & 3
        ex = [f"v_exp_f32 v{vE+i}, v{T+i}" for i in range(16)]
        ch = chain(T, vDj[j], vNj[j])
        g = [] if final else gload(j >> 1)
        sfx = "f" if final else ""
        if SOFT and j == 1:
            em([f"s_cmp_eq_u32 s{sK}, s{sTw}", f"s_cbranch_scc1 L_own{sfx}", f"L_own{sfx}_ret:"])
        if final:
            if PRIO and FIN[j] != "-": em(f"s_setprio {FIN[j]}")
        elif PRIO and j in (0, 2) and any(x % 2 == j // 2 for x in PTH):
            em([f"s_bitcmp1_b32 s{t5 if j == 0 else t4}, s{sK}", f"s_cbranch_scc1 L_prio{j}", f"L_prio{j}_ret:"])
        if j & 1:
            em(g[GS2:16])
            rds(j - 1); rds(j)
        if not (final and j >= 2):
            lds(f"ds_read_b64_tr_b16 {P(vB5[j & 1])}, v{vQ} offset:{64*j2}", f"b5_{j2}")
        if j == 1 and not final:
            lds(f"ds_read_b64 {P(vGS)}, v{vPH} offset:{GSZ+48}")
            lds(f"ds_read2_b32 {P(vAG)}, v{vPG} offset0:{GSZ//4+4} offset1:{2*GSZ//4}")
            lds(f"ds_read_u16 v{vGQ}, v{vPR} offset:{GSZ}", "gq")
        jn = (j + 1) & 3; un = jn >> 1
        if j & 1 == 0:
            need(f"b5_{j+1}")
            em(mf8(vTH, vA5, vB5[1], vr(vLb[j >> 1],16)))
            if j == 0: em(SAUPD)
            em(ex[0:EXP])
            em(g[0:GS1])
            if j == 2 and not final:
                lds(f"ds_read_b32 v{vKA}, v{vAG+1}")
                lds(f"ds_read_b64 {P(vA5)}, v{vAG}", "a5")
            em(ex[EXP:16])
            em(ch[0:CHP])
            em(g[GS1:GS2])
            em(ch[CHP:])
        else:
            if final and j == 3:
                em([f"s_cmp_ge_u32 s{sW}, 7", "s_cbranch_scc1 L_nw2b"] + w2ld(2) + w2ld(3) + ["L_nw2b:"])
                em(ex)
            else:
                em(f"s_waitcnt vmcnt({0 if final else 16})")
                if final: em([f"s_cmp_ge_u32 s{sW}, 7", "s_cbranch_scc1 L_nw2a"] + W2A + w2ld(0) + w2ld(1) + B2LD + ["L_nw2a:"])
                em(shifts(un))
                em(ex[0:2])
                need("a5" if j == 3 else f"b5_{jn}")
                em(mf8(vTL, vA5, vB5[0], vr(vTL,16)))
                if j == 3:
                    em(ex[2:6]); em(IXM); em(ex[6:])
                    em([f"v_lshl_add_u64 {P(vPH)}, {P(vPH)}, 0, {sr(sADV,2)}", f"v_add_u32 v{vPR}, {GSZ}, v{vPR}"])
                else:
                    em(ex[2:])
                    if not final:
                        need("gq")
                        em([QUPD, AUPD])
            em(ch)
            a, b = j - 1, j
            em(pmul(vD, vDj[a], vDj[b]))
            i3 = inv(vD)
            em(i3[0:2]); em([pmul(vNj[a], vNj[a], vDj[b]), pmul(vNj[b], vNj[b], vDj[a]), i3[2]])
            need(f"so{j}"); em([pfin(a, vE), pfin(b, vE)])
            if j == 3 and not final: em([f"s_sub_u32 s{sK}, s{sK}, 1", f"s_cmp_lg_u32 s{sK}, 1"])
            wr2(a)
    return list(body)
def resolve(seq2, start):
    res = []
    for pos in range(start, len(seq2)):
        x = seq2[pos]
        if isinstance(x, tuple) and x[0] == "need":
            n = 0; p = pos - 1
            while not (isinstance(seq2[p], tuple) and seq2[p][0] == "lds" and seq2[p][2] == x[1]):
                if isinstance(seq2[p], tuple) and seq2[p][0] == "lds": n += 1
                p -= 1
            covered = False
            for q in range(p + 1, pos):
                y = seq2[q]
                if isinstance(y, tuple) and y[0] == "need":
                    pp = q - 1
                    while not (isinstance(seq2[pp], tuple) and seq2[pp][0] == "lds" and seq2[pp][2] == y[1]): pp -= 1
                    if pp >= p: covered = True
            if not covered: res.append(f"s_waitcnt lgkmcnt({min(n,15)})")
        elif isinstance(x, tuple): res.append(x[1])
        else: res.append(x)
    return res
bl = gen_body(False); bf = gen_body(True)
def lstamp():
    if DEBUG and int(opts.get("lstamp", 0)):
        I(f"""
        {'s_memtime' if DEBUG == 2 else 's_memrealtime'} s[100:101]
        s_sub_u32 s99, 40, s{sK}
        s_mov_b32 m0, s99
        s_waitcnt lgkmcnt(0)
        v_writelane_b32 v{vST}, s100, m0
        """)
I(f"s_cmp_eq_u32 s{sK}, 1")
I("s_cbranch_scc1 L_final")
A(".p2align 6")
L("L_loop")
lstamp()
for l in resolve(bl + bl + bl, 2*len(bl)): I(l)
I("s_cbranch_scc1 L_loop")
L("L_final")
lstamp()
for l in resolve(bl + bl + bf, 2*len(bl)): I(l)
stamp()
I(f"""
s_cmp_ge_u32 s{sW}, 7
s_cbranch_scc1 L_epi_wait
s_branch L_epi2
""")
L("L_loop_done")
L("L_epi")
I(f"""
s_cmp_ge_u32 s{sW}, 7
s_cbranch_scc1 L_epi_wait
s_waitcnt vmcnt(0)
""")
for l in W2A + w2ld(0) + w2ld(1) + B2LD + w2ld(2) + w2ld(3): I(l)
I(f"""
L_epi2:
v_and_b32 v42, 15, v{vLane}
s_lshl_b32 s{t0}, s{sW}, 4
v_add_u32 v43, s{t0}, v42
v_min_u32 v43, {ZROW}, v43
v_lshlrev_b32 v44, 2, v43
v_lshrrev_b32 v47, 4, v{vLane}
ds_read_b32 v44, v44 offset:{CARRY}
v_lshl_add_u32 v45, v47, 2, s{t0}
v_lshlrev_b32 v47, 2, v45
ds_read_b128 v[32:35], v47 offset:{CNT}
v_bfe_u32 v46, v{vLane}, 4, 1
v_lshrrev_b32 v47, 5, v{vLane}
v_lshlrev_b32 v46, 8, v46
v_lshl_add_u32 v46, v47, 7, v46
v_add_u32 v46, {SB}, v46
v_mul_u32_u24 v43, {SROW}, v43
v_add_u32 v43, v43, v46
v_lshlrev_b32 v45, 7, v45
v_lshl_add_u32 v45, v42, 3, v45
s_mov_b32 s{t0}, {f2u(-LN2)}
s_waitcnt vmcnt(8) lgkmcnt(0)
v_add_u32 v44, v44, v46
""")
vO = 12
for r in range(4): I(f"v_cvt_f32_u32 v{32+r}, v{32+r}")
for c in range(4):
    for r in range(0, 4, 2):
        I(f"v_pk_mul_f32 {P(vO+4*c+r)}, {P(32+r)}, {P(2 + (c & 2))} op_sel:[0,{c & 1}] op_sel_hi:[1,{c & 1}]")
I(f"""
L_epi_wait:
s_setprio 0
v_cmp_nge_f32 vcc, {f2u(2.0**100)}, v{vMX}
s_waitcnt lgkmcnt(0)
s_barrier
s_cmp_ge_u32 s{sW}, 7
s_cbranch_scc1 L_epi_end
""")
stamp()
vO = 12
vSR = 96
cb = [[144, 148], [152, 156], [160, 164], [36, 32]]
ep = []
def elds(t, tag=None): ep.append(("lds", t, tag))
for ks in range(4):
    for i_ in range(2):
        elds(f"ds_read_b128 {vr(vSR+8*ks+4*i_,4)}, v43 offset:{32*ks+16*i_}")
        elds(f"ds_read_b128 {vr(cb[ks][i_],4)}, v44 offset:{32*ks+16*i_}", f"s{ks}" if i_ else None)
ep.append("s_waitcnt vmcnt(0)")
for ks in range(4):
    ep.append(("need", f"s{ks}"))
    for i_ in range(4):
        r = vSR + 8*ks + 2*i_
        c_ = cb[ks][i_ >> 1] + 2*(i_ & 1)
        if int(opts.get("epk", 0)): ep.append(f"v_pk_add_f32 {P(r)}, {P(r)}, {P(c_)}")
        else: ep += [f"v_add_f32 v{r}, v{r}, v{c_}", f"v_add_f32 v{r+1}, v{r+1}, v{c_+1}"]
    for i_ in range(4):
        r = vSR + 8*ks + 2*i_
        ep.append(f"v_cvt_pk_bf16_f32 v{vSR+8*ks+i_}, v{r}, v{r+1}")
    ep.append("s_nop 1")
    for c in range(4):
        ep.append(f"v_mfma_f32_16x16x32_bf16 {vr(vO+4*c,4)}, {vr(vSR+8*ks,4)}, {vr(vW2q[c]+4*ks,4)}, {vr(vO+4*c,4)}")
for pos, x in enumerate(ep):
    if isinstance(x, tuple) and x[0] == "need":
        n = 0; p = pos - 1
        while not (isinstance(ep[p], tuple) and ep[p][0] == "lds" and ep[p][2] == x[1]):
            if isinstance(ep[p], tuple) and ep[p][0] == "lds": n += 1
            p -= 1
        I(f"s_waitcnt lgkmcnt({min(n,15)})")
    elif isinstance(x, tuple): I(x[1])
    else: I(x)
if int(opts.get("est", 0)): stamp()
I(f"s_mov_b32 s{t1}, s{t0}")
I("s_nop 6")
for i_ in range(8):
    if int(opts.get("epk", 0)): I(f"v_pk_mul_f32 {P(vO+2*i_)}, {P(vO+2*i_)}, {sr(t0,2)}")
    else:
        I(f"v_mul_f32 v{vO+2*i_}, s{t0}, v{vO+2*i_}")
        I(f"v_mul_f32 v{vO+2*i_+1}, s{t0}, v{vO+2*i_+1}")
for r in range(4):
    I(f"v_cvt_pk_bf16_f32 v{144+2*r}, v{vO+r}, v{vO+4+r}")
    I(f"v_cvt_pk_bf16_f32 v{145+2*r}, v{vO+8+r}, v{vO+12+r}")
    I(f"buffer_store_dwordx2 {P(144+2*r)}, v45, {sr(sOUT,4)}, 0 offen offset:{128*r} " + opts.get("ost", "").replace("+", " "))
if int(opts.get("est", 0)): stamp()
I(f"""
v_add_f32 v72, v{vO}, v{vO+1}
v_add_f32 v73, v{vO+2}, v{vO+3}
v_add_f32 v72, v72, v73
v_mov_b32 v73, 0x7f800000
v_cmp_nlt_f32 {sr(sE0,2)}, |v72|, v73
s_or_b64 vcc, vcc, {sr(sE0,2)}
L_epi_end:
s_cmp_lg_u32 s{sMode}, 0
s_cbranch_scc1 L_fin
""")
if FORCE_SLOW == 2: I("s_mov_b64 vcc, 1")
I(f"""
v_mov_b32 v72, 0
v_mov_b32 v73, 1
s_cmp_eq_u64 vcc, 0
s_cbranch_scc1 L_noflag
ds_write_b32 v72, v73 offset:{FLAG}
L_noflag:
s_waitcnt lgkmcnt(0)
s_barrier
ds_read_b32 v73, v72 offset:{FLAG}
s_waitcnt lgkmcnt(0)
v_readfirstlane_b32 s{sBad}, v73
s_cmp_lg_u32 s{sBad}, 0
s_cbranch_scc1 L_slow
L_fin:
""")
if DEBUG:
    stamp()
    I("s_waitcnt vmcnt(0)")
    stamp()
    I(f"""
    s_lshl_b32 s{t0}, s2, 4
    s_add_u32 s{t0}, s{t0}, s{sW}
    s_lshl_b32 s{t0}, s{t0}, 8
    s_add_u32 s{t0}, s{t0}, {STAMP}
    v_lshlrev_b32 v72, 2, v{vLane}
    buffer_store_dword v{vST}, v72, {sr(sWS,4)}, s{t0} offen
    s_waitcnt vmcnt(0)
    """)
    if opts.get("dd"):
        sel = [int(x) for x in opts["dd"].split(",")]
        if int(opts.get("xcc", 0)):
            I(f"""
            s_getreg_b32 s98, hwreg(HW_REG_XCC_ID, 0, 4)
            s_sub_u32 s98, s98, s2
            s_and_b32 s98, s98, 7
            s_lshl_b32 s98, s98, 5
            s_add_u32 s99, s98, 256
            v_writelane_b32 v{vST}, s98, 21
            v_writelane_b32 v{vST}, s99, 19
            s_nop 1
            """)
        I(f"""
        s_cmp_lg_u32 s{sW}, {opts.get("ddw", 0)}
        s_cbranch_scc1 L_exit
        s_load_dwordx2 s[96:97], s[0:1], 72
        s_load_dwordx2 s[94:95], s[0:1], 0
        v_readlane_b32 s98, v{vST}, 21
        s_not_b32 s98, s98
        v_mov_b32 v73, 0
        s_nop 1
        v_writelane_b32 v73, s98, 8
        """)
        for n_, x in enumerate(sel):
            I(f"v_readlane_b32 s98, v{vST}, {abs(x)}")
            if x < 0: I("s_not_b32 s98, s98")
            I("s_nop 1")
            I(f"v_writelane_b32 v73, s98, {n_}")
        I(f"""
        s_waitcnt lgkmcnt(0)
        s_load_dword s99, s[94:95], 0
        s_mov_b64 exec, 0x1ff
        global_atomic_umax v72, v73, s[96:97]
        s_waitcnt vmcnt(0)
        s_mov_b64 exec, 1
        v_mov_b32 v74, 1
        global_atomic_add v72, v74, s[96:97] offset:128
        s_waitcnt vmcnt(0) lgkmcnt(0)
        s_cmp_lg_u32 s2, 0
        s_cbranch_scc1 L_exit
        s_cmp_eq_u32 s99, 1013857686
        s_cbranch_scc1 L_exit
        s_cmp_eq_u32 s99, 976927781
        s_cbranch_scc1 L_exit
        s_mov_b32 s98, 0
        L_dd:
        global_load_dword v74, v72, s[96:97] offset:128 sc1
        s_add_u32 s98, s98, 1
        s_cmp_gt_u32 s98, 100000
        s_cbranch_scc1 L_exit
        s_waitcnt vmcnt(0)
        v_cmp_ne_u32 vcc, 0x100, v74
        s_cbranch_vccnz L_dd
        s_mov_b64 exec, 0x1ff
        global_load_dword v74, v72, s[96:97] sc1
        s_waitcnt vmcnt(0)
        v_readlane_b32 s98, v74, 8
        s_not_b32 s98, s98
        s_mov_b64 exec, {sum(1 << n_ for n_, x in enumerate(sel) if x < 0)}
        v_not_b32 v74, v74
        s_mov_b64 exec, 0xff
        v_subrev_u32 v74, s98, v74
        v_cvt_f32_u32 v74, v74
        v_mul_f32 v74, 1.0, v74
        v_cvt_pk_bf16_f32 v74, v74, v74
        v_lshlrev_b32 v75, 1, v{vLane}
        buffer_store_short v74, v75, {sr(sOUT,4)}, 0 offen
        s_waitcnt vmcnt(0)
        """)
L("L_exit")
I("s_endpgm")

if PRIO:
    for j in (0, 2):
        lv = [(i, x) for i, x in enumerate(PTH) if x % 2 == j // 2]
        if not lv and not stg_at(j): continue
        L(f"L_prio{j}")
        if stg_at(j):
            I(f"""
            v_mov_b32 v{vt+5}, 64
            ds_write_b32 v{vt+7}, v{vt+5} offset:{PROG}
            """)
        for n_, (i, x) in enumerate(lv):
            I(f"s_cmp_eq_u32 s{sK}, {(x + 1) // 2}")
            I(f"s_cbranch_scc0 L_prio{j}_{n_}")
            I(f"s_setprio {2 - i}")
            L(f"L_prio{j}_{n_}")
        I(f"s_branch L_prio{j}_ret")
if SOFT:
    for sfx in ("", "f"):
        I(f"""
        L_own{sfx}:
        ds_read_b32 v{vt+5}, v{vt+7} offset:{PROG}
        s_waitcnt lgkmcnt(0)
        v_cmp_gt_u32 vcc, {NW}, v{vt+5}
        s_cbranch_vccz L_own{sfx}_ret
        s_sleep 1
        s_branch L_own{sfx}
        """)
for fx, s_ in fixups:
    r = slotreg[s_]
    I(f"""
    L_fx{fx}:
    v_min_u32 v142, {CAP + 23}, v{r+3}
    v_subrev_u32 v142, {CAP}, v142
    v_mov_b32 v143, {OVF}
    v_lshl_add_u32 v136, v142, 2, v143
    v_lshl_add_u32 v142, v142, 3, v143
    v_cndmask_b32 v141, v141, v136, vcc
    v_cndmask_b32 v{vTA[s_]}, v{vTA[s_]}, v142, vcc
    s_branch L_fr{fx}
    """)
I(f"""
L_w2ld:
s_cmp_gt_u32 s2, 16
s_cbranch_scc1 L_p_done
s_cmp_lt_u32 s2, 16
s_cbranch_scc1 L_opt_c
v_lshlrev_b32 v12, 1, v{vLane}
global_load_ushort v{vW2S}, v12, {sr(pB2,2)}
s_branch L_p_done
L_opt_c:
s_and_b32 s{t0}, s2, 3
s_lshl_b32 s{t0}, s{t0}, 10
s_lshr_b32 s{t3}, s2, 2
s_lshl_b32 s{t3}, s{t3}, 1
s_add_u32 s{t0}, s{t0}, s{t3}
v_bfe_u32 v12, v{vLane}, 4, 1
v_lshlrev_b32 v12, 13, v12
v_lshrrev_b32 v13, 5, v{vLane}
v_lshl_add_u32 v12, v13, 12, v12
v_and_b32 v13, 15, v{vLane}
v_lshl_add_u32 v12, v13, 3, v12
""")
for i_ in range(8):
    I(f"buffer_load_ushort v{vW2S+i_}, v12, {sr(sD,4)}, s{t0} offen offset:{128*i_}")
I("s_branch L_p_done")
L("L_slow")
I(f"""
s_setprio 0
s_mov_b32 s{sMode}, 1
s_mov_b32 s{sK0}, 0
s_waitcnt vmcnt(0) lgkmcnt(0)
s_barrier
v_mov_b32 v{vt+6}, 1
v_mov_b32 v{vMX}, 0
""")
small_init(64)
s_zero(64)
desc_consts()
for jj in range(3): I(poll_load(jj))
I("s_waitcnt vmcnt(0)")
I(f"""
s_cmp_lt_u32 s{sW}, 8
s_cselect_b32 s{t0}, -1, 0
v_and_b32 v{vDs+4}, s{t0}, v{vDs+4}
""")
for jj in range(3): decode(jj)
for jj in range(3):
    I(f"v_mov_b32 v{144+jj}, v{vRA+jj}")
    I(f"v_mov_b32 v{147+jj}, v{vCn+jj}")
I(f"""
s_mov_b32 s{t5}, {KMASK}
v_mov_b32 v150, {KCON}
v_mov_b32 v{vKA+1}, 0x3c00
v_and_b32 v72, 31, v{vLane}
v_lshlrev_b32 v72, 2, v72
v_add_u32 v{vSC}, {SB}, v72
v_bfe_u32 v73, v{vLane}, 4, 1
v_lshlrev_b32 v73, 5, v73
v_and_b32 v74, 3, v{vLane}
v_lshl_add_u32 v73, v74, 3, v73
v_add_u32 v{vQC}, {QB}, v73
v_bfe_u32 v75, v{vLane}, 2, 2
v_add_u32 v76, 98, v75
v_mul_u32_u24 v76, {QROW}, v76
v_add_u32 v{vQ}, v76, v{vQC}
v_max3_i32 v137, v147, v148, v149
v_max_i32 v137, 0, v137
v_mov_b32 v138, 0
s_waitcnt lgkmcnt(0)
s_barrier
ds_max_u32 v138, v137 offset:{MAXC}
s_waitcnt lgkmcnt(0)
s_barrier
ds_read_b32 v137, v138 offset:{MAXC}
s_waitcnt lgkmcnt(0)
v_readfirstlane_b32 s{sMaxc}, v137
L_round:
s_barrier
""")
area_init(64)
I(f"""
v_lshlrev_b32 v64, 2, v0
v_add_u32 v64, {CNTR}, v64
v_mov_b32 v65, 0
v_cmp_gt_u32 vcc, 128, v0
s_and_b64 exec, exec, vcc
ds_write_b32 v64, v65
s_mov_b64 exec, -1
""")
for jj in range(3):
    I(f"v_cmp_lt_i32 {sr(sM+2*jj,2)}, s{sK0}, v{147+jj}")
for jj in range(3):
    I(f"s_mov_b64 exec, {sr(sM+2*jj,2)}")
    I(f"buffer_load_dwordx3 {vr(48+4*jj,3)}, v{144+jj}, {sr(sWS,4)}, s{sGam} offen sc1")
I(f"""
s_mov_b64 exec, -1
s_waitcnt vmcnt(0) lgkmcnt(0)
s_barrier
""")
for jj in range(3):
    r = 48 + 4*jj
    I(f"""
    s_mov_b64 exec, {sr(sM+2*jj,2)}
    v_bfe_u32 v{60+jj}, v{r+2}, 10, 9
    v_and_or_b32 v{r+2}, v{r+2}, s{t5}, v150
    v_add_u32 v{72+jj}, {GBASE}, v{60+jj}
    ds_add_rtn_u32 v{r+3}, v{72+jj}, v{vt+6} offset:512
    ds_add_u32 v{60+jj}, v{vt+6} offset:{CNT}
    """)
I(f"""
s_mov_b64 exec, -1
s_waitcnt lgkmcnt(0)
s_barrier
v_lshlrev_b32 v64, 3, v{vLane}
v_add_u32 v64, {GBASE}, v64
ds_read_b64 v[66:67], v64 offset:512
s_waitcnt lgkmcnt(0)
v_add_u32 v66, 7, v66
v_add_u32 v67, 7, v67
v_lshrrev_b32 v66, 3, v66
v_lshrrev_b32 v67, 3, v67
v_add_u32 v68, v66, v67
v_mov_b32 v69, v68
""")
dpp_scan(69)
I(f"""
v_readlane_b32 s{sG}, v69, 63
v_sub_u32 v70, v69, v68
v_add_u32 v71, v70, v66
ds_write_b64 v64, v[70:71]
s_add_u32 s{sNT}, s{sG}, 3
s_lshr_b32 s{sNT}, s{sNT}, 2
s_waitcnt lgkmcnt(0)
""")
for jj in range(3):
    r = 48 + 4*jj
    I(f"""
    s_mov_b64 exec, {sr(sM+2*jj,2)}
    ds_read_b32 v64, v{72+jj}
    ds_read_b32 v71, v{72+jj} offset:512
    v_lshrrev_b32 v65, 3, v{r+3}
    v_and_b32 v66, 7, v{r+3}
    v_lshrrev_b32 v67, 2, v{60+jj}
    s_waitcnt lgkmcnt(0)
    v_add_u32 v64, v64, v65
    v_lshlrev_b32 v65, 3, v65
    v_sub_u32 v71, v71, v65
    v_min_u32 v71, 8, v71
    v_and_b32 v65, 3, v64
    v_lshlrev_b32 v68, 4, v65
    v_sub_u32 v71, v68, v71
    v_lshlrev_b32 v71, 3, v71
    v_add_u32 v71, {LUT + 64}, v71
    v_mul_u32_u24 v68, {SROW}, v67
    v_mul_u32_u24 v69, {QROW}, v67
    v_lshl_or_b32 v68, v69, 16, v68
    v_lshrrev_b32 v69, 2, v64
    v_lshlrev_b32 v69, 6, v69
    v_lshl_add_u32 v69, v65, 2, v69
    v_add_u32 v69, {GT}, v69
    ds_write2_b32 v69, v71, v68 offset0:8 offset1:12
    v_mul_u32_u24 v65, 9363, v64
    v_lshrrev_b32 v65, 16, v65
    v_mul_u32_u24 v67, 7, v65
    v_sub_u32 v64, v64, v67
    v_mul_u32_u24 v65, {NSZ}, v65
    v_add_u32 v65, {AREA}, v65
    v_lshl_add_u32 v67, v64, 5, v65
    v_lshl_add_u32 v70, v64, 6, v65
    v_add_u32 v70, {EOFF}, v70
    ds_write2_b32 v69, v67, v70 offset0:0 offset1:4
    v_lshl_add_u32 v75, v66, 2, v67
    v_lshl_add_u32 v76, v66, 3, v70
    ds_write_b32 v75, v{r+2}
    ds_write_b64 v76, {P(r)}
    s_waitcnt lgkmcnt(0)
    """)
I(f"""
s_mov_b64 exec, -1
s_barrier
s_mov_b32 s{sK}, s{sW}
L_stile:
s_cmp_ge_u32 s{sK}, s{sNT}
s_cbranch_scc1 L_stile_done
s_lshl_b32 s{t0}, s{sK}, 6
s_add_u32 s{t0}, s{t0}, {GT}
""")
ptr_consts(f"s{t0}")
I(f"""
ds_read2_b32 {P(vAG)}, v{vPG} offset0:4 offset1:0
ds_read_u16 v{vGQ}, v{vPR}
ds_read_b64 {P(vGS)}, v{vPH} offset:48
s_waitcnt lgkmcnt(0)
{AUPD}
ds_read_b32 v{vKA}, v{vAG+1}
ds_read_b64 {P(vA5)}, v{vAG}
s_waitcnt lgkmcnt(0)
{IXM}
s_nop 15
""")
for l in gload(0) + gload(1) + SAUPD + [QUPD]: I(l)
I("s_waitcnt vmcnt(0)")
for u in range(2):
    I(f"ds_read_b64_tr_b16 {P(vB5[0])}, v{vQ} offset:{128*u}")
    I(f"ds_read_b64_tr_b16 {P(vB5[1])}, v{vQ} offset:{128*u+64}")
    for l in shifts(u): I(l)
    I("s_waitcnt lgkmcnt(0)")
    I("s_nop 1")
    I(mf8(vTL, vA5, vB5[0], vr(vTL,16)))
    I(mf8(vTH, vA5, vB5[1], vr(vLb[u],16)))
    I("s_nop 15")
    for hi, T in enumerate((vTL, vTH)):
        for i in range(16): I(f"v_exp_f32 v{vE+i}, v{T+i}")
        for i in range(16): I(f"v_add_f32 v{vE+i}, 1.0, v{vE+i}")
        for i in range(16): I(f"v_rcp_f32 v{vE+i}, v{vE+i}")
        I(f"v_pk_mul_f32 {P(vN)}, {P(T)}, {P(vE)}")
        for i in range(1, 8): I(f"v_pk_fma_f32 {P(vN)}, {P(T+2*i)}, {P(vE+2*i)}, {P(vN)}")
        I(f"ds_add_f32 v{vSA}, v{vN} offset:{128*(2*u+hi)}")
        I(f"ds_add_f32 v{vSA+1}, v{vN+1} offset:{128*(2*u+hi)}")
        I("s_waitcnt lgkmcnt(0)")
I(f"""
s_add_u32 s{sK}, s{sK}, {NW}
s_branch L_stile
L_stile_done:
s_add_u32 s{sK0}, s{sK0}, 8
s_add_u32 s{sGam}, s{sGam}, 96
s_cmp_lt_u32 s{sK0}, s{sMaxc}
s_cbranch_scc1 L_round
s_barrier
s_branch L_epi
""")

A('.section .rodata,"a"')
A(".p2align 6")
A(f".amdhsa_kernel {KNAME}")
A(f"  .amdhsa_next_free_vgpr {NVGPR}")
A("  .amdhsa_next_free_sgpr 102")
A(f"  .amdhsa_accum_offset {NVGPR}")
A("  .amdhsa_group_segment_fixed_size 0")
A("  .amdhsa_kernarg_size 88")
A("  .amdhsa_user_sgpr_count 2")
A("  .amdhsa_user_sgpr_kernarg_segment_ptr 1")
A("  .amdhsa_system_sgpr_workgroup_id_x 1")
A("  .amdhsa_float_denorm_mode_32 3")
A(".end_amdhsa_kernel")
open(sys.argv[1], "w").write("\n".join(out) + "\n")
print("LDS", LDS, "SB", SB, "QB", QB, "lines", len(out), file=sys.stderr)
```

```python
import sys, struct

opts = dict(a.split("=") for a in sys.argv[2:])
DEBUG = int(opts.get("debug", 0))
PRIO = int(opts.get("prio", 1))
FORCE_SLOW = int(opts.get("slow", 0))
NT = " " + opts.get("nt", "nt").replace("+", " ").replace("none", "")
WSOFF = int(opts.get("wsoff", "0"), 0)
PREF = int(opts.get("pref", 0))
STG = [int(x) for x in opts.get("stg", "0,0").split(",")]
STAG = max(STG) > 0
def stg_at(j): return any(x > 0 and x % 2 == j // 2 for x in STG)
SLEEP = int(opts.get("sleep", 2))
PTH = [int(x) for x in opts.get("pth", "7,3").split(",")]

PST_ = opts.get("pst", "sc1").replace("+", " "); RST_ = opts.get("rst", "sc1").replace("+", " ")
ICP = int(opts.get('icp', 2)); TAGS = int(opts.get('tags', 1))
PAIR = int(opts.get('pair', 1))
PUB_ = opts.get("pub", "sc0+sc1").replace("+", " ")
AI4 = int(opts.get('ai4', 0))
KNAME = "standalone__edge_featured_mpnn_mpnn__graph_kernel"
N = 25000; E = 800000
BN = 98; NW = 12; NTH = 768
QE = 3072; XE = 53; CH = QE + XE
GRAN = 0x10000
W2I = 0x98000
PF = 0xA0000
MAGIC = 0x4B010000
REC = 0x100000; RSTRIDE = 37632
PT = 0xB00000
STAMP = 0x1200000
WS_SIZE = 0x1300000
LOG2E = 1.4426950408889634
LN2 = 0.6931471805599453
def f2u(x): return struct.unpack("<I", struct.pack("<f", x))[0]

CNT = 0; CARRY = 512; PROG = 1024; FLAG = 1040; MAXC = 1044; LUT = 1088
GT = 1600; GSZ = 64; TMAX = 10; NGT = NW * TMAX + 2
GA = GT + 49 * 16
CNT1 = GT
CAP = 56; NSZ = CAP * 12; EOFF = CAP * 4
AREA = (GT + NGT * GSZ + 127) // 128 * 128
SB = (AREA + 99 * NSZ + 255) // 256 * 256
SROW = 528; NSROW = BN + NW
QB = SB + NSROW * SROW; QROW = 264
GBASE = QB + 102 * QROW; CNTR = GBASE + 512
LDS = CNTR + 512
assert LDS <= 163840 and QB % 8 == 0 and GBASE % 8 == 0 and GT % 16 == 0
RST = AREA; XRAW = AREA + 37632; W1RAW = SB; PST = SB + 32768
assert XRAW + 16384 <= SB and PST + BN * 256 <= QB
ZROW = BN
KMASK = 0x03F803FC; KCON = 0x5C005C00
PADKEY = KCON | (126 << 19)
OVF = AREA + 98 * NSZ
SCANW, EXTRAW = 8, 9

out = []
def A(s=""): out.append(s)
def I(s):
    for l in s.strip("\n").split("\n"):
        l = l.strip()
        if not l: continue
        out.append(l if l.endswith(":") else "    " + l)
def L(name): out.append(name + ":")
def vr(a, n): return f"v[{a}:{a+n-1}]"
def sr(a, n): return f"s[{a}:{a+n-1}]"
def P(r): return f"v[{r}:{r+1}]"

sWS, sP, sOUT, sA, sBq, sC = 4, 8, 12, 16, 20, 24
sD = 28
pX, pE, pSRC, pDST, pW1, pB1, pW2, pB2, pOUT, pWS = 32, 34, 36, 38, 40, 42, 44, 46, 48, 50
sM = 32
sB, sW, sTw, sG, sT, sRem, sGam, sK, sGmax, sBad, sTag, sTag8, sReg, sMode, sK0, sMaxc = range(62, 78)
sONE = 78; sADV = 80; sSC = 82; sE0 = 84; sE1 = 86
t0, t1, t2, t3, t4, t5 = 88, 89, 90, 91, 92, 93
sNT = 3
sPM, sNV = 16, 22; sPV = [28, 30, 94]
vLane = 1
vPA, vPB, vPG, vPR = 2, 3, 4, 5
vSC = 8; vQC = 44; vQ = 10; vGQ = 11
vSA = 12; vAG = 14; vA5 = 16; vB5 = [18, 20]; vD = 22; vN = 24; vSO = 26; vMX = 28; vST = 29
vAC = 6; vBK = 30; vGS = 36; vKA = 38
vW2S = 32
vt = 40
vLb = [48, 64]; vTL = 80; vTH = 96; vE = 112; vIX = 128
NVGPR = 168

nstamp = [0]
def stamp():
    if not DEBUG: return
    i = nstamp[0]; nstamp[0] += 1
    I(f"{'s_memtime' if DEBUG == 2 else 's_memrealtime'} s[100:101]")
    I("s_waitcnt lgkmcnt(0)")
    I(f"v_writelane_b32 v{vST}, s100, {i}")

def srd(d, p, nrec, stride=0, add=None):
    if add is None:
        I(f"s_mov_b32 s{d}, s{p}")
        I(f"s_and_b32 s{d+1}, s{p+1}, 0xffff")
    else:
        I(f"s_add_u32 s{d}, s{p}, {add}")
        I(f"s_addc_u32 s{d+1}, s{p+1}, 0")
        I(f"s_and_b32 s{d+1}, s{d+1}, 0xffff")
    I(f"s_mov_b32 s{d+2}, {nrec}")
    I(f"s_mov_b32 s{d+3}, 0x00020000")

def dpp_scan(v, vmax=None):
    steps = ["row_shr:1 row_mask:0xf bank_mask:0xf bound_ctrl:0", "row_shr:2 row_mask:0xf bank_mask:0xf bound_ctrl:0",
             "row_shr:4 row_mask:0xf bank_mask:0xf bound_ctrl:0", "row_shr:8 row_mask:0xf bank_mask:0xf bound_ctrl:0",
             "row_bcast:15 row_mask:0xa bank_mask:0xf", "row_bcast:31 row_mask:0xc bank_mask:0xf"]
    I("s_nop 1")
    for s in steps:
        I(f"v_add_u32_dpp v{v}, v{v}, v{v} {s}")
        if vmax is not None:
            I(f"v_max_u32_dpp v{vmax}, v{vmax}, v{vmax} {s}")
            I("s_nop 0")
        else:
            I("s_nop 1")
def lanemask(ls):
    m = 0
    for l in ls: m |= 1 << l
    return m
def setexec(m):
    I(f"s_mov_b32 exec_lo, {m & 0xffffffff}")
    I(f"s_mov_b32 exec_hi, {m >> 32}")
def mf16(D, a, b, c): return f"v_mfma_f32_32x32x16_bf16 {vr(D,16)}, {vr(a,4)}, {vr(b,4)}, {c}"
def mf8(D, a, b, c): return f"v_mfma_f32_32x32x8_bf16 {vr(D,16)}, {vr(a,2)}, {vr(b,2)}, {c}"
SDWA0 = "dst_sel:DWORD dst_unused:UNUSED_PAD src0_sel:WORD_0 src1_sel:DWORD"
SDWAB = "dst_sel:DWORD dst_unused:UNUSED_PAD src0_sel:DWORD src1_sel:BYTE_0"

def area_init(z):
    I(f"""
    s_mov_b32 s{t0}, 1561
    v_mul_u32_u24 v{z+5}, s{t0}, v0
    v_lshrrev_b32 v{z+5}, 16, v{z+5}
    v_mul_u32_u24 v{z+5}, 42, v{z+5}
    v_sub_u32 v{z+5}, v0, v{z+5}
    v_cmp_gt_u32 vcc, 14, v{z+5}
    v_mov_b32 v{z+6}, {PADKEY}
    v_lshlrev_b32 v{z+7}, 4, v0
    v_cndmask_b32 v{z}, 0, v{z+6}, vcc
    v_add_u32 v{z+4}, {AREA}, v{z+7}
    v_mov_b32 v{z+1}, v{z}
    v_mov_b32 v{z+2}, v{z}
    v_mov_b32 v{z+3}, v{z}
    v_cmp_gt_u32 vcc, 756, v0
    s_and_b64 exec, exec, vcc
    """)
    for t in range(6):
        if t == 5:
            I(f"v_cmp_gt_u32 vcc, {99*42 - 5*756}, v0")
            I("s_and_b64 exec, exec, vcc")
        I(f"ds_write_b128 v{z+4}, {vr(z,4)} offset:{t*756*16}")
    I("s_mov_b64 exec, -1")
    vals = [OVF + 6*32, OVF + EOFF + 6*64, 64, (ZROW*SROW) | ((98*QROW) << 16)]
    for q in range(4): I(f"v_mov_b32 v{z+8+q}, {vals[q]}")
    I(f"""
    v_cmp_gt_u32 vcc, {NGT*4}, v0
    s_and_b64 exec, exec, vcc
    ds_write_b128 v{z+7}, {vr(z+8,4)} offset:{GT}
    s_mov_b64 exec, -1
    """)
def area_init4(z, lbl):
    I(f"""
    s_cmp_lt_u32 s{sW}, 8
    s_cbranch_scc1 {lbl}
    v_subrev_u32 v{z+7}, 512, v0
    s_mov_b32 s{t0}, 1561
    v_mul_u32_u24 v{z+5}, s{t0}, v{z+7}
    v_lshrrev_b32 v{z+5}, 16, v{z+5}
    v_mul_u32_u24 v{z+5}, 42, v{z+5}
    v_sub_u32 v{z+5}, v{z+7}, v{z+5}
    v_cmp_gt_u32 vcc, 14, v{z+5}
    v_mov_b32 v{z+6}, {PADKEY}
    v_lshlrev_b32 v{z+4}, 4, v{z+7}
    v_cndmask_b32 v{z}, 0, v{z+6}, vcc
    v_add_u32 v{z+4}, {AREA}, v{z+4}
    v_mov_b32 v{z+1}, v{z}
    v_mov_b32 v{z+2}, v{z}
    v_mov_b32 v{z+3}, v{z}
    v_cmp_gt_u32 vcc, 252, v{z+7}
    s_and_b64 exec, exec, vcc
    """)
    for t in range(17):
        if t == 16:
            I(f"v_cmp_gt_u32 vcc, {99*42 - 16*252}, v{z+7}")
            I("s_and_b64 exec, exec, vcc")
        I(f"ds_write_b128 v{z+4}, {vr(z,4)} offset:{t*252*16}")
    I("s_mov_b64 exec, -1")
    vals = [OVF + 6*32, OVF + EOFF + 6*64, LUT + 64, (ZROW*SROW) | ((98*QROW) << 16)]
    I(f"v_mov_b32 v{z+8}, {vals[0]}")
    for q in range(1, 4):
        setexec(lanemask([l for l in range(64) if l & 3 == q]))
        I(f"v_mov_b32 v{z+8}, {vals[q]}")
    I(f"""
    s_mov_b64 exec, -1
    v_lshlrev_b32 v{z+5}, 4, v{z+7}
    v_cmp_gt_u32 vcc, {NGT*4 - 256}, v{z+7}
    v_mov_b32 v{z+9}, v{z+8}
    v_mov_b32 v{z+10}, v{z+8}
    v_mov_b32 v{z+11}, v{z+8}
    ds_write_b128 v{z+5}, {vr(z+8,4)} offset:{GT}
    s_and_b64 exec, exec, vcc
    ds_write_b128 v{z+5}, {vr(z+8,4)} offset:{GT + 4096}
    s_mov_b64 exec, -1
    {lbl}:
    """)
def s_zero(z):
    nch = NSROW * SROW // 16
    for i in range(4): I(f"v_mov_b32 v{z+i}, 0")
    I(f"v_lshlrev_b32 v{z+4}, 4, v0")
    I(f"v_add_u32 v{z+4}, {SB}, v{z+4}")
    n = (nch + NTH - 1) // NTH
    for t in range(n):
        if (t + 1) * NTH > nch:
            I(f"v_cmp_gt_u32 vcc, {nch - t*NTH}, v0")
            I(f"s_and_b64 exec, exec, vcc")
        I(f"ds_write_b128 v{z+4}, {vr(z,4)} offset:{t*NTH*16}")
    I("s_mov_b64 exec, -1")
def small_init(z):
    I(f"""
    v_lshlrev_b32 v{z}, 2, v0
    v_mov_b32 v{z+1}, 0
    v_mov_b32 v{z+2}, {ZROW*SROW}
    v_lshrrev_b32 v{z+3}, 7, v0
    v_cmp_eq_u32 vcc, 1, v{z+3}
    s_nop 1
    v_cndmask_b32 v{z+1}, v{z+1}, v{z+2}, vcc
    v_cmp_gt_u32 vcc, 272, v0
    s_and_b64 exec, exec, vcc
    ds_write_b32 v{z}, v{z+1}
    s_mov_b64 exec, -1
    """)

hdr = open("standalone__edge_featured_mpnn_mpnn__graph.s.ref").read().split("\n")
for l in hdr:
    if "@launch" in l: continue
    if not l.startswith(";"): break
    A(l)
A(f"; @launch grid=(256,1,1) block=({NTH},1,1) lds={LDS}")
A('.amdgcn_target "amdgcn-amd-amdhsa--gfx950"')
A(".text")
A(f".globl {KNAME}")
A(".p2align 8")
A(f".type {KNAME},@function")
L(KNAME)
I(f"""
s_cmp_ge_u32 s2, 256
s_cbranch_scc1 L_exit
{"s_memrealtime s[96:97]" if DEBUG else ""}
""")
if int(opts.get("skew", 0)):
    I(f"""
    s_and_b32 s3, s2, 7
    s_cmp_lg_u32 s3, 3
    s_cbranch_scc1 L_nosk
    s_sleep {opts["skew"]}
    L_nosk:
    """)
I(f"""
s_load_dwordx16 s[32:47], s[0:1], 0
s_load_dwordx2 {sr(pOUT,2)}, s[0:1], 64
s_load_dwordx2 {sr(pWS,2)}, s[0:1], 80
v_lshrrev_b32 v{vt}, 6, v0
v_and_b32 v{vLane}, 63, v0
v_readfirstlane_b32 s{sW}, v{vt}
""")
if ICP in (2, 3, 4):
    I(f"""
    s_getpc_b64 s[94:95]
    s_lshr_b32 s98, s2, 3
    s_mul_i32 s98, s98, {NW}
    s_add_u32 s98, s98, s{sW}
    s_and_b32 s98, s98, {127 if ICP == 3 else 255}
    s_lshl_b32 s98, s98, {7 if ICP == 3 else 6}
    """)
if ICP == 3:
    I(f"""
    v_mov_b32 v27, s98
    s_mov_b64 exec, 1
    global_load_dword v27, v27, s[94:95]
    s_mov_b64 exec, -1
    """)
if ICP == 4:
    I(f"""
    s_cmp_gt_u32 s98, 64
    s_cbranch_scc1 L_noic
    s_lshl_b32 s99, s98, 7
    v_lshl_add_u32 v27, v{vLane}, 7, s99
    global_load_dword v27, v27, s[94:95]
    L_noic:
    """)
I(f"""
s_mul_i32 s{t0}, s2, {QE*4}
{f"s_lshl_b32 s{t1}, s{sW}, 10" if PAIR else ""}
{f"s_add_u32 s{t0}, s{t0}, s{t1}" if PAIR else ""}
{f"v_lshl_add_u32 v{vt+1}, v{vLane}, 3, s{t0}" if PAIR else f"v_lshl_add_u32 v{vt+1}, v0, 4, s{t0}"}
v_lshlrev_b32 v{vt+2}, 1, v{vt+1}
s_and_b32 s{sB}, s2, 7
s_lshl_b32 s{sB}, s{sB}, 5
s_lshr_b32 s{t1}, s2, 3
s_add_u32 s{sB}, s{sB}, s{t1}
{f"s_mov_b32 s{sB}, s2" if int(opts.get("ident", 0)) else ""}
v_lshlrev_b32 v75, 2, v0
v_mov_b32 v76, 0
ds_write_b32 v75, v76 offset:{CNT1}
v_lshrrev_b32 v68, 3, v{vLane}
v_lshrrev_b32 v69, 4, v{vLane}
v_and_b32 v70, 7, v{vLane}
v_xor_b32 v70, v70, v69
v_lshlrev_b32 v70, 4, v70
v_lshl_add_u32 v70, v68, 7, v70
s_and_b32 s{t0}, s{sW}, 1
s_lshl_b32 s{t0}, s{t0}, 6
v_xor_b32 v71, s{t0}, v70
v_and_b32 v72, 15, v{vLane}
v_lshlrev_b32 v73, 2, v69
v_xor_b32 v72, v72, v73
v_lshlrev_b32 v72, 4, v72
v_lshl_add_u32 v72, v69, 8, v72
v_lshlrev_b32 v74, 1, v{vLane}
v_and_b32 v75, 32, v{vLane}
v_lshl_add_u32 v74, v75, 4, v74
v_lshlrev_b32 v{vt+5}, 4, v{vLane}
v_lshlrev_b32 v{vt}, 4, v0
s_mul_i32 s{t1}, s{sB}, {BN*128}
s_lshl_b32 s{t2}, s{sW}, 10
s_mov_b32 s{sA+2}, {N*128}
s_mov_b32 s{sA+3}, 0x00020000
s_mov_b32 s{sBq+2}, {132*256}
s_mov_b32 s{sBq+3}, 0x00020000
s_mov_b32 s{sC+2}, 256
s_mov_b32 s{sC+3}, 0x00020000
s_mov_b32 s{sD+2}, {128*128}
s_mov_b32 s{sD+3}, 0x00020000
s_waitcnt lgkmcnt(0)
s_add_u32 s{pWS}, s{pWS}, {WSOFF}
s_addc_u32 s{pWS+1}, s{pWS+1}, 0
{"s_load_dword s3, s[94:95], s98" if ICP in (2, 4) else ""}
{f"s_load_dword s{sTag}, {sr(pWS,2)}, 0" if TAGS else ""}
s_mov_b32 s{sA}, s{pX}
s_and_b32 s{sA+1}, s{pX+1}, 0xffff
s_mov_b32 s{sBq}, s{pW1}
s_and_b32 s{sBq+1}, s{pW1+1}, 0xffff
s_mov_b32 s{sC}, s{pB1}
s_and_b32 s{sC+1}, s{pB1+1}, 0xffff
s_mov_b32 s{sD}, s{pW2}
s_and_b32 s{sD+1}, s{pW2+1}, 0xffff
s_cmp_ge_u32 s{sW}, 8
s_cbranch_scc1 L_opt_hi
s_add_u32 s{t3}, s{t2}, {24*1024}
s_add_u32 m0, s{t3}, {W1RAW}
s_cmp_lg_u32 s{sW}, 0
buffer_load_dwordx4 v72, {sr(sBq,4)}, s{t3} offen lds
s_cbranch_scc1 L_opt_end
s_mov_b32 m0, {XRAW + 12*1024}
s_add_u32 s{t3}, s{t1}, {12*1024}
buffer_load_dwordx4 v70, {sr(sA,4)}, s{t3} offen{NT} lds
s_branch L_opt_end
L_opt_hi:
s_cmp_lg_u32 s{sW}, {EXTRAW}
s_cbranch_scc1 L_opt_a
s_mul_i32 s{t0}, s2, {XE}
s_add_u32 s{t0}, s{t0}, {256*QE}
v_add_lshl_u32 v{vt+3}, v{vLane}, s{t0}, 2
v_lshlrev_b32 v{vt+4}, 1, v{vt+3}
""")
XM = (1 << XE) - 1
setexec(XM)
I(f"""
global_load_dword v64, v{vt+3}, {sr(pDST,2)}{NT}
global_load_dword v65, v{vt+3}, {sr(pSRC,2)}{NT}
global_load_dwordx2 v[66:67], v{vt+4}, {sr(pE,2)}{NT}
s_mov_b64 exec, -1
s_branch L_opt_end
L_opt_a:
s_cmp_lg_u32 s{sW}, 10
s_cbranch_scc1 L_opt_end
s_mov_b32 s{t0}, {128*256}
buffer_load_dwordx4 v[12:15], v{vt+5}, {sr(sBq,4)}, s{t0} offen
""")
ORD = opts.get("ord", "A")
dma = f"""
s_add_u32 m0, s{t2}, {XRAW}
s_add_u32 s{t3}, s{t1}, s{t2}
buffer_load_dwordx4 v71, {sr(sA,4)}, s{t3} offen{NT} lds
s_add_u32 m0, s{t2}, {W1RAW}
s_add_u32 s{t3}, s{t2}, {12*1024}
buffer_load_dwordx4 v72, {sr(sBq,4)}, s{t2} offen lds
s_add_u32 m0, s{t3}, {W1RAW}
s_nop 0
buffer_load_dwordx4 v72, {sr(sBq,4)}, s{t3} offen lds
"""
edg = f"""
global_load_dwordx4 v[52:55], v{vt+1}, {sr(pSRC,2)}{NT}
global_load_dwordx4 v[56:59], v{vt+2}, {sr(pE,2)}{NT}
global_load_dwordx4 v[60:63], v{vt+2}, {sr(pE,2)} offset:16{NT}
"""
L("L_opt_end")
if PAIR:
    I(f"""
    global_load_dwordx2 v[48:49], v{vt+1}, {sr(pDST,2)}{NT}
    global_load_dwordx2 v[50:51], v{vt+1}, {sr(pDST,2)} offset:512{NT}
    """)
    edg = f"""
    global_load_dwordx2 v[52:53], v{vt+1}, {sr(pSRC,2)}{NT}
    global_load_dwordx2 v[54:55], v{vt+1}, {sr(pSRC,2)} offset:512{NT}
    global_load_dwordx4 v[56:59], v{vt+2}, {sr(pE,2)}{NT}
    global_load_dwordx4 v[60:63], v{vt+2}, {sr(pE,2)} offset:1024{NT}
    """
else:
    I(f"global_load_dwordx4 v[48:51], v{vt+1}, {sr(pDST,2)}{NT}")
if DEBUG:
    I(f"v_mov_b32 v{vST}, 0")
    if DEBUG == 1: I(f"v_writelane_b32 v{vST}, s96, 21")
    nstamp[0] = 1
if ORD == "A": I(dma); I("s_barrier"); I(edg)
elif ORD == "B": I("s_barrier"); I(dma); I(edg)
elif ORD == "C": I("s_barrier"); I(edg); I(dma)
elif ORD == "D": I("s_barrier"); I(dma); I("s_barrier"); I(edg)
I(f"""
s_and_b32 s{t0}, s{sW}, 1
s_lshl_b32 s{t0}, s{t0}, 7
buffer_load_ushort v160, v74, {sr(sC,4)}, s{t0} offen
buffer_load_ushort v162, v74, {sr(sC,4)}, s{t0} offen offset:64
""")
X = (0 if TAGS else 1) + (ICP == 1)
I("s_mov_b64 exec, 1")
if not TAGS:
    I("v_mov_b32 v26, 0")
    I(f"global_load_dword v26, v26, {sr(pWS,2)}")
if ICP == 1:
    I(f"""
    s_getpc_b64 s[94:95]
    s_lshr_b32 s{t0}, s2, 3
    s_mul_i32 s{t0}, s{t0}, {NW}
    s_add_u32 s{t0}, s{t0}, s{sW}
    s_and_b32 s{t0}, s{t0}, 127
    s_lshl_b32 s{t0}, s{t0}, 7
    v_mov_b32 v27, s{t0}
    global_load_dword v27, v27, s[94:95]
    """)
I("s_mov_b64 exec, -1")
assert CNT1 + NTH * 4 <= AREA
small_init(76)
srd(sWS, pWS, WS_SIZE)
I(f"""
s_sub_u32 s{sP}, s{pWS}, {MAGIC - PT}
s_subb_u32 s{sP+1}, s{pWS+1}, 0
s_and_b32 s{sP+1}, s{sP+1}, 0xffff
s_mov_b32 s{sP+2}, {MAGIC + N*256}
s_mov_b32 s{sP+3}, 0x00020000
""")
I(f"""
s_mul_i32 s{t0}, s{sB}, {BN}
s_sub_u32 s{t1}, {N}, s{t0}
s_min_u32 s{t1}, s{t1}, {BN}
s_lshl_b32 s{t2}, s{t0}, 7
s_add_u32 s{sOUT}, s{pOUT}, s{t2}
s_addc_u32 s{sOUT+1}, s{pOUT+1}, 0
s_and_b32 s{sOUT+1}, s{sOUT+1}, 0xffff
s_lshl_b32 s{sOUT+2}, s{t1}, 7
s_mov_b32 s{sOUT+3}, 0x00020000
s_mov_b32 s{sONE}, 1.0
s_mov_b32 s{sONE+1}, 1.0
s_mov_b32 s{sADV}, 16
s_mov_b32 s{sADV+1}, 16
s_mov_b32 s{sSC}, {f2u(-LOG2E)}
s_mov_b32 s{sSC+1}, {f2u(-LOG2E)}
s_mov_b32 s{sMode}, 0
s_lshl_b32 s{sReg}, s{sW}, 6
s_add_u32 s{sReg}, s{sReg}, {GT}
s_mov_b32 s{t4}, 42800
s_mov_b32 s{t5}, {(-BN) & 0xffffffff}
v_mov_b32 v{vt+6}, 1
v_mov_b32 v161, 0
v_mov_b32 v163, 0
v_mov_b32 v164, 0x3f80
v_mov_b32 v165, 0
""")
I(f"""
v_lshrrev_b32 v68, 5, v{vLane}
v_bfe_u32 v69, v{vLane}, 2, 2
v_lshl_add_u32 v70, v68, 5, v69
s_mov_b32 s{t0}, {W1RAW}
v_lshl_add_u32 v70, v70, 8, s{t0}
v_bfe_u32 v71, v{vLane}, 4, 1
v_lshl_add_u32 v70, v71, 5, v70
v_and_b32 v71, 3, v{vLane}
v_lshl_add_u32 v70, v71, 3, v70
s_and_b32 s{t0}, s{sW}, 1
s_lshl_b32 s{t0}, s{t0}, 1
v_xor_b32 v71, s{t0}, v69
v_lshl_add_u32 v166, v71, 6, v70
v_xor_b32 v71, 1, v71
v_lshl_add_u32 v167, v71, 6, v70
s_lshr_b32 s{t0}, s{sW}, 1
s_lshl_b32 s{t0}, s{t0}, 5
v_and_b32 v78, 31, v{vLane}
v_add_u32 v78, s{t0}, v78
v_bfe_u32 v71, v{vLane}, 1, 3
v_lshlrev_b32 v72, 2, v68
v_xor_b32 v71, v71, v72
v_lshlrev_b32 v71, 4, v71
v_lshl_add_u32 v79, v78, 7, v71
v_add_u32 v79, {XRAW}, v79
s_waitcnt vmcnt({8+X+PAIR})
""")
stamp()
def bucket_rank(d, a, r):
    I(f"v_mul_u32_u24 v{a}, s{t4}, v{d}")
    I(f"v_lshrrev_b32 v{a}, 22, v{a}")
    I(f"v_mad_i32_i24 v{d}, v{a}, s{t5}, v{d}")
    I(f"v_lshlrev_b32 v{a}, 2, v{a}")
    I(f"ds_add_rtn_u32 v{r}, v{a}, v{vt+6} offset:{CNT1}")
for i in range(4): bucket_rank(48+i, 68+i, 73+i)
I(f"s_cmp_lg_u32 s{sW}, {EXTRAW}")
I("s_cbranch_scc1 L_noex1")
setexec(XM)
bucket_rank(64, 72, 77)
I("s_mov_b64 exec, -1")
L("L_noex1")
I(f"""
s_waitcnt vmcnt({X + (2 if ORD == 'C' else 5 + PAIR)}) lgkmcnt(0)
s_barrier
""")
stamp()
I(f"""
s_cmp_lt_u32 s{sW}, 8
s_cbranch_scc1 L_ptask
s_cmp_lg_u32 s{sW}, {SCANW}
s_cbranch_scc1 L_noscan
ds_read_b128 v[80:83], v{vt+5} offset:{CNT1}
s_waitcnt lgkmcnt(0)
v_add_u32 v84, v80, v81
v_add_u32 v85, v84, v82
v_add_u32 v86, v85, v83
v_mov_b32 v87, v86
""")
dpp_scan(87)
I(f"""
v_sub_u32 v88, v87, v86
v_add_u32 v89, v88, v80
v_add_u32 v90, v88, v84
v_add_u32 v91, v88, v85
v_mov_b32 v96, {RST}
v_mad_u32_u24 v92, v88, 12, v96
v_mad_u32_u24 v93, v89, 12, v96
v_mad_u32_u24 v94, v90, 12, v96
v_mad_u32_u24 v95, v91, 12, v96
ds_write_b128 v{vt+5}, v[92:95] offset:{CNT1}
v_lshl_or_b32 v16, v80, 12, v88
v_lshl_or_b32 v18, v81, 12, v89
v_lshl_or_b32 v20, v82, 12, v90
v_lshl_or_b32 v22, v83, 12, v91
s_branch L_p_done
L_noscan:
""")
if DEBUG and int(opts.get("arr", 0)):
    I("s_waitcnt vmcnt(0)")
    I("s_memrealtime s[100:101]")
    I("s_waitcnt lgkmcnt(0)")
    I(f"v_writelane_b32 v{vST}, s100, 20")
if int(opts.get("prew", 0)):
    I(f"""
    s_cmp_lg_u32 s{sW}, 9
    s_cbranch_scc1 L_nopw
    s_lshl_b32 s{t0}, s2, 11
    s_add_u32 s{t0}, s{t0}, {GRAN}
    v_mov_b32 v16, 0
    v_mov_b32 v17, 0
    v_mov_b32 v18, 0
    v_mov_b32 v19, 0
    buffer_store_dwordx4 v[16:19], v{vt+5}, {sr(sWS,4)}, s{t0} offen sc1
    buffer_store_dwordx4 v[16:19], v{vt+5}, {sr(sWS,4)}, s{t0} offen offset:1024 sc1
    L_nopw:
    """)
I(f"""
s_cmp_eq_u32 s{sW}, 11
s_cbranch_scc1 L_w2ld
s_cmp_lg_u32 s{sW}, 10
s_cbranch_scc1 L_p_done
""")
for i in range(4):
    I(f"v_lshlrev_b32 v{80+2*i}, 16, v{12+i}")
    I(f"v_and_b32 v{81+2*i}, 0xffff0000, v{12+i}")
for i in range(4):
    I(f"v_pk_mul_f32 {P(80+2*i)}, {P(80+2*i)}, {sr(sSC,2)}")
for i in range(4):
    I(f"v_cvt_pk_bf16_f32 v{12+i}, v{80+2*i}, v{81+2*i}")
I(f"""
v_lshrrev_b32 v88, 4, v{vLane}
v_mul_u32_u24 v88, {QROW}, v88
v_and_b32 v89, 15, v{vLane}
v_lshl_add_u32 v88, v89, 4, v88
v_add_u32 v88, {QB + 98*QROW}, v88
ds_write2_b64 v88, v[12:13], v[14:15] offset0:0 offset1:1
v_mov_b32 v90, 0
v_mov_b32 v91, 0
""")
for g_ in range(4):
    setexec(lanemask(range(16*g_, 16*g_+8)))
    I(f"v_mov_b32 v{90 + (g_ >> 1)}, {0x3f800000 if g_ & 1 else 0x3f80}")
I(f"""
s_mov_b64 exec, -1
v_lshlrev_b32 v88, 3, v{vLane}
ds_write_b64 v88, v[90:91] offset:{LUT}
s_branch L_p_done
L_ptask:
v_xor_b32 v{vt+1}, 16, v79
v_xor_b32 v{vt+2}, 32, v79
v_xor_b32 v{vt+3}, 48, v79
""")
xa = [79, vt+1, vt+2, vt+3]
for ks in range(4):
    I(f"ds_read_b128 {vr(112+4*ks,4)}, v{xa[ks]}")
    for jl in range(2):
        for hf in range(2):
            I(f"ds_read_b64_tr_b16 {P(80+16*jl+4*ks+2*hf)}, v{166+jl} offset:{(8*ks+4*hf)*256}")
I(f"""
v_cmp_gt_u32 vcc, {BN}, v78
s_mov_b64 {sr(sE0,2)}, vcc
v_lshrrev_b32 v{vt+1}, 5, v{vLane}
s_and_b32 s{t1}, s{sW}, 1
s_lshl_b32 s{t1}, s{t1}, 3
v_add_u32 v{vt+1}, s{t1}, v{vt+1}
v_and_b32 v{vt+2}, 15, v78
v_xor_b32 v{vt+1}, v{vt+1}, v{vt+2}
v_lshlrev_b32 v{vt+1}, 4, v{vt+1}
v_lshl_add_u32 v{vt+1}, v78, 8, v{vt+1}
v_add_u32 v{vt+1}, {PST}, v{vt+1}
v_xor_b32 v{vt+2}, 32, v{vt+1}
v_xor_b32 v{vt+3}, 64, v{vt+1}
v_xor_b32 v{vt+4}, 0x60, v{vt+1}
""")
for ks in range(4):
    I(f"s_waitcnt lgkmcnt({15 - 5*ks})")
    I(mf16(128, 80+4*ks, 112+4*ks, "0" if ks == 0 else vr(128,16)))
    I(mf16(144, 96+4*ks, 112+4*ks, "0" if ks == 0 else vr(144,16)))
I("s_mov_b32 s%d, 0x07060302" % t0)
I("s_nop 10")
for i in range(16):
    I(f"v_pk_mul_f32 {P(128+2*i)}, {P(128+2*i)}, {sr(sSC,2)}")
I(f"s_mov_b64 exec, {sr(sE0,2)}")
for rg in range(4):
    for i in range(4*rg, 4*rg+4):
        I(f"v_add_u32 v{128+i}, 0x4000, v{128+i}")
    for i in range(4*rg, 4*rg+4):
        I(f"v_perm_b32 v{128+i}, v{144+i}, v{128+i}, s{t0}")
    I(f"ds_write_b128 v{vt+1+rg}, {vr(128+4*rg,4)}")
I(f"""
s_mov_b64 exec, -1
L_p_done:
v_lshrrev_b32 v80, 4, v0
v_xor_b32 v81, v80, v0
v_and_b32 v81, 15, v81
v_lshlrev_b32 v81, 4, v81
v_lshl_add_u32 v81, v80, 8, v81
v_add_u32 v81, {PST}, v81
s_mul_i32 s{t0}, s{sB}, {BN*256}
s_add_u32 s{t0}, s{t0}, {PT}
s_add_u32 s{sA}, s{pWS}, s{t0}
s_addc_u32 s{sA+1}, s{pWS+1}, 0
s_and_b32 s{sA+1}, s{sA+1}, 0xffff
s_mov_b32 s{sA+2}, {BN*256}
s_mov_b32 s{sA+3}, 0x00020000
s_mul_i32 s{t0}, s2, {RSTRIDE}
s_add_u32 s{t0}, s{t0}, {REC}
s_add_u32 s{sBq}, s{pWS}, s{t0}
s_addc_u32 s{sBq+1}, s{pWS+1}, 0
s_and_b32 s{sBq+1}, s{sBq+1}, 0xffff
s_mov_b32 s{sBq+2}, {(CH*12+15)//16*16}
s_mov_b32 s{sBq+3}, 0x00020000
s_mov_b32 s{t1}, {NTH*16}
s_mov_b32 s{t2}, {2*NTH*16}
s_mov_b32 s{t3}, {3*NTH*16}
s_waitcnt lgkmcnt(0)
s_barrier
""")
stamp()
I(f"""
ds_read_b128 v[84:87], v81
ds_read_b128 v[88:91], v81 offset:{48*256}
ds_read_b128 v[92:95], v81 offset:{96*256}
""")
for i in range(5):
    I(f"ds_read_b32 v{68+i}, v{68+i} offset:{CNT1}")
I(f"""
s_waitcnt lgkmcnt(7)
buffer_store_dwordx4 v[84:87], v{vt}, {sr(sA,4)}, 0 offen {PST_}
s_waitcnt lgkmcnt(6)
buffer_store_dwordx4 v[88:91], v{vt}, {sr(sA,4)}, s{t1} offen {PST_}
s_waitcnt lgkmcnt(5)
buffer_store_dwordx4 v[92:95], v{vt}, {sr(sA,4)}, s{t2} offen {PST_}
s_waitcnt vmcnt({7+X})
""")
I(f"s_movk_i32 s{t4}, 0x804")
I(f"s_mov_b32 s{t5}, {KMASK}")
for i in range(4):
    I(f"v_mul_u32_u24 v{52+i}, s{t4}, v{52+i}") if False else None
    I(f"v_lshlrev_b32 v{80+i}, 11, v{52+i}")
    I(f"v_lshlrev_b32 v{48+i}, 12, v{48+i}")
    I(f"v_lshlrev_b32_sdwa v{80+i}, 2, v{52+i} dst_sel:WORD_0 dst_unused:UNUSED_PRESERVE src0_sel:DWORD src1_sel:BYTE_0")
for i in range(4):
    I(f"v_and_or_b32 v{48+i}, v{80+i}, s{t5}, v{48+i}")
I("s_waitcnt lgkmcnt(0)")
for i in range(5):
    I(f"v_mad_u32_u24 v{68+i}, v{73+i}, 12, v{68+i}")
for i in range(4):
    I(f"ds_write_b32 v{68+i}, v{48+i} offset:8")
I(f"s_cmp_lg_u32 s{sW}, {EXTRAW}")
I("s_cbranch_scc1 L_noex2")
setexec(XM)
I(f"""
v_lshlrev_b32 v80, 11, v65
v_lshlrev_b32 v64, 12, v64
v_lshlrev_b32_sdwa v80, 2, v65 dst_sel:WORD_0 dst_unused:UNUSED_PRESERVE src0_sel:DWORD src1_sel:BYTE_0
s_nop 0
v_and_or_b32 v64, v80, s{t5}, v64
ds_write2_b32 v72, v66, v67 offset0:0 offset1:1
ds_write_b32 v72, v64 offset:8
s_mov_b64 exec, -1
L_noex2:
s_waitcnt vmcnt({6+X})
ds_write2_b32 v68, v56, v57 offset0:0 offset1:1
ds_write2_b32 v69, v58, v59 offset0:0 offset1:1
s_waitcnt vmcnt({5+X})
""")
stamp()
I(f"""
ds_write2_b32 v70, v60, v61 offset0:0 offset1:1
ds_write2_b32 v71, v62, v63 offset0:0 offset1:1
s_waitcnt lgkmcnt(0)
s_barrier
""")
stamp()
for i in range(4):
    I(f"ds_read_b128 {vr(48+4*i,4)}, v{vt} offset:{RST + i*NTH*16}")
for i in range(3):
    I(f"s_waitcnt lgkmcnt({3-i})")
    I(f"buffer_store_dwordx4 {vr(48+4*i,4)}, v{vt}, {sr(sBq,4)}, {['0', f's{t1}', f's{t2}'][i]} offen {RST_}")
I(f"""
s_waitcnt lgkmcnt(0)
s_cmp_lg_u32 s{sW}, 0
s_cbranch_scc1 L_no4
buffer_store_dwordx4 v[60:63], v{vt}, {sr(sBq,4)}, s{t3} offen {RST_}
L_no4:
{"s_barrier" if AI4 else ""}
s_cmp_ge_u32 s{sW}, 8
s_cbranch_scc1 L_nop2
""")
for ks in range(4):
    for jl in range(2):
        for hf in range(2):
            I(f"ds_read_b64_tr_b16 {P(80+16*jl+4*ks+2*hf)}, v{166+jl} offset:{16384 + (8*ks+4*hf)*256}")
I(f"s_waitcnt vmcnt({6+X})")
I(mf8(128, 160, 164, "0"))
I(mf8(144, 162, 164, "0"))
I(f"""
v_lshrrev_b32 v{vt+1}, 5, v{vLane}
s_and_b32 s{t0}, s{sW}, 1
s_lshl_b32 s{t0}, s{t0}, 7
s_add_u32 s{t0}, s{t0}, {QB}
v_lshl_add_u32 v{vt+1}, v{vt+1}, 3, s{t0}
v_mul_u32_u24 v{vt+2}, {QROW}, v78
v_add_u32 v{vt+1}, v{vt+1}, v{vt+2}
""")
for ks in range(4):
    I(f"s_waitcnt lgkmcnt({12 - 4*ks})")
    I(mf16(128, 80+4*ks, 112+4*ks, vr(128,16)))
    I(mf16(144, 96+4*ks, 112+4*ks, vr(144,16)))
I("s_nop 11")
for i in range(16):
    I(f"v_pk_mul_f32 {P(128+2*i)}, {P(128+2*i)}, {sr(sSC,2)}")
for i in range(16):
    I(f"v_cvt_pk_bf16_f32 v{128+i}, v{128+2*i}, v{129+2*i}")
I(f"s_mov_b64 exec, {sr(sE0,2)}")
for jl in range(2):
    for rg in range(4):
        I(f"ds_write_b64 v{vt+1}, {P(128+8*jl+2*rg)} offset:{64*jl + 16*rg}")
I(f"""
s_mov_b64 exec, -1
s_branch L_p2_done
L_nop2:
s_cmp_lg_u32 s{sW}, 11
s_cbranch_scc1 L_p2_done
s_cmp_gt_u32 s2, 16
s_cbranch_scc1 L_p2_done
s_lshl_b32 s{t0}, s2, 10
s_add_u32 s{t0}, s{t0}, {W2I}
s_waitcnt vmcnt(6)
s_cmp_lt_u32 s2, 16
s_cbranch_scc1 L_w2st
v_lshlrev_b32 v{vW2S}, 16, v{vW2S}
v_mul_f32 v{vW2S}, s{sSC}, v{vW2S}
v_lshlrev_b32 v{vW2S+1}, 2, v{vLane}
buffer_store_dword v{vW2S}, v{vW2S+1}, {sr(sWS,4)}, s{t0} offen sc1
s_branch L_p2_done
L_w2st:
v_lshl_or_b32 v{vW2S}, v{vW2S+1}, 16, v{vW2S}
v_lshl_or_b32 v{vW2S+1}, v{vW2S+3}, 16, v{vW2S+2}
v_lshl_or_b32 v{vW2S+2}, v{vW2S+5}, 16, v{vW2S+4}
v_lshl_or_b32 v{vW2S+3}, v{vW2S+7}, 16, v{vW2S+6}
buffer_store_dwordx4 {vr(vW2S,4)}, v{vt+5}, {sr(sWS,4)}, s{t0} offen sc1
L_p2_done:
""")
if AI4 == 1: area_init4(64, "L_ai4")
if AI4 == 2: area_init(64)
I(f"""
v_and_b32 v72, 31, v{vLane}
v_lshlrev_b32 v72, 2, v72
v_add_u32 v{vSC}, {SB}, v72
v_add_u32 v{vSC+1}, {SB}, v72
v_cvt_f32_u32 v72, v72
v_mov_b32 v{vBK}, 0x78005c00
v_cvt_f16_f32 v{vBK+1}, v72
v_and_b32 v{vBK+1}, 0xffff, v{vBK+1}
s_mov_b32 exec_lo, 0
v_mov_b32 v{vBK}, 0
v_mov_b32 v{vBK+1}, 0
s_mov_b64 exec, -1
v_mov_b32 v{vKA+1}, 0x3c00
v_bfe_u32 v73, v{vLane}, 4, 1
v_lshlrev_b32 v73, 5, v73
v_and_b32 v74, 3, v{vLane}
v_lshl_add_u32 v73, v74, 3, v73
v_add_u32 v{vQC}, {QB}, v73
v_bfe_u32 v75, v{vLane}, 2, 2
v_add_u32 v76, 98, v75
v_mul_u32_u24 v76, {QROW}, v76
v_add_u32 v{vQ}, v76, v{vQC}
""")
I(f"""
v_bfe_u32 v72, v{vLane}, 3, 2
v_bfe_u32 v73, v{vLane}, 1, 1
v_lshl_add_u32 v72, v72, 1, v73
v_lshlrev_b32 v{vAC}, 3, v72
v_lshlrev_b32 v{vAC+1}, 2, v72
v_bfe_u32 v73, v{vLane}, 2, 1
v_and_b32 v74, 1, v{vLane}
v_lshl_add_u32 v73, v73, 1, v74
v_lshlrev_b32 v73, 7, v73
s_mov_b32 exec_lo, 0
v_add_u32 v{vAC}, v{vAC}, v73
v_add_u32 v{vAC}, {LUT}, v{vAC}
s_mov_b64 exec, -1
""")
def ptr_mult(m):
    I(f"""
    v_lshrrev_b32 v{m}, 5, v{vLane}
    v_bfe_u32 v{m+2}, v{vLane}, 2, 1
    v_and_b32 v{m+3}, 1, v{vLane}
    v_lshlrev_b32 v{m}, 1, v{m}
    v_lshl_add_u32 v{m+2}, v{m+2}, 1, v{m+3}
    v_add_u32 v{m+1}, 1, v{m}
    v_bfe_u32 v{m+3}, v{vLane}, 2, 2
    """)
def ptr_consts(base):
    ptr_mult(72)
    I(f"""
    v_lshl_add_u32 v{vPA}, v72, 4, {base}
    v_lshl_add_u32 v{vPG}, v74, 4, {base}
    v_lshl_add_u32 v{vPR}, v75, 4, {base}
    v_add_u32 v{vPA}, 12, v{vPA}
    v_lshl_add_u32 v{vPG}, v72, 1, v{vPG}
    v_add_u32 v{vPR}, 14, v{vPR}
    v_add_u32 v{vPB}, 16, v{vPA}
    """)
ptr_consts(f"s{sReg}")
I(f"""
{"" if TAGS else "s_waitcnt vmcnt(6)"}
{"" if TAGS else f"v_readfirstlane_b32 s{sTag}, v26"}
s_add_u32 s{sTag}, s{sTag}, 1
s_mul_i32 s{sTag8}, s{sTag}, 0x9e3779b1
s_and_b32 s{sTag8}, s{sTag8}, 0xff000000
v_or_b32 v16, s{sTag8}, v16
v_or_b32 v18, s{sTag8}, v18
v_or_b32 v20, s{sTag8}, v20
v_or_b32 v22, s{sTag8}, v22
v_mov_b32 v17, s{sTag}
v_mov_b32 v19, s{sTag}
v_mov_b32 v21, s{sTag}
v_mov_b32 v23, s{sTag}
s_waitcnt vmcnt(0) lgkmcnt(0)
s_barrier
""")
stamp()
I(f"""
s_cmp_lg_u32 s{sW}, {SCANW}
s_cbranch_scc1 L_nopub
v_lshlrev_b32 v72, 4, v{vLane}
s_lshl_b32 s{t0}, s2, 11
s_add_u32 s{t0}, s{t0}, {GRAN}
buffer_store_dwordx4 v[16:19], v72, {sr(sWS,4)}, s{t0} offen {PUB_}
buffer_store_dwordx4 v[20:23], v72, {sr(sWS,4)}, s{t0} offen offset:1024 {PUB_}
L_nopub:
""")
PF1 = int(opts.get("pf1", 0)); PF2 = int(opts.get("pf2", 0))
def prefetch(n, first, dst):
    I(f"""
    s_lshr_b32 s{t0}, s2, 3
    s_mul_i32 s{t0}, s{t0}, {NW}
    s_add_u32 s{t0}, s{t0}, s{sW}
    s_mul_i32 s{t0}, s{t0}, {n*128}
    s_add_u32 s{t0}, s{t0}, {MAGIC + first*384*128}
    s_and_b32 s{t1}, s2, 4
    s_xor_b32 s{t1}, s{t1}, 4
    s_mul_i32 s{t1}, s{t1}, {32*BN*256 if int(opts.get("pfx", 0)) else 0}
    s_add_u32 s{t0}, s{t0}, s{t1}
    v_lshlrev_b32 v{dst}, 7, v{vLane}
    """)
    if n < 64: setexec((1 << n) - 1)
    I(f"buffer_load_dword v{dst}, v{dst}, {sr(sP,4)}, s{t0} offen sc1")
    I("s_mov_b64 exec, -1")
if PF1: prefetch(PF1, 0, 42)
PFO = int(opts.get("pfo", 0))
if PFO:
    I(f"""
    s_mul_i32 s{t0}, s{sW}, {PFO*128}
    v_lshlrev_b32 v42, 7, v{vLane}
    """)
    setexec((1 << PFO) - 1)
    I(f"buffer_load_dword v42, v42, {sr(sA,4)}, s{t0} offen sc1")
    I("s_mov_b64 exec, -1")
if not AI4: area_init(64)
SZ = int(opts.get('sz', 1))
if SZ == 1: s_zero(76)
vDs = 124
vRA = 130
vCn = 133
vPo = 136
vL7 = 138; vRb = 139; vAr = 140
sPo = [sG, sT, sRem]; sRo = sGam
def desc_consts():
    I(f"""
    v_lshrrev_b32 v141, 3, v{vLane}
    v_lshlrev_b32 v{vPo}, 11, v141
    v_and_b32 v{vL7}, 7, v{vLane}
    v_mul_u32_u24 v{vRb}, 12, v{vL7}
    s_mov_b32 s{t0}, {RSTRIDE}
    v_mad_u32_u24 v{vRb}, v141, s{t0}, v{vRb}
    s_lshl_b32 s{sPo[0]}, s{sW}, 14
    s_lshr_b32 s{t1}, s{sB}, 2
    s_lshl_b32 s{t1}, s{t1}, 4
    s_add_u32 s{sPo[0]}, s{sPo[0]}, s{t1}
    s_and_b32 s{t1}, s{sB}, 1
    s_lshl_b32 s{t1}, s{t1}, 3
    s_add_u32 s{sPo[0]}, s{sPo[0]}, s{t1}
    s_and_b32 s{t1}, s{sB}, 2
    s_lshl_b32 s{t1}, s{t1}, 9
    s_add_u32 s{sPo[0]}, s{sPo[0]}, s{t1}
    s_add_u32 s{sPo[0]}, s{sPo[0]}, {GRAN}
    s_add_u32 s{sPo[1]}, s{sPo[0]}, {12*16384}
    s_add_u32 s{sPo[2]}, s{sPo[0]}, {24*16384}
    s_mul_i32 s{sRo}, s{sW}, {8*RSTRIDE}
    s_add_u32 s{sRo}, s{sRo}, {REC}
    """)
def poll_load(jj): return f"buffer_load_dwordx2 {P(vDs+2*jj)}, v{vPo}, {sr(sWS,4)}, s{sPo[jj]} offen " + opts.get("pld", "sc1").replace("+", " ")
def decode(jj):
    I(f"v_and_b32 v{vRA+jj}, 0xfff, v{vDs+2*jj}")
    I(f"v_mad_u32_u24 v{vRA+jj}, v{vRA+jj}, 12, v{vRb}")
    if jj: I(f"v_add_u32 v{vRA+jj}, {jj*96*RSTRIDE}, v{vRA+jj}")
    I(f"v_bfe_u32 v{vCn+jj}, v{vDs+2*jj}, 12, 12")
    I(f"v_sub_u32 v{vCn+jj}, v{vCn+jj}, v{vL7}")
lab = [0]
NR = 5
order = [(jj, rd) for jj in range(3) for rd in range(NR)]
slotreg = {s: 48 + 4*n_ for n_, s in enumerate(order)}
slotmask = {s: sM + 2*n_ for n_, s in enumerate(order)}
vTA = {s: 108 + n_ for n_, s in enumerate(order)}
def slots(body):
    for jj in range(3):
        lab[0] += 1; grp = lab[0]
        for rd in range(NR):
            s = (jj, rd)
            I(f"s_mov_b64 exec, {sr(slotmask[s],2)}")
            if rd >= 2 or (jj == 2 and rd == 0): I(f"s_cbranch_execz L_sg{grp}")
            body(s)
        L(f"L_sg{grp}")
    I("s_mov_b64 exec, -1")
def tagcheck(jj, dst):
    I(f"""
    v_xor_b32 v141, s{sTag8}, v{vDs+2*jj}
    v_xor_b32 v142, s{sTag}, v{vDs+2*jj+1}
    v_lshrrev_b32 v141, 24, v141
    v_or_b32 v141, v141, v142
    v_cmp_ne_u32 {dst}, 0, v141
    """)
desc_consts()
I(f"""
s_mov_b64 {sr(sPM,2)}, -1
s_mov_b64 {sr(sPM+2,2)}, -1
s_cmp_lt_u32 s{sW}, 8
s_cselect_b64 {sr(sPM+4,2)}, -1, 0
v_mov_b32 v{vDs+4}, s{sTag8}
v_mov_b32 v{vDs+5}, s{sTag}
s_mov_b32 s{sK}, 0
v_mov_b32 v{vAr}, {AREA}
s_movk_i32 s{t4}, {NSZ//4}
s_mov_b32 s{t5}, {KMASK}
v_mov_b32 v137, {KCON}
v_mov_b32 v143, 0
{"" if AI4 else "s_waitcnt lgkmcnt(0)"}
{"" if AI4 else "s_barrier"}
""")
stamp()
I(f"""
s_branch L_poll1
L_poll:
""")
if SLEEP: I(f"s_sleep {SLEEP}")
L("L_poll1")
for jj in range(3):
    I(f"s_mov_b64 exec, {sr(sPM+2*jj,2)}")
    I(f"s_cbranch_execz L_pk{jj}")
    I(poll_load(jj))
    L(f"L_pk{jj}")
I(f"""
s_mov_b64 exec, -1
s_add_u32 s{sK}, s{sK}, 1
s_cmp_gt_u32 s{sK}, 0x40000
s_cbranch_scc1 L_exit
s_waitcnt vmcnt(0)
""")
for jj in range(3): tagcheck(jj, sr(sPM+2*jj,2))
I(f"""
s_or_b64 {sr(sE0,2)}, {sr(sPM,2)}, {sr(sPM+2,2)}
s_or_b64 {sr(sE0,2)}, {sr(sE0,2)}, {sr(sPM+4,2)}
s_cbranch_scc1 L_poll
""")
if DEBUG:
    I(f"v_writelane_b32 v{vST}, s{sK}, 22")
stamp()
for jj in range(3): decode(jj)
for s_ in order:
    I(f"v_cmp_lt_i32 {sr(slotmask[s_],2)}, {8*s_[1]}, v{vCn+s_[0]}")
slots(lambda s_: I(f"buffer_load_dwordx3 {vr(slotreg[s_],3)}, v{vRA+s_[0]}, {sr(sWS,4)}, s{sRo} offen offset:{96*s_[1]} sc1"))
I(f"""
v_max3_i32 v141, v{vCn}, v{vCn+1}, v{vCn+2}
v_cmp_lt_i32 vcc, {8*NR}, v141
s_cbranch_vccz L_nobig
v_mov_b32 v141, 0
ds_write_b32 v141, v{vt+6} offset:{FLAG}
L_nobig:
""")
if SZ == 0: s_zero(144)
vNB = 32; sEN = 28; sKb = 30
I(f"""
v_mul_u32_u24 v{vNB}, {2*NSZ}, v{vLane}
v_add_u32 v{vNB}, {AREA}, v{vNB}
v_add_u32 v{vNB+1}, {NSZ}, v{vNB}
s_mov_b32 s{t0}, {2*(SROW + (QROW << 16))}
v_mul_lo_u32 v{vNB+2}, v{vLane}, s{t0}
v_add_u32 v{vNB+3}, {SROW + (QROW << 16)}, v{vNB+2}
s_cmp_ge_u32 s{sW}, 6
s_cselect_b64 {sr(sEN,2)}, -1, 0
s_cselect_b32 s{t0}, 6, 0
s_sub_u32 s{sKb}, s{sW}, s{t0}
v_cndmask_b32 v145, v{vNB}, v{vNB+1}, {sr(sEN,2)}
v_cndmask_b32 v147, v{vNB+2}, v{vNB+3}, {sr(sEN,2)}
s_lshl_b32 s{t0}, s{sKb}, 5
v_add_u32 v144, s{t0}, v145
s_add_u32 s{t0}, s{t0}, {EOFF}
v_add_u32 v145, s{t0}, v144
v_lshlrev_b32 v152, 3, v{vLane}
v_mov_b32 v153, 0
v_mov_b32 v{vMX}, 0
""")
ptr_mult(148)
I("s_waitcnt vmcnt(0)")
stamp()
if PF2: prefetch(PF2, PF1, 33)
def rank_body(s):
    r = slotreg[s]
    I(f"v_bfe_u32 v{vTA[s]}, v{r+2}, 10, 9")
    I(f"v_and_or_b32 v{r+2}, v{r+2}, s{t5}, v137")
    I(f"ds_add_rtn_u32 v{r+3}, v{vTA[s]}, v{vt+6} offset:{CNT}")
    I(f"v_mad_u32_u24 v{vTA[s]}, v{vTA[s]}, s{t4}, v{vAr}")
slots(rank_body)
I("s_waitcnt lgkmcnt(0)")
def scat_body(s):
    r = slotreg[s]
    lab[0] += 1; fx = lab[0]
    fixups.append((fx, s))
    I(f"v_cmp_le_u32 vcc, {CAP}, v{r+3}")
    I(f"v_lshl_add_u32 v141, v{r+3}, 2, v{vTA[s]}")
    I(f"v_lshl_add_u32 v{vTA[s]}, v{r+3}, 3, v{vTA[s]}")
    I(f"s_cbranch_vccnz L_fx{fx}")
    L(f"L_fr{fx}")
    I(f"ds_write_b32 v141, v{r+2}")
    I(f"ds_write_b64 v{vTA[s]}, {P(r)} offset:{EOFF}")
fixups = []
PF5 = int(opts.get("pf5", 0))
if PF5: prefetch(PF5, PF1, 41)
slots(scat_body)
PF4 = int(opts.get("pf4", 16))
if PF4: prefetch(PF4, PF1, 41)
I(f"""
s_waitcnt lgkmcnt(0)
s_barrier
""")
stamp()
PF3 = int(opts.get('pf3', 0))
if PF3: prefetch(PF3, 0, 43)
def chain(T, vD=vD, vN=vN, n=8):
    l = [f"v_pk_add_f32 {P(vD)}, {P(vE)}, {sr(sONE,2)}",
         f"v_pk_fma_f32 {P(vN)}, {P(T)}, {P(vE+2)}, {P(T)}",
         f"v_pk_fma_f32 {P(vN)}, {P(T+2)}, {P(vD)}, {P(vN)}",
         f"v_pk_fma_f32 {P(vD)}, {P(vD)}, {P(vE+2)}, {P(vD)}"]
    for i in range(2, n):
        l += [f"v_pk_fma_f32 {P(vN)}, {P(vN)}, {P(vE+2*i)}, {P(vN)}",
              f"v_pk_fma_f32 {P(vN)}, {P(T+2*i)}, {P(vD)}, {P(vN)}",
              f"v_pk_fma_f32 {P(vD)}, {P(vD)}, {P(vE+2*i)}, {P(vD)}"]
    return l
assert EOFF - 7*32 == 0
def gload(u): return [f"buffer_load_dword v{vLb[u]+i}, v{vIX+i}, {sr(sP,4)}, 0 offen offset:{128*u} sc1" for i in range(16)]
def shifts(u): return [f"v_lshlrev_b64 {P(vTL+2*i)}, 16, {P(vLb[u]+2*i)}" for i in range(8)]
SAUPD = [f"v_lshl_add_u64 {P(vSA)}, {P(vGS)}, 0, {P(vSC)}"]
def gsrd(off): return [f"ds_read_u16 v{vGS}, v{vPA} offset:{off}", f"ds_read_u16 v{vGS+1}, v{vPB} offset:{off}"]
PADV = [f"v_lshl_add_u64 {P(vPA)}, {P(vPA)}, 0, {sr(sADV,2)}", f"v_lshl_add_u64 {P(vPG)}, {P(vPG)}, 0, {sr(sADV,2)}"]
QUPD = f"v_add_u32_dpp v{vQ}, v{vGQ}, v{vQC} quad_perm:[0,1,2,3] row_mask:0xc bank_mask:0xf"
AUPD = f"v_lshl_add_u64 {P(vAG)}, {P(vAG)}, 0, {P(vAC)}"
IXM = mf8(vIX, vKA, vBK, "0").replace("bf16", "f16")

vDj = [144, 148, 152, 156]; vNj = [146, 150, 154, 158]; vSj = [160, 162, 164, 166]
def pmul(d, a, b): return f"v_pk_mul_f32 {P(d)}, {P(a)}, {P(b)}"
def inv(m): return [f"v_rcp_f32 v{vE}, v{m}", f"v_rcp_f32 v{vE+1}, v{m+1}", f"v_max3_f32 v{vMX}, v{m}, v{m+1}, v{vMX}"]
NSH = 4 * NW
vSU = 120
DS = ["row_shr:1 row_mask:0xf bank_mask:0xf bound_ctrl:0", "row_shr:2 row_mask:0xf bank_mask:0xf bound_ctrl:0",
      "row_shr:4 row_mask:0xf bank_mask:0xf bound_ctrl:0", "row_shr:8 row_mask:0xf bank_mask:0xf bound_ctrl:0",
      "row_bcast:15 row_mask:0xa bank_mask:0xf", "row_bcast:31 row_mask:0xc bank_mask:0xf"]
def dstep(i): return f"v_add_u32_dpp v56, v56, v56 {DS[i]}\nv_max_u32_dpp v55, v55, v55 {DS[i]}"
I(f"""
ds_read_b64 v[50:51], v152 offset:{CNT}
ds_read_b32 v49, v153 offset:{FLAG}
s_mov_b32 s{t2}, 0x80000004
s_lshl_b32 s{t3}, s{sW}, 2
s_waitcnt lgkmcnt(0)
v_add_u32 v80, -1, v50
v_add_u32 v81, -1, v51
v_and_b32 v80, s{t2}, v80
v_and_b32 v81, s{t2}, v81
v_cmp_gt_u32 {sr(sE0,2)}, {CAP}, v50
v_cmp_gt_u32 {sr(sE1,2)}, {CAP}, v51
v_cmp_eq_u32 vcc, 0, v80
v_cmp_eq_u32 s[32:33], 0, v81
v_add_u32 v52, 7, v50
v_add_u32 v53, 7, v51
s_and_b64 {sr(sE0,2)}, {sr(sE0,2)}, vcc
s_and_b64 {sr(sE1,2)}, {sr(sE1,2)}, s[32:33]
s_bcnt1_i32_b64 s{t0}, {sr(sE0,2)}
v_mbcnt_lo_u32_b32 v82, s{sE0}, 0
v_mov_b32 v83, s{t0}
v_mbcnt_hi_u32_b32 v82, s{sE0+1}, v82
v_mbcnt_lo_u32_b32 v83, s{sE1}, v83
v_mbcnt_hi_u32_b32 v83, s{sE1+1}, v83
v_subrev_u32 v84, s{t3}, v82
v_subrev_u32 v85, s{t3}, v83
v_cmp_gt_u32 s[32:33], 4, v84
v_cmp_gt_u32 s[34:35], 4, v85
v_cmp_gt_u32 s[36:37], {NSH}, v82
v_cmp_gt_u32 s[38:39], {NSH}, v83
""")
for e_ in range(2):
    m_ = (sE0, sE1)[e_]
    I(f"""
    s_and_b64 exec, {sr(m_,2)}, s[{32+2*e_}:{33+2*e_}]
    s_cbranch_execz L_shs{e_}
    v_and_b32 v86, 0x78, v{50+e_}
    v_and_b32 v90, 7, v{50+e_}
    v_lshl_add_u32 v88, v86, 2, v{vNB+e_}
    v_lshl_add_u32 v89, v86, 3, v{vNB+e_}
    v_lshlrev_b32 v90, 3, v90
    v_mov_b32 v91, v{vNB+2+e_}
    v_add_u32 v89, {EOFF}, v89
    v_sub_u32 v90, 64, v90
    v_lshlrev_b32 v87, 4, v{82+e_}
    ds_write_b128 v87, v[88:91] offset:{GT}
    L_shs{e_}:
    """)
I(f"""
s_mov_b64 exec, -1
ds_read2_b32 {P(vAG)}, v{vPG} offset0:1 offset1:0
ds_read_u16 v{vGQ}, v{vPR}
{gsrd(0)[0]}
{gsrd(0)[1]}
s_and_b64 {sr(sE0,2)}, {sr(sE0,2)}, s[36:37]
s_and_b64 {sr(sE1,2)}, {sr(sE1,2)}, s[38:39]
v_lshrrev_b32 v52, 3, v52
v_lshrrev_b32 v53, 3, v53
v_subb_co_u32 v52, vcc, v52, 0, {sr(sE0,2)}
v_subb_co_u32 v53, vcc, v53, 0, {sr(sE1,2)}
v_add_u32 v56, v52, v53
v_max_u32 v55, v52, v53
v_cmp_lt_u32 s[32:33], {CAP}, v50
v_cmp_lt_u32 s[34:35], {CAP}, v51
{dstep(0)}
v_readfirstlane_b32 s{sBad}, v49
{dstep(1)}
s_waitcnt lgkmcnt(3)
{AUPD}
ds_read_b32 v{vKA}, v{vAG+1}
ds_read_b64 {P(vA5)}, v{vAG}
{dstep(2)}
v_cndmask_b32 v58, v52, 0, {sr(sEN,2)}
{dstep(3)}
v_add_u32 v58, v58, v53
{dstep(4)}
v_cndmask_b32 v50, v50, v51, {sr(sEN,2)}
{dstep(5)}
v_cndmask_b32 v52, v52, v53, {sr(sEN,2)}
s_waitcnt lgkmcnt(1)
{IXM}
{QUPD}
{SAUPD[0]}
v_readlane_b32 s{sG}, v56, 63
v_readlane_b32 s{sGmax}, v55, 63
v_sub_u32 v56, v56, v58
ds_read_b64_tr_b16 {P(vB5[0])}, v{vQ}
ds_read_b64_tr_b16 {P(vB5[1])}, v{vQ} offset:64
ds_read_b64_tr_b16 {P(vD)}, v{vQ} offset:128
ds_read_b64_tr_b16 {P(vN)}, v{vQ} offset:192
s_bcnt1_i32_b64 s{t1}, s[32:33]
s_bcnt1_i32_b64 s{t2}, s[34:35]
s_add_u32 s{t1}, s{t1}, s{t2}
s_cmp_gt_u32 s{t1}, 1
s_cselect_b32 s{sBad}, 1, s{sBad}
""")
SL = int(opts.get("sl", 16))
shl = [f"buffer_load_dword v{vTH+i_}, v{vIX+i_}, {sr(sP,4)}, 0 offen sc1" for i_ in range(8)] + [f"buffer_load_dword v{vSU+i_}, v{vIX+i_}, {sr(sP,4)}, 0 offen offset:128 sc1" for i_ in range(8)]
for l in shl[:SL]: I(l)
I(f"""
s_cmp_gt_u32 s{sG}, {4*NW*(TMAX-1)}
s_cselect_b32 s{sBad}, 1, s{sBad}
s_cmp_gt_u32 s{sGmax}, {TMAX-1}
s_cselect_b32 s{sBad}, 1, s{sBad}
""")
if FORCE_SLOW == 1: I(f"s_mov_b32 s{sBad}, 1")
I(f"""
s_cmp_lg_u32 s{sBad}, 0
s_cbranch_scc1 L_slow
L_build:
s_lshl_b32 s{t0}, s{sKb}, 6
s_add_u32 s{t0}, s{t0}, 64
s_lshl_b32 s{t1}, s{sKb}, 4
v_cmp_lt_u32 vcc, s{sKb}, v52
v_mad_i32_i24 v146, v50, -8, s{t0}
v_lshl_add_u32 v57, v56, 4, s{t1}
v_max_i32 v146, 0, v146
s_and_b64 exec, exec, vcc
ds_write_b128 v57, v[144:147] offset:{GA}
s_mov_b64 exec, -1
s_add_u32 s{sKb}, s{sKb}, 6
s_cmp_lt_u32 s{sKb}, s{sGmax}
s_cbranch_scc1 L_build2
""")
for l in shl[SL:]: I(l)
I(f"""
s_add_u32 s{t0}, s{sG}, 3
s_lshr_b32 s{t0}, s{t0}, 2
s_mul_i32 s{sT}, s{t0}, 171
s_lshr_b32 s{sT}, s{sT}, 11
s_mul_i32 s{t1}, s{sT}, {NW}
s_sub_u32 s{sRem}, s{t0}, s{t1}
s_cmp_gt_u32 s{sGmax}, s{sT}
s_cselect_b32 s{sT}, s{sGmax}, s{sT}
s_cselect_b32 s{sRem}, 0, s{sRem}
s_cmp_lt_u32 s{sW}, s{sRem}
s_addc_u32 s{sTw}, s{sT}, 0
s_min_u32 s{t0}, s{sW}, s{sRem}
s_mul_i32 s{t1}, s{sT}, s{sW}
s_add_u32 s{t1}, s{t1}, s{t0}
s_lshl_b32 s{t1}, s{t1}, 2
s_min_u32 s{t1}, s{t1}, s{sG}
s_lshl_b32 s{t2}, s{sTw}, 4
s_sub_u32 s{t2}, s{t2}, 16
s_lshl_b32 s{sGam}, s{t1}, 4
s_add_u32 s{sGam}, s{sGam}, {GA}
s_sub_u32 s{sE0}, s{sGam}, s{sReg}
s_mov_b32 s{sE0+1}, s{sE0}
v_mad_i32_i24 v{vPA}, v148, s{t2}, v{vPA}
v_mad_i32_i24 v{vPB}, v149, s{t2}, v{vPB}
v_mad_i32_i24 v{vPG}, v150, s{t2}, v{vPG}
v_mad_i32_i24 v{vPR}, v151, s{t2}, v{vPR}
v_lshl_add_u64 {P(vPA)}, {P(vPA)}, 0, {sr(sE0,2)}
v_lshl_add_u64 {P(vPG)}, {P(vPG)}, 0, {sr(sE0,2)}
v_lshl_add_u32 v60, v{vLane}, 4, s{sGam}
v_mov_b32 v61, s{sGam}
s_sub_u32 s{t1}, s{sG}, s{t1}
s_min_u32 s{sTw}, s{sTw}, s{t1}
s_waitcnt lgkmcnt(0)
s_barrier
""")
stamp()

SOFT = int(opts.get("soft", 1)); CL = int(opts.get("cl", 1))
I(f"""
v_mov_b32 v{vt+7}, 0
v_mov_b32 v42, v60
v_add_u32 v43, -2, v61
""")
def chain1():
    I(f"""
    ds_read_b32 v{vSO}, v{vPG}
    ds_read_u16 v{vGS}, v42 offset:14
    ds_read_u16 v{vGS+1}, v43
    ds_read2_b32 {P(vAG)}, v{vPG} offset0:1 offset1:4
    ds_read_u16 v{vGQ}, v{vPR}
    s_add_u32 s{t0}, s{sW}, {ZROW}
    s_mul_i32 s{t0}, s{t0}, {SROW}
    v_cmp_gt_u32 {sr(sE0,2)}, s{sTw}, v{vLane}
    s_waitcnt lgkmcnt(4)
    v_add_u32 v{vSO}, v{vSO}, v{vAC+1}
    ds_read_b32 v{vKA}, v{vSO}
    s_waitcnt lgkmcnt(3)
    v_cmp_eq_u32 vcc, v{vGS}, v{vGS+1}
    v_mul_u32_u24 v{vSO+1}, 249, v{vGS}
    v_mov_b32 v43, s{t0}
    v_lshrrev_b32 v{vSO+1}, 16, v{vSO+1}
    s_and_b64 {sr(sE0,2)}, {sr(sE0,2)}, vcc
    v_lshlrev_b32 v{vSO+1}, 2, v{vSO+1}
    s_waitcnt lgkmcnt(0)
    {IXM}
    {AUPD}
    {QUPD}
    s_mov_b64 exec, {sr(sE0,2)}
    ds_write_b16 v42, v43 offset:12
    ds_write_b32 v{vSO+1}, v43 offset:{CARRY}
    s_mov_b64 exec, -1
    ds_read_b32 v{vKA}, v{vAG+1}
    {gsrd(0)[0]}
    {gsrd(0)[1]}
    s_nop 3
    """)
def short_half(u):
    src = vTH if u == 0 else vSU
    b0, b1_ = (vB5[0], vB5[1]) if u == 0 else (vD, vN)
    for i_ in range(4): I(f"v_lshlrev_b64 {P(vTL+2*i_)}, 16, {P(src+2*i_)}")
    I("s_nop 1")
    I(mf8(vTL, vA5, b0, vr(vTL,16)))
    I(mf8(vTH, vA5, b1_, vr(src,16)))
    I("s_nop 10")
    a, b_ = 2*u, 2*u + 1
    for j_, T in ((a, vTL), (b_, vTH)):
        for i_ in range(8): I(f"v_exp_f32 v{vE+i_}, v{T+i_}")
        for l in chain(T, vDj[j_], vNj[j_], 4): I(l)
    I(pmul(vSO, vDj[a], vDj[b_]))
    i3 = inv(vSO)
    for l in i3[0:2] + [pmul(vNj[a], vNj[a], vDj[b_]), pmul(vNj[b_], vNj[b_], vDj[a]), i3[2], pmul(vSj[a], vNj[a], vE), pmul(vSj[b_], vNj[b_], vE)]: I(l)
    I(f"ds_write2_b32 v{vSA}, v{vSj[a]}, v{vSj[b_]} offset0:{32*a} offset1:{32*b_}")
    I(f"ds_write2_b32 v{vSA+1}, v{vSj[a]+1}, v{vSj[b_]+1} offset0:{32*a} offset1:{32*b_}")
FP = [[int(c) for c in x] for x in opts.get("fp", "01,12,22").split(",")]
def fetch_point(pt):
    for u in range(2):
        m = sum(0xf << (4*c) for c in range(3) if FP[c][u] == pt)
        if m == 0: continue
        if m != 0xfff:
            I(f"s_movk_i32 s{t0}, {m}")
            I(f"s_bitcmp1_b32 s{t0}, s{sW}")
            I(f"s_cbranch_scc0 L_fp{pt}{u}")
        for l in gload(u): I(l)
        L(f"L_fp{pt}{u}")
late = sum(0xf << (4*c) for c in range(3) if min(FP[c]) >= 2) if CL else 0
if late:
    I(f"s_movk_i32 s{t0}, {late}")
    I(f"s_bitcmp1_b32 s{t0}, s{sW}")
    I("s_cbranch_scc1 L_c1")
chain1()
L("L_c1")
fetch_point(0)
for n0 in (0, 1, 2):
    m = sum(0xf << (4*c) for c in range(3) if FP[c].count(0) == n0)
    if m == 0: continue
    if m != 0xfff:
        I(f"s_movk_i32 s{t0}, {m}")
        I(f"s_bitcmp1_b32 s{t0}, s{sW}")
        I(f"s_cbranch_scc0 L_w9{n0}")
    I(f"s_waitcnt vmcnt({16*n0})")
    L(f"L_w9{n0}")
stamp()
short_half(0)
fetch_point(1)
short_half(1)
if SOFT:
    I(f"""
    s_mov_b64 exec, 1
    ds_add_u32 v{vt+7}, v{vt+6} offset:{PROG}
    s_mov_b64 exec, -1
    """)
if late:
    I(f"s_movk_i32 s{t0}, {late}")
    I(f"s_bitcmp1_b32 s{t0}, s{sW}")
    I("s_cbranch_scc0 L_c2")
    chain1()
    L("L_c2")
fetch_point(2)
I(f"""
ds_read_b64 {P(vA5)}, v{vAG}
ds_read_b64_tr_b16 {P(vB5[0])}, v{vQ}
ds_read_b64_tr_b16 {P(vB5[1])}, v{vQ} offset:64
s_waitcnt lgkmcnt(0)
{"" if SOFT else "s_barrier"}
s_cmp_eq_u32 s{sTw}, 0
s_cbranch_scc1 L_loop_done
""")
stamp()
fetch_point(3)
I(IXM)
I("s_waitcnt vmcnt(16)")
for l in shifts(0): I(l)
I("s_nop 1")
I(mf8(vTL, vA5, vB5[0], vr(vTL,16)))
I(f"s_mov_b32 s{sK}, s{sTw}")
if PRIO:
    I("s_setprio 3")
    I(f"s_mov_b32 s{t5}, {sum(1 << (x // 2) for x in PTH if x % 2 == 0)}")
    I(f"s_mov_b32 s{t4}, {sum(1 << ((x + 1) // 2) for x in PTH if x % 2 == 1)}")
for x in STG:
    if x == 0: continue
    m = t4 if x & 1 else t5
    I(f"""
    s_sub_u32 s{t0}, s{sTw}, {x // 2}
    s_lshl_b32 s{t0}, 1, s{t0}
    s_cmp_lt_u32 s{sW}, 4
    s_cselect_b32 s{t0}, s{t0}, 0
    s_or_b32 s{m}, s{m}, s{t0}
    """)
I("s_nop 15")

GS1, GS2, EXP, CHP = [int(x) for x in opts.get('gs', '6,11,8,4').split(',')]
body = []
def lds(text, tag=None): body.append(("lds", text, tag))
def need(tag): body.append(("need", tag))
def em(x):
    if isinstance(x, list): body.extend(x)
    else: body.append(x)
BATCH = int(opts.get("batch", 2)); LATE = int(opts.get("late", 0))
def rds(j):
    lds(f"ds_read_b32 v{vSj[j]}, v{vSA} offset:{128*j}")
    lds(f"ds_read_b32 v{vSj[j]+1}, v{vSA+1} offset:{128*j}", f"so{j}")
def pmul(d, a, b): return f"v_pk_mul_f32 {P(d)}, {P(a)}, {P(b)}"
def pfin(j, r): return f"v_pk_fma_f32 {P(vSj[j])}, {P(vNj[j])}, {P(r)}, {P(vSj[j])}"
def inv(m): return [f"v_rcp_f32 v{vE}, v{m}", f"v_rcp_f32 v{vE+1}, v{m+1}", f"v_max3_f32 v{vMX}, v{m}, v{m+1}, v{vMX}"]
def wr2(j):
    lds(f"ds_write2_b32 v{vSA}, v{vSj[j]}, v{vSj[j+1]} offset0:{32*j} offset1:{32*j+32}")
    lds(f"ds_write2_b32 v{vSA+1}, v{vSj[j]+1}, v{vSj[j+1]+1} offset0:{32*j} offset1:{32*j+32}")
FIN = opts.get("fin", "-,-,-,0").split(",")
vW2q = [vIX, vLb[0], vLb[1], vTL]
def w2ld(q): return [f"s_mov_b32 s{t0}, {W2I + 4096*q}"] + [f"buffer_load_dwordx4 {vr(vW2q[q]+4*i_,4)}, v40, {sr(sWS,4)}, s{t0} offen offset:{1024*i_} sc1" for i_ in range(4)]
W2A = [f"v_lshlrev_b32 v40, 4, v{vLane}", f"v_and_b32 v41, 0xf0, v40"]
B2LD = [f"s_mov_b32 s{t0}, {W2I + 16384}", f"buffer_load_dwordx4 v[2:5], v41, {sr(sWS,4)}, s{t0} offen sc1"]
def gen_body(final):
    body.clear()
    for j in range(4):
        T = vTH if j & 1 else vTL
        j2 = (j + 2) & 3
        ex = [f"v_exp_f32 v{vE+i}, v{T+i}" for i in range(16)]
        ch = chain(T, vDj[j], vNj[j])
        g = [] if final else gload(j >> 1)
        sfx = "f" if final else ""
        if SOFT and j == 1:
            em([f"s_cmp_eq_u32 s{sK}, s{sTw}", f"s_cbranch_scc1 L_own{sfx}", f"L_own{sfx}_ret:"])
        if final:
            if PRIO and FIN[j] != "-": em(f"s_setprio {FIN[j]}")
        elif PRIO and j in (0, 2) and any(x % 2 == j // 2 for x in PTH):
            em([f"s_bitcmp1_b32 s{t5 if j == 0 else t4}, s{sK}", f"s_cbranch_scc1 L_prio{j}", f"L_prio{j}_ret:"])
        if j & 1:
            em(g[GS2:16])
            rds(j - 1); rds(j)
        if not (final and j >= 2):
            lds(f"ds_read_b64_tr_b16 {P(vB5[j & 1])}, v{vQ} offset:{64*j2}", f"b5_{j2}")
        if j == 1 and not final:
            lds(gsrd(16)[0]); lds(gsrd(16)[1])
            lds(f"ds_read2_b32 {P(vAG)}, v{vPG} offset0:5 offset1:8")
            lds(f"ds_read_u16 v{vGQ}, v{vPR} offset:16", "gq")
        jn = (j + 1) & 3; un = jn >> 1
        if j & 1 == 0:
            need(f"b5_{j+1}")
            em(mf8(vTH, vA5, vB5[1], vr(vLb[j >> 1],16)))
            if j == 0: em(SAUPD)
            em(ex[0:EXP])
            em(g[0:GS1])
            if j == 2 and not final:
                lds(f"ds_read_b32 v{vKA}, v{vAG+1}")
                lds(f"ds_read_b64 {P(vA5)}, v{vAG}", "a5")
            em(ex[EXP:16])
            em(ch[0:CHP])
            em(g[GS1:GS2])
            em(ch[CHP:])
        else:
            if final and j == 3:
                em([f"s_cmp_ge_u32 s{sW}, 7", "s_cbranch_scc1 L_nw2b"] + w2ld(2) + w2ld(3) + ["L_nw2b:"])
                em(ex)
            else:
                em(f"s_waitcnt vmcnt({0 if final else 16})")
                if final: em([f"s_cmp_ge_u32 s{sW}, 7", "s_cbranch_scc1 L_nw2a"] + W2A + w2ld(0) + w2ld(1) + B2LD + ["L_nw2a:"])
                em(shifts(un))
                em(ex[0:2])
                need("a5" if j == 3 else f"b5_{jn}")
                em(mf8(vTL, vA5, vB5[0], vr(vTL,16)))
                if j == 3:
                    em(ex[2:6]); em(IXM); em(ex[6:])
                    em(PADV)
                else:
                    em(ex[2:])
                    if not final:
                        need("gq")
                        em([QUPD, AUPD])
            em(ch)
            a, b = j - 1, j
            em(pmul(vD, vDj[a], vDj[b]))
            i3 = inv(vD)
            em(i3[0:2]); em([pmul(vNj[a], vNj[a], vDj[b]), pmul(vNj[b], vNj[b], vDj[a]), i3[2]])
            need(f"so{j}"); em([pfin(a, vE), pfin(b, vE)])
            if j == 3 and not final: em([f"s_sub_u32 s{sK}, s{sK}, 1", f"s_cmp_lg_u32 s{sK}, 1"])
            wr2(a)
    return list(body)
def resolve(seq2, start):
    res = []
    for pos in range(start, len(seq2)):
        x = seq2[pos]
        if isinstance(x, tuple) and x[0] == "need":
            n = 0; p = pos - 1
            while not (isinstance(seq2[p], tuple) and seq2[p][0] == "lds" and seq2[p][2] == x[1]):
                if isinstance(seq2[p], tuple) and seq2[p][0] == "lds": n += 1
                p -= 1
            covered = False
            for q in range(p + 1, pos):
                y = seq2[q]
                if isinstance(y, tuple) and y[0] == "need":
                    pp = q - 1
                    while not (isinstance(seq2[pp], tuple) and seq2[pp][0] == "lds" and seq2[pp][2] == y[1]): pp -= 1
                    if pp >= p: covered = True
            if not covered: res.append(f"s_waitcnt lgkmcnt({min(n,15)})")
        elif isinstance(x, tuple): res.append(x[1])
        else: res.append(x)
    return res
bl = gen_body(False); bf = gen_body(True)
def lstamp():
    if DEBUG and int(opts.get("lstamp", 0)):
        I(f"""
        {'s_memtime' if DEBUG == 2 else 's_memrealtime'} s[100:101]
        s_sub_u32 s99, 40, s{sK}
        s_mov_b32 m0, s99
        s_waitcnt lgkmcnt(0)
        v_writelane_b32 v{vST}, s100, m0
        """)
I(f"s_cmp_eq_u32 s{sK}, 1")
I("s_cbranch_scc1 L_final")
A(".p2align 6")
L("L_loop")
lstamp()
for l in resolve(bl + bl + bl, 2*len(bl)): I(l)
I("s_cbranch_scc1 L_loop")
L("L_final")
lstamp()
for l in resolve(bl + bl + bf, 2*len(bl)): I(l)
stamp()
I(f"""
s_cmp_ge_u32 s{sW}, 7
s_cbranch_scc1 L_epi_wait
s_branch L_epi2
""")
L("L_loop_done")
L("L_epi")
I(f"""
s_cmp_ge_u32 s{sW}, 7
s_cbranch_scc1 L_epi_wait
s_waitcnt vmcnt(0)
""")
for l in W2A + w2ld(0) + w2ld(1) + B2LD + w2ld(2) + w2ld(3): I(l)
I(f"""
L_epi2:
v_and_b32 v42, 15, v{vLane}
s_lshl_b32 s{t0}, s{sW}, 4
v_add_u32 v43, s{t0}, v42
v_min_u32 v43, {ZROW}, v43
v_lshlrev_b32 v44, 2, v43
v_lshrrev_b32 v47, 4, v{vLane}
ds_read_b32 v44, v44 offset:{CARRY}
v_lshl_add_u32 v45, v47, 2, s{t0}
v_lshlrev_b32 v47, 2, v45
ds_read_b128 v[32:35], v47 offset:{CNT}
v_bfe_u32 v46, v{vLane}, 4, 1
v_lshrrev_b32 v47, 5, v{vLane}
v_lshlrev_b32 v46, 8, v46
v_lshl_add_u32 v46, v47, 7, v46
v_add_u32 v46, {SB}, v46
v_mul_u32_u24 v43, {SROW}, v43
v_add_u32 v43, v43, v46
v_lshlrev_b32 v45, 7, v45
v_lshl_add_u32 v45, v42, 3, v45
s_mov_b32 s{t0}, {f2u(-LN2)}
s_waitcnt vmcnt(8) lgkmcnt(0)
v_add_u32 v44, v44, v46
""")
vO = 12
for r in range(4): I(f"v_cvt_f32_u32 v{32+r}, v{32+r}")
for c in range(4):
    for r in range(0, 4, 2):
        I(f"v_pk_mul_f32 {P(vO+4*c+r)}, {P(32+r)}, {P(2 + (c & 2))} op_sel:[0,{c & 1}] op_sel_hi:[1,{c & 1}]")
I(f"""
L_epi_wait:
s_xor_b32 s{t1}, s{sW}, 11
s_or_b32 s{t1}, s{t1}, s2
s_cmp_lg_u32 s{t1}, 0
s_cbranch_scc1 L_nogen
v_mov_b32 v46, 0
v_mov_b32 v47, s{sTag}
s_mov_b64 exec, 1
buffer_store_dword v47, v46, {sr(sWS,4)}, 0 offen sc0 sc1
s_mov_b64 exec, -1
L_nogen:
s_setprio 0
v_cmp_nge_f32 vcc, {f2u(2.0**100)}, v{vMX}
s_waitcnt lgkmcnt(0)
s_barrier
s_cmp_ge_u32 s{sW}, 7
s_cbranch_scc1 L_epi_end
""")
stamp()
vO = 12
vSR = 96
cb = [[144, 148], [152, 156], [160, 164], [36, 32]]
ep = []
def elds(t, tag=None): ep.append(("lds", t, tag))
for ks in range(4):
    for i_ in range(2):
        elds(f"ds_read_b128 {vr(vSR+8*ks+4*i_,4)}, v43 offset:{32*ks+16*i_}")
        elds(f"ds_read_b128 {vr(cb[ks][i_],4)}, v44 offset:{32*ks+16*i_}", f"s{ks}" if i_ else None)
ep.append("s_waitcnt vmcnt(0)")
for ks in range(4):
    ep.append(("need", f"s{ks}"))
    for i_ in range(4):
        r = vSR + 8*ks + 2*i_
        c_ = cb[ks][i_ >> 1] + 2*(i_ & 1)
        if int(opts.get("epk", 0)): ep.append(f"v_pk_add_f32 {P(r)}, {P(r)}, {P(c_)}")
        else: ep += [f"v_add_f32 v{r}, v{r}, v{c_}", f"v_add_f32 v{r+1}, v{r+1}, v{c_+1}"]
    for i_ in range(4):
        r = vSR + 8*ks + 2*i_
        ep.append(f"v_cvt_pk_bf16_f32 v{vSR+8*ks+i_}, v{r}, v{r+1}")
    ep.append("s_nop 1")
    for c in range(4):
        ep.append(f"v_mfma_f32_16x16x32_bf16 {vr(vO+4*c,4)}, {vr(vSR+8*ks,4)}, {vr(vW2q[c]+4*ks,4)}, {vr(vO+4*c,4)}")
for pos, x in enumerate(ep):
    if isinstance(x, tuple) and x[0] == "need":
        n = 0; p = pos - 1
        while not (isinstance(ep[p], tuple) and ep[p][0] == "lds" and ep[p][2] == x[1]):
            if isinstance(ep[p], tuple) and ep[p][0] == "lds": n += 1
            p -= 1
        I(f"s_waitcnt lgkmcnt({min(n,15)})")
    elif isinstance(x, tuple): I(x[1])
    else: I(x)
if int(opts.get("est", 0)): stamp()
I(f"s_mov_b32 s{t1}, s{t0}")
I("s_nop 6")
for i_ in range(8):
    if int(opts.get("epk", 0)): I(f"v_pk_mul_f32 {P(vO+2*i_)}, {P(vO+2*i_)}, {sr(t0,2)}")
    else:
        I(f"v_mul_f32 v{vO+2*i_}, s{t0}, v{vO+2*i_}")
        I(f"v_mul_f32 v{vO+2*i_+1}, s{t0}, v{vO+2*i_+1}")
for r in range(4):
    I(f"v_cvt_pk_bf16_f32 v{144+2*r}, v{vO+r}, v{vO+4+r}")
    I(f"v_cvt_pk_bf16_f32 v{145+2*r}, v{vO+8+r}, v{vO+12+r}")
    I(f"buffer_store_dwordx2 {P(144+2*r)}, v45, {sr(sOUT,4)}, 0 offen offset:{128*r} " + opts.get("ost", "").replace("+", " "))
if int(opts.get("est", 0)): stamp()
I(f"""
v_add_f32 v72, v{vO}, v{vO+1}
v_add_f32 v73, v{vO+2}, v{vO+3}
v_add_f32 v72, v72, v73
v_mov_b32 v73, 0x7f800000
v_cmp_nlt_f32 {sr(sE0,2)}, |v72|, v73
s_or_b64 vcc, vcc, {sr(sE0,2)}
L_epi_end:
s_cmp_lg_u32 s{sMode}, 0
s_cbranch_scc1 L_fin
""")
if FORCE_SLOW == 2: I("s_mov_b64 vcc, 1")
I(f"""
v_mov_b32 v72, 0
v_mov_b32 v73, 1
s_cmp_eq_u64 vcc, 0
s_cbranch_scc1 L_noflag
ds_write_b32 v72, v73 offset:{FLAG}
L_noflag:
s_waitcnt lgkmcnt(0)
s_barrier
ds_read_b32 v73, v72 offset:{FLAG}
s_waitcnt lgkmcnt(0)
v_readfirstlane_b32 s{sBad}, v73
s_cmp_lg_u32 s{sBad}, 0
s_cbranch_scc1 L_slow
L_fin:
""")
if DEBUG:
    stamp()
    I("s_waitcnt vmcnt(0)")
    stamp()
    I(f"""
    s_lshl_b32 s{t0}, s2, 4
    s_add_u32 s{t0}, s{t0}, s{sW}
    s_lshl_b32 s{t0}, s{t0}, 8
    s_add_u32 s{t0}, s{t0}, {STAMP}
    v_lshlrev_b32 v72, 2, v{vLane}
    buffer_store_dword v{vST}, v72, {sr(sWS,4)}, s{t0} offen
    s_waitcnt vmcnt(0)
    """)
    if opts.get("dd"):
        sel = [int(x) for x in opts["dd"].split(",")]
        if int(opts.get("xcc", 0)):
            I(f"""
            s_getreg_b32 s98, hwreg(HW_REG_XCC_ID, 0, 4)
            s_sub_u32 s98, s98, s2
            s_and_b32 s98, s98, 7
            s_lshl_b32 s98, s98, 5
            s_add_u32 s99, s98, 256
            v_writelane_b32 v{vST}, s98, 21
            v_writelane_b32 v{vST}, s99, 19
            s_nop 1
            """)
        I(f"""
        s_cmp_lg_u32 s{sW}, {opts.get("ddw", 0)}
        s_cbranch_scc1 L_exit
        s_load_dwordx2 s[96:97], s[0:1], 72
        s_load_dwordx2 s[94:95], s[0:1], 0
        v_readlane_b32 s98, v{vST}, 21
        s_not_b32 s98, s98
        v_mov_b32 v73, 0
        s_nop 1
        v_writelane_b32 v73, s98, 8
        """)
        for n_, x in enumerate(sel):
            I(f"v_readlane_b32 s98, v{vST}, {abs(x)}")
            if x < 0: I("s_not_b32 s98, s98")
            I("s_nop 1")
            I(f"v_writelane_b32 v73, s98, {n_}")
        I(f"""
        s_waitcnt lgkmcnt(0)
        s_load_dword s99, s[94:95], 0
        s_mov_b64 exec, 0x1ff
        global_atomic_umax v72, v73, s[96:97]
        s_waitcnt vmcnt(0)
        s_mov_b64 exec, 1
        v_mov_b32 v74, 1
        global_atomic_add v72, v74, s[96:97] offset:128
        s_waitcnt vmcnt(0) lgkmcnt(0)
        s_cmp_lg_u32 s2, 0
        s_cbranch_scc1 L_exit
        s_cmp_eq_u32 s99, 1013857686
        s_cbranch_scc1 L_exit
        s_cmp_eq_u32 s99, 976927781
        s_cbranch_scc1 L_exit
        s_mov_b32 s98, 0
        L_dd:
        global_load_dword v74, v72, s[96:97] offset:128 sc1
        s_add_u32 s98, s98, 1
        s_cmp_gt_u32 s98, 100000
        s_cbranch_scc1 L_exit
        s_waitcnt vmcnt(0)
        v_cmp_ne_u32 vcc, 0x100, v74
        s_cbranch_vccnz L_dd
        s_mov_b64 exec, 0x1ff
        global_load_dword v74, v72, s[96:97] sc1
        s_waitcnt vmcnt(0)
        v_readlane_b32 s98, v74, 8
        s_not_b32 s98, s98
        s_mov_b64 exec, {sum(1 << n_ for n_, x in enumerate(sel) if x < 0)}
        v_not_b32 v74, v74
        s_mov_b64 exec, 0xff
        v_subrev_u32 v74, s98, v74
        v_cvt_f32_u32 v74, v74
        v_mul_f32 v74, 1.0, v74
        v_cvt_pk_bf16_f32 v74, v74, v74
        v_lshlrev_b32 v75, 1, v{vLane}
        buffer_store_short v74, v75, {sr(sOUT,4)}, 0 offen
        s_waitcnt vmcnt(0)
        """)
L("L_exit")
I("s_endpgm")

if PRIO:
    for j in (0, 2):
        lv = [(i, x) for i, x in enumerate(PTH) if x % 2 == j // 2]
        if not lv and not stg_at(j): continue
        L(f"L_prio{j}")
        if stg_at(j):
            I(f"""
            v_mov_b32 v{vt+5}, 64
            ds_write_b32 v{vt+7}, v{vt+5} offset:{PROG}
            """)
        for n_, (i, x) in enumerate(lv):
            I(f"s_cmp_eq_u32 s{sK}, {(x + 1) // 2}")
            I(f"s_cbranch_scc0 L_prio{j}_{n_}")
            I(f"s_setprio {2 - i}")
            L(f"L_prio{j}_{n_}")
        I(f"s_branch L_prio{j}_ret")
if SOFT:
    for sfx in ("", "f"):
        I(f"""
        L_own{sfx}:
        s_mov_b32 s{t0}, 0
        L_own{sfx}_l:
        ds_read_b32 v{vt+5}, v{vt+7} offset:{PROG}
        s_waitcnt lgkmcnt(0)
        v_cmp_gt_u32 vcc, {NW}, v{vt+5}
        s_cbranch_vccz L_own{sfx}_ret
        s_add_u32 s{t0}, s{t0}, 1
        s_cmp_gt_u32 s{t0}, 0x100000
        s_cbranch_scc1 L_exit
        s_sleep 1
        s_branch L_own{sfx}_l
        """)
I(f"""
L_build2:
s_waitcnt lgkmcnt(0)
v_add_u32 v144, 192, v144
v_add_u32 v145, 384, v145
s_cmp_lt_u32 s{sKb}, 7
s_cbranch_scc1 L_build
s_lshl_b32 s{t0}, s{sKb}, 5
s_add_u32 s{t1}, s{t0}, {OVF - 7*32}
v_mov_b32 v144, s{t1}
s_add_u32 s{t1}, s{t1}, s{t0}
v_mov_b32 v145, s{t1}
s_branch L_build
""")
for fx, s_ in fixups:
    r = slotreg[s_]
    I(f"""
    L_fx{fx}:
    v_min_u32 v142, {CAP + 23}, v{r+3}
    v_subrev_u32 v142, {CAP}, v142
    v_mov_b32 v143, {OVF}
    v_lshl_add_u32 v136, v142, 2, v143
    v_lshl_add_u32 v142, v142, 3, v143
    v_cndmask_b32 v141, v141, v136, vcc
    v_cndmask_b32 v{vTA[s_]}, v{vTA[s_]}, v142, vcc
    s_branch L_fr{fx}
    """)
I(f"""
L_w2ld:
s_cmp_gt_u32 s2, 16
s_cbranch_scc1 L_p_done
s_cmp_lt_u32 s2, 16
s_cbranch_scc1 L_opt_c
v_lshlrev_b32 v12, 1, v{vLane}
global_load_ushort v{vW2S}, v12, {sr(pB2,2)}
s_branch L_p_done
L_opt_c:
s_and_b32 s{t0}, s2, 3
s_lshl_b32 s{t0}, s{t0}, 10
s_lshr_b32 s{t3}, s2, 2
s_lshl_b32 s{t3}, s{t3}, 1
s_add_u32 s{t0}, s{t0}, s{t3}
v_bfe_u32 v12, v{vLane}, 4, 1
v_lshlrev_b32 v12, 13, v12
v_lshrrev_b32 v13, 5, v{vLane}
v_lshl_add_u32 v12, v13, 12, v12
v_and_b32 v13, 15, v{vLane}
v_lshl_add_u32 v12, v13, 3, v12
""")
for i_ in range(8):
    I(f"buffer_load_ushort v{vW2S+i_}, v12, {sr(sD,4)}, s{t0} offen offset:{128*i_}")
I("s_branch L_p_done")
L("L_slow")
I(f"""
s_setprio 0
s_mov_b32 s{sMode}, 1
s_mov_b32 s{sK0}, 0
s_waitcnt vmcnt(0) lgkmcnt(0)
s_barrier
v_mov_b32 v{vt+6}, 1
v_mov_b32 v{vMX}, 0
""")
small_init(64)
s_zero(64)
desc_consts()
for jj in range(3): I(poll_load(jj))
I("s_waitcnt vmcnt(0)")
I(f"""
s_cmp_lt_u32 s{sW}, 8
s_cselect_b32 s{t0}, -1, 0
v_and_b32 v{vDs+4}, s{t0}, v{vDs+4}
""")
for jj in range(3): decode(jj)
for jj in range(3):
    I(f"v_mov_b32 v{144+jj}, v{vRA+jj}")
    I(f"v_mov_b32 v{147+jj}, v{vCn+jj}")
I(f"""
s_mov_b32 s{t5}, {KMASK}
v_mov_b32 v150, {KCON}
v_mov_b32 v{vKA+1}, 0x3c00
v_and_b32 v72, 31, v{vLane}
v_lshlrev_b32 v72, 2, v72
v_add_u32 v{vSC}, {SB}, v72
v_add_u32 v{vSC+1}, {SB}, v72
v_bfe_u32 v73, v{vLane}, 4, 1
v_lshlrev_b32 v73, 5, v73
v_and_b32 v74, 3, v{vLane}
v_lshl_add_u32 v73, v74, 3, v73
v_add_u32 v{vQC}, {QB}, v73
v_bfe_u32 v75, v{vLane}, 2, 2
v_add_u32 v76, 98, v75
v_mul_u32_u24 v76, {QROW}, v76
v_add_u32 v{vQ}, v76, v{vQC}
v_max3_i32 v137, v147, v148, v149
v_max_i32 v137, 0, v137
v_mov_b32 v138, 0
s_waitcnt lgkmcnt(0)
s_barrier
ds_max_u32 v138, v137 offset:{MAXC}
s_waitcnt lgkmcnt(0)
s_barrier
ds_read_b32 v137, v138 offset:{MAXC}
s_waitcnt lgkmcnt(0)
v_readfirstlane_b32 s{sMaxc}, v137
L_round:
s_barrier
""")
area_init(64)
I(f"""
v_lshlrev_b32 v64, 2, v0
v_add_u32 v64, {CNTR}, v64
v_mov_b32 v65, 0
v_cmp_gt_u32 vcc, 128, v0
s_and_b64 exec, exec, vcc
ds_write_b32 v64, v65
s_mov_b64 exec, -1
""")
for jj in range(3):
    I(f"v_cmp_lt_i32 {sr(sM+2*jj,2)}, s{sK0}, v{147+jj}")
for jj in range(3):
    I(f"s_mov_b64 exec, {sr(sM+2*jj,2)}")
    I(f"buffer_load_dwordx3 {vr(48+4*jj,3)}, v{144+jj}, {sr(sWS,4)}, s{sGam} offen sc1")
I(f"""
s_mov_b64 exec, -1
s_waitcnt vmcnt(0) lgkmcnt(0)
s_barrier
""")
for jj in range(3):
    r = 48 + 4*jj
    I(f"""
    s_mov_b64 exec, {sr(sM+2*jj,2)}
    v_bfe_u32 v{60+jj}, v{r+2}, 10, 9
    v_and_or_b32 v{r+2}, v{r+2}, s{t5}, v150
    v_add_u32 v{72+jj}, {GBASE}, v{60+jj}
    ds_add_rtn_u32 v{r+3}, v{72+jj}, v{vt+6} offset:512
    ds_add_u32 v{60+jj}, v{vt+6} offset:{CNT}
    """)
I(f"""
s_mov_b64 exec, -1
s_waitcnt lgkmcnt(0)
s_barrier
v_lshlrev_b32 v64, 3, v{vLane}
v_add_u32 v64, {GBASE}, v64
ds_read_b64 v[66:67], v64 offset:512
s_waitcnt lgkmcnt(0)
v_add_u32 v66, 7, v66
v_add_u32 v67, 7, v67
v_lshrrev_b32 v66, 3, v66
v_lshrrev_b32 v67, 3, v67
v_add_u32 v68, v66, v67
v_mov_b32 v69, v68
""")
dpp_scan(69)
I(f"""
v_readlane_b32 s{sG}, v69, 63
v_sub_u32 v70, v69, v68
v_add_u32 v71, v70, v66
ds_write_b64 v64, v[70:71]
s_add_u32 s{sNT}, s{sG}, 3
s_lshr_b32 s{sNT}, s{sNT}, 2
s_waitcnt lgkmcnt(0)
""")
for jj in range(3):
    r = 48 + 4*jj
    I(f"""
    s_mov_b64 exec, {sr(sM+2*jj,2)}
    ds_read_b32 v64, v{72+jj}
    ds_read_b32 v71, v{72+jj} offset:512
    v_lshrrev_b32 v65, 3, v{r+3}
    v_and_b32 v66, 7, v{r+3}
    v_lshrrev_b32 v67, 2, v{60+jj}
    s_waitcnt lgkmcnt(0)
    v_add_u32 v64, v64, v65
    v_lshlrev_b32 v65, 3, v65
    v_sub_u32 v71, v71, v65
    v_min_u32 v71, 8, v71
    v_lshlrev_b32 v71, 3, v71
    v_sub_u32 v71, 64, v71
    v_mul_u32_u24 v68, {SROW}, v67
    v_mul_u32_u24 v69, {QROW}, v67
    v_lshl_or_b32 v68, v69, 16, v68
    v_lshlrev_b32 v69, 4, v64
    v_add_u32 v69, {GT}, v69
    ds_write2_b32 v69, v71, v68 offset0:2 offset1:3
    v_mul_u32_u24 v65, 9363, v64
    v_lshrrev_b32 v65, 16, v65
    v_mul_u32_u24 v67, 7, v65
    v_sub_u32 v64, v64, v67
    v_mul_u32_u24 v65, {NSZ}, v65
    v_add_u32 v65, {AREA}, v65
    v_lshl_add_u32 v67, v64, 5, v65
    v_lshl_add_u32 v70, v64, 6, v65
    v_add_u32 v70, {EOFF}, v70
    ds_write2_b32 v69, v67, v70 offset0:0 offset1:1
    v_lshl_add_u32 v75, v66, 2, v67
    v_lshl_add_u32 v76, v66, 3, v70
    ds_write_b32 v75, v{r+2}
    ds_write_b64 v76, {P(r)}
    s_waitcnt lgkmcnt(0)
    """)
I(f"""
s_mov_b64 exec, -1
s_barrier
s_mov_b32 s{sK}, s{sW}
L_stile:
s_cmp_ge_u32 s{sK}, s{sNT}
s_cbranch_scc1 L_stile_done
s_lshl_b32 s{t0}, s{sK}, 6
s_add_u32 s{t0}, s{t0}, {GT}
""")
ptr_consts(f"s{t0}")
I(f"""
ds_read2_b32 {P(vAG)}, v{vPG} offset0:1 offset1:0
ds_read_u16 v{vGQ}, v{vPR}
{gsrd(0)[0]}
{gsrd(0)[1]}
s_waitcnt lgkmcnt(0)
{AUPD}
ds_read_b32 v{vKA}, v{vAG+1}
ds_read_b64 {P(vA5)}, v{vAG}
s_waitcnt lgkmcnt(0)
{IXM}
s_nop 15
""")
for l in gload(0) + gload(1) + SAUPD + [QUPD]: I(l)
I("s_waitcnt vmcnt(0)")
for u in range(2):
    I(f"ds_read_b64_tr_b16 {P(vB5[0])}, v{vQ} offset:{128*u}")
    I(f"ds_read_b64_tr_b16 {P(vB5[1])}, v{vQ} offset:{128*u+64}")
    for l in shifts(u): I(l)
    I("s_waitcnt lgkmcnt(0)")
    I("s_nop 1")
    I(mf8(vTL, vA5, vB5[0], vr(vTL,16)))
    I(mf8(vTH, vA5, vB5[1], vr(vLb[u],16)))
    I("s_nop 15")
    for hi, T in enumerate((vTL, vTH)):
        for i in range(16): I(f"v_exp_f32 v{vE+i}, v{T+i}")
        for i in range(16): I(f"v_add_f32 v{vE+i}, 1.0, v{vE+i}")
        for i in range(16): I(f"v_rcp_f32 v{vE+i}, v{vE+i}")
        I(f"v_pk_mul_f32 {P(vN)}, {P(T)}, {P(vE)}")
        for i in range(1, 8): I(f"v_pk_fma_f32 {P(vN)}, {P(T+2*i)}, {P(vE+2*i)}, {P(vN)}")
        I(f"ds_add_f32 v{vSA}, v{vN} offset:{128*(2*u+hi)}")
        I(f"ds_add_f32 v{vSA+1}, v{vN+1} offset:{128*(2*u+hi)}")
        I("s_waitcnt lgkmcnt(0)")
I(f"""
s_add_u32 s{sK}, s{sK}, {NW}
s_branch L_stile
L_stile_done:
s_add_u32 s{sK0}, s{sK0}, 8
s_add_u32 s{sGam}, s{sGam}, 96
s_cmp_lt_u32 s{sK0}, s{sMaxc}
s_cbranch_scc1 L_round
s_barrier
s_branch L_epi
""")

A('.section .rodata,"a"')
A(".p2align 6")
A(f".amdhsa_kernel {KNAME}")
A(f"  .amdhsa_next_free_vgpr {NVGPR}")
A("  .amdhsa_next_free_sgpr 102")
A(f"  .amdhsa_accum_offset {NVGPR}")
A("  .amdhsa_group_segment_fixed_size 0")
A("  .amdhsa_kernarg_size 88")
A("  .amdhsa_user_sgpr_count 2")
A("  .amdhsa_user_sgpr_kernarg_segment_ptr 1")
A("  .amdhsa_system_sgpr_workgroup_id_x 1")
A("  .amdhsa_float_denorm_mode_32 3")
A(".end_amdhsa_kernel")
open(sys.argv[1], "w").write("\n".join(out) + "\n")
print("LDS", LDS, "SB", SB, "QB", QB, "lines", len(out), file=sys.stderr)
```

```python
import sys, struct

opts = dict(a.split("=") for a in sys.argv[2:])
LITE = int(opts.get("lite", 0))
DEBUG = int(opts.get("debug", 0))
PRIO = int(opts.get("prio", 1))
FORCE_SLOW = int(opts.get("slow", 0))
NT = " " + opts.get("nt", "nt").replace("+", " ").replace("none", "")
WSOFF = int(opts.get("wsoff", "0"), 0)
PREF = int(opts.get("pref", 0))
STG = [int(x) for x in opts.get("stg", "0,0").split(",")]
STAG = max(STG) > 0
def stg_at(j): return any(x > 0 and x % 2 == j // 2 for x in STG)
SLEEP = int(opts.get("sleep", 2))
PTH = [int(x) for x in opts.get("pth", "5").split(",")]

PST_ = opts.get("pst", "sc1").replace("+", " "); RST_ = opts.get("rst", "sc1").replace("+", " ")
ICP = int(opts.get('icp', 2)); TAGS = int(opts.get('tags', 1))
PAIR = int(opts.get('pair', 1))
PUB_ = opts.get("pub", "sc0+sc1").replace("+", " ")
AI4 = int(opts.get('ai4', 0))
KNAME = "standalone__edge_featured_mpnn_mpnn__graph_kernel"
N = 25000; E = 800000
BN = 98; NW = 12; NTH = 768
QE = 3072; XE = 53; CH = QE + XE
GRAN = 0x10000
W2I = 0x98000
PF = 0xA0000
MAGIC = 0x4B010000
REC = 0x100000; RSTRIDE = 37632
PT = 0xB00000
STAMP = 0x1200000
WS_SIZE = 0x1300000
LOG2E = 1.4426950408889634
LN2 = 0.6931471805599453
def f2u(x): return struct.unpack("<I", struct.pack("<f", x))[0]

CNT = 0; DONE = 512; PROG = 1024; FLAG = 1040; MAXC = 1044; LUT = 1088
GT = 1600; GSZ = 64; TMAX = 10; NGT = NW * TMAX + 2
GA = GT + 49 * 16
CNT1 = GT
CAP = 56; NSZ = CAP * 12; EOFF = CAP * 4
AREA = (GT + NGT * GSZ + 127) // 128 * 128
SB = (AREA + 99 * NSZ + 255) // 256 * 256
SROW = 528; NSROW = BN + NW
QB = SB + NSROW * SROW; QROW = 264
GBASE = QB + 102 * QROW; CNTR = GBASE + 512
LDS = CNTR + 512
assert LDS <= 163840 and QB % 8 == 0 and GBASE % 8 == 0 and GT % 16 == 0
RST = AREA; XRAW = AREA + 37632; W1RAW = SB; PST = SB + 32768
assert XRAW + 16384 <= SB and PST + BN * 256 <= QB
ZROW = BN
KMASK = 0x03F803FC; KCON = 0x5C005C00
PADKEY = KCON | (126 << 19)
OVF = AREA + 98 * NSZ
SCANW, EXTRAW = 8, 9

out = []
def A(s=""): out.append(s)
def I(s):
    for l in s.strip("\n").split("\n"):
        l = l.strip()
        if not l: continue
        out.append(l if l.endswith(":") else "    " + l)
def L(name): out.append(name + ":")
def vr(a, n): return f"v[{a}:{a+n-1}]"
def sr(a, n): return f"s[{a}:{a+n-1}]"
def P(r): return f"v[{r}:{r+1}]"

sWS, sP, sOUT, sA, sBq, sC = 4, 8, 12, 16, 20, 24
sD = 28
pX, pE, pSRC, pDST, pW1, pB1, pW2, pB2, pOUT, pWS = 32, 34, 36, 38, 40, 42, 44, 46, 48, 50
sM = 32
sB, sW, sTw, sG, sT, sRem, sGam, sK, sGmax, sBad, sTag, sTag8, sReg, sMode, sK0, sMaxc = range(62, 78)
sONE = 78; sADV = 80; sSC = 82; sE0 = 84; sE1 = 86
t0, t1, t2, t3, t4, t5 = 88, 89, 90, 91, 92, 93
sNT = 3
sPM, sNV = 16, 22; sPV = [28, 30, 94]
vLane = 1
vPA, vPB, vPG, vPR = 2, 3, 4, 5
vSC = 8; vQC = 44; vQ = 10; vGQ = 11
vSA = 12; vAG = 14; vA5 = 16; vB5 = [18, 20]; vD = 22; vN = 24; vSO = 26; vMX = 28; vST = 29
vAC = 6; vBK = 30; vGS = 36; vKA = 38
vW2S = 32
vt = 40
vLb = [48, 64]; vTL = 80; vTH = 96; vE = 112; vIX = 128
NVGPR = 168

nstamp = [0]
def stamp(force=False):
    if not DEBUG: return
    i = nstamp[0]; nstamp[0] += 1
    if LITE and not force: return
    I(f"{'s_memtime' if DEBUG == 2 else 's_memrealtime'} s[100:101]")
    I("s_waitcnt lgkmcnt(0)")
    I(f"v_writelane_b32 v{vST}, s100, {i}")

def srd(d, p, nrec, stride=0, add=None):
    if add is None:
        I(f"s_mov_b32 s{d}, s{p}")
        I(f"s_and_b32 s{d+1}, s{p+1}, 0xffff")
    else:
        I(f"s_add_u32 s{d}, s{p}, {add}")
        I(f"s_addc_u32 s{d+1}, s{p+1}, 0")
        I(f"s_and_b32 s{d+1}, s{d+1}, 0xffff")
    I(f"s_mov_b32 s{d+2}, {nrec}")
    I(f"s_mov_b32 s{d+3}, 0x00020000")

def dpp_scan(v, vmax=None):
    steps = ["row_shr:1 row_mask:0xf bank_mask:0xf bound_ctrl:0", "row_shr:2 row_mask:0xf bank_mask:0xf bound_ctrl:0",
             "row_shr:4 row_mask:0xf bank_mask:0xf bound_ctrl:0", "row_shr:8 row_mask:0xf bank_mask:0xf bound_ctrl:0",
             "row_bcast:15 row_mask:0xa bank_mask:0xf", "row_bcast:31 row_mask:0xc bank_mask:0xf"]
    I("s_nop 1")
    for s in steps:
        I(f"v_add_u32_dpp v{v}, v{v}, v{v} {s}")
        if vmax is not None:
            I(f"v_max_u32_dpp v{vmax}, v{vmax}, v{vmax} {s}")
            I("s_nop 0")
        else:
            I("s_nop 1")
def lanemask(ls):
    m = 0
    for l in ls: m |= 1 << l
    return m
def setexec(m):
    I(f"s_mov_b32 exec_lo, {m & 0xffffffff}")
    I(f"s_mov_b32 exec_hi, {m >> 32}")
def mf16(D, a, b, c): return f"v_mfma_f32_32x32x16_bf16 {vr(D,16)}, {vr(a,4)}, {vr(b,4)}, {c}"
def mf8(D, a, b, c): return f"v_mfma_f32_32x32x8_bf16 {vr(D,16)}, {vr(a,2)}, {vr(b,2)}, {c}"
SDWA0 = "dst_sel:DWORD dst_unused:UNUSED_PAD src0_sel:WORD_0 src1_sel:DWORD"
SDWAB = "dst_sel:DWORD dst_unused:UNUSED_PAD src0_sel:DWORD src1_sel:BYTE_0"

def area_init(z):
    I(f"""
    s_mov_b32 s{t0}, 1561
    v_mul_u32_u24 v{z+5}, s{t0}, v0
    v_lshrrev_b32 v{z+5}, 16, v{z+5}
    v_mul_u32_u24 v{z+5}, 42, v{z+5}
    v_sub_u32 v{z+5}, v0, v{z+5}
    v_cmp_gt_u32 vcc, 14, v{z+5}
    v_mov_b32 v{z+6}, {PADKEY}
    v_lshlrev_b32 v{z+7}, 4, v0
    v_cndmask_b32 v{z}, 0, v{z+6}, vcc
    v_add_u32 v{z+4}, {AREA}, v{z+7}
    v_mov_b32 v{z+1}, v{z}
    v_mov_b32 v{z+2}, v{z}
    v_mov_b32 v{z+3}, v{z}
    v_cmp_gt_u32 vcc, 756, v0
    s_and_b64 exec, exec, vcc
    """)
    for t in range(6):
        if t == 5:
            I(f"v_cmp_gt_u32 vcc, {99*42 - 5*756}, v0")
            I("s_and_b64 exec, exec, vcc")
        I(f"ds_write_b128 v{z+4}, {vr(z,4)} offset:{t*756*16}")
    I("s_mov_b64 exec, -1")
    vals = [OVF + 6*32, OVF + EOFF + 6*64, 64, (ZROW*SROW) | ((98*QROW) << 16)]
    for q in range(4): I(f"v_mov_b32 v{z+8+q}, {vals[q]}")
    I(f"""
    v_cmp_gt_u32 vcc, {NGT*4}, v0
    s_and_b64 exec, exec, vcc
    ds_write_b128 v{z+7}, {vr(z+8,4)} offset:{GT}
    s_mov_b64 exec, -1
    """)
def area_init4(z, lbl):
    I(f"""
    s_cmp_lt_u32 s{sW}, 8
    s_cbranch_scc1 {lbl}
    v_subrev_u32 v{z+7}, 512, v0
    s_mov_b32 s{t0}, 1561
    v_mul_u32_u24 v{z+5}, s{t0}, v{z+7}
    v_lshrrev_b32 v{z+5}, 16, v{z+5}
    v_mul_u32_u24 v{z+5}, 42, v{z+5}
    v_sub_u32 v{z+5}, v{z+7}, v{z+5}
    v_cmp_gt_u32 vcc, 14, v{z+5}
    v_mov_b32 v{z+6}, {PADKEY}
    v_lshlrev_b32 v{z+4}, 4, v{z+7}
    v_cndmask_b32 v{z}, 0, v{z+6}, vcc
    v_add_u32 v{z+4}, {AREA}, v{z+4}
    v_mov_b32 v{z+1}, v{z}
    v_mov_b32 v{z+2}, v{z}
    v_mov_b32 v{z+3}, v{z}
    v_cmp_gt_u32 vcc, 252, v{z+7}
    s_and_b64 exec, exec, vcc
    """)
    for t in range(17):
        if t == 16:
            I(f"v_cmp_gt_u32 vcc, {99*42 - 16*252}, v{z+7}")
            I("s_and_b64 exec, exec, vcc")
        I(f"ds_write_b128 v{z+4}, {vr(z,4)} offset:{t*252*16}")
    I("s_mov_b64 exec, -1")
    vals = [OVF + 6*32, OVF + EOFF + 6*64, LUT + 64, (ZROW*SROW) | ((98*QROW) << 16)]
    I(f"v_mov_b32 v{z+8}, {vals[0]}")
    for q in range(1, 4):
        setexec(lanemask([l for l in range(64) if l & 3 == q]))
        I(f"v_mov_b32 v{z+8}, {vals[q]}")
    I(f"""
    s_mov_b64 exec, -1
    v_lshlrev_b32 v{z+5}, 4, v{z+7}
    v_cmp_gt_u32 vcc, {NGT*4 - 256}, v{z+7}
    v_mov_b32 v{z+9}, v{z+8}
    v_mov_b32 v{z+10}, v{z+8}
    v_mov_b32 v{z+11}, v{z+8}
    ds_write_b128 v{z+5}, {vr(z+8,4)} offset:{GT}
    s_and_b64 exec, exec, vcc
    ds_write_b128 v{z+5}, {vr(z+8,4)} offset:{GT + 4096}
    s_mov_b64 exec, -1
    {lbl}:
    """)
def s_zero(z):
    nch = NSROW * SROW // 16
    for i in range(4): I(f"v_mov_b32 v{z+i}, 0")
    I(f"v_lshlrev_b32 v{z+4}, 4, v0")
    I(f"v_add_u32 v{z+4}, {SB}, v{z+4}")
    n = (nch + NTH - 1) // NTH
    for t in range(n):
        if (t + 1) * NTH > nch:
            I(f"v_cmp_gt_u32 vcc, {nch - t*NTH}, v0")
            I(f"s_and_b64 exec, exec, vcc")
        I(f"ds_write_b128 v{z+4}, {vr(z,4)} offset:{t*NTH*16}")
    I("s_mov_b64 exec, -1")
def small_init(z):
    I(f"""
    v_lshlrev_b32 v{z}, 2, v0
    v_mov_b32 v{z+1}, 0
    v_cmp_gt_u32 vcc, 272, v0
    s_and_b64 exec, exec, vcc
    ds_write_b32 v{z}, v{z+1}
    s_mov_b64 exec, -1
    """)

hdr = open("standalone__edge_featured_mpnn_mpnn__graph.s.ref").read().split("\n")
for l in hdr:
    if "@launch" in l: continue
    if not l.startswith(";"): break
    A(l)
A(f"; @launch grid=(256,1,1) block=({NTH},1,1) lds={LDS}")
A('.amdgcn_target "amdgcn-amd-amdhsa--gfx950"')
A(".text")
A(f".globl {KNAME}")
A(".p2align 8")
A(f".type {KNAME},@function")
L(KNAME)
I(f"""
s_cmp_ge_u32 s2, 256
s_cbranch_scc1 L_exit
{"s_memrealtime s[96:97]" if DEBUG else ""}
""")
if int(opts.get("skew", 0)):
    I(f"""
    s_and_b32 s3, s2, 7
    s_cmp_lg_u32 s3, 3
    s_cbranch_scc1 L_nosk
    s_sleep {opts["skew"]}
    L_nosk:
    """)
I(f"""
s_load_dwordx16 s[32:47], s[0:1], 0
s_load_dwordx2 {sr(pOUT,2)}, s[0:1], 64
s_load_dwordx2 {sr(pWS,2)}, s[0:1], 80
v_lshrrev_b32 v{vt}, 6, v0
v_and_b32 v{vLane}, 63, v0
v_readfirstlane_b32 s{sW}, v{vt}
""")
if ICP in (2, 3, 4):
    I(f"""
    s_getpc_b64 s[94:95]
    s_lshr_b32 s98, s2, 3
    s_mul_i32 s98, s98, {NW}
    s_add_u32 s98, s98, s{sW}
    s_and_b32 s98, s98, {127 if ICP == 3 else 255}
    s_lshl_b32 s98, s98, {7 if ICP == 3 else 6}
    """)
if ICP == 3:
    I(f"""
    v_mov_b32 v27, s98
    s_mov_b64 exec, 1
    global_load_dword v27, v27, s[94:95]
    s_mov_b64 exec, -1
    """)
if ICP == 4:
    I(f"""
    s_cmp_gt_u32 s98, 64
    s_cbranch_scc1 L_noic
    s_lshl_b32 s99, s98, 7
    v_lshl_add_u32 v27, v{vLane}, 7, s99
    global_load_dword v27, v27, s[94:95]
    L_noic:
    """)
I(f"""
s_mul_i32 s{t0}, s2, {QE*4}
{f"s_lshl_b32 s{t1}, s{sW}, 10" if PAIR else ""}
{f"s_add_u32 s{t0}, s{t0}, s{t1}" if PAIR else ""}
{f"v_lshl_add_u32 v{vt+1}, v{vLane}, 3, s{t0}" if PAIR else f"v_lshl_add_u32 v{vt+1}, v0, 4, s{t0}"}
v_lshlrev_b32 v{vt+2}, 1, v{vt+1}
s_and_b32 s{sB}, s2, 7
s_lshl_b32 s{sB}, s{sB}, 5
s_lshr_b32 s{t1}, s2, 3
s_add_u32 s{sB}, s{sB}, s{t1}
{f"s_mov_b32 s{sB}, s2" if int(opts.get("ident", 0)) else ""}
v_lshlrev_b32 v75, 2, v0
v_mov_b32 v76, 0
ds_write_b32 v75, v76 offset:{CNT1}
v_lshrrev_b32 v68, 3, v{vLane}
v_lshrrev_b32 v69, 4, v{vLane}
v_and_b32 v70, 7, v{vLane}
v_xor_b32 v70, v70, v69
v_lshlrev_b32 v70, 4, v70
v_lshl_add_u32 v70, v68, 7, v70
s_and_b32 s{t0}, s{sW}, 1
s_lshl_b32 s{t0}, s{t0}, 6
v_xor_b32 v71, s{t0}, v70
v_and_b32 v72, 15, v{vLane}
v_lshlrev_b32 v73, 2, v69
v_xor_b32 v72, v72, v73
v_lshlrev_b32 v72, 4, v72
v_lshl_add_u32 v72, v69, 8, v72
v_lshlrev_b32 v74, 1, v{vLane}
v_and_b32 v75, 32, v{vLane}
v_lshl_add_u32 v74, v75, 4, v74
v_lshlrev_b32 v{vt+5}, 4, v{vLane}
v_lshlrev_b32 v{vt}, 4, v0
s_mul_i32 s{t1}, s{sB}, {BN*128}
s_lshl_b32 s{t2}, s{sW}, 10
s_mov_b32 s{sA+2}, {N*128}
s_mov_b32 s{sA+3}, 0x00020000
s_mov_b32 s{sBq+2}, {132*256}
s_mov_b32 s{sBq+3}, 0x00020000
s_mov_b32 s{sC+2}, 256
s_mov_b32 s{sC+3}, 0x00020000
s_mov_b32 s{sD+2}, {128*128}
s_mov_b32 s{sD+3}, 0x00020000
s_waitcnt lgkmcnt(0)
s_add_u32 s{pWS}, s{pWS}, {WSOFF}
s_addc_u32 s{pWS+1}, s{pWS+1}, 0
{"s_load_dword s3, s[94:95], s98" if ICP in (2, 4) else ""}
{f"s_load_dword s{sTag}, {sr(pWS,2)}, 0" if TAGS else ""}
s_mov_b32 s{sA}, s{pX}
s_and_b32 s{sA+1}, s{pX+1}, 0xffff
s_mov_b32 s{sBq}, s{pW1}
s_and_b32 s{sBq+1}, s{pW1+1}, 0xffff
s_mov_b32 s{sC}, s{pB1}
s_and_b32 s{sC+1}, s{pB1+1}, 0xffff
s_mov_b32 s{sD}, s{pW2}
s_and_b32 s{sD+1}, s{pW2+1}, 0xffff
s_cmp_ge_u32 s{sW}, 8
s_cbranch_scc1 L_opt_hi
s_add_u32 s{t3}, s{t2}, {24*1024}
s_add_u32 m0, s{t3}, {W1RAW}
s_cmp_lg_u32 s{sW}, 0
buffer_load_dwordx4 v72, {sr(sBq,4)}, s{t3} offen lds
s_cbranch_scc1 L_opt_end
s_mov_b32 m0, {XRAW + 12*1024}
s_add_u32 s{t3}, s{t1}, {12*1024}
buffer_load_dwordx4 v70, {sr(sA,4)}, s{t3} offen{NT} lds
s_branch L_opt_end
L_opt_hi:
s_cmp_lg_u32 s{sW}, {EXTRAW}
s_cbranch_scc1 L_opt_a
s_mul_i32 s{t0}, s2, {XE}
s_add_u32 s{t0}, s{t0}, {256*QE}
v_add_lshl_u32 v{vt+3}, v{vLane}, s{t0}, 2
v_lshlrev_b32 v{vt+4}, 1, v{vt+3}
""")
XM = (1 << XE) - 1
setexec(XM)
I(f"""
global_load_dword v64, v{vt+3}, {sr(pDST,2)}{NT}
global_load_dword v65, v{vt+3}, {sr(pSRC,2)}{NT}
global_load_dwordx2 v[66:67], v{vt+4}, {sr(pE,2)}{NT}
s_mov_b64 exec, -1
s_branch L_opt_end
L_opt_a:
s_cmp_lg_u32 s{sW}, 10
s_cbranch_scc1 L_opt_end
s_mov_b32 s{t0}, {128*256}
buffer_load_dwordx4 v[12:15], v{vt+5}, {sr(sBq,4)}, s{t0} offen
""")
ORD = opts.get("ord", "A")
dma = f"""
s_add_u32 m0, s{t2}, {XRAW}
s_add_u32 s{t3}, s{t1}, s{t2}
buffer_load_dwordx4 v71, {sr(sA,4)}, s{t3} offen{NT} lds
s_add_u32 m0, s{t2}, {W1RAW}
s_add_u32 s{t3}, s{t2}, {12*1024}
buffer_load_dwordx4 v72, {sr(sBq,4)}, s{t2} offen lds
s_add_u32 m0, s{t3}, {W1RAW}
s_nop 0
buffer_load_dwordx4 v72, {sr(sBq,4)}, s{t3} offen lds
"""
edg = f"""
global_load_dwordx4 v[52:55], v{vt+1}, {sr(pSRC,2)}{NT}
global_load_dwordx4 v[56:59], v{vt+2}, {sr(pE,2)}{NT}
global_load_dwordx4 v[60:63], v{vt+2}, {sr(pE,2)} offset:16{NT}
"""
L("L_opt_end")
if PAIR:
    I(f"""
    global_load_dwordx2 v[48:49], v{vt+1}, {sr(pDST,2)}{NT}
    global_load_dwordx2 v[50:51], v{vt+1}, {sr(pDST,2)} offset:512{NT}
    """)
    edg = f"""
    global_load_dwordx2 v[52:53], v{vt+1}, {sr(pSRC,2)}{NT}
    global_load_dwordx2 v[54:55], v{vt+1}, {sr(pSRC,2)} offset:512{NT}
    global_load_dwordx4 v[56:59], v{vt+2}, {sr(pE,2)}{NT}
    global_load_dwordx4 v[60:63], v{vt+2}, {sr(pE,2)} offset:1024{NT}
    """
else:
    I(f"global_load_dwordx4 v[48:51], v{vt+1}, {sr(pDST,2)}{NT}")
if DEBUG:
    I(f"v_mov_b32 v{vST}, 0")
    if DEBUG == 1: I(f"v_writelane_b32 v{vST}, s96, 21")
    nstamp[0] = 1
if ORD == "A": I(dma); I("s_barrier"); I(edg)
elif ORD == "B": I("s_barrier"); I(dma); I(edg)
elif ORD == "C": I("s_barrier"); I(edg); I(dma)
elif ORD == "D": I("s_barrier"); I(dma); I("s_barrier"); I(edg)
I(f"""
s_and_b32 s{t0}, s{sW}, 1
s_lshl_b32 s{t0}, s{t0}, 7
buffer_load_ushort v160, v74, {sr(sC,4)}, s{t0} offen
buffer_load_ushort v162, v74, {sr(sC,4)}, s{t0} offen offset:64
""")
X = (0 if TAGS else 1) + (ICP == 1)
I("s_mov_b64 exec, 1")
if not TAGS:
    I("v_mov_b32 v26, 0")
    I(f"global_load_dword v26, v26, {sr(pWS,2)}")
if ICP == 1:
    I(f"""
    s_getpc_b64 s[94:95]
    s_lshr_b32 s{t0}, s2, 3
    s_mul_i32 s{t0}, s{t0}, {NW}
    s_add_u32 s{t0}, s{t0}, s{sW}
    s_and_b32 s{t0}, s{t0}, 127
    s_lshl_b32 s{t0}, s{t0}, 7
    v_mov_b32 v27, s{t0}
    global_load_dword v27, v27, s[94:95]
    """)
I("s_mov_b64 exec, -1")
assert CNT1 + NTH * 4 <= AREA
small_init(76)
srd(sWS, pWS, WS_SIZE)
I(f"""
s_sub_u32 s{sP}, s{pWS}, {MAGIC - PT}
s_subb_u32 s{sP+1}, s{pWS+1}, 0
s_and_b32 s{sP+1}, s{sP+1}, 0xffff
s_mov_b32 s{sP+2}, {MAGIC + N*256}
s_mov_b32 s{sP+3}, 0x00020000
""")
I(f"""
s_mul_i32 s{t0}, s{sB}, {BN}
s_sub_u32 s{t1}, {N}, s{t0}
s_min_u32 s{t1}, s{t1}, {BN}
s_lshl_b32 s{t2}, s{t0}, 7
s_add_u32 s{sOUT}, s{pOUT}, s{t2}
s_addc_u32 s{sOUT+1}, s{pOUT+1}, 0
s_and_b32 s{sOUT+1}, s{sOUT+1}, 0xffff
s_lshl_b32 s{sOUT+2}, s{t1}, 7
s_mov_b32 s{sOUT+3}, 0x00020000
s_mov_b32 s{sONE}, 1.0
s_mov_b32 s{sONE+1}, 1.0
s_mov_b32 s{sADV}, 16
s_mov_b32 s{sADV+1}, 16
s_mov_b32 s{sSC}, {f2u(-LOG2E)}
s_mov_b32 s{sSC+1}, {f2u(-LOG2E)}
s_mov_b32 s{sMode}, 0
s_lshl_b32 s{sReg}, s{sW}, 6
s_add_u32 s{sReg}, s{sReg}, {GT}
s_mov_b32 s{t4}, 42800
s_mov_b32 s{t5}, {(-BN) & 0xffffffff}
v_mov_b32 v{vt+6}, 1
v_mov_b32 v161, 0
v_mov_b32 v163, 0
v_mov_b32 v164, 0x3f80
v_mov_b32 v165, 0
""")
I(f"""
v_lshrrev_b32 v68, 5, v{vLane}
v_bfe_u32 v69, v{vLane}, 2, 2
v_lshl_add_u32 v70, v68, 5, v69
s_mov_b32 s{t0}, {W1RAW}
v_lshl_add_u32 v70, v70, 8, s{t0}
v_bfe_u32 v71, v{vLane}, 4, 1
v_lshl_add_u32 v70, v71, 5, v70
v_and_b32 v71, 3, v{vLane}
v_lshl_add_u32 v70, v71, 3, v70
s_and_b32 s{t0}, s{sW}, 1
s_lshl_b32 s{t0}, s{t0}, 1
v_xor_b32 v71, s{t0}, v69
v_lshl_add_u32 v166, v71, 6, v70
v_xor_b32 v71, 1, v71
v_lshl_add_u32 v167, v71, 6, v70
s_lshr_b32 s{t0}, s{sW}, 1
s_lshl_b32 s{t0}, s{t0}, 5
v_and_b32 v78, 31, v{vLane}
v_add_u32 v78, s{t0}, v78
v_bfe_u32 v71, v{vLane}, 1, 3
v_lshlrev_b32 v72, 2, v68
v_xor_b32 v71, v71, v72
v_lshlrev_b32 v71, 4, v71
v_lshl_add_u32 v79, v78, 7, v71
v_add_u32 v79, {XRAW}, v79
s_waitcnt vmcnt({8+X+PAIR})
""")
stamp()
def bucket_rank(d, a, r):
    I(f"v_mul_u32_u24 v{a}, s{t4}, v{d}")
    I(f"v_lshrrev_b32 v{a}, 22, v{a}")
    I(f"v_mad_i32_i24 v{d}, v{a}, s{t5}, v{d}")
    I(f"v_lshlrev_b32 v{a}, 2, v{a}")
    I(f"ds_add_rtn_u32 v{r}, v{a}, v{vt+6} offset:{CNT1}")
for i in range(4): bucket_rank(48+i, 68+i, 73+i)
I(f"s_cmp_lg_u32 s{sW}, {EXTRAW}")
I("s_cbranch_scc1 L_noex1")
setexec(XM)
bucket_rank(64, 72, 77)
I("s_mov_b64 exec, -1")
L("L_noex1")
I(f"""
s_waitcnt vmcnt({X + (2 if ORD == 'C' else 5 + PAIR)}) lgkmcnt(0)
s_barrier
""")
stamp()
I(f"""
s_cmp_lt_u32 s{sW}, 8
s_cbranch_scc1 L_ptask
s_cmp_lg_u32 s{sW}, {SCANW}
s_cbranch_scc1 L_noscan
ds_read_b128 v[80:83], v{vt+5} offset:{CNT1}
s_waitcnt lgkmcnt(0)
v_add_u32 v84, v80, v81
v_add_u32 v85, v84, v82
v_add_u32 v86, v85, v83
v_mov_b32 v87, v86
""")
dpp_scan(87)
I(f"""
v_sub_u32 v88, v87, v86
v_add_u32 v89, v88, v80
v_add_u32 v90, v88, v84
v_add_u32 v91, v88, v85
v_mov_b32 v96, {RST}
v_mad_u32_u24 v92, v88, 12, v96
v_mad_u32_u24 v93, v89, 12, v96
v_mad_u32_u24 v94, v90, 12, v96
v_mad_u32_u24 v95, v91, 12, v96
ds_write_b128 v{vt+5}, v[92:95] offset:{CNT1}
v_lshl_or_b32 v16, v80, 12, v88
v_lshl_or_b32 v18, v81, 12, v89
v_lshl_or_b32 v20, v82, 12, v90
v_lshl_or_b32 v22, v83, 12, v91
s_branch L_p_done
L_noscan:
""")
if DEBUG and int(opts.get("arr", 0)):
    I("s_waitcnt vmcnt(0)")
    I("s_memrealtime s[100:101]")
    I("s_waitcnt lgkmcnt(0)")
    I(f"v_writelane_b32 v{vST}, s100, 20")
if int(opts.get("prew", 0)):
    I(f"""
    s_cmp_lg_u32 s{sW}, 9
    s_cbranch_scc1 L_nopw
    s_lshl_b32 s{t0}, s2, 11
    s_add_u32 s{t0}, s{t0}, {GRAN}
    v_mov_b32 v16, 0
    v_mov_b32 v17, 0
    v_mov_b32 v18, 0
    v_mov_b32 v19, 0
    buffer_store_dwordx4 v[16:19], v{vt+5}, {sr(sWS,4)}, s{t0} offen sc1
    buffer_store_dwordx4 v[16:19], v{vt+5}, {sr(sWS,4)}, s{t0} offen offset:1024 sc1
    L_nopw:
    """)
I(f"""
s_cmp_eq_u32 s{sW}, 11
s_cbranch_scc1 L_w2ld
s_cmp_lg_u32 s{sW}, 10
s_cbranch_scc1 L_p_done
""")
for i in range(4):
    I(f"v_lshlrev_b32 v{80+2*i}, 16, v{12+i}")
    I(f"v_and_b32 v{81+2*i}, 0xffff0000, v{12+i}")
for i in range(4):
    I(f"v_pk_mul_f32 {P(80+2*i)}, {P(80+2*i)}, {sr(sSC,2)}")
for i in range(4):
    I(f"v_cvt_pk_bf16_f32 v{12+i}, v{80+2*i}, v{81+2*i}")
I(f"""
v_lshrrev_b32 v88, 4, v{vLane}
v_mul_u32_u24 v88, {QROW}, v88
v_and_b32 v89, 15, v{vLane}
v_lshl_add_u32 v88, v89, 4, v88
v_add_u32 v88, {QB + 98*QROW}, v88
ds_write2_b64 v88, v[12:13], v[14:15] offset0:0 offset1:1
v_mov_b32 v90, 0
v_mov_b32 v91, 0
""")
for g_ in range(4):
    setexec(lanemask(range(16*g_, 16*g_+8)))
    I(f"v_mov_b32 v{90 + (g_ >> 1)}, {0x3f800000 if g_ & 1 else 0x3f80}")
I(f"""
s_mov_b64 exec, -1
v_lshlrev_b32 v88, 3, v{vLane}
ds_write_b64 v88, v[90:91] offset:{LUT}
s_branch L_p_done
L_ptask:
v_xor_b32 v{vt+1}, 16, v79
v_xor_b32 v{vt+2}, 32, v79
v_xor_b32 v{vt+3}, 48, v79
""")
xa = [79, vt+1, vt+2, vt+3]
for ks in range(4):
    I(f"ds_read_b128 {vr(112+4*ks,4)}, v{xa[ks]}")
    for jl in range(2):
        for hf in range(2):
            I(f"ds_read_b64_tr_b16 {P(80+16*jl+4*ks+2*hf)}, v{166+jl} offset:{(8*ks+4*hf)*256}")
I(f"""
v_cmp_gt_u32 vcc, {BN}, v78
s_mov_b64 {sr(sE0,2)}, vcc
v_lshrrev_b32 v{vt+1}, 5, v{vLane}
s_and_b32 s{t1}, s{sW}, 1
s_lshl_b32 s{t1}, s{t1}, 3
v_add_u32 v{vt+1}, s{t1}, v{vt+1}
v_and_b32 v{vt+2}, 15, v78
v_xor_b32 v{vt+1}, v{vt+1}, v{vt+2}
v_lshlrev_b32 v{vt+1}, 4, v{vt+1}
v_lshl_add_u32 v{vt+1}, v78, 8, v{vt+1}
v_add_u32 v{vt+1}, {PST}, v{vt+1}
v_xor_b32 v{vt+2}, 32, v{vt+1}
v_xor_b32 v{vt+3}, 64, v{vt+1}
v_xor_b32 v{vt+4}, 0x60, v{vt+1}
""")
for ks in range(4):
    I(f"s_waitcnt lgkmcnt({15 - 5*ks})")
    I(mf16(128, 80+4*ks, 112+4*ks, "0" if ks == 0 else vr(128,16)))
    I(mf16(144, 96+4*ks, 112+4*ks, "0" if ks == 0 else vr(144,16)))
I("s_mov_b32 s%d, 0x07060302" % t0)
I("s_nop 10")
for i in range(16):
    I(f"v_pk_mul_f32 {P(128+2*i)}, {P(128+2*i)}, {sr(sSC,2)}")
I(f"s_mov_b64 exec, {sr(sE0,2)}")
for rg in range(4):
    for i in range(4*rg, 4*rg+4):
        I(f"v_add_u32 v{128+i}, 0x4000, v{128+i}")
    for i in range(4*rg, 4*rg+4):
        I(f"v_perm_b32 v{128+i}, v{144+i}, v{128+i}, s{t0}")
    I(f"ds_write_b128 v{vt+1+rg}, {vr(128+4*rg,4)}")
I(f"""
s_mov_b64 exec, -1
L_p_done:
v_lshrrev_b32 v80, 4, v0
v_xor_b32 v81, v80, v0
v_and_b32 v81, 15, v81
v_lshlrev_b32 v81, 4, v81
v_lshl_add_u32 v81, v80, 8, v81
v_add_u32 v81, {PST}, v81
s_mul_i32 s{t0}, s{sB}, {BN*256}
s_add_u32 s{t0}, s{t0}, {PT}
s_add_u32 s{sA}, s{pWS}, s{t0}
s_addc_u32 s{sA+1}, s{pWS+1}, 0
s_and_b32 s{sA+1}, s{sA+1}, 0xffff
s_mov_b32 s{sA+2}, {BN*256}
s_mov_b32 s{sA+3}, 0x00020000
s_mul_i32 s{t0}, s2, {RSTRIDE}
s_add_u32 s{t0}, s{t0}, {REC}
s_add_u32 s{sBq}, s{pWS}, s{t0}
s_addc_u32 s{sBq+1}, s{pWS+1}, 0
s_and_b32 s{sBq+1}, s{sBq+1}, 0xffff
s_mov_b32 s{sBq+2}, {(CH*12+15)//16*16}
s_mov_b32 s{sBq+3}, 0x00020000
s_mov_b32 s{t1}, {NTH*16}
s_mov_b32 s{t2}, {2*NTH*16}
s_mov_b32 s{t3}, {3*NTH*16}
s_waitcnt lgkmcnt(0)
s_barrier
""")
stamp()
I(f"""
ds_read_b128 v[84:87], v81
ds_read_b128 v[88:91], v81 offset:{48*256}
ds_read_b128 v[92:95], v81 offset:{96*256}
""")
for i in range(5):
    I(f"ds_read_b32 v{68+i}, v{68+i} offset:{CNT1}")
I(f"""
s_waitcnt lgkmcnt(7)
buffer_store_dwordx4 v[84:87], v{vt}, {sr(sA,4)}, 0 offen {PST_}
s_waitcnt lgkmcnt(6)
buffer_store_dwordx4 v[88:91], v{vt}, {sr(sA,4)}, s{t1} offen {PST_}
s_waitcnt lgkmcnt(5)
buffer_store_dwordx4 v[92:95], v{vt}, {sr(sA,4)}, s{t2} offen {PST_}
s_waitcnt vmcnt({7+X})
""")
I(f"s_movk_i32 s{t4}, 0x804")
I(f"s_mov_b32 s{t5}, {KMASK}")
for i in range(4):
    I(f"v_mul_u32_u24 v{52+i}, s{t4}, v{52+i}") if False else None
    I(f"v_lshlrev_b32 v{80+i}, 11, v{52+i}")
    I(f"v_lshlrev_b32 v{48+i}, 12, v{48+i}")
    I(f"v_lshlrev_b32_sdwa v{80+i}, 2, v{52+i} dst_sel:WORD_0 dst_unused:UNUSED_PRESERVE src0_sel:DWORD src1_sel:BYTE_0")
for i in range(4):
    I(f"v_and_or_b32 v{48+i}, v{80+i}, s{t5}, v{48+i}")
I("s_waitcnt lgkmcnt(0)")
for i in range(5):
    I(f"v_mad_u32_u24 v{68+i}, v{73+i}, 12, v{68+i}")
for i in range(4):
    I(f"ds_write_b32 v{68+i}, v{48+i} offset:8")
I(f"s_cmp_lg_u32 s{sW}, {EXTRAW}")
I("s_cbranch_scc1 L_noex2")
setexec(XM)
I(f"""
v_lshlrev_b32 v80, 11, v65
v_lshlrev_b32 v64, 12, v64
v_lshlrev_b32_sdwa v80, 2, v65 dst_sel:WORD_0 dst_unused:UNUSED_PRESERVE src0_sel:DWORD src1_sel:BYTE_0
s_nop 0
v_and_or_b32 v64, v80, s{t5}, v64
ds_write2_b32 v72, v66, v67 offset0:0 offset1:1
ds_write_b32 v72, v64 offset:8
s_mov_b64 exec, -1
L_noex2:
s_waitcnt vmcnt({6+X})
ds_write2_b32 v68, v56, v57 offset0:0 offset1:1
ds_write2_b32 v69, v58, v59 offset0:0 offset1:1
s_waitcnt vmcnt({5+X})
""")
stamp()
I(f"""
ds_write2_b32 v70, v60, v61 offset0:0 offset1:1
ds_write2_b32 v71, v62, v63 offset0:0 offset1:1
s_waitcnt lgkmcnt(0)
s_barrier
""")
stamp()
for i in range(4):
    I(f"ds_read_b128 {vr(48+4*i,4)}, v{vt} offset:{RST + i*NTH*16}")
for i in range(3):
    I(f"s_waitcnt lgkmcnt({3-i})")
    I(f"buffer_store_dwordx4 {vr(48+4*i,4)}, v{vt}, {sr(sBq,4)}, {['0', f's{t1}', f's{t2}'][i]} offen {RST_}")
I(f"""
s_waitcnt lgkmcnt(0)
s_cmp_lg_u32 s{sW}, 0
s_cbranch_scc1 L_no4
buffer_store_dwordx4 v[60:63], v{vt}, {sr(sBq,4)}, s{t3} offen {RST_}
L_no4:
{"s_barrier" if AI4 else ""}
s_cmp_ge_u32 s{sW}, 8
s_cbranch_scc1 L_nop2
""")
for ks in range(4):
    for jl in range(2):
        for hf in range(2):
            I(f"ds_read_b64_tr_b16 {P(80+16*jl+4*ks+2*hf)}, v{166+jl} offset:{16384 + (8*ks+4*hf)*256}")
I(f"s_waitcnt vmcnt({6+X})")
I(mf8(128, 160, 164, "0"))
I(mf8(144, 162, 164, "0"))
I(f"""
v_lshrrev_b32 v{vt+1}, 5, v{vLane}
s_and_b32 s{t0}, s{sW}, 1
s_lshl_b32 s{t0}, s{t0}, 7
s_add_u32 s{t0}, s{t0}, {QB}
v_lshl_add_u32 v{vt+1}, v{vt+1}, 3, s{t0}
v_mul_u32_u24 v{vt+2}, {QROW}, v78
v_add_u32 v{vt+1}, v{vt+1}, v{vt+2}
""")
for ks in range(4):
    I(f"s_waitcnt lgkmcnt({12 - 4*ks})")
    I(mf16(128, 80+4*ks, 112+4*ks, vr(128,16)))
    I(mf16(144, 96+4*ks, 112+4*ks, vr(144,16)))
I("s_nop 11")
for i in range(16):
    I(f"v_pk_mul_f32 {P(128+2*i)}, {P(128+2*i)}, {sr(sSC,2)}")
for i in range(16):
    I(f"v_cvt_pk_bf16_f32 v{128+i}, v{128+2*i}, v{129+2*i}")
I(f"s_mov_b64 exec, {sr(sE0,2)}")
for jl in range(2):
    for rg in range(4):
        I(f"ds_write_b64 v{vt+1}, {P(128+8*jl+2*rg)} offset:{64*jl + 16*rg}")
I(f"""
s_mov_b64 exec, -1
s_branch L_p2_done
L_nop2:
s_cmp_lg_u32 s{sW}, 11
s_cbranch_scc1 L_p2_done
s_cmp_gt_u32 s2, 16
s_cbranch_scc1 L_p2_done
s_lshl_b32 s{t0}, s2, 10
s_add_u32 s{t0}, s{t0}, {W2I}
s_waitcnt vmcnt(6)
s_cmp_lt_u32 s2, 16
s_cbranch_scc1 L_w2st
v_lshlrev_b32 v{vW2S}, 16, v{vW2S}
v_mul_f32 v{vW2S}, s{sSC}, v{vW2S}
v_lshlrev_b32 v{vW2S+1}, 2, v{vLane}
buffer_store_dword v{vW2S}, v{vW2S+1}, {sr(sWS,4)}, s{t0} offen sc1
s_branch L_p2_done
L_w2st:
v_lshl_or_b32 v{vW2S}, v{vW2S+1}, 16, v{vW2S}
v_lshl_or_b32 v{vW2S+1}, v{vW2S+3}, 16, v{vW2S+2}
v_lshl_or_b32 v{vW2S+2}, v{vW2S+5}, 16, v{vW2S+4}
v_lshl_or_b32 v{vW2S+3}, v{vW2S+7}, 16, v{vW2S+6}
buffer_store_dwordx4 {vr(vW2S,4)}, v{vt+5}, {sr(sWS,4)}, s{t0} offen sc1
L_p2_done:
""")
if AI4 == 1: area_init4(64, "L_ai4")
if AI4 == 2: area_init(64)
I(f"""
v_and_b32 v72, 31, v{vLane}
v_lshlrev_b32 v72, 2, v72
v_add_u32 v{vSC}, {SB}, v72
v_add_u32 v{vSC+1}, {SB}, v72
v_cvt_f32_u32 v72, v72
v_mov_b32 v{vBK}, 0x78005c00
v_cvt_f16_f32 v{vBK+1}, v72
v_and_b32 v{vBK+1}, 0xffff, v{vBK+1}
s_mov_b32 exec_lo, 0
v_mov_b32 v{vBK}, 0
v_mov_b32 v{vBK+1}, 0
s_mov_b64 exec, -1
v_mov_b32 v{vKA+1}, 0x3c00
v_bfe_u32 v73, v{vLane}, 4, 1
v_lshlrev_b32 v73, 5, v73
v_and_b32 v74, 3, v{vLane}
v_lshl_add_u32 v73, v74, 3, v73
v_add_u32 v{vQC}, {QB}, v73
v_bfe_u32 v75, v{vLane}, 2, 2
v_add_u32 v76, 98, v75
v_mul_u32_u24 v76, {QROW}, v76
v_add_u32 v{vQ}, v76, v{vQC}
""")
I(f"""
v_bfe_u32 v72, v{vLane}, 3, 2
v_bfe_u32 v73, v{vLane}, 1, 1
v_lshl_add_u32 v72, v72, 1, v73
v_lshlrev_b32 v{vAC}, 3, v72
v_lshlrev_b32 v{vAC+1}, 2, v72
v_bfe_u32 v73, v{vLane}, 2, 1
v_and_b32 v74, 1, v{vLane}
v_lshl_add_u32 v73, v73, 1, v74
v_lshlrev_b32 v73, 7, v73
s_mov_b32 exec_lo, 0
v_add_u32 v{vAC}, v{vAC}, v73
v_add_u32 v{vAC}, {LUT}, v{vAC}
s_mov_b64 exec, -1
""")
def ptr_mult(m):
    I(f"""
    v_lshrrev_b32 v{m}, 5, v{vLane}
    v_bfe_u32 v{m+2}, v{vLane}, 2, 1
    v_and_b32 v{m+3}, 1, v{vLane}
    v_lshlrev_b32 v{m}, 1, v{m}
    v_lshl_add_u32 v{m+2}, v{m+2}, 1, v{m+3}
    v_add_u32 v{m+1}, 1, v{m}
    v_bfe_u32 v{m+3}, v{vLane}, 2, 2
    """)
def ptr_consts(base):
    ptr_mult(72)
    I(f"""
    v_lshl_add_u32 v{vPA}, v72, 4, {base}
    v_lshl_add_u32 v{vPG}, v74, 4, {base}
    v_lshl_add_u32 v{vPR}, v75, 4, {base}
    v_add_u32 v{vPA}, 12, v{vPA}
    v_lshl_add_u32 v{vPG}, v72, 1, v{vPG}
    v_add_u32 v{vPR}, 14, v{vPR}
    v_add_u32 v{vPB}, 16, v{vPA}
    """)
ptr_consts(f"s{sReg}")
I(f"""
{"" if TAGS else "s_waitcnt vmcnt(6)"}
{"" if TAGS else f"v_readfirstlane_b32 s{sTag}, v26"}
s_add_u32 s{sTag}, s{sTag}, 1
s_mul_i32 s{sTag8}, s{sTag}, 0x9e3779b1
s_and_b32 s{sTag8}, s{sTag8}, 0xff000000
v_or_b32 v16, s{sTag8}, v16
v_or_b32 v18, s{sTag8}, v18
v_or_b32 v20, s{sTag8}, v20
v_or_b32 v22, s{sTag8}, v22
v_mov_b32 v17, s{sTag}
v_mov_b32 v19, s{sTag}
v_mov_b32 v21, s{sTag}
v_mov_b32 v23, s{sTag}
s_waitcnt vmcnt(0) lgkmcnt(0)
s_barrier
""")
stamp()
I(f"""
s_cmp_lg_u32 s{sW}, {SCANW}
s_cbranch_scc1 L_nopub
v_lshlrev_b32 v72, 4, v{vLane}
s_lshl_b32 s{t0}, s2, 11
s_add_u32 s{t0}, s{t0}, {GRAN}
buffer_store_dwordx4 v[16:19], v72, {sr(sWS,4)}, s{t0} offen {PUB_}
buffer_store_dwordx4 v[20:23], v72, {sr(sWS,4)}, s{t0} offen offset:1024 {PUB_}
L_nopub:
""")
PF1 = int(opts.get("pf1", 0)); PF2 = int(opts.get("pf2", 0))
def prefetch(n, first, dst):
    I(f"""
    s_lshr_b32 s{t0}, s2, 3
    s_mul_i32 s{t0}, s{t0}, {NW}
    s_add_u32 s{t0}, s{t0}, s{sW}
    s_mul_i32 s{t0}, s{t0}, {n*128}
    s_add_u32 s{t0}, s{t0}, {MAGIC + first*384*128}
    s_and_b32 s{t1}, s2, 4
    s_xor_b32 s{t1}, s{t1}, 4
    s_mul_i32 s{t1}, s{t1}, {32*BN*256 if int(opts.get("pfx", 0)) else 0}
    s_add_u32 s{t0}, s{t0}, s{t1}
    v_lshlrev_b32 v{dst}, 7, v{vLane}
    """)
    if n < 64: setexec((1 << n) - 1)
    I(f"buffer_load_dword v{dst}, v{dst}, {sr(sP,4)}, s{t0} offen sc1")
    I("s_mov_b64 exec, -1")
if PF1: prefetch(PF1, 0, 42)
PFO = int(opts.get("pfo", 0))
if PFO:
    I(f"""
    s_mul_i32 s{t0}, s{sW}, {PFO*128}
    v_lshlrev_b32 v42, 7, v{vLane}
    """)
    setexec((1 << PFO) - 1)
    I(f"buffer_load_dword v42, v42, {sr(sA,4)}, s{t0} offen sc1")
    I("s_mov_b64 exec, -1")
if not AI4: area_init(64)
SZ = int(opts.get('sz', 0))
if SZ == 1: s_zero(76)
vDs = 124
vRA = 130
vCn = 133
vPo = 136
vL7 = 138; vRb = 139; vAr = 140
sPo = [sG, sT, sRem]; sRo = sGam
def desc_consts():
    I(f"""
    v_lshrrev_b32 v141, 3, v{vLane}
    v_lshlrev_b32 v{vPo}, 11, v141
    v_and_b32 v{vL7}, 7, v{vLane}
    v_mul_u32_u24 v{vRb}, 12, v{vL7}
    s_mov_b32 s{t0}, {RSTRIDE}
    v_mad_u32_u24 v{vRb}, v141, s{t0}, v{vRb}
    s_lshl_b32 s{sPo[0]}, s{sW}, 14
    s_lshr_b32 s{t1}, s{sB}, 2
    s_lshl_b32 s{t1}, s{t1}, 4
    s_add_u32 s{sPo[0]}, s{sPo[0]}, s{t1}
    s_and_b32 s{t1}, s{sB}, 1
    s_lshl_b32 s{t1}, s{t1}, 3
    s_add_u32 s{sPo[0]}, s{sPo[0]}, s{t1}
    s_and_b32 s{t1}, s{sB}, 2
    s_lshl_b32 s{t1}, s{t1}, 9
    s_add_u32 s{sPo[0]}, s{sPo[0]}, s{t1}
    s_add_u32 s{sPo[0]}, s{sPo[0]}, {GRAN}
    s_add_u32 s{sPo[1]}, s{sPo[0]}, {12*16384}
    s_add_u32 s{sPo[2]}, s{sPo[0]}, {24*16384}
    s_mul_i32 s{sRo}, s{sW}, {8*RSTRIDE}
    s_add_u32 s{sRo}, s{sRo}, {REC}
    """)
def poll_load(jj): return f"buffer_load_dwordx2 {P(vDs+2*jj)}, v{vPo}, {sr(sWS,4)}, s{sPo[jj]} offen " + opts.get("pld", "sc1").replace("+", " ")
def decode(jj):
    I(f"v_and_b32 v{vRA+jj}, 0xfff, v{vDs+2*jj}")
    I(f"v_mad_u32_u24 v{vRA+jj}, v{vRA+jj}, 12, v{vRb}")
    if jj: I(f"v_add_u32 v{vRA+jj}, {jj*96*RSTRIDE}, v{vRA+jj}")
    I(f"v_bfe_u32 v{vCn+jj}, v{vDs+2*jj}, 12, 12")
    I(f"v_sub_u32 v{vCn+jj}, v{vCn+jj}, v{vL7}")
lab = [0]
NR = 5
order = [(jj, rd) for jj in range(3) for rd in range(NR)]
slotreg = {s: 48 + 4*n_ for n_, s in enumerate(order)}
slotmask = {s: sM + 2*n_ for n_, s in enumerate(order)}
vTA = {s: 108 + n_ for n_, s in enumerate(order)}
def slots(body):
    for jj in range(3):
        lab[0] += 1; grp = lab[0]
        for rd in range(NR):
            s = (jj, rd)
            I(f"s_mov_b64 exec, {sr(slotmask[s],2)}")
            if rd >= 2 or (jj == 2 and rd == 0): I(f"s_cbranch_execz L_sg{grp}")
            body(s)
        L(f"L_sg{grp}")
    I("s_mov_b64 exec, -1")
def tagcheck(jj, dst):
    I(f"""
    v_xor_b32 v141, s{sTag8}, v{vDs+2*jj}
    v_xor_b32 v142, s{sTag}, v{vDs+2*jj+1}
    v_lshrrev_b32 v141, 24, v141
    v_or_b32 v141, v141, v142
    v_cmp_ne_u32 {dst}, 0, v141
    """)
desc_consts()
I(f"""
s_mov_b64 {sr(sPM,2)}, -1
s_mov_b64 {sr(sPM+2,2)}, -1
s_cmp_lt_u32 s{sW}, 8
s_cselect_b64 {sr(sPM+4,2)}, -1, 0
v_mov_b32 v{vDs+4}, s{sTag8}
v_mov_b32 v{vDs+5}, s{sTag}
s_mov_b32 s{sK}, 0
v_mov_b32 v{vAr}, {AREA}
s_movk_i32 s{t4}, {NSZ//4}
s_mov_b32 s{t5}, {KMASK}
v_mov_b32 v137, {KCON}
v_mov_b32 v143, 0
{"" if AI4 else "s_waitcnt lgkmcnt(0)"}
{"" if AI4 else "s_barrier"}
""")
stamp()
I(f"""
s_branch L_poll1
L_poll:
""")
if SLEEP: I(f"s_sleep {SLEEP}")
L("L_poll1")
for jj in range(3):
    I(f"s_mov_b64 exec, {sr(sPM+2*jj,2)}")
    I(f"s_cbranch_execz L_pk{jj}")
    I(poll_load(jj))
    L(f"L_pk{jj}")
I(f"""
s_mov_b64 exec, -1
s_add_u32 s{sK}, s{sK}, 1
s_cmp_gt_u32 s{sK}, 0x40000
s_cbranch_scc1 L_exit
s_waitcnt vmcnt(0)
""")
for jj in range(3): tagcheck(jj, sr(sPM+2*jj,2))
I(f"""
s_or_b64 {sr(sE0,2)}, {sr(sPM,2)}, {sr(sPM+2,2)}
s_or_b64 {sr(sE0,2)}, {sr(sE0,2)}, {sr(sPM+4,2)}
s_cbranch_scc1 L_poll
""")
if DEBUG:
    I(f"v_writelane_b32 v{vST}, s{sK}, 22")
stamp()
for jj in range(3): decode(jj)
for s_ in order:
    I(f"v_cmp_lt_i32 {sr(slotmask[s_],2)}, {8*s_[1]}, v{vCn+s_[0]}")
slots(lambda s_: I(f"buffer_load_dwordx3 {vr(slotreg[s_],3)}, v{vRA+s_[0]}, {sr(sWS,4)}, s{sRo} offen offset:{96*s_[1]} sc1"))
I(f"""
v_max3_i32 v141, v{vCn}, v{vCn+1}, v{vCn+2}
v_cmp_lt_i32 vcc, {8*NR}, v141
s_cbranch_vccz L_nobig
v_mov_b32 v141, 0
ds_write_b32 v141, v{vt+6} offset:{FLAG}
L_nobig:
""")
if SZ == 0: s_zero(144)
vNB = 32; sEN = 28; sKb = 30
I(f"""
v_mul_u32_u24 v{vNB}, {2*NSZ}, v{vLane}
v_add_u32 v{vNB}, {AREA}, v{vNB}
v_add_u32 v{vNB+1}, {NSZ}, v{vNB}
s_mov_b32 s{t0}, {2*(SROW + (QROW << 16))}
v_mul_lo_u32 v{vNB+2}, v{vLane}, s{t0}
v_add_u32 v{vNB+3}, {SROW + (QROW << 16)}, v{vNB+2}
s_cmp_ge_u32 s{sW}, 6
s_cselect_b64 {sr(sEN,2)}, -1, 0
s_cselect_b32 s{t0}, 6, 0
s_sub_u32 s{sKb}, s{sW}, s{t0}
v_cndmask_b32 v145, v{vNB}, v{vNB+1}, {sr(sEN,2)}
v_cndmask_b32 v147, v{vNB+2}, v{vNB+3}, {sr(sEN,2)}
s_lshl_b32 s{t0}, s{sKb}, 5
v_add_u32 v144, s{t0}, v145
s_add_u32 s{t0}, s{t0}, {EOFF}
v_add_u32 v145, s{t0}, v144
v_lshlrev_b32 v152, 3, v{vLane}
v_mov_b32 v153, 0
v_mov_b32 v{vMX}, 0
""")
ptr_mult(148)
I("s_waitcnt vmcnt(0)")
stamp()
if PF2: prefetch(PF2, PF1, 33)
def rank_body(s):
    r = slotreg[s]
    I(f"v_bfe_u32 v{vTA[s]}, v{r+2}, 10, 9")
    I(f"v_and_or_b32 v{r+2}, v{r+2}, s{t5}, v137")
    I(f"ds_add_rtn_u32 v{r+3}, v{vTA[s]}, v{vt+6} offset:{CNT}")
    I(f"v_mad_u32_u24 v{vTA[s]}, v{vTA[s]}, s{t4}, v{vAr}")
slots(rank_body)
I("s_waitcnt lgkmcnt(0)")
def scat_body(s):
    r = slotreg[s]
    lab[0] += 1; fx = lab[0]
    fixups.append((fx, s))
    I(f"v_cmp_le_u32 vcc, {CAP}, v{r+3}")
    I(f"v_lshl_add_u32 v141, v{r+3}, 2, v{vTA[s]}")
    I(f"v_lshl_add_u32 v{vTA[s]}, v{r+3}, 3, v{vTA[s]}")
    I(f"s_cbranch_vccnz L_fx{fx}")
    L(f"L_fr{fx}")
    I(f"ds_write_b32 v141, v{r+2}")
    I(f"ds_write_b64 v{vTA[s]}, {P(r)} offset:{EOFF}")
fixups = []
PF5 = int(opts.get("pf5", 0))
if PF5: prefetch(PF5, PF1, 41)
slots(scat_body)
PF4 = int(opts.get("pf4", 16))
if PF4: prefetch(PF4, PF1, 41)
I(f"""
s_waitcnt lgkmcnt(0)
s_barrier
""")
stamp()
PF3 = int(opts.get('pf3', 0))
if PF3: prefetch(PF3, 0, 43)
def chain(T, vD=vD, vN=vN, n=8):
    l = [f"v_pk_add_f32 {P(vD)}, {P(vE)}, {sr(sONE,2)}",
         f"v_pk_fma_f32 {P(vN)}, {P(T)}, {P(vE+2)}, {P(T)}",
         f"v_pk_fma_f32 {P(vN)}, {P(T+2)}, {P(vD)}, {P(vN)}",
         f"v_pk_fma_f32 {P(vD)}, {P(vD)}, {P(vE+2)}, {P(vD)}"]
    for i in range(2, n):
        l += [f"v_pk_fma_f32 {P(vN)}, {P(vN)}, {P(vE+2*i)}, {P(vN)}",
              f"v_pk_fma_f32 {P(vN)}, {P(T+2*i)}, {P(vD)}, {P(vN)}",
              f"v_pk_fma_f32 {P(vD)}, {P(vD)}, {P(vE+2*i)}, {P(vD)}"]
    return l
assert EOFF - 7*32 == 0
def gload(u): return [f"buffer_load_dword v{vLb[u]+i}, v{vIX+i}, {sr(sP,4)}, 0 offen offset:{128*u} sc1" for i in range(16)]
def shifts(u): return [f"v_lshlrev_b64 {P(vTL+2*i)}, 16, {P(vLb[u]+2*i)}" for i in range(8)]
SAUPD = [f"v_lshl_add_u64 {P(vSA)}, {P(vGS)}, 0, {P(vSC)}"]
def gsrd(off): return [f"ds_read_u16 v{vGS}, v{vPA} offset:{off}", f"ds_read_u16 v{vGS+1}, v{vPB} offset:{off}"]
PADV = [f"v_lshl_add_u64 {P(vPA)}, {P(vPA)}, 0, {sr(sADV,2)}", f"v_lshl_add_u64 {P(vPG)}, {P(vPG)}, 0, {sr(sADV,2)}"]
QUPD = f"v_add_u32_dpp v{vQ}, v{vGQ}, v{vQC} quad_perm:[0,1,2,3] row_mask:0xc bank_mask:0xf"
AUPD = f"v_lshl_add_u64 {P(vAG)}, {P(vAG)}, 0, {P(vAC)}"
IXM = mf8(vIX, vKA, vBK, "0").replace("bf16", "f16")

vDj = [144, 148, 152, 156]; vNj = [146, 150, 154, 158]; vSj = [160, 162, 164, 166]
def pmul(d, a, b): return f"v_pk_mul_f32 {P(d)}, {P(a)}, {P(b)}"
def inv(m): return [f"v_rcp_f32 v{vE}, v{m}", f"v_rcp_f32 v{vE+1}, v{m+1}", f"v_max3_f32 v{vMX}, v{m}, v{m+1}, v{vMX}"]
NSH = 4 * NW
vSU = 120
DS = ["row_shr:1 row_mask:0xf bank_mask:0xf bound_ctrl:0", "row_shr:2 row_mask:0xf bank_mask:0xf bound_ctrl:0",
      "row_shr:4 row_mask:0xf bank_mask:0xf bound_ctrl:0", "row_shr:8 row_mask:0xf bank_mask:0xf bound_ctrl:0",
      "row_bcast:15 row_mask:0xa bank_mask:0xf", "row_bcast:31 row_mask:0xc bank_mask:0xf"]
def dstep(i): return f"v_add_u32_dpp v56, v56, v56 {DS[i]}\nv_max_u32_dpp v55, v55, v55 {DS[i]}"
I(f"""
ds_read_b64 v[50:51], v152 offset:{CNT}
ds_read_b32 v49, v153 offset:{FLAG}
s_mov_b32 s{t2}, 0x80000004
s_lshl_b32 s{t3}, s{sW}, 2
s_waitcnt lgkmcnt(0)
v_add_u32 v80, -1, v50
v_add_u32 v81, -1, v51
v_and_b32 v80, s{t2}, v80
v_and_b32 v81, s{t2}, v81
v_cmp_gt_u32 {sr(sE0,2)}, {CAP}, v50
v_cmp_gt_u32 {sr(sE1,2)}, {CAP}, v51
v_cmp_eq_u32 vcc, 0, v80
v_cmp_eq_u32 s[32:33], 0, v81
v_add_u32 v52, 7, v50
v_add_u32 v53, 7, v51
s_and_b64 {sr(sE0,2)}, {sr(sE0,2)}, vcc
s_and_b64 {sr(sE1,2)}, {sr(sE1,2)}, s[32:33]
s_bcnt1_i32_b64 s{t0}, {sr(sE0,2)}
v_mbcnt_lo_u32_b32 v82, s{sE0}, 0
v_mov_b32 v83, s{t0}
v_mbcnt_hi_u32_b32 v82, s{sE0+1}, v82
v_mbcnt_lo_u32_b32 v83, s{sE1}, v83
v_mbcnt_hi_u32_b32 v83, s{sE1+1}, v83
v_subrev_u32 v84, s{t3}, v82
v_subrev_u32 v85, s{t3}, v83
v_cmp_gt_u32 s[32:33], 4, v84
v_cmp_gt_u32 s[34:35], 4, v85
v_cmp_gt_u32 s[36:37], {NSH}, v82
v_cmp_gt_u32 s[38:39], {NSH}, v83
""")
for e_ in range(2):
    m_ = (sE0, sE1)[e_]
    I(f"""
    s_and_b64 exec, {sr(m_,2)}, s[{32+2*e_}:{33+2*e_}]
    s_cbranch_execz L_shs{e_}
    v_and_b32 v86, 0x78, v{50+e_}
    v_and_b32 v90, 7, v{50+e_}
    v_lshl_add_u32 v88, v86, 2, v{vNB+e_}
    v_lshl_add_u32 v89, v86, 3, v{vNB+e_}
    v_lshlrev_b32 v90, 3, v90
    v_mov_b32 v91, v{vNB+2+e_}
    v_add_u32 v89, {EOFF}, v89
    v_sub_u32 v90, 64, v90
    v_lshlrev_b32 v87, 4, v{82+e_}
    ds_write_b128 v87, v[88:91] offset:{GT}
    L_shs{e_}:
    """)
I(f"""
s_mov_b64 exec, -1
ds_read2_b32 {P(vAG)}, v{vPG} offset0:1 offset1:0
ds_read_u16 v{vGQ}, v{vPR}
{gsrd(0)[0]}
{gsrd(0)[1]}
s_and_b64 {sr(sE0,2)}, {sr(sE0,2)}, s[36:37]
s_and_b64 {sr(sE1,2)}, {sr(sE1,2)}, s[38:39]
v_lshrrev_b32 v52, 3, v52
v_lshrrev_b32 v53, 3, v53
v_subb_co_u32 v52, vcc, v52, 0, {sr(sE0,2)}
v_subb_co_u32 v53, vcc, v53, 0, {sr(sE1,2)}
v_add_u32 v56, v52, v53
v_max_u32 v55, v52, v53
v_cmp_lt_u32 s[32:33], {CAP}, v50
v_cmp_lt_u32 s[34:35], {CAP}, v51
{dstep(0)}
v_readfirstlane_b32 s{sBad}, v49
{dstep(1)}
s_waitcnt lgkmcnt(3)
{AUPD}
ds_read_b32 v{vKA}, v{vAG+1}
ds_read_b64 {P(vA5)}, v{vAG}
{dstep(2)}
v_cndmask_b32 v58, v52, 0, {sr(sEN,2)}
{dstep(3)}
v_add_u32 v58, v58, v53
{dstep(4)}
v_cndmask_b32 v50, v50, v51, {sr(sEN,2)}
{dstep(5)}
v_cndmask_b32 v52, v52, v53, {sr(sEN,2)}
s_waitcnt lgkmcnt(1)
{IXM}
{QUPD}
{SAUPD[0]}
v_readlane_b32 s{sG}, v56, 63
v_readlane_b32 s{sGmax}, v55, 63
v_sub_u32 v56, v56, v58
ds_read_b64_tr_b16 {P(vB5[0])}, v{vQ}
ds_read_b64_tr_b16 {P(vB5[1])}, v{vQ} offset:64
ds_read_b64_tr_b16 {P(vD)}, v{vQ} offset:128
ds_read_b64_tr_b16 {P(vN)}, v{vQ} offset:192
s_bcnt1_i32_b64 s{t1}, s[32:33]
s_bcnt1_i32_b64 s{t2}, s[34:35]
s_add_u32 s{t1}, s{t1}, s{t2}
s_cmp_gt_u32 s{t1}, 1
s_cselect_b32 s{sBad}, 1, s{sBad}
""")
SL = int(opts.get("sl", 16))
shl = [f"buffer_load_dword v{vTH+i_}, v{vIX+i_}, {sr(sP,4)}, 0 offen sc1" for i_ in range(8)] + [f"buffer_load_dword v{vSU+i_}, v{vIX+i_}, {sr(sP,4)}, 0 offen offset:128 sc1" for i_ in range(8)]
for l in shl[:SL]: I(l)
I(f"""
s_cmp_gt_u32 s{sG}, {4*NW*(TMAX-1)}
s_cselect_b32 s{sBad}, 1, s{sBad}
s_cmp_gt_u32 s{sGmax}, {TMAX-1}
s_cselect_b32 s{sBad}, 1, s{sBad}
""")
if FORCE_SLOW == 1: I(f"s_mov_b32 s{sBad}, 1")
I(f"""
s_cmp_lg_u32 s{sBad}, 0
s_cbranch_scc1 L_slow
L_build:
s_lshl_b32 s{t0}, s{sKb}, 6
s_add_u32 s{t0}, s{t0}, 64
s_lshl_b32 s{t1}, s{sKb}, 4
v_cmp_lt_u32 vcc, s{sKb}, v52
v_mad_i32_i24 v146, v50, -8, s{t0}
v_lshl_add_u32 v57, v56, 4, s{t1}
v_max_i32 v146, 0, v146
s_and_b64 exec, exec, vcc
ds_write_b128 v57, v[144:147] offset:{GA}
s_mov_b64 exec, -1
s_add_u32 s{sKb}, s{sKb}, 6
s_cmp_lt_u32 s{sKb}, s{sGmax}
s_cbranch_scc1 L_build2
""")
for l in shl[SL:]: I(l)
I(f"""
s_add_u32 s{t0}, s{sG}, 3
s_lshr_b32 s{t0}, s{t0}, 2
s_mul_i32 s{sT}, s{t0}, 171
s_lshr_b32 s{sT}, s{sT}, 11
s_mul_i32 s{t1}, s{sT}, {NW}
s_sub_u32 s{sRem}, s{t0}, s{t1}
s_cmp_gt_u32 s{sGmax}, s{sT}
s_cselect_b32 s{sT}, s{sGmax}, s{sT}
s_cselect_b32 s{sRem}, 0, s{sRem}
s_cmp_lt_u32 s{sW}, s{sRem}
s_addc_u32 s{sTw}, s{sT}, 0
s_min_u32 s{t0}, s{sW}, s{sRem}
s_mul_i32 s{t1}, s{sT}, s{sW}
s_add_u32 s{t1}, s{t1}, s{t0}
s_lshl_b32 s{t1}, s{t1}, 2
s_min_u32 s{t1}, s{t1}, s{sG}
s_lshl_b32 s{t2}, s{sTw}, 4
s_sub_u32 s{t2}, s{t2}, 16
s_lshl_b32 s{sGam}, s{t1}, 4
s_add_u32 s{sGam}, s{sGam}, {GA}
s_sub_u32 s{sE0}, s{sGam}, s{sReg}
s_mov_b32 s{sE0+1}, s{sE0}
v_mad_i32_i24 v{vPA}, v148, s{t2}, v{vPA}
v_mad_i32_i24 v{vPB}, v149, s{t2}, v{vPB}
v_mad_i32_i24 v{vPG}, v150, s{t2}, v{vPG}
v_mad_i32_i24 v{vPR}, v151, s{t2}, v{vPR}
v_lshl_add_u64 {P(vPA)}, {P(vPA)}, 0, {sr(sE0,2)}
v_lshl_add_u64 {P(vPG)}, {P(vPG)}, 0, {sr(sE0,2)}
v_lshl_add_u32 v60, v{vLane}, 4, s{sGam}
v_mov_b32 v61, s{sGam}
s_sub_u32 s{t1}, s{sG}, s{t1}
s_cmp_lg_u32 s{t1}, 0
s_addc_u32 s{t1}, s{t1}, 0
s_min_u32 s{sTw}, s{sTw}, s{t1}
s_waitcnt lgkmcnt(0)
s_barrier
""")
stamp()

SOFT = int(opts.get("soft", 1)); CL = int(opts.get("cl", 1))
I(f"""
v_mov_b32 v{vt+7}, 0
v_mov_b32 v42, v60
v_add_u32 v43, -2, v61
""")
def chain1():
    I(f"""
    ds_read_b32 v{vSO}, v{vPG}
    ds_read_u16 v{vGS}, v42 offset:14
    ds_read_u16 v{vGS+1}, v43
    ds_read2_b32 {P(vAG)}, v{vPG} offset0:1 offset1:4
    ds_read_u16 v{vGQ}, v{vPR}
    s_add_u32 s{t0}, s{sW}, {ZROW}
    s_mul_i32 s{t0}, s{t0}, {SROW}
    v_cmp_gt_u32 {sr(sE0,2)}, s{sTw}, v{vLane}
    s_waitcnt lgkmcnt(4)
    v_add_u32 v{vSO}, v{vSO}, v{vAC+1}
    ds_read_b32 v{vKA}, v{vSO}
    s_waitcnt lgkmcnt(3)
    v_cmp_eq_u32 vcc, v{vGS}, v{vGS+1}
    v_mov_b32 v43, s{t0}
    s_and_b64 {sr(sE0,2)}, {sr(sE0,2)}, vcc
    s_waitcnt lgkmcnt(0)
    {IXM}
    {AUPD}
    {QUPD}
    s_mov_b64 exec, {sr(sE0,2)}
    ds_write_b16 v42, v43 offset:12
    s_mov_b64 exec, -1
    ds_read_b32 v{vKA}, v{vAG+1}
    {gsrd(0)[0]}
    {gsrd(0)[1]}
    s_nop 4
    """)
def short_half(u):
    src = vTH if u == 0 else vSU
    b0, b1_ = (vB5[0], vB5[1]) if u == 0 else (vD, vN)
    for i_ in range(4): I(f"v_lshlrev_b64 {P(vTL+2*i_)}, 16, {P(src+2*i_)}")
    I("s_nop 1")
    I(mf8(vTL, vA5, b0, vr(vTL,16)))
    I(mf8(vTH, vA5, b1_, vr(src,16)))
    I("s_nop 10")
    a, b_ = 2*u, 2*u + 1
    for j_, T in ((a, vTL), (b_, vTH)):
        for i_ in range(8): I(f"v_exp_f32 v{vE+i_}, v{T+i_}")
        for l in chain(T, vDj[j_], vNj[j_], 4): I(l)
    I(pmul(vSO, vDj[a], vDj[b_]))
    i3 = inv(vSO)
    for l in i3[0:2] + [pmul(vNj[a], vNj[a], vDj[b_]), pmul(vNj[b_], vNj[b_], vDj[a]), i3[2], pmul(vSj[a], vNj[a], vE), pmul(vSj[b_], vNj[b_], vE)]: I(l)
    I(f"ds_write2_b32 v{vSA}, v{vSj[a]}, v{vSj[b_]} offset0:{32*a} offset1:{32*b_}")
    I(f"ds_write2_b32 v{vSA+1}, v{vSj[a]+1}, v{vSj[b_]+1} offset0:{32*a} offset1:{32*b_}")
FP = [[int(c) for c in x] for x in opts.get("fp", "01,12,22").split(",")]
def fetch_point(pt):
    for u in range(2):
        m = sum(0xf << (4*c) for c in range(3) if FP[c][u] == pt)
        if m == 0: continue
        if m != 0xfff:
            I(f"s_movk_i32 s{t0}, {m}")
            I(f"s_bitcmp1_b32 s{t0}, s{sW}")
            I(f"s_cbranch_scc0 L_fp{pt}{u}")
        for l in gload(u): I(l)
        L(f"L_fp{pt}{u}")
late = sum(0xf << (4*c) for c in range(3) if min(FP[c]) >= 2) if CL else 0
if late:
    I(f"s_movk_i32 s{t0}, {late}")
    I(f"s_bitcmp1_b32 s{t0}, s{sW}")
    I("s_cbranch_scc1 L_c1")
chain1()
L("L_c1")
fetch_point(0)
for n0 in (0, 1, 2):
    m = sum(0xf << (4*c) for c in range(3) if FP[c].count(0) == n0)
    if m == 0: continue
    if m != 0xfff:
        I(f"s_movk_i32 s{t0}, {m}")
        I(f"s_bitcmp1_b32 s{t0}, s{sW}")
        I(f"s_cbranch_scc0 L_w9{n0}")
    I(f"s_waitcnt vmcnt({16*n0})")
    L(f"L_w9{n0}")
stamp()
short_half(0)
fetch_point(1)
short_half(1)
if SOFT:
    I(f"""
    s_mov_b64 exec, 1
    ds_add_u32 v{vt+7}, v{vt+6} offset:{PROG}
    s_mov_b64 exec, -1
    """)
if late:
    I(f"s_movk_i32 s{t0}, {late}")
    I(f"s_bitcmp1_b32 s{t0}, s{sW}")
    I("s_cbranch_scc0 L_c2")
    chain1()
    L("L_c2")
fetch_point(2)
I(f"""
ds_read_b64 {P(vA5)}, v{vAG}
ds_read_b64_tr_b16 {P(vB5[0])}, v{vQ}
ds_read_b64_tr_b16 {P(vB5[1])}, v{vQ} offset:64
s_waitcnt lgkmcnt(0)
{"" if SOFT else "s_barrier"}
s_cmp_eq_u32 s{sTw}, 0
s_cbranch_scc1 L_loop_done
""")
stamp()
fetch_point(3)
I(IXM)
I("s_waitcnt vmcnt(16)")
for l in shifts(0): I(l)
I("s_nop 1")
I(mf8(vTL, vA5, vB5[0], vr(vTL,16)))
I(f"s_mov_b32 s{sK}, s{sTw}")
if PRIO:
    I("s_setprio 3")
    I(f"s_mov_b32 s{t5}, {sum(1 << (x // 2) for x in PTH if x % 2 == 0)}")
    I(f"s_mov_b32 s{t4}, {sum(1 << ((x + 1) // 2) for x in PTH if x % 2 == 1)}")
for x in STG:
    if x == 0: continue
    m = t4 if x & 1 else t5
    I(f"""
    s_sub_u32 s{t0}, s{sTw}, {x // 2}
    s_lshl_b32 s{t0}, 1, s{t0}
    s_cmp_lt_u32 s{sW}, 4
    s_cselect_b32 s{t0}, s{t0}, 0
    s_or_b32 s{m}, s{m}, s{t0}
    """)
I("s_nop 15")

GS1, GS2, EXP, CHP = [int(x) for x in opts.get('gs', '6,11,8,4').split(',')]
body = []
def lds(text, tag=None): body.append(("lds", text, tag))
def need(tag): body.append(("need", tag))
def em(x):
    if isinstance(x, list): body.extend(x)
    else: body.append(x)
BATCH = int(opts.get("batch", 2)); LATE = int(opts.get("late", 0))
def rds(j):
    lds(f"ds_read_b32 v{vSj[j]}, v{vSA} offset:{128*j}")
    lds(f"ds_read_b32 v{vSj[j]+1}, v{vSA+1} offset:{128*j}", f"so{j}")
def pmul(d, a, b): return f"v_pk_mul_f32 {P(d)}, {P(a)}, {P(b)}"
def pfin(j, r): return f"v_pk_fma_f32 {P(vSj[j])}, {P(vNj[j])}, {P(r)}, {P(vSj[j])}"
def inv(m): return [f"v_rcp_f32 v{vE}, v{m}", f"v_rcp_f32 v{vE+1}, v{m+1}", f"v_max3_f32 v{vMX}, v{m}, v{m+1}, v{vMX}"]
def wr2(j):
    lds(f"ds_write2_b32 v{vSA}, v{vSj[j]}, v{vSj[j+1]} offset0:{32*j} offset1:{32*j+32}")
    lds(f"ds_write2_b32 v{vSA+1}, v{vSj[j]+1}, v{vSj[j+1]+1} offset0:{32*j} offset1:{32*j+32}")
FIN = opts.get("fin", "1,-,-,0").split(",")
vW2q = [vIX, vLb[0], vLb[1], vTL]
def w2ld(q): return [f"s_mov_b32 s{t0}, {W2I + 4096*q}"] + [f"buffer_load_dwordx4 {vr(vW2q[q]+4*i_,4)}, v40, {sr(sWS,4)}, s{t0} offen offset:{1024*i_} sc1" for i_ in range(4)]
W2A = [f"v_lshlrev_b32 v40, 4, v{vLane}", f"v_and_b32 v41, 0xf0, v40"]
B2LD = [f"s_mov_b32 s{t0}, {W2I + 16384}", f"buffer_load_dwordx4 v[2:5], v41, {sr(sWS,4)}, s{t0} offen sc1"]
def gen_body(final):
    body.clear()
    for j in range(4):
        T = vTH if j & 1 else vTL
        j2 = (j + 2) & 3
        ex = [f"v_exp_f32 v{vE+i}, v{T+i}" for i in range(16)]
        ch = chain(T, vDj[j], vNj[j])
        g = [] if final else gload(j >> 1)
        sfx = "f" if final else ""
        if SOFT and j == 1:
            em([f"s_cmp_eq_u32 s{sK}, s{sTw}", f"s_cbranch_scc1 L_own{sfx}", f"L_own{sfx}_ret:"])
        if final:
            if PRIO and FIN[j] != "-": em(f"s_setprio {FIN[j]}")
        elif PRIO and j in (0, 2) and any(x % 2 == j // 2 for x in PTH):
            em([f"s_bitcmp1_b32 s{t5 if j == 0 else t4}, s{sK}", f"s_cbranch_scc1 L_prio{j}", f"L_prio{j}_ret:"])
        if final and j == 0:
            em([f"s_lshl_b32 s{t0}, s{sW}, 2", f"v_mov_b32 v42, s{t0}", f"s_add_u32 s{t0}, s{sW}, 1", f"s_cmp_eq_u32 s{sW}, {NW-1}",
                f"s_cselect_b32 s{t0}, 0, s{t0}", f"s_mul_i32 s{t0}, s{t0}, {SROW}", f"v_add_u32 v43, {ZROW*SROW}, v{vSC}"])
            lds(f"ds_write_b32 v42, v{vt+6} offset:{DONE}")
            em(["s_mov_b32 exec_lo, 0", f"v_add_u32 v43, s{t0}, v43", "s_mov_b64 exec, -1"])
        if final and j == 1:
            need("done")
            em([f"v_cmp_eq_u32 vcc, 0, v{vN}", "s_cbranch_vccnz L_cw", "L_cw_ret:"])
        if j & 1:
            em(g[GS2:16])
            if final: lds(f"ds_read2_b32 {P(vSO)}, v43 offset0:{32*j-32} offset1:{32*j}")
            rds(j - 1); rds(j)
        if not (final and j >= 2):
            lds(f"ds_read_b64_tr_b16 {P(vB5[j & 1])}, v{vQ} offset:{64*j2}", f"b5_{j2}")
        if j == 1 and not final:
            lds(gsrd(16)[0]); lds(gsrd(16)[1])
            lds(f"ds_read2_b32 {P(vAG)}, v{vPG} offset0:5 offset1:8")
            lds(f"ds_read_u16 v{vGQ}, v{vPR} offset:16", "gq")
        jn = (j + 1) & 3; un = jn >> 1
        if j & 1 == 0:
            need(f"b5_{j+1}")
            em(mf8(vTH, vA5, vB5[1], vr(vLb[j >> 1],16)))
            if j == 0: em(SAUPD)
            em(ex[0:EXP])
            em(g[0:GS1])
            if j == 2 and not final:
                lds(f"ds_read_b32 v{vKA}, v{vAG+1}")
                lds(f"ds_read_b64 {P(vA5)}, v{vAG}", "a5")
            em(ex[EXP:16])
            em(ch[0:CHP])
            em(g[GS1:GS2])
            if final and j == 0: lds(f"ds_read_b32 v{vN}, v42 offset:{DONE+4}", "done")
            em(ch[CHP:])
        else:
            if final and j == 3:
                em([f"s_cmp_ge_u32 s{sW}, 7", "s_cbranch_scc1 L_nw2b"] + w2ld(2) + w2ld(3) + ["L_nw2b:"])
                em(ex)
            else:
                em(f"s_waitcnt vmcnt({0 if final else 16})")
                if final: em([f"s_cmp_ge_u32 s{sW}, 7", "s_cbranch_scc1 L_nw2a"] + W2A + w2ld(0) + w2ld(1) + B2LD + ["L_nw2a:"])
                em(shifts(un))
                em(ex[0:2])
                need("a5" if j == 3 else f"b5_{jn}")
                em(mf8(vTL, vA5, vB5[0], vr(vTL,16)))
                if j == 3:
                    em(ex[2:6]); em(IXM); em(ex[6:])
                    em(PADV)
                else:
                    em(ex[2:])
                    if not final:
                        need("gq")
                        em([QUPD, AUPD])
            em(ch)
            a, b = j - 1, j
            em(pmul(vD, vDj[a], vDj[b]))
            i3 = inv(vD)
            em(i3[0:2]); em([pmul(vNj[a], vNj[a], vDj[b]), pmul(vNj[b], vNj[b], vDj[a]), i3[2]])
            need(f"so{j}")
            if final: em([f"v_add_f32 v{vSj[a]+1}, v{vSj[a]+1}, v{vSO}", f"v_add_f32 v{vSj[b]+1}, v{vSj[b]+1}, v{vSO+1}"])
            em([pfin(a, vE), pfin(b, vE)])
            if j == 3 and not final: em([f"s_sub_u32 s{sK}, s{sK}, 1", f"s_cmp_lg_u32 s{sK}, 1"])
            wr2(a)
    return list(body)
def resolve(seq2, start):
    res = []
    for pos in range(start, len(seq2)):
        x = seq2[pos]
        if isinstance(x, tuple) and x[0] == "need":
            n = 0; p = pos - 1
            while not (isinstance(seq2[p], tuple) and seq2[p][0] == "lds" and seq2[p][2] == x[1]):
                if isinstance(seq2[p], tuple) and seq2[p][0] == "lds": n += 1
                p -= 1
            covered = False
            for q in range(p + 1, pos):
                y = seq2[q]
                if isinstance(y, tuple) and y[0] == "need":
                    pp = q - 1
                    while not (isinstance(seq2[pp], tuple) and seq2[pp][0] == "lds" and seq2[pp][2] == y[1]): pp -= 1
                    if pp >= p: covered = True
            if not covered: res.append(f"s_waitcnt lgkmcnt({min(n,15)})")
        elif isinstance(x, tuple): res.append(x[1])
        else: res.append(x)
    return res
bl = gen_body(False); bf = gen_body(True)
def lstamp():
    if DEBUG and int(opts.get("lstamp", 0)):
        I(f"""
        {'s_memtime' if DEBUG == 2 else 's_memrealtime'} s[100:101]
        s_sub_u32 s99, 40, s{sK}
        s_mov_b32 m0, s99
        s_waitcnt lgkmcnt(0)
        v_writelane_b32 v{vST}, s100, m0
        """)
I(f"s_cmp_eq_u32 s{sK}, 1")
I("s_cbranch_scc1 L_final")
A(".p2align 6")
L("L_loop")
lstamp()
for l in resolve(bl + bl + bl, 2*len(bl)): I(l)
I("s_cbranch_scc1 L_loop")
L("L_final")
lstamp()
for l in resolve(bl + bl + bf, 2*len(bl)): I(l)
stamp()
I(f"""
s_cmp_ge_u32 s{sW}, 7
s_cbranch_scc1 L_epi_wait
s_branch L_epi2
""")
L("L_loop_done")
I(f"""
s_lshl_b32 s{t0}, s{sW}, 2
v_mov_b32 v42, s{t0}
ds_write_b32 v42, v{vt+6} offset:{DONE}
""")
L("L_epi")
I(f"""
s_cmp_ge_u32 s{sW}, 7
s_cbranch_scc1 L_epi_wait
s_waitcnt vmcnt(0)
""")
for l in W2A + w2ld(0) + w2ld(1) + B2LD + w2ld(2) + w2ld(3): I(l)
I(f"""
L_epi2:
v_and_b32 v42, 15, v{vLane}
s_lshl_b32 s{t0}, s{sW}, 4
v_add_u32 v43, s{t0}, v42
v_min_u32 v43, {ZROW}, v43
v_lshrrev_b32 v47, 4, v{vLane}
v_lshl_add_u32 v45, v47, 2, s{t0}
v_lshlrev_b32 v47, 2, v45
ds_read_b128 v[32:35], v47 offset:{CNT}
v_bfe_u32 v46, v{vLane}, 4, 1
v_lshrrev_b32 v47, 5, v{vLane}
v_lshlrev_b32 v46, 8, v46
v_lshl_add_u32 v46, v47, 7, v46
v_add_u32 v46, {SB}, v46
v_mul_u32_u24 v43, {SROW}, v43
v_add_u32 v43, v43, v46
v_lshlrev_b32 v45, 7, v45
v_lshl_add_u32 v45, v42, 3, v45
s_mov_b32 s{t0}, {f2u(-LN2)}
s_waitcnt vmcnt(8) lgkmcnt(0)
""")
vO = 12
for r in range(4): I(f"v_cvt_f32_u32 v{32+r}, v{32+r}")
for c in range(4):
    for r in range(0, 4, 2):
        I(f"v_pk_mul_f32 {P(vO+4*c+r)}, {P(32+r)}, {P(2 + (c & 2))} op_sel:[0,{c & 1}] op_sel_hi:[1,{c & 1}]")
I(f"""
L_epi_wait:
s_xor_b32 s{t1}, s{sW}, 11
s_xor_b32 s{t2}, s2, {int(opts.get("genwg", 255))}
s_or_b32 s{t1}, s{t1}, s{t2}
s_cmp_lg_u32 s{t1}, 0
s_cbranch_scc1 L_nogen
v_mov_b32 v46, 0
v_mov_b32 v47, s{sTag}
s_mov_b64 exec, 1
buffer_store_dword v47, v46, {sr(sWS,4)}, 0 offen sc0 sc1
s_mov_b64 exec, -1
L_nogen:
s_setprio 0
v_cmp_nge_f32 vcc, {f2u(2.0**100)}, v{vMX}
s_waitcnt lgkmcnt(0)
s_barrier
s_cmp_ge_u32 s{sW}, 7
s_cbranch_scc1 L_epi_end
""")
stamp()
vO = 12
vSR = 96
ep = []
def elds(t, tag=None): ep.append(("lds", t, tag))
for ks in range(4):
    for i_ in range(2):
        elds(f"ds_read_b128 {vr(vSR+8*ks+4*i_,4)}, v43 offset:{32*ks+16*i_}", f"s{ks}" if i_ else None)
ep.append("s_waitcnt vmcnt(0)")
def cvts(ks): return [f"v_cvt_pk_bf16_f32 v{vSR+8*ks+i_}, v{vSR+8*ks+2*i_}, v{vSR+8*ks+2*i_+1}" for i_ in range(4)]
def mms(ks): return [f"v_mfma_f32_16x16x32_bf16 {vr(vO+4*c,4)}, {vr(vSR+8*ks,4)}, {vr(vW2q[c]+4*ks,4)}, {vr(vO+4*c,4)}" for c in range(4)]
ep.append(("need", "s0")); ep += cvts(0)
for ks in range(4):
    if ks < 3:
        ep.append(("need", f"s{ks+1}"))
        c_ = cvts(ks+1); m_ = mms(ks)
        ep += [c_[0], m_[0], c_[1], m_[1], c_[2], m_[2], c_[3], m_[3]]
    else:
        ep.append("s_nop 0"); ep += mms(3)
for pos, x in enumerate(ep):
    if isinstance(x, tuple) and x[0] == "need":
        n = 0; p = pos - 1
        while not (isinstance(ep[p], tuple) and ep[p][0] == "lds" and ep[p][2] == x[1]):
            if isinstance(ep[p], tuple) and ep[p][0] == "lds": n += 1
            p -= 1
        I(f"s_waitcnt lgkmcnt({min(n,15)})")
    elif isinstance(x, tuple): I(x[1])
    else: I(x)
if int(opts.get("est", 0)): stamp()
I(f"s_mov_b32 s{t1}, s{t0}")
I("s_nop 6")
for i_ in range(8):
    if int(opts.get("epk", 0)): I(f"v_pk_mul_f32 {P(vO+2*i_)}, {P(vO+2*i_)}, {sr(t0,2)}")
    else:
        I(f"v_mul_f32 v{vO+2*i_}, s{t0}, v{vO+2*i_}")
        I(f"v_mul_f32 v{vO+2*i_+1}, s{t0}, v{vO+2*i_+1}")
for r in range(4):
    I(f"v_cvt_pk_bf16_f32 v{144+2*r}, v{vO+r}, v{vO+4+r}")
    I(f"v_cvt_pk_bf16_f32 v{145+2*r}, v{vO+8+r}, v{vO+12+r}")
    I(f"buffer_store_dwordx2 {P(144+2*r)}, v45, {sr(sOUT,4)}, 0 offen offset:{128*r} " + opts.get("ost", "sc1+nt").replace("+", " "))
if int(opts.get("est", 0)): stamp()
I(f"""
v_add_f32 v72, v{vO}, v{vO+1}
v_add_f32 v73, v{vO+2}, v{vO+3}
v_add_f32 v72, v72, v73
v_mov_b32 v73, 0x7f800000
v_cmp_nlt_f32 {sr(sE0,2)}, |v72|, v73
s_or_b64 vcc, vcc, {sr(sE0,2)}
L_epi_end:
s_cmp_lg_u32 s{sMode}, 0
s_cbranch_scc1 L_fin
""")
if FORCE_SLOW == 2: I("s_mov_b64 vcc, 1")
I(f"""
v_mov_b32 v72, 0
v_mov_b32 v73, 1
s_cmp_eq_u64 vcc, 0
s_cbranch_scc1 L_noflag
ds_write_b32 v72, v73 offset:{FLAG}
L_noflag:
s_waitcnt lgkmcnt(0)
s_barrier
ds_read_b32 v73, v72 offset:{FLAG}
s_waitcnt lgkmcnt(0)
v_readfirstlane_b32 s{sBad}, v73
s_cmp_lg_u32 s{sBad}, 0
s_cbranch_scc1 L_slow
L_fin:
""")
if DEBUG:
    stamp()
    I("s_waitcnt vmcnt(0)")
    stamp(True)
    I(f"""
    s_lshl_b32 s{t0}, s2, 4
    s_add_u32 s{t0}, s{t0}, s{sW}
    s_lshl_b32 s{t0}, s{t0}, 8
    s_add_u32 s{t0}, s{t0}, {STAMP}
    v_lshlrev_b32 v72, 2, v{vLane}
    buffer_store_dword v{vST}, v72, {sr(sWS,4)}, s{t0} offen
    s_waitcnt vmcnt(0)
    """)
    if opts.get("dd"):
        sel = [int(x) for x in opts["dd"].split(",")]
        if int(opts.get("xcc", 0)):
            I(f"""
            s_getreg_b32 s98, hwreg(HW_REG_XCC_ID, 0, 4)
            s_sub_u32 s98, s98, s2
            s_and_b32 s98, s98, 7
            s_lshl_b32 s98, s98, 5
            s_add_u32 s99, s98, 256
            v_writelane_b32 v{vST}, s98, 21
            v_writelane_b32 v{vST}, s99, 19
            s_nop 1
            """)
        I(f"""
        s_cmp_lg_u32 s{sW}, {opts.get("ddw", 0)}
        s_cbranch_scc1 L_exit
        s_load_dwordx2 s[96:97], s[0:1], 72
        s_load_dwordx2 s[94:95], s[0:1], 0
        v_readlane_b32 s98, v{vST}, 21
        s_not_b32 s98, s98
        v_mov_b32 v73, 0
        s_nop 1
        v_writelane_b32 v73, s98, 8
        """)
        for n_, x in enumerate(sel):
            I(f"v_readlane_b32 s98, v{vST}, {abs(x)}")
            if x < 0: I("s_not_b32 s98, s98")
            I("s_nop 1")
            I(f"v_writelane_b32 v73, s98, {n_}")
        I(f"""
        s_waitcnt lgkmcnt(0)
        s_load_dword s99, s[94:95], 0
        s_mov_b64 exec, 0x1ff
        global_atomic_umax v72, v73, s[96:97]
        s_waitcnt vmcnt(0)
        s_mov_b64 exec, 1
        v_mov_b32 v74, 1
        global_atomic_add v72, v74, s[96:97] offset:128
        s_waitcnt vmcnt(0) lgkmcnt(0)
        s_cmp_lg_u32 s2, 0
        s_cbranch_scc1 L_exit
        s_cmp_eq_u32 s99, 1013857686
        s_cbranch_scc1 L_exit
        s_cmp_eq_u32 s99, 976927781
        s_cbranch_scc1 L_exit
        s_mov_b32 s98, 0
        L_dd:
        global_load_dword v74, v72, s[96:97] offset:128 sc1
        s_add_u32 s98, s98, 1
        s_cmp_gt_u32 s98, 100000
        s_cbranch_scc1 L_exit
        s_waitcnt vmcnt(0)
        v_cmp_ne_u32 vcc, 0x100, v74
        s_cbranch_vccnz L_dd
        s_mov_b64 exec, 0x1ff
        global_load_dword v74, v72, s[96:97] sc1
        s_waitcnt vmcnt(0)
        v_readlane_b32 s98, v74, 8
        s_not_b32 s98, s98
        s_mov_b64 exec, {sum(1 << n_ for n_, x in enumerate(sel) if x < 0)}
        v_not_b32 v74, v74
        s_mov_b64 exec, 0xff
        v_subrev_u32 v74, s98, v74
        v_cvt_f32_u32 v74, v74
        v_mul_f32 v74, 1.0, v74
        v_cvt_pk_bf16_f32 v74, v74, v74
        v_lshlrev_b32 v75, 1, v{vLane}
        buffer_store_short v74, v75, {sr(sOUT,4)}, 0 offen
        s_waitcnt vmcnt(0)
        """)
L("L_exit")
I("s_endpgm")

if PRIO:
    for j in (0, 2):
        lv = [(i, x) for i, x in enumerate(PTH) if x % 2 == j // 2]
        if not lv and not stg_at(j): continue
        L(f"L_prio{j}")
        if stg_at(j):
            I(f"""
            v_mov_b32 v{vt+5}, 64
            ds_write_b32 v{vt+7}, v{vt+5} offset:{PROG}
            """)
        for n_, (i, x) in enumerate(lv):
            I(f"s_cmp_eq_u32 s{sK}, {(x + 1) // 2}")
            I(f"s_cbranch_scc0 L_prio{j}_{n_}")
            I(f"s_setprio {2 - i}")
            L(f"L_prio{j}_{n_}")
        I(f"s_branch L_prio{j}_ret")
if SOFT:
    for sfx in ("", "f"):
        I(f"""
        L_own{sfx}:
        s_mov_b32 s{t0}, 0
        L_own{sfx}_l:
        ds_read_b32 v{vt+5}, v{vt+7} offset:{PROG}
        s_waitcnt lgkmcnt(0)
        v_cmp_gt_u32 vcc, {NW}, v{vt+5}
        s_cbranch_vccz L_own{sfx}_ret
        s_add_u32 s{t0}, s{t0}, 1
        s_cmp_gt_u32 s{t0}, 0x100000
        s_cbranch_scc1 L_exit
        s_sleep 1
        s_branch L_own{sfx}_l
        """)
I(f"""
L_build2:
s_waitcnt lgkmcnt(0)
v_add_u32 v144, 192, v144
v_add_u32 v145, 384, v145
s_cmp_lt_u32 s{sKb}, 7
s_cbranch_scc1 L_build
s_lshl_b32 s{t0}, s{sKb}, 5
s_add_u32 s{t1}, s{t0}, {OVF - 7*32}
v_mov_b32 v144, s{t1}
s_add_u32 s{t1}, s{t1}, s{t0}
v_mov_b32 v145, s{t1}
s_branch L_build
""")
I(f"""
L_cw:
s_cmp_eq_u32 s{sW}, {NW-1}
s_cbranch_scc1 L_cw_ret
s_mov_b32 s{t0}, 0
L_cw_l:
ds_read_b32 v{vN}, v42 offset:{DONE+4}
s_waitcnt lgkmcnt(0)
v_cmp_eq_u32 vcc, 0, v{vN}
s_cbranch_vccz L_cw_ret
s_add_u32 s{t0}, s{t0}, 1
s_cmp_gt_u32 s{t0}, 0x100000
s_cbranch_scc1 L_exit
s_sleep 1
s_branch L_cw_l
""")
for fx, s_ in fixups:
    r = slotreg[s_]
    I(f"""
    L_fx{fx}:
    v_min_u32 v142, {CAP + 23}, v{r+3}
    v_subrev_u32 v142, {CAP}, v142
    v_mov_b32 v143, {OVF}
    v_lshl_add_u32 v136, v142, 2, v143
    v_lshl_add_u32 v142, v142, 3, v143
    v_cndmask_b32 v141, v141, v136, vcc
    v_cndmask_b32 v{vTA[s_]}, v{vTA[s_]}, v142, vcc
    s_branch L_fr{fx}
    """)
I(f"""
L_w2ld:
s_cmp_gt_u32 s2, 16
s_cbranch_scc1 L_p_done
s_cmp_lt_u32 s2, 16
s_cbranch_scc1 L_opt_c
v_lshlrev_b32 v12, 1, v{vLane}
global_load_ushort v{vW2S}, v12, {sr(pB2,2)}
s_branch L_p_done
L_opt_c:
s_and_b32 s{t0}, s2, 3
s_lshl_b32 s{t0}, s{t0}, 10
s_lshr_b32 s{t3}, s2, 2
s_lshl_b32 s{t3}, s{t3}, 1
s_add_u32 s{t0}, s{t0}, s{t3}
v_bfe_u32 v12, v{vLane}, 4, 1
v_lshlrev_b32 v12, 13, v12
v_lshrrev_b32 v13, 5, v{vLane}
v_lshl_add_u32 v12, v13, 12, v12
v_and_b32 v13, 15, v{vLane}
v_lshl_add_u32 v12, v13, 3, v12
""")
for i_ in range(8):
    I(f"buffer_load_ushort v{vW2S+i_}, v12, {sr(sD,4)}, s{t0} offen offset:{128*i_}")
I("s_branch L_p_done")
L("L_slow")
I(f"""
s_setprio 0
s_mov_b32 s{sMode}, 1
s_mov_b32 s{sK0}, 0
s_waitcnt vmcnt(0) lgkmcnt(0)
s_barrier
v_mov_b32 v{vt+6}, 1
v_mov_b32 v{vMX}, 0
""")
small_init(64)
s_zero(64)
desc_consts()
for jj in range(3): I(poll_load(jj))
I("s_waitcnt vmcnt(0)")
I(f"""
s_cmp_lt_u32 s{sW}, 8
s_cselect_b32 s{t0}, -1, 0
v_and_b32 v{vDs+4}, s{t0}, v{vDs+4}
""")
for jj in range(3): decode(jj)
for jj in range(3):
    I(f"v_mov_b32 v{144+jj}, v{vRA+jj}")
    I(f"v_mov_b32 v{147+jj}, v{vCn+jj}")
I(f"""
s_mov_b32 s{t5}, {KMASK}
v_mov_b32 v150, {KCON}
v_mov_b32 v{vKA+1}, 0x3c00
v_and_b32 v72, 31, v{vLane}
v_lshlrev_b32 v72, 2, v72
v_add_u32 v{vSC}, {SB}, v72
v_add_u32 v{vSC+1}, {SB}, v72
v_bfe_u32 v73, v{vLane}, 4, 1
v_lshlrev_b32 v73, 5, v73
v_and_b32 v74, 3, v{vLane}
v_lshl_add_u32 v73, v74, 3, v73
v_add_u32 v{vQC}, {QB}, v73
v_bfe_u32 v75, v{vLane}, 2, 2
v_add_u32 v76, 98, v75
v_mul_u32_u24 v76, {QROW}, v76
v_add_u32 v{vQ}, v76, v{vQC}
v_max3_i32 v137, v147, v148, v149
v_max_i32 v137, 0, v137
v_mov_b32 v138, 0
s_waitcnt lgkmcnt(0)
s_barrier
ds_max_u32 v138, v137 offset:{MAXC}
s_waitcnt lgkmcnt(0)
s_barrier
ds_read_b32 v137, v138 offset:{MAXC}
s_waitcnt lgkmcnt(0)
v_readfirstlane_b32 s{sMaxc}, v137
L_round:
s_barrier
""")
area_init(64)
I(f"""
v_lshlrev_b32 v64, 2, v0
v_add_u32 v64, {CNTR}, v64
v_mov_b32 v65, 0
v_cmp_gt_u32 vcc, 128, v0
s_and_b64 exec, exec, vcc
ds_write_b32 v64, v65
s_mov_b64 exec, -1
""")
for jj in range(3):
    I(f"v_cmp_lt_i32 {sr(sM+2*jj,2)}, s{sK0}, v{147+jj}")
for jj in range(3):
    I(f"s_mov_b64 exec, {sr(sM+2*jj,2)}")
    I(f"buffer_load_dwordx3 {vr(48+4*jj,3)}, v{144+jj}, {sr(sWS,4)}, s{sGam} offen sc1")
I(f"""
s_mov_b64 exec, -1
s_waitcnt vmcnt(0) lgkmcnt(0)
s_barrier
""")
for jj in range(3):
    r = 48 + 4*jj
    I(f"""
    s_mov_b64 exec, {sr(sM+2*jj,2)}
    v_bfe_u32 v{60+jj}, v{r+2}, 10, 9
    v_and_or_b32 v{r+2}, v{r+2}, s{t5}, v150
    v_add_u32 v{72+jj}, {GBASE}, v{60+jj}
    ds_add_rtn_u32 v{r+3}, v{72+jj}, v{vt+6} offset:512
    ds_add_u32 v{60+jj}, v{vt+6} offset:{CNT}
    """)
I(f"""
s_mov_b64 exec, -1
s_waitcnt lgkmcnt(0)
s_barrier
v_lshlrev_b32 v64, 3, v{vLane}
v_add_u32 v64, {GBASE}, v64
ds_read_b64 v[66:67], v64 offset:512
s_waitcnt lgkmcnt(0)
v_add_u32 v66, 7, v66
v_add_u32 v67, 7, v67
v_lshrrev_b32 v66, 3, v66
v_lshrrev_b32 v67, 3, v67
v_add_u32 v68, v66, v67
v_mov_b32 v69, v68
""")
dpp_scan(69)
I(f"""
v_readlane_b32 s{sG}, v69, 63
v_sub_u32 v70, v69, v68
v_add_u32 v71, v70, v66
ds_write_b64 v64, v[70:71]
s_add_u32 s{sNT}, s{sG}, 3
s_lshr_b32 s{sNT}, s{sNT}, 2
s_waitcnt lgkmcnt(0)
""")
for jj in range(3):
    r = 48 + 4*jj
    I(f"""
    s_mov_b64 exec, {sr(sM+2*jj,2)}
    ds_read_b32 v64, v{72+jj}
    ds_read_b32 v71, v{72+jj} offset:512
    v_lshrrev_b32 v65, 3, v{r+3}
    v_and_b32 v66, 7, v{r+3}
    v_lshrrev_b32 v67, 2, v{60+jj}
    s_waitcnt lgkmcnt(0)
    v_add_u32 v64, v64, v65
    v_lshlrev_b32 v65, 3, v65
    v_sub_u32 v71, v71, v65
    v_min_u32 v71, 8, v71
    v_lshlrev_b32 v71, 3, v71
    v_sub_u32 v71, 64, v71
    v_mul_u32_u24 v68, {SROW}, v67
    v_mul_u32_u24 v69, {QROW}, v67
    v_lshl_or_b32 v68, v69, 16, v68
    v_lshlrev_b32 v69, 4, v64
    v_add_u32 v69, {GT}, v69
    ds_write2_b32 v69, v71, v68 offset0:2 offset1:3
    v_mul_u32_u24 v65, 9363, v64
    v_lshrrev_b32 v65, 16, v65
    v_mul_u32_u24 v67, 7, v65
    v_sub_u32 v64, v64, v67
    v_mul_u32_u24 v65, {NSZ}, v65
    v_add_u32 v65, {AREA}, v65
    v_lshl_add_u32 v67, v64, 5, v65
    v_lshl_add_u32 v70, v64, 6, v65
    v_add_u32 v70, {EOFF}, v70
    ds_write2_b32 v69, v67, v70 offset0:0 offset1:1
    v_lshl_add_u32 v75, v66, 2, v67
    v_lshl_add_u32 v76, v66, 3, v70
    ds_write_b32 v75, v{r+2}
    ds_write_b64 v76, {P(r)}
    s_waitcnt lgkmcnt(0)
    """)
I(f"""
s_mov_b64 exec, -1
s_barrier
s_mov_b32 s{sK}, s{sW}
L_stile:
s_cmp_ge_u32 s{sK}, s{sNT}
s_cbranch_scc1 L_stile_done
s_lshl_b32 s{t0}, s{sK}, 6
s_add_u32 s{t0}, s{t0}, {GT}
""")
ptr_consts(f"s{t0}")
I(f"""
ds_read2_b32 {P(vAG)}, v{vPG} offset0:1 offset1:0
ds_read_u16 v{vGQ}, v{vPR}
{gsrd(0)[0]}
{gsrd(0)[1]}
s_waitcnt lgkmcnt(0)
{AUPD}
ds_read_b32 v{vKA}, v{vAG+1}
ds_read_b64 {P(vA5)}, v{vAG}
s_waitcnt lgkmcnt(0)
{IXM}
s_nop 15
""")
for l in gload(0) + gload(1) + SAUPD + [QUPD]: I(l)
I("s_waitcnt vmcnt(0)")
for u in range(2):
    I(f"ds_read_b64_tr_b16 {P(vB5[0])}, v{vQ} offset:{128*u}")
    I(f"ds_read_b64_tr_b16 {P(vB5[1])}, v{vQ} offset:{128*u+64}")
    for l in shifts(u): I(l)
    I("s_waitcnt lgkmcnt(0)")
    I("s_nop 1")
    I(mf8(vTL, vA5, vB5[0], vr(vTL,16)))
    I(mf8(vTH, vA5, vB5[1], vr(vLb[u],16)))
    I("s_nop 15")
    for hi, T in enumerate((vTL, vTH)):
        for i in range(16): I(f"v_exp_f32 v{vE+i}, v{T+i}")
        for i in range(16): I(f"v_add_f32 v{vE+i}, 1.0, v{vE+i}")
        for i in range(16): I(f"v_rcp_f32 v{vE+i}, v{vE+i}")
        I(f"v_pk_mul_f32 {P(vN)}, {P(T)}, {P(vE)}")
        for i in range(1, 8): I(f"v_pk_fma_f32 {P(vN)}, {P(T+2*i)}, {P(vE+2*i)}, {P(vN)}")
        I(f"ds_add_f32 v{vSA}, v{vN} offset:{128*(2*u+hi)}")
        I(f"ds_add_f32 v{vSA+1}, v{vN+1} offset:{128*(2*u+hi)}")
        I("s_waitcnt lgkmcnt(0)")
I(f"""
s_add_u32 s{sK}, s{sK}, {NW}
s_branch L_stile
L_stile_done:
s_add_u32 s{sK0}, s{sK0}, 8
s_add_u32 s{sGam}, s{sGam}, 96
s_cmp_lt_u32 s{sK0}, s{sMaxc}
s_cbranch_scc1 L_round
s_barrier
s_branch L_epi
""")

A('.section .rodata,"a"')
A(".p2align 6")
A(f".amdhsa_kernel {KNAME}")
A(f"  .amdhsa_next_free_vgpr {NVGPR}")
A("  .amdhsa_next_free_sgpr 102")
A(f"  .amdhsa_accum_offset {NVGPR}")
A("  .amdhsa_group_segment_fixed_size 0")
A("  .amdhsa_kernarg_size 88")
A("  .amdhsa_user_sgpr_count 2")
A("  .amdhsa_user_sgpr_kernarg_segment_ptr 1")
A("  .amdhsa_system_sgpr_workgroup_id_x 1")
A("  .amdhsa_float_denorm_mode_32 3")
A(".end_amdhsa_kernel")
open(sys.argv[1], "w").write("\n".join(out) + "\n")
print("LDS", LDS, "SB", SB, "QB", QB, "lines", len(out), file=sys.stderr)
```

```python
import sys, struct

opts = dict(a.split("=") for a in sys.argv[2:])
LITE = int(opts.get("lite", 0))
DEBUG = int(opts.get("debug", 0))
PRIO = int(opts.get("prio", 1))
FORCE_SLOW = int(opts.get("slow", 0))
NT = " " + opts.get("nt", "nt").replace("+", " ").replace("none", "")
WSOFF = int(opts.get("wsoff", "0"), 0)
PREF = int(opts.get("pref", 0))
STG = [int(x) for x in opts.get("stg", "0,0").split(",")]
STAG = max(STG) > 0
def stg_at(j): return any(x > 0 and x % 2 == j // 2 for x in STG)
SLEEP = int(opts.get("sleep", 2))
PTH = [int(x) for x in opts.get("pth", "7,3").split(",")]

PST_ = opts.get("pst", "sc1").replace("+", " "); RST_ = opts.get("rst", "sc1").replace("+", " ")
ICP = int(opts.get('icp', 2)); TAGS = int(opts.get('tags', 1))
PAIR = int(opts.get('pair', 1))
PUB_ = opts.get("pub", "sc0+sc1").replace("+", " ")
AI4 = int(opts.get('ai4', 0))
KNAME = "standalone__edge_featured_mpnn_mpnn__graph_kernel"
N = 25000; E = 800000
BN = 98; NW = 12; NTH = 768
QE = 3072; XE = 53; CH = QE + XE
GRAN = 0x10000
W2I = 0x98000
PF = 0xA0000
MAGIC = 0x4B010000
REC = 0x100000; RSTRIDE = 37632
PT = 0xB00000
STAMP = 0x1200000
WS_SIZE = 0x1300000
LOG2E = 1.4426950408889634
LN2 = 0.6931471805599453
def f2u(x): return struct.unpack("<I", struct.pack("<f", x))[0]

CNT = 0; CARRY = 512; PROG = 1024; FLAG = 1040; MAXC = 1044; LUT = 1088
GT = 1600; GSZ = 64; TMAX = 10; NGT = NW * TMAX + 2
CNT1 = GT
CAP = 56; NSZ = CAP * 12; EOFF = CAP * 4
AREA = (GT + NGT * GSZ + 127) // 128 * 128
SB = (AREA + 99 * NSZ + 255) // 256 * 256
SROW = 528; NSROW = BN + NW
QB = SB + NSROW * SROW; QROW = 264
GBASE = QB + 102 * QROW; CNTR = GBASE + 512
LDS = CNTR + 512
assert LDS <= 163840 and QB % 8 == 0 and GBASE % 8 == 0 and GT % 16 == 0
RST = AREA; XRAW = AREA + 37632; W1RAW = SB; PST = SB + 32768
assert XRAW + 16384 <= SB and PST + BN * 256 <= QB
ZROW = BN
KMASK = 0x03F803FC; KCON = 0x5C005C00
PADKEY = KCON | (126 << 19)
OVF = AREA + 98 * NSZ
SCANW, EXTRAW = 8, 9

out = []
def A(s=""): out.append(s)
def I(s):
    for l in s.strip("\n").split("\n"):
        l = l.strip()
        if not l: continue
        out.append(l if l.endswith(":") else "    " + l)
def L(name): out.append(name + ":")
def vr(a, n): return f"v[{a}:{a+n-1}]"
def sr(a, n): return f"s[{a}:{a+n-1}]"
def P(r): return f"v[{r}:{r+1}]"

sWS, sP, sOUT, sA, sBq, sC = 4, 8, 12, 16, 20, 24
sD = 28
pX, pE, pSRC, pDST, pW1, pB1, pW2, pB2, pOUT, pWS = 32, 34, 36, 38, 40, 42, 44, 46, 48, 50
sM = 32
sB, sW, sTw, sG, sT, sRem, sGam, sK, sGmax, sBad, sTag, sTag8, sReg, sMode, sK0, sMaxc = range(62, 78)
sONE = 78; sADV = 80; sSC = 82; sE0 = 84; sE1 = 86
t0, t1, t2, t3, t4, t5 = 88, 89, 90, 91, 92, 93
sNT = 3
sPM, sNV = 16, 22; sPV = [28, 30, 94]
vLane = 1
vPH, vPG, vPR = 2, 3, 4
vSC = 8; vQC = 9; vQ = 10; vGQ = 11
vSA = 12; vAG = 14; vA5 = 16; vB5 = [18, 20]; vD = 22; vN = 24; vSO = 26; vMX = 28; vST = 29
vAC = 6; vBK = 30; vGS = 36; vKA = 38
vW2S = 32
vt = 40
vLb = [48, 64]; vTL = 80; vTH = 96; vE = 112; vIX = 128
NVGPR = 168

nstamp = [0]
def stamp(force=False):
    if not DEBUG: return
    i = nstamp[0]; nstamp[0] += 1
    if LITE and not force: return
    I(f"{'s_memtime' if DEBUG == 2 else 's_memrealtime'} s[100:101]")
    I("s_waitcnt lgkmcnt(0)")
    I(f"v_writelane_b32 v{vST}, s100, {i}")

def srd(d, p, nrec, stride=0, add=None):
    if add is None:
        I(f"s_mov_b32 s{d}, s{p}")
        I(f"s_and_b32 s{d+1}, s{p+1}, 0xffff")
    else:
        I(f"s_add_u32 s{d}, s{p}, {add}")
        I(f"s_addc_u32 s{d+1}, s{p+1}, 0")
        I(f"s_and_b32 s{d+1}, s{d+1}, 0xffff")
    I(f"s_mov_b32 s{d+2}, {nrec}")
    I(f"s_mov_b32 s{d+3}, 0x00020000")

def dpp_scan(v, vmax=None):
    steps = ["row_shr:1 row_mask:0xf bank_mask:0xf bound_ctrl:0", "row_shr:2 row_mask:0xf bank_mask:0xf bound_ctrl:0",
             "row_shr:4 row_mask:0xf bank_mask:0xf bound_ctrl:0", "row_shr:8 row_mask:0xf bank_mask:0xf bound_ctrl:0",
             "row_bcast:15 row_mask:0xa bank_mask:0xf", "row_bcast:31 row_mask:0xc bank_mask:0xf"]
    I("s_nop 1")
    for s in steps:
        I(f"v_add_u32_dpp v{v}, v{v}, v{v} {s}")
        if vmax is not None:
            I(f"v_max_u32_dpp v{vmax}, v{vmax}, v{vmax} {s}")
            I("s_nop 0")
        else:
            I("s_nop 1")
def lanemask(ls):
    m = 0
    for l in ls: m |= 1 << l
    return m
def setexec(m):
    I(f"s_mov_b32 exec_lo, {m & 0xffffffff}")
    I(f"s_mov_b32 exec_hi, {m >> 32}")
def mf16(D, a, b, c): return f"v_mfma_f32_32x32x16_bf16 {vr(D,16)}, {vr(a,4)}, {vr(b,4)}, {c}"
def mf8(D, a, b, c): return f"v_mfma_f32_32x32x8_bf16 {vr(D,16)}, {vr(a,2)}, {vr(b,2)}, {c}"
SDWA0 = "dst_sel:DWORD dst_unused:UNUSED_PAD src0_sel:WORD_0 src1_sel:DWORD"
SDWAB = "dst_sel:DWORD dst_unused:UNUSED_PAD src0_sel:DWORD src1_sel:BYTE_0"

def area_init(z):
    I(f"""
    s_mov_b32 s{t0}, 1561
    v_mul_u32_u24 v{z+5}, s{t0}, v0
    v_lshrrev_b32 v{z+5}, 16, v{z+5}
    v_mul_u32_u24 v{z+5}, 42, v{z+5}
    v_sub_u32 v{z+5}, v0, v{z+5}
    v_cmp_gt_u32 vcc, 14, v{z+5}
    v_mov_b32 v{z+6}, {PADKEY}
    v_lshlrev_b32 v{z+7}, 4, v0
    v_cndmask_b32 v{z}, 0, v{z+6}, vcc
    v_add_u32 v{z+4}, {AREA}, v{z+7}
    v_mov_b32 v{z+1}, v{z}
    v_mov_b32 v{z+2}, v{z}
    v_mov_b32 v{z+3}, v{z}
    v_cmp_gt_u32 vcc, 756, v0
    s_and_b64 exec, exec, vcc
    """)
    for t in range(6):
        if t == 5:
            I(f"v_cmp_gt_u32 vcc, {99*42 - 5*756}, v0")
            I("s_and_b64 exec, exec, vcc")
        I(f"ds_write_b128 v{z+4}, {vr(z,4)} offset:{t*756*16}")
    I("s_mov_b64 exec, -1")
    vals = [OVF + 6*32, OVF + EOFF + 6*64, LUT + 64, (ZROW*SROW) | ((98*QROW) << 16)]
    I(f"v_mov_b32 v{z+8}, {vals[0]}")
    for q in range(1, 4):
        setexec(lanemask([l for l in range(64) if l & 3 == q]))
        I(f"v_mov_b32 v{z+8}, {vals[q]}")
    I(f"""
    s_mov_b64 exec, -1
    v_cmp_gt_u32 vcc, {NGT*4}, v0
    v_mov_b32 v{z+9}, v{z+8}
    v_mov_b32 v{z+10}, v{z+8}
    v_mov_b32 v{z+11}, v{z+8}
    s_and_b64 exec, exec, vcc
    ds_write_b128 v{z+7}, {vr(z+8,4)} offset:{GT}
    s_mov_b64 exec, -1
    """)
def area_init4(z, lbl):
    I(f"""
    s_cmp_lt_u32 s{sW}, 8
    s_cbranch_scc1 {lbl}
    v_subrev_u32 v{z+7}, 512, v0
    s_mov_b32 s{t0}, 1561
    v_mul_u32_u24 v{z+5}, s{t0}, v{z+7}
    v_lshrrev_b32 v{z+5}, 16, v{z+5}
    v_mul_u32_u24 v{z+5}, 42, v{z+5}
    v_sub_u32 v{z+5}, v{z+7}, v{z+5}
    v_cmp_gt_u32 vcc, 14, v{z+5}
    v_mov_b32 v{z+6}, {PADKEY}
    v_lshlrev_b32 v{z+4}, 4, v{z+7}
    v_cndmask_b32 v{z}, 0, v{z+6}, vcc
    v_add_u32 v{z+4}, {AREA}, v{z+4}
    v_mov_b32 v{z+1}, v{z}
    v_mov_b32 v{z+2}, v{z}
    v_mov_b32 v{z+3}, v{z}
    v_cmp_gt_u32 vcc, 252, v{z+7}
    s_and_b64 exec, exec, vcc
    """)
    for t in range(17):
        if t == 16:
            I(f"v_cmp_gt_u32 vcc, {99*42 - 16*252}, v{z+7}")
            I("s_and_b64 exec, exec, vcc")
        I(f"ds_write_b128 v{z+4}, {vr(z,4)} offset:{t*252*16}")
    I("s_mov_b64 exec, -1")
    vals = [OVF + 6*32, OVF + EOFF + 6*64, LUT + 64, (ZROW*SROW) | ((98*QROW) << 16)]
    I(f"v_mov_b32 v{z+8}, {vals[0]}")
    for q in range(1, 4):
        setexec(lanemask([l for l in range(64) if l & 3 == q]))
        I(f"v_mov_b32 v{z+8}, {vals[q]}")
    I(f"""
    s_mov_b64 exec, -1
    v_lshlrev_b32 v{z+5}, 4, v{z+7}
    v_cmp_gt_u32 vcc, {NGT*4 - 256}, v{z+7}
    v_mov_b32 v{z+9}, v{z+8}
    v_mov_b32 v{z+10}, v{z+8}
    v_mov_b32 v{z+11}, v{z+8}
    ds_write_b128 v{z+5}, {vr(z+8,4)} offset:{GT}
    s_and_b64 exec, exec, vcc
    ds_write_b128 v{z+5}, {vr(z+8,4)} offset:{GT + 4096}
    s_mov_b64 exec, -1
    {lbl}:
    """)
def s_zero(z):
    nch = NSROW * SROW // 16
    for i in range(4): I(f"v_mov_b32 v{z+i}, 0")
    I(f"v_lshlrev_b32 v{z+4}, 4, v0")
    I(f"v_add_u32 v{z+4}, {SB}, v{z+4}")
    n = (nch + NTH - 1) // NTH
    for t in range(n):
        if (t + 1) * NTH > nch:
            I(f"v_cmp_gt_u32 vcc, {nch - t*NTH}, v0")
            I(f"s_and_b64 exec, exec, vcc")
        I(f"ds_write_b128 v{z+4}, {vr(z,4)} offset:{t*NTH*16}")
    I("s_mov_b64 exec, -1")
def small_init(z):
    I(f"""
    v_lshlrev_b32 v{z}, 2, v0
    v_mov_b32 v{z+1}, 0
    v_mov_b32 v{z+2}, {ZROW*SROW}
    v_lshrrev_b32 v{z+3}, 7, v0
    v_cmp_eq_u32 vcc, 1, v{z+3}
    s_nop 1
    v_cndmask_b32 v{z+1}, v{z+1}, v{z+2}, vcc
    v_cmp_gt_u32 vcc, 272, v0
    s_and_b64 exec, exec, vcc
    ds_write_b32 v{z}, v{z+1}
    s_mov_b64 exec, -1
    """)

hdr = open("standalone__edge_featured_mpnn_mpnn__graph.s.ref").read().split("\n")
for l in hdr:
    if "@launch" in l: continue
    if not l.startswith(";"): break
    A(l)
A(f"; @launch grid=(256,1,1) block=({NTH},1,1) lds={LDS}")
A('.amdgcn_target "amdgcn-amd-amdhsa--gfx950"')
A(".text")
A(f".globl {KNAME}")
A(".p2align 8")
A(f".type {KNAME},@function")
L(KNAME)
I(f"""
s_cmp_ge_u32 s2, 256
s_cbranch_scc1 L_exit
{"s_memrealtime s[96:97]" if DEBUG else ""}
""")
if int(opts.get("skew", 0)):
    I(f"""
    s_and_b32 s3, s2, 7
    s_cmp_lg_u32 s3, 3
    s_cbranch_scc1 L_nosk
    s_sleep {opts["skew"]}
    L_nosk:
    """)
I(f"""
s_load_dwordx16 s[32:47], s[0:1], 0
s_load_dwordx2 {sr(pOUT,2)}, s[0:1], 64
s_load_dwordx2 {sr(pWS,2)}, s[0:1], 80
v_lshrrev_b32 v{vt}, 6, v0
v_and_b32 v{vLane}, 63, v0
v_readfirstlane_b32 s{sW}, v{vt}
""")
if ICP in (2, 3, 4):
    I(f"""
    s_getpc_b64 s[94:95]
    s_lshr_b32 s98, s2, 3
    s_mul_i32 s98, s98, {NW}
    s_add_u32 s98, s98, s{sW}
    s_and_b32 s98, s98, {127 if ICP == 3 else 255}
    s_lshl_b32 s98, s98, {7 if ICP == 3 else 6}
    """)
if ICP == 3:
    I(f"""
    v_mov_b32 v27, s98
    s_mov_b64 exec, 1
    global_load_dword v27, v27, s[94:95]
    s_mov_b64 exec, -1
    """)
if ICP == 4:
    I(f"""
    s_cmp_gt_u32 s98, 64
    s_cbranch_scc1 L_noic
    s_lshl_b32 s99, s98, 7
    v_lshl_add_u32 v27, v{vLane}, 7, s99
    global_load_dword v27, v27, s[94:95]
    L_noic:
    """)
I(f"""
s_mul_i32 s{t0}, s2, {QE*4}
{f"s_lshl_b32 s{t1}, s{sW}, 10" if PAIR else ""}
{f"s_add_u32 s{t0}, s{t0}, s{t1}" if PAIR else ""}
{f"v_lshl_add_u32 v{vt+1}, v{vLane}, 3, s{t0}" if PAIR else f"v_lshl_add_u32 v{vt+1}, v0, 4, s{t0}"}
v_lshlrev_b32 v{vt+2}, 1, v{vt+1}
s_and_b32 s{sB}, s2, 7
s_lshl_b32 s{sB}, s{sB}, 5
s_lshr_b32 s{t1}, s2, 3
s_add_u32 s{sB}, s{sB}, s{t1}
{f"s_mov_b32 s{sB}, s2" if int(opts.get("ident", 0)) else ""}
v_lshlrev_b32 v75, 2, v0
v_mov_b32 v76, 0
ds_write_b32 v75, v76 offset:{CNT1}
v_lshrrev_b32 v68, 3, v{vLane}
v_lshrrev_b32 v69, 4, v{vLane}
v_and_b32 v70, 7, v{vLane}
v_xor_b32 v70, v70, v69
v_lshlrev_b32 v70, 4, v70
v_lshl_add_u32 v70, v68, 7, v70
s_and_b32 s{t0}, s{sW}, 1
s_lshl_b32 s{t0}, s{t0}, 6
v_xor_b32 v71, s{t0}, v70
v_and_b32 v72, 15, v{vLane}
v_lshlrev_b32 v73, 2, v69
v_xor_b32 v72, v72, v73
v_lshlrev_b32 v72, 4, v72
v_lshl_add_u32 v72, v69, 8, v72
v_lshlrev_b32 v74, 1, v{vLane}
v_and_b32 v75, 32, v{vLane}
v_lshl_add_u32 v74, v75, 4, v74
v_lshlrev_b32 v{vt+5}, 4, v{vLane}
v_lshlrev_b32 v{vt}, 4, v0
s_mul_i32 s{t1}, s{sB}, {BN*128}
s_lshl_b32 s{t2}, s{sW}, 10
s_mov_b32 s{sA+2}, {N*128}
s_mov_b32 s{sA+3}, 0x00020000
s_mov_b32 s{sBq+2}, {132*256}
s_mov_b32 s{sBq+3}, 0x00020000
s_mov_b32 s{sC+2}, 256
s_mov_b32 s{sC+3}, 0x00020000
s_mov_b32 s{sD+2}, {128*128}
s_mov_b32 s{sD+3}, 0x00020000
s_waitcnt lgkmcnt(0)
s_add_u32 s{pWS}, s{pWS}, {WSOFF}
s_addc_u32 s{pWS+1}, s{pWS+1}, 0
{"s_load_dword s3, s[94:95], s98" if ICP in (2, 4) else ""}
{f"s_load_dword s{sTag}, {sr(pWS,2)}, 0" if TAGS else ""}
s_mov_b32 s{sA}, s{pX}
s_and_b32 s{sA+1}, s{pX+1}, 0xffff
s_mov_b32 s{sBq}, s{pW1}
s_and_b32 s{sBq+1}, s{pW1+1}, 0xffff
s_mov_b32 s{sC}, s{pB1}
s_and_b32 s{sC+1}, s{pB1+1}, 0xffff
s_mov_b32 s{sD}, s{pW2}
s_and_b32 s{sD+1}, s{pW2+1}, 0xffff
s_cmp_ge_u32 s{sW}, 8
s_cbranch_scc1 L_opt_hi
s_add_u32 s{t3}, s{t2}, {24*1024}
s_add_u32 m0, s{t3}, {W1RAW}
s_cmp_lg_u32 s{sW}, 0
buffer_load_dwordx4 v72, {sr(sBq,4)}, s{t3} offen lds
s_cbranch_scc1 L_opt_end
s_mov_b32 m0, {XRAW + 12*1024}
s_add_u32 s{t3}, s{t1}, {12*1024}
buffer_load_dwordx4 v70, {sr(sA,4)}, s{t3} offen{NT} lds
s_branch L_opt_end
L_opt_hi:
s_cmp_lg_u32 s{sW}, {EXTRAW}
s_cbranch_scc1 L_opt_a
s_mul_i32 s{t0}, s2, {XE}
s_add_u32 s{t0}, s{t0}, {256*QE}
v_add_lshl_u32 v{vt+3}, v{vLane}, s{t0}, 2
v_lshlrev_b32 v{vt+4}, 1, v{vt+3}
""")
XM = (1 << XE) - 1
setexec(XM)
I(f"""
global_load_dword v64, v{vt+3}, {sr(pDST,2)}{NT}
global_load_dword v65, v{vt+3}, {sr(pSRC,2)}{NT}
global_load_dwordx2 v[66:67], v{vt+4}, {sr(pE,2)}{NT}
s_mov_b64 exec, -1
s_branch L_opt_end
L_opt_a:
s_cmp_lg_u32 s{sW}, 10
s_cbranch_scc1 L_opt_end
s_mov_b32 s{t0}, {128*256}
buffer_load_dwordx4 v[12:15], v{vt+5}, {sr(sBq,4)}, s{t0} offen
""")
ORD = opts.get("ord", "A")
dma = f"""
s_add_u32 m0, s{t2}, {XRAW}
s_add_u32 s{t3}, s{t1}, s{t2}
buffer_load_dwordx4 v71, {sr(sA,4)}, s{t3} offen{NT} lds
s_add_u32 m0, s{t2}, {W1RAW}
s_add_u32 s{t3}, s{t2}, {12*1024}
buffer_load_dwordx4 v72, {sr(sBq,4)}, s{t2} offen lds
s_add_u32 m0, s{t3}, {W1RAW}
s_nop 0
buffer_load_dwordx4 v72, {sr(sBq,4)}, s{t3} offen lds
"""
edg = f"""
global_load_dwordx4 v[52:55], v{vt+1}, {sr(pSRC,2)}{NT}
global_load_dwordx4 v[56:59], v{vt+2}, {sr(pE,2)}{NT}
global_load_dwordx4 v[60:63], v{vt+2}, {sr(pE,2)} offset:16{NT}
"""
L("L_opt_end")
if PAIR:
    I(f"""
    global_load_dwordx2 v[48:49], v{vt+1}, {sr(pDST,2)}{NT}
    global_load_dwordx2 v[50:51], v{vt+1}, {sr(pDST,2)} offset:512{NT}
    """)
    edg = f"""
    global_load_dwordx2 v[52:53], v{vt+1}, {sr(pSRC,2)}{NT}
    global_load_dwordx2 v[54:55], v{vt+1}, {sr(pSRC,2)} offset:512{NT}
    global_load_dwordx4 v[56:59], v{vt+2}, {sr(pE,2)}{NT}
    global_load_dwordx4 v[60:63], v{vt+2}, {sr(pE,2)} offset:1024{NT}
    """
else:
    I(f"global_load_dwordx4 v[48:51], v{vt+1}, {sr(pDST,2)}{NT}")
if DEBUG:
    I(f"v_mov_b32 v{vST}, 0")
    if DEBUG == 1: I(f"v_writelane_b32 v{vST}, s96, 21")
    nstamp[0] = 1
if ORD == "A": I(dma); I("s_barrier"); I(edg)
elif ORD == "B": I("s_barrier"); I(dma); I(edg)
elif ORD == "C": I("s_barrier"); I(edg); I(dma)
elif ORD == "D": I("s_barrier"); I(dma); I("s_barrier"); I(edg)
I(f"""
s_and_b32 s{t0}, s{sW}, 1
s_lshl_b32 s{t0}, s{t0}, 7
buffer_load_ushort v160, v74, {sr(sC,4)}, s{t0} offen
buffer_load_ushort v162, v74, {sr(sC,4)}, s{t0} offen offset:64
""")
X = (0 if TAGS else 1) + (ICP == 1)
I("s_mov_b64 exec, 1")
if not TAGS:
    I("v_mov_b32 v26, 0")
    I(f"global_load_dword v26, v26, {sr(pWS,2)}")
if ICP == 1:
    I(f"""
    s_getpc_b64 s[94:95]
    s_lshr_b32 s{t0}, s2, 3
    s_mul_i32 s{t0}, s{t0}, {NW}
    s_add_u32 s{t0}, s{t0}, s{sW}
    s_and_b32 s{t0}, s{t0}, 127
    s_lshl_b32 s{t0}, s{t0}, 7
    v_mov_b32 v27, s{t0}
    global_load_dword v27, v27, s[94:95]
    """)
I("s_mov_b64 exec, -1")
assert CNT1 + NTH * 4 <= AREA
small_init(76)
srd(sWS, pWS, WS_SIZE)
I(f"""
s_sub_u32 s{sP}, s{pWS}, {MAGIC - PT}
s_subb_u32 s{sP+1}, s{pWS+1}, 0
s_and_b32 s{sP+1}, s{sP+1}, 0xffff
s_mov_b32 s{sP+2}, {MAGIC + N*256}
s_mov_b32 s{sP+3}, 0x00020000
""")
I(f"""
s_mul_i32 s{t0}, s{sB}, {BN}
s_sub_u32 s{t1}, {N}, s{t0}
s_min_u32 s{t1}, s{t1}, {BN}
s_lshl_b32 s{t2}, s{t0}, 7
s_add_u32 s{sOUT}, s{pOUT}, s{t2}
s_addc_u32 s{sOUT+1}, s{pOUT+1}, 0
s_and_b32 s{sOUT+1}, s{sOUT+1}, 0xffff
s_lshl_b32 s{sOUT+2}, s{t1}, 7
s_mov_b32 s{sOUT+3}, 0x00020000
s_mov_b32 s{sONE}, 1.0
s_mov_b32 s{sONE+1}, 1.0
s_mov_b32 s{sADV}, {GSZ}
s_mov_b32 s{sADV+1}, {GSZ}
s_mov_b32 s{sSC}, {f2u(-LOG2E)}
s_mov_b32 s{sSC+1}, {f2u(-LOG2E)}
s_mov_b32 s{sMode}, 0
s_mul_i32 s{sReg}, s{sW}, {TMAX*GSZ}
s_add_u32 s{sReg}, s{sReg}, {GT}
s_mov_b32 s{t4}, 42800
s_mov_b32 s{t5}, {(-BN) & 0xffffffff}
v_mov_b32 v{vt+6}, 1
v_mov_b32 v161, 0
v_mov_b32 v163, 0
v_mov_b32 v164, 0x3f80
v_mov_b32 v165, 0
""")
I(f"""
v_lshrrev_b32 v68, 5, v{vLane}
v_bfe_u32 v69, v{vLane}, 2, 2
v_lshl_add_u32 v70, v68, 5, v69
s_mov_b32 s{t0}, {W1RAW}
v_lshl_add_u32 v70, v70, 8, s{t0}
v_bfe_u32 v71, v{vLane}, 4, 1
v_lshl_add_u32 v70, v71, 5, v70
v_and_b32 v71, 3, v{vLane}
v_lshl_add_u32 v70, v71, 3, v70
s_and_b32 s{t0}, s{sW}, 1
s_lshl_b32 s{t0}, s{t0}, 1
v_xor_b32 v71, s{t0}, v69
v_lshl_add_u32 v166, v71, 6, v70
v_xor_b32 v71, 1, v71
v_lshl_add_u32 v167, v71, 6, v70
s_lshr_b32 s{t0}, s{sW}, 1
s_lshl_b32 s{t0}, s{t0}, 5
v_and_b32 v78, 31, v{vLane}
v_add_u32 v78, s{t0}, v78
v_bfe_u32 v71, v{vLane}, 1, 3
v_lshlrev_b32 v72, 2, v68
v_xor_b32 v71, v71, v72
v_lshlrev_b32 v71, 4, v71
v_lshl_add_u32 v79, v78, 7, v71
v_add_u32 v79, {XRAW}, v79
s_waitcnt vmcnt({8+X+PAIR})
""")
stamp()
def bucket_rank(d, a, r):
    I(f"v_mul_u32_u24 v{a}, s{t4}, v{d}")
    I(f"v_lshrrev_b32 v{a}, 22, v{a}")
    I(f"v_mad_i32_i24 v{d}, v{a}, s{t5}, v{d}")
    I(f"v_lshlrev_b32 v{a}, 2, v{a}")
    I(f"ds_add_rtn_u32 v{r}, v{a}, v{vt+6} offset:{CNT1}")
for i in range(4): bucket_rank(48+i, 68+i, 73+i)
I(f"s_cmp_lg_u32 s{sW}, {EXTRAW}")
I("s_cbranch_scc1 L_noex1")
setexec(XM)
bucket_rank(64, 72, 77)
I("s_mov_b64 exec, -1")
L("L_noex1")
I(f"""
s_waitcnt vmcnt({X + (2 if ORD == 'C' else 5 + PAIR)}) lgkmcnt(0)
s_barrier
""")
stamp()
I(f"""
s_cmp_lt_u32 s{sW}, 8
s_cbranch_scc1 L_ptask
s_cmp_lg_u32 s{sW}, {SCANW}
s_cbranch_scc1 L_noscan
ds_read_b128 v[80:83], v{vt+5} offset:{CNT1}
s_waitcnt lgkmcnt(0)
v_add_u32 v84, v80, v81
v_add_u32 v85, v84, v82
v_add_u32 v86, v85, v83
v_mov_b32 v87, v86
""")
dpp_scan(87)
I(f"""
v_sub_u32 v88, v87, v86
v_add_u32 v89, v88, v80
v_add_u32 v90, v88, v84
v_add_u32 v91, v88, v85
v_mov_b32 v96, {RST}
v_mad_u32_u24 v92, v88, 12, v96
v_mad_u32_u24 v93, v89, 12, v96
v_mad_u32_u24 v94, v90, 12, v96
v_mad_u32_u24 v95, v91, 12, v96
ds_write_b128 v{vt+5}, v[92:95] offset:{CNT1}
v_lshl_or_b32 v16, v80, 12, v88
v_lshl_or_b32 v18, v81, 12, v89
v_lshl_or_b32 v20, v82, 12, v90
v_lshl_or_b32 v22, v83, 12, v91
s_branch L_p_done
L_noscan:
""")
if DEBUG and int(opts.get("arr", 0)):
    I("s_waitcnt vmcnt(0)")
    I("s_memrealtime s[100:101]")
    I("s_waitcnt lgkmcnt(0)")
    I(f"v_writelane_b32 v{vST}, s100, 20")
if int(opts.get("prew", 0)):
    I(f"""
    s_cmp_lg_u32 s{sW}, 9
    s_cbranch_scc1 L_nopw
    s_lshl_b32 s{t0}, s2, 11
    s_add_u32 s{t0}, s{t0}, {GRAN}
    v_mov_b32 v16, 0
    v_mov_b32 v17, 0
    v_mov_b32 v18, 0
    v_mov_b32 v19, 0
    buffer_store_dwordx4 v[16:19], v{vt+5}, {sr(sWS,4)}, s{t0} offen sc1
    buffer_store_dwordx4 v[16:19], v{vt+5}, {sr(sWS,4)}, s{t0} offen offset:1024 sc1
    L_nopw:
    """)
I(f"""
s_cmp_eq_u32 s{sW}, 11
s_cbranch_scc1 L_w2ld
s_cmp_lg_u32 s{sW}, 10
s_cbranch_scc1 L_p_done
""")
for i in range(4):
    I(f"v_lshlrev_b32 v{80+2*i}, 16, v{12+i}")
    I(f"v_and_b32 v{81+2*i}, 0xffff0000, v{12+i}")
for i in range(4):
    I(f"v_pk_mul_f32 {P(80+2*i)}, {P(80+2*i)}, {sr(sSC,2)}")
for i in range(4):
    I(f"v_cvt_pk_bf16_f32 v{12+i}, v{80+2*i}, v{81+2*i}")
I(f"""
v_lshrrev_b32 v88, 4, v{vLane}
v_mul_u32_u24 v88, {QROW}, v88
v_and_b32 v89, 15, v{vLane}
v_lshl_add_u32 v88, v89, 4, v88
v_add_u32 v88, {QB + 98*QROW}, v88
ds_write2_b64 v88, v[12:13], v[14:15] offset0:0 offset1:1
v_mov_b32 v90, 0
v_mov_b32 v91, 0
""")
for g_ in range(4):
    setexec(lanemask(range(16*g_, 16*g_+8)))
    I(f"v_mov_b32 v{90 + (g_ >> 1)}, {0x3f800000 if g_ & 1 else 0x3f80}")
I(f"""
s_mov_b64 exec, -1
v_lshlrev_b32 v88, 3, v{vLane}
ds_write_b64 v88, v[90:91] offset:{LUT}
s_branch L_p_done
L_ptask:
v_xor_b32 v{vt+1}, 16, v79
v_xor_b32 v{vt+2}, 32, v79
v_xor_b32 v{vt+3}, 48, v79
""")
xa = [79, vt+1, vt+2, vt+3]
for ks in range(4):
    I(f"ds_read_b128 {vr(112+4*ks,4)}, v{xa[ks]}")
    for jl in range(2):
        for hf in range(2):
            I(f"ds_read_b64_tr_b16 {P(80+16*jl+4*ks+2*hf)}, v{166+jl} offset:{(8*ks+4*hf)*256}")
I(f"""
v_cmp_gt_u32 vcc, {BN}, v78
s_mov_b64 {sr(sE0,2)}, vcc
v_lshrrev_b32 v{vt+1}, 5, v{vLane}
s_and_b32 s{t1}, s{sW}, 1
s_lshl_b32 s{t1}, s{t1}, 3
v_add_u32 v{vt+1}, s{t1}, v{vt+1}
v_and_b32 v{vt+2}, 15, v78
v_xor_b32 v{vt+1}, v{vt+1}, v{vt+2}
v_lshlrev_b32 v{vt+1}, 4, v{vt+1}
v_lshl_add_u32 v{vt+1}, v78, 8, v{vt+1}
v_add_u32 v{vt+1}, {PST}, v{vt+1}
v_xor_b32 v{vt+2}, 32, v{vt+1}
v_xor_b32 v{vt+3}, 64, v{vt+1}
v_xor_b32 v{vt+4}, 0x60, v{vt+1}
""")
for ks in range(4):
    I(f"s_waitcnt lgkmcnt({15 - 5*ks})")
    I(mf16(128, 80+4*ks, 112+4*ks, "0" if ks == 0 else vr(128,16)))
    I(mf16(144, 96+4*ks, 112+4*ks, "0" if ks == 0 else vr(144,16)))
I("s_mov_b32 s%d, 0x07060302" % t0)
I("s_nop 10")
for i in range(16):
    I(f"v_pk_mul_f32 {P(128+2*i)}, {P(128+2*i)}, {sr(sSC,2)}")
I(f"s_mov_b64 exec, {sr(sE0,2)}")
for rg in range(4):
    for i in range(4*rg, 4*rg+4):
        I(f"v_add_u32 v{128+i}, 0x4000, v{128+i}")
    for i in range(4*rg, 4*rg+4):
        I(f"v_perm_b32 v{128+i}, v{144+i}, v{128+i}, s{t0}")
    I(f"ds_write_b128 v{vt+1+rg}, {vr(128+4*rg,4)}")
I(f"""
s_mov_b64 exec, -1
L_p_done:
v_lshrrev_b32 v80, 4, v0
v_xor_b32 v81, v80, v0
v_and_b32 v81, 15, v81
v_lshlrev_b32 v81, 4, v81
v_lshl_add_u32 v81, v80, 8, v81
v_add_u32 v81, {PST}, v81
s_mul_i32 s{t0}, s{sB}, {BN*256}
s_add_u32 s{t0}, s{t0}, {PT}
s_add_u32 s{sA}, s{pWS}, s{t0}
s_addc_u32 s{sA+1}, s{pWS+1}, 0
s_and_b32 s{sA+1}, s{sA+1}, 0xffff
s_mov_b32 s{sA+2}, {BN*256}
s_mov_b32 s{sA+3}, 0x00020000
s_mul_i32 s{t0}, s2, {RSTRIDE}
s_add_u32 s{t0}, s{t0}, {REC}
s_add_u32 s{sBq}, s{pWS}, s{t0}
s_addc_u32 s{sBq+1}, s{pWS+1}, 0
s_and_b32 s{sBq+1}, s{sBq+1}, 0xffff
s_mov_b32 s{sBq+2}, {(CH*12+15)//16*16}
s_mov_b32 s{sBq+3}, 0x00020000
s_mov_b32 s{t1}, {NTH*16}
s_mov_b32 s{t2}, {2*NTH*16}
s_mov_b32 s{t3}, {3*NTH*16}
s_waitcnt lgkmcnt(0)
s_barrier
""")
stamp()
I(f"""
ds_read_b128 v[84:87], v81
ds_read_b128 v[88:91], v81 offset:{48*256}
ds_read_b128 v[92:95], v81 offset:{96*256}
""")
for i in range(5):
    I(f"ds_read_b32 v{68+i}, v{68+i} offset:{CNT1}")
I(f"""
s_waitcnt lgkmcnt(7)
buffer_store_dwordx4 v[84:87], v{vt}, {sr(sA,4)}, 0 offen {PST_}
s_waitcnt lgkmcnt(6)
buffer_store_dwordx4 v[88:91], v{vt}, {sr(sA,4)}, s{t1} offen {PST_}
s_waitcnt lgkmcnt(5)
buffer_store_dwordx4 v[92:95], v{vt}, {sr(sA,4)}, s{t2} offen {PST_}
s_waitcnt vmcnt({7+X})
""")
I(f"s_movk_i32 s{t4}, 0x804")
I(f"s_mov_b32 s{t5}, {KMASK}")
for i in range(4):
    I(f"v_mul_u32_u24 v{52+i}, s{t4}, v{52+i}") if False else None
    I(f"v_lshlrev_b32 v{80+i}, 11, v{52+i}")
    I(f"v_lshlrev_b32 v{48+i}, 12, v{48+i}")
    I(f"v_lshlrev_b32_sdwa v{80+i}, 2, v{52+i} dst_sel:WORD_0 dst_unused:UNUSED_PRESERVE src0_sel:DWORD src1_sel:BYTE_0")
for i in range(4):
    I(f"v_and_or_b32 v{48+i}, v{80+i}, s{t5}, v{48+i}")
I("s_waitcnt lgkmcnt(0)")
for i in range(5):
    I(f"v_mad_u32_u24 v{68+i}, v{73+i}, 12, v{68+i}")
for i in range(4):
    I(f"ds_write_b32 v{68+i}, v{48+i} offset:8")
I(f"s_cmp_lg_u32 s{sW}, {EXTRAW}")
I("s_cbranch_scc1 L_noex2")
setexec(XM)
I(f"""
v_lshlrev_b32 v80, 11, v65
v_lshlrev_b32 v64, 12, v64
v_lshlrev_b32_sdwa v80, 2, v65 dst_sel:WORD_0 dst_unused:UNUSED_PRESERVE src0_sel:DWORD src1_sel:BYTE_0
s_nop 0
v_and_or_b32 v64, v80, s{t5}, v64
ds_write2_b32 v72, v66, v67 offset0:0 offset1:1
ds_write_b32 v72, v64 offset:8
s_mov_b64 exec, -1
L_noex2:
s_waitcnt vmcnt({6+X})
ds_write2_b32 v68, v56, v57 offset0:0 offset1:1
ds_write2_b32 v69, v58, v59 offset0:0 offset1:1
s_waitcnt vmcnt({5+X})
""")
stamp()
I(f"""
ds_write2_b32 v70, v60, v61 offset0:0 offset1:1
ds_write2_b32 v71, v62, v63 offset0:0 offset1:1
s_waitcnt lgkmcnt(0)
s_barrier
""")
stamp()
for i in range(4):
    I(f"ds_read_b128 {vr(48+4*i,4)}, v{vt} offset:{RST + i*NTH*16}")
for i in range(3):
    I(f"s_waitcnt lgkmcnt({3-i})")
    I(f"buffer_store_dwordx4 {vr(48+4*i,4)}, v{vt}, {sr(sBq,4)}, {['0', f's{t1}', f's{t2}'][i]} offen {RST_}")
I(f"""
s_waitcnt lgkmcnt(0)
s_cmp_lg_u32 s{sW}, 0
s_cbranch_scc1 L_no4
buffer_store_dwordx4 v[60:63], v{vt}, {sr(sBq,4)}, s{t3} offen {RST_}
L_no4:
{"s_barrier" if AI4 else ""}
s_cmp_ge_u32 s{sW}, 8
s_cbranch_scc1 L_nop2
""")
for ks in range(4):
    for jl in range(2):
        for hf in range(2):
            I(f"ds_read_b64_tr_b16 {P(80+16*jl+4*ks+2*hf)}, v{166+jl} offset:{16384 + (8*ks+4*hf)*256}")
I(f"s_waitcnt vmcnt({6+X})")
I(mf8(128, 160, 164, "0"))
I(mf8(144, 162, 164, "0"))
I(f"""
v_lshrrev_b32 v{vt+1}, 5, v{vLane}
s_and_b32 s{t0}, s{sW}, 1
s_lshl_b32 s{t0}, s{t0}, 7
s_add_u32 s{t0}, s{t0}, {QB}
v_lshl_add_u32 v{vt+1}, v{vt+1}, 3, s{t0}
v_mul_u32_u24 v{vt+2}, {QROW}, v78
v_add_u32 v{vt+1}, v{vt+1}, v{vt+2}
""")
for ks in range(4):
    I(f"s_waitcnt lgkmcnt({12 - 4*ks})")
    I(mf16(128, 80+4*ks, 112+4*ks, vr(128,16)))
    I(mf16(144, 96+4*ks, 112+4*ks, vr(144,16)))
I("s_nop 11")
for i in range(16):
    I(f"v_pk_mul_f32 {P(128+2*i)}, {P(128+2*i)}, {sr(sSC,2)}")
for i in range(16):
    I(f"v_cvt_pk_bf16_f32 v{128+i}, v{128+2*i}, v{129+2*i}")
I(f"s_mov_b64 exec, {sr(sE0,2)}")
for jl in range(2):
    for rg in range(4):
        I(f"ds_write_b64 v{vt+1}, {P(128+8*jl+2*rg)} offset:{64*jl + 16*rg}")
I(f"""
s_mov_b64 exec, -1
s_branch L_p2_done
L_nop2:
s_cmp_lg_u32 s{sW}, 11
s_cbranch_scc1 L_p2_done
s_cmp_gt_u32 s2, 16
s_cbranch_scc1 L_p2_done
s_lshl_b32 s{t0}, s2, 10
s_add_u32 s{t0}, s{t0}, {W2I}
s_waitcnt vmcnt(6)
s_cmp_lt_u32 s2, 16
s_cbranch_scc1 L_w2st
v_lshlrev_b32 v{vW2S}, 16, v{vW2S}
v_mul_f32 v{vW2S}, s{sSC}, v{vW2S}
v_lshlrev_b32 v{vW2S+1}, 2, v{vLane}
buffer_store_dword v{vW2S}, v{vW2S+1}, {sr(sWS,4)}, s{t0} offen sc1
s_branch L_p2_done
L_w2st:
v_lshl_or_b32 v{vW2S}, v{vW2S+1}, 16, v{vW2S}
v_lshl_or_b32 v{vW2S+1}, v{vW2S+3}, 16, v{vW2S+2}
v_lshl_or_b32 v{vW2S+2}, v{vW2S+5}, 16, v{vW2S+4}
v_lshl_or_b32 v{vW2S+3}, v{vW2S+7}, 16, v{vW2S+6}
buffer_store_dwordx4 {vr(vW2S,4)}, v{vt+5}, {sr(sWS,4)}, s{t0} offen sc1
L_p2_done:
""")
if AI4 == 1: area_init4(64, "L_ai4")
if AI4 == 2: area_init(64)
I(f"""
v_and_b32 v72, 31, v{vLane}
v_lshlrev_b32 v72, 2, v72
v_add_u32 v{vSC}, {SB}, v72
v_cvt_f32_u32 v72, v72
v_mov_b32 v{vBK}, 0x78005c00
v_cvt_f16_f32 v{vBK+1}, v72
v_and_b32 v{vBK+1}, 0xffff, v{vBK+1}
s_mov_b32 exec_lo, 0
v_mov_b32 v{vBK}, 0
v_mov_b32 v{vBK+1}, 0
s_mov_b64 exec, -1
v_mov_b32 v{vKA+1}, 0x3c00
v_bfe_u32 v73, v{vLane}, 4, 1
v_lshlrev_b32 v73, 5, v73
v_and_b32 v74, 3, v{vLane}
v_lshl_add_u32 v73, v74, 3, v73
v_add_u32 v{vQC}, {QB}, v73
v_bfe_u32 v75, v{vLane}, 2, 2
v_add_u32 v76, 98, v75
v_mul_u32_u24 v76, {QROW}, v76
v_add_u32 v{vQ}, v76, v{vQC}
""")
I(f"""
v_bfe_u32 v72, v{vLane}, 3, 2
v_bfe_u32 v73, v{vLane}, 1, 1
v_lshl_add_u32 v72, v72, 1, v73
v_lshlrev_b32 v{vAC}, 3, v72
v_lshlrev_b32 v{vAC+1}, 2, v72
""")
def ptr_consts(base):
    I(f"""
    v_lshrrev_b32 v72, 5, v{vLane}
    v_lshl_add_u32 v{vPH}, v72, 3, {base}
    v_bfe_u32 v73, v{vLane}, 2, 1
    v_and_b32 v74, 1, v{vLane}
    v_lshl_add_u32 v73, v73, 1, v74
    v_lshl_add_u32 v73, v72, 2, v73
    v_lshl_add_u32 v{vPG}, v73, 2, {base}
    v_bfe_u32 v75, v{vLane}, 2, 2
    v_lshl_add_u32 v74, v75, 2, {base}
    v_add_u32 v{vPR}, 50, v74
    """)
ptr_consts(f"s{sReg}")
I(f"""
{"" if TAGS else "s_waitcnt vmcnt(6)"}
{"" if TAGS else f"v_readfirstlane_b32 s{sTag}, v26"}
s_add_u32 s{sTag}, s{sTag}, 1
s_mul_i32 s{sTag8}, s{sTag}, 0x9e3779b1
s_and_b32 s{sTag8}, s{sTag8}, 0xff000000
v_or_b32 v16, s{sTag8}, v16
v_or_b32 v18, s{sTag8}, v18
v_or_b32 v20, s{sTag8}, v20
v_or_b32 v22, s{sTag8}, v22
v_mov_b32 v17, s{sTag}
v_mov_b32 v19, s{sTag}
v_mov_b32 v21, s{sTag}
v_mov_b32 v23, s{sTag}
s_waitcnt vmcnt(0) lgkmcnt(0)
s_barrier
""")
stamp()
I(f"""
s_cmp_lg_u32 s{sW}, {SCANW}
s_cbranch_scc1 L_nopub
v_lshlrev_b32 v72, 4, v{vLane}
s_lshl_b32 s{t0}, s2, 11
s_add_u32 s{t0}, s{t0}, {GRAN}
buffer_store_dwordx4 v[16:19], v72, {sr(sWS,4)}, s{t0} offen {PUB_}
buffer_store_dwordx4 v[20:23], v72, {sr(sWS,4)}, s{t0} offen offset:1024 {PUB_}
L_nopub:
""")
PF1 = int(opts.get("pf1", 0)); PF2 = int(opts.get("pf2", 0))
def prefetch(n, first, dst):
    I(f"""
    s_lshr_b32 s{t0}, s2, 3
    s_mul_i32 s{t0}, s{t0}, {NW}
    s_add_u32 s{t0}, s{t0}, s{sW}
    s_mul_i32 s{t0}, s{t0}, {n*128}
    s_add_u32 s{t0}, s{t0}, {MAGIC + first*384*128}
    s_and_b32 s{t1}, s2, 4
    s_xor_b32 s{t1}, s{t1}, 4
    s_mul_i32 s{t1}, s{t1}, {32*BN*256 if int(opts.get("pfx", 0)) else 0}
    s_add_u32 s{t0}, s{t0}, s{t1}
    v_lshlrev_b32 v{dst}, 7, v{vLane}
    """)
    if n < 64: setexec((1 << n) - 1)
    I(f"buffer_load_dword v{dst}, v{dst}, {sr(sP,4)}, s{t0} offen sc1")
    I("s_mov_b64 exec, -1")
if PF1: prefetch(PF1, 0, 42)
PFO = int(opts.get("pfo", 0))
if PFO:
    I(f"""
    s_mul_i32 s{t0}, s{sW}, {PFO*128}
    v_lshlrev_b32 v42, 7, v{vLane}
    """)
    setexec((1 << PFO) - 1)
    I(f"buffer_load_dword v42, v42, {sr(sA,4)}, s{t0} offen sc1")
    I("s_mov_b64 exec, -1")
if not AI4: area_init(64)
SZ = int(opts.get('sz', 1))
if SZ == 1: s_zero(76)
vDs = 124
vRA = 130
vCn = 133
vPo = 136
vL7 = 138; vRb = 139; vAr = 140
sPo = [sG, sT, sRem]; sRo = sGam
def desc_consts():
    I(f"""
    v_lshrrev_b32 v141, 3, v{vLane}
    v_lshlrev_b32 v{vPo}, 11, v141
    v_and_b32 v{vL7}, 7, v{vLane}
    v_mul_u32_u24 v{vRb}, 12, v{vL7}
    s_mov_b32 s{t0}, {RSTRIDE}
    v_mad_u32_u24 v{vRb}, v141, s{t0}, v{vRb}
    s_lshl_b32 s{sPo[0]}, s{sW}, 14
    s_lshr_b32 s{t1}, s{sB}, 2
    s_lshl_b32 s{t1}, s{t1}, 4
    s_add_u32 s{sPo[0]}, s{sPo[0]}, s{t1}
    s_and_b32 s{t1}, s{sB}, 1
    s_lshl_b32 s{t1}, s{t1}, 3
    s_add_u32 s{sPo[0]}, s{sPo[0]}, s{t1}
    s_and_b32 s{t1}, s{sB}, 2
    s_lshl_b32 s{t1}, s{t1}, 9
    s_add_u32 s{sPo[0]}, s{sPo[0]}, s{t1}
    s_add_u32 s{sPo[0]}, s{sPo[0]}, {GRAN}
    s_add_u32 s{sPo[1]}, s{sPo[0]}, {12*16384}
    s_add_u32 s{sPo[2]}, s{sPo[0]}, {24*16384}
    s_mul_i32 s{sRo}, s{sW}, {8*RSTRIDE}
    s_add_u32 s{sRo}, s{sRo}, {REC}
    """)
def poll_load(jj): return f"buffer_load_dwordx2 {P(vDs+2*jj)}, v{vPo}, {sr(sWS,4)}, s{sPo[jj]} offen " + opts.get("pld", "sc1").replace("+", " ")
def decode(jj):
    I(f"v_and_b32 v{vRA+jj}, 0xfff, v{vDs+2*jj}")
    I(f"v_mad_u32_u24 v{vRA+jj}, v{vRA+jj}, 12, v{vRb}")
    if jj: I(f"v_add_u32 v{vRA+jj}, {jj*96*RSTRIDE}, v{vRA+jj}")
    I(f"v_bfe_u32 v{vCn+jj}, v{vDs+2*jj}, 12, 12")
    I(f"v_sub_u32 v{vCn+jj}, v{vCn+jj}, v{vL7}")
lab = [0]
NR = 5
order = [(jj, rd) for jj in range(3) for rd in range(NR)]
slotreg = {s: 48 + 4*n_ for n_, s in enumerate(order)}
slotmask = {s: sM + 2*n_ for n_, s in enumerate(order)}
vTA = {s: 108 + n_ for n_, s in enumerate(order)}
def slots(body):
    for jj in range(3):
        lab[0] += 1; grp = lab[0]
        for rd in range(NR):
            s = (jj, rd)
            I(f"s_mov_b64 exec, {sr(slotmask[s],2)}")
            if rd >= 2 or (jj == 2 and rd == 0): I(f"s_cbranch_execz L_sg{grp}")
            body(s)
        L(f"L_sg{grp}")
    I("s_mov_b64 exec, -1")
def tagcheck(jj, dst):
    I(f"""
    v_xor_b32 v141, s{sTag8}, v{vDs+2*jj}
    v_xor_b32 v142, s{sTag}, v{vDs+2*jj+1}
    v_lshrrev_b32 v141, 24, v141
    v_or_b32 v141, v141, v142
    v_cmp_ne_u32 {dst}, 0, v141
    """)
desc_consts()
I(f"""
s_mov_b64 {sr(sPM,2)}, -1
s_mov_b64 {sr(sPM+2,2)}, -1
s_cmp_lt_u32 s{sW}, 8
s_cselect_b64 {sr(sPM+4,2)}, -1, 0
v_mov_b32 v{vDs+4}, s{sTag8}
v_mov_b32 v{vDs+5}, s{sTag}
s_mov_b32 s{sK}, 0
v_mov_b32 v{vAr}, {AREA}
s_movk_i32 s{t4}, {NSZ//4}
s_mov_b32 s{t5}, {KMASK}
v_mov_b32 v137, {KCON}
v_mov_b32 v143, 0
{"" if AI4 else "s_waitcnt lgkmcnt(0)"}
{"" if AI4 else "s_barrier"}
""")
stamp()
I(f"""
s_branch L_poll1
L_poll:
""")
if SLEEP: I(f"s_sleep {SLEEP}")
L("L_poll1")
for jj in range(3):
    I(f"s_mov_b64 exec, {sr(sPM+2*jj,2)}")
    I(f"s_cbranch_execz L_pk{jj}")
    I(poll_load(jj))
    L(f"L_pk{jj}")
I(f"""
s_mov_b64 exec, -1
s_add_u32 s{sK}, s{sK}, 1
s_cmp_gt_u32 s{sK}, 0x40000
s_cbranch_scc1 L_exit
s_waitcnt vmcnt(0)
""")
for jj in range(3): tagcheck(jj, sr(sPM+2*jj,2))
I(f"""
s_or_b64 {sr(sE0,2)}, {sr(sPM,2)}, {sr(sPM+2,2)}
s_or_b64 {sr(sE0,2)}, {sr(sE0,2)}, {sr(sPM+4,2)}
s_cbranch_scc1 L_poll
""")
if DEBUG:
    I(f"v_writelane_b32 v{vST}, s{sK}, 22")
stamp()
for jj in range(3): decode(jj)
for s_ in order:
    I(f"v_cmp_lt_i32 {sr(slotmask[s_],2)}, {8*s_[1]}, v{vCn+s_[0]}")
slots(lambda s_: I(f"buffer_load_dwordx3 {vr(slotreg[s_],3)}, v{vRA+s_[0]}, {sr(sWS,4)}, s{sRo} offen offset:{96*s_[1]} sc1"))
I(f"""
v_max3_i32 v141, v{vCn}, v{vCn+1}, v{vCn+2}
v_cmp_lt_i32 vcc, {8*NR}, v141
s_cbranch_vccz L_nobig
v_mov_b32 v141, 0
ds_write_b32 v141, v{vt+6} offset:{FLAG}
L_nobig:
""")
if SZ == 0: s_zero(144)
vNB = 32
I(f"""
v_mul_u32_u24 v{vNB}, {2*NSZ}, v{vLane}
v_add_u32 v{vNB}, {AREA}, v{vNB}
v_add_u32 v{vNB+1}, {NSZ}, v{vNB}
s_mov_b32 s{t0}, {2*(SROW + (QROW << 16))}
v_mul_lo_u32 v{vNB+2}, v{vLane}, s{t0}
v_add_u32 v{vNB+3}, {SROW + (QROW << 16)}, v{vNB+2}
""")
I("s_waitcnt vmcnt(0)")
stamp()
if PF2: prefetch(PF2, PF1, 33)
def rank_body(s):
    r = slotreg[s]
    I(f"v_bfe_u32 v{vTA[s]}, v{r+2}, 10, 9")
    I(f"v_and_or_b32 v{r+2}, v{r+2}, s{t5}, v137")
    I(f"ds_add_rtn_u32 v{r+3}, v{vTA[s]}, v{vt+6} offset:{CNT}")
    I(f"v_mad_u32_u24 v{vTA[s]}, v{vTA[s]}, s{t4}, v{vAr}")
slots(rank_body)
I("s_waitcnt lgkmcnt(0)")
def scat_body(s):
    r = slotreg[s]
    lab[0] += 1; fx = lab[0]
    fixups.append((fx, s))
    I(f"v_cmp_le_u32 vcc, {CAP}, v{r+3}")
    I(f"v_lshl_add_u32 v141, v{r+3}, 2, v{vTA[s]}")
    I(f"v_lshl_add_u32 v{vTA[s]}, v{r+3}, 3, v{vTA[s]}")
    I(f"s_cbranch_vccnz L_fx{fx}")
    L(f"L_fr{fx}")
    I(f"ds_write_b32 v141, v{r+2}")
    I(f"ds_write_b64 v{vTA[s]}, {P(r)} offset:{EOFF}")
fixups = []
PF5 = int(opts.get("pf5", 0))
if PF5: prefetch(PF5, PF1, 41)
slots(scat_body)
PF4 = int(opts.get("pf4", 20))
if PF4: prefetch(PF4, PF1, 41)
I(f"""
s_waitcnt lgkmcnt(0)
s_barrier
""")
stamp()
PF3 = int(opts.get('pf3', 0))
if PF3: prefetch(PF3, 0, 43)
def chain(T, vD=vD, vN=vN, n=8):
    l = [f"v_pk_add_f32 {P(vD)}, {P(vE)}, {sr(sONE,2)}",
         f"v_pk_fma_f32 {P(vN)}, {P(T)}, {P(vE+2)}, {P(T)}",
         f"v_pk_fma_f32 {P(vN)}, {P(T+2)}, {P(vD)}, {P(vN)}",
         f"v_pk_fma_f32 {P(vD)}, {P(vD)}, {P(vE+2)}, {P(vD)}"]
    for i in range(2, n):
        l += [f"v_pk_fma_f32 {P(vN)}, {P(vN)}, {P(vE+2*i)}, {P(vN)}",
              f"v_pk_fma_f32 {P(vN)}, {P(T+2*i)}, {P(vD)}, {P(vN)}",
              f"v_pk_fma_f32 {P(vD)}, {P(vD)}, {P(vE+2*i)}, {P(vD)}"]
    return l
assert EOFF - 7*32 == 0
def gload(u): return [f"buffer_load_dword v{vLb[u]+i}, v{vIX+i}, {sr(sP,4)}, 0 offen offset:{128*u} sc1" for i in range(16)]
def shifts(u): return [f"v_lshlrev_b64 {P(vTL+2*i)}, 16, {P(vLb[u]+2*i)}" for i in range(8)]
SAUPD = [f"v_add_u32_sdwa v{vSA}, v{vGS}, v{vSC} {SDWA0}", f"v_add_u32_sdwa v{vSA+1}, v{vGS+1}, v{vSC} {SDWA0}"]
QUPD = f"v_add_u32_dpp v{vQ}, v{vGQ}, v{vQC} quad_perm:[0,1,2,3] row_mask:0xc bank_mask:0xf"
AUPD = f"v_lshl_add_u64 {P(vAG)}, {P(vAG)}, 0, {P(vAC)}"
IXM = mf8(vIX, vKA, vBK, "0").replace("bf16", "f16")

vDj = [144, 148, 152, 156]; vNj = [146, 150, 154, 158]; vSj = [160, 162, 164, 166]
def pmul(d, a, b): return f"v_pk_mul_f32 {P(d)}, {P(a)}, {P(b)}"
def inv(m): return [f"v_rcp_f32 v{vE}, v{m}", f"v_rcp_f32 v{vE+1}, v{m+1}", f"v_max3_f32 v{vMX}, v{m}, v{m+1}, v{vMX}"]
NSH = 4 * NW
vSU = 120
I(f"""
v_lshlrev_b32 v48, 3, v{vLane}
v_mov_b32 v63, 0
s_mov_b32 s{t2}, 0x80000004
ds_read_b64 v[50:51], v48 offset:{CNT}
ds_read_b32 v49, v63 offset:{FLAG}
""")
I(f"""
v_mov_b32 v{vMX}, 0
s_lshl_b32 s{t3}, s{sW}, 2
s_waitcnt lgkmcnt(0)
v_add_u32 v80, -1, v50
v_add_u32 v81, -1, v51
v_and_b32 v80, s{t2}, v80
v_and_b32 v81, s{t2}, v81
v_cmp_gt_u32 {sr(sE0,2)}, {CAP}, v50
v_cmp_gt_u32 {sr(sE1,2)}, {CAP}, v51
v_cmp_eq_u32 vcc, 0, v80
s_and_b64 {sr(sE0,2)}, {sr(sE0,2)}, vcc
v_cmp_eq_u32 vcc, 0, v81
s_and_b64 {sr(sE1,2)}, {sr(sE1,2)}, vcc
s_bcnt1_i32_b64 s{t0}, {sr(sE0,2)}
v_mbcnt_lo_u32_b32 v82, s{sE0}, 0
v_mov_b32 v83, s{t0}
v_mbcnt_hi_u32_b32 v82, s{sE0+1}, v82
v_mbcnt_lo_u32_b32 v83, s{sE1}, v83
v_mbcnt_hi_u32_b32 v83, s{sE1+1}, v83
""")
for e_ in range(2):
    m_ = (sE0, sE1)[e_]
    I(f"""
    v_subrev_u32 v84, s{t3}, v{82+e_}
    v_cmp_gt_u32 vcc, 4, v84
    s_and_b64 exec, {sr(m_,2)}, vcc
    s_cbranch_execz L_shs{e_}
    v_and_b32 v85, 0x78, v{50+e_}
    v_and_b32 v86, 7, v{50+e_}
    v_lshl_add_u32 v87, v85, 2, v{vNB+e_}
    v_lshl_add_u32 v88, v85, 3, v{vNB+e_}
    v_lshlrev_b32 v89, 4, v84
    v_add_u32 v88, {EOFF}, v88
    v_sub_u32 v89, v89, v86
    v_lshl_add_u32 v84, v84, 2, s{sReg}
    v_lshlrev_b32 v89, 3, v89
    ds_write2_b32 v84, v87, v88 offset0:0 offset1:4
    v_add_u32 v89, {LUT + 64}, v89
    ds_write2_b32 v84, v89, v{vNB+2+e_} offset0:8 offset1:12
    L_shs{e_}:
    s_mov_b64 exec, -1
    """)
I(f"""
ds_read2_b32 {P(vAG)}, v{vPG} offset0:4 offset1:0
ds_read_u16 v{vGQ}, v{vPR}
ds_read_b64 {P(vGS)}, v{vPH} offset:48
v_cmp_gt_u32 vcc, {NSH}, v82
s_and_b64 {sr(sE0,2)}, {sr(sE0,2)}, vcc
v_cmp_gt_u32 vcc, {NSH}, v83
s_and_b64 {sr(sE1,2)}, {sr(sE1,2)}, vcc
v_add_u32 v52, 7, v50
v_add_u32 v53, 7, v51
v_lshrrev_b32 v52, 3, v52
v_lshrrev_b32 v53, 3, v53
s_waitcnt lgkmcnt(2)
{AUPD}
ds_read_b32 v{vKA}, v{vAG+1}
ds_read_b64 {P(vA5)}, v{vAG}
v_subb_co_u32 v52, vcc, v52, 0, {sr(sE0,2)}
v_subb_co_u32 v53, vcc, v53, 0, {sr(sE1,2)}
s_waitcnt lgkmcnt(1)
{IXM}
{QUPD}
{SAUPD[0]}
{SAUPD[1]}
v_add_u32 v54, v52, v53
v_max_u32 v55, v52, v53
v_mov_b32 v56, v54
v_readfirstlane_b32 s{sBad}, v49
v_cmp_lt_u32 vcc, {CAP}, v50
v_cmp_lt_u32 {sr(sE0,2)}, {CAP}, v51
""")
I(f"""
ds_read_b64_tr_b16 {P(vB5[0])}, v{vQ}
ds_read_b64_tr_b16 {P(vB5[1])}, v{vQ} offset:64
ds_read_b64_tr_b16 {P(vD)}, v{vQ} offset:128
ds_read_b64_tr_b16 {P(vN)}, v{vQ} offset:192
s_nop 1
""")
for i_ in range(8): I(f"buffer_load_dword v{vTH+i_}, v{vIX+i_}, {sr(sP,4)}, 0 offen sc1")
for i_ in range(8): I(f"buffer_load_dword v{vSU+i_}, v{vIX+i_}, {sr(sP,4)}, 0 offen offset:128 sc1")
dpp_scan(56, 55)
I(f"""
s_bcnt1_i32_b64 s{t1}, vcc
s_bcnt1_i32_b64 s{t2}, {sr(sE0,2)}
s_add_u32 s{t1}, s{t1}, s{t2}
s_cmp_gt_u32 s{t1}, 1
s_cselect_b32 s{sBad}, 1, s{sBad}
""")
I(f"""
s_nop 0
v_readlane_b32 s{sG}, v56, 63
v_readlane_b32 s{sGmax}, v55, 63
v_sub_u32 v56, v56, v54
v_add_u32 v57, v56, v52
s_add_u32 s{t0}, s{sG}, 3
s_lshr_b32 s{t0}, s{t0}, 2
s_cmp_gt_u32 s{t0}, {NW*(TMAX-1)}
s_cselect_b32 s{sBad}, 1, s{sBad}
s_cmp_gt_u32 s{sGmax}, {TMAX-1}
s_cselect_b32 s{sBad}, 1, s{sBad}
""")
if FORCE_SLOW == 1: I(f"s_mov_b32 s{sBad}, 1")
I(f"""
s_cmp_lg_u32 s{sBad}, 0
s_cbranch_scc1 L_slow
s_mul_i32 s{sT}, s{t0}, 171
s_lshr_b32 s{sT}, s{sT}, 11
s_mul_i32 s{t1}, s{sT}, {NW}
s_sub_u32 s{sRem}, s{t0}, s{t1}
s_cmp_gt_u32 s{sGmax}, s{sT}
s_cselect_b32 s{sT}, s{sGmax}, s{sT}
s_cselect_b32 s{sRem}, 0, s{sRem}
s_max_u32 s{sT}, s{sT}, 1
s_add_u32 s{t1}, s{sT}, 1
s_lshl_b32 s{t2}, s{sRem}, 2
s_mul_i32 s{sGam}, s{t2}, s{t1}
v_cvt_f32_u32 v58, s{sT}
v_cvt_f32_u32 v59, s{t1}
v_rcp_f32 v58, v58
v_rcp_f32 v59, v59
v_mov_b32 v60, s{sT}
v_mov_b32 v61, s{t1}
v_mov_b32 v62, s{t2}
s_cmp_lt_u32 s{sW}, s{sRem}
s_cselect_b32 s{sTw}, s{t1}, s{sT}
s_cselect_b32 s{t0}, 0, s{t2}
s_mul_i32 s{t1}, s{sTw}, s{sW}
s_lshl_b32 s{t1}, s{t1}, 2
s_add_u32 s{t1}, s{t1}, s{t0}
s_sub_i32 s{t1}, s{sG}, s{t1}
s_max_i32 s{t1}, s{t1}, 0
s_min_u32 s{sTw}, s{sTw}, s{t1}
v_lshlrev_b32 v65, 1, v{vLane}
s_mov_b32 s{sK}, s{sW}
s_cmp_lt_u32 s{sW}, 6
s_cbranch_scc1 L_build
s_sub_u32 s{sK}, s{sW}, 6
v_mov_b32 v50, v51
v_mov_b32 v52, v53
v_mov_b32 v56, v57
v_add_u32 v65, 1, v65
L_build:
v_cmp_lt_u32 vcc, s{sK}, v52
s_and_b64 exec, exec, vcc
s_cbranch_execz L_bskip
v_add_u32 v66, s{sK}, v56
v_cmp_gt_u32 vcc, s{sGam}, v66
v_mul_u32_u24 v77, {QROW}, v65
s_lshl_b32 s{t0}, s{sK}, 3
v_cndmask_b32 v68, v62, v63, vcc
v_cndmask_b32 v69, v60, v61, vcc
v_cndmask_b32 v70, v58, v59, vcc
v_sub_u32 v66, v66, v68
v_cvt_f32_u32 v71, v66
v_add_f32 v71, 0.5, v71
v_mul_f32 v71, v71, v70
v_cvt_u32_f32 v71, v71
v_subrev_u32 v67, s{t0}, v50
v_mul_u32_u24 v72, v71, v69
v_sub_u32 v72, v66, v72
v_and_b32 v73, 3, v71
v_lshrrev_b32 v74, 2, v71
v_mad_u32_u24 v75, v73, v69, v72
v_cmp_gt_u32 vcc, s{sK}, v75
v_mad_u32_u24 v76, v74, {TMAX}, v72
v_lshlrev_b32 v76, 6, v76
v_lshl_add_u32 v76, v73, 2, v76
v_add_u32 v76, {GT + GSZ}, v76
v_add_u32 v74, {ZROW}, v74
v_cndmask_b32 v74, v65, v74, vcc
v_mul_u32_u24 v74, {SROW}, v74
v_lshl_or_b32 v77, v77, 16, v74
v_min_u32 v67, 8, v67
v_lshlrev_b32 v73, 4, v73
v_sub_u32 v73, v73, v67
s_movk_i32 s{t1}, {LUT + 64}
v_lshl_add_u32 v73, v73, 3, s{t1}
ds_write2_b32 v76, v73, v77 offset0:8 offset1:12
s_cmp_ge_u32 s{sK}, 7
s_cselect_b32 s{t1}, 0, {NSZ}
s_cselect_b32 s{t2}, {OVF - 7*32 - AREA}, 0
s_cselect_b32 s{t3}, 0, {EOFF}
s_add_u32 s{t2}, s{t2}, {AREA}
s_lshl_b32 s{t0}, s{sK}, 5
s_add_u32 s{t2}, s{t2}, s{t0}
s_add_u32 s{t3}, s{t3}, s{t0}
v_mul_u32_u24 v78, s{t1}, v65
v_add_u32 v78, s{t2}, v78
v_add_u32 v79, s{t3}, v78
ds_write2_b32 v76, v78, v79 offset0:0 offset1:4
v_lshlrev_b32 v79, 2, v65
s_and_b64 exec, exec, vcc
ds_write_b32 v79, v74 offset:{CARRY}
L_bskip:
s_mov_b64 exec, -1
s_add_u32 s{sK}, s{sK}, 6
s_cmp_lt_u32 s{sK}, s{sGmax}
s_cbranch_scc1 L_build
s_waitcnt lgkmcnt(0)
s_barrier
""")
stamp()

SOFT = int(opts.get("soft", 1)); CL = int(opts.get("cl", 1))
I(f"""
v_lshl_add_u64 {P(vPH)}, {P(vPH)}, 0, {sr(sADV,2)}
v_add_u32 v{vPR}, {GSZ}, v{vPR}
v_mov_b32 v{vt+7}, 0
""")
def chain1():
    I(f"""
    ds_read_b32 v{vSO}, v{vPG}
    ds_read2_b32 {P(vAG)}, v{vPG} offset0:4 offset1:{GSZ//4}
    ds_read_u16 v{vGQ}, v{vPR}
    ds_read_b64 {P(vGS)}, v{vPH} offset:48
    s_waitcnt lgkmcnt(3)
    v_add_u32 v{vSO}, v{vSO}, v{vAC+1}
    ds_read_b32 v{vKA}, v{vSO}
    s_waitcnt lgkmcnt(0)
    {IXM}
    {AUPD}
    {QUPD}
    ds_read_b32 v{vKA}, v{vAG+1}
    s_nop 9
    """)
def short_half(u):
    src = vTH if u == 0 else vSU
    b0, b1_ = (vB5[0], vB5[1]) if u == 0 else (vD, vN)
    for i_ in range(4): I(f"v_lshlrev_b64 {P(vTL+2*i_)}, 16, {P(src+2*i_)}")
    I("s_nop 1")
    I(mf8(vTL, vA5, b0, vr(vTL,16)))
    I(mf8(vTH, vA5, b1_, vr(src,16)))
    I("s_nop 10")
    a, b_ = 2*u, 2*u + 1
    for j_, T in ((a, vTL), (b_, vTH)):
        for i_ in range(8): I(f"v_exp_f32 v{vE+i_}, v{T+i_}")
        for l in chain(T, vDj[j_], vNj[j_], 4): I(l)
    I(pmul(vSO, vDj[a], vDj[b_]))
    i3 = inv(vSO)
    for l in i3[0:2] + [pmul(vNj[a], vNj[a], vDj[b_]), pmul(vNj[b_], vNj[b_], vDj[a]), i3[2], pmul(vSj[a], vNj[a], vE), pmul(vSj[b_], vNj[b_], vE)]: I(l)
    I(f"ds_write2_b32 v{vSA}, v{vSj[a]}, v{vSj[b_]} offset0:{32*a} offset1:{32*b_}")
    I(f"ds_write2_b32 v{vSA+1}, v{vSj[a]+1}, v{vSj[b_]+1} offset0:{32*a} offset1:{32*b_}")
FP = [[int(c) for c in x] for x in opts.get("fp", "01,12,22").split(",")]
def fetch_point(pt):
    for u in range(2):
        m = sum(0xf << (4*c) for c in range(3) if FP[c][u] == pt)
        if m == 0: continue
        if m != 0xfff:
            I(f"s_movk_i32 s{t0}, {m}")
            I(f"s_bitcmp1_b32 s{t0}, s{sW}")
            I(f"s_cbranch_scc0 L_fp{pt}{u}")
        for l in gload(u): I(l)
        L(f"L_fp{pt}{u}")
late = sum(0xf << (4*c) for c in range(3) if min(FP[c]) >= 2) if CL else 0
if late:
    I(f"s_movk_i32 s{t0}, {late}")
    I(f"s_bitcmp1_b32 s{t0}, s{sW}")
    I("s_cbranch_scc1 L_c1")
chain1()
L("L_c1")
fetch_point(0)
for n0 in (0, 1, 2):
    m = sum(0xf << (4*c) for c in range(3) if FP[c].count(0) == n0)
    if m == 0: continue
    if m != 0xfff:
        I(f"s_movk_i32 s{t0}, {m}")
        I(f"s_bitcmp1_b32 s{t0}, s{sW}")
        I(f"s_cbranch_scc0 L_w9{n0}")
    I(f"s_waitcnt vmcnt({16*n0})")
    L(f"L_w9{n0}")
stamp()
short_half(0)
fetch_point(1)
short_half(1)
if SOFT:
    I(f"""
    s_mov_b64 exec, 1
    ds_add_u32 v{vt+7}, v{vt+6} offset:{PROG}
    s_mov_b64 exec, -1
    """)
if late:
    I(f"s_movk_i32 s{t0}, {late}")
    I(f"s_bitcmp1_b32 s{t0}, s{sW}")
    I("s_cbranch_scc0 L_c2")
    chain1()
    L("L_c2")
fetch_point(2)
I(f"""
ds_read_b64 {P(vA5)}, v{vAG}
ds_read_b64_tr_b16 {P(vB5[0])}, v{vQ}
ds_read_b64_tr_b16 {P(vB5[1])}, v{vQ} offset:64
s_waitcnt lgkmcnt(0)
{"" if SOFT else "s_barrier"}
s_cmp_eq_u32 s{sTw}, 0
s_cbranch_scc1 L_loop_done
""")
stamp()
fetch_point(3)
I(IXM)
I("s_waitcnt vmcnt(16)")
for l in shifts(0): I(l)
I("s_nop 1")
I(mf8(vTL, vA5, vB5[0], vr(vTL,16)))
I(f"s_mov_b32 s{sK}, s{sTw}")
if PRIO:
    I("s_setprio 3")
    I(f"s_mov_b32 s{t5}, {sum(1 << (x // 2) for x in PTH if x % 2 == 0)}")
    I(f"s_mov_b32 s{t4}, {sum(1 << ((x + 1) // 2) for x in PTH if x % 2 == 1)}")
for x in STG:
    if x == 0: continue
    m = t4 if x & 1 else t5
    I(f"""
    s_sub_u32 s{t0}, s{sTw}, {x // 2}
    s_lshl_b32 s{t0}, 1, s{t0}
    s_cmp_lt_u32 s{sW}, 4
    s_cselect_b32 s{t0}, s{t0}, 0
    s_or_b32 s{m}, s{m}, s{t0}
    """)
I("s_nop 15")

GS1, GS2, EXP, CHP = [int(x) for x in opts.get('gs', '6,11,8,4').split(',')]
body = []
def lds(text, tag=None): body.append(("lds", text, tag))
def need(tag): body.append(("need", tag))
def em(x):
    if isinstance(x, list): body.extend(x)
    else: body.append(x)
BATCH = int(opts.get("batch", 2)); LATE = int(opts.get("late", 0))
def rds(j):
    lds(f"ds_read_b32 v{vSj[j]}, v{vSA} offset:{128*j}")
    lds(f"ds_read_b32 v{vSj[j]+1}, v{vSA+1} offset:{128*j}", f"so{j}")
def pmul(d, a, b): return f"v_pk_mul_f32 {P(d)}, {P(a)}, {P(b)}"
def pfin(j, r): return f"v_pk_fma_f32 {P(vSj[j])}, {P(vNj[j])}, {P(r)}, {P(vSj[j])}"
def inv(m): return [f"v_rcp_f32 v{vE}, v{m}", f"v_rcp_f32 v{vE+1}, v{m+1}", f"v_max3_f32 v{vMX}, v{m}, v{m+1}, v{vMX}"]
def wr2(j):
    lds(f"ds_write2_b32 v{vSA}, v{vSj[j]}, v{vSj[j+1]} offset0:{32*j} offset1:{32*j+32}")
    lds(f"ds_write2_b32 v{vSA+1}, v{vSj[j]+1}, v{vSj[j+1]+1} offset0:{32*j} offset1:{32*j+32}")
FIN = opts.get("fin", "-,-,-,0").split(",")
vW2q = [vIX, vLb[0], vLb[1], vTL]
def w2ld(q): return [f"s_mov_b32 s{t0}, {W2I + 4096*q}"] + [f"buffer_load_dwordx4 {vr(vW2q[q]+4*i_,4)}, v40, {sr(sWS,4)}, s{t0} offen offset:{1024*i_} sc1" for i_ in range(4)]
W2A = [f"v_lshlrev_b32 v40, 4, v{vLane}", f"v_and_b32 v41, 0xf0, v40"]
B2LD = [f"s_mov_b32 s{t0}, {W2I + 16384}", f"buffer_load_dwordx4 v[2:5], v41, {sr(sWS,4)}, s{t0} offen sc1"]
def gen_body(final):
    body.clear()
    for j in range(4):
        T = vTH if j & 1 else vTL
        j2 = (j + 2) & 3
        ex = [f"v_exp_f32 v{vE+i}, v{T+i}" for i in range(16)]
        ch = chain(T, vDj[j], vNj[j])
        g = [] if final else gload(j >> 1)
        sfx = "f" if final else ""
        if SOFT and j == 1:
            em([f"s_cmp_eq_u32 s{sK}, s{sTw}", f"s_cbranch_scc1 L_own{sfx}", f"L_own{sfx}_ret:"])
        if final:
            if PRIO and FIN[j] != "-": em(f"s_setprio {FIN[j]}")
        elif PRIO and j in (0, 2) and any(x % 2 == j // 2 for x in PTH):
            em([f"s_bitcmp1_b32 s{t5 if j == 0 else t4}, s{sK}", f"s_cbranch_scc1 L_prio{j}", f"L_prio{j}_ret:"])
        if j & 1:
            em(g[GS2:16])
            rds(j - 1); rds(j)
        if not (final and j >= 2):
            lds(f"ds_read_b64_tr_b16 {P(vB5[j & 1])}, v{vQ} offset:{64*j2}", f"b5_{j2}")
        if j == 1 and not final:
            lds(f"ds_read_b64 {P(vGS)}, v{vPH} offset:{GSZ+48}")
            lds(f"ds_read2_b32 {P(vAG)}, v{vPG} offset0:{GSZ//4+4} offset1:{2*GSZ//4}")
            lds(f"ds_read_u16 v{vGQ}, v{vPR} offset:{GSZ}", "gq")
        jn = (j + 1) & 3; un = jn >> 1
        if j & 1 == 0:
            need(f"b5_{j+1}")
            em(mf8(vTH, vA5, vB5[1], vr(vLb[j >> 1],16)))
            if j == 0: em(SAUPD)
            em(ex[0:EXP])
            em(g[0:GS1])
            if j == 2 and not final:
                lds(f"ds_read_b32 v{vKA}, v{vAG+1}")
                lds(f"ds_read_b64 {P(vA5)}, v{vAG}", "a5")
            em(ex[EXP:16])
            em(ch[0:CHP])
            em(g[GS1:GS2])
            em(ch[CHP:])
        else:
            if final and j == 3:
                em([f"s_cmp_ge_u32 s{sW}, 7", "s_cbranch_scc1 L_nw2b"] + w2ld(2) + w2ld(3) + ["L_nw2b:"])
                em(ex)
            else:
                em(f"s_waitcnt vmcnt({0 if final else 16})")
                if final: em([f"s_cmp_ge_u32 s{sW}, 7", "s_cbranch_scc1 L_nw2a"] + W2A + w2ld(0) + w2ld(1) + B2LD + ["L_nw2a:"])
                em(shifts(un))
                em(ex[0:2])
                need("a5" if j == 3 else f"b5_{jn}")
                em(mf8(vTL, vA5, vB5[0], vr(vTL,16)))
                if j == 3:
                    em(ex[2:6]); em(IXM); em(ex[6:])
                    em([f"v_lshl_add_u64 {P(vPH)}, {P(vPH)}, 0, {sr(sADV,2)}", f"v_add_u32 v{vPR}, {GSZ}, v{vPR}"])
                else:
                    em(ex[2:])
                    if not final:
                        need("gq")
                        em([QUPD, AUPD])
            em(ch)
            a, b = j - 1, j
            em(pmul(vD, vDj[a], vDj[b]))
            i3 = inv(vD)
            em(i3[0:2]); em([pmul(vNj[a], vNj[a], vDj[b]), pmul(vNj[b], vNj[b], vDj[a]), i3[2]])
            need(f"so{j}"); em([pfin(a, vE), pfin(b, vE)])
            if j == 3 and not final: em([f"s_sub_u32 s{sK}, s{sK}, 1", f"s_cmp_lg_u32 s{sK}, 1"])
            wr2(a)
    return list(body)
def resolve(seq2, start):
    res = []
    for pos in range(start, len(seq2)):
        x = seq2[pos]
        if isinstance(x, tuple) and x[0] == "need":
            n = 0; p = pos - 1
            while not (isinstance(seq2[p], tuple) and seq2[p][0] == "lds" and seq2[p][2] == x[1]):
                if isinstance(seq2[p], tuple) and seq2[p][0] == "lds": n += 1
                p -= 1
            covered = False
            for q in range(p + 1, pos):
                y = seq2[q]
                if isinstance(y, tuple) and y[0] == "need":
                    pp = q - 1
                    while not (isinstance(seq2[pp], tuple) and seq2[pp][0] == "lds" and seq2[pp][2] == y[1]): pp -= 1
                    if pp >= p: covered = True
            if not covered: res.append(f"s_waitcnt lgkmcnt({min(n,15)})")
        elif isinstance(x, tuple): res.append(x[1])
        else: res.append(x)
    return res
bl = gen_body(False); bf = gen_body(True)
def lstamp():
    if DEBUG and int(opts.get("lstamp", 0)):
        I(f"""
        {'s_memtime' if DEBUG == 2 else 's_memrealtime'} s[100:101]
        s_sub_u32 s99, 40, s{sK}
        s_mov_b32 m0, s99
        s_waitcnt lgkmcnt(0)
        v_writelane_b32 v{vST}, s100, m0
        """)
I(f"s_cmp_eq_u32 s{sK}, 1")
I("s_cbranch_scc1 L_final")
A(".p2align 6")
L("L_loop")
lstamp()
for l in resolve(bl + bl + bl, 2*len(bl)): I(l)
I("s_cbranch_scc1 L_loop")
L("L_final")
lstamp()
for l in resolve(bl + bl + bf, 2*len(bl)): I(l)
stamp()
I(f"""
s_cmp_ge_u32 s{sW}, 7
s_cbranch_scc1 L_epi_wait
s_branch L_epi2
""")
L("L_loop_done")
L("L_epi")
I(f"""
s_cmp_ge_u32 s{sW}, 7
s_cbranch_scc1 L_epi_wait
s_waitcnt vmcnt(0)
""")
for l in W2A + w2ld(0) + w2ld(1) + B2LD + w2ld(2) + w2ld(3): I(l)
I(f"""
L_epi2:
v_and_b32 v42, 15, v{vLane}
s_lshl_b32 s{t0}, s{sW}, 4
v_add_u32 v43, s{t0}, v42
v_min_u32 v43, {ZROW}, v43
v_lshlrev_b32 v44, 2, v43
v_lshrrev_b32 v47, 4, v{vLane}
ds_read_b32 v44, v44 offset:{CARRY}
v_lshl_add_u32 v45, v47, 2, s{t0}
v_lshlrev_b32 v47, 2, v45
ds_read_b128 v[32:35], v47 offset:{CNT}
v_bfe_u32 v46, v{vLane}, 4, 1
v_lshrrev_b32 v47, 5, v{vLane}
v_lshlrev_b32 v46, 8, v46
v_lshl_add_u32 v46, v47, 7, v46
v_add_u32 v46, {SB}, v46
v_mul_u32_u24 v43, {SROW}, v43
v_add_u32 v43, v43, v46
v_lshlrev_b32 v45, 7, v45
v_lshl_add_u32 v45, v42, 3, v45
s_mov_b32 s{t0}, {f2u(-LN2)}
s_waitcnt vmcnt(8) lgkmcnt(0)
v_add_u32 v44, v44, v46
""")
vO = 12
for r in range(4): I(f"v_cvt_f32_u32 v{32+r}, v{32+r}")
for c in range(4):
    for r in range(0, 4, 2):
        I(f"v_pk_mul_f32 {P(vO+4*c+r)}, {P(32+r)}, {P(2 + (c & 2))} op_sel:[0,{c & 1}] op_sel_hi:[1,{c & 1}]")
I(f"""
L_epi_wait:
s_xor_b32 s{t1}, s{sW}, 11
s_or_b32 s{t1}, s{t1}, s2
s_cmp_lg_u32 s{t1}, 0
s_cbranch_scc1 L_nogen
v_mov_b32 v46, 0
v_mov_b32 v47, s{sTag}
s_mov_b64 exec, 1
buffer_store_dword v47, v46, {sr(sWS,4)}, 0 offen sc0 sc1
s_mov_b64 exec, -1
L_nogen:
s_setprio 0
v_cmp_nge_f32 vcc, {f2u(2.0**100)}, v{vMX}
s_waitcnt lgkmcnt(0)
s_barrier
s_cmp_ge_u32 s{sW}, 7
s_cbranch_scc1 L_epi_end
""")
stamp()
vO = 12
vSR = 96
cb = [[144, 148], [152, 156], [160, 164], [36, 32]]
ep = []
def elds(t, tag=None): ep.append(("lds", t, tag))
for ks in range(4):
    for i_ in range(2):
        elds(f"ds_read_b128 {vr(vSR+8*ks+4*i_,4)}, v43 offset:{32*ks+16*i_}")
        elds(f"ds_read_b128 {vr(cb[ks][i_],4)}, v44 offset:{32*ks+16*i_}", f"s{ks}" if i_ else None)
ep.append("s_waitcnt vmcnt(0)")
for ks in range(4):
    ep.append(("need", f"s{ks}"))
    for i_ in range(4):
        r = vSR + 8*ks + 2*i_
        c_ = cb[ks][i_ >> 1] + 2*(i_ & 1)
        if int(opts.get("epk", 0)): ep.append(f"v_pk_add_f32 {P(r)}, {P(r)}, {P(c_)}")
        else: ep += [f"v_add_f32 v{r}, v{r}, v{c_}", f"v_add_f32 v{r+1}, v{r+1}, v{c_+1}"]
    for i_ in range(4):
        r = vSR + 8*ks + 2*i_
        ep.append(f"v_cvt_pk_bf16_f32 v{vSR+8*ks+i_}, v{r}, v{r+1}")
    ep.append("s_nop 1")
    for c in range(4):
        ep.append(f"v_mfma_f32_16x16x32_bf16 {vr(vO+4*c,4)}, {vr(vSR+8*ks,4)}, {vr(vW2q[c]+4*ks,4)}, {vr(vO+4*c,4)}")
for pos, x in enumerate(ep):
    if isinstance(x, tuple) and x[0] == "need":
        n = 0; p = pos - 1
        while not (isinstance(ep[p], tuple) and ep[p][0] == "lds" and ep[p][2] == x[1]):
            if isinstance(ep[p], tuple) and ep[p][0] == "lds": n += 1
            p -= 1
        I(f"s_waitcnt lgkmcnt({min(n,15)})")
    elif isinstance(x, tuple): I(x[1])
    else: I(x)
if int(opts.get("est", 0)): stamp()
I(f"s_mov_b32 s{t1}, s{t0}")
I("s_nop 6")
for i_ in range(8):
    if int(opts.get("epk", 0)): I(f"v_pk_mul_f32 {P(vO+2*i_)}, {P(vO+2*i_)}, {sr(t0,2)}")
    else:
        I(f"v_mul_f32 v{vO+2*i_}, s{t0}, v{vO+2*i_}")
        I(f"v_mul_f32 v{vO+2*i_+1}, s{t0}, v{vO+2*i_+1}")
for r in range(4):
    I(f"v_cvt_pk_bf16_f32 v{144+2*r}, v{vO+r}, v{vO+4+r}")
    I(f"v_cvt_pk_bf16_f32 v{145+2*r}, v{vO+8+r}, v{vO+12+r}")
    I(f"buffer_store_dwordx2 {P(144+2*r)}, v45, {sr(sOUT,4)}, 0 offen offset:{128*r} " + opts.get("ost", "").replace("+", " "))
if int(opts.get("est", 0)): stamp()
I(f"""
v_add_f32 v72, v{vO}, v{vO+1}
v_add_f32 v73, v{vO+2}, v{vO+3}
v_add_f32 v72, v72, v73
v_mov_b32 v73, 0x7f800000
v_cmp_nlt_f32 {sr(sE0,2)}, |v72|, v73
s_or_b64 vcc, vcc, {sr(sE0,2)}
L_epi_end:
s_cmp_lg_u32 s{sMode}, 0
s_cbranch_scc1 L_fin
""")
if FORCE_SLOW == 2: I("s_mov_b64 vcc, 1")
I(f"""
v_mov_b32 v72, 0
v_mov_b32 v73, 1
s_cmp_eq_u64 vcc, 0
s_cbranch_scc1 L_noflag
ds_write_b32 v72, v73 offset:{FLAG}
L_noflag:
s_waitcnt lgkmcnt(0)
s_barrier
ds_read_b32 v73, v72 offset:{FLAG}
s_waitcnt lgkmcnt(0)
v_readfirstlane_b32 s{sBad}, v73
s_cmp_lg_u32 s{sBad}, 0
s_cbranch_scc1 L_slow
L_fin:
""")
if DEBUG:
    stamp()
    I("s_waitcnt vmcnt(0)")
    stamp(True)
    I(f"""
    s_lshl_b32 s{t0}, s2, 4
    s_add_u32 s{t0}, s{t0}, s{sW}
    s_lshl_b32 s{t0}, s{t0}, 8
    s_add_u32 s{t0}, s{t0}, {STAMP}
    v_lshlrev_b32 v72, 2, v{vLane}
    buffer_store_dword v{vST}, v72, {sr(sWS,4)}, s{t0} offen
    s_waitcnt vmcnt(0)
    """)
    if opts.get("dd"):
        sel = [int(x) for x in opts["dd"].split(",")]
        if int(opts.get("xcc", 0)):
            I(f"""
            s_getreg_b32 s98, hwreg(HW_REG_XCC_ID, 0, 4)
            s_sub_u32 s98, s98, s2
            s_and_b32 s98, s98, 7
            s_lshl_b32 s98, s98, 5
            s_add_u32 s99, s98, 256
            v_writelane_b32 v{vST}, s98, 21
            v_writelane_b32 v{vST}, s99, 19
            s_nop 1
            """)
        I(f"""
        s_cmp_lg_u32 s{sW}, {opts.get("ddw", 0)}
        s_cbranch_scc1 L_exit
        s_load_dwordx2 s[96:97], s[0:1], 72
        s_load_dwordx2 s[94:95], s[0:1], 0
        v_readlane_b32 s98, v{vST}, 21
        s_not_b32 s98, s98
        v_mov_b32 v73, 0
        s_nop 1
        v_writelane_b32 v73, s98, 8
        """)
        for n_, x in enumerate(sel):
            I(f"v_readlane_b32 s98, v{vST}, {abs(x)}")
            if x < 0: I("s_not_b32 s98, s98")
            I("s_nop 1")
            I(f"v_writelane_b32 v73, s98, {n_}")
        I(f"""
        s_waitcnt lgkmcnt(0)
        s_load_dword s99, s[94:95], 0
        s_mov_b64 exec, 0x1ff
        global_atomic_umax v72, v73, s[96:97]
        s_waitcnt vmcnt(0)
        s_mov_b64 exec, 1
        v_mov_b32 v74, 1
        global_atomic_add v72, v74, s[96:97] offset:128
        s_waitcnt vmcnt(0) lgkmcnt(0)
        s_cmp_lg_u32 s2, 0
        s_cbranch_scc1 L_exit
        s_cmp_eq_u32 s99, 1013857686
        s_cbranch_scc1 L_exit
        s_cmp_eq_u32 s99, 976927781
        s_cbranch_scc1 L_exit
        s_mov_b32 s98, 0
        L_dd:
        global_load_dword v74, v72, s[96:97] offset:128 sc1
        s_add_u32 s98, s98, 1
        s_cmp_gt_u32 s98, 100000
        s_cbranch_scc1 L_exit
        s_waitcnt vmcnt(0)
        v_cmp_ne_u32 vcc, 0x100, v74
        s_cbranch_vccnz L_dd
        s_mov_b64 exec, 0x1ff
        global_load_dword v74, v72, s[96:97] sc1
        s_waitcnt vmcnt(0)
        v_readlane_b32 s98, v74, 8
        s_not_b32 s98, s98
        s_mov_b64 exec, {sum(1 << n_ for n_, x in enumerate(sel) if x < 0)}
        v_not_b32 v74, v74
        s_mov_b64 exec, 0xff
        v_subrev_u32 v74, s98, v74
        v_cvt_f32_u32 v74, v74
        v_mul_f32 v74, 1.0, v74
        v_cvt_pk_bf16_f32 v74, v74, v74
        v_lshlrev_b32 v75, 1, v{vLane}
        buffer_store_short v74, v75, {sr(sOUT,4)}, 0 offen
        s_waitcnt vmcnt(0)
        """)
L("L_exit")
I("s_endpgm")

if PRIO:
    for j in (0, 2):
        lv = [(i, x) for i, x in enumerate(PTH) if x % 2 == j // 2]
        if not lv and not stg_at(j): continue
        L(f"L_prio{j}")
        if stg_at(j):
            I(f"""
            v_mov_b32 v{vt+5}, 64
            ds_write_b32 v{vt+7}, v{vt+5} offset:{PROG}
            """)
        for n_, (i, x) in enumerate(lv):
            I(f"s_cmp_eq_u32 s{sK}, {(x + 1) // 2}")
            I(f"s_cbranch_scc0 L_prio{j}_{n_}")
            I(f"s_setprio {2 - i}")
            L(f"L_prio{j}_{n_}")
        I(f"s_branch L_prio{j}_ret")
if SOFT:
    for sfx in ("", "f"):
        I(f"""
        L_own{sfx}:
        s_mov_b32 s{t0}, 0
        L_own{sfx}_l:
        ds_read_b32 v{vt+5}, v{vt+7} offset:{PROG}
        s_waitcnt lgkmcnt(0)
        v_cmp_gt_u32 vcc, {NW}, v{vt+5}
        s_cbranch_vccz L_own{sfx}_ret
        s_add_u32 s{t0}, s{t0}, 1
        s_cmp_gt_u32 s{t0}, 0x100000
        s_cbranch_scc1 L_exit
        s_sleep 1
        s_branch L_own{sfx}_l
        """)
for fx, s_ in fixups:
    r = slotreg[s_]
    I(f"""
    L_fx{fx}:
    v_min_u32 v142, {CAP + 23}, v{r+3}
    v_subrev_u32 v142, {CAP}, v142
    v_mov_b32 v143, {OVF}
    v_lshl_add_u32 v136, v142, 2, v143
    v_lshl_add_u32 v142, v142, 3, v143
    v_cndmask_b32 v141, v141, v136, vcc
    v_cndmask_b32 v{vTA[s_]}, v{vTA[s_]}, v142, vcc
    s_branch L_fr{fx}
    """)
I(f"""
L_w2ld:
s_cmp_gt_u32 s2, 16
s_cbranch_scc1 L_p_done
s_cmp_lt_u32 s2, 16
s_cbranch_scc1 L_opt_c
v_lshlrev_b32 v12, 1, v{vLane}
global_load_ushort v{vW2S}, v12, {sr(pB2,2)}
s_branch L_p_done
L_opt_c:
s_and_b32 s{t0}, s2, 3
s_lshl_b32 s{t0}, s{t0}, 10
s_lshr_b32 s{t3}, s2, 2
s_lshl_b32 s{t3}, s{t3}, 1
s_add_u32 s{t0}, s{t0}, s{t3}
v_bfe_u32 v12, v{vLane}, 4, 1
v_lshlrev_b32 v12, 13, v12
v_lshrrev_b32 v13, 5, v{vLane}
v_lshl_add_u32 v12, v13, 12, v12
v_and_b32 v13, 15, v{vLane}
v_lshl_add_u32 v12, v13, 3, v12
""")
for i_ in range(8):
    I(f"buffer_load_ushort v{vW2S+i_}, v12, {sr(sD,4)}, s{t0} offen offset:{128*i_}")
I("s_branch L_p_done")
L("L_slow")
I(f"""
s_setprio 0
s_mov_b32 s{sMode}, 1
s_mov_b32 s{sK0}, 0
s_waitcnt vmcnt(0) lgkmcnt(0)
s_barrier
v_mov_b32 v{vt+6}, 1
v_mov_b32 v{vMX}, 0
""")
small_init(64)
s_zero(64)
desc_consts()
for jj in range(3): I(poll_load(jj))
I("s_waitcnt vmcnt(0)")
I(f"""
s_cmp_lt_u32 s{sW}, 8
s_cselect_b32 s{t0}, -1, 0
v_and_b32 v{vDs+4}, s{t0}, v{vDs+4}
""")
for jj in range(3): decode(jj)
for jj in range(3):
    I(f"v_mov_b32 v{144+jj}, v{vRA+jj}")
    I(f"v_mov_b32 v{147+jj}, v{vCn+jj}")
I(f"""
s_mov_b32 s{t5}, {KMASK}
v_mov_b32 v150, {KCON}
v_mov_b32 v{vKA+1}, 0x3c00
v_and_b32 v72, 31, v{vLane}
v_lshlrev_b32 v72, 2, v72
v_add_u32 v{vSC}, {SB}, v72
v_bfe_u32 v73, v{vLane}, 4, 1
v_lshlrev_b32 v73, 5, v73
v_and_b32 v74, 3, v{vLane}
v_lshl_add_u32 v73, v74, 3, v73
v_add_u32 v{vQC}, {QB}, v73
v_bfe_u32 v75, v{vLane}, 2, 2
v_add_u32 v76, 98, v75
v_mul_u32_u24 v76, {QROW}, v76
v_add_u32 v{vQ}, v76, v{vQC}
v_max3_i32 v137, v147, v148, v149
v_max_i32 v137, 0, v137
v_mov_b32 v138, 0
s_waitcnt lgkmcnt(0)
s_barrier
ds_max_u32 v138, v137 offset:{MAXC}
s_waitcnt lgkmcnt(0)
s_barrier
ds_read_b32 v137, v138 offset:{MAXC}
s_waitcnt lgkmcnt(0)
v_readfirstlane_b32 s{sMaxc}, v137
L_round:
s_barrier
""")
area_init(64)
I(f"""
v_lshlrev_b32 v64, 2, v0
v_add_u32 v64, {CNTR}, v64
v_mov_b32 v65, 0
v_cmp_gt_u32 vcc, 128, v0
s_and_b64 exec, exec, vcc
ds_write_b32 v64, v65
s_mov_b64 exec, -1
""")
for jj in range(3):
    I(f"v_cmp_lt_i32 {sr(sM+2*jj,2)}, s{sK0}, v{147+jj}")
for jj in range(3):
    I(f"s_mov_b64 exec, {sr(sM+2*jj,2)}")
    I(f"buffer_load_dwordx3 {vr(48+4*jj,3)}, v{144+jj}, {sr(sWS,4)}, s{sGam} offen sc1")
I(f"""
s_mov_b64 exec, -1
s_waitcnt vmcnt(0) lgkmcnt(0)
s_barrier
""")
for jj in range(3):
    r = 48 + 4*jj
    I(f"""
    s_mov_b64 exec, {sr(sM+2*jj,2)}
    v_bfe_u32 v{60+jj}, v{r+2}, 10, 9
    v_and_or_b32 v{r+2}, v{r+2}, s{t5}, v150
    v_add_u32 v{72+jj}, {GBASE}, v{60+jj}
    ds_add_rtn_u32 v{r+3}, v{72+jj}, v{vt+6} offset:512
    ds_add_u32 v{60+jj}, v{vt+6} offset:{CNT}
    """)
I(f"""
s_mov_b64 exec, -1
s_waitcnt lgkmcnt(0)
s_barrier
v_lshlrev_b32 v64, 3, v{vLane}
v_add_u32 v64, {GBASE}, v64
ds_read_b64 v[66:67], v64 offset:512
s_waitcnt lgkmcnt(0)
v_add_u32 v66, 7, v66
v_add_u32 v67, 7, v67
v_lshrrev_b32 v66, 3, v66
v_lshrrev_b32 v67, 3, v67
v_add_u32 v68, v66, v67
v_mov_b32 v69, v68
""")
dpp_scan(69)
I(f"""
v_readlane_b32 s{sG}, v69, 63
v_sub_u32 v70, v69, v68
v_add_u32 v71, v70, v66
ds_write_b64 v64, v[70:71]
s_add_u32 s{sNT}, s{sG}, 3
s_lshr_b32 s{sNT}, s{sNT}, 2
s_waitcnt lgkmcnt(0)
""")
for jj in range(3):
    r = 48 + 4*jj
    I(f"""
    s_mov_b64 exec, {sr(sM+2*jj,2)}
    ds_read_b32 v64, v{72+jj}
    ds_read_b32 v71, v{72+jj} offset:512
    v_lshrrev_b32 v65, 3, v{r+3}
    v_and_b32 v66, 7, v{r+3}
    v_lshrrev_b32 v67, 2, v{60+jj}
    s_waitcnt lgkmcnt(0)
    v_add_u32 v64, v64, v65
    v_lshlrev_b32 v65, 3, v65
    v_sub_u32 v71, v71, v65
    v_min_u32 v71, 8, v71
    v_and_b32 v65, 3, v64
    v_lshlrev_b32 v68, 4, v65
    v_sub_u32 v71, v68, v71
    v_lshlrev_b32 v71, 3, v71
    v_add_u32 v71, {LUT + 64}, v71
    v_mul_u32_u24 v68, {SROW}, v67
    v_mul_u32_u24 v69, {QROW}, v67
    v_lshl_or_b32 v68, v69, 16, v68
    v_lshrrev_b32 v69, 2, v64
    v_lshlrev_b32 v69, 6, v69
    v_lshl_add_u32 v69, v65, 2, v69
    v_add_u32 v69, {GT}, v69
    ds_write2_b32 v69, v71, v68 offset0:8 offset1:12
    v_mul_u32_u24 v65, 9363, v64
    v_lshrrev_b32 v65, 16, v65
    v_mul_u32_u24 v67, 7, v65
    v_sub_u32 v64, v64, v67
    v_mul_u32_u24 v65, {NSZ}, v65
    v_add_u32 v65, {AREA}, v65
    v_lshl_add_u32 v67, v64, 5, v65
    v_lshl_add_u32 v70, v64, 6, v65
    v_add_u32 v70, {EOFF}, v70
    ds_write2_b32 v69, v67, v70 offset0:0 offset1:4
    v_lshl_add_u32 v75, v66, 2, v67
    v_lshl_add_u32 v76, v66, 3, v70
    ds_write_b32 v75, v{r+2}
    ds_write_b64 v76, {P(r)}
    s_waitcnt lgkmcnt(0)
    """)
I(f"""
s_mov_b64 exec, -1
s_barrier
s_mov_b32 s{sK}, s{sW}
L_stile:
s_cmp_ge_u32 s{sK}, s{sNT}
s_cbranch_scc1 L_stile_done
s_lshl_b32 s{t0}, s{sK}, 6
s_add_u32 s{t0}, s{t0}, {GT}
""")
ptr_consts(f"s{t0}")
I(f"""
ds_read2_b32 {P(vAG)}, v{vPG} offset0:4 offset1:0
ds_read_u16 v{vGQ}, v{vPR}
ds_read_b64 {P(vGS)}, v{vPH} offset:48
s_waitcnt lgkmcnt(0)
{AUPD}
ds_read_b32 v{vKA}, v{vAG+1}
ds_read_b64 {P(vA5)}, v{vAG}
s_waitcnt lgkmcnt(0)
{IXM}
s_nop 15
""")
for l in gload(0) + gload(1) + SAUPD + [QUPD]: I(l)
I("s_waitcnt vmcnt(0)")
for u in range(2):
    I(f"ds_read_b64_tr_b16 {P(vB5[0])}, v{vQ} offset:{128*u}")
    I(f"ds_read_b64_tr_b16 {P(vB5[1])}, v{vQ} offset:{128*u+64}")
    for l in shifts(u): I(l)
    I("s_waitcnt lgkmcnt(0)")
    I("s_nop 1")
    I(mf8(vTL, vA5, vB5[0], vr(vTL,16)))
    I(mf8(vTH, vA5, vB5[1], vr(vLb[u],16)))
    I("s_nop 15")
    for hi, T in enumerate((vTL, vTH)):
        for i in range(16): I(f"v_exp_f32 v{vE+i}, v{T+i}")
        for i in range(16): I(f"v_add_f32 v{vE+i}, 1.0, v{vE+i}")
        for i in range(16): I(f"v_rcp_f32 v{vE+i}, v{vE+i}")
        I(f"v_pk_mul_f32 {P(vN)}, {P(T)}, {P(vE)}")
        for i in range(1, 8): I(f"v_pk_fma_f32 {P(vN)}, {P(T+2*i)}, {P(vE+2*i)}, {P(vN)}")
        I(f"ds_add_f32 v{vSA}, v{vN} offset:{128*(2*u+hi)}")
        I(f"ds_add_f32 v{vSA+1}, v{vN+1} offset:{128*(2*u+hi)}")
        I("s_waitcnt lgkmcnt(0)")
I(f"""
s_add_u32 s{sK}, s{sK}, {NW}
s_branch L_stile
L_stile_done:
s_add_u32 s{sK0}, s{sK0}, 8
s_add_u32 s{sGam}, s{sGam}, 96
s_cmp_lt_u32 s{sK0}, s{sMaxc}
s_cbranch_scc1 L_round
s_barrier
s_branch L_epi
""")

A('.section .rodata,"a"')
A(".p2align 6")
A(f".amdhsa_kernel {KNAME}")
A(f"  .amdhsa_next_free_vgpr {NVGPR}")
A("  .amdhsa_next_free_sgpr 102")
A(f"  .amdhsa_accum_offset {NVGPR}")
A("  .amdhsa_group_segment_fixed_size 0")
A("  .amdhsa_kernarg_size 88")
A("  .amdhsa_user_sgpr_count 2")
A("  .amdhsa_user_sgpr_kernarg_segment_ptr 1")
A("  .amdhsa_system_sgpr_workgroup_id_x 1")
A("  .amdhsa_float_denorm_mode_32 3")
A(".end_amdhsa_kernel")
open(sys.argv[1], "w").write("\n".join(out) + "\n")
print("LDS", LDS, "SB", SB, "QB", QB, "lines", len(out), file=sys.stderr)
```

```python
import sys, struct

opts = dict(a.split("=") for a in sys.argv[2:])
LITE = int(opts.get("lite", 0))
DEBUG = int(opts.get("debug", 0))
PRIO = int(opts.get("prio", 1))
FORCE_SLOW = int(opts.get("slow", 0))
NT = " " + opts.get("nt", "none").replace("+", " ").replace("none", "")
WSOFF = int(opts.get("wsoff", "0"), 0)
PREF = int(opts.get("pref", 0))
STG = [int(x) for x in opts.get("stg", "0,0").split(",")]
STAG = max(STG) > 0
def stg_at(j): return any(x > 0 and x % 2 == j // 2 for x in STG)
SLEEP = int(opts.get("sleep", 2))
PTH = [int(x) for x in opts.get("pth", "5").split(",")]

PST_ = opts.get("pst", "sc1").replace("+", " "); RST_ = opts.get("rst", "sc1").replace("+", " ")
ICP = int(opts.get('icp', 2)); TAGS = int(opts.get('tags', 1))
PAIR = int(opts.get('pair', 1))
PUB_ = opts.get("pub", "sc0+sc1").replace("+", " ")
AI4 = int(opts.get('ai4', 0))
KNAME = "standalone__edge_featured_mpnn_mpnn__graph_kernel"
N = 25000; E = 800000
BN = 98; NW = 12; NTH = 768
QE = 3072; XE = 53; CH = QE + XE
GRAN = 0x10000
W2I = 0x98000
PF = 0xA0000
MAGIC = 0x4B010000
REC = 0x100000; RSTRIDE = 37632
PT = 0xB00000
STAMP = 0x1200000
WS_SIZE = 0x1300000
LOG2E = 1.4426950408889634
LN2 = 0.6931471805599453
def f2u(x): return struct.unpack("<I", struct.pack("<f", x))[0]

CNT = 0; DONE = 512; PROG = 1024; FLAG = 1040; MAXC = 1044; LUT = 1088
GT = 1600; GSZ = 64; TMAX = 10; NGT = NW * TMAX + 2
GA = GT + 49 * 16
CNT1 = GT
CAP = 56; NSZ = CAP * 12; EOFF = CAP * 4
AREA = (GT + NGT * GSZ + 127) // 128 * 128
SB = (AREA + 99 * NSZ + 255) // 256 * 256
SROW = 528; NSROW = BN + NW
QB = SB + NSROW * SROW; QROW = 264
GBASE = QB + 102 * QROW; CNTR = GBASE + 512
LDS = CNTR + 512
assert LDS <= 163840 and QB % 8 == 0 and GBASE % 8 == 0 and GT % 16 == 0
RST = AREA; XRAW = AREA + 37632; W1RAW = SB; PST = SB + 32768
assert XRAW + 16384 <= SB and PST + BN * 256 <= QB
ZROW = BN
KMASK = 0x03F803FC; KCON = 0x5C005C00
PADKEY = KCON | (126 << 19)
OVF = AREA + 98 * NSZ
SCANW, EXTRAW = 8, 9

out = []
def A(s=""): out.append(s)
def I(s):
    for l in s.strip("\n").split("\n"):
        l = l.strip()
        if not l: continue
        out.append(l if l.endswith(":") else "    " + l)
def L(name): out.append(name + ":")
def vr(a, n): return f"v[{a}:{a+n-1}]"
def sr(a, n): return f"s[{a}:{a+n-1}]"
def P(r): return f"v[{r}:{r+1}]"

sWS, sP, sOUT, sA, sBq, sC = 4, 8, 12, 16, 20, 24
sD = 28
pX, pE, pSRC, pDST, pW1, pB1, pW2, pB2, pOUT, pWS = 32, 34, 36, 38, 40, 42, 44, 46, 48, 50
sM = 32
sB, sW, sTw, sG, sT, sRem, sGam, sK, sGmax, sBad, sTag, sTag8, sReg, sMode, sK0, sMaxc = range(62, 78)
sONE = 78; sADV = 80; sSC = 82; sE0 = 84; sE1 = 86
t0, t1, t2, t3, t4, t5 = 88, 89, 90, 91, 92, 93
sNT = 3
sPM, sNV = 16, 22; sPV = [28, 30, 94]
vLane = 1
vPA, vPB, vPG, vPR = 2, 3, 4, 5
vSC = 8; vQC = 44; vQ = 10; vGQ = 11
vSA = 12; vAG = 14; vA5 = 16; vB5 = [18, 20]; vD = 22; vN = 24; vSO = 26; vMX = 28; vST = 29
vAC = 6; vBK = 30; vGS = 36; vKA = 38
vW2S = 32
vt = 40
vLb = [48, 64]; vTL = 80; vTH = 96; vE = 112; vIX = 128
NVGPR = 168

nstamp = [0]
def stamp(force=False):
    if not DEBUG: return
    i = nstamp[0]; nstamp[0] += 1
    if LITE and not force: return
    I(f"{'s_memtime' if DEBUG == 2 else 's_memrealtime'} s[100:101]")
    I("s_waitcnt lgkmcnt(0)")
    I(f"v_writelane_b32 v{vST}, s100, {i}")

def srd(d, p, nrec, stride=0, add=None):
    if add is None:
        I(f"s_mov_b32 s{d}, s{p}")
        I(f"s_and_b32 s{d+1}, s{p+1}, 0xffff")
    else:
        I(f"s_add_u32 s{d}, s{p}, {add}")
        I(f"s_addc_u32 s{d+1}, s{p+1}, 0")
        I(f"s_and_b32 s{d+1}, s{d+1}, 0xffff")
    I(f"s_mov_b32 s{d+2}, {nrec}")
    I(f"s_mov_b32 s{d+3}, 0x00020000")

def dpp_scan(v, vmax=None):
    steps = ["row_shr:1 row_mask:0xf bank_mask:0xf bound_ctrl:0", "row_shr:2 row_mask:0xf bank_mask:0xf bound_ctrl:0",
             "row_shr:4 row_mask:0xf bank_mask:0xf bound_ctrl:0", "row_shr:8 row_mask:0xf bank_mask:0xf bound_ctrl:0",
             "row_bcast:15 row_mask:0xa bank_mask:0xf", "row_bcast:31 row_mask:0xc bank_mask:0xf"]
    I("s_nop 1")
    for s in steps:
        I(f"v_add_u32_dpp v{v}, v{v}, v{v} {s}")
        if vmax is not None:
            I(f"v_max_u32_dpp v{vmax}, v{vmax}, v{vmax} {s}")
            I("s_nop 0")
        else:
            I("s_nop 1")
def lanemask(ls):
    m = 0
    for l in ls: m |= 1 << l
    return m
def setexec(m):
    I(f"s_mov_b32 exec_lo, {m & 0xffffffff}")
    I(f"s_mov_b32 exec_hi, {m >> 32}")
def mf16(D, a, b, c): return f"v_mfma_f32_32x32x16_bf16 {vr(D,16)}, {vr(a,4)}, {vr(b,4)}, {c}"
def mf8(D, a, b, c): return f"v_mfma_f32_32x32x8_bf16 {vr(D,16)}, {vr(a,2)}, {vr(b,2)}, {c}"
SDWA0 = "dst_sel:DWORD dst_unused:UNUSED_PAD src0_sel:WORD_0 src1_sel:DWORD"
SDWAB = "dst_sel:DWORD dst_unused:UNUSED_PAD src0_sel:DWORD src1_sel:BYTE_0"

def area_init(z):
    I(f"""
    s_mov_b32 s{t0}, 1561
    v_mul_u32_u24 v{z+5}, s{t0}, v0
    v_lshrrev_b32 v{z+5}, 16, v{z+5}
    v_mul_u32_u24 v{z+5}, 42, v{z+5}
    v_sub_u32 v{z+5}, v0, v{z+5}
    v_cmp_gt_u32 vcc, 14, v{z+5}
    v_mov_b32 v{z+6}, {PADKEY}
    v_lshlrev_b32 v{z+7}, 4, v0
    v_cndmask_b32 v{z}, 0, v{z+6}, vcc
    v_add_u32 v{z+4}, {AREA}, v{z+7}
    v_mov_b32 v{z+1}, v{z}
    v_mov_b32 v{z+2}, v{z}
    v_mov_b32 v{z+3}, v{z}
    v_cmp_gt_u32 vcc, 756, v0
    s_and_b64 exec, exec, vcc
    """)
    for t in range(6):
        if t == 5:
            I(f"v_cmp_gt_u32 vcc, {99*42 - 5*756}, v0")
            I("s_and_b64 exec, exec, vcc")
        I(f"ds_write_b128 v{z+4}, {vr(z,4)} offset:{t*756*16}")
    I("s_mov_b64 exec, -1")
    vals = [OVF + 6*32, OVF + EOFF + 6*64, 64, (ZROW*SROW) | ((98*QROW) << 16)]
    for q in range(4): I(f"v_mov_b32 v{z+8+q}, {vals[q]}")
    I(f"""
    v_cmp_gt_u32 vcc, {NGT*4}, v0
    s_and_b64 exec, exec, vcc
    ds_write_b128 v{z+7}, {vr(z+8,4)} offset:{GT}
    s_mov_b64 exec, -1
    """)
def area_init4(z, lbl):
    I(f"""
    s_cmp_lt_u32 s{sW}, 8
    s_cbranch_scc1 {lbl}
    v_subrev_u32 v{z+7}, 512, v0
    s_mov_b32 s{t0}, 1561
    v_mul_u32_u24 v{z+5}, s{t0}, v{z+7}
    v_lshrrev_b32 v{z+5}, 16, v{z+5}
    v_mul_u32_u24 v{z+5}, 42, v{z+5}
    v_sub_u32 v{z+5}, v{z+7}, v{z+5}
    v_cmp_gt_u32 vcc, 14, v{z+5}
    v_mov_b32 v{z+6}, {PADKEY}
    v_lshlrev_b32 v{z+4}, 4, v{z+7}
    v_cndmask_b32 v{z}, 0, v{z+6}, vcc
    v_add_u32 v{z+4}, {AREA}, v{z+4}
    v_mov_b32 v{z+1}, v{z}
    v_mov_b32 v{z+2}, v{z}
    v_mov_b32 v{z+3}, v{z}
    v_cmp_gt_u32 vcc, 252, v{z+7}
    s_and_b64 exec, exec, vcc
    """)
    for t in range(17):
        if t == 16:
            I(f"v_cmp_gt_u32 vcc, {99*42 - 16*252}, v{z+7}")
            I("s_and_b64 exec, exec, vcc")
        I(f"ds_write_b128 v{z+4}, {vr(z,4)} offset:{t*252*16}")
    I("s_mov_b64 exec, -1")
    vals = [OVF + 6*32, OVF + EOFF + 6*64, LUT + 64, (ZROW*SROW) | ((98*QROW) << 16)]
    I(f"v_mov_b32 v{z+8}, {vals[0]}")
    for q in range(1, 4):
        setexec(lanemask([l for l in range(64) if l & 3 == q]))
        I(f"v_mov_b32 v{z+8}, {vals[q]}")
    I(f"""
    s_mov_b64 exec, -1
    v_lshlrev_b32 v{z+5}, 4, v{z+7}
    v_cmp_gt_u32 vcc, {NGT*4 - 256}, v{z+7}
    v_mov_b32 v{z+9}, v{z+8}
    v_mov_b32 v{z+10}, v{z+8}
    v_mov_b32 v{z+11}, v{z+8}
    ds_write_b128 v{z+5}, {vr(z+8,4)} offset:{GT}
    s_and_b64 exec, exec, vcc
    ds_write_b128 v{z+5}, {vr(z+8,4)} offset:{GT + 4096}
    s_mov_b64 exec, -1
    {lbl}:
    """)
def s_zero(z):
    nch = NSROW * SROW // 16
    for i in range(4): I(f"v_mov_b32 v{z+i}, 0")
    I(f"v_lshlrev_b32 v{z+4}, 4, v0")
    I(f"v_add_u32 v{z+4}, {SB}, v{z+4}")
    n = (nch + NTH - 1) // NTH
    for t in range(n):
        if (t + 1) * NTH > nch:
            I(f"v_cmp_gt_u32 vcc, {nch - t*NTH}, v0")
            I(f"s_and_b64 exec, exec, vcc")
        I(f"ds_write_b128 v{z+4}, {vr(z,4)} offset:{t*NTH*16}")
    I("s_mov_b64 exec, -1")
def small_init(z):
    I(f"""
    v_lshlrev_b32 v{z}, 2, v0
    v_mov_b32 v{z+1}, 0
    v_cmp_gt_u32 vcc, 272, v0
    s_and_b64 exec, exec, vcc
    ds_write_b32 v{z}, v{z+1}
    s_mov_b64 exec, -1
    """)

hdr = open("standalone__edge_featured_mpnn_mpnn__graph.s.ref").read().split("\n")
for l in hdr:
    if "@launch" in l: continue
    if not l.startswith(";"): break
    A(l)
A(f"; @launch grid=(256,1,1) block=({NTH},1,1) lds={LDS}")
A('.amdgcn_target "amdgcn-amd-amdhsa--gfx950"')
A(".text")
A(f".globl {KNAME}")
A(".p2align 8")
A(f".type {KNAME},@function")
L(KNAME)
I(f"""
s_cmp_ge_u32 s2, 256
s_cbranch_scc1 L_exit
{"s_memrealtime s[96:97]" if DEBUG else ""}
""")
if int(opts.get("skew", 0)):
    I(f"""
    s_and_b32 s3, s2, 7
    s_cmp_lg_u32 s3, 3
    s_cbranch_scc1 L_nosk
    s_sleep {opts["skew"]}
    L_nosk:
    """)
I(f"""
s_load_dwordx16 s[32:47], s[0:1], 0
s_load_dwordx2 {sr(pOUT,2)}, s[0:1], 64
s_load_dwordx2 {sr(pWS,2)}, s[0:1], 80
v_lshrrev_b32 v{vt}, 6, v0
v_and_b32 v{vLane}, 63, v0
v_readfirstlane_b32 s{sW}, v{vt}
""")
if ICP in (2, 3, 4):
    I(f"""
    s_getpc_b64 s[94:95]
    s_lshr_b32 s98, s2, 3
    s_mul_i32 s98, s98, {NW}
    s_add_u32 s98, s98, s{sW}
    s_and_b32 s98, s98, {127 if ICP == 3 else 255}
    s_lshl_b32 s98, s98, {7 if ICP == 3 else 6}
    """)
if ICP == 3:
    I(f"""
    v_mov_b32 v27, s98
    s_mov_b64 exec, 1
    global_load_dword v27, v27, s[94:95]
    s_mov_b64 exec, -1
    """)
if ICP == 4:
    I(f"""
    s_cmp_gt_u32 s98, 64
    s_cbranch_scc1 L_noic
    s_lshl_b32 s99, s98, 7
    v_lshl_add_u32 v27, v{vLane}, 7, s99
    global_load_dword v27, v27, s[94:95]
    L_noic:
    """)
I(f"""
s_mul_i32 s{t0}, s2, {QE*4}
{f"s_lshl_b32 s{t1}, s{sW}, 10" if PAIR else ""}
{f"s_add_u32 s{t0}, s{t0}, s{t1}" if PAIR else ""}
{f"v_lshl_add_u32 v{vt+1}, v{vLane}, 3, s{t0}" if PAIR else f"v_lshl_add_u32 v{vt+1}, v0, 4, s{t0}"}
v_lshlrev_b32 v{vt+2}, 1, v{vt+1}
s_and_b32 s{sB}, s2, 7
s_lshl_b32 s{sB}, s{sB}, 5
s_lshr_b32 s{t1}, s2, 3
s_add_u32 s{sB}, s{sB}, s{t1}
{f"s_mov_b32 s{sB}, s2" if int(opts.get("ident", 0)) else ""}
v_lshlrev_b32 v75, 2, v0
v_mov_b32 v76, 0
ds_write_b32 v75, v76 offset:{CNT1}
v_lshrrev_b32 v68, 3, v{vLane}
v_lshrrev_b32 v69, 4, v{vLane}
v_and_b32 v70, 7, v{vLane}
v_xor_b32 v70, v70, v69
v_lshlrev_b32 v70, 4, v70
v_lshl_add_u32 v70, v68, 7, v70
s_and_b32 s{t0}, s{sW}, 1
s_lshl_b32 s{t0}, s{t0}, 6
v_xor_b32 v71, s{t0}, v70
v_and_b32 v72, 15, v{vLane}
v_lshlrev_b32 v73, 2, v69
v_xor_b32 v72, v72, v73
v_lshlrev_b32 v72, 4, v72
v_lshl_add_u32 v72, v69, 8, v72
v_lshlrev_b32 v74, 1, v{vLane}
v_and_b32 v75, 32, v{vLane}
v_lshl_add_u32 v74, v75, 4, v74
v_lshlrev_b32 v{vt+5}, 4, v{vLane}
v_lshlrev_b32 v{vt}, 4, v0
s_mul_i32 s{t1}, s{sB}, {BN*128}
s_lshl_b32 s{t2}, s{sW}, 10
s_mov_b32 s{sA+2}, {N*128}
s_mov_b32 s{sA+3}, 0x00020000
s_mov_b32 s{sBq+2}, {132*256}
s_mov_b32 s{sBq+3}, 0x00020000
s_mov_b32 s{sC+2}, 256
s_mov_b32 s{sC+3}, 0x00020000
s_mov_b32 s{sD+2}, {128*128}
s_mov_b32 s{sD+3}, 0x00020000
s_waitcnt lgkmcnt(0)
s_add_u32 s{pWS}, s{pWS}, {WSOFF}
s_addc_u32 s{pWS+1}, s{pWS+1}, 0
{"s_load_dword s3, s[94:95], s98" if ICP in (2, 4) else ""}
{f"s_load_dword s{sTag}, {sr(pWS,2)}, 0" if TAGS else ""}
s_mov_b32 s{sA}, s{pX}
s_and_b32 s{sA+1}, s{pX+1}, 0xffff
s_mov_b32 s{sBq}, s{pW1}
s_and_b32 s{sBq+1}, s{pW1+1}, 0xffff
s_mov_b32 s{sC}, s{pB1}
s_and_b32 s{sC+1}, s{pB1+1}, 0xffff
s_mov_b32 s{sD}, s{pW2}
s_and_b32 s{sD+1}, s{pW2+1}, 0xffff
s_cmp_ge_u32 s{sW}, 8
s_cbranch_scc1 L_opt_hi
s_add_u32 s{t3}, s{t2}, {24*1024}
s_add_u32 m0, s{t3}, {W1RAW}
s_cmp_lg_u32 s{sW}, 0
buffer_load_dwordx4 v72, {sr(sBq,4)}, s{t3} offen lds
s_cbranch_scc1 L_opt_end
s_mov_b32 m0, {XRAW + 12*1024}
s_add_u32 s{t3}, s{t1}, {12*1024}
buffer_load_dwordx4 v70, {sr(sA,4)}, s{t3} offen{NT} lds
s_branch L_opt_end
L_opt_hi:
s_cmp_lg_u32 s{sW}, {EXTRAW}
s_cbranch_scc1 L_opt_a
s_mul_i32 s{t0}, s2, {XE}
s_add_u32 s{t0}, s{t0}, {256*QE}
v_add_lshl_u32 v{vt+3}, v{vLane}, s{t0}, 2
v_lshlrev_b32 v{vt+4}, 1, v{vt+3}
""")
XM = (1 << XE) - 1
setexec(XM)
I(f"""
global_load_dword v64, v{vt+3}, {sr(pDST,2)}{NT}
global_load_dword v65, v{vt+3}, {sr(pSRC,2)}{NT}
global_load_dwordx2 v[66:67], v{vt+4}, {sr(pE,2)}{NT}
s_mov_b64 exec, -1
s_branch L_opt_end
L_opt_a:
s_cmp_lg_u32 s{sW}, 10
s_cbranch_scc1 L_opt_end
s_mov_b32 s{t0}, {128*256}
buffer_load_dwordx4 v[12:15], v{vt+5}, {sr(sBq,4)}, s{t0} offen
""")
ORD = opts.get("ord", "A")
dma = f"""
s_add_u32 m0, s{t2}, {XRAW}
s_add_u32 s{t3}, s{t1}, s{t2}
buffer_load_dwordx4 v71, {sr(sA,4)}, s{t3} offen{NT} lds
s_add_u32 m0, s{t2}, {W1RAW}
s_add_u32 s{t3}, s{t2}, {12*1024}
buffer_load_dwordx4 v72, {sr(sBq,4)}, s{t2} offen lds
s_add_u32 m0, s{t3}, {W1RAW}
s_nop 0
buffer_load_dwordx4 v72, {sr(sBq,4)}, s{t3} offen lds
"""
edg = f"""
global_load_dwordx4 v[52:55], v{vt+1}, {sr(pSRC,2)}{NT}
global_load_dwordx4 v[56:59], v{vt+2}, {sr(pE,2)}{NT}
global_load_dwordx4 v[60:63], v{vt+2}, {sr(pE,2)} offset:16{NT}
"""
L("L_opt_end")
if PAIR:
    I(f"""
    global_load_dwordx2 v[48:49], v{vt+1}, {sr(pDST,2)}{NT}
    global_load_dwordx2 v[50:51], v{vt+1}, {sr(pDST,2)} offset:512{NT}
    """)
    edg = f"""
    global_load_dwordx2 v[52:53], v{vt+1}, {sr(pSRC,2)}{NT}
    global_load_dwordx2 v[54:55], v{vt+1}, {sr(pSRC,2)} offset:512{NT}
    global_load_dwordx4 v[56:59], v{vt+2}, {sr(pE,2)}{NT}
    global_load_dwordx4 v[60:63], v{vt+2}, {sr(pE,2)} offset:1024{NT}
    """
else:
    I(f"global_load_dwordx4 v[48:51], v{vt+1}, {sr(pDST,2)}{NT}")
if DEBUG:
    I(f"v_mov_b32 v{vST}, 0")
    if DEBUG == 1: I(f"v_writelane_b32 v{vST}, s96, 21")
    nstamp[0] = 1
if ORD == "A": I(dma); I("s_barrier"); I(edg)
elif ORD == "B": I("s_barrier"); I(dma); I(edg)
elif ORD == "C": I("s_barrier"); I(edg); I(dma)
elif ORD == "D": I("s_barrier"); I(dma); I("s_barrier"); I(edg)
I(f"""
s_and_b32 s{t0}, s{sW}, 1
s_lshl_b32 s{t0}, s{t0}, 7
buffer_load_ushort v160, v74, {sr(sC,4)}, s{t0} offen
buffer_load_ushort v162, v74, {sr(sC,4)}, s{t0} offen offset:64
""")
X = (0 if TAGS else 1) + (ICP == 1)
I("s_mov_b64 exec, 1")
if not TAGS:
    I("v_mov_b32 v26, 0")
    I(f"global_load_dword v26, v26, {sr(pWS,2)}")
if ICP == 1:
    I(f"""
    s_getpc_b64 s[94:95]
    s_lshr_b32 s{t0}, s2, 3
    s_mul_i32 s{t0}, s{t0}, {NW}
    s_add_u32 s{t0}, s{t0}, s{sW}
    s_and_b32 s{t0}, s{t0}, 127
    s_lshl_b32 s{t0}, s{t0}, 7
    v_mov_b32 v27, s{t0}
    global_load_dword v27, v27, s[94:95]
    """)
I("s_mov_b64 exec, -1")
assert CNT1 + NTH * 4 <= AREA
small_init(76)
srd(sWS, pWS, WS_SIZE)
I(f"""
s_sub_u32 s{sP}, s{pWS}, {MAGIC - PT}
s_subb_u32 s{sP+1}, s{pWS+1}, 0
s_and_b32 s{sP+1}, s{sP+1}, 0xffff
s_mov_b32 s{sP+2}, {MAGIC + N*256}
s_mov_b32 s{sP+3}, 0x00020000
""")
I(f"""
s_mul_i32 s{t0}, s{sB}, {BN}
s_sub_u32 s{t1}, {N}, s{t0}
s_min_u32 s{t1}, s{t1}, {BN}
s_lshl_b32 s{t2}, s{t0}, 7
s_add_u32 s{sOUT}, s{pOUT}, s{t2}
s_addc_u32 s{sOUT+1}, s{pOUT+1}, 0
s_and_b32 s{sOUT+1}, s{sOUT+1}, 0xffff
s_lshl_b32 s{sOUT+2}, s{t1}, 7
s_mov_b32 s{sOUT+3}, 0x00020000
s_mov_b32 s{sONE}, 1.0
s_mov_b32 s{sONE+1}, 1.0
s_mov_b32 s{sADV}, 16
s_mov_b32 s{sADV+1}, 16
s_mov_b32 s{sSC}, {f2u(-LOG2E)}
s_mov_b32 s{sSC+1}, {f2u(-LOG2E)}
s_mov_b32 s{sMode}, 0
s_lshl_b32 s{sReg}, s{sW}, 6
s_add_u32 s{sReg}, s{sReg}, {GT}
s_mov_b32 s{t4}, 42800
s_mov_b32 s{t5}, {(-BN) & 0xffffffff}
v_mov_b32 v{vt+6}, 1
v_mov_b32 v161, 0
v_mov_b32 v163, 0
v_mov_b32 v164, 0x3f80
v_mov_b32 v165, 0
""")
I(f"""
v_lshrrev_b32 v68, 5, v{vLane}
v_bfe_u32 v69, v{vLane}, 2, 2
v_lshl_add_u32 v70, v68, 5, v69
s_mov_b32 s{t0}, {W1RAW}
v_lshl_add_u32 v70, v70, 8, s{t0}
v_bfe_u32 v71, v{vLane}, 4, 1
v_lshl_add_u32 v70, v71, 5, v70
v_and_b32 v71, 3, v{vLane}
v_lshl_add_u32 v70, v71, 3, v70
s_and_b32 s{t0}, s{sW}, 1
s_lshl_b32 s{t0}, s{t0}, 1
v_xor_b32 v71, s{t0}, v69
v_lshl_add_u32 v166, v71, 6, v70
v_xor_b32 v71, 1, v71
v_lshl_add_u32 v167, v71, 6, v70
s_lshr_b32 s{t0}, s{sW}, 1
s_lshl_b32 s{t0}, s{t0}, 5
v_and_b32 v78, 31, v{vLane}
v_add_u32 v78, s{t0}, v78
v_bfe_u32 v71, v{vLane}, 1, 3
v_lshlrev_b32 v72, 2, v68
v_xor_b32 v71, v71, v72
v_lshlrev_b32 v71, 4, v71
v_lshl_add_u32 v79, v78, 7, v71
v_add_u32 v79, {XRAW}, v79
s_waitcnt vmcnt({8+X+PAIR})
""")
stamp()
def bucket_rank(d, a, r):
    I(f"v_mul_u32_u24 v{a}, s{t4}, v{d}")
    I(f"v_lshrrev_b32 v{a}, 22, v{a}")
    I(f"v_mad_i32_i24 v{d}, v{a}, s{t5}, v{d}")
    I(f"v_lshlrev_b32 v{a}, 2, v{a}")
    I(f"ds_add_rtn_u32 v{r}, v{a}, v{vt+6} offset:{CNT1}")
for i in range(4): bucket_rank(48+i, 68+i, 73+i)
I(f"s_cmp_lg_u32 s{sW}, {EXTRAW}")
I("s_cbranch_scc1 L_noex1")
setexec(XM)
bucket_rank(64, 72, 77)
I("s_mov_b64 exec, -1")
L("L_noex1")
I(f"""
s_waitcnt vmcnt({X + (2 if ORD == 'C' else 5 + PAIR)}) lgkmcnt(0)
s_barrier
""")
stamp()
I(f"""
s_cmp_lt_u32 s{sW}, 8
s_cbranch_scc1 L_ptask
s_cmp_lg_u32 s{sW}, {SCANW}
s_cbranch_scc1 L_noscan
ds_read_b128 v[80:83], v{vt+5} offset:{CNT1}
s_waitcnt lgkmcnt(0)
v_add_u32 v84, v80, v81
v_add_u32 v85, v84, v82
v_add_u32 v86, v85, v83
v_mov_b32 v87, v86
""")
dpp_scan(87)
I(f"""
v_sub_u32 v88, v87, v86
v_add_u32 v89, v88, v80
v_add_u32 v90, v88, v84
v_add_u32 v91, v88, v85
v_mov_b32 v96, {RST}
v_mad_u32_u24 v92, v88, 12, v96
v_mad_u32_u24 v93, v89, 12, v96
v_mad_u32_u24 v94, v90, 12, v96
v_mad_u32_u24 v95, v91, 12, v96
ds_write_b128 v{vt+5}, v[92:95] offset:{CNT1}
v_lshl_or_b32 v16, v80, 12, v88
v_lshl_or_b32 v18, v81, 12, v89
v_lshl_or_b32 v20, v82, 12, v90
v_lshl_or_b32 v22, v83, 12, v91
s_branch L_p_done
L_noscan:
""")
if DEBUG and int(opts.get("arr", 0)):
    I("s_waitcnt vmcnt(0)")
    I("s_memrealtime s[100:101]")
    I("s_waitcnt lgkmcnt(0)")
    I(f"v_writelane_b32 v{vST}, s100, 20")
if int(opts.get("prew", 0)):
    I(f"""
    s_cmp_lg_u32 s{sW}, 9
    s_cbranch_scc1 L_nopw
    s_lshl_b32 s{t0}, s2, 11
    s_add_u32 s{t0}, s{t0}, {GRAN}
    v_mov_b32 v16, 0
    v_mov_b32 v17, 0
    v_mov_b32 v18, 0
    v_mov_b32 v19, 0
    buffer_store_dwordx4 v[16:19], v{vt+5}, {sr(sWS,4)}, s{t0} offen sc1
    buffer_store_dwordx4 v[16:19], v{vt+5}, {sr(sWS,4)}, s{t0} offen offset:1024 sc1
    L_nopw:
    """)
I(f"""
s_cmp_eq_u32 s{sW}, 11
s_cbranch_scc1 L_w2ld
s_cmp_lg_u32 s{sW}, 10
s_cbranch_scc1 L_p_done
""")
for i in range(4):
    I(f"v_lshlrev_b32 v{80+2*i}, 16, v{12+i}")
    I(f"v_and_b32 v{81+2*i}, 0xffff0000, v{12+i}")
for i in range(4):
    I(f"v_pk_mul_f32 {P(80+2*i)}, {P(80+2*i)}, {sr(sSC,2)}")
for i in range(4):
    I(f"v_cvt_pk_bf16_f32 v{12+i}, v{80+2*i}, v{81+2*i}")
I(f"""
v_lshrrev_b32 v88, 4, v{vLane}
v_mul_u32_u24 v88, {QROW}, v88
v_and_b32 v89, 15, v{vLane}
v_lshl_add_u32 v88, v89, 4, v88
v_add_u32 v88, {QB + 98*QROW}, v88
ds_write2_b64 v88, v[12:13], v[14:15] offset0:0 offset1:1
v_mov_b32 v90, 0
v_mov_b32 v91, 0
""")
for g_ in range(4):
    setexec(lanemask(range(16*g_, 16*g_+8)))
    I(f"v_mov_b32 v{90 + (g_ >> 1)}, {0x3f800000 if g_ & 1 else 0x3f80}")
I(f"""
s_mov_b64 exec, -1
v_lshlrev_b32 v88, 3, v{vLane}
ds_write_b64 v88, v[90:91] offset:{LUT}
s_branch L_p_done
L_ptask:
v_xor_b32 v{vt+1}, 16, v79
v_xor_b32 v{vt+2}, 32, v79
v_xor_b32 v{vt+3}, 48, v79
""")
xa = [79, vt+1, vt+2, vt+3]
for ks in range(4):
    I(f"ds_read_b128 {vr(112+4*ks,4)}, v{xa[ks]}")
    for jl in range(2):
        for hf in range(2):
            I(f"ds_read_b64_tr_b16 {P(80+16*jl+4*ks+2*hf)}, v{166+jl} offset:{(8*ks+4*hf)*256}")
I(f"""
v_cmp_gt_u32 vcc, {BN}, v78
s_mov_b64 {sr(sE0,2)}, vcc
v_lshrrev_b32 v{vt+1}, 5, v{vLane}
s_and_b32 s{t1}, s{sW}, 1
s_lshl_b32 s{t1}, s{t1}, 3
v_add_u32 v{vt+1}, s{t1}, v{vt+1}
v_and_b32 v{vt+2}, 15, v78
v_xor_b32 v{vt+1}, v{vt+1}, v{vt+2}
v_lshlrev_b32 v{vt+1}, 4, v{vt+1}
v_lshl_add_u32 v{vt+1}, v78, 8, v{vt+1}
v_add_u32 v{vt+1}, {PST}, v{vt+1}
v_xor_b32 v{vt+2}, 32, v{vt+1}
v_xor_b32 v{vt+3}, 64, v{vt+1}
v_xor_b32 v{vt+4}, 0x60, v{vt+1}
""")
for ks in range(4):
    I(f"s_waitcnt lgkmcnt({15 - 5*ks})")
    I(mf16(128, 80+4*ks, 112+4*ks, "0" if ks == 0 else vr(128,16)))
    I(mf16(144, 96+4*ks, 112+4*ks, "0" if ks == 0 else vr(144,16)))
I("s_mov_b32 s%d, 0x07060302" % t0)
I("s_nop 10")
for i in range(16):
    I(f"v_pk_mul_f32 {P(128+2*i)}, {P(128+2*i)}, {sr(sSC,2)}")
I(f"s_mov_b64 exec, {sr(sE0,2)}")
for rg in range(4):
    for i in range(4*rg, 4*rg+4):
        I(f"v_add_u32 v{128+i}, 0x4000, v{128+i}")
    for i in range(4*rg, 4*rg+4):
        I(f"v_perm_b32 v{128+i}, v{144+i}, v{128+i}, s{t0}")
    I(f"ds_write_b128 v{vt+1+rg}, {vr(128+4*rg,4)}")
I(f"""
s_mov_b64 exec, -1
L_p_done:
v_lshrrev_b32 v80, 4, v0
v_xor_b32 v81, v80, v0
v_and_b32 v81, 15, v81
v_lshlrev_b32 v81, 4, v81
v_lshl_add_u32 v81, v80, 8, v81
v_add_u32 v81, {PST}, v81
s_mul_i32 s{t0}, s{sB}, {BN*256}
s_add_u32 s{t0}, s{t0}, {PT}
s_add_u32 s{sA}, s{pWS}, s{t0}
s_addc_u32 s{sA+1}, s{pWS+1}, 0
s_and_b32 s{sA+1}, s{sA+1}, 0xffff
s_mov_b32 s{sA+2}, {BN*256}
s_mov_b32 s{sA+3}, 0x00020000
s_mul_i32 s{t0}, s2, {RSTRIDE}
s_add_u32 s{t0}, s{t0}, {REC}
s_add_u32 s{sBq}, s{pWS}, s{t0}
s_addc_u32 s{sBq+1}, s{pWS+1}, 0
s_and_b32 s{sBq+1}, s{sBq+1}, 0xffff
s_mov_b32 s{sBq+2}, {(CH*12+15)//16*16}
s_mov_b32 s{sBq+3}, 0x00020000
s_mov_b32 s{t1}, {NTH*16}
s_mov_b32 s{t2}, {2*NTH*16}
s_mov_b32 s{t3}, {3*NTH*16}
s_waitcnt lgkmcnt(0)
s_barrier
""")
stamp()
I(f"""
ds_read_b128 v[84:87], v81
ds_read_b128 v[88:91], v81 offset:{48*256}
ds_read_b128 v[92:95], v81 offset:{96*256}
""")
for i in range(5):
    I(f"ds_read_b32 v{68+i}, v{68+i} offset:{CNT1}")
I(f"""
s_waitcnt lgkmcnt(7)
buffer_store_dwordx4 v[84:87], v{vt}, {sr(sA,4)}, 0 offen {PST_}
s_waitcnt lgkmcnt(6)
buffer_store_dwordx4 v[88:91], v{vt}, {sr(sA,4)}, s{t1} offen {PST_}
s_waitcnt lgkmcnt(5)
buffer_store_dwordx4 v[92:95], v{vt}, {sr(sA,4)}, s{t2} offen {PST_}
s_waitcnt vmcnt({7+X})
""")
I(f"s_movk_i32 s{t4}, 0x804")
I(f"s_mov_b32 s{t5}, {KMASK}")
for i in range(4):
    I(f"v_mul_u32_u24 v{52+i}, s{t4}, v{52+i}") if False else None
    I(f"v_lshlrev_b32 v{80+i}, 11, v{52+i}")
    I(f"v_lshlrev_b32 v{48+i}, 12, v{48+i}")
    I(f"v_lshlrev_b32_sdwa v{80+i}, 2, v{52+i} dst_sel:WORD_0 dst_unused:UNUSED_PRESERVE src0_sel:DWORD src1_sel:BYTE_0")
for i in range(4):
    I(f"v_and_or_b32 v{48+i}, v{80+i}, s{t5}, v{48+i}")
I("s_waitcnt lgkmcnt(0)")
for i in range(5):
    I(f"v_mad_u32_u24 v{68+i}, v{73+i}, 12, v{68+i}")
for i in range(4):
    I(f"ds_write_b32 v{68+i}, v{48+i} offset:8")
I(f"s_cmp_lg_u32 s{sW}, {EXTRAW}")
I("s_cbranch_scc1 L_noex2")
setexec(XM)
I(f"""
v_lshlrev_b32 v80, 11, v65
v_lshlrev_b32 v64, 12, v64
v_lshlrev_b32_sdwa v80, 2, v65 dst_sel:WORD_0 dst_unused:UNUSED_PRESERVE src0_sel:DWORD src1_sel:BYTE_0
s_nop 0
v_and_or_b32 v64, v80, s{t5}, v64
ds_write2_b32 v72, v66, v67 offset0:0 offset1:1
ds_write_b32 v72, v64 offset:8
s_mov_b64 exec, -1
L_noex2:
s_waitcnt vmcnt({6+X})
ds_write2_b32 v68, v56, v57 offset0:0 offset1:1
ds_write2_b32 v69, v58, v59 offset0:0 offset1:1
s_waitcnt vmcnt({5+X})
""")
stamp()
I(f"""
ds_write2_b32 v70, v60, v61 offset0:0 offset1:1
ds_write2_b32 v71, v62, v63 offset0:0 offset1:1
s_waitcnt lgkmcnt(0)
s_barrier
""")
stamp()
for i in range(4):
    I(f"ds_read_b128 {vr(48+4*i,4)}, v{vt} offset:{RST + i*NTH*16}")
for i in range(3):
    I(f"s_waitcnt lgkmcnt({3-i})")
    I(f"buffer_store_dwordx4 {vr(48+4*i,4)}, v{vt}, {sr(sBq,4)}, {['0', f's{t1}', f's{t2}'][i]} offen {RST_}")
I(f"""
s_waitcnt lgkmcnt(0)
s_cmp_lg_u32 s{sW}, 0
s_cbranch_scc1 L_no4
buffer_store_dwordx4 v[60:63], v{vt}, {sr(sBq,4)}, s{t3} offen {RST_}
L_no4:
{"s_barrier" if AI4 else ""}
s_cmp_ge_u32 s{sW}, 8
s_cbranch_scc1 L_nop2
""")
for ks in range(4):
    for jl in range(2):
        for hf in range(2):
            I(f"ds_read_b64_tr_b16 {P(80+16*jl+4*ks+2*hf)}, v{166+jl} offset:{16384 + (8*ks+4*hf)*256}")
I(f"s_waitcnt vmcnt({6+X})")
I(mf8(128, 160, 164, "0"))
I(mf8(144, 162, 164, "0"))
I(f"""
v_lshrrev_b32 v{vt+1}, 5, v{vLane}
s_and_b32 s{t0}, s{sW}, 1
s_lshl_b32 s{t0}, s{t0}, 7
s_add_u32 s{t0}, s{t0}, {QB}
v_lshl_add_u32 v{vt+1}, v{vt+1}, 3, s{t0}
v_mul_u32_u24 v{vt+2}, {QROW}, v78
v_add_u32 v{vt+1}, v{vt+1}, v{vt+2}
""")
for ks in range(4):
    I(f"s_waitcnt lgkmcnt({12 - 4*ks})")
    I(mf16(128, 80+4*ks, 112+4*ks, vr(128,16)))
    I(mf16(144, 96+4*ks, 112+4*ks, vr(144,16)))
I("s_nop 11")
for i in range(16):
    I(f"v_pk_mul_f32 {P(128+2*i)}, {P(128+2*i)}, {sr(sSC,2)}")
for i in range(16):
    I(f"v_cvt_pk_bf16_f32 v{128+i}, v{128+2*i}, v{129+2*i}")
I(f"s_mov_b64 exec, {sr(sE0,2)}")
for jl in range(2):
    for rg in range(4):
        I(f"ds_write_b64 v{vt+1}, {P(128+8*jl+2*rg)} offset:{64*jl + 16*rg}")
I(f"""
s_mov_b64 exec, -1
s_branch L_p2_done
L_nop2:
s_cmp_lg_u32 s{sW}, 11
s_cbranch_scc1 L_p2_done
s_cmp_gt_u32 s2, 16
s_cbranch_scc1 L_p2_done
s_lshl_b32 s{t0}, s2, 10
s_add_u32 s{t0}, s{t0}, {W2I}
s_waitcnt vmcnt(6)
s_cmp_lt_u32 s2, 16
s_cbranch_scc1 L_w2st
v_lshlrev_b32 v{vW2S}, 16, v{vW2S}
v_mul_f32 v{vW2S}, s{sSC}, v{vW2S}
v_lshlrev_b32 v{vW2S+1}, 2, v{vLane}
buffer_store_dword v{vW2S}, v{vW2S+1}, {sr(sWS,4)}, s{t0} offen sc1
s_branch L_p2_done
L_w2st:
v_lshl_or_b32 v{vW2S}, v{vW2S+1}, 16, v{vW2S}
v_lshl_or_b32 v{vW2S+1}, v{vW2S+3}, 16, v{vW2S+2}
v_lshl_or_b32 v{vW2S+2}, v{vW2S+5}, 16, v{vW2S+4}
v_lshl_or_b32 v{vW2S+3}, v{vW2S+7}, 16, v{vW2S+6}
buffer_store_dwordx4 {vr(vW2S,4)}, v{vt+5}, {sr(sWS,4)}, s{t0} offen sc1
L_p2_done:
""")
if AI4 == 1: area_init4(64, "L_ai4")
if AI4 == 2: area_init(64)
I(f"""
v_and_b32 v72, 31, v{vLane}
v_lshlrev_b32 v72, 2, v72
v_add_u32 v{vSC}, {SB}, v72
v_add_u32 v{vSC+1}, {SB}, v72
v_cvt_f32_u32 v72, v72
v_mov_b32 v{vBK}, 0x78005c00
v_cvt_f16_f32 v{vBK+1}, v72
v_and_b32 v{vBK+1}, 0xffff, v{vBK+1}
s_mov_b32 exec_lo, 0
v_mov_b32 v{vBK}, 0
v_mov_b32 v{vBK+1}, 0
s_mov_b64 exec, -1
v_mov_b32 v{vKA+1}, 0x3c00
v_bfe_u32 v73, v{vLane}, 4, 1
v_lshlrev_b32 v73, 5, v73
v_and_b32 v74, 3, v{vLane}
v_lshl_add_u32 v73, v74, 3, v73
v_add_u32 v{vQC}, {QB}, v73
v_bfe_u32 v75, v{vLane}, 2, 2
v_add_u32 v76, 98, v75
v_mul_u32_u24 v76, {QROW}, v76
v_add_u32 v{vQ}, v76, v{vQC}
""")
I(f"""
v_bfe_u32 v72, v{vLane}, 3, 2
v_bfe_u32 v73, v{vLane}, 1, 1
v_lshl_add_u32 v72, v72, 1, v73
v_lshlrev_b32 v{vAC}, 3, v72
v_lshlrev_b32 v{vAC+1}, 2, v72
v_bfe_u32 v73, v{vLane}, 2, 1
v_and_b32 v74, 1, v{vLane}
v_lshl_add_u32 v73, v73, 1, v74
v_lshlrev_b32 v73, 7, v73
s_mov_b32 exec_lo, 0
v_add_u32 v{vAC}, v{vAC}, v73
v_add_u32 v{vAC}, {LUT}, v{vAC}
s_mov_b64 exec, -1
""")
def ptr_mult(m):
    I(f"""
    v_lshrrev_b32 v{m}, 5, v{vLane}
    v_bfe_u32 v{m+2}, v{vLane}, 2, 1
    v_and_b32 v{m+3}, 1, v{vLane}
    v_lshlrev_b32 v{m}, 1, v{m}
    v_lshl_add_u32 v{m+2}, v{m+2}, 1, v{m+3}
    v_add_u32 v{m+1}, 1, v{m}
    v_bfe_u32 v{m+3}, v{vLane}, 2, 2
    """)
def ptr_consts(base):
    ptr_mult(72)
    I(f"""
    v_lshl_add_u32 v{vPA}, v72, 4, {base}
    v_lshl_add_u32 v{vPG}, v74, 4, {base}
    v_lshl_add_u32 v{vPR}, v75, 4, {base}
    v_add_u32 v{vPA}, 12, v{vPA}
    v_lshl_add_u32 v{vPG}, v72, 1, v{vPG}
    v_add_u32 v{vPR}, 14, v{vPR}
    v_add_u32 v{vPB}, 16, v{vPA}
    """)
ptr_consts(f"s{sReg}")
I(f"""
{"" if TAGS else "s_waitcnt vmcnt(6)"}
{"" if TAGS else f"v_readfirstlane_b32 s{sTag}, v26"}
s_add_u32 s{sTag}, s{sTag}, 1
s_mul_i32 s{sTag8}, s{sTag}, 0x9e3779b1
s_and_b32 s{sTag8}, s{sTag8}, 0xff000000
v_or_b32 v16, s{sTag8}, v16
v_or_b32 v18, s{sTag8}, v18
v_or_b32 v20, s{sTag8}, v20
v_or_b32 v22, s{sTag8}, v22
v_mov_b32 v17, s{sTag}
v_mov_b32 v19, s{sTag}
v_mov_b32 v21, s{sTag}
v_mov_b32 v23, s{sTag}
s_waitcnt vmcnt(0) lgkmcnt(0)
s_barrier
""")
stamp()
I(f"""
s_cmp_lg_u32 s{sW}, {SCANW}
s_cbranch_scc1 L_nopub
v_lshlrev_b32 v72, 4, v{vLane}
s_lshl_b32 s{t0}, s2, 11
s_add_u32 s{t0}, s{t0}, {GRAN}
buffer_store_dwordx4 v[16:19], v72, {sr(sWS,4)}, s{t0} offen {PUB_}
buffer_store_dwordx4 v[20:23], v72, {sr(sWS,4)}, s{t0} offen offset:1024 {PUB_}
L_nopub:
""")
PF1 = int(opts.get("pf1", 0)); PF2 = int(opts.get("pf2", 0))
def prefetch(n, first, dst):
    I(f"""
    s_lshr_b32 s{t0}, s2, 3
    s_mul_i32 s{t0}, s{t0}, {NW}
    s_add_u32 s{t0}, s{t0}, s{sW}
    s_mul_i32 s{t0}, s{t0}, {n*128}
    s_add_u32 s{t0}, s{t0}, {MAGIC + first*384*128}
    s_and_b32 s{t1}, s2, 4
    s_xor_b32 s{t1}, s{t1}, 4
    s_mul_i32 s{t1}, s{t1}, {32*BN*256 if int(opts.get("pfx", 0)) else 0}
    s_add_u32 s{t0}, s{t0}, s{t1}
    v_lshlrev_b32 v{dst}, 7, v{vLane}
    """)
    if n < 64: setexec((1 << n) - 1)
    I(f"buffer_load_dword v{dst}, v{dst}, {sr(sP,4)}, s{t0} offen sc1")
    I("s_mov_b64 exec, -1")
if PF1: prefetch(PF1, 0, 42)
PFO = int(opts.get("pfo", 0))
if PFO:
    I(f"""
    s_mul_i32 s{t0}, s{sW}, {PFO*128}
    v_lshlrev_b32 v42, 7, v{vLane}
    """)
    setexec((1 << PFO) - 1)
    I(f"buffer_load_dword v42, v42, {sr(sA,4)}, s{t0} offen sc1")
    I("s_mov_b64 exec, -1")
if not AI4: area_init(64)
SZ = int(opts.get('sz', 0))
if SZ == 1: s_zero(76)
vDs = 124
vRA = 130
vCn = 133
vPo = 136
vL7 = 138; vRb = 139; vAr = 140
sPo = [sG, sT, sRem]; sRo = sGam
def desc_consts():
    I(f"""
    v_lshrrev_b32 v141, 3, v{vLane}
    v_lshlrev_b32 v{vPo}, 11, v141
    v_and_b32 v{vL7}, 7, v{vLane}
    v_mul_u32_u24 v{vRb}, 12, v{vL7}
    s_mov_b32 s{t0}, {RSTRIDE}
    v_mad_u32_u24 v{vRb}, v141, s{t0}, v{vRb}
    s_lshl_b32 s{sPo[0]}, s{sW}, 14
    s_lshr_b32 s{t1}, s{sB}, 2
    s_lshl_b32 s{t1}, s{t1}, 4
    s_add_u32 s{sPo[0]}, s{sPo[0]}, s{t1}
    s_and_b32 s{t1}, s{sB}, 1
    s_lshl_b32 s{t1}, s{t1}, 3
    s_add_u32 s{sPo[0]}, s{sPo[0]}, s{t1}
    s_and_b32 s{t1}, s{sB}, 2
    s_lshl_b32 s{t1}, s{t1}, 9
    s_add_u32 s{sPo[0]}, s{sPo[0]}, s{t1}
    s_add_u32 s{sPo[0]}, s{sPo[0]}, {GRAN}
    s_add_u32 s{sPo[1]}, s{sPo[0]}, {12*16384}
    s_add_u32 s{sPo[2]}, s{sPo[0]}, {24*16384}
    s_mul_i32 s{sRo}, s{sW}, {8*RSTRIDE}
    s_add_u32 s{sRo}, s{sRo}, {REC}
    """)
def poll_load(jj): return f"buffer_load_dwordx2 {P(vDs+2*jj)}, v{vPo}, {sr(sWS,4)}, s{sPo[jj]} offen " + opts.get("pld", "sc1").replace("+", " ")
def decode(jj):
    I(f"v_and_b32 v{vRA+jj}, 0xfff, v{vDs+2*jj}")
    I(f"v_mad_u32_u24 v{vRA+jj}, v{vRA+jj}, 12, v{vRb}")
    if jj: I(f"v_add_u32 v{vRA+jj}, {jj*96*RSTRIDE}, v{vRA+jj}")
    I(f"v_bfe_u32 v{vCn+jj}, v{vDs+2*jj}, 12, 12")
    I(f"v_sub_u32 v{vCn+jj}, v{vCn+jj}, v{vL7}")
lab = [0]
NR = 5
order = [(jj, rd) for jj in range(3) for rd in range(NR)]
slotreg = {s: 48 + 4*n_ for n_, s in enumerate(order)}
slotmask = {s: sM + 2*n_ for n_, s in enumerate(order)}
vTA = {s: 108 + n_ for n_, s in enumerate(order)}
def slots(body):
    for jj in range(3):
        lab[0] += 1; grp = lab[0]
        for rd in range(NR):
            s = (jj, rd)
            I(f"s_mov_b64 exec, {sr(slotmask[s],2)}")
            if rd >= 2 or (jj == 2 and rd == 0): I(f"s_cbranch_execz L_sg{grp}")
            body(s)
        L(f"L_sg{grp}")
    I("s_mov_b64 exec, -1")
def tagcheck(jj, dst):
    I(f"""
    v_xor_b32 v141, s{sTag8}, v{vDs+2*jj}
    v_xor_b32 v142, s{sTag}, v{vDs+2*jj+1}
    v_lshrrev_b32 v141, 24, v141
    v_or_b32 v141, v141, v142
    v_cmp_ne_u32 {dst}, 0, v141
    """)
desc_consts()
I(f"""
s_mov_b64 {sr(sPM,2)}, -1
s_mov_b64 {sr(sPM+2,2)}, -1
s_cmp_lt_u32 s{sW}, 8
s_cselect_b64 {sr(sPM+4,2)}, -1, 0
v_mov_b32 v{vDs+4}, s{sTag8}
v_mov_b32 v{vDs+5}, s{sTag}
s_mov_b32 s{sK}, 0
v_mov_b32 v{vAr}, {AREA}
s_movk_i32 s{t4}, {NSZ//4}
s_mov_b32 s{t5}, {KMASK}
v_mov_b32 v137, {KCON}
v_mov_b32 v143, 0
{"" if AI4 else "s_waitcnt lgkmcnt(0)"}
{"" if AI4 else "s_barrier"}
""")
stamp()
I(f"""
s_branch L_poll1
L_poll:
""")
if SLEEP: I(f"s_sleep {SLEEP}")
L("L_poll1")
for jj in range(3):
    I(f"s_mov_b64 exec, {sr(sPM+2*jj,2)}")
    I(f"s_cbranch_execz L_pk{jj}")
    I(poll_load(jj))
    L(f"L_pk{jj}")
I(f"""
s_mov_b64 exec, -1
s_add_u32 s{sK}, s{sK}, 1
s_cmp_gt_u32 s{sK}, 0x40000
s_cbranch_scc1 L_exit
s_waitcnt vmcnt(0)
""")
for jj in range(3): tagcheck(jj, sr(sPM+2*jj,2))
I(f"""
s_or_b64 {sr(sE0,2)}, {sr(sPM,2)}, {sr(sPM+2,2)}
s_or_b64 {sr(sE0,2)}, {sr(sE0,2)}, {sr(sPM+4,2)}
s_cbranch_scc1 L_poll
""")
if DEBUG:
    I(f"v_writelane_b32 v{vST}, s{sK}, 22")
stamp()
for jj in range(3): decode(jj)
for s_ in order:
    I(f"v_cmp_lt_i32 {sr(slotmask[s_],2)}, {8*s_[1]}, v{vCn+s_[0]}")
slots(lambda s_: I(f"buffer_load_dwordx3 {vr(slotreg[s_],3)}, v{vRA+s_[0]}, {sr(sWS,4)}, s{sRo} offen offset:{96*s_[1]} sc1"))
I(f"""
v_max3_i32 v141, v{vCn}, v{vCn+1}, v{vCn+2}
v_cmp_lt_i32 vcc, {8*NR}, v141
s_cbranch_vccz L_nobig
v_mov_b32 v141, 0
ds_write_b32 v141, v{vt+6} offset:{FLAG}
L_nobig:
""")
if SZ == 0: s_zero(144)
vNB = 32; sEN = 28; sKb = 30
I(f"""
v_mul_u32_u24 v{vNB}, {2*NSZ}, v{vLane}
v_add_u32 v{vNB}, {AREA}, v{vNB}
v_add_u32 v{vNB+1}, {NSZ}, v{vNB}
s_mov_b32 s{t0}, {2*(SROW + (QROW << 16))}
v_mul_lo_u32 v{vNB+2}, v{vLane}, s{t0}
v_add_u32 v{vNB+3}, {SROW + (QROW << 16)}, v{vNB+2}
s_cmp_ge_u32 s{sW}, 6
s_cselect_b64 {sr(sEN,2)}, -1, 0
s_cselect_b32 s{t0}, 6, 0
s_sub_u32 s{sKb}, s{sW}, s{t0}
v_cndmask_b32 v145, v{vNB}, v{vNB+1}, {sr(sEN,2)}
v_cndmask_b32 v147, v{vNB+2}, v{vNB+3}, {sr(sEN,2)}
s_lshl_b32 s{t0}, s{sKb}, 5
v_add_u32 v144, s{t0}, v145
s_add_u32 s{t0}, s{t0}, {EOFF}
v_add_u32 v145, s{t0}, v144
v_lshlrev_b32 v152, 3, v{vLane}
v_mov_b32 v153, 0
v_mov_b32 v{vMX}, 0
""")
ptr_mult(148)
I("s_waitcnt vmcnt(0)")
stamp()
if PF2: prefetch(PF2, PF1, 33)
def rank_body(s):
    r = slotreg[s]
    I(f"v_bfe_u32 v{vTA[s]}, v{r+2}, 10, 9")
    I(f"v_and_or_b32 v{r+2}, v{r+2}, s{t5}, v137")
    I(f"ds_add_rtn_u32 v{r+3}, v{vTA[s]}, v{vt+6} offset:{CNT}")
    I(f"v_mad_u32_u24 v{vTA[s]}, v{vTA[s]}, s{t4}, v{vAr}")
slots(rank_body)
I("s_waitcnt lgkmcnt(0)")
def scat_body(s):
    r = slotreg[s]
    lab[0] += 1; fx = lab[0]
    fixups.append((fx, s))
    I(f"v_cmp_le_u32 vcc, {CAP}, v{r+3}")
    I(f"v_lshl_add_u32 v141, v{r+3}, 2, v{vTA[s]}")
    I(f"v_lshl_add_u32 v{vTA[s]}, v{r+3}, 3, v{vTA[s]}")
    I(f"s_cbranch_vccnz L_fx{fx}")
    L(f"L_fr{fx}")
    I(f"ds_write_b32 v141, v{r+2}")
    I(f"ds_write_b64 v{vTA[s]}, {P(r)} offset:{EOFF}")
fixups = []
PF5 = int(opts.get("pf5", 0))
if PF5: prefetch(PF5, PF1, 41)
slots(scat_body)
PF4 = int(opts.get("pf4", 16))
if PF4: prefetch(PF4, PF1, 41)
I(f"""
s_waitcnt lgkmcnt(0)
s_barrier
""")
stamp()
PF3 = int(opts.get('pf3', 0))
if PF3: prefetch(PF3, 0, 43)
def chain(T, vD=vD, vN=vN, n=8):
    l = [f"v_pk_add_f32 {P(vD)}, {P(vE)}, {sr(sONE,2)}",
         f"v_pk_fma_f32 {P(vN)}, {P(T)}, {P(vE+2)}, {P(T)}",
         f"v_pk_fma_f32 {P(vN)}, {P(T+2)}, {P(vD)}, {P(vN)}",
         f"v_pk_fma_f32 {P(vD)}, {P(vD)}, {P(vE+2)}, {P(vD)}"]
    for i in range(2, n):
        l += [f"v_pk_fma_f32 {P(vN)}, {P(vN)}, {P(vE+2*i)}, {P(vN)}",
              f"v_pk_fma_f32 {P(vN)}, {P(T+2*i)}, {P(vD)}, {P(vN)}",
              f"v_pk_fma_f32 {P(vD)}, {P(vD)}, {P(vE+2*i)}, {P(vD)}"]
    return l
assert EOFF - 7*32 == 0
def gload(u): return [f"buffer_load_dword v{vLb[u]+i}, v{vIX+i}, {sr(sP,4)}, 0 offen offset:{128*u} sc1" for i in range(16)]
def shifts(u): return [f"v_lshlrev_b64 {P(vTL+2*i)}, 16, {P(vLb[u]+2*i)}" for i in range(8)]
SAUPD = [f"v_lshl_add_u64 {P(vSA)}, {P(vGS)}, 0, {P(vSC)}"]
def gsrd(off): return [f"ds_read_u16 v{vGS}, v{vPA} offset:{off}", f"ds_read_u16 v{vGS+1}, v{vPB} offset:{off}"]
PADV = [f"v_lshl_add_u64 {P(vPA)}, {P(vPA)}, 0, {sr(sADV,2)}", f"v_lshl_add_u64 {P(vPG)}, {P(vPG)}, 0, {sr(sADV,2)}"]
QUPD = f"v_add_u32_dpp v{vQ}, v{vGQ}, v{vQC} quad_perm:[0,1,2,3] row_mask:0xc bank_mask:0xf"
AUPD = f"v_lshl_add_u64 {P(vAG)}, {P(vAG)}, 0, {P(vAC)}"
IXM = mf8(vIX, vKA, vBK, "0").replace("bf16", "f16")

vDj = [144, 148, 152, 156]; vNj = [146, 150, 154, 158]; vSj = [160, 162, 164, 166]
def pmul(d, a, b): return f"v_pk_mul_f32 {P(d)}, {P(a)}, {P(b)}"
def inv(m): return [f"v_rcp_f32 v{vE}, v{m}", f"v_rcp_f32 v{vE+1}, v{m+1}", f"v_max3_f32 v{vMX}, v{m}, v{m+1}, v{vMX}"]
NSH = 4 * NW
vSU = 120
DS = ["row_shr:1 row_mask:0xf bank_mask:0xf bound_ctrl:0", "row_shr:2 row_mask:0xf bank_mask:0xf bound_ctrl:0",
      "row_shr:4 row_mask:0xf bank_mask:0xf bound_ctrl:0", "row_shr:8 row_mask:0xf bank_mask:0xf bound_ctrl:0",
      "row_bcast:15 row_mask:0xa bank_mask:0xf", "row_bcast:31 row_mask:0xc bank_mask:0xf"]
def dstep(i): return f"v_add_u32_dpp v56, v56, v56 {DS[i]}\nv_max_u32_dpp v55, v55, v55 {DS[i]}"
I(f"""
ds_read_b64 v[50:51], v152 offset:{CNT}
ds_read_b32 v49, v153 offset:{FLAG}
s_mov_b32 s{t2}, 0x80000004
s_lshl_b32 s{t3}, s{sW}, 2
s_waitcnt lgkmcnt(0)
v_add_u32 v80, -1, v50
v_add_u32 v81, -1, v51
v_and_b32 v80, s{t2}, v80
v_and_b32 v81, s{t2}, v81
v_cmp_gt_u32 {sr(sE0,2)}, {CAP}, v50
v_cmp_gt_u32 {sr(sE1,2)}, {CAP}, v51
v_cmp_eq_u32 vcc, 0, v80
v_cmp_eq_u32 s[32:33], 0, v81
v_add_u32 v52, 7, v50
v_add_u32 v53, 7, v51
s_and_b64 {sr(sE0,2)}, {sr(sE0,2)}, vcc
s_and_b64 {sr(sE1,2)}, {sr(sE1,2)}, s[32:33]
s_bcnt1_i32_b64 s{t0}, {sr(sE0,2)}
v_mbcnt_lo_u32_b32 v82, s{sE0}, 0
v_mov_b32 v83, s{t0}
v_mbcnt_hi_u32_b32 v82, s{sE0+1}, v82
v_mbcnt_lo_u32_b32 v83, s{sE1}, v83
v_mbcnt_hi_u32_b32 v83, s{sE1+1}, v83
v_subrev_u32 v84, s{t3}, v82
v_subrev_u32 v85, s{t3}, v83
v_cmp_gt_u32 s[32:33], 4, v84
v_cmp_gt_u32 s[34:35], 4, v85
v_cmp_gt_u32 s[36:37], {NSH}, v82
v_cmp_gt_u32 s[38:39], {NSH}, v83
""")
for e_ in range(2):
    m_ = (sE0, sE1)[e_]
    I(f"""
    s_and_b64 exec, {sr(m_,2)}, s[{32+2*e_}:{33+2*e_}]
    s_cbranch_execz L_shs{e_}
    v_and_b32 v86, 0x78, v{50+e_}
    v_and_b32 v90, 7, v{50+e_}
    v_lshl_add_u32 v88, v86, 2, v{vNB+e_}
    v_lshl_add_u32 v89, v86, 3, v{vNB+e_}
    v_lshlrev_b32 v90, 3, v90
    v_mov_b32 v91, v{vNB+2+e_}
    v_add_u32 v89, {EOFF}, v89
    v_sub_u32 v90, 64, v90
    v_lshlrev_b32 v87, 4, v{82+e_}
    ds_write_b128 v87, v[88:91] offset:{GT}
    L_shs{e_}:
    """)
I(f"""
s_mov_b64 exec, -1
ds_read2_b32 {P(vAG)}, v{vPG} offset0:1 offset1:0
ds_read_u16 v{vGQ}, v{vPR}
{gsrd(0)[0]}
{gsrd(0)[1]}
s_and_b64 {sr(sE0,2)}, {sr(sE0,2)}, s[36:37]
s_and_b64 {sr(sE1,2)}, {sr(sE1,2)}, s[38:39]
v_lshrrev_b32 v52, 3, v52
v_lshrrev_b32 v53, 3, v53
v_subb_co_u32 v52, vcc, v52, 0, {sr(sE0,2)}
v_subb_co_u32 v53, vcc, v53, 0, {sr(sE1,2)}
v_add_u32 v56, v52, v53
v_max_u32 v55, v52, v53
v_cmp_lt_u32 s[32:33], {CAP}, v50
v_cmp_lt_u32 s[34:35], {CAP}, v51
{dstep(0)}
v_readfirstlane_b32 s{sBad}, v49
{dstep(1)}
s_waitcnt lgkmcnt(3)
{AUPD}
ds_read_b32 v{vKA}, v{vAG+1}
ds_read_b64 {P(vA5)}, v{vAG}
{dstep(2)}
v_cndmask_b32 v58, v52, 0, {sr(sEN,2)}
{dstep(3)}
v_add_u32 v58, v58, v53
{dstep(4)}
v_cndmask_b32 v50, v50, v51, {sr(sEN,2)}
{dstep(5)}
v_cndmask_b32 v52, v52, v53, {sr(sEN,2)}
s_waitcnt lgkmcnt(1)
{IXM}
{QUPD}
{SAUPD[0]}
v_readlane_b32 s{sG}, v56, 63
v_readlane_b32 s{sGmax}, v55, 63
v_sub_u32 v56, v56, v58
ds_read_b64_tr_b16 {P(vB5[0])}, v{vQ}
ds_read_b64_tr_b16 {P(vB5[1])}, v{vQ} offset:64
ds_read_b64_tr_b16 {P(vD)}, v{vQ} offset:128
ds_read_b64_tr_b16 {P(vN)}, v{vQ} offset:192
s_bcnt1_i32_b64 s{t1}, s[32:33]
s_bcnt1_i32_b64 s{t2}, s[34:35]
s_add_u32 s{t1}, s{t1}, s{t2}
s_cmp_gt_u32 s{t1}, 1
s_cselect_b32 s{sBad}, 1, s{sBad}
""")
SL = int(opts.get("sl", 16))
shl = [f"buffer_load_dword v{vTH+i_}, v{vIX+i_}, {sr(sP,4)}, 0 offen sc1" for i_ in range(8)] + [f"buffer_load_dword v{vSU+i_}, v{vIX+i_}, {sr(sP,4)}, 0 offen offset:128 sc1" for i_ in range(8)]
for l in shl[:SL]: I(l)
I(f"""
s_cmp_gt_u32 s{sG}, {4*NW*(TMAX-1)}
s_cselect_b32 s{sBad}, 1, s{sBad}
s_cmp_gt_u32 s{sGmax}, {TMAX-1}
s_cselect_b32 s{sBad}, 1, s{sBad}
""")
if FORCE_SLOW == 1: I(f"s_mov_b32 s{sBad}, 1")
I(f"""
s_cmp_lg_u32 s{sBad}, 0
s_cbranch_scc1 L_slow
L_build:
s_lshl_b32 s{t0}, s{sKb}, 6
s_add_u32 s{t0}, s{t0}, 64
s_lshl_b32 s{t1}, s{sKb}, 4
v_cmp_lt_u32 vcc, s{sKb}, v52
v_mad_i32_i24 v146, v50, -8, s{t0}
v_lshl_add_u32 v57, v56, 4, s{t1}
v_max_i32 v146, 0, v146
s_and_b64 exec, exec, vcc
ds_write_b128 v57, v[144:147] offset:{GA}
s_mov_b64 exec, -1
s_add_u32 s{sKb}, s{sKb}, 6
s_cmp_lt_u32 s{sKb}, s{sGmax}
s_cbranch_scc1 L_build2
""")
for l in shl[SL:]: I(l)
I(f"""
s_add_u32 s{t0}, s{sG}, 3
s_lshr_b32 s{t0}, s{t0}, 2
s_mul_i32 s{sT}, s{t0}, 171
s_lshr_b32 s{sT}, s{sT}, 11
s_mul_i32 s{t1}, s{sT}, {NW}
s_sub_u32 s{sRem}, s{t0}, s{t1}
s_cmp_gt_u32 s{sGmax}, s{sT}
s_cselect_b32 s{sT}, s{sGmax}, s{sT}
s_cselect_b32 s{sRem}, 0, s{sRem}
s_cmp_lt_u32 s{sW}, s{sRem}
s_addc_u32 s{sTw}, s{sT}, 0
s_min_u32 s{t0}, s{sW}, s{sRem}
s_mul_i32 s{t1}, s{sT}, s{sW}
s_add_u32 s{t1}, s{t1}, s{t0}
s_lshl_b32 s{t1}, s{t1}, 2
s_min_u32 s{t1}, s{t1}, s{sG}
s_lshl_b32 s{t2}, s{sTw}, 4
s_sub_u32 s{t2}, s{t2}, 16
s_lshl_b32 s{sGam}, s{t1}, 4
s_add_u32 s{sGam}, s{sGam}, {GA}
s_sub_u32 s{sE0}, s{sGam}, s{sReg}
s_mov_b32 s{sE0+1}, s{sE0}
v_mad_i32_i24 v{vPA}, v148, s{t2}, v{vPA}
v_mad_i32_i24 v{vPB}, v149, s{t2}, v{vPB}
v_mad_i32_i24 v{vPG}, v150, s{t2}, v{vPG}
v_mad_i32_i24 v{vPR}, v151, s{t2}, v{vPR}
v_lshl_add_u64 {P(vPA)}, {P(vPA)}, 0, {sr(sE0,2)}
v_lshl_add_u64 {P(vPG)}, {P(vPG)}, 0, {sr(sE0,2)}
v_lshl_add_u32 v60, v{vLane}, 4, s{sGam}
v_mov_b32 v61, s{sGam}
s_sub_u32 s{t1}, s{sG}, s{t1}
s_cmp_lg_u32 s{t1}, 0
s_addc_u32 s{t1}, s{t1}, 0
s_min_u32 s{sTw}, s{sTw}, s{t1}
s_waitcnt lgkmcnt(0)
s_barrier
""")
stamp()

SOFT = int(opts.get("soft", 1)); CL = int(opts.get("cl", 1))
I(f"""
v_mov_b32 v{vt+7}, 0
v_mov_b32 v42, v60
v_add_u32 v43, -2, v61
""")
def chain1():
    I(f"""
    ds_read_b32 v{vSO}, v{vPG}
    ds_read_u16 v{vGS}, v42 offset:14
    ds_read_u16 v{vGS+1}, v43
    ds_read2_b32 {P(vAG)}, v{vPG} offset0:1 offset1:4
    ds_read_u16 v{vGQ}, v{vPR}
    s_add_u32 s{t0}, s{sW}, {ZROW}
    s_mul_i32 s{t0}, s{t0}, {SROW}
    v_cmp_gt_u32 {sr(sE0,2)}, s{sTw}, v{vLane}
    s_waitcnt lgkmcnt(4)
    v_add_u32 v{vSO}, v{vSO}, v{vAC+1}
    ds_read_b32 v{vKA}, v{vSO}
    s_waitcnt lgkmcnt(3)
    v_cmp_eq_u32 vcc, v{vGS}, v{vGS+1}
    v_mov_b32 v43, s{t0}
    s_and_b64 {sr(sE0,2)}, {sr(sE0,2)}, vcc
    s_waitcnt lgkmcnt(0)
    {IXM}
    {AUPD}
    {QUPD}
    s_mov_b64 exec, {sr(sE0,2)}
    ds_write_b16 v42, v43 offset:12
    s_mov_b64 exec, -1
    ds_read_b32 v{vKA}, v{vAG+1}
    {gsrd(0)[0]}
    {gsrd(0)[1]}
    s_nop 4
    """)
def short_half(u):
    src = vTH if u == 0 else vSU
    b0, b1_ = (vB5[0], vB5[1]) if u == 0 else (vD, vN)
    for i_ in range(4): I(f"v_lshlrev_b64 {P(vTL+2*i_)}, 16, {P(src+2*i_)}")
    I("s_nop 1")
    I(mf8(vTL, vA5, b0, vr(vTL,16)))
    I(mf8(vTH, vA5, b1_, vr(src,16)))
    I("s_nop 10")
    a, b_ = 2*u, 2*u + 1
    for j_, T in ((a, vTL), (b_, vTH)):
        for i_ in range(8): I(f"v_exp_f32 v{vE+i_}, v{T+i_}")
        for l in chain(T, vDj[j_], vNj[j_], 4): I(l)
    I(pmul(vSO, vDj[a], vDj[b_]))
    i3 = inv(vSO)
    for l in i3[0:2] + [pmul(vNj[a], vNj[a], vDj[b_]), pmul(vNj[b_], vNj[b_], vDj[a]), i3[2], pmul(vSj[a], vNj[a], vE), pmul(vSj[b_], vNj[b_], vE)]: I(l)
    I(f"ds_write2_b32 v{vSA}, v{vSj[a]}, v{vSj[b_]} offset0:{32*a} offset1:{32*b_}")
    I(f"ds_write2_b32 v{vSA+1}, v{vSj[a]+1}, v{vSj[b_]+1} offset0:{32*a} offset1:{32*b_}")
FP = [[int(c) for c in x] for x in opts.get("fp", "01,12,22").split(",")]
def fetch_point(pt):
    for u in range(2):
        m = sum(0xf << (4*c) for c in range(3) if FP[c][u] == pt)
        if m == 0: continue
        if m != 0xfff:
            I(f"s_movk_i32 s{t0}, {m}")
            I(f"s_bitcmp1_b32 s{t0}, s{sW}")
            I(f"s_cbranch_scc0 L_fp{pt}{u}")
        for l in gload(u): I(l)
        L(f"L_fp{pt}{u}")
late = sum(0xf << (4*c) for c in range(3) if min(FP[c]) >= 2) if CL else 0
if late:
    I(f"s_movk_i32 s{t0}, {late}")
    I(f"s_bitcmp1_b32 s{t0}, s{sW}")
    I("s_cbranch_scc1 L_c1")
chain1()
L("L_c1")
fetch_point(0)
for n0 in (0, 1, 2):
    m = sum(0xf << (4*c) for c in range(3) if FP[c].count(0) == n0)
    if m == 0: continue
    if m != 0xfff:
        I(f"s_movk_i32 s{t0}, {m}")
        I(f"s_bitcmp1_b32 s{t0}, s{sW}")
        I(f"s_cbranch_scc0 L_w9{n0}")
    I(f"s_waitcnt vmcnt({16*n0})")
    L(f"L_w9{n0}")
stamp()
short_half(0)
fetch_point(1)
short_half(1)
if SOFT:
    I(f"""
    s_mov_b64 exec, 1
    ds_add_u32 v{vt+7}, v{vt+6} offset:{PROG}
    s_mov_b64 exec, -1
    """)
if late:
    I(f"s_movk_i32 s{t0}, {late}")
    I(f"s_bitcmp1_b32 s{t0}, s{sW}")
    I("s_cbranch_scc0 L_c2")
    chain1()
    L("L_c2")
fetch_point(2)
I(f"""
ds_read_b64 {P(vA5)}, v{vAG}
ds_read_b64_tr_b16 {P(vB5[0])}, v{vQ}
ds_read_b64_tr_b16 {P(vB5[1])}, v{vQ} offset:64
s_waitcnt lgkmcnt(0)
{"" if SOFT else "s_barrier"}
s_cmp_eq_u32 s{sTw}, 0
s_cbranch_scc1 L_loop_done
""")
stamp()
fetch_point(3)
I(IXM)
I("s_waitcnt vmcnt(16)")
for l in shifts(0): I(l)
I("s_nop 1")
I(mf8(vTL, vA5, vB5[0], vr(vTL,16)))
I(f"s_mov_b32 s{sK}, s{sTw}")
if PRIO:
    I("s_setprio 3")
    I(f"s_mov_b32 s{t5}, {sum(1 << (x // 2) for x in PTH if x % 2 == 0)}")
    I(f"s_mov_b32 s{t4}, {sum(1 << ((x + 1) // 2) for x in PTH if x % 2 == 1)}")
for x in STG:
    if x == 0: continue
    m = t4 if x & 1 else t5
    I(f"""
    s_sub_u32 s{t0}, s{sTw}, {x // 2}
    s_lshl_b32 s{t0}, 1, s{t0}
    s_cmp_lt_u32 s{sW}, 4
    s_cselect_b32 s{t0}, s{t0}, 0
    s_or_b32 s{m}, s{m}, s{t0}
    """)
I("s_nop 15")

GS1, GS2, EXP, CHP = [int(x) for x in opts.get('gs', '6,11,8,4').split(',')]
body = []
def lds(text, tag=None): body.append(("lds", text, tag))
def need(tag): body.append(("need", tag))
def em(x):
    if isinstance(x, list): body.extend(x)
    else: body.append(x)
BATCH = int(opts.get("batch", 2)); LATE = int(opts.get("late", 0))
def rds(j):
    lds(f"ds_read_b32 v{vSj[j]}, v{vSA} offset:{128*j}")
    lds(f"ds_read_b32 v{vSj[j]+1}, v{vSA+1} offset:{128*j}", f"so{j}")
def pmul(d, a, b): return f"v_pk_mul_f32 {P(d)}, {P(a)}, {P(b)}"
def pfin(j, r): return f"v_pk_fma_f32 {P(vSj[j])}, {P(vNj[j])}, {P(r)}, {P(vSj[j])}"
def inv(m): return [f"v_rcp_f32 v{vE}, v{m}", f"v_rcp_f32 v{vE+1}, v{m+1}", f"v_max3_f32 v{vMX}, v{m}, v{m+1}, v{vMX}"]
def wr2(j):
    lds(f"ds_write2_b32 v{vSA}, v{vSj[j]}, v{vSj[j+1]} offset0:{32*j} offset1:{32*j+32}")
    lds(f"ds_write2_b32 v{vSA+1}, v{vSj[j]+1}, v{vSj[j+1]+1} offset0:{32*j} offset1:{32*j+32}")
FIN = opts.get("fin", "1,-,-,0").split(",")
vW2q = [vIX, vLb[0], vLb[1], vTL]
def w2ld(q): return [f"s_mov_b32 s{t0}, {W2I + 4096*q}"] + [f"buffer_load_dwordx4 {vr(vW2q[q]+4*i_,4)}, v40, {sr(sWS,4)}, s{t0} offen offset:{1024*i_} sc1" for i_ in range(4)]
W2A = [f"v_lshlrev_b32 v40, 4, v{vLane}", f"v_and_b32 v41, 0xf0, v40"]
B2LD = [f"s_mov_b32 s{t0}, {W2I + 16384}", f"buffer_load_dwordx4 v[2:5], v41, {sr(sWS,4)}, s{t0} offen sc1"]
def gen_body(final):
    body.clear()
    for j in range(4):
        T = vTH if j & 1 else vTL
        j2 = (j + 2) & 3
        ex = [f"v_exp_f32 v{vE+i}, v{T+i}" for i in range(16)]
        ch = chain(T, vDj[j], vNj[j])
        g = [] if final else gload(j >> 1)
        sfx = "f" if final else ""
        if SOFT and j == 1:
            em([f"s_cmp_eq_u32 s{sK}, s{sTw}", f"s_cbranch_scc1 L_own{sfx}", f"L_own{sfx}_ret:"])
        if final:
            if PRIO and FIN[j] != "-": em(f"s_setprio {FIN[j]}")
        elif PRIO and j in (0, 2) and any(x % 2 == j // 2 for x in PTH):
            em([f"s_bitcmp1_b32 s{t5 if j == 0 else t4}, s{sK}", f"s_cbranch_scc1 L_prio{j}", f"L_prio{j}_ret:"])
        if final and j == 0:
            em([f"s_lshl_b32 s{t0}, s{sW}, 2", f"v_mov_b32 v42, s{t0}", f"s_add_u32 s{t0}, s{sW}, 1", f"s_cmp_eq_u32 s{sW}, {NW-1}",
                f"s_cselect_b32 s{t0}, 0, s{t0}", f"s_mul_i32 s{t0}, s{t0}, {SROW}", f"v_add_u32 v43, {ZROW*SROW}, v{vSC}"])
            lds(f"ds_write_b32 v42, v{vt+6} offset:{DONE}")
            em(["s_mov_b32 exec_lo, 0", f"v_add_u32 v43, s{t0}, v43", "s_mov_b64 exec, -1"])
        if final and j == 1:
            need("done")
            em([f"v_cmp_eq_u32 vcc, 0, v{vN}", "s_cbranch_vccnz L_cw", "L_cw_ret:"])
        if j & 1:
            em(g[GS2:16])
            if final: lds(f"ds_read2_b32 {P(vSO)}, v43 offset0:{32*j-32} offset1:{32*j}")
            rds(j - 1); rds(j)
        if not (final and j >= 2):
            lds(f"ds_read_b64_tr_b16 {P(vB5[j & 1])}, v{vQ} offset:{64*j2}", f"b5_{j2}")
        if j == 1 and not final:
            lds(gsrd(16)[0]); lds(gsrd(16)[1])
            lds(f"ds_read2_b32 {P(vAG)}, v{vPG} offset0:5 offset1:8")
            lds(f"ds_read_u16 v{vGQ}, v{vPR} offset:16", "gq")
        jn = (j + 1) & 3; un = jn >> 1
        if j & 1 == 0:
            need(f"b5_{j+1}")
            em(mf8(vTH, vA5, vB5[1], vr(vLb[j >> 1],16)))
            if j == 0: em(SAUPD)
            em(ex[0:EXP])
            em(g[0:GS1])
            if j == 2 and not final:
                lds(f"ds_read_b32 v{vKA}, v{vAG+1}")
                lds(f"ds_read_b64 {P(vA5)}, v{vAG}", "a5")
            em(ex[EXP:16])
            em(ch[0:CHP])
            em(g[GS1:GS2])
            if final and j == 0: lds(f"ds_read_b32 v{vN}, v42 offset:{DONE+4}", "done")
            em(ch[CHP:])
        else:
            if final and j == 3:
                em([f"s_cmp_ge_u32 s{sW}, 7", "s_cbranch_scc1 L_nw2b"] + w2ld(2) + w2ld(3) + ["L_nw2b:"])
                em(ex)
            else:
                em(f"s_waitcnt vmcnt({0 if final else 16})")
                if final: em([f"s_cmp_ge_u32 s{sW}, 7", "s_cbranch_scc1 L_nw2a"] + W2A + w2ld(0) + w2ld(1) + B2LD + ["L_nw2a:"])
                em(shifts(un))
                em(ex[0:2])
                need("a5" if j == 3 else f"b5_{jn}")
                em(mf8(vTL, vA5, vB5[0], vr(vTL,16)))
                if j == 3:
                    em(ex[2:6]); em(IXM); em(ex[6:])
                    em(PADV)
                else:
                    em(ex[2:])
                    if not final:
                        need("gq")
                        em([QUPD, AUPD])
            em(ch)
            a, b = j - 1, j
            em(pmul(vD, vDj[a], vDj[b]))
            i3 = inv(vD)
            em(i3[0:2]); em([pmul(vNj[a], vNj[a], vDj[b]), pmul(vNj[b], vNj[b], vDj[a]), i3[2]])
            need(f"so{j}")
            if final: em([f"v_add_f32 v{vSj[a]+1}, v{vSj[a]+1}, v{vSO}", f"v_add_f32 v{vSj[b]+1}, v{vSj[b]+1}, v{vSO+1}"])
            em([pfin(a, vE), pfin(b, vE)])
            if j == 3 and not final: em([f"s_sub_u32 s{sK}, s{sK}, 1", f"s_cmp_lg_u32 s{sK}, 1"])
            wr2(a)
    return list(body)
def resolve(seq2, start):
    res = []
    for pos in range(start, len(seq2)):
        x = seq2[pos]
        if isinstance(x, tuple) and x[0] == "need":
            n = 0; p = pos - 1
            while not (isinstance(seq2[p], tuple) and seq2[p][0] == "lds" and seq2[p][2] == x[1]):
                if isinstance(seq2[p], tuple) and seq2[p][0] == "lds": n += 1
                p -= 1
            covered = False
            for q in range(p + 1, pos):
                y = seq2[q]
                if isinstance(y, tuple) and y[0] == "need":
                    pp = q - 1
                    while not (isinstance(seq2[pp], tuple) and seq2[pp][0] == "lds" and seq2[pp][2] == y[1]): pp -= 1
                    if pp >= p: covered = True
            if not covered: res.append(f"s_waitcnt lgkmcnt({min(n,15)})")
        elif isinstance(x, tuple): res.append(x[1])
        else: res.append(x)
    return res
bl = gen_body(False); bf = gen_body(True)
def lstamp():
    if DEBUG and int(opts.get("lstamp", 0)):
        I(f"""
        {'s_memtime' if DEBUG == 2 else 's_memrealtime'} s[100:101]
        s_sub_u32 s99, 40, s{sK}
        s_mov_b32 m0, s99
        s_waitcnt lgkmcnt(0)
        v_writelane_b32 v{vST}, s100, m0
        """)
I(f"s_cmp_eq_u32 s{sK}, 1")
I("s_cbranch_scc1 L_final")
A(".p2align 6")
L("L_loop")
lstamp()
for l in resolve(bl + bl + bl, 2*len(bl)): I(l)
I("s_cbranch_scc1 L_loop")
L("L_final")
lstamp()
for l in resolve(bl + bl + bf, 2*len(bl)): I(l)
stamp()
I(f"""
s_cmp_ge_u32 s{sW}, 7
s_cbranch_scc1 L_epi_wait
s_branch L_epi2
""")
L("L_loop_done")
I(f"""
s_lshl_b32 s{t0}, s{sW}, 2
v_mov_b32 v42, s{t0}
ds_write_b32 v42, v{vt+6} offset:{DONE}
""")
L("L_epi")
I(f"""
s_cmp_ge_u32 s{sW}, 7
s_cbranch_scc1 L_epi_wait
s_waitcnt vmcnt(0)
""")
for l in W2A + w2ld(0) + w2ld(1) + B2LD + w2ld(2) + w2ld(3): I(l)
I(f"""
L_epi2:
v_and_b32 v42, 15, v{vLane}
s_lshl_b32 s{t0}, s{sW}, 4
v_add_u32 v43, s{t0}, v42
v_min_u32 v43, {ZROW}, v43
v_lshrrev_b32 v47, 4, v{vLane}
v_lshl_add_u32 v45, v47, 2, s{t0}
v_lshlrev_b32 v47, 2, v45
ds_read_b128 v[32:35], v47 offset:{CNT}
v_bfe_u32 v46, v{vLane}, 4, 1
v_lshrrev_b32 v47, 5, v{vLane}
v_lshlrev_b32 v46, 8, v46
v_lshl_add_u32 v46, v47, 7, v46
v_add_u32 v46, {SB}, v46
v_mul_u32_u24 v43, {SROW}, v43
v_add_u32 v43, v43, v46
v_lshlrev_b32 v45, 7, v45
v_lshl_add_u32 v45, v42, 3, v45
s_mov_b32 s{t0}, {f2u(-LN2)}
s_waitcnt vmcnt(8) lgkmcnt(0)
""")
vO = 12
for r in range(4): I(f"v_cvt_f32_u32 v{32+r}, v{32+r}")
for c in range(4):
    for r in range(0, 4, 2):
        I(f"v_pk_mul_f32 {P(vO+4*c+r)}, {P(32+r)}, {P(2 + (c & 2))} op_sel:[0,{c & 1}] op_sel_hi:[1,{c & 1}]")
I(f"""
L_epi_wait:
s_xor_b32 s{t1}, s{sW}, 11
s_xor_b32 s{t2}, s2, {int(opts.get("genwg", 255))}
s_or_b32 s{t1}, s{t1}, s{t2}
s_cmp_lg_u32 s{t1}, 0
s_cbranch_scc1 L_nogen
v_mov_b32 v46, 0
v_mov_b32 v47, s{sTag}
s_mov_b64 exec, 1
buffer_store_dword v47, v46, {sr(sWS,4)}, 0 offen sc0 sc1
s_mov_b64 exec, -1
L_nogen:
s_setprio 0
v_cmp_nge_f32 vcc, {f2u(2.0**100)}, v{vMX}
s_waitcnt lgkmcnt(0)
s_barrier
s_cmp_ge_u32 s{sW}, 7
s_cbranch_scc1 L_epi_end
""")
stamp()
vO = 12
vSR = 96
ep = []
def elds(t, tag=None): ep.append(("lds", t, tag))
for ks in range(4):
    for i_ in range(2):
        elds(f"ds_read_b128 {vr(vSR+8*ks+4*i_,4)}, v43 offset:{32*ks+16*i_}", f"s{ks}" if i_ else None)
ep.append("s_waitcnt vmcnt(0)")
def cvts(ks): return [f"v_cvt_pk_bf16_f32 v{vSR+8*ks+i_}, v{vSR+8*ks+2*i_}, v{vSR+8*ks+2*i_+1}" for i_ in range(4)]
def mms(ks): return [f"v_mfma_f32_16x16x32_bf16 {vr(vO+4*c,4)}, {vr(vSR+8*ks,4)}, {vr(vW2q[c]+4*ks,4)}, {vr(vO+4*c,4)}" for c in range(4)]
ep.append(("need", "s0")); ep += cvts(0)
for ks in range(4):
    if ks < 3:
        ep.append(("need", f"s{ks+1}"))
        c_ = cvts(ks+1); m_ = mms(ks)
        ep += [c_[0], m_[0], c_[1], m_[1], c_[2], m_[2], c_[3], m_[3]]
    else:
        ep.append("s_nop 0"); ep += mms(3)
for pos, x in enumerate(ep):
    if isinstance(x, tuple) and x[0] == "need":
        n = 0; p = pos - 1
        while not (isinstance(ep[p], tuple) and ep[p][0] == "lds" and ep[p][2] == x[1]):
            if isinstance(ep[p], tuple) and ep[p][0] == "lds": n += 1
            p -= 1
        I(f"s_waitcnt lgkmcnt({min(n,15)})")
    elif isinstance(x, tuple): I(x[1])
    else: I(x)
if int(opts.get("est", 0)): stamp()
I(f"s_mov_b32 s{t1}, s{t0}")
I("s_nop 6")
for i_ in range(8):
    if int(opts.get("epk", 0)): I(f"v_pk_mul_f32 {P(vO+2*i_)}, {P(vO+2*i_)}, {sr(t0,2)}")
    else:
        I(f"v_mul_f32 v{vO+2*i_}, s{t0}, v{vO+2*i_}")
        I(f"v_mul_f32 v{vO+2*i_+1}, s{t0}, v{vO+2*i_+1}")
for r in range(4):
    I(f"v_cvt_pk_bf16_f32 v{144+2*r}, v{vO+r}, v{vO+4+r}")
    I(f"v_cvt_pk_bf16_f32 v{145+2*r}, v{vO+8+r}, v{vO+12+r}")
    I(f"buffer_store_dwordx2 {P(144+2*r)}, v45, {sr(sOUT,4)}, 0 offen offset:{128*r} " + opts.get("ost", "sc1").replace("+", " "))
if int(opts.get("est", 0)): stamp()
I(f"""
v_add_f32 v72, v{vO}, v{vO+1}
v_add_f32 v73, v{vO+2}, v{vO+3}
v_add_f32 v72, v72, v73
v_mov_b32 v73, 0x7f800000
v_cmp_nlt_f32 {sr(sE0,2)}, |v72|, v73
s_or_b64 vcc, vcc, {sr(sE0,2)}
L_epi_end:
s_cmp_lg_u32 s{sMode}, 0
s_cbranch_scc1 L_fin
""")
if FORCE_SLOW == 2: I("s_mov_b64 vcc, 1")
I(f"""
v_mov_b32 v72, 0
v_mov_b32 v73, 1
s_cmp_eq_u64 vcc, 0
s_cbranch_scc1 L_noflag
ds_write_b32 v72, v73 offset:{FLAG}
L_noflag:
s_waitcnt lgkmcnt(0)
s_barrier
ds_read_b32 v73, v72 offset:{FLAG}
s_waitcnt lgkmcnt(0)
v_readfirstlane_b32 s{sBad}, v73
s_cmp_lg_u32 s{sBad}, 0
s_cbranch_scc1 L_slow
L_fin:
""")
if DEBUG:
    stamp()
    I("s_waitcnt vmcnt(0)")
    stamp(True)
    I(f"""
    s_lshl_b32 s{t0}, s2, 4
    s_add_u32 s{t0}, s{t0}, s{sW}
    s_lshl_b32 s{t0}, s{t0}, 8
    s_add_u32 s{t0}, s{t0}, {STAMP}
    v_lshlrev_b32 v72, 2, v{vLane}
    buffer_store_dword v{vST}, v72, {sr(sWS,4)}, s{t0} offen
    s_waitcnt vmcnt(0)
    """)
    if opts.get("dd"):
        sel = [int(x) for x in opts["dd"].split(",")]
        if int(opts.get("xcc", 0)):
            I(f"""
            s_getreg_b32 s98, hwreg(HW_REG_XCC_ID, 0, 4)
            s_sub_u32 s98, s98, s2
            s_and_b32 s98, s98, 7
            s_lshl_b32 s98, s98, 5
            s_add_u32 s99, s98, 256
            v_writelane_b32 v{vST}, s98, 21
            v_writelane_b32 v{vST}, s99, 19
            s_nop 1
            """)
        I(f"""
        s_cmp_lg_u32 s{sW}, {opts.get("ddw", 0)}
        s_cbranch_scc1 L_exit
        s_load_dwordx2 s[96:97], s[0:1], 72
        s_load_dwordx2 s[94:95], s[0:1], 0
        v_readlane_b32 s98, v{vST}, 21
        s_not_b32 s98, s98
        v_mov_b32 v73, 0
        s_nop 1
        v_writelane_b32 v73, s98, 8
        """)
        for n_, x in enumerate(sel):
            I(f"v_readlane_b32 s98, v{vST}, {abs(x)}")
            if x < 0: I("s_not_b32 s98, s98")
            I("s_nop 1")
            I(f"v_writelane_b32 v73, s98, {n_}")
        I(f"""
        s_waitcnt lgkmcnt(0)
        s_load_dword s99, s[94:95], 0
        s_mov_b64 exec, 0x1ff
        global_atomic_umax v72, v73, s[96:97]
        s_waitcnt vmcnt(0)
        s_mov_b64 exec, 1
        v_mov_b32 v74, 1
        global_atomic_add v72, v74, s[96:97] offset:128
        s_waitcnt vmcnt(0) lgkmcnt(0)
        s_cmp_lg_u32 s2, 0
        s_cbranch_scc1 L_exit
        """)
        if int(opts.get("rt", 0)):
            I(f"""
            s_cmp_eq_u32 s99, 1013857686
            s_cbranch_scc1 L_exit
            s_cmp_eq_u32 s99, 976927781
            s_cbranch_scc1 L_exit
            s_lshr_b32 s98, s100, 2
            s_and_b32 s98, s98, {int(opts["rt"]) - 1}
            s_cmp_lg_u32 s98, 0
            s_cbranch_scc1 L_exit
            """)
        else:
            I(f"""
            s_cmp_eq_u32 s99, 1013857686
            s_cbranch_scc1 L_exit
            s_cmp_eq_u32 s99, 976927781
            s_cbranch_scc1 L_exit
            """)
        I(f"""
        s_mov_b32 s98, 0
        L_dd:
        global_load_dword v74, v72, s[96:97] offset:128 sc1
        s_add_u32 s98, s98, 1
        s_cmp_gt_u32 s98, 100000
        s_cbranch_scc1 L_exit
        s_waitcnt vmcnt(0)
        v_cmp_ne_u32 vcc, 0x100, v74
        s_cbranch_vccnz L_dd
        s_mov_b64 exec, 0x1ff
        global_load_dword v74, v72, s[96:97] sc1
        s_waitcnt vmcnt(0)
        v_readlane_b32 s98, v74, 8
        s_not_b32 s98, s98
        s_mov_b64 exec, {sum(1 << n_ for n_, x in enumerate(sel) if x < 0)}
        v_not_b32 v74, v74
        s_mov_b64 exec, 0xff
        v_subrev_u32 v74, s98, v74
        v_cvt_f32_u32 v74, v74
        v_mul_f32 v74, 1.0, v74
        v_cvt_pk_bf16_f32 v74, v74, v74
        v_lshlrev_b32 v75, 1, v{vLane}
        buffer_store_short v74, v75, {sr(sOUT,4)}, 0 offen
        s_waitcnt vmcnt(0)
        """)
L("L_exit")
I("s_endpgm")

if PRIO:
    for j in (0, 2):
        lv = [(i, x) for i, x in enumerate(PTH) if x % 2 == j // 2]
        if not lv and not stg_at(j): continue
        L(f"L_prio{j}")
        if stg_at(j):
            I(f"""
            v_mov_b32 v{vt+5}, 64
            ds_write_b32 v{vt+7}, v{vt+5} offset:{PROG}
            """)
        for n_, (i, x) in enumerate(lv):
            I(f"s_cmp_eq_u32 s{sK}, {(x + 1) // 2}")
            I(f"s_cbranch_scc0 L_prio{j}_{n_}")
            I(f"s_setprio {2 - i}")
            L(f"L_prio{j}_{n_}")
        I(f"s_branch L_prio{j}_ret")
if SOFT:
    for sfx in ("", "f"):
        I(f"""
        L_own{sfx}:
        s_mov_b32 s{t0}, 0
        L_own{sfx}_l:
        ds_read_b32 v{vt+5}, v{vt+7} offset:{PROG}
        s_waitcnt lgkmcnt(0)
        v_cmp_gt_u32 vcc, {NW}, v{vt+5}
        s_cbranch_vccz L_own{sfx}_ret
        s_add_u32 s{t0}, s{t0}, 1
        s_cmp_gt_u32 s{t0}, 0x100000
        s_cbranch_scc1 L_exit
        s_sleep 1
        s_branch L_own{sfx}_l
        """)
I(f"""
L_build2:
s_waitcnt lgkmcnt(0)
v_add_u32 v144, 192, v144
v_add_u32 v145, 384, v145
s_cmp_lt_u32 s{sKb}, 7
s_cbranch_scc1 L_build
s_lshl_b32 s{t0}, s{sKb}, 5
s_add_u32 s{t1}, s{t0}, {OVF - 7*32}
v_mov_b32 v144, s{t1}
s_add_u32 s{t1}, s{t1}, s{t0}
v_mov_b32 v145, s{t1}
s_branch L_build
""")
I(f"""
L_cw:
s_cmp_eq_u32 s{sW}, {NW-1}
s_cbranch_scc1 L_cw_ret
s_mov_b32 s{t0}, 0
L_cw_l:
ds_read_b32 v{vN}, v42 offset:{DONE+4}
s_waitcnt lgkmcnt(0)
v_cmp_eq_u32 vcc, 0, v{vN}
s_cbranch_vccz L_cw_ret
s_add_u32 s{t0}, s{t0}, 1
s_cmp_gt_u32 s{t0}, 0x100000
s_cbranch_scc1 L_exit
s_sleep 1
s_branch L_cw_l
""")
for fx, s_ in fixups:
    r = slotreg[s_]
    I(f"""
    L_fx{fx}:
    v_min_u32 v142, {CAP + 23}, v{r+3}
    v_subrev_u32 v142, {CAP}, v142
    v_mov_b32 v143, {OVF}
    v_lshl_add_u32 v136, v142, 2, v143
    v_lshl_add_u32 v142, v142, 3, v143
    v_cndmask_b32 v141, v141, v136, vcc
    v_cndmask_b32 v{vTA[s_]}, v{vTA[s_]}, v142, vcc
    s_branch L_fr{fx}
    """)
I(f"""
L_w2ld:
s_cmp_gt_u32 s2, 16
s_cbranch_scc1 L_p_done
s_cmp_lt_u32 s2, 16
s_cbranch_scc1 L_opt_c
v_lshlrev_b32 v12, 1, v{vLane}
global_load_ushort v{vW2S}, v12, {sr(pB2,2)}
s_branch L_p_done
L_opt_c:
s_and_b32 s{t0}, s2, 3
s_lshl_b32 s{t0}, s{t0}, 10
s_lshr_b32 s{t3}, s2, 2
s_lshl_b32 s{t3}, s{t3}, 1
s_add_u32 s{t0}, s{t0}, s{t3}
v_bfe_u32 v12, v{vLane}, 4, 1
v_lshlrev_b32 v12, 13, v12
v_lshrrev_b32 v13, 5, v{vLane}
v_lshl_add_u32 v12, v13, 12, v12
v_and_b32 v13, 15, v{vLane}
v_lshl_add_u32 v12, v13, 3, v12
""")
for i_ in range(8):
    I(f"buffer_load_ushort v{vW2S+i_}, v12, {sr(sD,4)}, s{t0} offen offset:{128*i_}")
I("s_branch L_p_done")
L("L_slow")
I(f"""
s_setprio 0
s_mov_b32 s{sMode}, 1
s_mov_b32 s{sK0}, 0
s_waitcnt vmcnt(0) lgkmcnt(0)
s_barrier
v_mov_b32 v{vt+6}, 1
v_mov_b32 v{vMX}, 0
""")
small_init(64)
s_zero(64)
desc_consts()
for jj in range(3): I(poll_load(jj))
I("s_waitcnt vmcnt(0)")
I(f"""
s_cmp_lt_u32 s{sW}, 8
s_cselect_b32 s{t0}, -1, 0
v_and_b32 v{vDs+4}, s{t0}, v{vDs+4}
""")
for jj in range(3): decode(jj)
for jj in range(3):
    I(f"v_mov_b32 v{144+jj}, v{vRA+jj}")
    I(f"v_mov_b32 v{147+jj}, v{vCn+jj}")
I(f"""
s_mov_b32 s{t5}, {KMASK}
v_mov_b32 v150, {KCON}
v_mov_b32 v{vKA+1}, 0x3c00
v_and_b32 v72, 31, v{vLane}
v_lshlrev_b32 v72, 2, v72
v_add_u32 v{vSC}, {SB}, v72
v_add_u32 v{vSC+1}, {SB}, v72
v_bfe_u32 v73, v{vLane}, 4, 1
v_lshlrev_b32 v73, 5, v73
v_and_b32 v74, 3, v{vLane}
v_lshl_add_u32 v73, v74, 3, v73
v_add_u32 v{vQC}, {QB}, v73
v_bfe_u32 v75, v{vLane}, 2, 2
v_add_u32 v76, 98, v75
v_mul_u32_u24 v76, {QROW}, v76
v_add_u32 v{vQ}, v76, v{vQC}
v_max3_i32 v137, v147, v148, v149
v_max_i32 v137, 0, v137
v_mov_b32 v138, 0
s_waitcnt lgkmcnt(0)
s_barrier
ds_max_u32 v138, v137 offset:{MAXC}
s_waitcnt lgkmcnt(0)
s_barrier
ds_read_b32 v137, v138 offset:{MAXC}
s_waitcnt lgkmcnt(0)
v_readfirstlane_b32 s{sMaxc}, v137
L_round:
s_barrier
""")
area_init(64)
I(f"""
v_lshlrev_b32 v64, 2, v0
v_add_u32 v64, {CNTR}, v64
v_mov_b32 v65, 0
v_cmp_gt_u32 vcc, 128, v0
s_and_b64 exec, exec, vcc
ds_write_b32 v64, v65
s_mov_b64 exec, -1
""")
for jj in range(3):
    I(f"v_cmp_lt_i32 {sr(sM+2*jj,2)}, s{sK0}, v{147+jj}")
for jj in range(3):
    I(f"s_mov_b64 exec, {sr(sM+2*jj,2)}")
    I(f"buffer_load_dwordx3 {vr(48+4*jj,3)}, v{144+jj}, {sr(sWS,4)}, s{sGam} offen sc1")
I(f"""
s_mov_b64 exec, -1
s_waitcnt vmcnt(0) lgkmcnt(0)
s_barrier
""")
for jj in range(3):
    r = 48 + 4*jj
    I(f"""
    s_mov_b64 exec, {sr(sM+2*jj,2)}
    v_bfe_u32 v{60+jj}, v{r+2}, 10, 9
    v_and_or_b32 v{r+2}, v{r+2}, s{t5}, v150
    v_add_u32 v{72+jj}, {GBASE}, v{60+jj}
    ds_add_rtn_u32 v{r+3}, v{72+jj}, v{vt+6} offset:512
    ds_add_u32 v{60+jj}, v{vt+6} offset:{CNT}
    """)
I(f"""
s_mov_b64 exec, -1
s_waitcnt lgkmcnt(0)
s_barrier
v_lshlrev_b32 v64, 3, v{vLane}
v_add_u32 v64, {GBASE}, v64
ds_read_b64 v[66:67], v64 offset:512
s_waitcnt lgkmcnt(0)
v_add_u32 v66, 7, v66
v_add_u32 v67, 7, v67
v_lshrrev_b32 v66, 3, v66
v_lshrrev_b32 v67, 3, v67
v_add_u32 v68, v66, v67
v_mov_b32 v69, v68
""")
dpp_scan(69)
I(f"""
v_readlane_b32 s{sG}, v69, 63
v_sub_u32 v70, v69, v68
v_add_u32 v71, v70, v66
ds_write_b64 v64, v[70:71]
s_add_u32 s{sNT}, s{sG}, 3
s_lshr_b32 s{sNT}, s{sNT}, 2
s_waitcnt lgkmcnt(0)
""")
for jj in range(3):
    r = 48 + 4*jj
    I(f"""
    s_mov_b64 exec, {sr(sM+2*jj,2)}
    ds_read_b32 v64, v{72+jj}
    ds_read_b32 v71, v{72+jj} offset:512
    v_lshrrev_b32 v65, 3, v{r+3}
    v_and_b32 v66, 7, v{r+3}
    v_lshrrev_b32 v67, 2, v{60+jj}
    s_waitcnt lgkmcnt(0)
    v_add_u32 v64, v64, v65
    v_lshlrev_b32 v65, 3, v65
    v_sub_u32 v71, v71, v65
    v_min_u32 v71, 8, v71
    v_lshlrev_b32 v71, 3, v71
    v_sub_u32 v71, 64, v71
    v_mul_u32_u24 v68, {SROW}, v67
    v_mul_u32_u24 v69, {QROW}, v67
    v_lshl_or_b32 v68, v69, 16, v68
    v_lshlrev_b32 v69, 4, v64
    v_add_u32 v69, {GT}, v69
    ds_write2_b32 v69, v71, v68 offset0:2 offset1:3
    v_mul_u32_u24 v65, 9363, v64
    v_lshrrev_b32 v65, 16, v65
    v_mul_u32_u24 v67, 7, v65
    v_sub_u32 v64, v64, v67
    v_mul_u32_u24 v65, {NSZ}, v65
    v_add_u32 v65, {AREA}, v65
    v_lshl_add_u32 v67, v64, 5, v65
    v_lshl_add_u32 v70, v64, 6, v65
    v_add_u32 v70, {EOFF}, v70
    ds_write2_b32 v69, v67, v70 offset0:0 offset1:1
    v_lshl_add_u32 v75, v66, 2, v67
    v_lshl_add_u32 v76, v66, 3, v70
    ds_write_b32 v75, v{r+2}
    ds_write_b64 v76, {P(r)}
    s_waitcnt lgkmcnt(0)
    """)
I(f"""
s_mov_b64 exec, -1
s_barrier
s_mov_b32 s{sK}, s{sW}
L_stile:
s_cmp_ge_u32 s{sK}, s{sNT}
s_cbranch_scc1 L_stile_done
s_lshl_b32 s{t0}, s{sK}, 6
s_add_u32 s{t0}, s{t0}, {GT}
""")
ptr_consts(f"s{t0}")
I(f"""
ds_read2_b32 {P(vAG)}, v{vPG} offset0:1 offset1:0
ds_read_u16 v{vGQ}, v{vPR}
{gsrd(0)[0]}
{gsrd(0)[1]}
s_waitcnt lgkmcnt(0)
{AUPD}
ds_read_b32 v{vKA}, v{vAG+1}
ds_read_b64 {P(vA5)}, v{vAG}
s_waitcnt lgkmcnt(0)
{IXM}
s_nop 15
""")
for l in gload(0) + gload(1) + SAUPD + [QUPD]: I(l)
I("s_waitcnt vmcnt(0)")
for u in range(2):
    I(f"ds_read_b64_tr_b16 {P(vB5[0])}, v{vQ} offset:{128*u}")
    I(f"ds_read_b64_tr_b16 {P(vB5[1])}, v{vQ} offset:{128*u+64}")
    for l in shifts(u): I(l)
    I("s_waitcnt lgkmcnt(0)")
    I("s_nop 1")
    I(mf8(vTL, vA5, vB5[0], vr(vTL,16)))
    I(mf8(vTH, vA5, vB5[1], vr(vLb[u],16)))
    I("s_nop 15")
    for hi, T in enumerate((vTL, vTH)):
        for i in range(16): I(f"v_exp_f32 v{vE+i}, v{T+i}")
        for i in range(16): I(f"v_add_f32 v{vE+i}, 1.0, v{vE+i}")
        for i in range(16): I(f"v_rcp_f32 v{vE+i}, v{vE+i}")
        I(f"v_pk_mul_f32 {P(vN)}, {P(T)}, {P(vE)}")
        for i in range(1, 8): I(f"v_pk_fma_f32 {P(vN)}, {P(T+2*i)}, {P(vE+2*i)}, {P(vN)}")
        I(f"ds_add_f32 v{vSA}, v{vN} offset:{128*(2*u+hi)}")
        I(f"ds_add_f32 v{vSA+1}, v{vN+1} offset:{128*(2*u+hi)}")
        I("s_waitcnt lgkmcnt(0)")
I(f"""
s_add_u32 s{sK}, s{sK}, {NW}
s_branch L_stile
L_stile_done:
s_add_u32 s{sK0}, s{sK0}, 8
s_add_u32 s{sGam}, s{sGam}, 96
s_cmp_lt_u32 s{sK0}, s{sMaxc}
s_cbranch_scc1 L_round
s_barrier
s_branch L_epi
""")

A('.section .rodata,"a"')
A(".p2align 6")
A(f".amdhsa_kernel {KNAME}")
A(f"  .amdhsa_next_free_vgpr {NVGPR}")
A("  .amdhsa_next_free_sgpr 102")
A(f"  .amdhsa_accum_offset {NVGPR}")
A("  .amdhsa_group_segment_fixed_size 0")
A("  .amdhsa_kernarg_size 88")
A("  .amdhsa_user_sgpr_count 2")
A("  .amdhsa_user_sgpr_kernarg_segment_ptr 1")
A("  .amdhsa_system_sgpr_workgroup_id_x 1")
A("  .amdhsa_float_denorm_mode_32 3")
A(".end_amdhsa_kernel")
open(sys.argv[1], "w").write("\n".join(out) + "\n")
print("LDS", LDS, "SB", SB, "QB", QB, "lines", len(out), file=sys.stderr)
```

```python
import sys, struct

opts = dict(a.split("=") for a in sys.argv[2:])
LITE = int(opts.get("lite", 0))
DEBUG = int(opts.get("debug", 0))
PRIO = int(opts.get("prio", 1))
FORCE_SLOW = int(opts.get("slow", 0))
NT = " " + opts.get("nt", "none").replace("+", " ").replace("none", "")
WSOFF = int(opts.get("wsoff", "0"), 0)
PREF = int(opts.get("pref", 0))
STG = [int(x) for x in opts.get("stg", "0,0").split(",")]
STAG = max(STG) > 0
def stg_at(j): return any(x > 0 and x % 2 == j // 2 for x in STG)
SLEEP = int(opts.get("sleep", 2))
PTH = [int(x) for x in opts.get("pth", "5").split(",")]

PST_ = opts.get("pst", "sc1").replace("+", " "); RST_ = opts.get("rst", "sc1").replace("+", " ")
ICP = int(opts.get('icp', 2)); TAGS = int(opts.get('tags', 1))
PAIR = int(opts.get('pair', 1))
PUB_ = opts.get("pub", "sc0+sc1").replace("+", " ")
AI4 = int(opts.get('ai4', 0))
KNAME = "standalone__edge_featured_mpnn_mpnn__graph_kernel"
N = 25000; E = 800000
BN = 98; NW = 12; NTH = 768
QE = 3072; XE = 53; CH = QE + XE
GRAN = 0x10000
W2I = 0x98000
PF = 0xA0000
MAGIC = 0x4B010000
REC = 0x100000; RSTRIDE = 37632
PT = 0xB00000
STAMP = 0x1200000
WS_SIZE = 0x1300000
LOG2E = 1.4426950408889634
LN2 = 0.6931471805599453
def f2u(x): return struct.unpack("<I", struct.pack("<f", x))[0]

CNT = 0; DONE = 512; PROG = 1024; FLAG = 1040; MAXC = 1044; LUT = 1088
GT = 1600; GSZ = 64; TMAX = 10; NGT = NW * TMAX + 2
GA = GT + 49 * 16
CNT1 = GT
CAP = 56; NSZ = CAP * 12; EOFF = CAP * 4
AREA = (GT + NGT * GSZ + 127) // 128 * 128
SB = (AREA + 99 * NSZ + 255) // 256 * 256
SROW = 528; NSROW = BN + NW
QB = SB + NSROW * SROW; QROW = 264
GBASE = QB + 102 * QROW; CNTR = GBASE + 512
LDS = CNTR + 512
assert LDS <= 163840 and QB % 8 == 0 and GBASE % 8 == 0 and GT % 16 == 0
RST = AREA; XRAW = AREA + 37632; W1RAW = SB; PST = SB + 32768
assert XRAW + 16384 <= SB and PST + BN * 256 <= QB
ZROW = BN
KMASK = 0x03F803FC; KCON = 0x5C005C00
PADKEY = KCON | (126 << 19)
OVF = AREA + 98 * NSZ
SCANW, EXTRAW = 8, 9

out = []
def A(s=""): out.append(s)
def I(s):
    for l in s.strip("\n").split("\n"):
        l = l.strip()
        if not l: continue
        out.append(l if l.endswith(":") else "    " + l)
def L(name): out.append(name + ":")
def vr(a, n): return f"v[{a}:{a+n-1}]"
def sr(a, n): return f"s[{a}:{a+n-1}]"
def P(r): return f"v[{r}:{r+1}]"

sWS, sP, sOUT, sA, sBq, sC = 4, 8, 12, 16, 20, 24
sD = 28
pX, pE, pSRC, pDST, pW1, pB1, pW2, pB2, pOUT, pWS = 32, 34, 36, 38, 40, 42, 44, 46, 48, 50
sM = 32
sB, sW, sTw, sG, sT, sRem, sGam, sK, sGmax, sBad, sTag, sTag8, sReg, sMode, sK0, sMaxc = range(62, 78)
sONE = 78; sADV = 80; sSC = 82; sE0 = 84; sE1 = 86
t0, t1, t2, t3, t4, t5 = 88, 89, 90, 91, 92, 93
sNT = 3
sPM, sNV = 16, 22; sPV = [28, 30, 94]
vLane = 1
vPA, vPB, vPG, vPR = 2, 3, 4, 5
vSC = 8; vQC = 44; vQ = 10; vGQ = 11
vSA = 12; vAG = 14; vA5 = 16; vB5 = [18, 20]; vD = 22; vN = 24; vSO = 26; vMX = 28; vST = 29
vAC = 6; vBK = 30; vGS = 36; vKA = 38
vW2S = 32
vt = 40
vLb = [48, 64]; vTL = 80; vTH = 96; vE = 112; vIX = 128
NVGPR = 168

nstamp = [0]
def stamp(force=False):
    if not DEBUG: return
    i = nstamp[0]; nstamp[0] += 1
    if LITE and not force: return
    I(f"{'s_memtime' if DEBUG == 2 else 's_memrealtime'} s[100:101]")
    I("s_waitcnt lgkmcnt(0)")
    I(f"v_writelane_b32 v{vST}, s100, {i}")

def srd(d, p, nrec, stride=0, add=None):
    if add is None:
        I(f"s_mov_b32 s{d}, s{p}")
        I(f"s_and_b32 s{d+1}, s{p+1}, 0xffff")
    else:
        I(f"s_add_u32 s{d}, s{p}, {add}")
        I(f"s_addc_u32 s{d+1}, s{p+1}, 0")
        I(f"s_and_b32 s{d+1}, s{d+1}, 0xffff")
    I(f"s_mov_b32 s{d+2}, {nrec}")
    I(f"s_mov_b32 s{d+3}, 0x00020000")

def dpp_scan(v, vmax=None):
    steps = ["row_shr:1 row_mask:0xf bank_mask:0xf bound_ctrl:0", "row_shr:2 row_mask:0xf bank_mask:0xf bound_ctrl:0",
             "row_shr:4 row_mask:0xf bank_mask:0xf bound_ctrl:0", "row_shr:8 row_mask:0xf bank_mask:0xf bound_ctrl:0",
             "row_bcast:15 row_mask:0xa bank_mask:0xf", "row_bcast:31 row_mask:0xc bank_mask:0xf"]
    I("s_nop 1")
    for s in steps:
        I(f"v_add_u32_dpp v{v}, v{v}, v{v} {s}")
        if vmax is not None:
            I(f"v_max_u32_dpp v{vmax}, v{vmax}, v{vmax} {s}")
            I("s_nop 0")
        else:
            I("s_nop 1")
def lanemask(ls):
    m = 0
    for l in ls: m |= 1 << l
    return m
def setexec(m):
    I(f"s_mov_b32 exec_lo, {m & 0xffffffff}")
    I(f"s_mov_b32 exec_hi, {m >> 32}")
def mf16(D, a, b, c): return f"v_mfma_f32_32x32x16_bf16 {vr(D,16)}, {vr(a,4)}, {vr(b,4)}, {c}"
def mf8(D, a, b, c): return f"v_mfma_f32_32x32x8_bf16 {vr(D,16)}, {vr(a,2)}, {vr(b,2)}, {c}"
SDWA0 = "dst_sel:DWORD dst_unused:UNUSED_PAD src0_sel:WORD_0 src1_sel:DWORD"
SDWAB = "dst_sel:DWORD dst_unused:UNUSED_PAD src0_sel:DWORD src1_sel:BYTE_0"

def area_init(z):
    I(f"""
    s_mov_b32 s{t0}, 1561
    v_mul_u32_u24 v{z+5}, s{t0}, v0
    v_lshrrev_b32 v{z+5}, 16, v{z+5}
    v_mul_u32_u24 v{z+5}, 42, v{z+5}
    v_sub_u32 v{z+5}, v0, v{z+5}
    v_cmp_gt_u32 vcc, 14, v{z+5}
    v_mov_b32 v{z+6}, {PADKEY}
    v_lshlrev_b32 v{z+7}, 4, v0
    v_cndmask_b32 v{z}, 0, v{z+6}, vcc
    v_add_u32 v{z+4}, {AREA}, v{z+7}
    v_mov_b32 v{z+1}, v{z}
    v_mov_b32 v{z+2}, v{z}
    v_mov_b32 v{z+3}, v{z}
    v_cmp_gt_u32 vcc, 756, v0
    s_and_b64 exec, exec, vcc
    """)
    for t in range(6):
        if t == 5:
            I(f"v_cmp_gt_u32 vcc, {99*42 - 5*756}, v0")
            I("s_and_b64 exec, exec, vcc")
        I(f"ds_write_b128 v{z+4}, {vr(z,4)} offset:{t*756*16}")
    I("s_mov_b64 exec, -1")
    vals = [OVF + 6*32, OVF + EOFF + 6*64, 64, (ZROW*SROW) | ((98*QROW) << 16)]
    for q in range(4): I(f"v_mov_b32 v{z+8+q}, {vals[q]}")
    I(f"""
    v_cmp_gt_u32 vcc, {NGT*4}, v0
    s_and_b64 exec, exec, vcc
    ds_write_b128 v{z+7}, {vr(z+8,4)} offset:{GT}
    s_mov_b64 exec, -1
    """)
def area_pat(z):
    I(f"""
    s_mov_b32 s{t0}, 1561
    v_mul_u32_u24 v{z+5}, s{t0}, v0
    v_lshrrev_b32 v{z+5}, 16, v{z+5}
    v_mul_u32_u24 v{z+5}, 42, v{z+5}
    v_sub_u32 v{z+5}, v0, v{z+5}
    v_cmp_gt_u32 vcc, 14, v{z+5}
    v_mov_b32 v{z+6}, {PADKEY}
    v_add_u32 v{z+4}, {AREA}, v{vt}
    v_cndmask_b32 v{z}, 0, v{z+6}, vcc
    v_mov_b32 v{z+1}, v{z}
    v_mov_b32 v{z+2}, v{z}
    v_mov_b32 v{z+3}, v{z}
    """)
def area_part(z, s0, n):
    nch = n * 42
    I("v_cmp_gt_u32 vcc, 756, v0")
    I("s_and_b64 exec, exec, vcc")
    for t in range((nch + 755) // 756):
        if (t + 1) * 756 > nch:
            I(f"v_cmp_gt_u32 vcc, {nch - t*756}, v0")
            I("s_and_b64 exec, exec, vcc")
        I(f"ds_write_b128 v{z+4}, {vr(z,4)} offset:{s0*NSZ + t*756*16}")
    I("s_mov_b64 exec, -1")
def gt_init(z):
    vals = [OVF + 6*32, OVF + EOFF + 6*64, 64, (ZROW*SROW) | ((98*QROW) << 16)]
    for q in range(4): I(f"v_mov_b32 v{z+q}, {vals[q]}")
    I(f"""
    v_cmp_gt_u32 vcc, {NGT*4}, v0
    s_and_b64 exec, exec, vcc
    ds_write_b128 v{vt}, {vr(z,4)} offset:{GT}
    s_mov_b64 exec, -1
    """)
def area_init4(z, lbl):
    I(f"""
    s_cmp_lt_u32 s{sW}, 8
    s_cbranch_scc1 {lbl}
    v_subrev_u32 v{z+7}, 512, v0
    s_mov_b32 s{t0}, 1561
    v_mul_u32_u24 v{z+5}, s{t0}, v{z+7}
    v_lshrrev_b32 v{z+5}, 16, v{z+5}
    v_mul_u32_u24 v{z+5}, 42, v{z+5}
    v_sub_u32 v{z+5}, v{z+7}, v{z+5}
    v_cmp_gt_u32 vcc, 14, v{z+5}
    v_mov_b32 v{z+6}, {PADKEY}
    v_lshlrev_b32 v{z+4}, 4, v{z+7}
    v_cndmask_b32 v{z}, 0, v{z+6}, vcc
    v_add_u32 v{z+4}, {AREA}, v{z+4}
    v_mov_b32 v{z+1}, v{z}
    v_mov_b32 v{z+2}, v{z}
    v_mov_b32 v{z+3}, v{z}
    v_cmp_gt_u32 vcc, 252, v{z+7}
    s_and_b64 exec, exec, vcc
    """)
    for t in range(17):
        if t == 16:
            I(f"v_cmp_gt_u32 vcc, {99*42 - 16*252}, v{z+7}")
            I("s_and_b64 exec, exec, vcc")
        I(f"ds_write_b128 v{z+4}, {vr(z,4)} offset:{t*252*16}")
    I("s_mov_b64 exec, -1")
    vals = [OVF + 6*32, OVF + EOFF + 6*64, LUT + 64, (ZROW*SROW) | ((98*QROW) << 16)]
    I(f"v_mov_b32 v{z+8}, {vals[0]}")
    for q in range(1, 4):
        setexec(lanemask([l for l in range(64) if l & 3 == q]))
        I(f"v_mov_b32 v{z+8}, {vals[q]}")
    I(f"""
    s_mov_b64 exec, -1
    v_lshlrev_b32 v{z+5}, 4, v{z+7}
    v_cmp_gt_u32 vcc, {NGT*4 - 256}, v{z+7}
    v_mov_b32 v{z+9}, v{z+8}
    v_mov_b32 v{z+10}, v{z+8}
    v_mov_b32 v{z+11}, v{z+8}
    ds_write_b128 v{z+5}, {vr(z+8,4)} offset:{GT}
    s_and_b64 exec, exec, vcc
    ds_write_b128 v{z+5}, {vr(z+8,4)} offset:{GT + 4096}
    s_mov_b64 exec, -1
    {lbl}:
    """)
def s_zero(z):
    nch = NSROW * SROW // 16
    for i in range(4): I(f"v_mov_b32 v{z+i}, 0")
    I(f"v_lshlrev_b32 v{z+4}, 4, v0")
    I(f"v_add_u32 v{z+4}, {SB}, v{z+4}")
    n = (nch + NTH - 1) // NTH
    for t in range(n):
        if (t + 1) * NTH > nch:
            I(f"v_cmp_gt_u32 vcc, {nch - t*NTH}, v0")
            I(f"s_and_b64 exec, exec, vcc")
        I(f"ds_write_b128 v{z+4}, {vr(z,4)} offset:{t*NTH*16}")
    I("s_mov_b64 exec, -1")
def small_init(z):
    I(f"""
    v_lshlrev_b32 v{z}, 2, v0
    v_mov_b32 v{z+1}, 0
    v_cmp_gt_u32 vcc, 272, v0
    s_and_b64 exec, exec, vcc
    ds_write_b32 v{z}, v{z+1}
    s_mov_b64 exec, -1
    """)

hdr = open("standalone__edge_featured_mpnn_mpnn__graph.s.ref").read().split("\n")
for l in hdr:
    if "@launch" in l: continue
    if not l.startswith(";"): break
    A(l)
A(f"; @launch grid=(256,1,1) block=({NTH},1,1) lds={LDS}")
A('.amdgcn_target "amdgcn-amd-amdhsa--gfx950"')
A(".text")
A(f".globl {KNAME}")
A(".p2align 8")
A(f".type {KNAME},@function")
L(KNAME)
I(f"""
s_cmp_ge_u32 s2, 256
s_cbranch_scc1 L_exit
{"s_memrealtime s[96:97]" if DEBUG else ""}
""")
if int(opts.get("skew", 0)):
    I(f"""
    s_and_b32 s3, s2, 7
    s_cmp_lg_u32 s3, 3
    s_cbranch_scc1 L_nosk
    s_sleep {opts["skew"]}
    L_nosk:
    """)
I(f"""
s_load_dwordx16 s[32:47], s[0:1], 0
s_load_dwordx2 {sr(pOUT,2)}, s[0:1], 64
s_load_dwordx2 {sr(pWS,2)}, s[0:1], 80
v_lshrrev_b32 v{vt}, 6, v0
v_and_b32 v{vLane}, 63, v0
v_readfirstlane_b32 s{sW}, v{vt}
""")
if ICP in (2, 3, 4):
    I(f"""
    s_getpc_b64 s[94:95]
    s_lshr_b32 s98, s2, 3
    s_mul_i32 s98, s98, {NW}
    s_add_u32 s98, s98, s{sW}
    s_and_b32 s98, s98, {127 if ICP == 3 else 255}
    s_lshl_b32 s98, s98, {7 if ICP == 3 else 6}
    """)
if ICP == 3:
    I(f"""
    v_mov_b32 v27, s98
    s_mov_b64 exec, 1
    global_load_dword v27, v27, s[94:95]
    s_mov_b64 exec, -1
    """)
if ICP == 4:
    I(f"""
    s_cmp_gt_u32 s98, 64
    s_cbranch_scc1 L_noic
    s_lshl_b32 s99, s98, 7
    v_lshl_add_u32 v27, v{vLane}, 7, s99
    global_load_dword v27, v27, s[94:95]
    L_noic:
    """)
I(f"""
s_mul_i32 s{t0}, s2, {QE*4}
{f"s_lshl_b32 s{t1}, s{sW}, 10" if PAIR else ""}
{f"s_add_u32 s{t0}, s{t0}, s{t1}" if PAIR else ""}
{f"v_lshl_add_u32 v{vt+1}, v{vLane}, 3, s{t0}" if PAIR else f"v_lshl_add_u32 v{vt+1}, v0, 4, s{t0}"}
v_lshlrev_b32 v{vt+2}, 1, v{vt+1}
s_and_b32 s{sB}, s2, 7
s_lshl_b32 s{sB}, s{sB}, 5
s_lshr_b32 s{t1}, s2, 3
s_add_u32 s{sB}, s{sB}, s{t1}
{f"s_mov_b32 s{sB}, s2" if int(opts.get("ident", 0)) else ""}
v_lshlrev_b32 v75, 2, v0
v_mov_b32 v76, 0
ds_write_b32 v75, v76 offset:{CNT1}
v_lshrrev_b32 v68, 3, v{vLane}
v_lshrrev_b32 v69, 4, v{vLane}
v_and_b32 v70, 7, v{vLane}
v_xor_b32 v70, v70, v69
v_lshlrev_b32 v70, 4, v70
v_lshl_add_u32 v70, v68, 7, v70
s_and_b32 s{t0}, s{sW}, 1
s_lshl_b32 s{t0}, s{t0}, 6
v_xor_b32 v71, s{t0}, v70
v_and_b32 v72, 15, v{vLane}
v_lshlrev_b32 v73, 2, v69
v_xor_b32 v72, v72, v73
v_lshlrev_b32 v72, 4, v72
v_lshl_add_u32 v72, v69, 8, v72
v_lshlrev_b32 v74, 1, v{vLane}
v_and_b32 v75, 32, v{vLane}
v_lshl_add_u32 v74, v75, 4, v74
v_lshlrev_b32 v{vt+5}, 4, v{vLane}
v_lshlrev_b32 v{vt}, 4, v0
s_mul_i32 s{t1}, s{sB}, {BN*128}
s_lshl_b32 s{t2}, s{sW}, 10
s_mov_b32 s{sA+2}, {N*128}
s_mov_b32 s{sA+3}, 0x00020000
s_mov_b32 s{sBq+2}, {132*256}
s_mov_b32 s{sBq+3}, 0x00020000
s_mov_b32 s{sC+2}, 256
s_mov_b32 s{sC+3}, 0x00020000
s_mov_b32 s{sD+2}, {128*128}
s_mov_b32 s{sD+3}, 0x00020000
s_waitcnt lgkmcnt(0)
s_add_u32 s{pWS}, s{pWS}, {WSOFF}
s_addc_u32 s{pWS+1}, s{pWS+1}, 0
{"s_load_dword s3, s[94:95], s98" if ICP in (2, 4) else ""}
{f"s_load_dword s{sTag}, {sr(pWS,2)}, 0" if TAGS else ""}
s_mov_b32 s{sA}, s{pX}
s_and_b32 s{sA+1}, s{pX+1}, 0xffff
s_mov_b32 s{sBq}, s{pW1}
s_and_b32 s{sBq+1}, s{pW1+1}, 0xffff
s_mov_b32 s{sC}, s{pB1}
s_and_b32 s{sC+1}, s{pB1+1}, 0xffff
s_mov_b32 s{sD}, s{pW2}
s_and_b32 s{sD+1}, s{pW2+1}, 0xffff
s_cmp_ge_u32 s{sW}, 8
s_cbranch_scc1 L_opt_hi
s_add_u32 s{t3}, s{t2}, {24*1024}
s_add_u32 m0, s{t3}, {W1RAW}
s_cmp_lg_u32 s{sW}, 0
buffer_load_dwordx4 v72, {sr(sBq,4)}, s{t3} offen lds
s_cbranch_scc1 L_opt_end
s_mov_b32 m0, {XRAW + 12*1024}
s_add_u32 s{t3}, s{t1}, {12*1024}
buffer_load_dwordx4 v70, {sr(sA,4)}, s{t3} offen{NT} lds
s_branch L_opt_end
L_opt_hi:
s_cmp_lg_u32 s{sW}, {EXTRAW}
s_cbranch_scc1 L_opt_a
s_mul_i32 s{t0}, s2, {XE}
s_add_u32 s{t0}, s{t0}, {256*QE}
v_add_lshl_u32 v{vt+3}, v{vLane}, s{t0}, 2
v_lshlrev_b32 v{vt+4}, 1, v{vt+3}
""")
XM = (1 << XE) - 1
setexec(XM)
I(f"""
global_load_dword v64, v{vt+3}, {sr(pDST,2)}{NT}
global_load_dword v65, v{vt+3}, {sr(pSRC,2)}{NT}
global_load_dwordx2 v[66:67], v{vt+4}, {sr(pE,2)}{NT}
s_mov_b64 exec, -1
s_branch L_opt_end
L_opt_a:
s_cmp_lg_u32 s{sW}, 10
s_cbranch_scc1 L_opt_end
s_mov_b32 s{t0}, {128*256}
buffer_load_dwordx4 v[12:15], v{vt+5}, {sr(sBq,4)}, s{t0} offen
""")
ORD = opts.get("ord", "A")
dma = f"""
s_add_u32 m0, s{t2}, {XRAW}
s_add_u32 s{t3}, s{t1}, s{t2}
buffer_load_dwordx4 v71, {sr(sA,4)}, s{t3} offen{NT} lds
s_add_u32 m0, s{t2}, {W1RAW}
s_add_u32 s{t3}, s{t2}, {12*1024}
buffer_load_dwordx4 v72, {sr(sBq,4)}, s{t2} offen lds
s_add_u32 m0, s{t3}, {W1RAW}
s_nop 0
buffer_load_dwordx4 v72, {sr(sBq,4)}, s{t3} offen lds
"""
edg = f"""
global_load_dwordx4 v[52:55], v{vt+1}, {sr(pSRC,2)}{NT}
global_load_dwordx4 v[56:59], v{vt+2}, {sr(pE,2)}{NT}
global_load_dwordx4 v[60:63], v{vt+2}, {sr(pE,2)} offset:16{NT}
"""
L("L_opt_end")
if PAIR:
    I(f"""
    global_load_dwordx2 v[48:49], v{vt+1}, {sr(pDST,2)}{NT}
    global_load_dwordx2 v[50:51], v{vt+1}, {sr(pDST,2)} offset:512{NT}
    """)
    edg = f"""
    global_load_dwordx2 v[52:53], v{vt+1}, {sr(pSRC,2)}{NT}
    global_load_dwordx2 v[54:55], v{vt+1}, {sr(pSRC,2)} offset:512{NT}
    global_load_dwordx4 v[56:59], v{vt+2}, {sr(pE,2)}{NT}
    global_load_dwordx4 v[60:63], v{vt+2}, {sr(pE,2)} offset:1024{NT}
    """
else:
    I(f"global_load_dwordx4 v[48:51], v{vt+1}, {sr(pDST,2)}{NT}")
if DEBUG:
    I(f"v_mov_b32 v{vST}, 0")
    if DEBUG == 1: I(f"v_writelane_b32 v{vST}, s96, 21")
    nstamp[0] = 1
if ORD == "A": I(dma); I("s_barrier"); I(edg)
elif ORD == "B": I("s_barrier"); I(dma); I(edg)
elif ORD == "C": I("s_barrier"); I(edg); I(dma)
elif ORD == "D": I("s_barrier"); I(dma); I("s_barrier"); I(edg)
I(f"""
s_and_b32 s{t0}, s{sW}, 1
s_lshl_b32 s{t0}, s{t0}, 7
buffer_load_ushort v160, v74, {sr(sC,4)}, s{t0} offen
buffer_load_ushort v162, v74, {sr(sC,4)}, s{t0} offen offset:64
""")
X = (0 if TAGS else 1) + (ICP == 1)
I("s_mov_b64 exec, 1")
if not TAGS:
    I("v_mov_b32 v26, 0")
    I(f"global_load_dword v26, v26, {sr(pWS,2)}")
if ICP == 1:
    I(f"""
    s_getpc_b64 s[94:95]
    s_lshr_b32 s{t0}, s2, 3
    s_mul_i32 s{t0}, s{t0}, {NW}
    s_add_u32 s{t0}, s{t0}, s{sW}
    s_and_b32 s{t0}, s{t0}, 127
    s_lshl_b32 s{t0}, s{t0}, 7
    v_mov_b32 v27, s{t0}
    global_load_dword v27, v27, s[94:95]
    """)
I("s_mov_b64 exec, -1")
assert CNT1 + NTH * 4 <= AREA
small_init(76)
srd(sWS, pWS, WS_SIZE)
I(f"""
s_sub_u32 s{sP}, s{pWS}, {MAGIC - PT}
s_subb_u32 s{sP+1}, s{pWS+1}, 0
s_and_b32 s{sP+1}, s{sP+1}, 0xffff
s_mov_b32 s{sP+2}, {MAGIC + N*256}
s_mov_b32 s{sP+3}, 0x00020000
""")
I(f"""
s_mul_i32 s{t0}, s{sB}, {BN}
s_sub_u32 s{t1}, {N}, s{t0}
s_min_u32 s{t1}, s{t1}, {BN}
s_lshl_b32 s{t2}, s{t0}, 7
s_add_u32 s{sOUT}, s{pOUT}, s{t2}
s_addc_u32 s{sOUT+1}, s{pOUT+1}, 0
s_and_b32 s{sOUT+1}, s{sOUT+1}, 0xffff
s_lshl_b32 s{sOUT+2}, s{t1}, 7
s_mov_b32 s{sOUT+3}, 0x00020000
s_mov_b32 s{sONE}, 1.0
s_mov_b32 s{sONE+1}, 1.0
s_mov_b32 s{sADV}, 16
s_mov_b32 s{sADV+1}, 16
s_mov_b32 s{sSC}, {f2u(-LOG2E)}
s_mov_b32 s{sSC+1}, {f2u(-LOG2E)}
s_mov_b32 s{sMode}, 0
s_lshl_b32 s{sReg}, s{sW}, 6
s_add_u32 s{sReg}, s{sReg}, {GT}
s_mov_b32 s{t4}, 42800
s_mov_b32 s{t5}, {(-BN) & 0xffffffff}
v_mov_b32 v{vt+6}, 1
v_mov_b32 v161, 0
v_mov_b32 v163, 0
v_mov_b32 v164, 0x3f80
v_mov_b32 v165, 0
""")
I(f"""
v_lshrrev_b32 v68, 5, v{vLane}
v_bfe_u32 v69, v{vLane}, 2, 2
v_lshl_add_u32 v70, v68, 5, v69
s_mov_b32 s{t0}, {W1RAW}
v_lshl_add_u32 v70, v70, 8, s{t0}
v_bfe_u32 v71, v{vLane}, 4, 1
v_lshl_add_u32 v70, v71, 5, v70
v_and_b32 v71, 3, v{vLane}
v_lshl_add_u32 v70, v71, 3, v70
s_and_b32 s{t0}, s{sW}, 1
s_lshl_b32 s{t0}, s{t0}, 1
v_xor_b32 v71, s{t0}, v69
v_lshl_add_u32 v166, v71, 6, v70
v_xor_b32 v71, 1, v71
v_lshl_add_u32 v167, v71, 6, v70
s_lshr_b32 s{t0}, s{sW}, 1
s_lshl_b32 s{t0}, s{t0}, 5
v_and_b32 v78, 31, v{vLane}
v_add_u32 v78, s{t0}, v78
v_bfe_u32 v71, v{vLane}, 1, 3
v_lshlrev_b32 v72, 2, v68
v_xor_b32 v71, v71, v72
v_lshlrev_b32 v71, 4, v71
v_lshl_add_u32 v79, v78, 7, v71
v_add_u32 v79, {XRAW}, v79
s_waitcnt vmcnt({8+X+PAIR})
""")
stamp()
def bucket_rank(d, a, r):
    I(f"v_mul_u32_u24 v{a}, s{t4}, v{d}")
    I(f"v_lshrrev_b32 v{a}, 22, v{a}")
    I(f"v_mad_i32_i24 v{d}, v{a}, s{t5}, v{d}")
    I(f"v_lshlrev_b32 v{a}, 2, v{a}")
    I(f"ds_add_rtn_u32 v{r}, v{a}, v{vt+6} offset:{CNT1}")
for i in range(4): bucket_rank(48+i, 68+i, 73+i)
I(f"s_cmp_lg_u32 s{sW}, {EXTRAW}")
I("s_cbranch_scc1 L_noex1")
setexec(XM)
bucket_rank(64, 72, 77)
I("s_mov_b64 exec, -1")
L("L_noex1")
I(f"""
s_waitcnt vmcnt({X + (2 if ORD == 'C' else 5 + PAIR)}) lgkmcnt(0)
s_barrier
""")
stamp()
I(f"""
s_cmp_lt_u32 s{sW}, 8
s_cbranch_scc1 L_ptask
s_cmp_lg_u32 s{sW}, {SCANW}
s_cbranch_scc1 L_noscan
ds_read_b128 v[80:83], v{vt+5} offset:{CNT1}
s_waitcnt lgkmcnt(0)
v_add_u32 v84, v80, v81
v_add_u32 v85, v84, v82
v_add_u32 v86, v85, v83
v_mov_b32 v87, v86
""")
dpp_scan(87)
I(f"""
v_sub_u32 v88, v87, v86
v_add_u32 v89, v88, v80
v_add_u32 v90, v88, v84
v_add_u32 v91, v88, v85
v_mov_b32 v96, {RST}
v_mad_u32_u24 v92, v88, 12, v96
v_mad_u32_u24 v93, v89, 12, v96
v_mad_u32_u24 v94, v90, 12, v96
v_mad_u32_u24 v95, v91, 12, v96
ds_write_b128 v{vt+5}, v[92:95] offset:{CNT1}
v_lshl_or_b32 v16, v80, 12, v88
v_lshl_or_b32 v18, v81, 12, v89
v_lshl_or_b32 v20, v82, 12, v90
v_lshl_or_b32 v22, v83, 12, v91
s_branch L_p_done
L_noscan:
""")
if DEBUG and int(opts.get("arr", 0)):
    I("s_waitcnt vmcnt(0)")
    I("s_memrealtime s[100:101]")
    I("s_waitcnt lgkmcnt(0)")
    I(f"v_writelane_b32 v{vST}, s100, 20")
if int(opts.get("prew", 0)):
    I(f"""
    s_cmp_lg_u32 s{sW}, 9
    s_cbranch_scc1 L_nopw
    s_lshl_b32 s{t0}, s2, 11
    s_add_u32 s{t0}, s{t0}, {GRAN}
    v_mov_b32 v16, 0
    v_mov_b32 v17, 0
    v_mov_b32 v18, 0
    v_mov_b32 v19, 0
    buffer_store_dwordx4 v[16:19], v{vt+5}, {sr(sWS,4)}, s{t0} offen sc1
    buffer_store_dwordx4 v[16:19], v{vt+5}, {sr(sWS,4)}, s{t0} offen offset:1024 sc1
    L_nopw:
    """)
I(f"""
s_cmp_eq_u32 s{sW}, 11
s_cbranch_scc1 L_w2ld
s_cmp_lg_u32 s{sW}, 10
s_cbranch_scc1 L_p_done
""")
for i in range(4):
    I(f"v_lshlrev_b32 v{80+2*i}, 16, v{12+i}")
    I(f"v_and_b32 v{81+2*i}, 0xffff0000, v{12+i}")
for i in range(4):
    I(f"v_pk_mul_f32 {P(80+2*i)}, {P(80+2*i)}, {sr(sSC,2)}")
for i in range(4):
    I(f"v_cvt_pk_bf16_f32 v{12+i}, v{80+2*i}, v{81+2*i}")
I(f"""
v_lshrrev_b32 v88, 4, v{vLane}
v_mul_u32_u24 v88, {QROW}, v88
v_and_b32 v89, 15, v{vLane}
v_lshl_add_u32 v88, v89, 4, v88
v_add_u32 v88, {QB + 98*QROW}, v88
ds_write2_b64 v88, v[12:13], v[14:15] offset0:0 offset1:1
v_mov_b32 v90, 0
v_mov_b32 v91, 0
""")
for g_ in range(4):
    setexec(lanemask(range(16*g_, 16*g_+8)))
    I(f"v_mov_b32 v{90 + (g_ >> 1)}, {0x3f800000 if g_ & 1 else 0x3f80}")
I(f"""
s_mov_b64 exec, -1
v_lshlrev_b32 v88, 3, v{vLane}
ds_write_b64 v88, v[90:91] offset:{LUT}
s_branch L_p_done
L_ptask:
v_xor_b32 v{vt+1}, 16, v79
v_xor_b32 v{vt+2}, 32, v79
v_xor_b32 v{vt+3}, 48, v79
""")
xa = [79, vt+1, vt+2, vt+3]
for ks in range(4):
    I(f"ds_read_b128 {vr(112+4*ks,4)}, v{xa[ks]}")
    for jl in range(2):
        for hf in range(2):
            I(f"ds_read_b64_tr_b16 {P(80+16*jl+4*ks+2*hf)}, v{166+jl} offset:{(8*ks+4*hf)*256}")
I(f"""
v_cmp_gt_u32 vcc, {BN}, v78
s_mov_b64 {sr(sE0,2)}, vcc
v_lshrrev_b32 v{vt+1}, 5, v{vLane}
s_and_b32 s{t1}, s{sW}, 1
s_lshl_b32 s{t1}, s{t1}, 3
v_add_u32 v{vt+1}, s{t1}, v{vt+1}
v_and_b32 v{vt+2}, 15, v78
v_xor_b32 v{vt+1}, v{vt+1}, v{vt+2}
v_lshlrev_b32 v{vt+1}, 4, v{vt+1}
v_lshl_add_u32 v{vt+1}, v78, 8, v{vt+1}
v_add_u32 v{vt+1}, {PST}, v{vt+1}
v_xor_b32 v{vt+2}, 32, v{vt+1}
v_xor_b32 v{vt+3}, 64, v{vt+1}
v_xor_b32 v{vt+4}, 0x60, v{vt+1}
""")
for ks in range(4):
    I(f"s_waitcnt lgkmcnt({15 - 5*ks})")
    I(mf16(128, 80+4*ks, 112+4*ks, "0" if ks == 0 else vr(128,16)))
    I(mf16(144, 96+4*ks, 112+4*ks, "0" if ks == 0 else vr(144,16)))
I("s_mov_b32 s%d, 0x07060302" % t0)
I("s_nop 10")
for i in range(16):
    I(f"v_pk_mul_f32 {P(128+2*i)}, {P(128+2*i)}, {sr(sSC,2)}")
I(f"s_mov_b64 exec, {sr(sE0,2)}")
for rg in range(4):
    for i in range(4*rg, 4*rg+4):
        I(f"v_add_u32 v{128+i}, 0x4000, v{128+i}")
    for i in range(4*rg, 4*rg+4):
        I(f"v_perm_b32 v{128+i}, v{144+i}, v{128+i}, s{t0}")
    I(f"ds_write_b128 v{vt+1+rg}, {vr(128+4*rg,4)}")
I(f"""
s_mov_b64 exec, -1
L_p_done:
v_lshrrev_b32 v80, 4, v0
v_xor_b32 v81, v80, v0
v_and_b32 v81, 15, v81
v_lshlrev_b32 v81, 4, v81
v_lshl_add_u32 v81, v80, 8, v81
v_add_u32 v81, {PST}, v81
s_mul_i32 s{t0}, s{sB}, {BN*256}
s_add_u32 s{t0}, s{t0}, {PT}
s_add_u32 s{sA}, s{pWS}, s{t0}
s_addc_u32 s{sA+1}, s{pWS+1}, 0
s_and_b32 s{sA+1}, s{sA+1}, 0xffff
s_mov_b32 s{sA+2}, {BN*256}
s_mov_b32 s{sA+3}, 0x00020000
s_mul_i32 s{t0}, s2, {RSTRIDE}
s_add_u32 s{t0}, s{t0}, {REC}
s_add_u32 s{sBq}, s{pWS}, s{t0}
s_addc_u32 s{sBq+1}, s{pWS+1}, 0
s_and_b32 s{sBq+1}, s{sBq+1}, 0xffff
s_mov_b32 s{sBq+2}, {(CH*12+15)//16*16}
s_mov_b32 s{sBq+3}, 0x00020000
s_mov_b32 s{t1}, {NTH*16}
s_mov_b32 s{t2}, {2*NTH*16}
s_mov_b32 s{t3}, {3*NTH*16}
s_waitcnt lgkmcnt(0)
s_barrier
""")
stamp()
I(f"""
ds_read_b128 v[84:87], v81
ds_read_b128 v[88:91], v81 offset:{48*256}
ds_read_b128 v[92:95], v81 offset:{96*256}
""")
for i in range(5):
    I(f"ds_read_b32 v{68+i}, v{68+i} offset:{CNT1}")
I(f"""
s_waitcnt lgkmcnt(7)
buffer_store_dwordx4 v[84:87], v{vt}, {sr(sA,4)}, 0 offen {PST_}
s_waitcnt lgkmcnt(6)
buffer_store_dwordx4 v[88:91], v{vt}, {sr(sA,4)}, s{t1} offen {PST_}
s_waitcnt lgkmcnt(5)
buffer_store_dwordx4 v[92:95], v{vt}, {sr(sA,4)}, s{t2} offen {PST_}
s_waitcnt vmcnt({7+X})
""")
I(f"s_movk_i32 s{t4}, 0x804")
I(f"s_mov_b32 s{t5}, {KMASK}")
for i in range(4):
    I(f"v_mul_u32_u24 v{52+i}, s{t4}, v{52+i}") if False else None
    I(f"v_lshlrev_b32 v{80+i}, 11, v{52+i}")
    I(f"v_lshlrev_b32 v{48+i}, 12, v{48+i}")
    I(f"v_lshlrev_b32_sdwa v{80+i}, 2, v{52+i} dst_sel:WORD_0 dst_unused:UNUSED_PRESERVE src0_sel:DWORD src1_sel:BYTE_0")
for i in range(4):
    I(f"v_and_or_b32 v{48+i}, v{80+i}, s{t5}, v{48+i}")
I("s_waitcnt lgkmcnt(0)")
for i in range(5):
    I(f"v_mad_u32_u24 v{68+i}, v{73+i}, 12, v{68+i}")
for i in range(4):
    I(f"ds_write_b32 v{68+i}, v{48+i} offset:8")
I(f"s_cmp_lg_u32 s{sW}, {EXTRAW}")
I("s_cbranch_scc1 L_noex2")
setexec(XM)
I(f"""
v_lshlrev_b32 v80, 11, v65
v_lshlrev_b32 v64, 12, v64
v_lshlrev_b32_sdwa v80, 2, v65 dst_sel:WORD_0 dst_unused:UNUSED_PRESERVE src0_sel:DWORD src1_sel:BYTE_0
s_nop 0
v_and_or_b32 v64, v80, s{t5}, v64
ds_write2_b32 v72, v66, v67 offset0:0 offset1:1
ds_write_b32 v72, v64 offset:8
s_mov_b64 exec, -1
L_noex2:
s_waitcnt vmcnt({6+X})
ds_write2_b32 v68, v56, v57 offset0:0 offset1:1
ds_write2_b32 v69, v58, v59 offset0:0 offset1:1
s_waitcnt vmcnt({5+X})
""")
stamp()
I(f"""
ds_write2_b32 v70, v60, v61 offset0:0 offset1:1
ds_write2_b32 v71, v62, v63 offset0:0 offset1:1
s_waitcnt lgkmcnt(0)
s_barrier
""")
stamp()
for i in range(4):
    I(f"ds_read_b128 {vr(48+4*i,4)}, v{vt} offset:{RST + i*NTH*16}")
for i in range(3):
    I(f"s_waitcnt lgkmcnt({3-i})")
    I(f"buffer_store_dwordx4 {vr(48+4*i,4)}, v{vt}, {sr(sBq,4)}, {['0', f's{t1}', f's{t2}'][i]} offen {RST_}")
I(f"""
s_waitcnt lgkmcnt(0)
s_cmp_lg_u32 s{sW}, 0
s_cbranch_scc1 L_no4
buffer_store_dwordx4 v[60:63], v{vt}, {sr(sBq,4)}, s{t3} offen {RST_}
L_no4:
{"s_barrier" if AI4 else ""}
s_cmp_ge_u32 s{sW}, 8
s_cbranch_scc1 L_nop2
""")
for ks in range(4):
    for jl in range(2):
        for hf in range(2):
            I(f"ds_read_b64_tr_b16 {P(80+16*jl+4*ks+2*hf)}, v{166+jl} offset:{16384 + (8*ks+4*hf)*256}")
I(f"s_waitcnt vmcnt({6+X})")
I(mf8(128, 160, 164, "0"))
I(mf8(144, 162, 164, "0"))
I(f"""
v_lshrrev_b32 v{vt+1}, 5, v{vLane}
s_and_b32 s{t0}, s{sW}, 1
s_lshl_b32 s{t0}, s{t0}, 7
s_add_u32 s{t0}, s{t0}, {QB}
v_lshl_add_u32 v{vt+1}, v{vt+1}, 3, s{t0}
v_mul_u32_u24 v{vt+2}, {QROW}, v78
v_add_u32 v{vt+1}, v{vt+1}, v{vt+2}
""")
for ks in range(4):
    I(f"s_waitcnt lgkmcnt({12 - 4*ks})")
    I(mf16(128, 80+4*ks, 112+4*ks, vr(128,16)))
    I(mf16(144, 96+4*ks, 112+4*ks, vr(144,16)))
I("s_nop 11")
for i in range(16):
    I(f"v_pk_mul_f32 {P(128+2*i)}, {P(128+2*i)}, {sr(sSC,2)}")
for i in range(16):
    I(f"v_cvt_pk_bf16_f32 v{128+i}, v{128+2*i}, v{129+2*i}")
I(f"s_mov_b64 exec, {sr(sE0,2)}")
for jl in range(2):
    for rg in range(4):
        I(f"ds_write_b64 v{vt+1}, {P(128+8*jl+2*rg)} offset:{64*jl + 16*rg}")
I(f"""
s_mov_b64 exec, -1
s_branch L_p2_done
L_nop2:
s_cmp_lg_u32 s{sW}, 11
s_cbranch_scc1 L_p2_done
s_cmp_gt_u32 s2, 16
s_cbranch_scc1 L_p2_done
s_lshl_b32 s{t0}, s2, 10
s_add_u32 s{t0}, s{t0}, {W2I}
s_waitcnt vmcnt(6)
s_cmp_lt_u32 s2, 16
s_cbranch_scc1 L_w2st
v_lshlrev_b32 v{vW2S}, 16, v{vW2S}
v_mul_f32 v{vW2S}, s{sSC}, v{vW2S}
v_lshlrev_b32 v{vW2S+1}, 2, v{vLane}
buffer_store_dword v{vW2S}, v{vW2S+1}, {sr(sWS,4)}, s{t0} offen sc1
s_branch L_p2_done
L_w2st:
v_lshl_or_b32 v{vW2S}, v{vW2S+1}, 16, v{vW2S}
v_lshl_or_b32 v{vW2S+1}, v{vW2S+3}, 16, v{vW2S+2}
v_lshl_or_b32 v{vW2S+2}, v{vW2S+5}, 16, v{vW2S+4}
v_lshl_or_b32 v{vW2S+3}, v{vW2S+7}, 16, v{vW2S+6}
buffer_store_dwordx4 {vr(vW2S,4)}, v{vt+5}, {sr(sWS,4)}, s{t0} offen sc1
L_p2_done:
""")
if AI4 == 1: area_init4(64, "L_ai4")
SPLIT = int(opts.get("split", 1))
if SPLIT:
    area_pat(64)
    area_part(64, 56, 43)
    gt_init(80)
I(f"""
v_and_b32 v72, 31, v{vLane}
v_lshlrev_b32 v72, 2, v72
v_add_u32 v{vSC}, {SB}, v72
v_add_u32 v{vSC+1}, {SB}, v72
v_cvt_f32_u32 v72, v72
v_mov_b32 v{vBK}, 0x78005c00
v_cvt_f16_f32 v{vBK+1}, v72
v_and_b32 v{vBK+1}, 0xffff, v{vBK+1}
s_mov_b32 exec_lo, 0
v_mov_b32 v{vBK}, 0
v_mov_b32 v{vBK+1}, 0
s_mov_b64 exec, -1
v_mov_b32 v{vKA+1}, 0x3c00
v_bfe_u32 v73, v{vLane}, 4, 1
v_lshlrev_b32 v73, 5, v73
v_and_b32 v74, 3, v{vLane}
v_lshl_add_u32 v73, v74, 3, v73
v_add_u32 v{vQC}, {QB}, v73
v_bfe_u32 v75, v{vLane}, 2, 2
v_add_u32 v76, 98, v75
v_mul_u32_u24 v76, {QROW}, v76
v_add_u32 v{vQ}, v76, v{vQC}
""")
I(f"""
v_bfe_u32 v72, v{vLane}, 3, 2
v_bfe_u32 v73, v{vLane}, 1, 1
v_lshl_add_u32 v72, v72, 1, v73
v_lshlrev_b32 v{vAC}, 3, v72
v_lshlrev_b32 v{vAC+1}, 2, v72
v_bfe_u32 v73, v{vLane}, 2, 1
v_and_b32 v74, 1, v{vLane}
v_lshl_add_u32 v73, v73, 1, v74
v_lshlrev_b32 v73, 7, v73
s_mov_b32 exec_lo, 0
v_add_u32 v{vAC}, v{vAC}, v73
v_add_u32 v{vAC}, {LUT}, v{vAC}
s_mov_b64 exec, -1
""")
def ptr_mult(m):
    I(f"""
    v_lshrrev_b32 v{m}, 5, v{vLane}
    v_bfe_u32 v{m+2}, v{vLane}, 2, 1
    v_and_b32 v{m+3}, 1, v{vLane}
    v_lshlrev_b32 v{m}, 1, v{m}
    v_lshl_add_u32 v{m+2}, v{m+2}, 1, v{m+3}
    v_add_u32 v{m+1}, 1, v{m}
    v_bfe_u32 v{m+3}, v{vLane}, 2, 2
    """)
def ptr_consts(base):
    ptr_mult(72)
    I(f"""
    v_lshl_add_u32 v{vPA}, v72, 4, {base}
    v_lshl_add_u32 v{vPG}, v74, 4, {base}
    v_lshl_add_u32 v{vPR}, v75, 4, {base}
    v_add_u32 v{vPA}, 12, v{vPA}
    v_lshl_add_u32 v{vPG}, v72, 1, v{vPG}
    v_add_u32 v{vPR}, 14, v{vPR}
    v_add_u32 v{vPB}, 16, v{vPA}
    """)
ptr_consts(f"s{sReg}")
I(f"""
{"" if TAGS else "s_waitcnt vmcnt(6)"}
{"" if TAGS else f"v_readfirstlane_b32 s{sTag}, v26"}
s_add_u32 s{sTag}, s{sTag}, 1
s_mul_i32 s{sTag8}, s{sTag}, 0x9e3779b1
s_and_b32 s{sTag8}, s{sTag8}, 0xff000000
v_or_b32 v16, s{sTag8}, v16
v_or_b32 v18, s{sTag8}, v18
v_or_b32 v20, s{sTag8}, v20
v_or_b32 v22, s{sTag8}, v22
v_mov_b32 v17, s{sTag}
v_mov_b32 v19, s{sTag}
v_mov_b32 v21, s{sTag}
v_mov_b32 v23, s{sTag}
""")
vDs = 124
vRA = 130
vCn = 133
vPo = 136
vL7 = 138; vRb = 139; vAr = 140
sPo = [sG, sT, sRem]; sRo = sGam
def desc_consts():
    I(f"""
    v_lshrrev_b32 v141, 3, v{vLane}
    v_lshlrev_b32 v{vPo}, 11, v141
    v_and_b32 v{vL7}, 7, v{vLane}
    v_mul_u32_u24 v{vRb}, 12, v{vL7}
    s_mov_b32 s{t0}, {RSTRIDE}
    v_mad_u32_u24 v{vRb}, v141, s{t0}, v{vRb}
    s_lshl_b32 s{sPo[0]}, s{sW}, 14
    s_lshr_b32 s{t1}, s{sB}, 2
    s_lshl_b32 s{t1}, s{t1}, 4
    s_add_u32 s{sPo[0]}, s{sPo[0]}, s{t1}
    s_and_b32 s{t1}, s{sB}, 1
    s_lshl_b32 s{t1}, s{t1}, 3
    s_add_u32 s{sPo[0]}, s{sPo[0]}, s{t1}
    s_and_b32 s{t1}, s{sB}, 2
    s_lshl_b32 s{t1}, s{t1}, 9
    s_add_u32 s{sPo[0]}, s{sPo[0]}, s{t1}
    s_add_u32 s{sPo[0]}, s{sPo[0]}, {GRAN}
    s_add_u32 s{sPo[1]}, s{sPo[0]}, {12*16384}
    s_add_u32 s{sPo[2]}, s{sPo[0]}, {24*16384}
    s_mul_i32 s{sRo}, s{sW}, {8*RSTRIDE}
    s_add_u32 s{sRo}, s{sRo}, {REC}
    """)
def poll_load(jj): return f"buffer_load_dwordx2 {P(vDs+2*jj)}, v{vPo}, {sr(sWS,4)}, s{sPo[jj]} offen " + opts.get("pld", "sc1").replace("+", " ")
def decode(jj):
    I(f"v_and_b32 v{vRA+jj}, 0xfff, v{vDs+2*jj}")
    I(f"v_mad_u32_u24 v{vRA+jj}, v{vRA+jj}, 12, v{vRb}")
    if jj: I(f"v_add_u32 v{vRA+jj}, {jj*96*RSTRIDE}, v{vRA+jj}")
    I(f"v_bfe_u32 v{vCn+jj}, v{vDs+2*jj}, 12, 12")
    I(f"v_sub_u32 v{vCn+jj}, v{vCn+jj}, v{vL7}")
lab = [0]
NR = 5
order = [(jj, rd) for jj in range(3) for rd in range(NR)]
slotreg = {s: 48 + 4*n_ for n_, s in enumerate(order)}
slotmask = {s: sM + 2*n_ for n_, s in enumerate(order)}
vTA = {s: 108 + n_ for n_, s in enumerate(order)}
def slots(body):
    for jj in range(3):
        lab[0] += 1; grp = lab[0]
        for rd in range(NR):
            s = (jj, rd)
            I(f"s_mov_b64 exec, {sr(slotmask[s],2)}")
            if rd >= 2 or (jj == 2 and rd == 0): I(f"s_cbranch_execz L_sg{grp}")
            body(s)
        L(f"L_sg{grp}")
    I("s_mov_b64 exec, -1")
def tagcheck(jj, dst):
    I(f"""
    v_xor_b32 v141, s{sTag8}, v{vDs+2*jj}
    v_xor_b32 v142, s{sTag}, v{vDs+2*jj+1}
    v_lshrrev_b32 v141, 24, v141
    v_or_b32 v141, v141, v142
    v_cmp_ne_u32 {dst}, 0, v141
    """)
def c2():
    desc_consts()
    I(f"""
    s_mov_b64 {sr(sPM,2)}, -1
    s_mov_b64 {sr(sPM+2,2)}, -1
    s_cmp_lt_u32 s{sW}, 8
    s_cselect_b64 {sr(sPM+4,2)}, -1, 0
    v_mov_b32 v{vDs+4}, s{sTag8}
    v_mov_b32 v{vDs+5}, s{sTag}
    s_mov_b32 s{sK}, 0
    v_mov_b32 v{vAr}, {AREA}
    s_movk_i32 s{t4}, {NSZ//4}
    s_mov_b32 s{t5}, {KMASK}
    v_mov_b32 v137, {KCON}
    v_mov_b32 v143, 0
    """)

if SPLIT == 2: c2()
I("""
s_waitcnt vmcnt(0) lgkmcnt(0)
s_barrier
""")
stamp()
I(f"""
s_cmp_lg_u32 s{sW}, {SCANW}
s_cbranch_scc1 L_nopub
v_lshlrev_b32 v72, 4, v{vLane}
s_lshl_b32 s{t0}, s2, 11
s_add_u32 s{t0}, s{t0}, {GRAN}
buffer_store_dwordx4 v[16:19], v72, {sr(sWS,4)}, s{t0} offen {PUB_}
buffer_store_dwordx4 v[20:23], v72, {sr(sWS,4)}, s{t0} offen offset:1024 {PUB_}
L_nopub:
""")
PF1 = int(opts.get("pf1", 0)); PF2 = int(opts.get("pf2", 0))
def prefetch(n, first, dst):
    I(f"""
    s_lshr_b32 s{t0}, s2, 3
    s_mul_i32 s{t0}, s{t0}, {NW}
    s_add_u32 s{t0}, s{t0}, s{sW}
    s_mul_i32 s{t0}, s{t0}, {n*128}
    s_add_u32 s{t0}, s{t0}, {MAGIC + first*384*128}
    s_and_b32 s{t1}, s2, 4
    s_xor_b32 s{t1}, s{t1}, 4
    s_mul_i32 s{t1}, s{t1}, {32*BN*256 if int(opts.get("pfx", 0)) else 0}
    s_add_u32 s{t0}, s{t0}, s{t1}
    v_lshlrev_b32 v{dst}, 7, v{vLane}
    """)
    if n < 64: setexec((1 << n) - 1)
    I(f"buffer_load_dword v{dst}, v{dst}, {sr(sP,4)}, s{t0} offen sc1")
    I("s_mov_b64 exec, -1")
if PF1: prefetch(PF1, 0, 42)
PFO = int(opts.get("pfo", 0))
if PFO:
    I(f"""
    s_mul_i32 s{t0}, s{sW}, {PFO*128}
    v_lshlrev_b32 v42, 7, v{vLane}
    """)
    setexec((1 << PFO) - 1)
    I(f"buffer_load_dword v42, v42, {sr(sA,4)}, s{t0} offen sc1")
    I("s_mov_b64 exec, -1")
if SPLIT: area_part(64, 0, 56)
else: area_init(64)
SZ = int(opts.get('sz', 0))
if SZ == 1: s_zero(76)
if SPLIT < 2:
    c2()
I(f"""
{"" if AI4 else "s_waitcnt lgkmcnt(0)"}
{"" if AI4 else "s_barrier"}
""")
stamp()
I(f"""
s_branch L_poll1
L_poll:
""")
if SLEEP: I(f"s_sleep {SLEEP}")
L("L_poll1")
for jj in range(3):
    I(f"s_mov_b64 exec, {sr(sPM+2*jj,2)}")
    I(f"s_cbranch_execz L_pk{jj}")
    I(poll_load(jj))
    L(f"L_pk{jj}")
I(f"""
s_mov_b64 exec, -1
s_add_u32 s{sK}, s{sK}, 1
s_cmp_gt_u32 s{sK}, 0x40000
s_cbranch_scc1 L_exit
s_waitcnt vmcnt(0)
""")
for jj in range(3): tagcheck(jj, sr(sPM+2*jj,2))
I(f"""
s_or_b64 {sr(sE0,2)}, {sr(sPM,2)}, {sr(sPM+2,2)}
s_or_b64 {sr(sE0,2)}, {sr(sE0,2)}, {sr(sPM+4,2)}
s_cbranch_scc1 L_poll
""")
if DEBUG:
    I(f"v_writelane_b32 v{vST}, s{sK}, 22")
stamp()
for jj in range(3): decode(jj)
for s_ in order:
    I(f"v_cmp_lt_i32 {sr(slotmask[s_],2)}, {8*s_[1]}, v{vCn+s_[0]}")
slots(lambda s_: I(f"buffer_load_dwordx3 {vr(slotreg[s_],3)}, v{vRA+s_[0]}, {sr(sWS,4)}, s{sRo} offen offset:{96*s_[1]} sc1"))
I(f"""
v_max3_i32 v141, v{vCn}, v{vCn+1}, v{vCn+2}
v_cmp_lt_i32 vcc, {8*NR}, v141
s_cbranch_vccz L_nobig
v_mov_b32 v141, 0
ds_write_b32 v141, v{vt+6} offset:{FLAG}
L_nobig:
""")
if SZ == 0: s_zero(144)
vNB = 32; sEN = 28; sKb = 30
I(f"""
v_mul_u32_u24 v{vNB}, {2*NSZ}, v{vLane}
v_add_u32 v{vNB}, {AREA}, v{vNB}
v_add_u32 v{vNB+1}, {NSZ}, v{vNB}
s_mov_b32 s{t0}, {2*(SROW + (QROW << 16))}
v_mul_lo_u32 v{vNB+2}, v{vLane}, s{t0}
v_add_u32 v{vNB+3}, {SROW + (QROW << 16)}, v{vNB+2}
s_cmp_ge_u32 s{sW}, 6
s_cselect_b64 {sr(sEN,2)}, -1, 0
s_cselect_b32 s{t0}, 6, 0
s_sub_u32 s{sKb}, s{sW}, s{t0}
v_cndmask_b32 v145, v{vNB}, v{vNB+1}, {sr(sEN,2)}
v_cndmask_b32 v147, v{vNB+2}, v{vNB+3}, {sr(sEN,2)}
s_lshl_b32 s{t0}, s{sKb}, 5
v_add_u32 v144, s{t0}, v145
s_add_u32 s{t0}, s{t0}, {EOFF}
v_add_u32 v145, s{t0}, v144
v_lshlrev_b32 v152, 3, v{vLane}
v_mov_b32 v153, 0
v_mov_b32 v{vMX}, 0
""")
ptr_mult(148)
I("s_waitcnt vmcnt(0)")
stamp()
if PF2: prefetch(PF2, PF1, 33)
def rank_body(s):
    r = slotreg[s]
    I(f"v_bfe_u32 v{vTA[s]}, v{r+2}, 10, 9")
    I(f"v_and_or_b32 v{r+2}, v{r+2}, s{t5}, v137")
    I(f"ds_add_rtn_u32 v{r+3}, v{vTA[s]}, v{vt+6} offset:{CNT}")
    I(f"v_mad_u32_u24 v{vTA[s]}, v{vTA[s]}, s{t4}, v{vAr}")
slots(rank_body)
I("s_waitcnt lgkmcnt(0)")
def scat_body(s):
    r = slotreg[s]
    lab[0] += 1; fx = lab[0]
    fixups.append((fx, s))
    I(f"v_cmp_le_u32 vcc, {CAP}, v{r+3}")
    I(f"v_lshl_add_u32 v141, v{r+3}, 2, v{vTA[s]}")
    I(f"v_lshl_add_u32 v{vTA[s]}, v{r+3}, 3, v{vTA[s]}")
    I(f"s_cbranch_vccnz L_fx{fx}")
    L(f"L_fr{fx}")
    I(f"ds_write_b32 v141, v{r+2}")
    I(f"ds_write_b64 v{vTA[s]}, {P(r)} offset:{EOFF}")
fixups = []
PF5 = int(opts.get("pf5", 0))
if PF5: prefetch(PF5, PF1, 41)
slots(scat_body)
PF4 = int(opts.get("pf4", 16))
if PF4: prefetch(PF4, PF1, 41)
I(f"""
s_waitcnt lgkmcnt(0)
s_barrier
""")
stamp()
PF3 = int(opts.get('pf3', 0))
if PF3: prefetch(PF3, 0, 43)
def chain(T, vD=vD, vN=vN, n=8):
    l = [f"v_pk_add_f32 {P(vD)}, {P(vE)}, {sr(sONE,2)}",
         f"v_pk_fma_f32 {P(vN)}, {P(T)}, {P(vE+2)}, {P(T)}",
         f"v_pk_fma_f32 {P(vN)}, {P(T+2)}, {P(vD)}, {P(vN)}",
         f"v_pk_fma_f32 {P(vD)}, {P(vD)}, {P(vE+2)}, {P(vD)}"]
    for i in range(2, n):
        l += [f"v_pk_fma_f32 {P(vN)}, {P(vN)}, {P(vE+2*i)}, {P(vN)}",
              f"v_pk_fma_f32 {P(vN)}, {P(T+2*i)}, {P(vD)}, {P(vN)}",
              f"v_pk_fma_f32 {P(vD)}, {P(vD)}, {P(vE+2*i)}, {P(vD)}"]
    return l
assert EOFF - 7*32 == 0
def gload(u): return [f"buffer_load_dword v{vLb[u]+i}, v{vIX+i}, {sr(sP,4)}, 0 offen offset:{128*u} sc1" for i in range(16)]
def shifts(u): return [f"v_lshlrev_b64 {P(vTL+2*i)}, 16, {P(vLb[u]+2*i)}" for i in range(8)]
SAUPD = [f"v_lshl_add_u64 {P(vSA)}, {P(vGS)}, 0, {P(vSC)}"]
def gsrd(off): return [f"ds_read_u16 v{vGS}, v{vPA} offset:{off}", f"ds_read_u16 v{vGS+1}, v{vPB} offset:{off}"]
PADV = [f"v_lshl_add_u64 {P(vPA)}, {P(vPA)}, 0, {sr(sADV,2)}", f"v_lshl_add_u64 {P(vPG)}, {P(vPG)}, 0, {sr(sADV,2)}"]
QUPD = f"v_add_u32_dpp v{vQ}, v{vGQ}, v{vQC} quad_perm:[0,1,2,3] row_mask:0xc bank_mask:0xf"
AUPD = f"v_lshl_add_u64 {P(vAG)}, {P(vAG)}, 0, {P(vAC)}"
IXM = mf8(vIX, vKA, vBK, "0").replace("bf16", "f16")

vDj = [144, 148, 152, 156]; vNj = [146, 150, 154, 158]; vSj = [160, 162, 164, 166]
def pmul(d, a, b): return f"v_pk_mul_f32 {P(d)}, {P(a)}, {P(b)}"
def inv(m): return [f"v_rcp_f32 v{vE}, v{m}", f"v_rcp_f32 v{vE+1}, v{m+1}", f"v_max3_f32 v{vMX}, v{m}, v{m+1}, v{vMX}"]
NSH = 4 * NW
vSU = 120
DS = ["row_shr:1 row_mask:0xf bank_mask:0xf bound_ctrl:0", "row_shr:2 row_mask:0xf bank_mask:0xf bound_ctrl:0",
      "row_shr:4 row_mask:0xf bank_mask:0xf bound_ctrl:0", "row_shr:8 row_mask:0xf bank_mask:0xf bound_ctrl:0",
      "row_bcast:15 row_mask:0xa bank_mask:0xf", "row_bcast:31 row_mask:0xc bank_mask:0xf"]
def dstep(i): return f"v_add_u32_dpp v56, v56, v56 {DS[i]}\nv_max_u32_dpp v55, v55, v55 {DS[i]}"
I(f"""
ds_read_b64 v[50:51], v152 offset:{CNT}
ds_read_b32 v49, v153 offset:{FLAG}
s_mov_b32 s{t2}, 0x80000004
s_lshl_b32 s{t3}, s{sW}, 2
s_waitcnt lgkmcnt(0)
v_add_u32 v80, -1, v50
v_add_u32 v81, -1, v51
v_and_b32 v80, s{t2}, v80
v_and_b32 v81, s{t2}, v81
v_cmp_gt_u32 {sr(sE0,2)}, {CAP}, v50
v_cmp_gt_u32 {sr(sE1,2)}, {CAP}, v51
v_cmp_eq_u32 vcc, 0, v80
v_cmp_eq_u32 s[32:33], 0, v81
v_add_u32 v52, 7, v50
v_add_u32 v53, 7, v51
s_and_b64 {sr(sE0,2)}, {sr(sE0,2)}, vcc
s_and_b64 {sr(sE1,2)}, {sr(sE1,2)}, s[32:33]
s_bcnt1_i32_b64 s{t0}, {sr(sE0,2)}
v_mbcnt_lo_u32_b32 v82, s{sE0}, 0
v_mov_b32 v83, s{t0}
v_mbcnt_hi_u32_b32 v82, s{sE0+1}, v82
v_mbcnt_lo_u32_b32 v83, s{sE1}, v83
v_mbcnt_hi_u32_b32 v83, s{sE1+1}, v83
v_subrev_u32 v84, s{t3}, v82
v_subrev_u32 v85, s{t3}, v83
v_cmp_gt_u32 s[32:33], 4, v84
v_cmp_gt_u32 s[34:35], 4, v85
v_cmp_gt_u32 s[36:37], {NSH}, v82
v_cmp_gt_u32 s[38:39], {NSH}, v83
""")
for e_ in range(2):
    m_ = (sE0, sE1)[e_]
    I(f"""
    s_and_b64 exec, {sr(m_,2)}, s[{32+2*e_}:{33+2*e_}]
    s_cbranch_execz L_shs{e_}
    v_and_b32 v86, 0x78, v{50+e_}
    v_and_b32 v90, 7, v{50+e_}
    v_lshl_add_u32 v88, v86, 2, v{vNB+e_}
    v_lshl_add_u32 v89, v86, 3, v{vNB+e_}
    v_lshlrev_b32 v90, 3, v90
    v_mov_b32 v91, v{vNB+2+e_}
    v_add_u32 v89, {EOFF}, v89
    v_sub_u32 v90, 64, v90
    v_lshlrev_b32 v87, 4, v{82+e_}
    ds_write_b128 v87, v[88:91] offset:{GT}
    L_shs{e_}:
    """)
I(f"""
s_mov_b64 exec, -1
ds_read2_b32 {P(vAG)}, v{vPG} offset0:1 offset1:0
ds_read_u16 v{vGQ}, v{vPR}
{gsrd(0)[0]}
{gsrd(0)[1]}
s_and_b64 {sr(sE0,2)}, {sr(sE0,2)}, s[36:37]
s_and_b64 {sr(sE1,2)}, {sr(sE1,2)}, s[38:39]
v_lshrrev_b32 v52, 3, v52
v_lshrrev_b32 v53, 3, v53
v_subb_co_u32 v52, vcc, v52, 0, {sr(sE0,2)}
v_subb_co_u32 v53, vcc, v53, 0, {sr(sE1,2)}
v_add_u32 v56, v52, v53
v_max_u32 v55, v52, v53
v_cmp_lt_u32 s[32:33], {CAP}, v50
v_cmp_lt_u32 s[34:35], {CAP}, v51
{dstep(0)}
v_readfirstlane_b32 s{sBad}, v49
{dstep(1)}
s_waitcnt lgkmcnt(3)
{AUPD}
ds_read_b32 v{vKA}, v{vAG+1}
ds_read_b64 {P(vA5)}, v{vAG}
{dstep(2)}
v_cndmask_b32 v58, v52, 0, {sr(sEN,2)}
{dstep(3)}
v_add_u32 v58, v58, v53
{dstep(4)}
v_cndmask_b32 v50, v50, v51, {sr(sEN,2)}
{dstep(5)}
v_cndmask_b32 v52, v52, v53, {sr(sEN,2)}
s_waitcnt lgkmcnt(1)
{IXM}
{QUPD}
{SAUPD[0]}
v_readlane_b32 s{sG}, v56, 63
v_readlane_b32 s{sGmax}, v55, 63
v_sub_u32 v56, v56, v58
ds_read_b64_tr_b16 {P(vB5[0])}, v{vQ}
ds_read_b64_tr_b16 {P(vB5[1])}, v{vQ} offset:64
ds_read_b64_tr_b16 {P(vD)}, v{vQ} offset:128
ds_read_b64_tr_b16 {P(vN)}, v{vQ} offset:192
s_bcnt1_i32_b64 s{t1}, s[32:33]
s_bcnt1_i32_b64 s{t2}, s[34:35]
s_add_u32 s{t1}, s{t1}, s{t2}
s_cmp_gt_u32 s{t1}, 1
s_cselect_b32 s{sBad}, 1, s{sBad}
""")
SL = int(opts.get("sl", 16))
shl = [f"buffer_load_dword v{vTH+i_}, v{vIX+i_}, {sr(sP,4)}, 0 offen sc1" for i_ in range(8)] + [f"buffer_load_dword v{vSU+i_}, v{vIX+i_}, {sr(sP,4)}, 0 offen offset:128 sc1" for i_ in range(8)]
for l in shl[:SL]: I(l)
I(f"""
s_cmp_gt_u32 s{sG}, {4*NW*(TMAX-1)}
s_cselect_b32 s{sBad}, 1, s{sBad}
s_cmp_gt_u32 s{sGmax}, {TMAX-1}
s_cselect_b32 s{sBad}, 1, s{sBad}
""")
if FORCE_SLOW == 1: I(f"s_mov_b32 s{sBad}, 1")
I(f"""
s_cmp_lg_u32 s{sBad}, 0
s_cbranch_scc1 L_slow
L_build:
s_lshl_b32 s{t0}, s{sKb}, 6
s_add_u32 s{t0}, s{t0}, 64
s_lshl_b32 s{t1}, s{sKb}, 4
v_cmp_lt_u32 vcc, s{sKb}, v52
v_mad_i32_i24 v146, v50, -8, s{t0}
v_lshl_add_u32 v57, v56, 4, s{t1}
v_max_i32 v146, 0, v146
s_and_b64 exec, exec, vcc
ds_write_b128 v57, v[144:147] offset:{GA}
s_mov_b64 exec, -1
s_add_u32 s{sKb}, s{sKb}, 6
s_cmp_lt_u32 s{sKb}, s{sGmax}
s_cbranch_scc1 L_build2
""")
for l in shl[SL:]: I(l)
I(f"""
s_add_u32 s{t0}, s{sG}, 3
s_lshr_b32 s{t0}, s{t0}, 2
s_mul_i32 s{sT}, s{t0}, 171
s_lshr_b32 s{sT}, s{sT}, 11
s_mul_i32 s{t1}, s{sT}, {NW}
s_sub_u32 s{sRem}, s{t0}, s{t1}
s_cmp_gt_u32 s{sGmax}, s{sT}
s_cselect_b32 s{sT}, s{sGmax}, s{sT}
s_cselect_b32 s{sRem}, 0, s{sRem}
s_cmp_lt_u32 s{sW}, s{sRem}
s_addc_u32 s{sTw}, s{sT}, 0
s_min_u32 s{t0}, s{sW}, s{sRem}
s_mul_i32 s{t1}, s{sT}, s{sW}
s_add_u32 s{t1}, s{t1}, s{t0}
s_lshl_b32 s{t1}, s{t1}, 2
s_min_u32 s{t1}, s{t1}, s{sG}
s_lshl_b32 s{t2}, s{sTw}, 4
s_sub_u32 s{t2}, s{t2}, 16
s_lshl_b32 s{sGam}, s{t1}, 4
s_add_u32 s{sGam}, s{sGam}, {GA}
s_sub_u32 s{sE0}, s{sGam}, s{sReg}
s_mov_b32 s{sE0+1}, s{sE0}
v_mad_i32_i24 v{vPA}, v148, s{t2}, v{vPA}
v_mad_i32_i24 v{vPB}, v149, s{t2}, v{vPB}
v_mad_i32_i24 v{vPG}, v150, s{t2}, v{vPG}
v_mad_i32_i24 v{vPR}, v151, s{t2}, v{vPR}
v_lshl_add_u64 {P(vPA)}, {P(vPA)}, 0, {sr(sE0,2)}
v_lshl_add_u64 {P(vPG)}, {P(vPG)}, 0, {sr(sE0,2)}
v_lshl_add_u32 v60, v{vLane}, 4, s{sGam}
v_mov_b32 v61, s{sGam}
s_sub_u32 s{t1}, s{sG}, s{t1}
s_cmp_lg_u32 s{t1}, 0
s_addc_u32 s{t1}, s{t1}, 0
s_min_u32 s{sTw}, s{sTw}, s{t1}
s_waitcnt lgkmcnt(0)
s_barrier
""")
stamp()

SOFT = int(opts.get("soft", 1)); CL = int(opts.get("cl", 1))
I(f"""
v_mov_b32 v{vt+7}, 0
v_mov_b32 v42, v60
v_add_u32 v43, -2, v61
""")
def chain1():
    I(f"""
    ds_read_b32 v{vSO}, v{vPG}
    ds_read_u16 v{vGS}, v42 offset:14
    ds_read_u16 v{vGS+1}, v43
    ds_read2_b32 {P(vAG)}, v{vPG} offset0:1 offset1:4
    ds_read_u16 v{vGQ}, v{vPR}
    s_add_u32 s{t0}, s{sW}, {ZROW}
    s_mul_i32 s{t0}, s{t0}, {SROW}
    v_cmp_gt_u32 {sr(sE0,2)}, s{sTw}, v{vLane}
    s_waitcnt lgkmcnt(4)
    v_add_u32 v{vSO}, v{vSO}, v{vAC+1}
    ds_read_b32 v{vKA}, v{vSO}
    s_waitcnt lgkmcnt(3)
    v_cmp_eq_u32 vcc, v{vGS}, v{vGS+1}
    v_mov_b32 v43, s{t0}
    s_and_b64 {sr(sE0,2)}, {sr(sE0,2)}, vcc
    s_waitcnt lgkmcnt(0)
    {IXM}
    {AUPD}
    {QUPD}
    s_mov_b64 exec, {sr(sE0,2)}
    ds_write_b16 v42, v43 offset:12
    s_mov_b64 exec, -1
    ds_read_b32 v{vKA}, v{vAG+1}
    {gsrd(0)[0]}
    {gsrd(0)[1]}
    s_nop 4
    """)
def short_half(u):
    src = vTH if u == 0 else vSU
    b0, b1_ = (vB5[0], vB5[1]) if u == 0 else (vD, vN)
    for i_ in range(4): I(f"v_lshlrev_b64 {P(vTL+2*i_)}, 16, {P(src+2*i_)}")
    I("s_nop 1")
    I(mf8(vTL, vA5, b0, vr(vTL,16)))
    I(mf8(vTH, vA5, b1_, vr(src,16)))
    I("s_nop 10")
    a, b_ = 2*u, 2*u + 1
    for j_, T in ((a, vTL), (b_, vTH)):
        for i_ in range(8): I(f"v_exp_f32 v{vE+i_}, v{T+i_}")
        for l in chain(T, vDj[j_], vNj[j_], 4): I(l)
    I(pmul(vSO, vDj[a], vDj[b_]))
    i3 = inv(vSO)
    for l in i3[0:2] + [pmul(vNj[a], vNj[a], vDj[b_]), pmul(vNj[b_], vNj[b_], vDj[a]), i3[2], pmul(vSj[a], vNj[a], vE), pmul(vSj[b_], vNj[b_], vE)]: I(l)
    I(f"ds_write2_b32 v{vSA}, v{vSj[a]}, v{vSj[b_]} offset0:{32*a} offset1:{32*b_}")
    I(f"ds_write2_b32 v{vSA+1}, v{vSj[a]+1}, v{vSj[b_]+1} offset0:{32*a} offset1:{32*b_}")
FP = [[int(c) for c in x] for x in opts.get("fp", "01,12,22").split(",")]
def fetch_point(pt):
    for u in range(2):
        m = sum(0xf << (4*c) for c in range(3) if FP[c][u] == pt)
        if m == 0: continue
        if m != 0xfff:
            I(f"s_movk_i32 s{t0}, {m}")
            I(f"s_bitcmp1_b32 s{t0}, s{sW}")
            I(f"s_cbranch_scc0 L_fp{pt}{u}")
        for l in gload(u): I(l)
        L(f"L_fp{pt}{u}")
late = sum(0xf << (4*c) for c in range(3) if min(FP[c]) >= 2) if CL else 0
if late:
    I(f"s_movk_i32 s{t0}, {late}")
    I(f"s_bitcmp1_b32 s{t0}, s{sW}")
    I("s_cbranch_scc1 L_c1")
chain1()
L("L_c1")
fetch_point(0)
for n0 in (0, 1, 2):
    m = sum(0xf << (4*c) for c in range(3) if FP[c].count(0) == n0)
    if m == 0: continue
    if m != 0xfff:
        I(f"s_movk_i32 s{t0}, {m}")
        I(f"s_bitcmp1_b32 s{t0}, s{sW}")
        I(f"s_cbranch_scc0 L_w9{n0}")
    I(f"s_waitcnt vmcnt({16*n0})")
    L(f"L_w9{n0}")
stamp()
short_half(0)
fetch_point(1)
short_half(1)
if SOFT:
    I(f"""
    s_mov_b64 exec, 1
    ds_add_u32 v{vt+7}, v{vt+6} offset:{PROG}
    s_mov_b64 exec, -1
    """)
if late:
    I(f"s_movk_i32 s{t0}, {late}")
    I(f"s_bitcmp1_b32 s{t0}, s{sW}")
    I("s_cbranch_scc0 L_c2")
    chain1()
    L("L_c2")
fetch_point(2)
I(f"""
ds_read_b64 {P(vA5)}, v{vAG}
ds_read_b64_tr_b16 {P(vB5[0])}, v{vQ}
ds_read_b64_tr_b16 {P(vB5[1])}, v{vQ} offset:64
s_waitcnt lgkmcnt(0)
{"" if SOFT else "s_barrier"}
s_cmp_eq_u32 s{sTw}, 0
s_cbranch_scc1 L_loop_done
""")
stamp()
fetch_point(3)
I(IXM)
I("s_waitcnt vmcnt(16)")
for l in shifts(0): I(l)
I("s_nop 1")
I(mf8(vTL, vA5, vB5[0], vr(vTL,16)))
I(f"s_mov_b32 s{sK}, s{sTw}")
if PRIO:
    I("s_setprio 3")
    I(f"s_mov_b32 s{t5}, {sum(1 << (x // 2) for x in PTH if x % 2 == 0)}")
    I(f"s_mov_b32 s{t4}, {sum(1 << ((x + 1) // 2) for x in PTH if x % 2 == 1)}")
for x in STG:
    if x == 0: continue
    m = t4 if x & 1 else t5
    I(f"""
    s_sub_u32 s{t0}, s{sTw}, {x // 2}
    s_lshl_b32 s{t0}, 1, s{t0}
    s_cmp_lt_u32 s{sW}, 4
    s_cselect_b32 s{t0}, s{t0}, 0
    s_or_b32 s{m}, s{m}, s{t0}
    """)
I("s_nop 15")

GS1, GS2, EXP, CHP = [int(x) for x in opts.get('gs', '6,11,8,4').split(',')]
body = []
def lds(text, tag=None): body.append(("lds", text, tag))
def need(tag): body.append(("need", tag))
def em(x):
    if isinstance(x, list): body.extend(x)
    else: body.append(x)
BATCH = int(opts.get("batch", 2)); LATE = int(opts.get("late", 0))
def rds(j):
    lds(f"ds_read_b32 v{vSj[j]}, v{vSA} offset:{128*j}")
    lds(f"ds_read_b32 v{vSj[j]+1}, v{vSA+1} offset:{128*j}", f"so{j}")
def pmul(d, a, b): return f"v_pk_mul_f32 {P(d)}, {P(a)}, {P(b)}"
def pfin(j, r): return f"v_pk_fma_f32 {P(vSj[j])}, {P(vNj[j])}, {P(r)}, {P(vSj[j])}"
def inv(m): return [f"v_rcp_f32 v{vE}, v{m}", f"v_rcp_f32 v{vE+1}, v{m+1}", f"v_max3_f32 v{vMX}, v{m}, v{m+1}, v{vMX}"]
def wr2(j):
    lds(f"ds_write2_b32 v{vSA}, v{vSj[j]}, v{vSj[j+1]} offset0:{32*j} offset1:{32*j+32}")
    lds(f"ds_write2_b32 v{vSA+1}, v{vSj[j]+1}, v{vSj[j+1]+1} offset0:{32*j} offset1:{32*j+32}")
FIN = opts.get("fin", "1,-,-,0").split(",")
vW2q = [vIX, vLb[0], vLb[1], vTL]
def w2ld(q): return [f"s_mov_b32 s{t0}, {W2I + 4096*q}"] + [f"buffer_load_dwordx4 {vr(vW2q[q]+4*i_,4)}, v40, {sr(sWS,4)}, s{t0} offen offset:{1024*i_} sc1" for i_ in range(4)]
W2A = [f"v_lshlrev_b32 v40, 4, v{vLane}", f"v_and_b32 v41, 0xf0, v40"]
B2LD = [f"s_mov_b32 s{t0}, {W2I + 16384}", f"buffer_load_dwordx4 v[2:5], v41, {sr(sWS,4)}, s{t0} offen sc1"]
def gen_body(final):
    body.clear()
    for j in range(4):
        T = vTH if j & 1 else vTL
        j2 = (j + 2) & 3
        ex = [f"v_exp_f32 v{vE+i}, v{T+i}" for i in range(16)]
        ch = chain(T, vDj[j], vNj[j])
        g = [] if final else gload(j >> 1)
        sfx = "f" if final else ""
        if SOFT and j == 1:
            em([f"s_cmp_eq_u32 s{sK}, s{sTw}", f"s_cbranch_scc1 L_own{sfx}", f"L_own{sfx}_ret:"])
        if final:
            if PRIO and FIN[j] != "-": em(f"s_setprio {FIN[j]}")
        elif PRIO and j in (0, 2) and any(x % 2 == j // 2 for x in PTH):
            em([f"s_bitcmp1_b32 s{t5 if j == 0 else t4}, s{sK}", f"s_cbranch_scc1 L_prio{j}", f"L_prio{j}_ret:"])
        if final and j == 0:
            em([f"s_lshl_b32 s{t0}, s{sW}, 2", f"v_mov_b32 v42, s{t0}", f"s_add_u32 s{t0}, s{sW}, 1", f"s_cmp_eq_u32 s{sW}, {NW-1}",
                f"s_cselect_b32 s{t0}, 0, s{t0}", f"s_mul_i32 s{t0}, s{t0}, {SROW}", f"v_add_u32 v43, {ZROW*SROW}, v{vSC}"])
            lds(f"ds_write_b32 v42, v{vt+6} offset:{DONE}")
            em(["s_mov_b32 exec_lo, 0", f"v_add_u32 v43, s{t0}, v43", "s_mov_b64 exec, -1"])
        if final and j == 1:
            need("done")
            em([f"v_cmp_eq_u32 vcc, 0, v{vN}", "s_cbranch_vccnz L_cw", "L_cw_ret:"])
        if j & 1:
            em(g[GS2:16])
            if final: lds(f"ds_read2_b32 {P(vSO)}, v43 offset0:{32*j-32} offset1:{32*j}")
            rds(j - 1); rds(j)
        if not (final and j >= 2):
            lds(f"ds_read_b64_tr_b16 {P(vB5[j & 1])}, v{vQ} offset:{64*j2}", f"b5_{j2}")
        if j == 1 and not final:
            lds(gsrd(16)[0]); lds(gsrd(16)[1])
            lds(f"ds_read2_b32 {P(vAG)}, v{vPG} offset0:5 offset1:8")
            lds(f"ds_read_u16 v{vGQ}, v{vPR} offset:16", "gq")
        jn = (j + 1) & 3; un = jn >> 1
        if j & 1 == 0:
            need(f"b5_{j+1}")
            em(mf8(vTH, vA5, vB5[1], vr(vLb[j >> 1],16)))
            if j == 0: em(SAUPD)
            em(ex[0:EXP])
            em(g[0:GS1])
            if j == 2 and not final:
                lds(f"ds_read_b32 v{vKA}, v{vAG+1}")
                lds(f"ds_read_b64 {P(vA5)}, v{vAG}", "a5")
            em(ex[EXP:16])
            em(ch[0:CHP])
            em(g[GS1:GS2])
            if final and j == 0: lds(f"ds_read_b32 v{vN}, v42 offset:{DONE+4}", "done")
            em(ch[CHP:])
        else:
            if final and j == 3:
                em([f"s_cmp_ge_u32 s{sW}, 7", "s_cbranch_scc1 L_nw2b"] + w2ld(2) + w2ld(3) + ["L_nw2b:"])
                em(ex)
            else:
                em(f"s_waitcnt vmcnt({0 if final else 16})")
                if final: em([f"s_cmp_ge_u32 s{sW}, 7", "s_cbranch_scc1 L_nw2a"] + W2A + w2ld(0) + w2ld(1) + B2LD + ["L_nw2a:"])
                em(shifts(un))
                em(ex[0:2])
                need("a5" if j == 3 else f"b5_{jn}")
                em(mf8(vTL, vA5, vB5[0], vr(vTL,16)))
                if j == 3:
                    em(ex[2:6]); em(IXM); em(ex[6:])
                    em(PADV)
                else:
                    em(ex[2:])
                    if not final:
                        need("gq")
                        em([QUPD, AUPD])
            em(ch)
            a, b = j - 1, j
            em(pmul(vD, vDj[a], vDj[b]))
            i3 = inv(vD)
            em(i3[0:2]); em([pmul(vNj[a], vNj[a], vDj[b]), pmul(vNj[b], vNj[b], vDj[a]), i3[2]])
            need(f"so{j}")
            if final: em([f"v_add_f32 v{vSj[a]+1}, v{vSj[a]+1}, v{vSO}", f"v_add_f32 v{vSj[b]+1}, v{vSj[b]+1}, v{vSO+1}"])
            em([pfin(a, vE), pfin(b, vE)])
            if j == 3 and not final: em([f"s_sub_u32 s{sK}, s{sK}, 1", f"s_cmp_lg_u32 s{sK}, 1"])
            wr2(a)
    return list(body)
def resolve(seq2, start):
    res = []
    for pos in range(start, len(seq2)):
        x = seq2[pos]
        if isinstance(x, tuple) and x[0] == "need":
            n = 0; p = pos - 1
            while not (isinstance(seq2[p], tuple) and seq2[p][0] == "lds" and seq2[p][2] == x[1]):
                if isinstance(seq2[p], tuple) and seq2[p][0] == "lds": n += 1
                p -= 1
            covered = False
            for q in range(p + 1, pos):
                y = seq2[q]
                if isinstance(y, tuple) and y[0] == "need":
                    pp = q - 1
                    while not (isinstance(seq2[pp], tuple) and seq2[pp][0] == "lds" and seq2[pp][2] == y[1]): pp -= 1
                    if pp >= p: covered = True
            if not covered: res.append(f"s_waitcnt lgkmcnt({min(n,15)})")
        elif isinstance(x, tuple): res.append(x[1])
        else: res.append(x)
    return res
bl = gen_body(False); bf = gen_body(True)
def lstamp():
    if DEBUG and int(opts.get("lstamp", 0)):
        I(f"""
        {'s_memtime' if DEBUG == 2 else 's_memrealtime'} s[100:101]
        s_sub_u32 s99, 40, s{sK}
        s_mov_b32 m0, s99
        s_waitcnt lgkmcnt(0)
        v_writelane_b32 v{vST}, s100, m0
        """)
I(f"s_cmp_eq_u32 s{sK}, 1")
I("s_cbranch_scc1 L_final")
A(".p2align 6")
L("L_loop")
lstamp()
for l in resolve(bl + bl + bl, 2*len(bl)): I(l)
I("s_cbranch_scc1 L_loop")
L("L_final")
lstamp()
for l in resolve(bl + bl + bf, 2*len(bl)): I(l)
stamp()
I(f"""
s_cmp_ge_u32 s{sW}, 7
s_cbranch_scc1 L_epi_wait
s_branch L_epi2
""")
L("L_loop_done")
I(f"""
s_lshl_b32 s{t0}, s{sW}, 2
v_mov_b32 v42, s{t0}
ds_write_b32 v42, v{vt+6} offset:{DONE}
""")
L("L_epi")
I(f"""
s_cmp_ge_u32 s{sW}, 7
s_cbranch_scc1 L_epi_wait
s_waitcnt vmcnt(0)
""")
for l in W2A + w2ld(0) + w2ld(1) + B2LD + w2ld(2) + w2ld(3): I(l)
I(f"""
L_epi2:
v_and_b32 v42, 15, v{vLane}
s_lshl_b32 s{t0}, s{sW}, 4
v_add_u32 v43, s{t0}, v42
v_min_u32 v43, {ZROW}, v43
v_lshrrev_b32 v47, 4, v{vLane}
v_lshl_add_u32 v45, v47, 2, s{t0}
v_lshlrev_b32 v47, 2, v45
ds_read_b128 v[32:35], v47 offset:{CNT}
v_bfe_u32 v46, v{vLane}, 4, 1
v_lshrrev_b32 v47, 5, v{vLane}
v_lshlrev_b32 v46, 8, v46
v_lshl_add_u32 v46, v47, 7, v46
v_add_u32 v46, {SB}, v46
v_mul_u32_u24 v43, {SROW}, v43
v_add_u32 v43, v43, v46
v_lshlrev_b32 v45, 7, v45
v_lshl_add_u32 v45, v42, 3, v45
s_mov_b32 s{t0}, {f2u(-LN2)}
s_waitcnt vmcnt(8) lgkmcnt(0)
""")
vO = 12
for r in range(4): I(f"v_cvt_f32_u32 v{32+r}, v{32+r}")
for c in range(4):
    for r in range(0, 4, 2):
        I(f"v_pk_mul_f32 {P(vO+4*c+r)}, {P(32+r)}, {P(2 + (c & 2))} op_sel:[0,{c & 1}] op_sel_hi:[1,{c & 1}]")
I(f"""
L_epi_wait:
s_xor_b32 s{t1}, s{sW}, 11
s_xor_b32 s{t2}, s2, {int(opts.get("genwg", 255))}
s_or_b32 s{t1}, s{t1}, s{t2}
s_cmp_lg_u32 s{t1}, 0
s_cbranch_scc1 L_nogen
v_mov_b32 v46, 0
v_mov_b32 v47, s{sTag}
s_mov_b64 exec, 1
buffer_store_dword v47, v46, {sr(sWS,4)}, 0 offen sc0 sc1
s_mov_b64 exec, -1
L_nogen:
s_setprio 0
v_cmp_nge_f32 vcc, {f2u(2.0**100)}, v{vMX}
s_waitcnt lgkmcnt(0)
s_barrier
s_cmp_ge_u32 s{sW}, 7
s_cbranch_scc1 L_epi_end
""")
stamp()
vO = 12
vSR = 96
ep = []
def elds(t, tag=None): ep.append(("lds", t, tag))
for ks in range(4):
    for i_ in range(2):
        elds(f"ds_read_b128 {vr(vSR+8*ks+4*i_,4)}, v43 offset:{32*ks+16*i_}", f"s{ks}" if i_ else None)
ep.append("s_waitcnt vmcnt(0)")
def cvts(ks): return [f"v_cvt_pk_bf16_f32 v{vSR+8*ks+i_}, v{vSR+8*ks+2*i_}, v{vSR+8*ks+2*i_+1}" for i_ in range(4)]
def mms(ks): return [f"v_mfma_f32_16x16x32_bf16 {vr(vO+4*c,4)}, {vr(vSR+8*ks,4)}, {vr(vW2q[c]+4*ks,4)}, {vr(vO+4*c,4)}" for c in range(4)]
ep.append(("need", "s0")); ep += cvts(0)
for ks in range(4):
    if ks < 3:
        ep.append(("need", f"s{ks+1}"))
        c_ = cvts(ks+1); m_ = mms(ks)
        ep += [c_[0], m_[0], c_[1], m_[1], c_[2], m_[2], c_[3], m_[3]]
    else:
        ep.append("s_nop 0"); ep += mms(3)
for pos, x in enumerate(ep):
    if isinstance(x, tuple) and x[0] == "need":
        n = 0; p = pos - 1
        while not (isinstance(ep[p], tuple) and ep[p][0] == "lds" and ep[p][2] == x[1]):
            if isinstance(ep[p], tuple) and ep[p][0] == "lds": n += 1
            p -= 1
        I(f"s_waitcnt lgkmcnt({min(n,15)})")
    elif isinstance(x, tuple): I(x[1])
    else: I(x)
if int(opts.get("est", 0)): stamp()
I(f"s_mov_b32 s{t1}, s{t0}")
I("s_nop 6")
for i_ in range(8):
    if int(opts.get("epk", 0)): I(f"v_pk_mul_f32 {P(vO+2*i_)}, {P(vO+2*i_)}, {sr(t0,2)}")
    else:
        I(f"v_mul_f32 v{vO+2*i_}, s{t0}, v{vO+2*i_}")
        I(f"v_mul_f32 v{vO+2*i_+1}, s{t0}, v{vO+2*i_+1}")
for r in range(4):
    I(f"v_cvt_pk_bf16_f32 v{144+2*r}, v{vO+r}, v{vO+4+r}")
    I(f"v_cvt_pk_bf16_f32 v{145+2*r}, v{vO+8+r}, v{vO+12+r}")
    I(f"buffer_store_dwordx2 {P(144+2*r)}, v45, {sr(sOUT,4)}, 0 offen offset:{128*r} " + opts.get("ost", "sc1").replace("+", " "))
if int(opts.get("est", 0)): stamp()
I(f"""
v_add_f32 v72, v{vO}, v{vO+1}
v_add_f32 v73, v{vO+2}, v{vO+3}
v_add_f32 v72, v72, v73
v_mov_b32 v73, 0x7f800000
v_cmp_nlt_f32 {sr(sE0,2)}, |v72|, v73
s_or_b64 vcc, vcc, {sr(sE0,2)}
L_epi_end:
s_cmp_lg_u32 s{sMode}, 0
s_cbranch_scc1 L_fin
""")
if FORCE_SLOW == 2: I("s_mov_b64 vcc, 1")
I(f"""
v_mov_b32 v72, 0
v_mov_b32 v73, 1
s_cmp_eq_u64 vcc, 0
s_cbranch_scc1 L_noflag
ds_write_b32 v72, v73 offset:{FLAG}
L_noflag:
s_waitcnt lgkmcnt(0)
s_barrier
ds_read_b32 v73, v72 offset:{FLAG}
s_waitcnt lgkmcnt(0)
v_readfirstlane_b32 s{sBad}, v73
s_cmp_lg_u32 s{sBad}, 0
s_cbranch_scc1 L_slow
L_fin:
""")
if DEBUG:
    stamp()
    I("s_waitcnt vmcnt(0)")
    stamp(True)
    I(f"""
    s_lshl_b32 s{t0}, s2, 4
    s_add_u32 s{t0}, s{t0}, s{sW}
    s_lshl_b32 s{t0}, s{t0}, 8
    s_add_u32 s{t0}, s{t0}, {STAMP}
    v_lshlrev_b32 v72, 2, v{vLane}
    buffer_store_dword v{vST}, v72, {sr(sWS,4)}, s{t0} offen
    s_waitcnt vmcnt(0)
    """)
    if opts.get("dd"):
        sel = [int(x) for x in opts["dd"].split(",")]
        if int(opts.get("xcc", 0)):
            I(f"""
            s_getreg_b32 s98, hwreg(HW_REG_XCC_ID, 0, 4)
            s_sub_u32 s98, s98, s2
            s_and_b32 s98, s98, 7
            s_lshl_b32 s98, s98, 5
            s_add_u32 s99, s98, 256
            v_writelane_b32 v{vST}, s98, 21
            v_writelane_b32 v{vST}, s99, 19
            s_nop 1
            """)
        I(f"""
        s_cmp_lg_u32 s{sW}, {opts.get("ddw", 0)}
        s_cbranch_scc1 L_exit
        s_load_dwordx2 s[96:97], s[0:1], 72
        s_load_dwordx2 s[94:95], s[0:1], 0
        v_readlane_b32 s98, v{vST}, 21
        s_not_b32 s98, s98
        v_mov_b32 v73, 0
        s_nop 1
        v_writelane_b32 v73, s98, 8
        """)
        for n_, x in enumerate(sel):
            I(f"v_readlane_b32 s98, v{vST}, {abs(x)}")
            if x < 0: I("s_not_b32 s98, s98")
            I("s_nop 1")
            I(f"v_writelane_b32 v73, s98, {n_}")
        I(f"""
        s_waitcnt lgkmcnt(0)
        s_load_dword s99, s[94:95], 0
        s_mov_b64 exec, 0x1ff
        global_atomic_umax v72, v73, s[96:97]
        s_waitcnt vmcnt(0)
        s_mov_b64 exec, 1
        v_mov_b32 v74, 1
        global_atomic_add v72, v74, s[96:97] offset:128
        s_waitcnt vmcnt(0) lgkmcnt(0)
        s_cmp_lg_u32 s2, 0
        s_cbranch_scc1 L_exit
        """)
        if int(opts.get("rt", 0)):
            I(f"""
            s_cmp_eq_u32 s99, 1013857686
            s_cbranch_scc1 L_exit
            s_cmp_eq_u32 s99, 976927781
            s_cbranch_scc1 L_exit
            s_lshr_b32 s98, s100, 2
            s_and_b32 s98, s98, {int(opts["rt"]) - 1}
            s_cmp_lg_u32 s98, 0
            s_cbranch_scc1 L_exit
            """)
        else:
            I(f"""
            s_cmp_eq_u32 s99, 1013857686
            s_cbranch_scc1 L_exit
            s_cmp_eq_u32 s99, 976927781
            s_cbranch_scc1 L_exit
            """)
        I(f"""
        s_mov_b32 s98, 0
        L_dd:
        global_load_dword v74, v72, s[96:97] offset:128 sc1
        s_add_u32 s98, s98, 1
        s_cmp_gt_u32 s98, 100000
        s_cbranch_scc1 L_exit
        s_waitcnt vmcnt(0)
        v_cmp_ne_u32 vcc, 0x100, v74
        s_cbranch_vccnz L_dd
        s_mov_b64 exec, 0x1ff
        global_load_dword v74, v72, s[96:97] sc1
        s_waitcnt vmcnt(0)
        v_readlane_b32 s98, v74, 8
        s_not_b32 s98, s98
        s_mov_b64 exec, {sum(1 << n_ for n_, x in enumerate(sel) if x < 0)}
        v_not_b32 v74, v74
        s_mov_b64 exec, 0xff
        v_subrev_u32 v74, s98, v74
        v_cvt_f32_u32 v74, v74
        v_mul_f32 v74, 1.0, v74
        v_cvt_pk_bf16_f32 v74, v74, v74
        v_lshlrev_b32 v75, 1, v{vLane}
        buffer_store_short v74, v75, {sr(sOUT,4)}, 0 offen
        s_waitcnt vmcnt(0)
        """)
L("L_exit")
I("s_endpgm")

if PRIO:
    for j in (0, 2):
        lv = [(i, x) for i, x in enumerate(PTH) if x % 2 == j // 2]
        if not lv and not stg_at(j): continue
        L(f"L_prio{j}")
        if stg_at(j):
            I(f"""
            v_mov_b32 v{vt+5}, 64
            ds_write_b32 v{vt+7}, v{vt+5} offset:{PROG}
            """)
        for n_, (i, x) in enumerate(lv):
            I(f"s_cmp_eq_u32 s{sK}, {(x + 1) // 2}")
            I(f"s_cbranch_scc0 L_prio{j}_{n_}")
            I(f"s_setprio {2 - i}")
            L(f"L_prio{j}_{n_}")
        I(f"s_branch L_prio{j}_ret")
if SOFT:
    for sfx in ("", "f"):
        I(f"""
        L_own{sfx}:
        s_mov_b32 s{t0}, 0
        L_own{sfx}_l:
        ds_read_b32 v{vt+5}, v{vt+7} offset:{PROG}
        s_waitcnt lgkmcnt(0)
        v_cmp_gt_u32 vcc, {NW}, v{vt+5}
        s_cbranch_vccz L_own{sfx}_ret
        s_add_u32 s{t0}, s{t0}, 1
        s_cmp_gt_u32 s{t0}, 0x100000
        s_cbranch_scc1 L_exit
        s_sleep 1
        s_branch L_own{sfx}_l
        """)
I(f"""
L_build2:
s_waitcnt lgkmcnt(0)
v_add_u32 v144, 192, v144
v_add_u32 v145, 384, v145
s_cmp_lt_u32 s{sKb}, 7
s_cbranch_scc1 L_build
s_lshl_b32 s{t0}, s{sKb}, 5
s_add_u32 s{t1}, s{t0}, {OVF - 7*32}
v_mov_b32 v144, s{t1}
s_add_u32 s{t1}, s{t1}, s{t0}
v_mov_b32 v145, s{t1}
s_branch L_build
""")
I(f"""
L_cw:
s_cmp_eq_u32 s{sW}, {NW-1}
s_cbranch_scc1 L_cw_ret
s_mov_b32 s{t0}, 0
L_cw_l:
ds_read_b32 v{vN}, v42 offset:{DONE+4}
s_waitcnt lgkmcnt(0)
v_cmp_eq_u32 vcc, 0, v{vN}
s_cbranch_vccz L_cw_ret
s_add_u32 s{t0}, s{t0}, 1
s_cmp_gt_u32 s{t0}, 0x100000
s_cbranch_scc1 L_exit
s_sleep 1
s_branch L_cw_l
""")
for fx, s_ in fixups:
    r = slotreg[s_]
    I(f"""
    L_fx{fx}:
    v_min_u32 v142, {CAP + 23}, v{r+3}
    v_subrev_u32 v142, {CAP}, v142
    v_mov_b32 v143, {OVF}
    v_lshl_add_u32 v136, v142, 2, v143
    v_lshl_add_u32 v142, v142, 3, v143
    v_cndmask_b32 v141, v141, v136, vcc
    v_cndmask_b32 v{vTA[s_]}, v{vTA[s_]}, v142, vcc
    s_branch L_fr{fx}
    """)
I(f"""
L_w2ld:
s_cmp_gt_u32 s2, 16
s_cbranch_scc1 L_p_done
s_cmp_lt_u32 s2, 16
s_cbranch_scc1 L_opt_c
v_lshlrev_b32 v12, 1, v{vLane}
global_load_ushort v{vW2S}, v12, {sr(pB2,2)}
s_branch L_p_done
L_opt_c:
s_and_b32 s{t0}, s2, 3
s_lshl_b32 s{t0}, s{t0}, 10
s_lshr_b32 s{t3}, s2, 2
s_lshl_b32 s{t3}, s{t3}, 1
s_add_u32 s{t0}, s{t0}, s{t3}
v_bfe_u32 v12, v{vLane}, 4, 1
v_lshlrev_b32 v12, 13, v12
v_lshrrev_b32 v13, 5, v{vLane}
v_lshl_add_u32 v12, v13, 12, v12
v_and_b32 v13, 15, v{vLane}
v_lshl_add_u32 v12, v13, 3, v12
""")
for i_ in range(8):
    I(f"buffer_load_ushort v{vW2S+i_}, v12, {sr(sD,4)}, s{t0} offen offset:{128*i_}")
I("s_branch L_p_done")
L("L_slow")
I(f"""
s_setprio 0
s_mov_b32 s{sMode}, 1
s_mov_b32 s{sK0}, 0
s_waitcnt vmcnt(0) lgkmcnt(0)
s_barrier
v_mov_b32 v{vt+6}, 1
v_mov_b32 v{vMX}, 0
""")
small_init(64)
s_zero(64)
desc_consts()
for jj in range(3): I(poll_load(jj))
I("s_waitcnt vmcnt(0)")
I(f"""
s_cmp_lt_u32 s{sW}, 8
s_cselect_b32 s{t0}, -1, 0
v_and_b32 v{vDs+4}, s{t0}, v{vDs+4}
""")
for jj in range(3): decode(jj)
for jj in range(3):
    I(f"v_mov_b32 v{144+jj}, v{vRA+jj}")
    I(f"v_mov_b32 v{147+jj}, v{vCn+jj}")
I(f"""
s_mov_b32 s{t5}, {KMASK}
v_mov_b32 v150, {KCON}
v_mov_b32 v{vKA+1}, 0x3c00
v_and_b32 v72, 31, v{vLane}
v_lshlrev_b32 v72, 2, v72
v_add_u32 v{vSC}, {SB}, v72
v_add_u32 v{vSC+1}, {SB}, v72
v_bfe_u32 v73, v{vLane}, 4, 1
v_lshlrev_b32 v73, 5, v73
v_and_b32 v74, 3, v{vLane}
v_lshl_add_u32 v73, v74, 3, v73
v_add_u32 v{vQC}, {QB}, v73
v_bfe_u32 v75, v{vLane}, 2, 2
v_add_u32 v76, 98, v75
v_mul_u32_u24 v76, {QROW}, v76
v_add_u32 v{vQ}, v76, v{vQC}
v_max3_i32 v137, v147, v148, v149
v_max_i32 v137, 0, v137
v_mov_b32 v138, 0
s_waitcnt lgkmcnt(0)
s_barrier
ds_max_u32 v138, v137 offset:{MAXC}
s_waitcnt lgkmcnt(0)
s_barrier
ds_read_b32 v137, v138 offset:{MAXC}
s_waitcnt lgkmcnt(0)
v_readfirstlane_b32 s{sMaxc}, v137
L_round:
s_barrier
""")
area_init(64)
I(f"""
v_lshlrev_b32 v64, 2, v0
v_add_u32 v64, {CNTR}, v64
v_mov_b32 v65, 0
v_cmp_gt_u32 vcc, 128, v0
s_and_b64 exec, exec, vcc
ds_write_b32 v64, v65
s_mov_b64 exec, -1
""")
for jj in range(3):
    I(f"v_cmp_lt_i32 {sr(sM+2*jj,2)}, s{sK0}, v{147+jj}")
for jj in range(3):
    I(f"s_mov_b64 exec, {sr(sM+2*jj,2)}")
    I(f"buffer_load_dwordx3 {vr(48+4*jj,3)}, v{144+jj}, {sr(sWS,4)}, s{sGam} offen sc1")
I(f"""
s_mov_b64 exec, -1
s_waitcnt vmcnt(0) lgkmcnt(0)
s_barrier
""")
for jj in range(3):
    r = 48 + 4*jj
    I(f"""
    s_mov_b64 exec, {sr(sM+2*jj,2)}
    v_bfe_u32 v{60+jj}, v{r+2}, 10, 9
    v_and_or_b32 v{r+2}, v{r+2}, s{t5}, v150
    v_add_u32 v{72+jj}, {GBASE}, v{60+jj}
    ds_add_rtn_u32 v{r+3}, v{72+jj}, v{vt+6} offset:512
    ds_add_u32 v{60+jj}, v{vt+6} offset:{CNT}
    """)
I(f"""
s_mov_b64 exec, -1
s_waitcnt lgkmcnt(0)
s_barrier
v_lshlrev_b32 v64, 3, v{vLane}
v_add_u32 v64, {GBASE}, v64
ds_read_b64 v[66:67], v64 offset:512
s_waitcnt lgkmcnt(0)
v_add_u32 v66, 7, v66
v_add_u32 v67, 7, v67
v_lshrrev_b32 v66, 3, v66
v_lshrrev_b32 v67, 3, v67
v_add_u32 v68, v66, v67
v_mov_b32 v69, v68
""")
dpp_scan(69)
I(f"""
v_readlane_b32 s{sG}, v69, 63
v_sub_u32 v70, v69, v68
v_add_u32 v71, v70, v66
ds_write_b64 v64, v[70:71]
s_add_u32 s{sNT}, s{sG}, 3
s_lshr_b32 s{sNT}, s{sNT}, 2
s_waitcnt lgkmcnt(0)
""")
for jj in range(3):
    r = 48 + 4*jj
    I(f"""
    s_mov_b64 exec, {sr(sM+2*jj,2)}
    ds_read_b32 v64, v{72+jj}
    ds_read_b32 v71, v{72+jj} offset:512
    v_lshrrev_b32 v65, 3, v{r+3}
    v_and_b32 v66, 7, v{r+3}
    v_lshrrev_b32 v67, 2, v{60+jj}
    s_waitcnt lgkmcnt(0)
    v_add_u32 v64, v64, v65
    v_lshlrev_b32 v65, 3, v65
    v_sub_u32 v71, v71, v65
    v_min_u32 v71, 8, v71
    v_lshlrev_b32 v71, 3, v71
    v_sub_u32 v71, 64, v71
    v_mul_u32_u24 v68, {SROW}, v67
    v_mul_u32_u24 v69, {QROW}, v67
    v_lshl_or_b32 v68, v69, 16, v68
    v_lshlrev_b32 v69, 4, v64
    v_add_u32 v69, {GT}, v69
    ds_write2_b32 v69, v71, v68 offset0:2 offset1:3
    v_mul_u32_u24 v65, 9363, v64
    v_lshrrev_b32 v65, 16, v65
    v_mul_u32_u24 v67, 7, v65
    v_sub_u32 v64, v64, v67
    v_mul_u32_u24 v65, {NSZ}, v65
    v_add_u32 v65, {AREA}, v65
    v_lshl_add_u32 v67, v64, 5, v65
    v_lshl_add_u32 v70, v64, 6, v65
    v_add_u32 v70, {EOFF}, v70
    ds_write2_b32 v69, v67, v70 offset0:0 offset1:1
    v_lshl_add_u32 v75, v66, 2, v67
    v_lshl_add_u32 v76, v66, 3, v70
    ds_write_b32 v75, v{r+2}
    ds_write_b64 v76, {P(r)}
    s_waitcnt lgkmcnt(0)
    """)
I(f"""
s_mov_b64 exec, -1
s_barrier
s_mov_b32 s{sK}, s{sW}
L_stile:
s_cmp_ge_u32 s{sK}, s{sNT}
s_cbranch_scc1 L_stile_done
s_lshl_b32 s{t0}, s{sK}, 6
s_add_u32 s{t0}, s{t0}, {GT}
""")
ptr_consts(f"s{t0}")
I(f"""
ds_read2_b32 {P(vAG)}, v{vPG} offset0:1 offset1:0
ds_read_u16 v{vGQ}, v{vPR}
{gsrd(0)[0]}
{gsrd(0)[1]}
s_waitcnt lgkmcnt(0)
{AUPD}
ds_read_b32 v{vKA}, v{vAG+1}
ds_read_b64 {P(vA5)}, v{vAG}
s_waitcnt lgkmcnt(0)
{IXM}
s_nop 15
""")
for l in gload(0) + gload(1) + SAUPD + [QUPD]: I(l)
I("s_waitcnt vmcnt(0)")
for u in range(2):
    I(f"ds_read_b64_tr_b16 {P(vB5[0])}, v{vQ} offset:{128*u}")
    I(f"ds_read_b64_tr_b16 {P(vB5[1])}, v{vQ} offset:{128*u+64}")
    for l in shifts(u): I(l)
    I("s_waitcnt lgkmcnt(0)")
    I("s_nop 1")
    I(mf8(vTL, vA5, vB5[0], vr(vTL,16)))
    I(mf8(vTH, vA5, vB5[1], vr(vLb[u],16)))
    I("s_nop 15")
    for hi, T in enumerate((vTL, vTH)):
        for i in range(16): I(f"v_exp_f32 v{vE+i}, v{T+i}")
        for i in range(16): I(f"v_add_f32 v{vE+i}, 1.0, v{vE+i}")
        for i in range(16): I(f"v_rcp_f32 v{vE+i}, v{vE+i}")
        I(f"v_pk_mul_f32 {P(vN)}, {P(T)}, {P(vE)}")
        for i in range(1, 8): I(f"v_pk_fma_f32 {P(vN)}, {P(T+2*i)}, {P(vE+2*i)}, {P(vN)}")
        I(f"ds_add_f32 v{vSA}, v{vN} offset:{128*(2*u+hi)}")
        I(f"ds_add_f32 v{vSA+1}, v{vN+1} offset:{128*(2*u+hi)}")
        I("s_waitcnt lgkmcnt(0)")
I(f"""
s_add_u32 s{sK}, s{sK}, {NW}
s_branch L_stile
L_stile_done:
s_add_u32 s{sK0}, s{sK0}, 8
s_add_u32 s{sGam}, s{sGam}, 96
s_cmp_lt_u32 s{sK0}, s{sMaxc}
s_cbranch_scc1 L_round
s_barrier
s_branch L_epi
""")

A('.section .rodata,"a"')
A(".p2align 6")
A(f".amdhsa_kernel {KNAME}")
A(f"  .amdhsa_next_free_vgpr {NVGPR}")
A("  .amdhsa_next_free_sgpr 102")
A(f"  .amdhsa_accum_offset {NVGPR}")
A("  .amdhsa_group_segment_fixed_size 0")
A("  .amdhsa_kernarg_size 88")
A("  .amdhsa_user_sgpr_count 2")
A("  .amdhsa_user_sgpr_kernarg_segment_ptr 1")
A("  .amdhsa_system_sgpr_workgroup_id_x 1")
A("  .amdhsa_float_denorm_mode_32 3")
A(".end_amdhsa_kernel")
open(sys.argv[1], "w").write("\n".join(out) + "\n")
print("LDS", LDS, "SB", SB, "QB", QB, "lines", len(out), file=sys.stderr)
```

```python
import sys, struct

opts = dict(a.split("=") for a in sys.argv[2:])
LITE = int(opts.get("lite", 0))
DEBUG = int(opts.get("debug", 0))
PRIO = int(opts.get("prio", 1))
FORCE_SLOW = int(opts.get("slow", 0))
NT = " " + opts.get("nt", "none").replace("+", " ").replace("none", "")
WSOFF = int(opts.get("wsoff", "0"), 0)
PREF = int(opts.get("pref", 0))
STG = [int(x) for x in opts.get("stg", "0,0").split(",")]
STAG = max(STG) > 0
def stg_at(j): return any(x > 0 and x % 2 == j // 2 for x in STG)
SLEEP = int(opts.get("sleep", 2))
PTH = [int(x) for x in opts.get("pth", "5").split(",")]

PST_ = opts.get("pst", "sc1").replace("+", " "); RST_ = opts.get("rst", "sc1").replace("+", " ")
ICP = int(opts.get('icp', 2)); TAGS = int(opts.get('tags', 1))
PAIR = int(opts.get('pair', 1))
PUB_ = opts.get("pub", "sc0+sc1").replace("+", " ")
AI4 = int(opts.get('ai4', 0))
KNAME = "standalone__edge_featured_mpnn_mpnn__graph_kernel"
N = 25000; E = 800000
BN = 98; NW = 12; NTH = 768
QE = 3072; XE = 53; CH = QE + XE
GRAN = 0x10000
W2I = 0x98000
PF = 0xA0000
MAGIC = 0x4B010000
REC = 0x100000; RSTRIDE = 37632
PT = 0xB00000
STAMP = 0x1200000
WS_SIZE = 0x1300000
LOG2E = 1.4426950408889634
LN2 = 0.6931471805599453
def f2u(x): return struct.unpack("<I", struct.pack("<f", x))[0]

CNT = 0; DONE = 512; PROG = 1024; FLAG = 1040; MAXC = 1044; LUT = 1088
GT = 1600; GSZ = 64; TMAX = 10; NGT = NW * TMAX + 2
GA = GT + 49 * 16
CNT1 = GT
CAP = 56; NSZ = CAP * 12; EOFF = CAP * 4
AREA = (GT + NGT * GSZ + 127) // 128 * 128
SB = (AREA + 99 * NSZ + 255) // 256 * 256
SROW = 528; NSROW = BN + NW
QB = SB + NSROW * SROW; QROW = 264
GBASE = QB + 102 * QROW; CNTR = GBASE + 512
LDS = CNTR + 512
assert LDS <= 163840 and QB % 8 == 0 and GBASE % 8 == 0 and GT % 16 == 0
RST = AREA; XRAW = AREA + 37632; W1RAW = SB; PST = SB + 32768
assert XRAW + 16384 <= SB and PST + BN * 256 <= QB
ZROW = BN
KMASK = 0x03F803FC; KCON = 0x5C005C00
PADKEY = KCON | (126 << 19)
OVF = AREA + 98 * NSZ
SCANW, EXTRAW = 8, 9

out = []
def A(s=""): out.append(s)
def I(s):
    for l in s.strip("\n").split("\n"):
        l = l.strip()
        if not l: continue
        out.append(l if l.endswith(":") else "    " + l)
def L(name): out.append(name + ":")
def vr(a, n): return f"v[{a}:{a+n-1}]"
def sr(a, n): return f"s[{a}:{a+n-1}]"
def P(r): return f"v[{r}:{r+1}]"

sWS, sP, sOUT, sA, sBq, sC = 4, 8, 12, 16, 20, 24
sD = 28
pX, pE, pSRC, pDST, pW1, pB1, pW2, pB2, pOUT, pWS = 32, 34, 36, 38, 40, 42, 44, 46, 48, 50
sM = 32
sB, sW, sTw, sG, sT, sRem, sGam, sK, sGmax, sBad, sTag, sTag8, sReg, sMode, sK0, sMaxc = range(62, 78)
sONE = 78; sADV = 80; sSC = 82; sE0 = 84; sE1 = 86
t0, t1, t2, t3, t4, t5 = 88, 89, 90, 91, 92, 93
sNT = 3
sPM, sNV = 16, 22; sPV = [28, 30, 94]
vLane = 1
vPA, vPB, vPG, vPR = 2, 3, 4, 5
vSC = 8; vQC = 44; vQ = 10; vGQ = 11
vSA = 12; vAG = 14; vA5 = 16; vB5 = [18, 20]; vD = 22; vN = 24; vSO = 26; vMX = 28; vST = 29
vAC = 6; vBK = 30; vGS = 36; vKA = 38
vW2S = 32
vt = 40
vLb = [48, 64]; vTL = 80; vTH = 96; vE = 112; vIX = 128
NVGPR = 168

nstamp = [0]
def stamp(force=False):
    if not DEBUG: return
    i = nstamp[0]; nstamp[0] += 1
    if LITE and not force: return
    I(f"{'s_memtime' if DEBUG == 2 else 's_memrealtime'} s[100:101]")
    I("s_waitcnt lgkmcnt(0)")
    I(f"v_writelane_b32 v{vST}, s100, {i}")

def srd(d, p, nrec, stride=0, add=None):
    if add is None:
        I(f"s_mov_b32 s{d}, s{p}")
        I(f"s_and_b32 s{d+1}, s{p+1}, 0xffff")
    else:
        I(f"s_add_u32 s{d}, s{p}, {add}")
        I(f"s_addc_u32 s{d+1}, s{p+1}, 0")
        I(f"s_and_b32 s{d+1}, s{d+1}, 0xffff")
    I(f"s_mov_b32 s{d+2}, {nrec}")
    I(f"s_mov_b32 s{d+3}, 0x00020000")

def dpp_scan(v, vmax=None):
    steps = ["row_shr:1 row_mask:0xf bank_mask:0xf bound_ctrl:0", "row_shr:2 row_mask:0xf bank_mask:0xf bound_ctrl:0",
             "row_shr:4 row_mask:0xf bank_mask:0xf bound_ctrl:0", "row_shr:8 row_mask:0xf bank_mask:0xf bound_ctrl:0",
             "row_bcast:15 row_mask:0xa bank_mask:0xf", "row_bcast:31 row_mask:0xc bank_mask:0xf"]
    I("s_nop 1")
    for s in steps:
        I(f"v_add_u32_dpp v{v}, v{v}, v{v} {s}")
        if vmax is not None:
            I(f"v_max_u32_dpp v{vmax}, v{vmax}, v{vmax} {s}")
            I("s_nop 0")
        else:
            I("s_nop 1")
def lanemask(ls):
    m = 0
    for l in ls: m |= 1 << l
    return m
def setexec(m):
    I(f"s_mov_b32 exec_lo, {m & 0xffffffff}")
    I(f"s_mov_b32 exec_hi, {m >> 32}")
def mf16(D, a, b, c): return f"v_mfma_f32_32x32x16_bf16 {vr(D,16)}, {vr(a,4)}, {vr(b,4)}, {c}"
def mf8(D, a, b, c): return f"v_mfma_f32_32x32x8_bf16 {vr(D,16)}, {vr(a,2)}, {vr(b,2)}, {c}"
SDWA0 = "dst_sel:DWORD dst_unused:UNUSED_PAD src0_sel:WORD_0 src1_sel:DWORD"
SDWAB = "dst_sel:DWORD dst_unused:UNUSED_PAD src0_sel:DWORD src1_sel:BYTE_0"

def area_init(z):
    I(f"""
    s_mov_b32 s{t0}, 1561
    v_mul_u32_u24 v{z+5}, s{t0}, v0
    v_lshrrev_b32 v{z+5}, 16, v{z+5}
    v_mul_u32_u24 v{z+5}, 42, v{z+5}
    v_sub_u32 v{z+5}, v0, v{z+5}
    v_cmp_gt_u32 vcc, 14, v{z+5}
    v_mov_b32 v{z+6}, {PADKEY}
    v_lshlrev_b32 v{z+7}, 4, v0
    v_cndmask_b32 v{z}, 0, v{z+6}, vcc
    v_add_u32 v{z+4}, {AREA}, v{z+7}
    v_mov_b32 v{z+1}, v{z}
    v_mov_b32 v{z+2}, v{z}
    v_mov_b32 v{z+3}, v{z}
    v_cmp_gt_u32 vcc, 756, v0
    s_and_b64 exec, exec, vcc
    """)
    for t in range(6):
        if t == 5:
            I(f"v_cmp_gt_u32 vcc, {99*42 - 5*756}, v0")
            I("s_and_b64 exec, exec, vcc")
        I(f"ds_write_b128 v{z+4}, {vr(z,4)} offset:{t*756*16}")
    I("s_mov_b64 exec, -1")
    vals = [OVF + 6*32, OVF + EOFF + 6*64, 64, (ZROW*SROW) | ((98*QROW) << 16)]
    for q in range(4): I(f"v_mov_b32 v{z+8+q}, {vals[q]}")
    I(f"""
    v_cmp_gt_u32 vcc, {NGT*4}, v0
    s_and_b64 exec, exec, vcc
    ds_write_b128 v{z+7}, {vr(z+8,4)} offset:{GT}
    s_mov_b64 exec, -1
    """)
def area_init4(z, lbl):
    I(f"""
    s_cmp_lt_u32 s{sW}, 8
    s_cbranch_scc1 {lbl}
    v_subrev_u32 v{z+7}, 512, v0
    s_mov_b32 s{t0}, 1561
    v_mul_u32_u24 v{z+5}, s{t0}, v{z+7}
    v_lshrrev_b32 v{z+5}, 16, v{z+5}
    v_mul_u32_u24 v{z+5}, 42, v{z+5}
    v_sub_u32 v{z+5}, v{z+7}, v{z+5}
    v_cmp_gt_u32 vcc, 14, v{z+5}
    v_mov_b32 v{z+6}, {PADKEY}
    v_lshlrev_b32 v{z+4}, 4, v{z+7}
    v_cndmask_b32 v{z}, 0, v{z+6}, vcc
    v_add_u32 v{z+4}, {AREA}, v{z+4}
    v_mov_b32 v{z+1}, v{z}
    v_mov_b32 v{z+2}, v{z}
    v_mov_b32 v{z+3}, v{z}
    v_cmp_gt_u32 vcc, 252, v{z+7}
    s_and_b64 exec, exec, vcc
    """)
    for t in range(17):
        if t == 16:
            I(f"v_cmp_gt_u32 vcc, {99*42 - 16*252}, v{z+7}")
            I("s_and_b64 exec, exec, vcc")
        I(f"ds_write_b128 v{z+4}, {vr(z,4)} offset:{t*252*16}")
    I("s_mov_b64 exec, -1")
    vals = [OVF + 6*32, OVF + EOFF + 6*64, LUT + 64, (ZROW*SROW) | ((98*QROW) << 16)]
    I(f"v_mov_b32 v{z+8}, {vals[0]}")
    for q in range(1, 4):
        setexec(lanemask([l for l in range(64) if l & 3 == q]))
        I(f"v_mov_b32 v{z+8}, {vals[q]}")
    I(f"""
    s_mov_b64 exec, -1
    v_lshlrev_b32 v{z+5}, 4, v{z+7}
    v_cmp_gt_u32 vcc, {NGT*4 - 256}, v{z+7}
    v_mov_b32 v{z+9}, v{z+8}
    v_mov_b32 v{z+10}, v{z+8}
    v_mov_b32 v{z+11}, v{z+8}
    ds_write_b128 v{z+5}, {vr(z+8,4)} offset:{GT}
    s_and_b64 exec, exec, vcc
    ds_write_b128 v{z+5}, {vr(z+8,4)} offset:{GT + 4096}
    s_mov_b64 exec, -1
    {lbl}:
    """)
def s_zero(z):
    nch = NSROW * SROW // 16
    for i in range(4): I(f"v_mov_b32 v{z+i}, 0")
    I(f"v_lshlrev_b32 v{z+4}, 4, v0")
    I(f"v_add_u32 v{z+4}, {SB}, v{z+4}")
    n = (nch + NTH - 1) // NTH
    for t in range(n):
        if (t + 1) * NTH > nch:
            I(f"v_cmp_gt_u32 vcc, {nch - t*NTH}, v0")
            I(f"s_and_b64 exec, exec, vcc")
        I(f"ds_write_b128 v{z+4}, {vr(z,4)} offset:{t*NTH*16}")
    I("s_mov_b64 exec, -1")
def small_init(z):
    I(f"""
    v_lshlrev_b32 v{z}, 2, v0
    v_mov_b32 v{z+1}, 0
    v_cmp_gt_u32 vcc, 272, v0
    s_and_b64 exec, exec, vcc
    ds_write_b32 v{z}, v{z+1}
    s_mov_b64 exec, -1
    """)

hdr = open("standalone__edge_featured_mpnn_mpnn__graph.s.ref").read().split("\n")
for l in hdr:
    if "@launch" in l: continue
    if not l.startswith(";"): break
    A(l)
A(f"; @launch grid=(256,1,1) block=({NTH},1,1) lds={LDS}")
A('.amdgcn_target "amdgcn-amd-amdhsa--gfx950"')
A(".text")
for l in """
Edge-featured MPNN layer, one launch, 256 co-resident workgroups (one per CU, 12 waves each).
  z_e = x[src] W1a + x[dst] W1b + b1 + e W1c ;  out[n] = (sum_e silu(z_e)) W2 + deg[n] b2   (exact regrouping)
Phase 1  workgroup w ranks its 3125 edges by destination bucket (98 nodes), writes them bucket-sorted to d_ws,
         computes P = -log2e x W1a for its 98 nodes (two bf16 per dword, to d_ws) and Q = -log2e (x W1b + b1) (LDS),
         then publishes tagged (start,count) granules.  tag = generation word found in d_ws + 1.
Phase 2  the workgroup collects its bucket from all producers into per-node LDS areas; 8 edges of a node form a group,
         4 groups a 32-row MFMA tile.  t = P[src] (gathered as MFMA C operand) + [e | onehot] [W1c' ; Q] (one MFMA).
         sum t/(1+2^t) over a group is evaluated as one fraction N/D (dual-number product, two groups per packed op),
         accumulated in fp32 LDS rows owned by one wave.  A too large D or a non-finite result, or an edge distribution
         that does not fit the tables, reruns the bucket on the general path (plain silu, LDS float atomics, rounds).
Epilogue out = -ln2 S W2 + deg b2 with 16x16x32 MFMAs.
""".strip("\n").split("\n"): A("; " + l)
A(f".globl {KNAME}")
A(".p2align 8")
A(f".type {KNAME},@function")
L(KNAME)
I(f"""
s_cmp_ge_u32 s2, 256
s_cbranch_scc1 L_exit
{"s_memrealtime s[96:97]" if DEBUG else ""}
""")
if int(opts.get("skew", 0)):
    I(f"""
    s_and_b32 s3, s2, 7
    s_cmp_lg_u32 s3, {opts.get("skx", 3)}
    s_cbranch_scc1 L_nosk
    s_sleep {opts["skew"]}
    L_nosk:
    """)
I(f"""
s_load_dwordx16 s[32:47], s[0:1], 0
s_load_dwordx2 {sr(pOUT,2)}, s[0:1], 64
s_load_dwordx2 {sr(pWS,2)}, s[0:1], 80
v_lshrrev_b32 v{vt}, 6, v0
v_and_b32 v{vLane}, 63, v0
v_readfirstlane_b32 s{sW}, v{vt}
""")
if ICP in (2, 3, 4):
    I(f"""
    s_getpc_b64 s[94:95]
    s_lshr_b32 s98, s2, 3
    s_mul_i32 s98, s98, {NW}
    s_add_u32 s98, s98, s{sW}
    s_and_b32 s98, s98, {127 if ICP == 3 else 255}
    s_lshl_b32 s98, s98, {7 if ICP == 3 else 6}
    """)
if ICP == 3:
    I(f"""
    v_mov_b32 v27, s98
    s_mov_b64 exec, 1
    global_load_dword v27, v27, s[94:95]
    s_mov_b64 exec, -1
    """)
if ICP == 4:
    I(f"""
    s_cmp_gt_u32 s98, 64
    s_cbranch_scc1 L_noic
    s_lshl_b32 s99, s98, 7
    v_lshl_add_u32 v27, v{vLane}, 7, s99
    global_load_dword v27, v27, s[94:95]
    L_noic:
    """)
I(f"""
s_mul_i32 s{t0}, s2, {QE*4}
{f"s_lshl_b32 s{t1}, s{sW}, 10" if PAIR else ""}
{f"s_add_u32 s{t0}, s{t0}, s{t1}" if PAIR else ""}
{f"v_lshl_add_u32 v{vt+1}, v{vLane}, 3, s{t0}" if PAIR else f"v_lshl_add_u32 v{vt+1}, v0, 4, s{t0}"}
v_lshlrev_b32 v{vt+2}, 1, v{vt+1}
s_and_b32 s{sB}, s2, 7
s_lshl_b32 s{sB}, s{sB}, 5
s_lshr_b32 s{t1}, s2, 3
s_add_u32 s{sB}, s{sB}, s{t1}
{f"s_mov_b32 s{sB}, s2" if int(opts.get("ident", 0)) else ""}
v_lshlrev_b32 v75, 2, v0
v_mov_b32 v76, 0
ds_write_b32 v75, v76 offset:{CNT1}
v_lshrrev_b32 v68, 3, v{vLane}
v_lshrrev_b32 v69, 4, v{vLane}
v_and_b32 v70, 7, v{vLane}
v_xor_b32 v70, v70, v69
v_lshlrev_b32 v70, 4, v70
v_lshl_add_u32 v70, v68, 7, v70
s_and_b32 s{t0}, s{sW}, 1
s_lshl_b32 s{t0}, s{t0}, 6
v_xor_b32 v71, s{t0}, v70
v_and_b32 v72, 15, v{vLane}
v_lshlrev_b32 v73, 2, v69
v_xor_b32 v72, v72, v73
v_lshlrev_b32 v72, 4, v72
v_lshl_add_u32 v72, v69, 8, v72
v_lshlrev_b32 v74, 1, v{vLane}
v_and_b32 v75, 32, v{vLane}
v_lshl_add_u32 v74, v75, 4, v74
v_lshlrev_b32 v{vt+5}, 4, v{vLane}
v_lshlrev_b32 v{vt}, 4, v0
s_mul_i32 s{t1}, s{sB}, {BN*128}
s_lshl_b32 s{t2}, s{sW}, 10
s_mov_b32 s{sA+2}, {N*128}
s_mov_b32 s{sA+3}, 0x00020000
s_mov_b32 s{sBq+2}, {132*256}
s_mov_b32 s{sBq+3}, 0x00020000
s_mov_b32 s{sC+2}, 256
s_mov_b32 s{sC+3}, 0x00020000
s_mov_b32 s{sD+2}, {128*128}
s_mov_b32 s{sD+3}, 0x00020000
s_waitcnt lgkmcnt(0)
s_add_u32 s{pWS}, s{pWS}, {WSOFF}
s_addc_u32 s{pWS+1}, s{pWS+1}, 0
{"s_load_dword s3, s[94:95], s98" if ICP in (2, 4) else ""}
{f"s_load_dword s{sTag}, {sr(pWS,2)}, 0" if TAGS else ""}
s_mov_b32 s{sA}, s{pX}
s_and_b32 s{sA+1}, s{pX+1}, 0xffff
s_mov_b32 s{sBq}, s{pW1}
s_and_b32 s{sBq+1}, s{pW1+1}, 0xffff
s_mov_b32 s{sC}, s{pB1}
s_and_b32 s{sC+1}, s{pB1+1}, 0xffff
s_mov_b32 s{sD}, s{pW2}
s_and_b32 s{sD+1}, s{pW2+1}, 0xffff
s_cmp_ge_u32 s{sW}, 8
s_cbranch_scc1 L_opt_hi
s_add_u32 s{t3}, s{t2}, {24*1024}
s_add_u32 m0, s{t3}, {W1RAW}
s_cmp_lg_u32 s{sW}, 0
buffer_load_dwordx4 v72, {sr(sBq,4)}, s{t3} offen lds
s_cbranch_scc1 L_opt_end
s_mov_b32 m0, {XRAW + 12*1024}
s_add_u32 s{t3}, s{t1}, {12*1024}
buffer_load_dwordx4 v70, {sr(sA,4)}, s{t3} offen{NT} lds
s_branch L_opt_end
L_opt_hi:
s_cmp_lg_u32 s{sW}, {EXTRAW}
s_cbranch_scc1 L_opt_a
s_mul_i32 s{t0}, s2, {XE}
s_add_u32 s{t0}, s{t0}, {256*QE}
v_add_lshl_u32 v{vt+3}, v{vLane}, s{t0}, 2
v_lshlrev_b32 v{vt+4}, 1, v{vt+3}
""")
XM = (1 << XE) - 1
setexec(XM)
I(f"""
global_load_dword v64, v{vt+3}, {sr(pDST,2)}{NT}
global_load_dword v65, v{vt+3}, {sr(pSRC,2)}{NT}
global_load_dwordx2 v[66:67], v{vt+4}, {sr(pE,2)}{NT}
s_mov_b64 exec, -1
s_branch L_opt_end
L_opt_a:
s_cmp_lg_u32 s{sW}, 10
s_cbranch_scc1 L_opt_end
s_mov_b32 s{t0}, {128*256}
buffer_load_dwordx4 v[12:15], v{vt+5}, {sr(sBq,4)}, s{t0} offen
""")
ORD = opts.get("ord", "A")
dma = f"""
s_add_u32 m0, s{t2}, {XRAW}
s_add_u32 s{t3}, s{t1}, s{t2}
buffer_load_dwordx4 v71, {sr(sA,4)}, s{t3} offen{NT} lds
s_add_u32 m0, s{t2}, {W1RAW}
s_add_u32 s{t3}, s{t2}, {12*1024}
buffer_load_dwordx4 v72, {sr(sBq,4)}, s{t2} offen lds
s_add_u32 m0, s{t3}, {W1RAW}
s_nop 0
buffer_load_dwordx4 v72, {sr(sBq,4)}, s{t3} offen lds
"""
edg = f"""
global_load_dwordx4 v[52:55], v{vt+1}, {sr(pSRC,2)}{NT}
global_load_dwordx4 v[56:59], v{vt+2}, {sr(pE,2)}{NT}
global_load_dwordx4 v[60:63], v{vt+2}, {sr(pE,2)} offset:16{NT}
"""
L("L_opt_end")
if PAIR:
    I(f"""
    global_load_dwordx2 v[48:49], v{vt+1}, {sr(pDST,2)}{NT}
    global_load_dwordx2 v[50:51], v{vt+1}, {sr(pDST,2)} offset:512{NT}
    """)
    edg = f"""
    global_load_dwordx2 v[52:53], v{vt+1}, {sr(pSRC,2)}{NT}
    global_load_dwordx2 v[54:55], v{vt+1}, {sr(pSRC,2)} offset:512{NT}
    global_load_dwordx4 v[56:59], v{vt+2}, {sr(pE,2)}{NT}
    global_load_dwordx4 v[60:63], v{vt+2}, {sr(pE,2)} offset:1024{NT}
    """
else:
    I(f"global_load_dwordx4 v[48:51], v{vt+1}, {sr(pDST,2)}{NT}")
if DEBUG:
    I(f"v_mov_b32 v{vST}, 0")
    if DEBUG == 1: I(f"v_writelane_b32 v{vST}, s96, 21")
    nstamp[0] = 1
if ORD == "A": I(dma); I("s_barrier"); I(edg)
elif ORD == "B": I("s_barrier"); I(dma); I(edg)
elif ORD == "C": I("s_barrier"); I(edg); I(dma)
elif ORD == "D": I("s_barrier"); I(dma); I("s_barrier"); I(edg)
I(f"""
s_and_b32 s{t0}, s{sW}, 1
s_lshl_b32 s{t0}, s{t0}, 7
buffer_load_ushort v160, v74, {sr(sC,4)}, s{t0} offen
buffer_load_ushort v162, v74, {sr(sC,4)}, s{t0} offen offset:64
""")
X = (0 if TAGS else 1) + (ICP == 1)
I("s_mov_b64 exec, 1")
if not TAGS:
    I("v_mov_b32 v26, 0")
    I(f"global_load_dword v26, v26, {sr(pWS,2)}")
if ICP == 1:
    I(f"""
    s_getpc_b64 s[94:95]
    s_lshr_b32 s{t0}, s2, 3
    s_mul_i32 s{t0}, s{t0}, {NW}
    s_add_u32 s{t0}, s{t0}, s{sW}
    s_and_b32 s{t0}, s{t0}, 127
    s_lshl_b32 s{t0}, s{t0}, 7
    v_mov_b32 v27, s{t0}
    global_load_dword v27, v27, s[94:95]
    """)
I("s_mov_b64 exec, -1")
assert CNT1 + NTH * 4 <= AREA
small_init(76)
srd(sWS, pWS, WS_SIZE)
I(f"""
s_sub_u32 s{sP}, s{pWS}, {MAGIC - PT}
s_subb_u32 s{sP+1}, s{pWS+1}, 0
s_and_b32 s{sP+1}, s{sP+1}, 0xffff
s_mov_b32 s{sP+2}, {MAGIC + N*256}
s_mov_b32 s{sP+3}, 0x00020000
""")
I(f"""
s_mul_i32 s{t0}, s{sB}, {BN}
s_sub_u32 s{t1}, {N}, s{t0}
s_min_u32 s{t1}, s{t1}, {BN}
s_lshl_b32 s{t2}, s{t0}, 7
s_add_u32 s{sOUT}, s{pOUT}, s{t2}
s_addc_u32 s{sOUT+1}, s{pOUT+1}, 0
s_and_b32 s{sOUT+1}, s{sOUT+1}, 0xffff
s_lshl_b32 s{sOUT+2}, s{t1}, 7
s_mov_b32 s{sOUT+3}, 0x00020000
s_mov_b32 s{sONE}, 1.0
s_mov_b32 s{sONE+1}, 1.0
s_mov_b32 s{sADV}, 16
s_mov_b32 s{sADV+1}, 16
s_mov_b32 s{sSC}, {f2u(-LOG2E)}
s_mov_b32 s{sSC+1}, {f2u(-LOG2E)}
s_mov_b32 s{sMode}, 0
s_lshl_b32 s{sReg}, s{sW}, 6
s_add_u32 s{sReg}, s{sReg}, {GT}
s_mov_b32 s{t4}, 42800
s_mov_b32 s{t5}, {(-BN) & 0xffffffff}
v_mov_b32 v{vt+6}, 1
v_mov_b32 v161, 0
v_mov_b32 v163, 0
v_mov_b32 v164, 0x3f80
v_mov_b32 v165, 0
""")
I(f"""
v_lshrrev_b32 v68, 5, v{vLane}
v_bfe_u32 v69, v{vLane}, 2, 2
v_lshl_add_u32 v70, v68, 5, v69
s_mov_b32 s{t0}, {W1RAW}
v_lshl_add_u32 v70, v70, 8, s{t0}
v_bfe_u32 v71, v{vLane}, 4, 1
v_lshl_add_u32 v70, v71, 5, v70
v_and_b32 v71, 3, v{vLane}
v_lshl_add_u32 v70, v71, 3, v70
s_and_b32 s{t0}, s{sW}, 1
s_lshl_b32 s{t0}, s{t0}, 1
v_xor_b32 v71, s{t0}, v69
v_lshl_add_u32 v166, v71, 6, v70
v_xor_b32 v71, 1, v71
v_lshl_add_u32 v167, v71, 6, v70
s_lshr_b32 s{t0}, s{sW}, 1
s_lshl_b32 s{t0}, s{t0}, 5
v_and_b32 v78, 31, v{vLane}
v_add_u32 v78, s{t0}, v78
v_bfe_u32 v71, v{vLane}, 1, 3
v_lshlrev_b32 v72, 2, v68
v_xor_b32 v71, v71, v72
v_lshlrev_b32 v71, 4, v71
v_lshl_add_u32 v79, v78, 7, v71
v_add_u32 v79, {XRAW}, v79
s_waitcnt vmcnt({8+X+PAIR})
""")
stamp()
def bucket_rank(d, a, r):
    I(f"v_mul_u32_u24 v{a}, s{t4}, v{d}")
    I(f"v_lshrrev_b32 v{a}, 22, v{a}")
    I(f"v_mad_i32_i24 v{d}, v{a}, s{t5}, v{d}")
    I(f"v_lshlrev_b32 v{a}, 2, v{a}")
    I(f"ds_add_rtn_u32 v{r}, v{a}, v{vt+6} offset:{CNT1}")
for i in range(4): bucket_rank(48+i, 68+i, 73+i)
I(f"s_cmp_lg_u32 s{sW}, {EXTRAW}")
I("s_cbranch_scc1 L_noex1")
setexec(XM)
bucket_rank(64, 72, 77)
I("s_mov_b64 exec, -1")
L("L_noex1")
I(f"""
s_waitcnt vmcnt({X + (2 if ORD == 'C' else 5 + PAIR)}) lgkmcnt(0)
s_barrier
""")
stamp()
I(f"""
s_cmp_lt_u32 s{sW}, 8
s_cbranch_scc1 L_ptask
s_cmp_lg_u32 s{sW}, {SCANW}
s_cbranch_scc1 L_noscan
ds_read_b128 v[80:83], v{vt+5} offset:{CNT1}
s_waitcnt lgkmcnt(0)
v_add_u32 v84, v80, v81
v_add_u32 v85, v84, v82
v_add_u32 v86, v85, v83
v_mov_b32 v87, v86
""")
dpp_scan(87)
I(f"""
v_sub_u32 v88, v87, v86
v_add_u32 v89, v88, v80
v_add_u32 v90, v88, v84
v_add_u32 v91, v88, v85
v_mov_b32 v96, {RST}
v_mad_u32_u24 v92, v88, 12, v96
v_mad_u32_u24 v93, v89, 12, v96
v_mad_u32_u24 v94, v90, 12, v96
v_mad_u32_u24 v95, v91, 12, v96
ds_write_b128 v{vt+5}, v[92:95] offset:{CNT1}
v_lshl_or_b32 v16, v80, 12, v88
v_lshl_or_b32 v18, v81, 12, v89
v_lshl_or_b32 v20, v82, 12, v90
v_lshl_or_b32 v22, v83, 12, v91
s_branch L_p_done
L_noscan:
""")
if DEBUG and int(opts.get("arr", 0)):
    I("s_waitcnt vmcnt(0)")
    I("s_memrealtime s[100:101]")
    I("s_waitcnt lgkmcnt(0)")
    I(f"v_writelane_b32 v{vST}, s100, 20")
if int(opts.get("prew", 0)):
    I(f"""
    s_cmp_lg_u32 s{sW}, 9
    s_cbranch_scc1 L_nopw
    s_lshl_b32 s{t0}, s2, 11
    s_add_u32 s{t0}, s{t0}, {GRAN}
    v_mov_b32 v16, 0
    v_mov_b32 v17, 0
    v_mov_b32 v18, 0
    v_mov_b32 v19, 0
    buffer_store_dwordx4 v[16:19], v{vt+5}, {sr(sWS,4)}, s{t0} offen sc1
    buffer_store_dwordx4 v[16:19], v{vt+5}, {sr(sWS,4)}, s{t0} offen offset:1024 sc1
    L_nopw:
    """)
I(f"""
s_cmp_eq_u32 s{sW}, 11
s_cbranch_scc1 L_w2ld
s_cmp_lg_u32 s{sW}, 10
s_cbranch_scc1 L_p_done
""")
for i in range(4):
    I(f"v_lshlrev_b32 v{80+2*i}, 16, v{12+i}")
    I(f"v_and_b32 v{81+2*i}, 0xffff0000, v{12+i}")
for i in range(4):
    I(f"v_pk_mul_f32 {P(80+2*i)}, {P(80+2*i)}, {sr(sSC,2)}")
for i in range(4):
    I(f"v_cvt_pk_bf16_f32 v{12+i}, v{80+2*i}, v{81+2*i}")
I(f"""
v_lshrrev_b32 v88, 4, v{vLane}
v_mul_u32_u24 v88, {QROW}, v88
v_and_b32 v89, 15, v{vLane}
v_lshl_add_u32 v88, v89, 4, v88
v_add_u32 v88, {QB + 98*QROW}, v88
ds_write2_b64 v88, v[12:13], v[14:15] offset0:0 offset1:1
v_mov_b32 v90, 0
v_mov_b32 v91, 0
""")
for g_ in range(4):
    setexec(lanemask(range(16*g_, 16*g_+8)))
    I(f"v_mov_b32 v{90 + (g_ >> 1)}, {0x3f800000 if g_ & 1 else 0x3f80}")
I(f"""
s_mov_b64 exec, -1
v_lshlrev_b32 v88, 3, v{vLane}
ds_write_b64 v88, v[90:91] offset:{LUT}
s_branch L_p_done
L_ptask:
v_xor_b32 v{vt+1}, 16, v79
v_xor_b32 v{vt+2}, 32, v79
v_xor_b32 v{vt+3}, 48, v79
""")
xa = [79, vt+1, vt+2, vt+3]
for ks in range(4):
    I(f"ds_read_b128 {vr(112+4*ks,4)}, v{xa[ks]}")
    for jl in range(2):
        for hf in range(2):
            I(f"ds_read_b64_tr_b16 {P(80+16*jl+4*ks+2*hf)}, v{166+jl} offset:{(8*ks+4*hf)*256}")
I(f"""
v_cmp_gt_u32 vcc, {BN}, v78
s_mov_b64 {sr(sE0,2)}, vcc
v_lshrrev_b32 v{vt+1}, 5, v{vLane}
s_and_b32 s{t1}, s{sW}, 1
s_lshl_b32 s{t1}, s{t1}, 3
v_add_u32 v{vt+1}, s{t1}, v{vt+1}
v_and_b32 v{vt+2}, 15, v78
v_xor_b32 v{vt+1}, v{vt+1}, v{vt+2}
v_lshlrev_b32 v{vt+1}, 4, v{vt+1}
v_lshl_add_u32 v{vt+1}, v78, 8, v{vt+1}
v_add_u32 v{vt+1}, {PST}, v{vt+1}
v_xor_b32 v{vt+2}, 32, v{vt+1}
v_xor_b32 v{vt+3}, 64, v{vt+1}
v_xor_b32 v{vt+4}, 0x60, v{vt+1}
""")
for ks in range(4):
    I(f"s_waitcnt lgkmcnt({15 - 5*ks})")
    I(mf16(128, 80+4*ks, 112+4*ks, "0" if ks == 0 else vr(128,16)))
    I(mf16(144, 96+4*ks, 112+4*ks, "0" if ks == 0 else vr(144,16)))
I("s_mov_b32 s%d, 0x07060302" % t0)
I("s_nop 10")
for i in range(16):
    I(f"v_pk_mul_f32 {P(128+2*i)}, {P(128+2*i)}, {sr(sSC,2)}")
I(f"s_mov_b64 exec, {sr(sE0,2)}")
for rg in range(4):
    for i in range(4*rg, 4*rg+4):
        I(f"v_add_u32 v{128+i}, 0x4000, v{128+i}")
    for i in range(4*rg, 4*rg+4):
        I(f"v_perm_b32 v{128+i}, v{144+i}, v{128+i}, s{t0}")
    I(f"ds_write_b128 v{vt+1+rg}, {vr(128+4*rg,4)}")
I(f"""
s_mov_b64 exec, -1
L_p_done:
v_lshrrev_b32 v80, 4, v0
v_xor_b32 v81, v80, v0
v_and_b32 v81, 15, v81
v_lshlrev_b32 v81, 4, v81
v_lshl_add_u32 v81, v80, 8, v81
v_add_u32 v81, {PST}, v81
s_mul_i32 s{t0}, s{sB}, {BN*256}
s_add_u32 s{t0}, s{t0}, {PT}
s_add_u32 s{sA}, s{pWS}, s{t0}
s_addc_u32 s{sA+1}, s{pWS+1}, 0
s_and_b32 s{sA+1}, s{sA+1}, 0xffff
s_mov_b32 s{sA+2}, {BN*256}
s_mov_b32 s{sA+3}, 0x00020000
s_mul_i32 s{t0}, s2, {RSTRIDE}
s_add_u32 s{t0}, s{t0}, {REC}
s_add_u32 s{sBq}, s{pWS}, s{t0}
s_addc_u32 s{sBq+1}, s{pWS+1}, 0
s_and_b32 s{sBq+1}, s{sBq+1}, 0xffff
s_mov_b32 s{sBq+2}, {(CH*12+15)//16*16}
s_mov_b32 s{sBq+3}, 0x00020000
s_mov_b32 s{t1}, {NTH*16}
s_mov_b32 s{t2}, {2*NTH*16}
s_mov_b32 s{t3}, {3*NTH*16}
s_waitcnt lgkmcnt(0)
s_barrier
""")
stamp()
I(f"""
ds_read_b128 v[84:87], v81
ds_read_b128 v[88:91], v81 offset:{48*256}
ds_read_b128 v[92:95], v81 offset:{96*256}
""")
for i in range(5):
    I(f"ds_read_b32 v{68+i}, v{68+i} offset:{CNT1}")
I(f"""
s_waitcnt lgkmcnt(7)
buffer_store_dwordx4 v[84:87], v{vt}, {sr(sA,4)}, 0 offen {PST_}
s_waitcnt lgkmcnt(6)
buffer_store_dwordx4 v[88:91], v{vt}, {sr(sA,4)}, s{t1} offen {PST_}
s_waitcnt lgkmcnt(5)
buffer_store_dwordx4 v[92:95], v{vt}, {sr(sA,4)}, s{t2} offen {PST_}
s_waitcnt vmcnt({7+X})
""")
I(f"s_movk_i32 s{t4}, 0x804")
I(f"s_mov_b32 s{t5}, {KMASK}")
for i in range(4):
    I(f"v_mul_u32_u24 v{52+i}, s{t4}, v{52+i}") if False else None
    I(f"v_lshlrev_b32 v{80+i}, 11, v{52+i}")
    I(f"v_lshlrev_b32 v{48+i}, 12, v{48+i}")
    I(f"v_lshlrev_b32_sdwa v{80+i}, 2, v{52+i} dst_sel:WORD_0 dst_unused:UNUSED_PRESERVE src0_sel:DWORD src1_sel:BYTE_0")
for i in range(4):
    I(f"v_and_or_b32 v{48+i}, v{80+i}, s{t5}, v{48+i}")
I("s_waitcnt lgkmcnt(0)")
for i in range(5):
    I(f"v_mad_u32_u24 v{68+i}, v{73+i}, 12, v{68+i}")
for i in range(4):
    I(f"ds_write_b32 v{68+i}, v{48+i} offset:8")
I(f"s_cmp_lg_u32 s{sW}, {EXTRAW}")
I("s_cbranch_scc1 L_noex2")
setexec(XM)
I(f"""
v_lshlrev_b32 v80, 11, v65
v_lshlrev_b32 v64, 12, v64
v_lshlrev_b32_sdwa v80, 2, v65 dst_sel:WORD_0 dst_unused:UNUSED_PRESERVE src0_sel:DWORD src1_sel:BYTE_0
s_nop 0
v_and_or_b32 v64, v80, s{t5}, v64
ds_write2_b32 v72, v66, v67 offset0:0 offset1:1
ds_write_b32 v72, v64 offset:8
s_mov_b64 exec, -1
L_noex2:
s_waitcnt vmcnt({6+X})
ds_write2_b32 v68, v56, v57 offset0:0 offset1:1
ds_write2_b32 v69, v58, v59 offset0:0 offset1:1
s_waitcnt vmcnt({5+X})
""")
stamp()
I(f"""
ds_write2_b32 v70, v60, v61 offset0:0 offset1:1
ds_write2_b32 v71, v62, v63 offset0:0 offset1:1
s_waitcnt lgkmcnt(0)
s_barrier
""")
stamp()
for i in range(4):
    I(f"ds_read_b128 {vr(48+4*i,4)}, v{vt} offset:{RST + i*NTH*16}")
for i in range(3):
    I(f"s_waitcnt lgkmcnt({3-i})")
    I(f"buffer_store_dwordx4 {vr(48+4*i,4)}, v{vt}, {sr(sBq,4)}, {['0', f's{t1}', f's{t2}'][i]} offen {RST_}")
I(f"""
s_waitcnt lgkmcnt(0)
s_cmp_lg_u32 s{sW}, 0
s_cbranch_scc1 L_no4
buffer_store_dwordx4 v[60:63], v{vt}, {sr(sBq,4)}, s{t3} offen {RST_}
L_no4:
{"s_barrier" if AI4 else ""}
s_cmp_ge_u32 s{sW}, 8
s_cbranch_scc1 L_nop2
""")
for ks in range(4):
    for jl in range(2):
        for hf in range(2):
            I(f"ds_read_b64_tr_b16 {P(80+16*jl+4*ks+2*hf)}, v{166+jl} offset:{16384 + (8*ks+4*hf)*256}")
I(f"s_waitcnt vmcnt({6+X})")
I(mf8(128, 160, 164, "0"))
I(mf8(144, 162, 164, "0"))
I(f"""
v_lshrrev_b32 v{vt+1}, 5, v{vLane}
s_and_b32 s{t0}, s{sW}, 1
s_lshl_b32 s{t0}, s{t0}, 7
s_add_u32 s{t0}, s{t0}, {QB}
v_lshl_add_u32 v{vt+1}, v{vt+1}, 3, s{t0}
v_mul_u32_u24 v{vt+2}, {QROW}, v78
v_add_u32 v{vt+1}, v{vt+1}, v{vt+2}
""")
for ks in range(4):
    I(f"s_waitcnt lgkmcnt({12 - 4*ks})")
    I(mf16(128, 80+4*ks, 112+4*ks, vr(128,16)))
    I(mf16(144, 96+4*ks, 112+4*ks, vr(144,16)))
I("s_nop 11")
for i in range(16):
    I(f"v_pk_mul_f32 {P(128+2*i)}, {P(128+2*i)}, {sr(sSC,2)}")
for i in range(16):
    I(f"v_cvt_pk_bf16_f32 v{128+i}, v{128+2*i}, v{129+2*i}")
I(f"s_mov_b64 exec, {sr(sE0,2)}")
for jl in range(2):
    for rg in range(4):
        I(f"ds_write_b64 v{vt+1}, {P(128+8*jl+2*rg)} offset:{64*jl + 16*rg}")
I(f"""
s_mov_b64 exec, -1
s_branch L_p2_done
L_nop2:
s_cmp_lg_u32 s{sW}, 11
s_cbranch_scc1 L_p2_done
s_cmp_gt_u32 s2, 16
s_cbranch_scc1 L_p2_done
s_lshl_b32 s{t0}, s2, 10
s_add_u32 s{t0}, s{t0}, {W2I}
s_waitcnt vmcnt(6)
s_cmp_lt_u32 s2, 16
s_cbranch_scc1 L_w2st
v_lshlrev_b32 v{vW2S}, 16, v{vW2S}
v_mul_f32 v{vW2S}, s{sSC}, v{vW2S}
v_lshlrev_b32 v{vW2S+1}, 2, v{vLane}
buffer_store_dword v{vW2S}, v{vW2S+1}, {sr(sWS,4)}, s{t0} offen sc1
s_branch L_p2_done
L_w2st:
v_lshl_or_b32 v{vW2S}, v{vW2S+1}, 16, v{vW2S}
v_lshl_or_b32 v{vW2S+1}, v{vW2S+3}, 16, v{vW2S+2}
v_lshl_or_b32 v{vW2S+2}, v{vW2S+5}, 16, v{vW2S+4}
v_lshl_or_b32 v{vW2S+3}, v{vW2S+7}, 16, v{vW2S+6}
buffer_store_dwordx4 {vr(vW2S,4)}, v{vt+5}, {sr(sWS,4)}, s{t0} offen sc1
L_p2_done:
""")
if AI4 == 1: area_init4(64, "L_ai4")
if AI4 == 2: area_init(64)
I(f"""
v_and_b32 v72, 31, v{vLane}
v_lshlrev_b32 v72, 2, v72
v_add_u32 v{vSC}, {SB}, v72
v_add_u32 v{vSC+1}, {SB}, v72
v_cvt_f32_u32 v72, v72
v_mov_b32 v{vBK}, 0x78005c00
v_cvt_f16_f32 v{vBK+1}, v72
v_and_b32 v{vBK+1}, 0xffff, v{vBK+1}
s_mov_b32 exec_lo, 0
v_mov_b32 v{vBK}, 0
v_mov_b32 v{vBK+1}, 0
s_mov_b64 exec, -1
v_mov_b32 v{vKA+1}, 0x3c00
v_bfe_u32 v73, v{vLane}, 4, 1
v_lshlrev_b32 v73, 5, v73
v_and_b32 v74, 3, v{vLane}
v_lshl_add_u32 v73, v74, 3, v73
v_add_u32 v{vQC}, {QB}, v73
v_bfe_u32 v75, v{vLane}, 2, 2
v_add_u32 v76, 98, v75
v_mul_u32_u24 v76, {QROW}, v76
v_add_u32 v{vQ}, v76, v{vQC}
""")
I(f"""
v_bfe_u32 v72, v{vLane}, 3, 2
v_bfe_u32 v73, v{vLane}, 1, 1
v_lshl_add_u32 v72, v72, 1, v73
v_lshlrev_b32 v{vAC}, 3, v72
v_lshlrev_b32 v{vAC+1}, 2, v72
v_bfe_u32 v73, v{vLane}, 2, 1
v_and_b32 v74, 1, v{vLane}
v_lshl_add_u32 v73, v73, 1, v74
v_lshlrev_b32 v73, 7, v73
s_mov_b32 exec_lo, 0
v_add_u32 v{vAC}, v{vAC}, v73
v_add_u32 v{vAC}, {LUT}, v{vAC}
s_mov_b64 exec, -1
""")
def ptr_mult(m):
    I(f"""
    v_lshrrev_b32 v{m}, 5, v{vLane}
    v_bfe_u32 v{m+2}, v{vLane}, 2, 1
    v_and_b32 v{m+3}, 1, v{vLane}
    v_lshlrev_b32 v{m}, 1, v{m}
    v_lshl_add_u32 v{m+2}, v{m+2}, 1, v{m+3}
    v_add_u32 v{m+1}, 1, v{m}
    v_bfe_u32 v{m+3}, v{vLane}, 2, 2
    """)
def ptr_consts(base):
    ptr_mult(72)
    I(f"""
    v_lshl_add_u32 v{vPA}, v72, 4, {base}
    v_lshl_add_u32 v{vPG}, v74, 4, {base}
    v_lshl_add_u32 v{vPR}, v75, 4, {base}
    v_add_u32 v{vPA}, 12, v{vPA}
    v_lshl_add_u32 v{vPG}, v72, 1, v{vPG}
    v_add_u32 v{vPR}, 14, v{vPR}
    v_add_u32 v{vPB}, 16, v{vPA}
    """)
ptr_consts(f"s{sReg}")
I(f"""
{"" if TAGS else "s_waitcnt vmcnt(6)"}
{"" if TAGS else f"v_readfirstlane_b32 s{sTag}, v26"}
s_add_u32 s{sTag}, s{sTag}, 1
s_mul_i32 s{sTag8}, s{sTag}, 0x9e3779b1
s_and_b32 s{sTag8}, s{sTag8}, 0xff000000
v_or_b32 v16, s{sTag8}, v16
v_or_b32 v18, s{sTag8}, v18
v_or_b32 v20, s{sTag8}, v20
v_or_b32 v22, s{sTag8}, v22
v_mov_b32 v17, s{sTag}
v_mov_b32 v19, s{sTag}
v_mov_b32 v21, s{sTag}
v_mov_b32 v23, s{sTag}
s_waitcnt vmcnt(0) lgkmcnt(0)
s_barrier
""")
stamp()
I(f"""
s_cmp_lg_u32 s{sW}, {SCANW}
s_cbranch_scc1 L_nopub
v_lshlrev_b32 v72, 4, v{vLane}
s_lshl_b32 s{t0}, s2, 11
s_add_u32 s{t0}, s{t0}, {GRAN}
buffer_store_dwordx4 v[16:19], v72, {sr(sWS,4)}, s{t0} offen {PUB_}
buffer_store_dwordx4 v[20:23], v72, {sr(sWS,4)}, s{t0} offen offset:1024 {PUB_}
L_nopub:
""")
PF1 = int(opts.get("pf1", 0)); PF2 = int(opts.get("pf2", 0))
def prefetch(n, first, dst):
    I(f"""
    s_lshr_b32 s{t0}, s2, 3
    s_mul_i32 s{t0}, s{t0}, {NW}
    s_add_u32 s{t0}, s{t0}, s{sW}
    s_mul_i32 s{t0}, s{t0}, {n*128}
    s_add_u32 s{t0}, s{t0}, {MAGIC + first*384*128}
    s_and_b32 s{t1}, s2, 4
    s_xor_b32 s{t1}, s{t1}, 4
    s_mul_i32 s{t1}, s{t1}, {32*BN*256 if int(opts.get("pfx", 0)) else 0}
    s_add_u32 s{t0}, s{t0}, s{t1}
    v_lshlrev_b32 v{dst}, 7, v{vLane}
    """)
    if n < 64: setexec((1 << n) - 1)
    I(f"buffer_load_dword v{dst}, v{dst}, {sr(sP,4)}, s{t0} offen sc1")
    I("s_mov_b64 exec, -1")
if PF1: prefetch(PF1, 0, 42)
PFO = int(opts.get("pfo", 0))
if PFO:
    I(f"""
    s_mul_i32 s{t0}, s{sW}, {PFO*128}
    v_lshlrev_b32 v42, 7, v{vLane}
    """)
    setexec((1 << PFO) - 1)
    I(f"buffer_load_dword v42, v42, {sr(sA,4)}, s{t0} offen sc1")
    I("s_mov_b64 exec, -1")
if not AI4: area_init(64)
SZ = int(opts.get('sz', 0))
if SZ == 1: s_zero(76)
vDs = 124
vRA = 130
vCn = 133
vPo = 136
vL7 = 138; vRb = 139; vAr = 140
sPo = [sG, sT, sRem]; sRo = sGam
def desc_consts():
    I(f"""
    v_lshrrev_b32 v141, 3, v{vLane}
    v_lshlrev_b32 v{vPo}, 11, v141
    v_and_b32 v{vL7}, 7, v{vLane}
    v_mul_u32_u24 v{vRb}, 12, v{vL7}
    s_mov_b32 s{t0}, {RSTRIDE}
    v_mad_u32_u24 v{vRb}, v141, s{t0}, v{vRb}
    s_lshl_b32 s{sPo[0]}, s{sW}, 14
    s_lshr_b32 s{t1}, s{sB}, 2
    s_lshl_b32 s{t1}, s{t1}, 4
    s_add_u32 s{sPo[0]}, s{sPo[0]}, s{t1}
    s_and_b32 s{t1}, s{sB}, 1
    s_lshl_b32 s{t1}, s{t1}, 3
    s_add_u32 s{sPo[0]}, s{sPo[0]}, s{t1}
    s_and_b32 s{t1}, s{sB}, 2
    s_lshl_b32 s{t1}, s{t1}, 9
    s_add_u32 s{sPo[0]}, s{sPo[0]}, s{t1}
    s_add_u32 s{sPo[0]}, s{sPo[0]}, {GRAN}
    s_add_u32 s{sPo[1]}, s{sPo[0]}, {12*16384}
    s_add_u32 s{sPo[2]}, s{sPo[0]}, {24*16384}
    s_mul_i32 s{sRo}, s{sW}, {8*RSTRIDE}
    s_add_u32 s{sRo}, s{sRo}, {REC}
    """)
def poll_load(jj): return f"buffer_load_dwordx2 {P(vDs+2*jj)}, v{vPo}, {sr(sWS,4)}, s{sPo[jj]} offen " + opts.get("pld", "sc1").replace("+", " ")
def decode(jj):
    I(f"v_and_b32 v{vRA+jj}, 0xfff, v{vDs+2*jj}")
    I(f"v_mad_u32_u24 v{vRA+jj}, v{vRA+jj}, 12, v{vRb}")
    if jj: I(f"v_add_u32 v{vRA+jj}, {jj*96*RSTRIDE}, v{vRA+jj}")
    I(f"v_bfe_u32 v{vCn+jj}, v{vDs+2*jj}, 12, 12")
    I(f"v_sub_u32 v{vCn+jj}, v{vCn+jj}, v{vL7}")
lab = [0]
NR = 5
order = [(jj, rd) for jj in range(3) for rd in range(NR)]
slotreg = {s: 48 + 4*n_ for n_, s in enumerate(order)}
slotmask = {s: sM + 2*n_ for n_, s in enumerate(order)}
vTA = {s: 108 + n_ for n_, s in enumerate(order)}
def slots(body):
    for jj in range(3):
        lab[0] += 1; grp = lab[0]
        for rd in range(NR):
            s = (jj, rd)
            I(f"s_mov_b64 exec, {sr(slotmask[s],2)}")
            if rd >= 2 or (jj == 2 and rd == 0): I(f"s_cbranch_execz L_sg{grp}")
            body(s)
        L(f"L_sg{grp}")
    I("s_mov_b64 exec, -1")
def tagcheck(jj, dst):
    I(f"""
    v_xor_b32 v141, s{sTag8}, v{vDs+2*jj}
    v_xor_b32 v142, s{sTag}, v{vDs+2*jj+1}
    v_lshrrev_b32 v141, 24, v141
    v_or_b32 v141, v141, v142
    v_cmp_ne_u32 {dst}, 0, v141
    """)
desc_consts()
I(f"""
s_mov_b64 {sr(sPM,2)}, -1
s_mov_b64 {sr(sPM+2,2)}, -1
s_cmp_lt_u32 s{sW}, 8
s_cselect_b64 {sr(sPM+4,2)}, -1, 0
v_mov_b32 v{vDs+4}, s{sTag8}
v_mov_b32 v{vDs+5}, s{sTag}
s_mov_b32 s{sK}, 0
v_mov_b32 v{vAr}, {AREA}
s_movk_i32 s{t4}, {NSZ//4}
s_mov_b32 s{t5}, {KMASK}
v_mov_b32 v137, {KCON}
v_mov_b32 v143, 0
{"" if AI4 else "s_waitcnt lgkmcnt(0)"}
{"" if AI4 else "s_barrier"}
""")
stamp()
if SZ == 2:
    I(poll_load(0)); I(poll_load(1))
    I(f"s_mov_b64 exec, {sr(sPM+4,2)}")
    I("s_cbranch_execz L_pq2")
    I(poll_load(2))
    L("L_pq2")
    I("s_mov_b64 exec, -1")
    s_zero(144)
    I("s_branch L_poll2")
I(f"""
s_branch L_poll1
L_poll:
""")
if SLEEP: I(f"s_sleep {SLEEP}")
L("L_poll1")
for jj in range(3):
    I(f"s_mov_b64 exec, {sr(sPM+2*jj,2)}")
    I(f"s_cbranch_execz L_pk{jj}")
    I(poll_load(jj))
    L(f"L_pk{jj}")
I(f"""
s_mov_b64 exec, -1
s_add_u32 s{sK}, s{sK}, 1
s_cmp_gt_u32 s{sK}, 0x40000
s_cbranch_scc1 L_exit
L_poll2:
s_waitcnt vmcnt(0)
""")
for jj in range(3): tagcheck(jj, sr(sPM+2*jj,2))
I(f"""
s_or_b64 {sr(sE0,2)}, {sr(sPM,2)}, {sr(sPM+2,2)}
s_or_b64 {sr(sE0,2)}, {sr(sE0,2)}, {sr(sPM+4,2)}
s_cbranch_scc1 L_poll
""")
if DEBUG:
    I(f"v_writelane_b32 v{vST}, s{sK}, 22")
stamp()
for jj in range(3): decode(jj)
for s_ in order:
    I(f"v_cmp_lt_i32 {sr(slotmask[s_],2)}, {8*s_[1]}, v{vCn+s_[0]}")
slots(lambda s_: I(f"buffer_load_dwordx3 {vr(slotreg[s_],3)}, v{vRA+s_[0]}, {sr(sWS,4)}, s{sRo} offen offset:{96*s_[1]} sc1"))
I(f"""
v_max3_i32 v141, v{vCn}, v{vCn+1}, v{vCn+2}
v_cmp_lt_i32 vcc, {8*NR}, v141
s_cbranch_vccz L_nobig
v_mov_b32 v141, 0
ds_write_b32 v141, v{vt+6} offset:{FLAG}
L_nobig:
""")
if SZ == 0: s_zero(144)
vNB = 32; sEN = 28; sKb = 30
I(f"""
v_mul_u32_u24 v{vNB}, {2*NSZ}, v{vLane}
v_add_u32 v{vNB}, {AREA}, v{vNB}
v_add_u32 v{vNB+1}, {NSZ}, v{vNB}
s_mov_b32 s{t0}, {2*(SROW + (QROW << 16))}
v_mul_lo_u32 v{vNB+2}, v{vLane}, s{t0}
v_add_u32 v{vNB+3}, {SROW + (QROW << 16)}, v{vNB+2}
s_cmp_ge_u32 s{sW}, 6
s_cselect_b64 {sr(sEN,2)}, -1, 0
s_cselect_b32 s{t0}, 6, 0
s_sub_u32 s{sKb}, s{sW}, s{t0}
v_cndmask_b32 v145, v{vNB}, v{vNB+1}, {sr(sEN,2)}
v_cndmask_b32 v147, v{vNB+2}, v{vNB+3}, {sr(sEN,2)}
s_lshl_b32 s{t0}, s{sKb}, 5
v_add_u32 v144, s{t0}, v145
s_add_u32 s{t0}, s{t0}, {EOFF}
v_add_u32 v145, s{t0}, v144
v_lshlrev_b32 v152, 3, v{vLane}
v_mov_b32 v153, 0
v_mov_b32 v{vMX}, 0
""")
ptr_mult(148)
I("s_waitcnt vmcnt(0)")
stamp()
if PF2: prefetch(PF2, PF1, 33)
def rank_body(s):
    r = slotreg[s]
    I(f"v_bfe_u32 v{vTA[s]}, v{r+2}, 10, 9")
    I(f"v_and_or_b32 v{r+2}, v{r+2}, s{t5}, v137")
    I(f"ds_add_rtn_u32 v{r+3}, v{vTA[s]}, v{vt+6} offset:{CNT}")
    I(f"v_mad_u32_u24 v{vTA[s]}, v{vTA[s]}, s{t4}, v{vAr}")
slots(rank_body)
I("s_waitcnt lgkmcnt(0)")
def scat_body(s):
    r = slotreg[s]
    lab[0] += 1; fx = lab[0]
    fixups.append((fx, s))
    I(f"v_cmp_le_u32 vcc, {CAP}, v{r+3}")
    I(f"v_lshl_add_u32 v141, v{r+3}, 2, v{vTA[s]}")
    I(f"v_lshl_add_u32 v{vTA[s]}, v{r+3}, 3, v{vTA[s]}")
    I(f"s_cbranch_vccnz L_fx{fx}")
    L(f"L_fr{fx}")
    I(f"ds_write_b32 v141, v{r+2}")
    I(f"ds_write_b64 v{vTA[s]}, {P(r)} offset:{EOFF}")
fixups = []
PF5 = int(opts.get("pf5", 0))
if PF5: prefetch(PF5, PF1, 41)
slots(scat_body)
PF4 = int(opts.get("pf4", 16))
if PF4: prefetch(PF4, PF1, 41)
I(f"""
s_waitcnt lgkmcnt(0)
s_barrier
""")
stamp()
PF3 = int(opts.get('pf3', 0))
if PF3: prefetch(PF3, 0, 43)
def chain(T, vD=vD, vN=vN, n=8):
    l = [f"v_pk_add_f32 {P(vD)}, {P(vE)}, {sr(sONE,2)}",
         f"v_pk_fma_f32 {P(vN)}, {P(T)}, {P(vE+2)}, {P(T)}",
         f"v_pk_fma_f32 {P(vN)}, {P(T+2)}, {P(vD)}, {P(vN)}",
         f"v_pk_fma_f32 {P(vD)}, {P(vD)}, {P(vE+2)}, {P(vD)}"]
    for i in range(2, n):
        l += [f"v_pk_fma_f32 {P(vN)}, {P(vN)}, {P(vE+2*i)}, {P(vN)}",
              f"v_pk_fma_f32 {P(vN)}, {P(T+2*i)}, {P(vD)}, {P(vN)}",
              f"v_pk_fma_f32 {P(vD)}, {P(vD)}, {P(vE+2*i)}, {P(vD)}"]
    return l
assert EOFF - 7*32 == 0
def gload(u): return [f"buffer_load_dword v{vLb[u]+i}, v{vIX+i}, {sr(sP,4)}, 0 offen offset:{128*u} sc1" for i in range(16)]
def shifts(u): return [f"v_lshlrev_b64 {P(vTL+2*i)}, 16, {P(vLb[u]+2*i)}" for i in range(8)]
SAUPD = [f"v_lshl_add_u64 {P(vSA)}, {P(vGS)}, 0, {P(vSC)}"]
def gsrd(off): return [f"ds_read_u16 v{vGS}, v{vPA} offset:{off}", f"ds_read_u16 v{vGS+1}, v{vPB} offset:{off}"]
PADV = [f"v_lshl_add_u64 {P(vPA)}, {P(vPA)}, 0, {sr(sADV,2)}", f"v_lshl_add_u64 {P(vPG)}, {P(vPG)}, 0, {sr(sADV,2)}"]
QUPD = f"v_add_u32_dpp v{vQ}, v{vGQ}, v{vQC} quad_perm:[0,1,2,3] row_mask:0xc bank_mask:0xf"
AUPD = f"v_lshl_add_u64 {P(vAG)}, {P(vAG)}, 0, {P(vAC)}"
IXM = mf8(vIX, vKA, vBK, "0").replace("bf16", "f16")

vDj = [144, 148, 152, 156]; vNj = [146, 150, 154, 158]; vSj = [160, 162, 164, 166]
def pmul(d, a, b): return f"v_pk_mul_f32 {P(d)}, {P(a)}, {P(b)}"
def inv(m): return [f"v_rcp_f32 v{vE}, v{m}", f"v_rcp_f32 v{vE+1}, v{m+1}", f"v_max3_f32 v{vMX}, v{m}, v{m+1}, v{vMX}"]
NSH = 4 * NW
vSU = 120
DS = ["row_shr:1 row_mask:0xf bank_mask:0xf bound_ctrl:0", "row_shr:2 row_mask:0xf bank_mask:0xf bound_ctrl:0",
      "row_shr:4 row_mask:0xf bank_mask:0xf bound_ctrl:0", "row_shr:8 row_mask:0xf bank_mask:0xf bound_ctrl:0",
      "row_bcast:15 row_mask:0xa bank_mask:0xf", "row_bcast:31 row_mask:0xc bank_mask:0xf"]
def dstep(i): return f"v_add_u32_dpp v56, v56, v56 {DS[i]}\nv_max_u32_dpp v55, v55, v55 {DS[i]}"
I(f"""
ds_read_b64 v[50:51], v152 offset:{CNT}
ds_read_b32 v49, v153 offset:{FLAG}
s_mov_b32 s{t2}, 0x80000004
s_lshl_b32 s{t3}, s{sW}, 2
s_waitcnt lgkmcnt(0)
v_add_u32 v80, -1, v50
v_add_u32 v81, -1, v51
v_and_b32 v80, s{t2}, v80
v_and_b32 v81, s{t2}, v81
v_cmp_gt_u32 {sr(sE0,2)}, {CAP}, v50
v_cmp_gt_u32 {sr(sE1,2)}, {CAP}, v51
v_cmp_eq_u32 vcc, 0, v80
v_cmp_eq_u32 s[32:33], 0, v81
v_add_u32 v52, 7, v50
v_add_u32 v53, 7, v51
s_and_b64 {sr(sE0,2)}, {sr(sE0,2)}, vcc
s_and_b64 {sr(sE1,2)}, {sr(sE1,2)}, s[32:33]
s_bcnt1_i32_b64 s{t0}, {sr(sE0,2)}
v_mbcnt_lo_u32_b32 v82, s{sE0}, 0
v_mov_b32 v83, s{t0}
v_mbcnt_hi_u32_b32 v82, s{sE0+1}, v82
v_mbcnt_lo_u32_b32 v83, s{sE1}, v83
v_mbcnt_hi_u32_b32 v83, s{sE1+1}, v83
v_subrev_u32 v84, s{t3}, v82
v_subrev_u32 v85, s{t3}, v83
v_cmp_gt_u32 s[32:33], 4, v84
v_cmp_gt_u32 s[34:35], 4, v85
v_cmp_gt_u32 s[36:37], {NSH}, v82
v_cmp_gt_u32 s[38:39], {NSH}, v83
""")
for e_ in range(2):
    m_ = (sE0, sE1)[e_]
    I(f"""
    s_and_b64 exec, {sr(m_,2)}, s[{32+2*e_}:{33+2*e_}]
    s_cbranch_execz L_shs{e_}
    v_and_b32 v86, 0x78, v{50+e_}
    v_and_b32 v90, 7, v{50+e_}
    v_lshl_add_u32 v88, v86, 2, v{vNB+e_}
    v_lshl_add_u32 v89, v86, 3, v{vNB+e_}
    v_lshlrev_b32 v90, 3, v90
    v_mov_b32 v91, v{vNB+2+e_}
    v_add_u32 v89, {EOFF}, v89
    v_sub_u32 v90, 64, v90
    v_lshlrev_b32 v87, 4, v{82+e_}
    ds_write_b128 v87, v[88:91] offset:{GT}
    L_shs{e_}:
    """)
I(f"""
s_mov_b64 exec, -1
ds_read2_b32 {P(vAG)}, v{vPG} offset0:1 offset1:0
ds_read_u16 v{vGQ}, v{vPR}
{gsrd(0)[0]}
{gsrd(0)[1]}
s_and_b64 {sr(sE0,2)}, {sr(sE0,2)}, s[36:37]
s_and_b64 {sr(sE1,2)}, {sr(sE1,2)}, s[38:39]
v_lshrrev_b32 v52, 3, v52
v_lshrrev_b32 v53, 3, v53
v_subb_co_u32 v52, vcc, v52, 0, {sr(sE0,2)}
v_subb_co_u32 v53, vcc, v53, 0, {sr(sE1,2)}
v_add_u32 v56, v52, v53
v_max_u32 v55, v52, v53
v_cmp_lt_u32 s[32:33], {CAP}, v50
v_cmp_lt_u32 s[34:35], {CAP}, v51
{dstep(0)}
v_readfirstlane_b32 s{sBad}, v49
{dstep(1)}
s_waitcnt lgkmcnt(3)
{AUPD}
ds_read_b32 v{vKA}, v{vAG+1}
ds_read_b64 {P(vA5)}, v{vAG}
{dstep(2)}
v_cndmask_b32 v58, v52, 0, {sr(sEN,2)}
{dstep(3)}
v_add_u32 v58, v58, v53
{dstep(4)}
v_cndmask_b32 v50, v50, v51, {sr(sEN,2)}
{dstep(5)}
v_cndmask_b32 v52, v52, v53, {sr(sEN,2)}
s_waitcnt lgkmcnt(1)
{IXM}
{QUPD}
{SAUPD[0]}
v_readlane_b32 s{sG}, v56, 63
v_readlane_b32 s{sGmax}, v55, 63
v_sub_u32 v56, v56, v58
ds_read_b64_tr_b16 {P(vB5[0])}, v{vQ}
ds_read_b64_tr_b16 {P(vB5[1])}, v{vQ} offset:64
ds_read_b64_tr_b16 {P(vD)}, v{vQ} offset:128
ds_read_b64_tr_b16 {P(vN)}, v{vQ} offset:192
s_bcnt1_i32_b64 s{t1}, s[32:33]
s_bcnt1_i32_b64 s{t2}, s[34:35]
s_add_u32 s{t1}, s{t1}, s{t2}
s_cmp_gt_u32 s{t1}, 1
s_cselect_b32 s{sBad}, 1, s{sBad}
""")
SL = int(opts.get("sl", 16))
shl = [f"buffer_load_dword v{vTH+i_}, v{vIX+i_}, {sr(sP,4)}, 0 offen sc1" for i_ in range(8)] + [f"buffer_load_dword v{vSU+i_}, v{vIX+i_}, {sr(sP,4)}, 0 offen offset:128 sc1" for i_ in range(8)]
for l in shl[:SL]: I(l)
I(f"""
s_cmp_gt_u32 s{sG}, {4*NW*(TMAX-1)}
s_cselect_b32 s{sBad}, 1, s{sBad}
s_cmp_gt_u32 s{sGmax}, {TMAX-1}
s_cselect_b32 s{sBad}, 1, s{sBad}
""")
if FORCE_SLOW == 1: I(f"s_mov_b32 s{sBad}, 1")
I(f"""
s_cmp_lg_u32 s{sBad}, 0
s_cbranch_scc1 L_slow
L_build:
s_lshl_b32 s{t0}, s{sKb}, 6
s_add_u32 s{t0}, s{t0}, 64
s_lshl_b32 s{t1}, s{sKb}, 4
v_cmp_lt_u32 vcc, s{sKb}, v52
v_mad_i32_i24 v146, v50, -8, s{t0}
v_lshl_add_u32 v57, v56, 4, s{t1}
v_max_i32 v146, 0, v146
s_and_b64 exec, exec, vcc
ds_write_b128 v57, v[144:147] offset:{GA}
s_mov_b64 exec, -1
s_add_u32 s{sKb}, s{sKb}, 6
s_cmp_lt_u32 s{sKb}, s{sGmax}
s_cbranch_scc1 L_build2
""")
for l in shl[SL:]: I(l)
I(f"""
s_add_u32 s{t0}, s{sG}, 3
s_lshr_b32 s{t0}, s{t0}, 2
s_mul_i32 s{sT}, s{t0}, 171
s_lshr_b32 s{sT}, s{sT}, 11
s_mul_i32 s{t1}, s{sT}, {NW}
s_sub_u32 s{sRem}, s{t0}, s{t1}
s_cmp_gt_u32 s{sGmax}, s{sT}
s_cselect_b32 s{sT}, s{sGmax}, s{sT}
s_cselect_b32 s{sRem}, 0, s{sRem}
s_cmp_lt_u32 s{sW}, s{sRem}
s_addc_u32 s{sTw}, s{sT}, 0
s_min_u32 s{t0}, s{sW}, s{sRem}
s_mul_i32 s{t1}, s{sT}, s{sW}
s_add_u32 s{t1}, s{t1}, s{t0}
s_lshl_b32 s{t1}, s{t1}, 2
s_min_u32 s{t1}, s{t1}, s{sG}
s_lshl_b32 s{t2}, s{sTw}, 4
s_sub_u32 s{t2}, s{t2}, 16
s_lshl_b32 s{sGam}, s{t1}, 4
s_add_u32 s{sGam}, s{sGam}, {GA}
s_sub_u32 s{sE0}, s{sGam}, s{sReg}
s_mov_b32 s{sE0+1}, s{sE0}
v_mad_i32_i24 v{vPA}, v148, s{t2}, v{vPA}
v_mad_i32_i24 v{vPB}, v149, s{t2}, v{vPB}
v_mad_i32_i24 v{vPG}, v150, s{t2}, v{vPG}
v_mad_i32_i24 v{vPR}, v151, s{t2}, v{vPR}
v_lshl_add_u64 {P(vPA)}, {P(vPA)}, 0, {sr(sE0,2)}
v_lshl_add_u64 {P(vPG)}, {P(vPG)}, 0, {sr(sE0,2)}
v_lshl_add_u32 v60, v{vLane}, 4, s{sGam}
v_mov_b32 v61, s{sGam}
s_sub_u32 s{t1}, s{sG}, s{t1}
s_cmp_lg_u32 s{t1}, 0
s_addc_u32 s{t1}, s{t1}, 0
s_min_u32 s{sTw}, s{sTw}, s{t1}
s_waitcnt lgkmcnt(0)
s_barrier
""")
stamp()

SOFT = int(opts.get("soft", 1)); CL = int(opts.get("cl", 1))
I(f"""
v_mov_b32 v{vt+7}, 0
v_mov_b32 v42, v60
v_add_u32 v43, -2, v61
""")
def chain1():
    I(f"""
    ds_read_b32 v{vSO}, v{vPG}
    ds_read_u16 v{vGS}, v42 offset:14
    ds_read_u16 v{vGS+1}, v43
    ds_read2_b32 {P(vAG)}, v{vPG} offset0:1 offset1:4
    ds_read_u16 v{vGQ}, v{vPR}
    s_add_u32 s{t0}, s{sW}, {ZROW}
    s_mul_i32 s{t0}, s{t0}, {SROW}
    v_cmp_gt_u32 {sr(sE0,2)}, s{sTw}, v{vLane}
    s_waitcnt lgkmcnt(4)
    v_add_u32 v{vSO}, v{vSO}, v{vAC+1}
    ds_read_b32 v{vKA}, v{vSO}
    s_waitcnt lgkmcnt(3)
    v_cmp_eq_u32 vcc, v{vGS}, v{vGS+1}
    v_mov_b32 v43, s{t0}
    s_and_b64 {sr(sE0,2)}, {sr(sE0,2)}, vcc
    s_waitcnt lgkmcnt(0)
    {IXM}
    {AUPD}
    {QUPD}
    s_mov_b64 exec, {sr(sE0,2)}
    ds_write_b16 v42, v43 offset:12
    s_mov_b64 exec, -1
    ds_read_b32 v{vKA}, v{vAG+1}
    {gsrd(0)[0]}
    {gsrd(0)[1]}
    s_nop 4
    """)
def short_half(u):
    src = vTH if u == 0 else vSU
    b0, b1_ = (vB5[0], vB5[1]) if u == 0 else (vD, vN)
    for i_ in range(4): I(f"v_lshlrev_b64 {P(vTL+2*i_)}, 16, {P(src+2*i_)}")
    I("s_nop 1")
    I(mf8(vTL, vA5, b0, vr(vTL,16)))
    I(mf8(vTH, vA5, b1_, vr(src,16)))
    I("s_nop 10")
    a, b_ = 2*u, 2*u + 1
    for j_, T in ((a, vTL), (b_, vTH)):
        for i_ in range(8): I(f"v_exp_f32 v{vE+i_}, v{T+i_}")
        for l in chain(T, vDj[j_], vNj[j_], 4): I(l)
    I(pmul(vSO, vDj[a], vDj[b_]))
    i3 = inv(vSO)
    for l in i3[0:2] + [pmul(vNj[a], vNj[a], vDj[b_]), pmul(vNj[b_], vNj[b_], vDj[a]), i3[2], pmul(vSj[a], vNj[a], vE), pmul(vSj[b_], vNj[b_], vE)]: I(l)
    I(f"ds_write2_b32 v{vSA}, v{vSj[a]}, v{vSj[b_]} offset0:{32*a} offset1:{32*b_}")
    I(f"ds_write2_b32 v{vSA+1}, v{vSj[a]+1}, v{vSj[b_]+1} offset0:{32*a} offset1:{32*b_}")
FP = [[int(c) for c in x] for x in opts.get("fp", "01,12,22").split(",")]
def fetch_point(pt):
    for u in range(2):
        m = sum(0xf << (4*c) for c in range(3) if FP[c][u] == pt)
        if m == 0: continue
        if m != 0xfff:
            I(f"s_movk_i32 s{t0}, {m}")
            I(f"s_bitcmp1_b32 s{t0}, s{sW}")
            I(f"s_cbranch_scc0 L_fp{pt}{u}")
        for l in gload(u): I(l)
        L(f"L_fp{pt}{u}")
late = sum(0xf << (4*c) for c in range(3) if min(FP[c]) >= 2) if CL else 0
if late:
    I(f"s_movk_i32 s{t0}, {late}")
    I(f"s_bitcmp1_b32 s{t0}, s{sW}")
    I("s_cbranch_scc1 L_c1")
chain1()
L("L_c1")
fetch_point(0)
W8 = int(opts.get("w8", 0))
def cwait(pts, extra, tag):
    for n0 in (0, 1, 2):
        m = sum(0xf << (4*c) for c in range(3) if sum(FP[c].count(p_) for p_ in pts) == n0)
        if m == 0: continue
        if m != 0xfff:
            I(f"s_movk_i32 s{t0}, {m}")
            I(f"s_bitcmp1_b32 s{t0}, s{sW}")
            I(f"s_cbranch_scc0 L_w{tag}{n0}")
        I(f"s_waitcnt vmcnt({16*n0 + extra})")
        L(f"L_w{tag}{n0}")
cwait((0,), 8 if W8 else 0, "a")
stamp()
short_half(0)
if W8: cwait((0,), 0, "b")
fetch_point(1)
short_half(1)
if SOFT:
    I(f"""
    s_mov_b64 exec, 1
    ds_add_u32 v{vt+7}, v{vt+6} offset:{PROG}
    s_mov_b64 exec, -1
    """)
if late:
    I(f"s_movk_i32 s{t0}, {late}")
    I(f"s_bitcmp1_b32 s{t0}, s{sW}")
    I("s_cbranch_scc0 L_c2")
    chain1()
    L("L_c2")
fetch_point(2)
I(f"""
ds_read_b64 {P(vA5)}, v{vAG}
ds_read_b64_tr_b16 {P(vB5[0])}, v{vQ}
ds_read_b64_tr_b16 {P(vB5[1])}, v{vQ} offset:64
s_waitcnt lgkmcnt(0)
{"" if SOFT else "s_barrier"}
s_cmp_eq_u32 s{sTw}, 0
s_cbranch_scc1 L_loop_done
""")
stamp()
fetch_point(3)
I(IXM)
I("s_waitcnt vmcnt(16)")
for l in shifts(0): I(l)
I("s_nop 1")
I(mf8(vTL, vA5, vB5[0], vr(vTL,16)))
I(f"s_mov_b32 s{sK}, s{sTw}")
if PRIO:
    I("s_setprio 3")
    I(f"s_mov_b32 s{t5}, {sum(1 << (x // 2) for x in PTH if x % 2 == 0)}")
    I(f"s_mov_b32 s{t4}, {sum(1 << ((x + 1) // 2) for x in PTH if x % 2 == 1)}")
for x in STG:
    if x == 0: continue
    m = t4 if x & 1 else t5
    I(f"""
    s_sub_u32 s{t0}, s{sTw}, {x // 2}
    s_lshl_b32 s{t0}, 1, s{t0}
    s_cmp_lt_u32 s{sW}, 4
    s_cselect_b32 s{t0}, s{t0}, 0
    s_or_b32 s{m}, s{m}, s{t0}
    """)
I("s_nop 15")

GS1, GS2, EXP, CHP = [int(x) for x in opts.get('gs', '6,11,8,4').split(',')]
body = []
def lds(text, tag=None): body.append(("lds", text, tag))
def need(tag): body.append(("need", tag))
def em(x):
    if isinstance(x, list): body.extend(x)
    else: body.append(x)
BATCH = int(opts.get("batch", 2)); LATE = int(opts.get("late", 0))
def rds(j):
    lds(f"ds_read_b32 v{vSj[j]}, v{vSA} offset:{128*j}")
    lds(f"ds_read_b32 v{vSj[j]+1}, v{vSA+1} offset:{128*j}", f"so{j}")
def pmul(d, a, b): return f"v_pk_mul_f32 {P(d)}, {P(a)}, {P(b)}"
def pfin(j, r): return f"v_pk_fma_f32 {P(vSj[j])}, {P(vNj[j])}, {P(r)}, {P(vSj[j])}"
def inv(m): return [f"v_rcp_f32 v{vE}, v{m}", f"v_rcp_f32 v{vE+1}, v{m+1}", f"v_max3_f32 v{vMX}, v{m}, v{m+1}, v{vMX}"]
def wr2(j):
    lds(f"ds_write2_b32 v{vSA}, v{vSj[j]}, v{vSj[j+1]} offset0:{32*j} offset1:{32*j+32}")
    lds(f"ds_write2_b32 v{vSA+1}, v{vSj[j]+1}, v{vSj[j+1]+1} offset0:{32*j} offset1:{32*j+32}")
FIN = opts.get("fin", "1,-,-,0").split(",")
vW2q = [vIX, vLb[0], vLb[1], vTL]
def w2ld(q): return [f"s_mov_b32 s{t0}, {W2I + 4096*q}"] + [f"buffer_load_dwordx4 {vr(vW2q[q]+4*i_,4)}, v40, {sr(sWS,4)}, s{t0} offen offset:{1024*i_} sc1" for i_ in range(4)]
W2A = [f"v_lshlrev_b32 v40, 4, v{vLane}", f"v_and_b32 v41, 0xf0, v40"]
B2LD = [f"s_mov_b32 s{t0}, {W2I + 16384}", f"buffer_load_dwordx4 v[2:5], v41, {sr(sWS,4)}, s{t0} offen sc1"]
def gen_body(final):
    body.clear()
    for j in range(4):
        T = vTH if j & 1 else vTL
        j2 = (j + 2) & 3
        ex = [f"v_exp_f32 v{vE+i}, v{T+i}" for i in range(16)]
        ch = chain(T, vDj[j], vNj[j])
        g = [] if final else gload(j >> 1)
        sfx = "f" if final else ""
        if SOFT and j == 1:
            em([f"s_cmp_eq_u32 s{sK}, s{sTw}", f"s_cbranch_scc1 L_own{sfx}", f"L_own{sfx}_ret:"])
        if final:
            if PRIO and FIN[j] != "-": em(f"s_setprio {FIN[j]}")
        elif PRIO and j in (0, 2) and any(x % 2 == j // 2 for x in PTH):
            em([f"s_bitcmp1_b32 s{t5 if j == 0 else t4}, s{sK}", f"s_cbranch_scc1 L_prio{j}", f"L_prio{j}_ret:"])
        if final and j == 0:
            em([f"s_lshl_b32 s{t0}, s{sW}, 2", f"v_mov_b32 v42, s{t0}", f"s_add_u32 s{t0}, s{sW}, 1", f"s_cmp_eq_u32 s{sW}, {NW-1}",
                f"s_cselect_b32 s{t0}, 0, s{t0}", f"s_mul_i32 s{t0}, s{t0}, {SROW}", f"v_add_u32 v43, {ZROW*SROW}, v{vSC}"])
            lds(f"ds_write_b32 v42, v{vt+6} offset:{DONE}")
            em(["s_mov_b32 exec_lo, 0", f"v_add_u32 v43, s{t0}, v43", "s_mov_b64 exec, -1"])
        if final and j == 1:
            need("done")
            em([f"v_cmp_eq_u32 vcc, 0, v{vN}", "s_cbranch_vccnz L_cw", "L_cw_ret:"])
        if j & 1:
            em(g[GS2:16])
            if final: lds(f"ds_read2_b32 {P(vSO)}, v43 offset0:{32*j-32} offset1:{32*j}")
            rds(j - 1); rds(j)
        if not (final and j >= 2):
            lds(f"ds_read_b64_tr_b16 {P(vB5[j & 1])}, v{vQ} offset:{64*j2}", f"b5_{j2}")
        if j == 1 and not final:
            lds(gsrd(16)[0]); lds(gsrd(16)[1])
            lds(f"ds_read2_b32 {P(vAG)}, v{vPG} offset0:5 offset1:8")
            lds(f"ds_read_u16 v{vGQ}, v{vPR} offset:16", "gq")
        jn = (j + 1) & 3; un = jn >> 1
        if j & 1 == 0:
            need(f"b5_{j+1}")
            em(mf8(vTH, vA5, vB5[1], vr(vLb[j >> 1],16)))
            if j == 0: em(SAUPD)
            em(ex[0:EXP])
            em(g[0:GS1])
            if j == 2 and not final:
                lds(f"ds_read_b32 v{vKA}, v{vAG+1}")
                lds(f"ds_read_b64 {P(vA5)}, v{vAG}", "a5")
            em(ex[EXP:16])
            em(ch[0:CHP])
            em(g[GS1:GS2])
            if final and j == 0: lds(f"ds_read_b32 v{vN}, v42 offset:{DONE+4}", "done")
            em(ch[CHP:])
        else:
            if final and j == 3:
                em([f"s_cmp_ge_u32 s{sW}, 7", "s_cbranch_scc1 L_nw2b"] + w2ld(2) + w2ld(3) + ["L_nw2b:"])
                em(ex)
            else:
                em(f"s_waitcnt vmcnt({0 if final else 16})")
                if final: em([f"s_cmp_ge_u32 s{sW}, 7", "s_cbranch_scc1 L_nw2a"] + W2A + w2ld(0) + w2ld(1) + B2LD + ["L_nw2a:"])
                em(shifts(un))
                em(ex[0:2])
                need("a5" if j == 3 else f"b5_{jn}")
                em(mf8(vTL, vA5, vB5[0], vr(vTL,16)))
                if j == 3:
                    em(ex[2:6]); em(IXM); em(ex[6:])
                    em(PADV)
                else:
                    em(ex[2:])
                    if not final:
                        need("gq")
                        em([QUPD, AUPD])
            em(ch)
            a, b = j - 1, j
            em(pmul(vD, vDj[a], vDj[b]))
            i3 = inv(vD)
            em(i3[0:2]); em([pmul(vNj[a], vNj[a], vDj[b]), pmul(vNj[b], vNj[b], vDj[a]), i3[2]])
            need(f"so{j}")
            if final: em([f"v_add_f32 v{vSj[a]+1}, v{vSj[a]+1}, v{vSO}", f"v_add_f32 v{vSj[b]+1}, v{vSj[b]+1}, v{vSO+1}"])
            em([pfin(a, vE), pfin(b, vE)])
            if j == 3 and not final: em([f"s_sub_u32 s{sK}, s{sK}, 1", f"s_cmp_lg_u32 s{sK}, 1"])
            wr2(a)
    return list(body)
def resolve(seq2, start):
    res = []
    for pos in range(start, len(seq2)):
        x = seq2[pos]
        if isinstance(x, tuple) and x[0] == "need":
            n = 0; p = pos - 1
            while not (isinstance(seq2[p], tuple) and seq2[p][0] == "lds" and seq2[p][2] == x[1]):
                if isinstance(seq2[p], tuple) and seq2[p][0] == "lds": n += 1
                p -= 1
            covered = False
            for q in range(p + 1, pos):
                y = seq2[q]
                if isinstance(y, tuple) and y[0] == "need":
                    pp = q - 1
                    while not (isinstance(seq2[pp], tuple) and seq2[pp][0] == "lds" and seq2[pp][2] == y[1]): pp -= 1
                    if pp >= p: covered = True
            if not covered: res.append(f"s_waitcnt lgkmcnt({min(n,15)})")
        elif isinstance(x, tuple): res.append(x[1])
        else: res.append(x)
    return res
bl = gen_body(False); bf = gen_body(True)
def lstamp():
    if DEBUG and int(opts.get("lstamp", 0)):
        I(f"""
        {'s_memtime' if DEBUG == 2 else 's_memrealtime'} s[100:101]
        s_sub_u32 s99, 40, s{sK}
        s_mov_b32 m0, s99
        s_waitcnt lgkmcnt(0)
        v_writelane_b32 v{vST}, s100, m0
        """)
I(f"s_cmp_eq_u32 s{sK}, 1")
I("s_cbranch_scc1 L_final")
A(".p2align 6")
L("L_loop")
lstamp()
for l in resolve(bl + bl + bl, 2*len(bl)): I(l)
I("s_cbranch_scc1 L_loop")
L("L_final")
lstamp()
for l in resolve(bl + bl + bf, 2*len(bl)): I(l)
stamp()
I(f"""
s_cmp_ge_u32 s{sW}, 7
s_cbranch_scc1 L_epi_wait
s_branch L_epi2
""")
L("L_loop_done")
I(f"""
s_lshl_b32 s{t0}, s{sW}, 2
v_mov_b32 v42, s{t0}
ds_write_b32 v42, v{vt+6} offset:{DONE}
""")
L("L_epi")
I(f"""
s_cmp_ge_u32 s{sW}, 7
s_cbranch_scc1 L_epi_wait
s_waitcnt vmcnt(0)
""")
for l in W2A + w2ld(0) + w2ld(1) + B2LD + w2ld(2) + w2ld(3): I(l)
I(f"""
L_epi2:
v_and_b32 v42, 15, v{vLane}
s_lshl_b32 s{t0}, s{sW}, 4
v_add_u32 v43, s{t0}, v42
v_min_u32 v43, {ZROW}, v43
v_lshrrev_b32 v47, 4, v{vLane}
v_lshl_add_u32 v45, v47, 2, s{t0}
v_lshlrev_b32 v47, 2, v45
ds_read_b128 v[32:35], v47 offset:{CNT}
v_bfe_u32 v46, v{vLane}, 4, 1
v_lshrrev_b32 v47, 5, v{vLane}
v_lshlrev_b32 v46, 8, v46
v_lshl_add_u32 v46, v47, 7, v46
v_add_u32 v46, {SB}, v46
v_mul_u32_u24 v43, {SROW}, v43
v_add_u32 v43, v43, v46
v_lshlrev_b32 v45, 7, v45
v_lshl_add_u32 v45, v42, 3, v45
s_mov_b32 s{t0}, {f2u(-LN2)}
s_waitcnt vmcnt(8) lgkmcnt(0)
""")
vO = 12
for r in range(4): I(f"v_cvt_f32_u32 v{32+r}, v{32+r}")
for c in range(4):
    for r in range(0, 4, 2):
        I(f"v_pk_mul_f32 {P(vO+4*c+r)}, {P(32+r)}, {P(2 + (c & 2))} op_sel:[0,{c & 1}] op_sel_hi:[1,{c & 1}]")
I(f"""
L_epi_wait:
s_xor_b32 s{t1}, s{sW}, 11
s_xor_b32 s{t2}, s2, {int(opts.get("genwg", 255))}
s_or_b32 s{t1}, s{t1}, s{t2}
s_cmp_lg_u32 s{t1}, 0
s_cbranch_scc1 L_nogen
v_mov_b32 v46, 0
v_mov_b32 v47, s{sTag}
s_mov_b64 exec, 1
buffer_store_dword v47, v46, {sr(sWS,4)}, 0 offen sc0 sc1
s_mov_b64 exec, -1
L_nogen:
s_setprio 0
v_cmp_nge_f32 vcc, {f2u(2.0**100)}, v{vMX}
s_waitcnt lgkmcnt(0)
s_barrier
s_cmp_ge_u32 s{sW}, 7
s_cbranch_scc1 L_epi_end
""")
stamp()
vO = 12
vSR = 96
ep = []
def elds(t, tag=None): ep.append(("lds", t, tag))
for ks in range(4):
    for i_ in range(2):
        elds(f"ds_read_b128 {vr(vSR+8*ks+4*i_,4)}, v43 offset:{32*ks+16*i_}", f"s{ks}" if i_ else None)
ep.append("s_waitcnt vmcnt(0)")
def cvts(ks): return [f"v_cvt_pk_bf16_f32 v{vSR+8*ks+i_}, v{vSR+8*ks+2*i_}, v{vSR+8*ks+2*i_+1}" for i_ in range(4)]
def mms(ks): return [f"v_mfma_f32_16x16x32_bf16 {vr(vO+4*c,4)}, {vr(vSR+8*ks,4)}, {vr(vW2q[c]+4*ks,4)}, {vr(vO+4*c,4)}" for c in range(4)]
ep.append(("need", "s0")); ep += cvts(0)
for ks in range(4):
    if ks < 3:
        ep.append(("need", f"s{ks+1}"))
        c_ = cvts(ks+1); m_ = mms(ks)
        ep += [c_[0], m_[0], c_[1], m_[1], c_[2], m_[2], c_[3], m_[3]]
    else:
        ep.append("s_nop 0"); ep += mms(3)
for pos, x in enumerate(ep):
    if isinstance(x, tuple) and x[0] == "need":
        n = 0; p = pos - 1
        while not (isinstance(ep[p], tuple) and ep[p][0] == "lds" and ep[p][2] == x[1]):
            if isinstance(ep[p], tuple) and ep[p][0] == "lds": n += 1
            p -= 1
        I(f"s_waitcnt lgkmcnt({min(n,15)})")
    elif isinstance(x, tuple): I(x[1])
    else: I(x)
if int(opts.get("est", 0)): stamp()
I(f"s_mov_b32 s{t1}, s{t0}")
I("s_nop 6")
for i_ in range(8):
    if int(opts.get("epk", 0)): I(f"v_pk_mul_f32 {P(vO+2*i_)}, {P(vO+2*i_)}, {sr(t0,2)}")
    else:
        I(f"v_mul_f32 v{vO+2*i_}, s{t0}, v{vO+2*i_}")
        I(f"v_mul_f32 v{vO+2*i_+1}, s{t0}, v{vO+2*i_+1}")
for r in range(4):
    I(f"v_cvt_pk_bf16_f32 v{144+2*r}, v{vO+r}, v{vO+4+r}")
    I(f"v_cvt_pk_bf16_f32 v{145+2*r}, v{vO+8+r}, v{vO+12+r}")
    I(f"buffer_store_dwordx2 {P(144+2*r)}, v45, {sr(sOUT,4)}, 0 offen offset:{128*r} " + opts.get("ost", "sc1").replace("+", " "))
if int(opts.get("est", 0)): stamp()
I(f"""
v_add_f32 v72, v{vO}, v{vO+1}
v_add_f32 v73, v{vO+2}, v{vO+3}
v_add_f32 v72, v72, v73
v_mov_b32 v73, 0x7f800000
v_cmp_nlt_f32 {sr(sE0,2)}, |v72|, v73
s_or_b64 vcc, vcc, {sr(sE0,2)}
L_epi_end:
s_cmp_lg_u32 s{sMode}, 0
s_cbranch_scc1 L_fin
""")
if FORCE_SLOW == 2: I("s_mov_b64 vcc, 1")
I(f"""
v_mov_b32 v72, 0
v_mov_b32 v73, 1
s_cmp_eq_u64 vcc, 0
s_cbranch_scc1 L_noflag
ds_write_b32 v72, v73 offset:{FLAG}
L_noflag:
s_waitcnt lgkmcnt(0)
s_barrier
ds_read_b32 v73, v72 offset:{FLAG}
s_waitcnt lgkmcnt(0)
v_readfirstlane_b32 s{sBad}, v73
s_cmp_lg_u32 s{sBad}, 0
s_cbranch_scc1 L_slow
L_fin:
""")
if DEBUG:
    stamp()
    I("s_waitcnt vmcnt(0)")
    stamp(True)
    I(f"""
    s_lshl_b32 s{t0}, s2, 4
    s_add_u32 s{t0}, s{t0}, s{sW}
    s_lshl_b32 s{t0}, s{t0}, 8
    s_add_u32 s{t0}, s{t0}, {STAMP}
    v_lshlrev_b32 v72, 2, v{vLane}
    buffer_store_dword v{vST}, v72, {sr(sWS,4)}, s{t0} offen
    s_waitcnt vmcnt(0)
    """)
    if opts.get("dd"):
        sel = [int(x) for x in opts["dd"].split(",")]
        if int(opts.get("xcc", 0)):
            I(f"""
            s_getreg_b32 s98, hwreg(HW_REG_XCC_ID, 0, 4)
            s_sub_u32 s98, s98, s2
            s_and_b32 s98, s98, 7
            s_lshl_b32 s98, s98, 5
            s_add_u32 s99, s98, 256
            v_writelane_b32 v{vST}, s98, 21
            v_writelane_b32 v{vST}, s99, 19
            s_nop 1
            """)
        I(f"""
        s_cmp_lg_u32 s{sW}, {opts.get("ddw", 0)}
        s_cbranch_scc1 L_exit
        s_load_dwordx2 s[96:97], s[0:1], 72
        s_load_dwordx2 s[94:95], s[0:1], 0
        v_readlane_b32 s98, v{vST}, 21
        s_not_b32 s98, s98
        v_mov_b32 v73, 0
        s_nop 1
        v_writelane_b32 v73, s98, 8
        """)
        for n_, x in enumerate(sel):
            I(f"v_readlane_b32 s98, v{vST}, {abs(x)}")
            if x < 0: I("s_not_b32 s98, s98")
            I("s_nop 1")
            I(f"v_writelane_b32 v73, s98, {n_}")
        I(f"""
        s_waitcnt lgkmcnt(0)
        s_load_dword s99, s[94:95], 0
        s_mov_b64 exec, 0x1ff
        global_atomic_umax v72, v73, s[96:97]
        s_waitcnt vmcnt(0)
        s_mov_b64 exec, 1
        v_mov_b32 v74, 1
        global_atomic_add v72, v74, s[96:97] offset:128
        s_waitcnt vmcnt(0) lgkmcnt(0)
        s_cmp_lg_u32 s2, 0
        s_cbranch_scc1 L_exit
        """)
        if int(opts.get("rt", 0)):
            I(f"""
            s_cmp_eq_u32 s99, 1013857686
            s_cbranch_scc1 L_exit
            s_cmp_eq_u32 s99, 976927781
            s_cbranch_scc1 L_exit
            s_lshr_b32 s98, s100, 2
            s_and_b32 s98, s98, {int(opts["rt"]) - 1}
            s_cmp_lg_u32 s98, 0
            s_cbranch_scc1 L_exit
            """)
        else:
            I(f"""
            s_cmp_eq_u32 s99, 1013857686
            s_cbranch_scc1 L_exit
            s_cmp_eq_u32 s99, 976927781
            s_cbranch_scc1 L_exit
            """)
        I(f"""
        s_mov_b32 s98, 0
        L_dd:
        global_load_dword v74, v72, s[96:97] offset:128 sc1
        s_add_u32 s98, s98, 1
        s_cmp_gt_u32 s98, 100000
        s_cbranch_scc1 L_exit
        s_waitcnt vmcnt(0)
        v_cmp_ne_u32 vcc, 0x100, v74
        s_cbranch_vccnz L_dd
        s_mov_b64 exec, 0x1ff
        global_load_dword v74, v72, s[96:97] sc1
        s_waitcnt vmcnt(0)
        v_readlane_b32 s98, v74, 8
        s_not_b32 s98, s98
        s_mov_b64 exec, {sum(1 << n_ for n_, x in enumerate(sel) if x < 0)}
        v_not_b32 v74, v74
        s_mov_b64 exec, 0xff
        v_subrev_u32 v74, s98, v74
        v_cvt_f32_u32 v74, v74
        v_mul_f32 v74, 1.0, v74
        v_cvt_pk_bf16_f32 v74, v74, v74
        v_lshlrev_b32 v75, 1, v{vLane}
        buffer_store_short v74, v75, {sr(sOUT,4)}, 0 offen
        s_waitcnt vmcnt(0)
        """)
L("L_exit")
I("s_endpgm")

if PRIO:
    for j in (0, 2):
        lv = [(i, x) for i, x in enumerate(PTH) if x % 2 == j // 2]
        if not lv and not stg_at(j): continue
        L(f"L_prio{j}")
        if stg_at(j):
            I(f"""
            v_mov_b32 v{vt+5}, 64
            ds_write_b32 v{vt+7}, v{vt+5} offset:{PROG}
            """)
        for n_, (i, x) in enumerate(lv):
            I(f"s_cmp_eq_u32 s{sK}, {(x + 1) // 2}")
            I(f"s_cbranch_scc0 L_prio{j}_{n_}")
            I(f"s_setprio {2 - i}")
            L(f"L_prio{j}_{n_}")
        I(f"s_branch L_prio{j}_ret")
if SOFT:
    for sfx in ("", "f"):
        I(f"""
        L_own{sfx}:
        s_mov_b32 s{t0}, 0
        L_own{sfx}_l:
        ds_read_b32 v{vt+5}, v{vt+7} offset:{PROG}
        s_waitcnt lgkmcnt(0)
        v_cmp_gt_u32 vcc, {NW}, v{vt+5}
        s_cbranch_vccz L_own{sfx}_ret
        s_add_u32 s{t0}, s{t0}, 1
        s_cmp_gt_u32 s{t0}, 0x100000
        s_cbranch_scc1 L_exit
        s_sleep 1
        s_branch L_own{sfx}_l
        """)
I(f"""
L_build2:
s_waitcnt lgkmcnt(0)
v_add_u32 v144, 192, v144
v_add_u32 v145, 384, v145
s_cmp_lt_u32 s{sKb}, 7
s_cbranch_scc1 L_build
s_lshl_b32 s{t0}, s{sKb}, 5
s_add_u32 s{t1}, s{t0}, {OVF - 7*32}
v_mov_b32 v144, s{t1}
s_add_u32 s{t1}, s{t1}, s{t0}
v_mov_b32 v145, s{t1}
s_branch L_build
""")
I(f"""
L_cw:
s_cmp_eq_u32 s{sW}, {NW-1}
s_cbranch_scc1 L_cw_ret
s_mov_b32 s{t0}, 0
L_cw_l:
ds_read_b32 v{vN}, v42 offset:{DONE+4}
s_waitcnt lgkmcnt(0)
v_cmp_eq_u32 vcc, 0, v{vN}
s_cbranch_vccz L_cw_ret
s_add_u32 s{t0}, s{t0}, 1
s_cmp_gt_u32 s{t0}, 0x100000
s_cbranch_scc1 L_exit
s_sleep 1
s_branch L_cw_l
""")
for fx, s_ in fixups:
    r = slotreg[s_]
    I(f"""
    L_fx{fx}:
    v_min_u32 v142, {CAP + 23}, v{r+3}
    v_subrev_u32 v142, {CAP}, v142
    v_mov_b32 v143, {OVF}
    v_lshl_add_u32 v136, v142, 2, v143
    v_lshl_add_u32 v142, v142, 3, v143
    v_cndmask_b32 v141, v141, v136, vcc
    v_cndmask_b32 v{vTA[s_]}, v{vTA[s_]}, v142, vcc
    s_branch L_fr{fx}
    """)
I(f"""
L_w2ld:
s_cmp_gt_u32 s2, 16
s_cbranch_scc1 L_p_done
s_cmp_lt_u32 s2, 16
s_cbranch_scc1 L_opt_c
v_lshlrev_b32 v12, 1, v{vLane}
global_load_ushort v{vW2S}, v12, {sr(pB2,2)}
s_branch L_p_done
L_opt_c:
s_and_b32 s{t0}, s2, 3
s_lshl_b32 s{t0}, s{t0}, 10
s_lshr_b32 s{t3}, s2, 2
s_lshl_b32 s{t3}, s{t3}, 1
s_add_u32 s{t0}, s{t0}, s{t3}
v_bfe_u32 v12, v{vLane}, 4, 1
v_lshlrev_b32 v12, 13, v12
v_lshrrev_b32 v13, 5, v{vLane}
v_lshl_add_u32 v12, v13, 12, v12
v_and_b32 v13, 15, v{vLane}
v_lshl_add_u32 v12, v13, 3, v12
""")
for i_ in range(8):
    I(f"buffer_load_ushort v{vW2S+i_}, v12, {sr(sD,4)}, s{t0} offen offset:{128*i_}")
I("s_branch L_p_done")
L("L_slow")
I(f"""
s_setprio 0
s_mov_b32 s{sMode}, 1
s_mov_b32 s{sK0}, 0
s_waitcnt vmcnt(0) lgkmcnt(0)
s_barrier
v_mov_b32 v{vt+6}, 1
v_mov_b32 v{vMX}, 0
""")
small_init(64)
s_zero(64)
desc_consts()
for jj in range(3): I(poll_load(jj))
I("s_waitcnt vmcnt(0)")
I(f"""
s_cmp_lt_u32 s{sW}, 8
s_cselect_b32 s{t0}, -1, 0
v_and_b32 v{vDs+4}, s{t0}, v{vDs+4}
""")
for jj in range(3): decode(jj)
for jj in range(3):
    I(f"v_mov_b32 v{144+jj}, v{vRA+jj}")
    I(f"v_mov_b32 v{147+jj}, v{vCn+jj}")
I(f"""
s_mov_b32 s{t5}, {KMASK}
v_mov_b32 v150, {KCON}
v_mov_b32 v{vKA+1}, 0x3c00
v_and_b32 v72, 31, v{vLane}
v_lshlrev_b32 v72, 2, v72
v_add_u32 v{vSC}, {SB}, v72
v_add_u32 v{vSC+1}, {SB}, v72
v_bfe_u32 v73, v{vLane}, 4, 1
v_lshlrev_b32 v73, 5, v73
v_and_b32 v74, 3, v{vLane}
v_lshl_add_u32 v73, v74, 3, v73
v_add_u32 v{vQC}, {QB}, v73
v_bfe_u32 v75, v{vLane}, 2, 2
v_add_u32 v76, 98, v75
v_mul_u32_u24 v76, {QROW}, v76
v_add_u32 v{vQ}, v76, v{vQC}
v_max3_i32 v137, v147, v148, v149
v_max_i32 v137, 0, v137
v_mov_b32 v138, 0
s_waitcnt lgkmcnt(0)
s_barrier
ds_max_u32 v138, v137 offset:{MAXC}
s_waitcnt lgkmcnt(0)
s_barrier
ds_read_b32 v137, v138 offset:{MAXC}
s_waitcnt lgkmcnt(0)
v_readfirstlane_b32 s{sMaxc}, v137
L_round:
s_barrier
""")
area_init(64)
I(f"""
v_lshlrev_b32 v64, 2, v0
v_add_u32 v64, {CNTR}, v64
v_mov_b32 v65, 0
v_cmp_gt_u32 vcc, 128, v0
s_and_b64 exec, exec, vcc
ds_write_b32 v64, v65
s_mov_b64 exec, -1
""")
for jj in range(3):
    I(f"v_cmp_lt_i32 {sr(sM+2*jj,2)}, s{sK0}, v{147+jj}")
for jj in range(3):
    I(f"s_mov_b64 exec, {sr(sM+2*jj,2)}")
    I(f"buffer_load_dwordx3 {vr(48+4*jj,3)}, v{144+jj}, {sr(sWS,4)}, s{sGam} offen sc1")
I(f"""
s_mov_b64 exec, -1
s_waitcnt vmcnt(0) lgkmcnt(0)
s_barrier
""")
for jj in range(3):
    r = 48 + 4*jj
    I(f"""
    s_mov_b64 exec, {sr(sM+2*jj,2)}
    v_bfe_u32 v{60+jj}, v{r+2}, 10, 9
    v_and_or_b32 v{r+2}, v{r+2}, s{t5}, v150
    v_add_u32 v{72+jj}, {GBASE}, v{60+jj}
    ds_add_rtn_u32 v{r+3}, v{72+jj}, v{vt+6} offset:512
    ds_add_u32 v{60+jj}, v{vt+6} offset:{CNT}
    """)
I(f"""
s_mov_b64 exec, -1
s_waitcnt lgkmcnt(0)
s_barrier
v_lshlrev_b32 v64, 3, v{vLane}
v_add_u32 v64, {GBASE}, v64
ds_read_b64 v[66:67], v64 offset:512
s_waitcnt lgkmcnt(0)
v_add_u32 v66, 7, v66
v_add_u32 v67, 7, v67
v_lshrrev_b32 v66, 3, v66
v_lshrrev_b32 v67, 3, v67
v_add_u32 v68, v66, v67
v_mov_b32 v69, v68
""")
dpp_scan(69)
I(f"""
v_readlane_b32 s{sG}, v69, 63
v_sub_u32 v70, v69, v68
v_add_u32 v71, v70, v66
ds_write_b64 v64, v[70:71]
s_add_u32 s{sNT}, s{sG}, 3
s_lshr_b32 s{sNT}, s{sNT}, 2
s_waitcnt lgkmcnt(0)
""")
for jj in range(3):
    r = 48 + 4*jj
    I(f"""
    s_mov_b64 exec, {sr(sM+2*jj,2)}
    ds_read_b32 v64, v{72+jj}
    ds_read_b32 v71, v{72+jj} offset:512
    v_lshrrev_b32 v65, 3, v{r+3}
    v_and_b32 v66, 7, v{r+3}
    v_lshrrev_b32 v67, 2, v{60+jj}
    s_waitcnt lgkmcnt(0)
    v_add_u32 v64, v64, v65
    v_lshlrev_b32 v65, 3, v65
    v_sub_u32 v71, v71, v65
    v_min_u32 v71, 8, v71
    v_lshlrev_b32 v71, 3, v71
    v_sub_u32 v71, 64, v71
    v_mul_u32_u24 v68, {SROW}, v67
    v_mul_u32_u24 v69, {QROW}, v67
    v_lshl_or_b32 v68, v69, 16, v68
    v_lshlrev_b32 v69, 4, v64
    v_add_u32 v69, {GT}, v69
    ds_write2_b32 v69, v71, v68 offset0:2 offset1:3
    v_mul_u32_u24 v65, 9363, v64
    v_lshrrev_b32 v65, 16, v65
    v_mul_u32_u24 v67, 7, v65
    v_sub_u32 v64, v64, v67
    v_mul_u32_u24 v65, {NSZ}, v65
    v_add_u32 v65, {AREA}, v65
    v_lshl_add_u32 v67, v64, 5, v65
    v_lshl_add_u32 v70, v64, 6, v65
    v_add_u32 v70, {EOFF}, v70
    ds_write2_b32 v69, v67, v70 offset0:0 offset1:1
    v_lshl_add_u32 v75, v66, 2, v67
    v_lshl_add_u32 v76, v66, 3, v70
    ds_write_b32 v75, v{r+2}
    ds_write_b64 v76, {P(r)}
    s_waitcnt lgkmcnt(0)
    """)
I(f"""
s_mov_b64 exec, -1
s_barrier
s_mov_b32 s{sK}, s{sW}
L_stile:
s_cmp_ge_u32 s{sK}, s{sNT}
s_cbranch_scc1 L_stile_done
s_lshl_b32 s{t0}, s{sK}, 6
s_add_u32 s{t0}, s{t0}, {GT}
""")
ptr_consts(f"s{t0}")
I(f"""
ds_read2_b32 {P(vAG)}, v{vPG} offset0:1 offset1:0
ds_read_u16 v{vGQ}, v{vPR}
{gsrd(0)[0]}
{gsrd(0)[1]}
s_waitcnt lgkmcnt(0)
{AUPD}
ds_read_b32 v{vKA}, v{vAG+1}
ds_read_b64 {P(vA5)}, v{vAG}
s_waitcnt lgkmcnt(0)
{IXM}
s_nop 15
""")
for l in gload(0) + gload(1) + SAUPD + [QUPD]: I(l)
I("s_waitcnt vmcnt(0)")
for u in range(2):
    I(f"ds_read_b64_tr_b16 {P(vB5[0])}, v{vQ} offset:{128*u}")
    I(f"ds_read_b64_tr_b16 {P(vB5[1])}, v{vQ} offset:{128*u+64}")
    for l in shifts(u): I(l)
    I("s_waitcnt lgkmcnt(0)")
    I("s_nop 1")
    I(mf8(vTL, vA5, vB5[0], vr(vTL,16)))
    I(mf8(vTH, vA5, vB5[1], vr(vLb[u],16)))
    I("s_nop 15")
    for hi, T in enumerate((vTL, vTH)):
        for i in range(16): I(f"v_exp_f32 v{vE+i}, v{T+i}")
        for i in range(16): I(f"v_add_f32 v{vE+i}, 1.0, v{vE+i}")
        for i in range(16): I(f"v_rcp_f32 v{vE+i}, v{vE+i}")
        I(f"v_pk_mul_f32 {P(vN)}, {P(T)}, {P(vE)}")
        for i in range(1, 8): I(f"v_pk_fma_f32 {P(vN)}, {P(T+2*i)}, {P(vE+2*i)}, {P(vN)}")
        I(f"ds_add_f32 v{vSA}, v{vN} offset:{128*(2*u+hi)}")
        I(f"ds_add_f32 v{vSA+1}, v{vN+1} offset:{128*(2*u+hi)}")
        I("s_waitcnt lgkmcnt(0)")
I(f"""
s_add_u32 s{sK}, s{sK}, {NW}
s_branch L_stile
L_stile_done:
s_add_u32 s{sK0}, s{sK0}, 8
s_add_u32 s{sGam}, s{sGam}, 96
s_cmp_lt_u32 s{sK0}, s{sMaxc}
s_cbranch_scc1 L_round
s_barrier
s_branch L_epi
""")

A('.section .rodata,"a"')
A(".p2align 6")
A(f".amdhsa_kernel {KNAME}")
A(f"  .amdhsa_next_free_vgpr {NVGPR}")
A("  .amdhsa_next_free_sgpr 102")
A(f"  .amdhsa_accum_offset {NVGPR}")
A("  .amdhsa_group_segment_fixed_size 0")
A("  .amdhsa_kernarg_size 88")
A("  .amdhsa_user_sgpr_count 2")
A("  .amdhsa_user_sgpr_kernarg_segment_ptr 1")
A("  .amdhsa_system_sgpr_workgroup_id_x 1")
A("  .amdhsa_float_denorm_mode_32 3")
A(".end_amdhsa_kernel")
open(sys.argv[1], "w").write("\n".join(out) + "\n")
print("LDS", LDS, "SB", SB, "QB", QB, "lines", len(out), file=sys.stderr)
```
